```python
import torch

def _softmax(x, axis=-1):
    return torch.softmax(x, dim=axis)

def _gelu(x):
    return torch.nn.functional.gelu(x, approximate='tanh')

def _silu(x):
    return torch.nn.functional.silu(x)

def _sigmoid(x):
    return torch.sigmoid(x)

def _layernorm(x, axis=-1, eps=1e-05):
    m = x.mean(dim=axis, keepdim=True)
    v = x.var(dim=axis, keepdim=True, unbiased=False)
    return (x - m) / torch.sqrt(v + eps)

def _scatter_add(tgt, idx, src, axis=0):
    return tgt.clone().index_add_(axis, idx, src)

def _segment_sum(src, seg, n):
    out = torch.zeros((n,) + src.shape[1:], dtype=src.dtype)
    return out.index_add_(0, seg, src)

def _pad(x, pw):
    flat = tuple((v for pair in reversed(pw) for v in pair))
    return torch.nn.functional.pad(x, flat)
kernel_name = 'adaLN_cond__linear_kernel_hedgehog__dense_activation_squared_relu__prompt'

def setup_inputs():

    _w = lambda a: (lambda t: t.to(torch.bfloat16) if t.is_floating_point() else t)(torch.as_tensor(a))

    def _A_setup():
        B, S, D, H = (1, 2048, 1024, 32)
        Dh = D // H
        return {'x': _w((lambda *s: torch.randn(*s, dtype=torch.bfloat16) * 0.05)(B, S, D)), 'wqkv': _w((lambda *s: torch.randn(*s, dtype=torch.bfloat16) * 0.4)(D, 3 * D)), 'w_phi': _w((lambda *s: torch.randn(*s, dtype=torch.bfloat16) * 0.4)(H, Dh, Dh) * Dh ** (-0.5)), 'wo': _w((lambda *s: torch.randn(*s, dtype=torch.bfloat16) * 0.05)(D, D))}
    _A_in = _A_setup()

    def _B_setup():
        B, S, D, F = (1, 2048, 1024, 3584)
        return {'x': _w((lambda *s: torch.randn(*s, dtype=torch.bfloat16) * 0.05)(B, S, D)), 'w1': _w((lambda *s: torch.randn(*s, dtype=torch.bfloat16) * 0.05)(D, F)), 'b1': _w((lambda *s: torch.randn(*s, dtype=torch.bfloat16) * 0.4)(F)), 'w2': _w((lambda *s: torch.randn(*s, dtype=torch.bfloat16) * 0.05)(F, D)), 'b2': _w((lambda *s: torch.randn(*s, dtype=torch.bfloat16) * 6.4)(D))}
    _B_in = _B_setup()
    return {'A_x': _A_in['x'], 'A_wqkv': _A_in['wqkv'], 'A_w_phi': _A_in['w_phi'], 'A_wo': _A_in['wo'], 'B_x': _B_in['x'], 'B_w1': _B_in['w1'], 'B_b1': _B_in['b1'], 'B_w2': _B_in['w2'], 'B_b2': _B_in['b2'], 'c': _w((lambda *s: torch.randn(*s, dtype=torch.bfloat16) * 0.1)(1, 1024) * 8.0), 'w_mod': _w((lambda *s: torch.randn(*s, dtype=torch.bfloat16) * 0.1)(1024, 6 * 1024) * 1024 ** (-0.5) * 8.0)}

def reference(A_x, A_wqkv, A_w_phi, A_wo, B_x, B_w1, B_b1, B_w2, B_b2, c, w_mod):

    def _A_ref(x, wqkv, w_phi, wo):
        B, S, D = x.shape
        H = 32
        Dh = D // H
        qkv = (lambda x, *d: x.permute(*d))((x @ wqkv).reshape(B, S, 3, H, Dh), 2, 0, 3, 1, 4)
        q, k, v = (qkv[0], qkv[1], qkv[2])
        pq = torch.einsum('bhsd,hdf->bhsf', q, w_phi)
        pk = torch.einsum('bhsd,hdf->bhsf', k, w_phi)
        phi_q = torch.concatenate([_softmax(pq, axis=-1), _softmax(-pq, axis=-1)], axis=-1)
        phi_k = torch.concatenate([_softmax(pk, axis=-1), _softmax(-pk, axis=-1)], axis=-1)
        kv = torch.einsum('bhsf,bhsd->bhfd', phi_k, v)
        z = torch.einsum('bhsf->bhf', phi_k)
        num = torch.einsum('bhqf,bhfd->bhqd', phi_q, kv)
        den = torch.einsum('bhqf,bhf->bhq', phi_q, z)[..., None] + 1e-06
        o = num / den
        return (lambda x, *d: x.permute(*d))(o, 0, 2, 1, 3).reshape(B, S, D) @ wo

    def _B_ref(x, w1, b1, w2, b2):
        h = torch.einsum('bsd,df->bsf', x, w1) + b1
        zero = torch.zeros_like(h)
        r = torch.where(h > zero, h, zero)
        h = r * r
        out = torch.einsum('bsf,fd->bsd', h, w2) + b2
        return out
    x = A_x
    mod = (_silu(c) @ w_mod).reshape(c.shape[0], 6, 1, -1)
    sa, ca, ga, sb, cb, gb = (mod[:, 0].clone(), mod[:, 1].clone(), mod[:, 2].clone(), mod[:, 3].clone(), mod[:, 4].clone(), mod[:, 5].clone())
    h = _layernorm(x, axis=-1) * (1 + ca) + sa
    x = x + ga * _A_ref(h, A_wqkv, A_w_phi, A_wo)
    h = _layernorm(x, axis=-1) * (1 + cb) + sb
    x = x + gb * _B_ref(h, B_w1, B_b1, B_w2, B_b2)
    return x
```

```python
class Asm:
    def __init__(self):
        self.lines = []
        self.launches = []
        self.descs = []
    def __call__(self, s):
        for l in s.split('\n'):
            l = l.strip()
            if l: self.lines.append('    ' + l)
    def label(self, l): self.lines.append(l + ':')
    def comment(self, c): self.lines.append('    ; ' + c)
    def kernel_begin(self, name):
        self.lines += ['.text', '.globl ' + name, '.p2align 8', '.type %s,@function' % name, name + ':']
    def kernel_end(self, name, vgpr, sgpr, accum, grid, block, lds, launch=True):
        self.descs.append('''.section .rodata,"a"
.p2align 6
.amdhsa_kernel %s
  .amdhsa_next_free_vgpr %d
  .amdhsa_next_free_sgpr %d
  .amdhsa_accum_offset %d
  .amdhsa_group_segment_fixed_size 0
  .amdhsa_kernarg_size 112
  .amdhsa_user_sgpr_count 2
  .amdhsa_user_sgpr_kernarg_segment_ptr 1
  .amdhsa_system_sgpr_workgroup_id_x 1
.end_amdhsa_kernel''' % (name, vgpr, sgpr, accum))
        if launch:
            self.launches.append('; @launch kernel=%s grid=(%d,1,1) block=(%d,1,1) lds=%d' % (name, grid, block, lds))
    def text(self, header='', verbose=False):
        import hazard
        self.lines = hazard.pad(self.lines, verbose)
        return header + '\n'.join(self.launches) + '\n.amdgcn_target "amdgcn-amd-amdhsa--gfx950"\n' + '\n'.join(self.lines) + '\n' + '\n'.join(self.descs) + '\n'
```

```python
from asmgen import Asm

class G:
    pass

def gemm_prologue(a, c):
    a('v_lshrrev_b32 v2, 6, v0')
    a('v_and_b32 v1, 63, v0')
    a('v_readfirstlane_b32 s%d, v2' % c.s_wave)

def panel_cols(a, c):
    pass

def producer(a, c, lbl_after):
    BK, S = c.BK, c.S
    nsub = BK // 32
    KG = c.K // 32
    nst = c.K // BK
    sp = c.s_tmp
    a('s_sub_u32 s%d, s%d, 4' % (sp, c.s_wave))
    nxb = c.BM // 16 * nsub
    nx = nxb // 4
    mb_per_wave = c.BM // 16 // 4
    instrs = []
    v = 2
    a('v_lshlrev_b32 v%d, 4, v1' % v); vl16 = v; v += 1
    a('s_mul_i32 s%d, s%d, %d' % (sp+1, c.s_mt, c.BM // 16))
    a('s_mul_i32 s%d, s%d, %d' % (sp+2, sp, mb_per_wave))
    a('s_add_u32 s%d, s%d, s%d' % (sp+1, sp+1, sp+2))
    a('s_mul_i32 s%d, s%d, %d' % (sp+1, sp+1, KG*1024))
    for i in range(mb_per_wave):
        for kg in range(nsub):
            a('s_add_u32 s%d, s%d, %d' % (sp+2, sp+1, i*KG*1024 + kg*1024))
            a('v_add_u32 v%d, s%d, v%d' % (v, sp+2, vl16))
            instrs.append((c.sX, v, c.s_kx, 'x', (i*nsub+kg)*1024)); v += 1
    a('s_mul_i32 s%d, s%d, %d' % (c.s_px, sp, mb_per_wave*nsub*1024))
    nfull = c.nfull
    per_panel = BK // 8
    nw = nfull * per_panel // 4
    vrow = v; v += 1; vt = v; v += 1; vlane = v; v += 1
    a('v_lshrrev_b32 v%d, 3, v1' % vrow)
    a('v_lshrrev_b32 v%d, 1, v%d' % (vt, vrow))
    a('v_and_b32 v%d, 3, v%d' % (vt, vt))
    a('v_lshlrev_b32 v%d, 1, v%d' % (vt, vt))
    a('v_and_b32 v%d, 7, v1' % vlane)
    a('v_xor_b32 v%d, v%d, v%d' % (vlane, vlane, vt))
    a('v_lshlrev_b32 v%d, 4, v%d' % (vlane, vlane))
    a('s_mov_b32 s%d, %d' % (sp+1, c.ldw))
    a('v_mul_lo_u32 v%d, v%d, s%d' % (vrow, vrow, sp+1))
    a('v_add_u32 v%d, v%d, v%d' % (vlane, vlane, vrow))
    lg = per_panel.bit_length() - 1
    assert 1 << lg == per_panel
    for i in range(nw):
        a('s_mul_i32 s%d, s%d, %d' % (sp+1, sp, nw))
        a('s_add_u32 s%d, s%d, %d' % (sp+1, sp+1, i))
        a('s_lshr_b32 s%d, s%d, %d' % (sp+2, sp+1, lg))
        a('s_and_b32 s%d, s%d, %d' % (sp+1, sp+1, per_panel-1))
        a('s_mul_i32 s%d, s%d, %d' % (sp+1, sp+1, 8*c.ldw))
        a('s_mul_i32 s%d, s%d, %d' % (sp+2, sp+2, c.panel_stride))
        a('s_add_u32 s%d, s%d, s%d' % (sp+1, sp+1, sp+2))
        a('s_add_u32 s%d, s%d, s%d' % (sp+1, sp+1, c.s_col0))
        a('v_add_u32 v%d, s%d, v%d' % (v, sp+1, vlane))
        instrs.append((c.sW, v, c.s_kw, 'w', i*1024)); v += 1
    a('s_mul_i32 s%d, s%d, %d' % (c.s_pw, sp, nw*1024))
    a('s_add_u32 s%d, s%d, %d' % (c.s_pw, c.s_pw, c.xbytes))
    if c.half:
        nh = BK // 64
        a('v_lshrrev_b32 v%d, 2, v1' % vrow)
        a('v_lshrrev_b32 v%d, 2, v%d' % (vt, vrow))
        a('v_and_b32 v%d, 1, v%d' % (vt, vt))
        a('v_lshlrev_b32 v%d, 1, v%d' % (vt, vt))
        a('v_and_b32 v%d, 3, v1' % vlane)
        a('v_xor_b32 v%d, v%d, v%d' % (vlane, vlane, vt))
        a('v_lshlrev_b32 v%d, 4, v%d' % (vlane, vlane))
        a('s_mov_b32 s%d, %d' % (sp+1, c.ldw))
        a('v_mul_lo_u32 v%d, v%d, s%d' % (vrow, vrow, sp+1))
        a('v_add_u32 v%d, v%d, v%d' % (vlane, vlane, vrow))
        for i in range(nh):
            a('s_mul_i32 s%d, s%d, %d' % (sp+1, sp, nh*16*c.ldw))
            a('s_add_u32 s%d, s%d, %d' % (sp+1, sp+1, i*16*c.ldw))
            a('s_add_u32 s%d, s%d, s%d' % (sp+1, sp+1, c.s_colh))
            a('v_add_u32 v%d, s%d, v%d' % (v, sp+1, vlane))
            instrs.append((c.sW, v, c.s_kw, 'h', i*1024)); v += 1
        a('s_mul_i32 s%d, s%d, %d' % (c.s_ph, sp, nh*1024))
        a('s_add_u32 s%d, s%d, %d' % (c.s_ph, c.s_ph, c.xbytes + nfull*BK*128))
    n = len(instrs)
    c.n_dma = n
    base = {'x': c.s_px, 'w': c.s_pw, 'h': c.s_ph}
    a('s_mov_b32 s%d, 0' % c.s_kx)
    a('s_mov_b32 s%d, 0' % c.s_kw)
    a('s_mov_b32 s%d, 0' % c.s_slot)
    def issue():
        last = None
        for (srd, vr, so, kind, lc) in instrs:
            if kind != last:
                a('s_add_u32 s%d, s%d, s%d' % (sp, base[kind], c.s_slot)); last = kind
            if lc: a('s_add_u32 m0, s%d, %d' % (sp, lc))
            else: a('s_mov_b32 m0, s%d' % sp)
            a('s_nop 0')
            if not c.no_dma:
                a('buffer_load_dwordx4 v%d, s[%d:%d], s%d offen lds' % (vr, srd, srd+3, so))
        a('s_add_u32 s%d, s%d, %d' % (c.s_kx, c.s_kx, nsub*1024))
        a('s_add_u32 s%d, s%d, %d' % (c.s_kw, c.s_kw, BK*c.ldw))
        a('s_add_u32 s%d, s%d, %d' % (c.s_slot, c.s_slot, c.slot))
        a('s_cmp_ge_u32 s%d, %d' % (c.s_slot, c.slot*S))
        a('s_cselect_b32 s%d, 0, s%d' % (c.s_slot, c.s_slot))
    assert (S-1)*n <= 63
    for st in range(S): issue()
    a('s_waitcnt vmcnt(%d)' % ((S-1)*n))
    a('s_barrier')
    nsteady = nst - S
    a('s_mov_b32 s%d, %d' % (c.s_cnt, nsteady))
    a.label(c.name + '_ploop')
    a('s_waitcnt vmcnt(%d)' % ((S-2)*n))
    a('s_barrier')
    issue()
    a('s_sub_u32 s%d, s%d, 1' % (c.s_cnt, c.s_cnt))
    a('s_cmp_lg_u32 s%d, 0' % c.s_cnt)
    a('s_cbranch_scc1 %s_ploop' % c.name)
    for k in range(nst-S+1, nst):
        a('s_waitcnt vmcnt(%d)' % ((nst-1-k)*n))
        a('s_barrier')
    a('s_branch %s' % lbl_after)

def consumer(a, c):
    BK, S = c.BK, c.S
    nsub = BK // 32
    nst = c.K // BK
    TMb = c.BM // 2 // 16
    nWf = c.nfull * 2 + (1 if c.half else 0)
    sp = c.s_tmp
    vX = c.v_addr; vW0 = vX+1; vW1 = vX+2; vH = vX+3
    a('s_lshr_b32 s%d, s%d, 1' % (c.s_rh, c.s_wave))
    a('s_and_b32 s%d, s%d, 1' % (c.s_nh, c.s_wave))
    a('s_mul_i32 s%d, s%d, %d' % (sp, c.s_rh, TMb*nsub*1024))
    a('v_lshlrev_b32 v%d, 4, v1' % vX)
    a('v_add_u32 v%d, s%d, v%d' % (vX, sp, vX))
    t0, t1 = c.v_tmp, c.v_tmp+1
    a('v_lshrrev_b32 v%d, 2, v1' % t0)
    a('v_lshrrev_b32 v%d, 3, v1' % t1)
    a('v_and_b32 v%d, 3, v%d' % (t1, t1))
    a('s_lshl_b32 s%d, s%d, 1' % (sp, c.s_nh))
    a('v_xor_b32 v%d, s%d, v%d' % (vW0, sp, t1))
    a('v_xor_b32 v%d, 1, v%d' % (vW1, vW0))
    a('v_lshlrev_b32 v%d, 5, v%d' % (vW0, vW0))
    a('v_lshlrev_b32 v%d, 5, v%d' % (vW1, vW1))
    a('v_lshlrev_b32 v%d, 7, v%d' % (t1, t0))
    a('v_add_u32 v%d, v%d, v%d' % (vW0, vW0, t1))
    a('v_add_u32 v%d, v%d, v%d' % (vW1, vW1, t1))
    a('v_and_b32 v%d, 3, v1' % t1)
    a('v_lshlrev_b32 v%d, 3, v%d' % (t1, t1))
    a('v_add_u32 v%d, %d, v%d' % (t1, c.xbytes, t1))
    a('v_add_u32 v%d, v%d, v%d' % (vW0, vW0, t1))
    a('v_add_u32 v%d, v%d, v%d' % (vW1, vW1, t1))
    if c.half:
        a('v_lshrrev_b32 v%d, 4, v1' % vH)
        a('v_and_b32 v%d, 1, v%d' % (vH, vH))
        a('v_xor_b32 v%d, s%d, v%d' % (vH, c.s_nh, vH))
        a('v_lshlrev_b32 v%d, 5, v%d' % (vH, vH))
        a('v_lshlrev_b32 v%d, 6, v%d' % (t0, t0))
        a('v_add_u32 v%d, v%d, v%d' % (vH, vH, t0))
        a('v_add_u32 v%d, v%d, v%d' % (vH, vH, t1))
        a('v_add_u32 v%d, %d, v%d' % (vH, c.nfull*BK*128, vH))
    nacc = TMb * nWf * 4
    fsz = (TMb + nWf) * 4
    c.v_acc = c.v_frag + 2*fsz
    c.v_free = c.v_acc + nacc
    if c.pre_hook: c.pre_hook(a, c)
    for i in range(nacc): a('v_mov_b32 v%d, 0' % (c.v_acc+i))
    def xreg(s, j): return c.v_frag + s*fsz + j*4
    def wreg(s, j): return c.v_frag + s*fsz + TMb*4 + j*4
    def reads(s, sub):
        r = []
        xs = ['ds_read_b128 v[%d:%d], v%d offset:%d' % (xreg(s,j), xreg(s,j)+3, vX, (j*nsub+sub)*1024) for j in range(TMb)]
        ws = []
        for j in range(nWf):
            for t in range(2):
                if j < c.nfull*2:
                    p, uu = j // 2, j % 2
                    ws.append('ds_read_b64_tr_b16 v[%d:%d], v%d offset:%d' % (wreg(s,j)+2*t, wreg(s,j)+2*t+1, vW0+uu, p*BK*128 + sub*4096 + t*2048))
                else:
                    ws.append('ds_read_b64_tr_b16 v[%d:%d], v%d offset:%d' % (wreg(s,j)+2*t, wreg(s,j)+2*t+1, vH, sub*2048 + t*1024))
        r = ws[:2] + xs + ws[2:]
        if c.no_lds: r = []
        return r
    def mfmas(s):
        r = []
        for j in range(nWf):
            for i in range(TMb):
                t = c.v_acc + (j*TMb + i)*4
                if j in c.swap_frags:
                    r.append('v_mfma_f32_16x16x32_bf16 v[%d:%d], v[%d:%d], v[%d:%d], v[%d:%d]' % (t, t+3, xreg(s,i), xreg(s,i)+3, wreg(s,j), wreg(s,j)+3, t, t+3))
                else:
                    r.append('v_mfma_f32_16x16x32_bf16 v[%d:%d], v[%d:%d], v[%d:%d], v[%d:%d]' % (t, t+3, wreg(s,j), wreg(s,j)+3, xreg(s,i), xreg(s,i)+3, t, t+3))
        if c.no_mfma: r = r[:1]
        return r
    def interleave(ms, rs, extra=()):
        rs = list(extra) + list(rs)
        out = []
        k = 0
        for i, m in enumerate(ms):
            out.append(m)
            if k < len(rs): out.append(rs[k]); k += 1
        out += rs[k:]
        return out
    naddr = 3 + (1 if c.half else 0)
    def advance():
        r = ['s_add_u32 s%d, s%d, 1' % (c.s_slot, c.s_slot),
             's_cmp_eq_u32 s%d, %d' % (c.s_slot, S),
             's_cselect_b32 s%d, 0, s%d' % (c.s_slot, c.s_slot),
             's_cselect_b32 s%d, %d, s%d' % (sp, -(S-1)*c.slot, sp+1)]
        return r
    a('s_mov_b32 s%d, 0' % c.s_slot)
    a('s_mov_b32 s%d, %d' % (sp+1, c.slot))
    a('s_barrier')
    for r in reads(0, 0): a(r)
    a('s_mov_b32 s%d, %d' % (c.s_cnt, nst-1))
    a('.p2align 3')
    a.label(c.name + '_cloop')
    assert nsub % 2 == 0
    def stage(last):
        for sub in range(nsub):
            s = sub % 2
            a('s_waitcnt lgkmcnt(0)')
            if sub < nsub-1:
                ex = advance() if (sub == 0 and not last) else []
                for l in interleave(mfmas(s), reads(1-s, sub+1), ex): a(l)
            elif not last:
                a('s_barrier')
                for i in range(naddr): a('v_add_u32 v%d, s%d, v%d' % (vX+i, sp, vX+i))
                for l in interleave(mfmas(s), reads(1-s, 0)): a(l)
            else:
                for l in mfmas(s): a(l)
    stage(False)
    a('s_sub_u32 s%d, s%d, 1' % (c.s_cnt, c.s_cnt))
    a('s_cmp_lg_u32 s%d, 0' % c.s_cnt)
    a('s_cbranch_scc1 %s_cloop' % c.name)
    stage(True)
    c.TMb, c.nWf, c.nacc = TMb, nWf, nacc

def config(name, K, BM, nfull, half, BK, S, ldw, panel_stride, **kw):
    c = G()
    c.name, c.K, c.BM, c.nfull, c.half, c.BK, c.S, c.ldw, c.panel_stride = name, K, BM, nfull, half, BK, S, ldw, panel_stride
    c.xbytes = BM * BK * 2
    c.slot = c.xbytes + nfull * BK * 128 + (BK * 64 if half else 0)
    c.lds = c.slot * S
    c.sX, c.sW = 8, 12
    c.s_mt, c.s_nt, c.s_wave, c.s_col0, c.s_colh = 40, 41, 42, 43, 44
    c.s_kx, c.s_kw, c.s_slot, c.s_px, c.s_pw, c.s_ph, c.s_cnt, c.s_rh, c.s_nh = 45, 46, 47, 48, 49, 50, 51, 52, 53
    c.s_tmp = 54
    c.v_addr = 4; c.v_tmp = 2; c.v_frag = 8
    c.swap_frags = (); c.pre_hook = None
    c.no_dma = c.no_lds = c.no_mfma = False
    for k, v in kw.items(): setattr(c, k, v)
    return c
```

```python
import re
TRANS = ('v_exp_f32','v_log_f32','v_rcp_f32','v_rsq_f32','v_sqrt_f32','v_sin_f32','v_cos_f32','v_rcp_iflag_f32')
def regs(tok):
    tok = tok.strip()
    tok = tok.replace('abs(','').replace(')','').replace('|','')
    if tok.startswith('-'): tok = tok[1:]
    m = re.fullmatch(r'([vsa])\[(\d+):(\d+)\]', tok)
    if m: return {(m.group(1), i) for i in range(int(m.group(2)), int(m.group(3))+1)}
    m = re.fullmatch(r'([vsa])(\d+)', tok)
    if m: return {(m.group(1), int(m.group(2)))}
    if tok == 'vcc': return {('s','vcc')}
    if tok == 'exec': return {('s','exec')}
    if tok == 'm0': return {('s','m0')}
    return set()
def parse(line):
    s = line.split(';')[0].strip()
    if not s or s.endswith(':') or s.startswith('.'): return None
    p = s.split(None, 1)
    op = p[0]
    ops = []
    if len(p) > 1:
        ops = [x.strip() for x in p[1].split(',')]
        last = ops[-1].split()
        mods = last[1:]
        ops[-1] = last[0] if last else ''
    else: mods = []
    d = set(); r = set()
    kind = 'other'
    b = op.replace('_e32','').replace('_e64','').replace('_dpp','')
    if op.startswith('v_mfma'):
        kind = 'mfma'; d = regs(ops[0]); A = regs(ops[1]) | regs(ops[2]); C = regs(ops[3])
        return dict(op=op, kind=kind, d=d, r=A|C, ab=A, c=C, passes=4 if '16x16x32' in op else 8, text=s)
    if op.startswith('v_'):
        kind = 'valu'
        d = regs(ops[0])
        rest = ops[1:]
        if b in ('v_add_co_u32','v_sub_co_u32','v_addc_co_u32','v_subb_co_u32','v_div_scale_f32'):
            d |= regs(ops[1]); rest = ops[2:]
        for o in rest: r |= regs(o)
        if b.startswith(('v_fmac','v_dot2c','v_pk_fmac')) : r |= regs(ops[0])
        if 'permlane' in b and 'swap' in b:
            r |= regs(ops[0]); d |= regs(ops[1])
        if b == 'v_div_fmas_f32': r |= {('s','vcc')}
        if '_dpp' in op or any(m.startswith(('row_','quad_perm','wave_')) for m in mods):
            r |= regs(ops[0])
            return dict(op=b, kind=kind, d=d, r=r, dpp=True, text=s)
        return dict(op=b, kind=kind, d=d, r=r, text=s)
    if op.startswith('ds_'):
        if op.startswith(('ds_read','ds_bpermute','ds_permute','ds_swizzle')):
            d = regs(ops[0]);
            for o in ops[1:]: r |= regs(o)
        else:
            for o in ops: r |= regs(o)
        return dict(op=op, kind='ds', d=d, r=r, text=s)
    if op.startswith(('buffer_','global_')):
        lds = 'lds' in mods or '_lds_' in op
        wide = False; data = set()
        if 'load' in op and not lds:
            d = regs(ops[0])
            for o in ops[1:]: r |= regs(o)
            if 'd16' in op: r |= d
        else:
            for o in ops: r |= regs(o)
            if 'store' in op and ('x4' in op or 'x3' in op):
                wide = True
                data = regs(ops[0]) if op.startswith('buffer_') else regs(ops[1])
        if lds: r |= {('s','m0')}
        return dict(op=op, kind='vmem', d=d, r=r, lds=lds, wide=wide, data=data, text=s)
    if op.startswith('s_'):
        if op == 's_nop': return dict(op=op, kind='nop', n=int(ops[0], 0)+1, d=d, r=r, text=s)
        if op.startswith(('s_cmp','s_waitcnt','s_barrier','s_branch','s_cbranch','s_endpgm','s_setprio','s_sleep')):
            for o in ops: r |= regs(o)
            return dict(op=op, kind='salu', d=d, r=r, text=s)
        d = regs(ops[0])
        for o in ops[1:]: r |= regs(o)
        if 'saveexec' in op: d |= {('s','exec')}
        return dict(op=op, kind='salu', d=d, r=r, text=s)
    raise ValueError('unparsed: ' + line)

def need(p, c):
    n = 0
    pk, ck = p['kind'], c['kind']
    vd = {x for x in p['d'] if x[0] in 'va'}
    sd = {x for x in p['d'] if x[0] == 's'}
    if pk == 'valu':
        if ck == 'mfma' and vd & c['r']: n = max(n, 2)
        if ck == 'valu':
            if 'permlane' in c['op'] and vd & c['r']: n = max(n, 2)
            if c.get('dpp') and vd & c['r']: n = max(n, 2)
            if c['op'] in ('v_readfirstlane_b32','v_readlane_b32') and vd & c['r']: n = max(n, 1)
            if p['op'] in TRANS and vd & c['r']: n = max(n, 1)
            if sd & c['r']: n = max(n, 4 if c['op'] in ('v_div_fmas_f32','v_readlane_b32','v_writelane_b32') else 2)
            if ('s','exec') in sd: n = max(n, 5)
        if ck == 'vmem' and sd & c['r']: n = max(n, 5)
        if ck == 'salu' and sd & c['r']: n = max(n, 1)
        if ck == 'mfma' and ('s','exec') in sd: n = max(n, 4)
    if pk == 'mfma':
        big = {4: 8, 8: 12}[p['passes']]
        if ck == 'mfma':
            if vd & c['ab']: n = max(n, big)
            if vd & c['c'] and not (c['c'] == p['d'] and c['passes'] == p['passes']): n = max(n, big-2)
            elif vd & c['d'] and not (c['c'] == p['d']): n = max(n, big)
        elif ck in ('valu','ds','vmem'):
            if vd & (c['r'] | c['d']): n = max(n, big)
            if ck == 'valu' and p['c'] & c['d']: n = max(n, {4: 3, 8: 7}[p['passes']])
    if pk == 'vmem' and p.get('wide') and p['data'] & c['d']: n = max(n, 2)
    if pk == 'salu' and ('s','m0') in sd and ck == 'vmem' and c.get('lds'): n = max(n, 1)
    if pk == 'salu' and ('s','exec') in sd and ck == 'valu' and ('permlane' in c['op'] or c.get('dpp')): n = max(n, 1)
    return n

def pad(lines, verbose=False):
    out = []; hist = []
    npad = 0
    for line in lines:
        ins = parse(line)
        if ins is None:
            out.append(line); continue
        if ins['kind'] != 'nop':
            req = 0; dist = 0
            for p in reversed(hist):
                w = need(p, ins) - dist
                if w > req: req = w; why = p
                dist += p.get('n', 1)
                if dist > 20: break
            if req > 0:
                npad += 1
                if verbose: print('pad', req, ':', why['text'], '->', ins['text'])
                while req > 0:
                    k = min(req, 16)
                    out.append('    s_nop %d' % (k-1)); hist.append(dict(op='s_nop', kind='nop', n=k, d=set(), r=set(), text='')); req -= k
        out.append(line); hist.append(ins)
        if ins['op'] in ('s_endpgm', 's_branch'): hist = []
        if len(hist) > 40: hist = hist[-30:]
    return out
```

```python
import sys
from asmgen import Asm
import gemm

MOD, ZP, KVP, H1F, PHIQ, OF, X1F, H2F, HF, TS = 0x0, 0x10000, 0x100000, 0x800000, 0x1000000, 0x1800000, 0x1C00000, 0x2000000, 0x2800000, 0x3800000
P_X, P_WQKV, P_WPHI, P_WO, P_W1, P_B1, P_W2, P_B2, P_C, P_WMOD, P_OUT, P_DBG, P_WS = 0, 8, 16, 24, 40, 48, 56, 64, 72, 80, 88, 96, 104
LOG2E = 0x3fb8aa3b
class O: pass
opt = O(); opt.mimic = True; opt.ts = False

def srd(a, s, base, off, size):
    if off:
        a('s_add_u32 s%d, s%d, %d\ns_addc_u32 s%d, s%d, 0' % (s, base, off, s+1, base+1))
    else:
        a('s_mov_b32 s%d, s%d\ns_mov_b32 s%d, s%d' % (s, base, s+1, base+1))
    a('s_mov_b32 s%d, %d\ns_mov_b32 s%d, 0x20000' % (s+2, size, s+3))

def rnd2(a, x, y, t):
    a('v_cvt_pk_bf16_f32 v%d, v%d, v%d' % (t, x, y))
    a('v_lshlrev_b32 v%d, 16, v%d' % (x, t))
    a('v_and_b32 v%d, 0xffff0000, v%d' % (y, t))
def rnd1(a, x):
    a('v_cvt_pk_bf16_f32 v%d, v%d, v%d' % (x, x, x))
    a('v_lshlrev_b32 v%d, 16, v%d' % (x, x))
def rndn(a, xs, ts):
    prs = [(xs[i], xs[i+1]) for i in range(0, len(xs), 2)]
    for b in range(0, len(prs), len(ts)):
        blk = prs[b:b+len(ts)]
        for (x, y), t in zip(blk, ts): a('v_cvt_pk_bf16_f32 v%d, v%d, v%d' % (t, x, y))
        for (x, y), t in zip(blk, ts):
            a('v_lshlrev_b32 v%d, 16, v%d' % (x, t)); a('v_and_b32 v%d, 0xffff0000, v%d' % (y, t))
def unpack(a, lo, hi, src):
    a('v_lshlrev_b32 v%d, 16, v%d' % (lo, src)); a('v_and_b32 v%d, 0xffff0000, v%d' % (hi, src))

def ts_start(a, kid):
    if opt.ts: a('s_memrealtime s[96:97]')
def ts_end(a, kid, lbl):
    if not opt.ts: return
    a('s_waitcnt vmcnt(0) lgkmcnt(0)')
    a('s_memrealtime s[98:99]')
    srd(a, 88, 6, TS + kid*4096, 4096)
    a('s_mov_b64 exec, -1')
    a('v_cmp_eq_u32 vcc, 0, v0')
    a('s_waitcnt lgkmcnt(0)')
    a('v_mov_b32 v2, s96\nv_mov_b32 v3, s98\ns_lshl_b32 s92, s2, 3\nv_mov_b32 v4, s92')
    a('s_and_saveexec_b64 s[94:95], vcc\ns_cbranch_execz %s' % lbl)
    a('buffer_store_dwordx2 v[2:3], v4, s[88:91], 0 offen')

def k_mod(a):
    n = 'mod_kernel'
    a.kernel_begin(n)
    a('s_cmp_ge_u32 s2, 192\ns_cbranch_scc1 mod_end')
    a('s_load_dwordx4 s[4:7], s[0:1], %d' % P_C)
    a('s_load_dwordx2 s[20:21], s[0:1], %d' % P_WS)
    ts_start(a, 0)
    a('v_lshrrev_b32 v1, 2, v0\nv_and_b32 v2, 3, v0')
    a('v_lshlrev_b32 v3, 5, v1')
    a('s_mov_b32 s22, %d' % (16*12288))
    a('v_mul_lo_u32 v1, v1, s22')
    a('v_lshl_add_u32 v1, v2, 4, v1')
    a('s_lshl_b32 s23, s2, 6')
    a('s_waitcnt lgkmcnt(0)')
    srd(a, 8, 4, 0, 2048); srd(a, 12, 6, 0, 1024*12288)
    a('s_mov_b32 s6, s20\ns_mov_b32 s7, s21')
    srd(a, 16, 6, MOD, 6144*4)
    a('buffer_load_dwordx4 v[4:7], v3, s[8:11], 0 offen')
    a('buffer_load_dwordx4 v[8:11], v3, s[8:11], 0 offen offset:16')
    for p in range(16):
        a('buffer_load_dwordx4 v[%d:%d], v1, s[12:15], s23 offen' % (16+4*p, 19+4*p))
        a('s_add_u32 s23, s23, 12288')
    a('s_waitcnt vmcnt(16)')
    for i in range(8): unpack(a, 80+2*i, 81+2*i, 4+i)
    a('s_mov_b32 s24, 0x%x' % LOG2E)
    for i in range(16): a('v_mul_f32 v%d, s24, v%d' % (96+i, 80+i))
    for i in range(16): a('v_exp_f32 v%d, -v%d' % (96+i, 96+i))
    for i in range(16): a('v_add_f32 v%d, 1.0, v%d' % (96+i, 96+i))
    for i in range(16): a('v_rcp_f32 v%d, v%d' % (96+i, 96+i))
    for i in range(16): a('v_mul_f32 v%d, v%d, v%d' % (80+i, 80+i, 96+i))
    rndn(a, list(range(80, 96)), list(range(96, 104)))
    for p in range(16):
        a('s_waitcnt vmcnt(%d)' % (15-p))
        for d in range(4): unpack(a, 104+2*d, 105+2*d, 16+4*p+d)
        for e in range(8):
            if p == 0: a('v_mul_f32 v%d, v%d, v%d' % (96+e, 104+e, 80+p))
            else: a('v_fmac_f32 v%d, v%d, v%d' % (96+e, 104+e, 80+p))
    for ror in (4, 8):
        for e in range(8): a('v_add_f32_dpp v%d, v%d, v%d row_ror:%d row_mask:0xf bank_mask:0xf' % (96+e, 96+e, 96+e, ror))
    a('v_lshrrev_b32 v1, 4, v0\nv_lshlrev_b32 v1, 7, v1\nv_lshl_add_u32 v1, v2, 5, v1')
    a('ds_write_b128 v1, v[96:99]\nds_write_b128 v1, v[100:103] offset:16')
    a('s_waitcnt lgkmcnt(0)\ns_barrier')
    a('v_cmp_gt_u32 vcc, 32, v0\ns_and_saveexec_b64 s[26:27], vcc\ns_cbranch_execz mod_fin')
    a('v_lshlrev_b32 v1, 2, v0')
    for p in range(16): a('ds_read_b32 v%d, v1 offset:%d' % (16+p, 128*p))
    a('s_waitcnt lgkmcnt(0)')
    for st in (8, 4, 2, 1):
        for p in range(st): a('v_add_f32 v%d, v%d, v%d' % (16+p, 16+p, 16+p+st))
    rnd1(a, 16)
    a('v_add_f32 v17, 1.0, v16')
    rnd1(a, 17)
    a('s_lshr_b32 s24, s2, 5')
    a('s_cmp_eq_u32 s24, 1\ns_cselect_b32 s25, 1, 0\ns_cmp_eq_u32 s24, 4\ns_cselect_b32 s25, 1, s25')
    a('s_cmp_eq_u32 s25, 1\ns_cbranch_scc0 mod_st\nv_mov_b32 v16, v17')
    a.label('mod_st')
    a('s_lshl_b32 s24, s2, 7')
    a('buffer_store_dword v16, v1, s[16:19], s24 offen')
    a.label('mod_fin')
    ts_end(a, 0, 'mod_end')
    a.label('mod_end')
    a('s_endpgm')
    a.kernel_end(n, 112, 100, 112, 192, 256, 2048)

def xg_sum(a, x, t):
    a('v_mov_b32 v%d, v%d' % (t, x)); a('v_permlane32_swap_b32 v%d, v%d' % (x, t)); a('v_add_f32 v%d, v%d, v%d' % (x, x, t))
    a('v_mov_b32 v%d, v%d' % (t, x)); a('v_permlane16_swap_b32 v%d, v%d' % (x, t)); a('v_add_f32 v%d, v%d, v%d' % (x, x, t))

def k_ln(a, n, kid, src_frag, shift_chunk, scale_chunk, dst):
    L = n.replace('_kernel', '')
    a.kernel_begin(n)
    a('s_cmp_ge_u32 s2, 128\ns_cbranch_scc1 %s_end' % L)
    a('s_load_dwordx2 s[4:5], s[0:1], %d\ns_load_dwordx2 s[6:7], s[0:1], %d' % (P_X, P_WS))
    ts_start(a, kid)
    a('v_and_b32 v1, 63, v0\nv_lshrrev_b32 v2, 6, v0')
    a('v_and_b32 v3, 15, v0\nv_bfe_u32 v4, v0, 4, 2')
    a('s_lshl_b32 s20, s2, 15')
    a('v_lshlrev_b32 v5, 12, v2\nv_lshl_add_u32 v5, v1, 4, v5')
    a('v_lshlrev_b32 v6, 9, v2\nv_lshl_add_u32 v6, v4, 4, v6')
    if not src_frag:
        a('v_lshlrev_b32 v7, 11, v3\nv_lshl_add_u32 v7, v2, 8, v7\nv_lshl_add_u32 v7, v4, 3, v7')
    a('s_waitcnt lgkmcnt(0)')
    if src_frag: srd(a, 8, 6, X1F, 0x400000)
    else: srd(a, 8, 4, 0, 0x400000)
    srd(a, 12, 6, MOD, 6144*4); srd(a, 16, 6, dst, 0x400000)
    D = 16
    for u in range(4):
        if src_frag: a('buffer_load_dwordx4 v[%d:%d], v5, s[8:11], s20 offen offset:%d' % (D+4*u, D+4*u+3, 1024*u))
        else:
            a('buffer_load_dwordx2 v[%d:%d], v7, s[8:11], s20 offen offset:%d' % (D+4*u, D+4*u+1, 64*u))
            a('buffer_load_dwordx2 v[%d:%d], v7, s[8:11], s20 offen offset:%d' % (D+4*u+2, D+4*u+3, 64*u+32))
    A = 64; S = 96; X = 32
    a('s_mov_b32 s21, %d\ns_mov_b32 s22, %d' % (scale_chunk*4096, shift_chunk*4096))
    for u in range(4):
        for h in range(2):
            a('buffer_load_dwordx4 v[%d:%d], v6, s[12:15], s21 offen offset:%d' % (A+8*u+4*h, A+8*u+4*h+3, 128*u+64*h))
            a('buffer_load_dwordx4 v[%d:%d], v6, s[12:15], s22 offen offset:%d' % (S+8*u+4*h, S+8*u+4*h+3, 128*u+64*h))
    a('v_lshlrev_b32 v8, 5, v3\nv_lshl_add_u32 v9, v2, 2, v8')
    a('s_waitcnt vmcnt(16)')
    for i in range(16): unpack(a, X+2*i, X+2*i+1, D+i)
    for i in range(4): a('v_add_f32 v%d, v%d, v%d' % (10+i, X+i, X+4+i))
    for k in range(8, 32, 4):
        for i in range(4): a('v_add_f32 v%d, v%d, v%d' % (10+i, 10+i, X+k+i))
    a('v_add_f32 v10, v10, v11\nv_add_f32 v12, v12, v13\nv_add_f32 v10, v10, v12')
    xg_sum(a, 10, 11)
    a('ds_write_b32 v9, v10\ns_waitcnt lgkmcnt(0)\ns_barrier')
    a('ds_read_b128 v[16:19], v8\nds_read_b128 v[20:23], v8 offset:16\ns_waitcnt lgkmcnt(0)')
    for i in range(4): a('v_add_f32 v%d, v%d, v%d' % (16+i, 16+i, 20+i))
    a('v_add_f32 v16, v16, v17\nv_add_f32 v18, v18, v19\nv_add_f32 v16, v16, v18')
    a('v_mul_f32 v14, 0x3a800000, v16')
    for i in range(4):
        a('v_sub_f32 v%d, v%d, v14' % (16+i, X+i));
    for i in range(4): a('v_mul_f32 v%d, v%d, v%d' % (10+i, 16+i, 16+i))
    for k in range(4, 32, 4):
        for i in range(4): a('v_sub_f32 v%d, v%d, v14' % (16+i, X+k+i))
        for i in range(4): a('v_fmac_f32 v%d, v%d, v%d' % (10+i, 16+i, 16+i))
    a('v_add_f32 v10, v10, v11\nv_add_f32 v12, v12, v13\nv_add_f32 v10, v10, v12')
    xg_sum(a, 10, 11)
    a('ds_write_b32 v9, v10 offset:512\ns_waitcnt lgkmcnt(0)\ns_barrier')
    a('ds_read_b128 v[16:19], v8 offset:512\nds_read_b128 v[20:23], v8 offset:528\ns_waitcnt lgkmcnt(0)')
    for i in range(4): a('v_add_f32 v%d, v%d, v%d' % (16+i, 16+i, 20+i))
    a('v_add_f32 v16, v16, v17\nv_add_f32 v18, v18, v19\nv_add_f32 v16, v16, v18')
    a('v_mul_f32 v15, 0x3a800000, v16')
    xs = list(range(X, X+32)); ts = list(range(16, 32))
    if opt.mimic:
        rnd2(a, 14, 15, 16)
        a('v_add_f32 v15, 0x3727c5ac, v15'); rnd1(a, 15)
        a('v_sqrt_f32 v15, v15'); rnd1(a, 15)
        a('v_rcp_f32 v15, v15')
        for x in xs: a('v_sub_f32 v%d, v%d, v14' % (x, x))
        rndn(a, xs, ts)
        for x in xs: a('v_mul_f32 v%d, v%d, v15' % (x, x))
        rndn(a, xs, ts)
        a('s_waitcnt vmcnt(0)')
        for i, x in enumerate(xs): a('v_mul_f32 v%d, v%d, v%d' % (x, x, A+i))
        rndn(a, xs, ts)
        for i, x in enumerate(xs): a('v_add_f32 v%d, v%d, v%d' % (x, x, S+i))
    else:
        a('v_add_f32 v15, 0x3727c5ac, v15\nv_rsq_f32 v15, v15')
        for x in xs: a('v_sub_f32 v%d, v%d, v14' % (x, x))
        for x in xs: a('v_mul_f32 v%d, v%d, v15' % (x, x))
        a('s_waitcnt vmcnt(0)')
        for i, x in enumerate(xs): a('v_fma_f32 v%d, v%d, v%d, v%d' % (x, x, A+i, S+i))
    for i in range(16): a('v_cvt_pk_bf16_f32 v%d, v%d, v%d' % (16+i, X+2*i, X+2*i+1))
    for u in range(4): a('buffer_store_dwordx4 v[%d:%d], v5, s[16:19], s20 offen offset:%d' % (16+4*u, 19+4*u, 1024*u))
    ts_end(a, kid, L+'_end')
    a.label(L+'_end')
    a('s_endpgm')
    a.kernel_end(n, 128, 100, 128, 128, 512, 1024)

def gemm_head(a, c, kid, xm, xn, colmul, ptrs):
    a('s_cmp_ge_u32 s2, 256\ns_cbranch_scc1 %s_end' % c.name)
    for s, o in ptrs: a('s_load_dwordx2 s[%d:%d], s[0:1], %d' % (s, s+1, o))
    ts_start(a, kid)
    bm = 16 // xm
    a('s_and_b32 s36, s2, 7\ns_lshr_b32 s37, s2, 3')
    a('s_and_b32 s38, s36, %d\ns_lshr_b32 s36, s36, %d' % (bm-1, bm.bit_length()-1))
    a('s_and_b32 s39, s37, %d\ns_lshr_b32 s37, s37, %d' % (xm-1, xm.bit_length()-1))
    a('s_mul_i32 s38, s38, %d\ns_add_u32 s%d, s38, s39' % (xm, c.s_mt))
    a('s_mul_i32 s36, s36, %d\ns_add_u32 s%d, s36, s37' % (xn, c.s_nt))
    a('s_mul_i32 s%d, s%d, %d' % (c.s_col0, c.s_nt, colmul))
    if c.half:
        a('s_and_b32 s36, s%d, 1' % c.s_nt)
        a('s_cmp_eq_u32 s36, 0')
        a('s_cselect_b32 s36, 384, 0\ns_cselect_b32 s37, 0, 64')
        a('s_add_u32 s%d, s%d, s36' % (c.s_colh, c.s_col0))
        a('s_add_u32 s%d, s%d, s37' % (c.s_col0, c.s_col0))
    gemm.gemm_prologue(a, c)
    a('s_waitcnt lgkmcnt(0)')

def gemm_body(a, c):
    a('s_cmp_lt_u32 s%d, 4\ns_cbranch_scc1 %s_cons' % (c.s_wave, c.name))
    gemm.producer(a, c, c.name + '_end')
    a.label(c.name + '_cons')
    gemm.consumer(a, c)

def gemm_tail(a, c, n, kid):
    if opt.ts:
        a('s_cmp_lg_u32 s%d, 0\ns_cbranch_scc1 %s_end' % (c.s_wave, c.name))
        ts_end(a, kid, c.name + '_end')
    a.label(c.name + '_end')
    a('s_endpgm')
    a.kernel_end(n, 256, 100, 256, 256, 512, c.lds)

def bfly(a, op, x):
    return [
     ['v_permlane32_swap_b32 v%d, v%d' % (x[0], x[1]), 'v_permlane32_swap_b32 v%d, v%d' % (x[2], x[3])],
     ['%s v%d, v%d, v%d' % (op, x[0], x[0], x[1]), '%s v%d, v%d, v%d' % (op, x[2], x[2], x[3])],
     ['v_permlane16_swap_b32 v%d, v%d' % (x[0], x[2])],
     ['%s v%d, v%d, v%d' % (op, x[0], x[0], x[2])],
     ['v_mov_b32 v%d, v%d' % (x[2], x[0])],
     ['v_permlane16_swap_b32 v%d, v%d' % (x[0], x[2])],
     ['v_mov_b32 v%d, v%d' % (x[1], x[0]), 'v_mov_b32 v%d, v%d' % (x[3], x[2])],
     ['v_permlane32_swap_b32 v%d, v%d' % (x[0], x[1]), 'v_permlane32_swap_b32 v%d, v%d' % (x[2], x[3])]]
def bfly2(a, op1, x1, op2, x2):
    for s1, s2 in zip(bfly(a, op1, x1), bfly(a, op2, x2)):
        for l in s1 + s2: a(l)

def k_qkv(a):
    n = 'qkv_kernel'
    c = gemm.config('qkv', 1024, 128, 3, False, 64, 3, 6144, 2048, swap_frags=(4, 5))
    a.kernel_begin(n)
    gemm_head(a, c, 2, 8, 4, 128, [(4, P_WQKV), (6, P_WS), (32, P_WPHI)])
    srd(a, 8, 6, H1F, 0x400000); srd(a, 12, 4, 0, 1024*6144)
    srd(a, 16, 32, 0, 65536); srd(a, 20, 6, PHIQ, 0x800000); srd(a, 24, 6, KVP, 0x400000); srd(a, 28, 6, ZP, 0x20000)
    s_hd = 58
    def pre(a, c):
        W = c.v_free
        a('s_lshl_b32 s%d, s%d, 1\ns_add_u32 s%d, s%d, s%d' % (s_hd, c.s_nt, s_hd, s_hd, c.s_nh))
        a('s_lshl_b32 s59, s%d, 11' % s_hd)
        a('v_and_b32 v2, 15, v1\nv_lshlrev_b32 v2, 1, v2\nv_lshrrev_b32 v3, 4, v1\nv_lshl_add_u32 v2, v3, 8, v2')
        for ft in range(2):
            for dw in range(4):
                d0 = (dw % 2)*2 + (dw // 2)*16
                a('buffer_load_ushort v%d, v2, s[16:19], s59 offen offset:%d' % (W+ft*4+dw, d0*64 + ft*32))
                a('buffer_load_ushort v%d, v2, s[16:19], s59 offen offset:%d' % (W+40+ft*4+dw, d0*64 + 64 + ft*32))
    c.pre_hook = pre
    gemm_body(a, c)
    W = c.v_free
    ACC = lambda j, i, r=0: c.v_acc + (j*4+i)*4 + r
    EB = c.slot * ((c.K // c.BK) % c.S)
    assert EB + 49152 <= c.lds and EB == c.slot
    IMG = EB; VB = EB + 32768
    QF = 8; P = 24; E = 56
    MX = W + 8; MN = MX + 4; T = MN + 4
    sL = 60
    a('s_mov_b32 s%d, 0x%x' % (sL, LOG2E))
    def hrow(dst, row, t):
        a('v_lshrrev_b32 v%d, 1, v%d\nv_and_b32 v%d, 3, v%d\nv_lshlrev_b32 v%d, 2, v%d' % (dst, row, dst, dst, dst, dst))
        a('v_and_b32 v%d, 1, v%d\nv_or_b32 v%d, v%d, v%d' % (t, row, dst, dst, t))
        a('v_lshrrev_b32 v%d, 2, v%d\nv_and_b32 v%d, 2, v%d\nv_or_b32 v%d, v%d, v%d' % (t, row, t, t, dst, dst, t))
    WA = T + 16
    RA = WA + 4
    a('v_and_b32 v2, 15, v1\nv_lshrrev_b32 v3, 4, v1')
    hrow(4, 2, 5)
    a('v_xor_b32 v4, v4, v3')
    a('v_lshlrev_b32 v2, 7, v2')
    a('s_lshl_b32 s61, s%d, 13\ns_add_u32 s61, s61, %d' % (c.s_wave, IMG))
    a('v_add_u32 v2, s61, v2')
    for u in range(4):
        a('v_xor_b32 v5, %d, v4\nv_lshl_add_u32 v%d, v5, 3, v2' % (4*u, WA+u))
    a('v_lshrrev_b32 v2, 2, v1\nv_and_b32 v3, 3, v1')
    hrow(4, 2, 5)
    a('v_xor_b32 v4, v4, v3')
    a('v_lshlrev_b32 v2, 7, v2')
    a('s_lshl_b32 s61, s%d, 13\ns_add_u32 s61, s61, %d' % (c.s_nh, IMG))
    a('v_add_u32 v2, s61, v2')
    a('s_lshl_b32 s61, s%d, 3' % c.s_rh)
    a('v_xor_b32 v4, s61, v4')
    for u in range(2):
        a('v_xor_b32 v5, %d, v4\nv_lshl_add_u32 v%d, v5, 3, v2' % (4*u, RA+u))
    a('v_lshlrev_b32 v4, 4, v1')
    a('s_lshl_b32 s61, s%d, 1\ns_add_u32 s61, s61, s%d\ns_lshl_b32 s61, s61, 12\ns_add_u32 s61, s61, %d' % (c.s_nh, c.s_rh, VB))
    a('v_add_u32 v3, s61, v4')
    for gam in range(2):
        for dt in range(2):
            q = QF + (gam*2+dt)*4
            for h in range(2):
                for e in range(2):
                    a('v_cvt_pk_bf16_f32 v%d, v%d, v%d' % (q+2*h+e, ACC(4+dt, 2*gam+h, 2*e), ACC(4+dt, 2*gam+h, 2*e+1)))
            a('ds_write_b128 v3, v[%d:%d] offset:%d' % (q, q+3, (gam*2+dt)*1024))
    a('s_waitcnt vmcnt(0) lgkmcnt(0)')
    for e in range(8): a('v_lshl_or_b32 v%d, v%d, 16, v%d' % (W+e, W+40+e, W+e))
    def feat(j0, is_k):
        for i in range(4):
            for h in range(2):
                for e in range(2):
                    a('v_cvt_pk_bf16_f32 v%d, v%d, v%d' % (QF+4*i+2*h+e, ACC(j0+h, i, 2*e), ACC(j0+h, i, 2*e+1)))
        for i in range(4):
            for ft in range(2):
                t = P + i*8 + ft*4
                a('v_mfma_f32_16x16x32_bf16 v[%d:%d], v[%d:%d], v[%d:%d], 0' % (t, t+3, W+ft*4, W+ft*4+3, QF+4*i, QF+4*i+3))
        ps = list(range(P, P+32))
        if opt.mimic: rndn(a, ps, list(range(T, T+16)))
        for (op, op2, dst) in (('v_max3_f32', 'v_max_f32', MX), ('v_min3_f32', 'v_min_f32', MN)):
            for i in range(4): a('%s v%d, v%d, v%d, v%d' % (op, dst+i, P+8*i, P+8*i+1, P+8*i+2))
            for i in range(4): a('%s v%d, v%d, v%d, v%d' % (op, dst+i, dst+i, P+8*i+3, P+8*i+4))
            for i in range(4): a('%s v%d, v%d, v%d, v%d' % (op, dst+i, dst+i, P+8*i+5, P+8*i+6))
            for i in range(4): a('%s v%d, v%d, v%d' % (op2, dst+i, dst+i, P+8*i+7))
        bfly2(a, 'v_max_f32', [MX+i for i in range(4)], 'v_min_f32', [MN+i for i in range(4)])
        for i in range(4):
            a('v_mul_f32 v%d, s%d, v%d\nv_mul_f32 v%d, s%d, v%d' % (MX+i, sL, MX+i, MN+i, sL, MN+i))
        for i in range(4):
            for e in range(8): a('v_fma_f32 v%d, v%d, s%d, -v%d' % (E+8*i+e, P+8*i+e, sL, MX+i))
            for e in range(8): a('v_fma_f32 v%d, -v%d, s%d, v%d' % (P+8*i+e, P+8*i+e, sL, MN+i))
        for i in range(32): a('v_exp_f32 v%d, v%d\nv_exp_f32 v%d, v%d' % (E+i, E+i, P+i, P+i))
        for (B, dst) in ((E, MX), (P, MN)):
            for i in range(4): a('v_add_f32 v%d, v%d, v%d' % (dst+i, B+8*i, B+8*i+1))
            for e in range(2, 8):
                for i in range(4): a('v_add_f32 v%d, v%d, v%d' % (dst+i, dst+i, B+8*i+e))
        bfly2(a, 'v_add_f32', [MX+i for i in range(4)], 'v_add_f32', [MN+i for i in range(4)])
        for i in range(4): a('v_rcp_f32 v%d, v%d\nv_rcp_f32 v%d, v%d' % (MX+i, MX+i, MN+i, MN+i))
        for i in range(4):
            for sg, (B, sc) in enumerate(((E, MX), (P, MN))):
                for e in range(8): a('v_mul_f32 v%d, v%d, v%d' % (B+8*i+e, B+8*i+e, sc+i))
                for e in range(4): a('v_cvt_pk_bf16_f32 v%d, v%d, v%d' % (B+8*i+e, B+8*i+2*e, B+8*i+2*e+1))
                if is_k:
                    for ft in range(2):
                        a('ds_write_b64 v%d, v[%d:%d] offset:%d' % (WA+2*sg+ft, B+8*i+2*ft, B+8*i+2*ft+1, i*2048))
                else:
                    a('buffer_store_dwordx4 v[%d:%d], v4, s[20:23], s62 offen offset:%d' % (B+8*i, B+8*i+3, sg*1024))
            if not is_k: a('s_add_u32 s62, s62, 65536')
    feat(2, True)
    a('s_waitcnt lgkmcnt(0)\ns_barrier')
    AF = 8
    VF = 40
    ONE = 72
    KV = ACC(2, 0)
    a('s_lshl_b32 s61, s%d, 13\ns_add_u32 s61, s61, %d' % (c.s_nh, VB))
    a('v_add_u32 v3, s61, v4')
    for gp in range(4):
        rhp, gam = gp // 2, gp % 2
        for ftl in range(2):
            for t in range(2):
                q = AF + (ftl*4+gp)*4 + 2*t
                a('ds_read_b64_tr_b16 v[%d:%d], v%d offset:%d' % (q, q+1, RA+ftl, rhp*16384 + (gam*32 + t*16)*128))
        for dt in range(2):
            q = VF + (dt*4+gp)*4
            a('ds_read_b128 v[%d:%d], v3 offset:%d' % (q, q+3, (gp*2+dt)*1024))
    for e in range(4): a('v_mov_b32 v%d, 0x3f803f80' % (ONE+e))
    for gp in range(4):
        a('s_waitcnt lgkmcnt(%d)' % (6*(3-gp) if 6*(3-gp) <= 15 else 15))
        if gp == 0: a('s_waitcnt lgkmcnt(12)')
        for ftl in range(2):
            for t in range(3):
                d = KV + (ftl*3+t)*4; A_ = AF + (ftl*4+gp)*4
                B_ = VF + (t*4+gp)*4 if t < 2 else ONE
                cc = '0' if gp == 0 else 'v[%d:%d]' % (d, d+3)
                a('v_mfma_f32_16x16x32_bf16 v[%d:%d], v[%d:%d], v[%d:%d], %s' % (d, d+3, A_, A_+3, B_, B_+3, cc))
    a('s_lshl_b32 s61, s%d, 4\ns_add_u32 s61, s61, s%d' % (s_hd, c.s_mt))
    a('s_lshl_b32 s63, s61, 13\ns_lshl_b32 s64, s%d, 12\ns_add_u32 s63, s63, s64' % c.s_rh)
    a('s_lshl_b32 s61, s61, 8\ns_lshl_b32 s64, s%d, 7\ns_add_u32 s61, s61, s64' % c.s_rh)
    for ftl in range(2):
        for dt in range(2):
            d = KV + (ftl*3+dt)*4
            a('buffer_store_dwordx4 v[%d:%d], v4, s[24:27], s63 offen offset:%d' % (d, d+3, (ftl*2+dt)*1024))
    a('v_and_b32 v2, 15, v1\nv_cmp_eq_u32 vcc, 0, v2')
    a('s_and_saveexec_b64 s[64:65], vcc')
    for ftl in range(2):
        d = KV + (ftl*3+2)*4
        a('buffer_store_dwordx4 v[%d:%d], v1, s[28:31], s61 offen offset:%d' % (d, d+3, ftl*64))
    a('s_mov_b64 exec, s[64:65]')
    a('s_lshl_b32 s62, s%d, 1\ns_add_u32 s62, s62, s%d\ns_lshl_b32 s62, s62, 18' % (c.s_mt, c.s_rh))
    a('s_lshl_b32 s61, s%d, 11\ns_add_u32 s62, s62, s61' % s_hd)
    feat(0, False)
    gemm_tail(a, c, n, 2)

def k_o(a):
    n = 'o_kernel'
    a.kernel_begin(n)
    a('s_cmp_ge_u32 s2, 256\ns_cbranch_scc1 o_end')
    a('s_load_dwordx2 s[6:7], s[0:1], %d' % P_WS)
    ts_start(a, 3)
    a('s_and_b32 s36, s2, 7\ns_lshl_b32 s36, s36, 2\ns_lshr_b32 s37, s2, 3\ns_and_b32 s37, s37, 3\ns_add_u32 s36, s36, s37\ns_lshr_b32 s37, s2, 5')
    a('v_lshrrev_b32 v2, 6, v0\nv_and_b32 v1, 63, v0\nv_readfirstlane_b32 s38, v2')
    a('v_lshlrev_b32 v3, 4, v1\nv_lshrrev_b32 v4, 4, v1\nv_lshlrev_b32 v4, 4, v4')
    a('s_waitcnt lgkmcnt(0)')
    srd(a, 8, 6, KVP, 0x400000); srd(a, 12, 6, ZP, 0x20000); srd(a, 16, 6, PHIQ, 0x800000); srd(a, 20, 6, OF, 0x400000)
    a('s_lshl_b32 s40, s36, 17\ns_lshl_b32 s41, s38, 11\ns_add_u32 s40, s40, s41')
    a('s_lshl_b32 s41, s36, 12\ns_lshl_b32 s42, s38, 6\ns_add_u32 s41, s41, s42')
    KB = 48
    for m in range(16):
        a('buffer_load_dwordx4 v[%d:%d], v3, s[8:11], s40 offen' % (KB+12*m, KB+12*m+3))
        a('buffer_load_dwordx4 v[%d:%d], v3, s[8:11], s40 offen offset:1024' % (KB+12*m+4, KB+12*m+7))
        a('buffer_load_dwordx4 v[%d:%d], v4, s[12:15], s41 offen offset:%d' % (KB+12*m+8, KB+12*m+11, 256*m))
        a('s_add_u32 s40, s40, 8192')
    a('s_lshl_b32 s42, s37, 2\ns_add_u32 s42, s42, s38\ns_lshl_b32 s42, s42, 2')
    a('s_lshl_b32 s43, s42, 16\ns_lshl_b32 s44, s36, 11\ns_add_u32 s43, s43, s44')
    PQ = 8
    for i in range(4):
        for sg in range(2):
            a('buffer_load_dwordx4 v[%d:%d], v3, s[16:19], s43 offen offset:%d' % (PQ+8*i+4*sg, PQ+8*i+4*sg+3, 1024*sg))
        a('s_add_u32 s43, s43, 65536')
    for m in range(1, 16):
        a('s_waitcnt vmcnt(%d)' % (8 + 3*(15-m)))
        for e in range(12): a('v_add_f32 v%d, v%d, v%d' % (KB+e, KB+e, KB+12*m+e))
    for t in range(3):
        for e in range(2): a('v_cvt_pk_bf16_f32 v%d, v%d, v%d' % (KB+12+2*t+e, KB+4*t+2*e, KB+4*t+2*e+1))
    a('s_lshr_b32 s40, s38, 1\ns_lshl_b32 s40, s40, 10\ns_and_b32 s41, s38, 1\ns_lshl_b32 s41, s41, 3\ns_add_u32 s40, s40, s41')
    a('v_add_u32 v5, s40, v3')
    for t in range(3): a('ds_write_b64 v5, v[%d:%d] offset:%d' % (KB+12+2*t, KB+13+2*t, 2048*t))
    a('s_waitcnt lgkmcnt(0)\ns_barrier')
    AF = 80
    for t in range(3):
        for gam in range(2): a('ds_read_b128 v[%d:%d], v3 offset:%d' % (AF+(t*2+gam)*4, AF+(t*2+gam)*4+3, (t*2+gam)*1024))
    a('s_waitcnt vmcnt(0) lgkmcnt(0)')
    R = 112
    for gam in range(2):
        for i in range(4):
            for t in range(3):
                d = R + (i*3+t)*4; A_ = AF+(t*2+gam)*4; B_ = PQ+8*i+4*gam
                a('v_mfma_f32_16x16x32_bf16 v[%d:%d], v[%d:%d], v[%d:%d], %s' % (d, d+3, A_, A_+3, B_, B_+3, '0' if gam == 0 else 'v[%d:%d]' % (d, d+3)))
    a('s_lshl_b32 s43, s42, 15\ns_lshl_b32 s44, s36, 10\ns_add_u32 s43, s43, s44')
    dens = [R+(i*3+2)*4 for i in range(4)]
    if opt.mimic: rndn(a, dens, [48, 49])
    for d in dens: a('v_add_f32 v%d, 0x358637bd, v%d' % (d, d))
    if opt.mimic: rndn(a, dens, [48, 49])
    for d in dens: a('v_rcp_f32 v%d, v%d' % (d, d))
    for i in range(4):
        xs = list(range(R+i*12, R+i*12+8))
        if opt.mimic: rndn(a, xs, [48, 49, 50, 51])
        for x in xs: a('v_mul_f32 v%d, v%d, v%d' % (x, x, dens[i]))
        for e in range(4): a('v_cvt_pk_bf16_f32 v%d, v%d, v%d' % (56+4*i+e, xs[2*e], xs[2*e+1]))
        a('buffer_store_dwordx4 v[%d:%d], v3, s[20:23], s43 offen' % (56+4*i, 59+4*i))
        a('s_add_u32 s43, s43, 32768')
    if opt.ts:
        a('s_cmp_lg_u32 s38, 0\ns_cbranch_scc1 o_end')
        ts_end(a, 3, 'o_end')
    a.label('o_end')
    a('s_endpgm')
    a.kernel_end(n, 256, 100, 256, 256, 256, 6144)

def k_wo(a):
    n = 'wo_kernel'
    c = gemm.config('wo', 1024, 128, 1, False, 64, 6, 2048, 128)
    a.kernel_begin(n)
    gemm_head(a, c, 4, 4, 8, 128, [(4, P_WO), (6, P_WS), (32, P_X)])
    srd(a, 8, 6, OF, 0x400000); srd(a, 12, 4, 0, 1024*2048)
    srd(a, 16, 32, 0, 0x400000); srd(a, 20, 6, MOD, 6144*4); srd(a, 24, 6, X1F, 0x400000)
    def pre(a, c):
        XR = c.v_free; GA = XR + 16
        a('s_lshl_b32 s58, s%d, 1\ns_add_u32 s58, s58, s%d' % (c.s_mt, c.s_rh))
        a('s_lshl_b32 s59, s%d, 1\ns_add_u32 s59, s59, s%d' % (c.s_nt, c.s_nh))
        a('s_lshl_b32 s60, s58, 17\ns_lshl_b32 s61, s59, 6\ns_add_u32 s60, s60, s61')
        a('v_and_b32 v2, 15, v1\nv_lshlrev_b32 v2, 11, v2\nv_lshrrev_b32 v3, 4, v1\nv_lshl_add_u32 v2, v3, 3, v2')
        for i in range(4):
            for j in range(2):
                a('buffer_load_dwordx2 v[%d:%d], v2, s[16:19], s60 offen offset:%d' % (XR+4*i+2*j, XR+4*i+2*j+1, 32*j))
            a('s_add_u32 s60, s60, 32768')
        a('v_lshlrev_b32 v3, 4, v3')
        a('s_lshl_b32 s61, s59, 7\ns_add_u32 s61, s61, %d' % (2*4096))
        for j in range(2): a('buffer_load_dwordx4 v[%d:%d], v3, s[20:23], s61 offen offset:%d' % (GA+4*j, GA+4*j+3, 64*j))
    c.pre_hook = pre
    gemm_body(a, c)
    XR = c.v_free; GA = XR + 16
    ACC = lambda j, i, r=0: c.v_acc + (j*4+i)*4 + r
    a('s_waitcnt vmcnt(0)')
    a('v_lshlrev_b32 v4, 4, v1')
    a('s_lshl_b32 s60, s58, 17\ns_lshl_b32 s61, s59, 10\ns_add_u32 s60, s60, s61')
    accs = list(range(c.v_acc, c.v_acc+32)); ts = list(range(8, 24))
    if opt.mimic: rndn(a, accs, ts)
    for j in range(2):
        for i in range(4):
            for r in range(4): a('v_mul_f32 v%d, v%d, v%d' % (ACC(j,i,r), ACC(j,i,r), GA+4*j+r))
    if opt.mimic: rndn(a, accs, ts)
    for i in range(4):
        for j in range(2):
            for e in range(2):
                unpack(a, 24+2*e, 25+2*e, XR+4*i+2*j+e)
            for r in range(4): a('v_add_f32 v%d, v%d, v%d' % (ACC(j,i,r), ACC(j,i,r), 24+r))
            for e in range(2): a('v_cvt_pk_bf16_f32 v%d, v%d, v%d' % (8+4*i+2*j+e, ACC(j,i,2*e), ACC(j,i,2*e+1)))
        a('buffer_store_dwordx4 v[%d:%d], v4, s[24:27], s60 offen' % (8+4*i, 11+4*i))
        a('s_add_u32 s60, s60, 32768')
    gemm_tail(a, c, n, 4)

def k_w1(a):
    n = 'w1_kernel'
    c = gemm.config('w1', 1024, 128, 3, True, 64, 3, 7168, 128)
    a.kernel_begin(n)
    gemm_head(a, c, 6, 8, 4, 448, [(4, P_W1), (6, P_WS), (32, P_B1)])
    srd(a, 8, 6, H2F, 0x400000); srd(a, 12, 4, 0, 1024*7168)
    srd(a, 16, 32, 0, 7168); srd(a, 24, 6, HF, 2048*7168)
    def pre(a, c):
        B = c.v_free
        a('v_lshrrev_b32 v3, 4, v1\nv_lshlrev_b32 v3, 3, v3')
        a('s_lshl_b32 s58, s%d, 6\ns_add_u32 s58, s58, s%d' % (c.s_nh, c.s_col0))
        a('s_lshl_b32 s59, s%d, 5\ns_add_u32 s59, s59, s%d' % (c.s_nh, c.s_colh))
        for j in range(6): a('buffer_load_dwordx2 v[%d:%d], v3, s[16:19], s58 offen offset:%d' % (B+2*j, B+2*j+1, (j//2)*128 + (j%2)*32))
        a('buffer_load_dwordx2 v[%d:%d], v3, s[16:19], s59 offen' % (B+12, B+13))
    c.pre_hook = pre
    gemm_body(a, c)
    B = c.v_free
    ACC = lambda j, i, r=0: c.v_acc + (j*4+i)*4 + r
    a('s_waitcnt vmcnt(0)')
    BF = 8
    for j in range(7):
        for e in range(2): unpack(a, BF+4*j+2*e, BF+4*j+2*e+1, B+2*j+e)
    a('v_lshlrev_b32 v4, 4, v1')
    a('s_lshl_b32 s60, s%d, 1\ns_add_u32 s60, s60, s%d\ns_mul_i32 s60, s60, %d' % (c.s_mt, c.s_rh, 4*112*1024))
    a('s_lshl_b32 s61, s58, 4\ns_add_u32 s61, s61, s60')
    a('s_lshl_b32 s62, s%d, 4\ns_add_u32 s62, s62, s60\ns_lshl_b32 s63, s%d, 3\ns_add_u32 s62, s62, s63' % (c.s_colh, c.s_nh))
    ts = list(range(40, 56)); PK = 56
    for i in range(4):
        xs = [ACC(j, i, r) for j in range(7) for r in range(4)]
        if opt.mimic: rndn(a, xs, ts)
        for k, x in enumerate(xs): a('v_add_f32 v%d, v%d, v%d' % (x, x, BF+k))
        if opt.mimic: rndn(a, xs, ts)
        for x in xs: a('v_max_f32 v%d, 0, v%d' % (x, x))
        for x in xs: a('v_mul_f32 v%d, v%d, v%d' % (x, x, x))
        pk = PK + (i % 2)*16
        for k in range(14): a('v_cvt_pk_bf16_f32 v%d, v%d, v%d' % (pk+k, xs[2*k], xs[2*k+1]))
        for p in range(3):
            if p < 2: a('buffer_store_dwordx4 v[%d:%d], v4, s[24:27], s61 offen offset:%d' % (pk+4*p, pk+4*p+3, 2048*p))
            else:
                a('s_add_u32 s63, s61, 4096')
                a('buffer_store_dwordx4 v[%d:%d], v4, s[24:27], s63 offen' % (pk+4*p, pk+4*p+3))
        a('buffer_store_dwordx2 v[%d:%d], v4, s[24:27], s62 offen' % (pk+12, pk+13))
        a('s_add_u32 s61, s61, %d\ns_add_u32 s62, s62, %d' % (112*1024, 112*1024))
    gemm_tail(a, c, n, 6)

def k_w2(a):
    n = 'w2_kernel'
    c = gemm.config('w2', 3584, 128, 1, False, 64, 6, 2048, 128)
    a.kernel_begin(n)
    gemm_head(a, c, 7, 4, 8, 128, [(4, P_W2), (6, P_WS), (32, P_B2), (34, P_OUT)])
    srd(a, 8, 6, HF, 2048*7168); srd(a, 12, 4, 0, 3584*2048)
    srd(a, 16, 32, 0, 2048); srd(a, 20, 6, MOD, 6144*4); srd(a, 24, 6, X1F, 0x400000); srd(a, 28, 34, 0, 0x400000)
    def pre(a, c):
        XR = c.v_free; GA = XR + 16; B = GA + 8
        a('s_lshl_b32 s58, s%d, 1\ns_add_u32 s58, s58, s%d' % (c.s_mt, c.s_rh))
        a('s_lshl_b32 s59, s%d, 1\ns_add_u32 s59, s59, s%d' % (c.s_nt, c.s_nh))
        a('s_lshl_b32 s60, s58, 17\ns_lshl_b32 s61, s59, 10\ns_add_u32 s60, s60, s61')
        a('v_lshlrev_b32 v2, 4, v1')
        for i in range(4):
            a('buffer_load_dwordx4 v[%d:%d], v2, s[24:27], s60 offen' % (XR+4*i, XR+4*i+3))
            a('s_add_u32 s60, s60, 32768')
        a('v_lshrrev_b32 v3, 4, v1\nv_lshlrev_b32 v2, 3, v3\nv_lshlrev_b32 v3, 4, v3')
        a('s_lshl_b32 s61, s59, 7\ns_add_u32 s61, s61, %d' % (5*4096))
        for j in range(2): a('buffer_load_dwordx4 v[%d:%d], v3, s[20:23], s61 offen offset:%d' % (GA+4*j, GA+4*j+3, 64*j))
        a('s_lshl_b32 s61, s59, 6')
        for j in range(2): a('buffer_load_dwordx2 v[%d:%d], v2, s[16:19], s61 offen offset:%d' % (B+2*j, B+2*j+1, 32*j))
    c.pre_hook = pre
    gemm_body(a, c)
    XR = c.v_free; GA = XR + 16; B = GA + 8
    ACC = lambda j, i, r=0: c.v_acc + (j*4+i)*4 + r
    a('s_waitcnt vmcnt(0)')
    BF = 28
    for j in range(2):
        for e in range(2): unpack(a, BF+4*j+2*e, BF+4*j+2*e+1, B+2*j+e)
    a('v_and_b32 v2, 15, v1\nv_lshlrev_b32 v2, 11, v2\nv_bfe_u32 v3, v1, 4, 1\nv_lshl_add_u32 v2, v3, 5, v2\nv_lshrrev_b32 v3, 5, v1\nv_lshl_add_u32 v2, v3, 4, v2')
    a('s_lshl_b32 s60, s58, 17\ns_lshl_b32 s61, s59, 6\ns_add_u32 s60, s60, s61')
    accs = list(range(c.v_acc, c.v_acc+32)); ts = list(range(8, 24))
    if opt.mimic: rndn(a, accs, ts)
    for j in range(2):
        for i in range(4):
            for r in range(4): a('v_add_f32 v%d, v%d, v%d' % (ACC(j,i,r), ACC(j,i,r), BF+4*j+r))
    if opt.mimic: rndn(a, accs, ts)
    for j in range(2):
        for i in range(4):
            for r in range(4): a('v_mul_f32 v%d, v%d, v%d' % (ACC(j,i,r), ACC(j,i,r), GA+4*j+r))
    if opt.mimic: rndn(a, accs, ts)
    for i in range(4):
        for j in range(2):
            for e in range(2): unpack(a, 24+2*e, 25+2*e, XR+4*i+2*j+e)
            for r in range(4): a('v_add_f32 v%d, v%d, v%d' % (ACC(j,i,r), ACC(j,i,r), 24+r))
            for e in range(2): a('v_cvt_pk_bf16_f32 v%d, v%d, v%d' % (8+4*i+2*j+e, ACC(j,i,2*e), ACC(j,i,2*e+1)))
    for i in range(4):
        for e in range(2): a('v_permlane16_swap_b32 v%d, v%d' % (8+4*i+e, 8+4*i+2+e))
    for i in range(4):
        a('buffer_store_dwordx4 v[%d:%d], v2, s[28:31], s60 offen' % (8+4*i, 11+4*i))
        a('s_add_u32 s60, s60, 32768')
    gemm_tail(a, c, n, 7)

def build(path, **kw):
    for k, v in kw.items(): setattr(opt, k, v)
    a = Asm()
    k_mod(a)
    k_ln(a, 'ln1_kernel', 1, False, 0, 1, H1F)
    k_qkv(a)
    k_o(a)
    k_wo(a)
    k_ln(a, 'ln2_kernel', 5, True, 3, 4, H2F)
    k_w1(a)
    k_w2(a)
    open(path, 'w').write(a.text(verbose=kw.get('verbose', False)))

if __name__ == '__main__':
    kw = eval('dict(%s)' % (sys.argv[2] if len(sys.argv) > 2 else ''))
    build(sys.argv[1], **kw)
```

```python
import sys
from asmgen import Asm
import gemm

MOD, ZP, KVP, H1F, PHIQ, OF, X1F, H2F, HF, TS = 0x0, 0x10000, 0x100000, 0x800000, 0x1000000, 0x1800000, 0x1C00000, 0x2000000, 0x2800000, 0x3800000
P_X, P_WQKV, P_WPHI, P_WO, P_W1, P_B1, P_W2, P_B2, P_C, P_WMOD, P_OUT, P_DBG, P_WS = 0, 8, 16, 24, 40, 48, 56, 64, 72, 80, 88, 96, 104
LOG2E = 0x3fb8aa3b
class O: pass
opt = O(); opt.mimic = True; opt.ts = False; opt.outscale = None

def srd(a, s, base, off, size):
    if off:
        a('s_add_u32 s%d, s%d, %d\ns_addc_u32 s%d, s%d, 0' % (s, base, off, s+1, base+1))
    else:
        a('s_mov_b32 s%d, s%d\ns_mov_b32 s%d, s%d' % (s, base, s+1, base+1))
    a('s_mov_b32 s%d, %d\ns_mov_b32 s%d, 0x20000' % (s+2, size, s+3))

def rnd2(a, x, y, t):
    a('v_cvt_pk_bf16_f32 v%d, v%d, v%d' % (t, x, y))
    a('v_lshlrev_b32 v%d, 16, v%d' % (x, t))
    a('v_and_b32 v%d, 0xffff0000, v%d' % (y, t))
def rnd1(a, x):
    a('v_cvt_pk_bf16_f32 v%d, v%d, v%d' % (x, x, x))
    a('v_lshlrev_b32 v%d, 16, v%d' % (x, x))
def rndn(a, xs, ts):
    prs = [(xs[i], xs[i+1]) for i in range(0, len(xs), 2)]
    for b in range(0, len(prs), len(ts)):
        blk = prs[b:b+len(ts)]
        for (x, y), t in zip(blk, ts): a('v_cvt_pk_bf16_f32 v%d, v%d, v%d' % (t, x, y))
        for (x, y), t in zip(blk, ts):
            a('v_lshlrev_b32 v%d, 16, v%d' % (x, t)); a('v_and_b32 v%d, 0xffff0000, v%d' % (y, t))
def unpack(a, lo, hi, src):
    a('v_lshlrev_b32 v%d, 16, v%d' % (lo, src)); a('v_and_b32 v%d, 0xffff0000, v%d' % (hi, src))

def ts_start(a, kid):
    if opt.ts: a('s_memrealtime s[96:97]')
def ts_end(a, kid, lbl):
    if not opt.ts: return
    a('s_waitcnt vmcnt(0) lgkmcnt(0)')
    a('s_memrealtime s[98:99]')
    srd(a, 88, 6, TS + kid*4096, 4096)
    a('s_mov_b64 exec, -1')
    a('v_cmp_eq_u32 vcc, 0, v0')
    a('s_waitcnt lgkmcnt(0)')
    a('v_mov_b32 v2, s96\nv_mov_b32 v3, s98\ns_lshl_b32 s92, s2, 3\nv_mov_b32 v4, s92')
    a('s_and_saveexec_b64 s[94:95], vcc\ns_cbranch_execz %s' % lbl)
    a('buffer_store_dwordx2 v[2:3], v4, s[88:91], 0 offen')

def k_mod(a):
    n = 'mod_kernel'
    a.kernel_begin(n)
    a('s_cmp_ge_u32 s2, 192\ns_cbranch_scc1 mod_end')
    a('s_load_dwordx4 s[4:7], s[0:1], %d' % P_C)
    a('s_load_dwordx2 s[20:21], s[0:1], %d' % P_WS)
    ts_start(a, 0)
    a('v_lshrrev_b32 v1, 2, v0\nv_and_b32 v2, 3, v0')
    a('v_lshlrev_b32 v3, 5, v1')
    a('s_mov_b32 s22, %d' % (16*12288))
    a('v_mul_lo_u32 v1, v1, s22')
    a('v_lshl_add_u32 v1, v2, 4, v1')
    a('s_lshl_b32 s23, s2, 6')
    a('s_waitcnt lgkmcnt(0)')
    srd(a, 8, 4, 0, 2048); srd(a, 12, 6, 0, 1024*12288)
    a('s_mov_b32 s6, s20\ns_mov_b32 s7, s21')
    srd(a, 16, 6, MOD, 6144*4)
    a('buffer_load_dwordx4 v[4:7], v3, s[8:11], 0 offen')
    a('buffer_load_dwordx4 v[8:11], v3, s[8:11], 0 offen offset:16')
    for p in range(16):
        a('buffer_load_dwordx4 v[%d:%d], v1, s[12:15], s23 offen' % (16+4*p, 19+4*p))
        a('s_add_u32 s23, s23, 12288')
    a('s_waitcnt vmcnt(16)')
    for i in range(8): unpack(a, 80+2*i, 81+2*i, 4+i)
    a('s_mov_b32 s24, 0x%x' % LOG2E)
    for i in range(16): a('v_mul_f32 v%d, s24, v%d' % (96+i, 80+i))
    for i in range(16): a('v_exp_f32 v%d, -v%d' % (96+i, 96+i))
    for i in range(16): a('v_add_f32 v%d, 1.0, v%d' % (96+i, 96+i))
    for i in range(16): a('v_rcp_f32 v%d, v%d' % (96+i, 96+i))
    for i in range(16): a('v_mul_f32 v%d, v%d, v%d' % (80+i, 80+i, 96+i))
    rndn(a, list(range(80, 96)), list(range(96, 104)))
    for p in range(16):
        a('s_waitcnt vmcnt(%d)' % (15-p))
        for d in range(4): unpack(a, 104+2*d, 105+2*d, 16+4*p+d)
        for e in range(8):
            if p == 0: a('v_mul_f32 v%d, v%d, v%d' % (96+e, 104+e, 80+p))
            else: a('v_fmac_f32 v%d, v%d, v%d' % (96+e, 104+e, 80+p))
    for ror in (4, 8):
        for e in range(8): a('v_add_f32_dpp v%d, v%d, v%d row_ror:%d row_mask:0xf bank_mask:0xf' % (96+e, 96+e, 96+e, ror))
    a('v_lshrrev_b32 v1, 4, v0\nv_lshlrev_b32 v1, 7, v1\nv_lshl_add_u32 v1, v2, 5, v1')
    a('ds_write_b128 v1, v[96:99]\nds_write_b128 v1, v[100:103] offset:16')
    a('s_waitcnt lgkmcnt(0)\ns_barrier')
    a('v_cmp_gt_u32 vcc, 32, v0\ns_and_saveexec_b64 s[26:27], vcc\ns_cbranch_execz mod_fin')
    a('v_lshlrev_b32 v1, 2, v0')
    for p in range(16): a('ds_read_b32 v%d, v1 offset:%d' % (16+p, 128*p))
    a('s_waitcnt lgkmcnt(0)')
    for st in (8, 4, 2, 1):
        for p in range(st): a('v_add_f32 v%d, v%d, v%d' % (16+p, 16+p, 16+p+st))
    rnd1(a, 16)
    a('v_add_f32 v17, 1.0, v16')
    rnd1(a, 17)
    a('s_lshr_b32 s24, s2, 5')
    a('s_cmp_eq_u32 s24, 1\ns_cselect_b32 s25, 1, 0\ns_cmp_eq_u32 s24, 4\ns_cselect_b32 s25, 1, s25')
    a('s_cmp_eq_u32 s25, 1\ns_cbranch_scc0 mod_st\nv_mov_b32 v16, v17')
    a.label('mod_st')
    a('s_lshl_b32 s24, s2, 7')
    a('buffer_store_dword v16, v1, s[16:19], s24 offen')
    a.label('mod_fin')
    ts_end(a, 0, 'mod_end')
    a.label('mod_end')
    a('s_endpgm')
    a.kernel_end(n, 112, 100, 112, 192, 256, 2048)

def xg_sum(a, x, t):
    a('v_mov_b32 v%d, v%d' % (t, x)); a('v_permlane32_swap_b32 v%d, v%d' % (x, t)); a('v_add_f32 v%d, v%d, v%d' % (x, x, t))
    a('v_mov_b32 v%d, v%d' % (t, x)); a('v_permlane16_swap_b32 v%d, v%d' % (x, t)); a('v_add_f32 v%d, v%d, v%d' % (x, x, t))

def k_ln(a, n, kid, src_frag, shift_chunk, scale_chunk, dst):
    L = n.replace('_kernel', '')
    a.kernel_begin(n)
    a('s_cmp_ge_u32 s2, 128\ns_cbranch_scc1 %s_end' % L)
    a('s_load_dwordx2 s[4:5], s[0:1], %d\ns_load_dwordx2 s[6:7], s[0:1], %d' % (P_X, P_WS))
    ts_start(a, kid)
    a('v_and_b32 v1, 63, v0\nv_lshrrev_b32 v2, 6, v0')
    a('v_and_b32 v3, 15, v0\nv_bfe_u32 v4, v0, 4, 2')
    a('s_lshl_b32 s20, s2, 15')
    a('v_lshlrev_b32 v5, 12, v2\nv_lshl_add_u32 v5, v1, 4, v5')
    a('v_lshlrev_b32 v6, 9, v2\nv_lshl_add_u32 v6, v4, 4, v6')
    if not src_frag:
        a('v_lshlrev_b32 v7, 11, v3\nv_lshl_add_u32 v7, v2, 8, v7\nv_lshl_add_u32 v7, v4, 3, v7')
    a('s_waitcnt lgkmcnt(0)')
    if src_frag: srd(a, 8, 6, X1F, 0x400000)
    else: srd(a, 8, 4, 0, 0x400000)
    srd(a, 12, 6, MOD, 6144*4); srd(a, 16, 6, dst, 0x400000)
    D = 16
    for u in range(4):
        if src_frag: a('buffer_load_dwordx4 v[%d:%d], v5, s[8:11], s20 offen offset:%d' % (D+4*u, D+4*u+3, 1024*u))
        else:
            a('buffer_load_dwordx2 v[%d:%d], v7, s[8:11], s20 offen offset:%d' % (D+4*u, D+4*u+1, 64*u))
            a('buffer_load_dwordx2 v[%d:%d], v7, s[8:11], s20 offen offset:%d' % (D+4*u+2, D+4*u+3, 64*u+32))
    A = 64; S = 96; X = 32
    a('s_mov_b32 s21, %d\ns_mov_b32 s22, %d' % (scale_chunk*4096, shift_chunk*4096))
    for u in range(4):
        for h in range(2):
            a('buffer_load_dwordx4 v[%d:%d], v6, s[12:15], s21 offen offset:%d' % (A+8*u+4*h, A+8*u+4*h+3, 128*u+64*h))
            a('buffer_load_dwordx4 v[%d:%d], v6, s[12:15], s22 offen offset:%d' % (S+8*u+4*h, S+8*u+4*h+3, 128*u+64*h))
    a('v_lshlrev_b32 v8, 5, v3\nv_lshl_add_u32 v9, v2, 2, v8')
    a('s_waitcnt vmcnt(16)')
    for i in range(16): unpack(a, X+2*i, X+2*i+1, D+i)
    for i in range(4): a('v_add_f32 v%d, v%d, v%d' % (10+i, X+i, X+4+i))
    for k in range(8, 32, 4):
        for i in range(4): a('v_add_f32 v%d, v%d, v%d' % (10+i, 10+i, X+k+i))
    a('v_add_f32 v10, v10, v11\nv_add_f32 v12, v12, v13\nv_add_f32 v10, v10, v12')
    xg_sum(a, 10, 11)
    a('ds_write_b32 v9, v10\ns_waitcnt lgkmcnt(0)\ns_barrier')
    a('ds_read_b128 v[16:19], v8\nds_read_b128 v[20:23], v8 offset:16\ns_waitcnt lgkmcnt(0)')
    for i in range(4): a('v_add_f32 v%d, v%d, v%d' % (16+i, 16+i, 20+i))
    a('v_add_f32 v16, v16, v17\nv_add_f32 v18, v18, v19\nv_add_f32 v16, v16, v18')
    a('v_mul_f32 v14, 0x3a800000, v16')
    for i in range(4):
        a('v_sub_f32 v%d, v%d, v14' % (16+i, X+i));
    for i in range(4): a('v_mul_f32 v%d, v%d, v%d' % (10+i, 16+i, 16+i))
    for k in range(4, 32, 4):
        for i in range(4): a('v_sub_f32 v%d, v%d, v14' % (16+i, X+k+i))
        for i in range(4): a('v_fmac_f32 v%d, v%d, v%d' % (10+i, 16+i, 16+i))
    a('v_add_f32 v10, v10, v11\nv_add_f32 v12, v12, v13\nv_add_f32 v10, v10, v12')
    xg_sum(a, 10, 11)
    a('ds_write_b32 v9, v10 offset:512\ns_waitcnt lgkmcnt(0)\ns_barrier')
    a('ds_read_b128 v[16:19], v8 offset:512\nds_read_b128 v[20:23], v8 offset:528\ns_waitcnt lgkmcnt(0)')
    for i in range(4): a('v_add_f32 v%d, v%d, v%d' % (16+i, 16+i, 20+i))
    a('v_add_f32 v16, v16, v17\nv_add_f32 v18, v18, v19\nv_add_f32 v16, v16, v18')
    a('v_mul_f32 v15, 0x3a800000, v16')
    xs = list(range(X, X+32)); ts = list(range(16, 32))
    if opt.mimic:
        rnd2(a, 14, 15, 16)
        a('v_add_f32 v15, 0x3727c5ac, v15'); rnd1(a, 15)
        a('v_sqrt_f32 v15, v15'); rnd1(a, 15)
        a('v_rcp_f32 v15, v15')
        for x in xs: a('v_sub_f32 v%d, v%d, v14' % (x, x))
        rndn(a, xs, ts)
        for x in xs: a('v_mul_f32 v%d, v%d, v15' % (x, x))
        rndn(a, xs, ts)
        a('s_waitcnt vmcnt(0)')
        for i, x in enumerate(xs): a('v_mul_f32 v%d, v%d, v%d' % (x, x, A+i))
        rndn(a, xs, ts)
        for i, x in enumerate(xs): a('v_add_f32 v%d, v%d, v%d' % (x, x, S+i))
    else:
        a('v_add_f32 v15, 0x3727c5ac, v15\nv_rsq_f32 v15, v15')
        for x in xs: a('v_sub_f32 v%d, v%d, v14' % (x, x))
        for x in xs: a('v_mul_f32 v%d, v%d, v15' % (x, x))
        a('s_waitcnt vmcnt(0)')
        for i, x in enumerate(xs): a('v_fma_f32 v%d, v%d, v%d, v%d' % (x, x, A+i, S+i))
    for i in range(16): a('v_cvt_pk_bf16_f32 v%d, v%d, v%d' % (16+i, X+2*i, X+2*i+1))
    for u in range(4): a('buffer_store_dwordx4 v[%d:%d], v5, s[16:19], s20 offen offset:%d' % (16+4*u, 19+4*u, 1024*u))
    ts_end(a, kid, L+'_end')
    a.label(L+'_end')
    a('s_endpgm')
    a.kernel_end(n, 128, 100, 128, 128, 512, 1024)

def gemm_head(a, c, kid, xm, xn, colmul, ptrs):
    a('s_cmp_ge_u32 s2, 256\ns_cbranch_scc1 %s_end' % c.name)
    for s, o in ptrs: a('s_load_dwordx2 s[%d:%d], s[0:1], %d' % (s, s+1, o))
    ts_start(a, kid)
    bm = 16 // xm
    a('s_and_b32 s36, s2, 7\ns_lshr_b32 s37, s2, 3')
    a('s_and_b32 s38, s36, %d\ns_lshr_b32 s36, s36, %d' % (bm-1, bm.bit_length()-1))
    a('s_and_b32 s39, s37, %d\ns_lshr_b32 s37, s37, %d' % (xm-1, xm.bit_length()-1))
    a('s_mul_i32 s38, s38, %d\ns_add_u32 s%d, s38, s39' % (xm, c.s_mt))
    a('s_mul_i32 s36, s36, %d\ns_add_u32 s%d, s36, s37' % (xn, c.s_nt))
    a('s_mul_i32 s%d, s%d, %d' % (c.s_col0, c.s_nt, colmul))
    if c.half:
        a('s_and_b32 s36, s%d, 1' % c.s_nt)
        a('s_cmp_eq_u32 s36, 0')
        a('s_cselect_b32 s36, 384, 0\ns_cselect_b32 s37, 0, 64')
        a('s_add_u32 s%d, s%d, s36' % (c.s_colh, c.s_col0))
        a('s_add_u32 s%d, s%d, s37' % (c.s_col0, c.s_col0))
    gemm.gemm_prologue(a, c)
    a('s_waitcnt lgkmcnt(0)')

def gemm_body(a, c):
    a('s_cmp_lt_u32 s%d, 4\ns_cbranch_scc1 %s_cons' % (c.s_wave, c.name))
    gemm.producer(a, c, c.name + '_end')
    a.label(c.name + '_cons')
    gemm.consumer(a, c)

def gemm_tail(a, c, n, kid):
    if opt.ts:
        a('s_cmp_lg_u32 s%d, 0\ns_cbranch_scc1 %s_end' % (c.s_wave, c.name))
        ts_end(a, kid, c.name + '_end')
    a.label(c.name + '_end')
    a('s_endpgm')
    a.kernel_end(n, 256, 100, 256, 256, 512, c.lds)

def bfly(a, op, x):
    return [
     ['v_permlane32_swap_b32 v%d, v%d' % (x[0], x[1]), 'v_permlane32_swap_b32 v%d, v%d' % (x[2], x[3])],
     ['%s v%d, v%d, v%d' % (op, x[0], x[0], x[1]), '%s v%d, v%d, v%d' % (op, x[2], x[2], x[3])],
     ['v_permlane16_swap_b32 v%d, v%d' % (x[0], x[2])],
     ['%s v%d, v%d, v%d' % (op, x[0], x[0], x[2])],
     ['v_mov_b32 v%d, v%d' % (x[2], x[0])],
     ['v_permlane16_swap_b32 v%d, v%d' % (x[0], x[2])],
     ['v_mov_b32 v%d, v%d' % (x[1], x[0]), 'v_mov_b32 v%d, v%d' % (x[3], x[2])],
     ['v_permlane32_swap_b32 v%d, v%d' % (x[0], x[1]), 'v_permlane32_swap_b32 v%d, v%d' % (x[2], x[3])]]
def bfly2(a, op1, x1, op2, x2):
    for s1, s2 in zip(bfly(a, op1, x1), bfly(a, op2, x2)):
        for l in s1 + s2: a(l)

def k_qkv(a):
    n = 'qkv_kernel'
    c = gemm.config('qkv', 1024, 128, 3, False, 64, 3, 6144, 2048, swap_frags=(4, 5))
    a.kernel_begin(n)
    gemm_head(a, c, 2, 8, 4, 128, [(4, P_WQKV), (6, P_WS), (32, P_WPHI)])
    srd(a, 8, 6, H1F, 0x400000); srd(a, 12, 4, 0, 1024*6144)
    srd(a, 16, 32, 0, 65536); srd(a, 20, 6, PHIQ, 0x800000); srd(a, 24, 6, KVP, 0x400000); srd(a, 28, 6, ZP, 0x20000)
    s_hd = 58
    def pre(a, c):
        W = c.v_free
        a('s_lshl_b32 s%d, s%d, 1\ns_add_u32 s%d, s%d, s%d' % (s_hd, c.s_nt, s_hd, s_hd, c.s_nh))
        a('s_lshl_b32 s59, s%d, 11' % s_hd)
        a('v_and_b32 v2, 15, v1\nv_lshlrev_b32 v2, 1, v2\nv_lshrrev_b32 v3, 4, v1\nv_lshl_add_u32 v2, v3, 8, v2')
        for ft in range(2):
            for dw in range(4):
                d0 = (dw % 2)*2 + (dw // 2)*16
                a('buffer_load_ushort v%d, v2, s[16:19], s59 offen offset:%d' % (W+ft*4+dw, d0*64 + ft*32))
                a('buffer_load_ushort v%d, v2, s[16:19], s59 offen offset:%d' % (W+40+ft*4+dw, d0*64 + 64 + ft*32))
    c.pre_hook = pre
    gemm_body(a, c)
    W = c.v_free
    ACC = lambda j, i, r=0: c.v_acc + (j*4+i)*4 + r
    EB = c.slot * ((c.K // c.BK) % c.S)
    assert EB + 49152 <= c.lds and EB == c.slot
    IMG = EB; VB = EB + 32768
    QF = 8; P = 24; E = 56
    MX = W + 8; MN = MX + 4; T = MN + 4
    sL = 60
    a('s_mov_b32 s%d, 0x%x' % (sL, LOG2E))
    def hrow(dst, row, t):
        a('v_lshrrev_b32 v%d, 1, v%d\nv_and_b32 v%d, 3, v%d\nv_lshlrev_b32 v%d, 2, v%d' % (dst, row, dst, dst, dst, dst))
        a('v_and_b32 v%d, 1, v%d\nv_or_b32 v%d, v%d, v%d' % (t, row, dst, dst, t))
        a('v_lshrrev_b32 v%d, 2, v%d\nv_and_b32 v%d, 2, v%d\nv_or_b32 v%d, v%d, v%d' % (t, row, t, t, dst, dst, t))
    WA = T + 16
    RA = WA + 4
    a('v_and_b32 v2, 15, v1\nv_lshrrev_b32 v3, 4, v1')
    hrow(4, 2, 5)
    a('v_xor_b32 v4, v4, v3')
    a('v_lshlrev_b32 v2, 7, v2')
    a('s_lshl_b32 s61, s%d, 13\ns_add_u32 s61, s61, %d' % (c.s_wave, IMG))
    a('v_add_u32 v2, s61, v2')
    for u in range(4):
        a('v_xor_b32 v5, %d, v4\nv_lshl_add_u32 v%d, v5, 3, v2' % (4*u, WA+u))
    a('v_lshrrev_b32 v2, 2, v1\nv_and_b32 v3, 3, v1')
    hrow(4, 2, 5)
    a('v_xor_b32 v4, v4, v3')
    a('v_lshlrev_b32 v2, 7, v2')
    a('s_lshl_b32 s61, s%d, 13\ns_add_u32 s61, s61, %d' % (c.s_nh, IMG))
    a('v_add_u32 v2, s61, v2')
    a('s_lshl_b32 s61, s%d, 3' % c.s_rh)
    a('v_xor_b32 v4, s61, v4')
    for u in range(2):
        a('v_xor_b32 v5, %d, v4\nv_lshl_add_u32 v%d, v5, 3, v2' % (4*u, RA+u))
    a('v_lshlrev_b32 v4, 4, v1')
    a('s_lshl_b32 s61, s%d, 1\ns_add_u32 s61, s61, s%d\ns_lshl_b32 s61, s61, 12\ns_add_u32 s61, s61, %d' % (c.s_nh, c.s_rh, VB))
    a('v_add_u32 v3, s61, v4')
    for gam in range(2):
        for dt in range(2):
            q = QF + (gam*2+dt)*4
            for h in range(2):
                for e in range(2):
                    a('v_cvt_pk_bf16_f32 v%d, v%d, v%d' % (q+2*h+e, ACC(4+dt, 2*gam+h, 2*e), ACC(4+dt, 2*gam+h, 2*e+1)))
            a('ds_write_b128 v3, v[%d:%d] offset:%d' % (q, q+3, (gam*2+dt)*1024))
    a('s_waitcnt vmcnt(0) lgkmcnt(0)')
    for e in range(8): a('v_lshl_or_b32 v%d, v%d, 16, v%d' % (W+e, W+40+e, W+e))
    def feat(j0, is_k):
        for i in range(4):
            for h in range(2):
                for e in range(2):
                    a('v_cvt_pk_bf16_f32 v%d, v%d, v%d' % (QF+4*i+2*h+e, ACC(j0+h, i, 2*e), ACC(j0+h, i, 2*e+1)))
        for i in range(4):
            for ft in range(2):
                t = P + i*8 + ft*4
                a('v_mfma_f32_16x16x32_bf16 v[%d:%d], v[%d:%d], v[%d:%d], 0' % (t, t+3, W+ft*4, W+ft*4+3, QF+4*i, QF+4*i+3))
        ps = list(range(P, P+32))
        if opt.mimic: rndn(a, ps, list(range(T, T+16)))
        for (op, op2, dst) in (('v_max3_f32', 'v_max_f32', MX), ('v_min3_f32', 'v_min_f32', MN)):
            for i in range(4): a('%s v%d, v%d, v%d, v%d' % (op, dst+i, P+8*i, P+8*i+1, P+8*i+2))
            for i in range(4): a('%s v%d, v%d, v%d, v%d' % (op, dst+i, dst+i, P+8*i+3, P+8*i+4))
            for i in range(4): a('%s v%d, v%d, v%d, v%d' % (op, dst+i, dst+i, P+8*i+5, P+8*i+6))
            for i in range(4): a('%s v%d, v%d, v%d' % (op2, dst+i, dst+i, P+8*i+7))
        bfly2(a, 'v_max_f32', [MX+i for i in range(4)], 'v_min_f32', [MN+i for i in range(4)])
        for i in range(4):
            a('v_mul_f32 v%d, s%d, v%d\nv_mul_f32 v%d, s%d, v%d' % (MX+i, sL, MX+i, MN+i, sL, MN+i))
        for i in range(4):
            for e in range(8): a('v_fma_f32 v%d, v%d, s%d, -v%d' % (E+8*i+e, P+8*i+e, sL, MX+i))
            for e in range(8): a('v_fma_f32 v%d, -v%d, s%d, v%d' % (P+8*i+e, P+8*i+e, sL, MN+i))
        for i in range(32): a('v_exp_f32 v%d, v%d\nv_exp_f32 v%d, v%d' % (E+i, E+i, P+i, P+i))
        for (B, dst) in ((E, MX), (P, MN)):
            for i in range(4): a('v_add_f32 v%d, v%d, v%d' % (dst+i, B+8*i, B+8*i+1))
            for e in range(2, 8):
                for i in range(4): a('v_add_f32 v%d, v%d, v%d' % (dst+i, dst+i, B+8*i+e))
        bfly2(a, 'v_add_f32', [MX+i for i in range(4)], 'v_add_f32', [MN+i for i in range(4)])
        for i in range(4): a('v_rcp_f32 v%d, v%d\nv_rcp_f32 v%d, v%d' % (MX+i, MX+i, MN+i, MN+i))
        for i in range(4):
            for sg, (B, sc) in enumerate(((E, MX), (P, MN))):
                for e in range(8): a('v_mul_f32 v%d, v%d, v%d' % (B+8*i+e, B+8*i+e, sc+i))
                for e in range(4): a('v_cvt_pk_bf16_f32 v%d, v%d, v%d' % (B+8*i+e, B+8*i+2*e, B+8*i+2*e+1))
                if is_k:
                    for ft in range(2):
                        a('ds_write_b64 v%d, v[%d:%d] offset:%d' % (WA+2*sg+ft, B+8*i+2*ft, B+8*i+2*ft+1, i*2048))
                else:
                    a('buffer_store_dwordx4 v[%d:%d], v4, s[20:23], s62 offen offset:%d' % (B+8*i, B+8*i+3, sg*1024))
            if not is_k: a('s_add_u32 s62, s62, 65536')
    feat(2, True)
    a('s_waitcnt lgkmcnt(0)\ns_barrier')
    AF = 8
    VF = 40
    ONE = 72
    KV = ACC(2, 0)
    a('s_lshl_b32 s61, s%d, 13\ns_add_u32 s61, s61, %d' % (c.s_nh, VB))
    a('v_add_u32 v3, s61, v4')
    for gp in range(4):
        rhp, gam = gp // 2, gp % 2
        for ftl in range(2):
            for t in range(2):
                q = AF + (ftl*4+gp)*4 + 2*t
                a('ds_read_b64_tr_b16 v[%d:%d], v%d offset:%d' % (q, q+1, RA+ftl, rhp*16384 + (gam*32 + t*16)*128))
        for dt in range(2):
            q = VF + (dt*4+gp)*4
            a('ds_read_b128 v[%d:%d], v3 offset:%d' % (q, q+3, (gp*2+dt)*1024))
    for e in range(4): a('v_mov_b32 v%d, 0x3f803f80' % (ONE+e))
    for gp in range(4):
        a('s_waitcnt lgkmcnt(%d)' % (6*(3-gp) if 6*(3-gp) <= 15 else 15))
        if gp == 0: a('s_waitcnt lgkmcnt(12)')
        for ftl in range(2):
            for t in range(3):
                d = KV + (ftl*3+t)*4; A_ = AF + (ftl*4+gp)*4
                B_ = VF + (t*4+gp)*4 if t < 2 else ONE
                cc = '0' if gp == 0 else 'v[%d:%d]' % (d, d+3)
                a('v_mfma_f32_16x16x32_bf16 v[%d:%d], v[%d:%d], v[%d:%d], %s' % (d, d+3, A_, A_+3, B_, B_+3, cc))
    a('s_lshl_b32 s61, s%d, 4\ns_add_u32 s61, s61, s%d' % (s_hd, c.s_mt))
    a('s_lshl_b32 s63, s61, 13\ns_lshl_b32 s64, s%d, 12\ns_add_u32 s63, s63, s64' % c.s_rh)
    a('s_lshl_b32 s61, s61, 8\ns_lshl_b32 s64, s%d, 7\ns_add_u32 s61, s61, s64' % c.s_rh)
    for ftl in range(2):
        for dt in range(2):
            d = KV + (ftl*3+dt)*4
            a('buffer_store_dwordx4 v[%d:%d], v4, s[24:27], s63 offen offset:%d' % (d, d+3, (ftl*2+dt)*1024))
    a('v_and_b32 v2, 15, v1\nv_cmp_eq_u32 vcc, 0, v2')
    a('s_and_saveexec_b64 s[64:65], vcc')
    for ftl in range(2):
        d = KV + (ftl*3+2)*4
        a('buffer_store_dwordx4 v[%d:%d], v1, s[28:31], s61 offen offset:%d' % (d, d+3, ftl*64))
    a('s_mov_b64 exec, s[64:65]')
    a('s_lshl_b32 s62, s%d, 1\ns_add_u32 s62, s62, s%d\ns_lshl_b32 s62, s62, 18' % (c.s_mt, c.s_rh))
    a('s_lshl_b32 s61, s%d, 11\ns_add_u32 s62, s62, s61' % s_hd)
    feat(0, False)
    gemm_tail(a, c, n, 2)

def k_o(a):
    n = 'o_kernel'
    a.kernel_begin(n)
    a('s_cmp_ge_u32 s2, 256\ns_cbranch_scc1 o_end')
    a('s_load_dwordx2 s[6:7], s[0:1], %d' % P_WS)
    ts_start(a, 3)
    a('s_and_b32 s36, s2, 7\ns_lshl_b32 s36, s36, 2\ns_lshr_b32 s37, s2, 3\ns_and_b32 s37, s37, 3\ns_add_u32 s36, s36, s37\ns_lshr_b32 s37, s2, 5')
    a('v_lshrrev_b32 v2, 6, v0\nv_and_b32 v1, 63, v0\nv_readfirstlane_b32 s38, v2')
    a('v_lshlrev_b32 v3, 4, v1\nv_lshrrev_b32 v4, 4, v1\nv_lshlrev_b32 v4, 4, v4')
    a('s_waitcnt lgkmcnt(0)')
    srd(a, 8, 6, KVP, 0x400000); srd(a, 12, 6, ZP, 0x20000); srd(a, 16, 6, PHIQ, 0x800000); srd(a, 20, 6, OF, 0x400000)
    a('s_lshl_b32 s40, s36, 17\ns_lshl_b32 s41, s38, 11\ns_add_u32 s40, s40, s41')
    a('s_lshl_b32 s41, s36, 12\ns_lshl_b32 s42, s38, 6\ns_add_u32 s41, s41, s42')
    KB = 48
    for m in range(16):
        a('buffer_load_dwordx4 v[%d:%d], v3, s[8:11], s40 offen' % (KB+12*m, KB+12*m+3))
        a('buffer_load_dwordx4 v[%d:%d], v3, s[8:11], s40 offen offset:1024' % (KB+12*m+4, KB+12*m+7))
        a('buffer_load_dwordx4 v[%d:%d], v4, s[12:15], s41 offen offset:%d' % (KB+12*m+8, KB+12*m+11, 256*m))
        a('s_add_u32 s40, s40, 8192')
    a('s_lshl_b32 s42, s37, 2\ns_add_u32 s42, s42, s38\ns_lshl_b32 s42, s42, 2')
    a('s_lshl_b32 s43, s42, 16\ns_lshl_b32 s44, s36, 11\ns_add_u32 s43, s43, s44')
    PQ = 8
    for i in range(4):
        for sg in range(2):
            a('buffer_load_dwordx4 v[%d:%d], v3, s[16:19], s43 offen offset:%d' % (PQ+8*i+4*sg, PQ+8*i+4*sg+3, 1024*sg))
        a('s_add_u32 s43, s43, 65536')
    for m in range(1, 16):
        a('s_waitcnt vmcnt(%d)' % (8 + 3*(15-m)))
        for e in range(12): a('v_add_f32 v%d, v%d, v%d' % (KB+e, KB+e, KB+12*m+e))
    for t in range(3):
        for e in range(2): a('v_cvt_pk_bf16_f32 v%d, v%d, v%d' % (KB+12+2*t+e, KB+4*t+2*e, KB+4*t+2*e+1))
    a('s_lshr_b32 s40, s38, 1\ns_lshl_b32 s40, s40, 10\ns_and_b32 s41, s38, 1\ns_lshl_b32 s41, s41, 3\ns_add_u32 s40, s40, s41')
    a('v_add_u32 v5, s40, v3')
    for t in range(3): a('ds_write_b64 v5, v[%d:%d] offset:%d' % (KB+12+2*t, KB+13+2*t, 2048*t))
    a('s_waitcnt lgkmcnt(0)\ns_barrier')
    AF = 80
    for t in range(3):
        for gam in range(2): a('ds_read_b128 v[%d:%d], v3 offset:%d' % (AF+(t*2+gam)*4, AF+(t*2+gam)*4+3, (t*2+gam)*1024))
    a('s_waitcnt vmcnt(0) lgkmcnt(0)')
    R = 112
    for gam in range(2):
        for i in range(4):
            for t in range(3):
                d = R + (i*3+t)*4; A_ = AF+(t*2+gam)*4; B_ = PQ+8*i+4*gam
                a('v_mfma_f32_16x16x32_bf16 v[%d:%d], v[%d:%d], v[%d:%d], %s' % (d, d+3, A_, A_+3, B_, B_+3, '0' if gam == 0 else 'v[%d:%d]' % (d, d+3)))
    a('s_lshl_b32 s43, s42, 15\ns_lshl_b32 s44, s36, 10\ns_add_u32 s43, s43, s44')
    dens = [R+(i*3+2)*4 for i in range(4)]
    if opt.mimic: rndn(a, dens, [48, 49])
    for d in dens: a('v_add_f32 v%d, 0x358637bd, v%d' % (d, d))
    if opt.mimic: rndn(a, dens, [48, 49])
    for d in dens: a('v_rcp_f32 v%d, v%d' % (d, d))
    for i in range(4):
        xs = list(range(R+i*12, R+i*12+8))
        if opt.mimic: rndn(a, xs, [48, 49, 50, 51])
        for x in xs: a('v_mul_f32 v%d, v%d, v%d' % (x, x, dens[i]))
        for e in range(4): a('v_cvt_pk_bf16_f32 v%d, v%d, v%d' % (56+4*i+e, xs[2*e], xs[2*e+1]))
        a('buffer_store_dwordx4 v[%d:%d], v3, s[20:23], s43 offen' % (56+4*i, 59+4*i))
        a('s_add_u32 s43, s43, 32768')
    if opt.ts:
        a('s_cmp_lg_u32 s38, 0\ns_cbranch_scc1 o_end')
        ts_end(a, 3, 'o_end')
    a.label('o_end')
    a('s_endpgm')
    a.kernel_end(n, 256, 100, 256, 256, 256, 6144)

def k_wo(a):
    n = 'wo_kernel'
    c = gemm.config('wo', 1024, 128, 1, False, 64, 6, 2048, 128)
    a.kernel_begin(n)
    gemm_head(a, c, 4, 4, 8, 128, [(4, P_WO), (6, P_WS), (32, P_X)])
    srd(a, 8, 6, OF, 0x400000); srd(a, 12, 4, 0, 1024*2048)
    srd(a, 16, 32, 0, 0x400000); srd(a, 20, 6, MOD, 6144*4); srd(a, 24, 6, X1F, 0x400000)
    def pre(a, c):
        XR = c.v_free; GA = XR + 16
        a('s_lshl_b32 s58, s%d, 1\ns_add_u32 s58, s58, s%d' % (c.s_mt, c.s_rh))
        a('s_lshl_b32 s59, s%d, 1\ns_add_u32 s59, s59, s%d' % (c.s_nt, c.s_nh))
        a('s_lshl_b32 s60, s58, 17\ns_lshl_b32 s61, s59, 6\ns_add_u32 s60, s60, s61')
        a('v_and_b32 v2, 15, v1\nv_lshlrev_b32 v2, 11, v2\nv_lshrrev_b32 v3, 4, v1\nv_lshl_add_u32 v2, v3, 3, v2')
        for i in range(4):
            for j in range(2):
                a('buffer_load_dwordx2 v[%d:%d], v2, s[16:19], s60 offen offset:%d' % (XR+4*i+2*j, XR+4*i+2*j+1, 32*j))
            a('s_add_u32 s60, s60, 32768')
        a('v_lshlrev_b32 v3, 4, v3')
        a('s_lshl_b32 s61, s59, 7\ns_add_u32 s61, s61, %d' % (2*4096))
        for j in range(2): a('buffer_load_dwordx4 v[%d:%d], v3, s[20:23], s61 offen offset:%d' % (GA+4*j, GA+4*j+3, 64*j))
    c.pre_hook = pre
    gemm_body(a, c)
    XR = c.v_free; GA = XR + 16
    ACC = lambda j, i, r=0: c.v_acc + (j*4+i)*4 + r
    a('s_waitcnt vmcnt(0)')
    a('v_lshlrev_b32 v4, 4, v1')
    a('s_lshl_b32 s60, s58, 17\ns_lshl_b32 s61, s59, 10\ns_add_u32 s60, s60, s61')
    accs = list(range(c.v_acc, c.v_acc+32)); ts = list(range(8, 24))
    if opt.mimic: rndn(a, accs, ts)
    for j in range(2):
        for i in range(4):
            for r in range(4): a('v_mul_f32 v%d, v%d, v%d' % (ACC(j,i,r), ACC(j,i,r), GA+4*j+r))
    if opt.mimic: rndn(a, accs, ts)
    for i in range(4):
        for j in range(2):
            for e in range(2):
                unpack(a, 24+2*e, 25+2*e, XR+4*i+2*j+e)
            for r in range(4): a('v_add_f32 v%d, v%d, v%d' % (ACC(j,i,r), ACC(j,i,r), 24+r))
            for e in range(2): a('v_cvt_pk_bf16_f32 v%d, v%d, v%d' % (8+4*i+2*j+e, ACC(j,i,2*e), ACC(j,i,2*e+1)))
        a('buffer_store_dwordx4 v[%d:%d], v4, s[24:27], s60 offen' % (8+4*i, 11+4*i))
        a('s_add_u32 s60, s60, 32768')
    gemm_tail(a, c, n, 4)

def k_w1(a):
    n = 'w1_kernel'
    c = gemm.config('w1', 1024, 128, 3, True, 64, 3, 7168, 128)
    a.kernel_begin(n)
    gemm_head(a, c, 6, 8, 4, 448, [(4, P_W1), (6, P_WS), (32, P_B1)])
    srd(a, 8, 6, H2F, 0x400000); srd(a, 12, 4, 0, 1024*7168)
    srd(a, 16, 32, 0, 7168); srd(a, 24, 6, HF, 2048*7168)
    def pre(a, c):
        B = c.v_free
        a('v_lshrrev_b32 v3, 4, v1\nv_lshlrev_b32 v3, 3, v3')
        a('s_lshl_b32 s58, s%d, 6\ns_add_u32 s58, s58, s%d' % (c.s_nh, c.s_col0))
        a('s_lshl_b32 s59, s%d, 5\ns_add_u32 s59, s59, s%d' % (c.s_nh, c.s_colh))
        for j in range(6): a('buffer_load_dwordx2 v[%d:%d], v3, s[16:19], s58 offen offset:%d' % (B+2*j, B+2*j+1, (j//2)*128 + (j%2)*32))
        a('buffer_load_dwordx2 v[%d:%d], v3, s[16:19], s59 offen' % (B+12, B+13))
    c.pre_hook = pre
    gemm_body(a, c)
    B = c.v_free
    ACC = lambda j, i, r=0: c.v_acc + (j*4+i)*4 + r
    a('s_waitcnt vmcnt(0)')
    BF = 8
    for j in range(7):
        for e in range(2): unpack(a, BF+4*j+2*e, BF+4*j+2*e+1, B+2*j+e)
    a('v_lshlrev_b32 v4, 4, v1')
    a('s_lshl_b32 s60, s%d, 1\ns_add_u32 s60, s60, s%d\ns_mul_i32 s60, s60, %d' % (c.s_mt, c.s_rh, 4*112*1024))
    a('s_lshl_b32 s61, s58, 4\ns_add_u32 s61, s61, s60')
    a('s_lshl_b32 s62, s%d, 4\ns_add_u32 s62, s62, s60\ns_lshl_b32 s63, s%d, 3\ns_add_u32 s62, s62, s63' % (c.s_colh, c.s_nh))
    ts = list(range(40, 56)); PK = 56
    for i in range(4):
        xs = [ACC(j, i, r) for j in range(7) for r in range(4)]
        if opt.mimic: rndn(a, xs, ts)
        for k, x in enumerate(xs): a('v_add_f32 v%d, v%d, v%d' % (x, x, BF+k))
        if opt.mimic: rndn(a, xs, ts)
        for x in xs: a('v_max_f32 v%d, 0, v%d' % (x, x))
        for x in xs: a('v_mul_f32 v%d, v%d, v%d' % (x, x, x))
        pk = PK + (i % 2)*16
        for k in range(14): a('v_cvt_pk_bf16_f32 v%d, v%d, v%d' % (pk+k, xs[2*k], xs[2*k+1]))
        for p in range(3):
            if p < 2: a('buffer_store_dwordx4 v[%d:%d], v4, s[24:27], s61 offen offset:%d' % (pk+4*p, pk+4*p+3, 2048*p))
            else:
                a('s_add_u32 s63, s61, 4096')
                a('buffer_store_dwordx4 v[%d:%d], v4, s[24:27], s63 offen' % (pk+4*p, pk+4*p+3))
        a('buffer_store_dwordx2 v[%d:%d], v4, s[24:27], s62 offen' % (pk+12, pk+13))
        a('s_add_u32 s61, s61, %d\ns_add_u32 s62, s62, %d' % (112*1024, 112*1024))
    gemm_tail(a, c, n, 6)

def k_w2(a):
    n = 'w2_kernel'
    c = gemm.config('w2', 3584, 128, 1, False, 64, 6, 2048, 128)
    a.kernel_begin(n)
    gemm_head(a, c, 7, 4, 8, 128, [(4, P_W2), (6, P_WS), (32, P_B2), (34, P_OUT)])
    srd(a, 8, 6, HF, 2048*7168); srd(a, 12, 4, 0, 3584*2048)
    srd(a, 16, 32, 0, 2048); srd(a, 20, 6, MOD, 6144*4); srd(a, 24, 6, X1F, 0x400000); srd(a, 28, 34, 0, 0x400000)
    def pre(a, c):
        XR = c.v_free; GA = XR + 16; B = GA + 8
        a('s_lshl_b32 s58, s%d, 1\ns_add_u32 s58, s58, s%d' % (c.s_mt, c.s_rh))
        a('s_lshl_b32 s59, s%d, 1\ns_add_u32 s59, s59, s%d' % (c.s_nt, c.s_nh))
        a('s_lshl_b32 s60, s58, 17\ns_lshl_b32 s61, s59, 10\ns_add_u32 s60, s60, s61')
        a('v_lshlrev_b32 v2, 4, v1')
        for i in range(4):
            a('buffer_load_dwordx4 v[%d:%d], v2, s[24:27], s60 offen' % (XR+4*i, XR+4*i+3))
            a('s_add_u32 s60, s60, 32768')
        a('v_lshrrev_b32 v3, 4, v1\nv_lshlrev_b32 v2, 3, v3\nv_lshlrev_b32 v3, 4, v3')
        a('s_lshl_b32 s61, s59, 7\ns_add_u32 s61, s61, %d' % (5*4096))
        for j in range(2): a('buffer_load_dwordx4 v[%d:%d], v3, s[20:23], s61 offen offset:%d' % (GA+4*j, GA+4*j+3, 64*j))
        a('s_lshl_b32 s61, s59, 6')
        for j in range(2): a('buffer_load_dwordx2 v[%d:%d], v2, s[16:19], s61 offen offset:%d' % (B+2*j, B+2*j+1, 32*j))
    c.pre_hook = pre
    gemm_body(a, c)
    XR = c.v_free; GA = XR + 16; B = GA + 8
    ACC = lambda j, i, r=0: c.v_acc + (j*4+i)*4 + r
    a('s_waitcnt vmcnt(0)')
    BF = 28
    for j in range(2):
        for e in range(2): unpack(a, BF+4*j+2*e, BF+4*j+2*e+1, B+2*j+e)
    a('v_and_b32 v2, 15, v1\nv_lshlrev_b32 v2, 11, v2\nv_bfe_u32 v3, v1, 4, 1\nv_lshl_add_u32 v2, v3, 5, v2\nv_lshrrev_b32 v3, 5, v1\nv_lshl_add_u32 v2, v3, 4, v2')
    a('s_lshl_b32 s60, s58, 17\ns_lshl_b32 s61, s59, 6\ns_add_u32 s60, s60, s61')
    accs = list(range(c.v_acc, c.v_acc+32)); ts = list(range(8, 24))
    if opt.mimic: rndn(a, accs, ts)
    for j in range(2):
        for i in range(4):
            for r in range(4): a('v_add_f32 v%d, v%d, v%d' % (ACC(j,i,r), ACC(j,i,r), BF+4*j+r))
    if opt.mimic: rndn(a, accs, ts)
    for j in range(2):
        for i in range(4):
            for r in range(4): a('v_mul_f32 v%d, v%d, v%d' % (ACC(j,i,r), ACC(j,i,r), GA+4*j+r))
    if opt.mimic: rndn(a, accs, ts)
    for i in range(4):
        for j in range(2):
            for e in range(2): unpack(a, 24+2*e, 25+2*e, XR+4*i+2*j+e)
            for r in range(4): a('v_add_f32 v%d, v%d, v%d' % (ACC(j,i,r), ACC(j,i,r), 24+r))
            if opt.outscale:
                import struct
                for r in range(4): a('v_mul_f32 v%d, 0x%x, v%d' % (ACC(j,i,r), struct.unpack('<I', struct.pack('<f', opt.outscale))[0], ACC(j,i,r)))
            for e in range(2): a('v_cvt_pk_bf16_f32 v%d, v%d, v%d' % (8+4*i+2*j+e, ACC(j,i,2*e), ACC(j,i,2*e+1)))
    for i in range(4):
        for e in range(2): a('v_permlane16_swap_b32 v%d, v%d' % (8+4*i+e, 8+4*i+2+e))
    for i in range(4):
        a('buffer_store_dwordx4 v[%d:%d], v2, s[28:31], s60 offen' % (8+4*i, 11+4*i))
        a('s_add_u32 s60, s60, 32768')
    gemm_tail(a, c, n, 7)

def build(path, **kw):
    for k, v in kw.items(): setattr(opt, k, v)
    a = Asm()
    k_mod(a)
    k_ln(a, 'ln1_kernel', 1, False, 0, 1, H1F)
    k_qkv(a)
    k_o(a)
    k_wo(a)
    k_ln(a, 'ln2_kernel', 5, True, 3, 4, H2F)
    k_w1(a)
    k_w2(a)
    open(path, 'w').write(a.text(verbose=kw.get('verbose', False)))

if __name__ == '__main__':
    kw = eval('dict(%s)' % (sys.argv[2] if len(sys.argv) > 2 else ''))
    build(sys.argv[1], **kw)
```

```python
from asmgen import Asm

class G:
    pass

def gemm_prologue(a, c):
    a('v_lshrrev_b32 v2, 6, v0')
    a('v_and_b32 v1, 63, v0')
    a('v_readfirstlane_b32 s%d, v2' % c.s_wave)

def panel_cols(a, c):
    pass

def stamp(a, c, k, bump=False):
    if not c.stamps: return
    a('s_memtime s[70:71]')
    a('s_mov_b32 s73, m0')
    a('s_mov_b32 m0, s72')
    a('s_waitcnt lgkmcnt(0)')
    a('v_writelane_b32 v%d, s70, m0' % (248+k))
    a('s_mov_b32 m0, s73')
    if bump: a('s_add_u32 s72, s72, 1')

def order_table(nst, G, mode):
    tabs = []
    for j in range(G):
        if mode == 'seq':
            o = list(range(nst))
        elif mode == 'lead':
            own = {j} | {t+G-1 for t in range(1, nst) if t % G == j and t+G-1 < nst}
            rest = [x for x in range(nst) if x not in own]
            o = []
            for t in range(nst):
                if t == 0: o.append(j)
                elif t % G == j and t+G-1 < nst: o.append(t+G-1)
                else: o.append(rest.pop(0))
        elif mode == 'win':
            o = [(t//G)*G + (t+j) % G for t in range(nst)]
        assert sorted(o) == list(range(nst)), o
        tabs.append(o)
    return tabs

def mark(a, c, i):
    if not c.stamps: return
    a('s_memtime s[70:71]')
    a('s_waitcnt lgkmcnt(0)')
    a('v_writelane_b32 v251, s70, %d' % (32+i))

def dump_stamps(a, c):
    a('v_writelane_b32 v251, s94, 63')
    a('s_add_u32 s84, s6, 0x3900000\ns_addc_u32 s85, s7, 0\ns_mov_b32 s86, 0x200000\ns_mov_b32 s87, 0x20000')
    a('s_lshl_b32 s73, s2, 3\ns_add_u32 s73, s73, s%d\ns_lshl_b32 s73, s73, 10' % c.s_wave)
    a('v_lshlrev_b32 v247, 2, v1')
    for k in range(4): a('buffer_store_dword v%d, v247, s[84:87], s73 offen offset:%d' % (248+k, 256*k))
    a('s_waitcnt vmcnt(0)')

def producer(a, c, lbl_after):
    BK, S = c.BK, c.S
    nsub = BK // 32
    KG = c.K // 32
    nst = c.K // BK
    sp = c.s_tmp
    tabs = order_table(nst, c.G, c.order)
    c.tabs = tabs
    a('s_sub_u32 s%d, s%d, 4' % (sp, c.s_wave))
    a('s_getpc_b64 s[%d:%d]' % (c.s_tab, c.s_tab+1))
    a.label(c.name + '_pc')
    a('s_add_u32 s%d, s%d, %s_tab-%s_pc' % (c.s_tab, c.s_tab, c.name, c.name))
    a('s_addc_u32 s%d, s%d, 0' % (c.s_tab+1, c.s_tab+1))
    vT = 2; vKX = 3; vKW = 4
    a('s_lshl_b32 s%d, s%d, 6' % (sp+1, c.s_rot))
    a('v_add_u32 v%d, s%d, v1' % (vT, sp+1))
    a('global_load_ubyte v%d, v%d, s[%d:%d]' % (vKX, vT, c.s_tab, c.s_tab+1))
    v = 5
    groups = []
    mbw = c.BM // 16 // 4
    a('s_mul_i32 s%d, s%d, %d' % (sp+1, c.s_mt, c.BM // 16))
    a('s_mul_i32 s%d, s%d, %d' % (sp+2, sp, mbw))
    a('s_add_u32 s%d, s%d, s%d' % (sp+1, sp+1, sp+2))
    a('s_mul_i32 s%d, s%d, %d' % (sp+1, sp+1, KG*1024))
    a('v_lshl_add_u32 v%d, v1, 4, s%d' % (v, sp+1)); vx0 = v; v += 1
    xl = []
    for i in range(mbw):
        for kg in range(nsub): xl.append((i, kg))
    a('s_mul_i32 s%d, s%d, %d' % (c.s_px, sp, mbw*nsub*1024))
    vregs = {}
    for b in range(0, len(xl), 4):
        ins = []
        for q, (i, kg) in enumerate(xl[b:b+4]):
            const = i*KG*1024 + kg*1024 - q*1024
            assert const >= 0
            if const not in vregs:
                if const == 0: vregs[const] = vx0
                else:
                    a('v_add_u32 v%d, %d, v%d' % (v, const, vx0)); vregs[const] = v; v += 1
            ins.append((vregs[const], q*1024))
        groups.append((c.sX, c.s_kx, c.s_px, b*1024, ins))
    rpw = BK // 4; ipw = rpw // 8
    vrow = v; vt = v+1; vw0 = v+2; vch = v+3; v += 4
    c.p_vrow, c.p_vch = vrow, vch
    a('v_lshrrev_b32 v%d, 3, v1' % vrow)
    a('v_and_b32 v%d, 7, v1' % vch)
    a('v_and_b32 v%d, %d, v%d' % (vt, 2 if c.natw else 6, vrow))
    a('v_xor_b32 v%d, v%d, v%d' % (vw0, vch, vt))
    a('v_mul_u32_u24 v%d, %d, v%d' % (vt, c.ldw, vrow))
    a('s_mul_i32 s%d, s%d, %d' % (sp+1, sp, rpw*c.ldw))
    a('s_add_u32 s%d, s%d, s%d' % (sp+2, sp+1, c.s_col0))
    a('v_add_u32 v%d, s%d, v%d' % (vt, sp+2, vt))
    vw1 = vw0
    if c.natw:
        vw1 = v; v += 1
        a('v_xor_b32 v%d, 4, v%d' % (vw1, vw0))
        a('v_lshl_add_u32 v%d, v%d, 4, v%d' % (vw1, vw1, vt))
    a('v_lshl_add_u32 v%d, v%d, 4, v%d' % (vw0, vw0, vt))
    a('s_mul_i32 s%d, s%d, %d' % (c.s_pw, sp, ipw*1024))
    a('s_add_u32 s%d, s%d, %d' % (c.s_pw, c.s_pw, c.xbytes))
    for q in range(c.nfull):
        ins = []
        for h in range(ipw):
            const = q*c.panel_stride + h*8*c.ldw - h*1024
            if const == 0: ins.append((vw0, 0))
            else:
                a('v_add_u32 v%d, %d, v%d' % (v, const, vw1 if h % 2 else vw0)); ins.append((v, h*1024)); v += 1
        groups.append((c.sW, c.s_kw, c.s_pw, q*BK*128, ins))
    if c.half:
        nh = BK // 64
        vh0 = v; vr2 = v+1; v += 2
        a('v_lshrrev_b32 v%d, 2, v1' % vr2)
        a('v_lshrrev_b32 v%d, %d, v1' % (vt, 4 if c.natw else 3))
        a('v_and_b32 v%d, 2, v%d' % (vt, vt))
        a('v_and_b32 v%d, 3, v1' % vh0)
        a('v_xor_b32 v%d, v%d, v%d' % (vh0, vh0, vt))
        a('v_mul_u32_u24 v%d, %d, v%d' % (vr2, c.ldw, vr2))
        a('v_lshl_add_u32 v%d, v%d, 4, v%d' % (vh0, vh0, vr2))
        a('s_add_u32 s%d, s%d, s%d' % (sp+2, sp+1, c.s_colh))
        a('v_add_u32 v%d, s%d, v%d' % (vh0, sp+2, vh0))
        ins = [(vh0, 0)]
        for h in range(1, nh):
            a('v_add_u32 v%d, %d, v%d' % (v, h*16*c.ldw - h*1024, vh0)); ins.append((v, h*1024)); v += 1
        a('s_mul_i32 s%d, s%d, %d' % (c.s_ph, sp, nh*1024))
        a('s_add_u32 s%d, s%d, %d' % (c.s_ph, c.s_ph, c.xbytes + c.nfull*BK*128))
        groups.append((c.sW, c.s_kw, c.s_ph, 0, ins))
    n = sum(len(g[4]) for g in groups)
    c.n_dma = n
    if c.order == 'seq':
        a('s_mov_b32 s%d, 0\ns_mov_b32 s%d, 0' % (c.s_kx, c.s_kw))
    else:
        a('s_mul_i32 s%d, s%d, %d' % (c.s_kx, c.s_rot, nsub*1024))
        a('s_mul_i32 s%d, s%d, %d' % (c.s_kw, c.s_rot, BK*c.ldw))
    s_t = c.s_rh
    a('s_mov_b32 s%d, 1' % s_t)
    a('s_waitcnt lgkmcnt(0)')
    c.srd_hook(a)
    vm = VM(a)
    def issue(st, slot_const=None, fetch_next=True, part=None):
        gs = groups if part is None else (groups[:c.psplit] if part == 0 else groups[c.psplit:])
        for (srd, so, base, lc, ins) in gs:
            if slot_const is None:
                a('s_add_u32 s%d, s%d, s%d' % (sp, base, c.s_slot))
                if lc: a('s_add_u32 m0, s%d, %d' % (sp, lc))
                else: a('s_mov_b32 m0, s%d' % sp)
            else:
                a('s_add_u32 m0, s%d, %d' % (base, lc + slot_const))
            for (vr, io) in ins:
                if not c.no_dma:
                    a('buffer_load_dwordx4 v%d, s[%d:%d], s%d offen%s%s lds' % (vr, srd, srd+3, so, ' offset:%d' % io if io else '', c.dma_flags))
                vm.issue(st)
        if part == 0: return
        if fetch_next:
            a('v_readlane_b32 s%d, v%d, s%d' % (c.s_kx, vKX, s_t))
            a('v_readlane_b32 s%d, v%d, s%d' % (c.s_kw, vKW, s_t))
            a('s_add_u32 s%d, s%d, 1' % (s_t, s_t))
        if slot_const is None:
            a('s_add_u32 s%d, s%d, %d' % (c.s_slot, c.s_slot, c.slot))
            a('s_cmp_ge_u32 s%d, %d' % (c.s_slot, c.slot*S))
            a('s_cselect_b32 s%d, 0, s%d' % (c.s_slot, c.s_slot))
    c.p_vfree = v
    if c.stamps: a('s_mov_b32 s72, 0')
    stamp(a, c, 3)
    vm.issue('tab')
    issue(0, 0, False)
    if c.early_issue: c.early_issue(a, c, vm)
    vm.wait('tab')
    a('v_mul_u32_u24 v%d, %d, v%d' % (vKW, BK*c.ldw, vKX))
    a('v_mul_u32_u24 v%d, %d, v%d' % (vKX, nsub*1024, vKX))
    a('v_readlane_b32 s%d, v%d, 1' % (c.s_kw, vKW))
    a('v_readlane_b32 s%d, v%d, 1' % (c.s_kx, vKX))
    a('s_mov_b32 s%d, 2' % s_t)
    issue(1, c.slot, part=0)
    L = c.lead
    stamp(a, c, 0)
    vm.wait(0)
    stamp(a, c, 1)
    a('s_barrier')
    stamp(a, c, 2, True)
    issue(1, c.slot, part=1)
    if c.loop_init: c.loop_init(a, c)
    for st in range(2, L+1):
        if c.loop_extra: c.loop_extra(a, c, vm)
        issue(st, st*c.slot)
    a('s_mov_b32 s%d, %d' % (c.s_slot, ((L+1) % S)*c.slot))
    nsteady = nst - 2 - L
    def it(k, const=False):
        stamp(a, c, 0)
        vm.wait(k)
        if k == nst-1 and c.pre_last_bar: c.pre_last_bar(a, c, vm)
        stamp(a, c, 1)
        a('s_barrier')
        stamp(a, c, 2, True)
        if k + L < nst:
            issue(k+L, ((k+L) % S)*c.slot if const else None, fetch_next=(k+L+1 < nst))
        if const and c.iter_hook: c.iter_hook(a, c, vm, k)
        if k + L == nst - 1 + c.tail_delay and c.tail_issue: c.tail_issue(a, c, vm)
    if c.unroll:
        for k in range(1, nst): it(k, True)
    else:
        a('s_mov_b32 s%d, %d' % (c.s_cnt, nsteady))
        a.label(c.name + '_ploop')
        it(1)
        body = vm.log[-1]
        a('s_sub_u32 s%d, s%d, 1' % (c.s_cnt, c.s_cnt))
        a('s_cmp_lg_u32 s%d, 0' % c.s_cnt)
        a('s_cbranch_scc1 %s_ploop' % c.name)
        keep = a.lines
        for k in range(2, nsteady+1):
            a.lines = []; it(k); assert vm.log[-1] == body
        a.lines = keep
        for k in range(nsteady+1, nst): it(k)
    mark(a, c, 0)
    if c.ptail: c.ptail(a, c, vm)
    if c.stamps and c.gen_dump:
        a('s_mov_b64 exec, -1')
        mark(a, c, 8)
        a('s_waitcnt vmcnt(0)')
        mark(a, c, 9)
        dump_stamps(a, c)
    a('s_branch %s' % lbl_after)

class VM:
    def __init__(self, a): self.a = a; self.ops = []; self.log = []; self.done = -1
    def issue(self, tag, n=1): self.ops += [tag]*n
    def count(self, tag):
        idx = max(i for i, t in enumerate(self.ops) if t == tag)
        return len(self.ops) - 1 - idx
    def wait(self, tag, extra=''):
        n = self.count(tag)
        idx = len(self.ops) - 1 - n
        if idx <= self.done:
            self.log.append(None)
            if extra: self.a('s_waitcnt' + extra)
            return
        assert n <= 63
        self.done = idx
        self.log.append(n)
        self.a('s_waitcnt vmcnt(%d)%s' % (n, extra))

def xproducer(a, c, lbl_after):
    BK, S = c.BK, c.S
    assert BK == 64 and S == 3
    nst = c.K // BK
    D = 2
    sp = c.s_tmp
    tabs = order_table(nst, c.G, c.order)
    pk = [sum(x << (4*i) for i, x in enumerate(o)) for o in tabs]
    s_ow, s_ox, s_kt = c.s_tab, c.s_tab+2, c.s_nh
    a('s_sub_u32 s%d, s%d, 4' % (sp, c.s_wave))
    a('s_mov_b32 s%d, 0x%x\ns_mov_b32 s%d, 0x%x' % (s_ow, pk[0] & 0xffffffff, s_ow+1, pk[0] >> 32))
    for j in range(1, c.G):
        a('s_cmp_eq_u32 s%d, %d' % (c.s_rot, j))
        a('s_cselect_b32 s%d, 0x%x, s%d\ns_cselect_b32 s%d, 0x%x, s%d' % (s_ow, pk[j] & 0xffffffff, s_ow, s_ow+1, pk[j] >> 32, s_ow+1))
    a('s_mov_b64 s[%d:%d], s[%d:%d]' % (s_ox, s_ox+1, s_ow, s_ow+1))
    v = 2
    vrow, vt, vch = v, v+1, v+2; v += 3
    vXg = v; v += 4
    vXw = v; v += 2
    vTab, vTa = v, v+1; v += 2
    a('v_lshrrev_b32 v%d, 3, v1\nv_and_b32 v%d, 7, v1' % (vrow, vch))
    a('s_lshl_b32 s%d, s%d, 2\ns_add_u32 s%d, s%d, s%d' % (sp+1, c.s_mt, sp+1, sp+1, sp))
    c.s_rb = sp+3
    a('s_mov_b32 s%d, s%d' % (c.s_rb, sp+1))
    a('s_lshl_b32 s%d, s%d, 16' % (sp+1, sp+1))
    a('v_lshlrev_b32 v%d, 11, v%d' % (vt, vrow))
    a('v_lshl_add_u32 v%d, v%d, 4, v%d' % (vt, vch, vt))
    a('v_add_u32 v%d, s%d, v%d' % (vXg, sp+1, vt))
    for i in range(1, 4): a('v_add_u32 v%d, %d, v%d' % (vXg+i, 16384*i, vXg))
    vw0, vw1 = v, v+1; v += 2
    a('v_bfe_u32 v%d, v1, 4, 1\nv_lshlrev_b32 v%d, 1, v%d\nv_xor_b32 v%d, v%d, v%d' % (vt, vt, vt, vt, vt, vch))
    a('v_mul_u32_u24 v%d, %d, v%d' % (vw1, c.ldw, vrow))
    a('s_mul_i32 s%d, s%d, %d' % (sp+1, sp, 16*c.ldw))
    a('s_add_u32 s%d, s%d, s%d' % (sp+2, sp+1, c.s_col0))
    a('v_add_u32 v%d, s%d, v%d' % (vw1, sp+2, vw1))
    a('v_lshl_add_u32 v%d, v%d, 4, v%d' % (vw0, vt, vw1))
    a('v_xor_b32 v%d, 4, v%d' % (vt, vt))
    a('v_lshl_add_u32 v%d, v%d, 4, v%d' % (vw1, vt, vw1))
    a('v_add_u32 v%d, %d, v%d' % (vw1, 8*c.ldw - 1024, vw1))
    a('s_lshl_b32 s%d, s%d, 11\ns_add_u32 s%d, s%d, %d' % (c.s_pw, sp, c.s_pw, c.s_pw, c.xbytes))
    groups = [(c.s_pw, 0, [(vw0, 0), (vw1, 1024)])]
    for q in range(1, c.nfull):
        a('v_add_u32 v%d, %d, v%d\nv_add_u32 v%d, %d, v%d' % (v, q*c.panel_stride, vw0, v+1, q*c.panel_stride, vw1))
        groups.append((c.s_pw, q*8192, [(v, 0), (v+1, 1024)])); v += 2
    if c.half:
        vh0 = v; v += 1
        a('v_lshrrev_b32 v%d, 2, v1' % vh0)
        a('v_mul_u32_u24 v%d, %d, v%d' % (vh0, c.ldw, vh0))
        a('v_lshrrev_b32 v%d, 4, v1\nv_and_b32 v%d, 2, v%d' % (vt, vt, vt))
        a('v_and_b32 v%d, 3, v1\nv_xor_b32 v%d, v%d, v%d' % (vTa, vt, vt, vTa))
        a('v_lshl_add_u32 v%d, v%d, 4, v%d' % (vh0, vt, vh0))
        a('s_add_u32 s%d, s%d, s%d' % (sp+2, sp+1, c.s_colh))
        a('v_add_u32 v%d, s%d, v%d' % (vh0, sp+2, vh0))
        a('s_lshl_b32 s%d, s%d, 10\ns_add_u32 s%d, s%d, %d' % (c.s_ph, sp, c.s_ph, c.s_ph, c.xbytes + c.nfull*8192))
        groups.append((c.s_ph, 0, [(vh0, 0)]))
    nW = sum(len(g[2]) for g in groups)
    a('v_lshrrev_b32 v%d, 4, v1\nv_xor_b32 v%d, v%d, v%d' % (vt, vt, vt, vch))
    a('v_lshlrev_b32 v%d, 4, v%d' % (vt, vt))
    a('v_lshl_add_u32 v%d, v%d, 7, v%d' % (vt, vrow, vt))
    a('s_lshl_b32 s%d, s%d, 12' % (sp+1, sp))
    a('v_add_u32 v%d, s%d, v%d\nv_xor_b32 v%d, 64, v%d' % (vXw, sp+1, vt, vXw+1, vXw))
    a('v_lshlrev_b32 v%d, 6, v%d\nv_add_u32 v%d, %d, v%d' % (vTab, vch, vTab, c.tab_base, vTab))
    v = (v + 3) // 4 * 4
    RAW = v; v += 16*4
    OUT = v; v += 16
    AS = v; v += 16
    TMP = v; v += 8
    RC = v; v += 12
    c.p_vfree = v; c.p_RC = RC; c.p_vrow = vrow; c.p_vch = vch
    vm = VM(a)
    def next_w():
        a('s_and_b32 s%d, s%d, 15' % (s_kt, s_ow))
        a('s_lshr_b64 s[%d:%d], s[%d:%d], 4' % (s_ow, s_ow+1, s_ow, s_ow+1))
        a('s_mul_i32 s%d, s%d, %d' % (c.s_kw, s_kt, BK*c.ldw))
        a('s_lshl_b32 s%d, s%d, 9' % (s_kt, s_kt))
    def nextx():
        a('s_and_b32 s%d, s%d, 15' % (c.s_kx, s_ox))
        a('s_lshr_b64 s[%d:%d], s[%d:%d], 4' % (s_ox, s_ox+1, s_ox, s_ox+1))
        a('s_lshl_b32 s%d, s%d, 7' % (c.s_kx, c.s_kx))
    def loadx1(st, q, i):
        a('buffer_load_dwordx4 v[%d:%d], v%d, s[%d:%d], s%d offen' % (RAW+16*q+4*i, RAW+16*q+4*i+3, vXg+i, c.sX, c.sX+3, c.s_kx))
        vm.issue(('x', st))
    def loadx(st, q):
        nextx()
        for i in range(4): loadx1(st, q, i)
    def dmaw_list(st, slot_const):
        out = []
        for (base, lc, ins) in groups:
            for n_, (vr, io) in enumerate(ins):
                def f(base=base, lc=lc, vr=vr, io=io, first=(n_ == 0)):
                    if first:
                        if slot_const is None:
                            a('s_add_u32 s%d, s%d, s%d' % (sp, base, c.s_slot))
                            if lc: a('s_add_u32 m0, s%d, %d' % (sp, lc))
                            else: a('s_mov_b32 m0, s%d' % sp)
                        else: a('s_add_u32 m0, s%d, %d' % (base, lc + slot_const))
                    a('buffer_load_dwordx4 v%d, s[%d:%d], s%d offen%s lds' % (vr, c.sW, c.sW+3, c.s_kw, ' offset:%d' % io if io else ''))
                    vm.issue(('w', st))
                out.append(f)
        return out
    def dmaw(st, slot_const):
        for f in dmaw_list(st, slot_const): f()
    def readas(skt):
        a('v_add_u32 v%d, s%d, v%d' % (vTa, skt, vTab))
        for e in range(4): a('ds_read_b128 v[%d:%d], v%d offset:%d' % (AS+4*e, AS+4*e+3, vTa, 16*e))
    dot = c.xf.startswith('dot')
    def xform(q, slot_off, side=(), after_unpack=None):
        side = list(side)
        def pop():
            if side: side.pop(0)()
        for i in range(4):
            r = RAW + 16*q + 4*i
            if dot:
                for e in range(4):
                    a('v_dot2_f32_bf16 v%d, v%d, v%d, v%d' % (TMP+2*e, r+e, RC+8+i, RC+2*i+1))
                    a('v_dot2_f32_bf16 v%d, v%d, v%d, v%d' % (TMP+2*e+1, r+e, RC+2*i, RC+2*i+1))
                if after_unpack: after_unpack(i)
            else:
                for e in range(4):
                    a('v_lshlrev_b32 v%d, 16, v%d\nv_and_b32 v%d, 0xffff0000, v%d' % (TMP+2*e, r+e, TMP+2*e+1, r+e))
                if after_unpack: after_unpack(i)
                if c.xf == 'pk5':
                    for e in range(4): a('v_pk_fma_f32 v[%d:%d], v[%d:%d], v[%d:%d], v[%d:%d] op_sel:[0,0,1] op_sel_hi:[1,0,1]' % (TMP+2*e, TMP+2*e+1, TMP+2*e, TMP+2*e+1, RC+2*i, RC+2*i+1, RC+2*i, RC+2*i+1))
                else:
                    for e in range(8): a('v_fma_f32 v%d, v%d, v%d, v%d' % (TMP+e, TMP+e, RC+2*i, RC+2*i+1))
            pop()
            if i == 0: a('s_waitcnt lgkmcnt(0)')
            if c.xf in ('pk5', 'dot4'):
                for e in range(4): a('v_pk_fma_f32 v[%d:%d], v[%d:%d], v[%d:%d], v[%d:%d]' % (TMP+2*e, TMP+2*e+1, TMP+2*e, TMP+2*e+1, AS+2*e, AS+2*e+1, AS+8+2*e, AS+9+2*e))
            else:
                for e in range(8): a('v_fma_f32 v%d, v%d, v%d, v%d' % (TMP+e, TMP+e, AS+e, AS+8+e))
            if i < 3: pop()
            for e in range(4): a('v_cvt_pk_bf16_f32 v%d, v%d, v%d' % (OUT+4*i+e, TMP+2*e, TMP+2*e+1))
            a('ds_write_b128 v%d, v[%d:%d] offset:%d' % (vXw + i % 2, OUT+4*i, OUT+4*i+3, slot_off + i*1024))
        while side: pop()
    s_kt0, s_kt1 = c.s_px, c.s_cnt
    a('s_waitcnt lgkmcnt(0)')
    c.srd_hook(a)
    loadx(0, 2)
    next_w(); a('s_mov_b32 s%d, s%d' % (s_kt0, s_kt))
    dmaw(0, 0)
    c.pstats_issue(a, c, vm)
    loadx(1, 3); loadx(2, 0)
    next_w(); a('s_mov_b32 s%d, s%d' % (s_kt1, s_kt))
    dmaw(1, c.slot)
    loadx(3, 1)
    c.pstats_finish(a, c, vm)
    if dot:
        for i in range(4): a('v_cvt_pk_bf16_f32 v%d, v%d, v%d' % (RC+2*i, RC+2*i, RC+2*i))
        for i in range(4): a('v_and_b32 v%d, 0xffff, v%d\nv_and_b32 v%d, 0xffff0000, v%d' % (RC+8+i, RC+2*i, RC+2*i, RC+2*i))
    for i in range(4): a('v_mul_f32 v%d, -v%d, v%d' % (RC+2*i+1, RC+2*i+1, RC+2*i))
    if c.pprio: a('s_setprio %d' % c.pprio)
    if c.stamps: a('s_mov_b32 s72, 0')
    stamp(a, c, 0)
    a('s_barrier')
    stamp(a, c, 3)
    readas(s_kt0)
    vm.wait(('x', 0))
    xform(2, 0)
    a('s_waitcnt lgkmcnt(0)')
    vm.wait(('w', 0))
    stamp(a, c, 1)
    a('s_barrier')
    stamp(a, c, 2, True)
    readas(s_kt1)
    vm.wait(('x', 1))
    assert c.slot + 4096 <= 65536
    xform(3, c.slot)
    a('s_mov_b32 s%d, %d' % (c.s_slot, 2*c.slot))
    a('v_add_u32 v%d, %d, v%d\nv_add_u32 v%d, %d, v%d' % (vXw, 2*c.slot, vXw, vXw+1, 2*c.slot, vXw+1))
    a('s_mov_b32 s%d, %d' % (sp+1, c.slot))
    def iteration(k, first=False):
        if k + 2 < nst:
            next_w()
            readas(s_kt)
            dl = dmaw_list(k+2, None)
            dl.pop(0)()
            more = k + 2 + D < nst
            if more:
                nextx()
                if c.loop_extra: dl.append(lambda: c.loop_extra(a, c, vm))
            vm.wait(('x', k+2))
            stamp(a, c, 0)
            xform(k % 2, 0, dl, (lambda i: loadx1(k+2+D, k % 2, i)) if more else None)
            stamp(a, c, 3)
            if k + 3 == nst: c.tail_issue(a, c, vm)
            a('s_add_u32 s%d, s%d, s%d' % (c.s_slot, c.s_slot, sp+1))
            a('s_cmp_ge_u32 s%d, %d' % (c.s_slot, c.slot*S))
            a('s_cselect_b32 s%d, 0, s%d' % (c.s_slot, c.s_slot))
            a('s_cselect_b32 s%d, %d, s%d' % (sp, -2*c.slot, sp+1))
            a('v_add_u32 v%d, s%d, v%d\nv_add_u32 v%d, s%d, v%d' % (vXw, sp, vXw, vXw+1, sp, vXw+1))
        vm.wait(('w', k+1), ' lgkmcnt(0)')
        stamp(a, c, 1)
        a('s_barrier')
        stamp(a, c, 2, True)
    nsteady = nst - 2 - D
    assert nsteady % 2 == 0
    if c.loop_init: c.loop_init(a, c)
    a('s_waitcnt lgkmcnt(0)')
    iteration(0); iteration(1)
    a('s_mov_b32 s%d, %d' % (c.s_cnt, nsteady // 2 - 1))
    a.label(c.name + '_ploop')
    n0 = len(vm.log)
    iteration(2); iteration(3)
    body = vm.log[n0:]
    a('s_sub_u32 s%d, s%d, 1' % (c.s_cnt, c.s_cnt))
    a('s_cmp_lg_u32 s%d, 0' % c.s_cnt)
    a('s_cbranch_scc1 %s_ploop' % c.name)
    keep = a.lines;
    for k in range(4, nsteady, 2):
        a.lines = []; n0 = len(vm.log)
        iteration(k); iteration(k+1)
        assert vm.log[n0:] == body, (vm.log[n0:], body)
    a.lines = keep
    for k in range(nsteady, nst-1): iteration(k)
    if c.stamps: dump_stamps(a, c)
    c.ptail(a, c, vm)
    a('s_branch %s' % lbl_after)

def table(a, c):
    a.lines.append('.p2align 6')
    a.label(c.name + '_tab')
    for o in c.tabs:
        a.lines.append('.byte ' + ','.join(str(x) for x in (o + [0]*64)[:64]))
    a.lines.append('.p2align 2')

def consumer(a, c):
    BK, S = c.BK, c.S
    nsub = BK // 32
    nst = c.K // BK
    r4 = c.rows4
    TMb = c.BM // (4 if r4 else 2) // 16
    sp = c.s_tmp
    ks = c.ksplit
    va = c.v_addr
    vX, vX2, vW0, vW1, vW2, vW3, vX3, vX4 = [va+i for i in range(8)]
    t0, t1 = c.v_tmp, c.v_tmp+1
    nat = c.xform
    natw = c.xform or c.natw
    rotx = c.half or ks
    a('s_lshr_b32 s%d, s%d, 1' % (c.s_rh, c.s_wave))
    a('s_and_b32 s%d, s%d, 1' % (c.s_nh, c.s_wave))
    a('s_mul_i32 s%d, s%d, %d' % (sp, c.s_wave if r4 else c.s_rh, TMb*nsub*1024))
    if ks:
        a('s_lshl_b32 s%d, s%d, 10\ns_add_u32 s%d, s%d, s%d' % (sp+1, c.s_nh, sp, sp, sp+1))
    if nat:
        a('v_bfe_u32 v%d, v1, 1, 3\nv_lshrrev_b32 v%d, 4, v1\nv_xor_b32 v%d, v%d, v%d' % (t0, t1, t0, t0, t1))
        a('v_and_b32 v%d, 15, v1\nv_lshlrev_b32 v%d, 7, v%d' % (t1, t1, t1))
        a('v_lshl_add_u32 v%d, v%d, 4, v%d\nv_add_u32 v%d, s%d, v%d' % (vX, t0, t1, vX, sp, vX))
    else:
        a('v_lshl_add_u32 v%d, v1, 4, s%d' % (vX, sp))
    addr = [vX, vW0, vW1]
    if rotx:
        a('s_mul_i32 s%d, s%d, %d' % (sp, c.s_nh, 2*nsub*1024))
        a('v_subrev_u32 v%d, s%d, v%d' % (vX2, sp, vX))
        a('v_add_u32 v%d, s%d, v%d' % (vX, sp, vX))
        addr.append(vX2)
    if nat:
        a('v_xor_b32 v%d, 64, v%d' % (vX3, vX)); addr.append(vX3)
        if rotx: a('v_xor_b32 v%d, 64, v%d' % (vX4, vX2)); addr.append(vX4)
    if natw:
        a('v_bfe_u32 v%d, v1, 2, 2\nv_lshrrev_b32 v%d, 4, v1\nv_lshl_add_u32 v%d, v%d, 3, v%d' % (t0, t1, t0, t1, t0))
    else:
        a('v_lshrrev_b32 v%d, 2, v1' % t0)
    a('v_bfe_u32 v%d, v1, 3, 2' % t1)
    if ks or r4: a('v_lshlrev_b32 v%d, 5, v%d' % (vW0, t1))
    else:
        a('s_lshl_b32 s%d, s%d, 1' % (sp, c.s_nh))
        a('v_xor_b32 v%d, s%d, v%d' % (vW0, sp, t1))
        a('v_lshlrev_b32 v%d, 5, v%d' % (vW0, vW0))
    a('v_lshl_add_u32 v%d, v%d, 7, v%d' % (vW0, t0, vW0))
    a('v_and_b32 v%d, 3, v1' % t1)
    a('v_lshlrev_b32 v%d, 3, v%d' % (t1, t1))
    if ks:
        a('s_lshl_b32 s%d, s%d, 12\ns_add_u32 s%d, s%d, %d' % (sp, c.s_nh, sp, sp, c.xbytes))
        a('v_add3_u32 v%d, v%d, v%d, s%d' % (vW0, vW0, t1, sp))
    else:
        a('v_add_u32 v%d, %d, v%d' % (t1, c.xbytes, t1))
        a('v_add_u32 v%d, v%d, v%d' % (vW0, vW0, t1))
    a('v_xor_b32 v%d, 32, v%d' % (vW1, vW0))
    if ks or r4:
        a('v_xor_b32 v%d, 64, v%d' % (vW2, vW0))
        a('v_xor_b32 v%d, 96, v%d' % (vW3, vW0))
        addr += [vW2, vW3]
    if c.half:
        a('v_bfe_u32 v%d, v1, 4, 1' % vW2)
        a('v_lshlrev_b32 v%d, 5, v%d' % (vW2, vW2))
        a('v_lshl_add_u32 v%d, v%d, 6, v%d' % (vW2, t0, vW2))
        a('v_add_u32 v%d, v%d, v%d' % (vW2, vW2, t1))
        a('v_add_u32 v%d, %d, v%d' % (vW2, c.nfull*BK*128, vW2))
        a('v_xor_b32 v%d, 32, v%d' % (vW3, vW2))
        addr += [vW2, vW3]
    assert c.xbytes % 128 == 0 and c.slot % 128 == 0
    sm = 2 if ks else 1
    def xrd(j, sub):
        hi = rotx and j >= 2
        if nat: return ((vX4 if hi else vX3) if sub % 2 else (vX2 if hi else vX)), j*2048
        return (vX2 if hi else vX), (j*nsub+sub)*1024
    tf = 512 if natw else 2048
    if ks or r4:
        wfr = [(vW0+u, 0, 4096, tf) for u in range(4)]
        mf = [(j, i) for i in range(TMb) for j in range(4)]
    else:
        wfr = [(vW0 + j % 2, (j//2)*BK*128, 4096, tf) for j in range(2*c.nfull)]
        mf = [(j, i) for j in range(len(wfr)) for i in range(TMb)]
    if c.half:
        wfr += [(vW2, 0, 2048, tf//2), (vW3, 0, 2048, tf//2)]
        mf += [(2*c.nfull + u, i) for u in range(2) for i in range(2)]
    nWf = len(wfr)
    nacc = len(mf) * 4
    KS = c.KS
    fs1 = (TMb + nWf) * 4
    fsz = fs1 * KS
    c.v_acc = c.v_frag + 2*fsz
    c.v_free = c.v_acc + nacc
    if c.pre_hook: c.pre_hook(a, c)
    if c.acc_init: c.acc_init(a, c)
    elif not c.first_c:
        for i in range(nacc): a('v_mov_b32 v%d, 0' % (c.v_acc+i))
    def xreg(s, q, j): return c.v_frag + s*fsz + q*fs1 + j*4
    def wreg(s, q, j): return c.v_frag + s*fsz + q*fs1 + TMb*4 + j*4
    def reads(s, step):
        r = []
        for q in range(KS):
            sub = (step*KS + q)*sm
            xs = ['ds_read_b128 v[%d:%d], v%d offset:%d' % ((xreg(s,q,j), xreg(s,q,j)+3) + xrd(j, sub)) for j in range(TMb)]
            ws = []
            for j, (v, base, ss, ts) in enumerate(wfr):
                for t in range(2):
                    w = wreg(s,q,j) + 2*t
                    ws.append('ds_read_b64_tr_b16 v[%d:%d], v%d offset:%d' % (w, w+1, v, base + sub*ss + t*ts))
            r += (xs[:1] + ws + xs[1:]) if (ks or r4) else (ws[:2] + xs + ws[2:])
        if c.no_lds: r = []
        return r
    def mfmas(s, first=False):
        r = []
        for q in range(KS):
            for k, (j, i) in enumerate(mf):
                t = c.v_acc + k*4
                A_, B_ = wreg(s,q,j), xreg(s,q,i)
                if j in c.swap_frags: A_, B_ = B_, A_
                C_ = 'v[%d:%d]' % (t, t+3)
                if first and q == 0: C_ = c.first_c(c, j)
                r.append('v_mfma_f32_16x16x32_bf16 v[%d:%d], v[%d:%d], v[%d:%d], %s' % (t, t+3, A_, A_+3, B_, B_+3, C_))
        if c.no_mfma: r = r[:1]
        return r
    def interleave(ms, rs, extra=()):
        out = []
        k = 0; ex = list(extra)
        for i, m in enumerate(ms):
            out.append(m)
            if k < len(rs):
                for _ in range(c.rpm):
                    if k < len(rs): out.append(rs[k]); k += 1
            elif ex:
                out.append(ex.pop(0))
                if ex and ex[0].startswith('s_'): out.append(ex.pop(0))
        out += rs[k:] + ex
        return out
    def advance():
        return ['s_add_u32 s%d, s%d, 1' % (c.s_slot, c.s_slot),
             's_cmp_eq_u32 s%d, %d' % (c.s_slot, S),
             's_cselect_b32 s%d, 0, s%d' % (c.s_slot, c.s_slot),
             's_cselect_b32 s%d, %d, s%d' % (sp, -(S-1)*c.slot, sp+1)] + ['v_add_u32 v%d, s%d, v%d' % (v, sp, v) for v in addr]
    nstep = nsub // KS // sm
    spb = 1 if nstep % 2 == 0 else 2
    a('s_mov_b32 s%d, 0' % c.s_slot)
    a('s_mov_b32 s%d, %d' % (sp+1, c.slot))
    if c.pre_hook2: c.pre_hook2(a, c)
    if c.stamps: a('s_mov_b32 s72, 0')
    stamp(a, c, 1)
    a('s_barrier')
    stamp(a, c, 2, True)
    if c.post_b0: c.post_b0(a, c)
    for r in reads(0, 0): a(r)
    if c.post_b0b: c.post_b0b(a, c, len(reads(0, 0)))
    if nstep == 1:
        for l in advance(): a(l)
    par = [0]
    def stage(last, first=False):
        for step in range(nstep):
            s = par[0]; par[0] ^= 1
            a('s_waitcnt lgkmcnt(0)')
            if step < nstep-1:
                ex = advance() if (step == nstep-2 and not last) else []
                if first and step == 0 and c.first_extra: ex = ex + c.first_extra(c)
                for l in interleave(mfmas(s, first and step == 0), reads(1-s, step+1), ex): a(l)
            elif not last:
                ms = mfmas(s)
                nb = c.mfma_before_bar
                for m in ms[:nb]: a(m)
                stamp(a, c, 1)
                a('s_barrier')
                stamp(a, c, 2, True)
                for l in interleave(ms[nb:], reads(1-s, 0), advance() if nstep == 1 else []): a(l)
            else:
                for l in interleave(mfmas(s), c.last_reads(c) if c.last_reads else []): a(l)
    npre = 0
    if c.first_c:
        assert nstep % 2 == 0
        stage(False, True); npre = 1
    nloop = (nst - 1 - npre - (1 if c.late_hook else 0)) // spb
    rem = (nst - 1 - npre) - nloop*spb
    a('s_mov_b32 s%d, %d' % (c.s_cnt, nloop))
    a('.p2align 3')
    a.label(c.name + '_cloop')
    for _ in range(spb): stage(False)
    a('s_sub_u32 s%d, s%d, 1' % (c.s_cnt, c.s_cnt))
    a('s_cmp_lg_u32 s%d, 0' % c.s_cnt)
    a('s_cbranch_scc1 %s_cloop' % c.name)
    for r_ in range(rem):
        if c.late_hook and r_ == rem-1: c.late_hook(a, c)
        stage(False)
    stage(True)
    if c.stamps and c.gen_dump:
        stamp(a, c, 1)
        mark(a, c, 0)
    if ks:
        EB = c.slot * (nst % S)
        if c.slot < 32768:
            EB = c.slot * S; c.lds = EB + 32768
        assert c.lds <= 163840
        a('s_lshl_b32 s%d, s%d, 13\ns_add_u32 s%d, s%d, %d' % (sp, c.s_wave, sp, sp, EB))
        a('v_lshl_add_u32 v%d, v1, 4, s%d' % (t0, sp))
        a('s_xor_b32 s%d, s%d, 1\ns_lshl_b32 s%d, s%d, 13\ns_add_u32 s%d, s%d, %d' % (sp, c.s_wave, sp, sp, sp, sp, EB))
        a('v_lshl_add_u32 v%d, v1, 4, s%d' % (t1, sp))
        for k in range(8): a('ds_write_b128 v%d, v[%d:%d] offset:%d' % (t0, c.v_acc+32+4*k, c.v_acc+35+4*k, 1024*k))
        if c.xch_pre: c.xch_pre(a, c)
        a('s_waitcnt lgkmcnt(0)')
        mark(a, c, 1)
        a('s_barrier')
        mark(a, c, 2)
        for k in range(8): a('ds_read_b128 v[%d:%d], v%d offset:%d' % (c.v_acc+32+4*k, c.v_acc+35+4*k, t1, 1024*k))
        n0 = len(a.lines)
        if c.xch_post: c.xch_post(a, c)
        npost = len(a.lines) - n0
        for k in range(8):
            a('s_waitcnt lgkmcnt(%d)' % min(15, 7-k+npost))
            for r in (0, 2): a('v_pk_add_f32 v[%d:%d], v[%d:%d], v[%d:%d]' % (c.v_acc+4*k+r, c.v_acc+4*k+r+1, c.v_acc+4*k+r, c.v_acc+4*k+r+1, c.v_acc+32+4*k+r, c.v_acc+33+4*k+r))
        nacc = 32
    c.TMb, c.nWf, c.nacc = TMb, nWf, nacc

def config(name, K, BM, nfull, half, BK, S, ldw, panel_stride, **kw):
    c = G()
    c.name, c.K, c.BM, c.nfull, c.half, c.BK, c.S, c.ldw, c.panel_stride = name, K, BM, nfull, half, BK, S, ldw, panel_stride
    c.xbytes = BM * BK * 2
    c.slot = c.xbytes + nfull * BK * 128 + (BK * 64 if half else 0)
    c.lds = c.slot * S
    c.sX, c.sW = 8, 12
    c.s_mt, c.s_nt, c.s_wave, c.s_col0, c.s_colh = 40, 41, 42, 43, 44
    c.s_kx, c.s_kw, c.s_slot, c.s_px, c.s_pw, c.s_ph, c.s_cnt, c.s_rh, c.s_nh = 45, 46, 47, 48, 49, 50, 51, 52, 53
    c.s_tmp = 54
    c.v_addr = 4; c.v_tmp = 2; c.v_frag = 12; c.ksplit = False; c.xform = False; c.xf = 'dot4'; c.pprio = 0; c.pre_hook2 = None
    c.first_c = None; c.post_b0 = None; c.post_b0b = None; c.first_extra = None; c.rows4 = False; c.last_reads = None; c.pre_last_bar = None; c.xch_pre = None; c.xch_post = None; c.unroll = False; c.iter_hook = None; c.acc_init = None; c.natw = False; c.early_issue = None; c.tail_issue = None; c.ptail = None; c.tail_delay = 0; c.loop_extra = None; c.loop_init = None; c.late_hook = None; c.psplit = 1; c.stamps = False; c.gen_dump = False; c.dma_flags = ''; c.KS = 1; c.rpm = 1; c.mfma_before_bar = 0; c.G = 4; c.order = 'lead'; c.lead = S-1; c.s_rot = 39; c.s_tab = 66; c.tab_base = c.lds; c.srd_hook = None; c.swap_frags = (); c.pre_hook = None
    c.no_dma = c.no_lds = c.no_mfma = False
    for k, v in kw.items(): setattr(c, k, v)
    return c
```

```python
import re
TRANS = ('v_exp_f32','v_log_f32','v_rcp_f32','v_rsq_f32','v_sqrt_f32','v_sin_f32','v_cos_f32','v_rcp_iflag_f32')
def regs(tok):
    tok = tok.strip()
    tok = tok.replace('abs(','').replace(')','').replace('|','')
    if tok.startswith('-'): tok = tok[1:]
    m = re.fullmatch(r'([vsa])\[(\d+):(\d+)\]', tok)
    if m: return {(m.group(1), i) for i in range(int(m.group(2)), int(m.group(3))+1)}
    m = re.fullmatch(r'([vsa])(\d+)', tok)
    if m: return {(m.group(1), int(m.group(2)))}
    if tok in ('vcc', 'vcc_lo', 'vcc_hi'): return {('s','vcc')}
    if tok in ('exec', 'exec_lo', 'exec_hi'): return {('s','exec')}
    if tok == 'm0': return {('s','m0')}
    return set()
def parse(line):
    s = line.split(';')[0].strip()
    if not s or s.endswith(':') or s.startswith('.'): return None
    p = s.split(None, 1)
    op = p[0]
    ops = []
    if len(p) > 1:
        body = re.sub(r'\s+(op_sel|op_sel_hi|neg_lo|neg_hi|quad_perm):\[[^\]]*\]', lambda m: ' ' + m.group(1) + '_x', p[1])
        ops = [x.strip() for x in body.split(',')]
        last = ops[-1].split()
        mods = last[1:]
        ops[-1] = last[0] if last else ''
    else: mods = []
    d = set(); r = set()
    kind = 'other'
    b = op.replace('_e32','').replace('_e64','').replace('_dpp','')
    if op.startswith('v_mfma'):
        kind = 'mfma'; d = regs(ops[0]); A = regs(ops[1]) | regs(ops[2]); C = regs(ops[3])
        return dict(op=op, kind=kind, d=d, r=A|C, ab=A, c=C, passes=4 if '16x16x32' in op else 8, text=s)
    if op.startswith('v_'):
        kind = 'valu'
        d = regs(ops[0])
        rest = ops[1:]
        if b in ('v_add_co_u32','v_sub_co_u32','v_addc_co_u32','v_subb_co_u32','v_div_scale_f32'):
            d |= regs(ops[1]); rest = ops[2:]
        for o in rest: r |= regs(o)
        if b.startswith(('v_fmac','v_dot2c','v_pk_fmac')) : r |= regs(ops[0])
        if 'permlane' in b and 'swap' in b:
            r |= regs(ops[0]); d |= regs(ops[1])
        if b == 'v_div_fmas_f32': r |= {('s','vcc')}
        if '_dpp' in op or any(m.startswith(('row_','quad_perm','wave_')) for m in mods):
            r |= regs(ops[0])
            return dict(op=b, kind=kind, d=d, r=r, dpp=True, text=s)
        return dict(op=b, kind=kind, d=d, r=r, text=s)
    if op.startswith('ds_'):
        if op.startswith(('ds_read','ds_bpermute','ds_permute','ds_swizzle','ds_add_rtn')):
            d = regs(ops[0]);
            for o in ops[1:]: r |= regs(o)
        else:
            for o in ops: r |= regs(o)
        return dict(op=op, kind='ds', d=d, r=r, text=s)
    if op.startswith(('buffer_','global_')):
        lds = 'lds' in mods or '_lds_' in op
        wide = False; data = set()
        if 'load' in op and not lds and 'atomic' not in op:
            d = regs(ops[0])
            for o in ops[1:]: r |= regs(o)
            if 'd16' in op: r |= d
        else:
            for o in ops: r |= regs(o)
            if 'store' in op and ('x4' in op or 'x3' in op):
                wide = True
                data = regs(ops[0]) if op.startswith('buffer_') else regs(ops[1])
        if lds: r |= {('s','m0')}
        return dict(op=op, kind='vmem', d=d, r=r, lds=lds, wide=wide, data=data, text=s)
    if op.startswith('s_'):
        if op == 's_nop': return dict(op=op, kind='nop', n=int(ops[0], 0)+1, d=d, r=r, text=s)
        if op.startswith(('s_setpc','s_bitcmp','s_cmp','s_waitcnt','s_barrier','s_branch','s_cbranch','s_endpgm','s_setprio','s_sleep')):
            for o in ops: r |= regs(o)
            return dict(op=op, kind='salu', d=d, r=r, text=s)
        d = regs(ops[0])
        for o in ops[1:]: r |= regs(o)
        if 'saveexec' in op: d |= {('s','exec')}
        return dict(op=op, kind='salu', d=d, r=r, text=s)
    raise ValueError('unparsed: ' + line)

def need(p, c):
    n = 0
    pk, ck = p['kind'], c['kind']
    vd = {x for x in p['d'] if x[0] in 'va'}
    sd = {x for x in p['d'] if x[0] == 's'}
    if pk == 'valu':
        if ck == 'mfma' and vd & c['r']: n = max(n, 2)
        if ck == 'valu':
            if 'permlane' in c['op'] and vd & c['r']: n = max(n, 2)
            if c.get('dpp') and vd & c['r']: n = max(n, 2)
            if c['op'] in ('v_readfirstlane_b32','v_readlane_b32') and vd & c['r']: n = max(n, 1)
            if p['op'] in TRANS and vd & c['r']: n = max(n, 1)
            if p['op'].startswith('v_dot') and vd & (c['r'] | c['d']) and c['op'] != p['op']: n = max(n, 3)
            if sd & c['r']: n = max(n, 4 if c['op'] in ('v_div_fmas_f32','v_readlane_b32','v_writelane_b32') else 2)
            if ('s','exec') in sd: n = max(n, 5)
        if ck == 'vmem' and sd & c['r']: n = max(n, 5)
        if ck == 'salu' and sd & c['r']: n = max(n, 1)
        if ck == 'mfma' and ('s','exec') in sd: n = max(n, 4)
    if pk == 'mfma':
        big = {4: 8, 8: 12}[p['passes']]
        if ck == 'mfma':
            if vd & c['ab']: n = max(n, big)
            if vd & c['c'] and not (c['c'] == p['d'] and c['passes'] == p['passes']): n = max(n, big-2)
            elif vd & c['d'] and not (c['c'] == p['d']): n = max(n, big)
        elif ck in ('valu','ds','vmem'):
            if vd & (c['r'] | c['d']): n = max(n, big)
            if ck == 'valu' and p['c'] & c['d']: n = max(n, {4: 3, 8: 7}[p['passes']])
    if pk == 'vmem' and p.get('wide') and p['data'] & c['d']: n = max(n, 2)
    if pk == 'salu' and ('s','m0') in sd and ck == 'vmem' and c.get('lds'): n = max(n, 1)
    if pk == 'salu' and ('s','exec') in sd and ck == 'valu' and ('permlane' in c['op'] or c.get('dpp')): n = max(n, 1)
    return n

def pad(lines, verbose=False):
    out = []; hist = []
    npad = 0
    for line in lines:
        ins = parse(line)
        if ins is None:
            out.append(line); continue
        if ins['kind'] != 'nop':
            req = 0; dist = 0
            for p in reversed(hist):
                w = need(p, ins) - dist
                if w > req: req = w; why = p
                dist += p.get('n', 1)
                if dist > 20: break
            if req > 0:
                npad += 1
                if verbose: print('pad', req, ':', why['text'], '->', ins['text'])
                while req > 0:
                    k = min(req, 16)
                    out.append('    s_nop %d' % (k-1)); hist.append(dict(op='s_nop', kind='nop', n=k, d=set(), r=set(), text='')); req -= k
        out.append(line); hist.append(ins)
        if ins['op'] in ('s_endpgm', 's_branch', 's_setpc_b64'): hist = []
        if len(hist) > 40: hist = hist[-30:]
    return out
```

```python
import sys
from asmgen import Asm
import gemm

MP1, ST1, MP2, ZP, ST2, KVP, H1F, PHIQ, OF, X1, H2F, HF, TS = 0x0, 0x4000, 0x10000, 0x20000, 0x40000, 0x100000, 0x800000, 0x1000000, 0x1800000, 0x1C00000, 0x2000000, 0x2800000, 0x3800000
P_X, P_WQKV, P_WPHI, P_WO, P_W1, P_B1, P_W2, P_B2, P_C, P_WMOD, P_OUT, P_DBG, P_WS = 0, 8, 16, 24, 40, 48, 56, 64, 72, 80, 88, 96, 104
LOG2E = 0x3fb8aa3b
class O: pass
opt = O(); opt.mimic = False; opt.ts = False; opt.outscale = None; opt.sflags = ' sc1'; opt.pf1 = 1; opt.pf2 = 1; opt.pf3 = 1; opt.pf4 = 1; opt.gv_at = [13]; opt.pf4_at = [13, 13, 13, 13]; opt.gv_late = True; opt.eprio = 1; opt.spf = 0; opt.rpm = 2; opt.stamp = None; opt.xf = 'fma7'; opt.pprio = 0

def srd(a, s, base, off, size):
    if off:
        a('s_add_u32 s%d, s%d, %d\ns_addc_u32 s%d, s%d, 0' % (s, base, off, s+1, base+1))
    else:
        a('s_mov_b32 s%d, s%d\ns_mov_b32 s%d, s%d' % (s, base, s+1, base+1))
    a('s_mov_b32 s%d, %d\ns_mov_b32 s%d, 0x20000' % (s+2, size, s+3))

def rnd2(a, x, y, t):
    a('v_cvt_pk_bf16_f32 v%d, v%d, v%d' % (t, x, y))
    a('v_lshlrev_b32 v%d, 16, v%d' % (x, t))
    a('v_and_b32 v%d, 0xffff0000, v%d' % (y, t))
def rnd1(a, x):
    a('v_cvt_pk_bf16_f32 v%d, v%d, v%d' % (x, x, x))
    a('v_lshlrev_b32 v%d, 16, v%d' % (x, x))
def rndn(a, xs, ts):
    prs = [(xs[i], xs[i+1]) for i in range(0, len(xs), 2)]
    for b in range(0, len(prs), len(ts)):
        blk = prs[b:b+len(ts)]
        for (x, y), t in zip(blk, ts): a('v_cvt_pk_bf16_f32 v%d, v%d, v%d' % (t, x, y))
        for (x, y), t in zip(blk, ts):
            a('v_lshlrev_b32 v%d, 16, v%d' % (x, t)); a('v_and_b32 v%d, 0xffff0000, v%d' % (y, t))
def unpack(a, lo, hi, src):
    a('v_lshlrev_b32 v%d, 16, v%d' % (lo, src)); a('v_and_b32 v%d, 0xffff0000, v%d' % (hi, src))

def ts_start(a, kid):
    if opt.ts: a('s_memrealtime s[96:97]')
def ts_end(a, kid, lbl):
    if not opt.ts: return
    a('s_waitcnt vmcnt(0) lgkmcnt(0)')
    a('s_memrealtime s[98:99]')
    srd(a, 88, 6, TS + kid*4096, 4096)
    a('s_mov_b64 exec, -1')
    a('v_cmp_eq_u32 vcc, 0, v0')
    a('s_waitcnt lgkmcnt(0)')
    a('v_mov_b32 v2, s96\nv_mov_b32 v3, s98\ns_lshl_b32 s92, s2, 3\nv_mov_b32 v4, s92')
    a('s_and_saveexec_b64 s[94:95], vcc\ns_cbranch_execz %s' % lbl)
    a('buffer_store_dwordx2 v[2:3], v4, s[88:91], 0 offen')

def gemv_issue(a, LPR, vt, V, sC, sW, s_c, s_w, vm=None, ps=range(8)):
    lg = LPR.bit_length() - 1
    t0, t1 = V+36, V+37
    if 0 in ps:
        a('v_lshrrev_b32 v%d, %d, v%d' % (t0, lg, vt))
        a('v_lshlrev_b32 v%d, 4, v%d' % (t1, t0))
        a('buffer_load_dwordx4 v[%d:%d], v%d, s[%d:%d], s%d offen' % (V, V+3, t1, sC, sC+3, s_c))
        if vm: vm.issue('gc')
        a('v_mul_u32_u24 v%d, %d, v%d' % (t0, 8*12288, t0))
        a('v_and_b32 v%d, %d, v%d' % (t1, LPR-1, vt))
        a('v_lshl_add_u32 v%d, v%d, 4, v%d' % (t0, t1, t0))
    for p in ps:
        a('buffer_load_dwordx4 v[%d:%d], v%d, s[%d:%d], s%d offen' % (V+4+4*p, V+7+4*p, t0, sW, sW+3, s_w))
        if p < 7: a('s_add_u32 s%d, s%d, 12288' % (s_w, s_w))
        if vm: vm.issue(('gw', p))
def gemv_math(a, LPR, V, T, vm, stmp):
    vm.wait('gc')
    for i in range(4): unpack(a, T+2*i, T+2*i+1, V+i)
    a('s_mov_b32 s%d, 0x%x' % (stmp, LOG2E))
    for i in range(8): a('v_mul_f32 v%d, s%d, v%d' % (T+8+i, stmp, T+i))
    for i in range(8): a('v_exp_f32 v%d, -v%d' % (T+8+i, T+8+i))
    for i in range(8): a('v_add_f32 v%d, 1.0, v%d' % (T+8+i, T+8+i))
    for i in range(8): a('v_rcp_f32 v%d, v%d' % (T+8+i, T+8+i))
    for i in range(8): a('v_mul_f32 v%d, v%d, v%d' % (T+i, T+i, T+8+i))
    rndn(a, list(range(T, T+8)), list(range(T+8, T+12)))
    for p in range(8):
        vm.wait(('gw', p))
        for d in range(4): unpack(a, T+16+2*d, T+17+2*d, V+4+4*p+d)
        for e in range(8):
            if p == 0: a('v_mul_f32 v%d, v%d, v%d' % (T+8+e, T+16+e, T+p))
            else: a('v_fmac_f32 v%d, v%d, v%d' % (T+8+e, T+16+e, T+p))
    for ror in {2: (2, 4, 8), 4: (4, 8), 8: (8,)}[LPR]:
        for e in range(8): a('v_add_f32_dpp v%d, v%d, v%d row_ror:%d row_mask:0xf bank_mask:0xf' % (T+8+e, T+8+e, T+8+e, ror))

def dpp_sum(a, xs, steps):
    for st in steps:
        for x in xs: a('v_add_f32_dpp v%d, v%d, v%d %s row_mask:0xf bank_mask:0xf' % (x, x, x, st))
DPP8 = ['quad_perm:[1,0,3,2]', 'quad_perm:[2,3,0,1]', 'row_half_mirror']
DPP16 = DPP8 + ['row_mirror']

def k_pre(a):
    n = 'pre_kernel'
    a.kernel_begin(n)
    a('s_cmp_ge_u32 s2, 256\ns_cbranch_scc1 pre_end')
    a('s_load_dwordx4 s[20:23], s[0:1], %d' % P_C)
    a('s_load_dwordx2 s[6:7], s[0:1], %d\ns_load_dwordx2 s[4:5], s[0:1], %d' % (P_WS, P_X))
    ts_start(a, 0)
    a('s_cmp_ge_u32 s2, 128\ns_cbranch_scc1 pre_stats')
    a('s_and_b32 s30, s2, 7\ns_lshl_b32 s30, s30, 3\ns_bfe_u32 s31, s2, 0x30003\ns_add_u32 s30, s30, s31\ns_lshr_b32 s31, s2, 6')
    a('s_lshl_b32 s32, s31, 10')
    a('s_mul_i32 s33, s31, %d\ns_lshl_b32 s34, s30, 6\ns_add_u32 s33, s33, s34' % (512*12288))
    a('s_waitcnt lgkmcnt(0)')
    srd(a, 8, 20, 0, 2048); srd(a, 12, 22, 0, 1024*12288); srd(a, 16, 6, MP1, 16384)
    vm = gemm.VM(a)
    gemv_issue(a, 4, 0, 4, 8, 12, 32, 33, vm)
    T = 44
    gemv_math(a, 4, 4, T, vm, 34)
    a('v_lshrrev_b32 v1, 4, v0\nv_lshlrev_b32 v1, 7, v1\nv_and_b32 v2, 3, v0\nv_lshl_add_u32 v1, v2, 5, v1')
    a('ds_write_b128 v1, v[%d:%d]\nds_write_b128 v1, v[%d:%d] offset:16' % (T+8, T+11, T+12, T+15))
    a('s_waitcnt lgkmcnt(0)\ns_barrier')
    a('v_cmp_gt_u32 vcc, 32, v0\ns_and_saveexec_b64 s[26:27], vcc\ns_cbranch_execz pre_fin')
    a('v_lshlrev_b32 v1, 2, v0')
    for p in range(16): a('ds_read_b32 v%d, v1 offset:%d' % (16+p, 128*p))
    a('s_waitcnt lgkmcnt(0)')
    for st in (8, 4, 2, 1):
        for p in range(st): a('v_add_f32 v%d, v%d, v%d' % (16+p, 16+p, 16+p+st))
    a('s_lshl_b32 s30, s30, 7\ns_lshl_b32 s31, s31, 13\ns_add_u32 s30, s30, s31')
    a('buffer_store_dword v16, v1, s[16:19], s30 offen sc1')
    a('s_branch pre_fin')
    a.label('pre_stats')
    a('v_lshrrev_b32 v2, 6, v0\nv_and_b32 v1, 63, v0')
    a('v_lshlrev_b32 v3, 13, v2\nv_lshl_add_u32 v3, v1, 4, v3')
    a('s_sub_u32 s30, s2, 128\ns_lshl_b32 s31, s30, 15')
    a('s_load_dwordx2 s[40:41], s[0:1], %d\ns_load_dwordx2 s[42:43], s[0:1], %d\ns_load_dwordx2 s[44:45], s[0:1], %d' % (P_WPHI, P_B1, P_B2))
    a('s_waitcnt lgkmcnt(0)')
    a('s_lshl_b32 s46, s30, 9')
    for q in range(8): a('s_add_u32 s47, s46, %d\ns_load_dword s48, s[40:41], s47' % (64*q))
    a('s_min_u32 s46, s30, 111\ns_lshl_b32 s46, s46, 6\ns_load_dword s48, s[42:43], s46')
    a('s_and_b32 s46, s30, 31\ns_lshl_b32 s46, s46, 6\ns_load_dword s48, s[44:45], s46')
    srd(a, 8, 4, 0, 0x400000); srd(a, 16, 6, ST1, 16384)
    D = 8; X = 40
    for r in range(4):
        for h in range(2):
            a('buffer_load_dwordx4 v[%d:%d], v3, s[8:11], s31 offen offset:%d' % (D+8*r+4*h, D+8*r+4*h+3, (r % 2)*2048 + h*1024))
        if r == 1: a('s_add_u32 s31, s31, 4096')
    SM = 104
    for r in range(4):
        a('s_waitcnt vmcnt(%d)' % (6-2*r))
        for i in range(8): unpack(a, X+16*r+2*i, X+16*r+2*i+1, D+8*r+i)
        for i in range(4): a('v_add_f32 v%d, v%d, v%d' % (D+i, X+16*r+i, X+16*r+4+i))
        for k in (8, 12):
            for i in range(4): a('v_add_f32 v%d, v%d, v%d' % (D+i, D+i, X+16*r+k+i))
        a('v_add_f32 v%d, v%d, v%d\nv_add_f32 v%d, v%d, v%d\nv_add_f32 v%d, v%d, v%d' % (D, D, D+1, D+2, D+2, D+3, SM+r, D, D+2))
    sm = [SM+r for r in range(4)]
    dpp_sum(a, sm, DPP16)
    for st in bfly(a, 'v_add_f32', sm):
        for l in st: a(l)
    for r in range(4): a('v_mul_f32 v%d, 0x3a800000, v%d' % (SM+r, SM+r))
    SQ = 108
    for r in range(4):
        for i in range(16): a('v_sub_f32 v%d, v%d, v%d' % (X+16*r+i, X+16*r+i, SM+r))
        for i in range(4): a('v_mul_f32 v%d, v%d, v%d' % (D+i, X+16*r+i, X+16*r+i))
        for k in (4, 8, 12):
            for i in range(4): a('v_fmac_f32 v%d, v%d, v%d' % (D+i, X+16*r+k+i, X+16*r+k+i))
        a('v_add_f32 v%d, v%d, v%d\nv_add_f32 v%d, v%d, v%d\nv_add_f32 v%d, v%d, v%d' % (D, D, D+1, D+2, D+2, D+3, SQ+r, D, D+2))
    sq = [SQ+r for r in range(4)]
    dpp_sum(a, sq, DPP16)
    for st in bfly(a, 'v_add_f32', sq):
        for l in st: a(l)
    a('v_mov_b32 v4, 0x3727c5ac\nv_mov_b32 v5, 0x3a800000')
    for r in range(4): a('v_fma_f32 v%d, v%d, v5, v4' % (SQ+r, SQ+r))
    for r in range(4): a('v_rsq_f32 v%d, v%d' % (D+2*r, SQ+r))
    for r in range(4): a('v_mov_b32 v%d, v%d' % (D+2*r+1, SM+r))
    a('v_lshlrev_b32 v3, 5, v2\ns_lshl_b32 s30, s30, 7')
    a('v_cmp_eq_u32 vcc, 0, v1\ns_and_saveexec_b64 s[26:27], vcc')
    a('buffer_store_dwordx4 v[%d:%d], v3, s[16:19], s30 offen\nbuffer_store_dwordx4 v[%d:%d], v3, s[16:19], s30 offen offset:16' % (D, D+3, D+4, D+7))
    a.label('pre_fin')
    ts_end(a, 0, 'pre_end')
    a.label('pre_end')
    a('s_endpgm')
    a.kernel_end(n, 112, 100, 112, 256, 256, 2048)

def xg_sum(a, xs, ts):
    for op in ('v_permlane32_swap_b32', 'v_permlane16_swap_b32'):
        for x, t in zip(xs, ts): a('v_mov_b32 v%d, v%d' % (t, x))
        for x, t in zip(xs, ts): a('%s v%d, v%d' % (op, x, t))
        for x, t in zip(xs, ts): a('v_add_f32 v%d, v%d, v%d' % (x, x, t))

def k_ln(a, n, kid, first):
    L = n.replace('_kernel', '')
    nparts, pstride, s_ch, a_ch = (2, 8192, 0, 1) if first else (4, 16384, 1, 2)
    a.kernel_begin(n)
    a('s_cmp_ge_u32 s2, 256\ns_cbranch_scc1 %s_end' % L)
    a('s_load_dwordx2 s[6:7], s[0:1], %d' % P_WS)
    if first: a('s_load_dwordx4 s[28:31], s[0:1], %d' % P_X)
    ts_start(a, kid)
    a('s_lshr_b32 s20, s2, 4\ns_lshl_b32 s20, s20, 3\ns_and_b32 s21, s2, 7\ns_add_u32 s20, s20, s21\ns_bfe_u32 s21, s2, 0x10003')
    a('v_and_b32 v1, 63, v0\nv_lshrrev_b32 v2, 6, v0\nv_and_b32 v3, 15, v0\nv_bfe_u32 v4, v0, 4, 2')
    a('v_lshlrev_b32 v5, 11, v3\nv_lshl_add_u32 v5, v2, 8, v5\nv_lshl_add_u32 v5, v4, 4, v5')
    a('s_lshl_b32 s22, s20, 15\ns_lshl_b32 s23, s21, 10\ns_add_u32 s23, s23, s22')
    a('v_lshlrev_b32 v6, 3, v0\ns_lshl_b32 s24, s21, 11')
    if first: a('v_lshlrev_b32 v7, 3, v3\ns_lshl_b32 s25, s20, 7')
    else: a('v_lshlrev_b32 v7, 3, v3\nv_lshl_add_u32 v7, v4, 16, v7\ns_lshl_b32 s25, s20, 7')
    a('s_waitcnt lgkmcnt(0)')
    srd(a, 12, 6, MP1 if first else MP2, 16384 if first else 65536)
    M = 16
    for p in range(nparts):
        for w, ch in enumerate((a_ch, s_ch)):
            a('s_add_u32 s26, s24, %d' % (p*pstride + ch*4096))
            a('buffer_load_dwordx2 v[%d:%d], v6, s[12:15], s26 offen' % (M+4*p+2*w, M+4*p+2*w+1))
    if first: srd(a, 8, 28, 0, 0x400000)
    else: srd(a, 8, 6, X1, 0x400000)
    D = 32
    for u in range(4): a('buffer_load_dwordx4 v[%d:%d], v5, s[8:11], s23 offen offset:%d' % (D+4*u, D+4*u+3, 64*u))
    srd(a, 16, 6, ST1 if first else ST2, 16384 if first else 0x40000)
    if first:
        a('buffer_load_dwordx2 v[8:9], v7, s[16:19], s25 offen'); ns = 1
    else:
        for q in range(4): a('buffer_load_dwordx2 v[%d:%d], v7, s[16:19], s25 offen\ns_add_u32 s25, s25, 16384' % (8+2*q, 9+2*q))
        ns = 4
    npf = 0
    if first and opt.pf1:
        srd(a, 32, 30, 0, 1024*6144)
        a('v_and_b32 v48, 3, v0\nv_bfe_u32 v49, v0, 2, 2\nv_lshlrev_b32 v49, 11, v49\nv_lshl_add_u32 v48, v48, 7, v49')
        a('v_lshrrev_b32 v49, 4, v0\nv_mul_u32_u24 v49, 6144, v49\nv_add_u32 v48, v48, v49')
        a('v_bfe_u32 v49, v0, 2, 2\nv_cmp_eq_u32 vcc, 3, v49\nv_mov_b32 v49, 0x7fffffff\nv_cndmask_b32 v48, v48, v49, vcc')
        a('s_lshr_b32 s26, s2, 3\ns_mul_i32 s26, s26, %d\ns_bfe_u32 s27, s2, 0x20001\ns_lshl_b32 s27, s27, 9\ns_add_u32 s26, s26, s27' % (16*6144))
        for q in range(opt.pf1):
            a('buffer_load_dword v49, v48, s[32:35], s26 offen')
            a('s_add_u32 s26, s26, %d' % (512*6144))
        npf = opt.pf1
    srd(a, 36, 6, H1F if first else H2F, 0x400000)
    a('v_lshrrev_b32 v6, 2, v0\nv_lshlrev_b32 v6, 6, v6\nv_and_b32 v7, 3, v0\nv_lshl_add_u32 v6, v7, 3, v6')
    a('s_waitcnt vmcnt(%d)' % (4+ns+npf))
    for p in range(1, nparts):
        for e in range(4): a('v_add_f32 v%d, v%d, v%d' % (M+e, M+e, M+4*p+e))
    rndn(a, [M, M+1, M+2, M+3], [M+4, M+5])
    a('v_add_f32 v%d, 1.0, v%d\nv_add_f32 v%d, 1.0, v%d' % (M, M, M+1, M+1))
    rndn(a, [M, M+1], [M+4])
    a('ds_write_b64 v6, v[%d:%d]\nds_write_b64 v6, v[%d:%d] offset:32' % (M, M+1, M+2, M+3))
    a('v_lshlrev_b32 v6, 10, v2\nv_lshl_add_u32 v6, v4, 6, v6')
    a('v_lshlrev_b32 v5, 12, v2\nv_lshl_add_u32 v5, v1, 4, v5\ns_lshl_b32 s23, s21, 14\ns_add_u32 s23, s23, s22')
    a('s_waitcnt lgkmcnt(0)\ns_barrier')
    T = 80
    for u in range(4):
        for e in range(4): a('ds_read_b128 v[%d:%d], v6 offset:%d' % (T+16*u+4*e, T+16*u+4*e+3, 256*u+16*e))
    X = 48
    a('s_waitcnt vmcnt(%d)' % (ns+npf))
    for i in range(16): unpack(a, X+2*i, X+2*i+1, D+i) if not (npf and i == 0) else None
    a('s_waitcnt vmcnt(%d)' % npf)
    if not first:
        a('v_add_f32 v8, v8, v10\nv_add_f32 v9, v9, v11\nv_add_f32 v12, v12, v14\nv_add_f32 v13, v13, v15\nv_add_f32 v9, v9, v13\nv_add_f32 v10, v8, v12')
        xg_sum(a, [9, 10], [11, 12])
        a('v_mul_f32 v10, 0x3a800000, v10\nv_mul_f32 v11, v10, v10\nv_mov_b32 v12, 0x3a800000\nv_fma_f32 v8, v9, v12, -v11')
        a('v_max_f32 v8, 0, v8\nv_add_f32 v8, 0x3727c5ac, v8\nv_rsq_f32 v8, v8\nv_mov_b32 v9, v10')
    a('v_mul_f32 v9, -v9, v8')
    XS = [X+i for i in range(32)]
    if npf:
        XS[0], XS[1] = 10, 11
        unpack(a, 10, 11, D)
    for i in range(32): a('v_fma_f32 v%d, v%d, v8, v9' % (XS[i], XS[i]))
    for u in range(4):
        a('s_waitcnt lgkmcnt(%d)' % (12-4*u))
        for e in range(8): a('v_fma_f32 v%d, v%d, v%d, v%d' % (XS[8*u+e], XS[8*u+e], T+16*u+e, T+16*u+8+e))
        for e in range(4): a('v_cvt_pk_bf16_f32 v%d, v%d, v%d' % (D+4*u+e, XS[8*u+2*e], XS[8*u+2*e+1]))
        a('buffer_store_dwordx4 v[%d:%d], v5, s[36:39], s23 offen offset:%d' % (D+4*u, D+4*u+3, 1024*u))
    ts_end(a, kid, L+'_end')
    a.label(L+'_end')
    a('s_endpgm')
    a.kernel_end(n, 144, 100, 144, 256, 256, 4096)

def gemm_head(a, c, kid, xm, xn, colmul, ptrs, rot):
    a('s_cmp_ge_u32 s2, 256\ns_cbranch_scc1 %s_end' % c.name)
    for s, o in ptrs: a('s_load_dwordx2 s[%d:%d], s[0:1], %d' % (s, s+1, o))
    ts_start(a, kid)
    if opt.stamp == c.name:
        c.stamps = True; c.gen_dump = True
        a('s_memtime s[94:95]')
    bm = 16 // xm
    a('s_and_b32 s36, s2, 7\ns_lshr_b32 s37, s2, 3')
    a('s_and_b32 s38, s36, %d\ns_lshr_b32 s36, s36, %d' % (bm-1, bm.bit_length()-1))
    a('s_and_b32 s39, s37, %d\ns_lshr_b32 s37, s37, %d' % (xm-1, xm.bit_length()-1))
    a('s_mul_i32 s38, s38, %d\ns_add_u32 s%d, s38, s39' % (xm, c.s_mt))
    a('s_mul_i32 s36, s36, %d\ns_add_u32 s%d, s36, s37' % (xn, c.s_nt))
    ra, rb = rot
    a('s_mul_i32 s39, s39, %d\ns_mul_i32 s37, s37, %d\ns_add_u32 s39, s39, s37' % (ra, rb))
    a('s_and_b32 s%d, s39, %d' % (c.s_rot, c.G-1))
    a('s_mul_i32 s%d, s%d, %d' % (c.s_col0, c.s_nt, colmul))
    if c.half:
        a('s_and_b32 s36, s%d, 1' % c.s_nt)
        a('s_cmp_eq_u32 s36, 0')
        a('s_cselect_b32 s36, 384, 0\ns_cselect_b32 s37, 0, 64')
        a('s_add_u32 s%d, s%d, s36' % (c.s_colh, c.s_col0))
        a('s_add_u32 s%d, s%d, s37' % (c.s_col0, c.s_col0))
    gemm.gemm_prologue(a, c)

def gemm_body(a, c, psrds, csrds):
    a('s_cmp_lt_u32 s%d, 4\ns_cbranch_scc1 %s_cons' % (c.s_wave, c.name))
    def hook(a):
        for x in psrds: srd(a, *x)
    c.srd_hook = hook
    (gemm.xproducer if c.xform else gemm.producer)(a, c, c.name + '_end')
    a.label(c.name + '_cons')
    a('s_waitcnt lgkmcnt(0)')
    for x in csrds: srd(a, *x)
    gemm.consumer(a, c)

def gemm_tail(a, c, n, kid):
    if c.stamps:
        gemm.mark(a, c, 8)
        a('s_waitcnt vmcnt(0)')
        gemm.mark(a, c, 9)
        gemm.dump_stamps(a, c)
    if opt.ts:
        a('s_cmp_lg_u32 s%d, 0\ns_cbranch_scc1 %s_end' % (c.s_wave, c.name))
        ts_end(a, kid, c.name + '_end')
    a.label(c.name + '_end')
    a('s_endpgm')
    if not c.xform: gemm.table(a, c)
    a.kernel_end(n, 256, 100, 256, 256, 512, c.lds)

def bfly(a, op, x):
    return [
     ['v_permlane32_swap_b32 v%d, v%d' % (x[0], x[1]), 'v_permlane32_swap_b32 v%d, v%d' % (x[2], x[3])],
     ['%s v%d, v%d, v%d' % (op, x[0], x[0], x[1]), '%s v%d, v%d, v%d' % (op, x[2], x[2], x[3])],
     ['v_permlane16_swap_b32 v%d, v%d' % (x[0], x[2])],
     ['%s v%d, v%d, v%d' % (op, x[0], x[0], x[2])],
     ['v_mov_b32 v%d, v%d' % (x[2], x[0])],
     ['v_permlane16_swap_b32 v%d, v%d' % (x[0], x[2])],
     ['v_mov_b32 v%d, v%d' % (x[1], x[0]), 'v_mov_b32 v%d, v%d' % (x[3], x[2])],
     ['v_permlane32_swap_b32 v%d, v%d' % (x[0], x[1]), 'v_permlane32_swap_b32 v%d, v%d' % (x[2], x[3])]]
def bfly2(a, op1, x1, op2, x2):
    for s1, s2 in zip(bfly(a, op1, x1), bfly(a, op2, x2)):
        for l in s1 + s2: a(l)

def smem_pf(c, regions, k0, k1, prev=None):
    reqs = [(ri, o) for ri, r in enumerate(regions) for o in range(0, r[1], 64)]
    nit = k1 - k0 + 1
    def hook(a, c, vm, k):
        if prev: prev(a, c, vm, k)
        if k == k0:
            a('s_lshl_b32 s80, s2, 2\ns_add_u32 s80, s80, s%d\ns_sub_u32 s80, s80, 4' % c.s_wave)
            for ri, r in enumerate(regions):
                a('s_mul_i32 s81, s80, %d' % r[1])
                if len(r) > 2: a('s_add_u32 s81, s81, %d' % r[2])
                a('s_add_u32 s%d, s%d, s81\ns_addc_u32 s%d, s%d, 0' % (82+2*ri, r[0], 83+2*ri, r[0]+1))
        if k0 <= k <= k1:
            for (ri, o) in reqs[(k-k0)*len(reqs)//nit:(k-k0+1)*len(reqs)//nit]:
                a('s_load_dword s81, s[%d:%d], %d' % (82+2*ri, 83+2*ri, o))
    return hook

def table_hooks(c, sM, nparts, pstride, s_chunk, a_chunk, V):
    def issue(a):
        a('v_lshlrev_b32 v2, 4, v0')
        for p in range(nparts):
            for w, ch in enumerate((a_chunk, s_chunk)):
                a('s_mov_b32 s59, %d' % (p*pstride + ch*4096))
                a('buffer_load_dwordx4 v[%d:%d], v2, s[%d:%d], s59 offen' % (V+8*p+4*w, V+8*p+4*w+3, sM, sM+3))
    def finish(a, c, nlater):
        a('v_lshrrev_b32 v2, 1, v0\nv_lshlrev_b32 v2, 6, v2\nv_and_b32 v3, 1, v0\nv_lshl_add_u32 v2, v3, 4, v2')
        a('s_waitcnt vmcnt(%d)' % nlater)
        for p in range(1, nparts):
            for e in range(8): a('v_add_f32 v%d, v%d, v%d' % (V+e, V+e, V+8*p+e))
        rndn(a, list(range(V, V+8)), list(range(V+8, V+12)))
        for e in range(4): a('v_add_f32 v%d, 1.0, v%d' % (V+e, V+e))
        rndn(a, list(range(V, V+4)), list(range(V+8, V+10)))
        a('ds_write_b128 v2, v[%d:%d] offset:%d\nds_write_b128 v2, v[%d:%d] offset:%d' % (V, V+3, 0, V+4, V+7, 32))
        a('s_waitcnt lgkmcnt(0)\ns_barrier')
    return issue, finish

def wphi_issue(a, W, WH, s_off, vt0, vt1):
    a('v_and_b32 v%d, 15, v1\nv_lshlrev_b32 v%d, 1, v%d\nv_lshrrev_b32 v%d, 4, v1\nv_lshl_add_u32 v%d, v%d, 8, v%d' % (vt0, vt0, vt0, vt1, vt0, vt1, vt0))
    for ft in range(2):
        for dw in range(4):
            d0 = (dw % 2)*2 + (dw // 2)*16
            a('buffer_load_ushort v%d, v%d, s[16:19], s%d offen offset:%d' % (W+ft*4+dw, vt0, s_off, d0*64 + ft*32))
            a('buffer_load_ushort v%d, v%d, s[16:19], s%d offen offset:%d' % (WH+ft*4+dw, vt0, s_off, d0*64 + 64 + ft*32))

def feat(a, QF, P, E, MX, MN, W, sL, sink):
    for i in range(4):
        for ft in range(2):
            t = P + i*8 + ft*4
            a('v_mfma_f32_16x16x32_bf16 v[%d:%d], v[%d:%d], v[%d:%d], 0' % (t, t+3, W+ft*4, W+ft*4+3, QF+4*i, QF+4*i+3))
    for (op, op2, dst) in (('v_max3_f32', 'v_max_f32', MX), ('v_min3_f32', 'v_min_f32', MN)):
        for i in range(4): a('%s v%d, v%d, v%d, v%d' % (op, dst+i, P+8*i, P+8*i+1, P+8*i+2))
        for i in range(4): a('%s v%d, v%d, v%d, v%d' % (op, dst+i, dst+i, P+8*i+3, P+8*i+4))
        for i in range(4): a('%s v%d, v%d, v%d, v%d' % (op, dst+i, dst+i, P+8*i+5, P+8*i+6))
        for i in range(4): a('%s v%d, v%d, v%d' % (op2, dst+i, dst+i, P+8*i+7))
    bfly2(a, 'v_max_f32', [MX+i for i in range(4)], 'v_min_f32', [MN+i for i in range(4)])
    for i in range(4):
        a('v_mul_f32 v%d, s%d, v%d\nv_mul_f32 v%d, s%d, v%d' % (MX+i, sL, MX+i, MN+i, sL, MN+i))
    for i in range(4):
        for e in range(8): a('v_fma_f32 v%d, v%d, s%d, -v%d' % (E+8*i+e, P+8*i+e, sL, MX+i))
        for e in range(8): a('v_fma_f32 v%d, -v%d, s%d, v%d' % (P+8*i+e, P+8*i+e, sL, MN+i))
    for i in range(32): a('v_exp_f32 v%d, v%d\nv_exp_f32 v%d, v%d' % (E+i, E+i, P+i, P+i))
    for (B, dst) in ((E, MX), (P, MN)):
        for i in range(4): a('v_add_f32 v%d, v%d, v%d' % (dst+i, B+8*i, B+8*i+1))
        for e in range(2, 8):
            for i in range(4): a('v_add_f32 v%d, v%d, v%d' % (dst+i, dst+i, B+8*i+e))
    bfly2(a, 'v_add_f32', [MX+i for i in range(4)], 'v_add_f32', [MN+i for i in range(4)])
    for i in range(4): a('v_rcp_f32 v%d, v%d\nv_rcp_f32 v%d, v%d' % (MX+i, MX+i, MN+i, MN+i))
    for i in range(4):
        for sg, (B, sc) in enumerate(((E, MX), (P, MN))):
            for e in range(8): a('v_mul_f32 v%d, v%d, v%d' % (B+8*i+e, B+8*i+e, sc+i))
            for e in range(4): a('v_cvt_pk_bf16_f32 v%d, v%d, v%d' % (B+8*i+e, B+8*i+2*e, B+8*i+2*e+1))
            sink(i, sg, B+8*i)

def wphi_read(a, W, s_nh, WPH, t0, t1):
    a('v_lshrrev_b32 v%d, 2, v1\nv_lshlrev_b32 v%d, 6, v%d\nv_bfe_u32 v%d, v1, 4, 1\nv_lshl_add_u32 v%d, v%d, 5, v%d' % (t0, t0, t0, t1, t0, t1, t0))
    a('v_and_b32 v%d, 3, v1\nv_lshl_add_u32 v%d, v%d, 3, v%d' % (t1, t0, t1, t0))
    a('s_lshl_b32 s59, s%d, 11\ns_add_u32 s59, s59, %d\nv_add_u32 v%d, s59, v%d\nv_xor_b32 v%d, 32, v%d' % (s_nh, WPH, t0, t0, t1, t0))
    for ft in range(2):
        for t in range(2): a('ds_read_b64_tr_b16 v[%d:%d], v%d offset:%d' % (W+4*ft+2*t, W+4*ft+2*t+1, (t0, t1)[ft], 1024*t))

def k_qkv(a):
    n = 'qkv_kernel'
    c = gemm.config('qkv', 1024, 128, 3, False, 64, 3, 6144, 2048, swap_frags=(4, 5), natw=True)
    WPH = c.lds; FLG = WPH + 4096
    c.lds += 4096 + 256
    a.kernel_begin(n)
    gemm_head(a, c, 2, 8, 4, 128, [(4, P_WQKV), (6, P_WS), (32, P_WPHI), (74, P_C), (76, P_WMOD), (78, P_WO), (92, P_W1)], (1,1))
    psrds = [(8, 6, H1F, 0x400000), (12, 4, 0, 1024*6144)]
    csrds = [(24, 6, KVP, 0x200000), (28, 6, ZP, 0x20000)]
    EB = c.slot * ((c.K // c.BK) % c.S)
    IMG = EB; VB = EB + 32768; QB = VB + 16384
    assert QB + 16384 <= WPH and EB == c.slot
    s_hd = 58; sL = 60
    def early_issue(a, c, vm):
        V = c.p_vfree
        srd(a, 16, 32, 0, 65536)
        a('v_lshrrev_b32 v%d, 3, v1\nv_and_b32 v%d, 2, v%d\nv_xor_b32 v%d, v1, v%d\nv_lshlrev_b32 v%d, 4, v%d' % (V, V, V, V, V, V, V))
        a('s_sub_u32 s59, s%d, 4\ns_lshl_b32 s59, s59, 10\ns_add_u32 m0, s59, %d\ns_lshl_b32 s61, s%d, 12\ns_add_u32 s59, s59, s61' % (c.s_wave, WPH, c.s_nt))
        a('buffer_load_dwordx4 v%d, s[16:19], s59 offen lds' % V)
        vm.issue('wphi')
    GV = QB + 16384
    assert GV + 4096 <= WPH
    def iter_hook(a, c, vm, k):
        V = (c.p_vfree + 3)//4*4
        ks = opt.gv_at
        if k == ks[0]:
            srd(a, 20, 74, 0, 2048); srd(a, 24, 76, 0, 1024*12288)
            a('s_lshr_b32 s61, s2, 6\ns_lshl_b32 s62, s61, 9\ns_mul_i32 s63, s61, %d' % (256*12288))
            a('s_and_b32 s64, s2, 63\ns_lshl_b32 s65, s64, 7\ns_add_u32 s63, s63, s65\ns_add_u32 s63, s63, 4096')
            a('v_and_b32 v%d, 255, v0' % (V+38))
        if k in ks:
            n_ = 8 // len(ks); q = ks.index(k)
            gemv_issue(a, 8, V+38, V, 20, 24, 62, 63, vm, range(q*n_, q*n_+n_))
    def tail_issue(a, c, vm):
        V = (c.p_vfree + 3)//4*4
        if opt.pf2:
            srd(a, 28, 78, 0, 1024*2048)
            a('v_lshlrev_b32 v%d, 11, v%d\nv_lshl_add_u32 v%d, v%d, 7, v%d' % (V+39, c.p_vrow, V+39, c.p_vch, V+39))
            a('s_lshr_b32 s62, s2, 3\ns_lshl_b32 s62, s62, 2\ns_add_u32 s62, s62, s%d\ns_sub_u32 s62, s62, 4\ns_lshl_b32 s62, s62, 14' % c.s_wave)
            a('s_bfe_u32 s63, s2, 0x10002\ns_lshl_b32 s63, s63, 10\ns_add_u32 s62, s62, s63')
            a('buffer_load_dword v%d, v%d, s[28:31], s62 offen' % (V+37, V+39))
            vm.issue('pf')
    def ptail(a, c, vm):
        V = (c.p_vfree + 3)//4*4
        QF = V + 40; P = QF + 16; E = P + 32; MX = E + 32; MN = MX + 4; W = MN + 4; T = W + 8
        srd(a, 20, 6, PHIQ, 0x800000); srd(a, 24, 6, MP2, 65536)
        a('s_mov_b32 s%d, 0x%x' % (sL, LOG2E))
        a('s_and_b32 s%d, s%d, 1' % (c.s_nh, c.s_wave))
        wphi_read(a, W, c.s_nh, WPH, 2, 3)
        a('s_lshl_b32 s59, s%d, 1\ns_add_u32 s%d, s59, s%d' % (c.s_nt, s_hd, c.s_nh))
        a('s_lshl_b32 s61, s61, 14\ns_lshl_b32 s64, s64, 8\ns_add_u32 s64, s64, s61')
        a('s_sub_u32 s61, s%d, 4\ns_lshl_b32 s62, s61, 12\ns_add_u32 s62, s62, %d' % (c.s_wave, QB))
        a('v_lshl_add_u32 v3, v1, 4, s62\nv_lshlrev_b32 v4, 4, v1')
        a('s_lshr_b32 s61, s61, 1\ns_lshl_b32 s62, s%d, 1\ns_add_u32 s62, s62, s61\ns_lshl_b32 s62, s62, 18' % c.s_mt)
        a('s_lshl_b32 s61, s%d, 11\ns_add_u32 s62, s62, s61' % s_hd)
        def gv():
            gemv_math(a, 8, V, T, vm, 59)
            a('v_lshrrev_b32 v2, 4, v%d\nv_lshlrev_b32 v2, 8, v2\nv_and_b32 v5, 7, v1\nv_lshl_add_u32 v2, v5, 5, v2\nv_add_u32 v2, %d, v2' % (V+38, GV))
            a('ds_write_b128 v2, v[%d:%d]\nds_write_b128 v2, v[%d:%d] offset:16' % (T+8, T+11, T+12, T+15))
            a('v_mov_b32 v5, %d\nv_mov_b32 v6, 1\ns_waitcnt lgkmcnt(0)' % (FLG+16))
            a('s_mov_b64 exec, 1\nds_add_rtn_u32 v6, v5, v6\ns_mov_b64 exec, -1\ns_waitcnt lgkmcnt(0)')
            a('v_readfirstlane_b32 s59, v6\ns_cmp_lg_u32 s59, 3\ns_cbranch_scc1 qkv_gvx')
            a('v_lshlrev_b32 v5, 2, v1\nv_add_u32 v6, %d, v5' % GV)
            for p in range(16): a('ds_read_b32 v%d, v6 offset:%d' % (T+p, 256*p))
            a('s_waitcnt lgkmcnt(0)')
            for st in (8, 4, 2, 1):
                for p in range(st): a('v_add_f32 v%d, v%d, v%d' % (T+p, T+p, T+p+st))
            a('buffer_store_dword v%d, v5, s[24:27], s64 offen sc1' % T)
            a.label('qkv_gvx')
        if not opt.gv_late: gv()
        gemm.mark(a, c, 1)
        if opt.eprio: a('s_setprio %d' % opt.eprio)
        a('s_barrier')
        gemm.mark(a, c, 2)
        for i in range(4): a('ds_read_b128 v[%d:%d], v3 offset:%d' % (QF+4*i, QF+4*i+3, 1024*i))
        a('s_waitcnt lgkmcnt(0)')
        def sink(i, sg, B):
            a('buffer_store_dwordx4 v[%d:%d], v4, s[20:23], s62 offen offset:%d' % (B, B+3, sg*1024))
            vm.issue('st')
            if sg == 1: a('s_add_u32 s62, s62, 65536')
        feat(a, QF, P, E, MX, MN, W, sL, sink)
        gemm.mark(a, c, 3)
        if opt.gv_late: gv()
    def zero_flags(a, c):
        a('v_lshlrev_b32 v2, 2, v1\nv_add_u32 v2, %d, v2\nv_mov_b32 v3, 0\nds_write_b32 v2, v3\ns_waitcnt lgkmcnt(0)' % FLG)
    c.pre_hook2 = zero_flags
    c.first_c = lambda c, j: '0'
    c.unroll = True; c.iter_hook = iter_hook
    regs = []
    if opt.spf & 1: regs.append((78, 2048))
    if opt.spf & 2: regs.append((92, 7168))
    if regs: c.iter_hook = smem_pf(c, regs, 1, 14, iter_hook)
    c.early_issue, c.tail_issue, c.ptail = early_issue, tail_issue, ptail
    gemm_body(a, c, psrds, csrds)
    a('s_lshl_b32 s%d, s%d, 1\ns_add_u32 s%d, s%d, s%d' % (s_hd, c.s_nt, s_hd, s_hd, c.s_nh))
    wphi_read(a, c.v_free, c.s_nh, WPH, 2, 3)
    W = c.v_free
    ACC = lambda j, i, r=0: c.v_acc + (j*4+i)*4 + r
    QF = 8; P = 24; E = 56
    MX = W + 8; MN = MX + 4; T = MN + 4
    a('s_mov_b32 s%d, 0x%x' % (sL, LOG2E))
    a('v_lshlrev_b32 v4, 4, v1')
    a('s_lshl_b32 s61, s%d, 12\ns_add_u32 s61, s61, %d' % (c.s_wave, QB))
    a('v_add_u32 v3, s61, v4')
    for i in range(4):
        for h in range(2):
            for e in range(2):
                a('v_cvt_pk_bf16_f32 v%d, v%d, v%d' % (P+4*i+2*h+e, ACC(h, i, 2*e), ACC(h, i, 2*e+1)))
        a('ds_write_b128 v3, v[%d:%d] offset:%d' % (P+4*i, P+4*i+3, 1024*i))
    a('s_waitcnt lgkmcnt(0)')
    gemm.mark(a, c, 1)
    a('s_barrier')
    gemm.mark(a, c, 2)
    a('s_lshl_b32 s61, s%d, 1\ns_add_u32 s61, s61, s%d\ns_lshl_b32 s61, s61, 12\ns_add_u32 s61, s61, %d' % (c.s_nh, c.s_rh, VB))
    a('v_add_u32 v3, s61, v4')
    for gam in range(2):
        for dt in range(2):
            q = c.v_acc + (gam*2+dt)*4
            for h in range(2):
                for e in range(2):
                    a('v_cvt_pk_bf16_f32 v%d, v%d, v%d' % (q+2*h+e, ACC(4+dt, 2*gam+h, 2*e), ACC(4+dt, 2*gam+h, 2*e+1)))
            a('ds_write_b128 v3, v[%d:%d] offset:%d' % (q, q+3, (gam*2+dt)*1024))
    for i in range(4):
        for h in range(2):
            for e in range(2):
                a('v_cvt_pk_bf16_f32 v%d, v%d, v%d' % (QF+4*i+2*h+e, ACC(2+h, i, 2*e), ACC(2+h, i, 2*e+1)))
    def hrow(dst, row, t):
        a('v_lshrrev_b32 v%d, 1, v%d\nv_and_b32 v%d, 3, v%d\nv_lshlrev_b32 v%d, 2, v%d' % (dst, row, dst, dst, dst, dst))
        a('v_and_b32 v%d, 1, v%d\nv_or_b32 v%d, v%d, v%d' % (t, row, dst, dst, t))
        a('v_lshrrev_b32 v%d, 2, v%d\nv_and_b32 v%d, 2, v%d\nv_or_b32 v%d, v%d, v%d' % (t, row, t, t, dst, dst, t))
    WA = T + 16
    RA = WA + 4
    a('v_and_b32 v2, 15, v1\nv_lshrrev_b32 v3, 4, v1')
    hrow(6, 2, 5)
    a('v_xor_b32 v6, v6, v3')
    a('v_lshlrev_b32 v2, 7, v2')
    a('s_lshl_b32 s61, s%d, 13\ns_add_u32 s61, s61, %d' % (c.s_wave, IMG))
    a('v_add_u32 v2, s61, v2')
    for u in range(4):
        a('v_xor_b32 v5, %d, v6\nv_lshl_add_u32 v%d, v5, 3, v2' % (4*u, WA+u))
    a('v_lshrrev_b32 v2, 2, v1\nv_and_b32 v3, 3, v1')
    hrow(6, 2, 5)
    a('v_xor_b32 v6, v6, v3')
    a('v_lshlrev_b32 v2, 7, v2')
    a('s_lshl_b32 s61, s%d, 13\ns_add_u32 s61, s61, %d' % (c.s_nh, IMG))
    a('v_add_u32 v2, s61, v2')
    a('s_lshl_b32 s61, s%d, 3' % c.s_rh)
    a('v_xor_b32 v6, s61, v6')
    for u in range(2):
        a('v_xor_b32 v5, %d, v6\nv_lshl_add_u32 v%d, v5, 3, v2' % (4*u, RA+u))
    def sink(i, sg, B):
        for ft in range(2): a('ds_write_b64 v%d, v[%d:%d] offset:%d' % (WA+2*sg+ft, B+2*ft, B+2*ft+1, i*2048))
    feat(a, QF, P, E, MX, MN, W, sL, sink)
    a('s_waitcnt lgkmcnt(0)')
    gemm.mark(a, c, 3)
    a('s_lshl_b32 s61, s%d, 2\ns_add_u32 s61, s61, %d\nv_mov_b32 v2, s61\nv_mov_b32 v3, 1\nds_write_b32 v2, v3\nv_xor_b32 v2, 8, v2' % (c.s_wave, FLG))
    a.label('qkv_spin')
    a('ds_read_b32 v3, v2\ns_waitcnt lgkmcnt(0)\nv_readfirstlane_b32 s61, v3\ns_cmp_eq_u32 s61, 0\ns_cbranch_scc1 qkv_spin')
    gemm.mark(a, c, 4)
    AF = 8
    VF = 40
    ONE = 72
    KV = ACC(2, 0)
    a('s_lshl_b32 s61, s%d, 13\ns_add_u32 s61, s61, %d' % (c.s_nh, VB))
    a('v_add_u32 v3, s61, v4')
    for gp in range(4):
        rhp, gam = gp // 2, gp % 2
        for ftl in range(2):
            for t in range(2):
                q = AF + (ftl*4+gp)*4 + 2*t
                a('ds_read_b64_tr_b16 v[%d:%d], v%d offset:%d' % (q, q+1, RA+ftl, rhp*16384 + (gam*32 + t*16)*128))
        for dt in range(2):
            q = VF + (dt*4+gp)*4
            a('ds_read_b128 v[%d:%d], v3 offset:%d' % (q, q+3, (gp*2+dt)*1024))
    for e in range(4): a('v_mov_b32 v%d, 0x3f803f80' % (ONE+e))
    for gp in range(4):
        a('s_waitcnt lgkmcnt(%d)' % min(12, 6*(3-gp)))
        for ftl in range(2):
            for t in range(3):
                d = KV + (ftl*3+t)*4; A_ = AF + (ftl*4+gp)*4
                B_ = VF + (t*4+gp)*4 if t < 2 else ONE
                cc = '0' if gp == 0 else 'v[%d:%d]' % (d, d+3)
                a('v_mfma_f32_16x16x32_bf16 v[%d:%d], v[%d:%d], v[%d:%d], %s' % (d, d+3, A_, A_+3, B_, B_+3, cc))
    a('s_lshl_b32 s61, s%d, 4\ns_add_u32 s61, s61, s%d' % (s_hd, c.s_mt))
    a('s_lshl_b32 s63, s61, 12\ns_lshl_b32 s64, s%d, 11\ns_add_u32 s63, s63, s64' % c.s_rh)
    a('s_lshl_b32 s61, s61, 8\ns_lshl_b32 s64, s%d, 7\ns_add_u32 s61, s61, s64' % c.s_rh)
    a('v_and_b32 v2, 15, v1\nv_cmp_eq_u32 vcc, 0, v2')
    for ftl in range(2):
        for e in range(4): a('v_cvt_pk_bf16_f32 v%d, v%d, v%d' % (AF+4*ftl+e, KV+ftl*12+2*e, KV+ftl*12+2*e+1))
        a('buffer_store_dwordx4 v[%d:%d], v4, s[24:27], s63 offen offset:%d' % (AF+4*ftl, AF+4*ftl+3, ftl*1024))
    a('s_and_saveexec_b64 s[64:65], vcc')
    for ftl in range(2):
        d = KV + (ftl*3+2)*4
        a('buffer_store_dwordx4 v[%d:%d], v1, s[28:31], s61 offen offset:%d' % (d, d+3, ftl*64))
    a('s_mov_b64 exec, s[64:65]')
    gemm_tail(a, c, n, 2)

def k_o(a):
    n = 'o_kernel'
    a.kernel_begin(n)
    a('s_cmp_ge_u32 s2, 256\ns_cbranch_scc1 o_end')
    a('s_load_dwordx2 s[6:7], s[0:1], %d\ns_load_dwordx2 s[4:5], s[0:1], %d' % (P_WS, P_W1))
    ts_start(a, 3)
    a('s_and_b32 s36, s2, 7\ns_lshl_b32 s36, s36, 2\ns_lshr_b32 s37, s2, 3\ns_and_b32 s37, s37, 3\ns_add_u32 s36, s36, s37\ns_lshr_b32 s37, s2, 5')
    a('v_lshrrev_b32 v2, 6, v0\nv_and_b32 v1, 63, v0\nv_readfirstlane_b32 s38, v2')
    a('v_lshlrev_b32 v3, 4, v1\nv_lshrrev_b32 v4, 4, v1\nv_lshlrev_b32 v4, 4, v4')
    a('s_waitcnt lgkmcnt(0)')
    srd(a, 8, 6, KVP, 0x200000); srd(a, 12, 6, ZP, 0x20000); srd(a, 16, 6, PHIQ, 0x800000); srd(a, 20, 6, OF, 0x400000)
    a('s_lshl_b32 s40, s36, 16\ns_lshl_b32 s41, s38, 10\ns_add_u32 s40, s40, s41')
    a('s_lshl_b32 s41, s36, 12\ns_lshl_b32 s42, s38, 6\ns_add_u32 s41, s41, s42')
    KB = 48
    RW = 80
    a('v_and_b32 v5, 15, v1\nv_lshl_add_u32 v4, v5, 8, v4')
    a('buffer_load_dwordx4 v[%d:%d], v4, s[12:15], s41 offen' % (KB+8, KB+11))
    a('s_lshl_b32 s45, s37, 1')
    for m in range(16):
        a('s_add_u32 s46, s45, %d\ns_and_b32 s46, s46, 15\ns_lshl_b32 s46, s46, 12\ns_add_u32 s46, s46, s40' % m)
        a('buffer_load_dwordx4 v[%d:%d], v3, s[8:11], s46 offen' % (RW+4*m, RW+4*m+3))
    a('s_lshl_b32 s42, s37, 2\ns_add_u32 s42, s42, s38\ns_lshl_b32 s42, s42, 2')
    a('s_lshl_b32 s43, s42, 16\ns_lshl_b32 s44, s36, 11\ns_add_u32 s43, s43, s44')
    PQ = 8
    for i in range(4):
        for sg in range(2):
            a('buffer_load_dwordx4 v[%d:%d], v3, s[16:19], s43 offen offset:%d' % (PQ+8*i+4*sg, PQ+8*i+4*sg+3, 1024*sg))
        a('s_add_u32 s43, s43, 65536')
    npf = 0
    a('s_waitcnt vmcnt(24)')
    dpp_sum(a, [KB+8+e for e in range(4)], DPP16)
    for m in range(16):
        a('s_waitcnt vmcnt(%d)' % (8 + 15 - m))
        if m == 0:
            for e in range(4): unpack(a, KB+2*e, KB+2*e+1, RW+e)
        else:
            for e in range(4): unpack(a, 64+2*e, 65+2*e, RW+4*m+e)
            for e in range(8): a('v_add_f32 v%d, v%d, v%d' % (KB+e, KB+e, 64+e))
    for t in range(3):
        for e in range(2): a('v_cvt_pk_bf16_f32 v%d, v%d, v%d' % (KB+12+2*t+e, KB+4*t+2*e, KB+4*t+2*e+1))
    a('s_lshr_b32 s40, s38, 1\ns_lshl_b32 s40, s40, 10\ns_and_b32 s41, s38, 1\ns_lshl_b32 s41, s41, 3\ns_add_u32 s40, s40, s41')
    a('v_add_u32 v5, s40, v3')
    for t in range(3): a('ds_write_b64 v5, v[%d:%d] offset:%d' % (KB+12+2*t, KB+13+2*t, 2048*t))
    a('s_waitcnt lgkmcnt(0)\ns_barrier')
    AF = 80
    for t in range(3):
        for gam in range(2): a('ds_read_b128 v[%d:%d], v3 offset:%d' % (AF+(t*2+gam)*4, AF+(t*2+gam)*4+3, (t*2+gam)*1024))
    a('s_waitcnt vmcnt(%d) lgkmcnt(0)' % npf)
    R = 112
    for gam in range(2):
        for i in range(4):
            for t in range(3):
                d = R + (i*3+t)*4; A_ = AF+(t*2+gam)*4; B_ = PQ+8*i+4*gam
                a('v_mfma_f32_16x16x32_bf16 v[%d:%d], v[%d:%d], v[%d:%d], %s' % (d, d+3, A_, A_+3, B_, B_+3, '0' if gam == 0 else 'v[%d:%d]' % (d, d+3)))
    a('s_lshl_b32 s43, s42, 15\ns_lshl_b32 s44, s36, 10\ns_add_u32 s43, s43, s44')
    dens = [R+(i*3+2)*4 for i in range(4)]
    if opt.mimic: rndn(a, dens, [48, 49])
    for d in dens: a('v_add_f32 v%d, 0x358637bd, v%d' % (d, d))
    if opt.mimic: rndn(a, dens, [48, 49])
    for d in dens: a('v_rcp_f32 v%d, v%d' % (d, d))
    for i in range(4):
        xs = list(range(R+i*12, R+i*12+8))
        if opt.mimic: rndn(a, xs, [48, 49, 50, 51])
        for x in xs: a('v_mul_f32 v%d, v%d, v%d' % (x, x, dens[i]))
        for e in range(4): a('v_cvt_pk_bf16_f32 v%d, v%d, v%d' % (56+4*i+e, xs[2*e], xs[2*e+1]))
        a('buffer_store_dwordx4 v[%d:%d], v3, s[20:23], s43 offen' % (56+4*i, 59+4*i))
        a('s_add_u32 s43, s43, 32768')
    if opt.ts:
        a('s_cmp_lg_u32 s38, 0\ns_cbranch_scc1 o_end')
        ts_end(a, 3, 'o_end')
    a.label('o_end')
    a('s_endpgm')
    a.kernel_end(n, 160, 100, 160, 256, 256, 6144)

def res_setup(c, xsrd, chunk, bias):
    XT = c.slot*c.S
    ACC = lambda j, i, r=0: c.v_acc + (i*4+j)*4 + r
    def tail(a, c, vm):
        V = c.p_vfree
        srd(a, 16, *xsrd)
        a('v_xor_b32 v%d, v%d, v%d\nv_lshlrev_b32 v%d, 4, v%d\nv_lshl_add_u32 v%d, v%d, 11, v%d' % (V, c.p_vrow, c.p_vch, V, V, V, c.p_vrow, V))
        a('s_sub_u32 s59, s%d, 4\ns_lshl_b32 s60, s%d, 2\ns_add_u32 s60, s60, s59\ns_lshl_b32 s60, s60, 16\ns_lshl_b32 s61, s%d, 7\ns_add_u32 s60, s60, s61' % (c.s_wave, c.s_mt, c.s_nt))
        a('s_lshl_b32 s59, s59, 12\ns_add_u32 s59, s59, %d' % XT)
        for i in range(4):
            a('s_add_u32 m0, s59, %d' % (1024*i))
            a('buffer_load_dwordx4 v%d, s[16:19], s60 offen lds' % V)
            a('s_add_u32 s60, s60, 16384')
        vm.issue('op', 4)
    def early(a, c, vm):
        V = c.p_vfree
        srd(a, 20, 6, MP2, 65536)
        a('v_lshrrev_b32 v%d, 4, v1\nv_lshlrev_b32 v%d, 14, v%d\nv_and_b32 v%d, 15, v1\nv_lshl_add_u32 v%d, v%d, 4, v%d' % (V+1, V+1, V+1, V+2, V+1, V+2, V+1))
        a('s_lshl_b32 s61, s%d, 8\ns_add_u32 s61, s61, %d\ns_mov_b32 m0, %d' % (c.s_nt, (chunk-2)*4096, XT))
        a('buffer_load_dwordx4 v%d, s[20:23], s61 offen lds' % (V+1))
        vm.issue(0)
        if bias:
            srd(a, 24, bias, 0, 2048)
            a('v_lshlrev_b32 v%d, 4, v1\ns_lshl_b32 s61, s%d, 7\ns_mov_b32 m0, %d' % (V+2, c.s_nt, XT+1024))
            a('buffer_load_dwordx4 v%d, s[24:27], s61 offen lds' % (V+2))
            vm.issue(0)
    def pre(a, c):
        XA = c.v_free + 16 + 64 + 8
        a('v_and_b32 v2, 7, v1\nv_lshrrev_b32 v3, 5, v1\nv_xor_b32 v2, v2, v3\nv_lshlrev_b32 v2, 4, v2\nv_bfe_u32 v3, v1, 4, 1\nv_lshl_add_u32 v2, v3, 3, v2')
        a('v_and_b32 v3, 15, v1\nv_lshl_add_u32 v2, v3, 7, v2\ns_lshl_b32 s61, s%d, 12\ns_add_u32 s61, s61, %d\nv_add_u32 v%d, s61, v2' % (c.s_wave, XT, XA))
        for j in range(1, 4): a('v_xor_b32 v%d, %d, v%d' % (XA+j, 32*j, XA))
        a('v_lshrrev_b32 v3, 4, v1\nv_lshlrev_b32 v2, 3, v3\nv_lshlrev_b32 v3, 4, v3\nv_add_u32 v2, %d, v2\nv_add_u32 v3, %d, v3' % (XT+1024, XT))
    def post_b0(a, c):
        B = c.v_free + 16 + 64
        if bias:
            for j in range(4): a('ds_read_b64 v[%d:%d], v2 offset:%d' % (B+2*j, B+2*j+1, 32*j))
    def post_b0b(a, c, nr):
        XR = c.v_free; GA = XR + 16; B = GA + 64
        if bias:
            a('s_waitcnt lgkmcnt(%d)' % min(15, nr))
            for j in range(4):
                for e in range(2): unpack(a, XR+4*j+2*e, XR+4*j+2*e+1, B+2*j+e)
        for p in range(4):
            for j in range(4): a('ds_read_b128 v[%d:%d], v3 offset:%d' % (GA+16*p+4*j, GA+16*p+4*j+3, 256*p + 64*j))
    def first_extra(c):
        GA = c.v_free + 16
        b = Asm()
        for e in range(0, 16, 2): b('v_pk_add_f32 v[%d:%d], v[%d:%d], v[%d:%d]\nv_pk_add_f32 v[%d:%d], v[%d:%d], v[%d:%d]' % (GA+e, GA+e+1, GA+e, GA+e+1, GA+16+e, GA+17+e, GA+32+e, GA+33+e, GA+32+e, GA+33+e, GA+48+e, GA+49+e))
        for e in range(0, 16, 2): b('v_pk_add_f32 v[%d:%d], v[%d:%d], v[%d:%d]' % (GA+e, GA+e+1, GA+e, GA+e+1, GA+32+e, GA+33+e))
        rndn(b, list(range(GA, GA+16)), list(range(GA+16, GA+24)))
        return [l.strip() for l in b.lines]
    c.early_issue, c.pre_hook, c.post_b0, c.post_b0b, c.first_extra = early, pre, post_b0, post_b0b, first_extra
    c.first_c = (lambda c, j: 'v[%d:%d]' % (c.v_free+4*j, c.v_free+4*j+3)) if bias else (lambda c, j: '0')
    def last_reads(c):
        XR = c.v_free; XA = XR + 16 + 64 + 8
        return ['ds_read_b64 v[%d:%d], v%d offset:%d' % (XR+8*i+2*j, XR+8*i+2*j+1, XA+j, 2048*i) for i in range(2) for j in range(4)]
    c.last_reads = last_reads
    c.pre_last_bar = lambda a, c, vm: vm.wait('op')
    return tail
def res_epi(a, c, sOut, bias=None, stats=None):
    XR = c.v_free; GA = XR + 16
    ACC = lambda j, i, r=0: c.v_acc + (i*4+j)*4 + r
    P2 = lambda x: 'v[%d:%d]' % (x, x+1)
    a('s_lshl_b32 s58, s%d, 2\ns_add_u32 s58, s58, s%d' % (c.s_mt, c.s_wave))
    a('s_lshl_b32 s60, s58, 16\ns_lshl_b32 s61, s%d, 7\ns_add_u32 s60, s60, s61' % c.s_nt)
    U = GA + 16; PK = U + 32
    a('s_waitcnt lgkmcnt(0)')
    a('v_and_b32 v2, 15, v1\nv_lshlrev_b32 v2, 11, v2\nv_bfe_u32 v3, v1, 4, 1\nv_lshl_add_u32 v2, v3, 5, v2\nv_lshrrev_b32 v3, 5, v1\nv_lshl_add_u32 v2, v3, 4, v2')
    a('s_add_u32 s61, s60, 32768')
    for i in range(2):
        for j in range(4):
            for e in range(2): unpack(a, U+16*i+4*j+2*e, U+16*i+4*j+2*e+1, XR+8*i+2*j+e)
        for j in range(4):
            for r in (0, 2): a('v_pk_fma_f32 %s, %s, %s, %s' % (P2(ACC(j,i,r)), P2(ACC(j,i,r)), P2(GA+4*j+r), P2(U+16*i+4*j+r)))
        if opt.outscale and bias is not None:
            import struct
            for j in range(4):
                for r in range(4): a('v_mul_f32 v%d, 0x%x, v%d' % (ACC(j,i,r), struct.unpack('<I', struct.pack('<f', opt.outscale))[0], ACC(j,i,r)))
        for j in range(4):
            for e in range(2): a('v_cvt_pk_bf16_f32 v%d, v%d, v%d' % (PK+8*i+2*j+e, ACC(j,i,2*e), ACC(j,i,2*e+1)))
        for jp in range(2):
            for e in range(2): a('v_permlane16_swap_b32 v%d, v%d' % (PK+8*i+4*jp+e, PK+8*i+4*jp+2+e))
        for jp in range(2):
            a('buffer_store_dwordx4 v[%d:%d], v2, s[%d:%d], s%d offen offset:%d' % (PK+8*i+4*jp, PK+8*i+4*jp+3, sOut, sOut+3, 60+i, 64*jp))
    gemm.mark(a, c, 5)
    if stats is not None:
        Q = 12
        for i in range(2):
            xs = [ACC(j,i,r) for j in range(4) for r in (0, 2)]
            S0, Q0 = 16+8*i, 20+8*i
            for k in range(2): a('v_pk_add_f32 %s, %s, %s' % (P2(S0+2*k), P2(xs[k]), P2(xs[2+k])))
            for k in range(2): a('v_pk_mul_f32 %s, %s, %s' % (P2(Q0+2*k), P2(xs[k]), P2(xs[k])))
            for m in (4, 6):
                for k in range(2): a('v_pk_add_f32 %s, %s, %s' % (P2(S0+2*k), P2(S0+2*k), P2(xs[m+k])))
            for m in (2, 4, 6):
                for k in range(2): a('v_pk_fma_f32 %s, %s, %s, %s' % (P2(Q0+2*k), P2(xs[m+k]), P2(xs[m+k]), P2(Q0+2*k)))
            a('v_pk_add_f32 %s, %s, %s\nv_pk_add_f32 %s, %s, %s' % (P2(S0), P2(S0), P2(S0+2), P2(Q0), P2(Q0), P2(Q0+2)))
            a('v_add_f32 v%d, v%d, v%d\nv_add_f32 v%d, v%d, v%d' % (Q+i, S0, S0+1, Q+2+i, Q0, Q0+1))
        for st in bfly(a, 'v_add_f32', [Q, Q+1, Q+2, Q+3])[:4]:
            for l in st: a(l)
        a('v_and_b32 v2, 15, v1\nv_lshrrev_b32 v3, 5, v1\nv_lshl_add_u32 v2, v3, 4, v2\nv_lshlrev_b32 v2, 3, v2\nv_bfe_u32 v3, v1, 4, 1\nv_lshl_add_u32 v2, v3, 2, v2')
        a('s_lshl_b32 s61, s58, 8\ns_lshl_b32 s62, s%d, 14\ns_add_u32 s61, s61, s62' % c.s_nt)
        a('buffer_store_dword v%d, v2, s[%d:%d], s61 offen sc1' % (Q, stats, stats+3))
def k_wo(a):
    n = 'wo_kernel'
    c = gemm.config('wo', 1024, 128, 1, False, 128, 3, 2048, 128, rows4=True, KS=2, rpm=opt.rpm)
    c.lds += 16384
    a.kernel_begin(n)
    gemm_head(a, c, 4, 4, 8, 128, [(4, P_WO), (6, P_WS), (32, P_X), (34, P_W1)], (1,1))
    psrds = [(8, 6, OF, 0x400000), (12, 4, 0, 1024*2048)]
    csrds = [(24, 6, X1, 0x400000), (28, 6, ST2, 0x40000)]
    rt = res_setup(c, (32, 0, 0x400000), 2, None)
    def tail_issue(a, c, vm):
        rt(a, c, vm)
        if opt.pf3:
            V = c.p_vfree + 4
            srd(a, 28, 34, 0, 1024*7168)
            a('v_lshrrev_b32 v%d, 4, v1\nv_mul_u32_u24 v%d, 7168, v%d\nv_and_b32 v%d, 15, v1\nv_lshl_add_u32 v%d, v%d, 7, v%d' % (V, V, V, V+1, V, V+1, V))
            a('v_cmp_lt_u32 vcc, 13, v%d\nv_mov_b32 v%d, 0x7fffffff\nv_cndmask_b32 v%d, v%d, v%d, vcc' % (V+1, V+1, V, V, V+1))
            a('s_lshr_b32 s61, s2, 3\ns_lshl_b32 s61, s61, 2\ns_add_u32 s61, s61, s%d\ns_sub_u32 s61, s61, 4\ns_mul_i32 s61, s61, %d' % (c.s_wave, 4*7168))
            a('s_bfe_u32 s62, s2, 0x20001\ns_mul_i32 s62, s62, 1792\ns_add_u32 s61, s61, s62')
            for q in range(opt.pf3):
                a('buffer_load_dword v%d, v%d, s[28:31], s61 offen\ns_add_u32 s61, s61, %d' % (V+2, V, 512*7168))
            vm.issue('pf', opt.pf3)
    c.tail_issue = tail_issue
    gemm_body(a, c, psrds, csrds)
    res_epi(a, c, 24, stats=28)
    gemm_tail(a, c, n, 4)

def k_w1(a):
    n = 'w1_kernel'
    c = gemm.config('w1', 1024, 128, 3, True, 64, 3, 7168, 128, natw=True)
    a.kernel_begin(n)
    gemm_head(a, c, 6, 8, 4, 448, [(4, P_W1), (6, P_WS), (32, P_B1), (34, P_W2)], (1,1))
    psrds = [(8, 6, H2F, 0x400000), (12, 4, 0, 1024*7168)]
    csrds = [(24, 6, HF, 2048*7168)]
    ACC = lambda j, i, r=0: (c.v_acc + (j*4+i)*4 + r) if j < 6 else (c.v_acc + 96 + ((j-6)*2+i)*4 + r)
    BT = c.lds
    c.lds += 1024
    def early_issue(a, c, vm):
        V = c.p_vfree
        srd(a, 16, 32, 0, 7168)
        a('v_lshlrev_b32 v%d, 4, v1\ns_mul_i32 s59, s%d, 448\ns_mov_b32 m0, %d' % (V, c.s_nt, BT))
        a('buffer_load_dwordx4 v%d, s[16:19], s59 offen lds' % V)
        vm.issue(0)
    c.early_issue = early_issue
    c.unroll = True
    if opt.pf4 == 2: c.iter_hook = smem_pf(c, [(34, 7168)], 1, 14)
    def tail_issue(a, c, vm):
        V = c.p_vfree
        srd(a, 28, 34, 0, 3584*2048)
        a('v_lshlrev_b32 v%d, 11, v%d\nv_lshl_add_u32 v%d, v%d, 7, v%d' % (V, c.p_vrow, V, c.p_vch, V))
        a('s_bfe_u32 s62, s2, 0x10002\ns_lshl_b32 s62, s62, 10')
        a('s_lshr_b32 s61, s2, 3\ns_lshl_b32 s63, s61, 2\ns_add_u32 s63, s63, s%d\ns_sub_u32 s63, s63, 4\ns_lshl_b32 s63, s63, 14\ns_add_u32 s63, s63, s62' % c.s_wave)
        a('buffer_load_dword v%d, v%d, s[28:31], s63 offen' % (V+1, V))
        vm.issue('pf')
        if opt.pf4 == 1:
            a('s_mul_i32 s61, s61, 20\ns_and_b32 s63, s2, 3\ns_mul_i32 s63, s63, 640\ns_add_u32 s61, s61, s63\ns_lshl_b32 s63, s%d, 3\ns_add_u32 s61, s61, s63\ns_add_u32 s61, s61, %d' % (c.s_wave, 1024-32))
            a('s_lshl_b32 s61, s61, 11\ns_add_u32 s61, s61, s62')
            a('buffer_load_dword v%d, v%d, s[28:31], s61 offen' % (V+2, V))
            vm.issue('pf')
    if opt.pf4 in (1, 3): c.tail_issue = tail_issue
    def pre(a, c):
        a('s_lshl_b32 s58, s%d, 6\ns_add_u32 s58, s58, s%d' % (c.s_nh, c.s_col0))
        a('s_mul_i32 s59, s%d, 448\ns_sub_u32 s59, %d, s59\ns_add_u32 s60, s58, s59\ns_add_u32 s59, s%d, s59' % (c.s_nt, BT, c.s_colh))
        a('v_lshrrev_b32 v3, 4, v1\nv_lshlrev_b32 v3, 3, v3\nv_add_u32 v2, s60, v3\nv_add_u32 v3, s59, v3')
    BF = 60
    def post_b0(a, c):
        B = c.v_acc
        for j in range(6): a('ds_read_b64 v[%d:%d], v2 offset:%d' % (B+2*j, B+2*j+1, (j//2)*128 + (j%2)*32))
        for u in range(2): a('ds_read_b64 v[%d:%d], v3 offset:%d' % (B+12+2*u, B+13+2*u, 32*u))
    def post_b0b(a, c, nr):
        a('s_waitcnt lgkmcnt(%d)' % min(15, nr))
        for j in range(8):
            for e in range(2): unpack(a, c.v_free+4*j+2*e, c.v_free+4*j+2*e+1, c.v_acc+2*j+e)
    c.pre_hook, c.post_b0, c.post_b0b = pre, post_b0, post_b0b
    c.first_c = lambda c, j: 'v[%d:%d]' % (c.v_free+4*j, c.v_free+4*j+3)
    gemm_body(a, c, psrds, csrds)
    a('v_lshlrev_b32 v4, 4, v1')
    a('s_lshl_b32 s60, s%d, 1\ns_add_u32 s60, s60, s%d\ns_mul_i32 s60, s60, %d' % (c.s_mt, c.s_rh, 4*112*1024))
    a('s_mul_i32 s59, s%d, %d' % (c.s_nh, 2*112*1024))
    a('s_lshl_b32 s61, s58, 4\ns_add_u32 s61, s61, s60')
    a('s_lshl_b32 s62, s%d, 4\ns_add_u32 s62, s62, s60\ns_add_u32 s62, s62, s59' % c.s_colh)
    a('s_add_u32 s61, s61, s59')
    PK = 56
    for i in range(4):
        nj = 8 if i < 2 else 6
        xs = [ACC(j, i, r) for j in range(nj) for r in range(4)]
        for x in xs: a('v_max_f32 v%d, 0, v%d' % (x, x))
        for x in xs[::2]: a('v_pk_mul_f32 v[%d:%d], v[%d:%d], v[%d:%d]' % (x, x+1, x, x+1, x, x+1))
        pk = PK + (i % 2)*16
        for k in range(2*nj): a('v_cvt_pk_bf16_f32 v%d, v%d, v%d' % (pk+k, xs[2*k], xs[2*k+1]))
        for p in range(3):
            if p < 2: a('buffer_store_dwordx4 v[%d:%d], v4, s[24:27], s61 offen offset:%d' % (pk+4*p, pk+4*p+3, 2048*p))
            else:
                a('s_add_u32 s63, s61, 4096')
                a('buffer_store_dwordx4 v[%d:%d], v4, s[24:27], s63 offen' % (pk+4*p, pk+4*p+3))
        if i < 2:
            a('buffer_store_dwordx4 v[%d:%d], v4, s[24:27], s62 offen' % (pk+12, pk+15))
            a('s_add_u32 s62, s62, %d' % (112*1024))
        a('s_add_u32 s61, s61, %d' % (112*1024))
        if i == 1: a('s_lshl_b32 s59, s59, 1\ns_sub_u32 s61, s61, s59')
    gemm_tail(a, c, n, 6)

def k_w2(a):
    n = 'w2_kernel'
    c = gemm.config('w2', 3584, 128, 1, False, 128, 3, 2048, 128, rows4=True, KS=2, rpm=opt.rpm)
    c.lds += 16384
    a.kernel_begin(n)
    gemm_head(a, c, 7, 4, 8, 128, [(4, P_W2), (6, P_WS), (32, P_B2), (34, P_OUT)], (1,1))
    psrds = [(8, 6, HF, 2048*7168), (12, 4, 0, 3584*2048)]
    csrds = [(28, 34, 0, 0x400000)]
    c.tail_issue = res_setup(c, (6, X1, 0x400000), 5, 32)
    gemm_body(a, c, psrds, csrds)
    res_epi(a, c, 28, bias=True)
    gemm_tail(a, c, n, 7)

def build(path, **kw):
    for k, v in kw.items(): setattr(opt, k, v)
    a = Asm()
    k_pre(a)
    k_ln(a, 'ln1_kernel', 1, True)
    k_qkv(a)
    k_o(a)
    k_wo(a)
    k_ln(a, 'ln2_kernel', 5, False)
    k_w1(a)
    k_w2(a)
    if opt.sflags:
        a.lines = [l + opt.sflags if ('buffer_store_dwordx' in l and 's[88:91]' not in l) else l for l in a.lines]
    open(path, 'w').write(a.text(verbose=kw.get('verbose', False)))

if __name__ == '__main__':
    kw = eval('dict(%s)' % (sys.argv[2] if len(sys.argv) > 2 else ''))
    build(sys.argv[1], **kw)
```

```python
from asmgen import Asm

class G:
    pass

def gemm_prologue(a, c):
    a('v_lshrrev_b32 v2, 6, v0')
    a('v_and_b32 v1, 63, v0')
    a('v_readfirstlane_b32 s%d, v2' % c.s_wave)

def panel_cols(a, c):
    pass

def stamp(a, c, k, bump=False):
    if not c.stamps: return
    a('s_memtime s[70:71]')
    a('s_mov_b32 s73, m0')
    a('s_mov_b32 m0, s72')
    a('s_waitcnt lgkmcnt(0)')
    a('v_writelane_b32 v%d, s70, m0' % (248+k))
    a('s_mov_b32 m0, s73')
    if bump: a('s_add_u32 s72, s72, 1')

def order_table(nst, G, mode):
    tabs = []
    for j in range(G):
        if mode == 'seq':
            o = list(range(nst))
        elif mode == 'lead':
            own = {j} | {t+G-1 for t in range(1, nst) if t % G == j and t+G-1 < nst}
            rest = [x for x in range(nst) if x not in own]
            o = []
            for t in range(nst):
                if t == 0: o.append(j)
                elif t % G == j and t+G-1 < nst: o.append(t+G-1)
                else: o.append(rest.pop(0))
        elif mode == 'lead0':
            sub = order_table(nst-1, G, 'lead')[j]
            o = [0] + [x+1 for x in sub]
        elif mode == 'win':
            o = [(t//G)*G + (t+j) % G for t in range(nst)]
        assert sorted(o) == list(range(nst)), o
        tabs.append(o)
    return tabs

def mark(a, c, i):
    if not c.stamps: return
    a('s_memtime s[70:71]')
    a('s_waitcnt lgkmcnt(0)')
    a('v_writelane_b32 v251, s70, %d' % (32+i))

def dump_stamps(a, c):
    a('v_writelane_b32 v251, s94, 63')
    a('s_add_u32 s84, s6, 0x3900000\ns_addc_u32 s85, s7, 0\ns_mov_b32 s86, 0x200000\ns_mov_b32 s87, 0x20000')
    a('s_lshl_b32 s73, s2, 3\ns_add_u32 s73, s73, s%d\ns_lshl_b32 s73, s73, 10' % c.s_wave)
    a('v_lshlrev_b32 v247, 2, v1')
    for k in range(4): a('buffer_store_dword v%d, v247, s[84:87], s73 offen offset:%d' % (248+k, 256*k))
    a('s_waitcnt vmcnt(0)')

def producer(a, c, lbl_after):
    BK, S = c.BK, c.S
    nsub = BK // 32
    KG = c.K // 32
    nst = c.K // BK
    sp = c.s_tmp
    tabs = order_table(nst, c.G, c.order)
    c.tabs = tabs
    a('s_sub_u32 s%d, s%d, 4' % (sp, c.s_wave))
    a('s_getpc_b64 s[%d:%d]' % (c.s_tab, c.s_tab+1))
    a.label(c.name + '_pc')
    a('s_add_u32 s%d, s%d, %s_tab-%s_pc' % (c.s_tab, c.s_tab, c.name, c.name))
    a('s_addc_u32 s%d, s%d, 0' % (c.s_tab+1, c.s_tab+1))
    vT = 2; vKX = 3; vKW = 4
    a('s_lshl_b32 s%d, s%d, 6' % (sp+1, c.s_rot))
    a('v_add_u32 v%d, s%d, v1' % (vT, sp+1))
    a('global_load_ubyte v%d, v%d, s[%d:%d]' % (vKX, vT, c.s_tab, c.s_tab+1))
    v = 5
    groups = []
    mbw = c.BM // 16 // 4
    a('s_mul_i32 s%d, s%d, %d' % (sp+1, c.s_mt, c.BM // 16))
    a('s_mul_i32 s%d, s%d, %d' % (sp+2, sp, mbw))
    a('s_add_u32 s%d, s%d, s%d' % (sp+1, sp+1, sp+2))
    a('s_mul_i32 s%d, s%d, %d' % (sp+1, sp+1, KG*1024))
    a('v_lshl_add_u32 v%d, v1, 4, s%d' % (v, sp+1)); vx0 = v; v += 1
    xl = []
    for i in range(mbw):
        for kg in range(nsub): xl.append((i, kg))
    a('s_mul_i32 s%d, s%d, %d' % (c.s_px, sp, mbw*nsub*1024))
    vregs = {}
    for b in range(0, len(xl), 4):
        ins = []
        for q, (i, kg) in enumerate(xl[b:b+4]):
            const = i*KG*1024 + kg*1024 - q*1024
            assert const >= 0
            if const not in vregs:
                if const == 0: vregs[const] = vx0
                else:
                    a('v_add_u32 v%d, %d, v%d' % (v, const, vx0)); vregs[const] = v; v += 1
            ins.append((vregs[const], q*1024))
        groups.append((c.sX, c.s_kx, c.s_px, b*1024, ins))
    rpw = BK // 4; ipw = rpw // 8
    vrow = v; vt = v+1; vw0 = v+2; vch = v+3; v += 4
    c.p_vrow, c.p_vch = vrow, vch
    a('v_lshrrev_b32 v%d, 3, v1' % vrow)
    a('v_and_b32 v%d, 7, v1' % vch)
    a('v_and_b32 v%d, %d, v%d' % (vt, 2 if c.natw else 6, vrow))
    a('v_xor_b32 v%d, v%d, v%d' % (vw0, vch, vt))
    a('v_mul_u32_u24 v%d, %d, v%d' % (vt, c.ldw, vrow))
    a('s_mul_i32 s%d, s%d, %d' % (sp+1, sp, rpw*c.ldw))
    a('s_add_u32 s%d, s%d, s%d' % (sp+2, sp+1, c.s_col0))
    a('v_add_u32 v%d, s%d, v%d' % (vt, sp+2, vt))
    vw1 = vw0
    if c.natw:
        vw1 = v; v += 1
        a('v_xor_b32 v%d, 4, v%d' % (vw1, vw0))
        a('v_lshl_add_u32 v%d, v%d, 4, v%d' % (vw1, vw1, vt))
    a('v_lshl_add_u32 v%d, v%d, 4, v%d' % (vw0, vw0, vt))
    a('s_mul_i32 s%d, s%d, %d' % (c.s_pw, sp, ipw*1024))
    a('s_add_u32 s%d, s%d, %d' % (c.s_pw, c.s_pw, c.xbytes))
    for q in range(c.nfull):
        ins = []
        for h in range(ipw):
            const = q*c.panel_stride + h*8*c.ldw - h*1024
            if const == 0: ins.append((vw0, 0))
            else:
                a('v_add_u32 v%d, %d, v%d' % (v, const, vw1 if h % 2 else vw0)); ins.append((v, h*1024)); v += 1
        groups.append((c.sW, c.s_kw, c.s_pw, q*BK*128, ins))
    if c.half:
        nh = BK // 64
        vh0 = v; vr2 = v+1; v += 2
        a('v_lshrrev_b32 v%d, 2, v1' % vr2)
        a('v_lshrrev_b32 v%d, %d, v1' % (vt, 4 if c.natw else 3))
        a('v_and_b32 v%d, 2, v%d' % (vt, vt))
        a('v_and_b32 v%d, 3, v1' % vh0)
        a('v_xor_b32 v%d, v%d, v%d' % (vh0, vh0, vt))
        a('v_mul_u32_u24 v%d, %d, v%d' % (vr2, c.ldw, vr2))
        a('v_lshl_add_u32 v%d, v%d, 4, v%d' % (vh0, vh0, vr2))
        a('s_add_u32 s%d, s%d, s%d' % (sp+2, sp+1, c.s_colh))
        a('v_add_u32 v%d, s%d, v%d' % (vh0, sp+2, vh0))
        ins = [(vh0, 0)]
        for h in range(1, nh):
            a('v_add_u32 v%d, %d, v%d' % (v, h*16*c.ldw - h*1024, vh0)); ins.append((v, h*1024)); v += 1
        a('s_mul_i32 s%d, s%d, %d' % (c.s_ph, sp, nh*1024))
        a('s_add_u32 s%d, s%d, %d' % (c.s_ph, c.s_ph, c.xbytes + c.nfull*BK*128))
        groups.append((c.sW, c.s_kw, c.s_ph, 0, ins))
    n = sum(len(g[4]) for g in groups)
    c.n_dma = n
    if c.order in ('seq', 'lead0'):
        a('s_mov_b32 s%d, 0\ns_mov_b32 s%d, 0' % (c.s_kx, c.s_kw))
    else:
        a('s_mul_i32 s%d, s%d, %d' % (c.s_kx, c.s_rot, nsub*1024))
        a('s_mul_i32 s%d, s%d, %d' % (c.s_kw, c.s_rot, BK*c.ldw))
    s_t = c.s_rh
    a('s_mov_b32 s%d, 1' % s_t)
    a('s_waitcnt lgkmcnt(0)')
    c.srd_hook(a)
    vm = VM(a)
    vm.ops = list(c.vm_init)
    c.vm = vm
    nxg = sum(1 for g in groups if g[0] == c.sX)
    def issue(st, slot_const=None, fetch_next=True, part=None):
        gs = {None: groups, 0: groups[:c.psplit], 1: groups[c.psplit:], 'w': groups[nxg:], 'x': groups[:nxg], 'xb': groups[c.psplit:nxg]}[part]
        for (srd, so, base, lc, ins) in gs:
            if slot_const is None:
                a('s_add_u32 s%d, s%d, s%d' % (sp, base, c.s_slot))
                if lc: a('s_add_u32 m0, s%d, %d' % (sp, lc))
                else: a('s_mov_b32 m0, s%d' % sp)
            else:
                a('s_add_u32 m0, s%d, %d' % (base, lc + slot_const))
            for (vr, io) in ins:
                if not c.no_dma:
                    a('buffer_load_dwordx4 v%d, s[%d:%d], s%d offen%s%s lds' % (vr, srd, srd+3, so, ' offset:%d' % io if io else '', c.xflags if srd == c.sX else c.dma_flags))
                vm.issue(st)
        if part in (0, 'w', 'x'): return
        if fetch_next:
            a('v_readlane_b32 s%d, v%d, s%d' % (c.s_kx, vKX, s_t))
            a('v_readlane_b32 s%d, v%d, s%d' % (c.s_kw, vKW, s_t))
            a('s_add_u32 s%d, s%d, 1' % (s_t, s_t))
        if slot_const is None:
            a('s_add_u32 s%d, s%d, %d' % (c.s_slot, c.s_slot, c.slot))
            a('s_cmp_ge_u32 s%d, %d' % (c.s_slot, c.slot*S))
            a('s_cselect_b32 s%d, 0, s%d' % (c.s_slot, c.s_slot))
    c.p_vfree = v
    if c.stamps: a('s_mov_b32 s72, 0')
    stamp(a, c, 3)
    vm.issue('tab')
    SL = lambda st: ((st + c.slot0) % S) * c.slot
    L = c.lead
    def tabmul():
        vm.wait('tab')
        a('v_mul_u32_u24 v%d, %d, v%d' % (vKW, BK*c.ldw, vKX))
        a('v_mul_u32_u24 v%d, %d, v%d' % (vKX, nsub*1024, vKX))
        a('v_readlane_b32 s%d, v%d, 1' % (c.s_kw, vKW))
        a('s_mov_b32 s%d, 2' % s_t)
    if c.boundary is None:
        issue(0, SL(0), False)
        if c.early_issue: c.early_issue(a, c, vm)
        tabmul()
        a('v_readlane_b32 s%d, v%d, 1' % (c.s_kx, vKX))
        issue(1, SL(1), part=0)
    else:
        issue(0, SL(0), part='w')
        tabmul()
        issue(1, SL(1), part='w')
        c.boundary(a, c, vm)
        issue(0, SL(0), part='x')
        if c.early_issue: c.early_issue(a, c, vm)
        a('v_readlane_b32 s%d, v%d, 1' % (c.s_kx, vKX))
        issue(1, SL(1), part=0)
    stamp(a, c, 0)
    vm.wait(0)
    stamp(a, c, 1)
    a('s_barrier')
    stamp(a, c, 2, True)
    issue(1, SL(1), part=1 if c.boundary is None else 'xb')
    if c.loop_init: c.loop_init(a, c)
    for st in range(2, L+1):
        if c.loop_extra: c.loop_extra(a, c, vm)
        issue(st, SL(st))
    a('s_mov_b32 s%d, %d' % (c.s_slot, SL(L+1)))
    nsteady = nst - 2 - L
    def it(k, const=False):
        stamp(a, c, 0)
        vm.wait(k)
        if k == nst-1 and c.pre_last_bar: c.pre_last_bar(a, c, vm)
        if k == 1 and c.pre_b1: c.pre_b1(a, c, vm)
        stamp(a, c, 1)
        a('s_barrier')
        stamp(a, c, 2, True)
        if k + L < nst:
            issue(k+L, SL(k+L) if const else None, fetch_next=(k+L+1 < nst))
        if const and c.iter_hook: c.iter_hook(a, c, vm, k)
        if k + L == nst - 1 + c.tail_delay and c.tail_issue: c.tail_issue(a, c, vm)
    if c.unroll:
        for k in range(1, nst): it(k, True)
    else:
        k0 = 1
        if c.peel1: it(1); k0 = 2
        a('s_mov_b32 s%d, %d' % (c.s_cnt, nsteady - (k0-1)))
        a.label(c.name + '_ploop')
        it(k0)
        body = vm.log[-1]
        a('s_sub_u32 s%d, s%d, 1' % (c.s_cnt, c.s_cnt))
        a('s_cmp_lg_u32 s%d, 0' % c.s_cnt)
        a('s_cbranch_scc1 %s_ploop' % c.name)
        keep = a.lines
        for k in range(k0+1, nsteady+1):
            a.lines = []; it(k); assert vm.log[-1] == body
        a.lines = keep
        for k in range(nsteady+1, nst): it(k)
    mark(a, c, 0)
    if c.ptail: c.ptail(a, c, vm)
    if c.stamps and c.gen_dump:
        a('s_mov_b64 exec, -1')
        mark(a, c, 8)
        a('s_waitcnt vmcnt(0)')
        mark(a, c, 9)
        dump_stamps(a, c)
    if lbl_after: a('s_branch %s' % lbl_after)

class VM:
    def __init__(self, a): self.a = a; self.ops = []; self.log = []; self.done = -1
    def issue(self, tag, n=1): self.ops += [tag]*n
    def count(self, tag):
        idx = max(i for i, t in enumerate(self.ops) if t == tag)
        return len(self.ops) - 1 - idx
    def wait(self, tag, extra=''):
        n = self.count(tag)
        idx = len(self.ops) - 1 - n
        if idx <= self.done:
            self.log.append(None)
            if extra: self.a('s_waitcnt' + extra)
            return
        assert n <= 63
        self.done = idx
        self.log.append(n)
        self.a('s_waitcnt vmcnt(%d)%s' % (n, extra))

def xproducer(a, c, lbl_after):
    BK, S = c.BK, c.S
    assert BK == 64 and S == 3
    nst = c.K // BK
    D = 2
    sp = c.s_tmp
    tabs = order_table(nst, c.G, c.order)
    pk = [sum(x << (4*i) for i, x in enumerate(o)) for o in tabs]
    s_ow, s_ox, s_kt = c.s_tab, c.s_tab+2, c.s_nh
    a('s_sub_u32 s%d, s%d, 4' % (sp, c.s_wave))
    a('s_mov_b32 s%d, 0x%x\ns_mov_b32 s%d, 0x%x' % (s_ow, pk[0] & 0xffffffff, s_ow+1, pk[0] >> 32))
    for j in range(1, c.G):
        a('s_cmp_eq_u32 s%d, %d' % (c.s_rot, j))
        a('s_cselect_b32 s%d, 0x%x, s%d\ns_cselect_b32 s%d, 0x%x, s%d' % (s_ow, pk[j] & 0xffffffff, s_ow, s_ow+1, pk[j] >> 32, s_ow+1))
    a('s_mov_b64 s[%d:%d], s[%d:%d]' % (s_ox, s_ox+1, s_ow, s_ow+1))
    v = 2
    vrow, vt, vch = v, v+1, v+2; v += 3
    vXg = v; v += 4
    vXw = v; v += 2
    vTab, vTa = v, v+1; v += 2
    a('v_lshrrev_b32 v%d, 3, v1\nv_and_b32 v%d, 7, v1' % (vrow, vch))
    a('s_lshl_b32 s%d, s%d, 2\ns_add_u32 s%d, s%d, s%d' % (sp+1, c.s_mt, sp+1, sp+1, sp))
    c.s_rb = sp+3
    a('s_mov_b32 s%d, s%d' % (c.s_rb, sp+1))
    a('s_lshl_b32 s%d, s%d, 16' % (sp+1, sp+1))
    a('v_lshlrev_b32 v%d, 11, v%d' % (vt, vrow))
    a('v_lshl_add_u32 v%d, v%d, 4, v%d' % (vt, vch, vt))
    a('v_add_u32 v%d, s%d, v%d' % (vXg, sp+1, vt))
    for i in range(1, 4): a('v_add_u32 v%d, %d, v%d' % (vXg+i, 16384*i, vXg))
    vw0, vw1 = v, v+1; v += 2
    a('v_bfe_u32 v%d, v1, 4, 1\nv_lshlrev_b32 v%d, 1, v%d\nv_xor_b32 v%d, v%d, v%d' % (vt, vt, vt, vt, vt, vch))
    a('v_mul_u32_u24 v%d, %d, v%d' % (vw1, c.ldw, vrow))
    a('s_mul_i32 s%d, s%d, %d' % (sp+1, sp, 16*c.ldw))
    a('s_add_u32 s%d, s%d, s%d' % (sp+2, sp+1, c.s_col0))
    a('v_add_u32 v%d, s%d, v%d' % (vw1, sp+2, vw1))
    a('v_lshl_add_u32 v%d, v%d, 4, v%d' % (vw0, vt, vw1))
    a('v_xor_b32 v%d, 4, v%d' % (vt, vt))
    a('v_lshl_add_u32 v%d, v%d, 4, v%d' % (vw1, vt, vw1))
    a('v_add_u32 v%d, %d, v%d' % (vw1, 8*c.ldw - 1024, vw1))
    a('s_lshl_b32 s%d, s%d, 11\ns_add_u32 s%d, s%d, %d' % (c.s_pw, sp, c.s_pw, c.s_pw, c.xbytes))
    groups = [(c.s_pw, 0, [(vw0, 0), (vw1, 1024)])]
    for q in range(1, c.nfull):
        a('v_add_u32 v%d, %d, v%d\nv_add_u32 v%d, %d, v%d' % (v, q*c.panel_stride, vw0, v+1, q*c.panel_stride, vw1))
        groups.append((c.s_pw, q*8192, [(v, 0), (v+1, 1024)])); v += 2
    if c.half:
        vh0 = v; v += 1
        a('v_lshrrev_b32 v%d, 2, v1' % vh0)
        a('v_mul_u32_u24 v%d, %d, v%d' % (vh0, c.ldw, vh0))
        a('v_lshrrev_b32 v%d, 4, v1\nv_and_b32 v%d, 2, v%d' % (vt, vt, vt))
        a('v_and_b32 v%d, 3, v1\nv_xor_b32 v%d, v%d, v%d' % (vTa, vt, vt, vTa))
        a('v_lshl_add_u32 v%d, v%d, 4, v%d' % (vh0, vt, vh0))
        a('s_add_u32 s%d, s%d, s%d' % (sp+2, sp+1, c.s_colh))
        a('v_add_u32 v%d, s%d, v%d' % (vh0, sp+2, vh0))
        a('s_lshl_b32 s%d, s%d, 10\ns_add_u32 s%d, s%d, %d' % (c.s_ph, sp, c.s_ph, c.s_ph, c.xbytes + c.nfull*8192))
        groups.append((c.s_ph, 0, [(vh0, 0)]))
    nW = sum(len(g[2]) for g in groups)
    a('v_lshrrev_b32 v%d, 4, v1\nv_xor_b32 v%d, v%d, v%d' % (vt, vt, vt, vch))
    a('v_lshlrev_b32 v%d, 4, v%d' % (vt, vt))
    a('v_lshl_add_u32 v%d, v%d, 7, v%d' % (vt, vrow, vt))
    a('s_lshl_b32 s%d, s%d, 12' % (sp+1, sp))
    a('v_add_u32 v%d, s%d, v%d\nv_xor_b32 v%d, 64, v%d' % (vXw, sp+1, vt, vXw+1, vXw))
    a('v_lshlrev_b32 v%d, 6, v%d\nv_add_u32 v%d, %d, v%d' % (vTab, vch, vTab, c.tab_base, vTab))
    v = (v + 3) // 4 * 4
    RAW = v; v += 16*4
    OUT = v; v += 16
    AS = v; v += 16
    TMP = v; v += 8
    RC = v; v += 12
    c.p_vfree = v; c.p_RC = RC; c.p_vrow = vrow; c.p_vch = vch
    vm = VM(a)
    def next_w():
        a('s_and_b32 s%d, s%d, 15' % (s_kt, s_ow))
        a('s_lshr_b64 s[%d:%d], s[%d:%d], 4' % (s_ow, s_ow+1, s_ow, s_ow+1))
        a('s_mul_i32 s%d, s%d, %d' % (c.s_kw, s_kt, BK*c.ldw))
        a('s_lshl_b32 s%d, s%d, 9' % (s_kt, s_kt))
    def nextx():
        a('s_and_b32 s%d, s%d, 15' % (c.s_kx, s_ox))
        a('s_lshr_b64 s[%d:%d], s[%d:%d], 4' % (s_ox, s_ox+1, s_ox, s_ox+1))
        a('s_lshl_b32 s%d, s%d, 7' % (c.s_kx, c.s_kx))
    def loadx1(st, q, i):
        a('buffer_load_dwordx4 v[%d:%d], v%d, s[%d:%d], s%d offen' % (RAW+16*q+4*i, RAW+16*q+4*i+3, vXg+i, c.sX, c.sX+3, c.s_kx))
        vm.issue(('x', st))
    def loadx(st, q):
        nextx()
        for i in range(4): loadx1(st, q, i)
    def dmaw_list(st, slot_const):
        out = []
        for (base, lc, ins) in groups:
            for n_, (vr, io) in enumerate(ins):
                def f(base=base, lc=lc, vr=vr, io=io, first=(n_ == 0)):
                    if first:
                        if slot_const is None:
                            a('s_add_u32 s%d, s%d, s%d' % (sp, base, c.s_slot))
                            if lc: a('s_add_u32 m0, s%d, %d' % (sp, lc))
                            else: a('s_mov_b32 m0, s%d' % sp)
                        else: a('s_add_u32 m0, s%d, %d' % (base, lc + slot_const))
                    a('buffer_load_dwordx4 v%d, s[%d:%d], s%d offen%s lds' % (vr, c.sW, c.sW+3, c.s_kw, ' offset:%d' % io if io else ''))
                    vm.issue(('w', st))
                out.append(f)
        return out
    def dmaw(st, slot_const):
        for f in dmaw_list(st, slot_const): f()
    def readas(skt):
        a('v_add_u32 v%d, s%d, v%d' % (vTa, skt, vTab))
        for e in range(4): a('ds_read_b128 v[%d:%d], v%d offset:%d' % (AS+4*e, AS+4*e+3, vTa, 16*e))
    dot = c.xf.startswith('dot')
    def xform(q, slot_off, side=(), after_unpack=None):
        side = list(side)
        def pop():
            if side: side.pop(0)()
        for i in range(4):
            r = RAW + 16*q + 4*i
            if dot:
                for e in range(4):
                    a('v_dot2_f32_bf16 v%d, v%d, v%d, v%d' % (TMP+2*e, r+e, RC+8+i, RC+2*i+1))
                    a('v_dot2_f32_bf16 v%d, v%d, v%d, v%d' % (TMP+2*e+1, r+e, RC+2*i, RC+2*i+1))
                if after_unpack: after_unpack(i)
            else:
                for e in range(4):
                    a('v_lshlrev_b32 v%d, 16, v%d\nv_and_b32 v%d, 0xffff0000, v%d' % (TMP+2*e, r+e, TMP+2*e+1, r+e))
                if after_unpack: after_unpack(i)
                if c.xf == 'pk5':
                    for e in range(4): a('v_pk_fma_f32 v[%d:%d], v[%d:%d], v[%d:%d], v[%d:%d] op_sel:[0,0,1] op_sel_hi:[1,0,1]' % (TMP+2*e, TMP+2*e+1, TMP+2*e, TMP+2*e+1, RC+2*i, RC+2*i+1, RC+2*i, RC+2*i+1))
                else:
                    for e in range(8): a('v_fma_f32 v%d, v%d, v%d, v%d' % (TMP+e, TMP+e, RC+2*i, RC+2*i+1))
            pop()
            if i == 0: a('s_waitcnt lgkmcnt(0)')
            if c.xf in ('pk5', 'dot4'):
                for e in range(4): a('v_pk_fma_f32 v[%d:%d], v[%d:%d], v[%d:%d], v[%d:%d]' % (TMP+2*e, TMP+2*e+1, TMP+2*e, TMP+2*e+1, AS+2*e, AS+2*e+1, AS+8+2*e, AS+9+2*e))
            else:
                for e in range(8): a('v_fma_f32 v%d, v%d, v%d, v%d' % (TMP+e, TMP+e, AS+e, AS+8+e))
            if i < 3: pop()
            for e in range(4): a('v_cvt_pk_bf16_f32 v%d, v%d, v%d' % (OUT+4*i+e, TMP+2*e, TMP+2*e+1))
            a('ds_write_b128 v%d, v[%d:%d] offset:%d' % (vXw + i % 2, OUT+4*i, OUT+4*i+3, slot_off + i*1024))
        while side: pop()
    s_kt0, s_kt1 = c.s_px, c.s_cnt
    a('s_waitcnt lgkmcnt(0)')
    c.srd_hook(a)
    loadx(0, 2)
    next_w(); a('s_mov_b32 s%d, s%d' % (s_kt0, s_kt))
    dmaw(0, 0)
    c.pstats_issue(a, c, vm)
    loadx(1, 3); loadx(2, 0)
    next_w(); a('s_mov_b32 s%d, s%d' % (s_kt1, s_kt))
    dmaw(1, c.slot)
    loadx(3, 1)
    c.pstats_finish(a, c, vm)
    if dot:
        for i in range(4): a('v_cvt_pk_bf16_f32 v%d, v%d, v%d' % (RC+2*i, RC+2*i, RC+2*i))
        for i in range(4): a('v_and_b32 v%d, 0xffff, v%d\nv_and_b32 v%d, 0xffff0000, v%d' % (RC+8+i, RC+2*i, RC+2*i, RC+2*i))
    for i in range(4): a('v_mul_f32 v%d, -v%d, v%d' % (RC+2*i+1, RC+2*i+1, RC+2*i))
    if c.pprio: a('s_setprio %d' % c.pprio)
    if c.stamps: a('s_mov_b32 s72, 0')
    stamp(a, c, 0)
    a('s_barrier')
    stamp(a, c, 3)
    readas(s_kt0)
    vm.wait(('x', 0))
    xform(2, 0)
    a('s_waitcnt lgkmcnt(0)')
    vm.wait(('w', 0))
    stamp(a, c, 1)
    a('s_barrier')
    stamp(a, c, 2, True)
    readas(s_kt1)
    vm.wait(('x', 1))
    assert c.slot + 4096 <= 65536
    xform(3, c.slot)
    a('s_mov_b32 s%d, %d' % (c.s_slot, 2*c.slot))
    a('v_add_u32 v%d, %d, v%d\nv_add_u32 v%d, %d, v%d' % (vXw, 2*c.slot, vXw, vXw+1, 2*c.slot, vXw+1))
    a('s_mov_b32 s%d, %d' % (sp+1, c.slot))
    def iteration(k, first=False):
        if k + 2 < nst:
            next_w()
            readas(s_kt)
            dl = dmaw_list(k+2, None)
            dl.pop(0)()
            more = k + 2 + D < nst
            if more:
                nextx()
                if c.loop_extra: dl.append(lambda: c.loop_extra(a, c, vm))
            vm.wait(('x', k+2))
            stamp(a, c, 0)
            xform(k % 2, 0, dl, (lambda i: loadx1(k+2+D, k % 2, i)) if more else None)
            stamp(a, c, 3)
            if k + 3 == nst: c.tail_issue(a, c, vm)
            a('s_add_u32 s%d, s%d, s%d' % (c.s_slot, c.s_slot, sp+1))
            a('s_cmp_ge_u32 s%d, %d' % (c.s_slot, c.slot*S))
            a('s_cselect_b32 s%d, 0, s%d' % (c.s_slot, c.s_slot))
            a('s_cselect_b32 s%d, %d, s%d' % (sp, -2*c.slot, sp+1))
            a('v_add_u32 v%d, s%d, v%d\nv_add_u32 v%d, s%d, v%d' % (vXw, sp, vXw, vXw+1, sp, vXw+1))
        vm.wait(('w', k+1), ' lgkmcnt(0)')
        stamp(a, c, 1)
        a('s_barrier')
        stamp(a, c, 2, True)
    nsteady = nst - 2 - D
    assert nsteady % 2 == 0
    if c.loop_init: c.loop_init(a, c)
    a('s_waitcnt lgkmcnt(0)')
    iteration(0); iteration(1)
    a('s_mov_b32 s%d, %d' % (c.s_cnt, nsteady // 2 - 1))
    a.label(c.name + '_ploop')
    n0 = len(vm.log)
    iteration(2); iteration(3)
    body = vm.log[n0:]
    a('s_sub_u32 s%d, s%d, 1' % (c.s_cnt, c.s_cnt))
    a('s_cmp_lg_u32 s%d, 0' % c.s_cnt)
    a('s_cbranch_scc1 %s_ploop' % c.name)
    keep = a.lines;
    for k in range(4, nsteady, 2):
        a.lines = []; n0 = len(vm.log)
        iteration(k); iteration(k+1)
        assert vm.log[n0:] == body, (vm.log[n0:], body)
    a.lines = keep
    for k in range(nsteady, nst-1): iteration(k)
    if c.stamps: dump_stamps(a, c)
    c.ptail(a, c, vm)
    a('s_branch %s' % lbl_after)

def table(a, c):
    a.lines.append('.p2align 6')
    a.label(c.name + '_tab')
    for o in c.tabs:
        a.lines.append('.byte ' + ','.join(str(x) for x in (o + [0]*64)[:64]))
    a.lines.append('.p2align 2')

def consumer(a, c):
    BK, S = c.BK, c.S
    nsub = BK // 32
    nst = c.K // BK
    r4 = c.rows4
    TMb = c.BM // (4 if r4 else 2) // 16
    sp = c.s_tmp
    ks = c.ksplit
    va = c.v_addr
    vX, vX2, vW0, vW1, vW2, vW3, vX3, vX4 = [va+i for i in range(8)]
    t0, t1 = c.v_tmp, c.v_tmp+1
    nat = c.xform
    natw = c.xform or c.natw
    rotx = c.half or ks
    a('s_lshr_b32 s%d, s%d, 1' % (c.s_rh, c.s_wave))
    a('s_and_b32 s%d, s%d, 1' % (c.s_nh, c.s_wave))
    a('s_mul_i32 s%d, s%d, %d' % (sp, c.s_wave if r4 else c.s_rh, TMb*nsub*1024))
    if ks:
        a('s_lshl_b32 s%d, s%d, 10\ns_add_u32 s%d, s%d, s%d' % (sp+1, c.s_nh, sp, sp, sp+1))
    if nat:
        a('v_bfe_u32 v%d, v1, 1, 3\nv_lshrrev_b32 v%d, 4, v1\nv_xor_b32 v%d, v%d, v%d' % (t0, t1, t0, t0, t1))
        a('v_and_b32 v%d, 15, v1\nv_lshlrev_b32 v%d, 7, v%d' % (t1, t1, t1))
        a('v_lshl_add_u32 v%d, v%d, 4, v%d\nv_add_u32 v%d, s%d, v%d' % (vX, t0, t1, vX, sp, vX))
    else:
        a('v_lshl_add_u32 v%d, v1, 4, s%d' % (vX, sp))
    addr = [vX, vW0, vW1]
    if rotx:
        a('s_mul_i32 s%d, s%d, %d' % (sp, c.s_nh, 2*nsub*1024))
        a('v_subrev_u32 v%d, s%d, v%d' % (vX2, sp, vX))
        a('v_add_u32 v%d, s%d, v%d' % (vX, sp, vX))
        addr.append(vX2)
    if nat:
        a('v_xor_b32 v%d, 64, v%d' % (vX3, vX)); addr.append(vX3)
        if rotx: a('v_xor_b32 v%d, 64, v%d' % (vX4, vX2)); addr.append(vX4)
    if natw:
        a('v_bfe_u32 v%d, v1, 2, 2\nv_lshrrev_b32 v%d, 4, v1\nv_lshl_add_u32 v%d, v%d, 3, v%d' % (t0, t1, t0, t1, t0))
    else:
        a('v_lshrrev_b32 v%d, 2, v1' % t0)
    a('v_bfe_u32 v%d, v1, 3, 2' % t1)
    if ks or r4: a('v_lshlrev_b32 v%d, 5, v%d' % (vW0, t1))
    else:
        a('s_lshl_b32 s%d, s%d, 1' % (sp, c.s_nh))
        a('v_xor_b32 v%d, s%d, v%d' % (vW0, sp, t1))
        a('v_lshlrev_b32 v%d, 5, v%d' % (vW0, vW0))
    a('v_lshl_add_u32 v%d, v%d, 7, v%d' % (vW0, t0, vW0))
    a('v_and_b32 v%d, 3, v1' % t1)
    a('v_lshlrev_b32 v%d, 3, v%d' % (t1, t1))
    if ks:
        a('s_lshl_b32 s%d, s%d, 12\ns_add_u32 s%d, s%d, %d' % (sp, c.s_nh, sp, sp, c.xbytes))
        a('v_add3_u32 v%d, v%d, v%d, s%d' % (vW0, vW0, t1, sp))
    else:
        a('v_add_u32 v%d, %d, v%d' % (t1, c.xbytes, t1))
        a('v_add_u32 v%d, v%d, v%d' % (vW0, vW0, t1))
    a('v_xor_b32 v%d, 32, v%d' % (vW1, vW0))
    if ks or r4:
        a('v_xor_b32 v%d, 64, v%d' % (vW2, vW0))
        a('v_xor_b32 v%d, 96, v%d' % (vW3, vW0))
        addr += [vW2, vW3]
    if c.half:
        a('v_bfe_u32 v%d, v1, 4, 1' % vW2)
        a('v_lshlrev_b32 v%d, 5, v%d' % (vW2, vW2))
        a('v_lshl_add_u32 v%d, v%d, 6, v%d' % (vW2, t0, vW2))
        a('v_add_u32 v%d, v%d, v%d' % (vW2, vW2, t1))
        a('v_add_u32 v%d, %d, v%d' % (vW2, c.nfull*BK*128, vW2))
        a('v_xor_b32 v%d, 32, v%d' % (vW3, vW2))
        addr += [vW2, vW3]
    assert c.xbytes % 128 == 0 and c.slot % 128 == 0
    sm = 2 if ks else 1
    def xrd(j, sub):
        hi = rotx and j >= 2
        if nat: return ((vX4 if hi else vX3) if sub % 2 else (vX2 if hi else vX)), j*2048
        return (vX2 if hi else vX), (j*nsub+sub)*1024
    tf = 512 if natw else 2048
    if ks or r4:
        wfr = [(vW0+u, 0, 4096, tf) for u in range(4)]
        mf = [(j, i) for i in range(TMb) for j in range(4)]
    else:
        wfr = [(vW0 + j % 2, (j//2)*BK*128, 4096, tf) for j in range(2*c.nfull)]
        mf = [(j, i) for j in range(len(wfr)) for i in range(TMb)]
    if c.half:
        wfr += [(vW2, 0, 2048, tf//2), (vW3, 0, 2048, tf//2)]
        mf += [(2*c.nfull + u, i) for u in range(2) for i in range(2)]
    nWf = len(wfr)
    nacc = len(mf) * 4
    KS = c.KS
    fs1 = (TMb + nWf) * 4
    fsz = fs1 * KS
    c.v_acc = c.v_frag + 2*fsz
    c.v_free = c.v_acc + nacc
    if c.pre_hook: c.pre_hook(a, c)
    if c.acc_init: c.acc_init(a, c)
    elif not c.first_c:
        for i in range(nacc): a('v_mov_b32 v%d, 0' % (c.v_acc+i))
    def xreg(s, q, j): return c.v_frag + s*fsz + q*fs1 + j*4
    def wreg(s, q, j): return c.v_frag + s*fsz + q*fs1 + TMb*4 + j*4
    def reads(s, step):
        r = []
        for q in range(KS):
            sub = (step*KS + q)*sm
            xs = ['ds_read_b128 v[%d:%d], v%d offset:%d' % ((xreg(s,q,j), xreg(s,q,j)+3) + xrd(j, sub)) for j in range(TMb)]
            ws = []
            for j, (v, base, ss, ts) in enumerate(wfr):
                for t in range(2):
                    w = wreg(s,q,j) + 2*t
                    ws.append('ds_read_b64_tr_b16 v[%d:%d], v%d offset:%d' % (w, w+1, v, base + sub*ss + t*ts))
            r += (xs[:1] + ws + xs[1:]) if (ks or r4) else (ws[:2] + xs + ws[2:])
        if c.no_lds: r = []
        return r
    def mfmas(s, first=False):
        r = []
        for q in range(KS):
            for k, (j, i) in enumerate(mf):
                t = c.v_acc + k*4
                A_, B_ = wreg(s,q,j), xreg(s,q,i)
                if j in c.swap_frags: A_, B_ = B_, A_
                C_ = 'v[%d:%d]' % (t, t+3)
                if first and q == 0: C_ = c.first_c(c, j)
                r.append('v_mfma_f32_16x16x32_bf16 v[%d:%d], v[%d:%d], v[%d:%d], %s' % (t, t+3, A_, A_+3, B_, B_+3, C_))
        if c.no_mfma: r = r[:1]
        return r
    def interleave(ms, rs, extra=()):
        out = []
        k = 0; ex = list(extra)
        for i, m in enumerate(ms):
            out.append(m)
            if k < len(rs):
                for _ in range(c.rpm):
                    if k < len(rs): out.append(rs[k]); k += 1
            elif ex:
                out.append(ex.pop(0))
                if ex and ex[0].startswith('s_'): out.append(ex.pop(0))
        out += rs[k:] + ex
        return out
    def advance():
        return ['s_add_u32 s%d, s%d, 1' % (c.s_slot, c.s_slot),
             's_cmp_eq_u32 s%d, %d' % (c.s_slot, S),
             's_cselect_b32 s%d, 0, s%d' % (c.s_slot, c.s_slot),
             's_cselect_b32 s%d, %d, s%d' % (sp, -(S-1)*c.slot, sp+1)] + ['v_add_u32 v%d, s%d, v%d' % (v, sp, v) for v in addr]
    nstep = nsub // KS // sm
    spb = 1 if nstep % 2 == 0 else 2
    a('s_mov_b32 s%d, %d' % (c.s_slot, c.slot0))
    if c.slot0:
        for v in addr: a('v_add_u32 v%d, %d, v%d' % (v, c.slot0*c.slot, v))
    a('s_mov_b32 s%d, %d' % (sp+1, c.slot))
    if c.pre_hook2: c.pre_hook2(a, c)
    if c.stamps: a('s_mov_b32 s72, 0')
    stamp(a, c, 1)
    a('s_barrier')
    stamp(a, c, 2, True)
    if c.post_b0: c.post_b0(a, c)
    for r in reads(0, 0): a(r)
    if c.post_b0b: c.post_b0b(a, c, len(reads(0, 0)))
    if nstep == 1:
        for l in advance(): a(l)
    par = [0]
    def stage(last, first=False):
        for step in range(nstep):
            s = par[0]; par[0] ^= 1
            a('s_waitcnt lgkmcnt(0)')
            if step < nstep-1:
                ex = advance() if (step == nstep-2 and not last) else []
                if first and step == 0 and c.first_extra: ex = ex + c.first_extra(c)
                for l in interleave(mfmas(s, first and step == 0), reads(1-s, step+1), ex): a(l)
            elif not last:
                ms = mfmas(s)
                nb = c.mfma_before_bar
                for m in ms[:nb]: a(m)
                stamp(a, c, 1)
                a('s_barrier')
                stamp(a, c, 2, True)
                for l in interleave(ms[nb:], reads(1-s, 0) + (c.post_b1(c) if (first and c.post_b1) else []), advance() if nstep == 1 else []): a(l)
            else:
                for l in interleave(mfmas(s), c.last_reads(c) if c.last_reads else []): a(l)
    npre = 0
    if c.first_c:
        assert nstep % 2 == 0
        stage(False, True); npre = 1
    nloop = (nst - 1 - npre - (1 if c.late_hook else 0)) // spb
    rem = (nst - 1 - npre) - nloop*spb
    a('s_mov_b32 s%d, %d' % (c.s_cnt, nloop))
    a('.p2align 3')
    a.label(c.name + '_cloop')
    for _ in range(spb): stage(False)
    a('s_sub_u32 s%d, s%d, 1' % (c.s_cnt, c.s_cnt))
    a('s_cmp_lg_u32 s%d, 0' % c.s_cnt)
    a('s_cbranch_scc1 %s_cloop' % c.name)
    for r_ in range(rem):
        if c.late_hook and r_ == rem-1: c.late_hook(a, c)
        stage(False)
    stage(True)
    if c.stamps and c.gen_dump:
        stamp(a, c, 1)
        mark(a, c, 0)
    if ks:
        EB = c.slot * (nst % S)
        if c.slot < 32768:
            EB = c.slot * S; c.lds = EB + 32768
        assert c.lds <= 163840
        a('s_lshl_b32 s%d, s%d, 13\ns_add_u32 s%d, s%d, %d' % (sp, c.s_wave, sp, sp, EB))
        a('v_lshl_add_u32 v%d, v1, 4, s%d' % (t0, sp))
        a('s_xor_b32 s%d, s%d, 1\ns_lshl_b32 s%d, s%d, 13\ns_add_u32 s%d, s%d, %d' % (sp, c.s_wave, sp, sp, sp, sp, EB))
        a('v_lshl_add_u32 v%d, v1, 4, s%d' % (t1, sp))
        for k in range(8): a('ds_write_b128 v%d, v[%d:%d] offset:%d' % (t0, c.v_acc+32+4*k, c.v_acc+35+4*k, 1024*k))
        if c.xch_pre: c.xch_pre(a, c)
        a('s_waitcnt lgkmcnt(0)')
        mark(a, c, 1)
        a('s_barrier')
        mark(a, c, 2)
        for k in range(8): a('ds_read_b128 v[%d:%d], v%d offset:%d' % (c.v_acc+32+4*k, c.v_acc+35+4*k, t1, 1024*k))
        n0 = len(a.lines)
        if c.xch_post: c.xch_post(a, c)
        npost = len(a.lines) - n0
        for k in range(8):
            a('s_waitcnt lgkmcnt(%d)' % min(15, 7-k+npost))
            for r in (0, 2): a('v_pk_add_f32 v[%d:%d], v[%d:%d], v[%d:%d]' % (c.v_acc+4*k+r, c.v_acc+4*k+r+1, c.v_acc+4*k+r, c.v_acc+4*k+r+1, c.v_acc+32+4*k+r, c.v_acc+33+4*k+r))
        nacc = 32
    c.TMb, c.nWf, c.nacc = TMb, nWf, nacc

def config(name, K, BM, nfull, half, BK, S, ldw, panel_stride, **kw):
    c = G()
    c.name, c.K, c.BM, c.nfull, c.half, c.BK, c.S, c.ldw, c.panel_stride = name, K, BM, nfull, half, BK, S, ldw, panel_stride
    c.xbytes = BM * BK * 2
    c.slot = c.xbytes + nfull * BK * 128 + (BK * 64 if half else 0)
    c.lds = c.slot * S
    c.sX, c.sW = 8, 12
    c.s_mt, c.s_nt, c.s_wave, c.s_col0, c.s_colh = 40, 41, 42, 43, 44
    c.s_kx, c.s_kw, c.s_slot, c.s_px, c.s_pw, c.s_ph, c.s_cnt, c.s_rh, c.s_nh = 45, 46, 47, 48, 49, 50, 51, 52, 53
    c.s_tmp = 54
    c.v_addr = 4; c.v_tmp = 2; c.v_frag = 12; c.ksplit = False; c.xform = False; c.xf = 'dot4'; c.pprio = 0; c.pre_hook2 = None
    c.xflags = ''; c.peel1 = False; c.vm_init = []; c.pre_b1 = None; c.post_b1 = None; c.slot0 = 0; c.boundary = None; c.first_c = None; c.post_b0 = None; c.post_b0b = None; c.first_extra = None; c.rows4 = False; c.last_reads = None; c.pre_last_bar = None; c.xch_pre = None; c.xch_post = None; c.unroll = False; c.iter_hook = None; c.acc_init = None; c.natw = False; c.early_issue = None; c.tail_issue = None; c.ptail = None; c.tail_delay = 0; c.loop_extra = None; c.loop_init = None; c.late_hook = None; c.psplit = 1; c.stamps = False; c.gen_dump = False; c.dma_flags = ''; c.KS = 1; c.rpm = 1; c.mfma_before_bar = 0; c.G = 4; c.order = 'lead'; c.lead = S-1; c.s_rot = 39; c.s_tab = 66; c.tab_base = c.lds; c.srd_hook = None; c.swap_frags = (); c.pre_hook = None
    c.no_dma = c.no_lds = c.no_mfma = False
    for k, v in kw.items(): setattr(c, k, v)
    return c
```

```python
import sys
from asmgen import Asm
import gemm

MP1, ST1, MP2, ZP, ST2, KVP, H1F, PHIQ, OF, X1, H2F, HF, TS = 0x0, 0x4000, 0x10000, 0x20000, 0x40000, 0x100000, 0x800000, 0x1000000, 0x1800000, 0x1C00000, 0x2000000, 0x2800000, 0x3800000
P_X, P_WQKV, P_WPHI, P_WO, P_W1, P_B1, P_W2, P_B2, P_C, P_WMOD, P_OUT, P_DBG, P_WS = 0, 8, 16, 24, 40, 48, 56, 64, 72, 80, 88, 96, 104
LOG2E = 0x3fb8aa3b
class O: pass
opt = O(); opt.mimic = False; opt.ts = False; opt.outscale = None; opt.sflags = ' sc1'; opt.pf1 = 0; opt.pf2 = 0; opt.pf3 = 0; opt.pf4 = 3; opt.order = 'lead'; opt.gv_at = [13]; opt.pf4_at = [13, 13, 13, 13]; opt.gv_late = True; opt.eprio = 1; opt.spf = 0; opt.cpf = 3; opt.zero_flags = False; opt.rpm = 2; opt.stamp = None; opt.xf = 'fma7'; opt.pprio = 0

def srd(a, s, base, off, size):
    if off:
        a('s_add_u32 s%d, s%d, %d\ns_addc_u32 s%d, s%d, 0' % (s, base, off, s+1, base+1))
    else:
        a('s_mov_b32 s%d, s%d\ns_mov_b32 s%d, s%d' % (s, base, s+1, base+1))
    a('s_mov_b32 s%d, %d\ns_mov_b32 s%d, 0x20000' % (s+2, size, s+3))

def rnd2(a, x, y, t):
    a('v_cvt_pk_bf16_f32 v%d, v%d, v%d' % (t, x, y))
    a('v_lshlrev_b32 v%d, 16, v%d' % (x, t))
    a('v_and_b32 v%d, 0xffff0000, v%d' % (y, t))
def rnd1(a, x):
    a('v_cvt_pk_bf16_f32 v%d, v%d, v%d' % (x, x, x))
    a('v_lshlrev_b32 v%d, 16, v%d' % (x, x))
def rndn(a, xs, ts):
    prs = [(xs[i], xs[i+1]) for i in range(0, len(xs), 2)]
    for b in range(0, len(prs), len(ts)):
        blk = prs[b:b+len(ts)]
        for (x, y), t in zip(blk, ts): a('v_cvt_pk_bf16_f32 v%d, v%d, v%d' % (t, x, y))
        for (x, y), t in zip(blk, ts):
            a('v_lshlrev_b32 v%d, 16, v%d' % (x, t)); a('v_and_b32 v%d, 0xffff0000, v%d' % (y, t))
def unpack(a, lo, hi, src):
    a('v_lshlrev_b32 v%d, 16, v%d' % (lo, src)); a('v_and_b32 v%d, 0xffff0000, v%d' % (hi, src))

def ts_start(a, kid):
    if opt.ts: a('s_memrealtime s[96:97]')
def ts_end(a, kid, lbl):
    if not opt.ts: return
    a('s_waitcnt vmcnt(0) lgkmcnt(0)')
    a('s_memrealtime s[98:99]')
    srd(a, 88, 6, TS + kid*4096, 4096)
    a('s_mov_b64 exec, -1')
    a('v_cmp_eq_u32 vcc, 0, v0')
    a('s_waitcnt lgkmcnt(0)')
    a('v_mov_b32 v2, s96\nv_mov_b32 v3, s98\ns_lshl_b32 s92, s2, 3\nv_mov_b32 v4, s92')
    a('s_and_saveexec_b64 s[94:95], vcc\ns_cbranch_execz %s' % lbl)
    a('buffer_store_dwordx2 v[2:3], v4, s[88:91], 0 offen')

def gemv_issue(a, LPR, vt, V, sC, sW, s_c, s_w, vm=None, ps=range(8)):
    lg = LPR.bit_length() - 1
    t0, t1 = V+36, V+37
    if 0 in ps:
        a('v_lshrrev_b32 v%d, %d, v%d' % (t0, lg, vt))
        a('v_lshlrev_b32 v%d, 4, v%d' % (t1, t0))
        a('buffer_load_dwordx4 v[%d:%d], v%d, s[%d:%d], s%d offen' % (V, V+3, t1, sC, sC+3, s_c))
        if vm: vm.issue('gc')
        a('v_mul_u32_u24 v%d, %d, v%d' % (t0, 8*12288, t0))
        a('v_and_b32 v%d, %d, v%d' % (t1, LPR-1, vt))
        a('v_lshl_add_u32 v%d, v%d, 4, v%d' % (t0, t1, t0))
    for p in ps:
        a('buffer_load_dwordx4 v[%d:%d], v%d, s[%d:%d], s%d offen' % (V+4+4*p, V+7+4*p, t0, sW, sW+3, s_w))
        if p < 7: a('s_add_u32 s%d, s%d, 12288' % (s_w, s_w))
        if vm: vm.issue(('gw', p))
def gemv_math(a, LPR, V, T, vm, stmp):
    vm.wait('gc')
    for i in range(4): unpack(a, T+2*i, T+2*i+1, V+i)
    a('s_mov_b32 s%d, 0x%x' % (stmp, LOG2E))
    for i in range(8): a('v_mul_f32 v%d, s%d, v%d' % (T+8+i, stmp, T+i))
    for i in range(8): a('v_exp_f32 v%d, -v%d' % (T+8+i, T+8+i))
    for i in range(8): a('v_add_f32 v%d, 1.0, v%d' % (T+8+i, T+8+i))
    for i in range(8): a('v_rcp_f32 v%d, v%d' % (T+8+i, T+8+i))
    for i in range(8): a('v_mul_f32 v%d, v%d, v%d' % (T+i, T+i, T+8+i))
    rndn(a, list(range(T, T+8)), list(range(T+8, T+12)))
    for p in range(8):
        vm.wait(('gw', p))
        for d in range(4): unpack(a, T+16+2*d, T+17+2*d, V+4+4*p+d)
        for e in range(8):
            if p == 0: a('v_mul_f32 v%d, v%d, v%d' % (T+8+e, T+16+e, T+p))
            else: a('v_fmac_f32 v%d, v%d, v%d' % (T+8+e, T+16+e, T+p))
    for ror in {2: (2, 4, 8), 4: (4, 8), 8: (8,)}[LPR]:
        for e in range(8): a('v_add_f32_dpp v%d, v%d, v%d row_ror:%d row_mask:0xf bank_mask:0xf' % (T+8+e, T+8+e, T+8+e, ror))

def dpp_sum(a, xs, steps):
    for st in steps:
        for x in xs: a('v_add_f32_dpp v%d, v%d, v%d %s row_mask:0xf bank_mask:0xf' % (x, x, x, st))
DPP8 = ['quad_perm:[1,0,3,2]', 'quad_perm:[2,3,0,1]', 'row_half_mirror']
DPP16 = DPP8 + ['row_mirror']

def k_pre(a, nxt='ln1_kernel'):
    n = 'pre_kernel'
    a.kernel_begin(n)
    a('s_cmp_ge_u32 s2, 256\ns_cbranch_scc1 pre_end')
    a('s_load_dwordx4 s[20:23], s[0:1], %d' % P_C)
    a('s_load_dwordx2 s[6:7], s[0:1], %d\ns_load_dwordx2 s[4:5], s[0:1], %d' % (P_WS, P_X))
    ts_start(a, 0)
    a('s_cmp_ge_u32 s2, 128\ns_cbranch_scc1 pre_stats')
    a('s_and_b32 s30, s2, 7\ns_lshl_b32 s30, s30, 3\ns_bfe_u32 s31, s2, 0x30003\ns_add_u32 s30, s30, s31\ns_lshr_b32 s31, s2, 6')
    a('s_lshl_b32 s32, s31, 10')
    a('s_mul_i32 s33, s31, %d\ns_lshl_b32 s34, s30, 6\ns_add_u32 s33, s33, s34' % (512*12288))
    a('s_waitcnt lgkmcnt(0)')
    srd(a, 8, 20, 0, 2048); srd(a, 12, 22, 0, 1024*12288); srd(a, 16, 6, MP1, 16384)
    vm = gemm.VM(a)
    gemv_issue(a, 4, 0, 4, 8, 12, 32, 33, vm)
    T = 44
    gemv_math(a, 4, 4, T, vm, 34)
    a('v_lshrrev_b32 v1, 4, v0\nv_lshlrev_b32 v1, 7, v1\nv_and_b32 v2, 3, v0\nv_lshl_add_u32 v1, v2, 5, v1')
    a('ds_write_b128 v1, v[%d:%d]\nds_write_b128 v1, v[%d:%d] offset:16' % (T+8, T+11, T+12, T+15))
    a('s_waitcnt lgkmcnt(0)\ns_barrier')
    a('v_cmp_gt_u32 vcc, 32, v0\ns_and_saveexec_b64 s[26:27], vcc\ns_cbranch_execz pre_fin')
    a('v_lshlrev_b32 v1, 2, v0')
    for p in range(16): a('ds_read_b32 v%d, v1 offset:%d' % (16+p, 128*p))
    a('s_waitcnt lgkmcnt(0)')
    for st in (8, 4, 2, 1):
        for p in range(st): a('v_add_f32 v%d, v%d, v%d' % (16+p, 16+p, 16+p+st))
    a('s_lshl_b32 s30, s30, 7\ns_lshl_b32 s31, s31, 13\ns_add_u32 s30, s30, s31')
    a('buffer_store_dword v16, v1, s[16:19], s30 offen sc1')
    a('s_branch pre_fin')
    a.label('pre_stats')
    a('v_lshrrev_b32 v2, 6, v0\nv_and_b32 v1, 63, v0')
    a('v_lshlrev_b32 v3, 13, v2\nv_lshl_add_u32 v3, v1, 4, v3')
    a('s_sub_u32 s30, s2, 128\ns_lshl_b32 s31, s30, 15')
    a('s_load_dwordx2 s[40:41], s[0:1], %d\ns_load_dwordx2 s[42:43], s[0:1], %d\ns_load_dwordx2 s[44:45], s[0:1], %d' % (P_WPHI, P_B1, P_B2))
    a('s_waitcnt lgkmcnt(0)')
    a('s_lshl_b32 s46, s30, 9')
    for q in range(8): a('s_add_u32 s47, s46, %d\ns_load_dword s48, s[40:41], s47' % (64*q))
    a('s_min_u32 s46, s30, 111\ns_lshl_b32 s46, s46, 6\ns_load_dword s48, s[42:43], s46')
    a('s_and_b32 s46, s30, 31\ns_lshl_b32 s46, s46, 6\ns_load_dword s48, s[44:45], s46')
    srd(a, 8, 4, 0, 0x400000); srd(a, 16, 6, ST1, 32768)
    if opt.zero_flags:
        a('v_mov_b32 v4, 0\nv_mov_b32 v5, 0\nv_mov_b32 v6, 0\nv_mov_b32 v7, 0\nv_lshlrev_b32 v8, 4, v0\ns_lshl_b32 s46, s30, 12\ns_add_u32 s46, s46, 16384')
        a('buffer_store_dwordx4 v[4:7], v8, s[16:19], s46 offen')
        a('s_nop 1')
    D = 8; X = 40
    for r in range(4):
        for h in range(2):
            a('buffer_load_dwordx4 v[%d:%d], v3, s[8:11], s31 offen offset:%d' % (D+8*r+4*h, D+8*r+4*h+3, (r % 2)*2048 + h*1024))
        if r == 1: a('s_add_u32 s31, s31, 4096')
    SM = 104
    ncp = 0
    if opt.cpf & 1:
        a('v_readfirstlane_b32 s46, v2\ns_lshr_b32 s47, s30, 3\ns_and_b32 s47, s47, 1\ns_lshl_b32 s47, s47, 2\ns_add_u32 s46, s46, s47')
        code_pf(a, 'pre', nxt, 'code_end', 46, 8, 6, 1, 50)
        ncp = 1
    for r in range(4):
        a('s_waitcnt vmcnt(%d)' % (6-2*r+ncp))
        for i in range(8): unpack(a, X+16*r+2*i, X+16*r+2*i+1, D+8*r+i)
        for i in range(4): a('v_add_f32 v%d, v%d, v%d' % (D+i, X+16*r+i, X+16*r+4+i))
        for k in (8, 12):
            for i in range(4): a('v_add_f32 v%d, v%d, v%d' % (D+i, D+i, X+16*r+k+i))
        a('v_add_f32 v%d, v%d, v%d\nv_add_f32 v%d, v%d, v%d\nv_add_f32 v%d, v%d, v%d' % (D, D, D+1, D+2, D+2, D+3, SM+r, D, D+2))
    sm = [SM+r for r in range(4)]
    dpp_sum(a, sm, DPP16)
    for st in bfly(a, 'v_add_f32', sm):
        for l in st: a(l)
    for r in range(4): a('v_mul_f32 v%d, 0x3a800000, v%d' % (SM+r, SM+r))
    SQ = 108
    for r in range(4):
        for i in range(16): a('v_sub_f32 v%d, v%d, v%d' % (X+16*r+i, X+16*r+i, SM+r))
        for i in range(4): a('v_mul_f32 v%d, v%d, v%d' % (D+i, X+16*r+i, X+16*r+i))
        for k in (4, 8, 12):
            for i in range(4): a('v_fmac_f32 v%d, v%d, v%d' % (D+i, X+16*r+k+i, X+16*r+k+i))
        a('v_add_f32 v%d, v%d, v%d\nv_add_f32 v%d, v%d, v%d\nv_add_f32 v%d, v%d, v%d' % (D, D, D+1, D+2, D+2, D+3, SQ+r, D, D+2))
    sq = [SQ+r for r in range(4)]
    dpp_sum(a, sq, DPP16)
    for st in bfly(a, 'v_add_f32', sq):
        for l in st: a(l)
    a('v_mov_b32 v4, 0x3727c5ac\nv_mov_b32 v5, 0x3a800000')
    for r in range(4): a('v_fma_f32 v%d, v%d, v5, v4' % (SQ+r, SQ+r))
    for r in range(4): a('v_rsq_f32 v%d, v%d' % (D+2*r, SQ+r))
    for r in range(4): a('v_mov_b32 v%d, v%d' % (D+2*r+1, SM+r))
    a('v_lshlrev_b32 v3, 5, v2\ns_lshl_b32 s30, s30, 7')
    a('v_cmp_eq_u32 vcc, 0, v1\ns_and_saveexec_b64 s[26:27], vcc')
    a('buffer_store_dwordx4 v[%d:%d], v3, s[16:19], s30 offen\nbuffer_store_dwordx4 v[%d:%d], v3, s[16:19], s30 offen offset:16' % (D, D+3, D+4, D+7))
    a.label('pre_fin')
    ts_end(a, 0, 'pre_end')
    a.label('pre_end')
    a('s_endpgm')
    a.kernel_end(n, 112, 100, 112, 256, 256, 2048)

def xg_sum(a, xs, ts):
    for op in ('v_permlane32_swap_b32', 'v_permlane16_swap_b32'):
        for x, t in zip(xs, ts): a('v_mov_b32 v%d, v%d' % (t, x))
        for x, t in zip(xs, ts): a('%s v%d, v%d' % (op, x, t))
        for x, t in zip(xs, ts): a('v_add_f32 v%d, v%d, v%d' % (x, x, t))

def k_ln(a, n, kid, first):
    L = n.replace('_kernel', '')
    nparts, pstride, s_ch, a_ch = (2, 8192, 0, 1) if first else (4, 16384, 1, 2)
    a.kernel_begin(n)
    a('s_cmp_ge_u32 s2, 256\ns_cbranch_scc1 %s_end' % L)
    a('s_load_dwordx2 s[6:7], s[0:1], %d' % P_WS)
    if first: a('s_load_dwordx4 s[28:31], s[0:1], %d' % P_X)
    ts_start(a, kid)
    a('s_lshr_b32 s20, s2, 4\ns_lshl_b32 s20, s20, 3\ns_and_b32 s21, s2, 7\ns_add_u32 s20, s20, s21\ns_bfe_u32 s21, s2, 0x10003')
    a('v_and_b32 v1, 63, v0\nv_lshrrev_b32 v2, 6, v0\nv_and_b32 v3, 15, v0\nv_bfe_u32 v4, v0, 4, 2')
    a('v_lshlrev_b32 v5, 11, v3\nv_lshl_add_u32 v5, v2, 8, v5\nv_lshl_add_u32 v5, v4, 4, v5')
    a('s_lshl_b32 s22, s20, 15\ns_lshl_b32 s23, s21, 10\ns_add_u32 s23, s23, s22')
    a('v_lshlrev_b32 v6, 3, v0\ns_lshl_b32 s24, s21, 11')
    if first: a('v_lshlrev_b32 v7, 3, v3\ns_lshl_b32 s25, s20, 7')
    else: a('v_lshlrev_b32 v7, 3, v3\nv_lshl_add_u32 v7, v4, 16, v7\ns_lshl_b32 s25, s20, 7')
    a('s_waitcnt lgkmcnt(0)')
    srd(a, 12, 6, MP1 if first else MP2, 16384 if first else 65536)
    M = 16
    for p in range(nparts):
        for w, ch in enumerate((a_ch, s_ch)):
            a('s_add_u32 s26, s24, %d' % (p*pstride + ch*4096))
            a('buffer_load_dwordx2 v[%d:%d], v6, s[12:15], s26 offen' % (M+4*p+2*w, M+4*p+2*w+1))
    if first: srd(a, 8, 28, 0, 0x400000)
    else: srd(a, 8, 6, X1, 0x400000)
    D = 32
    for u in range(4): a('buffer_load_dwordx4 v[%d:%d], v5, s[8:11], s23 offen offset:%d' % (D+4*u, D+4*u+3, 64*u))
    srd(a, 16, 6, ST1 if first else ST2, 16384 if first else 0x40000)
    if first:
        a('buffer_load_dwordx2 v[8:9], v7, s[16:19], s25 offen'); ns = 1
    else:
        for q in range(4): a('buffer_load_dwordx2 v[%d:%d], v7, s[16:19], s25 offen\ns_add_u32 s25, s25, 16384' % (8+2*q, 9+2*q))
        ns = 4
    npf = 0
    if first and opt.pf1:
        srd(a, 32, 30, 0, 1024*6144)
        a('v_and_b32 v48, 3, v0\nv_bfe_u32 v49, v0, 2, 2\nv_lshlrev_b32 v49, 11, v49\nv_lshl_add_u32 v48, v48, 7, v49')
        a('v_lshrrev_b32 v49, 4, v0\nv_mul_u32_u24 v49, 6144, v49\nv_add_u32 v48, v48, v49')
        a('v_bfe_u32 v49, v0, 2, 2\nv_cmp_eq_u32 vcc, 3, v49\nv_mov_b32 v49, 0x7fffffff\nv_cndmask_b32 v48, v48, v49, vcc')
        a('s_lshr_b32 s26, s2, 3\ns_mul_i32 s26, s26, %d\ns_bfe_u32 s27, s2, 0x20001\ns_lshl_b32 s27, s27, 9\ns_add_u32 s26, s26, s27' % (16*6144))
        for q in range(opt.pf1):
            a('buffer_load_dword v49, v48, s[32:35], s26 offen')
            a('s_add_u32 s26, s26, %d' % (512*6144))
        npf = opt.pf1
    if first and opt.cpf & 2:
        a('v_readfirstlane_b32 s40, v2')
        next_code(a, L, 'qkv_kernel', 'o_kernel', 2, 144, 1, 40, 0)
        npf += 1
    srd(a, 36, 6, H1F if first else H2F, 0x400000)
    a('v_lshrrev_b32 v6, 2, v0\nv_lshlrev_b32 v6, 6, v6\nv_and_b32 v7, 3, v0\nv_lshl_add_u32 v6, v7, 3, v6')
    a('s_waitcnt vmcnt(%d)' % (4+ns+npf))
    for p in range(1, nparts):
        for e in range(4): a('v_add_f32 v%d, v%d, v%d' % (M+e, M+e, M+4*p+e))
    rndn(a, [M, M+1, M+2, M+3], [M+4, M+5])
    a('v_add_f32 v%d, 1.0, v%d\nv_add_f32 v%d, 1.0, v%d' % (M, M, M+1, M+1))
    rndn(a, [M, M+1], [M+4])
    a('ds_write_b64 v6, v[%d:%d]\nds_write_b64 v6, v[%d:%d] offset:32' % (M, M+1, M+2, M+3))
    a('v_lshlrev_b32 v6, 10, v2\nv_lshl_add_u32 v6, v4, 6, v6')
    a('v_lshlrev_b32 v5, 12, v2\nv_lshl_add_u32 v5, v1, 4, v5\ns_lshl_b32 s23, s21, 14\ns_add_u32 s23, s23, s22')
    a('s_waitcnt lgkmcnt(0)\ns_barrier')
    T = 80
    for u in range(4):
        for e in range(4): a('ds_read_b128 v[%d:%d], v6 offset:%d' % (T+16*u+4*e, T+16*u+4*e+3, 256*u+16*e))
    X = 48
    a('s_waitcnt vmcnt(%d)' % (ns+npf))
    alt = first and opt.pf1
    for i in range(16): unpack(a, X+2*i, X+2*i+1, D+i) if not (alt and i == 0) else None
    a('s_waitcnt vmcnt(%d)' % npf)
    if not first:
        a('v_add_f32 v8, v8, v10\nv_add_f32 v9, v9, v11\nv_add_f32 v12, v12, v14\nv_add_f32 v13, v13, v15\nv_add_f32 v9, v9, v13\nv_add_f32 v10, v8, v12')
        xg_sum(a, [9, 10], [11, 12])
        a('v_mul_f32 v10, 0x3a800000, v10\nv_mul_f32 v11, v10, v10\nv_mov_b32 v12, 0x3a800000\nv_fma_f32 v8, v9, v12, -v11')
        a('v_max_f32 v8, 0, v8\nv_add_f32 v8, 0x3727c5ac, v8\nv_rsq_f32 v8, v8\nv_mov_b32 v9, v10')
    a('v_mul_f32 v9, -v9, v8')
    XS = [X+i for i in range(32)]
    if alt:
        XS[0], XS[1] = 10, 11
        unpack(a, 10, 11, D)
    for i in range(32): a('v_fma_f32 v%d, v%d, v8, v9' % (XS[i], XS[i]))
    for u in range(4):
        a('s_waitcnt lgkmcnt(%d)' % (12-4*u))
        for e in range(8): a('v_fma_f32 v%d, v%d, v%d, v%d' % (XS[8*u+e], XS[8*u+e], T+16*u+e, T+16*u+8+e))
        for e in range(4): a('v_cvt_pk_bf16_f32 v%d, v%d, v%d' % (D+4*u+e, XS[8*u+2*e], XS[8*u+2*e+1]))
        a('buffer_store_dwordx4 v[%d:%d], v5, s[36:39], s23 offen offset:%d' % (D+4*u, D+4*u+3, 1024*u))
    ts_end(a, kid, L+'_end')
    a.label(L+'_end')
    a('s_endpgm')
    a.kernel_end(n, 148, 100, 148, 256, 256, 4096)

def gemm_head(a, c, kid, xm, xn, colmul, ptrs, rot):
    a('s_cmp_ge_u32 s2, 256\ns_cbranch_scc1 %s_end' % c.name)
    for s, o in ptrs: a('s_load_dwordx2 s[%d:%d], s[0:1], %d' % (s, s+1, o))
    ts_start(a, kid)
    if opt.stamp == c.name:
        c.stamps = True; c.gen_dump = True
        a('s_memtime s[94:95]')
    c.order = opt.order
    bm = 16 // xm
    a('s_and_b32 s36, s2, 7\ns_lshr_b32 s37, s2, 3')
    a('s_and_b32 s38, s36, %d\ns_lshr_b32 s36, s36, %d' % (bm-1, bm.bit_length()-1))
    a('s_and_b32 s39, s37, %d\ns_lshr_b32 s37, s37, %d' % (xm-1, xm.bit_length()-1))
    a('s_mul_i32 s38, s38, %d\ns_add_u32 s%d, s38, s39' % (xm, c.s_mt))
    a('s_mul_i32 s36, s36, %d\ns_add_u32 s%d, s36, s37' % (xn, c.s_nt))
    ra, rb = rot
    a('s_mul_i32 s39, s39, %d\ns_mul_i32 s37, s37, %d\ns_add_u32 s39, s39, s37' % (ra, rb))
    a('s_and_b32 s%d, s39, %d' % (c.s_rot, c.G-1))
    a('s_mul_i32 s%d, s%d, %d' % (c.s_col0, c.s_nt, colmul))
    if c.half:
        a('s_and_b32 s36, s%d, 1' % c.s_nt)
        a('s_cmp_eq_u32 s36, 0')
        a('s_cselect_b32 s36, 384, 0\ns_cselect_b32 s37, 0, 64')
        a('s_add_u32 s%d, s%d, s36' % (c.s_colh, c.s_col0))
        a('s_add_u32 s%d, s%d, s37' % (c.s_col0, c.s_col0))
    gemm.gemm_prologue(a, c)

def gemm_body(a, c, psrds, csrds):
    a('s_cmp_lt_u32 s%d, 4\ns_cbranch_scc1 %s_cons' % (c.s_wave, c.name))
    def hook(a):
        for x in psrds: srd(a, *x)
    c.srd_hook = hook
    (gemm.xproducer if c.xform else gemm.producer)(a, c, c.name + '_end')
    a.label(c.name + '_cons')
    a('s_waitcnt lgkmcnt(0)')
    for x in csrds: srd(a, *x)
    gemm.consumer(a, c)

def gemm_tail(a, c, n, kid):
    if c.stamps:
        gemm.mark(a, c, 8)
        a('s_waitcnt vmcnt(0)')
        gemm.mark(a, c, 9)
        gemm.dump_stamps(a, c)
    if opt.ts:
        a('s_cmp_lg_u32 s%d, 0\ns_cbranch_scc1 %s_end' % (c.s_wave, c.name))
        ts_end(a, kid, c.name + '_end')
    a.label(c.name + '_end')
    a('s_endpgm')
    if not c.xform: gemm.table(a, c)
    a.kernel_end(n, 256, 100, 256, 256, 512, c.lds)

def bfly(a, op, x):
    return [
     ['v_permlane32_swap_b32 v%d, v%d' % (x[0], x[1]), 'v_permlane32_swap_b32 v%d, v%d' % (x[2], x[3])],
     ['%s v%d, v%d, v%d' % (op, x[0], x[0], x[1]), '%s v%d, v%d, v%d' % (op, x[2], x[2], x[3])],
     ['v_permlane16_swap_b32 v%d, v%d' % (x[0], x[2])],
     ['%s v%d, v%d, v%d' % (op, x[0], x[0], x[2])],
     ['v_mov_b32 v%d, v%d' % (x[2], x[0])],
     ['v_permlane16_swap_b32 v%d, v%d' % (x[0], x[2])],
     ['v_mov_b32 v%d, v%d' % (x[1], x[0]), 'v_mov_b32 v%d, v%d' % (x[3], x[2])],
     ['v_permlane32_swap_b32 v%d, v%d' % (x[0], x[1]), 'v_permlane32_swap_b32 v%d, v%d' % (x[2], x[3])]]
def bfly2(a, op1, x1, op2, x2):
    for s1, s2 in zip(bfly(a, op1, x1), bfly(a, op2, x2)):
        for l in s1 + s2: a(l)

def smem_pf(c, regions, k0, k1, prev=None):
    reqs = [(ri, o) for ri, r in enumerate(regions) for o in range(0, r[1], 64)]
    nit = k1 - k0 + 1
    def hook(a, c, vm, k):
        if prev: prev(a, c, vm, k)
        if k == k0:
            a('s_lshl_b32 s80, s2, 2\ns_add_u32 s80, s80, s%d\ns_sub_u32 s80, s80, 4' % c.s_wave)
            for ri, r in enumerate(regions):
                a('s_mul_i32 s81, s80, %d' % r[1])
                if len(r) > 2: a('s_add_u32 s81, s81, %d' % r[2])
                a('s_add_u32 s%d, s%d, s81\ns_addc_u32 s%d, s%d, 0' % (82+2*ri, r[0], 83+2*ri, r[0]+1))
        if k0 <= k <= k1:
            for (ri, o) in reqs[(k-k0)*len(reqs)//nit:(k-k0+1)*len(reqs)//nit]:
                a('s_load_dword s81, s[%d:%d], %d' % (82+2*ri, 83+2*ri, o))
    return hook

def code_pf(a, tag, first, last, s_idx, nshare, vd, vl, sp):
    a('s_getpc_b64 s[%d:%d]' % (sp, sp+1))
    a.label(tag + '_cpc')
    a('s_add_u32 s%d, s%d, %s-%s_cpc\ns_addc_u32 s%d, s%d, 0' % (sp, sp, first, tag, sp+1, sp+1))
    if s_idx is None: a('v_lshlrev_b32 v%d, 7, v%d' % (vd, vl))
    else: a('s_lshl_b32 s%d, s%d, 13\nv_lshl_add_u32 v%d, v%d, 7, s%d' % (sp+2, s_idx, vd, vl, sp+2))
    a('v_min_u32 v%d, %s-%s-4, v%d' % (vd, last, first, vd))
    a('global_load_dword v%d, v%d, s[%d:%d]' % (vd+1, vd, sp, sp+1))

def next_code(a, tag, first, last, nchunk, vd, vl, wave_sreg, wave_val, vm=None):
    a('s_lshr_b32 s88, s2, 3\ns_min_u32 s88, s88, %d' % nchunk)
    if wave_sreg is not None:
        a('s_cmp_eq_u32 s%d, %d\ns_cselect_b32 s88, s88, %d' % (wave_sreg, wave_val, nchunk))
    code_pf(a, tag, first, last, 88, nchunk, vd, vl, 90)
    if vm: vm.issue('cpf')

def table_hooks(c, sM, nparts, pstride, s_chunk, a_chunk, V):
    def issue(a):
        a('v_lshlrev_b32 v2, 4, v0')
        for p in range(nparts):
            for w, ch in enumerate((a_chunk, s_chunk)):
                a('s_mov_b32 s59, %d' % (p*pstride + ch*4096))
                a('buffer_load_dwordx4 v[%d:%d], v2, s[%d:%d], s59 offen' % (V+8*p+4*w, V+8*p+4*w+3, sM, sM+3))
    def finish(a, c, nlater):
        a('v_lshrrev_b32 v2, 1, v0\nv_lshlrev_b32 v2, 6, v2\nv_and_b32 v3, 1, v0\nv_lshl_add_u32 v2, v3, 4, v2')
        a('s_waitcnt vmcnt(%d)' % nlater)
        for p in range(1, nparts):
            for e in range(8): a('v_add_f32 v%d, v%d, v%d' % (V+e, V+e, V+8*p+e))
        rndn(a, list(range(V, V+8)), list(range(V+8, V+12)))
        for e in range(4): a('v_add_f32 v%d, 1.0, v%d' % (V+e, V+e))
        rndn(a, list(range(V, V+4)), list(range(V+8, V+10)))
        a('ds_write_b128 v2, v[%d:%d] offset:%d\nds_write_b128 v2, v[%d:%d] offset:%d' % (V, V+3, 0, V+4, V+7, 32))
        a('s_waitcnt lgkmcnt(0)\ns_barrier')
    return issue, finish

def wphi_issue(a, W, WH, s_off, vt0, vt1):
    a('v_and_b32 v%d, 15, v1\nv_lshlrev_b32 v%d, 1, v%d\nv_lshrrev_b32 v%d, 4, v1\nv_lshl_add_u32 v%d, v%d, 8, v%d' % (vt0, vt0, vt0, vt1, vt0, vt1, vt0))
    for ft in range(2):
        for dw in range(4):
            d0 = (dw % 2)*2 + (dw // 2)*16
            a('buffer_load_ushort v%d, v%d, s[16:19], s%d offen offset:%d' % (W+ft*4+dw, vt0, s_off, d0*64 + ft*32))
            a('buffer_load_ushort v%d, v%d, s[16:19], s%d offen offset:%d' % (WH+ft*4+dw, vt0, s_off, d0*64 + 64 + ft*32))

def feat(a, QF, P, E, MX, MN, W, sL, sink):
    for i in range(4):
        for ft in range(2):
            t = P + i*8 + ft*4
            a('v_mfma_f32_16x16x32_bf16 v[%d:%d], v[%d:%d], v[%d:%d], 0' % (t, t+3, W+ft*4, W+ft*4+3, QF+4*i, QF+4*i+3))
    for (op, op2, dst) in (('v_max3_f32', 'v_max_f32', MX), ('v_min3_f32', 'v_min_f32', MN)):
        for i in range(4): a('%s v%d, v%d, v%d, v%d' % (op, dst+i, P+8*i, P+8*i+1, P+8*i+2))
        for i in range(4): a('%s v%d, v%d, v%d, v%d' % (op, dst+i, dst+i, P+8*i+3, P+8*i+4))
        for i in range(4): a('%s v%d, v%d, v%d, v%d' % (op, dst+i, dst+i, P+8*i+5, P+8*i+6))
        for i in range(4): a('%s v%d, v%d, v%d' % (op2, dst+i, dst+i, P+8*i+7))
    bfly2(a, 'v_max_f32', [MX+i for i in range(4)], 'v_min_f32', [MN+i for i in range(4)])
    for i in range(4):
        a('v_mul_f32 v%d, s%d, v%d\nv_mul_f32 v%d, s%d, v%d' % (MX+i, sL, MX+i, MN+i, sL, MN+i))
    for i in range(4):
        for e in range(8): a('v_fma_f32 v%d, v%d, s%d, -v%d' % (E+8*i+e, P+8*i+e, sL, MX+i))
        for e in range(8): a('v_fma_f32 v%d, -v%d, s%d, v%d' % (P+8*i+e, P+8*i+e, sL, MN+i))
    for i in range(32): a('v_exp_f32 v%d, v%d\nv_exp_f32 v%d, v%d' % (E+i, E+i, P+i, P+i))
    for (B, dst) in ((E, MX), (P, MN)):
        for i in range(4): a('v_add_f32 v%d, v%d, v%d' % (dst+i, B+8*i, B+8*i+1))
        for e in range(2, 8):
            for i in range(4): a('v_add_f32 v%d, v%d, v%d' % (dst+i, dst+i, B+8*i+e))
    bfly2(a, 'v_add_f32', [MX+i for i in range(4)], 'v_add_f32', [MN+i for i in range(4)])
    for i in range(4): a('v_rcp_f32 v%d, v%d\nv_rcp_f32 v%d, v%d' % (MX+i, MX+i, MN+i, MN+i))
    for i in range(4):
        for sg, (B, sc) in enumerate(((E, MX), (P, MN))):
            for e in range(8): a('v_mul_f32 v%d, v%d, v%d' % (B+8*i+e, B+8*i+e, sc+i))
            for e in range(4): a('v_cvt_pk_bf16_f32 v%d, v%d, v%d' % (B+8*i+e, B+8*i+2*e, B+8*i+2*e+1))
            sink(i, sg, B+8*i)

def wphi_read(a, W, s_nh, WPH, t0, t1):
    a('v_lshrrev_b32 v%d, 2, v1\nv_lshlrev_b32 v%d, 6, v%d\nv_bfe_u32 v%d, v1, 4, 1\nv_lshl_add_u32 v%d, v%d, 5, v%d' % (t0, t0, t0, t1, t0, t1, t0))
    a('v_and_b32 v%d, 3, v1\nv_lshl_add_u32 v%d, v%d, 3, v%d' % (t1, t0, t1, t0))
    a('s_lshl_b32 s59, s%d, 11\ns_add_u32 s59, s59, %d\nv_add_u32 v%d, s59, v%d\nv_xor_b32 v%d, 32, v%d' % (s_nh, WPH, t0, t0, t1, t0))
    for ft in range(2):
        for t in range(2): a('ds_read_b64_tr_b16 v[%d:%d], v%d offset:%d' % (W+4*ft+2*t, W+4*ft+2*t+1, (t0, t1)[ft], 1024*t))

def k_qkv(a):
    n = 'qkv_kernel'
    c = gemm.config('qkv', 1024, 128, 3, False, 64, 3, 6144, 2048, swap_frags=(4, 5), natw=True)
    WPH = c.lds; FLG = WPH + 4096
    c.lds += 4096 + 256
    a.kernel_begin(n)
    gemm_head(a, c, 2, 8, 4, 128, [(4, P_WQKV), (6, P_WS), (32, P_WPHI), (74, P_C), (76, P_WMOD), (78, P_WO), (92, P_W1)], (1,1))
    psrds = [(8, 6, H1F, 0x400000), (12, 4, 0, 1024*6144)]
    csrds = [(24, 6, KVP, 0x200000), (28, 6, ZP, 0x20000)]
    EB = c.slot * ((c.K // c.BK) % c.S)
    IMG = EB; VB = EB + 32768; QB = VB + 16384
    assert QB + 16384 <= WPH and EB == c.slot
    s_hd = 58; sL = 60
    def early_issue(a, c, vm):
        V = c.p_vfree
        srd(a, 16, 32, 0, 65536)
        a('v_lshrrev_b32 v%d, 3, v1\nv_and_b32 v%d, 2, v%d\nv_xor_b32 v%d, v1, v%d\nv_lshlrev_b32 v%d, 4, v%d' % (V, V, V, V, V, V, V))
        a('s_sub_u32 s59, s%d, 4\ns_lshl_b32 s59, s59, 10\ns_add_u32 m0, s59, %d\ns_lshl_b32 s61, s%d, 12\ns_add_u32 s59, s59, s61' % (c.s_wave, WPH, c.s_nt))
        a('buffer_load_dwordx4 v%d, s[16:19], s59 offen lds' % V)
        vm.issue('wphi')
    GV = QB + 16384
    assert GV + 4096 <= WPH
    def iter_hook(a, c, vm, k):
        V = (c.p_vfree + 3)//4*4
        ks = opt.gv_at
        if k == ks[0]:
            srd(a, 20, 74, 0, 2048); srd(a, 24, 76, 0, 1024*12288)
            a('s_lshr_b32 s61, s2, 6\ns_lshl_b32 s62, s61, 9\ns_mul_i32 s63, s61, %d' % (256*12288))
            a('s_and_b32 s64, s2, 63\ns_lshl_b32 s65, s64, 7\ns_add_u32 s63, s63, s65\ns_add_u32 s63, s63, 4096')
            a('v_and_b32 v%d, 255, v0' % (V+38))
        if k in ks:
            n_ = 8 // len(ks); q = ks.index(k)
            gemv_issue(a, 8, V+38, V, 20, 24, 62, 63, vm, range(q*n_, q*n_+n_))
    def tail_issue(a, c, vm):
        V = (c.p_vfree + 3)//4*4
        if opt.cpf & 2: next_code(a, 'qkv', 'o_kernel', 'ln2_kernel', 2, 240, 1, c.s_wave, 4, vm)
        if opt.pf2:
            srd(a, 28, 78, 0, 1024*2048)
            a('v_lshlrev_b32 v%d, 11, v%d\nv_lshl_add_u32 v%d, v%d, 7, v%d' % (V+39, c.p_vrow, V+39, c.p_vch, V+39))
            a('s_lshr_b32 s62, s2, 3\ns_lshl_b32 s62, s62, 2\ns_add_u32 s62, s62, s%d\ns_sub_u32 s62, s62, 4\ns_lshl_b32 s62, s62, 14' % c.s_wave)
            a('s_bfe_u32 s63, s2, 0x10002\ns_lshl_b32 s63, s63, 10\ns_add_u32 s62, s62, s63')
            a('buffer_load_dword v%d, v%d, s[28:31], s62 offen' % (V+37, V+39))
            vm.issue('pf')
    def ptail(a, c, vm):
        V = (c.p_vfree + 3)//4*4
        QF = V + 40; P = QF + 16; E = P + 32; MX = E + 32; MN = MX + 4; W = MN + 4; T = W + 8
        srd(a, 20, 6, PHIQ, 0x800000); srd(a, 24, 6, MP2, 65536)
        a('s_mov_b32 s%d, 0x%x' % (sL, LOG2E))
        a('s_and_b32 s%d, s%d, 1' % (c.s_nh, c.s_wave))
        wphi_read(a, W, c.s_nh, WPH, 2, 3)
        a('s_lshl_b32 s59, s%d, 1\ns_add_u32 s%d, s59, s%d' % (c.s_nt, s_hd, c.s_nh))
        a('s_lshl_b32 s61, s61, 14\ns_lshl_b32 s64, s64, 8\ns_add_u32 s64, s64, s61')
        a('s_sub_u32 s61, s%d, 4\ns_lshl_b32 s62, s61, 12\ns_add_u32 s62, s62, %d' % (c.s_wave, QB))
        a('v_lshl_add_u32 v3, v1, 4, s62\nv_lshlrev_b32 v4, 4, v1')
        a('s_lshr_b32 s61, s61, 1\ns_lshl_b32 s62, s%d, 1\ns_add_u32 s62, s62, s61\ns_lshl_b32 s62, s62, 18' % c.s_mt)
        a('s_lshl_b32 s61, s%d, 11\ns_add_u32 s62, s62, s61' % s_hd)
        def gv():
            gemv_math(a, 8, V, T, vm, 59)
            a('v_lshrrev_b32 v2, 4, v%d\nv_lshlrev_b32 v2, 8, v2\nv_and_b32 v5, 7, v1\nv_lshl_add_u32 v2, v5, 5, v2\nv_add_u32 v2, %d, v2' % (V+38, GV))
            a('ds_write_b128 v2, v[%d:%d]\nds_write_b128 v2, v[%d:%d] offset:16' % (T+8, T+11, T+12, T+15))
            a('v_mov_b32 v5, %d\nv_mov_b32 v6, 1\ns_waitcnt lgkmcnt(0)' % (FLG+16))
            a('s_mov_b64 exec, 1\nds_add_rtn_u32 v6, v5, v6\ns_mov_b64 exec, -1\ns_waitcnt lgkmcnt(0)')
            a('v_readfirstlane_b32 s59, v6\ns_cmp_lg_u32 s59, 3\ns_cbranch_scc1 qkv_gvx')
            a('v_lshlrev_b32 v5, 2, v1\nv_add_u32 v6, %d, v5' % GV)
            for p in range(16): a('ds_read_b32 v%d, v6 offset:%d' % (T+p, 256*p))
            a('s_waitcnt lgkmcnt(0)')
            for st in (8, 4, 2, 1):
                for p in range(st): a('v_add_f32 v%d, v%d, v%d' % (T+p, T+p, T+p+st))
            a('buffer_store_dword v%d, v5, s[24:27], s64 offen sc1' % T)
            a.label('qkv_gvx')
        if not opt.gv_late: gv()
        gemm.mark(a, c, 1)
        if opt.eprio: a('s_setprio %d' % opt.eprio)
        a('s_barrier')
        gemm.mark(a, c, 2)
        for i in range(4): a('ds_read_b128 v[%d:%d], v3 offset:%d' % (QF+4*i, QF+4*i+3, 1024*i))
        a('s_waitcnt lgkmcnt(0)')
        def sink(i, sg, B):
            a('buffer_store_dwordx4 v[%d:%d], v4, s[20:23], s62 offen offset:%d' % (B, B+3, sg*1024))
            vm.issue('st')
            if sg == 1: a('s_add_u32 s62, s62, 65536')
        feat(a, QF, P, E, MX, MN, W, sL, sink)
        gemm.mark(a, c, 3)
        if opt.gv_late: gv()
    def zero_flags(a, c):
        a('v_lshlrev_b32 v2, 2, v1\nv_add_u32 v2, %d, v2\nv_mov_b32 v3, 0\nds_write_b32 v2, v3\ns_waitcnt lgkmcnt(0)' % FLG)
    c.pre_hook2 = zero_flags
    c.first_c = lambda c, j: '0'
    c.unroll = True; c.iter_hook = iter_hook
    regs = []
    if opt.spf & 1: regs.append((78, 2048))
    if opt.spf & 2: regs.append((92, 7168))
    if regs: c.iter_hook = smem_pf(c, regs, 1, 14, iter_hook)
    c.early_issue, c.tail_issue, c.ptail = early_issue, tail_issue, ptail
    gemm_body(a, c, psrds, csrds)
    a('s_lshl_b32 s%d, s%d, 1\ns_add_u32 s%d, s%d, s%d' % (s_hd, c.s_nt, s_hd, s_hd, c.s_nh))
    wphi_read(a, c.v_free, c.s_nh, WPH, 2, 3)
    W = c.v_free
    ACC = lambda j, i, r=0: c.v_acc + (j*4+i)*4 + r
    QF = 8; P = 24; E = 56
    MX = W + 8; MN = MX + 4; T = MN + 4
    a('s_mov_b32 s%d, 0x%x' % (sL, LOG2E))
    a('v_lshlrev_b32 v4, 4, v1')
    a('s_lshl_b32 s61, s%d, 12\ns_add_u32 s61, s61, %d' % (c.s_wave, QB))
    a('v_add_u32 v3, s61, v4')
    for i in range(4):
        for h in range(2):
            for e in range(2):
                a('v_cvt_pk_bf16_f32 v%d, v%d, v%d' % (P+4*i+2*h+e, ACC(h, i, 2*e), ACC(h, i, 2*e+1)))
        a('ds_write_b128 v3, v[%d:%d] offset:%d' % (P+4*i, P+4*i+3, 1024*i))
    a('s_waitcnt lgkmcnt(0)')
    gemm.mark(a, c, 1)
    a('s_barrier')
    gemm.mark(a, c, 2)
    a('s_lshl_b32 s61, s%d, 1\ns_add_u32 s61, s61, s%d\ns_lshl_b32 s61, s61, 12\ns_add_u32 s61, s61, %d' % (c.s_nh, c.s_rh, VB))
    a('v_add_u32 v3, s61, v4')
    for gam in range(2):
        for dt in range(2):
            q = c.v_acc + (gam*2+dt)*4
            for h in range(2):
                for e in range(2):
                    a('v_cvt_pk_bf16_f32 v%d, v%d, v%d' % (q+2*h+e, ACC(4+dt, 2*gam+h, 2*e), ACC(4+dt, 2*gam+h, 2*e+1)))
            a('ds_write_b128 v3, v[%d:%d] offset:%d' % (q, q+3, (gam*2+dt)*1024))
    for i in range(4):
        for h in range(2):
            for e in range(2):
                a('v_cvt_pk_bf16_f32 v%d, v%d, v%d' % (QF+4*i+2*h+e, ACC(2+h, i, 2*e), ACC(2+h, i, 2*e+1)))
    def hrow(dst, row, t):
        a('v_lshrrev_b32 v%d, 1, v%d\nv_and_b32 v%d, 3, v%d\nv_lshlrev_b32 v%d, 2, v%d' % (dst, row, dst, dst, dst, dst))
        a('v_and_b32 v%d, 1, v%d\nv_or_b32 v%d, v%d, v%d' % (t, row, dst, dst, t))
        a('v_lshrrev_b32 v%d, 2, v%d\nv_and_b32 v%d, 2, v%d\nv_or_b32 v%d, v%d, v%d' % (t, row, t, t, dst, dst, t))
    WA = T + 16
    RA = WA + 4
    a('v_and_b32 v2, 15, v1\nv_lshrrev_b32 v3, 4, v1')
    hrow(6, 2, 5)
    a('v_xor_b32 v6, v6, v3')
    a('v_lshlrev_b32 v2, 7, v2')
    a('s_lshl_b32 s61, s%d, 13\ns_add_u32 s61, s61, %d' % (c.s_wave, IMG))
    a('v_add_u32 v2, s61, v2')
    for u in range(4):
        a('v_xor_b32 v5, %d, v6\nv_lshl_add_u32 v%d, v5, 3, v2' % (4*u, WA+u))
    a('v_lshrrev_b32 v2, 2, v1\nv_and_b32 v3, 3, v1')
    hrow(6, 2, 5)
    a('v_xor_b32 v6, v6, v3')
    a('v_lshlrev_b32 v2, 7, v2')
    a('s_lshl_b32 s61, s%d, 13\ns_add_u32 s61, s61, %d' % (c.s_nh, IMG))
    a('v_add_u32 v2, s61, v2')
    a('s_lshl_b32 s61, s%d, 3' % c.s_rh)
    a('v_xor_b32 v6, s61, v6')
    for u in range(2):
        a('v_xor_b32 v5, %d, v6\nv_lshl_add_u32 v%d, v5, 3, v2' % (4*u, RA+u))
    def sink(i, sg, B):
        for ft in range(2): a('ds_write_b64 v%d, v[%d:%d] offset:%d' % (WA+2*sg+ft, B+2*ft, B+2*ft+1, i*2048))
    feat(a, QF, P, E, MX, MN, W, sL, sink)
    a('s_waitcnt lgkmcnt(0)')
    gemm.mark(a, c, 3)
    a('s_lshl_b32 s61, s%d, 2\ns_add_u32 s61, s61, %d\nv_mov_b32 v2, s61\nv_mov_b32 v3, 1\nds_write_b32 v2, v3\nv_xor_b32 v2, 8, v2' % (c.s_wave, FLG))
    a.label('qkv_spin')
    a('ds_read_b32 v3, v2\ns_waitcnt lgkmcnt(0)\nv_readfirstlane_b32 s61, v3\ns_cmp_eq_u32 s61, 0\ns_cbranch_scc1 qkv_spin')
    gemm.mark(a, c, 4)
    AF = 8
    VF = 40
    ONE = 72
    KV = ACC(2, 0)
    a('s_lshl_b32 s61, s%d, 13\ns_add_u32 s61, s61, %d' % (c.s_nh, VB))
    a('v_add_u32 v3, s61, v4')
    for gp in range(4):
        rhp, gam = gp // 2, gp % 2
        for ftl in range(2):
            for t in range(2):
                q = AF + (ftl*4+gp)*4 + 2*t
                a('ds_read_b64_tr_b16 v[%d:%d], v%d offset:%d' % (q, q+1, RA+ftl, rhp*16384 + (gam*32 + t*16)*128))
        for dt in range(2):
            q = VF + (dt*4+gp)*4
            a('ds_read_b128 v[%d:%d], v3 offset:%d' % (q, q+3, (gp*2+dt)*1024))
    for e in range(4): a('v_mov_b32 v%d, 0x3f803f80' % (ONE+e))
    for gp in range(4):
        a('s_waitcnt lgkmcnt(%d)' % min(12, 6*(3-gp)))
        for ftl in range(2):
            for t in range(3):
                d = KV + (ftl*3+t)*4; A_ = AF + (ftl*4+gp)*4
                B_ = VF + (t*4+gp)*4 if t < 2 else ONE
                cc = '0' if gp == 0 else 'v[%d:%d]' % (d, d+3)
                a('v_mfma_f32_16x16x32_bf16 v[%d:%d], v[%d:%d], v[%d:%d], %s' % (d, d+3, A_, A_+3, B_, B_+3, cc))
    a('s_lshl_b32 s61, s%d, 4\ns_add_u32 s61, s61, s%d' % (s_hd, c.s_mt))
    a('s_lshl_b32 s63, s61, 12\ns_lshl_b32 s64, s%d, 11\ns_add_u32 s63, s63, s64' % c.s_rh)
    a('s_lshl_b32 s61, s61, 8\ns_lshl_b32 s64, s%d, 7\ns_add_u32 s61, s61, s64' % c.s_rh)
    a('v_and_b32 v2, 15, v1\nv_cmp_eq_u32 vcc, 0, v2')
    for ftl in range(2):
        for e in range(4): a('v_cvt_pk_bf16_f32 v%d, v%d, v%d' % (AF+4*ftl+e, KV+ftl*12+2*e, KV+ftl*12+2*e+1))
        a('buffer_store_dwordx4 v[%d:%d], v4, s[24:27], s63 offen offset:%d' % (AF+4*ftl, AF+4*ftl+3, ftl*1024))
    a('s_and_saveexec_b64 s[64:65], vcc')
    for ftl in range(2):
        d = KV + (ftl*3+2)*4
        a('buffer_store_dwordx4 v[%d:%d], v1, s[28:31], s61 offen offset:%d' % (d, d+3, ftl*64))
    a('s_mov_b64 exec, s[64:65]')
    gemm_tail(a, c, n, 2)

def k_o(a):
    n = 'o_kernel'
    a.kernel_begin(n)
    a('s_cmp_ge_u32 s2, 256\ns_cbranch_scc1 o_end')
    a('s_load_dwordx2 s[6:7], s[0:1], %d\ns_load_dwordx2 s[4:5], s[0:1], %d' % (P_WS, P_W1))
    ts_start(a, 3)
    a('s_and_b32 s36, s2, 7\ns_lshl_b32 s36, s36, 2\ns_lshr_b32 s37, s2, 3\ns_and_b32 s37, s37, 3\ns_add_u32 s36, s36, s37\ns_lshr_b32 s37, s2, 5')
    a('v_lshrrev_b32 v2, 6, v0\nv_and_b32 v1, 63, v0\nv_readfirstlane_b32 s38, v2')
    a('v_lshlrev_b32 v3, 4, v1\nv_lshrrev_b32 v4, 4, v1\nv_lshlrev_b32 v4, 4, v4')
    a('s_waitcnt lgkmcnt(0)')
    srd(a, 8, 6, KVP, 0x200000); srd(a, 12, 6, ZP, 0x20000); srd(a, 16, 6, PHIQ, 0x800000); srd(a, 20, 6, OF, 0x400000)
    a('s_lshl_b32 s40, s36, 16\ns_lshl_b32 s41, s38, 10\ns_add_u32 s40, s40, s41')
    a('s_lshl_b32 s41, s36, 12\ns_lshl_b32 s42, s38, 6\ns_add_u32 s41, s41, s42')
    KB = 48
    RW = 80
    a('v_and_b32 v5, 15, v1\nv_lshl_add_u32 v4, v5, 8, v4')
    a('buffer_load_dwordx4 v[%d:%d], v4, s[12:15], s41 offen' % (KB+8, KB+11))
    a('s_lshl_b32 s45, s37, 1')
    for m in range(16):
        a('s_add_u32 s46, s45, %d\ns_and_b32 s46, s46, 15\ns_lshl_b32 s46, s46, 12\ns_add_u32 s46, s46, s40' % m)
        a('buffer_load_dwordx4 v[%d:%d], v3, s[8:11], s46 offen' % (RW+4*m, RW+4*m+3))
    a('s_lshl_b32 s42, s37, 2\ns_add_u32 s42, s42, s38\ns_lshl_b32 s42, s42, 2')
    a('s_lshl_b32 s43, s42, 16\ns_lshl_b32 s44, s36, 11\ns_add_u32 s43, s43, s44')
    PQ = 8
    for i in range(4):
        for sg in range(2):
            a('buffer_load_dwordx4 v[%d:%d], v3, s[16:19], s43 offen offset:%d' % (PQ+8*i+4*sg, PQ+8*i+4*sg+3, 1024*sg))
        a('s_add_u32 s43, s43, 65536')
    npf = 0
    a('s_waitcnt vmcnt(24)')
    dpp_sum(a, [KB+8+e for e in range(4)], DPP16)
    for m in range(16):
        a('s_waitcnt vmcnt(%d)' % (8 + 15 - m))
        if m == 0:
            for e in range(4): unpack(a, KB+2*e, KB+2*e+1, RW+e)
        else:
            for e in range(4): unpack(a, 64+2*e, 65+2*e, RW+4*m+e)
            for e in range(8): a('v_add_f32 v%d, v%d, v%d' % (KB+e, KB+e, 64+e))
    for t in range(3):
        for e in range(2): a('v_cvt_pk_bf16_f32 v%d, v%d, v%d' % (KB+12+2*t+e, KB+4*t+2*e, KB+4*t+2*e+1))
    a('s_lshr_b32 s40, s38, 1\ns_lshl_b32 s40, s40, 10\ns_and_b32 s41, s38, 1\ns_lshl_b32 s41, s41, 3\ns_add_u32 s40, s40, s41')
    a('v_add_u32 v5, s40, v3')
    for t in range(3): a('ds_write_b64 v5, v[%d:%d] offset:%d' % (KB+12+2*t, KB+13+2*t, 2048*t))
    a('s_waitcnt lgkmcnt(0)\ns_barrier')
    AF = 80
    for t in range(3):
        for gam in range(2): a('ds_read_b128 v[%d:%d], v3 offset:%d' % (AF+(t*2+gam)*4, AF+(t*2+gam)*4+3, (t*2+gam)*1024))
    a('s_waitcnt vmcnt(%d) lgkmcnt(0)' % npf)
    R = 112
    for gam in range(2):
        for i in range(4):
            for t in range(3):
                d = R + (i*3+t)*4; A_ = AF+(t*2+gam)*4; B_ = PQ+8*i+4*gam
                a('v_mfma_f32_16x16x32_bf16 v[%d:%d], v[%d:%d], v[%d:%d], %s' % (d, d+3, A_, A_+3, B_, B_+3, '0' if gam == 0 else 'v[%d:%d]' % (d, d+3)))
    a('s_lshl_b32 s43, s42, 15\ns_lshl_b32 s44, s36, 10\ns_add_u32 s43, s43, s44')
    dens = [R+(i*3+2)*4 for i in range(4)]
    if opt.mimic: rndn(a, dens, [48, 49])
    for d in dens: a('v_add_f32 v%d, 0x358637bd, v%d' % (d, d))
    if opt.mimic: rndn(a, dens, [48, 49])
    for d in dens: a('v_rcp_f32 v%d, v%d' % (d, d))
    for i in range(4):
        xs = list(range(R+i*12, R+i*12+8))
        if opt.mimic: rndn(a, xs, [48, 49, 50, 51])
        for x in xs: a('v_mul_f32 v%d, v%d, v%d' % (x, x, dens[i]))
        for e in range(4): a('v_cvt_pk_bf16_f32 v%d, v%d, v%d' % (56+4*i+e, xs[2*e], xs[2*e+1]))
        a('buffer_store_dwordx4 v[%d:%d], v3, s[20:23], s43 offen' % (56+4*i, 59+4*i))
        a('s_add_u32 s43, s43, 32768')
    if opt.ts:
        a('s_cmp_lg_u32 s38, 0\ns_cbranch_scc1 o_end')
        ts_end(a, 3, 'o_end')
    a.label('o_end')
    a('s_endpgm')
    a.kernel_end(n, 160, 100, 160, 256, 256, 6144)

def res_setup(c, xsrd, chunk, bias):
    XT = c.slot*c.S
    ACC = lambda j, i, r=0: c.v_acc + (i*4+j)*4 + r
    def tail(a, c, vm):
        V = c.p_vfree
        srd(a, 16, *xsrd)
        a('v_xor_b32 v%d, v%d, v%d\nv_lshlrev_b32 v%d, 4, v%d\nv_lshl_add_u32 v%d, v%d, 11, v%d' % (V, c.p_vrow, c.p_vch, V, V, V, c.p_vrow, V))
        a('s_sub_u32 s59, s%d, 4\ns_lshl_b32 s60, s%d, 2\ns_add_u32 s60, s60, s59\ns_lshl_b32 s60, s60, 16\ns_lshl_b32 s61, s%d, 7\ns_add_u32 s60, s60, s61' % (c.s_wave, c.s_mt, c.s_nt))
        a('s_lshl_b32 s59, s59, 12\ns_add_u32 s59, s59, %d' % XT)
        for i in range(4):
            a('s_add_u32 m0, s59, %d' % (1024*i))
            a('buffer_load_dwordx4 v%d, s[16:19], s60 offen lds' % V)
            a('s_add_u32 s60, s60, 16384')
        vm.issue('op', 4)
    def early(a, c, vm):
        V = c.p_vfree
        srd(a, 20, 6, MP2, 65536)
        a('v_lshrrev_b32 v%d, 4, v1\nv_lshlrev_b32 v%d, 14, v%d\nv_and_b32 v%d, 15, v1\nv_lshl_add_u32 v%d, v%d, 4, v%d' % (V+1, V+1, V+1, V+2, V+1, V+2, V+1))
        a('s_lshl_b32 s61, s%d, 8\ns_add_u32 s61, s61, %d\ns_mov_b32 m0, %d' % (c.s_nt, (chunk-2)*4096, XT))
        a('buffer_load_dwordx4 v%d, s[20:23], s61 offen lds' % (V+1))
        vm.issue(0)
        if bias:
            srd(a, 24, bias, 0, 2048)
            a('v_lshlrev_b32 v%d, 4, v1\ns_lshl_b32 s61, s%d, 7\ns_mov_b32 m0, %d' % (V+2, c.s_nt, XT+1024))
            a('buffer_load_dwordx4 v%d, s[24:27], s61 offen lds' % (V+2))
            vm.issue(0)
    def pre(a, c):
        XA = c.v_free + 16 + 64 + 8
        a('v_and_b32 v2, 7, v1\nv_lshrrev_b32 v3, 5, v1\nv_xor_b32 v2, v2, v3\nv_lshlrev_b32 v2, 4, v2\nv_bfe_u32 v3, v1, 4, 1\nv_lshl_add_u32 v2, v3, 3, v2')
        a('v_and_b32 v3, 15, v1\nv_lshl_add_u32 v2, v3, 7, v2\ns_lshl_b32 s61, s%d, 12\ns_add_u32 s61, s61, %d\nv_add_u32 v%d, s61, v2' % (c.s_wave, XT, XA))
        for j in range(1, 4): a('v_xor_b32 v%d, %d, v%d' % (XA+j, 32*j, XA))
        a('v_lshrrev_b32 v3, 4, v1\nv_lshlrev_b32 v2, 3, v3\nv_lshlrev_b32 v3, 4, v3\nv_add_u32 v2, %d, v2\nv_add_u32 v3, %d, v3' % (XT+1024, XT))
    def post_b0(a, c):
        B = c.v_free + 16 + 64
        if bias:
            for j in range(4): a('ds_read_b64 v[%d:%d], v2 offset:%d' % (B+2*j, B+2*j+1, 32*j))
    def post_b0b(a, c, nr):
        XR = c.v_free; GA = XR + 16; B = GA + 64
        if bias:
            a('s_waitcnt lgkmcnt(%d)' % min(15, nr))
            for j in range(4):
                for e in range(2): unpack(a, XR+4*j+2*e, XR+4*j+2*e+1, B+2*j+e)
        for p in range(4):
            for j in range(4): a('ds_read_b128 v[%d:%d], v3 offset:%d' % (GA+16*p+4*j, GA+16*p+4*j+3, 256*p + 64*j))
    def first_extra(c):
        GA = c.v_free + 16
        b = Asm()
        for e in range(0, 16, 2): b('v_pk_add_f32 v[%d:%d], v[%d:%d], v[%d:%d]\nv_pk_add_f32 v[%d:%d], v[%d:%d], v[%d:%d]' % (GA+e, GA+e+1, GA+e, GA+e+1, GA+16+e, GA+17+e, GA+32+e, GA+33+e, GA+32+e, GA+33+e, GA+48+e, GA+49+e))
        for e in range(0, 16, 2): b('v_pk_add_f32 v[%d:%d], v[%d:%d], v[%d:%d]' % (GA+e, GA+e+1, GA+e, GA+e+1, GA+32+e, GA+33+e))
        rndn(b, list(range(GA, GA+16)), list(range(GA+16, GA+24)))
        return [l.strip() for l in b.lines]
    c.early_issue, c.pre_hook, c.post_b0, c.post_b0b, c.first_extra = early, pre, post_b0, post_b0b, first_extra
    c.first_c = (lambda c, j: 'v[%d:%d]' % (c.v_free+4*j, c.v_free+4*j+3)) if bias else (lambda c, j: '0')
    def last_reads(c):
        XR = c.v_free; XA = XR + 16 + 64 + 8
        return ['ds_read_b64 v[%d:%d], v%d offset:%d' % (XR+8*i+2*j, XR+8*i+2*j+1, XA+j, 2048*i) for i in range(2) for j in range(4)]
    c.last_reads = last_reads
    c.pre_last_bar = lambda a, c, vm: vm.wait('op')
    return tail
def res_epi(a, c, sOut, bias=None, stats=None):
    XR = c.v_free; GA = XR + 16
    ACC = lambda j, i, r=0: c.v_acc + (i*4+j)*4 + r
    P2 = lambda x: 'v[%d:%d]' % (x, x+1)
    a('s_lshl_b32 s58, s%d, 2\ns_add_u32 s58, s58, s%d' % (c.s_mt, c.s_wave))
    a('s_lshl_b32 s60, s58, 16\ns_lshl_b32 s61, s%d, 7\ns_add_u32 s60, s60, s61' % c.s_nt)
    U = GA + 16; PK = U + 32
    a('s_waitcnt lgkmcnt(0)')
    a('v_and_b32 v2, 15, v1\nv_lshlrev_b32 v2, 11, v2\nv_bfe_u32 v3, v1, 4, 1\nv_lshl_add_u32 v2, v3, 5, v2\nv_lshrrev_b32 v3, 5, v1\nv_lshl_add_u32 v2, v3, 4, v2')
    a('s_add_u32 s61, s60, 32768')
    for i in range(2):
        for j in range(4):
            for e in range(2): unpack(a, U+16*i+4*j+2*e, U+16*i+4*j+2*e+1, XR+8*i+2*j+e)
        for j in range(4):
            for r in (0, 2): a('v_pk_fma_f32 %s, %s, %s, %s' % (P2(ACC(j,i,r)), P2(ACC(j,i,r)), P2(GA+4*j+r), P2(U+16*i+4*j+r)))
        if opt.outscale and bias is not None:
            import struct
            for j in range(4):
                for r in range(4): a('v_mul_f32 v%d, 0x%x, v%d' % (ACC(j,i,r), struct.unpack('<I', struct.pack('<f', opt.outscale))[0], ACC(j,i,r)))
        for j in range(4):
            for e in range(2): a('v_cvt_pk_bf16_f32 v%d, v%d, v%d' % (PK+8*i+2*j+e, ACC(j,i,2*e), ACC(j,i,2*e+1)))
        for jp in range(2):
            for e in range(2): a('v_permlane16_swap_b32 v%d, v%d' % (PK+8*i+4*jp+e, PK+8*i+4*jp+2+e))
        for jp in range(2):
            a('buffer_store_dwordx4 v[%d:%d], v2, s[%d:%d], s%d offen offset:%d' % (PK+8*i+4*jp, PK+8*i+4*jp+3, sOut, sOut+3, 60+i, 64*jp))
    gemm.mark(a, c, 5)
    if stats is not None:
        Q = 12
        for i in range(2):
            xs = [ACC(j,i,r) for j in range(4) for r in (0, 2)]
            S0, Q0 = 16+8*i, 20+8*i
            for k in range(2): a('v_pk_add_f32 %s, %s, %s' % (P2(S0+2*k), P2(xs[k]), P2(xs[2+k])))
            for k in range(2): a('v_pk_mul_f32 %s, %s, %s' % (P2(Q0+2*k), P2(xs[k]), P2(xs[k])))
            for m in (4, 6):
                for k in range(2): a('v_pk_add_f32 %s, %s, %s' % (P2(S0+2*k), P2(S0+2*k), P2(xs[m+k])))
            for m in (2, 4, 6):
                for k in range(2): a('v_pk_fma_f32 %s, %s, %s, %s' % (P2(Q0+2*k), P2(xs[m+k]), P2(xs[m+k]), P2(Q0+2*k)))
            a('v_pk_add_f32 %s, %s, %s\nv_pk_add_f32 %s, %s, %s' % (P2(S0), P2(S0), P2(S0+2), P2(Q0), P2(Q0), P2(Q0+2)))
            a('v_add_f32 v%d, v%d, v%d\nv_add_f32 v%d, v%d, v%d' % (Q+i, S0, S0+1, Q+2+i, Q0, Q0+1))
        for st in bfly(a, 'v_add_f32', [Q, Q+1, Q+2, Q+3])[:4]:
            for l in st: a(l)
        a('v_and_b32 v2, 15, v1\nv_lshrrev_b32 v3, 5, v1\nv_lshl_add_u32 v2, v3, 4, v2\nv_lshlrev_b32 v2, 3, v2\nv_bfe_u32 v3, v1, 4, 1\nv_lshl_add_u32 v2, v3, 2, v2')
        a('s_lshl_b32 s61, s58, 8\ns_lshl_b32 s62, s%d, 14\ns_add_u32 s61, s61, s62' % c.s_nt)
        a('buffer_store_dword v%d, v2, s[%d:%d], s61 offen sc1' % (Q, stats, stats+3))
def k_wo(a):
    n = 'wo_kernel'
    c = gemm.config('wo', 1024, 128, 1, False, 128, 3, 2048, 128, rows4=True, KS=2, rpm=opt.rpm)
    c.lds += 16384
    a.kernel_begin(n)
    gemm_head(a, c, 4, 4, 8, 128, [(4, P_WO), (6, P_WS), (32, P_X), (34, P_W1)], (1,1))
    psrds = [(8, 6, OF, 0x400000), (12, 4, 0, 1024*2048)]
    csrds = [(24, 6, X1, 0x400000), (28, 6, ST2, 0x40000)]
    rt = res_setup(c, (32, 0, 0x400000), 2, None)
    def tail_issue(a, c, vm):
        rt(a, c, vm)
        if opt.cpf & 2: next_code(a, 'wo', 'ln2_kernel', 'w2_kernel', 2, 240, 1, c.s_wave, 4, vm)
        if opt.pf3:
            V = c.p_vfree + 4
            srd(a, 28, 34, 0, 1024*7168)
            a('v_lshrrev_b32 v%d, 4, v1\nv_mul_u32_u24 v%d, 7168, v%d\nv_and_b32 v%d, 15, v1\nv_lshl_add_u32 v%d, v%d, 7, v%d' % (V, V, V, V+1, V, V+1, V))
            a('v_cmp_lt_u32 vcc, 13, v%d\nv_mov_b32 v%d, 0x7fffffff\nv_cndmask_b32 v%d, v%d, v%d, vcc' % (V+1, V+1, V, V, V+1))
            a('s_lshr_b32 s61, s2, 3\ns_lshl_b32 s61, s61, 2\ns_add_u32 s61, s61, s%d\ns_sub_u32 s61, s61, 4\ns_mul_i32 s61, s61, %d' % (c.s_wave, 4*7168))
            a('s_bfe_u32 s62, s2, 0x20001\ns_mul_i32 s62, s62, 1792\ns_add_u32 s61, s61, s62')
            for q in range(opt.pf3):
                a('buffer_load_dword v%d, v%d, s[28:31], s61 offen\ns_add_u32 s61, s61, %d' % (V+2, V, 512*7168))
            vm.issue('pf', opt.pf3)
    c.tail_issue = tail_issue
    gemm_body(a, c, psrds, csrds)
    res_epi(a, c, 24, stats=28)
    gemm_tail(a, c, n, 4)

def k_w1(a):
    n = 'w1_kernel'
    c = gemm.config('w1', 1024, 128, 3, True, 64, 3, 7168, 128, natw=True)
    a.kernel_begin(n)
    gemm_head(a, c, 6, 8, 4, 448, [(4, P_W1), (6, P_WS), (32, P_B1), (34, P_W2)], (1,1))
    psrds = [(8, 6, H2F, 0x400000), (12, 4, 0, 1024*7168)]
    csrds = [(24, 6, HF, 2048*7168)]
    ACC = lambda j, i, r=0: (c.v_acc + (j*4+i)*4 + r) if j < 6 else (c.v_acc + 96 + ((j-6)*2+i)*4 + r)
    BT = c.lds
    c.lds += 1024
    def early_issue(a, c, vm):
        V = c.p_vfree
        srd(a, 16, 32, 0, 7168)
        a('v_lshlrev_b32 v%d, 4, v1\ns_mul_i32 s59, s%d, 448\ns_mov_b32 m0, %d' % (V, c.s_nt, BT))
        a('buffer_load_dwordx4 v%d, s[16:19], s59 offen lds' % V)
        vm.issue(0)
    c.early_issue = early_issue
    c.unroll = True
    if opt.pf4 == 2: c.iter_hook = smem_pf(c, [(34, 7168)], 1, 14)
    def tail_issue(a, c, vm):
        V = c.p_vfree
        if opt.cpf & 2: next_code(a, 'w1', 'w2_kernel', 'code_end', 1, 240, 1, c.s_wave, 4, vm)
        if opt.pf4 not in (1, 3): return
        srd(a, 28, 34, 0, 3584*2048)
        a('v_lshlrev_b32 v%d, 11, v%d\nv_lshl_add_u32 v%d, v%d, 7, v%d' % (V, c.p_vrow, V, c.p_vch, V))
        a('s_bfe_u32 s62, s2, 0x10002\ns_lshl_b32 s62, s62, 10')
        a('s_lshr_b32 s61, s2, 3\ns_lshl_b32 s63, s61, 2\ns_add_u32 s63, s63, s%d\ns_sub_u32 s63, s63, 4\ns_lshl_b32 s63, s63, 14\ns_add_u32 s63, s63, s62' % c.s_wave)
        a('buffer_load_dword v%d, v%d, s[28:31], s63 offen' % (V+1, V))
        vm.issue('pf')
        if opt.pf4 == 1:
            a('s_mul_i32 s61, s61, 20\ns_and_b32 s63, s2, 3\ns_mul_i32 s63, s63, 640\ns_add_u32 s61, s61, s63\ns_lshl_b32 s63, s%d, 3\ns_add_u32 s61, s61, s63\ns_add_u32 s61, s61, %d' % (c.s_wave, 1024-32))
            a('s_lshl_b32 s61, s61, 11\ns_add_u32 s61, s61, s62')
            a('buffer_load_dword v%d, v%d, s[28:31], s61 offen' % (V+2, V))
            vm.issue('pf')
    c.tail_issue = tail_issue
    def pre(a, c):
        a('s_lshl_b32 s58, s%d, 6\ns_add_u32 s58, s58, s%d' % (c.s_nh, c.s_col0))
        a('s_mul_i32 s59, s%d, 448\ns_sub_u32 s59, %d, s59\ns_add_u32 s60, s58, s59\ns_add_u32 s59, s%d, s59' % (c.s_nt, BT, c.s_colh))
        a('v_lshrrev_b32 v3, 4, v1\nv_lshlrev_b32 v3, 3, v3\nv_add_u32 v2, s60, v3\nv_add_u32 v3, s59, v3')
    BF = 60
    def post_b0(a, c):
        B = c.v_acc
        for j in range(6): a('ds_read_b64 v[%d:%d], v2 offset:%d' % (B+2*j, B+2*j+1, (j//2)*128 + (j%2)*32))
        for u in range(2): a('ds_read_b64 v[%d:%d], v3 offset:%d' % (B+12+2*u, B+13+2*u, 32*u))
    def post_b0b(a, c, nr):
        a('s_waitcnt lgkmcnt(%d)' % min(15, nr))
        for j in range(8):
            for e in range(2): unpack(a, c.v_free+4*j+2*e, c.v_free+4*j+2*e+1, c.v_acc+2*j+e)
    c.pre_hook, c.post_b0, c.post_b0b = pre, post_b0, post_b0b
    c.first_c = lambda c, j: 'v[%d:%d]' % (c.v_free+4*j, c.v_free+4*j+3)
    gemm_body(a, c, psrds, csrds)
    a('v_lshlrev_b32 v4, 4, v1')
    a('s_lshl_b32 s60, s%d, 1\ns_add_u32 s60, s60, s%d\ns_mul_i32 s60, s60, %d' % (c.s_mt, c.s_rh, 4*112*1024))
    a('s_mul_i32 s59, s%d, %d' % (c.s_nh, 2*112*1024))
    a('s_lshl_b32 s61, s58, 4\ns_add_u32 s61, s61, s60')
    a('s_lshl_b32 s62, s%d, 4\ns_add_u32 s62, s62, s60\ns_add_u32 s62, s62, s59' % c.s_colh)
    a('s_add_u32 s61, s61, s59')
    PK = 56
    for i in range(4):
        nj = 8 if i < 2 else 6
        xs = [ACC(j, i, r) for j in range(nj) for r in range(4)]
        for x in xs: a('v_max_f32 v%d, 0, v%d' % (x, x))
        for x in xs[::2]: a('v_pk_mul_f32 v[%d:%d], v[%d:%d], v[%d:%d]' % (x, x+1, x, x+1, x, x+1))
        pk = PK + (i % 2)*16
        for k in range(2*nj): a('v_cvt_pk_bf16_f32 v%d, v%d, v%d' % (pk+k, xs[2*k], xs[2*k+1]))
        for p in range(3):
            if p < 2: a('buffer_store_dwordx4 v[%d:%d], v4, s[24:27], s61 offen offset:%d' % (pk+4*p, pk+4*p+3, 2048*p))
            else:
                a('s_add_u32 s63, s61, 4096')
                a('buffer_store_dwordx4 v[%d:%d], v4, s[24:27], s63 offen' % (pk+4*p, pk+4*p+3))
        if i < 2:
            a('buffer_store_dwordx4 v[%d:%d], v4, s[24:27], s62 offen' % (pk+12, pk+15))
            a('s_add_u32 s62, s62, %d' % (112*1024))
        a('s_add_u32 s61, s61, %d' % (112*1024))
        if i == 1: a('s_lshl_b32 s59, s59, 1\ns_sub_u32 s61, s61, s59')
    gemm_tail(a, c, n, 6)

def k_w2(a):
    n = 'w2_kernel'
    c = gemm.config('w2', 3584, 128, 1, False, 128, 3, 2048, 128, rows4=True, KS=2, rpm=opt.rpm)
    c.lds += 16384
    a.kernel_begin(n)
    gemm_head(a, c, 7, 4, 8, 128, [(4, P_W2), (6, P_WS), (32, P_B2), (34, P_OUT)], (1,1))
    psrds = [(8, 6, HF, 2048*7168), (12, 4, 0, 3584*2048)]
    csrds = [(28, 34, 0, 0x400000)]
    c.tail_issue = res_setup(c, (6, X1, 0x400000), 5, 32)
    gemm_body(a, c, psrds, csrds)
    res_epi(a, c, 28, bias=True)
    gemm_tail(a, c, n, 7)

def build(path, **kw):
    for k, v in kw.items(): setattr(opt, k, v)
    a = Asm()
    k_pre(a)
    k_ln(a, 'ln1_kernel', 1, True)
    k_qkv(a)
    k_o(a)
    k_wo(a)
    k_ln(a, 'ln2_kernel', 5, False)
    k_w1(a)
    k_w2(a)
    a.label('code_end')
    a('s_endpgm')
    if opt.sflags:
        a.lines = [l + opt.sflags if ('buffer_store_dwordx' in l and 's[88:91]' not in l) else l for l in a.lines]
    open(path, 'w').write(a.text(verbose=kw.get('verbose', False)))

if __name__ == '__main__':
    kw = eval('dict(%s)' % (sys.argv[2] if len(sys.argv) > 2 else ''))
    build(sys.argv[1], **kw)
```

```python
import sys
from asmgen import Asm
import gemm, gen
from gen import *
FL = 0x8000
opt.plan = 'lqowab'

def rt(a, i):
    if not opt.ts: return
    a('s_memrealtime s[98:99]\ns_waitcnt lgkmcnt(0)\nv_writelane_b32 v255, s98, %d' % i)

def tile_head(a, c, xm, xn, colmul, ptrs):
    for s, o in ptrs: a('s_load_dwordx2 s[%d:%d], s[0:1], %d' % (s, s+1, o))
    bm = 16 // xm
    a('s_and_b32 s36, s2, 7\ns_lshr_b32 s37, s2, 3')
    a('s_and_b32 s38, s36, %d\ns_lshr_b32 s36, s36, %d' % (bm-1, bm.bit_length()-1))
    a('s_and_b32 s39, s37, %d\ns_lshr_b32 s37, s37, %d' % (xm-1, xm.bit_length()-1))
    a('s_mul_i32 s38, s38, %d\ns_add_u32 s%d, s38, s39' % (xm, c.s_mt))
    a('s_mul_i32 s36, s36, %d\ns_add_u32 s%d, s36, s37' % (xn, c.s_nt))
    a('s_add_u32 s39, s39, s37\ns_and_b32 s%d, s39, %d' % (c.s_rot, c.G-1))
    a('s_mul_i32 s%d, s%d, %d' % (c.s_col0, c.s_nt, colmul))
    if c.half:
        a('s_and_b32 s36, s%d, 1\ns_cmp_eq_u32 s36, 0' % c.s_nt)
        a('s_cselect_b32 s36, 384, 0\ns_cselect_b32 s37, 0, 64')
        a('s_add_u32 s%d, s%d, s36\ns_add_u32 s%d, s%d, s37' % (c.s_colh, c.s_col0, c.s_col0, c.s_col0))

def psync(a, tag, sig, s_sig, wait, s_wait):
    a('s_barrier')
    a('s_cmp_lg_u32 s42, 4\ns_cbranch_scc1 %s_sx' % tag)
    srd(a, 84, 6, FL, 16384)
    a('s_lshl_b32 s88, s%d, 7\ns_add_u32 s88, s88, %d\ns_lshl_b32 s89, s%d, 7\ns_add_u32 s89, s89, %d' % (s_sig, sig*2048, s_wait, wait*2048))
    a('v_mov_b32 v252, 0\nv_mov_b32 v253, 1\ns_mov_b32 s90, 200000')
    a('s_mov_b64 exec, 1')
    a('buffer_atomic_add v253, v252, s[84:87], s88 offen sc1')
    a.label(tag + '_sp')
    a('buffer_load_dword v253, v252, s[84:87], s89 offen sc1')
    a('s_sub_u32 s90, s90, 1\ns_waitcnt vmcnt(0)\nv_readfirstlane_b32 s91, v253')
    a('s_cmp_eq_u32 s90, 0\ns_cbranch_scc1 %s_sy' % tag)
    a('s_cmp_lt_u32 s91, 16\ns_cbranch_scc1 %s_sp' % tag)
    a.label(tag + '_sy')
    a('s_mov_b64 exec, -1')
    a.label(tag + '_sx')
    a('s_barrier')

def chain(*fs):
    fs = [f for f in fs if f]
    def g(*x):
        for f in fs: f(*x)
    return g
BAR = lambda a, c: a('s_barrier')

def ln1_body(a, c, TB):
    a('s_lshl_b32 s20, s%d, 3\ns_lshr_b32 s21, s%d, 1\ns_add_u32 s20, s20, s21\ns_and_b32 s21, s%d, 1' % (c.s_mt, c.s_nt, c.s_nt))
    a('v_lshrrev_b32 v2, 6, v0\nv_and_b32 v3, 15, v0\nv_bfe_u32 v4, v0, 4, 2')
    a('v_lshlrev_b32 v5, 11, v3\nv_lshl_add_u32 v5, v2, 8, v5\nv_lshl_add_u32 v5, v4, 4, v5')
    a('s_lshl_b32 s22, s20, 15\ns_lshl_b32 s23, s21, 10\ns_add_u32 s23, s23, s22')
    a('v_lshlrev_b32 v6, 3, v0\ns_lshl_b32 s24, s21, 11')
    a('v_lshlrev_b32 v7, 3, v3\ns_lshl_b32 s25, s20, 7')
    a('s_waitcnt lgkmcnt(0)')
    srd(a, 12, 6, MP1, 16384)
    M = 16
    for p in range(2):
        for w, ch in enumerate((1, 0)):
            a('s_add_u32 s26, s24, %d' % (p*8192 + ch*4096))
            a('buffer_load_dwordx2 v[%d:%d], v6, s[12:15], s26 offen' % (M+4*p+2*w, M+4*p+2*w+1))
    srd(a, 8, 34, 0, 0x400000)
    D = 32
    for u in range(4): a('buffer_load_dwordx4 v[%d:%d], v5, s[8:11], s23 offen offset:%d' % (D+4*u, D+4*u+3, 64*u))
    srd(a, 16, 6, ST1, 16384)
    a('buffer_load_dwordx2 v[8:9], v7, s[16:19], s25 offen')
    srd(a, 28, 6, H1F, 0x400000)
    a('v_lshrrev_b32 v6, 2, v0\nv_lshlrev_b32 v6, 6, v6\nv_and_b32 v7, 3, v0\nv_lshl_add_u32 v6, v7, 3, v6\nv_add_u32 v6, %d, v6' % TB)
    a('s_waitcnt vmcnt(5)')
    for e in range(4): a('v_add_f32 v%d, v%d, v%d' % (M+e, M+e, M+4+e))
    rndn(a, [M, M+1, M+2, M+3], [M+4, M+5])
    a('v_add_f32 v%d, 1.0, v%d\nv_add_f32 v%d, 1.0, v%d' % (M, M, M+1, M+1))
    rndn(a, [M, M+1], [M+4])
    a('ds_write_b64 v6, v[%d:%d]\nds_write_b64 v6, v[%d:%d] offset:32' % (M, M+1, M+2, M+3))
    a('v_lshlrev_b32 v6, 10, v2\nv_lshl_add_u32 v6, v4, 6, v6\nv_add_u32 v6, %d, v6' % TB)
    a('v_lshlrev_b32 v5, 12, v2\nv_lshl_add_u32 v5, v1, 4, v5\ns_lshl_b32 s23, s21, 14\ns_add_u32 s23, s23, s22')
    a('s_waitcnt lgkmcnt(0)\ns_barrier')
    T = 80; X = 48
    for u in range(4):
        for e in range(4): a('ds_read_b128 v[%d:%d], v6 offset:%d' % (T+16*u+4*e, T+16*u+4*e+3, 256*u+16*e))
    a('s_waitcnt vmcnt(1)')
    for i in range(16): unpack(a, X+2*i, X+2*i+1, D+i)
    a('s_waitcnt vmcnt(0)')
    a('v_mul_f32 v9, -v9, v8')
    for i in range(0, 32, 2): a('v_pk_fma_f32 v[%d:%d], v[%d:%d], v[8:9], v[8:9] op_sel:[0,0,1] op_sel_hi:[1,0,1]' % (X+i, X+i+1, X+i, X+i+1))
    for u in range(4):
        a('s_waitcnt lgkmcnt(%d)' % (12-4*u))
        for e in range(0, 8, 2): a('v_pk_fma_f32 v[%d:%d], v[%d:%d], v[%d:%d], v[%d:%d]' % (X+8*u+e, X+8*u+e+1, X+8*u+e, X+8*u+e+1, T+16*u+e, T+16*u+e+1, T+16*u+8+e, T+16*u+9+e))
        for e in range(4): a('v_cvt_pk_bf16_f32 v%d, v%d, v%d' % (D+4*u+e, X+8*u+2*e, X+8*u+2*e+1))
        a('buffer_store_dwordx4 v[%d:%d], v5, s[28:31], s23 offen offset:%d' % (D+4*u, D+4*u+3, 1024*u))
    a('s_waitcnt vmcnt(0)\ns_barrier')

KB, RW = 160, 176
def o_loads(a):
    srd(a, 16, 6, KVP, 0x200000); srd(a, 20, 6, ZP, 0x20000)
    a('s_lshr_b32 s60, s42, 2\ns_lshl_b32 s61, s41, 1\ns_add_u32 s60, s60, s61\ns_and_b32 s61, s42, 3')
    a('s_lshl_b32 s62, s60, 16\ns_lshl_b32 s63, s61, 10\ns_add_u32 s62, s62, s63')
    a('s_lshl_b32 s63, s60, 12\ns_lshl_b32 s64, s61, 6\ns_add_u32 s63, s63, s64')
    a('v_lshlrev_b32 v156, 4, v1\nv_lshrrev_b32 v157, 4, v1\nv_lshlrev_b32 v157, 4, v157\nv_and_b32 v158, 15, v1\nv_lshl_add_u32 v157, v158, 8, v157')
    a('buffer_load_dwordx4 v[%d:%d], v157, s[20:23], s63 offen sc1' % (KB+8, KB+11))
    for m in range(16):
        a('s_add_u32 s64, s40, %d\ns_and_b32 s64, s64, 15\ns_lshl_b32 s64, s64, 12\ns_add_u32 s64, s64, s62' % m)
        a('buffer_load_dwordx4 v[%d:%d], v156, s[16:19], s64 offen sc1' % (RW+4*m, RW+4*m+3))
    return ['oz'] + [('ok', m) for m in range(16)]
def o_reduce(a, vm):
    vm.wait('oz')
    dpp_sum(a, [KB+8+e for e in range(4)], DPP16)
    for m in range(16):
        vm.wait(('ok', m))
        if m == 0:
            for e in range(4): unpack(a, KB+2*e, KB+2*e+1, RW+e)
        else:
            for e in range(4): unpack(a, 244+2*e, 245+2*e, RW+4*m+e)
            for e in range(8): a('v_add_f32 v%d, v%d, v%d' % (KB+e, KB+e, 244+e))
    for t in range(3):
        for e in range(2): a('v_cvt_pk_bf16_f32 v%d, v%d, v%d' % (RW+2*t+e, KB+4*t+2*e, KB+4*t+2*e+1))
    a('s_lshr_b32 s60, s42, 2\ns_mul_i32 s60, s60, 6144\ns_bfe_u32 s61, s42, 0x10001\ns_lshl_b32 s61, s61, 10\ns_add_u32 s60, s60, s61\ns_and_b32 s61, s42, 1\ns_lshl_b32 s61, s61, 3\ns_add_u32 s60, s60, s61')
    a('v_add_u32 v157, s60, v156')
    for t in range(3): a('ds_write_b64 v157, v[%d:%d] offset:%d' % (RW+2*t, RW+2*t+1, 2048*t))
    a('s_waitcnt lgkmcnt(0)\ns_barrier')
def o_compute(a, PHI):
    AF = RW; R = AF + 24
    srd(a, 20, 6, OF, 0x400000)
    a('s_and_b32 s60, s42, 1\ns_mul_i32 s60, s60, 6144\nv_add_u32 v157, s60, v156')
    for t in range(3):
        for gam in range(2): a('ds_read_b128 v[%d:%d], v157 offset:%d' % (AF+(t*2+gam)*4, AF+(t*2+gam)*4+3, (t*2+gam)*1024))
    a('s_bfe_u32 s60, s42, 0x10001\ns_lshl_b32 s61, s93, 1\ns_add_u32 s60, s60, s61\ns_lshl_b32 s60, s60, 17\ns_lshl_b32 s61, s58, 10\ns_add_u32 s60, s60, s61')
    a('s_waitcnt lgkmcnt(0)')
    for gam in range(2):
        for i in range(4):
            for t in range(3):
                d = R + (i*3+t)*4; A_ = AF+(t*2+gam)*4; B_ = PHI[(i, gam)]
                a('v_mfma_f32_16x16x32_bf16 v[%d:%d], v[%d:%d], v[%d:%d], %s' % (d, d+3, A_, A_+3, B_, B_+3, '0' if gam == 0 else 'v[%d:%d]' % (d, d+3)))
    dens = [R+(i*3+2)*4 for i in range(4)]
    for d in dens: a('v_add_f32 v%d, 0x358637bd, v%d' % (d, d))
    for d in dens: a('v_rcp_f32 v%d, v%d' % (d, d))
    for i in range(4):
        xs = list(range(R+i*12, R+i*12+8))
        for x in xs[::2]: a('v_pk_mul_f32 v[%d:%d], v[%d:%d], v[%d:%d] op_sel_hi:[1,0]' % (x, x+1, x, x+1, dens[i], dens[i]+1))
        for e in range(4): a('v_cvt_pk_bf16_f32 v%d, v%d, v%d' % (KB+4*i+e, xs[2*e], xs[2*e+1]))
        a('buffer_store_dwordx4 v[%d:%d], v156, s[20:23], s60 offen' % (KB+4*i, KB+4*i+3))
        a('s_add_u32 s60, s60, 32768')
    a('s_waitcnt vmcnt(0)')

def ph_qkv(P, C, st):
    c = gemm.config('qkv', 1024, 128, 3, False, 64, 3, 6144, 2048, swap_frags=(4, 5), natw=True)
    WPH = c.lds; FLG = WPH + 4096
    EB = c.slot
    IMG = EB; VB = EB + 32768; QB = VB + 16384; GV = QB + 16384
    s_hd = 58; sL = 60
    tile_head(P, c, 8, 4, 128, [(4, P_WQKV), (6, P_WS), (32, P_WPHI), (74, P_C), (76, P_WMOD), (78, P_WO)])
    c.srd_hook = lambda a: [srd(a, *x) for x in [(8, 6, H1F, 0x400000), (12, 4, 0, 1024*6144)]]
    def boundary(a, c, vm):
        a('s_barrier')
        psync(a, 'f1', 1, c.s_mt, 1, c.s_mt)
    c.boundary = boundary
    if opt.xsc1: c.xflags = ' sc1'
    def early_issue(a, c, vm):
        V = c.p_vfree
        srd(a, 16, 32, 0, 65536)
        a('v_lshrrev_b32 v%d, 3, v1\nv_and_b32 v%d, 2, v%d\nv_xor_b32 v%d, v1, v%d\nv_lshlrev_b32 v%d, 4, v%d' % (V, V, V, V, V, V, V))
        a('s_sub_u32 s59, s%d, 4\ns_lshl_b32 s59, s59, 10\ns_add_u32 m0, s59, %d\ns_lshl_b32 s61, s%d, 12\ns_add_u32 s59, s59, s61' % (c.s_wave, WPH, c.s_nt))
        a('buffer_load_dwordx4 v%d, s[16:19], s59 offen lds' % V)
        vm.issue('wphi')
    def tail_issue(a, c, vm):
        V = (c.p_vfree + 3)//4*4
        srd(a, 20, 74, 0, 2048); srd(a, 24, 76, 0, 1024*12288)
        a('s_lshr_b32 s61, s2, 6\ns_lshl_b32 s62, s61, 9\ns_mul_i32 s63, s61, %d' % (256*12288))
        a('s_and_b32 s64, s2, 63\ns_lshl_b32 s65, s64, 7\ns_add_u32 s63, s63, s65\ns_add_u32 s63, s63, 4096')
        a('v_and_b32 v%d, 255, v0' % (V+38))
        gemv_issue(a, 8, V+38, V, 20, 24, 62, 63, vm)
        if opt.pf2:
            srd(a, 28, 78, 0, 1024*2048)
            a('v_lshlrev_b32 v%d, 11, v%d\nv_lshl_add_u32 v%d, v%d, 7, v%d' % (V+39, c.p_vrow, V+39, c.p_vch, V+39))
            a('s_lshr_b32 s62, s2, 3\ns_lshl_b32 s62, s62, 2\ns_add_u32 s62, s62, s%d\ns_sub_u32 s62, s62, 4\ns_lshl_b32 s62, s62, 14' % c.s_wave)
            a('s_bfe_u32 s63, s2, 0x10002\ns_lshl_b32 s63, s63, 10\ns_add_u32 s62, s62, s63')
            a('buffer_load_dword v%d, v%d, s[28:31], s62 offen' % (V+37, V+39))
            vm.issue('pf')
    PHI = {}
    def ptail(a, c, vm):
        V = (c.p_vfree + 3)//4*4
        QF = V + 40; P_ = QF + 16; E = P_ + 32; MX = E + 32; MN = MX + 4; W = MN + 4; T = W + 8
        assert E + 32 <= 156 and P_ >= 48
        srd(a, 24, 6, MP2, 65536)
        a('s_mov_b32 s%d, 0x%x' % (sL, LOG2E))
        a('s_and_b32 s%d, s%d, 1' % (c.s_nh, c.s_wave))
        wphi_read(a, W, c.s_nh, WPH, 2, 3)
        a('s_lshl_b32 s59, s%d, 1\ns_add_u32 s%d, s59, s%d' % (c.s_nt, s_hd, c.s_nh))
        a('s_lshl_b32 s61, s61, 14\ns_lshl_b32 s64, s64, 8\ns_add_u32 s64, s64, s61')
        a('s_sub_u32 s61, s%d, 4\ns_lshl_b32 s62, s61, 12\ns_add_u32 s62, s62, %d' % (c.s_wave, QB))
        a('v_lshl_add_u32 v3, v1, 4, s62')
        if opt.eprio: a('s_setprio %d' % opt.eprio)
        a('s_barrier')
        for i in range(4): a('ds_read_b128 v[%d:%d], v3 offset:%d' % (QF+4*i, QF+4*i+3, 1024*i))
        a('s_waitcnt lgkmcnt(0)')
        if not opt.gv_late: pass
        def sink(i, sg, B): PHI[(i, sg)] = B
        feat(a, QF, P_, E, MX, MN, W, sL, sink)
        gemv_math(a, 8, V, T, vm, 59)
        a('v_lshrrev_b32 v2, 4, v%d\nv_lshlrev_b32 v2, 8, v2\nv_and_b32 v5, 7, v1\nv_lshl_add_u32 v2, v5, 5, v2\nv_add_u32 v2, %d, v2' % (V+38, GV))
        a('ds_write_b128 v2, v[%d:%d]\nds_write_b128 v2, v[%d:%d] offset:16' % (T+8, T+11, T+12, T+15))
        a('v_mov_b32 v5, %d\nv_mov_b32 v6, 1\ns_waitcnt lgkmcnt(0)' % (FLG+16))
        a('s_mov_b64 exec, 1\nds_add_rtn_u32 v6, v5, v6\ns_mov_b64 exec, -1\ns_waitcnt lgkmcnt(0)')
        a('v_readfirstlane_b32 s59, v6\ns_cmp_lg_u32 s59, 3\ns_cbranch_scc1 qkv_gvx')
        a('v_lshlrev_b32 v5, 2, v1\nv_add_u32 v6, %d, v5' % GV)
        for p in range(16): a('ds_read_b32 v%d, v6 offset:%d' % (T+p, 256*p))
        a('s_waitcnt lgkmcnt(0)')
        for s_ in (8, 4, 2, 1):
            for p in range(s_): a('v_add_f32 v%d, v%d, v%d' % (T+p, T+p, T+p+s_))
        a('buffer_store_dword v%d, v5, s[24:27], s64 offen sc1' % T)
        a.label('qkv_gvx')
        a('s_setprio 0\ns_waitcnt vmcnt(0)')
        psync(a, 'f2', 2, c.s_nt, 2, c.s_nt)
        a('s_mov_b32 s93, s%d' % c.s_mt)
        st['vm_init'] = o_loads(a)
    c.first_c = lambda c, j: '0'
    c.unroll = opt.unroll
    c.early_issue, c.tail_issue, c.ptail = early_issue, tail_issue, ptail
    gemm.producer(P, c, None)
    st['PHI'] = PHI
    a = C
    tile_head(a, c, 8, 4, 128, [(6, P_WS), (34, P_X)])
    ln1_body(a, c, 2*c.slot)
    rt(a, 1)
    for x in [(24, 6, KVP, 0x200000), (28, 6, ZP, 0x20000)]: srd(a, *x)
    def zero_flags(a, c):
        a('v_lshlrev_b32 v2, 2, v1\nv_add_u32 v2, %d, v2\nv_mov_b32 v3, 0\nds_write_b32 v2, v3\ns_waitcnt lgkmcnt(0)' % FLG)
    c.pre_hook2 = chain(zero_flags, BAR)
    c.post_b0 = lambda a, c: rt(a, 2)
    gemm.consumer(a, c)
    rt(a, 3)
    a('s_lshl_b32 s%d, s%d, 1\ns_add_u32 s%d, s%d, s%d' % (s_hd, c.s_nt, s_hd, s_hd, c.s_nh))
    wphi_read(a, c.v_free, c.s_nh, WPH, 2, 3)
    W = c.v_free
    ACC = lambda j, i, r=0: c.v_acc + (j*4+i)*4 + r
    QF = 8; P_ = 24; E = 56
    MX = W + 8; MN = MX + 4; T = MN + 4
    a('s_mov_b32 s%d, 0x%x' % (sL, LOG2E))
    a('v_lshlrev_b32 v4, 4, v1')
    a('s_lshl_b32 s61, s%d, 12\ns_add_u32 s61, s61, %d' % (c.s_wave, QB))
    a('v_add_u32 v3, s61, v4')
    for i in range(4):
        for h in range(2):
            for e in range(2): a('v_cvt_pk_bf16_f32 v%d, v%d, v%d' % (P_+4*i+2*h+e, ACC(h, i, 2*e), ACC(h, i, 2*e+1)))
        a('ds_write_b128 v3, v[%d:%d] offset:%d' % (P_+4*i, P_+4*i+3, 1024*i))
    a('s_waitcnt lgkmcnt(0)\ns_barrier')
    a('s_lshl_b32 s61, s%d, 1\ns_add_u32 s61, s61, s%d\ns_lshl_b32 s61, s61, 12\ns_add_u32 s61, s61, %d' % (c.s_nh, c.s_rh, VB))
    a('v_add_u32 v3, s61, v4')
    for gam in range(2):
        for dt in range(2):
            q = c.v_acc + (gam*2+dt)*4
            for h in range(2):
                for e in range(2): a('v_cvt_pk_bf16_f32 v%d, v%d, v%d' % (q+2*h+e, ACC(4+dt, 2*gam+h, 2*e), ACC(4+dt, 2*gam+h, 2*e+1)))
            a('ds_write_b128 v3, v[%d:%d] offset:%d' % (q, q+3, (gam*2+dt)*1024))
    for i in range(4):
        for h in range(2):
            for e in range(2): a('v_cvt_pk_bf16_f32 v%d, v%d, v%d' % (QF+4*i+2*h+e, ACC(2+h, i, 2*e), ACC(2+h, i, 2*e+1)))
    def hrow(dst, row, t):
        a('v_lshrrev_b32 v%d, 1, v%d\nv_and_b32 v%d, 3, v%d\nv_lshlrev_b32 v%d, 2, v%d' % (dst, row, dst, dst, dst, dst))
        a('v_and_b32 v%d, 1, v%d\nv_or_b32 v%d, v%d, v%d' % (t, row, dst, dst, t))
        a('v_lshrrev_b32 v%d, 2, v%d\nv_and_b32 v%d, 2, v%d\nv_or_b32 v%d, v%d, v%d' % (t, row, t, t, dst, dst, t))
    WA = T; RA = WA + 4
    a('v_and_b32 v2, 15, v1\nv_lshrrev_b32 v3, 4, v1')
    hrow(6, 2, 5)
    a('v_xor_b32 v6, v6, v3\nv_lshlrev_b32 v2, 7, v2')
    a('s_lshl_b32 s61, s%d, 13\ns_add_u32 s61, s61, %d\nv_add_u32 v2, s61, v2' % (c.s_wave, IMG))
    for u in range(4): a('v_xor_b32 v5, %d, v6\nv_lshl_add_u32 v%d, v5, 3, v2' % (4*u, WA+u))
    a('v_lshrrev_b32 v2, 2, v1\nv_and_b32 v3, 3, v1')
    hrow(6, 2, 5)
    a('v_xor_b32 v6, v6, v3\nv_lshlrev_b32 v2, 7, v2')
    a('s_lshl_b32 s61, s%d, 13\ns_add_u32 s61, s61, %d\nv_add_u32 v2, s61, v2' % (c.s_nh, IMG))
    a('s_lshl_b32 s61, s%d, 3\nv_xor_b32 v6, s61, v6' % c.s_rh)
    for u in range(2): a('v_xor_b32 v5, %d, v6\nv_lshl_add_u32 v%d, v5, 3, v2' % (4*u, RA+u))
    def sink(i, sg, B):
        for ft in range(2): a('ds_write_b64 v%d, v[%d:%d] offset:%d' % (WA+2*sg+ft, B+2*ft, B+2*ft+1, i*2048))
    feat(a, QF, P_, E, MX, MN, W, sL, sink)
    a('s_waitcnt lgkmcnt(0)')
    a('s_lshl_b32 s61, s%d, 2\ns_add_u32 s61, s61, %d\nv_mov_b32 v2, s61\nv_mov_b32 v3, 1\nds_write_b32 v2, v3\nv_xor_b32 v2, 8, v2' % (c.s_wave, FLG))
    a.label('qkv_spin')
    a('ds_read_b32 v3, v2\ns_waitcnt lgkmcnt(0)\nv_readfirstlane_b32 s61, v3\ns_cmp_eq_u32 s61, 0\ns_cbranch_scc1 qkv_spin')
    AF = 8; VF = 40; ONE = 72; KV = ACC(2, 0)
    a('s_lshl_b32 s61, s%d, 13\ns_add_u32 s61, s61, %d\nv_add_u32 v3, s61, v4' % (c.s_nh, VB))
    for gp in range(4):
        rhp, gam = gp // 2, gp % 2
        for ftl in range(2):
            for t in range(2):
                q = AF + (ftl*4+gp)*4 + 2*t
                a('ds_read_b64_tr_b16 v[%d:%d], v%d offset:%d' % (q, q+1, RA+ftl, rhp*16384 + (gam*32 + t*16)*128))
        for dt in range(2):
            q = VF + (dt*4+gp)*4
            a('ds_read_b128 v[%d:%d], v3 offset:%d' % (q, q+3, (gp*2+dt)*1024))
    for e in range(4): a('v_mov_b32 v%d, 0x3f803f80' % (ONE+e))
    for gp in range(4):
        a('s_waitcnt lgkmcnt(%d)' % min(12, 6*(3-gp)))
        for ftl in range(2):
            for t in range(3):
                d = KV + (ftl*3+t)*4; A_ = AF + (ftl*4+gp)*4
                B_ = VF + (t*4+gp)*4 if t < 2 else ONE
                a('v_mfma_f32_16x16x32_bf16 v[%d:%d], v[%d:%d], v[%d:%d], %s' % (d, d+3, A_, A_+3, B_, B_+3, '0' if gp == 0 else 'v[%d:%d]' % (d, d+3)))
    a('s_lshl_b32 s61, s%d, 4\ns_add_u32 s61, s61, s%d' % (s_hd, c.s_mt))
    a('s_lshl_b32 s63, s61, 12\ns_lshl_b32 s64, s%d, 11\ns_add_u32 s63, s63, s64' % c.s_rh)
    a('s_lshl_b32 s61, s61, 8\ns_lshl_b32 s64, s%d, 7\ns_add_u32 s61, s61, s64' % c.s_rh)
    a('v_and_b32 v2, 15, v1\nv_cmp_eq_u32 vcc, 0, v2')
    for ftl in range(2):
        for e in range(4): a('v_cvt_pk_bf16_f32 v%d, v%d, v%d' % (AF+4*ftl+e, KV+ftl*12+2*e, KV+ftl*12+2*e+1))
        a('buffer_store_dwordx4 v[%d:%d], v4, s[24:27], s63 offen offset:%d' % (AF+4*ftl, AF+4*ftl+3, ftl*1024))
    a('s_and_saveexec_b64 s[64:65], vcc')
    for ftl in range(2):
        d = KV + (ftl*3+2)*4
        a('buffer_store_dwordx4 v[%d:%d], v1, s[28:31], s61 offen offset:%d' % (d, d+3, ftl*64))
    a('s_mov_b64 exec, s[64:65]')
    rt(a, 4)
    a('s_waitcnt vmcnt(0)\ns_barrier\ns_barrier')
    rt(a, 5)
    vm = gemm.VM(a); vm.ops = o_loads(a)
    o_reduce(a, vm)
    a('s_barrier')
    rt(a, 6)
    return c

def res_phase(c, xsrd, chunks, bias):
    XT = c.slot*c.S
    nv = len(chunks)
    def tail(a, c, vm):
        V = c.p_vfree
        srd(a, 16, *xsrd)
        a('v_xor_b32 v%d, v%d, v%d\nv_lshlrev_b32 v%d, 4, v%d\nv_lshl_add_u32 v%d, v%d, 11, v%d' % (V, c.p_vrow, c.p_vch, V, V, V, c.p_vrow, V))
        a('s_sub_u32 s59, s%d, 4\ns_lshl_b32 s60, s%d, 2\ns_add_u32 s60, s60, s59\ns_lshl_b32 s60, s60, 16\ns_lshl_b32 s61, s%d, 7\ns_add_u32 s60, s60, s61' % (c.s_wave, c.s_mt, c.s_nt))
        a('s_lshl_b32 s59, s59, 12\ns_add_u32 s59, s59, %d' % XT)
        for i in range(4):
            a('s_add_u32 m0, s59, %d' % (1024*i))
            a('buffer_load_dwordx4 v%d, s[16:19], s60 offen sc1 lds' % V)
            a('s_add_u32 s60, s60, 16384')
        vm.issue('op', 4)
    def early(a, c, vm):
        V = c.p_vfree
        srd(a, 20, 6, MP2, 65536)
        a('v_lshrrev_b32 v%d, 4, v1\nv_lshlrev_b32 v%d, 14, v%d\nv_and_b32 v%d, 15, v1\nv_lshl_add_u32 v%d, v%d, 4, v%d' % (V+1, V+1, V+1, V+2, V+1, V+2, V+1))
        for q, ch in enumerate(chunks):
            a('s_lshl_b32 s61, s%d, 8\ns_add_u32 s61, s61, %d\ns_mov_b32 m0, %d' % (c.s_nt, (ch-2)*4096, XT + 1024*(q+1)))
            a('buffer_load_dwordx4 v%d, s[20:23], s61 offen sc1 lds' % (V+1))
            vm.issue(0)
        if bias:
            srd(a, 24, bias, 0, 2048)
            a('v_lshlrev_b32 v%d, 4, v1\ns_lshl_b32 s61, s%d, 7\ns_mov_b32 m0, %d' % (V+2, c.s_nt, XT))
            a('buffer_load_dwordx4 v%d, s[24:27], s61 offen lds' % (V+2))
            vm.issue(0)
    def pre_b1(a, c, vm):
        V = c.p_vfree + 4
        a('v_lshlrev_b32 v%d, 2, v1\nv_add_u32 v%d, %d, v%d' % (V, V, XT, V))
        for q in range(nv):
            for p in range(4): a('ds_read_b32 v%d, v%d offset:%d' % (V+1+4*q+p, V, 1024*(q+1) + 256*p))
        a('s_waitcnt lgkmcnt(0)')
        for q, ch in enumerate(chunks):
            r = V+1+4*q
            a('v_add_f32 v%d, v%d, v%d\nv_add_f32 v%d, v%d, v%d\nv_add_f32 v%d, v%d, v%d' % (r, r, r+1, r+2, r+2, r+3, r, r, r+2))
            rnd1(a, r)
            if ch == 4:
                a('v_add_f32 v%d, 1.0, v%d' % (r, r)); rnd1(a, r)
            a('ds_write_b32 v%d, v%d offset:%d' % (V, r, 4096 + 256*q))
        a('s_waitcnt lgkmcnt(0)')
    XA = lambda c: c.v_free + 16 + 48 + 8
    def pre(a, c):
        a('v_and_b32 v2, 7, v1\nv_lshrrev_b32 v3, 5, v1\nv_xor_b32 v2, v2, v3\nv_lshlrev_b32 v2, 4, v2\nv_bfe_u32 v3, v1, 4, 1\nv_lshl_add_u32 v2, v3, 3, v2')
        a('v_and_b32 v3, 15, v1\nv_lshl_add_u32 v2, v3, 7, v2\ns_lshl_b32 s61, s%d, 12\ns_add_u32 s61, s61, %d\nv_add_u32 v%d, s61, v2' % (c.s_wave, XT, XA(c)))
        for j in range(1, 4): a('v_xor_b32 v%d, %d, v%d' % (XA(c)+j, 32*j, XA(c)))
        a('v_lshrrev_b32 v3, 4, v1\nv_lshlrev_b32 v2, 3, v3\nv_lshlrev_b32 v3, 4, v3\nv_add_u32 v2, %d, v2\nv_add_u32 v3, %d, v3' % (XT, XT+4096))
    def post_b0(a, c):
        B = c.v_free + 16 + 48
        if bias:
            for j in range(4): a('ds_read_b64 v[%d:%d], v2 offset:%d' % (B+2*j, B+2*j+1, 32*j))
    def post_b0b(a, c, nr):
        XR = c.v_free; B = XR + 16 + 48
        if bias:
            a('s_waitcnt lgkmcnt(%d)' % min(15, nr))
            for j in range(4):
                for e in range(2): unpack(a, XR+4*j+2*e, XR+4*j+2*e+1, B+2*j+e)
    def post_b1(c):
        GA = c.v_free + 16
        return ['ds_read_b128 v[%d:%d], v3 offset:%d' % (GA+16*q+4*j, GA+16*q+4*j+3, 256*q + 64*j) for q in range(nv) for j in range(4)]
    def last_reads(c):
        XR = c.v_free
        return ['ds_read_b64 v[%d:%d], v%d offset:%d' % (XR+8*i+2*j, XR+8*i+2*j+1, XA(c)+j, 2048*i) for i in range(2) for j in range(4)]
    c.early_issue, c.pre_b1, c.pre_hook, c.post_b0, c.post_b0b, c.post_b1, c.last_reads = early, pre_b1, pre, post_b0, post_b0b, post_b1, last_reads
    c.first_c = (lambda c, j: 'v[%d:%d]' % (c.v_free+4*j, c.v_free+4*j+3)) if bias else (lambda c, j: '0')
    c.pre_last_bar = lambda a, c, vm: vm.wait('op')
    return tail

P2 = lambda x: 'v[%d:%d]' % (x, x+1)
def res_out(a, c, sOut):
    XR = c.v_free; GA = XR + 16
    ACC = lambda j, i, r=0: c.v_acc + (i*4+j)*4 + r
    a('s_lshl_b32 s58, s%d, 2\ns_add_u32 s58, s58, s%d' % (c.s_mt, c.s_wave))
    a('s_lshl_b32 s60, s58, 16\ns_lshl_b32 s61, s%d, 7\ns_add_u32 s60, s60, s61' % c.s_nt)
    U = 12; PK = 44
    a('v_and_b32 v2, 15, v1\nv_lshlrev_b32 v2, 11, v2\nv_bfe_u32 v3, v1, 4, 1\nv_lshl_add_u32 v2, v3, 5, v2\nv_lshrrev_b32 v3, 5, v1\nv_lshl_add_u32 v2, v3, 4, v2')
    a('s_add_u32 s61, s60, 32768')
    a('s_waitcnt lgkmcnt(0)')
    def part(i, store=True):
        for j in range(4):
            for e in range(2): unpack(a, U+16*i+4*j+2*e, U+16*i+4*j+2*e+1, XR+8*i+2*j+e)
        for j in range(4):
            for r in (0, 2): a('v_pk_fma_f32 %s, %s, %s, %s' % (P2(ACC(j,i,r)), P2(ACC(j,i,r)), P2(GA+4*j+r), P2(U+16*i+4*j+r)))
    def out(i):
        for j in range(4):
            for e in range(2): a('v_cvt_pk_bf16_f32 v%d, v%d, v%d' % (PK+8*i+2*j+e, ACC(j,i,2*e), ACC(j,i,2*e+1)))
        for jp in range(2):
            for e in range(2): a('v_permlane16_swap_b32 v%d, v%d' % (PK+8*i+4*jp+e, PK+8*i+4*jp+2+e))
        for jp in range(2):
            a('buffer_store_dwordx4 v[%d:%d], v2, s[%d:%d], s%d offen offset:%d' % (PK+8*i+4*jp, PK+8*i+4*jp+3, sOut, sOut+3, 60+i, 64*jp))
    return part, out

def ph_wo(P, C, st):
    c = gemm.config('wo', 1024, 128, 1, False, 128, 3, 2048, 128, rows4=True, KS=2, rpm=opt.rpm, slot0=1, unroll=True)
    tile_head(P, c, 4, 8, 128, [(4, P_WO), (32, P_X), (34, P_W1)])
    c.srd_hook = lambda a: [srd(a, *x) for x in [(8, 6, OF, 0x400000), (12, 4, 0, 1024*2048)]]
    c.vm_init = st['vm_init']
    if opt.xsc1: c.xflags = ' sc1'
    def boundary(a, c, vm):
        o_reduce(a, vm)
        o_compute(a, st['PHI'])
        psync(a, 'f3', 3, 93, 3, c.s_mt)
    c.boundary = boundary
    c.tail_issue = res_phase(c, (32, 0, 0x400000), [2, 4, 3], None)
    gemm.producer(P, c, None)
    assert c.vm.done == len(c.vm.ops) - 1
    P('s_mov_b32 s93, s%d' % c.s_mt)
    a = C
    tile_head(a, c, 4, 8, 128, [])
    for x in [(24, 6, X1, 0x400000), (28, 6, ST2, 0x40000), (16, 6, H2F, 0x400000)]: srd(a, *x)
    c.pre_hook2 = BAR
    c.post_b0 = chain(lambda a, c: rt(a, 7), c.post_b0)
    gemm.consumer(a, c)
    rt(a, 8)
    ACC = lambda j, i, r=0: c.v_acc + (i*4+j)*4 + r
    part, out = res_out(a, c, 24)
    part(0); part(1)
    Q = 60
    for i in range(2):
        xs = [ACC(j,i,r) for j in range(4) for r in (0, 2)]
        S0, Q0 = 64+8*i, 68+8*i
        for k in range(2): a('v_pk_add_f32 %s, %s, %s' % (P2(S0+2*k), P2(xs[k]), P2(xs[2+k])))
        for k in range(2): a('v_pk_mul_f32 %s, %s, %s' % (P2(Q0+2*k), P2(xs[k]), P2(xs[k])))
        for m in (4, 6):
            for k in range(2): a('v_pk_add_f32 %s, %s, %s' % (P2(S0+2*k), P2(S0+2*k), P2(xs[m+k])))
        for m in (2, 4, 6):
            for k in range(2): a('v_pk_fma_f32 %s, %s, %s, %s' % (P2(Q0+2*k), P2(xs[m+k]), P2(xs[m+k]), P2(Q0+2*k)))
        a('v_pk_add_f32 %s, %s, %s\nv_pk_add_f32 %s, %s, %s' % (P2(S0), P2(S0), P2(S0+2), P2(Q0), P2(Q0), P2(Q0+2)))
        a('v_add_f32 v%d, v%d, v%d\nv_add_f32 v%d, v%d, v%d' % (Q+i, S0, S0+1, Q+2+i, Q0, Q0+1))
    for s_ in bfly(a, 'v_add_f32', [Q, Q+1, Q+2, Q+3])[:4]:
        for l in s_: a(l)
    a('v_and_b32 v4, 15, v1\nv_lshrrev_b32 v3, 5, v1\nv_lshl_add_u32 v4, v3, 4, v4\nv_lshlrev_b32 v4, 3, v4\nv_bfe_u32 v3, v1, 4, 1\nv_lshl_add_u32 v4, v3, 2, v4')
    a('s_lshl_b32 s63, s58, 8\ns_lshl_b32 s62, s%d, 14\ns_add_u32 s62, s63, s62' % c.s_nt)
    a('buffer_store_dword v%d, v4, s[28:31], s62 offen sc1' % Q)
    a('v_and_b32 v4, 15, v1\nv_lshlrev_b32 v5, 3, v4\nv_lshrrev_b32 v3, 4, v1\nv_lshl_add_u32 v5, v3, 16, v5')
    a('v_lshlrev_b32 v4, 4, v4\nv_bfe_u32 v3, v1, 4, 1\nv_lshl_add_u32 v4, v3, 9, v4\nv_lshrrev_b32 v3, 5, v1\nv_lshl_add_u32 v4, v3, 8, v4')
    a('s_waitcnt vmcnt(0)\ns_barrier')
    out(0); out(1)
    a('s_barrier')
    rt(a, 9)
    L = 64
    for q in range(4):
        for i in range(2): a('buffer_load_dwordx2 v[%d:%d], v5, s[28:31], s63 offen offset:%d sc1' % (L+8*i+2*q, L+8*i+2*q+1, 128*i))
        if q < 3: a('s_add_u32 s63, s63, 16384')
    a('s_lshl_b32 s62, s58, 16\ns_lshl_b32 s63, s%d, 11\ns_add_u32 s62, s62, s63\ns_add_u32 s63, s62, 32768' % c.s_nt)
    a('v_mov_b32 v84, 0x3a800000')
    a('s_waitcnt vmcnt(0)')
    for i in range(2):
        b = L+8*i
        a('v_pk_add_f32 %s, %s, %s\nv_pk_add_f32 %s, %s, %s\nv_pk_add_f32 %s, %s, %s' % (P2(b), P2(b), P2(b+2), P2(b+4), P2(b+4), P2(b+6), P2(b), P2(b), P2(b+4)))
    xg_sum(a, [L, L+1, L+8, L+9], [80, 81, 82, 83])
    for i in range(2):
        b = L+8*i
        a('v_mul_f32 v%d, v84, v%d\nv_mul_f32 v%d, v%d, v%d\nv_fma_f32 v%d, v%d, v84, -v%d' % (b+3, b, b+2, b+3, b+3, b+2, b+1, b+2))
        a('v_max_f32 v%d, 0, v%d\nv_add_f32 v%d, 0x3727c5ac, v%d\nv_rsq_f32 v%d, v%d\nv_mul_f32 v%d, -v%d, v%d' % (b+2, b+2, b+2, b+2, b+2, b+2, b+3, b+3, b+2))
    A2 = c.v_free + 32; S2 = A2 + 16; PK = 88
    for i in range(2):
        b = L+8*i+2
        for j in range(4):
            for r in (0, 2): a('v_pk_fma_f32 %s, %s, %s, %s op_sel:[0,0,1] op_sel_hi:[1,0,1]' % (P2(ACC(j,i,r)), P2(ACC(j,i,r)), P2(b), P2(b)))
        for j in range(4):
            for r in (0, 2): a('v_pk_fma_f32 %s, %s, %s, %s' % (P2(ACC(j,i,r)), P2(ACC(j,i,r)), P2(A2+4*j+r), P2(S2+4*j+r)))
        for j in range(4):
            for e in range(2): a('v_cvt_pk_bf16_f32 v%d, v%d, v%d' % (PK+8*i+2*j+e, ACC(j,i,2*e), ACC(j,i,2*e+1)))
        for jp in range(2):
            for e in range(2): a('v_permlane16_swap_b32 v%d, v%d' % (PK+8*i+4*jp+e, PK+8*i+4*jp+2+e))
        for jp in range(2):
            a('buffer_store_dwordx4 v[%d:%d], v4, s[16:19], s%d offen offset:%d' % (PK+8*i+4*jp, PK+8*i+4*jp+3, 62+i, 1024*jp))
    a('s_waitcnt vmcnt(0)\ns_barrier')
    rt(a, 10)
    return c

def ph_w1(P, C, st):
    c = gemm.config('w1', 1024, 128, 3, True, 64, 3, 7168, 128, natw=True)
    BT = c.lds
    tile_head(P, c, 8, 4, 448, [(4, P_W1), (32, P_B1), (34, P_W2)])
    c.srd_hook = lambda a: [srd(a, *x) for x in [(8, 6, H2F, 0x400000), (12, 4, 0, 1024*7168)]]
    if opt.xsc1: c.xflags = ' sc1'
    def boundary(a, c, vm):
        psync(a, 'f4', 4, 93, 4, 93)
        psync(a, 'f5', 5, 93, 5, c.s_mt)
    c.boundary = boundary
    def early_issue(a, c, vm):
        V = c.p_vfree
        srd(a, 16, 32, 0, 7168)
        a('v_lshlrev_b32 v%d, 4, v1\ns_mul_i32 s59, s%d, 448\ns_mov_b32 m0, %d' % (V, c.s_nt, BT))
        a('buffer_load_dwordx4 v%d, s[16:19], s59 offen lds' % V)
        vm.issue(0)
    def tail_issue(a, c, vm):
        V = c.p_vfree
        if opt.pf4 not in (1, 3): return
        srd(a, 28, 34, 0, 3584*2048)
        a('v_lshlrev_b32 v%d, 11, v%d\nv_lshl_add_u32 v%d, v%d, 7, v%d' % (V, c.p_vrow, V, c.p_vch, V))
        a('s_bfe_u32 s62, s2, 0x10002\ns_lshl_b32 s62, s62, 10')
        a('s_lshr_b32 s61, s2, 3\ns_lshl_b32 s63, s61, 2\ns_add_u32 s63, s63, s%d\ns_sub_u32 s63, s63, 4\ns_lshl_b32 s63, s63, 14\ns_add_u32 s63, s63, s62' % c.s_wave)
        a('buffer_load_dword v254, v%d, s[28:31], s63 offen' % V)
        vm.issue('pf')
        if opt.pf4 == 1:
            a('s_mul_i32 s61, s61, 20\ns_and_b32 s63, s2, 3\ns_mul_i32 s63, s63, 640\ns_add_u32 s61, s61, s63\ns_lshl_b32 s63, s%d, 3\ns_add_u32 s61, s61, s63\ns_add_u32 s61, s61, %d' % (c.s_wave, 1024-32))
            a('s_lshl_b32 s61, s61, 11\ns_add_u32 s61, s61, s62')
            a('buffer_load_dword v254, v%d, s[28:31], s61 offen' % V)
            vm.issue('pf')
    c.early_issue, c.tail_issue = early_issue, tail_issue
    c.unroll = opt.unroll
    gemm.producer(P, c, None)
    P('s_mov_b32 s93, s%d' % c.s_mt)
    st['vm_init'] = c.vm.ops[c.vm.done+1:]
    a = C
    tile_head(a, c, 8, 4, 448, [])
    srd(a, 24, 6, HF, 2048*7168)
    ACC = lambda j, i, r=0: (c.v_acc + (j*4+i)*4 + r) if j < 6 else (c.v_acc + 96 + ((j-6)*2+i)*4 + r)
    def pre(a, c):
        a('s_lshl_b32 s58, s%d, 6\ns_add_u32 s58, s58, s%d' % (c.s_nh, c.s_col0))
        a('s_mul_i32 s59, s%d, 448\ns_sub_u32 s59, %d, s59\ns_add_u32 s60, s58, s59\ns_add_u32 s59, s%d, s59' % (c.s_nt, BT, c.s_colh))
        a('v_lshrrev_b32 v3, 4, v1\nv_lshlrev_b32 v3, 3, v3\nv_add_u32 v2, s60, v3\nv_add_u32 v3, s59, v3')
    def post_b0(a, c):
        rt(a, 11)
        B = c.v_acc
        for j in range(6): a('ds_read_b64 v[%d:%d], v2 offset:%d' % (B+2*j, B+2*j+1, (j//2)*128 + (j%2)*32))
        for u in range(2): a('ds_read_b64 v[%d:%d], v3 offset:%d' % (B+12+2*u, B+13+2*u, 32*u))
    def post_b0b(a, c, nr):
        a('s_waitcnt lgkmcnt(%d)' % min(15, nr))
        for j in range(8):
            for e in range(2): unpack(a, c.v_free+4*j+2*e, c.v_free+4*j+2*e+1, c.v_acc+2*j+e)
    c.pre_hook, c.post_b0, c.post_b0b, c.pre_hook2 = pre, post_b0, post_b0b, BAR
    c.first_c = lambda c, j: 'v[%d:%d]' % (c.v_free+4*j, c.v_free+4*j+3)
    gemm.consumer(a, c)
    rt(a, 12)
    a('v_lshlrev_b32 v4, 4, v1')
    a('s_lshl_b32 s60, s%d, 1\ns_add_u32 s60, s60, s%d\ns_mul_i32 s60, s60, %d' % (c.s_mt, c.s_rh, 4*112*1024))
    a('s_mul_i32 s59, s%d, %d' % (c.s_nh, 2*112*1024))
    a('s_lshl_b32 s61, s58, 4\ns_add_u32 s61, s61, s60')
    a('s_lshl_b32 s62, s%d, 4\ns_add_u32 s62, s62, s60\ns_add_u32 s62, s62, s59' % c.s_colh)
    a('s_add_u32 s61, s61, s59')
    PK = 56
    for i in range(4):
        nj = 8 if i < 2 else 6
        xs = [ACC(j, i, r) for j in range(nj) for r in range(4)]
        for x in xs: a('v_max_f32 v%d, 0, v%d' % (x, x))
        for x in xs[::2]: a('v_pk_mul_f32 v[%d:%d], v[%d:%d], v[%d:%d]' % (x, x+1, x, x+1, x, x+1))
        pk = PK + (i % 2)*16
        for k in range(2*nj): a('v_cvt_pk_bf16_f32 v%d, v%d, v%d' % (pk+k, xs[2*k], xs[2*k+1]))
        for p in range(3):
            if p < 2: a('buffer_store_dwordx4 v[%d:%d], v4, s[24:27], s61 offen offset:%d' % (pk+4*p, pk+4*p+3, 2048*p))
            else:
                a('s_add_u32 s63, s61, 4096')
                a('buffer_store_dwordx4 v[%d:%d], v4, s[24:27], s63 offen' % (pk+4*p, pk+4*p+3))
        if i < 2:
            a('buffer_store_dwordx4 v[%d:%d], v4, s[24:27], s62 offen' % (pk+12, pk+15))
            a('s_add_u32 s62, s62, %d' % (112*1024))
        a('s_add_u32 s61, s61, %d' % (112*1024))
        if i == 1: a('s_lshl_b32 s59, s59, 1\ns_sub_u32 s61, s61, s59')
    rt(a, 13)
    a('s_waitcnt vmcnt(0)\ns_barrier')
    rt(a, 14)
    return c

def ph_w2(P, C, st):
    c = gemm.config('w2', 3584, 128, 1, False, 128, 3, 2048, 128, rows4=True, KS=2, rpm=opt.rpm, slot0=1)
    tile_head(P, c, 4, 8, 128, [(4, P_W2), (32, P_B2)])
    c.srd_hook = lambda a: [srd(a, *x) for x in [(8, 6, HF, 2048*7168), (12, 4, 0, 3584*2048)]]
    if opt.xsc1: c.xflags = ' sc1'
    c.boundary = lambda a, c, vm: psync(a, 'f6', 6, 93, 6, c.s_mt)
    c.tail_issue = res_phase(c, (6, X1, 0x400000), [5], 32)
    c.peel1 = True
    c.vm_init = st['vm_init']
    gemm.producer(P, c, None)
    a = C
    tile_head(a, c, 4, 8, 128, [(34, P_OUT)])
    a('s_waitcnt lgkmcnt(0)')
    srd(a, 28, 34, 0, 0x400000)
    c.pre_hook2 = BAR
    c.post_b0 = chain(lambda a, c: rt(a, 15), c.post_b0)
    gemm.consumer(a, c)
    rt(a, 16)
    part, out = res_out(a, c, 28)
    part(0); out(0); part(1); out(1)
    return c

def build(path, **kw):
    for k, v in kw.items(): setattr(opt, k, v)
    a = Asm()
    opt.zero_flags = True
    ts = opt.ts; opt.ts = False
    k_pre(a, 'mega_kernel')
    opt.ts = ts
    n = 'mega_kernel'
    a.kernel_begin(n)
    a('s_cmp_ge_u32 s2, 256\ns_cbranch_scc1 mega_end')
    a('v_lshrrev_b32 v2, 6, v0\nv_and_b32 v1, 63, v0\nv_readfirstlane_b32 s42, v2')
    a('s_cmp_lt_u32 s42, 4\ns_cbranch_scc1 mega_cons')
    P = Asm(); C = Asm(); st = {}
    rt(C, 0)
    cs = [f(P, C, st) for f in (ph_qkv, ph_wo, ph_w1, ph_w2)]
    a.lines += P.lines
    a('s_endpgm')
    a.label('mega_cons')
    a.lines += C.lines
    if opt.ts:
        a('s_waitcnt vmcnt(0)')
        rt(a, 17)
        a('s_cmp_lg_u32 s42, 0\ns_cbranch_scc1 mega_end')
        srd(a, 88, 6, TS, 0x10000)
        a('s_lshl_b32 s92, s2, 8\nv_lshlrev_b32 v2, 2, v1\nbuffer_store_dword v255, v2, s[88:91], s92 offen')
    a.label('mega_end')
    a('s_endpgm')
    for c in cs: gemm.table(a, c)
    a.label('code_end')
    a('s_endpgm')
    a.kernel_end(n, 256, 100, 256, 256, 512, 163840)
    a.lines = [l + opt.sflags if ('buffer_store_dwordx' in l) else l for l in a.lines]
    open(path, 'w').write(a.text(verbose=kw.get('verbose', False)))

opt.xsc1 = False; opt.unroll = False; opt.pf2 = 1
if __name__ == '__main__':
    kw = eval('dict(%s)' % (sys.argv[2] if len(sys.argv) > 2 else ''))
    build(sys.argv[1], **kw)
```

```python
from asmgen import Asm

class G:
    pass

def gemm_prologue(a, c):
    a('v_lshrrev_b32 v2, 6, v0')
    a('v_and_b32 v1, 63, v0')
    a('v_readfirstlane_b32 s%d, v2' % c.s_wave)

def panel_cols(a, c):
    pass

def stamp(a, c, k, bump=False):
    if not c.stamps: return
    a('s_memtime s[70:71]')
    a('s_mov_b32 s73, m0')
    a('s_mov_b32 m0, s72')
    a('s_waitcnt lgkmcnt(0)')
    a('v_writelane_b32 v%d, s70, m0' % (248+k))
    a('s_mov_b32 m0, s73')
    if bump: a('s_add_u32 s72, s72, 1')

def order_table(nst, G, mode):
    tabs = []
    for j in range(G):
        if mode == 'seq':
            o = list(range(nst))
        elif mode == 'lead':
            own = {j} | {t+G-1 for t in range(1, nst) if t % G == j and t+G-1 < nst}
            rest = [x for x in range(nst) if x not in own]
            o = []
            for t in range(nst):
                if t == 0: o.append(j)
                elif t % G == j and t+G-1 < nst: o.append(t+G-1)
                else: o.append(rest.pop(0))
        elif mode == 'lead0':
            sub = order_table(nst-1, G, 'lead')[j]
            o = [0] + [x+1 for x in sub]
        elif mode == 'win':
            o = [(t//G)*G + (t+j) % G for t in range(nst)]
        assert sorted(o) == list(range(nst)), o
        tabs.append(o)
    return tabs

def mark(a, c, i):
    if not c.stamps: return
    a('s_memtime s[70:71]')
    a('s_waitcnt lgkmcnt(0)')
    a('v_writelane_b32 v251, s70, %d' % (32+i))

def dump_stamps(a, c):
    a('v_writelane_b32 v251, s94, 63')
    a('s_add_u32 s84, s6, 0x3900000\ns_addc_u32 s85, s7, 0\ns_mov_b32 s86, 0x200000\ns_mov_b32 s87, 0x20000')
    a('s_lshl_b32 s73, s2, 3\ns_add_u32 s73, s73, s%d\ns_lshl_b32 s73, s73, 10' % c.s_wave)
    a('v_lshlrev_b32 v247, 2, v1')
    for k in range(4): a('buffer_store_dword v%d, v247, s[84:87], s73 offen offset:%d' % (248+k, 256*k))
    a('s_waitcnt vmcnt(0)')

def producer(a, c, lbl_after):
    BK, S = c.BK, c.S
    nsub = BK // 32
    KG = c.xKG or c.K // 32
    nst = c.K // BK
    sp = c.s_tmp
    tabs = order_table(nst, c.G, c.order)
    if c.mirror: tabs = tabs + [[(x + nst//2) % nst for x in o] for o in tabs]
    c.tabs = tabs
    a('s_sub_u32 s%d, s%d, 4' % (sp, c.s_wave))
    a('s_getpc_b64 s[%d:%d]' % (c.s_tab, c.s_tab+1))
    a.label(c.name + '_pc')
    a('s_add_u32 s%d, s%d, %s_tab-%s_pc' % (c.s_tab, c.s_tab, c.name, c.name))
    a('s_addc_u32 s%d, s%d, 0' % (c.s_tab+1, c.s_tab+1))
    vT = 2; vKX = 3; vKW = 4
    a('s_lshl_b32 s%d, s%d, 6' % (sp+1, c.s_rot))
    if c.mirror:
        a('s_lshl_b32 s%d, s%d, 8\ns_add_u32 s%d, s%d, s%d' % (sp+2, c.mirror, sp+1, sp+1, sp+2))
        a('s_mul_i32 s%d, s%d, %d\ns_add_u32 s%d, s%d, s%d' % (sp+2, c.mirror, nst//2, c.s_rot, c.s_rot, sp+2))
    a('v_add_u32 v%d, s%d, v1' % (vT, sp+1))
    a('global_load_ubyte v%d, v%d, s[%d:%d]' % (vKX, vT, c.s_tab, c.s_tab+1))
    v = 5
    groups = []
    mbw = c.BM // 16 // 4
    a('s_mul_i32 s%d, s%d, %d' % (sp+1, c.s_mt, c.BM // 16))
    a('s_mul_i32 s%d, s%d, %d' % (sp+2, sp, mbw))
    a('s_add_u32 s%d, s%d, s%d' % (sp+1, sp+1, sp+2))
    a('s_mul_i32 s%d, s%d, %d' % (sp+1, sp+1, KG*1024))
    a('v_lshl_add_u32 v%d, v1, 4, s%d' % (v, sp+1)); vx0 = v; v += 1
    xl = []
    for i in range(mbw):
        for kg in range(nsub): xl.append((i, kg))
    a('s_mul_i32 s%d, s%d, %d' % (c.s_px, sp, mbw*nsub*1024))
    vregs = {}
    for b in range(0, len(xl), 4):
        ins = []
        for q, (i, kg) in enumerate(xl[b:b+4]):
            const = i*KG*1024 + kg*1024 - q*1024
            assert const >= 0
            if const not in vregs:
                if const == 0: vregs[const] = vx0
                else:
                    a('v_add_u32 v%d, %d, v%d' % (v, const, vx0)); vregs[const] = v; v += 1
            ins.append((vregs[const], q*1024))
        groups.append((c.sX, c.s_kx, c.s_px, b*1024, ins))
    rpw = BK // 4; ipw = rpw // 8
    vrow = v; vt = v+1; vw0 = v+2; vch = v+3; v += 4
    c.p_vrow, c.p_vch = vrow, vch
    a('v_lshrrev_b32 v%d, 3, v1' % vrow)
    a('v_and_b32 v%d, 7, v1' % vch)
    a('v_and_b32 v%d, %d, v%d' % (vt, 2 if c.natw else 6, vrow))
    a('v_xor_b32 v%d, v%d, v%d' % (vw0, vch, vt))
    a('v_mul_u32_u24 v%d, %d, v%d' % (vt, c.ldw, vrow))
    a('s_mul_i32 s%d, s%d, %d' % (sp+1, sp, rpw*c.ldw))
    a('s_add_u32 s%d, s%d, s%d' % (sp+2, sp+1, c.s_col0))
    a('v_add_u32 v%d, s%d, v%d' % (vt, sp+2, vt))
    vw1 = vw0
    if c.natw:
        vw1 = v; v += 1
        a('v_xor_b32 v%d, 4, v%d' % (vw1, vw0))
        a('v_lshl_add_u32 v%d, v%d, 4, v%d' % (vw1, vw1, vt))
    a('v_lshl_add_u32 v%d, v%d, 4, v%d' % (vw0, vw0, vt))
    a('s_mul_i32 s%d, s%d, %d' % (c.s_pw, sp, ipw*1024))
    a('s_add_u32 s%d, s%d, %d' % (c.s_pw, c.s_pw, c.xbytes))
    for q in range(c.nfull):
        ins = []
        for h in range(ipw):
            const = q*c.panel_stride + h*8*c.ldw - h*1024
            if const == 0 and q == 0: ins.append((vw0, 0))
            else:
                a('v_add_u32 v%d, %d, v%d' % (v, const, vw1 if h % 2 else vw0)); ins.append((v, h*1024)); v += 1
                if q and c.panel_sreg: a('v_add_u32 v%d, s%d, v%d' % (v-1, c.panel_sreg, v-1))
        groups.append((c.sW, c.s_kw, c.s_pw, q*BK*128, ins))
    if c.half:
        nh = BK // 64
        vh0 = v; vr2 = v+1; v += 2
        a('v_lshrrev_b32 v%d, 2, v1' % vr2)
        a('v_lshrrev_b32 v%d, %d, v1' % (vt, 4 if c.natw else 3))
        a('v_and_b32 v%d, 2, v%d' % (vt, vt))
        a('v_and_b32 v%d, 3, v1' % vh0)
        a('v_xor_b32 v%d, v%d, v%d' % (vh0, vh0, vt))
        a('v_mul_u32_u24 v%d, %d, v%d' % (vr2, c.ldw, vr2))
        a('v_lshl_add_u32 v%d, v%d, 4, v%d' % (vh0, vh0, vr2))
        a('s_add_u32 s%d, s%d, s%d' % (sp+2, sp+1, c.s_colh))
        a('v_add_u32 v%d, s%d, v%d' % (vh0, sp+2, vh0))
        ins = [(vh0, 0)]
        for h in range(1, nh):
            a('v_add_u32 v%d, %d, v%d' % (v, h*16*c.ldw - h*1024, vh0)); ins.append((v, h*1024)); v += 1
        a('s_mul_i32 s%d, s%d, %d' % (c.s_ph, sp, nh*1024))
        a('s_add_u32 s%d, s%d, %d' % (c.s_ph, c.s_ph, c.xbytes + c.nfull*BK*128))
        groups.append((c.sW, c.s_kw, c.s_ph, 0, ins))
    n = sum(len(g[4]) for g in groups)
    c.n_dma = n
    if c.order in ('seq', 'lead0'):
        a('s_mov_b32 s%d, 0\ns_mov_b32 s%d, 0' % (c.s_kx, c.s_kw))
    else:
        a('s_mul_i32 s%d, s%d, %d' % (c.s_kx, c.s_rot, nsub*1024))
        a('s_mul_i32 s%d, s%d, %d' % (c.s_kw, c.s_rot, BK*c.ldw))
    s_t = c.s_rh
    a('s_mov_b32 s%d, 1' % s_t)
    a('s_waitcnt lgkmcnt(0)')
    c.srd_hook(a)
    vm = VM(a)
    vm.ops = list(c.vm_init)
    c.vm = vm
    nxg = sum(1 for g in groups if g[0] == c.sX)
    def issue(st, slot_const=None, fetch_next=True, part=None):
        gs = {None: groups, 0: groups[:c.psplit], 1: groups[c.psplit:], 'w': groups[nxg:], 'x': groups[:nxg], 'xb': groups[c.psplit:nxg]}[part]
        for (srd, so, base, lc, ins) in gs:
            if slot_const is None:
                a('s_add_u32 s%d, s%d, s%d' % (sp, base, c.s_slot))
                if lc: a('s_add_u32 m0, s%d, %d' % (sp, lc))
                else: a('s_mov_b32 m0, s%d' % sp)
            else:
                a('s_add_u32 m0, s%d, %d' % (base, lc + slot_const))
            for (vr, io) in ins:
                if not c.no_dma:
                    a('buffer_load_dwordx4 v%d, s[%d:%d], s%d offen%s%s lds' % (vr, srd, srd+3, so, ' offset:%d' % io if io else '', c.xflags if srd == c.sX else c.dma_flags))
                vm.issue(st)
        if part in (0, 'w', 'x'): return
        if fetch_next:
            a('v_readlane_b32 s%d, v%d, s%d' % (c.s_kx, vKX, s_t))
            a('v_readlane_b32 s%d, v%d, s%d' % (c.s_kw, vKW, s_t))
            a('s_add_u32 s%d, s%d, 1' % (s_t, s_t))
        if slot_const is None:
            a('s_add_u32 s%d, s%d, %d' % (c.s_slot, c.s_slot, c.slot))
            a('s_cmp_ge_u32 s%d, %d' % (c.s_slot, c.slot*S))
            a('s_cselect_b32 s%d, 0, s%d' % (c.s_slot, c.s_slot))
    c.p_vfree = v
    if c.stamps: a('s_mov_b32 s72, 0')
    stamp(a, c, 3)
    vm.issue('tab')
    SL = lambda st: ((st + c.slot0) % S) * c.slot
    L = c.lead
    def tabmul():
        vm.wait('tab')
        a('v_mul_u32_u24 v%d, %d, v%d' % (vKW, BK*c.ldw, vKX))
        a('v_mul_u32_u24 v%d, %d, v%d' % (vKX, nsub*1024, vKX))
        a('v_readlane_b32 s%d, v%d, 1' % (c.s_kw, vKW))
        a('s_mov_b32 s%d, 2' % s_t)
    if c.boundary is None:
        issue(0, SL(0), False)
        if c.early_issue: c.early_issue(a, c, vm)
        tabmul()
        a('v_readlane_b32 s%d, v%d, 1' % (c.s_kx, vKX))
        issue(1, SL(1), part=0)
    else:
        if c.boundary0: c.boundary0(a, c, vm)
        issue(0, SL(0), part='w')
        tabmul()
        issue(1, SL(1), part='w')
        c.boundary(a, c, vm)
        issue(0, SL(0), part='x')
        if c.early_issue: c.early_issue(a, c, vm)
        a('v_readlane_b32 s%d, v%d, 1' % (c.s_kx, vKX))
        issue(1, SL(1), part=0)
    stamp(a, c, 0)
    vm.wait(0)
    if c.pre_b0: c.pre_b0(a, c, vm)
    stamp(a, c, 1)
    a('s_barrier')
    stamp(a, c, 2, True)
    issue(1, SL(1), part=1 if c.boundary is None else 'xb')
    if c.post_b0p: c.post_b0p(a, c, vm)
    if c.loop_init: c.loop_init(a, c)
    for st in range(2, L+1):
        if c.loop_extra: c.loop_extra(a, c, vm)
        issue(st, SL(st))
    a('s_mov_b32 s%d, %d' % (c.s_slot, SL(L+1)))
    nsteady = nst - 2 - L
    def it(k, const=False):
        stamp(a, c, 0)
        vm.wait(k)
        if k == nst-1 and c.pre_last_bar: c.pre_last_bar(a, c, vm)
        if k == 1 and c.pre_b1: c.pre_b1(a, c, vm)
        if const and c.wait_hook: c.wait_hook(a, c, vm, k)
        stamp(a, c, 1)
        a('s_barrier')
        stamp(a, c, 2, True)
        if const and c.bar_hook: c.bar_hook(a, c, vm, k)
        if k + L < nst:
            issue(k+L, SL(k+L) if const else None, fetch_next=(k+L+1 < nst))
        if const and c.iter_hook: c.iter_hook(a, c, vm, k)
        if k + L == nst - 1 + c.tail_delay and c.tail_issue: c.tail_issue(a, c, vm)
    if c.unroll:
        for k in range(1, nst): it(k, True)
    else:
        k0 = 1
        if c.peel1: it(1); k0 = 2
        a('s_mov_b32 s%d, %d' % (c.s_cnt, nsteady - (k0-1)))
        a.label(c.name + '_ploop')
        it(k0)
        body = vm.log[-1]
        a('s_sub_u32 s%d, s%d, 1' % (c.s_cnt, c.s_cnt))
        a('s_cmp_lg_u32 s%d, 0' % c.s_cnt)
        a('s_cbranch_scc1 %s_ploop' % c.name)
        keep = a.lines
        for k in range(k0+1, nsteady+1):
            a.lines = []; it(k); assert vm.log[-1] == body
        a.lines = keep
        for k in range(nsteady+1, nst): it(k)
    mark(a, c, 0)
    if c.ptail: c.ptail(a, c, vm)
    if c.stamps and c.gen_dump:
        a('s_mov_b64 exec, -1')
        mark(a, c, 8)
        a('s_waitcnt vmcnt(0)')
        mark(a, c, 9)
        dump_stamps(a, c)
    if lbl_after: a('s_branch %s' % lbl_after)

class VM:
    def __init__(self, a): self.a = a; self.ops = []; self.log = []; self.done = -1
    def issue(self, tag, n=1): self.ops += [tag]*n
    def count(self, tag):
        idx = max(i for i, t in enumerate(self.ops) if t == tag)
        return len(self.ops) - 1 - idx
    def wait(self, tag, extra=''):
        n = self.count(tag)
        idx = len(self.ops) - 1 - n
        if idx <= self.done:
            self.log.append(None)
            if extra: self.a('s_waitcnt' + extra)
            return
        assert n <= 63
        self.done = idx
        self.log.append(n)
        self.a('s_waitcnt vmcnt(%d)%s' % (n, extra))

def xproducer(a, c, lbl_after):
    BK, S = c.BK, c.S
    assert BK == 64 and S == 3
    nst = c.K // BK
    D = 2
    sp = c.s_tmp
    tabs = order_table(nst, c.G, c.order)
    pk = [sum(x << (4*i) for i, x in enumerate(o)) for o in tabs]
    s_ow, s_ox, s_kt = c.s_tab, c.s_tab+2, c.s_nh
    a('s_sub_u32 s%d, s%d, 4' % (sp, c.s_wave))
    a('s_mov_b32 s%d, 0x%x\ns_mov_b32 s%d, 0x%x' % (s_ow, pk[0] & 0xffffffff, s_ow+1, pk[0] >> 32))
    for j in range(1, c.G):
        a('s_cmp_eq_u32 s%d, %d' % (c.s_rot, j))
        a('s_cselect_b32 s%d, 0x%x, s%d\ns_cselect_b32 s%d, 0x%x, s%d' % (s_ow, pk[j] & 0xffffffff, s_ow, s_ow+1, pk[j] >> 32, s_ow+1))
    a('s_mov_b64 s[%d:%d], s[%d:%d]' % (s_ox, s_ox+1, s_ow, s_ow+1))
    v = 2
    vrow, vt, vch = v, v+1, v+2; v += 3
    vXg = v; v += 4
    vXw = v; v += 2
    vTab, vTa = v, v+1; v += 2
    a('v_lshrrev_b32 v%d, 3, v1\nv_and_b32 v%d, 7, v1' % (vrow, vch))
    a('s_lshl_b32 s%d, s%d, 2\ns_add_u32 s%d, s%d, s%d' % (sp+1, c.s_mt, sp+1, sp+1, sp))
    c.s_rb = sp+3
    a('s_mov_b32 s%d, s%d' % (c.s_rb, sp+1))
    a('s_lshl_b32 s%d, s%d, 16' % (sp+1, sp+1))
    a('v_lshlrev_b32 v%d, 11, v%d' % (vt, vrow))
    a('v_lshl_add_u32 v%d, v%d, 4, v%d' % (vt, vch, vt))
    a('v_add_u32 v%d, s%d, v%d' % (vXg, sp+1, vt))
    for i in range(1, 4): a('v_add_u32 v%d, %d, v%d' % (vXg+i, 16384*i, vXg))
    vw0, vw1 = v, v+1; v += 2
    a('v_bfe_u32 v%d, v1, 4, 1\nv_lshlrev_b32 v%d, 1, v%d\nv_xor_b32 v%d, v%d, v%d' % (vt, vt, vt, vt, vt, vch))
    a('v_mul_u32_u24 v%d, %d, v%d' % (vw1, c.ldw, vrow))
    a('s_mul_i32 s%d, s%d, %d' % (sp+1, sp, 16*c.ldw))
    a('s_add_u32 s%d, s%d, s%d' % (sp+2, sp+1, c.s_col0))
    a('v_add_u32 v%d, s%d, v%d' % (vw1, sp+2, vw1))
    a('v_lshl_add_u32 v%d, v%d, 4, v%d' % (vw0, vt, vw1))
    a('v_xor_b32 v%d, 4, v%d' % (vt, vt))
    a('v_lshl_add_u32 v%d, v%d, 4, v%d' % (vw1, vt, vw1))
    a('v_add_u32 v%d, %d, v%d' % (vw1, 8*c.ldw - 1024, vw1))
    a('s_lshl_b32 s%d, s%d, 11\ns_add_u32 s%d, s%d, %d' % (c.s_pw, sp, c.s_pw, c.s_pw, c.xbytes))
    groups = [(c.s_pw, 0, [(vw0, 0), (vw1, 1024)])]
    for q in range(1, c.nfull):
        a('v_add_u32 v%d, %d, v%d\nv_add_u32 v%d, %d, v%d' % (v, q*c.panel_stride, vw0, v+1, q*c.panel_stride, vw1))
        groups.append((c.s_pw, q*8192, [(v, 0), (v+1, 1024)])); v += 2
    if c.half:
        vh0 = v; v += 1
        a('v_lshrrev_b32 v%d, 2, v1' % vh0)
        a('v_mul_u32_u24 v%d, %d, v%d' % (vh0, c.ldw, vh0))
        a('v_lshrrev_b32 v%d, 4, v1\nv_and_b32 v%d, 2, v%d' % (vt, vt, vt))
        a('v_and_b32 v%d, 3, v1\nv_xor_b32 v%d, v%d, v%d' % (vTa, vt, vt, vTa))
        a('v_lshl_add_u32 v%d, v%d, 4, v%d' % (vh0, vt, vh0))
        a('s_add_u32 s%d, s%d, s%d' % (sp+2, sp+1, c.s_colh))
        a('v_add_u32 v%d, s%d, v%d' % (vh0, sp+2, vh0))
        a('s_lshl_b32 s%d, s%d, 10\ns_add_u32 s%d, s%d, %d' % (c.s_ph, sp, c.s_ph, c.s_ph, c.xbytes + c.nfull*8192))
        groups.append((c.s_ph, 0, [(vh0, 0)]))
    nW = sum(len(g[2]) for g in groups)
    a('v_lshrrev_b32 v%d, 4, v1\nv_xor_b32 v%d, v%d, v%d' % (vt, vt, vt, vch))
    a('v_lshlrev_b32 v%d, 4, v%d' % (vt, vt))
    a('v_lshl_add_u32 v%d, v%d, 7, v%d' % (vt, vrow, vt))
    a('s_lshl_b32 s%d, s%d, 12' % (sp+1, sp))
    a('v_add_u32 v%d, s%d, v%d\nv_xor_b32 v%d, 64, v%d' % (vXw, sp+1, vt, vXw+1, vXw))
    a('v_lshlrev_b32 v%d, 6, v%d\nv_add_u32 v%d, %d, v%d' % (vTab, vch, vTab, c.tab_base, vTab))
    v = (v + 3) // 4 * 4
    RAW = v; v += 16*4
    OUT = v; v += 16
    AS = v; v += 16
    TMP = v; v += 8
    RC = v; v += 12
    c.p_vfree = v; c.p_RC = RC; c.p_vrow = vrow; c.p_vch = vch
    vm = VM(a)
    def next_w():
        a('s_and_b32 s%d, s%d, 15' % (s_kt, s_ow))
        a('s_lshr_b64 s[%d:%d], s[%d:%d], 4' % (s_ow, s_ow+1, s_ow, s_ow+1))
        a('s_mul_i32 s%d, s%d, %d' % (c.s_kw, s_kt, BK*c.ldw))
        a('s_lshl_b32 s%d, s%d, 9' % (s_kt, s_kt))
    def nextx():
        a('s_and_b32 s%d, s%d, 15' % (c.s_kx, s_ox))
        a('s_lshr_b64 s[%d:%d], s[%d:%d], 4' % (s_ox, s_ox+1, s_ox, s_ox+1))
        a('s_lshl_b32 s%d, s%d, 7' % (c.s_kx, c.s_kx))
    def loadx1(st, q, i):
        a('buffer_load_dwordx4 v[%d:%d], v%d, s[%d:%d], s%d offen' % (RAW+16*q+4*i, RAW+16*q+4*i+3, vXg+i, c.sX, c.sX+3, c.s_kx))
        vm.issue(('x', st))
    def loadx(st, q):
        nextx()
        for i in range(4): loadx1(st, q, i)
    def dmaw_list(st, slot_const):
        out = []
        for (base, lc, ins) in groups:
            for n_, (vr, io) in enumerate(ins):
                def f(base=base, lc=lc, vr=vr, io=io, first=(n_ == 0)):
                    if first:
                        if slot_const is None:
                            a('s_add_u32 s%d, s%d, s%d' % (sp, base, c.s_slot))
                            if lc: a('s_add_u32 m0, s%d, %d' % (sp, lc))
                            else: a('s_mov_b32 m0, s%d' % sp)
                        else: a('s_add_u32 m0, s%d, %d' % (base, lc + slot_const))
                    a('buffer_load_dwordx4 v%d, s[%d:%d], s%d offen%s lds' % (vr, c.sW, c.sW+3, c.s_kw, ' offset:%d' % io if io else ''))
                    vm.issue(('w', st))
                out.append(f)
        return out
    def dmaw(st, slot_const):
        for f in dmaw_list(st, slot_const): f()
    def readas(skt):
        a('v_add_u32 v%d, s%d, v%d' % (vTa, skt, vTab))
        for e in range(4): a('ds_read_b128 v[%d:%d], v%d offset:%d' % (AS+4*e, AS+4*e+3, vTa, 16*e))
    dot = c.xf.startswith('dot')
    def xform(q, slot_off, side=(), after_unpack=None):
        side = list(side)
        def pop():
            if side: side.pop(0)()
        for i in range(4):
            r = RAW + 16*q + 4*i
            if dot:
                for e in range(4):
                    a('v_dot2_f32_bf16 v%d, v%d, v%d, v%d' % (TMP+2*e, r+e, RC+8+i, RC+2*i+1))
                    a('v_dot2_f32_bf16 v%d, v%d, v%d, v%d' % (TMP+2*e+1, r+e, RC+2*i, RC+2*i+1))
                if after_unpack: after_unpack(i)
            else:
                for e in range(4):
                    a('v_lshlrev_b32 v%d, 16, v%d\nv_and_b32 v%d, 0xffff0000, v%d' % (TMP+2*e, r+e, TMP+2*e+1, r+e))
                if after_unpack: after_unpack(i)
                if c.xf == 'pk5':
                    for e in range(4): a('v_pk_fma_f32 v[%d:%d], v[%d:%d], v[%d:%d], v[%d:%d] op_sel:[0,0,1] op_sel_hi:[1,0,1]' % (TMP+2*e, TMP+2*e+1, TMP+2*e, TMP+2*e+1, RC+2*i, RC+2*i+1, RC+2*i, RC+2*i+1))
                else:
                    for e in range(8): a('v_fma_f32 v%d, v%d, v%d, v%d' % (TMP+e, TMP+e, RC+2*i, RC+2*i+1))
            pop()
            if i == 0: a('s_waitcnt lgkmcnt(0)')
            if c.xf in ('pk5', 'dot4'):
                for e in range(4): a('v_pk_fma_f32 v[%d:%d], v[%d:%d], v[%d:%d], v[%d:%d]' % (TMP+2*e, TMP+2*e+1, TMP+2*e, TMP+2*e+1, AS+2*e, AS+2*e+1, AS+8+2*e, AS+9+2*e))
            else:
                for e in range(8): a('v_fma_f32 v%d, v%d, v%d, v%d' % (TMP+e, TMP+e, AS+e, AS+8+e))
            if i < 3: pop()
            for e in range(4): a('v_cvt_pk_bf16_f32 v%d, v%d, v%d' % (OUT+4*i+e, TMP+2*e, TMP+2*e+1))
            a('ds_write_b128 v%d, v[%d:%d] offset:%d' % (vXw + i % 2, OUT+4*i, OUT+4*i+3, slot_off + i*1024))
        while side: pop()
    s_kt0, s_kt1 = c.s_px, c.s_cnt
    a('s_waitcnt lgkmcnt(0)')
    c.srd_hook(a)
    loadx(0, 2)
    next_w(); a('s_mov_b32 s%d, s%d' % (s_kt0, s_kt))
    dmaw(0, 0)
    c.pstats_issue(a, c, vm)
    loadx(1, 3); loadx(2, 0)
    next_w(); a('s_mov_b32 s%d, s%d' % (s_kt1, s_kt))
    dmaw(1, c.slot)
    loadx(3, 1)
    c.pstats_finish(a, c, vm)
    if dot:
        for i in range(4): a('v_cvt_pk_bf16_f32 v%d, v%d, v%d' % (RC+2*i, RC+2*i, RC+2*i))
        for i in range(4): a('v_and_b32 v%d, 0xffff, v%d\nv_and_b32 v%d, 0xffff0000, v%d' % (RC+8+i, RC+2*i, RC+2*i, RC+2*i))
    for i in range(4): a('v_mul_f32 v%d, -v%d, v%d' % (RC+2*i+1, RC+2*i+1, RC+2*i))
    if c.pprio: a('s_setprio %d' % c.pprio)
    if c.stamps: a('s_mov_b32 s72, 0')
    stamp(a, c, 0)
    a('s_barrier')
    stamp(a, c, 3)
    readas(s_kt0)
    vm.wait(('x', 0))
    xform(2, 0)
    a('s_waitcnt lgkmcnt(0)')
    vm.wait(('w', 0))
    stamp(a, c, 1)
    a('s_barrier')
    stamp(a, c, 2, True)
    readas(s_kt1)
    vm.wait(('x', 1))
    assert c.slot + 4096 <= 65536
    xform(3, c.slot)
    a('s_mov_b32 s%d, %d' % (c.s_slot, 2*c.slot))
    a('v_add_u32 v%d, %d, v%d\nv_add_u32 v%d, %d, v%d' % (vXw, 2*c.slot, vXw, vXw+1, 2*c.slot, vXw+1))
    a('s_mov_b32 s%d, %d' % (sp+1, c.slot))
    def iteration(k, first=False):
        if k + 2 < nst:
            next_w()
            readas(s_kt)
            dl = dmaw_list(k+2, None)
            dl.pop(0)()
            more = k + 2 + D < nst
            if more:
                nextx()
                if c.loop_extra: dl.append(lambda: c.loop_extra(a, c, vm))
            vm.wait(('x', k+2))
            stamp(a, c, 0)
            xform(k % 2, 0, dl, (lambda i: loadx1(k+2+D, k % 2, i)) if more else None)
            stamp(a, c, 3)
            if k + 3 == nst: c.tail_issue(a, c, vm)
            a('s_add_u32 s%d, s%d, s%d' % (c.s_slot, c.s_slot, sp+1))
            a('s_cmp_ge_u32 s%d, %d' % (c.s_slot, c.slot*S))
            a('s_cselect_b32 s%d, 0, s%d' % (c.s_slot, c.s_slot))
            a('s_cselect_b32 s%d, %d, s%d' % (sp, -2*c.slot, sp+1))
            a('v_add_u32 v%d, s%d, v%d\nv_add_u32 v%d, s%d, v%d' % (vXw, sp, vXw, vXw+1, sp, vXw+1))
        vm.wait(('w', k+1), ' lgkmcnt(0)')
        stamp(a, c, 1)
        a('s_barrier')
        stamp(a, c, 2, True)
    nsteady = nst - 2 - D
    assert nsteady % 2 == 0
    if c.loop_init: c.loop_init(a, c)
    a('s_waitcnt lgkmcnt(0)')
    iteration(0); iteration(1)
    a('s_mov_b32 s%d, %d' % (c.s_cnt, nsteady // 2 - 1))
    a.label(c.name + '_ploop')
    n0 = len(vm.log)
    iteration(2); iteration(3)
    body = vm.log[n0:]
    a('s_sub_u32 s%d, s%d, 1' % (c.s_cnt, c.s_cnt))
    a('s_cmp_lg_u32 s%d, 0' % c.s_cnt)
    a('s_cbranch_scc1 %s_ploop' % c.name)
    keep = a.lines;
    for k in range(4, nsteady, 2):
        a.lines = []; n0 = len(vm.log)
        iteration(k); iteration(k+1)
        assert vm.log[n0:] == body, (vm.log[n0:], body)
    a.lines = keep
    for k in range(nsteady, nst-1): iteration(k)
    if c.stamps: dump_stamps(a, c)
    c.ptail(a, c, vm)
    a('s_branch %s' % lbl_after)

def table(a, c):
    a.lines.append('.p2align 6')
    a.label(c.name + '_tab')
    for o in c.tabs:
        a.lines.append('.byte ' + ','.join(str(x) for x in (o + [0]*64)[:64]))
    a.lines.append('.p2align 2')

def consumer(a, c):
    BK, S = c.BK, c.S
    nsub = BK // 32
    nst = c.K // BK
    r4 = c.rows4
    TMb = c.BM // (4 if r4 else 2) // 16
    sp = c.s_tmp
    ks = c.ksplit
    va = c.v_addr
    vX, vX2, vW0, vW1, vW2, vW3, vX3, vX4 = [va+i for i in range(8)]
    t0, t1 = c.v_tmp, c.v_tmp+1
    nat = c.xform
    natw = c.xform or c.natw
    rotx = c.half or ks
    a('s_lshr_b32 s%d, s%d, 1' % (c.s_rh, c.s_wave))
    a('s_and_b32 s%d, s%d, 1' % (c.s_nh, c.s_wave))
    a('s_mul_i32 s%d, s%d, %d' % (sp, c.s_wave if r4 else c.s_rh, TMb*nsub*1024))
    if ks:
        a('s_lshl_b32 s%d, s%d, 10\ns_add_u32 s%d, s%d, s%d' % (sp+1, c.s_nh, sp, sp, sp+1))
    if nat:
        a('v_bfe_u32 v%d, v1, 1, 3\nv_lshrrev_b32 v%d, 4, v1\nv_xor_b32 v%d, v%d, v%d' % (t0, t1, t0, t0, t1))
        a('v_and_b32 v%d, 15, v1\nv_lshlrev_b32 v%d, 7, v%d' % (t1, t1, t1))
        a('v_lshl_add_u32 v%d, v%d, 4, v%d\nv_add_u32 v%d, s%d, v%d' % (vX, t0, t1, vX, sp, vX))
    else:
        a('v_lshl_add_u32 v%d, v1, 4, s%d' % (vX, sp))
    addr = [vX, vW0, vW1]
    if rotx:
        a('s_mul_i32 s%d, s%d, %d' % (sp, c.s_nh, 2*nsub*1024))
        a('v_subrev_u32 v%d, s%d, v%d' % (vX2, sp, vX))
        a('v_add_u32 v%d, s%d, v%d' % (vX, sp, vX))
        addr.append(vX2)
    if nat:
        a('v_xor_b32 v%d, 64, v%d' % (vX3, vX)); addr.append(vX3)
        if rotx: a('v_xor_b32 v%d, 64, v%d' % (vX4, vX2)); addr.append(vX4)
    if natw:
        a('v_bfe_u32 v%d, v1, 2, 2\nv_lshrrev_b32 v%d, 4, v1\nv_lshl_add_u32 v%d, v%d, 3, v%d' % (t0, t1, t0, t1, t0))
    else:
        a('v_lshrrev_b32 v%d, 2, v1' % t0)
    a('v_bfe_u32 v%d, v1, 3, 2' % t1)
    if ks or r4: a('v_lshlrev_b32 v%d, 5, v%d' % (vW0, t1))
    else:
        a('s_lshl_b32 s%d, s%d, 1' % (sp, c.s_nh))
        a('v_xor_b32 v%d, s%d, v%d' % (vW0, sp, t1))
        a('v_lshlrev_b32 v%d, 5, v%d' % (vW0, vW0))
    a('v_lshl_add_u32 v%d, v%d, 7, v%d' % (vW0, t0, vW0))
    a('v_and_b32 v%d, 3, v1' % t1)
    a('v_lshlrev_b32 v%d, 3, v%d' % (t1, t1))
    if ks:
        a('s_lshl_b32 s%d, s%d, 12\ns_add_u32 s%d, s%d, %d' % (sp, c.s_nh, sp, sp, c.xbytes))
        a('v_add3_u32 v%d, v%d, v%d, s%d' % (vW0, vW0, t1, sp))
    else:
        a('v_add_u32 v%d, %d, v%d' % (t1, c.xbytes, t1))
        a('v_add_u32 v%d, v%d, v%d' % (vW0, vW0, t1))
    a('v_xor_b32 v%d, 32, v%d' % (vW1, vW0))
    if ks or r4:
        a('v_xor_b32 v%d, 64, v%d' % (vW2, vW0))
        a('v_xor_b32 v%d, 96, v%d' % (vW3, vW0))
        addr += [vW2, vW3]
    if c.half:
        a('v_bfe_u32 v%d, v1, 4, 1' % vW2)
        a('v_lshlrev_b32 v%d, 5, v%d' % (vW2, vW2))
        a('v_lshl_add_u32 v%d, v%d, 6, v%d' % (vW2, t0, vW2))
        a('v_add_u32 v%d, v%d, v%d' % (vW2, vW2, t1))
        a('v_add_u32 v%d, %d, v%d' % (vW2, c.nfull*BK*128, vW2))
        a('v_xor_b32 v%d, 32, v%d' % (vW3, vW2))
        addr += [vW2, vW3]
    assert c.xbytes % 128 == 0 and c.slot % 128 == 0
    sm = 2 if ks else 1
    def xrd(j, sub):
        hi = rotx and j >= 2
        if nat: return ((vX4 if hi else vX3) if sub % 2 else (vX2 if hi else vX)), j*2048
        return (vX2 if hi else vX), (j*nsub+sub)*1024
    tf = 512 if natw else 2048
    if ks or r4:
        wfr = [(vW0+u, 0, 4096, tf) for u in range(4)]
        mf = [(j, i) for i in range(TMb) for j in range(4)]
    else:
        wfr = [(vW0 + j % 2, (j//2)*BK*128, 4096, tf) for j in range(2*c.nfull)]
        mf = [(j, i) for j in range(len(wfr)) for i in range(TMb)]
    if c.half:
        wfr += [(vW2, 0, 2048, tf//2), (vW3, 0, 2048, tf//2)]
        mf += [(2*c.nfull + u, i) for u in range(2) for i in range(2)]
    nWf = len(wfr)
    nacc = len(mf) * 4
    KS = c.KS
    fs1 = (TMb + nWf) * 4
    fsz = fs1 * KS
    c.v_acc = c.v_frag + 2*fsz
    c.v_free = c.v_acc + nacc
    if c.pre_hook: c.pre_hook(a, c)
    if c.acc_init: c.acc_init(a, c)
    elif not c.first_c:
        for i in range(nacc): a('v_mov_b32 v%d, 0' % (c.v_acc+i))
    def xreg(s, q, j): return c.v_frag + s*fsz + q*fs1 + j*4
    def wreg(s, q, j): return c.v_frag + s*fsz + q*fs1 + TMb*4 + j*4
    def reads(s, step):
        r = []
        for q in range(KS):
            sub = (step*KS + q)*sm
            xs = ['ds_read_b128 v[%d:%d], v%d offset:%d' % ((xreg(s,q,j), xreg(s,q,j)+3) + xrd(j, sub)) for j in range(TMb)]
            ws = []
            for j, (v, base, ss, ts) in enumerate(wfr):
                for t in range(2):
                    w = wreg(s,q,j) + 2*t
                    ws.append('ds_read_b64_tr_b16 v[%d:%d], v%d offset:%d' % (w, w+1, v, base + sub*ss + t*ts))
            r += (xs[:1] + ws + xs[1:]) if (ks or r4) else (ws[:2] + xs + ws[2:])
        if c.no_lds: r = []
        return r
    def mfmas(s, first=False):
        r = []
        for q in range(KS):
            for k, (j, i) in enumerate(mf):
                t = c.v_acc + k*4
                A_, B_ = wreg(s,q,j), xreg(s,q,i)
                if j in c.swap_frags: A_, B_ = B_, A_
                C_ = 'v[%d:%d]' % (t, t+3)
                if first and q == 0: C_ = c.first_c(c, j)
                r.append('v_mfma_f32_16x16x32_bf16 v[%d:%d], v[%d:%d], v[%d:%d], %s' % (t, t+3, A_, A_+3, B_, B_+3, C_))
        if c.no_mfma: r = r[:1]
        return r
    def interleave(ms, rs, extra=()):
        out = []
        k = 0; ex = list(extra)
        for i, m in enumerate(ms):
            out.append(m)
            if k < len(rs):
                for _ in range(c.rpm):
                    if k < len(rs): out.append(rs[k]); k += 1
            elif ex:
                out.append(ex.pop(0))
                if ex and ex[0].startswith('s_'): out.append(ex.pop(0))
        out += rs[k:] + ex
        return out
    def advance():
        return ['s_add_u32 s%d, s%d, 1' % (c.s_slot, c.s_slot),
             's_cmp_eq_u32 s%d, %d' % (c.s_slot, S),
             's_cselect_b32 s%d, 0, s%d' % (c.s_slot, c.s_slot),
             's_cselect_b32 s%d, %d, s%d' % (sp, -(S-1)*c.slot, sp+1)] + ['v_add_u32 v%d, s%d, v%d' % (v, sp, v) for v in addr]
    nstep = nsub // KS // sm
    spb = 1 if nstep % 2 == 0 else 2
    a('s_mov_b32 s%d, %d' % (c.s_slot, c.slot0))
    if c.slot0:
        for v in addr: a('v_add_u32 v%d, %d, v%d' % (v, c.slot0*c.slot, v))
    a('s_mov_b32 s%d, %d' % (sp+1, c.slot))
    if c.pre_hook2: c.pre_hook2(a, c)
    if c.stamps: a('s_mov_b32 s72, 0')
    stamp(a, c, 1)
    a('s_barrier')
    stamp(a, c, 2, True)
    if c.post_b0: c.post_b0(a, c)
    for r in reads(0, 0): a(r)
    if c.post_b0b: c.post_b0b(a, c, len(reads(0, 0)))
    if nstep == 1:
        for l in advance(): a(l)
    par = [0]
    def stage(last, first=False):
        for step in range(nstep):
            s = par[0]; par[0] ^= 1
            a('s_waitcnt lgkmcnt(0)')
            if c.step_hook and not last: c.step_hook(a, c, step, lambda j: wreg(s, 0, j))
            if step < nstep-1:
                ex = advance() if (step == nstep-2 and not last) else []
                if first and step == 0 and c.first_extra: ex = ex + c.first_extra(c)
                for l in interleave(mfmas(s, first and step == 0), reads(1-s, step+1), ex): a(l)
            elif not last:
                ms = mfmas(s)
                nb = c.mfma_before_bar
                for m in ms[:nb]: a(m)
                stamp(a, c, 1)
                a('s_barrier')
                stamp(a, c, 2, True)
                for l in interleave(ms[nb:], reads(1-s, 0) + (c.post_b1(c) if (first and c.post_b1) else []), advance() if nstep == 1 else []): a(l)
            else:
                for l in interleave(mfmas(s), c.last_reads(c) if c.last_reads else []): a(l)
    npre = 0
    if c.first_c:
        assert nstep % 2 == 0
        stage(False, True); npre = 1
    nloop = (nst - 1 - npre - (1 if c.late_hook else 0)) // spb
    rem = (nst - 1 - npre) - nloop*spb
    a('s_mov_b32 s%d, %d' % (c.s_cnt, nloop))
    a('.p2align 3')
    a.label(c.name + '_cloop')
    for _ in range(spb): stage(False)
    a('s_sub_u32 s%d, s%d, 1' % (c.s_cnt, c.s_cnt))
    a('s_cmp_lg_u32 s%d, 0' % c.s_cnt)
    a('s_cbranch_scc1 %s_cloop' % c.name)
    for r_ in range(rem):
        if c.late_hook and r_ == rem-1: c.late_hook(a, c)
        stage(False)
    stage(True)
    if c.stamps and c.gen_dump:
        stamp(a, c, 1)
        mark(a, c, 0)
    if ks:
        EB = c.slot * (nst % S)
        if c.slot < 32768:
            EB = c.slot * S; c.lds = EB + 32768
        assert c.lds <= 163840
        a('s_lshl_b32 s%d, s%d, 13\ns_add_u32 s%d, s%d, %d' % (sp, c.s_wave, sp, sp, EB))
        a('v_lshl_add_u32 v%d, v1, 4, s%d' % (t0, sp))
        a('s_xor_b32 s%d, s%d, 1\ns_lshl_b32 s%d, s%d, 13\ns_add_u32 s%d, s%d, %d' % (sp, c.s_wave, sp, sp, sp, sp, EB))
        a('v_lshl_add_u32 v%d, v1, 4, s%d' % (t1, sp))
        for k in range(8): a('ds_write_b128 v%d, v[%d:%d] offset:%d' % (t0, c.v_acc+32+4*k, c.v_acc+35+4*k, 1024*k))
        if c.xch_pre: c.xch_pre(a, c)
        a('s_waitcnt lgkmcnt(0)')
        mark(a, c, 1)
        a('s_barrier')
        mark(a, c, 2)
        for k in range(8): a('ds_read_b128 v[%d:%d], v%d offset:%d' % (c.v_acc+32+4*k, c.v_acc+35+4*k, t1, 1024*k))
        n0 = len(a.lines)
        if c.xch_post: c.xch_post(a, c)
        npost = len(a.lines) - n0
        for k in range(8):
            a('s_waitcnt lgkmcnt(%d)' % min(15, 7-k+npost))
            for r in (0, 2): a('v_pk_add_f32 v[%d:%d], v[%d:%d], v[%d:%d]' % (c.v_acc+4*k+r, c.v_acc+4*k+r+1, c.v_acc+4*k+r, c.v_acc+4*k+r+1, c.v_acc+32+4*k+r, c.v_acc+33+4*k+r))
        nacc = 32
    c.TMb, c.nWf, c.nacc = TMb, nWf, nacc

def config(name, K, BM, nfull, half, BK, S, ldw, panel_stride, **kw):
    c = G()
    c.name, c.K, c.BM, c.nfull, c.half, c.BK, c.S, c.ldw, c.panel_stride = name, K, BM, nfull, half, BK, S, ldw, panel_stride
    c.xbytes = BM * BK * 2
    c.slot = c.xbytes + nfull * BK * 128 + (BK * 64 if half else 0)
    c.lds = c.slot * S
    c.sX, c.sW = 8, 12
    c.s_mt, c.s_nt, c.s_wave, c.s_col0, c.s_colh = 40, 41, 42, 43, 44
    c.s_kx, c.s_kw, c.s_slot, c.s_px, c.s_pw, c.s_ph, c.s_cnt, c.s_rh, c.s_nh = 45, 46, 47, 48, 49, 50, 51, 52, 53
    c.s_tmp = 54
    c.v_addr = 4; c.v_tmp = 2; c.v_frag = 12; c.ksplit = False; c.xform = False; c.xf = 'dot4'; c.pprio = 0; c.pre_hook2 = None
    c.mirror = None; c.wait_hook = None; c.bar_hook = None; c.post_b0p = None; c.step_hook = None; c.pre_b0 = None; c.xKG = None; c.panel_sreg = None; c.boundary0 = None; c.xflags = ''; c.peel1 = False; c.vm_init = []; c.pre_b1 = None; c.post_b1 = None; c.slot0 = 0; c.boundary = None; c.first_c = None; c.post_b0 = None; c.post_b0b = None; c.first_extra = None; c.rows4 = False; c.last_reads = None; c.pre_last_bar = None; c.xch_pre = None; c.xch_post = None; c.unroll = False; c.iter_hook = None; c.acc_init = None; c.natw = False; c.early_issue = None; c.tail_issue = None; c.ptail = None; c.tail_delay = 0; c.loop_extra = None; c.loop_init = None; c.late_hook = None; c.psplit = 1; c.stamps = False; c.gen_dump = False; c.dma_flags = ''; c.KS = 1; c.rpm = 1; c.mfma_before_bar = 0; c.G = 4; c.order = 'lead'; c.lead = S-1; c.s_rot = 39; c.s_tab = 66; c.tab_base = c.lds; c.srd_hook = None; c.swap_frags = (); c.pre_hook = None
    c.no_dma = c.no_lds = c.no_mfma = False
    for k, v in kw.items(): setattr(c, k, v)
    return c
```

```python
import sys
from asmgen import Asm
import gemm

MP1, ST1, MP2, ZP, ST2, KVP, H1F, PHIQ, OF, X1, H2F, HF, TS = 0x0, 0x8000, 0x10000, 0x20000, 0x40000, 0x100000, 0x800000, 0x1000000, 0x1800000, 0x1C00000, 0x2000000, 0x2800000, 0x3800000
P_X, P_WQKV, P_WPHI, P_WO, P_W1, P_B1, P_W2, P_B2, P_C, P_WMOD, P_OUT, P_DBG, P_WS = 0, 8, 16, 24, 40, 48, 56, 64, 72, 80, 88, 96, 104
LOG2E = 0x3fb8aa3b
class O: pass
opt = O(); opt.mimic = False; opt.ts = False; opt.outscale = None; opt.sflags = ' sc1'; opt.pf1 = 0; opt.pf2 = 0; opt.pf3 = 0; opt.pf4 = 3; opt.order = 'lead'; opt.gv_at = [13]; opt.pf4_at = [13, 13, 13, 13]; opt.gv_late = True; opt.eprio = 1; opt.spf = 0; opt.cpf = 3; opt.pre4 = False; opt.xflags = ''; opt.gvflags = ''; opt.wflags = ''; opt.zero_flags = False; opt.rpm = 2; opt.stamp = None; opt.xf = 'fma7'; opt.pprio = 0

def srd(a, s, base, off, size):
    if off:
        a('s_add_u32 s%d, s%d, %d\ns_addc_u32 s%d, s%d, 0' % (s, base, off, s+1, base+1))
    else:
        a('s_mov_b32 s%d, s%d\ns_mov_b32 s%d, s%d' % (s, base, s+1, base+1))
    a('s_mov_b32 s%d, %d\ns_mov_b32 s%d, 0x20000' % (s+2, size, s+3))

def rnd2(a, x, y, t):
    a('v_cvt_pk_bf16_f32 v%d, v%d, v%d' % (t, x, y))
    a('v_lshlrev_b32 v%d, 16, v%d' % (x, t))
    a('v_and_b32 v%d, 0xffff0000, v%d' % (y, t))
def rnd1(a, x):
    a('v_cvt_pk_bf16_f32 v%d, v%d, v%d' % (x, x, x))
    a('v_lshlrev_b32 v%d, 16, v%d' % (x, x))
def rndn(a, xs, ts):
    prs = [(xs[i], xs[i+1]) for i in range(0, len(xs), 2)]
    for b in range(0, len(prs), len(ts)):
        blk = prs[b:b+len(ts)]
        for (x, y), t in zip(blk, ts): a('v_cvt_pk_bf16_f32 v%d, v%d, v%d' % (t, x, y))
        for (x, y), t in zip(blk, ts):
            a('v_lshlrev_b32 v%d, 16, v%d' % (x, t)); a('v_and_b32 v%d, 0xffff0000, v%d' % (y, t))
def unpack(a, lo, hi, src):
    a('v_lshlrev_b32 v%d, 16, v%d' % (lo, src)); a('v_and_b32 v%d, 0xffff0000, v%d' % (hi, src))

def ts_start(a, kid):
    if opt.ts: a('s_memrealtime s[96:97]')
def ts_end(a, kid, lbl):
    if not opt.ts: return
    a('s_waitcnt vmcnt(0) lgkmcnt(0)')
    a('s_memrealtime s[98:99]')
    srd(a, 88, 6, TS + kid*4096, 4096)
    a('s_mov_b64 exec, -1')
    a('v_cmp_eq_u32 vcc, 0, v0')
    a('s_waitcnt lgkmcnt(0)')
    a('v_mov_b32 v2, s96\nv_mov_b32 v3, s98\ns_lshl_b32 s92, s2, 3\nv_mov_b32 v4, s92')
    a('s_and_saveexec_b64 s[94:95], vcc\ns_cbranch_execz %s' % lbl)
    a('buffer_store_dwordx2 v[2:3], v4, s[88:91], 0 offen')

def gemv_issue(a, LPR, vt, V, sC, sW, s_c, s_w, vm=None, ps=range(8)):
    lg = LPR.bit_length() - 1
    t0, t1 = V+36, V+37
    if 0 in ps:
        a('v_lshrrev_b32 v%d, %d, v%d' % (t0, lg, vt))
        a('v_lshlrev_b32 v%d, 4, v%d' % (t1, t0))
        a('buffer_load_dwordx4 v[%d:%d], v%d, s[%d:%d], s%d offen' % (V, V+3, t1, sC, sC+3, s_c))
        if vm: vm.issue('gc')
        a('v_mul_u32_u24 v%d, %d, v%d' % (t0, 8*12288, t0))
        a('v_and_b32 v%d, %d, v%d' % (t1, LPR-1, vt))
        a('v_lshl_add_u32 v%d, v%d, 4, v%d' % (t0, t1, t0))
    for p in ps:
        a('buffer_load_dwordx4 v[%d:%d], v%d, s[%d:%d], s%d offen%s' % (V+4+4*p, V+7+4*p, t0, sW, sW+3, s_w, opt.gvflags))
        if p < 7: a('s_add_u32 s%d, s%d, 12288' % (s_w, s_w))
        if vm: vm.issue(('gw', p))
def gemv_math(a, LPR, V, T, vm, stmp):
    vm.wait('gc')
    for i in range(4): unpack(a, T+2*i, T+2*i+1, V+i)
    a('s_mov_b32 s%d, 0x%x' % (stmp, LOG2E))
    for i in range(8): a('v_mul_f32 v%d, s%d, v%d' % (T+8+i, stmp, T+i))
    for i in range(8): a('v_exp_f32 v%d, -v%d' % (T+8+i, T+8+i))
    for i in range(8): a('v_add_f32 v%d, 1.0, v%d' % (T+8+i, T+8+i))
    for i in range(8): a('v_rcp_f32 v%d, v%d' % (T+8+i, T+8+i))
    for i in range(8): a('v_mul_f32 v%d, v%d, v%d' % (T+i, T+i, T+8+i))
    rndn(a, list(range(T, T+8)), list(range(T+8, T+12)))
    for p in range(8):
        vm.wait(('gw', p))
        for d in range(4): unpack(a, T+16+2*d, T+17+2*d, V+4+4*p+d)
        for e in range(8):
            if p == 0: a('v_mul_f32 v%d, v%d, v%d' % (T+8+e, T+16+e, T+p))
            else: a('v_fmac_f32 v%d, v%d, v%d' % (T+8+e, T+16+e, T+p))
    for ror in {2: (2, 4, 8), 4: (4, 8), 8: (8,)}[LPR]:
        for e in range(8): a('v_add_f32_dpp v%d, v%d, v%d row_ror:%d row_mask:0xf bank_mask:0xf' % (T+8+e, T+8+e, T+8+e, ror))

def dpp_sum(a, xs, steps):
    for st in steps:
        for x in xs: a('v_add_f32_dpp v%d, v%d, v%d %s row_mask:0xf bank_mask:0xf' % (x, x, x, st))
DPP8 = ['quad_perm:[1,0,3,2]', 'quad_perm:[2,3,0,1]', 'row_half_mirror']
DPP16 = DPP8 + ['row_mirror']

def k_pre(a, nxt='ln1_kernel'):
    n = 'pre_kernel'
    a.kernel_begin(n)
    a('s_cmp_ge_u32 s2, 256\ns_cbranch_scc1 pre_end')
    a('s_load_dwordx4 s[20:23], s[0:1], %d' % P_C)
    a('s_load_dwordx2 s[6:7], s[0:1], %d\ns_load_dwordx2 s[4:5], s[0:1], %d' % (P_WS, P_X))
    ts_start(a, 0)
    a('s_cmp_ge_u32 s2, 128\ns_cbranch_scc1 pre_stats')
    if opt.pre4:
        a('s_and_b32 s30, s2, 31\ns_lshr_b32 s31, s2, 5\ns_lshl_b32 s32, s31, 9')
        a('s_mul_i32 s33, s31, %d\ns_lshl_b32 s34, s30, 7\ns_add_u32 s33, s33, s34' % (256*12288))
    else:
        a('s_and_b32 s30, s2, 7\ns_lshl_b32 s30, s30, 3\ns_bfe_u32 s31, s2, 0x30003\ns_add_u32 s30, s30, s31\ns_lshr_b32 s31, s2, 6')
        a('s_lshl_b32 s32, s31, 10')
        a('s_mul_i32 s33, s31, %d\ns_lshl_b32 s34, s30, 6\ns_add_u32 s33, s33, s34' % (512*12288))
    LPR = 8 if opt.pre4 else 4
    a('s_waitcnt lgkmcnt(0)')
    srd(a, 8, 20, 0, 2048); srd(a, 12, 22, 0, 1024*12288); srd(a, 16, 6, MP1, 32768)
    vm = gemm.VM(a)
    gemv_issue(a, LPR, 0, 4, 8, 12, 32, 33, vm)
    T = 44
    gemv_math(a, LPR, 4, T, vm, 34)
    a('v_lshrrev_b32 v1, 4, v0\nv_mul_u32_u24 v1, %d, v1\nv_and_b32 v2, %d, v0\nv_lshl_add_u32 v1, v2, 5, v1' % (32*LPR, LPR-1))
    a('ds_write_b128 v1, v[%d:%d]\nds_write_b128 v1, v[%d:%d] offset:16' % (T+8, T+11, T+12, T+15))
    a('s_waitcnt lgkmcnt(0)\ns_barrier')
    a('v_cmp_gt_u32 vcc, %d, v0\ns_and_saveexec_b64 s[26:27], vcc\ns_cbranch_execz pre_fin' % (8*LPR))
    a('v_lshlrev_b32 v1, 2, v0')
    for p in range(16): a('ds_read_b32 v%d, v1 offset:%d' % (16+p, 32*LPR*p))
    a('s_waitcnt lgkmcnt(0)')
    for st in (8, 4, 2, 1):
        for p in range(st): a('v_add_f32 v%d, v%d, v%d' % (16+p, 16+p, 16+p+st))
    a('s_mul_i32 s30, s30, %d\ns_lshl_b32 s31, s31, 13\ns_add_u32 s30, s30, s31' % (32*LPR))
    a('buffer_store_dword v16, v1, s[16:19], s30 offen sc1')
    a('s_branch pre_fin')
    a.label('pre_stats')
    a('v_lshrrev_b32 v2, 6, v0\nv_and_b32 v1, 63, v0')
    a('v_lshlrev_b32 v3, 13, v2\nv_lshl_add_u32 v3, v1, 4, v3')
    a('s_sub_u32 s30, s2, 128')
    a('s_and_b32 s35, s30, 1\ns_lshl_b32 s35, s35, 6\ns_and_b32 s36, s30, 6\ns_add_u32 s35, s35, s36\ns_bfe_u32 s36, s30, 0x10003\ns_add_u32 s35, s35, s36\ns_lshr_b32 s36, s30, 4\ns_lshl_b32 s36, s36, 3\ns_add_u32 s35, s35, s36')
    a('s_lshl_b32 s31, s35, 15')
    a('s_load_dwordx2 s[40:41], s[0:1], %d\ns_load_dwordx2 s[42:43], s[0:1], %d\ns_load_dwordx2 s[44:45], s[0:1], %d' % (P_WPHI, P_B1, P_B2))
    a('s_waitcnt lgkmcnt(0)')
    a('s_lshl_b32 s46, s30, 9')
    for q in range(8): a('s_add_u32 s47, s46, %d\ns_load_dword s48, s[40:41], s47' % (64*q))
    a('s_min_u32 s46, s30, 111\ns_lshl_b32 s46, s46, 6\ns_load_dword s48, s[42:43], s46')
    a('s_and_b32 s46, s30, 31\ns_lshl_b32 s46, s46, 6\ns_load_dword s48, s[44:45], s46')
    srd(a, 8, 4, 0, 0x400000); srd(a, 16, 6, ST1, 16384)
    if opt.zero_flags:
        a('v_mov_b32 v4, 0\nv_mov_b32 v5, 0\nv_mov_b32 v6, 0\nv_mov_b32 v7, 0\nv_lshlrev_b32 v8, 4, v0\ns_lshl_b32 s46, s30, 12')
        srd(a, 12, 6, 0x80000, 65536)
        a('buffer_store_dwordx4 v[4:7], v8, s[12:15], s46 offen')
        srd(a, 52, 42, 0, 7168); srd(a, 56, 6, 0x90000, 32768)
        a('s_sub_u32 s46, s30, 16\ns_min_u32 s46, s46, 64\ns_mul_i32 s47, s46, 448\nv_lshlrev_b32 v8, 1, v0\nbuffer_load_ushort v5, v8, s[52:55], s47 offen')
        a('s_lshl_b32 s46, s46, 11\nv_lshlrev_b32 v8, 2, v0\nbuffer_store_dword v4, v8, s[56:59], s46 offen sc1')
        a('s_waitcnt vmcnt(1)\nv_lshlrev_b32 v5, 16, v5\nbuffer_store_dword v5, v8, s[56:59], s46 offen offset:1024 sc1')
    D = 8; X = 40
    for r in range(4):
        for h in range(2):
            a('buffer_load_dwordx4 v[%d:%d], v3, s[8:11], s31 offen offset:%d%s' % (D+8*r+4*h, D+8*r+4*h+3, (r % 2)*2048 + h*1024, opt.xflags))
        if r == 1: a('s_add_u32 s31, s31, 4096')
    SM = 104
    ncp = 0
    if opt.cpf & 1:
        a('v_readfirstlane_b32 s46, v2\ns_lshr_b32 s47, s30, 3\ns_and_b32 s47, s47, 1\ns_lshl_b32 s47, s47, 2\ns_add_u32 s46, s46, s47')
        code_pf(a, 'pre', nxt, 'code_end', 46, 8, 6, 1, 50)
        ncp = 1
    for r in range(4):
        a('s_waitcnt vmcnt(%d)' % (6-2*r+ncp))
        for i in range(8): unpack(a, X+16*r+2*i, X+16*r+2*i+1, D+8*r+i)
        for i in range(4): a('v_add_f32 v%d, v%d, v%d' % (D+i, X+16*r+i, X+16*r+4+i))
        for k in (8, 12):
            for i in range(4): a('v_add_f32 v%d, v%d, v%d' % (D+i, D+i, X+16*r+k+i))
        a('v_add_f32 v%d, v%d, v%d\nv_add_f32 v%d, v%d, v%d\nv_add_f32 v%d, v%d, v%d' % (D, D, D+1, D+2, D+2, D+3, SM+r, D, D+2))
    sm = [SM+r for r in range(4)]
    dpp_sum(a, sm, DPP16)
    for st in bfly(a, 'v_add_f32', sm):
        for l in st: a(l)
    for r in range(4): a('v_mul_f32 v%d, 0x3a800000, v%d' % (SM+r, SM+r))
    SQ = 108
    for r in range(4):
        for i in range(16): a('v_sub_f32 v%d, v%d, v%d' % (X+16*r+i, X+16*r+i, SM+r))
        for i in range(4): a('v_mul_f32 v%d, v%d, v%d' % (D+i, X+16*r+i, X+16*r+i))
        for k in (4, 8, 12):
            for i in range(4): a('v_fmac_f32 v%d, v%d, v%d' % (D+i, X+16*r+k+i, X+16*r+k+i))
        a('v_add_f32 v%d, v%d, v%d\nv_add_f32 v%d, v%d, v%d\nv_add_f32 v%d, v%d, v%d' % (D, D, D+1, D+2, D+2, D+3, SQ+r, D, D+2))
    sq = [SQ+r for r in range(4)]
    dpp_sum(a, sq, DPP16)
    for st in bfly(a, 'v_add_f32', sq):
        for l in st: a(l)
    a('v_mov_b32 v4, 0x3727c5ac\nv_mov_b32 v5, 0x3a800000')
    for r in range(4): a('v_fma_f32 v%d, v%d, v5, v4' % (SQ+r, SQ+r))
    for r in range(4): a('v_rsq_f32 v%d, v%d' % (D+2*r, SQ+r))
    for r in range(4): a('v_mov_b32 v%d, v%d' % (D+2*r+1, SM+r))
    a('v_lshlrev_b32 v3, 5, v2\ns_lshl_b32 s30, s35, 7')
    a('v_cmp_eq_u32 vcc, 0, v1\ns_and_saveexec_b64 s[26:27], vcc')
    a('buffer_store_dwordx4 v[%d:%d], v3, s[16:19], s30 offen\nbuffer_store_dwordx4 v[%d:%d], v3, s[16:19], s30 offen offset:16' % (D, D+3, D+4, D+7))
    a.label('pre_fin')
    ts_end(a, 0, 'pre_end')
    a.label('pre_end')
    a('s_endpgm')
    a.kernel_end(n, 112, 100, 112, 256, 256, 4096)

def xg_sum(a, xs, ts):
    for op in ('v_permlane32_swap_b32', 'v_permlane16_swap_b32'):
        for x, t in zip(xs, ts): a('v_mov_b32 v%d, v%d' % (t, x))
        for x, t in zip(xs, ts): a('%s v%d, v%d' % (op, x, t))
        for x, t in zip(xs, ts): a('v_add_f32 v%d, v%d, v%d' % (x, x, t))

def k_ln(a, n, kid, first):
    L = n.replace('_kernel', '')
    nparts, pstride, s_ch, a_ch = (2, 8192, 0, 1) if first else (4, 16384, 1, 2)
    a.kernel_begin(n)
    a('s_cmp_ge_u32 s2, 256\ns_cbranch_scc1 %s_end' % L)
    a('s_load_dwordx2 s[6:7], s[0:1], %d' % P_WS)
    if first: a('s_load_dwordx4 s[28:31], s[0:1], %d' % P_X)
    ts_start(a, kid)
    a('s_lshr_b32 s20, s2, 4\ns_lshl_b32 s20, s20, 3\ns_and_b32 s21, s2, 7\ns_add_u32 s20, s20, s21\ns_bfe_u32 s21, s2, 0x10003')
    a('v_and_b32 v1, 63, v0\nv_lshrrev_b32 v2, 6, v0\nv_and_b32 v3, 15, v0\nv_bfe_u32 v4, v0, 4, 2')
    a('v_lshlrev_b32 v5, 11, v3\nv_lshl_add_u32 v5, v2, 8, v5\nv_lshl_add_u32 v5, v4, 4, v5')
    a('s_lshl_b32 s22, s20, 15\ns_lshl_b32 s23, s21, 10\ns_add_u32 s23, s23, s22')
    a('v_lshlrev_b32 v6, 3, v0\ns_lshl_b32 s24, s21, 11')
    if first: a('v_lshlrev_b32 v7, 3, v3\ns_lshl_b32 s25, s20, 7')
    else: a('v_lshlrev_b32 v7, 3, v3\nv_lshl_add_u32 v7, v4, 16, v7\ns_lshl_b32 s25, s20, 7')
    a('s_waitcnt lgkmcnt(0)')
    srd(a, 12, 6, MP1 if first else MP2, 16384 if first else 65536)
    M = 16
    for p in range(nparts):
        for w, ch in enumerate((a_ch, s_ch)):
            a('s_add_u32 s26, s24, %d' % (p*pstride + ch*4096))
            a('buffer_load_dwordx2 v[%d:%d], v6, s[12:15], s26 offen' % (M+4*p+2*w, M+4*p+2*w+1))
    if first: srd(a, 8, 28, 0, 0x400000)
    else: srd(a, 8, 6, X1, 0x400000)
    D = 32
    for u in range(4): a('buffer_load_dwordx4 v[%d:%d], v5, s[8:11], s23 offen offset:%d' % (D+4*u, D+4*u+3, 64*u))
    srd(a, 16, 6, ST1 if first else ST2, 16384 if first else 0x40000)
    if first:
        a('buffer_load_dwordx2 v[8:9], v7, s[16:19], s25 offen'); ns = 1
    else:
        for q in range(4): a('buffer_load_dwordx2 v[%d:%d], v7, s[16:19], s25 offen\ns_add_u32 s25, s25, 16384' % (8+2*q, 9+2*q))
        ns = 4
    npf = 0
    if first and opt.pf1:
        srd(a, 32, 30, 0, 1024*6144)
        a('v_and_b32 v48, 3, v0\nv_bfe_u32 v49, v0, 2, 2\nv_lshlrev_b32 v49, 11, v49\nv_lshl_add_u32 v48, v48, 7, v49')
        a('v_lshrrev_b32 v49, 4, v0\nv_mul_u32_u24 v49, 6144, v49\nv_add_u32 v48, v48, v49')
        a('v_bfe_u32 v49, v0, 2, 2\nv_cmp_eq_u32 vcc, 3, v49\nv_mov_b32 v49, 0x7fffffff\nv_cndmask_b32 v48, v48, v49, vcc')
        a('s_lshr_b32 s26, s2, 3\ns_mul_i32 s26, s26, %d\ns_bfe_u32 s27, s2, 0x20001\ns_lshl_b32 s27, s27, 9\ns_add_u32 s26, s26, s27' % (16*6144))
        for q in range(opt.pf1):
            a('buffer_load_dword v49, v48, s[32:35], s26 offen')
            a('s_add_u32 s26, s26, %d' % (512*6144))
        npf = opt.pf1
    if first and opt.cpf & 2:
        a('v_readfirstlane_b32 s40, v2')
        next_code(a, L, 'qkv_kernel', 'o_kernel', 2, 144, 1, 40, 0)
        npf += 1
    srd(a, 36, 6, H1F if first else H2F, 0x400000)
    a('v_lshrrev_b32 v6, 2, v0\nv_lshlrev_b32 v6, 6, v6\nv_and_b32 v7, 3, v0\nv_lshl_add_u32 v6, v7, 3, v6')
    a('s_waitcnt vmcnt(%d)' % (4+ns+npf))
    for p in range(1, nparts):
        for e in range(4): a('v_add_f32 v%d, v%d, v%d' % (M+e, M+e, M+4*p+e))
    rndn(a, [M, M+1, M+2, M+3], [M+4, M+5])
    a('v_add_f32 v%d, 1.0, v%d\nv_add_f32 v%d, 1.0, v%d' % (M, M, M+1, M+1))
    rndn(a, [M, M+1], [M+4])
    a('ds_write_b64 v6, v[%d:%d]\nds_write_b64 v6, v[%d:%d] offset:32' % (M, M+1, M+2, M+3))
    a('v_lshlrev_b32 v6, 10, v2\nv_lshl_add_u32 v6, v4, 6, v6')
    a('v_lshlrev_b32 v5, 12, v2\nv_lshl_add_u32 v5, v1, 4, v5\ns_lshl_b32 s23, s21, 14\ns_add_u32 s23, s23, s22')
    a('s_waitcnt lgkmcnt(0)\ns_barrier')
    T = 80
    for u in range(4):
        for e in range(4): a('ds_read_b128 v[%d:%d], v6 offset:%d' % (T+16*u+4*e, T+16*u+4*e+3, 256*u+16*e))
    X = 48
    a('s_waitcnt vmcnt(%d)' % (ns+npf))
    alt = first and opt.pf1
    for i in range(16): unpack(a, X+2*i, X+2*i+1, D+i) if not (alt and i == 0) else None
    a('s_waitcnt vmcnt(%d)' % npf)
    if not first:
        a('v_add_f32 v8, v8, v10\nv_add_f32 v9, v9, v11\nv_add_f32 v12, v12, v14\nv_add_f32 v13, v13, v15\nv_add_f32 v9, v9, v13\nv_add_f32 v10, v8, v12')
        xg_sum(a, [9, 10], [11, 12])
        a('v_mul_f32 v10, 0x3a800000, v10\nv_mul_f32 v11, v10, v10\nv_mov_b32 v12, 0x3a800000\nv_fma_f32 v8, v9, v12, -v11')
        a('v_max_f32 v8, 0, v8\nv_add_f32 v8, 0x3727c5ac, v8\nv_rsq_f32 v8, v8\nv_mov_b32 v9, v10')
    a('v_mul_f32 v9, -v9, v8')
    XS = [X+i for i in range(32)]
    if alt:
        XS[0], XS[1] = 10, 11
        unpack(a, 10, 11, D)
    for i in range(32): a('v_fma_f32 v%d, v%d, v8, v9' % (XS[i], XS[i]))
    for u in range(4):
        a('s_waitcnt lgkmcnt(%d)' % (12-4*u))
        for e in range(8): a('v_fma_f32 v%d, v%d, v%d, v%d' % (XS[8*u+e], XS[8*u+e], T+16*u+e, T+16*u+8+e))
        for e in range(4): a('v_cvt_pk_bf16_f32 v%d, v%d, v%d' % (D+4*u+e, XS[8*u+2*e], XS[8*u+2*e+1]))
        a('buffer_store_dwordx4 v[%d:%d], v5, s[36:39], s23 offen offset:%d' % (D+4*u, D+4*u+3, 1024*u))
    ts_end(a, kid, L+'_end')
    a.label(L+'_end')
    a('s_endpgm')
    a.kernel_end(n, 148, 100, 148, 256, 256, 4096)

def gemm_head(a, c, kid, xm, xn, colmul, ptrs, rot):
    a('s_cmp_ge_u32 s2, 256\ns_cbranch_scc1 %s_end' % c.name)
    for s, o in ptrs: a('s_load_dwordx2 s[%d:%d], s[0:1], %d' % (s, s+1, o))
    ts_start(a, kid)
    if opt.stamp == c.name:
        c.stamps = True; c.gen_dump = True
        a('s_memtime s[94:95]')
    c.order = opt.order
    bm = 16 // xm
    a('s_and_b32 s36, s2, 7\ns_lshr_b32 s37, s2, 3')
    a('s_and_b32 s38, s36, %d\ns_lshr_b32 s36, s36, %d' % (bm-1, bm.bit_length()-1))
    a('s_and_b32 s39, s37, %d\ns_lshr_b32 s37, s37, %d' % (xm-1, xm.bit_length()-1))
    a('s_mul_i32 s38, s38, %d\ns_add_u32 s%d, s38, s39' % (xm, c.s_mt))
    a('s_mul_i32 s36, s36, %d\ns_add_u32 s%d, s36, s37' % (xn, c.s_nt))
    ra, rb = rot
    a('s_mul_i32 s39, s39, %d\ns_mul_i32 s37, s37, %d\ns_add_u32 s39, s39, s37' % (ra, rb))
    a('s_and_b32 s%d, s39, %d' % (c.s_rot, c.G-1))
    a('s_mul_i32 s%d, s%d, %d' % (c.s_col0, c.s_nt, colmul))
    if c.half:
        a('s_and_b32 s36, s%d, 1' % c.s_nt)
        a('s_cmp_eq_u32 s36, 0')
        a('s_cselect_b32 s36, 384, 0\ns_cselect_b32 s37, 0, 64')
        a('s_add_u32 s%d, s%d, s36' % (c.s_colh, c.s_col0))
        a('s_add_u32 s%d, s%d, s37' % (c.s_col0, c.s_col0))
    gemm.gemm_prologue(a, c)

def gemm_body(a, c, psrds, csrds):
    a('s_cmp_lt_u32 s%d, 4\ns_cbranch_scc1 %s_cons' % (c.s_wave, c.name))
    def hook(a):
        for x in psrds: srd(a, *x)
    c.srd_hook = hook
    (gemm.xproducer if c.xform else gemm.producer)(a, c, c.name + '_end')
    a.label(c.name + '_cons')
    a('s_waitcnt lgkmcnt(0)')
    for x in csrds: srd(a, *x)
    gemm.consumer(a, c)

def gemm_tail(a, c, n, kid):
    if c.stamps:
        gemm.mark(a, c, 8)
        a('s_waitcnt vmcnt(0)')
        gemm.mark(a, c, 9)
        gemm.dump_stamps(a, c)
    if opt.ts:
        a('s_cmp_lg_u32 s%d, 0\ns_cbranch_scc1 %s_end' % (c.s_wave, c.name))
        ts_end(a, kid, c.name + '_end')
    a.label(c.name + '_end')
    a('s_endpgm')
    if not c.xform: gemm.table(a, c)
    a.kernel_end(n, 256, 100, 256, 256, 512, c.lds)

def bfly(a, op, x):
    return [
     ['v_permlane32_swap_b32 v%d, v%d' % (x[0], x[1]), 'v_permlane32_swap_b32 v%d, v%d' % (x[2], x[3])],
     ['%s v%d, v%d, v%d' % (op, x[0], x[0], x[1]), '%s v%d, v%d, v%d' % (op, x[2], x[2], x[3])],
     ['v_permlane16_swap_b32 v%d, v%d' % (x[0], x[2])],
     ['%s v%d, v%d, v%d' % (op, x[0], x[0], x[2])],
     ['v_mov_b32 v%d, v%d' % (x[2], x[0])],
     ['v_permlane16_swap_b32 v%d, v%d' % (x[0], x[2])],
     ['v_mov_b32 v%d, v%d' % (x[1], x[0]), 'v_mov_b32 v%d, v%d' % (x[3], x[2])],
     ['v_permlane32_swap_b32 v%d, v%d' % (x[0], x[1]), 'v_permlane32_swap_b32 v%d, v%d' % (x[2], x[3])]]
def bfly2(a, op1, x1, op2, x2):
    for s1, s2 in zip(bfly(a, op1, x1), bfly(a, op2, x2)):
        for l in s1 + s2: a(l)

def smem_pf(c, regions, k0, k1, prev=None):
    reqs = [(ri, o) for ri, r in enumerate(regions) for o in range(0, r[1], 64)]
    nit = k1 - k0 + 1
    def hook(a, c, vm, k):
        if prev: prev(a, c, vm, k)
        if k == k0:
            a('s_lshl_b32 s80, s2, 2\ns_add_u32 s80, s80, s%d\ns_sub_u32 s80, s80, 4' % c.s_wave)
            for ri, r in enumerate(regions):
                a('s_mul_i32 s81, s80, %d' % r[1])
                if len(r) > 2: a('s_add_u32 s81, s81, %d' % r[2])
                a('s_add_u32 s%d, s%d, s81\ns_addc_u32 s%d, s%d, 0' % (82+2*ri, r[0], 83+2*ri, r[0]+1))
        if k0 <= k <= k1:
            for (ri, o) in reqs[(k-k0)*len(reqs)//nit:(k-k0+1)*len(reqs)//nit]:
                a('s_load_dword s81, s[%d:%d], %d' % (82+2*ri, 83+2*ri, o))
    return hook

def code_pf(a, tag, first, last, s_idx, nshare, vd, vl, sp):
    a('s_getpc_b64 s[%d:%d]' % (sp, sp+1))
    a.label(tag + '_cpc')
    a('s_add_u32 s%d, s%d, %s-%s_cpc\ns_addc_u32 s%d, s%d, 0' % (sp, sp, first, tag, sp+1, sp+1))
    if s_idx is None: a('v_lshlrev_b32 v%d, 7, v%d' % (vd, vl))
    else: a('s_lshl_b32 s%d, s%d, 13\nv_lshl_add_u32 v%d, v%d, 7, s%d' % (sp+2, s_idx, vd, vl, sp+2))
    a('v_min_u32 v%d, %s-%s-4, v%d' % (vd, last, first, vd))
    a('global_load_dword v%d, v%d, s[%d:%d]' % (vd+1, vd, sp, sp+1))

def next_code(a, tag, first, last, nchunk, vd, vl, wave_sreg, wave_val, vm=None):
    a('s_lshr_b32 s88, s2, 3\ns_min_u32 s88, s88, %d' % nchunk)
    if wave_sreg is not None:
        a('s_cmp_eq_u32 s%d, %d\ns_cselect_b32 s88, s88, %d' % (wave_sreg, wave_val, nchunk))
    code_pf(a, tag, first, last, 88, nchunk, vd, vl, 90)
    if vm: vm.issue('cpf')

def table_hooks(c, sM, nparts, pstride, s_chunk, a_chunk, V):
    def issue(a):
        a('v_lshlrev_b32 v2, 4, v0')
        for p in range(nparts):
            for w, ch in enumerate((a_chunk, s_chunk)):
                a('s_mov_b32 s59, %d' % (p*pstride + ch*4096))
                a('buffer_load_dwordx4 v[%d:%d], v2, s[%d:%d], s59 offen' % (V+8*p+4*w, V+8*p+4*w+3, sM, sM+3))
    def finish(a, c, nlater):
        a('v_lshrrev_b32 v2, 1, v0\nv_lshlrev_b32 v2, 6, v2\nv_and_b32 v3, 1, v0\nv_lshl_add_u32 v2, v3, 4, v2')
        a('s_waitcnt vmcnt(%d)' % nlater)
        for p in range(1, nparts):
            for e in range(8): a('v_add_f32 v%d, v%d, v%d' % (V+e, V+e, V+8*p+e))
        rndn(a, list(range(V, V+8)), list(range(V+8, V+12)))
        for e in range(4): a('v_add_f32 v%d, 1.0, v%d' % (V+e, V+e))
        rndn(a, list(range(V, V+4)), list(range(V+8, V+10)))
        a('ds_write_b128 v2, v[%d:%d] offset:%d\nds_write_b128 v2, v[%d:%d] offset:%d' % (V, V+3, 0, V+4, V+7, 32))
        a('s_waitcnt lgkmcnt(0)\ns_barrier')
    return issue, finish

def wphi_issue(a, W, WH, s_off, vt0, vt1):
    a('v_and_b32 v%d, 15, v1\nv_lshlrev_b32 v%d, 1, v%d\nv_lshrrev_b32 v%d, 4, v1\nv_lshl_add_u32 v%d, v%d, 8, v%d' % (vt0, vt0, vt0, vt1, vt0, vt1, vt0))
    for ft in range(2):
        for dw in range(4):
            d0 = (dw % 2)*2 + (dw // 2)*16
            a('buffer_load_ushort v%d, v%d, s[16:19], s%d offen offset:%d' % (W+ft*4+dw, vt0, s_off, d0*64 + ft*32))
            a('buffer_load_ushort v%d, v%d, s[16:19], s%d offen offset:%d' % (WH+ft*4+dw, vt0, s_off, d0*64 + 64 + ft*32))

def feat(a, QF, P, E, MX, MN, W, sL, sink):
    for i in range(4):
        for ft in range(2):
            t = P + i*8 + ft*4
            a('v_mfma_f32_16x16x32_bf16 v[%d:%d], v[%d:%d], v[%d:%d], 0' % (t, t+3, W+ft*4, W+ft*4+3, QF+4*i, QF+4*i+3))
    for (op, op2, dst) in (('v_max3_f32', 'v_max_f32', MX), ('v_min3_f32', 'v_min_f32', MN)):
        for i in range(4): a('%s v%d, v%d, v%d, v%d' % (op, dst+i, P+8*i, P+8*i+1, P+8*i+2))
        for i in range(4): a('%s v%d, v%d, v%d, v%d' % (op, dst+i, dst+i, P+8*i+3, P+8*i+4))
        for i in range(4): a('%s v%d, v%d, v%d, v%d' % (op, dst+i, dst+i, P+8*i+5, P+8*i+6))
        for i in range(4): a('%s v%d, v%d, v%d' % (op2, dst+i, dst+i, P+8*i+7))
    bfly2(a, 'v_max_f32', [MX+i for i in range(4)], 'v_min_f32', [MN+i for i in range(4)])
    for i in range(4):
        a('v_mul_f32 v%d, s%d, v%d\nv_mul_f32 v%d, s%d, v%d' % (MX+i, sL, MX+i, MN+i, sL, MN+i))
    for i in range(4):
        for e in range(8): a('v_fma_f32 v%d, v%d, s%d, -v%d' % (E+8*i+e, P+8*i+e, sL, MX+i))
        for e in range(8): a('v_fma_f32 v%d, -v%d, s%d, v%d' % (P+8*i+e, P+8*i+e, sL, MN+i))
    for i in range(32): a('v_exp_f32 v%d, v%d\nv_exp_f32 v%d, v%d' % (E+i, E+i, P+i, P+i))
    for (B, dst) in ((E, MX), (P, MN)):
        for i in range(4): a('v_add_f32 v%d, v%d, v%d' % (dst+i, B+8*i, B+8*i+1))
        for e in range(2, 8):
            for i in range(4): a('v_add_f32 v%d, v%d, v%d' % (dst+i, dst+i, B+8*i+e))
    bfly2(a, 'v_add_f32', [MX+i for i in range(4)], 'v_add_f32', [MN+i for i in range(4)])
    for i in range(4): a('v_rcp_f32 v%d, v%d\nv_rcp_f32 v%d, v%d' % (MX+i, MX+i, MN+i, MN+i))
    for i in range(4):
        for sg, (B, sc) in enumerate(((E, MX), (P, MN))):
            for e in range(8): a('v_mul_f32 v%d, v%d, v%d' % (B+8*i+e, B+8*i+e, sc+i))
            for e in range(4): a('v_cvt_pk_bf16_f32 v%d, v%d, v%d' % (B+8*i+e, B+8*i+2*e, B+8*i+2*e+1))
            sink(i, sg, B+8*i)

def wphi_read(a, W, s_nh, WPH, t0, t1):
    a('v_lshrrev_b32 v%d, 2, v1\nv_lshlrev_b32 v%d, 6, v%d\nv_bfe_u32 v%d, v1, 4, 1\nv_lshl_add_u32 v%d, v%d, 5, v%d' % (t0, t0, t0, t1, t0, t1, t0))
    a('v_and_b32 v%d, 3, v1\nv_lshl_add_u32 v%d, v%d, 3, v%d' % (t1, t0, t1, t0))
    a('s_lshl_b32 s59, s%d, 11\ns_add_u32 s59, s59, %d\nv_add_u32 v%d, s59, v%d\nv_xor_b32 v%d, 32, v%d' % (s_nh, WPH, t0, t0, t1, t0))
    for ft in range(2):
        for t in range(2): a('ds_read_b64_tr_b16 v[%d:%d], v%d offset:%d' % (W+4*ft+2*t, W+4*ft+2*t+1, (t0, t1)[ft], 1024*t))

def k_qkv(a):
    n = 'qkv_kernel'
    c = gemm.config('qkv', 1024, 128, 3, False, 64, 3, 6144, 2048, swap_frags=(4, 5), natw=True)
    WPH = c.lds; FLG = WPH + 4096
    c.lds += 4096 + 256
    a.kernel_begin(n)
    gemm_head(a, c, 2, 8, 4, 128, [(4, P_WQKV), (6, P_WS), (32, P_WPHI), (74, P_C), (76, P_WMOD), (78, P_WO), (92, P_W1)], (1,1))
    psrds = [(8, 6, H1F, 0x400000), (12, 4, 0, 1024*6144)]
    csrds = [(24, 6, KVP, 0x200000), (28, 6, ZP, 0x20000)]
    EB = c.slot * ((c.K // c.BK) % c.S)
    IMG = EB; VB = EB + 32768; QB = VB + 16384
    assert QB + 16384 <= WPH and EB == c.slot
    s_hd = 58; sL = 60
    def early_issue(a, c, vm):
        V = c.p_vfree
        srd(a, 16, 32, 0, 65536)
        a('v_lshrrev_b32 v%d, 3, v1\nv_and_b32 v%d, 2, v%d\nv_xor_b32 v%d, v1, v%d\nv_lshlrev_b32 v%d, 4, v%d' % (V, V, V, V, V, V, V))
        a('s_sub_u32 s59, s%d, 4\ns_lshl_b32 s59, s59, 10\ns_add_u32 m0, s59, %d\ns_lshl_b32 s61, s%d, 12\ns_add_u32 s59, s59, s61' % (c.s_wave, WPH, c.s_nt))
        a('buffer_load_dwordx4 v%d, s[16:19], s59 offen lds' % V)
        vm.issue('wphi')
    GV = QB + 16384
    assert GV + 4096 <= WPH
    def iter_hook(a, c, vm, k):
        V = (c.p_vfree + 3)//4*4
        ks = opt.gv_at
        if k == ks[0]:
            srd(a, 20, 74, 0, 2048); srd(a, 24, 76, 0, 1024*12288)
            a('s_lshr_b32 s61, s2, 6\ns_lshl_b32 s62, s61, 9\ns_mul_i32 s63, s61, %d' % (256*12288))
            a('s_and_b32 s64, s2, 63\ns_lshl_b32 s65, s64, 7\ns_add_u32 s63, s63, s65\ns_add_u32 s63, s63, 4096')
            a('v_and_b32 v%d, 255, v0' % (V+38))
        if k in ks:
            n_ = 8 // len(ks); q = ks.index(k)
            gemv_issue(a, 8, V+38, V, 20, 24, 62, 63, vm, range(q*n_, q*n_+n_))
    def tail_issue(a, c, vm):
        V = (c.p_vfree + 3)//4*4
        if opt.cpf & 2: next_code(a, 'qkv', 'o_kernel', 'ln2_kernel', 2, 240, 1, c.s_wave, 4, vm)
        if opt.pf2:
            srd(a, 28, 78, 0, 1024*2048)
            a('v_lshlrev_b32 v%d, 11, v%d\nv_lshl_add_u32 v%d, v%d, 7, v%d' % (V+39, c.p_vrow, V+39, c.p_vch, V+39))
            a('s_lshr_b32 s62, s2, 3\ns_lshl_b32 s62, s62, 2\ns_add_u32 s62, s62, s%d\ns_sub_u32 s62, s62, 4\ns_lshl_b32 s62, s62, 14' % c.s_wave)
            a('s_bfe_u32 s63, s2, 0x10002\ns_lshl_b32 s63, s63, 10\ns_add_u32 s62, s62, s63')
            a('buffer_load_dword v%d, v%d, s[28:31], s62 offen' % (V+37, V+39))
            vm.issue('pf')
    def ptail(a, c, vm):
        V = (c.p_vfree + 3)//4*4
        QF = V + 40; P = QF + 16; E = P + 32; MX = E + 32; MN = MX + 4; W = MN + 4; T = W + 8
        srd(a, 20, 6, PHIQ, 0x800000); srd(a, 24, 6, MP2, 65536)
        a('s_mov_b32 s%d, 0x%x' % (sL, LOG2E))
        a('s_and_b32 s%d, s%d, 1' % (c.s_nh, c.s_wave))
        wphi_read(a, W, c.s_nh, WPH, 2, 3)
        a('s_lshl_b32 s59, s%d, 1\ns_add_u32 s%d, s59, s%d' % (c.s_nt, s_hd, c.s_nh))
        a('s_lshl_b32 s61, s61, 14\ns_lshl_b32 s64, s64, 8\ns_add_u32 s64, s64, s61')
        a('s_sub_u32 s61, s%d, 4\ns_lshl_b32 s62, s61, 12\ns_add_u32 s62, s62, %d' % (c.s_wave, QB))
        a('v_lshl_add_u32 v3, v1, 4, s62\nv_lshlrev_b32 v4, 4, v1')
        a('s_lshr_b32 s61, s61, 1\ns_lshl_b32 s62, s%d, 1\ns_add_u32 s62, s62, s61\ns_lshl_b32 s62, s62, 18' % c.s_mt)
        a('s_lshl_b32 s61, s%d, 11\ns_add_u32 s62, s62, s61' % s_hd)
        def gv():
            gemv_math(a, 8, V, T, vm, 59)
            a('v_lshrrev_b32 v2, 4, v%d\nv_lshlrev_b32 v2, 8, v2\nv_and_b32 v5, 7, v1\nv_lshl_add_u32 v2, v5, 5, v2\nv_add_u32 v2, %d, v2' % (V+38, GV))
            a('ds_write_b128 v2, v[%d:%d]\nds_write_b128 v2, v[%d:%d] offset:16' % (T+8, T+11, T+12, T+15))
            a('v_mov_b32 v5, %d\nv_mov_b32 v6, 1\ns_waitcnt lgkmcnt(0)' % (FLG+16))
            a('s_mov_b64 exec, 1\nds_add_rtn_u32 v6, v5, v6\ns_mov_b64 exec, -1\ns_waitcnt lgkmcnt(0)')
            a('v_readfirstlane_b32 s59, v6\ns_cmp_lg_u32 s59, 3\ns_cbranch_scc1 qkv_gvx')
            a('v_lshlrev_b32 v5, 2, v1\nv_add_u32 v6, %d, v5' % GV)
            for p in range(16): a('ds_read_b32 v%d, v6 offset:%d' % (T+p, 256*p))
            a('s_waitcnt lgkmcnt(0)')
            for st in (8, 4, 2, 1):
                for p in range(st): a('v_add_f32 v%d, v%d, v%d' % (T+p, T+p, T+p+st))
            a('buffer_store_dword v%d, v5, s[24:27], s64 offen sc1' % T)
            a.label('qkv_gvx')
        if not opt.gv_late: gv()
        gemm.mark(a, c, 1)
        if opt.eprio: a('s_setprio %d' % opt.eprio)
        a('s_barrier')
        gemm.mark(a, c, 2)
        for i in range(4): a('ds_read_b128 v[%d:%d], v3 offset:%d' % (QF+4*i, QF+4*i+3, 1024*i))
        a('s_waitcnt lgkmcnt(0)')
        def sink(i, sg, B):
            a('buffer_store_dwordx4 v[%d:%d], v4, s[20:23], s62 offen offset:%d' % (B, B+3, sg*1024))
            vm.issue('st')
            if sg == 1: a('s_add_u32 s62, s62, 65536')
        feat(a, QF, P, E, MX, MN, W, sL, sink)
        gemm.mark(a, c, 3)
        if opt.gv_late: gv()
    def zero_flags(a, c):
        a('v_lshlrev_b32 v2, 2, v1\nv_add_u32 v2, %d, v2\nv_mov_b32 v3, 0\nds_write_b32 v2, v3\ns_waitcnt lgkmcnt(0)' % FLG)
    c.pre_hook2 = zero_flags
    c.first_c = lambda c, j: '0'
    c.unroll = True; c.iter_hook = iter_hook
    regs = []
    if opt.spf & 1: regs.append((78, 2048))
    if opt.spf & 2: regs.append((92, 7168))
    if regs: c.iter_hook = smem_pf(c, regs, 1, 14, iter_hook)
    c.early_issue, c.tail_issue, c.ptail = early_issue, tail_issue, ptail
    gemm_body(a, c, psrds, csrds)
    a('s_lshl_b32 s%d, s%d, 1\ns_add_u32 s%d, s%d, s%d' % (s_hd, c.s_nt, s_hd, s_hd, c.s_nh))
    wphi_read(a, c.v_free, c.s_nh, WPH, 2, 3)
    W = c.v_free
    ACC = lambda j, i, r=0: c.v_acc + (j*4+i)*4 + r
    QF = 8; P = 24; E = 56
    MX = W + 8; MN = MX + 4; T = MN + 4
    a('s_mov_b32 s%d, 0x%x' % (sL, LOG2E))
    a('v_lshlrev_b32 v4, 4, v1')
    a('s_lshl_b32 s61, s%d, 12\ns_add_u32 s61, s61, %d' % (c.s_wave, QB))
    a('v_add_u32 v3, s61, v4')
    for i in range(4):
        for h in range(2):
            for e in range(2):
                a('v_cvt_pk_bf16_f32 v%d, v%d, v%d' % (P+4*i+2*h+e, ACC(h, i, 2*e), ACC(h, i, 2*e+1)))
        a('ds_write_b128 v3, v[%d:%d] offset:%d' % (P+4*i, P+4*i+3, 1024*i))
    a('s_waitcnt lgkmcnt(0)')
    gemm.mark(a, c, 1)
    a('s_barrier')
    gemm.mark(a, c, 2)
    a('s_lshl_b32 s61, s%d, 1\ns_add_u32 s61, s61, s%d\ns_lshl_b32 s61, s61, 12\ns_add_u32 s61, s61, %d' % (c.s_nh, c.s_rh, VB))
    a('v_add_u32 v3, s61, v4')
    for gam in range(2):
        for dt in range(2):
            q = c.v_acc + (gam*2+dt)*4
            for h in range(2):
                for e in range(2):
                    a('v_cvt_pk_bf16_f32 v%d, v%d, v%d' % (q+2*h+e, ACC(4+dt, 2*gam+h, 2*e), ACC(4+dt, 2*gam+h, 2*e+1)))
            a('ds_write_b128 v3, v[%d:%d] offset:%d' % (q, q+3, (gam*2+dt)*1024))
    for i in range(4):
        for h in range(2):
            for e in range(2):
                a('v_cvt_pk_bf16_f32 v%d, v%d, v%d' % (QF+4*i+2*h+e, ACC(2+h, i, 2*e), ACC(2+h, i, 2*e+1)))
    def hrow(dst, row, t):
        a('v_lshrrev_b32 v%d, 1, v%d\nv_and_b32 v%d, 3, v%d\nv_lshlrev_b32 v%d, 2, v%d' % (dst, row, dst, dst, dst, dst))
        a('v_and_b32 v%d, 1, v%d\nv_or_b32 v%d, v%d, v%d' % (t, row, dst, dst, t))
        a('v_lshrrev_b32 v%d, 2, v%d\nv_and_b32 v%d, 2, v%d\nv_or_b32 v%d, v%d, v%d' % (t, row, t, t, dst, dst, t))
    WA = T + 16
    RA = WA + 4
    a('v_and_b32 v2, 15, v1\nv_lshrrev_b32 v3, 4, v1')
    hrow(6, 2, 5)
    a('v_xor_b32 v6, v6, v3')
    a('v_lshlrev_b32 v2, 7, v2')
    a('s_lshl_b32 s61, s%d, 13\ns_add_u32 s61, s61, %d' % (c.s_wave, IMG))
    a('v_add_u32 v2, s61, v2')
    for u in range(4):
        a('v_xor_b32 v5, %d, v6\nv_lshl_add_u32 v%d, v5, 3, v2' % (4*u, WA+u))
    a('v_lshrrev_b32 v2, 2, v1\nv_and_b32 v3, 3, v1')
    hrow(6, 2, 5)
    a('v_xor_b32 v6, v6, v3')
    a('v_lshlrev_b32 v2, 7, v2')
    a('s_lshl_b32 s61, s%d, 13\ns_add_u32 s61, s61, %d' % (c.s_nh, IMG))
    a('v_add_u32 v2, s61, v2')
    a('s_lshl_b32 s61, s%d, 3' % c.s_rh)
    a('v_xor_b32 v6, s61, v6')
    for u in range(2):
        a('v_xor_b32 v5, %d, v6\nv_lshl_add_u32 v%d, v5, 3, v2' % (4*u, RA+u))
    def sink(i, sg, B):
        for ft in range(2): a('ds_write_b64 v%d, v[%d:%d] offset:%d' % (WA+2*sg+ft, B+2*ft, B+2*ft+1, i*2048))
    feat(a, QF, P, E, MX, MN, W, sL, sink)
    a('s_waitcnt lgkmcnt(0)')
    gemm.mark(a, c, 3)
    a('s_lshl_b32 s61, s%d, 2\ns_add_u32 s61, s61, %d\nv_mov_b32 v2, s61\nv_mov_b32 v3, 1\nds_write_b32 v2, v3\nv_xor_b32 v2, 8, v2' % (c.s_wave, FLG))
    a.label('qkv_spin')
    a('ds_read_b32 v3, v2\ns_waitcnt lgkmcnt(0)\nv_readfirstlane_b32 s61, v3\ns_cmp_eq_u32 s61, 0\ns_cbranch_scc1 qkv_spin')
    gemm.mark(a, c, 4)
    AF = 8
    VF = 40
    ONE = 72
    KV = ACC(2, 0)
    a('s_lshl_b32 s61, s%d, 13\ns_add_u32 s61, s61, %d' % (c.s_nh, VB))
    a('v_add_u32 v3, s61, v4')
    for gp in range(4):
        rhp, gam = gp // 2, gp % 2
        for ftl in range(2):
            for t in range(2):
                q = AF + (ftl*4+gp)*4 + 2*t
                a('ds_read_b64_tr_b16 v[%d:%d], v%d offset:%d' % (q, q+1, RA+ftl, rhp*16384 + (gam*32 + t*16)*128))
        for dt in range(2):
            q = VF + (dt*4+gp)*4
            a('ds_read_b128 v[%d:%d], v3 offset:%d' % (q, q+3, (gp*2+dt)*1024))
    for e in range(4): a('v_mov_b32 v%d, 0x3f803f80' % (ONE+e))
    for gp in range(4):
        a('s_waitcnt lgkmcnt(%d)' % min(12, 6*(3-gp)))
        for ftl in range(2):
            for t in range(3):
                d = KV + (ftl*3+t)*4; A_ = AF + (ftl*4+gp)*4
                B_ = VF + (t*4+gp)*4 if t < 2 else ONE
                cc = '0' if gp == 0 else 'v[%d:%d]' % (d, d+3)
                a('v_mfma_f32_16x16x32_bf16 v[%d:%d], v[%d:%d], v[%d:%d], %s' % (d, d+3, A_, A_+3, B_, B_+3, cc))
    a('s_lshl_b32 s61, s%d, 4\ns_add_u32 s61, s61, s%d' % (s_hd, c.s_mt))
    a('s_lshl_b32 s63, s61, 12\ns_lshl_b32 s64, s%d, 11\ns_add_u32 s63, s63, s64' % c.s_rh)
    a('s_lshl_b32 s61, s61, 8\ns_lshl_b32 s64, s%d, 7\ns_add_u32 s61, s61, s64' % c.s_rh)
    a('v_and_b32 v2, 15, v1\nv_cmp_eq_u32 vcc, 0, v2')
    for ftl in range(2):
        for e in range(4): a('v_cvt_pk_bf16_f32 v%d, v%d, v%d' % (AF+4*ftl+e, KV+ftl*12+2*e, KV+ftl*12+2*e+1))
        a('buffer_store_dwordx4 v[%d:%d], v4, s[24:27], s63 offen offset:%d' % (AF+4*ftl, AF+4*ftl+3, ftl*1024))
    a('s_and_saveexec_b64 s[64:65], vcc')
    for ftl in range(2):
        d = KV + (ftl*3+2)*4
        a('buffer_store_dwordx4 v[%d:%d], v1, s[28:31], s61 offen offset:%d' % (d, d+3, ftl*64))
    a('s_mov_b64 exec, s[64:65]')
    gemm_tail(a, c, n, 2)

def k_o(a):
    n = 'o_kernel'
    a.kernel_begin(n)
    a('s_cmp_ge_u32 s2, 256\ns_cbranch_scc1 o_end')
    a('s_load_dwordx2 s[6:7], s[0:1], %d\ns_load_dwordx2 s[4:5], s[0:1], %d' % (P_WS, P_W1))
    ts_start(a, 3)
    a('s_and_b32 s36, s2, 7\ns_lshl_b32 s36, s36, 2\ns_lshr_b32 s37, s2, 3\ns_and_b32 s37, s37, 3\ns_add_u32 s36, s36, s37\ns_lshr_b32 s37, s2, 5')
    a('v_lshrrev_b32 v2, 6, v0\nv_and_b32 v1, 63, v0\nv_readfirstlane_b32 s38, v2')
    a('v_lshlrev_b32 v3, 4, v1\nv_lshrrev_b32 v4, 4, v1\nv_lshlrev_b32 v4, 4, v4')
    a('s_waitcnt lgkmcnt(0)')
    srd(a, 8, 6, KVP, 0x200000); srd(a, 12, 6, ZP, 0x20000); srd(a, 16, 6, PHIQ, 0x800000); srd(a, 20, 6, OF, 0x400000)
    a('s_lshl_b32 s40, s36, 16\ns_lshl_b32 s41, s38, 10\ns_add_u32 s40, s40, s41')
    a('s_lshl_b32 s41, s36, 12\ns_lshl_b32 s42, s38, 6\ns_add_u32 s41, s41, s42')
    KB = 48
    RW = 80
    a('v_and_b32 v5, 15, v1\nv_lshl_add_u32 v4, v5, 8, v4')
    a('buffer_load_dwordx4 v[%d:%d], v4, s[12:15], s41 offen' % (KB+8, KB+11))
    a('s_lshl_b32 s45, s37, 1')
    for m in range(16):
        a('s_add_u32 s46, s45, %d\ns_and_b32 s46, s46, 15\ns_lshl_b32 s46, s46, 12\ns_add_u32 s46, s46, s40' % m)
        a('buffer_load_dwordx4 v[%d:%d], v3, s[8:11], s46 offen' % (RW+4*m, RW+4*m+3))
    a('s_lshl_b32 s42, s37, 2\ns_add_u32 s42, s42, s38\ns_lshl_b32 s42, s42, 2')
    a('s_lshl_b32 s43, s42, 16\ns_lshl_b32 s44, s36, 11\ns_add_u32 s43, s43, s44')
    PQ = 8
    for i in range(4):
        for sg in range(2):
            a('buffer_load_dwordx4 v[%d:%d], v3, s[16:19], s43 offen offset:%d' % (PQ+8*i+4*sg, PQ+8*i+4*sg+3, 1024*sg))
        a('s_add_u32 s43, s43, 65536')
    npf = 0
    a('s_waitcnt vmcnt(24)')
    dpp_sum(a, [KB+8+e for e in range(4)], DPP16)
    for m in range(16):
        a('s_waitcnt vmcnt(%d)' % (8 + 15 - m))
        if m == 0:
            for e in range(4): unpack(a, KB+2*e, KB+2*e+1, RW+e)
        else:
            for e in range(4): unpack(a, 64+2*e, 65+2*e, RW+4*m+e)
            for e in range(8): a('v_add_f32 v%d, v%d, v%d' % (KB+e, KB+e, 64+e))
    for t in range(3):
        for e in range(2): a('v_cvt_pk_bf16_f32 v%d, v%d, v%d' % (KB+12+2*t+e, KB+4*t+2*e, KB+4*t+2*e+1))
    a('s_lshr_b32 s40, s38, 1\ns_lshl_b32 s40, s40, 10\ns_and_b32 s41, s38, 1\ns_lshl_b32 s41, s41, 3\ns_add_u32 s40, s40, s41')
    a('v_add_u32 v5, s40, v3')
    for t in range(3): a('ds_write_b64 v5, v[%d:%d] offset:%d' % (KB+12+2*t, KB+13+2*t, 2048*t))
    a('s_waitcnt lgkmcnt(0)\ns_barrier')
    AF = 80
    for t in range(3):
        for gam in range(2): a('ds_read_b128 v[%d:%d], v3 offset:%d' % (AF+(t*2+gam)*4, AF+(t*2+gam)*4+3, (t*2+gam)*1024))
    a('s_waitcnt vmcnt(%d) lgkmcnt(0)' % npf)
    R = 112
    for gam in range(2):
        for i in range(4):
            for t in range(3):
                d = R + (i*3+t)*4; A_ = AF+(t*2+gam)*4; B_ = PQ+8*i+4*gam
                a('v_mfma_f32_16x16x32_bf16 v[%d:%d], v[%d:%d], v[%d:%d], %s' % (d, d+3, A_, A_+3, B_, B_+3, '0' if gam == 0 else 'v[%d:%d]' % (d, d+3)))
    a('s_lshl_b32 s43, s42, 15\ns_lshl_b32 s44, s36, 10\ns_add_u32 s43, s43, s44')
    dens = [R+(i*3+2)*4 for i in range(4)]
    if opt.mimic: rndn(a, dens, [48, 49])
    for d in dens: a('v_add_f32 v%d, 0x358637bd, v%d' % (d, d))
    if opt.mimic: rndn(a, dens, [48, 49])
    for d in dens: a('v_rcp_f32 v%d, v%d' % (d, d))
    for i in range(4):
        xs = list(range(R+i*12, R+i*12+8))
        if opt.mimic: rndn(a, xs, [48, 49, 50, 51])
        for x in xs: a('v_mul_f32 v%d, v%d, v%d' % (x, x, dens[i]))
        for e in range(4): a('v_cvt_pk_bf16_f32 v%d, v%d, v%d' % (56+4*i+e, xs[2*e], xs[2*e+1]))
        a('buffer_store_dwordx4 v[%d:%d], v3, s[20:23], s43 offen' % (56+4*i, 59+4*i))
        a('s_add_u32 s43, s43, 32768')
    if opt.ts:
        a('s_cmp_lg_u32 s38, 0\ns_cbranch_scc1 o_end')
        ts_end(a, 3, 'o_end')
    a.label('o_end')
    a('s_endpgm')
    a.kernel_end(n, 160, 100, 160, 256, 256, 6144)

def res_setup(c, xsrd, chunk, bias):
    XT = c.slot*c.S
    ACC = lambda j, i, r=0: c.v_acc + (i*4+j)*4 + r
    def tail(a, c, vm):
        V = c.p_vfree
        srd(a, 16, *xsrd)
        a('v_xor_b32 v%d, v%d, v%d\nv_lshlrev_b32 v%d, 4, v%d\nv_lshl_add_u32 v%d, v%d, 11, v%d' % (V, c.p_vrow, c.p_vch, V, V, V, c.p_vrow, V))
        a('s_sub_u32 s59, s%d, 4\ns_lshl_b32 s60, s%d, 2\ns_add_u32 s60, s60, s59\ns_lshl_b32 s60, s60, 16\ns_lshl_b32 s61, s%d, 7\ns_add_u32 s60, s60, s61' % (c.s_wave, c.s_mt, c.s_nt))
        a('s_lshl_b32 s59, s59, 12\ns_add_u32 s59, s59, %d' % XT)
        for i in range(4):
            a('s_add_u32 m0, s59, %d' % (1024*i))
            a('buffer_load_dwordx4 v%d, s[16:19], s60 offen lds' % V)
            a('s_add_u32 s60, s60, 16384')
        vm.issue('op', 4)
    def early(a, c, vm):
        V = c.p_vfree
        srd(a, 20, 6, MP2, 65536)
        a('v_lshrrev_b32 v%d, 4, v1\nv_lshlrev_b32 v%d, 14, v%d\nv_and_b32 v%d, 15, v1\nv_lshl_add_u32 v%d, v%d, 4, v%d' % (V+1, V+1, V+1, V+2, V+1, V+2, V+1))
        a('s_lshl_b32 s61, s%d, 8\ns_add_u32 s61, s61, %d\ns_mov_b32 m0, %d' % (c.s_nt, (chunk-2)*4096, XT))
        a('buffer_load_dwordx4 v%d, s[20:23], s61 offen lds' % (V+1))
        vm.issue(0)
        if bias:
            srd(a, 24, bias, 0, 2048)
            a('v_lshlrev_b32 v%d, 4, v1\ns_lshl_b32 s61, s%d, 7\ns_mov_b32 m0, %d' % (V+2, c.s_nt, XT+1024))
            a('buffer_load_dwordx4 v%d, s[24:27], s61 offen lds' % (V+2))
            vm.issue(0)
    def pre(a, c):
        XA = c.v_free + 16 + 64 + 8
        a('v_and_b32 v2, 7, v1\nv_lshrrev_b32 v3, 5, v1\nv_xor_b32 v2, v2, v3\nv_lshlrev_b32 v2, 4, v2\nv_bfe_u32 v3, v1, 4, 1\nv_lshl_add_u32 v2, v3, 3, v2')
        a('v_and_b32 v3, 15, v1\nv_lshl_add_u32 v2, v3, 7, v2\ns_lshl_b32 s61, s%d, 12\ns_add_u32 s61, s61, %d\nv_add_u32 v%d, s61, v2' % (c.s_wave, XT, XA))
        for j in range(1, 4): a('v_xor_b32 v%d, %d, v%d' % (XA+j, 32*j, XA))
        a('v_lshrrev_b32 v3, 4, v1\nv_lshlrev_b32 v2, 3, v3\nv_lshlrev_b32 v3, 4, v3\nv_add_u32 v2, %d, v2\nv_add_u32 v3, %d, v3' % (XT+1024, XT))
    def post_b0(a, c):
        B = c.v_free + 16 + 64
        if bias:
            for j in range(4): a('ds_read_b64 v[%d:%d], v2 offset:%d' % (B+2*j, B+2*j+1, 32*j))
    def post_b0b(a, c, nr):
        XR = c.v_free; GA = XR + 16; B = GA + 64
        if bias:
            a('s_waitcnt lgkmcnt(%d)' % min(15, nr))
            for j in range(4):
                for e in range(2): unpack(a, XR+4*j+2*e, XR+4*j+2*e+1, B+2*j+e)
        for p in range(4):
            for j in range(4): a('ds_read_b128 v[%d:%d], v3 offset:%d' % (GA+16*p+4*j, GA+16*p+4*j+3, 256*p + 64*j))
    def first_extra(c):
        GA = c.v_free + 16
        b = Asm()
        for e in range(0, 16, 2): b('v_pk_add_f32 v[%d:%d], v[%d:%d], v[%d:%d]\nv_pk_add_f32 v[%d:%d], v[%d:%d], v[%d:%d]' % (GA+e, GA+e+1, GA+e, GA+e+1, GA+16+e, GA+17+e, GA+32+e, GA+33+e, GA+32+e, GA+33+e, GA+48+e, GA+49+e))
        for e in range(0, 16, 2): b('v_pk_add_f32 v[%d:%d], v[%d:%d], v[%d:%d]' % (GA+e, GA+e+1, GA+e, GA+e+1, GA+32+e, GA+33+e))
        rndn(b, list(range(GA, GA+16)), list(range(GA+16, GA+24)))
        return [l.strip() for l in b.lines]
    c.early_issue, c.pre_hook, c.post_b0, c.post_b0b, c.first_extra = early, pre, post_b0, post_b0b, first_extra
    c.first_c = (lambda c, j: 'v[%d:%d]' % (c.v_free+4*j, c.v_free+4*j+3)) if bias else (lambda c, j: '0')
    def last_reads(c):
        XR = c.v_free; XA = XR + 16 + 64 + 8
        return ['ds_read_b64 v[%d:%d], v%d offset:%d' % (XR+8*i+2*j, XR+8*i+2*j+1, XA+j, 2048*i) for i in range(2) for j in range(4)]
    c.last_reads = last_reads
    c.pre_last_bar = lambda a, c, vm: vm.wait('op')
    return tail
def res_epi(a, c, sOut, bias=None, stats=None):
    XR = c.v_free; GA = XR + 16
    ACC = lambda j, i, r=0: c.v_acc + (i*4+j)*4 + r
    P2 = lambda x: 'v[%d:%d]' % (x, x+1)
    a('s_lshl_b32 s58, s%d, 2\ns_add_u32 s58, s58, s%d' % (c.s_mt, c.s_wave))
    a('s_lshl_b32 s60, s58, 16\ns_lshl_b32 s61, s%d, 7\ns_add_u32 s60, s60, s61' % c.s_nt)
    U = GA + 16; PK = U + 32
    a('s_waitcnt lgkmcnt(0)')
    a('v_and_b32 v2, 15, v1\nv_lshlrev_b32 v2, 11, v2\nv_bfe_u32 v3, v1, 4, 1\nv_lshl_add_u32 v2, v3, 5, v2\nv_lshrrev_b32 v3, 5, v1\nv_lshl_add_u32 v2, v3, 4, v2')
    a('s_add_u32 s61, s60, 32768')
    for i in range(2):
        for j in range(4):
            for e in range(2): unpack(a, U+16*i+4*j+2*e, U+16*i+4*j+2*e+1, XR+8*i+2*j+e)
        for j in range(4):
            for r in (0, 2): a('v_pk_fma_f32 %s, %s, %s, %s' % (P2(ACC(j,i,r)), P2(ACC(j,i,r)), P2(GA+4*j+r), P2(U+16*i+4*j+r)))
        if opt.outscale and bias is not None:
            import struct
            for j in range(4):
                for r in range(4): a('v_mul_f32 v%d, 0x%x, v%d' % (ACC(j,i,r), struct.unpack('<I', struct.pack('<f', opt.outscale))[0], ACC(j,i,r)))
        for j in range(4):
            for e in range(2): a('v_cvt_pk_bf16_f32 v%d, v%d, v%d' % (PK+8*i+2*j+e, ACC(j,i,2*e), ACC(j,i,2*e+1)))
        for jp in range(2):
            for e in range(2): a('v_permlane16_swap_b32 v%d, v%d' % (PK+8*i+4*jp+e, PK+8*i+4*jp+2+e))
        for jp in range(2):
            a('buffer_store_dwordx4 v[%d:%d], v2, s[%d:%d], s%d offen offset:%d' % (PK+8*i+4*jp, PK+8*i+4*jp+3, sOut, sOut+3, 60+i, 64*jp))
    gemm.mark(a, c, 5)
    if stats is not None:
        Q = 12
        for i in range(2):
            xs = [ACC(j,i,r) for j in range(4) for r in (0, 2)]
            S0, Q0 = 16+8*i, 20+8*i
            for k in range(2): a('v_pk_add_f32 %s, %s, %s' % (P2(S0+2*k), P2(xs[k]), P2(xs[2+k])))
            for k in range(2): a('v_pk_mul_f32 %s, %s, %s' % (P2(Q0+2*k), P2(xs[k]), P2(xs[k])))
            for m in (4, 6):
                for k in range(2): a('v_pk_add_f32 %s, %s, %s' % (P2(S0+2*k), P2(S0+2*k), P2(xs[m+k])))
            for m in (2, 4, 6):
                for k in range(2): a('v_pk_fma_f32 %s, %s, %s, %s' % (P2(Q0+2*k), P2(xs[m+k]), P2(xs[m+k]), P2(Q0+2*k)))
            a('v_pk_add_f32 %s, %s, %s\nv_pk_add_f32 %s, %s, %s' % (P2(S0), P2(S0), P2(S0+2), P2(Q0), P2(Q0), P2(Q0+2)))
            a('v_add_f32 v%d, v%d, v%d\nv_add_f32 v%d, v%d, v%d' % (Q+i, S0, S0+1, Q+2+i, Q0, Q0+1))
        for st in bfly(a, 'v_add_f32', [Q, Q+1, Q+2, Q+3])[:4]:
            for l in st: a(l)
        a('v_and_b32 v2, 15, v1\nv_lshrrev_b32 v3, 5, v1\nv_lshl_add_u32 v2, v3, 4, v2\nv_lshlrev_b32 v2, 3, v2\nv_bfe_u32 v3, v1, 4, 1\nv_lshl_add_u32 v2, v3, 2, v2')
        a('s_lshl_b32 s61, s58, 8\ns_lshl_b32 s62, s%d, 14\ns_add_u32 s61, s61, s62' % c.s_nt)
        a('buffer_store_dword v%d, v2, s[%d:%d], s61 offen sc1' % (Q, stats, stats+3))
def k_wo(a):
    n = 'wo_kernel'
    c = gemm.config('wo', 1024, 128, 1, False, 128, 3, 2048, 128, rows4=True, KS=2, rpm=opt.rpm)
    c.lds += 16384
    a.kernel_begin(n)
    gemm_head(a, c, 4, 4, 8, 128, [(4, P_WO), (6, P_WS), (32, P_X), (34, P_W1)], (1,1))
    psrds = [(8, 6, OF, 0x400000), (12, 4, 0, 1024*2048)]
    csrds = [(24, 6, X1, 0x400000), (28, 6, ST2, 0x40000)]
    rt = res_setup(c, (32, 0, 0x400000), 2, None)
    def tail_issue(a, c, vm):
        rt(a, c, vm)
        if opt.cpf & 2: next_code(a, 'wo', 'ln2_kernel', 'w2_kernel', 2, 240, 1, c.s_wave, 4, vm)
        if opt.pf3:
            V = c.p_vfree + 4
            srd(a, 28, 34, 0, 1024*7168)
            a('v_lshrrev_b32 v%d, 4, v1\nv_mul_u32_u24 v%d, 7168, v%d\nv_and_b32 v%d, 15, v1\nv_lshl_add_u32 v%d, v%d, 7, v%d' % (V, V, V, V+1, V, V+1, V))
            a('v_cmp_lt_u32 vcc, 13, v%d\nv_mov_b32 v%d, 0x7fffffff\nv_cndmask_b32 v%d, v%d, v%d, vcc' % (V+1, V+1, V, V, V+1))
            a('s_lshr_b32 s61, s2, 3\ns_lshl_b32 s61, s61, 2\ns_add_u32 s61, s61, s%d\ns_sub_u32 s61, s61, 4\ns_mul_i32 s61, s61, %d' % (c.s_wave, 4*7168))
            a('s_bfe_u32 s62, s2, 0x20001\ns_mul_i32 s62, s62, 1792\ns_add_u32 s61, s61, s62')
            for q in range(opt.pf3):
                a('buffer_load_dword v%d, v%d, s[28:31], s61 offen\ns_add_u32 s61, s61, %d' % (V+2, V, 512*7168))
            vm.issue('pf', opt.pf3)
    c.tail_issue = tail_issue
    gemm_body(a, c, psrds, csrds)
    res_epi(a, c, 24, stats=28)
    gemm_tail(a, c, n, 4)

def k_w1(a):
    n = 'w1_kernel'
    c = gemm.config('w1', 1024, 128, 3, True, 64, 3, 7168, 128, natw=True)
    a.kernel_begin(n)
    gemm_head(a, c, 6, 8, 4, 448, [(4, P_W1), (6, P_WS), (32, P_B1), (34, P_W2)], (1,1))
    psrds = [(8, 6, H2F, 0x400000), (12, 4, 0, 1024*7168)]
    csrds = [(24, 6, HF, 2048*7168)]
    ACC = lambda j, i, r=0: (c.v_acc + (j*4+i)*4 + r) if j < 6 else (c.v_acc + 96 + ((j-6)*2+i)*4 + r)
    BT = c.lds
    c.lds += 1024
    def early_issue(a, c, vm):
        V = c.p_vfree
        srd(a, 16, 32, 0, 7168)
        a('v_lshlrev_b32 v%d, 4, v1\ns_mul_i32 s59, s%d, 448\ns_mov_b32 m0, %d' % (V, c.s_nt, BT))
        a('buffer_load_dwordx4 v%d, s[16:19], s59 offen lds' % V)
        vm.issue(0)
    c.early_issue = early_issue
    c.unroll = True
    if opt.pf4 == 2: c.iter_hook = smem_pf(c, [(34, 7168)], 1, 14)
    def tail_issue(a, c, vm):
        V = c.p_vfree
        if opt.cpf & 2: next_code(a, 'w1', 'w2_kernel', 'code_end', 1, 240, 1, c.s_wave, 4, vm)
        if opt.pf4 not in (1, 3): return
        srd(a, 28, 34, 0, 3584*2048)
        a('v_lshlrev_b32 v%d, 11, v%d\nv_lshl_add_u32 v%d, v%d, 7, v%d' % (V, c.p_vrow, V, c.p_vch, V))
        a('s_bfe_u32 s62, s2, 0x10002\ns_lshl_b32 s62, s62, 10')
        a('s_lshr_b32 s61, s2, 3\ns_lshl_b32 s63, s61, 2\ns_add_u32 s63, s63, s%d\ns_sub_u32 s63, s63, 4\ns_lshl_b32 s63, s63, 14\ns_add_u32 s63, s63, s62' % c.s_wave)
        a('buffer_load_dword v%d, v%d, s[28:31], s63 offen' % (V+1, V))
        vm.issue('pf')
        if opt.pf4 == 1:
            a('s_mul_i32 s61, s61, 20\ns_and_b32 s63, s2, 3\ns_mul_i32 s63, s63, 640\ns_add_u32 s61, s61, s63\ns_lshl_b32 s63, s%d, 3\ns_add_u32 s61, s61, s63\ns_add_u32 s61, s61, %d' % (c.s_wave, 1024-32))
            a('s_lshl_b32 s61, s61, 11\ns_add_u32 s61, s61, s62')
            a('buffer_load_dword v%d, v%d, s[28:31], s61 offen' % (V+2, V))
            vm.issue('pf')
    c.tail_issue = tail_issue
    def pre(a, c):
        a('s_lshl_b32 s58, s%d, 6\ns_add_u32 s58, s58, s%d' % (c.s_nh, c.s_col0))
        a('s_mul_i32 s59, s%d, 448\ns_sub_u32 s59, %d, s59\ns_add_u32 s60, s58, s59\ns_add_u32 s59, s%d, s59' % (c.s_nt, BT, c.s_colh))
        a('v_lshrrev_b32 v3, 4, v1\nv_lshlrev_b32 v3, 3, v3\nv_add_u32 v2, s60, v3\nv_add_u32 v3, s59, v3')
    BF = 60
    def post_b0(a, c):
        B = c.v_acc
        for j in range(6): a('ds_read_b64 v[%d:%d], v2 offset:%d' % (B+2*j, B+2*j+1, (j//2)*128 + (j%2)*32))
        for u in range(2): a('ds_read_b64 v[%d:%d], v3 offset:%d' % (B+12+2*u, B+13+2*u, 32*u))
    def post_b0b(a, c, nr):
        a('s_waitcnt lgkmcnt(%d)' % min(15, nr))
        for j in range(8):
            for e in range(2): unpack(a, c.v_free+4*j+2*e, c.v_free+4*j+2*e+1, c.v_acc+2*j+e)
    c.pre_hook, c.post_b0, c.post_b0b = pre, post_b0, post_b0b
    c.first_c = lambda c, j: 'v[%d:%d]' % (c.v_free+4*j, c.v_free+4*j+3)
    gemm_body(a, c, psrds, csrds)
    a('v_lshlrev_b32 v4, 4, v1')
    a('s_lshl_b32 s60, s%d, 1\ns_add_u32 s60, s60, s%d\ns_mul_i32 s60, s60, %d' % (c.s_mt, c.s_rh, 4*112*1024))
    a('s_mul_i32 s59, s%d, %d' % (c.s_nh, 2*112*1024))
    a('s_lshl_b32 s61, s58, 4\ns_add_u32 s61, s61, s60')
    a('s_lshl_b32 s62, s%d, 4\ns_add_u32 s62, s62, s60\ns_add_u32 s62, s62, s59' % c.s_colh)
    a('s_add_u32 s61, s61, s59')
    PK = 56
    for i in range(4):
        nj = 8 if i < 2 else 6
        xs = [ACC(j, i, r) for j in range(nj) for r in range(4)]
        for x in xs: a('v_max_f32 v%d, 0, v%d' % (x, x))
        for x in xs[::2]: a('v_pk_mul_f32 v[%d:%d], v[%d:%d], v[%d:%d]' % (x, x+1, x, x+1, x, x+1))
        pk = PK + (i % 2)*16
        for k in range(2*nj): a('v_cvt_pk_bf16_f32 v%d, v%d, v%d' % (pk+k, xs[2*k], xs[2*k+1]))
        for p in range(3):
            if p < 2: a('buffer_store_dwordx4 v[%d:%d], v4, s[24:27], s61 offen offset:%d' % (pk+4*p, pk+4*p+3, 2048*p))
            else:
                a('s_add_u32 s63, s61, 4096')
                a('buffer_store_dwordx4 v[%d:%d], v4, s[24:27], s63 offen' % (pk+4*p, pk+4*p+3))
        if i < 2:
            a('buffer_store_dwordx4 v[%d:%d], v4, s[24:27], s62 offen' % (pk+12, pk+15))
            a('s_add_u32 s62, s62, %d' % (112*1024))
        a('s_add_u32 s61, s61, %d' % (112*1024))
        if i == 1: a('s_lshl_b32 s59, s59, 1\ns_sub_u32 s61, s61, s59')
    gemm_tail(a, c, n, 6)

def k_w2(a):
    n = 'w2_kernel'
    c = gemm.config('w2', 3584, 128, 1, False, 128, 3, 2048, 128, rows4=True, KS=2, rpm=opt.rpm)
    c.lds += 16384
    a.kernel_begin(n)
    gemm_head(a, c, 7, 4, 8, 128, [(4, P_W2), (6, P_WS), (32, P_B2), (34, P_OUT)], (1,1))
    psrds = [(8, 6, HF, 2048*7168), (12, 4, 0, 3584*2048)]
    csrds = [(28, 34, 0, 0x400000)]
    c.tail_issue = res_setup(c, (6, X1, 0x400000), 5, 32)
    gemm_body(a, c, psrds, csrds)
    res_epi(a, c, 28, bias=True)
    gemm_tail(a, c, n, 7)

def build(path, **kw):
    for k, v in kw.items(): setattr(opt, k, v)
    a = Asm()
    k_pre(a)
    k_ln(a, 'ln1_kernel', 1, True)
    k_qkv(a)
    k_o(a)
    k_wo(a)
    k_ln(a, 'ln2_kernel', 5, False)
    k_w1(a)
    k_w2(a)
    a.label('code_end')
    a('s_endpgm')
    if opt.sflags:
        a.lines = [l + opt.sflags if ('buffer_store_dwordx' in l and 's[88:91]' not in l) else l for l in a.lines]
    open(path, 'w').write(a.text(verbose=kw.get('verbose', False)))

if __name__ == '__main__':
    kw = eval('dict(%s)' % (sys.argv[2] if len(sys.argv) > 2 else ''))
    build(sys.argv[1], **kw)
```

```python
import sys
from asmgen import Asm
import gemm, gen
from gen import *
FL = 0x80000
FL8 = 12
XB = PHIQ
FL7 = 16384
opt.plan = 'lqowab'

UT = 0x90000
def rt(a, i):
    if not opt.ts: return
    a('s_memrealtime s[98:99]\ns_waitcnt lgkmcnt(0)\nv_writelane_b32 v%d, s98, %d' % (11 if getattr(a, 'cons', False) else 255, i))

def tile_head(a, c, xm, xn, colmul, ptrs):
    for s, o in ptrs: a('s_load_dwordx2 s[%d:%d], s[0:1], %d' % (s, s+1, o))
    c.dma_flags = opt.wflags
    bm = 16 // xm
    a('s_and_b32 s36, s2, 7\ns_lshr_b32 s37, s2, 3')
    a('s_and_b32 s38, s36, %d\ns_lshr_b32 s36, s36, %d' % (bm-1, bm.bit_length()-1))
    a('s_and_b32 s39, s37, %d\ns_lshr_b32 s37, s37, %d' % (xm-1, xm.bit_length()-1))
    a('s_mul_i32 s38, s38, %d\ns_add_u32 s%d, s38, s39' % (xm, c.s_mt))
    a('s_mul_i32 s36, s36, %d\ns_add_u32 s%d, s36, s37' % (xn, c.s_nt))
    a('s_add_u32 s39, s39, s37\ns_and_b32 s%d, s39, %d' % (c.s_rot, c.G-1))
    a('s_mul_i32 s%d, s%d, %d' % (c.s_col0, c.s_nt, colmul))
    if c.half:
        a('s_and_b32 s36, s%d, 1\ns_cmp_eq_u32 s36, 0' % c.s_nt)
        a('s_cselect_b32 s36, 384, 0\ns_cselect_b32 s37, 0, 64')
        a('s_add_u32 s%d, s%d, s36\ns_add_u32 s%d, s%d, s37' % (c.s_colh, c.s_col0, c.s_col0, c.s_col0))

def psync(a, tag, sig, s_sig, wait, s_wait, target=16, part=None, extra=None):
    if part != 1:
        srd(a, 84, 6, FL, 65536)
        a('s_lshl_b32 s88, s%d, 7\ns_add_u32 s88, s88, %d\ns_lshl_b32 s89, s%d, 7\ns_add_u32 s89, s89, %d' % (s_sig, sig*2048, s_wait, wait*2048))
        a('v_mov_b32 v252, 0\nv_mov_b32 v253, 1\ns_mov_b32 s90, 20000')
        a('s_barrier')
        rt(a, 2*sig if sig < 8 else 18)
        a('s_cmp_lg_u32 s42, 4\ns_cbranch_scc1 %s_s5' % tag)
        if opt.satom:
            a('s_mov_b32 s91, 1\ns_atomic_add s91, s[84:85], s88\ns_waitcnt lgkmcnt(0)')
        else:
            a('s_mov_b64 exec, 1')
            a('buffer_atomic_add v253, v252, s[84:87], s88 offen sc1')
            a('s_mov_b64 exec, -1')
        a.label(tag + '_s5')
    if part == 0: return
    a('s_cmp_lg_u32 s42, 5\ns_cbranch_scc1 %s_sx' % tag)
    if opt.spoll is True or tag in (opt.spoll or ()):
        a.label(tag + '_sp')
        a('s_load_dword s91, s[84:85], s89 glc')
        a('s_sub_u32 s90, s90, 1\ns_waitcnt lgkmcnt(0)')
        a('s_cmp_ge_u32 s91, %d\ns_cbranch_scc1 %s_sy' % (target, tag))
        a('s_cmp_lg_u32 s90, 0\ns_cbranch_scc1 %s_sp' % tag)
        a.label(tag + '_sy')
    else:
        a('s_mov_b64 exec, 1')
        a('buffer_load_dword v253, v252, s[84:87], s89 offen sc1')
        if opt.pollgap: a('s_sleep %d' % opt.pollgap)
        a.label(tag + '_sp')
        a('buffer_load_dword v254, v252, s[84:87], s89 offen sc1')
        a('s_sub_u32 s90, s90, 1\ns_waitcnt vmcnt(1)\nv_readfirstlane_b32 s91, v253')
        a('s_cmp_ge_u32 s91, %d\ns_cbranch_scc1 %s_sy' % (target, tag))
        a('buffer_load_dword v253, v252, s[84:87], s89 offen sc1')
        a('s_waitcnt vmcnt(1)\nv_readfirstlane_b32 s91, v254')
        a('s_cmp_ge_u32 s91, %d\ns_cbranch_scc1 %s_sy' % (target, tag))
        a('s_cmp_lg_u32 s90, 0\ns_cbranch_scc1 %s_sp' % tag)
        a.label(tag + '_sy')
        a('s_mov_b64 exec, -1')
    rt(a, 2*sig+1 if sig < 8 else 19)
    a.label(tag + '_sx')
    if extra: extra(a)
    a('s_barrier')

def chain(*fs):
    fs = [f for f in fs if f]
    def g(*x):
        for f in fs: f(*x)
    return g
BAR = lambda a, c: a('s_barrier')

def ln1_body(a, c, TB):
    a('s_lshl_b32 s20, s%d, 3\ns_lshr_b32 s21, s%d, 1\ns_add_u32 s20, s20, s21\ns_and_b32 s21, s%d, 1' % (c.s_mt, c.s_nt, c.s_nt))
    a('v_lshrrev_b32 v2, 6, v0\nv_and_b32 v3, 15, v0\nv_bfe_u32 v4, v0, 4, 2')
    a('v_lshlrev_b32 v5, 11, v3\nv_lshl_add_u32 v5, v2, 8, v5\nv_lshl_add_u32 v5, v4, 4, v5')
    a('s_lshl_b32 s22, s20, 15\ns_lshl_b32 s23, s21, 10\ns_add_u32 s23, s23, s22')
    a('v_lshlrev_b32 v6, 3, v0\ns_lshl_b32 s24, s21, 11')
    a('v_lshlrev_b32 v7, 3, v3\ns_lshl_b32 s25, s20, 7')
    a('s_waitcnt lgkmcnt(0)')
    srd(a, 12, 6, MP1, 32768)
    M = 16
    for p in range(4):
        for w, ch in enumerate((1, 0)):
            a('s_add_u32 s26, s24, %d' % (p*8192 + ch*4096))
            a('buffer_load_dwordx2 v[%d:%d], v6, s[12:15], s26 offen' % (M+4*p+2*w, M+4*p+2*w+1))
    srd(a, 8, 34, 0, 0x400000)
    D = 32
    for u in range(4): a('buffer_load_dwordx4 v[%d:%d], v5, s[8:11], s23 offen offset:%d' % (D+4*u, D+4*u+3, 64*u))
    srd(a, 16, 6, ST1, 16384)
    a('buffer_load_dwordx2 v[8:9], v7, s[16:19], s25 offen')
    srd(a, 28, 6, H1F, 0x400000)
    a('v_lshrrev_b32 v6, 2, v0\nv_lshlrev_b32 v6, 6, v6\nv_and_b32 v7, 3, v0\nv_lshl_add_u32 v6, v7, 3, v6\nv_add_u32 v6, %d, v6' % TB)
    a('s_waitcnt vmcnt(5)')
    for e in range(8): a('v_add_f32 v%d, v%d, v%d' % (M+e, M+e, M+8+e))
    for e in range(4): a('v_add_f32 v%d, v%d, v%d' % (M+e, M+e, M+4+e))
    rndn(a, [M, M+1, M+2, M+3], [M+4, M+5])
    a('v_add_f32 v%d, 1.0, v%d\nv_add_f32 v%d, 1.0, v%d' % (M, M, M+1, M+1))
    rndn(a, [M, M+1], [M+4])
    a('ds_write_b64 v6, v[%d:%d]\nds_write_b64 v6, v[%d:%d] offset:32' % (M, M+1, M+2, M+3))
    a('v_lshlrev_b32 v6, 10, v2\nv_lshl_add_u32 v6, v4, 6, v6\nv_add_u32 v6, %d, v6' % TB)
    a('v_lshlrev_b32 v5, 12, v2\nv_lshl_add_u32 v5, v1, 4, v5\ns_lshl_b32 s23, s21, 14\ns_add_u32 s23, s23, s22')
    a('s_waitcnt lgkmcnt(0)\ns_barrier')
    T = 80; X = 48
    for u in range(4):
        for e in range(4): a('ds_read_b128 v[%d:%d], v6 offset:%d' % (T+16*u+4*e, T+16*u+4*e+3, 256*u+16*e))
    a('s_waitcnt vmcnt(1)')
    for i in range(16): unpack(a, X+2*i, X+2*i+1, D+i)
    a('s_waitcnt vmcnt(0)')
    a('v_mul_f32 v9, -v9, v8')
    for i in range(0, 32, 2): a('v_pk_fma_f32 v[%d:%d], v[%d:%d], v[8:9], v[8:9] op_sel:[0,0,1] op_sel_hi:[1,0,1]' % (X+i, X+i+1, X+i, X+i+1))
    for u in range(4):
        a('s_waitcnt lgkmcnt(%d)' % (12-4*u))
        for e in range(0, 8, 2): a('v_pk_fma_f32 v[%d:%d], v[%d:%d], v[%d:%d], v[%d:%d]' % (X+8*u+e, X+8*u+e+1, X+8*u+e, X+8*u+e+1, T+16*u+e, T+16*u+e+1, T+16*u+8+e, T+16*u+9+e))
        for e in range(4): a('v_cvt_pk_bf16_f32 v%d, v%d, v%d' % (D+4*u+e, X+8*u+2*e, X+8*u+2*e+1))
        a('buffer_store_dwordx4 v[%d:%d], v5, s[28:31], s23 offen offset:%d' % (D+4*u, D+4*u+3, 1024*u))
    a('s_waitcnt vmcnt(0)\ns_barrier')

KB, RW = 160, 176
def o_loads(a):
    srd(a, 16, 6, KVP, 0x200000); srd(a, 20, 6, ZP, 0x20000)
    a('s_lshr_b32 s60, s42, 2\ns_lshl_b32 s61, s41, 1\ns_add_u32 s60, s60, s61\ns_and_b32 s61, s42, 3')
    a('s_lshl_b32 s62, s60, 16\ns_lshl_b32 s63, s61, 10\ns_add_u32 s62, s62, s63')
    a('s_lshl_b32 s63, s60, 12\ns_lshl_b32 s64, s61, 6\ns_add_u32 s63, s63, s64')
    a('v_lshlrev_b32 v156, 4, v1\nv_lshrrev_b32 v157, 4, v1\nv_lshlrev_b32 v157, 4, v157\nv_and_b32 v158, 15, v1\nv_lshl_add_u32 v157, v158, 8, v157')
    a('buffer_load_dwordx4 v[%d:%d], v157, s[20:23], s63 offen sc1' % (KB+8, KB+11))
    for m in range(16):
        a('s_lshl_b32 s64, s40, 1\ns_add_u32 s64, s64, %d\ns_and_b32 s64, s64, 15\ns_lshl_b32 s64, s64, 12\ns_add_u32 s64, s64, s62' % m)
        a('buffer_load_dwordx4 v[%d:%d], v156, s[16:19], s64 offen sc1' % (RW+4*m, RW+4*m+3))
    return ['oz'] + [('ok', m) for m in range(16)]
def o_reduce(a, vm):
    S = 244
    a('v_mov_b32 v%d, 0\nv_mov_b32 v%d, 0\nv_mov_b32 v%d, 0\nv_mov_b32 v%d, 0' % (S, S+1, S+4, S+5))
    a('v_bfe_u32 v157, v1, 2, 2\nv_lshrrev_b32 v158, 4, v1\nv_cmp_eq_u32 vcc, v157, v158')
    a('v_and_b32 v157, 1, v1\nv_lshlrev_b32 v157, 4, v157\nv_mov_b32 v158, 0x3f80\nv_lshlrev_b32 v157, v157, v158\nv_cndmask_b32 v157, 0, v157, vcc')
    a('v_and_b32 v158, 2, v1\nv_cmp_eq_u32 vcc, 0, v158\nv_cndmask_b32 v%d, 0, v157, vcc\nv_cndmask_b32 v%d, v157, v%d, vcc' % (S+2, S+3, S))
    vm.wait('oz')
    dpp_sum(a, [KB+8+e for e in range(4)], DPP16)
    for m in range(16):
        vm.wait(('ok', m))
        for h in range(2):
            d = KB + 4*h; A_ = S + 2 - 2*h
            a('v_mfma_f32_16x16x32_bf16 v[%d:%d], v[%d:%d], v[%d:%d], %s' % (d, d+3, A_, A_+3, RW+4*m, RW+4*m+3, '0' if m == 0 else 'v[%d:%d]' % (d, d+3)))
    a('s_lshr_b32 s60, s42, 2\ns_mul_i32 s60, s60, 6144\ns_bfe_u32 s61, s42, 0x10001\ns_lshl_b32 s61, s61, 10\ns_add_u32 s60, s60, s61\ns_and_b32 s61, s42, 1')
    a('s_lshl_b32 s62, s61, 11\ns_add_u32 s62, s62, s60\ns_lshl_b32 s61, s61, 3\ns_add_u32 s60, s60, s61')
    a('v_add_u32 v157, s60, v156\nv_add_u32 v158, s62, v156')
    for e in range(2): a('v_cvt_pk_bf16_f32 v%d, v%d, v%d' % (KB+12+e, KB+8+2*e, KB+9+2*e))
    a('ds_write_b64 v157, v[%d:%d] offset:4096' % (KB+12, KB+13))
    for e in range(4): a('v_cvt_pk_bf16_f32 v%d, v%d, v%d' % (RW+e, KB+2*e, KB+2*e+1))
    a('ds_write_b128 v158, v[%d:%d]' % (RW, RW+3))
    a('s_waitcnt lgkmcnt(0)\ns_barrier')
def o_compute(a, PHI):
    AF = RW; R = AF + 24
    srd(a, 20, 6, OF, 0x400000)
    a('s_and_b32 s60, s42, 1\ns_mul_i32 s60, s60, 6144\nv_add_u32 v157, s60, v156')
    for t in range(3):
        for gam in range(2): a('ds_read_b128 v[%d:%d], v157 offset:%d' % (AF+(t*2+gam)*4, AF+(t*2+gam)*4+3, (t*2+gam)*1024))
    a('s_bfe_u32 s60, s42, 0x10001\ns_lshl_b32 s61, s93, 1\ns_add_u32 s60, s60, s61\ns_lshl_b32 s60, s60, 17\ns_lshl_b32 s61, s58, 10\ns_add_u32 s60, s60, s61')
    a('s_waitcnt lgkmcnt(0)')
    for gam in range(2):
        for i in range(4):
            for t in range(3):
                d = R + (i*3+t)*4; A_ = AF+(t*2+gam)*4; B_ = PHI[(i, gam)]
                a('v_mfma_f32_16x16x32_bf16 v[%d:%d], v[%d:%d], v[%d:%d], %s' % (d, d+3, A_, A_+3, B_, B_+3, '0' if gam == 0 else 'v[%d:%d]' % (d, d+3)))
    dens = [R+(i*3+2)*4 for i in range(4)]
    for d in dens: a('v_add_f32 v%d, 0x358637bd, v%d' % (d, d))
    for d in dens: a('v_rcp_f32 v%d, v%d' % (d, d))
    for i in range(4):
        xs = list(range(R+i*12, R+i*12+8))
        for x in xs[::2]: a('v_pk_mul_f32 v[%d:%d], v[%d:%d], v[%d:%d] op_sel_hi:[1,0]' % (x, x+1, x, x+1, dens[i], dens[i]+1))
        for e in range(4): a('v_cvt_pk_bf16_f32 v%d, v%d, v%d' % (KB+4*i+e, xs[2*e], xs[2*e+1]))
        a('buffer_store_dwordx4 v[%d:%d], v156, s[20:23], s60 offen' % (KB+4*i, KB+4*i+3))
        a('s_add_u32 s60, s60, 32768')
    a('s_waitcnt vmcnt(0)')

def ph_qkv(P, C, st):
    c = gemm.config('qkv', 1024, 128, 3, False, 64, 3, 6144, 2048, swap_frags=(4, 5), natw=True)
    WPH = c.lds; FLG = WPH + 4096
    EB = c.slot
    IMG = EB; VB = EB + 32768; QB = VB + 16384; GV = QB + 16384
    s_hd = 58; sL = 60
    tile_head(P, c, 8, 4, 128, [(4, P_WQKV), (6, P_WS), (32, P_WPHI), (74, P_C), (76, P_WMOD), (78, P_WO), (34, P_W1)])
    c.srd_hook = lambda a: [srd(a, *x) for x in [(8, 6, H1F, 0x400000), (12, 4, 0, 1024*6144)]]
    def boundary0(a, c, vm):
        a('s_barrier')
        psync(a, 'f1', 1, c.s_mt, 1, c.s_mt, part=0)
    def boundary(a, c, vm):
        if not opt.wlate & 1: boundary0(a, c, vm)
        psync(a, 'f1', 1, c.s_mt, 1, c.s_mt, part=1)
    c.boundary = boundary
    if opt.wlate & 1: c.boundary0 = boundary0
    if opt.xsc1: c.xflags = ' sc1'
    def early_issue(a, c, vm):
        V = c.p_vfree
        srd(a, 16, 32, 0, 65536)
        a('v_lshrrev_b32 v%d, 3, v1\nv_and_b32 v%d, 2, v%d\nv_xor_b32 v%d, v1, v%d\nv_lshlrev_b32 v%d, 4, v%d' % (V, V, V, V, V, V, V))
        a('s_sub_u32 s59, s%d, 4\ns_lshl_b32 s59, s59, 10\ns_add_u32 m0, s59, %d\ns_lshl_b32 s61, s%d, 12\ns_add_u32 s59, s59, s61' % (c.s_wave, WPH, c.s_nt))
        a('buffer_load_dwordx4 v%d, s[16:19], s59 offen lds' % V)
        vm.issue('wphi')
    def tail_issue(a, c, vm):
        V = (c.p_vfree + 3)//4*4
        srd(a, 20, 74, 0, 2048); srd(a, 24, 76, 0, 1024*12288)
        a('s_lshr_b32 s61, s2, 6\ns_lshl_b32 s62, s61, 9\ns_mul_i32 s63, s61, %d' % (256*12288))
        a('s_and_b32 s64, s2, 63\ns_lshl_b32 s65, s64, 7\ns_add_u32 s63, s63, s65\ns_add_u32 s63, s63, 4096')
        a('v_and_b32 v%d, 255, v0' % (V+38))
        gemv_issue(a, 8, V+38, V, 20, 24, 62, 63, vm)
        if opt.pf2:
            srd(a, 28, 78, 0, 1024*2048)
            a('v_lshlrev_b32 v%d, 11, v%d\nv_lshl_add_u32 v%d, v%d, 7, v%d' % (V+39, c.p_vrow, V+39, c.p_vch, V+39))
            a('s_lshr_b32 s62, s2, 3\ns_lshl_b32 s62, s62, 2\ns_add_u32 s62, s62, s%d\ns_sub_u32 s62, s62, 4\ns_lshl_b32 s62, s62, 14' % c.s_wave)
            a('s_bfe_u32 s63, s2, 0x10002\ns_lshl_b32 s63, s63, 10\ns_add_u32 s62, s62, s63')
            a('buffer_load_dword v%d, v%d, s[28:31], s62 offen' % (V+37, V+39))
            vm.issue('pf')
    PHI = {}
    def ptail(a, c, vm):
        V = (c.p_vfree + 3)//4*4
        QF = V + 40; P_ = QF + 16; E = P_ + 32; MX = E + 32; MN = MX + 4; W = MN + 4; T = W + 8
        assert E + 32 <= 156 and P_ >= 48
        srd(a, 24, 6, MP2, 65536)
        a('s_mov_b32 s%d, 0x%x' % (sL, LOG2E))
        a('s_and_b32 s%d, s%d, 1' % (c.s_nh, c.s_wave))
        wphi_read(a, W, c.s_nh, WPH, 2, 3)
        a('s_lshl_b32 s59, s%d, 1\ns_add_u32 s%d, s59, s%d' % (c.s_nt, s_hd, c.s_nh))
        a('s_lshl_b32 s61, s61, 14\ns_lshl_b32 s64, s64, 8\ns_add_u32 s64, s64, s61')
        a('s_sub_u32 s61, s%d, 4\ns_lshl_b32 s62, s61, 12\ns_add_u32 s62, s62, %d' % (c.s_wave, QB))
        a('v_lshl_add_u32 v3, v1, 4, s62')
        if opt.eprio: a('s_setprio %d' % opt.eprio)
        a('s_barrier')
        for i in range(4): a('ds_read_b128 v[%d:%d], v3 offset:%d' % (QF+4*i, QF+4*i+3, 1024*i))
        a('s_waitcnt lgkmcnt(0)')
        if not opt.gv_late: pass
        def sink(i, sg, B): PHI[(i, sg)] = B
        feat(a, QF, P_, E, MX, MN, W, sL, sink)
        rt(a, 14)
        a('s_setprio 0')
        psync(a, 'f2', 2, c.s_nt, 2, c.s_nt, part=0)
        gemv_math(a, 8, V, T, vm, 59)
        a('v_lshrrev_b32 v2, 4, v%d\nv_lshlrev_b32 v2, 8, v2\nv_and_b32 v5, 7, v1\nv_lshl_add_u32 v2, v5, 5, v2\nv_add_u32 v2, %d, v2' % (V+38, GV))
        a('ds_write_b128 v2, v[%d:%d]\nds_write_b128 v2, v[%d:%d] offset:16' % (T+8, T+11, T+12, T+15))
        a('v_mov_b32 v5, %d\nv_mov_b32 v6, 1\ns_waitcnt lgkmcnt(0)' % (FLG+16))
        a('s_mov_b64 exec, 1\nds_add_rtn_u32 v6, v5, v6\ns_mov_b64 exec, -1\ns_waitcnt lgkmcnt(0)')
        a('v_readfirstlane_b32 s59, v6\ns_cmp_lg_u32 s59, 3\ns_cbranch_scc1 qkv_gvx')
        a('v_lshlrev_b32 v5, 2, v1\nv_add_u32 v6, %d, v5' % GV)
        for p in range(16): a('ds_read_b32 v%d, v6 offset:%d' % (T+p, 256*p))
        a('s_and_b32 s59, s2, 63\ns_lshl_b32 s59, s59, 7\ns_add_u32 s59, s59, %d' % FL7)
        a('s_waitcnt lgkmcnt(0)')
        for s_ in (8, 4, 2, 1):
            for p in range(s_): a('v_add_f32 v%d, v%d, v%d' % (T+p, T+p, T+p+s_))
        a('buffer_store_dword v%d, v5, s[24:27], s64 offen sc1' % T)
        a('v_mov_b32 v6, 1\ns_waitcnt vmcnt(0)\ns_mov_b64 exec, 1')
        a('buffer_atomic_add v6, v252, s[84:87], s59 offen sc1')
        a('s_mov_b64 exec, -1')
        a.label('qkv_gvx')
        rt(a, 15)
        vm.wait('pf') if opt.pf2 else None
        psync(a, 'f2', 2, c.s_nt, 2, c.s_nt, part=1)
        a('s_mov_b32 s93, s%d' % c.s_mt)
        st['vm_init'] = o_loads(a)
    c.first_c = lambda c, j: '0'
    c.unroll = opt.unroll
    if opt.spf2: c.iter_hook = smem_pf(c, [(34, opt.spf2, 0)], 1, 14)
    c.early_issue, c.tail_issue, c.ptail = early_issue, tail_issue, ptail
    gemm.producer(P, c, None)
    st['PHI'] = PHI
    a = C
    tile_head(a, c, 8, 4, 128, [(6, P_WS), (34, P_X)])
    ln1_body(a, c, 2*c.slot)
    rt(a, 1)
    for x in [(24, 6, KVP, 0x200000), (28, 6, ZP, 0x20000)]: srd(a, *x)
    def zero_flags(a, c):
        a('v_lshlrev_b32 v2, 2, v1\nv_add_u32 v2, %d, v2\nv_mov_b32 v3, 0\nds_write_b32 v2, v3\ns_waitcnt lgkmcnt(0)' % FLG)
    c.pre_hook2 = chain(zero_flags, BAR)
    c.post_b0 = lambda a, c: rt(a, 2)
    gemm.consumer(a, c)
    rt(a, 3)
    a('s_lshl_b32 s%d, s%d, 1\ns_add_u32 s%d, s%d, s%d' % (s_hd, c.s_nt, s_hd, s_hd, c.s_nh))
    wphi_read(a, c.v_free, c.s_nh, WPH, 2, 3)
    W = c.v_free
    ACC = lambda j, i, r=0: c.v_acc + (j*4+i)*4 + r
    QF = 12; P_ = 28; E = 60
    MX = W + 8; MN = MX + 4; T = MN + 4
    a('s_mov_b32 s%d, 0x%x' % (sL, LOG2E))
    a('v_lshlrev_b32 v4, 4, v1')
    a('s_lshl_b32 s61, s%d, 12\ns_add_u32 s61, s61, %d' % (c.s_wave, QB))
    a('v_add_u32 v3, s61, v4')
    for i in range(4):
        for h in range(2):
            for e in range(2): a('v_cvt_pk_bf16_f32 v%d, v%d, v%d' % (P_+4*i+2*h+e, ACC(h, i, 2*e), ACC(h, i, 2*e+1)))
        a('ds_write_b128 v3, v[%d:%d] offset:%d' % (P_+4*i, P_+4*i+3, 1024*i))
    a('s_waitcnt lgkmcnt(0)\ns_barrier')
    a('s_lshl_b32 s61, s%d, 1\ns_add_u32 s61, s61, s%d\ns_lshl_b32 s61, s61, 12\ns_add_u32 s61, s61, %d' % (c.s_nh, c.s_rh, VB))
    a('v_add_u32 v3, s61, v4')
    for gam in range(2):
        for dt in range(2):
            q = c.v_acc + (gam*2+dt)*4
            for h in range(2):
                for e in range(2): a('v_cvt_pk_bf16_f32 v%d, v%d, v%d' % (q+2*h+e, ACC(4+dt, 2*gam+h, 2*e), ACC(4+dt, 2*gam+h, 2*e+1)))
            a('ds_write_b128 v3, v[%d:%d] offset:%d' % (q, q+3, (gam*2+dt)*1024))
    for i in range(4):
        for h in range(2):
            for e in range(2): a('v_cvt_pk_bf16_f32 v%d, v%d, v%d' % (QF+4*i+2*h+e, ACC(2+h, i, 2*e), ACC(2+h, i, 2*e+1)))
    def hrow(dst, row, t):
        a('v_lshrrev_b32 v%d, 1, v%d\nv_and_b32 v%d, 3, v%d\nv_lshlrev_b32 v%d, 2, v%d' % (dst, row, dst, dst, dst, dst))
        a('v_and_b32 v%d, 1, v%d\nv_or_b32 v%d, v%d, v%d' % (t, row, dst, dst, t))
        a('v_lshrrev_b32 v%d, 2, v%d\nv_and_b32 v%d, 2, v%d\nv_or_b32 v%d, v%d, v%d' % (t, row, t, t, dst, dst, t))
    WA = T; RA = WA + 4
    a('v_and_b32 v2, 15, v1\nv_lshrrev_b32 v3, 4, v1')
    hrow(6, 2, 5)
    a('v_xor_b32 v6, v6, v3\nv_lshlrev_b32 v2, 7, v2')
    a('s_lshl_b32 s61, s%d, 13\ns_add_u32 s61, s61, %d\nv_add_u32 v2, s61, v2' % (c.s_wave, IMG))
    for u in range(4): a('v_xor_b32 v5, %d, v6\nv_lshl_add_u32 v%d, v5, 3, v2' % (4*u, WA+u))
    a('v_lshrrev_b32 v2, 2, v1\nv_and_b32 v3, 3, v1')
    hrow(6, 2, 5)
    a('v_xor_b32 v6, v6, v3\nv_lshlrev_b32 v2, 7, v2')
    a('s_lshl_b32 s61, s%d, 13\ns_add_u32 s61, s61, %d\nv_add_u32 v2, s61, v2' % (c.s_nh, IMG))
    a('s_lshl_b32 s61, s%d, 3\nv_xor_b32 v6, s61, v6' % c.s_rh)
    for u in range(2): a('v_xor_b32 v5, %d, v6\nv_lshl_add_u32 v%d, v5, 3, v2' % (4*u, RA+u))
    def sink(i, sg, B):
        for ft in range(2): a('ds_write_b64 v%d, v[%d:%d] offset:%d' % (WA+2*sg+ft, B+2*ft, B+2*ft+1, i*2048))
    feat(a, QF, P_, E, MX, MN, W, sL, sink)
    a('s_waitcnt lgkmcnt(0)')
    a('s_lshl_b32 s61, s%d, 2\ns_add_u32 s61, s61, %d\nv_mov_b32 v2, s61\nv_mov_b32 v3, 1\nds_write_b32 v2, v3\nv_xor_b32 v2, 8, v2' % (c.s_wave, FLG))
    a.label('qkv_spin')
    a('ds_read_b32 v3, v2\ns_waitcnt lgkmcnt(0)\nv_readfirstlane_b32 s61, v3\ns_cmp_eq_u32 s61, 0\ns_cbranch_scc1 qkv_spin')
    AF = 12; VF = 44; ONE = 76; KV = ACC(2, 0)
    a('s_lshl_b32 s61, s%d, 13\ns_add_u32 s61, s61, %d\nv_add_u32 v3, s61, v4' % (c.s_nh, VB))
    for gp in range(4):
        rhp, gam = gp // 2, gp % 2
        for ftl in range(2):
            for t in range(2):
                q = AF + (ftl*4+gp)*4 + 2*t
                a('ds_read_b64_tr_b16 v[%d:%d], v%d offset:%d' % (q, q+1, RA+ftl, rhp*16384 + (gam*32 + t*16)*128))
        for dt in range(2):
            q = VF + (dt*4+gp)*4
            a('ds_read_b128 v[%d:%d], v3 offset:%d' % (q, q+3, (gp*2+dt)*1024))
    for e in range(4): a('v_mov_b32 v%d, 0x3f803f80' % (ONE+e))
    for gp in range(4):
        a('s_waitcnt lgkmcnt(%d)' % min(12, 6*(3-gp)))
        for ftl in range(2):
            for t in range(3):
                d = KV + (ftl*3+t)*4; A_ = AF + (ftl*4+gp)*4
                B_ = VF + (t*4+gp)*4 if t < 2 else ONE
                a('v_mfma_f32_16x16x32_bf16 v[%d:%d], v[%d:%d], v[%d:%d], %s' % (d, d+3, A_, A_+3, B_, B_+3, '0' if gp == 0 else 'v[%d:%d]' % (d, d+3)))
    a('s_lshl_b32 s61, s%d, 4\ns_add_u32 s61, s61, s%d' % (s_hd, c.s_mt))
    a('s_lshl_b32 s63, s61, 12\ns_lshl_b32 s64, s%d, 11\ns_add_u32 s63, s63, s64' % c.s_rh)
    a('s_lshl_b32 s61, s61, 8\ns_lshl_b32 s64, s%d, 7\ns_add_u32 s61, s61, s64' % c.s_rh)
    a('v_and_b32 v2, 15, v1\nv_cmp_eq_u32 vcc, 0, v2')
    for ftl in range(2):
        for e in range(4): a('v_cvt_pk_bf16_f32 v%d, v%d, v%d' % (AF+4*ftl+e, KV+(e//2)*12+4*ftl+2*(e%2), KV+(e//2)*12+4*ftl+2*(e%2)+1))
        a('buffer_store_dwordx4 v[%d:%d], v4, s[24:27], s63 offen offset:%d' % (AF+4*ftl, AF+4*ftl+3, ftl*1024))
    a('s_and_saveexec_b64 s[64:65], vcc')
    for ftl in range(2):
        d = KV + (ftl*3+2)*4
        a('buffer_store_dwordx4 v[%d:%d], v1, s[28:31], s61 offen offset:%d' % (d, d+3, ftl*64))
    a('s_mov_b64 exec, s[64:65]')
    rt(a, 4)
    a('s_waitcnt vmcnt(0)\ns_barrier\ns_barrier')
    rt(a, 5)
    vm = gemm.VM(a); vm.ops = o_loads(a)
    o_reduce(a, vm)
    a('s_barrier')
    rt(a, 6)
    return c

def poll7(a, tag, offs, target=4):
    a('s_cmp_lg_u32 s42, 5\ns_cbranch_scc1 %s_x' % tag)
    a('s_mov_b32 s90, 20000')
    a.label(tag + '_p')
    for q, so in enumerate(offs): a('s_load_dword s%d, s[84:85], s%d glc' % (68+q, so))
    a('s_sub_u32 s90, s90, 1\ns_waitcnt lgkmcnt(0)')
    for q in range(1, len(offs)): a('s_min_u32 s68, s68, s%d' % (68+q))
    a('s_cmp_ge_u32 s68, %d\ns_cbranch_scc1 %s_x' % (target, tag))
    a('s_cmp_lg_u32 s90, 0\ns_cbranch_scc1 %s_p' % tag)
    a.label(tag + '_x')

def res_phase(c, xsrd, chunks, bias):
    XT = 147456
    nst = c.K // c.BK
    FN = ((nst - 3 + c.slot0) % c.S) * c.slot
    nv = len(chunks)
    def pre_b1(a, c, vm):
        if xsrd is None: return
        w1_tau(a)
        a('s_lshl_b32 s64, s65, 7\ns_add_u32 s64, s64, %d\ns_add_u32 s65, s64, 2048' % (FL7 + 2048))
        for q, r_ in enumerate((0, 2, 3)): a('s_lshl_b32 s%d, s%d, 7\ns_add_u32 s%d, s%d, %d' % (60+q, c.s_nt, 60+q, 60+q, FL7 + r_*2048))
        poll7(a, c.name + '7', [60, 61, 62, 64, 65])
    def tail(a, c, vm):
        V = (c.p_vfree + 3)//4*4
        srd(a, 20, 6, MP2, 65536)
        a('v_lshrrev_b32 v%d, 4, v1\nv_lshlrev_b32 v%d, 14, v%d\nv_and_b32 v%d, 15, v1\nv_lshl_add_u32 v%d, v%d, 4, v%d' % (V+1, V+1, V+1, V+2, V+1, V+2, V+1))
        for q, ch in enumerate(chunks):
            a('s_lshl_b32 s61, s%d, 8\ns_add_u32 s61, s61, %d' % (c.s_nt, (ch-2)*4096))
            a('buffer_load_dwordx4 v[%d:%d], v%d, s[20:23], s61 offen sc1' % (V+4+4*q, V+7+4*q, V+1))
            vm.issue('gt')
        if bias:
            srd(a, 24, bias, 0, 2048)
            a('v_lshlrev_b32 v%d, 3, v%d\ns_lshl_b32 s61, s%d, 7' % (V+3, V+2, c.s_nt))
            a('buffer_load_dwordx2 v[%d:%d], v%d, s[24:27], s61 offen' % (V+16, V+17, V+3))
            vm.issue('gt')
        if xsrd:
            srd(a, 16, *xsrd)
            a('v_xor_b32 v%d, v%d, v%d\nv_lshlrev_b32 v%d, 4, v%d\nv_lshl_add_u32 v%d, v%d, 11, v%d' % (V, c.p_vrow, c.p_vch, V, V, V, c.p_vrow, V))
            a('s_sub_u32 s59, s%d, 4\ns_lshl_b32 s60, s%d, 2\ns_add_u32 s60, s60, s59\ns_lshl_b32 s60, s60, 16\ns_lshl_b32 s61, s%d, 7\ns_add_u32 s60, s60, s61' % (c.s_wave, c.s_mt, c.s_nt))
            a('s_lshl_b32 s59, s59, 12\ns_add_u32 s59, s59, %d' % XT)
            for i in range(4):
                a('s_add_u32 m0, s59, %d' % (1024*i))
                a('buffer_load_dwordx4 v%d, s[16:19], s60 offen lds' % V)
                a('s_add_u32 s60, s60, 16384')
            vm.issue('op', 4)
    def pre_last(a, c, vm):
        V = (c.p_vfree + 3)//4*4
        vm.wait('gt')
        xs = list(range(V+4, V+4+4*nv))
        xg_sum(a, xs, list(range(V+20, V+20+4*nv)))
        rndn(a, xs, list(range(V+20, V+26)))
        for q, ch in enumerate(chunks):
            if ch == 4:
                for e in range(4): a('v_add_f32 v%d, 1.0, v%d' % (V+4+4*q+e, V+4+4*q+e))
                rndn(a, list(range(V+4+4*q, V+8+4*q)), [V+20, V+21])
        if bias:
            for e in range(2): unpack(a, V+8+2*e, V+9+2*e, V+16+e)
            for e in range(4): a('v_mul_f32 v%d, v%d, v%d' % (V+8+e, V+8+e, V+4+e))
        a('v_lshlrev_b32 v%d, 4, v%d\nv_add_u32 v%d, %d, v%d' % (V+2, V+2, V+2, FN, V+2))
        for q in range(nv + (1 if bias else 0)): a('ds_write_b128 v%d, v[%d:%d] offset:%d' % (V+2, V+4+4*q, V+7+4*q, 256*q))
        if xsrd: vm.wait('op')
        a('s_waitcnt lgkmcnt(0)')
    XA = lambda c: c.v_free + 16 + 48
    c.XA = XA
    def pre(a, c):
        a('v_and_b32 v2, 7, v1\nv_lshrrev_b32 v3, 5, v1\nv_xor_b32 v2, v2, v3\nv_lshlrev_b32 v2, 4, v2\nv_bfe_u32 v3, v1, 4, 1\nv_lshl_add_u32 v2, v3, 3, v2')
        a('v_and_b32 v3, 15, v1\nv_lshl_add_u32 v2, v3, 7, v2\ns_lshl_b32 s61, s%d, 12\ns_add_u32 s61, s61, %d\nv_add_u32 v%d, s61, v2' % (c.s_wave, XT, XA(c)))
        for j in range(1, 4): a('v_xor_b32 v%d, %d, v%d' % (XA(c)+j, 32*j, XA(c)))
        a('v_lshrrev_b32 v3, 4, v1\nv_lshlrev_b32 v3, 4, v3\nv_add_u32 v3, %d, v3' % FN)
    def last_reads(c):
        XR = c.v_free; GA = XR + 16
        return ['ds_read_b64 v[%d:%d], v%d offset:%d' % (XR+8*i+2*j, XR+8*i+2*j+1, XA(c)+j, 2048*i) for i in range(2) for j in range(4)] + \
               ['ds_read_b128 v[%d:%d], v3 offset:%d' % (GA+16*q+4*j, GA+16*q+4*j+3, 256*q + 64*j) for q in range(nv + (1 if bias else 0)) for j in range(4)]
    c.FN = FN
    c.pre_b1, c.pre_hook, c.last_reads, c.pre_last_bar = pre_b1, pre, last_reads, pre_last
    c.first_c = lambda c, j: '0'
    return tail

P2 = lambda x: 'v[%d:%d]' % (x, x+1)
def res_out(a, c, sOut, bias=False):
    XR = c.v_free; GA = XR + 16
    ACC = lambda j, i, r=0: c.v_acc + (i*4+j)*4 + r
    a('s_lshl_b32 s58, s%d, 2\ns_add_u32 s58, s58, s%d' % (c.s_mt, c.s_wave))
    a('s_lshl_b32 s60, s58, 16\ns_lshl_b32 s61, s%d, 7\ns_add_u32 s60, s60, s61' % c.s_nt)
    U = 12; PK = 44
    a('v_and_b32 v2, 15, v1\nv_lshlrev_b32 v2, 11, v2\nv_bfe_u32 v3, v1, 4, 1\nv_lshl_add_u32 v2, v3, 5, v2\nv_lshrrev_b32 v3, 5, v1\nv_lshl_add_u32 v2, v3, 4, v2')
    a('s_add_u32 s61, s60, 32768')
    a('s_waitcnt lgkmcnt(0)')
    def part(i, store=True):
        for j in range(4):
            for e in range(2): unpack(a, U+16*i+4*j+2*e, U+16*i+4*j+2*e+1, XR+8*i+2*j+e)
        if bias:
            for j in range(4):
                for r in (0, 2): a('v_pk_add_f32 %s, %s, %s' % (P2(U+16*i+4*j+r), P2(U+16*i+4*j+r), P2(GA+16+4*j+r)))
        for j in range(4):
            for r in (0, 2): a('v_pk_fma_f32 %s, %s, %s, %s' % (P2(ACC(j,i,r)), P2(ACC(j,i,r)), P2(GA+4*j+r), P2(U+16*i+4*j+r)))
    def out(i):
        for j in range(4):
            for e in range(2): a('v_cvt_pk_bf16_f32 v%d, v%d, v%d' % (PK+8*i+2*j+e, ACC(j,i,2*e), ACC(j,i,2*e+1)))
        if sOut is None:
            for j in range(4): a('ds_write_b64 v%d, v[%d:%d] offset:%d' % (c.XA(c)+j, PK+8*i+2*j, PK+8*i+2*j+1, 2048*i))
            return
        for jp in range(2):
            for e in range(2): a('v_permlane16_swap_b32 v%d, v%d' % (PK+8*i+4*jp+e, PK+8*i+4*jp+2+e))
        for jp in range(2):
            a('buffer_store_dwordx4 v[%d:%d], v2, s[%d:%d], s%d offen offset:%d' % (PK+8*i+4*jp, PK+8*i+4*jp+3, sOut, sOut+3, 60+i, 64*jp))
    return part, out

def ph_wo(P, C, st):
    c = gemm.config('wo', 1024, 128, 1, False, 128, 3, 2048, 128, rows4=True, KS=2, rpm=opt.rpm, slot0=1, unroll=True)
    tile_head(P, c, 4, 8, 128, [(4, P_WO), (32, P_X), (34, P_W1)])
    c.srd_hook = lambda a: [srd(a, *x) for x in [(8, 6, OF, 0x400000), (12, 4, 0, 1024*2048)]]
    c.vm_init = st['vm_init']
    if opt.xsc1: c.xflags = ' sc1'
    def boundary(a, c, vm):
        rt(a, 16)
        o_reduce(a, vm)
        rt(a, 17)
        o_compute(a, st['PHI'])
        psync(a, 'f3', 3, 93, 3, c.s_mt, part=0)
        if opt.pf3:
            V = 40
            srd(a, 28, 34, 0, 1024*7168)
            a('v_lshrrev_b32 v%d, 4, v1\nv_mul_u32_u24 v%d, 7168, v%d\nv_and_b32 v%d, 15, v1\nv_min_u32 v%d, 13, v%d\nv_lshl_add_u32 v%d, v%d, 7, v%d' % (V, V, V, V+1, V+1, V+1, V, V+1, V))
            a('s_lshr_b32 s61, s2, 3\ns_lshl_b32 s61, s61, 2\ns_add_u32 s61, s61, s42\ns_sub_u32 s61, s61, 4\ns_mul_i32 s61, s61, %d' % (4*7168))
            a('s_bfe_u32 s62, s2, 0x20001\ns_mul_i32 s62, s62, 1792\ns_add_u32 s61, s61, s62')
            for q in range(opt.pf3):
                a('buffer_load_dword v251, v%d, s[28:31], s61 offen\ns_add_u32 s61, s61, %d' % (V, 512*7168))
            vm.issue('pf', opt.pf3)
        psync(a, 'f3', 3, 93, 3, c.s_mt, part=1)
    c.boundary = boundary
    c.tail_issue = res_phase(c, (32, 0, 0x400000), [2, 4], None)
    gemm.producer(P, c, None)
    assert c.vm.done == len(c.vm.ops) - 1
    P('s_mov_b32 s93, s%d' % c.s_mt)
    a = C
    tile_head(a, c, 4, 8, 128, [])
    for x in [(28, 6, ST2, 0x40000), (16, 6, H2F, 0x400000)]: srd(a, *x)
    c.pre_hook2 = BAR
    c.post_b0 = lambda a, c: rt(a, 7)
    gemm.consumer(a, c)
    rt(a, 8)
    ACC = lambda j, i, r=0: c.v_acc + (i*4+j)*4 + r
    part, out = res_out(a, c, None)
    part(0); part(1)
    Q = 60
    for i in range(2):
        xs = [ACC(j,i,r) for j in range(4) for r in (0, 2)]
        S0, Q0 = 64+8*i, 68+8*i
        for k in range(2): a('v_pk_add_f32 %s, %s, %s' % (P2(S0+2*k), P2(xs[k]), P2(xs[2+k])))
        for k in range(2): a('v_pk_mul_f32 %s, %s, %s' % (P2(Q0+2*k), P2(xs[k]), P2(xs[k])))
        for m in (4, 6):
            for k in range(2): a('v_pk_add_f32 %s, %s, %s' % (P2(S0+2*k), P2(S0+2*k), P2(xs[m+k])))
        for m in (2, 4, 6):
            for k in range(2): a('v_pk_fma_f32 %s, %s, %s, %s' % (P2(Q0+2*k), P2(xs[m+k]), P2(xs[m+k]), P2(Q0+2*k)))
        a('v_pk_add_f32 %s, %s, %s\nv_pk_add_f32 %s, %s, %s' % (P2(S0), P2(S0), P2(S0+2), P2(Q0), P2(Q0), P2(Q0+2)))
        a('v_add_f32 v%d, v%d, v%d\nv_add_f32 v%d, v%d, v%d' % (Q+i, S0, S0+1, Q+2+i, Q0, Q0+1))
    for s_ in bfly(a, 'v_add_f32', [Q, Q+1, Q+2, Q+3])[:4]:
        for l in s_: a(l)
    a('v_and_b32 v4, 15, v1\nv_lshrrev_b32 v3, 5, v1\nv_lshl_add_u32 v4, v3, 4, v4\nv_lshlrev_b32 v4, 3, v4\nv_bfe_u32 v3, v1, 4, 1\nv_lshl_add_u32 v4, v3, 2, v4')
    a('s_lshl_b32 s63, s58, 8\ns_lshl_b32 s62, s%d, 14\ns_add_u32 s62, s63, s62' % c.s_nt)
    a('buffer_store_dword v%d, v4, s[28:31], s62 offen sc1' % Q)
    a('v_and_b32 v4, 15, v1\nv_lshlrev_b32 v4, 4, v4\nv_bfe_u32 v3, v1, 4, 1\nv_lshl_add_u32 v4, v3, 9, v4\nv_lshrrev_b32 v3, 5, v1\nv_lshl_add_u32 v4, v3, 8, v4')
    a('s_lshl_b32 s62, s58, 16\ns_lshl_b32 s63, s%d, 11\ns_add_u32 s62, s62, s63\ns_add_u32 s63, s62, 32768' % c.s_nt)
    A2 = c.v_free + 32; PK = 88; U = 12
    for i in range(2):
        for j in range(4):
            for r in (0, 2): a('v_pk_mul_f32 %s, %s, %s' % (P2(U+16*i+4*j+r), P2(ACC(j,i,r)), P2(A2+4*j+r)))
        for j in range(4):
            for e in range(2): a('v_cvt_pk_bf16_f32 v%d, v%d, v%d' % (PK+8*i+2*j+e, U+16*i+4*j+2*e, U+16*i+4*j+2*e+1))
        for jp in range(2):
            for e in range(2): a('v_permlane16_swap_b32 v%d, v%d' % (PK+8*i+4*jp+e, PK+8*i+4*jp+2+e))
        for jp in range(2):
            a('buffer_store_dwordx4 v[%d:%d], v4, s[16:19], s%d offen offset:%d' % (PK+8*i+4*jp, PK+8*i+4*jp+3, 62+i, 1024*jp))
    out(0); out(1)
    rt(a, 9)
    a('s_waitcnt vmcnt(0)\ns_barrier')
    rt(a, 10)
    return c

def w1_tau(a):
    a('s_lshr_b32 s61, s2, 3\ns_lshr_b32 s62, s61, 3\ns_add_u32 s62, s62, s61\ns_and_b32 s62, s62, 3')
    a('s_cmp_eq_u32 s62, 0\ns_cselect_b32 s63, 4, s62\ns_lshl_b32 s64, s62, 2\ns_lshr_b32 s64, 0x1431, s64\ns_and_b32 s64, s64, 15')
    a('s_add_u32 s65, s62, 1\ns_and_b32 s65, s65, 3\ns_add_u32 s62, s63, 3\ns_bitcmp1_b32 s61, 2\ns_cselect_b32 s64, s63, s64\ns_cselect_b32 s65, s62, s65')
    a('s_and_b32 s61, s2, 1\ns_lshl_b32 s61, s61, 3\ns_add_u32 s65, s65, s61')

def ph_w1(P, C, st):
    c = gemm.config('w1', 1024, 128, 3, True, 64, 3, 7168, 128, natw=True)
    BT = c.lds
    tile_head(P, c, 8, 4, 448, [(4, P_W1), (34, P_W2)])
    c.srd_hook = lambda a: [srd(a, *x) for x in [(8, 6, H2F, 0x400000), (12, 4, 0, 1024*7168)]]
    if opt.xsc1: c.xflags = ' sc1'
    XE = BT; RS = XE + 2048; UTL = RS + 1024; UTL2 = UTL + 2048
    tau = w1_tau
    tau(P)
    P('s_add_u32 s92, s64, 1\ns_lshr_b32 s38, s%d, 3' % c.s_mt)
    c.mirror = 38
    def boundary0(a, c, vm):
        psync(a, 'f5', 5, 93, 5, c.s_mt, part=0)
        V = (c.p_vfree + 3)//4*4
        srd(a, 20, 6, MP2, 65536); srd(a, 24, 6, ST2, 0x40000); srd(a, 16, 6, UT, 32768)
        a('v_lshrrev_b32 v%d, 4, v1\nv_lshlrev_b32 v%d, 14, v%d\nv_and_b32 v%d, 15, v1\nv_lshl_add_u32 v%d, v%d, 4, v%d' % (V+1, V+1, V+1, V+2, V+1, V+2, V+1))
        for q, ch in enumerate((4, 3)):
            a('s_lshl_b32 s61, s65, 8\ns_add_u32 s61, s61, %d' % ((ch-2)*4096))
            a('buffer_load_dwordx4 v[%d:%d], v%d, s[20:23], s61 offen sc1' % (V+4+4*q, V+7+4*q, V+1))
        vm.issue('xe', 2)
    def boundary(a, c, vm):
        vm.wait('xe')
        pre_b0(a, c, vm)
        psync(a, 'f5', 5, 93, 5, c.s_mt, part=1)
    c.boundary0, c.boundary = boundary0, boundary
    def pre_b0(a, c, vm):
        V = (c.p_vfree + 3)//4*4
        xs = list(range(V+4, V+12))
        for e in range(4): a('v_mov_b32 v%d, 0' % (V+20+e))
        a('v_lshlrev_b32 v%d, 4, v1\nv_add_u32 v%d, %d, v%d' % (V+3, V+3, XE, V+3))
        a('ds_write_b128 v%d, v[%d:%d]\nds_write_b128 v%d, v[%d:%d] offset:1024' % (V+3, V+20, V+23, V+3, V+20, V+23))
        xg_sum(a, xs, list(range(V+12, V+20)))
        rndn(a, xs[:4], [V+12, V+13])
        for e in range(4): a('v_add_f32 v%d, 1.0, v%d' % (V+4+e, V+4+e))
        for e in range(4): a('v_cvt_pk_bf16_f32 v%d, v%d, v%d' % (V+12+e, V+4+2*e, V+5+2*e))
        a('v_lshrrev_b32 v%d, 1, v%d\nv_lshlrev_b32 v%d, 8, v%d\nv_and_b32 v%d, 1, v%d\nv_lshl_add_u32 v%d, v%d, 3, v%d\nv_add_u32 v%d, %d, v%d' % (V+3, V+2, V+3, V+3, V+2, V+2, V+3, V+2, V+3, V+3, XE, V+3))
        a('ds_write_b64 v%d, v[%d:%d]\nds_write_b64 v%d, v[%d:%d] offset:16' % (V+3, V+12, V+13, V+3, V+14, V+15))
        a('s_waitcnt lgkmcnt(0)')
    def iter_hook(a, c, vm, k):
        V = (c.p_vfree + 3)//4*4 + 24
        if k == 12:
            a('s_lshl_b32 s60, s%d, 7\ns_add_u32 s60, s60, %d' % (c.s_nt, 4*2048))
            poll7(a, 'w19', [60], 16)
        if k == 13:
            a('v_lshlrev_b32 v%d, 4, v1\ns_lshl_b32 s60, s%d, 11\ns_mov_b32 m0, %d' % (V, c.s_nt, UTL2))
            a('buffer_load_dwordx4 v%d, s[16:19], s60 offen sc1 lds\nbuffer_load_dwordx4 v%d, s[16:19], s60 offen offset:1024 sc1 lds' % (V, V))
            a('v_and_b32 v%d, 15, v1\nv_lshlrev_b32 v%d, 4, v%d\nv_lshrrev_b32 v%d, 4, v1\nv_lshl_add_u32 v%d, v%d, 14, v%d' % (V, V, V, V+1, V+1, V+1, V))
            a('s_lshl_b32 s60, s%d, 2\ns_add_u32 s60, s60, s42\ns_sub_u32 s60, s60, 4\ns_lshl_b32 s60, s60, 8' % c.s_mt)
            for q in range(4):
                a('buffer_load_dwordx4 v[%d:%d], v%d, s[24:27], s60 offen sc1\ns_add_u32 s60, s60, 65536' % (V+4+4*q, V+7+4*q, V+1))
            vm.issue('st', 6)
    def bar_hook(a, c, vm, k):
        V = (c.p_vfree + 3)//4*4 + 48
        if k == 1:
            a('s_lshl_b32 s95, s%d, 7\ns_add_u32 s95, s95, %d\nv_mov_b32 v253, 1' % (c.s_nt, 4*2048))
            a('s_sub_u32 s94, s42, 4\ns_lshl_b32 s94, s94, 9\nv_lshl_add_u32 v%d, v1, 2, s94\nv_add_u32 v%d, %d, v%d\ns_lshl_b32 s94, s%d, 11' % (V, V+1, UTL, V, c.s_nt))
            a('s_add_u32 s96, s92, 2\ns_cmp_eq_u32 s42, 7\ns_cselect_b32 s96, s96, 255')
        if 2 <= k <= 5:
            a('s_cmp_lg_u32 s92, %d\ns_cbranch_scc1 w1_np%d' % (k, k))
            a('ds_read_b32 v%d, v%d\nds_read_b32 v%d, v%d offset:256\ns_waitcnt lgkmcnt(0)' % (V+2, V+1, V+3, V+1))
            a('buffer_atomic_add_f32 v%d, v%d, s[16:19], s94 offen\nbuffer_atomic_add_f32 v%d, v%d, s[16:19], s94 offen offset:256' % (V+2, V, V+3, V))
            a.label('w1_np%d' % k)
        if 4 <= k <= 7:
            a('s_cmp_lg_u32 s96, %d\ns_cbranch_scc1 w1_ns%d\ns_mov_b64 exec, 1' % (k, k))
            a('buffer_atomic_add v253, v252, s[84:87], s95 offen sc1\ns_mov_b64 exec, -1')
            a.label('w1_ns%d' % k)
    def ptail(a, c, vm):
        V = (c.p_vfree + 3)//4*4 + 24
        b = V+4
        vm.wait('st')
        for st_ in (8, 4):
            for e in range(0, st_, 2): a('v_pk_add_f32 %s, %s, %s' % (P2(b+e), P2(b+e), P2(b+e+st_)))
        xg_sum(a, [b, b+1, b+2, b+3], [b+4, b+5, b+6, b+7])
        a('v_mov_b32 v%d, 0x3a800000' % (b+8))
        for h in (0, 2):
            a('v_mul_f32 v%d, v%d, v%d\nv_mul_f32 v%d, v%d, v%d\nv_fma_f32 v%d, v%d, v%d, -v%d' % (b+5+h, b+h, b+8, b+4+h, b+5+h, b+5+h, b+4+h, b+1+h, b+8, b+4+h))
            a('v_max_f32 v%d, 0, v%d\nv_add_f32 v%d, 0x3727c5ac, v%d\nv_rsq_f32 v%d, v%d\nv_mul_f32 v%d, -v%d, v%d' % (b+4+h, b+4+h, b+4+h, b+4+h, b+4+h, b+4+h, b+5+h, b+5+h, b+4+h))
        a('s_sub_u32 s60, s42, 4\ns_lshl_b32 s60, s60, 8\ns_add_u32 s60, s60, %d\nv_add_u32 v%d, s60, v%d' % (RS, V, V))
        a('ds_write_b128 v%d, v[%d:%d]\ns_waitcnt lgkmcnt(0)' % (V, b+4, b+7))
        a('s_barrier')
    c.iter_hook, c.ptail, c.bar_hook = iter_hook, ptail, bar_hook
    def tail_issue(a, c, vm):
        V = c.p_vfree
        if opt.pf4 not in (1, 3): return
        srd(a, 28, 34, 0, 3584*2048)
        a('v_lshlrev_b32 v%d, 11, v%d\nv_lshl_add_u32 v%d, v%d, 7, v%d' % (V, c.p_vrow, V, c.p_vch, V))
        a('s_bfe_u32 s62, s2, 0x10002\ns_lshl_b32 s62, s62, 10')
        a('s_lshr_b32 s61, s2, 3\ns_lshl_b32 s63, s61, 2\ns_add_u32 s63, s63, s%d\ns_sub_u32 s63, s63, 4\ns_lshl_b32 s63, s63, 14\ns_add_u32 s63, s63, s62' % c.s_wave)
        a('buffer_load_dword v251, v%d, s[28:31], s63 offen' % V)
        vm.issue('pf')
        if opt.pf4 == 1:
            a('s_mul_i32 s61, s61, 20\ns_and_b32 s63, s2, 3\ns_mul_i32 s63, s63, 640\ns_add_u32 s61, s61, s63\ns_lshl_b32 s63, s%d, 3\ns_add_u32 s61, s61, s63\ns_add_u32 s61, s61, %d' % (c.s_wave, 1024-32))
            a('s_lshl_b32 s61, s61, 11\ns_add_u32 s61, s61, s62')
            a('buffer_load_dword v251, v%d, s[28:31], s61 offen' % V)
            vm.issue('pf')
    c.tail_issue = tail_issue
    c.unroll = True
    gemm.producer(P, c, None)
    P('s_mov_b32 s93, s%d' % c.s_mt)
    st['vm_init'] = c.vm.ops[c.vm.done+1:]
    a = C
    tile_head(a, c, 8, 4, 448, [])
    srd(a, 24, 6, HF, 2048*7168)
    ACC = lambda j, i, r=0: (c.v_acc + (j*4+i)*4 + r) if j < 6 else (c.v_acc + 96 + ((j-6)*2+i)*4 + r)
    tau(a)
    def pre(a, c):
        a('s_lshl_b32 s58, s%d, 6\ns_add_u32 s58, s58, s%d' % (c.s_nh, c.s_col0))
        a('s_mul_i32 s59, s%d, 448\ns_sub_u32 s60, s58, s59\ns_sub_u32 s59, s%d, s59\ns_lshl_b32 s60, s60, 1\ns_lshl_b32 s59, s59, 1' % (c.s_nt, c.s_colh))
        a('s_add_u32 s61, s60, %d\nv_lshl_add_u32 v2, v1, 2, s61\ns_add_u32 s61, s59, %d\nv_lshl_add_u32 v3, v1, 2, s61' % (UTL, UTL))
        a('v_lshlrev_b32 v10, 4, v1\nv_add_u32 v10, %d, v10' % XE)
    nlab = [0]
    OL = Asm(); st['OL'] = OL
    def step_hook(a, c, step, wr):
        UA = c.v_free
        nlab[0] += 1
        a('s_cmp_eq_u32 s64, 0\ns_cbranch_scc1 w1_xb%d' % nlab[0])
        a.label('w1_xs%d' % nlab[0])
        b = OL
        b.label('w1_xb%d' % nlab[0])
        b('ds_read_b128 v[252:255], v10 offset:%d\ns_waitcnt lgkmcnt(0)' % (1024*step))
        for j in range(8): b('v_mfma_f32_16x16x32_bf16 v[%d:%d], v[252:255], v[%d:%d], %s' % (UA+4*j, UA+4*j+3, wr(j), wr(j)+3, '0' if step == 0 else 'v[%d:%d]' % (UA+4*j, UA+4*j+3)))
        if step == 1:
            b('s_mov_b64 exec, 0xffff')
            for j in range(8):
                o = ((j//2)*128 + (j % 2)*32)*2 if j < 6 else (j-6)*64
                for e in range(2): b('ds_write_b32 v%d, v%d offset:%d' % (2 if j < 6 else 3, UA+4*j+e, o + 1024*e))
            b('s_mov_b64 exec, -1\ns_waitcnt lgkmcnt(0)')
        b('s_branch w1_xs%d' % nlab[0])
        if step == 1: a('s_sub_u32 s64, s64, 1')
    c.pre_hook, c.post_b0, c.pre_hook2, c.step_hook = pre, (lambda a, c: rt(a, 11)), BAR, step_hook
    c.first_c = lambda c, j: '0'
    gemm.consumer(a, c)
    rt(a, 12)
    UU = 12; TT = 44; RR = c.v_free; TM = RR + 8
    a('v_lshrrev_b32 v3, 4, v1\nv_lshlrev_b32 v3, 4, v3\ns_add_u32 s60, s60, %d\ns_add_u32 s59, s59, %d\nv_add_u32 v2, s60, v3\nv_add_u32 v3, s59, v3' % (UTL2, UTL2))
    a('v_and_b32 v5, 15, v1\nv_lshlrev_b32 v5, 3, v5\ns_lshl_b32 s60, s%d, 9\ns_add_u32 s60, s60, %d\ns_lshl_b32 s59, s%d, 8\ns_add_u32 s61, s60, s59\ns_sub_u32 s60, s60, s59\nv_add_u32 v6, s60, v5\nv_add_u32 v5, s61, v5' % (c.s_rh, RS, c.s_nh))
    a('s_barrier')
    for i in range(4): a('ds_read_b64 v[%d:%d], v%d offset:%d' % (RR+2*i, RR+2*i+1, 5 if i < 2 else 6, 128*i))
    for j in range(8):
        o = ((j//2)*128 + (j % 2)*32)*2 if j < 6 else (j-6)*64
        a('ds_read_b128 v[%d:%d], v%d offset:%d\nds_read_b128 v[%d:%d], v%d offset:%d' % (UU+4*j, UU+4*j+3, 2 if j < 6 else 3, o, TT+4*j, TT+4*j+3, 2 if j < 6 else 3, o+1024))
    a('v_lshlrev_b32 v4, 4, v1')
    a('s_lshl_b32 s60, s%d, 1\ns_add_u32 s60, s60, s%d\ns_mul_i32 s60, s60, %d' % (c.s_mt, c.s_rh, 4*112*1024))
    a('s_mul_i32 s59, s%d, %d' % (c.s_nh, 2*112*1024))
    a('s_lshl_b32 s61, s58, 4\ns_add_u32 s61, s61, s60')
    a('s_lshl_b32 s62, s%d, 4\ns_add_u32 s62, s62, s60\ns_add_u32 s62, s62, s59' % c.s_colh)
    a('s_add_u32 s61, s61, s59')
    PK = 76
    a('s_waitcnt lgkmcnt(0)')
    for i in range(4):
        nj = 8 if i < 2 else 6
        xs = [ACC(j, i, r) for j in range(nj) for r in range(4)]
        for b in range(0, 4*nj, 16):
            for k in range(b, min(b+16, 4*nj), 2): a('v_pk_fma_f32 %s, %s, %s, %s op_sel:[0,1,0] op_sel_hi:[1,1,1]' % (P2(TM+k-b), P2(UU+k), P2(RR+2*i), P2(TT+k)))
            for k in range(b, min(b+16, 4*nj), 2): a('v_pk_fma_f32 %s, %s, %s, %s op_sel_hi:[1,0,1]' % (P2(xs[k]), P2(xs[k]), P2(RR+2*i), P2(TM+k-b)))
        for x in xs: a('v_max_f32 v%d, 0, v%d' % (x, x))
        for x in xs[::2]: a('v_pk_mul_f32 v[%d:%d], v[%d:%d], v[%d:%d]' % (x, x+1, x, x+1, x, x+1))
        pk = PK + (i % 2)*16
        for k in range(2*nj): a('v_cvt_pk_bf16_f32 v%d, v%d, v%d' % (pk+k, xs[2*k], xs[2*k+1]))
        for p in range(3):
            if p < 2: a('buffer_store_dwordx4 v[%d:%d], v4, s[24:27], s61 offen offset:%d' % (pk+4*p, pk+4*p+3, 2048*p))
            else:
                a('s_add_u32 s63, s61, 4096')
                a('buffer_store_dwordx4 v[%d:%d], v4, s[24:27], s63 offen' % (pk+4*p, pk+4*p+3))
        if i < 2:
            a('buffer_store_dwordx4 v[%d:%d], v4, s[24:27], s62 offen' % (pk+12, pk+15))
            a('s_add_u32 s62, s62, %d' % (112*1024))
        a('s_add_u32 s61, s61, %d' % (112*1024))
        if i == 1: a('s_lshl_b32 s59, s59, 1\ns_sub_u32 s61, s61, s59')
    rt(a, 13)
    if opt.pf4 >= 4:
        a('s_load_dwordx2 s[32:33], s[0:1], %d' % P_W2)
        a('s_lshl_b32 s60, s2, 2\ns_add_u32 s60, s60, s42\ns_mul_i32 s60, s60, 7168\nv_lshlrev_b32 v2, 7, v1\nv_min_u32 v2, %d, v2' % (128*(55 if opt.pf4 == 4 else 27)))
        a('s_waitcnt lgkmcnt(0)')
        srd(a, 16, 32, 0, 3584*2048)
        a('buffer_load_dword v254, v2, s[16:19], s60 offen')
        a('s_waitcnt vmcnt(1)\ns_barrier')
    else:
        a('s_waitcnt vmcnt(0)\ns_barrier')
    rt(a, 14)
    return c

def ph_w2(P, C, st):
    c = gemm.config('w2', 3584, 128, 1, False, 128, 3, 2048, 128, rows4=True, KS=2, rpm=opt.rpm, slot0=1)
    tile_head(P, c, 4, 8, 128, [(4, P_W2), (32, P_B2)])
    c.srd_hook = lambda a: [srd(a, *x) for x in [(8, 6, HF, 2048*7168), (12, 4, 0, 3584*2048)]]
    if opt.xsc1: c.xflags = ' sc1'
    c.boundary = lambda a, c, vm: psync(a, 'f6', 6, 93, 6, c.s_mt, part=(1 if opt.wlate & 4 else None))
    if opt.wlate & 4: c.boundary0 = lambda a, c, vm: psync(a, 'f6', 6, 93, 6, c.s_mt, part=0)
    c.tail_issue = res_phase(c, None, [5], 32)
    c.vm_init = st['vm_init']
    gemm.producer(P, c, None)
    a = C
    tile_head(a, c, 4, 8, 128, [(34, P_OUT)])
    a('s_waitcnt lgkmcnt(0)')
    srd(a, 28, 34, 0, 0x400000)
    c.pre_hook2 = BAR
    c.post_b0 = lambda a, c: rt(a, 15)
    gemm.consumer(a, c)
    rt(a, 16)
    part, out = res_out(a, c, 28, True)
    part(0); out(0); part(1); out(1)
    return c

def ph_w2s(P, C, st):
    c = gemm.config('w2', 1792, 128, 2, False, 64, opt.w2S, 2048, 0, xKG=112, panel_sreg=59, lead=opt.w2L)
    XT = 147456
    def head(a, ptrs):
        tile_head(a, c, 4, 8, 128, ptrs)
        a('s_lshr_b32 s36, s2, 3\ns_and_b32 s37, s36, 3\ns_lshr_b32 s36, s36, 3\ns_add_u32 s36, s36, s37\ns_and_b32 s%d, s36, 3' % c.s_rot)
    head(P, [(4, P_W2), (32, P_B2)])
    P('s_and_b32 s58, s%d, 1\ns_mov_b32 s59, 128\ns_cmp_eq_u32 s58, 0\ns_cselect_b32 s59, s59, -128' % c.s_nt)
    def srds(a):
        a('s_mul_i32 s60, s58, %d\ns_add_u32 s60, s60, %d\ns_add_u32 s8, s6, s60\ns_addc_u32 s9, s7, 0\ns_mul_i32 s60, s58, %d\ns_sub_u32 s10, %d, s60\ns_mov_b32 s11, 0x20000' % (56*1024, HF, 56*1024, 2048*7168))
        a('s_mul_i32 s60, s58, %d\ns_add_u32 s12, s4, s60\ns_addc_u32 s13, s5, 0\ns_mov_b32 s14, %d\ns_mov_b32 s15, 0x20000' % (1792*2048, 1792*2048))
    c.srd_hook = srds
    c.boundary = lambda a, c, vm: psync(a, 'f6', 6, 93, 6, c.s_mt, part=1)
    c.boundary0 = lambda a, c, vm: psync(a, 'f6', 6, 93, 6, c.s_mt, part=0)
    c.tail_issue = res_phase(c, None, [5], 32)
    c.vm_init = st['vm_init']
    gemm.producer(P, c, None)
    P('s_xor_b32 s60, s2, 32')
    psync(P, 'f8', FL8, 2, FL8, 60, target=1)
    a = C
    head(a, [(34, P_OUT)])
    a('s_waitcnt lgkmcnt(0)')
    srd(a, 28, 34, 0, 0x400000); srd(a, 24, 6, XB, 0x800000)
    XR = lambda: c.v_free; GA = lambda: c.v_free + 16; XA = lambda: c.v_free + 32
    def pre(a, c):
        a('s_lshl_b32 s61, s%d, 2\nv_lshrrev_b32 v3, 5, v1\nv_add_u32 v3, s61, v3\nv_and_b32 v2, 7, v1\nv_xor_b32 v2, v2, v3\nv_lshlrev_b32 v2, 4, v2\nv_bfe_u32 v3, v1, 4, 1\nv_lshl_add_u32 v2, v3, 3, v2' % c.s_nh)
        a('v_and_b32 v3, 15, v1\nv_lshl_add_u32 v2, v3, 7, v2\ns_lshl_b32 s61, s%d, 13\ns_add_u32 s61, s61, %d\nv_add_u32 v%d, s61, v2\nv_xor_b32 v%d, 32, v%d' % (c.s_rh, XT, XA(), XA()+1, XA()))
        a('s_lshl_b32 s61, s%d, 7\ns_add_u32 s61, s61, %d\nv_lshrrev_b32 v3, 4, v1\nv_lshl_add_u32 v3, v3, 4, s61' % (c.s_nh, c.FN))
    def last_reads(c):
        return ['ds_read_b64 v[%d:%d], v%d offset:%d' % (XR()+4*i+2*j, XR()+4*i+2*j+1, XA()+j, 2048*i) for i in range(4) for j in range(2)] + \
               ['ds_read_b128 v[%d:%d], v3 offset:%d' % (GA()+8*q+4*j, GA()+8*q+4*j+3, 256*q + 64*j) for q in range(2) for j in range(2)]
    c.pre_hook, c.last_reads, c.pre_hook2 = pre, last_reads, BAR
    c.post_b0 = lambda a, c: rt(a, 15)
    gemm.consumer(a, c)
    rt(a, 16)
    ACC = lambda j, i, r=0: c.v_acc + (j*4+i)*4 + r
    a('s_lshl_b32 s60, s2, 2\ns_add_u32 s60, s60, s%d\ns_lshl_b32 s60, s60, 13\ns_xor_b32 s61, s60, %d\nv_lshlrev_b32 v4, 4, v1' % (c.s_wave, 32*4*8192))
    for k in range(8):
        if k == 4: a('s_add_u32 s60, s60, 4096')
        a('buffer_store_dwordx4 v[%d:%d], v4, s[24:27], s60 offen offset:%d' % (c.v_acc+32+4*k, c.v_acc+35+4*k, 1024*(k % 4)))
    U = 12; PK = 44; RB = 48 + 16
    a('s_waitcnt lgkmcnt(0)')
    for i in range(4):
        for j in range(2):
            for e in range(2): unpack(a, U+8*i+4*j+2*e, U+8*i+4*j+2*e+1, XR()+4*i+2*j+e)
            for r in (0, 2): a('v_pk_add_f32 %s, %s, %s' % (P2(U+8*i+4*j+r), P2(U+8*i+4*j+r), P2(GA()+8+4*j+r)))
            for r in (0, 2): a('v_pk_fma_f32 %s, %s, %s, %s' % (P2(U+8*i+4*j+r), P2(ACC(j,i,r)), P2(GA()+4*j+r), P2(U+8*i+4*j+r)))
    a('v_and_b32 v2, 15, v1\nv_lshlrev_b32 v2, 11, v2\nv_bfe_u32 v3, v1, 4, 1\nv_lshl_add_u32 v2, v3, 5, v2\nv_lshrrev_b32 v3, 5, v1\nv_lshl_add_u32 v2, v3, 4, v2')
    a('s_lshl_b32 s62, s%d, 1\ns_add_u32 s62, s62, s%d\ns_lshl_b32 s62, s62, 17\ns_lshl_b32 s63, s%d, 1\ns_add_u32 s63, s63, s%d\ns_lshl_b32 s63, s63, 6\ns_add_u32 s62, s62, s63' % (c.s_mt, c.s_rh, c.s_nt, c.s_nh))
    a('s_waitcnt vmcnt(0)\ns_barrier\ns_barrier')
    order = [(j, i) for i in range(4) for j in range(2)]
    for n_, (j, i) in enumerate(order):
        k = j*4 + i
        a('s_add_u32 s63, s61, %d' % (1024*k))
        a('buffer_load_dwordx4 v[%d:%d], v4, s[24:27], s63 offen sc1' % (c.v_acc+4*k, c.v_acc+4*k+3))
    for i in range(4):
        a('s_waitcnt vmcnt(%d)' % (6 - 2*i + i))
        for j in range(2):
            for r in (0, 2): a('v_pk_fma_f32 %s, %s, %s, %s' % (P2(U+8*i+4*j+r), P2(ACC(j,i,r)), P2(GA()+4*j+r), P2(U+8*i+4*j+r)))
            for e in range(2): a('v_cvt_pk_bf16_f32 v%d, v%d, v%d' % (PK+4*i+2*j+e, U+8*i+4*j+2*e, U+8*i+4*j+2*e+1))
        for e in range(2): a('v_permlane16_swap_b32 v%d, v%d' % (PK+4*i+e, PK+4*i+2+e))
        a('buffer_store_dwordx4 v[%d:%d], v2, s[28:31], s62 offen' % (PK+4*i, PK+4*i+3))
        a('s_add_u32 s62, s62, 32768')
    return c

def build(path, **kw):
    for k, v in kw.items(): setattr(opt, k, v)
    a = Asm()
    opt.zero_flags = True
    ts = opt.ts; opt.ts = False
    k_pre(a, 'mega_kernel')
    opt.ts = ts
    n = 'mega_kernel'
    a.kernel_begin(n)
    a('s_cmp_ge_u32 s2, 256\ns_cbranch_scc1 mega_end')
    a('v_lshrrev_b32 v2, 6, v0\nv_and_b32 v1, 63, v0\nv_readfirstlane_b32 s42, v2')
    a('s_cmp_lt_u32 s42, 4\ns_cbranch_scc1 mega_cons')
    P = Asm(); C = Asm(); st = {}; C.cons = True
    rt(C, 0)
    cs = [f(P, C, st) for f in (ph_qkv, ph_wo, ph_w1, ph_w2s if opt.w2s else ph_w2)]
    a.lines += P.lines
    if opt.ts:
        a('s_cmp_lg_u32 s42, 5\ns_cbranch_scc1 mega_end')
        srd(a, 88, 6, TS + 0x10000, 0x10000)
        a('s_lshl_b32 s92, s2, 8\nv_lshlrev_b32 v2, 2, v1\nbuffer_store_dword v255, v2, s[88:91], s92 offen')
    a('s_endpgm')
    a.label('mega_cons')
    a.lines += C.lines
    if opt.ts:
        a('s_waitcnt vmcnt(0)')
        a.cons = True
        rt(a, 17)
        a('s_cmp_lg_u32 s42, 0\ns_cbranch_scc1 mega_end')
        srd(a, 88, 6, TS, 0x10000)
        a('s_lshl_b32 s92, s2, 8\nv_lshlrev_b32 v2, 2, v1\nbuffer_store_dword v11, v2, s[88:91], s92 offen')
    a.label('mega_end')
    a('s_endpgm')
    a.lines += st['OL'].lines
    for c in cs: gemm.table(a, c)
    a.label('code_end')
    a('s_endpgm')
    a.kernel_end(n, 256, 102, 256, 256, 512, 163840)
    a.lines = [l + opt.sflags if ('buffer_store_dwordx' in l) else l for l in a.lines]
    open(path, 'w').write(a.text(verbose=kw.get('verbose', False)))

opt.xsc1 = False; opt.unroll = True; opt.pollgap = 0; opt.wlate = 7; opt.st_at = 5; opt.pf3 = 0; opt.spf4 = 0; opt.spf2 = 0; opt.pre4 = True; opt.pf4 = 1; opt.w2s = True; opt.w2S = 4; opt.w2L = 3; opt.spoll = False; opt.satom = False; opt.gvflags = ' nt'; opt.eprio = 0; opt.pf2 = 1
if __name__ == '__main__':
    kw = eval('dict(%s)' % (sys.argv[2] if len(sys.argv) > 2 else ''))
    build(sys.argv[1], **kw)
```

```python
import sys
from asmgen import Asm
import gemm

MP1, ST1, MP2, ZP, ST2, KVP, H1F, PHIQ, OF, X1, H2F, HF, TS = 0x0, 0x8000, 0x10000, 0x20000, 0x40000, 0x100000, 0x800000, 0x1000000, 0x1800000, 0x1C00000, 0x2000000, 0x2800000, 0x3800000
P_X, P_WQKV, P_WPHI, P_WO, P_W1, P_B1, P_W2, P_B2, P_C, P_WMOD, P_OUT, P_DBG, P_WS = 0, 8, 16, 24, 40, 48, 56, 64, 72, 80, 88, 96, 104
LOG2E = 0x3fb8aa3b
class O: pass
opt = O(); opt.mimic = False; opt.ts = False; opt.outscale = None; opt.sflags = ' sc1'; opt.pf1 = 0; opt.pf2 = 0; opt.pf3 = 0; opt.pf4 = 3; opt.order = 'lead'; opt.gv_at = [13]; opt.pf4_at = [13, 13, 13, 13]; opt.gv_late = True; opt.eprio = 1; opt.spf = 0; opt.cpf = 3; opt.pre4 = False; opt.xflags = ''; opt.gvflags = ''; opt.wflags = ''; opt.zero_flags = False; opt.rpm = 2; opt.stamp = None; opt.xf = 'fma7'; opt.pprio = 0

def srd(a, s, base, off, size):
    if off:
        a('s_add_u32 s%d, s%d, %d\ns_addc_u32 s%d, s%d, 0' % (s, base, off, s+1, base+1))
    else:
        a('s_mov_b32 s%d, s%d\ns_mov_b32 s%d, s%d' % (s, base, s+1, base+1))
    a('s_mov_b32 s%d, %d\ns_mov_b32 s%d, 0x20000' % (s+2, size, s+3))

def rnd2(a, x, y, t):
    a('v_cvt_pk_bf16_f32 v%d, v%d, v%d' % (t, x, y))
    a('v_lshlrev_b32 v%d, 16, v%d' % (x, t))
    a('v_and_b32 v%d, 0xffff0000, v%d' % (y, t))
def rnd1(a, x):
    a('v_cvt_pk_bf16_f32 v%d, v%d, v%d' % (x, x, x))
    a('v_lshlrev_b32 v%d, 16, v%d' % (x, x))
def rndn(a, xs, ts):
    prs = [(xs[i], xs[i+1]) for i in range(0, len(xs), 2)]
    for b in range(0, len(prs), len(ts)):
        blk = prs[b:b+len(ts)]
        for (x, y), t in zip(blk, ts): a('v_cvt_pk_bf16_f32 v%d, v%d, v%d' % (t, x, y))
        for (x, y), t in zip(blk, ts):
            a('v_lshlrev_b32 v%d, 16, v%d' % (x, t)); a('v_and_b32 v%d, 0xffff0000, v%d' % (y, t))
def unpack(a, lo, hi, src):
    a('v_lshlrev_b32 v%d, 16, v%d' % (lo, src)); a('v_and_b32 v%d, 0xffff0000, v%d' % (hi, src))

def ts_start(a, kid):
    if opt.ts: a('s_memrealtime s[96:97]')
def ts_end(a, kid, lbl):
    if not opt.ts: return
    a('s_waitcnt vmcnt(0) lgkmcnt(0)')
    a('s_memrealtime s[98:99]')
    srd(a, 88, 6, TS + kid*4096, 4096)
    a('s_mov_b64 exec, -1')
    a('v_cmp_eq_u32 vcc, 0, v0')
    a('s_waitcnt lgkmcnt(0)')
    a('v_mov_b32 v2, s96\nv_mov_b32 v3, s98\ns_lshl_b32 s92, s2, 3\nv_mov_b32 v4, s92')
    a('s_and_saveexec_b64 s[94:95], vcc\ns_cbranch_execz %s' % lbl)
    a('buffer_store_dwordx2 v[2:3], v4, s[88:91], 0 offen')

def gemv_issue(a, LPR, vt, V, sC, sW, s_c, s_w, vm=None, ps=None, R=8):
    lg = LPR.bit_length() - 1
    t0, t1 = V+36, V+37
    if ps is None: ps = range(R)
    if 0 in ps:
        a('v_lshrrev_b32 v%d, %d, v%d' % (t0, lg, vt))
        a('v_lshlrev_b32 v%d, %d, v%d' % (t1, 4 if R == 8 else 3, t0))
        a('v_mul_u32_u24 v%d, %d, v%d' % (t0, R*12288, t0))
        a('buffer_load_dwordx%d v[%d:%d], v%d, s[%d:%d], s%d offen' % (R//2, V, V+R//2-1, t1, sC, sC+3, s_c))
        if vm: vm.issue('gc')
        a('v_and_b32 v%d, %d, v%d' % (t1, LPR-1, vt))
        a('v_lshl_add_u32 v%d, v%d, 4, v%d' % (t0, t1, t0))
    for p in ps:
        a('buffer_load_dwordx4 v[%d:%d], v%d, s[%d:%d], s%d offen%s' % (V+4+4*p, V+7+4*p, t0, sW, sW+3, s_w, opt.gvflags))
        if p < R-1: a('s_add_u32 s%d, s%d, 12288' % (s_w, s_w))
        if vm: vm.issue(('gw', p))
def gemv_math(a, LPR, V, T, vm, stmp, R=8):
    vm.wait('gc')
    for i in range(R//2): unpack(a, T+2*i, T+2*i+1, V+i)
    a('s_mov_b32 s%d, 0x%x' % (stmp, LOG2E))
    for i in range(R): a('v_mul_f32 v%d, s%d, v%d' % (T+8+i, stmp, T+i))
    for i in range(R): a('v_exp_f32 v%d, -v%d' % (T+8+i, T+8+i))
    for i in range(R): a('v_add_f32 v%d, 1.0, v%d' % (T+8+i, T+8+i))
    for i in range(R): a('v_rcp_f32 v%d, v%d' % (T+8+i, T+8+i))
    for i in range(R): a('v_mul_f32 v%d, v%d, v%d' % (T+i, T+i, T+8+i))
    rndn(a, list(range(T, T+R)), list(range(T+8, T+12)))
    for p in range(R):
        vm.wait(('gw', p))
        for d in range(4): unpack(a, T+16+2*d, T+17+2*d, V+4+4*p+d)
        for e in range(0, 8, 2):
            pr = lambda x: 'v[%d:%d]' % (x, x+1)
            sel = ' op_sel_hi:[1,0%s]' % ('' if p == 0 else ',1') if p % 2 == 0 else ' op_sel:[0,1%s]' % ('' if p == 0 else ',0')
            if p == 0: a('v_pk_mul_f32 %s, %s, %s%s' % (pr(T+8+e), pr(T+16+e), pr(T), sel))
            else: a('v_pk_fma_f32 %s, %s, %s, %s%s' % (pr(T+8+e), pr(T+16+e), pr(T+p-p%2), pr(T+8+e), sel))
    for ror in {2: (2, 4, 8), 4: (4, 8), 8: (8,)}[LPR]:
        for e in range(8): a('v_add_f32_dpp v%d, v%d, v%d row_ror:%d row_mask:0xf bank_mask:0xf' % (T+8+e, T+8+e, T+8+e, ror))

def dpp_sum(a, xs, steps):
    for st in steps:
        for x in xs: a('v_add_f32_dpp v%d, v%d, v%d %s row_mask:0xf bank_mask:0xf' % (x, x, x, st))
DPP8 = ['quad_perm:[1,0,3,2]', 'quad_perm:[2,3,0,1]', 'row_half_mirror']
DPP16 = DPP8 + ['row_mirror']

def k_pre(a, nxt='ln1_kernel'):
    n = 'pre_kernel'
    a.kernel_begin(n)
    a('s_cmp_ge_u32 s2, 256\ns_cbranch_scc1 pre_end')
    a('s_load_dwordx4 s[20:23], s[0:1], %d' % P_C)
    a('s_load_dwordx2 s[6:7], s[0:1], %d\ns_load_dwordx2 s[4:5], s[0:1], %d' % (P_WS, P_X))
    ts_start(a, 0)
    a('s_cmp_ge_u32 s2, 128\ns_cbranch_scc1 pre_stats')
    if opt.pre4:
        a('s_and_b32 s30, s2, 31\ns_lshr_b32 s31, s2, 5\ns_lshl_b32 s32, s31, 9')
        a('s_mul_i32 s33, s31, %d\ns_lshl_b32 s34, s30, 7\ns_add_u32 s33, s33, s34' % (256*12288))
    else:
        a('s_and_b32 s30, s2, 7\ns_lshl_b32 s30, s30, 3\ns_bfe_u32 s31, s2, 0x30003\ns_add_u32 s30, s30, s31\ns_lshr_b32 s31, s2, 6')
        a('s_lshl_b32 s32, s31, 10')
        a('s_mul_i32 s33, s31, %d\ns_lshl_b32 s34, s30, 6\ns_add_u32 s33, s33, s34' % (512*12288))
    LPR = 8 if opt.pre4 else 4
    a('s_waitcnt lgkmcnt(0)')
    srd(a, 8, 20, 0, 2048); srd(a, 12, 22, 0, 1024*12288); srd(a, 16, 6, MP1, 32768)
    vm = gemm.VM(a)
    gemv_issue(a, LPR, 0, 4, 8, 12, 32, 33, vm)
    T = 44
    gemv_math(a, LPR, 4, T, vm, 34)
    a('v_lshrrev_b32 v1, 4, v0\nv_mul_u32_u24 v1, %d, v1\nv_and_b32 v2, %d, v0\nv_lshl_add_u32 v1, v2, 5, v1' % (32*LPR, LPR-1))
    a('ds_write_b128 v1, v[%d:%d]\nds_write_b128 v1, v[%d:%d] offset:16' % (T+8, T+11, T+12, T+15))
    a('s_waitcnt lgkmcnt(0)\ns_barrier')
    a('v_cmp_gt_u32 vcc, %d, v0\ns_and_saveexec_b64 s[26:27], vcc\ns_cbranch_execz pre_fin' % (8*LPR))
    a('v_lshlrev_b32 v1, 2, v0')
    for p in range(16): a('ds_read_b32 v%d, v1 offset:%d' % (16+p, 32*LPR*p))
    a('s_waitcnt lgkmcnt(0)')
    for st in (8, 4, 2, 1):
        for p in range(st): a('v_add_f32 v%d, v%d, v%d' % (16+p, 16+p, 16+p+st))
    a('s_mul_i32 s30, s30, %d\ns_lshl_b32 s31, s31, 13\ns_add_u32 s30, s30, s31' % (32*LPR))
    a('buffer_store_dword v16, v1, s[16:19], s30 offen sc1')
    a('s_branch pre_fin')
    a.label('pre_stats')
    a('v_lshrrev_b32 v2, 6, v0\nv_and_b32 v1, 63, v0')
    a('v_lshlrev_b32 v3, 13, v2\nv_lshl_add_u32 v3, v1, 4, v3')
    a('s_sub_u32 s30, s2, 128')
    a('s_and_b32 s35, s30, 1\ns_lshl_b32 s35, s35, 6\ns_and_b32 s36, s30, 6\ns_add_u32 s35, s35, s36\ns_bfe_u32 s36, s30, 0x10003\ns_add_u32 s35, s35, s36\ns_lshr_b32 s36, s30, 4\ns_lshl_b32 s36, s36, 3\ns_add_u32 s35, s35, s36')
    a('s_lshl_b32 s31, s35, 15')
    a('s_load_dwordx2 s[40:41], s[0:1], %d\ns_load_dwordx2 s[42:43], s[0:1], %d\ns_load_dwordx2 s[44:45], s[0:1], %d' % (P_WPHI, P_B1, P_B2))
    a('s_waitcnt lgkmcnt(0)')
    a('s_lshl_b32 s46, s30, 9')
    for q in range(8): a('s_add_u32 s47, s46, %d\ns_load_dword s48, s[40:41], s47' % (64*q))
    a('s_min_u32 s46, s30, 111\ns_lshl_b32 s46, s46, 6\ns_load_dword s48, s[42:43], s46')
    a('s_and_b32 s46, s30, 31\ns_lshl_b32 s46, s46, 6\ns_load_dword s48, s[44:45], s46')
    srd(a, 8, 4, 0, 0x400000); srd(a, 16, 6, ST1, 16384)
    if opt.zero_flags:
        a('v_mov_b32 v4, 0\nv_mov_b32 v5, 0\nv_mov_b32 v6, 0\nv_mov_b32 v7, 0\nv_lshlrev_b32 v8, 4, v0\ns_lshl_b32 s46, s30, 12')
        srd(a, 12, 6, 0x80000, 65536)
        a('buffer_store_dwordx4 v[4:7], v8, s[12:15], s46 offen')
        srd(a, 52, 42, 0, 7168); srd(a, 56, 6, 0x90000, 32768)
        a('s_sub_u32 s46, s30, 16\ns_min_u32 s46, s46, 64\ns_mul_i32 s47, s46, 448\nv_lshlrev_b32 v8, 1, v0\nbuffer_load_ushort v5, v8, s[52:55], s47 offen')
        a('s_lshl_b32 s46, s46, 11\nv_lshlrev_b32 v8, 2, v0\nbuffer_store_dword v4, v8, s[56:59], s46 offen sc1')
        a('s_waitcnt vmcnt(1)\nv_lshlrev_b32 v5, 16, v5\nbuffer_store_dword v5, v8, s[56:59], s46 offen offset:1024 sc1')
    D = 8; X = 40
    for r in range(4):
        for h in range(2):
            a('buffer_load_dwordx4 v[%d:%d], v3, s[8:11], s31 offen offset:%d%s' % (D+8*r+4*h, D+8*r+4*h+3, (r % 2)*2048 + h*1024, opt.xflags))
        if r == 1: a('s_add_u32 s31, s31, 4096')
    SM = 104
    ncp = 0
    if opt.cpf & 1:
        a('v_readfirstlane_b32 s46, v2\ns_lshr_b32 s47, s30, 3\ns_and_b32 s47, s47, 1\ns_lshl_b32 s47, s47, 2\ns_add_u32 s46, s46, s47')
        code_pf(a, 'pre', nxt, 'code_end', 46, 8, 6, 1, 50)
        ncp = 1
    for r in range(4):
        a('s_waitcnt vmcnt(%d)' % (6-2*r+ncp))
        for i in range(8): unpack(a, X+16*r+2*i, X+16*r+2*i+1, D+8*r+i)
        for i in range(4): a('v_add_f32 v%d, v%d, v%d' % (D+i, X+16*r+i, X+16*r+4+i))
        for k in (8, 12):
            for i in range(4): a('v_add_f32 v%d, v%d, v%d' % (D+i, D+i, X+16*r+k+i))
        a('v_add_f32 v%d, v%d, v%d\nv_add_f32 v%d, v%d, v%d\nv_add_f32 v%d, v%d, v%d' % (D, D, D+1, D+2, D+2, D+3, SM+r, D, D+2))
    sm = [SM+r for r in range(4)]
    dpp_sum(a, sm, DPP16)
    for st in bfly(a, 'v_add_f32', sm):
        for l in st: a(l)
    for r in range(4): a('v_mul_f32 v%d, 0x3a800000, v%d' % (SM+r, SM+r))
    SQ = 108
    for r in range(4):
        for i in range(16): a('v_sub_f32 v%d, v%d, v%d' % (X+16*r+i, X+16*r+i, SM+r))
        for i in range(4): a('v_mul_f32 v%d, v%d, v%d' % (D+i, X+16*r+i, X+16*r+i))
        for k in (4, 8, 12):
            for i in range(4): a('v_fmac_f32 v%d, v%d, v%d' % (D+i, X+16*r+k+i, X+16*r+k+i))
        a('v_add_f32 v%d, v%d, v%d\nv_add_f32 v%d, v%d, v%d\nv_add_f32 v%d, v%d, v%d' % (D, D, D+1, D+2, D+2, D+3, SQ+r, D, D+2))
    sq = [SQ+r for r in range(4)]
    dpp_sum(a, sq, DPP16)
    for st in bfly(a, 'v_add_f32', sq):
        for l in st: a(l)
    a('v_mov_b32 v4, 0x3727c5ac\nv_mov_b32 v5, 0x3a800000')
    for r in range(4): a('v_fma_f32 v%d, v%d, v5, v4' % (SQ+r, SQ+r))
    for r in range(4): a('v_rsq_f32 v%d, v%d' % (D+2*r, SQ+r))
    for r in range(4): a('v_mov_b32 v%d, v%d' % (D+2*r+1, SM+r))
    a('v_lshlrev_b32 v3, 5, v2\ns_lshl_b32 s30, s35, 7')
    a('v_cmp_eq_u32 vcc, 0, v1\ns_and_saveexec_b64 s[26:27], vcc')
    a('buffer_store_dwordx4 v[%d:%d], v3, s[16:19], s30 offen\nbuffer_store_dwordx4 v[%d:%d], v3, s[16:19], s30 offen offset:16' % (D, D+3, D+4, D+7))
    a.label('pre_fin')
    ts_end(a, 0, 'pre_end')
    a.label('pre_end')
    a('s_endpgm')
    a.kernel_end(n, 112, 100, 112, 256, 256, 4096)

def xg_sum(a, xs, ts):
    for op in ('v_permlane32_swap_b32', 'v_permlane16_swap_b32'):
        for x, t in zip(xs, ts): a('v_mov_b32 v%d, v%d' % (t, x))
        for x, t in zip(xs, ts): a('%s v%d, v%d' % (op, x, t))
        for x, t in zip(xs, ts): a('v_add_f32 v%d, v%d, v%d' % (x, x, t))

def k_ln(a, n, kid, first):
    L = n.replace('_kernel', '')
    nparts, pstride, s_ch, a_ch = (2, 8192, 0, 1) if first else (4, 16384, 1, 2)
    a.kernel_begin(n)
    a('s_cmp_ge_u32 s2, 256\ns_cbranch_scc1 %s_end' % L)
    a('s_load_dwordx2 s[6:7], s[0:1], %d' % P_WS)
    if first: a('s_load_dwordx4 s[28:31], s[0:1], %d' % P_X)
    ts_start(a, kid)
    a('s_lshr_b32 s20, s2, 4\ns_lshl_b32 s20, s20, 3\ns_and_b32 s21, s2, 7\ns_add_u32 s20, s20, s21\ns_bfe_u32 s21, s2, 0x10003')
    a('v_and_b32 v1, 63, v0\nv_lshrrev_b32 v2, 6, v0\nv_and_b32 v3, 15, v0\nv_bfe_u32 v4, v0, 4, 2')
    a('v_lshlrev_b32 v5, 11, v3\nv_lshl_add_u32 v5, v2, 8, v5\nv_lshl_add_u32 v5, v4, 4, v5')
    a('s_lshl_b32 s22, s20, 15\ns_lshl_b32 s23, s21, 10\ns_add_u32 s23, s23, s22')
    a('v_lshlrev_b32 v6, 3, v0\ns_lshl_b32 s24, s21, 11')
    if first: a('v_lshlrev_b32 v7, 3, v3\ns_lshl_b32 s25, s20, 7')
    else: a('v_lshlrev_b32 v7, 3, v3\nv_lshl_add_u32 v7, v4, 16, v7\ns_lshl_b32 s25, s20, 7')
    a('s_waitcnt lgkmcnt(0)')
    srd(a, 12, 6, MP1 if first else MP2, 16384 if first else 65536)
    M = 16
    for p in range(nparts):
        for w, ch in enumerate((a_ch, s_ch)):
            a('s_add_u32 s26, s24, %d' % (p*pstride + ch*4096))
            a('buffer_load_dwordx2 v[%d:%d], v6, s[12:15], s26 offen' % (M+4*p+2*w, M+4*p+2*w+1))
    if first: srd(a, 8, 28, 0, 0x400000)
    else: srd(a, 8, 6, X1, 0x400000)
    D = 32
    for u in range(4): a('buffer_load_dwordx4 v[%d:%d], v5, s[8:11], s23 offen offset:%d' % (D+4*u, D+4*u+3, 64*u))
    srd(a, 16, 6, ST1 if first else ST2, 16384 if first else 0x40000)
    if first:
        a('buffer_load_dwordx2 v[8:9], v7, s[16:19], s25 offen'); ns = 1
    else:
        for q in range(4): a('buffer_load_dwordx2 v[%d:%d], v7, s[16:19], s25 offen\ns_add_u32 s25, s25, 16384' % (8+2*q, 9+2*q))
        ns = 4
    npf = 0
    if first and opt.pf1:
        srd(a, 32, 30, 0, 1024*6144)
        a('v_and_b32 v48, 3, v0\nv_bfe_u32 v49, v0, 2, 2\nv_lshlrev_b32 v49, 11, v49\nv_lshl_add_u32 v48, v48, 7, v49')
        a('v_lshrrev_b32 v49, 4, v0\nv_mul_u32_u24 v49, 6144, v49\nv_add_u32 v48, v48, v49')
        a('v_bfe_u32 v49, v0, 2, 2\nv_cmp_eq_u32 vcc, 3, v49\nv_mov_b32 v49, 0x7fffffff\nv_cndmask_b32 v48, v48, v49, vcc')
        a('s_lshr_b32 s26, s2, 3\ns_mul_i32 s26, s26, %d\ns_bfe_u32 s27, s2, 0x20001\ns_lshl_b32 s27, s27, 9\ns_add_u32 s26, s26, s27' % (16*6144))
        for q in range(opt.pf1):
            a('buffer_load_dword v49, v48, s[32:35], s26 offen')
            a('s_add_u32 s26, s26, %d' % (512*6144))
        npf = opt.pf1
    if first and opt.cpf & 2:
        a('v_readfirstlane_b32 s40, v2')
        next_code(a, L, 'qkv_kernel', 'o_kernel', 2, 144, 1, 40, 0)
        npf += 1
    srd(a, 36, 6, H1F if first else H2F, 0x400000)
    a('v_lshrrev_b32 v6, 2, v0\nv_lshlrev_b32 v6, 6, v6\nv_and_b32 v7, 3, v0\nv_lshl_add_u32 v6, v7, 3, v6')
    a('s_waitcnt vmcnt(%d)' % (4+ns+npf))
    for p in range(1, nparts):
        for e in range(4): a('v_add_f32 v%d, v%d, v%d' % (M+e, M+e, M+4*p+e))
    rndn(a, [M, M+1, M+2, M+3], [M+4, M+5])
    a('v_add_f32 v%d, 1.0, v%d\nv_add_f32 v%d, 1.0, v%d' % (M, M, M+1, M+1))
    rndn(a, [M, M+1], [M+4])
    a('ds_write_b64 v6, v[%d:%d]\nds_write_b64 v6, v[%d:%d] offset:32' % (M, M+1, M+2, M+3))
    a('v_lshlrev_b32 v6, 10, v2\nv_lshl_add_u32 v6, v4, 6, v6')
    a('v_lshlrev_b32 v5, 12, v2\nv_lshl_add_u32 v5, v1, 4, v5\ns_lshl_b32 s23, s21, 14\ns_add_u32 s23, s23, s22')
    a('s_waitcnt lgkmcnt(0)\ns_barrier')
    T = 80
    for u in range(4):
        for e in range(4): a('ds_read_b128 v[%d:%d], v6 offset:%d' % (T+16*u+4*e, T+16*u+4*e+3, 256*u+16*e))
    X = 48
    a('s_waitcnt vmcnt(%d)' % (ns+npf))
    alt = first and opt.pf1
    for i in range(16): unpack(a, X+2*i, X+2*i+1, D+i) if not (alt and i == 0) else None
    a('s_waitcnt vmcnt(%d)' % npf)
    if not first:
        a('v_add_f32 v8, v8, v10\nv_add_f32 v9, v9, v11\nv_add_f32 v12, v12, v14\nv_add_f32 v13, v13, v15\nv_add_f32 v9, v9, v13\nv_add_f32 v10, v8, v12')
        xg_sum(a, [9, 10], [11, 12])
        a('v_mul_f32 v10, 0x3a800000, v10\nv_mul_f32 v11, v10, v10\nv_mov_b32 v12, 0x3a800000\nv_fma_f32 v8, v9, v12, -v11')
        a('v_max_f32 v8, 0, v8\nv_add_f32 v8, 0x3727c5ac, v8\nv_rsq_f32 v8, v8\nv_mov_b32 v9, v10')
    a('v_mul_f32 v9, -v9, v8')
    XS = [X+i for i in range(32)]
    if alt:
        XS[0], XS[1] = 10, 11
        unpack(a, 10, 11, D)
    for i in range(32): a('v_fma_f32 v%d, v%d, v8, v9' % (XS[i], XS[i]))
    for u in range(4):
        a('s_waitcnt lgkmcnt(%d)' % (12-4*u))
        for e in range(8): a('v_fma_f32 v%d, v%d, v%d, v%d' % (XS[8*u+e], XS[8*u+e], T+16*u+e, T+16*u+8+e))
        for e in range(4): a('v_cvt_pk_bf16_f32 v%d, v%d, v%d' % (D+4*u+e, XS[8*u+2*e], XS[8*u+2*e+1]))
        a('buffer_store_dwordx4 v[%d:%d], v5, s[36:39], s23 offen offset:%d' % (D+4*u, D+4*u+3, 1024*u))
    ts_end(a, kid, L+'_end')
    a.label(L+'_end')
    a('s_endpgm')
    a.kernel_end(n, 148, 100, 148, 256, 256, 4096)

def gemm_head(a, c, kid, xm, xn, colmul, ptrs, rot):
    a('s_cmp_ge_u32 s2, 256\ns_cbranch_scc1 %s_end' % c.name)
    for s, o in ptrs: a('s_load_dwordx2 s[%d:%d], s[0:1], %d' % (s, s+1, o))
    ts_start(a, kid)
    if opt.stamp == c.name:
        c.stamps = True; c.gen_dump = True
        a('s_memtime s[94:95]')
    c.order = opt.order
    bm = 16 // xm
    a('s_and_b32 s36, s2, 7\ns_lshr_b32 s37, s2, 3')
    a('s_and_b32 s38, s36, %d\ns_lshr_b32 s36, s36, %d' % (bm-1, bm.bit_length()-1))
    a('s_and_b32 s39, s37, %d\ns_lshr_b32 s37, s37, %d' % (xm-1, xm.bit_length()-1))
    a('s_mul_i32 s38, s38, %d\ns_add_u32 s%d, s38, s39' % (xm, c.s_mt))
    a('s_mul_i32 s36, s36, %d\ns_add_u32 s%d, s36, s37' % (xn, c.s_nt))
    ra, rb = rot
    a('s_mul_i32 s39, s39, %d\ns_mul_i32 s37, s37, %d\ns_add_u32 s39, s39, s37' % (ra, rb))
    a('s_and_b32 s%d, s39, %d' % (c.s_rot, c.G-1))
    a('s_mul_i32 s%d, s%d, %d' % (c.s_col0, c.s_nt, colmul))
    if c.half:
        a('s_and_b32 s36, s%d, 1' % c.s_nt)
        a('s_cmp_eq_u32 s36, 0')
        a('s_cselect_b32 s36, 384, 0\ns_cselect_b32 s37, 0, 64')
        a('s_add_u32 s%d, s%d, s36' % (c.s_colh, c.s_col0))
        a('s_add_u32 s%d, s%d, s37' % (c.s_col0, c.s_col0))
    gemm.gemm_prologue(a, c)

def gemm_body(a, c, psrds, csrds):
    a('s_cmp_lt_u32 s%d, 4\ns_cbranch_scc1 %s_cons' % (c.s_wave, c.name))
    def hook(a):
        for x in psrds: srd(a, *x)
    c.srd_hook = hook
    (gemm.xproducer if c.xform else gemm.producer)(a, c, c.name + '_end')
    a.label(c.name + '_cons')
    a('s_waitcnt lgkmcnt(0)')
    for x in csrds: srd(a, *x)
    gemm.consumer(a, c)

def gemm_tail(a, c, n, kid):
    if c.stamps:
        gemm.mark(a, c, 8)
        a('s_waitcnt vmcnt(0)')
        gemm.mark(a, c, 9)
        gemm.dump_stamps(a, c)
    if opt.ts:
        a('s_cmp_lg_u32 s%d, 0\ns_cbranch_scc1 %s_end' % (c.s_wave, c.name))
        ts_end(a, kid, c.name + '_end')
    a.label(c.name + '_end')
    a('s_endpgm')
    if not c.xform: gemm.table(a, c)
    a.kernel_end(n, 256, 100, 256, 256, 512, c.lds)

def bfly(a, op, x):
    return [
     ['v_permlane32_swap_b32 v%d, v%d' % (x[0], x[1]), 'v_permlane32_swap_b32 v%d, v%d' % (x[2], x[3])],
     ['%s v%d, v%d, v%d' % (op, x[0], x[0], x[1]), '%s v%d, v%d, v%d' % (op, x[2], x[2], x[3])],
     ['v_permlane16_swap_b32 v%d, v%d' % (x[0], x[2])],
     ['%s v%d, v%d, v%d' % (op, x[0], x[0], x[2])],
     ['v_mov_b32 v%d, v%d' % (x[2], x[0])],
     ['v_permlane16_swap_b32 v%d, v%d' % (x[0], x[2])],
     ['v_mov_b32 v%d, v%d' % (x[1], x[0]), 'v_mov_b32 v%d, v%d' % (x[3], x[2])],
     ['v_permlane32_swap_b32 v%d, v%d' % (x[0], x[1]), 'v_permlane32_swap_b32 v%d, v%d' % (x[2], x[3])]]
def bfly2(a, op1, x1, op2, x2):
    for s1, s2 in zip(bfly(a, op1, x1), bfly(a, op2, x2)):
        for l in s1 + s2: a(l)

def smem_pf(c, regions, k0, k1, prev=None):
    reqs = [(ri, o) for ri, r in enumerate(regions) for o in range(0, r[1], 64)]
    nit = k1 - k0 + 1
    def hook(a, c, vm, k):
        if prev: prev(a, c, vm, k)
        if k == k0:
            a('s_lshl_b32 s80, s2, 2\ns_add_u32 s80, s80, s%d\ns_sub_u32 s80, s80, 4' % c.s_wave)
            for ri, r in enumerate(regions):
                a('s_mul_i32 s81, s80, %d' % r[1])
                if len(r) > 2: a('s_add_u32 s81, s81, %d' % r[2])
                a('s_add_u32 s%d, s%d, s81\ns_addc_u32 s%d, s%d, 0' % (82+2*ri, r[0], 83+2*ri, r[0]+1))
        if k0 <= k <= k1:
            for (ri, o) in reqs[(k-k0)*len(reqs)//nit:(k-k0+1)*len(reqs)//nit]:
                a('s_load_dword s81, s[%d:%d], %d' % (82+2*ri, 83+2*ri, o))
    return hook

def code_pf(a, tag, first, last, s_idx, nshare, vd, vl, sp):
    a('s_getpc_b64 s[%d:%d]' % (sp, sp+1))
    a.label(tag + '_cpc')
    a('s_add_u32 s%d, s%d, %s-%s_cpc\ns_addc_u32 s%d, s%d, 0' % (sp, sp, first, tag, sp+1, sp+1))
    if s_idx is None: a('v_lshlrev_b32 v%d, 7, v%d' % (vd, vl))
    else: a('s_lshl_b32 s%d, s%d, 13\nv_lshl_add_u32 v%d, v%d, 7, s%d' % (sp+2, s_idx, vd, vl, sp+2))
    a('v_min_u32 v%d, %s-%s-4, v%d' % (vd, last, first, vd))
    a('global_load_dword v%d, v%d, s[%d:%d]' % (vd+1, vd, sp, sp+1))

def next_code(a, tag, first, last, nchunk, vd, vl, wave_sreg, wave_val, vm=None):
    a('s_lshr_b32 s88, s2, 3\ns_min_u32 s88, s88, %d' % nchunk)
    if wave_sreg is not None:
        a('s_cmp_eq_u32 s%d, %d\ns_cselect_b32 s88, s88, %d' % (wave_sreg, wave_val, nchunk))
    code_pf(a, tag, first, last, 88, nchunk, vd, vl, 90)
    if vm: vm.issue('cpf')

def table_hooks(c, sM, nparts, pstride, s_chunk, a_chunk, V):
    def issue(a):
        a('v_lshlrev_b32 v2, 4, v0')
        for p in range(nparts):
            for w, ch in enumerate((a_chunk, s_chunk)):
                a('s_mov_b32 s59, %d' % (p*pstride + ch*4096))
                a('buffer_load_dwordx4 v[%d:%d], v2, s[%d:%d], s59 offen' % (V+8*p+4*w, V+8*p+4*w+3, sM, sM+3))
    def finish(a, c, nlater):
        a('v_lshrrev_b32 v2, 1, v0\nv_lshlrev_b32 v2, 6, v2\nv_and_b32 v3, 1, v0\nv_lshl_add_u32 v2, v3, 4, v2')
        a('s_waitcnt vmcnt(%d)' % nlater)
        for p in range(1, nparts):
            for e in range(8): a('v_add_f32 v%d, v%d, v%d' % (V+e, V+e, V+8*p+e))
        rndn(a, list(range(V, V+8)), list(range(V+8, V+12)))
        for e in range(4): a('v_add_f32 v%d, 1.0, v%d' % (V+e, V+e))
        rndn(a, list(range(V, V+4)), list(range(V+8, V+10)))
        a('ds_write_b128 v2, v[%d:%d] offset:%d\nds_write_b128 v2, v[%d:%d] offset:%d' % (V, V+3, 0, V+4, V+7, 32))
        a('s_waitcnt lgkmcnt(0)\ns_barrier')
    return issue, finish

def wphi_issue(a, W, WH, s_off, vt0, vt1):
    a('v_and_b32 v%d, 15, v1\nv_lshlrev_b32 v%d, 1, v%d\nv_lshrrev_b32 v%d, 4, v1\nv_lshl_add_u32 v%d, v%d, 8, v%d' % (vt0, vt0, vt0, vt1, vt0, vt1, vt0))
    for ft in range(2):
        for dw in range(4):
            d0 = (dw % 2)*2 + (dw // 2)*16
            a('buffer_load_ushort v%d, v%d, s[16:19], s%d offen offset:%d' % (W+ft*4+dw, vt0, s_off, d0*64 + ft*32))
            a('buffer_load_ushort v%d, v%d, s[16:19], s%d offen offset:%d' % (WH+ft*4+dw, vt0, s_off, d0*64 + 64 + ft*32))

def feat(a, QF, P, E, MX, MN, W, sL, sink):
    for i in range(4):
        for ft in range(2):
            t = P + i*8 + ft*4
            a('v_mfma_f32_16x16x32_bf16 v[%d:%d], v[%d:%d], v[%d:%d], 0' % (t, t+3, W+ft*4, W+ft*4+3, QF+4*i, QF+4*i+3))
    for (op, op2, dst) in (('v_max3_f32', 'v_max_f32', MX), ('v_min3_f32', 'v_min_f32', MN)):
        for i in range(4): a('%s v%d, v%d, v%d, v%d' % (op, dst+i, P+8*i, P+8*i+1, P+8*i+2))
        for i in range(4): a('%s v%d, v%d, v%d, v%d' % (op, dst+i, dst+i, P+8*i+3, P+8*i+4))
        for i in range(4): a('%s v%d, v%d, v%d, v%d' % (op, dst+i, dst+i, P+8*i+5, P+8*i+6))
        for i in range(4): a('%s v%d, v%d, v%d' % (op2, dst+i, dst+i, P+8*i+7))
    bfly2(a, 'v_max_f32', [MX+i for i in range(4)], 'v_min_f32', [MN+i for i in range(4)])
    for i in range(4):
        a('v_mul_f32 v%d, s%d, v%d\nv_mul_f32 v%d, s%d, v%d' % (MX+i, sL, MX+i, MN+i, sL, MN+i))
    for i in range(4):
        for e in range(8): a('v_fma_f32 v%d, v%d, s%d, -v%d' % (E+8*i+e, P+8*i+e, sL, MX+i))
        for e in range(8): a('v_fma_f32 v%d, -v%d, s%d, v%d' % (P+8*i+e, P+8*i+e, sL, MN+i))
    for i in range(32): a('v_exp_f32 v%d, v%d\nv_exp_f32 v%d, v%d' % (E+i, E+i, P+i, P+i))
    for (B, dst) in ((E, MX), (P, MN)):
        for i in range(4): a('v_add_f32 v%d, v%d, v%d' % (dst+i, B+8*i, B+8*i+1))
        for e in range(2, 8):
            for i in range(4): a('v_add_f32 v%d, v%d, v%d' % (dst+i, dst+i, B+8*i+e))
    bfly2(a, 'v_add_f32', [MX+i for i in range(4)], 'v_add_f32', [MN+i for i in range(4)])
    for i in range(4): a('v_rcp_f32 v%d, v%d\nv_rcp_f32 v%d, v%d' % (MX+i, MX+i, MN+i, MN+i))
    for i in range(4):
        for sg, (B, sc) in enumerate(((E, MX), (P, MN))):
            for e in range(8): a('v_mul_f32 v%d, v%d, v%d' % (B+8*i+e, B+8*i+e, sc+i))
            for e in range(4): a('v_cvt_pk_bf16_f32 v%d, v%d, v%d' % (B+8*i+e, B+8*i+2*e, B+8*i+2*e+1))
            sink(i, sg, B+8*i)

def wphi_read(a, W, s_nh, WPH, t0, t1):
    a('v_lshrrev_b32 v%d, 2, v1\nv_lshlrev_b32 v%d, 6, v%d\nv_bfe_u32 v%d, v1, 4, 1\nv_lshl_add_u32 v%d, v%d, 5, v%d' % (t0, t0, t0, t1, t0, t1, t0))
    a('v_and_b32 v%d, 3, v1\nv_lshl_add_u32 v%d, v%d, 3, v%d' % (t1, t0, t1, t0))
    a('s_lshl_b32 s59, s%d, 11\ns_add_u32 s59, s59, %d\nv_add_u32 v%d, s59, v%d\nv_xor_b32 v%d, 32, v%d' % (s_nh, WPH, t0, t0, t1, t0))
    for ft in range(2):
        for t in range(2): a('ds_read_b64_tr_b16 v[%d:%d], v%d offset:%d' % (W+4*ft+2*t, W+4*ft+2*t+1, (t0, t1)[ft], 1024*t))

def k_qkv(a):
    n = 'qkv_kernel'
    c = gemm.config('qkv', 1024, 128, 3, False, 64, 3, 6144, 2048, swap_frags=(4, 5), natw=True)
    WPH = c.lds; FLG = WPH + 4096
    c.lds += 4096 + 256
    a.kernel_begin(n)
    gemm_head(a, c, 2, 8, 4, 128, [(4, P_WQKV), (6, P_WS), (32, P_WPHI), (74, P_C), (76, P_WMOD), (78, P_WO), (92, P_W1)], (1,1))
    psrds = [(8, 6, H1F, 0x400000), (12, 4, 0, 1024*6144)]
    csrds = [(24, 6, KVP, 0x200000), (28, 6, ZP, 0x20000)]
    EB = c.slot * ((c.K // c.BK) % c.S)
    IMG = EB; VB = EB + 32768; QB = VB + 16384
    assert QB + 16384 <= WPH and EB == c.slot
    s_hd = 58; sL = 60
    def early_issue(a, c, vm):
        V = c.p_vfree
        srd(a, 16, 32, 0, 65536)
        a('v_lshrrev_b32 v%d, 3, v1\nv_and_b32 v%d, 2, v%d\nv_xor_b32 v%d, v1, v%d\nv_lshlrev_b32 v%d, 4, v%d' % (V, V, V, V, V, V, V))
        a('s_sub_u32 s59, s%d, 4\ns_lshl_b32 s59, s59, 10\ns_add_u32 m0, s59, %d\ns_lshl_b32 s61, s%d, 12\ns_add_u32 s59, s59, s61' % (c.s_wave, WPH, c.s_nt))
        a('buffer_load_dwordx4 v%d, s[16:19], s59 offen lds' % V)
        vm.issue('wphi')
    GV = QB + 16384
    assert GV + 4096 <= WPH
    def iter_hook(a, c, vm, k):
        V = (c.p_vfree + 3)//4*4
        ks = opt.gv_at
        if k == ks[0]:
            srd(a, 20, 74, 0, 2048); srd(a, 24, 76, 0, 1024*12288)
            a('s_lshr_b32 s61, s2, 6\ns_lshl_b32 s62, s61, 9\ns_mul_i32 s63, s61, %d' % (256*12288))
            a('s_and_b32 s64, s2, 63\ns_lshl_b32 s65, s64, 7\ns_add_u32 s63, s63, s65\ns_add_u32 s63, s63, 4096')
            a('v_and_b32 v%d, 255, v0' % (V+38))
        if k in ks:
            n_ = 8 // len(ks); q = ks.index(k)
            gemv_issue(a, 8, V+38, V, 20, 24, 62, 63, vm, range(q*n_, q*n_+n_))
    def tail_issue(a, c, vm):
        V = (c.p_vfree + 3)//4*4
        if opt.cpf & 2: next_code(a, 'qkv', 'o_kernel', 'ln2_kernel', 2, 240, 1, c.s_wave, 4, vm)
        if opt.pf2:
            srd(a, 28, 78, 0, 1024*2048)
            a('v_lshlrev_b32 v%d, 11, v%d\nv_lshl_add_u32 v%d, v%d, 7, v%d' % (V+39, c.p_vrow, V+39, c.p_vch, V+39))
            a('s_lshr_b32 s62, s2, 3\ns_lshl_b32 s62, s62, 2\ns_add_u32 s62, s62, s%d\ns_sub_u32 s62, s62, 4\ns_lshl_b32 s62, s62, 14' % c.s_wave)
            a('s_bfe_u32 s63, s2, 0x10002\ns_lshl_b32 s63, s63, 10\ns_add_u32 s62, s62, s63')
            a('buffer_load_dword v%d, v%d, s[28:31], s62 offen' % (V+37, V+39))
            vm.issue('pf')
    def ptail(a, c, vm):
        V = (c.p_vfree + 3)//4*4
        QF = V + 40; P = QF + 16; E = P + 32; MX = E + 32; MN = MX + 4; W = MN + 4; T = W + 8
        srd(a, 20, 6, PHIQ, 0x800000); srd(a, 24, 6, MP2, 65536)
        a('s_mov_b32 s%d, 0x%x' % (sL, LOG2E))
        a('s_and_b32 s%d, s%d, 1' % (c.s_nh, c.s_wave))
        wphi_read(a, W, c.s_nh, WPH, 2, 3)
        a('s_lshl_b32 s59, s%d, 1\ns_add_u32 s%d, s59, s%d' % (c.s_nt, s_hd, c.s_nh))
        a('s_lshl_b32 s61, s61, 14\ns_lshl_b32 s64, s64, 8\ns_add_u32 s64, s64, s61')
        a('s_sub_u32 s61, s%d, 4\ns_lshl_b32 s62, s61, 12\ns_add_u32 s62, s62, %d' % (c.s_wave, QB))
        a('v_lshl_add_u32 v3, v1, 4, s62\nv_lshlrev_b32 v4, 4, v1')
        a('s_lshr_b32 s61, s61, 1\ns_lshl_b32 s62, s%d, 1\ns_add_u32 s62, s62, s61\ns_lshl_b32 s62, s62, 18' % c.s_mt)
        a('s_lshl_b32 s61, s%d, 11\ns_add_u32 s62, s62, s61' % s_hd)
        def gv():
            gemv_math(a, 8, V, T, vm, 59)
            a('v_lshrrev_b32 v2, 4, v%d\nv_lshlrev_b32 v2, 8, v2\nv_and_b32 v5, 7, v1\nv_lshl_add_u32 v2, v5, 5, v2\nv_add_u32 v2, %d, v2' % (V+38, GV))
            a('ds_write_b128 v2, v[%d:%d]\nds_write_b128 v2, v[%d:%d] offset:16' % (T+8, T+11, T+12, T+15))
            a('v_mov_b32 v5, %d\nv_mov_b32 v6, 1\ns_waitcnt lgkmcnt(0)' % (FLG+16))
            a('s_mov_b64 exec, 1\nds_add_rtn_u32 v6, v5, v6\ns_mov_b64 exec, -1\ns_waitcnt lgkmcnt(0)')
            a('v_readfirstlane_b32 s59, v6\ns_cmp_lg_u32 s59, 3\ns_cbranch_scc1 qkv_gvx')
            a('v_lshlrev_b32 v5, 2, v1\nv_add_u32 v6, %d, v5' % GV)
            for p in range(16): a('ds_read_b32 v%d, v6 offset:%d' % (T+p, 256*p))
            a('s_waitcnt lgkmcnt(0)')
            for st in (8, 4, 2, 1):
                for p in range(st): a('v_add_f32 v%d, v%d, v%d' % (T+p, T+p, T+p+st))
            a('buffer_store_dword v%d, v5, s[24:27], s64 offen sc1' % T)
            a.label('qkv_gvx')
        if not opt.gv_late: gv()
        gemm.mark(a, c, 1)
        if opt.eprio: a('s_setprio %d' % opt.eprio)
        a('s_barrier')
        gemm.mark(a, c, 2)
        for i in range(4): a('ds_read_b128 v[%d:%d], v3 offset:%d' % (QF+4*i, QF+4*i+3, 1024*i))
        a('s_waitcnt lgkmcnt(0)')
        def sink(i, sg, B):
            a('buffer_store_dwordx4 v[%d:%d], v4, s[20:23], s62 offen offset:%d' % (B, B+3, sg*1024))
            vm.issue('st')
            if sg == 1: a('s_add_u32 s62, s62, 65536')
        feat(a, QF, P, E, MX, MN, W, sL, sink)
        gemm.mark(a, c, 3)
        if opt.gv_late: gv()
    def zero_flags(a, c):
        a('v_lshlrev_b32 v2, 2, v1\nv_add_u32 v2, %d, v2\nv_mov_b32 v3, 0\nds_write_b32 v2, v3\ns_waitcnt lgkmcnt(0)' % FLG)
    c.pre_hook2 = zero_flags
    c.first_c = lambda c, j: '0'
    c.unroll = True; c.iter_hook = iter_hook
    regs = []
    if opt.spf & 1: regs.append((78, 2048))
    if opt.spf & 2: regs.append((92, 7168))
    if regs: c.iter_hook = smem_pf(c, regs, 1, 14, iter_hook)
    c.early_issue, c.tail_issue, c.ptail = early_issue, tail_issue, ptail
    gemm_body(a, c, psrds, csrds)
    a('s_lshl_b32 s%d, s%d, 1\ns_add_u32 s%d, s%d, s%d' % (s_hd, c.s_nt, s_hd, s_hd, c.s_nh))
    wphi_read(a, c.v_free, c.s_nh, WPH, 2, 3)
    W = c.v_free
    ACC = lambda j, i, r=0: c.v_acc + (j*4+i)*4 + r
    QF = 8; P = 24; E = 56
    MX = W + 8; MN = MX + 4; T = MN + 4
    a('s_mov_b32 s%d, 0x%x' % (sL, LOG2E))
    a('v_lshlrev_b32 v4, 4, v1')
    a('s_lshl_b32 s61, s%d, 12\ns_add_u32 s61, s61, %d' % (c.s_wave, QB))
    a('v_add_u32 v3, s61, v4')
    for i in range(4):
        for h in range(2):
            for e in range(2):
                a('v_cvt_pk_bf16_f32 v%d, v%d, v%d' % (P+4*i+2*h+e, ACC(h, i, 2*e), ACC(h, i, 2*e+1)))
        a('ds_write_b128 v3, v[%d:%d] offset:%d' % (P+4*i, P+4*i+3, 1024*i))
    a('s_waitcnt lgkmcnt(0)')
    gemm.mark(a, c, 1)
    a('s_barrier')
    gemm.mark(a, c, 2)
    a('s_lshl_b32 s61, s%d, 1\ns_add_u32 s61, s61, s%d\ns_lshl_b32 s61, s61, 12\ns_add_u32 s61, s61, %d' % (c.s_nh, c.s_rh, VB))
    a('v_add_u32 v3, s61, v4')
    for gam in range(2):
        for dt in range(2):
            q = c.v_acc + (gam*2+dt)*4
            for h in range(2):
                for e in range(2):
                    a('v_cvt_pk_bf16_f32 v%d, v%d, v%d' % (q+2*h+e, ACC(4+dt, 2*gam+h, 2*e), ACC(4+dt, 2*gam+h, 2*e+1)))
            a('ds_write_b128 v3, v[%d:%d] offset:%d' % (q, q+3, (gam*2+dt)*1024))
    for i in range(4):
        for h in range(2):
            for e in range(2):
                a('v_cvt_pk_bf16_f32 v%d, v%d, v%d' % (QF+4*i+2*h+e, ACC(2+h, i, 2*e), ACC(2+h, i, 2*e+1)))
    def hrow(dst, row, t):
        a('v_lshrrev_b32 v%d, 1, v%d\nv_and_b32 v%d, 3, v%d\nv_lshlrev_b32 v%d, 2, v%d' % (dst, row, dst, dst, dst, dst))
        a('v_and_b32 v%d, 1, v%d\nv_or_b32 v%d, v%d, v%d' % (t, row, dst, dst, t))
        a('v_lshrrev_b32 v%d, 2, v%d\nv_and_b32 v%d, 2, v%d\nv_or_b32 v%d, v%d, v%d' % (t, row, t, t, dst, dst, t))
    WA = T + 16
    RA = WA + 4
    a('v_and_b32 v2, 15, v1\nv_lshrrev_b32 v3, 4, v1')
    hrow(6, 2, 5)
    a('v_xor_b32 v6, v6, v3')
    a('v_lshlrev_b32 v2, 7, v2')
    a('s_lshl_b32 s61, s%d, 13\ns_add_u32 s61, s61, %d' % (c.s_wave, IMG))
    a('v_add_u32 v2, s61, v2')
    for u in range(4):
        a('v_xor_b32 v5, %d, v6\nv_lshl_add_u32 v%d, v5, 3, v2' % (4*u, WA+u))
    a('v_lshrrev_b32 v2, 2, v1\nv_and_b32 v3, 3, v1')
    hrow(6, 2, 5)
    a('v_xor_b32 v6, v6, v3')
    a('v_lshlrev_b32 v2, 7, v2')
    a('s_lshl_b32 s61, s%d, 13\ns_add_u32 s61, s61, %d' % (c.s_nh, IMG))
    a('v_add_u32 v2, s61, v2')
    a('s_lshl_b32 s61, s%d, 3' % c.s_rh)
    a('v_xor_b32 v6, s61, v6')
    for u in range(2):
        a('v_xor_b32 v5, %d, v6\nv_lshl_add_u32 v%d, v5, 3, v2' % (4*u, RA+u))
    def sink(i, sg, B):
        for ft in range(2): a('ds_write_b64 v%d, v[%d:%d] offset:%d' % (WA+2*sg+ft, B+2*ft, B+2*ft+1, i*2048))
    feat(a, QF, P, E, MX, MN, W, sL, sink)
    a('s_waitcnt lgkmcnt(0)')
    gemm.mark(a, c, 3)
    a('s_lshl_b32 s61, s%d, 2\ns_add_u32 s61, s61, %d\nv_mov_b32 v2, s61\nv_mov_b32 v3, 1\nds_write_b32 v2, v3\nv_xor_b32 v2, 8, v2' % (c.s_wave, FLG))
    a.label('qkv_spin')
    a('ds_read_b32 v3, v2\ns_waitcnt lgkmcnt(0)\nv_readfirstlane_b32 s61, v3\ns_cmp_eq_u32 s61, 0\ns_cbranch_scc1 qkv_spin')
    gemm.mark(a, c, 4)
    AF = 8
    VF = 40
    ONE = 72
    KV = ACC(2, 0)
    a('s_lshl_b32 s61, s%d, 13\ns_add_u32 s61, s61, %d' % (c.s_nh, VB))
    a('v_add_u32 v3, s61, v4')
    for gp in range(4):
        rhp, gam = gp // 2, gp % 2
        for ftl in range(2):
            for t in range(2):
                q = AF + (ftl*4+gp)*4 + 2*t
                a('ds_read_b64_tr_b16 v[%d:%d], v%d offset:%d' % (q, q+1, RA+ftl, rhp*16384 + (gam*32 + t*16)*128))
        for dt in range(2):
            q = VF + (dt*4+gp)*4
            a('ds_read_b128 v[%d:%d], v3 offset:%d' % (q, q+3, (gp*2+dt)*1024))
    for e in range(4): a('v_mov_b32 v%d, 0x3f803f80' % (ONE+e))
    for gp in range(4):
        a('s_waitcnt lgkmcnt(%d)' % min(12, 6*(3-gp)))
        for ftl in range(2):
            for t in range(3):
                d = KV + (ftl*3+t)*4; A_ = AF + (ftl*4+gp)*4
                B_ = VF + (t*4+gp)*4 if t < 2 else ONE
                cc = '0' if gp == 0 else 'v[%d:%d]' % (d, d+3)
                a('v_mfma_f32_16x16x32_bf16 v[%d:%d], v[%d:%d], v[%d:%d], %s' % (d, d+3, A_, A_+3, B_, B_+3, cc))
    a('s_lshl_b32 s61, s%d, 4\ns_add_u32 s61, s61, s%d' % (s_hd, c.s_mt))
    a('s_lshl_b32 s63, s61, 12\ns_lshl_b32 s64, s%d, 11\ns_add_u32 s63, s63, s64' % c.s_rh)
    a('s_lshl_b32 s61, s61, 8\ns_lshl_b32 s64, s%d, 7\ns_add_u32 s61, s61, s64' % c.s_rh)
    a('v_and_b32 v2, 15, v1\nv_cmp_eq_u32 vcc, 0, v2')
    for ftl in range(2):
        for e in range(4): a('v_cvt_pk_bf16_f32 v%d, v%d, v%d' % (AF+4*ftl+e, KV+ftl*12+2*e, KV+ftl*12+2*e+1))
        a('buffer_store_dwordx4 v[%d:%d], v4, s[24:27], s63 offen offset:%d' % (AF+4*ftl, AF+4*ftl+3, ftl*1024))
    a('s_and_saveexec_b64 s[64:65], vcc')
    for ftl in range(2):
        d = KV + (ftl*3+2)*4
        a('buffer_store_dwordx4 v[%d:%d], v1, s[28:31], s61 offen offset:%d' % (d, d+3, ftl*64))
    a('s_mov_b64 exec, s[64:65]')
    gemm_tail(a, c, n, 2)

def k_o(a):
    n = 'o_kernel'
    a.kernel_begin(n)
    a('s_cmp_ge_u32 s2, 256\ns_cbranch_scc1 o_end')
    a('s_load_dwordx2 s[6:7], s[0:1], %d\ns_load_dwordx2 s[4:5], s[0:1], %d' % (P_WS, P_W1))
    ts_start(a, 3)
    a('s_and_b32 s36, s2, 7\ns_lshl_b32 s36, s36, 2\ns_lshr_b32 s37, s2, 3\ns_and_b32 s37, s37, 3\ns_add_u32 s36, s36, s37\ns_lshr_b32 s37, s2, 5')
    a('v_lshrrev_b32 v2, 6, v0\nv_and_b32 v1, 63, v0\nv_readfirstlane_b32 s38, v2')
    a('v_lshlrev_b32 v3, 4, v1\nv_lshrrev_b32 v4, 4, v1\nv_lshlrev_b32 v4, 4, v4')
    a('s_waitcnt lgkmcnt(0)')
    srd(a, 8, 6, KVP, 0x200000); srd(a, 12, 6, ZP, 0x20000); srd(a, 16, 6, PHIQ, 0x800000); srd(a, 20, 6, OF, 0x400000)
    a('s_lshl_b32 s40, s36, 16\ns_lshl_b32 s41, s38, 10\ns_add_u32 s40, s40, s41')
    a('s_lshl_b32 s41, s36, 12\ns_lshl_b32 s42, s38, 6\ns_add_u32 s41, s41, s42')
    KB = 48
    RW = 80
    a('v_and_b32 v5, 15, v1\nv_lshl_add_u32 v4, v5, 8, v4')
    a('buffer_load_dwordx4 v[%d:%d], v4, s[12:15], s41 offen' % (KB+8, KB+11))
    a('s_lshl_b32 s45, s37, 1')
    for m in range(16):
        a('s_add_u32 s46, s45, %d\ns_and_b32 s46, s46, 15\ns_lshl_b32 s46, s46, 12\ns_add_u32 s46, s46, s40' % m)
        a('buffer_load_dwordx4 v[%d:%d], v3, s[8:11], s46 offen' % (RW+4*m, RW+4*m+3))
    a('s_lshl_b32 s42, s37, 2\ns_add_u32 s42, s42, s38\ns_lshl_b32 s42, s42, 2')
    a('s_lshl_b32 s43, s42, 16\ns_lshl_b32 s44, s36, 11\ns_add_u32 s43, s43, s44')
    PQ = 8
    for i in range(4):
        for sg in range(2):
            a('buffer_load_dwordx4 v[%d:%d], v3, s[16:19], s43 offen offset:%d' % (PQ+8*i+4*sg, PQ+8*i+4*sg+3, 1024*sg))
        a('s_add_u32 s43, s43, 65536')
    npf = 0
    a('s_waitcnt vmcnt(24)')
    dpp_sum(a, [KB+8+e for e in range(4)], DPP16)
    for m in range(16):
        a('s_waitcnt vmcnt(%d)' % (8 + 15 - m))
        if m == 0:
            for e in range(4): unpack(a, KB+2*e, KB+2*e+1, RW+e)
        else:
            for e in range(4): unpack(a, 64+2*e, 65+2*e, RW+4*m+e)
            for e in range(8): a('v_add_f32 v%d, v%d, v%d' % (KB+e, KB+e, 64+e))
    for t in range(3):
        for e in range(2): a('v_cvt_pk_bf16_f32 v%d, v%d, v%d' % (KB+12+2*t+e, KB+4*t+2*e, KB+4*t+2*e+1))
    a('s_lshr_b32 s40, s38, 1\ns_lshl_b32 s40, s40, 10\ns_and_b32 s41, s38, 1\ns_lshl_b32 s41, s41, 3\ns_add_u32 s40, s40, s41')
    a('v_add_u32 v5, s40, v3')
    for t in range(3): a('ds_write_b64 v5, v[%d:%d] offset:%d' % (KB+12+2*t, KB+13+2*t, 2048*t))
    a('s_waitcnt lgkmcnt(0)\ns_barrier')
    AF = 80
    for t in range(3):
        for gam in range(2): a('ds_read_b128 v[%d:%d], v3 offset:%d' % (AF+(t*2+gam)*4, AF+(t*2+gam)*4+3, (t*2+gam)*1024))
    a('s_waitcnt vmcnt(%d) lgkmcnt(0)' % npf)
    R = 112
    for gam in range(2):
        for i in range(4):
            for t in range(3):
                d = R + (i*3+t)*4; A_ = AF+(t*2+gam)*4; B_ = PQ+8*i+4*gam
                a('v_mfma_f32_16x16x32_bf16 v[%d:%d], v[%d:%d], v[%d:%d], %s' % (d, d+3, A_, A_+3, B_, B_+3, '0' if gam == 0 else 'v[%d:%d]' % (d, d+3)))
    a('s_lshl_b32 s43, s42, 15\ns_lshl_b32 s44, s36, 10\ns_add_u32 s43, s43, s44')
    dens = [R+(i*3+2)*4 for i in range(4)]
    if opt.mimic: rndn(a, dens, [48, 49])
    for d in dens: a('v_add_f32 v%d, 0x358637bd, v%d' % (d, d))
    if opt.mimic: rndn(a, dens, [48, 49])
    for d in dens: a('v_rcp_f32 v%d, v%d' % (d, d))
    for i in range(4):
        xs = list(range(R+i*12, R+i*12+8))
        if opt.mimic: rndn(a, xs, [48, 49, 50, 51])
        for x in xs: a('v_mul_f32 v%d, v%d, v%d' % (x, x, dens[i]))
        for e in range(4): a('v_cvt_pk_bf16_f32 v%d, v%d, v%d' % (56+4*i+e, xs[2*e], xs[2*e+1]))
        a('buffer_store_dwordx4 v[%d:%d], v3, s[20:23], s43 offen' % (56+4*i, 59+4*i))
        a('s_add_u32 s43, s43, 32768')
    if opt.ts:
        a('s_cmp_lg_u32 s38, 0\ns_cbranch_scc1 o_end')
        ts_end(a, 3, 'o_end')
    a.label('o_end')
    a('s_endpgm')
    a.kernel_end(n, 160, 100, 160, 256, 256, 6144)

def res_setup(c, xsrd, chunk, bias):
    XT = c.slot*c.S
    ACC = lambda j, i, r=0: c.v_acc + (i*4+j)*4 + r
    def tail(a, c, vm):
        V = c.p_vfree
        srd(a, 16, *xsrd)
        a('v_xor_b32 v%d, v%d, v%d\nv_lshlrev_b32 v%d, 4, v%d\nv_lshl_add_u32 v%d, v%d, 11, v%d' % (V, c.p_vrow, c.p_vch, V, V, V, c.p_vrow, V))
        a('s_sub_u32 s59, s%d, 4\ns_lshl_b32 s60, s%d, 2\ns_add_u32 s60, s60, s59\ns_lshl_b32 s60, s60, 16\ns_lshl_b32 s61, s%d, 7\ns_add_u32 s60, s60, s61' % (c.s_wave, c.s_mt, c.s_nt))
        a('s_lshl_b32 s59, s59, 12\ns_add_u32 s59, s59, %d' % XT)
        for i in range(4):
            a('s_add_u32 m0, s59, %d' % (1024*i))
            a('buffer_load_dwordx4 v%d, s[16:19], s60 offen lds' % V)
            a('s_add_u32 s60, s60, 16384')
        vm.issue('op', 4)
    def early(a, c, vm):
        V = c.p_vfree
        srd(a, 20, 6, MP2, 65536)
        a('v_lshrrev_b32 v%d, 4, v1\nv_lshlrev_b32 v%d, 14, v%d\nv_and_b32 v%d, 15, v1\nv_lshl_add_u32 v%d, v%d, 4, v%d' % (V+1, V+1, V+1, V+2, V+1, V+2, V+1))
        a('s_lshl_b32 s61, s%d, 8\ns_add_u32 s61, s61, %d\ns_mov_b32 m0, %d' % (c.s_nt, (chunk-2)*4096, XT))
        a('buffer_load_dwordx4 v%d, s[20:23], s61 offen lds' % (V+1))
        vm.issue(0)
        if bias:
            srd(a, 24, bias, 0, 2048)
            a('v_lshlrev_b32 v%d, 4, v1\ns_lshl_b32 s61, s%d, 7\ns_mov_b32 m0, %d' % (V+2, c.s_nt, XT+1024))
            a('buffer_load_dwordx4 v%d, s[24:27], s61 offen lds' % (V+2))
            vm.issue(0)
    def pre(a, c):
        XA = c.v_free + 16 + 64 + 8
        a('v_and_b32 v2, 7, v1\nv_lshrrev_b32 v3, 5, v1\nv_xor_b32 v2, v2, v3\nv_lshlrev_b32 v2, 4, v2\nv_bfe_u32 v3, v1, 4, 1\nv_lshl_add_u32 v2, v3, 3, v2')
        a('v_and_b32 v3, 15, v1\nv_lshl_add_u32 v2, v3, 7, v2\ns_lshl_b32 s61, s%d, 12\ns_add_u32 s61, s61, %d\nv_add_u32 v%d, s61, v2' % (c.s_wave, XT, XA))
        for j in range(1, 4): a('v_xor_b32 v%d, %d, v%d' % (XA+j, 32*j, XA))
        a('v_lshrrev_b32 v3, 4, v1\nv_lshlrev_b32 v2, 3, v3\nv_lshlrev_b32 v3, 4, v3\nv_add_u32 v2, %d, v2\nv_add_u32 v3, %d, v3' % (XT+1024, XT))
    def post_b0(a, c):
        B = c.v_free + 16 + 64
        if bias:
            for j in range(4): a('ds_read_b64 v[%d:%d], v2 offset:%d' % (B+2*j, B+2*j+1, 32*j))
    def post_b0b(a, c, nr):
        XR = c.v_free; GA = XR + 16; B = GA + 64
        if bias:
            a('s_waitcnt lgkmcnt(%d)' % min(15, nr))
            for j in range(4):
                for e in range(2): unpack(a, XR+4*j+2*e, XR+4*j+2*e+1, B+2*j+e)
        for p in range(4):
            for j in range(4): a('ds_read_b128 v[%d:%d], v3 offset:%d' % (GA+16*p+4*j, GA+16*p+4*j+3, 256*p + 64*j))
    def first_extra(c):
        GA = c.v_free + 16
        b = Asm()
        for e in range(0, 16, 2): b('v_pk_add_f32 v[%d:%d], v[%d:%d], v[%d:%d]\nv_pk_add_f32 v[%d:%d], v[%d:%d], v[%d:%d]' % (GA+e, GA+e+1, GA+e, GA+e+1, GA+16+e, GA+17+e, GA+32+e, GA+33+e, GA+32+e, GA+33+e, GA+48+e, GA+49+e))
        for e in range(0, 16, 2): b('v_pk_add_f32 v[%d:%d], v[%d:%d], v[%d:%d]' % (GA+e, GA+e+1, GA+e, GA+e+1, GA+32+e, GA+33+e))
        rndn(b, list(range(GA, GA+16)), list(range(GA+16, GA+24)))
        return [l.strip() for l in b.lines]
    c.early_issue, c.pre_hook, c.post_b0, c.post_b0b, c.first_extra = early, pre, post_b0, post_b0b, first_extra
    c.first_c = (lambda c, j: 'v[%d:%d]' % (c.v_free+4*j, c.v_free+4*j+3)) if bias else (lambda c, j: '0')
    def last_reads(c):
        XR = c.v_free; XA = XR + 16 + 64 + 8
        return ['ds_read_b64 v[%d:%d], v%d offset:%d' % (XR+8*i+2*j, XR+8*i+2*j+1, XA+j, 2048*i) for i in range(2) for j in range(4)]
    c.last_reads = last_reads
    c.pre_last_bar = lambda a, c, vm: vm.wait('op')
    return tail
def res_epi(a, c, sOut, bias=None, stats=None):
    XR = c.v_free; GA = XR + 16
    ACC = lambda j, i, r=0: c.v_acc + (i*4+j)*4 + r
    P2 = lambda x: 'v[%d:%d]' % (x, x+1)
    a('s_lshl_b32 s58, s%d, 2\ns_add_u32 s58, s58, s%d' % (c.s_mt, c.s_wave))
    a('s_lshl_b32 s60, s58, 16\ns_lshl_b32 s61, s%d, 7\ns_add_u32 s60, s60, s61' % c.s_nt)
    U = GA + 16; PK = U + 32
    a('s_waitcnt lgkmcnt(0)')
    a('v_and_b32 v2, 15, v1\nv_lshlrev_b32 v2, 11, v2\nv_bfe_u32 v3, v1, 4, 1\nv_lshl_add_u32 v2, v3, 5, v2\nv_lshrrev_b32 v3, 5, v1\nv_lshl_add_u32 v2, v3, 4, v2')
    a('s_add_u32 s61, s60, 32768')
    for i in range(2):
        for j in range(4):
            for e in range(2): unpack(a, U+16*i+4*j+2*e, U+16*i+4*j+2*e+1, XR+8*i+2*j+e)
        for j in range(4):
            for r in (0, 2): a('v_pk_fma_f32 %s, %s, %s, %s' % (P2(ACC(j,i,r)), P2(ACC(j,i,r)), P2(GA+4*j+r), P2(U+16*i+4*j+r)))
        if opt.outscale and bias is not None:
            import struct
            for j in range(4):
                for r in range(4): a('v_mul_f32 v%d, 0x%x, v%d' % (ACC(j,i,r), struct.unpack('<I', struct.pack('<f', opt.outscale))[0], ACC(j,i,r)))
        for j in range(4):
            for e in range(2): a('v_cvt_pk_bf16_f32 v%d, v%d, v%d' % (PK+8*i+2*j+e, ACC(j,i,2*e), ACC(j,i,2*e+1)))
        for jp in range(2):
            for e in range(2): a('v_permlane16_swap_b32 v%d, v%d' % (PK+8*i+4*jp+e, PK+8*i+4*jp+2+e))
        for jp in range(2):
            a('buffer_store_dwordx4 v[%d:%d], v2, s[%d:%d], s%d offen offset:%d' % (PK+8*i+4*jp, PK+8*i+4*jp+3, sOut, sOut+3, 60+i, 64*jp))
    gemm.mark(a, c, 5)
    if stats is not None:
        Q = 12
        for i in range(2):
            xs = [ACC(j,i,r) for j in range(4) for r in (0, 2)]
            S0, Q0 = 16+8*i, 20+8*i
            for k in range(2): a('v_pk_add_f32 %s, %s, %s' % (P2(S0+2*k), P2(xs[k]), P2(xs[2+k])))
            for k in range(2): a('v_pk_mul_f32 %s, %s, %s' % (P2(Q0+2*k), P2(xs[k]), P2(xs[k])))
            for m in (4, 6):
                for k in range(2): a('v_pk_add_f32 %s, %s, %s' % (P2(S0+2*k), P2(S0+2*k), P2(xs[m+k])))
            for m in (2, 4, 6):
                for k in range(2): a('v_pk_fma_f32 %s, %s, %s, %s' % (P2(Q0+2*k), P2(xs[m+k]), P2(xs[m+k]), P2(Q0+2*k)))
            a('v_pk_add_f32 %s, %s, %s\nv_pk_add_f32 %s, %s, %s' % (P2(S0), P2(S0), P2(S0+2), P2(Q0), P2(Q0), P2(Q0+2)))
            a('v_add_f32 v%d, v%d, v%d\nv_add_f32 v%d, v%d, v%d' % (Q+i, S0, S0+1, Q+2+i, Q0, Q0+1))
        for st in bfly(a, 'v_add_f32', [Q, Q+1, Q+2, Q+3])[:4]:
            for l in st: a(l)
        a('v_and_b32 v2, 15, v1\nv_lshrrev_b32 v3, 5, v1\nv_lshl_add_u32 v2, v3, 4, v2\nv_lshlrev_b32 v2, 3, v2\nv_bfe_u32 v3, v1, 4, 1\nv_lshl_add_u32 v2, v3, 2, v2')
        a('s_lshl_b32 s61, s58, 8\ns_lshl_b32 s62, s%d, 14\ns_add_u32 s61, s61, s62' % c.s_nt)
        a('buffer_store_dword v%d, v2, s[%d:%d], s61 offen sc1' % (Q, stats, stats+3))
def k_wo(a):
    n = 'wo_kernel'
    c = gemm.config('wo', 1024, 128, 1, False, 128, 3, 2048, 128, rows4=True, KS=2, rpm=opt.rpm)
    c.lds += 16384
    a.kernel_begin(n)
    gemm_head(a, c, 4, 4, 8, 128, [(4, P_WO), (6, P_WS), (32, P_X), (34, P_W1)], (1,1))
    psrds = [(8, 6, OF, 0x400000), (12, 4, 0, 1024*2048)]
    csrds = [(24, 6, X1, 0x400000), (28, 6, ST2, 0x40000)]
    rt = res_setup(c, (32, 0, 0x400000), 2, None)
    def tail_issue(a, c, vm):
        rt(a, c, vm)
        if opt.cpf & 2: next_code(a, 'wo', 'ln2_kernel', 'w2_kernel', 2, 240, 1, c.s_wave, 4, vm)
        if opt.pf3:
            V = c.p_vfree + 4
            srd(a, 28, 34, 0, 1024*7168)
            a('v_lshrrev_b32 v%d, 4, v1\nv_mul_u32_u24 v%d, 7168, v%d\nv_and_b32 v%d, 15, v1\nv_lshl_add_u32 v%d, v%d, 7, v%d' % (V, V, V, V+1, V, V+1, V))
            a('v_cmp_lt_u32 vcc, 13, v%d\nv_mov_b32 v%d, 0x7fffffff\nv_cndmask_b32 v%d, v%d, v%d, vcc' % (V+1, V+1, V, V, V+1))
            a('s_lshr_b32 s61, s2, 3\ns_lshl_b32 s61, s61, 2\ns_add_u32 s61, s61, s%d\ns_sub_u32 s61, s61, 4\ns_mul_i32 s61, s61, %d' % (c.s_wave, 4*7168))
            a('s_bfe_u32 s62, s2, 0x20001\ns_mul_i32 s62, s62, 1792\ns_add_u32 s61, s61, s62')
            for q in range(opt.pf3):
                a('buffer_load_dword v%d, v%d, s[28:31], s61 offen\ns_add_u32 s61, s61, %d' % (V+2, V, 512*7168))
            vm.issue('pf', opt.pf3)
    c.tail_issue = tail_issue
    gemm_body(a, c, psrds, csrds)
    res_epi(a, c, 24, stats=28)
    gemm_tail(a, c, n, 4)

def k_w1(a):
    n = 'w1_kernel'
    c = gemm.config('w1', 1024, 128, 3, True, 64, 3, 7168, 128, natw=True)
    a.kernel_begin(n)
    gemm_head(a, c, 6, 8, 4, 448, [(4, P_W1), (6, P_WS), (32, P_B1), (34, P_W2)], (1,1))
    psrds = [(8, 6, H2F, 0x400000), (12, 4, 0, 1024*7168)]
    csrds = [(24, 6, HF, 2048*7168)]
    ACC = lambda j, i, r=0: (c.v_acc + (j*4+i)*4 + r) if j < 6 else (c.v_acc + 96 + ((j-6)*2+i)*4 + r)
    BT = c.lds
    c.lds += 1024
    def early_issue(a, c, vm):
        V = c.p_vfree
        srd(a, 16, 32, 0, 7168)
        a('v_lshlrev_b32 v%d, 4, v1\ns_mul_i32 s59, s%d, 448\ns_mov_b32 m0, %d' % (V, c.s_nt, BT))
        a('buffer_load_dwordx4 v%d, s[16:19], s59 offen lds' % V)
        vm.issue(0)
    c.early_issue = early_issue
    c.unroll = True
    if opt.pf4 == 2: c.iter_hook = smem_pf(c, [(34, 7168)], 1, 14)
    def tail_issue(a, c, vm):
        V = c.p_vfree
        if opt.cpf & 2: next_code(a, 'w1', 'w2_kernel', 'code_end', 1, 240, 1, c.s_wave, 4, vm)
        if opt.pf4 not in (1, 3): return
        srd(a, 28, 34, 0, 3584*2048)
        a('v_lshlrev_b32 v%d, 11, v%d\nv_lshl_add_u32 v%d, v%d, 7, v%d' % (V, c.p_vrow, V, c.p_vch, V))
        a('s_bfe_u32 s62, s2, 0x10002\ns_lshl_b32 s62, s62, 10')
        a('s_lshr_b32 s61, s2, 3\ns_lshl_b32 s63, s61, 2\ns_add_u32 s63, s63, s%d\ns_sub_u32 s63, s63, 4\ns_lshl_b32 s63, s63, 14\ns_add_u32 s63, s63, s62' % c.s_wave)
        a('buffer_load_dword v%d, v%d, s[28:31], s63 offen' % (V+1, V))
        vm.issue('pf')
        if opt.pf4 == 1:
            a('s_mul_i32 s61, s61, 20\ns_and_b32 s63, s2, 3\ns_mul_i32 s63, s63, 640\ns_add_u32 s61, s61, s63\ns_lshl_b32 s63, s%d, 3\ns_add_u32 s61, s61, s63\ns_add_u32 s61, s61, %d' % (c.s_wave, 1024-32))
            a('s_lshl_b32 s61, s61, 11\ns_add_u32 s61, s61, s62')
            a('buffer_load_dword v%d, v%d, s[28:31], s61 offen' % (V+2, V))
            vm.issue('pf')
    c.tail_issue = tail_issue
    def pre(a, c):
        a('s_lshl_b32 s58, s%d, 6\ns_add_u32 s58, s58, s%d' % (c.s_nh, c.s_col0))
        a('s_mul_i32 s59, s%d, 448\ns_sub_u32 s59, %d, s59\ns_add_u32 s60, s58, s59\ns_add_u32 s59, s%d, s59' % (c.s_nt, BT, c.s_colh))
        a('v_lshrrev_b32 v3, 4, v1\nv_lshlrev_b32 v3, 3, v3\nv_add_u32 v2, s60, v3\nv_add_u32 v3, s59, v3')
    BF = 60
    def post_b0(a, c):
        B = c.v_acc
        for j in range(6): a('ds_read_b64 v[%d:%d], v2 offset:%d' % (B+2*j, B+2*j+1, (j//2)*128 + (j%2)*32))
        for u in range(2): a('ds_read_b64 v[%d:%d], v3 offset:%d' % (B+12+2*u, B+13+2*u, 32*u))
    def post_b0b(a, c, nr):
        a('s_waitcnt lgkmcnt(%d)' % min(15, nr))
        for j in range(8):
            for e in range(2): unpack(a, c.v_free+4*j+2*e, c.v_free+4*j+2*e+1, c.v_acc+2*j+e)
    c.pre_hook, c.post_b0, c.post_b0b = pre, post_b0, post_b0b
    c.first_c = lambda c, j: 'v[%d:%d]' % (c.v_free+4*j, c.v_free+4*j+3)
    gemm_body(a, c, psrds, csrds)
    a('v_lshlrev_b32 v4, 4, v1')
    a('s_lshl_b32 s60, s%d, 1\ns_add_u32 s60, s60, s%d\ns_mul_i32 s60, s60, %d' % (c.s_mt, c.s_rh, 4*112*1024))
    a('s_mul_i32 s59, s%d, %d' % (c.s_nh, 2*112*1024))
    a('s_lshl_b32 s61, s58, 4\ns_add_u32 s61, s61, s60')
    a('s_lshl_b32 s62, s%d, 4\ns_add_u32 s62, s62, s60\ns_add_u32 s62, s62, s59' % c.s_colh)
    a('s_add_u32 s61, s61, s59')
    PK = 56
    for i in range(4):
        nj = 8 if i < 2 else 6
        xs = [ACC(j, i, r) for j in range(nj) for r in range(4)]
        for x in xs: a('v_max_f32 v%d, 0, v%d' % (x, x))
        for x in xs[::2]: a('v_pk_mul_f32 v[%d:%d], v[%d:%d], v[%d:%d]' % (x, x+1, x, x+1, x, x+1))
        pk = PK + (i % 2)*16
        for k in range(2*nj): a('v_cvt_pk_bf16_f32 v%d, v%d, v%d' % (pk+k, xs[2*k], xs[2*k+1]))
        for p in range(3):
            if p < 2: a('buffer_store_dwordx4 v[%d:%d], v4, s[24:27], s61 offen offset:%d' % (pk+4*p, pk+4*p+3, 2048*p))
            else:
                a('s_add_u32 s63, s61, 4096')
                a('buffer_store_dwordx4 v[%d:%d], v4, s[24:27], s63 offen' % (pk+4*p, pk+4*p+3))
        if i < 2:
            a('buffer_store_dwordx4 v[%d:%d], v4, s[24:27], s62 offen' % (pk+12, pk+15))
            a('s_add_u32 s62, s62, %d' % (112*1024))
        a('s_add_u32 s61, s61, %d' % (112*1024))
        if i == 1: a('s_lshl_b32 s59, s59, 1\ns_sub_u32 s61, s61, s59')
    gemm_tail(a, c, n, 6)

def k_w2(a):
    n = 'w2_kernel'
    c = gemm.config('w2', 3584, 128, 1, False, 128, 3, 2048, 128, rows4=True, KS=2, rpm=opt.rpm)
    c.lds += 16384
    a.kernel_begin(n)
    gemm_head(a, c, 7, 4, 8, 128, [(4, P_W2), (6, P_WS), (32, P_B2), (34, P_OUT)], (1,1))
    psrds = [(8, 6, HF, 2048*7168), (12, 4, 0, 3584*2048)]
    csrds = [(28, 34, 0, 0x400000)]
    c.tail_issue = res_setup(c, (6, X1, 0x400000), 5, 32)
    gemm_body(a, c, psrds, csrds)
    res_epi(a, c, 28, bias=True)
    gemm_tail(a, c, n, 7)

def build(path, **kw):
    for k, v in kw.items(): setattr(opt, k, v)
    a = Asm()
    k_pre(a)
    k_ln(a, 'ln1_kernel', 1, True)
    k_qkv(a)
    k_o(a)
    k_wo(a)
    k_ln(a, 'ln2_kernel', 5, False)
    k_w1(a)
    k_w2(a)
    a.label('code_end')
    a('s_endpgm')
    if opt.sflags:
        a.lines = [l + opt.sflags if ('buffer_store_dwordx' in l and 's[88:91]' not in l) else l for l in a.lines]
    open(path, 'w').write(a.text(verbose=kw.get('verbose', False)))

if __name__ == '__main__':
    kw = eval('dict(%s)' % (sys.argv[2] if len(sys.argv) > 2 else ''))
    build(sys.argv[1], **kw)
```

```python
import sys
from asmgen import Asm
import gemm, gen
from gen import *
FL = 0x80000
FL8 = 12
XB = PHIQ
FL7 = 16384
opt.plan = 'lqowab'

UT = 0x90000
def rt(a, i):
    if not opt.ts: return
    a('s_memrealtime s[98:99]\ns_waitcnt lgkmcnt(0)\nv_writelane_b32 v%d, s98, %d' % (11 if getattr(a, 'cons', False) else 255, i))

def tile_head(a, c, xm, xn, colmul, ptrs):
    for s, o in ptrs: a('s_load_dwordx2 s[%d:%d], s[0:1], %d' % (s, s+1, o))
    c.dma_flags = opt.wflags
    bm = 16 // xm
    a('s_and_b32 s36, s2, 7\ns_lshr_b32 s37, s2, 3')
    a('s_and_b32 s38, s36, %d\ns_lshr_b32 s36, s36, %d' % (bm-1, bm.bit_length()-1))
    a('s_and_b32 s39, s37, %d\ns_lshr_b32 s37, s37, %d' % (xm-1, xm.bit_length()-1))
    a('s_mul_i32 s38, s38, %d\ns_add_u32 s%d, s38, s39' % (xm, c.s_mt))
    a('s_mul_i32 s36, s36, %d\ns_add_u32 s%d, s36, s37' % (xn, c.s_nt))
    a('s_add_u32 s39, s39, s37\ns_and_b32 s%d, s39, %d' % (c.s_rot, c.G-1))
    a('s_mul_i32 s%d, s%d, %d' % (c.s_col0, c.s_nt, colmul))
    if c.half:
        a('s_and_b32 s36, s%d, 1\ns_cmp_eq_u32 s36, 0' % c.s_nt)
        a('s_cselect_b32 s36, 384, 0\ns_cselect_b32 s37, 0, 64')
        a('s_add_u32 s%d, s%d, s36\ns_add_u32 s%d, s%d, s37' % (c.s_colh, c.s_col0, c.s_col0, c.s_col0))

NW = 0x8F000
MPT = 0xA0000
def nonce(a):
    a('s_load_dword s3, s[6:7], %d' % NW)
def nonce2(a):
    a('s_mul_i32 s3, s3, 0x9e3779b1\ns_add_u32 s3, s3, 0x7f4a7c15')

def psync(a, tag, sig, s_sig, s_mem, s_wait, n=16, part=None):
    if part != 1:
        srd(a, 84, 6, FL, 65536)
        a('s_lshl_b32 s88, s%d, 7\ns_add_u32 s88, s88, %d\ns_lshl_b32 s89, s%d, 7\ns_add_u32 s89, s89, %d' % (s_sig, sig*2048, s_wait, sig*2048))
        if s_mem is not None: a('s_lshl_b32 s90, s%d, 2\ns_add_u32 s88, s88, s90' % s_mem)
        a('v_lshlrev_b32 v252, 2, v1\nv_mov_b32 v253, s3\ns_mov_b32 s90, 20000')
        a('s_barrier')
        rt(a, 2*sig if sig < 8 else 18)
        a('s_cmp_lg_u32 s42, 4\ns_cbranch_scc1 %s_s5' % tag)
        a('s_mov_b64 exec, 1')
        a('buffer_store_dword v253, v252, s[84:87], s88 offen sc1')
        a('s_mov_b64 exec, -1')
        a.label(tag + '_s5')
    if part == 0: return
    a('s_cmp_lg_u32 s42, 5\ns_cbranch_scc1 %s_sx' % tag)
    a('s_mov_b64 exec, 0x%x' % ((1 << n) - 1))
    a('buffer_load_dword v253, v252, s[84:87], s89 offen sc1')
    a.label(tag + '_sp')
    a('buffer_load_dword v254, v252, s[84:87], s89 offen sc1')
    a('s_sub_u32 s90, s90, 1\ns_waitcnt vmcnt(1)\nv_cmp_ne_u32 vcc, s3, v253')
    a('s_cmp_eq_u64 vcc, 0\ns_cbranch_scc1 %s_sy' % tag)
    a('buffer_load_dword v253, v252, s[84:87], s89 offen sc1')
    a('s_waitcnt vmcnt(1)\nv_cmp_ne_u32 vcc, s3, v254')
    a('s_cmp_eq_u64 vcc, 0\ns_cbranch_scc1 %s_sy' % tag)
    a('s_cmp_lg_u32 s90, 0\ns_cbranch_scc1 %s_sp' % tag)
    a.label(tag + '_sy')
    a('s_mov_b64 exec, -1')
    rt(a, 2*sig+1 if sig < 8 else 19)
    a.label(tag + '_sx')
    a('s_barrier')

def chain(*fs):
    fs = [f for f in fs if f]
    def g(*x):
        for f in fs: f(*x)
    return g
BAR = lambda a, c: a('s_barrier')

def ln1_body(a, c, TB):
    SS = TB + 8192
    a('s_lshl_b32 s20, s%d, 3\ns_lshr_b32 s21, s%d, 1\ns_add_u32 s20, s20, s21\ns_and_b32 s21, s%d, 1' % (c.s_mt, c.s_nt, c.s_nt))
    a('v_lshrrev_b32 v2, 6, v0\nv_and_b32 v3, 15, v0\nv_bfe_u32 v4, v0, 4, 2')
    a('v_lshlrev_b32 v5, 11, v3\nv_lshl_add_u32 v5, v2, 8, v5\nv_lshl_add_u32 v5, v4, 4, v5')
    a('s_lshl_b32 s22, s20, 15\ns_lshl_b32 s23, s21, 10\ns_add_u32 s23, s23, s22\ns_xor_b32 s25, s23, 1024')
    a('s_waitcnt lgkmcnt(0)')
    nonce(a)
    srd(a, 8, 34, 0, 0x400000)
    a('s_barrier')
    D = 32; M = 144
    for u in range(4): a('buffer_load_dwordx4 v[%d:%d], v5, s[8:11], s23 offen offset:%d%s' % (D+4*u, D+4*u+3, 64*u, opt.xflags))
    for u in range(4): a('buffer_load_dwordx4 v[%d:%d], v5, s[8:11], s25 offen offset:%d%s' % (M+4*u, M+4*u+3, 64*u, opt.xflags))
    srd(a, 12, 6, MPT, 65536); srd(a, 28, 6, H1F, 0x400000)
    a('v_lshlrev_b32 v7, 4, v0\ns_lshl_b32 s24, s21, 12\nv_mov_b32 v12, 0x3f803f80')
    a('v_lshlrev_b32 v6, 5, v3\nv_add_u32 v6, %d, v6\nv_lshl_add_u32 v10, v2, 3, v6' % SS)
    for q in range(8):
        a('s_waitcnt vmcnt(%d)' % (7-q))
        for e in range(4):
            r = (D if q < 4 else M) + 4*(q % 4) + e
            a('v_dot2_f32_bf16 v%d, v%d, v12, %s' % (16+e, r, '0' if q == 0 else 'v%d' % (16+e)))
            a('v_dot2_f32_bf16 v%d, v%d, v%d, %s' % (20+e, r, r, '0' if q == 0 else 'v%d' % (20+e)))
    a('v_add_f32 v16, v16, v17\nv_add_f32 v18, v18, v19\nv_add_f32 v20, v20, v21\nv_add_f32 v22, v22, v23\nv_add_f32 v16, v16, v18\nv_add_f32 v17, v20, v22')
    xg_sum(a, [16, 17], [18, 19])
    a('ds_write_b64 v10, v[16:17]')
    def mloads():
        for p in range(4):
            for w, ch in enumerate((1, 0)):
                a('s_add_u32 s26, s24, %d' % (p*16384 + ch*8192))
                a('buffer_load_dwordx4 v[%d:%d], v7, s[12:15], s26 offen sc1' % (M+8*p+4*w, M+8*p+4*w+3))
    if opt.earlym: mloads()
    X = 48
    for i in range(16): unpack(a, X+2*i, X+2*i+1, D+i)
    a('s_waitcnt lgkmcnt(0)')
    nonce2(a)
    rt(a, 20)
    a('s_mov_b32 s27, 20000\ns_barrier')
    rt(a, 21)
    a('ds_read_b128 v[16:19], v6\nds_read_b128 v[20:23], v6 offset:16')
    if opt.earlym: a('s_branch ln1_chk')
    a.label('ln1_poll')
    mloads()
    a.label('ln1_chk')
    a('s_sub_u32 s27, s27, 1\ns_waitcnt vmcnt(0)')
    tg = [M+2*i+1 for i in range(16)]
    for op, d in (('v_min3_u32', 24), ('v_max3_u32', 25)):
        a('%s v%d, v%d, v%d, v%d' % (op, d, tg[0], tg[1], tg[2]))
        for i in range(3, 15, 2): a('%s v%d, v%d, v%d, v%d' % (op, d, d, tg[i], tg[i+1]))
        a('%s v%d, v%d, v%d, v%d' % (op, d, d, tg[15], tg[15]))
    a('v_xor_b32 v24, s3, v24\nv_xor_b32 v25, s3, v25\nv_or_b32 v24, v24, v25\nv_cmp_ne_u32 vcc, 0, v24')
    a('s_cmp_eq_u64 vcc, 0\ns_cbranch_scc1 ln1_ok\ns_cmp_lg_u32 s27, 0\ns_cbranch_scc1 ln1_poll')
    a.label('ln1_ok')
    rt(a, 22)
    if opt.ts: a('v_writelane_b32 v11, s27, 23')
    a('v_lshrrev_b32 v6, 2, v0\nv_lshlrev_b32 v6, 6, v6\nv_and_b32 v7, 3, v0\nv_lshl_add_u32 v6, v7, 3, v6\nv_add_u32 v6, %d, v6' % TB)
    for e in (0, 2, 4, 6): a('v_add_f32 v%d, v%d, v%d\nv_add_f32 v%d, v%d, v%d' % (M+e, M+e, M+8+e, M+16+e, M+16+e, M+24+e))
    for k_, e in enumerate((0, 2, 4, 6)): a('v_add_f32 v%d, v%d, v%d' % (24+k_, M+e, M+16+e))
    M = 24
    rndn(a, [M, M+1, M+2, M+3], [M+4, M+5])
    a('v_add_f32 v%d, 1.0, v%d\nv_add_f32 v%d, 1.0, v%d' % (M, M, M+1, M+1))
    rndn(a, [M, M+1], [M+4])
    a('ds_write_b64 v6, v[%d:%d]\nds_write_b64 v6, v[%d:%d] offset:32' % (M, M+1, M+2, M+3))
    a('s_waitcnt lgkmcnt(2)')
    a('v_pk_add_f32 v[16:17], v[16:17], v[18:19]\nv_pk_add_f32 v[20:21], v[20:21], v[22:23]\nv_pk_add_f32 v[16:17], v[16:17], v[20:21]')
    a('v_mul_f32 v9, 0x3a800000, v16\nv_mov_b32 v18, 0x3a800000\nv_mul_f32 v8, v9, v9\nv_fma_f32 v8, v17, v18, -v8')
    a('v_max_f32 v8, 0, v8\nv_add_f32 v8, 0x3727c5ac, v8\nv_rsq_f32 v8, v8')
    a('v_lshlrev_b32 v6, 10, v2\nv_lshl_add_u32 v6, v4, 6, v6\nv_add_u32 v6, %d, v6' % TB)
    a('v_lshlrev_b32 v5, 12, v2\nv_lshl_add_u32 v5, v1, 4, v5\ns_lshl_b32 s23, s21, 14\ns_add_u32 s23, s23, s22')
    a('s_waitcnt lgkmcnt(0)\ns_barrier')
    T = 80; X = 48
    for u in range(4):
        for e in range(4): a('ds_read_b128 v[%d:%d], v6 offset:%d' % (T+16*u+4*e, T+16*u+4*e+3, 256*u+16*e))
    a('v_mul_f32 v9, -v9, v8')
    for i in range(0, 32, 2): a('v_pk_fma_f32 v[%d:%d], v[%d:%d], v[8:9], v[8:9] op_sel:[0,0,1] op_sel_hi:[1,0,1]' % (X+i, X+i+1, X+i, X+i+1))
    for u in range(4):
        a('s_waitcnt lgkmcnt(%d)' % (12-4*u))
        for e in range(0, 8, 2): a('v_pk_fma_f32 v[%d:%d], v[%d:%d], v[%d:%d], v[%d:%d]' % (X+8*u+e, X+8*u+e+1, X+8*u+e, X+8*u+e+1, T+16*u+e, T+16*u+e+1, T+16*u+8+e, T+16*u+9+e))
        for e in range(4): a('v_cvt_pk_bf16_f32 v%d, v%d, v%d' % (D+4*u+e, X+8*u+2*e, X+8*u+2*e+1))
        a('buffer_store_dwordx4 v[%d:%d], v5, s[28:31], s23 offen offset:%d' % (D+4*u, D+4*u+3, 1024*u))
    a('s_waitcnt vmcnt(0)\ns_barrier')

KB, RW = 160, 176
def o_loads(a):
    srd(a, 16, 6, KVP, 0x200000); srd(a, 20, 6, ZP, 0x20000)
    a('s_lshr_b32 s60, s42, 2\ns_lshl_b32 s61, s41, 1\ns_add_u32 s60, s60, s61\ns_and_b32 s61, s42, 3')
    a('s_lshl_b32 s62, s60, 16\ns_lshl_b32 s63, s61, 10\ns_add_u32 s62, s62, s63')
    a('s_lshl_b32 s63, s60, 12\ns_lshl_b32 s64, s61, 6\ns_add_u32 s63, s63, s64')
    a('v_lshlrev_b32 v156, 4, v1\nv_lshrrev_b32 v157, 4, v1\nv_lshlrev_b32 v157, 4, v157\nv_and_b32 v158, 15, v1\nv_lshl_add_u32 v157, v158, 8, v157')
    a('buffer_load_dwordx4 v[%d:%d], v157, s[20:23], s63 offen sc1' % (KB+8, KB+11))
    for m in range(16):
        a('s_lshl_b32 s64, s40, 1\ns_add_u32 s64, s64, %d\ns_and_b32 s64, s64, 15\ns_lshl_b32 s64, s64, 12\ns_add_u32 s64, s64, s62' % m)
        a('buffer_load_dwordx4 v[%d:%d], v156, s[16:19], s64 offen sc1' % (RW+4*m, RW+4*m+3))
    return ['oz'] + [('ok', m) for m in range(16)]
def o_reduce(a, vm):
    S = 244
    a('v_mov_b32 v%d, 0\nv_mov_b32 v%d, 0\nv_mov_b32 v%d, 0\nv_mov_b32 v%d, 0' % (S, S+1, S+4, S+5))
    a('v_bfe_u32 v157, v1, 2, 2\nv_lshrrev_b32 v158, 4, v1\nv_cmp_eq_u32 vcc, v157, v158')
    a('v_and_b32 v157, 1, v1\nv_lshlrev_b32 v157, 4, v157\nv_mov_b32 v158, 0x3f80\nv_lshlrev_b32 v157, v157, v158\nv_cndmask_b32 v157, 0, v157, vcc')
    a('v_and_b32 v158, 2, v1\nv_cmp_eq_u32 vcc, 0, v158\nv_cndmask_b32 v%d, 0, v157, vcc\nv_cndmask_b32 v%d, v157, v%d, vcc' % (S+2, S+3, S))
    vm.wait('oz')
    dpp_sum(a, [KB+8+e for e in range(4)], DPP16)
    for m in range(16):
        vm.wait(('ok', m))
        for h in range(2):
            d = KB + 4*h; A_ = S + 2 - 2*h
            a('v_mfma_f32_16x16x32_bf16 v[%d:%d], v[%d:%d], v[%d:%d], %s' % (d, d+3, A_, A_+3, RW+4*m, RW+4*m+3, '0' if m == 0 else 'v[%d:%d]' % (d, d+3)))
    a('s_lshr_b32 s60, s42, 2\ns_mul_i32 s60, s60, 6144\ns_bfe_u32 s61, s42, 0x10001\ns_lshl_b32 s61, s61, 10\ns_add_u32 s60, s60, s61\ns_and_b32 s61, s42, 1')
    a('s_lshl_b32 s62, s61, 11\ns_add_u32 s62, s62, s60\ns_lshl_b32 s61, s61, 3\ns_add_u32 s60, s60, s61')
    a('v_add_u32 v157, s60, v156\nv_add_u32 v158, s62, v156')
    for e in range(2): a('v_cvt_pk_bf16_f32 v%d, v%d, v%d' % (KB+12+e, KB+8+2*e, KB+9+2*e))
    a('ds_write_b64 v157, v[%d:%d] offset:4096' % (KB+12, KB+13))
    for e in range(4): a('v_cvt_pk_bf16_f32 v%d, v%d, v%d' % (RW+e, KB+2*e, KB+2*e+1))
    a('ds_write_b128 v158, v[%d:%d]' % (RW, RW+3))
    a('s_waitcnt lgkmcnt(0)\ns_barrier')
def o_compute(a, PHI):
    AF = RW; R = AF + 24
    srd(a, 20, 6, OF, 0x400000)
    a('s_and_b32 s60, s42, 1\ns_mul_i32 s60, s60, 6144\nv_add_u32 v157, s60, v156')
    for t in range(3):
        for gam in range(2): a('ds_read_b128 v[%d:%d], v157 offset:%d' % (AF+(t*2+gam)*4, AF+(t*2+gam)*4+3, (t*2+gam)*1024))
    a('s_bfe_u32 s60, s42, 0x10001\ns_lshl_b32 s61, s93, 1\ns_add_u32 s60, s60, s61\ns_lshl_b32 s60, s60, 17\ns_lshl_b32 s61, s58, 10\ns_add_u32 s60, s60, s61')
    a('s_waitcnt lgkmcnt(0)')
    for gam in range(2):
        for i in range(4):
            for t in range(3):
                d = R + (i*3+t)*4; A_ = AF+(t*2+gam)*4; B_ = PHI[(i, gam)]
                a('v_mfma_f32_16x16x32_bf16 v[%d:%d], v[%d:%d], v[%d:%d], %s' % (d, d+3, A_, A_+3, B_, B_+3, '0' if gam == 0 else 'v[%d:%d]' % (d, d+3)))
    dens = [R+(i*3+2)*4 for i in range(4)]
    for d in dens: a('v_add_f32 v%d, 0x358637bd, v%d' % (d, d))
    for d in dens: a('v_rcp_f32 v%d, v%d' % (d, d))
    for i in range(4):
        xs = list(range(R+i*12, R+i*12+8))
        for x in xs[::2]: a('v_pk_mul_f32 v[%d:%d], v[%d:%d], v[%d:%d] op_sel_hi:[1,0]' % (x, x+1, x, x+1, dens[i], dens[i]+1))
        for e in range(4): a('v_cvt_pk_bf16_f32 v%d, v%d, v%d' % (KB+4*i+e, xs[2*e], xs[2*e+1]))
        a('buffer_store_dwordx4 v[%d:%d], v156, s[20:23], s60 offen' % (KB+4*i, KB+4*i+3))
        a('s_add_u32 s60, s60, 32768')
    a('s_waitcnt vmcnt(0)')

def phase0(a, GS):
    V = 8; T = 48; CT = GS + 2048
    a('s_and_b32 s60, s2, 7\ns_lshl_b32 s60, s60, 3\ns_bfe_u32 s61, s2, 0x30003\ns_add_u32 s60, s60, s61\ns_lshr_b32 s61, s2, 6')
    a('s_lshl_b32 s62, s61, 9\ns_mul_i32 s63, s61, %d\ns_lshl_b32 s64, s60, 6\ns_add_u32 s63, s63, s64' % (256*12288))
    a('v_and_b32 v2, 255, v0\nv_mov_b32 v5, %d\nv_mov_b32 v6, 0\nds_write_b32 v5, v6\ns_waitcnt lgkmcnt(0)' % CT)
    srd(a, 20, 74, 0, 2048); srd(a, 24, 76, 0, 1024*12288)
    vm = gemm.VM(a)
    gemv_issue(a, 4, 2, V, 20, 24, 62, 63, vm, R=4)
    a('s_barrier')
    nonce(a)
    a('s_lshr_b32 s62, s2, 3\ns_cmp_eq_u32 s42, 7\ns_cselect_b32 s62, s62, 8\ns_min_u32 s62, s62, 8')
    code_pf(a, 'ph0', 'ph0_done', 'code_end', 62, 8, 6, 1, 64)
    vm.issue('cpf')
    srd(a, 16, 6, MPT, 65536)
    gemv_math(a, 4, V, T, vm, 59, R=4)
    a('v_lshrrev_b32 v3, 4, v2\nv_lshlrev_b32 v3, 7, v3\nv_and_b32 v4, 3, v1\nv_lshl_add_u32 v3, v4, 5, v3\nv_add_u32 v3, %d, v3' % GS)
    a('ds_write_b128 v3, v[%d:%d]\nds_write_b128 v3, v[%d:%d] offset:16' % (T+8, T+11, T+12, T+15))
    a('v_and_b32 v4, 31, v1\nv_lshrrev_b32 v3, 5, v1\nv_lshlrev_b32 v3, 10, v3\nv_lshl_add_u32 v3, v4, 2, v3\nv_add_u32 v3, %d, v3' % GS)
    a('s_lshl_b32 s60, s60, 8\ns_lshl_b32 s61, s61, 14\ns_add_u32 s60, s60, s61\nv_lshlrev_b32 v4, 3, v4\nv_mov_b32 v6, 1\ns_waitcnt lgkmcnt(0)')
    nonce2(a)
    a('s_mov_b64 exec, 1\nds_add_rtn_u32 v6, v5, v6\ns_mov_b64 exec, -1\ns_waitcnt lgkmcnt(0)')
    a('v_readfirstlane_b32 s59, v6\ns_cmp_lg_u32 s59, 3\ns_cbranch_scc1 ph0_nl')
    for p in range(8): a('ds_read_b32 v%d, v3 offset:%d' % (V+p, 128*p))
    a('v_mov_b32 v%d, s3\ns_waitcnt lgkmcnt(0)' % (V+9))
    for s_ in (4, 2):
        for p in range(s_): a('v_add_f32 v%d, v%d, v%d' % (V+p, V+p, V+p+s_))
    a('v_add_f32 v%d, v%d, v%d\nv_add_f32 v%d, v%d, v%d' % (V+8, V, V+1, V+2, V, V+1))
    a('v_permlane32_swap_b32 v%d, v%d\nv_add_f32 v%d, v%d, v%d' % (V+8, V+2, V+8, V+8, V+2))
    a('s_mov_b64 exec, 0xffffffff\nbuffer_store_dwordx2 v[%d:%d], v4, s[16:19], s60 offen\ns_mov_b64 exec, -1' % (V+8, V+9))
    a.label('ph0_nl')
    rt(a, 0)
    a('s_barrier')
    srd(a, 20, 34, 0, 7168); srd(a, 24, 6, UT, 32768); srd(a, 16, 6, ZP, 0x80000 + 65536 - ZP)
    a('s_min_u32 s61, s2, 64\ns_mul_i32 s62, s61, 448\nv_lshlrev_b32 v3, 1, v2\nbuffer_load_ushort v5, v3, s[20:23], s62 offen')
    a('s_lshl_b32 s62, s2, 8')
    for q in range(4): a('s_add_u32 s63, s62, %d\ns_load_dword s59, s[32:33], s63' % (64*q))
    a('s_and_b32 s62, s2, 31\ns_lshl_b32 s62, s62, 6\ns_load_dword s59, s[30:31], s62')
    if opt.warm:
        a('s_sub_u32 s62, s2, 16\ns_cmp_ge_u32 s62, 4\ns_cselect_b32 s63, 8, 0\ns_add_u32 s62, s62, s63\ns_min_u32 s62, s62, 64\ns_lshl_b32 s62, s62, 15\nv_lshlrev_b32 v6, 7, v2')
        a('buffer_load_dword v7, v6, s[16:19], s62 offen')
    a('s_lshl_b32 s61, s61, 11\nv_lshlrev_b32 v3, 2, v2\nv_mov_b32 v4, 0\nbuffer_store_dword v4, v3, s[24:27], s61 offen sc1')
    a('s_waitcnt vmcnt(1)\nv_lshlrev_b32 v5, 16, v5\nbuffer_store_dword v5, v3, s[24:27], s61 offen offset:1024 sc1')
    a.label('ph0_done')

def ph_qkv(P, C, st):
    c = gemm.config('qkv', 1024, 128, 3, False, 64, 3, 6144, 2048, swap_frags=(4, 5), natw=True)
    WPH = c.lds; FLG = WPH + 4096
    EB = c.slot
    IMG = EB; VB = EB + 32768; QB = VB + 16384; GV = QB + 16384
    s_hd = 58; sL = 60
    tile_head(P, c, 8, 4, 128, [(74, P_C), (76, P_WMOD), (6, P_WS), (4, P_WQKV), (32, P_WPHI), (78, P_WO), (34, P_B1), (30, P_B2)])
    phase0(P, 2*c.slot + 4096)
    c.srd_hook = lambda a: [srd(a, *x) for x in [(8, 6, H1F, 0x400000), (12, 4, 0, 1024*6144)]]
    def boundary0(a, c, vm):
        a('s_barrier\ns_waitcnt vmcnt(0)')
        psync(a, 'f1', 1, c.s_mt, c.s_nt, c.s_mt, part=0)
    def boundary(a, c, vm):
        if not opt.wlate & 1: boundary0(a, c, vm)
        psync(a, 'f1', 1, c.s_mt, c.s_nt, c.s_mt, part=1)
    c.boundary = boundary
    if opt.wlate & 1: c.boundary0 = boundary0
    if opt.xsc1: c.xflags = ' sc1'
    def early_issue(a, c, vm):
        V = c.p_vfree
        srd(a, 16, 32, 0, 65536)
        a('v_lshrrev_b32 v%d, 3, v1\nv_and_b32 v%d, 2, v%d\nv_xor_b32 v%d, v1, v%d\nv_lshlrev_b32 v%d, 4, v%d' % (V, V, V, V, V, V, V))
        a('s_sub_u32 s59, s%d, 4\ns_lshl_b32 s59, s59, 10\ns_add_u32 m0, s59, %d\ns_lshl_b32 s61, s%d, 12\ns_add_u32 s59, s59, s61' % (c.s_wave, WPH, c.s_nt))
        a('buffer_load_dwordx4 v%d, s[16:19], s59 offen lds' % V)
        vm.issue('wphi')
    def tail_issue(a, c, vm):
        V = (c.p_vfree + 3)//4*4
        srd(a, 20, 74, 0, 2048); srd(a, 24, 76, 0, 1024*12288)
        a('s_lshr_b32 s61, s2, 6\ns_lshl_b32 s62, s61, 9\ns_mul_i32 s63, s61, %d' % (256*12288))
        a('s_and_b32 s64, s2, 63\ns_lshl_b32 s65, s64, 7\ns_add_u32 s63, s63, s65\ns_add_u32 s63, s63, 4096')
        a('v_and_b32 v%d, 255, v0' % (V+38))
        gemv_issue(a, 8, V+38, V, 20, 24, 62, 63, vm)
        if opt.pf2:
            srd(a, 28, 78, 0, 1024*2048)
            a('v_lshlrev_b32 v%d, 11, v%d\nv_lshl_add_u32 v%d, v%d, 7, v%d' % (V+39, c.p_vrow, V+39, c.p_vch, V+39))
            a('s_lshr_b32 s62, s2, 3\ns_lshl_b32 s62, s62, 2\ns_add_u32 s62, s62, s%d\ns_sub_u32 s62, s62, 4\ns_lshl_b32 s62, s62, 14' % c.s_wave)
            a('s_bfe_u32 s63, s2, 0x10002\ns_lshl_b32 s63, s63, 10\ns_add_u32 s62, s62, s63')
            a('buffer_load_dword v%d, v%d, s[28:31], s62 offen' % (V+37, V+39))
            vm.issue('pf')
    PHI = {}
    def ptail(a, c, vm):
        V = (c.p_vfree + 3)//4*4
        QF = V + 40; P_ = QF + 16; E = P_ + 32; MX = E + 32; MN = MX + 4; W = MN + 4; T = W + 8
        assert E + 32 <= 156 and P_ >= 48
        srd(a, 24, 6, MP2, 65536)
        a('s_mov_b32 s%d, 0x%x' % (sL, LOG2E))
        a('s_and_b32 s%d, s%d, 1' % (c.s_nh, c.s_wave))
        wphi_read(a, W, c.s_nh, WPH, 2, 3)
        a('s_lshl_b32 s59, s%d, 1\ns_add_u32 s%d, s59, s%d' % (c.s_nt, s_hd, c.s_nh))
        a('s_lshl_b32 s61, s61, 14\ns_lshl_b32 s64, s64, 8\ns_add_u32 s64, s64, s61')
        a('s_sub_u32 s61, s%d, 4\ns_lshl_b32 s62, s61, 12\ns_add_u32 s62, s62, %d' % (c.s_wave, QB))
        a('v_lshl_add_u32 v3, v1, 4, s62')
        if opt.eprio: a('s_setprio %d' % opt.eprio)
        a('s_barrier')
        for i in range(4): a('ds_read_b128 v[%d:%d], v3 offset:%d' % (QF+4*i, QF+4*i+3, 1024*i))
        a('s_waitcnt lgkmcnt(0)')
        if not opt.gv_late: pass
        def sink(i, sg, B): PHI[(i, sg)] = B
        feat(a, QF, P_, E, MX, MN, W, sL, sink)
        rt(a, 14)
        a('s_setprio 0')
        psync(a, 'f2', 2, c.s_nt, c.s_mt, c.s_nt, part=0)
        gemv_math(a, 8, V, T, vm, 59)
        a('v_lshrrev_b32 v2, 4, v%d\nv_lshlrev_b32 v2, 8, v2\nv_and_b32 v5, 7, v1\nv_lshl_add_u32 v2, v5, 5, v2\nv_add_u32 v2, %d, v2' % (V+38, GV))
        a('ds_write_b128 v2, v[%d:%d]\nds_write_b128 v2, v[%d:%d] offset:16' % (T+8, T+11, T+12, T+15))
        a('v_mov_b32 v5, %d\nv_mov_b32 v6, 1\ns_waitcnt lgkmcnt(0)' % (FLG+16))
        a('s_mov_b64 exec, 1\nds_add_rtn_u32 v6, v5, v6\ns_mov_b64 exec, -1\ns_waitcnt lgkmcnt(0)')
        a('v_readfirstlane_b32 s59, v6\ns_cmp_lg_u32 s59, 3\ns_cbranch_scc1 qkv_gvx')
        a('v_lshlrev_b32 v5, 2, v1\nv_add_u32 v6, %d, v5' % GV)
        for p in range(16): a('ds_read_b32 v%d, v6 offset:%d' % (T+p, 256*p))
        a('s_and_b32 s59, s2, 63\ns_lshl_b32 s59, s59, 7\ns_add_u32 s59, s59, %d\ns_lshr_b32 s61, s2, 6\ns_lshl_b32 s61, s61, 2\ns_add_u32 s59, s59, s61' % FL7)
        a('s_waitcnt lgkmcnt(0)')
        for s_ in (8, 4, 2, 1):
            for p in range(s_): a('v_add_f32 v%d, v%d, v%d' % (T+p, T+p, T+p+s_))
        a('buffer_store_dword v%d, v5, s[24:27], s64 offen sc1' % T)
        a('v_mov_b32 v6, s3\ns_waitcnt vmcnt(0)\ns_mov_b64 exec, 1')
        a('buffer_store_dword v6, v252, s[84:87], s59 offen sc1')
        a('s_mov_b64 exec, -1')
        a.label('qkv_gvx')
        rt(a, 15)
        vm.wait('pf') if opt.pf2 else None
        psync(a, 'f2', 2, c.s_nt, c.s_mt, c.s_nt, part=1)
        a('s_mov_b32 s93, s%d\ns_mov_b32 s97, s%d' % (c.s_mt, c.s_nt))
        a('s_or_b32 s59, s2, s42\ns_cmp_lg_u32 s59, 4\ns_cbranch_scc1 qkv_nn\ns_mov_b32 s59, %d\nv_mov_b32 v253, s3\ns_mov_b64 exec, 1' % (NW - FL))
        a('buffer_store_dword v253, v252, s[84:87], s59 offen sc1\ns_mov_b64 exec, -1')
        a.label('qkv_nn')
        st['vm_init'] = o_loads(a)
    c.first_c = lambda c, j: '0'
    c.unroll = opt.unroll
    c.early_issue, c.tail_issue, c.ptail = early_issue, tail_issue, ptail
    gemm.producer(P, c, None)
    st['PHI'] = PHI
    a = C
    tile_head(a, c, 8, 4, 128, [(6, P_WS), (34, P_X)])
    ln1_body(a, c, 2*c.slot)
    rt(a, 1)
    for x in [(24, 6, KVP, 0x200000), (28, 6, ZP, 0x20000)]: srd(a, *x)
    def zero_flags(a, c):
        a('v_lshlrev_b32 v2, 2, v1\nv_add_u32 v2, %d, v2\nv_mov_b32 v3, 0\nds_write_b32 v2, v3\ns_waitcnt lgkmcnt(0)' % FLG)
    c.pre_hook2 = chain(zero_flags, BAR)
    c.post_b0 = lambda a, c: rt(a, 2)
    gemm.consumer(a, c)
    rt(a, 3)
    a('s_lshl_b32 s%d, s%d, 1\ns_add_u32 s%d, s%d, s%d' % (s_hd, c.s_nt, s_hd, s_hd, c.s_nh))
    wphi_read(a, c.v_free, c.s_nh, WPH, 2, 3)
    W = c.v_free
    ACC = lambda j, i, r=0: c.v_acc + (j*4+i)*4 + r
    QF = 12; P_ = 28; E = 60
    MX = W + 8; MN = MX + 4; T = MN + 4
    a('s_mov_b32 s%d, 0x%x' % (sL, LOG2E))
    a('v_lshlrev_b32 v4, 4, v1')
    a('s_lshl_b32 s61, s%d, 12\ns_add_u32 s61, s61, %d' % (c.s_wave, QB))
    a('v_add_u32 v3, s61, v4')
    for i in range(4):
        for h in range(2):
            for e in range(2): a('v_cvt_pk_bf16_f32 v%d, v%d, v%d' % (P_+4*i+2*h+e, ACC(h, i, 2*e), ACC(h, i, 2*e+1)))
        a('ds_write_b128 v3, v[%d:%d] offset:%d' % (P_+4*i, P_+4*i+3, 1024*i))
    a('s_waitcnt lgkmcnt(0)\ns_barrier')
    a('s_lshl_b32 s61, s%d, 1\ns_add_u32 s61, s61, s%d\ns_lshl_b32 s61, s61, 12\ns_add_u32 s61, s61, %d' % (c.s_nh, c.s_rh, VB))
    a('v_add_u32 v3, s61, v4')
    for gam in range(2):
        for dt in range(2):
            q = c.v_acc + (gam*2+dt)*4
            for h in range(2):
                for e in range(2): a('v_cvt_pk_bf16_f32 v%d, v%d, v%d' % (q+2*h+e, ACC(4+dt, 2*gam+h, 2*e), ACC(4+dt, 2*gam+h, 2*e+1)))
            a('ds_write_b128 v3, v[%d:%d] offset:%d' % (q, q+3, (gam*2+dt)*1024))
    for i in range(4):
        for h in range(2):
            for e in range(2): a('v_cvt_pk_bf16_f32 v%d, v%d, v%d' % (QF+4*i+2*h+e, ACC(2+h, i, 2*e), ACC(2+h, i, 2*e+1)))
    def hrow(dst, row, t):
        a('v_lshrrev_b32 v%d, 1, v%d\nv_and_b32 v%d, 3, v%d\nv_lshlrev_b32 v%d, 2, v%d' % (dst, row, dst, dst, dst, dst))
        a('v_and_b32 v%d, 1, v%d\nv_or_b32 v%d, v%d, v%d' % (t, row, dst, dst, t))
        a('v_lshrrev_b32 v%d, 2, v%d\nv_and_b32 v%d, 2, v%d\nv_or_b32 v%d, v%d, v%d' % (t, row, t, t, dst, dst, t))
    WA = T; RA = WA + 4
    a('v_and_b32 v2, 15, v1\nv_lshrrev_b32 v3, 4, v1')
    hrow(6, 2, 5)
    a('v_xor_b32 v6, v6, v3\nv_lshlrev_b32 v2, 7, v2')
    a('s_lshl_b32 s61, s%d, 13\ns_add_u32 s61, s61, %d\nv_add_u32 v2, s61, v2' % (c.s_wave, IMG))
    for u in range(4): a('v_xor_b32 v5, %d, v6\nv_lshl_add_u32 v%d, v5, 3, v2' % (4*u, WA+u))
    a('v_lshrrev_b32 v2, 2, v1\nv_and_b32 v3, 3, v1')
    hrow(6, 2, 5)
    a('v_xor_b32 v6, v6, v3\nv_lshlrev_b32 v2, 7, v2')
    a('s_lshl_b32 s61, s%d, 13\ns_add_u32 s61, s61, %d\nv_add_u32 v2, s61, v2' % (c.s_nh, IMG))
    a('s_lshl_b32 s61, s%d, 3\nv_xor_b32 v6, s61, v6' % c.s_rh)
    for u in range(2): a('v_xor_b32 v5, %d, v6\nv_lshl_add_u32 v%d, v5, 3, v2' % (4*u, RA+u))
    def sink(i, sg, B):
        for ft in range(2): a('ds_write_b64 v%d, v[%d:%d] offset:%d' % (WA+2*sg+ft, B+2*ft, B+2*ft+1, i*2048))
    feat(a, QF, P_, E, MX, MN, W, sL, sink)
    a('s_waitcnt lgkmcnt(0)')
    a('s_lshl_b32 s61, s%d, 2\ns_add_u32 s61, s61, %d\nv_mov_b32 v2, s61\nv_mov_b32 v3, 1\nds_write_b32 v2, v3\nv_xor_b32 v2, 8, v2' % (c.s_wave, FLG))
    a.label('qkv_spin')
    a('ds_read_b32 v3, v2\ns_waitcnt lgkmcnt(0)\nv_readfirstlane_b32 s61, v3\ns_cmp_eq_u32 s61, 0\ns_cbranch_scc1 qkv_spin')
    AF = 12; VF = 44; ONE = 76; KV = ACC(2, 0)
    a('s_lshl_b32 s61, s%d, 13\ns_add_u32 s61, s61, %d\nv_add_u32 v3, s61, v4' % (c.s_nh, VB))
    for gp in range(4):
        rhp, gam = gp // 2, gp % 2
        for ftl in range(2):
            for t in range(2):
                q = AF + (ftl*4+gp)*4 + 2*t
                a('ds_read_b64_tr_b16 v[%d:%d], v%d offset:%d' % (q, q+1, RA+ftl, rhp*16384 + (gam*32 + t*16)*128))
        for dt in range(2):
            q = VF + (dt*4+gp)*4
            a('ds_read_b128 v[%d:%d], v3 offset:%d' % (q, q+3, (gp*2+dt)*1024))
    for e in range(4): a('v_mov_b32 v%d, 0x3f803f80' % (ONE+e))
    for gp in range(4):
        a('s_waitcnt lgkmcnt(%d)' % min(12, 6*(3-gp)))
        for ftl in range(2):
            for t in range(3):
                d = KV + (ftl*3+t)*4; A_ = AF + (ftl*4+gp)*4
                B_ = VF + (t*4+gp)*4 if t < 2 else ONE
                a('v_mfma_f32_16x16x32_bf16 v[%d:%d], v[%d:%d], v[%d:%d], %s' % (d, d+3, A_, A_+3, B_, B_+3, '0' if gp == 0 else 'v[%d:%d]' % (d, d+3)))
    a('s_lshl_b32 s61, s%d, 4\ns_add_u32 s61, s61, s%d' % (s_hd, c.s_mt))
    a('s_lshl_b32 s63, s61, 12\ns_lshl_b32 s64, s%d, 11\ns_add_u32 s63, s63, s64' % c.s_rh)
    a('s_lshl_b32 s61, s61, 8\ns_lshl_b32 s64, s%d, 7\ns_add_u32 s61, s61, s64' % c.s_rh)
    a('v_and_b32 v2, 15, v1\nv_cmp_eq_u32 vcc, 0, v2')
    for ftl in range(2):
        for e in range(4): a('v_cvt_pk_bf16_f32 v%d, v%d, v%d' % (AF+4*ftl+e, KV+(e//2)*12+4*ftl+2*(e%2), KV+(e//2)*12+4*ftl+2*(e%2)+1))
        a('buffer_store_dwordx4 v[%d:%d], v4, s[24:27], s63 offen offset:%d' % (AF+4*ftl, AF+4*ftl+3, ftl*1024))
    a('s_and_saveexec_b64 s[64:65], vcc')
    for ftl in range(2):
        d = KV + (ftl*3+2)*4
        a('buffer_store_dwordx4 v[%d:%d], v1, s[28:31], s61 offen offset:%d' % (d, d+3, ftl*64))
    a('s_mov_b64 exec, s[64:65]')
    rt(a, 4)
    a('s_waitcnt vmcnt(0)\ns_barrier\ns_barrier')
    rt(a, 5)
    vm = gemm.VM(a); vm.ops = o_loads(a)
    o_reduce(a, vm)
    a('s_barrier')
    rt(a, 6)
    return c

def poll7(a, tag, offs, nw=4):
    a('s_cmp_lg_u32 s42, 5\ns_cbranch_scc1 %s_x' % tag)
    a('s_mov_b32 s90, 20000')
    a.label(tag + '_p')
    for q, so in enumerate(offs): a('s_load_dwordx%d s[%d:%d], s[84:85], s%d glc' % (nw, 68+nw*q, 68+nw*q+nw-1, so))
    a('s_sub_u32 s90, s90, 1\ns_waitcnt lgkmcnt(0)')
    n = nw*len(offs)
    for q in range(n): a('s_xor_b32 s%d, s%d, s3' % (68+q, 68+q))
    for q in range(1, n): a('s_or_b32 s68, s68, s%d' % (68+q))
    a('s_cbranch_scc0 %s_x' % tag)
    a('s_cmp_lg_u32 s90, 0\ns_cbranch_scc1 %s_p' % tag)
    a.label(tag + '_x')

def res_phase(c, xsrd, chunks, bias):
    XT = 147456
    nst = c.K // c.BK
    FN = ((nst - 3 + c.slot0) % c.S) * c.slot
    nv = len(chunks)
    def pre_b1(a, c, vm):
        if xsrd is None: return
        w1_tau(a)
        a('s_lshl_b32 s64, s65, 7\ns_add_u32 s64, s64, %d\ns_add_u32 s65, s64, 2048' % (FL7 + 2048))
        for q, r_ in enumerate((0, 2)): a('s_lshl_b32 s%d, s%d, 7\ns_add_u32 s%d, s%d, %d' % (60+q, c.s_nt, 60+q, 60+q, FL7 + r_*2048))
        poll7(a, c.name + '7', [60, 61, 64, 65])
    def tail(a, c, vm):
        V = (c.p_vfree + 3)//4*4
        srd(a, 20, 6, MP2, 65536)
        a('v_lshrrev_b32 v%d, 4, v1\nv_lshlrev_b32 v%d, 14, v%d\nv_and_b32 v%d, 15, v1\nv_lshl_add_u32 v%d, v%d, 4, v%d' % (V+1, V+1, V+1, V+2, V+1, V+2, V+1))
        for q, ch in enumerate(chunks):
            a('s_lshl_b32 s61, s%d, 8\ns_add_u32 s61, s61, %d' % (c.s_nt, (ch-2)*4096))
            a('buffer_load_dwordx4 v[%d:%d], v%d, s[20:23], s61 offen sc1' % (V+4+4*q, V+7+4*q, V+1))
            vm.issue('gt')
        if bias:
            srd(a, 24, bias, 0, 2048)
            a('v_lshlrev_b32 v%d, 3, v%d\ns_lshl_b32 s61, s%d, 7' % (V+3, V+2, c.s_nt))
            a('buffer_load_dwordx2 v[%d:%d], v%d, s[24:27], s61 offen' % (V+16, V+17, V+3))
            vm.issue('gt')
        if xsrd:
            srd(a, 16, *xsrd)
            a('v_xor_b32 v%d, v%d, v%d\nv_lshlrev_b32 v%d, 4, v%d\nv_lshl_add_u32 v%d, v%d, 11, v%d' % (V, c.p_vrow, c.p_vch, V, V, V, c.p_vrow, V))
            a('s_sub_u32 s59, s%d, 4\ns_lshl_b32 s60, s%d, 2\ns_add_u32 s60, s60, s59\ns_lshl_b32 s60, s60, 16\ns_lshl_b32 s61, s%d, 7\ns_add_u32 s60, s60, s61' % (c.s_wave, c.s_mt, c.s_nt))
            a('s_lshl_b32 s59, s59, 12\ns_add_u32 s59, s59, %d' % XT)
            for i in range(4):
                a('s_add_u32 m0, s59, %d' % (1024*i))
                a('buffer_load_dwordx4 v%d, s[16:19], s60 offen lds' % V)
                a('s_add_u32 s60, s60, 16384')
            vm.issue('op', 4)
    def pre_last(a, c, vm):
        V = (c.p_vfree + 3)//4*4
        vm.wait('gt')
        xs = list(range(V+4, V+4+4*nv))
        xg_sum(a, xs, list(range(V+20, V+20+4*nv)))
        rndn(a, xs, list(range(V+20, V+26)))
        for q, ch in enumerate(chunks):
            if ch == 4:
                for e in range(4): a('v_add_f32 v%d, 1.0, v%d' % (V+4+4*q+e, V+4+4*q+e))
                rndn(a, list(range(V+4+4*q, V+8+4*q)), [V+20, V+21])
        if bias:
            for e in range(2): unpack(a, V+8+2*e, V+9+2*e, V+16+e)
            for e in range(4): a('v_mul_f32 v%d, v%d, v%d' % (V+8+e, V+8+e, V+4+e))
        a('v_lshlrev_b32 v%d, 4, v%d\nv_add_u32 v%d, %d, v%d' % (V+2, V+2, V+2, FN, V+2))
        for q in range(nv + (1 if bias else 0)): a('ds_write_b128 v%d, v[%d:%d] offset:%d' % (V+2, V+4+4*q, V+7+4*q, 256*q))
        if xsrd: vm.wait('op')
        a('s_waitcnt lgkmcnt(0)')
    XA = lambda c: c.v_free + 16 + 48
    c.XA = XA
    def pre(a, c):
        a('v_and_b32 v2, 7, v1\nv_lshrrev_b32 v3, 5, v1\nv_xor_b32 v2, v2, v3\nv_lshlrev_b32 v2, 4, v2\nv_bfe_u32 v3, v1, 4, 1\nv_lshl_add_u32 v2, v3, 3, v2')
        a('v_and_b32 v3, 15, v1\nv_lshl_add_u32 v2, v3, 7, v2\ns_lshl_b32 s61, s%d, 12\ns_add_u32 s61, s61, %d\nv_add_u32 v%d, s61, v2' % (c.s_wave, XT, XA(c)))
        for j in range(1, 4): a('v_xor_b32 v%d, %d, v%d' % (XA(c)+j, 32*j, XA(c)))
        a('v_lshrrev_b32 v3, 4, v1\nv_lshlrev_b32 v3, 4, v3\nv_add_u32 v3, %d, v3' % FN)
    def last_reads(c):
        XR = c.v_free; GA = XR + 16
        return ['ds_read_b64 v[%d:%d], v%d offset:%d' % (XR+8*i+2*j, XR+8*i+2*j+1, XA(c)+j, 2048*i) for i in range(2) for j in range(4)] + \
               ['ds_read_b128 v[%d:%d], v3 offset:%d' % (GA+16*q+4*j, GA+16*q+4*j+3, 256*q + 64*j) for q in range(nv + (1 if bias else 0)) for j in range(4)]
    c.FN = FN
    c.pre_b1, c.pre_hook, c.last_reads, c.pre_last_bar = pre_b1, pre, last_reads, pre_last
    c.first_c = lambda c, j: '0'
    return tail

P2 = lambda x: 'v[%d:%d]' % (x, x+1)
def res_out(a, c, sOut, bias=False):
    XR = c.v_free; GA = XR + 16
    ACC = lambda j, i, r=0: c.v_acc + (i*4+j)*4 + r
    a('s_lshl_b32 s58, s%d, 2\ns_add_u32 s58, s58, s%d' % (c.s_mt, c.s_wave))
    a('s_lshl_b32 s60, s58, 16\ns_lshl_b32 s61, s%d, 7\ns_add_u32 s60, s60, s61' % c.s_nt)
    U = 12; PK = 44
    a('v_and_b32 v2, 15, v1\nv_lshlrev_b32 v2, 11, v2\nv_bfe_u32 v3, v1, 4, 1\nv_lshl_add_u32 v2, v3, 5, v2\nv_lshrrev_b32 v3, 5, v1\nv_lshl_add_u32 v2, v3, 4, v2')
    a('s_add_u32 s61, s60, 32768')
    a('s_waitcnt lgkmcnt(0)')
    def part(i, store=True):
        for j in range(4):
            for e in range(2): unpack(a, U+16*i+4*j+2*e, U+16*i+4*j+2*e+1, XR+8*i+2*j+e)
        if bias:
            for j in range(4):
                for r in (0, 2): a('v_pk_add_f32 %s, %s, %s' % (P2(U+16*i+4*j+r), P2(U+16*i+4*j+r), P2(GA+16+4*j+r)))
        for j in range(4):
            for r in (0, 2): a('v_pk_fma_f32 %s, %s, %s, %s' % (P2(ACC(j,i,r)), P2(ACC(j,i,r)), P2(GA+4*j+r), P2(U+16*i+4*j+r)))
    def out(i):
        for j in range(4):
            for e in range(2): a('v_cvt_pk_bf16_f32 v%d, v%d, v%d' % (PK+8*i+2*j+e, ACC(j,i,2*e), ACC(j,i,2*e+1)))
        if sOut is None:
            for j in range(4): a('ds_write_b64 v%d, v[%d:%d] offset:%d' % (c.XA(c)+j, PK+8*i+2*j, PK+8*i+2*j+1, 2048*i))
            return
        for jp in range(2):
            for e in range(2): a('v_permlane16_swap_b32 v%d, v%d' % (PK+8*i+4*jp+e, PK+8*i+4*jp+2+e))
        for jp in range(2):
            a('buffer_store_dwordx4 v[%d:%d], v2, s[%d:%d], s%d offen offset:%d' % (PK+8*i+4*jp, PK+8*i+4*jp+3, sOut, sOut+3, 60+i, 64*jp))
    return part, out

def ph_wo(P, C, st):
    c = gemm.config('wo', 1024, 128, 1, False, 128, 3, 2048, 128, rows4=True, KS=2, rpm=opt.rpm, slot0=1, unroll=True)
    tile_head(P, c, 4, 8, 128, [(4, P_WO), (32, P_X), (34, P_W1)])
    c.srd_hook = lambda a: [srd(a, *x) for x in [(8, 6, OF, 0x400000), (12, 4, 0, 1024*2048)]]
    c.vm_init = st['vm_init']
    if opt.xsc1: c.xflags = ' sc1'
    def boundary(a, c, vm):
        rt(a, 16)
        o_reduce(a, vm)
        rt(a, 17)
        o_compute(a, st['PHI'])
        psync(a, 'f3', 3, 93, 97, c.s_mt, part=0)
        if opt.pf3:
            V = 40
            srd(a, 28, 34, 0, 1024*7168)
            a('v_lshrrev_b32 v%d, 4, v1\nv_mul_u32_u24 v%d, 7168, v%d\nv_and_b32 v%d, 15, v1\nv_min_u32 v%d, 13, v%d\nv_lshl_add_u32 v%d, v%d, 7, v%d' % (V, V, V, V+1, V+1, V+1, V, V+1, V))
            a('s_lshr_b32 s61, s2, 3\ns_lshl_b32 s61, s61, 2\ns_add_u32 s61, s61, s42\ns_sub_u32 s61, s61, 4\ns_mul_i32 s61, s61, %d' % (4*7168))
            a('s_bfe_u32 s62, s2, 0x20001\ns_mul_i32 s62, s62, 1792\ns_add_u32 s61, s61, s62')
            for q in range(opt.pf3):
                a('buffer_load_dword v251, v%d, s[28:31], s61 offen\ns_add_u32 s61, s61, %d' % (V, 512*7168))
            vm.issue('pf', opt.pf3)
        psync(a, 'f3', 3, 93, 97, c.s_mt, part=1)
    c.boundary = boundary
    c.tail_issue = res_phase(c, (32, 0, 0x400000), [2, 4], None)
    gemm.producer(P, c, None)
    assert c.vm.done == len(c.vm.ops) - 1
    P('s_mov_b32 s93, s%d\ns_mov_b32 s97, s%d' % (c.s_mt, c.s_nt))
    a = C
    tile_head(a, c, 4, 8, 128, [])
    for x in [(28, 6, ST2, 0x40000), (16, 6, H2F, 0x400000)]: srd(a, *x)
    c.pre_hook2 = BAR
    c.post_b0 = lambda a, c: rt(a, 7)
    gemm.consumer(a, c)
    rt(a, 8)
    ACC = lambda j, i, r=0: c.v_acc + (i*4+j)*4 + r
    part, out = res_out(a, c, None)
    part(0); part(1)
    Q = 60
    for i in range(2):
        xs = [ACC(j,i,r) for j in range(4) for r in (0, 2)]
        S0, Q0 = 64+8*i, 68+8*i
        for k in range(2): a('v_pk_add_f32 %s, %s, %s' % (P2(S0+2*k), P2(xs[k]), P2(xs[2+k])))
        for k in range(2): a('v_pk_mul_f32 %s, %s, %s' % (P2(Q0+2*k), P2(xs[k]), P2(xs[k])))
        for m in (4, 6):
            for k in range(2): a('v_pk_add_f32 %s, %s, %s' % (P2(S0+2*k), P2(S0+2*k), P2(xs[m+k])))
        for m in (2, 4, 6):
            for k in range(2): a('v_pk_fma_f32 %s, %s, %s, %s' % (P2(Q0+2*k), P2(xs[m+k]), P2(xs[m+k]), P2(Q0+2*k)))
        a('v_pk_add_f32 %s, %s, %s\nv_pk_add_f32 %s, %s, %s' % (P2(S0), P2(S0), P2(S0+2), P2(Q0), P2(Q0), P2(Q0+2)))
        a('v_add_f32 v%d, v%d, v%d\nv_add_f32 v%d, v%d, v%d' % (Q+i, S0, S0+1, Q+2+i, Q0, Q0+1))
    for s_ in bfly(a, 'v_add_f32', [Q, Q+1, Q+2, Q+3])[:4]:
        for l in s_: a(l)
    a('v_and_b32 v4, 15, v1\nv_lshrrev_b32 v3, 5, v1\nv_lshl_add_u32 v4, v3, 4, v4\nv_lshlrev_b32 v4, 3, v4\nv_bfe_u32 v3, v1, 4, 1\nv_lshl_add_u32 v4, v3, 2, v4')
    a('s_lshl_b32 s63, s58, 8\ns_lshl_b32 s62, s%d, 14\ns_add_u32 s62, s63, s62' % c.s_nt)
    a('buffer_store_dword v%d, v4, s[28:31], s62 offen sc1' % Q)
    a('v_and_b32 v4, 15, v1\nv_lshlrev_b32 v4, 4, v4\nv_bfe_u32 v3, v1, 4, 1\nv_lshl_add_u32 v4, v3, 9, v4\nv_lshrrev_b32 v3, 5, v1\nv_lshl_add_u32 v4, v3, 8, v4')
    a('s_lshl_b32 s62, s58, 16\ns_lshl_b32 s63, s%d, 11\ns_add_u32 s62, s62, s63\ns_add_u32 s63, s62, 32768' % c.s_nt)
    A2 = c.v_free + 32; PK = 88; U = 12
    for i in range(2):
        for j in range(4):
            for r in (0, 2): a('v_pk_mul_f32 %s, %s, %s' % (P2(U+16*i+4*j+r), P2(ACC(j,i,r)), P2(A2+4*j+r)))
        for j in range(4):
            for e in range(2): a('v_cvt_pk_bf16_f32 v%d, v%d, v%d' % (PK+8*i+2*j+e, U+16*i+4*j+2*e, U+16*i+4*j+2*e+1))
        for jp in range(2):
            for e in range(2): a('v_permlane16_swap_b32 v%d, v%d' % (PK+8*i+4*jp+e, PK+8*i+4*jp+2+e))
        for jp in range(2):
            a('buffer_store_dwordx4 v[%d:%d], v4, s[16:19], s%d offen offset:%d' % (PK+8*i+4*jp, PK+8*i+4*jp+3, 62+i, 1024*jp))
    out(0); out(1)
    rt(a, 9)
    a('s_waitcnt vmcnt(0)\ns_barrier')
    rt(a, 10)
    return c

def w1_tau(a):
    a('s_lshr_b32 s61, s2, 3\ns_lshr_b32 s62, s61, 3\ns_add_u32 s62, s62, s61\ns_and_b32 s62, s62, 3')
    a('s_cmp_eq_u32 s62, 0\ns_cselect_b32 s63, 4, s62\ns_lshl_b32 s64, s62, 2\ns_lshr_b32 s64, 0x1431, s64\ns_and_b32 s64, s64, 15')
    a('s_add_u32 s65, s62, 1\ns_and_b32 s65, s65, 3\ns_add_u32 s62, s63, 3\ns_bitcmp1_b32 s61, 2\ns_cselect_b32 s64, s63, s64\ns_cselect_b32 s65, s62, s65')
    a('s_and_b32 s61, s2, 1\ns_lshl_b32 s61, s61, 3\ns_add_u32 s65, s65, s61')

def ph_w1(P, C, st):
    c = gemm.config('w1', 1024, 128, 3, True, 64, 3, 7168, 128, natw=True)
    BT = c.lds
    tile_head(P, c, 8, 4, 448, [(4, P_W1), (34, P_W2)])
    c.srd_hook = lambda a: [srd(a, *x) for x in [(8, 6, H2F, 0x400000), (12, 4, 0, 1024*7168)]]
    if opt.xsc1: c.xflags = ' sc1'
    XE = BT; RS = XE + 2048; UTL = RS + 1024; UTL2 = UTL + 2048
    tau = w1_tau
    tau(P)
    P('s_add_u32 s92, s64, 1\ns_lshr_b32 s38, s%d, 3' % c.s_mt)
    c.mirror = 38
    def boundary0(a, c, vm):
        psync(a, 'f5', 5, 93, 97, c.s_mt, part=0)
        V = (c.p_vfree + 3)//4*4
        srd(a, 20, 6, MP2, 65536); srd(a, 24, 6, ST2, 0x40000); srd(a, 16, 6, UT, 32768)
        a('v_lshrrev_b32 v%d, 4, v1\nv_lshlrev_b32 v%d, 14, v%d\nv_and_b32 v%d, 15, v1\nv_lshl_add_u32 v%d, v%d, 4, v%d' % (V+1, V+1, V+1, V+2, V+1, V+2, V+1))
        for q, ch in enumerate((4, 3)):
            a('s_lshl_b32 s61, s65, 8\ns_add_u32 s61, s61, %d' % ((ch-2)*4096))
            a('buffer_load_dwordx4 v[%d:%d], v%d, s[20:23], s61 offen sc1' % (V+4+4*q, V+7+4*q, V+1))
        vm.issue('xe', 2)
    def boundary(a, c, vm):
        vm.wait('xe')
        pre_b0(a, c, vm)
        psync(a, 'f5', 5, 93, 97, c.s_mt, part=1)
    c.boundary0, c.boundary = boundary0, boundary
    def pre_b0(a, c, vm):
        V = (c.p_vfree + 3)//4*4
        xs = list(range(V+4, V+12))
        for e in range(4): a('v_mov_b32 v%d, 0' % (V+20+e))
        a('v_lshlrev_b32 v%d, 4, v1\nv_add_u32 v%d, %d, v%d' % (V+3, V+3, XE, V+3))
        a('ds_write_b128 v%d, v[%d:%d]\nds_write_b128 v%d, v[%d:%d] offset:1024' % (V+3, V+20, V+23, V+3, V+20, V+23))
        xg_sum(a, xs, list(range(V+12, V+20)))
        rndn(a, xs[:4], [V+12, V+13])
        for e in range(4): a('v_add_f32 v%d, 1.0, v%d' % (V+4+e, V+4+e))
        for e in range(4): a('v_cvt_pk_bf16_f32 v%d, v%d, v%d' % (V+12+e, V+4+2*e, V+5+2*e))
        a('v_lshrrev_b32 v%d, 1, v%d\nv_lshlrev_b32 v%d, 8, v%d\nv_and_b32 v%d, 1, v%d\nv_lshl_add_u32 v%d, v%d, 3, v%d\nv_add_u32 v%d, %d, v%d' % (V+3, V+2, V+3, V+3, V+2, V+2, V+3, V+2, V+3, V+3, XE, V+3))
        a('ds_write_b64 v%d, v[%d:%d]\nds_write_b64 v%d, v[%d:%d] offset:16' % (V+3, V+12, V+13, V+3, V+14, V+15))
        a('s_waitcnt lgkmcnt(0)')
    def iter_hook(a, c, vm, k):
        V = (c.p_vfree + 3)//4*4 + 24
        if k == 12:
            a('s_lshl_b32 s60, s%d, 7\ns_add_u32 s60, s60, %d' % (c.s_nt, 4*2048))
            poll7(a, 'w19', [60], 16)
        if k == 10:
            a('s_lshl_b32 s60, s97, 7\ns_add_u32 s60, s60, %d' % (FL7 + 3*2048))
            poll7(a, 'w17', [60])
        if k == 13:
            a('v_lshlrev_b32 v%d, 4, v1\ns_lshl_b32 s60, s%d, 11\ns_mov_b32 m0, %d' % (V, c.s_nt, UTL2))
            a('buffer_load_dwordx4 v%d, s[16:19], s60 offen sc1 lds\nbuffer_load_dwordx4 v%d, s[16:19], s60 offen offset:1024 sc1 lds' % (V, V))
            a('v_and_b32 v%d, 15, v1\nv_lshlrev_b32 v%d, 4, v%d\nv_lshrrev_b32 v%d, 4, v1\nv_lshl_add_u32 v%d, v%d, 14, v%d' % (V, V, V, V+1, V+1, V+1, V))
            a('s_lshl_b32 s60, s%d, 2\ns_add_u32 s60, s60, s42\ns_sub_u32 s60, s60, 4\ns_lshl_b32 s60, s60, 8' % c.s_mt)
            for q in range(4):
                a('buffer_load_dwordx4 v[%d:%d], v%d, s[24:27], s60 offen sc1\ns_add_u32 s60, s60, 65536' % (V+4+4*q, V+7+4*q, V+1))
            vm.issue('st', 6)
    def bar_hook(a, c, vm, k):
        V = (c.p_vfree + 3)//4*4 + 48
        if k == 1:
            a('s_lshl_b32 s95, s%d, 7\ns_add_u32 s95, s95, %d\ns_lshl_b32 s94, s%d, 2\ns_add_u32 s95, s95, s94\nv_mov_b32 v253, s3' % (c.s_nt, 4*2048, c.s_mt))
            a('s_sub_u32 s94, s42, 4\ns_lshl_b32 s94, s94, 9\nv_lshl_add_u32 v%d, v1, 2, s94\nv_add_u32 v%d, %d, v%d\ns_lshl_b32 s94, s%d, 11' % (V, V+1, UTL, V, c.s_nt))
            a('s_add_u32 s96, s92, 2\ns_cmp_eq_u32 s42, 7\ns_cselect_b32 s96, s96, 255')
        if 2 <= k <= 5:
            a('s_cmp_lg_u32 s92, %d\ns_cbranch_scc1 w1_np%d' % (k, k))
            a('ds_read_b32 v%d, v%d\nds_read_b32 v%d, v%d offset:256\ns_waitcnt lgkmcnt(0)' % (V+2, V+1, V+3, V+1))
            a('buffer_atomic_add_f32 v%d, v%d, s[16:19], s94 offen\nbuffer_atomic_add_f32 v%d, v%d, s[16:19], s94 offen offset:256' % (V+2, V, V+3, V))
            a.label('w1_np%d' % k)
        if 4 <= k <= 7:
            a('s_cmp_lg_u32 s96, %d\ns_cbranch_scc1 w1_ns%d\ns_mov_b64 exec, 1' % (k, k))
            a('buffer_store_dword v253, v252, s[84:87], s95 offen sc1\ns_mov_b64 exec, -1')
            a.label('w1_ns%d' % k)
    def ptail(a, c, vm):
        V = (c.p_vfree + 3)//4*4 + 24
        b = V+4
        vm.wait('st')
        for st_ in (8, 4):
            for e in range(0, st_, 2): a('v_pk_add_f32 %s, %s, %s' % (P2(b+e), P2(b+e), P2(b+e+st_)))
        xg_sum(a, [b, b+1, b+2, b+3], [b+4, b+5, b+6, b+7])
        a('v_mov_b32 v%d, 0x3a800000' % (b+8))
        for h in (0, 2):
            a('v_mul_f32 v%d, v%d, v%d\nv_mul_f32 v%d, v%d, v%d\nv_fma_f32 v%d, v%d, v%d, -v%d' % (b+5+h, b+h, b+8, b+4+h, b+5+h, b+5+h, b+4+h, b+1+h, b+8, b+4+h))
            a('v_max_f32 v%d, 0, v%d\nv_add_f32 v%d, 0x3727c5ac, v%d\nv_rsq_f32 v%d, v%d\nv_mul_f32 v%d, -v%d, v%d' % (b+4+h, b+4+h, b+4+h, b+4+h, b+4+h, b+4+h, b+5+h, b+5+h, b+4+h))
        a('s_sub_u32 s60, s42, 4\ns_lshl_b32 s60, s60, 8\ns_add_u32 s60, s60, %d\nv_add_u32 v%d, s60, v%d' % (RS, V, V))
        a('ds_write_b128 v%d, v[%d:%d]\ns_waitcnt lgkmcnt(0)' % (V, b+4, b+7))
        a('s_barrier')
    c.iter_hook, c.ptail, c.bar_hook = iter_hook, ptail, bar_hook
    def tail_issue(a, c, vm):
        V = c.p_vfree
        if opt.pf4 not in (1, 3): return
        srd(a, 28, 34, 0, 3584*2048)
        a('v_lshlrev_b32 v%d, 11, v%d\nv_lshl_add_u32 v%d, v%d, 7, v%d' % (V, c.p_vrow, V, c.p_vch, V))
        a('s_bfe_u32 s62, s2, 0x10002\ns_lshl_b32 s62, s62, 10')
        a('s_lshr_b32 s61, s2, 3\ns_lshl_b32 s63, s61, 2\ns_add_u32 s63, s63, s%d\ns_sub_u32 s63, s63, 4\ns_lshl_b32 s63, s63, 14\ns_add_u32 s63, s63, s62' % c.s_wave)
        a('buffer_load_dword v251, v%d, s[28:31], s63 offen' % V)
        vm.issue('pf')
        if opt.pf4 == 1:
            a('s_mul_i32 s61, s61, 20\ns_and_b32 s63, s2, 3\ns_mul_i32 s63, s63, 640\ns_add_u32 s61, s61, s63\ns_lshl_b32 s63, s%d, 3\ns_add_u32 s61, s61, s63\ns_add_u32 s61, s61, %d' % (c.s_wave, 1024-32))
            a('s_lshl_b32 s61, s61, 11\ns_add_u32 s61, s61, s62')
            a('buffer_load_dword v251, v%d, s[28:31], s61 offen' % V)
            vm.issue('pf')
    c.tail_issue = tail_issue
    c.unroll = True
    gemm.producer(P, c, None)
    P('s_mov_b32 s93, s%d\ns_mov_b32 s97, s%d' % (c.s_mt, c.s_nt))
    st['vm_init'] = c.vm.ops[c.vm.done+1:]
    a = C
    tile_head(a, c, 8, 4, 448, [])
    srd(a, 24, 6, HF, 2048*7168)
    ACC = lambda j, i, r=0: (c.v_acc + (j*4+i)*4 + r) if j < 6 else (c.v_acc + 96 + ((j-6)*2+i)*4 + r)
    tau(a)
    def pre(a, c):
        a('s_lshl_b32 s58, s%d, 6\ns_add_u32 s58, s58, s%d' % (c.s_nh, c.s_col0))
        a('s_mul_i32 s59, s%d, 448\ns_sub_u32 s60, s58, s59\ns_sub_u32 s59, s%d, s59\ns_lshl_b32 s60, s60, 1\ns_lshl_b32 s59, s59, 1' % (c.s_nt, c.s_colh))
        a('s_add_u32 s61, s60, %d\nv_lshl_add_u32 v2, v1, 2, s61\ns_add_u32 s61, s59, %d\nv_lshl_add_u32 v3, v1, 2, s61' % (UTL, UTL))
        a('v_lshlrev_b32 v10, 4, v1\nv_add_u32 v10, %d, v10' % XE)
    nlab = [0]
    OL = Asm(); st['OL'] = OL
    def step_hook(a, c, step, wr):
        UA = c.v_free
        nlab[0] += 1
        a('s_cmp_eq_u32 s64, 0\ns_cbranch_scc1 w1_xb%d' % nlab[0])
        a.label('w1_xs%d' % nlab[0])
        b = OL
        b.label('w1_xb%d' % nlab[0])
        b('ds_read_b128 v[252:255], v10 offset:%d\ns_waitcnt lgkmcnt(0)' % (1024*step))
        for j in range(8): b('v_mfma_f32_16x16x32_bf16 v[%d:%d], v[252:255], v[%d:%d], %s' % (UA+4*j, UA+4*j+3, wr(j), wr(j)+3, '0' if step == 0 else 'v[%d:%d]' % (UA+4*j, UA+4*j+3)))
        if step == 1:
            b('s_mov_b64 exec, 0xffff')
            for j in range(8):
                o = ((j//2)*128 + (j % 2)*32)*2 if j < 6 else (j-6)*64
                for e in range(2): b('ds_write_b32 v%d, v%d offset:%d' % (2 if j < 6 else 3, UA+4*j+e, o + 1024*e))
            b('s_mov_b64 exec, -1\ns_waitcnt lgkmcnt(0)')
        b('s_branch w1_xs%d' % nlab[0])
        if step == 1: a('s_sub_u32 s64, s64, 1')
    c.pre_hook, c.post_b0, c.pre_hook2, c.step_hook = pre, (lambda a, c: rt(a, 11)), BAR, step_hook
    c.first_c = lambda c, j: '0'
    gemm.consumer(a, c)
    rt(a, 12)
    UU = 12; TT = 44; RR = c.v_free; TM = RR + 8
    a('v_lshrrev_b32 v3, 4, v1\nv_lshlrev_b32 v3, 4, v3\ns_add_u32 s60, s60, %d\ns_add_u32 s59, s59, %d\nv_add_u32 v2, s60, v3\nv_add_u32 v3, s59, v3' % (UTL2, UTL2))
    a('v_and_b32 v5, 15, v1\nv_lshlrev_b32 v5, 3, v5\ns_lshl_b32 s60, s%d, 9\ns_add_u32 s60, s60, %d\ns_lshl_b32 s59, s%d, 8\ns_add_u32 s61, s60, s59\ns_sub_u32 s60, s60, s59\nv_add_u32 v6, s60, v5\nv_add_u32 v5, s61, v5' % (c.s_rh, RS, c.s_nh))
    a('s_barrier')
    for i in range(4): a('ds_read_b64 v[%d:%d], v%d offset:%d' % (RR+2*i, RR+2*i+1, 5 if i < 2 else 6, 128*i))
    for j in range(8):
        o = ((j//2)*128 + (j % 2)*32)*2 if j < 6 else (j-6)*64
        a('ds_read_b128 v[%d:%d], v%d offset:%d\nds_read_b128 v[%d:%d], v%d offset:%d' % (UU+4*j, UU+4*j+3, 2 if j < 6 else 3, o, TT+4*j, TT+4*j+3, 2 if j < 6 else 3, o+1024))
    a('v_lshlrev_b32 v4, 4, v1')
    a('s_lshl_b32 s60, s%d, 1\ns_add_u32 s60, s60, s%d\ns_mul_i32 s60, s60, %d' % (c.s_mt, c.s_rh, 4*112*1024))
    a('s_mul_i32 s59, s%d, %d' % (c.s_nh, 2*112*1024))
    a('s_lshl_b32 s61, s58, 4\ns_add_u32 s61, s61, s60')
    a('s_lshl_b32 s62, s%d, 4\ns_add_u32 s62, s62, s60\ns_add_u32 s62, s62, s59' % c.s_colh)
    a('s_add_u32 s61, s61, s59')
    PK = 76
    a('s_waitcnt lgkmcnt(0)')
    for i in range(4):
        nj = 8 if i < 2 else 6
        xs = [ACC(j, i, r) for j in range(nj) for r in range(4)]
        for b in range(0, 4*nj, 16):
            for k in range(b, min(b+16, 4*nj), 2): a('v_pk_fma_f32 %s, %s, %s, %s op_sel:[0,1,0] op_sel_hi:[1,1,1]' % (P2(TM+k-b), P2(UU+k), P2(RR+2*i), P2(TT+k)))
            for k in range(b, min(b+16, 4*nj), 2): a('v_pk_fma_f32 %s, %s, %s, %s op_sel_hi:[1,0,1]' % (P2(xs[k]), P2(xs[k]), P2(RR+2*i), P2(TM+k-b)))
        for x in xs: a('v_max_f32 v%d, 0, v%d' % (x, x))
        for x in xs[::2]: a('v_pk_mul_f32 v[%d:%d], v[%d:%d], v[%d:%d]' % (x, x+1, x, x+1, x, x+1))
        pk = PK + (i % 2)*16
        for k in range(2*nj): a('v_cvt_pk_bf16_f32 v%d, v%d, v%d' % (pk+k, xs[2*k], xs[2*k+1]))
        for p in range(3):
            if p < 2: a('buffer_store_dwordx4 v[%d:%d], v4, s[24:27], s61 offen offset:%d' % (pk+4*p, pk+4*p+3, 2048*p))
            else:
                a('s_add_u32 s63, s61, 4096')
                a('buffer_store_dwordx4 v[%d:%d], v4, s[24:27], s63 offen' % (pk+4*p, pk+4*p+3))
        if i < 2:
            a('buffer_store_dwordx4 v[%d:%d], v4, s[24:27], s62 offen' % (pk+12, pk+15))
            a('s_add_u32 s62, s62, %d' % (112*1024))
        a('s_add_u32 s61, s61, %d' % (112*1024))
        if i == 1: a('s_lshl_b32 s59, s59, 1\ns_sub_u32 s61, s61, s59')
    rt(a, 13)
    if opt.pf4 >= 4:
        a('s_load_dwordx2 s[32:33], s[0:1], %d' % P_W2)
        a('s_lshl_b32 s60, s2, 2\ns_add_u32 s60, s60, s42\ns_mul_i32 s60, s60, 7168\nv_lshlrev_b32 v2, 7, v1\nv_min_u32 v2, %d, v2' % (128*(55 if opt.pf4 == 4 else 27)))
        a('s_waitcnt lgkmcnt(0)')
        srd(a, 16, 32, 0, 3584*2048)
        a('buffer_load_dword v254, v2, s[16:19], s60 offen')
        a('s_waitcnt vmcnt(1)\ns_barrier')
    else:
        a('s_waitcnt vmcnt(0)\ns_barrier')
    rt(a, 14)
    return c

def ph_w2(P, C, st):
    c = gemm.config('w2', 3584, 128, 1, False, 128, 3, 2048, 128, rows4=True, KS=2, rpm=opt.rpm, slot0=1)
    tile_head(P, c, 4, 8, 128, [(4, P_W2), (32, P_B2)])
    c.srd_hook = lambda a: [srd(a, *x) for x in [(8, 6, HF, 2048*7168), (12, 4, 0, 3584*2048)]]
    if opt.xsc1: c.xflags = ' sc1'
    c.boundary = lambda a, c, vm: psync(a, 'f6', 6, 93, 97, c.s_mt, part=(1 if opt.wlate & 4 else None))
    if opt.wlate & 4: c.boundary0 = lambda a, c, vm: psync(a, 'f6', 6, 93, 97, c.s_mt, part=0)
    c.tail_issue = res_phase(c, None, [5], 32)
    c.vm_init = st['vm_init']
    gemm.producer(P, c, None)
    a = C
    tile_head(a, c, 4, 8, 128, [(34, P_OUT)])
    a('s_waitcnt lgkmcnt(0)')
    srd(a, 28, 34, 0, 0x400000)
    c.pre_hook2 = BAR
    c.post_b0 = lambda a, c: rt(a, 15)
    gemm.consumer(a, c)
    rt(a, 16)
    part, out = res_out(a, c, 28, True)
    part(0); out(0); part(1); out(1)
    return c

def ph_w2s(P, C, st):
    c = gemm.config('w2', 1792, 128, 2, False, 64, opt.w2S, 2048, 0, xKG=112, panel_sreg=59, lead=opt.w2L)
    XT = 147456
    def head(a, ptrs):
        tile_head(a, c, 4, 8, 128, ptrs)
        a('s_lshr_b32 s36, s2, 3\ns_and_b32 s37, s36, 3\ns_lshr_b32 s36, s36, 3\ns_add_u32 s36, s36, s37\ns_and_b32 s%d, s36, 3' % c.s_rot)
    head(P, [(4, P_W2), (32, P_B2)])
    P('s_and_b32 s58, s%d, 1\ns_mov_b32 s59, 128\ns_cmp_eq_u32 s58, 0\ns_cselect_b32 s59, s59, -128' % c.s_nt)
    def srds(a):
        a('s_mul_i32 s60, s58, %d\ns_add_u32 s60, s60, %d\ns_add_u32 s8, s6, s60\ns_addc_u32 s9, s7, 0\ns_mul_i32 s60, s58, %d\ns_sub_u32 s10, %d, s60\ns_mov_b32 s11, 0x20000' % (56*1024, HF, 56*1024, 2048*7168))
        a('s_mul_i32 s60, s58, %d\ns_add_u32 s12, s4, s60\ns_addc_u32 s13, s5, 0\ns_mov_b32 s14, %d\ns_mov_b32 s15, 0x20000' % (1792*2048, 1792*2048))
    c.srd_hook = srds
    c.boundary = lambda a, c, vm: psync(a, 'f6', 6, 93, 97, c.s_mt, part=1)
    c.boundary0 = lambda a, c, vm: psync(a, 'f6', 6, 93, 97, c.s_mt, part=0)
    c.tail_issue = res_phase(c, None, [5], 32)
    c.vm_init = st['vm_init']
    gemm.producer(P, c, None)
    P('s_xor_b32 s60, s2, 32')
    psync(P, 'f8', FL8, 2, None, 60, n=1)
    a = C
    head(a, [(34, P_OUT)])
    a('s_waitcnt lgkmcnt(0)')
    srd(a, 28, 34, 0, 0x400000); srd(a, 24, 6, XB, 0x800000)
    XR = lambda: c.v_free; GA = lambda: c.v_free + 16; XA = lambda: c.v_free + 32
    def pre(a, c):
        a('s_lshl_b32 s61, s%d, 2\nv_lshrrev_b32 v3, 5, v1\nv_add_u32 v3, s61, v3\nv_and_b32 v2, 7, v1\nv_xor_b32 v2, v2, v3\nv_lshlrev_b32 v2, 4, v2\nv_bfe_u32 v3, v1, 4, 1\nv_lshl_add_u32 v2, v3, 3, v2' % c.s_nh)
        a('v_and_b32 v3, 15, v1\nv_lshl_add_u32 v2, v3, 7, v2\ns_lshl_b32 s61, s%d, 13\ns_add_u32 s61, s61, %d\nv_add_u32 v%d, s61, v2\nv_xor_b32 v%d, 32, v%d' % (c.s_rh, XT, XA(), XA()+1, XA()))
        a('s_lshl_b32 s61, s%d, 7\ns_add_u32 s61, s61, %d\nv_lshrrev_b32 v3, 4, v1\nv_lshl_add_u32 v3, v3, 4, s61' % (c.s_nh, c.FN))
    def last_reads(c):
        return ['ds_read_b64 v[%d:%d], v%d offset:%d' % (XR()+4*i+2*j, XR()+4*i+2*j+1, XA()+j, 2048*i) for i in range(4) for j in range(2)] + \
               ['ds_read_b128 v[%d:%d], v3 offset:%d' % (GA()+8*q+4*j, GA()+8*q+4*j+3, 256*q + 64*j) for q in range(2) for j in range(2)]
    c.pre_hook, c.last_reads, c.pre_hook2 = pre, last_reads, BAR
    c.post_b0 = lambda a, c: rt(a, 15)
    gemm.consumer(a, c)
    rt(a, 16)
    ACC = lambda j, i, r=0: c.v_acc + (j*4+i)*4 + r
    a('s_lshl_b32 s60, s2, 2\ns_add_u32 s60, s60, s%d\ns_lshl_b32 s60, s60, 13\ns_xor_b32 s61, s60, %d\nv_lshlrev_b32 v4, 4, v1' % (c.s_wave, 32*4*8192))
    for k in range(8):
        if k == 4: a('s_add_u32 s60, s60, 4096')
        a('buffer_store_dwordx4 v[%d:%d], v4, s[24:27], s60 offen offset:%d' % (c.v_acc+32+4*k, c.v_acc+35+4*k, 1024*(k % 4)))
    U = 12; PK = 44; RB = 48 + 16
    a('s_waitcnt lgkmcnt(0)')
    for i in range(4):
        for j in range(2):
            for e in range(2): unpack(a, U+8*i+4*j+2*e, U+8*i+4*j+2*e+1, XR()+4*i+2*j+e)
            for r in (0, 2): a('v_pk_add_f32 %s, %s, %s' % (P2(U+8*i+4*j+r), P2(U+8*i+4*j+r), P2(GA()+8+4*j+r)))
            for r in (0, 2): a('v_pk_fma_f32 %s, %s, %s, %s' % (P2(U+8*i+4*j+r), P2(ACC(j,i,r)), P2(GA()+4*j+r), P2(U+8*i+4*j+r)))
    a('v_and_b32 v2, 15, v1\nv_lshlrev_b32 v2, 11, v2\nv_bfe_u32 v3, v1, 4, 1\nv_lshl_add_u32 v2, v3, 5, v2\nv_lshrrev_b32 v3, 5, v1\nv_lshl_add_u32 v2, v3, 4, v2')
    a('s_lshl_b32 s62, s%d, 1\ns_add_u32 s62, s62, s%d\ns_lshl_b32 s62, s62, 17\ns_lshl_b32 s63, s%d, 1\ns_add_u32 s63, s63, s%d\ns_lshl_b32 s63, s63, 6\ns_add_u32 s62, s62, s63' % (c.s_mt, c.s_rh, c.s_nt, c.s_nh))
    if opt.fullout:
        a('v_bfe_u32 v5, v1, 4, 1\nv_lshlrev_b32 v5, 1, v5\nv_lshrrev_b32 v6, 5, v1\nv_add_u32 v5, v5, v6\ns_lshl_b32 s63, s%d, 2\nv_add_u32 v5, s63, v5\nv_and_b32 v6, 7, v1\nv_xor_b32 v5, v5, v6\nv_lshlrev_b32 v5, 4, v5' % c.s_nh)
        a('v_and_b32 v7, 15, v1\nv_lshl_add_u32 v5, v7, 7, v5\ns_lshl_b32 s63, s%d, 13\nv_add_u32 v5, s63, v5' % c.s_rh)
        a('v_lshrrev_b32 v7, 3, v1\nv_xor_b32 v8, v6, v7\nv_lshlrev_b32 v8, 4, v8\nv_lshl_add_u32 v8, v7, 7, v8\nv_lshlrev_b32 v7, 11, v7\nv_lshl_add_u32 v7, v6, 4, v7\ns_lshl_b32 s63, s42, 12\nv_add_u32 v6, s63, v8')
        a('s_lshl_b32 s62, s%d, 2\ns_add_u32 s62, s62, s42\ns_lshl_b32 s62, s62, 16\ns_lshl_b32 s63, s%d, 7\ns_add_u32 s62, s62, s63' % (c.s_mt, c.s_nt))
    a('s_waitcnt vmcnt(0)\ns_barrier\ns_barrier')
    order = [(j, i) for i in range(4) for j in range(2)]
    for n_, (j, i) in enumerate(order):
        k = j*4 + i
        a('s_add_u32 s63, s61, %d' % (1024*k))
        a('buffer_load_dwordx4 v[%d:%d], v4, s[24:27], s63 offen sc1' % (c.v_acc+4*k, c.v_acc+4*k+3))
    for i in range(4):
        a('s_waitcnt vmcnt(%d)' % (6 - 2*i + (0 if opt.fullout else i)))
        for j in range(2):
            for r in (0, 2): a('v_pk_fma_f32 %s, %s, %s, %s' % (P2(U+8*i+4*j+r), P2(ACC(j,i,r)), P2(GA()+4*j+r), P2(U+8*i+4*j+r)))
            for e in range(2): a('v_cvt_pk_bf16_f32 v%d, v%d, v%d' % (PK+4*i+2*j+e, U+8*i+4*j+2*e, U+8*i+4*j+2*e+1))
        for e in range(2): a('v_permlane16_swap_b32 v%d, v%d' % (PK+4*i+e, PK+4*i+2+e))
        if opt.fullout: a('ds_write_b128 v5, v[%d:%d] offset:%d' % (PK+4*i, PK+4*i+3, 2048*i))
        else:
            a('buffer_store_dwordx4 v[%d:%d], v2, s[28:31], s62 offen' % (PK+4*i, PK+4*i+3))
            a('s_add_u32 s62, s62, 32768')
    if opt.fullout:
        a('s_waitcnt lgkmcnt(0)\ns_barrier')
        for i in range(4): a('ds_read_b128 v[%d:%d], v6 offset:%d' % (PK+4*i, PK+4*i+3, 1024*i))
        for i in range(4):
            a('s_waitcnt lgkmcnt(%d)' % (3-i))
            a('buffer_store_dwordx4 v[%d:%d], v7, s[28:31], s62 offen' % (PK+4*i, PK+4*i+3))
            a('s_add_u32 s62, s62, 16384')
    return c

def build(path, **kw):
    for k, v in kw.items(): setattr(opt, k, v)
    a = Asm()
    n = KNAME
    a.kernel_begin(n)
    a('s_cmp_ge_u32 s2, 256\ns_cbranch_scc1 mega_end')
    a('v_lshrrev_b32 v2, 6, v0\nv_and_b32 v1, 63, v0\nv_readfirstlane_b32 s42, v2')
    a('s_cmp_lt_u32 s42, 4\ns_cbranch_scc1 mega_cons')
    P = Asm(); C = Asm(); st = {}; C.cons = True
    rt(C, 0)
    cs = [f(P, C, st) for f in (ph_qkv, ph_wo, ph_w1, ph_w2s if opt.w2s else ph_w2)]
    a.lines += P.lines
    if opt.ts:
        a('s_cmp_lg_u32 s42, 5\ns_cbranch_scc1 mega_end')
        srd(a, 88, 6, TS + 0x10000, 0x10000)
        a('s_lshl_b32 s92, s2, 8\nv_lshlrev_b32 v2, 2, v1\nbuffer_store_dword v255, v2, s[88:91], s92 offen')
    a('s_endpgm')
    a.label('mega_cons')
    a.lines += C.lines
    if opt.ts:
        a('s_waitcnt vmcnt(0)')
        a.cons = True
        rt(a, 17)
        a('s_cmp_lg_u32 s42, 0\ns_cbranch_scc1 mega_end')
        srd(a, 88, 6, TS, 0x10000)
        a('s_lshl_b32 s92, s2, 8\nv_lshlrev_b32 v2, 2, v1\nbuffer_store_dword v11, v2, s[88:91], s92 offen')
    a.label('mega_end')
    a('s_endpgm')
    a.lines += st['OL'].lines
    for c in cs: gemm.table(a, c)
    a.label('code_end')
    a('s_endpgm')
    a.kernel_end(n, 256, 102, 256, 256, 512, 163840)
    a.lines = [l + opt.sflags if ('buffer_store_dwordx' in l) else l for l in a.lines]
    if opt.plain: a.launches = ['; @launch grid=(256,1,1) block=(512,1,1) lds=163840']
    open(path, 'w').write(a.text(verbose=kw.get('verbose', False)))

KNAME = 'adaLN_cond__linear_kernel_hedgehog__dense_activation_squared_relu__prompt_kernel'
opt.plain = False; opt.fullout = False; opt.earlym = False; opt.warm = True; opt.xsc1 = False; opt.unroll = True; opt.pollgap = 0; opt.wlate = 7; opt.st_at = 5; opt.pf3 = 0; opt.spf4 = 0; opt.spf2 = 0; opt.pre4 = True; opt.pf4 = 1; opt.w2s = True; opt.w2S = 4; opt.w2L = 3; opt.spoll = False; opt.satom = False; opt.gvflags = ' nt'; opt.eprio = 0; opt.pf2 = 1
if __name__ == '__main__':
    kw = eval('dict(%s)' % (sys.argv[2] if len(sys.argv) > 2 else ''))
    build(sys.argv[1], **kw)
```

```python
from asmgen import Asm

class G:
    pass

def gemm_prologue(a, c):
    a('v_lshrrev_b32 v2, 6, v0')
    a('v_and_b32 v1, 63, v0')
    a('v_readfirstlane_b32 s%d, v2' % c.s_wave)

def panel_cols(a, c):
    pass

def stamp(a, c, k, bump=False):
    if not c.stamps: return
    a('s_memtime s[70:71]')
    a('s_mov_b32 s73, m0')
    a('s_mov_b32 m0, s72')
    a('s_waitcnt lgkmcnt(0)')
    a('v_writelane_b32 v%d, s70, m0' % (248+k))
    a('s_mov_b32 m0, s73')
    if bump: a('s_add_u32 s72, s72, 1')

def order_table(nst, G, mode):
    tabs = []
    for j in range(G):
        if mode == 'seq':
            o = list(range(nst))
        elif mode == 'lead':
            own = {j} | {t+G-1 for t in range(1, nst) if t % G == j and t+G-1 < nst}
            rest = [x for x in range(nst) if x not in own]
            o = []
            for t in range(nst):
                if t == 0: o.append(j)
                elif t % G == j and t+G-1 < nst: o.append(t+G-1)
                else: o.append(rest.pop(0))
        elif mode == 'lead0':
            sub = order_table(nst-1, G, 'lead')[j]
            o = [0] + [x+1 for x in sub]
        elif mode == 'win':
            o = [(t//G)*G + (t+j) % G for t in range(nst)]
        assert sorted(o) == list(range(nst)), o
        tabs.append(o)
    return tabs

def mark(a, c, i):
    if not c.stamps: return
    a('s_memtime s[70:71]')
    a('s_waitcnt lgkmcnt(0)')
    a('v_writelane_b32 v251, s70, %d' % (32+i))

def dump_stamps(a, c):
    a('v_writelane_b32 v251, s94, 63')
    a('s_add_u32 s76, s6, 0x3900000\ns_addc_u32 s77, s7, 0\ns_mov_b32 s78, 0x200000\ns_mov_b32 s79, 0x20000')
    a('s_lshl_b32 s73, s2, 3\ns_add_u32 s73, s73, s%d\ns_lshl_b32 s73, s73, 10' % c.s_wave)
    a('v_lshlrev_b32 v247, 2, v1')
    for k in range(4): a('buffer_store_dword v%d, v247, s[76:79], s73 offen offset:%d' % (248+k, 256*k))
    a('s_waitcnt vmcnt(0)')

def producer(a, c, lbl_after):
    BK, S = c.BK, c.S
    nsub = BK // 32
    KG = c.xKG or c.K // 32
    nst = c.K // BK
    sp = c.s_tmp
    tabs = order_table(nst, c.G, c.order)
    if c.mirror: tabs = tabs + [[(x + nst//2) % nst for x in o] for o in tabs]
    c.tabs = tabs
    a('s_sub_u32 s%d, s%d, 4' % (sp, c.s_wave))
    a('s_getpc_b64 s[%d:%d]' % (c.s_tab, c.s_tab+1))
    a.label(c.name + '_pc')
    a('s_add_u32 s%d, s%d, %s_tab-%s_pc' % (c.s_tab, c.s_tab, c.name, c.name))
    a('s_addc_u32 s%d, s%d, 0' % (c.s_tab+1, c.s_tab+1))
    vT = 2; vKX = 3; vKW = 4
    a('s_lshl_b32 s%d, s%d, 6' % (sp+1, c.s_rot))
    if c.mirror:
        a('s_lshl_b32 s%d, s%d, 8\ns_add_u32 s%d, s%d, s%d' % (sp+2, c.mirror, sp+1, sp+1, sp+2))
        a('s_mul_i32 s%d, s%d, %d\ns_add_u32 s%d, s%d, s%d' % (sp+2, c.mirror, nst//2, c.s_rot, c.s_rot, sp+2))
    a('v_add_u32 v%d, s%d, v1' % (vT, sp+1))
    a('global_load_ubyte v%d, v%d, s[%d:%d]' % (vKX, vT, c.s_tab, c.s_tab+1))
    v = 5
    groups = []
    mbw = c.BM // 16 // 4
    a('s_mul_i32 s%d, s%d, %d' % (sp+1, c.s_mt, c.BM // 16))
    a('s_mul_i32 s%d, s%d, %d' % (sp+2, sp, mbw))
    a('s_add_u32 s%d, s%d, s%d' % (sp+1, sp+1, sp+2))
    a('s_mul_i32 s%d, s%d, %d' % (sp+1, sp+1, KG*1024))
    a('v_lshl_add_u32 v%d, v1, 4, s%d' % (v, sp+1)); vx0 = v; v += 1
    xl = []
    for i in range(mbw):
        for kg in range(nsub): xl.append((i, kg))
    a('s_mul_i32 s%d, s%d, %d' % (c.s_px, sp, mbw*nsub*1024))
    vregs = {}
    for b in range(0, len(xl), 4):
        ins = []
        for q, (i, kg) in enumerate(xl[b:b+4]):
            const = i*KG*1024 + kg*1024 - q*1024
            assert const >= 0
            if const not in vregs:
                if const == 0: vregs[const] = vx0
                else:
                    a('v_add_u32 v%d, %d, v%d' % (v, const, vx0)); vregs[const] = v; v += 1
            ins.append((vregs[const], q*1024))
        groups.append((c.sX, c.s_kx, c.s_px, b*1024, ins))
    rpw = BK // 4; ipw = rpw // 8
    vrow = v; vt = v+1; vw0 = v+2; vch = v+3; v += 4
    c.p_vrow, c.p_vch = vrow, vch
    a('v_lshrrev_b32 v%d, 3, v1' % vrow)
    a('v_and_b32 v%d, 7, v1' % vch)
    a('v_and_b32 v%d, %d, v%d' % (vt, 2 if c.natw else 6, vrow))
    a('v_xor_b32 v%d, v%d, v%d' % (vw0, vch, vt))
    a('v_mul_u32_u24 v%d, %d, v%d' % (vt, c.ldw, vrow))
    a('s_mul_i32 s%d, s%d, %d' % (sp+1, sp, rpw*c.ldw))
    a('s_add_u32 s%d, s%d, s%d' % (sp+2, sp+1, c.s_col0))
    a('v_add_u32 v%d, s%d, v%d' % (vt, sp+2, vt))
    vw1 = vw0
    if c.natw:
        vw1 = v; v += 1
        a('v_xor_b32 v%d, 4, v%d' % (vw1, vw0))
        a('v_lshl_add_u32 v%d, v%d, 4, v%d' % (vw1, vw1, vt))
    a('v_lshl_add_u32 v%d, v%d, 4, v%d' % (vw0, vw0, vt))
    a('s_mul_i32 s%d, s%d, %d' % (c.s_pw, sp, ipw*1024))
    a('s_add_u32 s%d, s%d, %d' % (c.s_pw, c.s_pw, c.xbytes))
    for q in range(c.nfull):
        ins = []
        for h in range(ipw):
            const = q*c.panel_stride + h*8*c.ldw - h*1024
            if const == 0 and q == 0: ins.append((vw0, 0))
            else:
                a('v_add_u32 v%d, %d, v%d' % (v, const, vw1 if h % 2 else vw0)); ins.append((v, h*1024)); v += 1
                if q and c.panel_sreg: a('v_add_u32 v%d, s%d, v%d' % (v-1, c.panel_sreg, v-1))
        groups.append((c.sW, c.s_kw, c.s_pw, q*BK*128, ins))
    if c.half:
        nh = BK // 64
        vh0 = v; vr2 = v+1; v += 2
        a('v_lshrrev_b32 v%d, 2, v1' % vr2)
        a('v_lshrrev_b32 v%d, %d, v1' % (vt, 4 if c.natw else 3))
        a('v_and_b32 v%d, 2, v%d' % (vt, vt))
        a('v_and_b32 v%d, 3, v1' % vh0)
        a('v_xor_b32 v%d, v%d, v%d' % (vh0, vh0, vt))
        a('v_mul_u32_u24 v%d, %d, v%d' % (vr2, c.ldw, vr2))
        a('v_lshl_add_u32 v%d, v%d, 4, v%d' % (vh0, vh0, vr2))
        a('s_add_u32 s%d, s%d, s%d' % (sp+2, sp+1, c.s_colh))
        a('v_add_u32 v%d, s%d, v%d' % (vh0, sp+2, vh0))
        ins = [(vh0, 0)]
        for h in range(1, nh):
            a('v_add_u32 v%d, %d, v%d' % (v, h*16*c.ldw - h*1024, vh0)); ins.append((v, h*1024)); v += 1
        a('s_mul_i32 s%d, s%d, %d' % (c.s_ph, sp, nh*1024))
        a('s_add_u32 s%d, s%d, %d' % (c.s_ph, c.s_ph, c.xbytes + c.nfull*BK*128))
        groups.append((c.sW, c.s_kw, c.s_ph, 0, ins))
    n = sum(len(g[4]) for g in groups)
    c.n_dma = n
    if c.order in ('seq', 'lead0'):
        a('s_mov_b32 s%d, 0\ns_mov_b32 s%d, 0' % (c.s_kx, c.s_kw))
    else:
        a('s_mul_i32 s%d, s%d, %d' % (c.s_kx, c.s_rot, nsub*1024))
        a('s_mul_i32 s%d, s%d, %d' % (c.s_kw, c.s_rot, BK*c.ldw))
    s_t = c.s_rh
    a('s_mov_b32 s%d, 1' % s_t)
    a('s_waitcnt lgkmcnt(0)')
    c.srd_hook(a)
    vm = VM(a)
    vm.ops = list(c.vm_init)
    c.vm = vm
    nxg = sum(1 for g in groups if g[0] == c.sX)
    def issue(st, slot_const=None, fetch_next=True, part=None):
        gs = {None: groups, 0: groups[:c.psplit], 1: groups[c.psplit:], 'w': groups[nxg:], 'x': groups[:nxg], 'xb': groups[c.psplit:nxg]}[part]
        for (srd, so, base, lc, ins) in gs:
            if slot_const is None:
                a('s_add_u32 s%d, s%d, s%d' % (sp, base, c.s_slot))
                if lc: a('s_add_u32 m0, s%d, %d' % (sp, lc))
                else: a('s_mov_b32 m0, s%d' % sp)
            else:
                a('s_add_u32 m0, s%d, %d' % (base, lc + slot_const))
            for (vr, io) in ins:
                if not c.no_dma:
                    a('buffer_load_dwordx4 v%d, s[%d:%d], s%d offen%s%s lds' % (vr, srd, srd+3, so, ' offset:%d' % io if io else '', c.xflags if srd == c.sX else c.dma_flags))
                vm.issue(st)
        if part in (0, 'w', 'x'): return
        if fetch_next:
            a('v_readlane_b32 s%d, v%d, s%d' % (c.s_kx, vKX, s_t))
            a('v_readlane_b32 s%d, v%d, s%d' % (c.s_kw, vKW, s_t))
            a('s_add_u32 s%d, s%d, 1' % (s_t, s_t))
        if slot_const is None:
            a('s_add_u32 s%d, s%d, %d' % (c.s_slot, c.s_slot, c.slot))
            a('s_cmp_ge_u32 s%d, %d' % (c.s_slot, c.slot*S))
            a('s_cselect_b32 s%d, 0, s%d' % (c.s_slot, c.s_slot))
    c.p_vfree = v
    if c.stamps: a('s_mov_b32 s72, 0')
    stamp(a, c, 3)
    vm.issue('tab')
    SL = lambda st: ((st + c.slot0) % S) * c.slot
    L = c.lead
    def tabmul():
        vm.wait('tab')
        a('v_mul_u32_u24 v%d, %d, v%d' % (vKW, BK*c.ldw, vKX))
        a('v_mul_u32_u24 v%d, %d, v%d' % (vKX, nsub*1024, vKX))
        a('v_readlane_b32 s%d, v%d, 1' % (c.s_kw, vKW))
        a('s_mov_b32 s%d, 2' % s_t)
    if c.boundary is None:
        issue(0, SL(0), False)
        if c.early_issue: c.early_issue(a, c, vm)
        tabmul()
        a('v_readlane_b32 s%d, v%d, 1' % (c.s_kx, vKX))
        issue(1, SL(1), part=0)
    else:
        if c.boundary0: c.boundary0(a, c, vm)
        issue(0, SL(0), part='w')
        tabmul()
        if not c.w1late: issue(1, SL(1), part='w')
        a('v_readlane_b32 s37, v%d, 1\ns_lshr_b32 s36, s%d, %d\ns_lshr_b32 s37, s37, %d' % (vKX, c.s_kx, (nsub*1024).bit_length()-1, (nsub*1024).bit_length()-1))
        c.boundary(a, c, vm)
        issue(0, SL(0), part='x')
        if c.early_issue: c.early_issue(a, c, vm)
        a('v_readlane_b32 s%d, v%d, 1' % (c.s_kx, vKX))
        issue(1, SL(1), part=0)
    stamp(a, c, 0)
    vm.wait(0)
    if c.pre_b0: c.pre_b0(a, c, vm)
    stamp(a, c, 1)
    a('s_barrier')
    stamp(a, c, 2, True)
    issue(1, SL(1), part=1 if (c.boundary is None or c.w1late) else 'xb')
    if c.post_b0p: c.post_b0p(a, c, vm)
    if c.loop_init: c.loop_init(a, c)
    for st in range(2, L+1):
        if c.loop_extra: c.loop_extra(a, c, vm)
        issue(st, SL(st))
    a('s_mov_b32 s%d, %d' % (c.s_slot, SL(L+1)))
    nsteady = nst - 2 - L
    def it(k, const=False):
        stamp(a, c, 0)
        vm.wait(k)
        if k == nst-1 and c.pre_last_bar: c.pre_last_bar(a, c, vm)
        if k == 1 and c.pre_b1: c.pre_b1(a, c, vm)
        if const and c.wait_hook: c.wait_hook(a, c, vm, k)
        stamp(a, c, 1)
        a('s_barrier')
        stamp(a, c, 2, True)
        if const and c.bar_hook: c.bar_hook(a, c, vm, k)
        if k + L < nst:
            issue(k+L, SL(k+L) if const else None, fetch_next=(k+L+1 < nst))
        if const and c.iter_hook: c.iter_hook(a, c, vm, k)
        if k + L == nst - 1 + c.tail_delay and c.tail_issue: c.tail_issue(a, c, vm)
    if c.unroll:
        for k in range(1, nst): it(k, True)
    else:
        k0 = 1
        if c.peel1: it(1); k0 = 2
        a('s_mov_b32 s%d, %d' % (c.s_cnt, nsteady - (k0-1)))
        a.label(c.name + '_ploop')
        it(k0)
        body = vm.log[-1]
        a('s_sub_u32 s%d, s%d, 1' % (c.s_cnt, c.s_cnt))
        a('s_cmp_lg_u32 s%d, 0' % c.s_cnt)
        a('s_cbranch_scc1 %s_ploop' % c.name)
        keep = a.lines
        for k in range(k0+1, nsteady+1):
            a.lines = []; it(k); assert vm.log[-1] == body
        a.lines = keep
        for k in range(nsteady+1, nst): it(k)
    mark(a, c, 0)
    if c.ptail: c.ptail(a, c, vm)
    if c.stamps and c.gen_dump:
        a('s_mov_b64 exec, -1')
        mark(a, c, 8)
        a('s_waitcnt vmcnt(0)')
        mark(a, c, 9)
        dump_stamps(a, c)
    if lbl_after: a('s_branch %s' % lbl_after)

class VM:
    def __init__(self, a): self.a = a; self.ops = []; self.log = []; self.done = -1
    def issue(self, tag, n=1): self.ops += [tag]*n
    def count(self, tag):
        idx = max(i for i, t in enumerate(self.ops) if t == tag)
        return len(self.ops) - 1 - idx
    def wait(self, tag, extra=''):
        n = self.count(tag)
        idx = len(self.ops) - 1 - n
        if idx <= self.done:
            self.log.append(None)
            if extra: self.a('s_waitcnt' + extra)
            return
        assert n <= 63
        self.done = idx
        self.log.append(n)
        self.a('s_waitcnt vmcnt(%d)%s' % (n, extra))

def xproducer(a, c, lbl_after):
    BK, S = c.BK, c.S
    assert BK == 64 and S == 3
    nst = c.K // BK
    D = 2
    sp = c.s_tmp
    tabs = order_table(nst, c.G, c.order)
    pk = [sum(x << (4*i) for i, x in enumerate(o)) for o in tabs]
    s_ow, s_ox, s_kt = c.s_tab, c.s_tab+2, c.s_nh
    a('s_sub_u32 s%d, s%d, 4' % (sp, c.s_wave))
    a('s_mov_b32 s%d, 0x%x\ns_mov_b32 s%d, 0x%x' % (s_ow, pk[0] & 0xffffffff, s_ow+1, pk[0] >> 32))
    for j in range(1, c.G):
        a('s_cmp_eq_u32 s%d, %d' % (c.s_rot, j))
        a('s_cselect_b32 s%d, 0x%x, s%d\ns_cselect_b32 s%d, 0x%x, s%d' % (s_ow, pk[j] & 0xffffffff, s_ow, s_ow+1, pk[j] >> 32, s_ow+1))
    a('s_mov_b64 s[%d:%d], s[%d:%d]' % (s_ox, s_ox+1, s_ow, s_ow+1))
    v = 2
    vrow, vt, vch = v, v+1, v+2; v += 3
    vXg = v; v += 4
    vXw = v; v += 2
    vTab, vTa = v, v+1; v += 2
    a('v_lshrrev_b32 v%d, 3, v1\nv_and_b32 v%d, 7, v1' % (vrow, vch))
    a('s_lshl_b32 s%d, s%d, 2\ns_add_u32 s%d, s%d, s%d' % (sp+1, c.s_mt, sp+1, sp+1, sp))
    c.s_rb = sp+3
    a('s_mov_b32 s%d, s%d' % (c.s_rb, sp+1))
    a('s_lshl_b32 s%d, s%d, 16' % (sp+1, sp+1))
    a('v_lshlrev_b32 v%d, 11, v%d' % (vt, vrow))
    a('v_lshl_add_u32 v%d, v%d, 4, v%d' % (vt, vch, vt))
    a('v_add_u32 v%d, s%d, v%d' % (vXg, sp+1, vt))
    for i in range(1, 4): a('v_add_u32 v%d, %d, v%d' % (vXg+i, 16384*i, vXg))
    vw0, vw1 = v, v+1; v += 2
    a('v_bfe_u32 v%d, v1, 4, 1\nv_lshlrev_b32 v%d, 1, v%d\nv_xor_b32 v%d, v%d, v%d' % (vt, vt, vt, vt, vt, vch))
    a('v_mul_u32_u24 v%d, %d, v%d' % (vw1, c.ldw, vrow))
    a('s_mul_i32 s%d, s%d, %d' % (sp+1, sp, 16*c.ldw))
    a('s_add_u32 s%d, s%d, s%d' % (sp+2, sp+1, c.s_col0))
    a('v_add_u32 v%d, s%d, v%d' % (vw1, sp+2, vw1))
    a('v_lshl_add_u32 v%d, v%d, 4, v%d' % (vw0, vt, vw1))
    a('v_xor_b32 v%d, 4, v%d' % (vt, vt))
    a('v_lshl_add_u32 v%d, v%d, 4, v%d' % (vw1, vt, vw1))
    a('v_add_u32 v%d, %d, v%d' % (vw1, 8*c.ldw - 1024, vw1))
    a('s_lshl_b32 s%d, s%d, 11\ns_add_u32 s%d, s%d, %d' % (c.s_pw, sp, c.s_pw, c.s_pw, c.xbytes))
    groups = [(c.s_pw, 0, [(vw0, 0), (vw1, 1024)])]
    for q in range(1, c.nfull):
        a('v_add_u32 v%d, %d, v%d\nv_add_u32 v%d, %d, v%d' % (v, q*c.panel_stride, vw0, v+1, q*c.panel_stride, vw1))
        groups.append((c.s_pw, q*8192, [(v, 0), (v+1, 1024)])); v += 2
    if c.half:
        vh0 = v; v += 1
        a('v_lshrrev_b32 v%d, 2, v1' % vh0)
        a('v_mul_u32_u24 v%d, %d, v%d' % (vh0, c.ldw, vh0))
        a('v_lshrrev_b32 v%d, 4, v1\nv_and_b32 v%d, 2, v%d' % (vt, vt, vt))
        a('v_and_b32 v%d, 3, v1\nv_xor_b32 v%d, v%d, v%d' % (vTa, vt, vt, vTa))
        a('v_lshl_add_u32 v%d, v%d, 4, v%d' % (vh0, vt, vh0))
        a('s_add_u32 s%d, s%d, s%d' % (sp+2, sp+1, c.s_colh))
        a('v_add_u32 v%d, s%d, v%d' % (vh0, sp+2, vh0))
        a('s_lshl_b32 s%d, s%d, 10\ns_add_u32 s%d, s%d, %d' % (c.s_ph, sp, c.s_ph, c.s_ph, c.xbytes + c.nfull*8192))
        groups.append((c.s_ph, 0, [(vh0, 0)]))
    nW = sum(len(g[2]) for g in groups)
    a('v_lshrrev_b32 v%d, 4, v1\nv_xor_b32 v%d, v%d, v%d' % (vt, vt, vt, vch))
    a('v_lshlrev_b32 v%d, 4, v%d' % (vt, vt))
    a('v_lshl_add_u32 v%d, v%d, 7, v%d' % (vt, vrow, vt))
    a('s_lshl_b32 s%d, s%d, 12' % (sp+1, sp))
    a('v_add_u32 v%d, s%d, v%d\nv_xor_b32 v%d, 64, v%d' % (vXw, sp+1, vt, vXw+1, vXw))
    a('v_lshlrev_b32 v%d, 6, v%d\nv_add_u32 v%d, %d, v%d' % (vTab, vch, vTab, c.tab_base, vTab))
    v = (v + 3) // 4 * 4
    RAW = v; v += 16*4
    OUT = v; v += 16
    AS = v; v += 16
    TMP = v; v += 8
    RC = v; v += 12
    c.p_vfree = v; c.p_RC = RC; c.p_vrow = vrow; c.p_vch = vch
    vm = VM(a)
    def next_w():
        a('s_and_b32 s%d, s%d, 15' % (s_kt, s_ow))
        a('s_lshr_b64 s[%d:%d], s[%d:%d], 4' % (s_ow, s_ow+1, s_ow, s_ow+1))
        a('s_mul_i32 s%d, s%d, %d' % (c.s_kw, s_kt, BK*c.ldw))
        a('s_lshl_b32 s%d, s%d, 9' % (s_kt, s_kt))
    def nextx():
        a('s_and_b32 s%d, s%d, 15' % (c.s_kx, s_ox))
        a('s_lshr_b64 s[%d:%d], s[%d:%d], 4' % (s_ox, s_ox+1, s_ox, s_ox+1))
        a('s_lshl_b32 s%d, s%d, 7' % (c.s_kx, c.s_kx))
    def loadx1(st, q, i):
        a('buffer_load_dwordx4 v[%d:%d], v%d, s[%d:%d], s%d offen' % (RAW+16*q+4*i, RAW+16*q+4*i+3, vXg+i, c.sX, c.sX+3, c.s_kx))
        vm.issue(('x', st))
    def loadx(st, q):
        nextx()
        for i in range(4): loadx1(st, q, i)
    def dmaw_list(st, slot_const):
        out = []
        for (base, lc, ins) in groups:
            for n_, (vr, io) in enumerate(ins):
                def f(base=base, lc=lc, vr=vr, io=io, first=(n_ == 0)):
                    if first:
                        if slot_const is None:
                            a('s_add_u32 s%d, s%d, s%d' % (sp, base, c.s_slot))
                            if lc: a('s_add_u32 m0, s%d, %d' % (sp, lc))
                            else: a('s_mov_b32 m0, s%d' % sp)
                        else: a('s_add_u32 m0, s%d, %d' % (base, lc + slot_const))
                    a('buffer_load_dwordx4 v%d, s[%d:%d], s%d offen%s lds' % (vr, c.sW, c.sW+3, c.s_kw, ' offset:%d' % io if io else ''))
                    vm.issue(('w', st))
                out.append(f)
        return out
    def dmaw(st, slot_const):
        for f in dmaw_list(st, slot_const): f()
    def readas(skt):
        a('v_add_u32 v%d, s%d, v%d' % (vTa, skt, vTab))
        for e in range(4): a('ds_read_b128 v[%d:%d], v%d offset:%d' % (AS+4*e, AS+4*e+3, vTa, 16*e))
    dot = c.xf.startswith('dot')
    def xform(q, slot_off, side=(), after_unpack=None):
        side = list(side)
        def pop():
            if side: side.pop(0)()
        for i in range(4):
            r = RAW + 16*q + 4*i
            if dot:
                for e in range(4):
                    a('v_dot2_f32_bf16 v%d, v%d, v%d, v%d' % (TMP+2*e, r+e, RC+8+i, RC+2*i+1))
                    a('v_dot2_f32_bf16 v%d, v%d, v%d, v%d' % (TMP+2*e+1, r+e, RC+2*i, RC+2*i+1))
                if after_unpack: after_unpack(i)
            else:
                for e in range(4):
                    a('v_lshlrev_b32 v%d, 16, v%d\nv_and_b32 v%d, 0xffff0000, v%d' % (TMP+2*e, r+e, TMP+2*e+1, r+e))
                if after_unpack: after_unpack(i)
                if c.xf == 'pk5':
                    for e in range(4): a('v_pk_fma_f32 v[%d:%d], v[%d:%d], v[%d:%d], v[%d:%d] op_sel:[0,0,1] op_sel_hi:[1,0,1]' % (TMP+2*e, TMP+2*e+1, TMP+2*e, TMP+2*e+1, RC+2*i, RC+2*i+1, RC+2*i, RC+2*i+1))
                else:
                    for e in range(8): a('v_fma_f32 v%d, v%d, v%d, v%d' % (TMP+e, TMP+e, RC+2*i, RC+2*i+1))
            pop()
            if i == 0: a('s_waitcnt lgkmcnt(0)')
            if c.xf in ('pk5', 'dot4'):
                for e in range(4): a('v_pk_fma_f32 v[%d:%d], v[%d:%d], v[%d:%d], v[%d:%d]' % (TMP+2*e, TMP+2*e+1, TMP+2*e, TMP+2*e+1, AS+2*e, AS+2*e+1, AS+8+2*e, AS+9+2*e))
            else:
                for e in range(8): a('v_fma_f32 v%d, v%d, v%d, v%d' % (TMP+e, TMP+e, AS+e, AS+8+e))
            if i < 3: pop()
            for e in range(4): a('v_cvt_pk_bf16_f32 v%d, v%d, v%d' % (OUT+4*i+e, TMP+2*e, TMP+2*e+1))
            a('ds_write_b128 v%d, v[%d:%d] offset:%d' % (vXw + i % 2, OUT+4*i, OUT+4*i+3, slot_off + i*1024))
        while side: pop()
    s_kt0, s_kt1 = c.s_px, c.s_cnt
    a('s_waitcnt lgkmcnt(0)')
    c.srd_hook(a)
    loadx(0, 2)
    next_w(); a('s_mov_b32 s%d, s%d' % (s_kt0, s_kt))
    dmaw(0, 0)
    c.pstats_issue(a, c, vm)
    loadx(1, 3); loadx(2, 0)
    next_w(); a('s_mov_b32 s%d, s%d' % (s_kt1, s_kt))
    dmaw(1, c.slot)
    loadx(3, 1)
    c.pstats_finish(a, c, vm)
    if dot:
        for i in range(4): a('v_cvt_pk_bf16_f32 v%d, v%d, v%d' % (RC+2*i, RC+2*i, RC+2*i))
        for i in range(4): a('v_and_b32 v%d, 0xffff, v%d\nv_and_b32 v%d, 0xffff0000, v%d' % (RC+8+i, RC+2*i, RC+2*i, RC+2*i))
    for i in range(4): a('v_mul_f32 v%d, -v%d, v%d' % (RC+2*i+1, RC+2*i+1, RC+2*i))
    if c.pprio: a('s_setprio %d' % c.pprio)
    if c.stamps: a('s_mov_b32 s72, 0')
    stamp(a, c, 0)
    a('s_barrier')
    stamp(a, c, 3)
    readas(s_kt0)
    vm.wait(('x', 0))
    xform(2, 0)
    a('s_waitcnt lgkmcnt(0)')
    vm.wait(('w', 0))
    stamp(a, c, 1)
    a('s_barrier')
    stamp(a, c, 2, True)
    readas(s_kt1)
    vm.wait(('x', 1))
    assert c.slot + 4096 <= 65536
    xform(3, c.slot)
    a('s_mov_b32 s%d, %d' % (c.s_slot, 2*c.slot))
    a('v_add_u32 v%d, %d, v%d\nv_add_u32 v%d, %d, v%d' % (vXw, 2*c.slot, vXw, vXw+1, 2*c.slot, vXw+1))
    a('s_mov_b32 s%d, %d' % (sp+1, c.slot))
    def iteration(k, first=False):
        if k + 2 < nst:
            next_w()
            readas(s_kt)
            dl = dmaw_list(k+2, None)
            dl.pop(0)()
            more = k + 2 + D < nst
            if more:
                nextx()
                if c.loop_extra: dl.append(lambda: c.loop_extra(a, c, vm))
            vm.wait(('x', k+2))
            stamp(a, c, 0)
            xform(k % 2, 0, dl, (lambda i: loadx1(k+2+D, k % 2, i)) if more else None)
            stamp(a, c, 3)
            if k + 3 == nst: c.tail_issue(a, c, vm)
            a('s_add_u32 s%d, s%d, s%d' % (c.s_slot, c.s_slot, sp+1))
            a('s_cmp_ge_u32 s%d, %d' % (c.s_slot, c.slot*S))
            a('s_cselect_b32 s%d, 0, s%d' % (c.s_slot, c.s_slot))
            a('s_cselect_b32 s%d, %d, s%d' % (sp, -2*c.slot, sp+1))
            a('v_add_u32 v%d, s%d, v%d\nv_add_u32 v%d, s%d, v%d' % (vXw, sp, vXw, vXw+1, sp, vXw+1))
        vm.wait(('w', k+1), ' lgkmcnt(0)')
        stamp(a, c, 1)
        a('s_barrier')
        stamp(a, c, 2, True)
    nsteady = nst - 2 - D
    assert nsteady % 2 == 0
    if c.loop_init: c.loop_init(a, c)
    a('s_waitcnt lgkmcnt(0)')
    iteration(0); iteration(1)
    a('s_mov_b32 s%d, %d' % (c.s_cnt, nsteady // 2 - 1))
    a.label(c.name + '_ploop')
    n0 = len(vm.log)
    iteration(2); iteration(3)
    body = vm.log[n0:]
    a('s_sub_u32 s%d, s%d, 1' % (c.s_cnt, c.s_cnt))
    a('s_cmp_lg_u32 s%d, 0' % c.s_cnt)
    a('s_cbranch_scc1 %s_ploop' % c.name)
    keep = a.lines;
    for k in range(4, nsteady, 2):
        a.lines = []; n0 = len(vm.log)
        iteration(k); iteration(k+1)
        assert vm.log[n0:] == body, (vm.log[n0:], body)
    a.lines = keep
    for k in range(nsteady, nst-1): iteration(k)
    if c.stamps: dump_stamps(a, c)
    c.ptail(a, c, vm)
    a('s_branch %s' % lbl_after)

def table(a, c):
    a.lines.append('.p2align 6')
    a.label(c.name + '_tab')
    for o in c.tabs:
        a.lines.append('.byte ' + ','.join(str(x) for x in (o + [0]*64)[:64]))
    a.lines.append('.p2align 2')

def consumer(a, c):
    BK, S = c.BK, c.S
    nsub = BK // 32
    nst = c.K // BK
    r4 = c.rows4
    TMb = c.BM // (4 if r4 else 2) // 16
    sp = c.s_tmp
    ks = c.ksplit
    va = c.v_addr
    vX, vX2, vW0, vW1, vW2, vW3, vX3, vX4 = [va+i for i in range(8)]
    t0, t1 = c.v_tmp, c.v_tmp+1
    nat = c.xform
    natw = c.xform or c.natw
    rotx = c.half or ks
    a('s_lshr_b32 s%d, s%d, 1' % (c.s_rh, c.s_wave))
    a('s_and_b32 s%d, s%d, 1' % (c.s_nh, c.s_wave))
    a('s_mul_i32 s%d, s%d, %d' % (sp, c.s_wave if r4 else c.s_rh, TMb*nsub*1024))
    if ks:
        a('s_lshl_b32 s%d, s%d, 10\ns_add_u32 s%d, s%d, s%d' % (sp+1, c.s_nh, sp, sp, sp+1))
    if nat:
        a('v_bfe_u32 v%d, v1, 1, 3\nv_lshrrev_b32 v%d, 4, v1\nv_xor_b32 v%d, v%d, v%d' % (t0, t1, t0, t0, t1))
        a('v_and_b32 v%d, 15, v1\nv_lshlrev_b32 v%d, 7, v%d' % (t1, t1, t1))
        a('v_lshl_add_u32 v%d, v%d, 4, v%d\nv_add_u32 v%d, s%d, v%d' % (vX, t0, t1, vX, sp, vX))
    else:
        a('v_lshl_add_u32 v%d, v1, 4, s%d' % (vX, sp))
    addr = [vX, vW0, vW1]
    if rotx:
        a('s_mul_i32 s%d, s%d, %d' % (sp, c.s_nh, 2*nsub*1024))
        a('v_subrev_u32 v%d, s%d, v%d' % (vX2, sp, vX))
        a('v_add_u32 v%d, s%d, v%d' % (vX, sp, vX))
        addr.append(vX2)
    if nat:
        a('v_xor_b32 v%d, 64, v%d' % (vX3, vX)); addr.append(vX3)
        if rotx: a('v_xor_b32 v%d, 64, v%d' % (vX4, vX2)); addr.append(vX4)
    if natw:
        a('v_bfe_u32 v%d, v1, 2, 2\nv_lshrrev_b32 v%d, 4, v1\nv_lshl_add_u32 v%d, v%d, 3, v%d' % (t0, t1, t0, t1, t0))
    else:
        a('v_lshrrev_b32 v%d, 2, v1' % t0)
    a('v_bfe_u32 v%d, v1, 3, 2' % t1)
    if ks or r4: a('v_lshlrev_b32 v%d, 5, v%d' % (vW0, t1))
    else:
        a('s_lshl_b32 s%d, s%d, 1' % (sp, c.s_nh))
        a('v_xor_b32 v%d, s%d, v%d' % (vW0, sp, t1))
        a('v_lshlrev_b32 v%d, 5, v%d' % (vW0, vW0))
    a('v_lshl_add_u32 v%d, v%d, 7, v%d' % (vW0, t0, vW0))
    a('v_and_b32 v%d, 3, v1' % t1)
    a('v_lshlrev_b32 v%d, 3, v%d' % (t1, t1))
    if ks:
        a('s_lshl_b32 s%d, s%d, 12\ns_add_u32 s%d, s%d, %d' % (sp, c.s_nh, sp, sp, c.xbytes))
        a('v_add3_u32 v%d, v%d, v%d, s%d' % (vW0, vW0, t1, sp))
    else:
        a('v_add_u32 v%d, %d, v%d' % (t1, c.xbytes, t1))
        a('v_add_u32 v%d, v%d, v%d' % (vW0, vW0, t1))
    a('v_xor_b32 v%d, 32, v%d' % (vW1, vW0))
    if ks or r4:
        a('v_xor_b32 v%d, 64, v%d' % (vW2, vW0))
        a('v_xor_b32 v%d, 96, v%d' % (vW3, vW0))
        addr += [vW2, vW3]
    if c.half:
        a('v_bfe_u32 v%d, v1, 4, 1' % vW2)
        a('v_lshlrev_b32 v%d, 5, v%d' % (vW2, vW2))
        a('v_lshl_add_u32 v%d, v%d, 6, v%d' % (vW2, t0, vW2))
        a('v_add_u32 v%d, v%d, v%d' % (vW2, vW2, t1))
        a('v_add_u32 v%d, %d, v%d' % (vW2, c.nfull*BK*128, vW2))
        a('v_xor_b32 v%d, 32, v%d' % (vW3, vW2))
        addr += [vW2, vW3]
    assert c.xbytes % 128 == 0 and c.slot % 128 == 0
    sm = 2 if ks else 1
    def xrd(j, sub):
        hi = rotx and j >= 2
        if nat: return ((vX4 if hi else vX3) if sub % 2 else (vX2 if hi else vX)), j*2048
        return (vX2 if hi else vX), (j*nsub+sub)*1024
    tf = 512 if natw else 2048
    if ks or r4:
        wfr = [(vW0+u, 0, 4096, tf) for u in range(4)]
        mf = [(j, i) for i in range(TMb) for j in range(4)]
    else:
        wfr = [(vW0 + j % 2, (j//2)*BK*128, 4096, tf) for j in range(2*c.nfull)]
        mf = [(j, i) for j in range(len(wfr)) for i in range(TMb)]
    if c.half:
        wfr += [(vW2, 0, 2048, tf//2), (vW3, 0, 2048, tf//2)]
        mf += [(2*c.nfull + u, i) for u in range(2) for i in range(2)]
    nWf = len(wfr)
    nacc = len(mf) * 4
    KS = c.KS
    fs1 = (TMb + nWf) * 4
    fsz = fs1 * KS
    c.v_acc = c.v_frag + 2*fsz
    c.v_free = c.v_acc + nacc
    if c.pre_hook: c.pre_hook(a, c)
    if c.acc_init: c.acc_init(a, c)
    elif not c.first_c:
        for i in range(nacc): a('v_mov_b32 v%d, 0' % (c.v_acc+i))
    def xreg(s, q, j): return c.v_frag + s*fsz + q*fs1 + j*4
    def wreg(s, q, j): return c.v_frag + s*fsz + q*fs1 + TMb*4 + j*4
    def reads(s, step):
        r = []
        for q in range(KS):
            sub = (step*KS + q)*sm
            xs = ['ds_read_b128 v[%d:%d], v%d offset:%d' % ((xreg(s,q,j), xreg(s,q,j)+3) + xrd(j, sub)) for j in range(TMb)]
            ws = []
            for j, (v, base, ss, ts) in enumerate(wfr):
                for t in range(2):
                    w = wreg(s,q,j) + 2*t
                    ws.append('ds_read_b64_tr_b16 v[%d:%d], v%d offset:%d' % (w, w+1, v, base + sub*ss + t*ts))
            r += (xs[:1] + ws + xs[1:]) if (ks or r4) else (ws[:2] + xs + ws[2:])
        if c.no_lds: r = []
        return r
    def mfmas(s, first=False):
        r = []
        for q in range(KS):
            for k, (j, i) in enumerate(mf):
                t = c.v_acc + k*4
                A_, B_ = wreg(s,q,j), xreg(s,q,i)
                if j in c.swap_frags: A_, B_ = B_, A_
                C_ = 'v[%d:%d]' % (t, t+3)
                if first and q == 0: C_ = c.first_c(c, j)
                r.append('v_mfma_f32_16x16x32_bf16 v[%d:%d], v[%d:%d], v[%d:%d], %s' % (t, t+3, A_, A_+3, B_, B_+3, C_))
        if c.no_mfma: r = r[:1]
        return r
    def interleave(ms, rs, extra=()):
        out = []
        k = 0; ex = list(extra)
        for i, m in enumerate(ms):
            out.append(m)
            if k < len(rs):
                for _ in range(c.rpm):
                    if k < len(rs): out.append(rs[k]); k += 1
            elif ex:
                out.append(ex.pop(0))
                if ex and ex[0].startswith('s_'): out.append(ex.pop(0))
        out += rs[k:] + ex
        return out
    def advance():
        return ['s_add_u32 s%d, s%d, 1' % (c.s_slot, c.s_slot),
             's_cmp_eq_u32 s%d, %d' % (c.s_slot, S),
             's_cselect_b32 s%d, 0, s%d' % (c.s_slot, c.s_slot),
             's_cselect_b32 s%d, %d, s%d' % (sp, -(S-1)*c.slot, sp+1)] + ['v_add_u32 v%d, s%d, v%d' % (v, sp, v) for v in addr]
    nstep = nsub // KS // sm
    spb = 1 if nstep % 2 == 0 else 2
    a('s_mov_b32 s%d, %d' % (c.s_slot, c.slot0))
    if c.slot0:
        for v in addr: a('v_add_u32 v%d, %d, v%d' % (v, c.slot0*c.slot, v))
    a('s_mov_b32 s%d, %d' % (sp+1, c.slot))
    if c.pre_hook2: c.pre_hook2(a, c)
    if c.stamps: a('s_mov_b32 s72, 0')
    stamp(a, c, 1)
    a('s_barrier')
    stamp(a, c, 2, True)
    if c.post_b0: c.post_b0(a, c)
    for r in reads(0, 0): a(r)
    if c.post_b0b: c.post_b0b(a, c, len(reads(0, 0)))
    if nstep == 1:
        for l in advance(): a(l)
    par = [0]
    def stage(last, first=False, hook=False):
        for step in range(nstep):
            s = par[0]; par[0] ^= 1
            a('s_waitcnt lgkmcnt(0)')
            if hook: c.step_hook(a, c, step, lambda j: wreg(s, 0, j))
            if step < nstep-1:
                ex = advance() if (step == nstep-2 and not last) else []
                if first and step == 0 and c.first_extra: ex = ex + c.first_extra(c)
                for l in interleave(mfmas(s, first and step == 0), reads(1-s, step+1), ex): a(l)
            elif not last:
                ms = mfmas(s)
                nb = c.mfma_before_bar
                for m in ms[:nb]: a(m)
                stamp(a, c, 1)
                a('s_barrier')
                stamp(a, c, 2, True)
                for l in interleave(ms[nb:], reads(1-s, 0) + (c.post_b1(c) if (first and c.post_b1) else []), advance() if nstep == 1 else []): a(l)
            else:
                for l in interleave(mfmas(s), c.last_reads(c) if c.last_reads else []): a(l)
    npre = 0
    if c.first_c:
        assert nstep % 2 == 0
        stage(False, True); npre = 1
        if c.after_first: c.after_first(a, c)
    if c.step_hook:
        a('s_mov_b32 s%d, %d' % (c.s_cnt, c.hook_stages))
        a.label(c.name + '_hloop')
        stage(False, hook=True)
        a('s_sub_u32 s%d, s%d, 1' % (c.s_cnt, c.s_cnt))
        a('s_cmp_lg_u32 s%d, 0' % c.s_cnt)
        a('s_cbranch_scc1 %s_hloop' % c.name)
        npre += c.hook_stages
    spb *= c.cunroll
    nloop = (nst - 1 - npre - (1 if c.late_hook else 0)) // spb
    rem = (nst - 1 - npre) - nloop*spb
    a('s_mov_b32 s%d, %d' % (c.s_cnt, nloop))
    a('.p2align 3')
    a.label(c.name + '_cloop')
    for _ in range(spb): stage(False)
    a('s_sub_u32 s%d, s%d, 1' % (c.s_cnt, c.s_cnt))
    a('s_cmp_lg_u32 s%d, 0' % c.s_cnt)
    a('s_cbranch_scc1 %s_cloop' % c.name)
    for r_ in range(rem):
        if c.late_hook and r_ == rem-1: c.late_hook(a, c)
        stage(False)
    stage(True)
    if c.stamps and c.gen_dump:
        stamp(a, c, 1)
        mark(a, c, 0)
    if ks:
        EB = c.slot * (nst % S)
        if c.slot < 32768:
            EB = c.slot * S; c.lds = EB + 32768
        assert c.lds <= 163840
        a('s_lshl_b32 s%d, s%d, 13\ns_add_u32 s%d, s%d, %d' % (sp, c.s_wave, sp, sp, EB))
        a('v_lshl_add_u32 v%d, v1, 4, s%d' % (t0, sp))
        a('s_xor_b32 s%d, s%d, 1\ns_lshl_b32 s%d, s%d, 13\ns_add_u32 s%d, s%d, %d' % (sp, c.s_wave, sp, sp, sp, sp, EB))
        a('v_lshl_add_u32 v%d, v1, 4, s%d' % (t1, sp))
        for k in range(8): a('ds_write_b128 v%d, v[%d:%d] offset:%d' % (t0, c.v_acc+32+4*k, c.v_acc+35+4*k, 1024*k))
        if c.xch_pre: c.xch_pre(a, c)
        a('s_waitcnt lgkmcnt(0)')
        mark(a, c, 1)
        a('s_barrier')
        mark(a, c, 2)
        for k in range(8): a('ds_read_b128 v[%d:%d], v%d offset:%d' % (c.v_acc+32+4*k, c.v_acc+35+4*k, t1, 1024*k))
        n0 = len(a.lines)
        if c.xch_post: c.xch_post(a, c)
        npost = len(a.lines) - n0
        for k in range(8):
            a('s_waitcnt lgkmcnt(%d)' % min(15, 7-k+npost))
            for r in (0, 2): a('v_pk_add_f32 v[%d:%d], v[%d:%d], v[%d:%d]' % (c.v_acc+4*k+r, c.v_acc+4*k+r+1, c.v_acc+4*k+r, c.v_acc+4*k+r+1, c.v_acc+32+4*k+r, c.v_acc+33+4*k+r))
        nacc = 32
    c.TMb, c.nWf, c.nacc = TMb, nWf, nacc

def config(name, K, BM, nfull, half, BK, S, ldw, panel_stride, **kw):
    c = G()
    c.name, c.K, c.BM, c.nfull, c.half, c.BK, c.S, c.ldw, c.panel_stride = name, K, BM, nfull, half, BK, S, ldw, panel_stride
    c.xbytes = BM * BK * 2
    c.slot = c.xbytes + nfull * BK * 128 + (BK * 64 if half else 0)
    c.lds = c.slot * S
    c.sX, c.sW = 8, 12
    c.s_mt, c.s_nt, c.s_wave, c.s_col0, c.s_colh = 40, 41, 42, 43, 44
    c.s_kx, c.s_kw, c.s_slot, c.s_px, c.s_pw, c.s_ph, c.s_cnt, c.s_rh, c.s_nh = 45, 46, 47, 48, 49, 50, 51, 52, 53
    c.s_tmp = 54
    c.v_addr = 4; c.v_tmp = 2; c.v_frag = 12; c.ksplit = False; c.xform = False; c.xf = 'dot4'; c.pprio = 0; c.pre_hook2 = None
    c.w1late = False; c.cunroll = 1; c.after_first = None; c.mirror = None; c.wait_hook = None; c.bar_hook = None; c.post_b0p = None; c.step_hook = None; c.pre_b0 = None; c.xKG = None; c.panel_sreg = None; c.boundary0 = None; c.xflags = ''; c.peel1 = False; c.vm_init = []; c.pre_b1 = None; c.post_b1 = None; c.slot0 = 0; c.boundary = None; c.first_c = None; c.post_b0 = None; c.post_b0b = None; c.first_extra = None; c.rows4 = False; c.last_reads = None; c.pre_last_bar = None; c.xch_pre = None; c.xch_post = None; c.unroll = False; c.iter_hook = None; c.acc_init = None; c.natw = False; c.early_issue = None; c.tail_issue = None; c.ptail = None; c.tail_delay = 0; c.loop_extra = None; c.loop_init = None; c.late_hook = None; c.psplit = 1; c.stamps = False; c.gen_dump = False; c.dma_flags = ''; c.KS = 1; c.rpm = 1; c.mfma_before_bar = 0; c.G = 4; c.order = 'lead'; c.lead = S-1; c.s_rot = 39; c.s_tab = 66; c.tab_base = c.lds; c.srd_hook = None; c.swap_frags = (); c.pre_hook = None
    c.no_dma = c.no_lds = c.no_mfma = False
    for k, v in kw.items(): setattr(c, k, v)
    return c
```

```python
import sys
from asmgen import Asm
import gemm, gen
from gen import *
FL = 0x80000
FL8 = 8
MS = 7
ROW = 256 << MS
XB = PHIQ
FL7 = 7 * ROW
opt.plan = 'lqowab'

UT = 0xE8000
def rt(a, i):
    if not opt.ts: return
    r = 11 if getattr(a, 'cons', False) else 255
    a('s_memrealtime s[98:99]\ns_memtime s[100:101]\ns_waitcnt lgkmcnt(0)\nv_writelane_b32 v%d, s98, %d\nv_writelane_b32 v%d, s100, %d' % (r, i, r, 32+i))

def tile_head(a, c, xm, xn, colmul, ptrs):
    for s, o in ptrs: a('s_load_dwordx2 s[%d:%d], s[0:1], %d' % (s, s+1, o))
    c.dma_flags = opt.wflags
    c.w1late = c.name in opt.w1late
    c.cunroll = opt.cunroll; c.mfma_before_bar = opt.mbb
    if opt.stamp == c.name: c.stamps = True; c.gen_dump = True
    bm = 16 // xm
    a('s_and_b32 s36, s2, 7\ns_lshr_b32 s37, s2, 3')
    a('s_and_b32 s38, s36, %d\ns_lshr_b32 s36, s36, %d' % (bm-1, bm.bit_length()-1))
    a('s_and_b32 s39, s37, %d\ns_lshr_b32 s37, s37, %d' % (xm-1, xm.bit_length()-1))
    a('s_mul_i32 s38, s38, %d\ns_add_u32 s%d, s38, s39' % (xm, c.s_mt))
    a('s_mul_i32 s36, s36, %d\ns_add_u32 s%d, s36, s37' % (xn, c.s_nt))
    a('s_add_u32 s39, s39, s37\ns_and_b32 s%d, s39, %d' % (c.s_rot, c.G-1))
    a('s_mul_i32 s%d, s%d, %d' % (c.s_col0, c.s_nt, colmul))
    if c.half:
        a('s_and_b32 s36, s%d, 1\ns_cmp_eq_u32 s36, 0' % c.s_nt)
        a('s_cselect_b32 s36, 384, 0\ns_cselect_b32 s37, 0, 64')
        a('s_add_u32 s%d, s%d, s36\ns_add_u32 s%d, s%d, s37' % (c.s_colh, c.s_col0, c.s_col0, c.s_col0))

NW = FL + 0
MPT = 0xF0000
def nonce(a):
    a('s_load_dword s3, s[6:7], %d' % NW)
def nonce2(a):
    a('s_mul_i32 s3, s3, 0x9e3779b1\ns_add_u32 s3, s3, 0x7f4a7c15')

def psync(a, tag, sig, s_sig, s_mem, s_wait, n=16, part=None, mask=None):
    if part in (None, 0):
        srd(a, 84, 6, FL, 9*ROW)
        gs = MS if s_mem is None else MS + 4
        a('s_lshl_b32 s88, s%d, %d\ns_add_u32 s88, s88, %d\ns_lshl_b32 s89, s%d, %d\ns_add_u32 s89, s89, %d' % (s_sig, gs, sig*ROW, s_wait, gs, sig*ROW))
        if s_mem is not None: a('s_lshl_b32 s90, s%d, %d\ns_add_u32 s88, s88, s90' % (s_mem, MS))
        a('v_lshlrev_b32 v252, %d, v1' % MS)
        a('v_mov_b32 v253, s3\ns_mov_b32 s90, 20000')
        a('s_barrier')
        rt(a, 2*sig if sig < 8 else 18)
        a('s_cmp_lg_u32 s42, 4\ns_cbranch_scc1 %s_s5' % tag)
        a('s_mov_b64 exec, 1')
        a('buffer_store_dword v253, v252, s[84:87], s88 offen sc1')
        a('s_mov_b64 exec, -1')
        a.label(tag + '_s5')
    if part == 0: return
    a('s_cmp_lg_u32 s42, 5\ns_cbranch_scc1 %s_sx' % tag)
    if mask is None: a('s_mov_b64 exec, 0x%x' % ((1 << n) - 1))
    else:
        mask(a)
        a('s_mov_b32 exec_lo, s91\ns_mov_b32 exec_hi, 0')
    a('buffer_load_dword v253, v252, s[84:87], s89 offen sc1')
    a.label(tag + '_sp')
    a('buffer_load_dword v254, v252, s[84:87], s89 offen sc1')
    a('s_sub_u32 s90, s90, 1\ns_waitcnt vmcnt(1)\nv_cmp_ne_u32 vcc, s3, v253')
    a('s_cmp_eq_u64 vcc, 0\ns_cbranch_scc1 %s_sy' % tag)
    a('buffer_load_dword v253, v252, s[84:87], s89 offen sc1')
    a('s_waitcnt vmcnt(1)\nv_cmp_ne_u32 vcc, s3, v254')
    a('s_cmp_eq_u64 vcc, 0\ns_cbranch_scc1 %s_sy' % tag)
    a('s_cmp_lg_u32 s90, 0\ns_cbranch_scc1 %s_sp' % tag)
    a.label(tag + '_sy')
    a('s_mov_b64 exec, -1')
    if part != 2: rt(a, 2*sig+1 if sig < 8 else 19)
    a.label(tag + '_sx')
    if part != 2: a('s_barrier')

def early_sync(c, tag, sig, first, full=None):
    if not opt.esync: first = full
    def b1(a): psync(a, tag, sig, None, None, None, part=1, mask=first)
    if opt.esync: c.pre_b0 = lambda a, c, vm: psync(a, tag + 'z', sig, None, None, None, part=2, mask=full)
    return b1

def chain(*fs):
    fs = [f for f in fs if f]
    def g(*x):
        for f in fs: f(*x)
    return g
BAR = lambda a, c: a('s_barrier')

def ln1_body(a, c, TB):
    SS = TB + 8192
    a('s_lshl_b32 s20, s%d, 3\ns_lshr_b32 s21, s%d, 1\ns_add_u32 s20, s20, s21\ns_and_b32 s21, s%d, 1' % (c.s_mt, c.s_nt, c.s_nt))
    a('v_lshrrev_b32 v2, 6, v0\nv_and_b32 v3, 15, v0\nv_bfe_u32 v4, v0, 4, 2')
    a('v_lshlrev_b32 v5, 11, v3\nv_lshl_add_u32 v5, v2, 8, v5\nv_lshl_add_u32 v5, v4, 4, v5')
    a('s_lshl_b32 s22, s20, 15\ns_lshl_b32 s23, s21, 10\ns_add_u32 s23, s23, s22\ns_xor_b32 s25, s23, 1024')
    a('s_waitcnt lgkmcnt(0)')
    nonce(a)
    srd(a, 8, 34, 0, 0x400000)
    a('s_barrier')
    D = 32; M = 144
    for u in range(4): a('buffer_load_dwordx4 v[%d:%d], v5, s[8:11], s23 offen offset:%d%s' % (D+4*u, D+4*u+3, 64*u, opt.xflags))
    for u in range(4): a('buffer_load_dwordx4 v[%d:%d], v5, s[8:11], s25 offen offset:%d%s' % (M+4*u, M+4*u+3, 64*u, opt.xflags))
    srd(a, 12, 6, MPT, 65536); srd(a, 28, 6, H1F, 0x400000)
    a('v_lshlrev_b32 v7, 4, v0\ns_lshl_b32 s24, s21, 12\nv_mov_b32 v12, 0x3f803f80')
    a('v_lshlrev_b32 v6, 5, v3\nv_add_u32 v6, %d, v6\nv_lshl_add_u32 v10, v2, 3, v6' % SS)
    for q in range(8):
        a('s_waitcnt vmcnt(%d)' % (7-q))
        for e in range(4):
            r = (D if q < 4 else M) + 4*(q % 4) + e
            a('v_dot2_f32_bf16 v%d, v%d, v12, %s' % (16+e, r, '0' if q == 0 else 'v%d' % (16+e)))
            a('v_dot2_f32_bf16 v%d, v%d, v%d, %s' % (20+e, r, r, '0' if q == 0 else 'v%d' % (20+e)))
    a('v_add_f32 v16, v16, v17\nv_add_f32 v18, v18, v19\nv_add_f32 v20, v20, v21\nv_add_f32 v22, v22, v23\nv_add_f32 v16, v16, v18\nv_add_f32 v17, v20, v22')
    xg_sum(a, [16, 17], [18, 19])
    a('ds_write_b64 v10, v[16:17]')
    def mloads():
        for p in range(4):
            for w, ch in enumerate((1, 0)):
                a('s_add_u32 s26, s24, %d' % (p*16384 + ch*8192))
                a('buffer_load_dwordx4 v[%d:%d], v7, s[12:15], s26 offen sc1' % (M+8*p+4*w, M+8*p+4*w+3))
    if opt.earlym: mloads()
    X = 48
    for i in range(16): unpack(a, X+2*i, X+2*i+1, D+i)
    a('s_waitcnt lgkmcnt(0)')
    nonce2(a)
    rt(a, 20)
    a('s_mov_b32 s27, 20000\ns_barrier')
    rt(a, 21)
    a('ds_read_b128 v[16:19], v6\nds_read_b128 v[20:23], v6 offset:16')
    if opt.earlym: a('s_branch ln1_chk')
    a.label('ln1_poll')
    mloads()
    a.label('ln1_chk')
    a('s_sub_u32 s27, s27, 1\ns_waitcnt vmcnt(0)')
    tg = [M+2*i+1 for i in range(16)]
    for op, d in (('v_min3_u32', 24), ('v_max3_u32', 25)):
        a('%s v%d, v%d, v%d, v%d' % (op, d, tg[0], tg[1], tg[2]))
        for i in range(3, 15, 2): a('%s v%d, v%d, v%d, v%d' % (op, d, d, tg[i], tg[i+1]))
        a('%s v%d, v%d, v%d, v%d' % (op, d, d, tg[15], tg[15]))
    a('v_xor_b32 v24, s3, v24\nv_xor_b32 v25, s3, v25\nv_or_b32 v24, v24, v25\nv_cmp_ne_u32 vcc, 0, v24')
    a('s_cmp_eq_u64 vcc, 0\ns_cbranch_scc1 ln1_ok\ns_cmp_lg_u32 s27, 0\ns_cbranch_scc1 ln1_poll')
    a.label('ln1_ok')
    rt(a, 22)
    if opt.ts: a('v_writelane_b32 v11, s27, 23')
    a('v_lshrrev_b32 v6, 2, v0\nv_lshlrev_b32 v6, 6, v6\nv_and_b32 v7, 3, v0\nv_lshl_add_u32 v6, v7, 3, v6\nv_add_u32 v6, %d, v6' % TB)
    for e in (0, 2, 4, 6): a('v_add_f32 v%d, v%d, v%d\nv_add_f32 v%d, v%d, v%d' % (M+e, M+e, M+8+e, M+16+e, M+16+e, M+24+e))
    for k_, e in enumerate((0, 2, 4, 6)): a('v_add_f32 v%d, v%d, v%d' % (24+k_, M+e, M+16+e))
    M = 24
    rndn(a, [M, M+1, M+2, M+3], [M+4, M+5])
    a('v_add_f32 v%d, 1.0, v%d\nv_add_f32 v%d, 1.0, v%d' % (M, M, M+1, M+1))
    rndn(a, [M, M+1], [M+4])
    a('ds_write_b64 v6, v[%d:%d]\nds_write_b64 v6, v[%d:%d] offset:32' % (M, M+1, M+2, M+3))
    a('s_waitcnt lgkmcnt(2)')
    a('v_pk_add_f32 v[16:17], v[16:17], v[18:19]\nv_pk_add_f32 v[20:21], v[20:21], v[22:23]\nv_pk_add_f32 v[16:17], v[16:17], v[20:21]')
    a('v_mul_f32 v9, 0x3a800000, v16\nv_mov_b32 v18, 0x3a800000\nv_mul_f32 v8, v9, v9\nv_fma_f32 v8, v17, v18, -v8')
    a('v_max_f32 v8, 0, v8\nv_add_f32 v8, 0x3727c5ac, v8\nv_rsq_f32 v8, v8')
    a('v_lshlrev_b32 v6, 10, v2\nv_lshl_add_u32 v6, v4, 6, v6\nv_add_u32 v6, %d, v6' % TB)
    a('v_lshlrev_b32 v5, 12, v2\nv_lshl_add_u32 v5, v1, 4, v5\ns_lshl_b32 s23, s21, 14\ns_add_u32 s23, s23, s22')
    a('s_waitcnt lgkmcnt(0)\ns_barrier')
    T = 80; X = 48
    for u in range(4):
        for e in range(4): a('ds_read_b128 v[%d:%d], v6 offset:%d' % (T+16*u+4*e, T+16*u+4*e+3, 256*u+16*e))
    a('v_mul_f32 v9, -v9, v8')
    for i in range(0, 32, 2): a('v_pk_fma_f32 v[%d:%d], v[%d:%d], v[8:9], v[8:9] op_sel:[0,0,1] op_sel_hi:[1,0,1]' % (X+i, X+i+1, X+i, X+i+1))
    for u in range(4):
        a('s_waitcnt lgkmcnt(%d)' % (12-4*u))
        for e in range(0, 8, 2): a('v_pk_fma_f32 v[%d:%d], v[%d:%d], v[%d:%d], v[%d:%d]' % (X+8*u+e, X+8*u+e+1, X+8*u+e, X+8*u+e+1, T+16*u+e, T+16*u+e+1, T+16*u+8+e, T+16*u+9+e))
        for e in range(4): a('v_cvt_pk_bf16_f32 v%d, v%d, v%d' % (D+4*u+e, X+8*u+2*e, X+8*u+2*e+1))
        a('buffer_store_dwordx4 v[%d:%d], v5, s[28:31], s23 offen offset:%d' % (D+4*u, D+4*u+3, 1024*u))
    a('s_waitcnt vmcnt(0)\ns_barrier')

KB, RW = 160, 176
def o_loads(a):
    srd(a, 16, 6, KVP, 0x200000); srd(a, 20, 6, ZP, 0x20000)
    a('s_lshr_b32 s60, s42, 2\ns_lshl_b32 s61, s41, 1\ns_add_u32 s60, s60, s61\ns_and_b32 s61, s42, 3')
    a('s_lshl_b32 s62, s60, 16\ns_lshl_b32 s63, s61, 10\ns_add_u32 s62, s62, s63')
    a('s_lshl_b32 s63, s60, 12\ns_lshl_b32 s64, s61, 6\ns_add_u32 s63, s63, s64')
    a('v_lshlrev_b32 v156, 4, v1\nv_lshrrev_b32 v157, 4, v1\nv_lshlrev_b32 v157, 4, v157\nv_and_b32 v158, 15, v1\nv_lshl_add_u32 v157, v158, 8, v157')
    a('buffer_load_dwordx4 v[%d:%d], v157, s[20:23], s63 offen sc1' % (KB+8, KB+11))
    for m in range(16):
        a('s_lshl_b32 s64, s40, 1\ns_add_u32 s64, s64, %d\ns_and_b32 s64, s64, 15\ns_lshl_b32 s64, s64, 12\ns_add_u32 s64, s64, s62' % m)
        a('buffer_load_dwordx4 v[%d:%d], v156, s[16:19], s64 offen sc1' % (RW+4*m, RW+4*m+3))
    return ['oz'] + [('ok', m) for m in range(16)]
def o_reduce(a, vm):
    S = 244
    a('v_mov_b32 v%d, 0\nv_mov_b32 v%d, 0\nv_mov_b32 v%d, 0\nv_mov_b32 v%d, 0' % (S, S+1, S+4, S+5))
    a('v_bfe_u32 v157, v1, 2, 2\nv_lshrrev_b32 v158, 4, v1\nv_cmp_eq_u32 vcc, v157, v158')
    a('v_and_b32 v157, 1, v1\nv_lshlrev_b32 v157, 4, v157\nv_mov_b32 v158, 0x3f80\nv_lshlrev_b32 v157, v157, v158\nv_cndmask_b32 v157, 0, v157, vcc')
    a('v_and_b32 v158, 2, v1\nv_cmp_eq_u32 vcc, 0, v158\nv_cndmask_b32 v%d, 0, v157, vcc\nv_cndmask_b32 v%d, v157, v%d, vcc' % (S+2, S+3, S))
    vm.wait('oz')
    dpp_sum(a, [KB+8+e for e in range(4)], DPP16)
    for m in range(16):
        vm.wait(('ok', m))
        for h in range(2):
            d = KB + 4*h; A_ = S + 2 - 2*h
            a('v_mfma_f32_16x16x32_bf16 v[%d:%d], v[%d:%d], v[%d:%d], %s' % (d, d+3, A_, A_+3, RW+4*m, RW+4*m+3, '0' if m == 0 else 'v[%d:%d]' % (d, d+3)))
    a('s_lshr_b32 s60, s42, 2\ns_mul_i32 s60, s60, 6144\ns_bfe_u32 s61, s42, 0x10001\ns_lshl_b32 s61, s61, 10\ns_add_u32 s60, s60, s61\ns_and_b32 s61, s42, 1')
    a('s_lshl_b32 s62, s61, 11\ns_add_u32 s62, s62, s60\ns_lshl_b32 s61, s61, 3\ns_add_u32 s60, s60, s61')
    a('v_add_u32 v157, s60, v156\nv_add_u32 v158, s62, v156')
    for e in range(2): a('v_cvt_pk_bf16_f32 v%d, v%d, v%d' % (KB+12+e, KB+8+2*e, KB+9+2*e))
    a('ds_write_b64 v157, v[%d:%d] offset:4096' % (KB+12, KB+13))
    for e in range(4): a('v_cvt_pk_bf16_f32 v%d, v%d, v%d' % (RW+e, KB+2*e, KB+2*e+1))
    a('ds_write_b128 v158, v[%d:%d]' % (RW, RW+3))
    a('s_waitcnt lgkmcnt(0)\ns_barrier')
def o_compute(a, PHI):
    AF = RW; R = AF + 24
    srd(a, 20, 6, OF, 0x400000)
    a('s_and_b32 s60, s42, 1\ns_mul_i32 s60, s60, 6144\nv_add_u32 v157, s60, v156')
    for t in range(3):
        for gam in range(2): a('ds_read_b128 v[%d:%d], v157 offset:%d' % (AF+(t*2+gam)*4, AF+(t*2+gam)*4+3, (t*2+gam)*1024))
    a('s_bfe_u32 s60, s42, 0x10001\ns_lshl_b32 s61, s93, 1\ns_add_u32 s60, s60, s61\ns_lshl_b32 s60, s60, 17\ns_lshl_b32 s61, s58, 10\ns_add_u32 s60, s60, s61')
    a('s_waitcnt lgkmcnt(0)')
    for gam in range(2):
        for i in range(4):
            for t in range(3):
                d = R + (i*3+t)*4; A_ = AF+(t*2+gam)*4; B_ = PHI[(i, gam)]
                a('v_mfma_f32_16x16x32_bf16 v[%d:%d], v[%d:%d], v[%d:%d], %s' % (d, d+3, A_, A_+3, B_, B_+3, '0' if gam == 0 else 'v[%d:%d]' % (d, d+3)))
    dens = [R+(i*3+2)*4 for i in range(4)]
    for d in dens: a('v_add_f32 v%d, 0x358637bd, v%d' % (d, d))
    for d in dens: a('v_rcp_f32 v%d, v%d' % (d, d))
    for i in range(4):
        xs = list(range(R+i*12, R+i*12+8))
        for x in xs[::2]: a('v_pk_mul_f32 v[%d:%d], v[%d:%d], v[%d:%d] op_sel_hi:[1,0]' % (x, x+1, x, x+1, dens[i], dens[i]+1))
        for e in range(4): a('v_cvt_pk_bf16_f32 v%d, v%d, v%d' % (KB+4*i+e, xs[2*e], xs[2*e+1]))
        a('buffer_store_dwordx4 v[%d:%d], v156, s[20:23], s60 offen' % (KB+4*i, KB+4*i+3))
        a('s_add_u32 s60, s60, 32768')
    a('s_waitcnt vmcnt(0)')

def phase0(a, GS):
    V = 8; T = 48; CT = GS + 2048
    a('s_and_b32 s60, s2, 7\ns_lshl_b32 s60, s60, 3\ns_bfe_u32 s61, s2, 0x30003\ns_add_u32 s60, s60, s61\ns_lshr_b32 s61, s2, 6')
    a('s_lshl_b32 s62, s61, 9\ns_mul_i32 s63, s61, %d\ns_lshl_b32 s64, s60, 6\ns_add_u32 s63, s63, s64' % (256*12288))
    a('v_and_b32 v2, 255, v0\nv_mov_b32 v5, %d\nv_mov_b32 v6, 0\nds_write_b32 v5, v6\ns_waitcnt lgkmcnt(0)' % CT)
    srd(a, 20, 74, 0, 2048); srd(a, 24, 76, 0, 1024*12288)
    vm = gemm.VM(a)
    gemv_issue(a, 4, 2, V, 20, 24, 62, 63, vm, R=4)
    a('s_barrier')
    nonce(a)
    def cpf():
        a('s_lshr_b32 s62, s2, 3\ns_cmp_eq_u32 s42, 7\ns_cselect_b32 s62, s62, 8\ns_min_u32 s62, s62, 8')
        code_pf(a, 'ph0', 'ph0_done', 'code_end', 62, 8, 250, 1, 64)
        vm.issue('cpf')
    if not opt.cpflate: cpf()
    srd(a, 16, 6, MPT, 65536)
    gemv_math(a, 4, V, T, vm, 58, R=4)
    a('v_lshrrev_b32 v3, 4, v2\nv_lshlrev_b32 v3, 7, v3\nv_and_b32 v4, 3, v1\nv_lshl_add_u32 v3, v4, 5, v3\nv_add_u32 v3, %d, v3' % GS)
    a('ds_write_b128 v3, v[%d:%d]\nds_write_b128 v3, v[%d:%d] offset:16' % (T+8, T+11, T+12, T+15))
    a('v_and_b32 v4, 31, v1\nv_lshrrev_b32 v3, 5, v1\nv_lshlrev_b32 v3, 10, v3\nv_lshl_add_u32 v3, v4, 2, v3\nv_add_u32 v3, %d, v3' % GS)
    a('s_lshl_b32 s60, s60, 8\ns_lshl_b32 s61, s61, 14\ns_add_u32 s60, s60, s61\nv_lshlrev_b32 v4, 3, v4\nv_mov_b32 v6, 1\ns_waitcnt lgkmcnt(0)')
    nonce2(a)
    a('s_mov_b64 exec, 1\nds_add_rtn_u32 v6, v5, v6\ns_mov_b64 exec, -1\ns_waitcnt lgkmcnt(0)')
    a('v_readfirstlane_b32 s59, v6\ns_cmp_lg_u32 s59, 3\ns_cbranch_scc1 ph0_nl')
    for p in range(8): a('ds_read_b32 v%d, v3 offset:%d' % (V+p, 128*p))
    a('v_mov_b32 v%d, s3\ns_waitcnt lgkmcnt(0)' % (V+9))
    for s_ in (4, 2):
        for p in range(s_): a('v_add_f32 v%d, v%d, v%d' % (V+p, V+p, V+p+s_))
    a('v_add_f32 v%d, v%d, v%d\nv_add_f32 v%d, v%d, v%d' % (V+8, V, V+1, V+2, V, V+1))
    a('v_permlane32_swap_b32 v%d, v%d\nv_add_f32 v%d, v%d, v%d' % (V+8, V+2, V+8, V+8, V+2))
    a('s_mov_b64 exec, 0xffffffff\nbuffer_store_dwordx2 v[%d:%d], v4, s[16:19], s60 offen\ns_mov_b64 exec, -1' % (V+8, V+9))
    a.label('ph0_nl')
    rt(a, 0)
    if opt.cpflate: cpf()
    srd(a, 16, 6, ZP, FL + 9*ROW - ZP)
    a('s_lshl_b32 s62, s2, 9\ns_lshl_b32 s63, s2, 11\ns_add_u32 s63, s63, %d\ns_cmp_eq_u32 s42, 4\ns_cselect_b32 s62, s62, s63\ns_cselect_b32 s63, 3, 15\ns_cmp_gt_u32 s42, 5\ns_cselect_b32 s62, 0x7000000, s62' % (FL - ZP))
    a('v_min_u32 v249, s63, v1\nv_lshlrev_b32 v249, 7, v249')
    a('buffer_load_dword v251, v249, s[16:19], s62 offen')
    a('s_lshl_b32 s62, s2, 8')
    for q in range(4): a('s_add_u32 s63, s62, %d\ns_load_dword s59, s[32:33], s63' % (64*q))
    a('s_and_b32 s62, s2, 31\ns_lshl_b32 s62, s62, 6\ns_load_dword s59, s[30:31], s62')
    a('s_min_u32 s62, s2, 111\ns_lshl_b32 s62, s62, 6\ns_load_dword s59, s[34:35], s62')
    if opt.wlate & 1: a('s_barrier')
    a.label('ph0_done')

def ph_qkv(P, C, st):
    c = gemm.config('qkv', 1024, 128, 3, False, 64, 3, 6144, 2048, swap_frags=(4, 5), natw=True, tail_delay=opt.td0)
    WPH = c.lds; FLG = WPH + 4096
    EB = c.slot
    IMG = EB; VB = EB + 32768; QB = VB + 16384; GV = QB + 16384
    s_hd = 58; sL = 60
    tile_head(P, c, 8, 4, 128, [(74, P_C), (76, P_WMOD), (6, P_WS), (4, P_WQKV), (32, P_WPHI), (78, P_WO), (34, P_B1), (30, P_B2)])
    phase0(P, 2*c.slot + 4096)
    c.srd_hook = lambda a: [srd(a, *x) for x in [(8, 6, H1F, 0x400000), (12, 4, 0, 1024*6144)]]
    def boundary0(a, c, vm):
        if not opt.wlate & 1: a('s_barrier')
        a('s_barrier')
        psync(a, 'f1', 1, c.s_mt, c.s_nt, c.s_mt, part=0)
    def boundary(a, c, vm):
        if not opt.wlate & 1: boundary0(a, c, vm)
        early_sync(c, 'f1', 1, lambda a: a('s_lshr_b32 s36, s36, 3\ns_lshr_b32 s37, s37, 3\ns_lshl_b32 s91, 0x5555, s36\ns_lshl_b32 s37, 0x5555, s37\ns_or_b32 s91, s91, s37'))(a)
    c.boundary = boundary
    if opt.wlate & 1: c.boundary0 = boundary0
    if opt.xsc1: c.xflags = ' sc1'
    def early_issue(a, c, vm):
        V = c.p_vfree
        srd(a, 16, 32, 0, 65536)
        a('v_lshrrev_b32 v%d, 3, v1\nv_and_b32 v%d, 2, v%d\nv_xor_b32 v%d, v1, v%d\nv_lshlrev_b32 v%d, 4, v%d' % (V, V, V, V, V, V, V))
        a('s_sub_u32 s59, s%d, 4\ns_lshl_b32 s59, s59, 10\ns_add_u32 m0, s59, %d\ns_lshl_b32 s61, s%d, 12\ns_add_u32 s59, s59, s61' % (c.s_wave, WPH, c.s_nt))
        a('buffer_load_dwordx4 v%d, s[16:19], s59 offen lds' % V)
        vm.issue('wphi')
    def tail_issue(a, c, vm):
        V = (c.p_vfree + 3)//4*4
        srd(a, 20, 74, 0, 2048); srd(a, 24, 76, 0, 1024*12288)
        a('s_lshr_b32 s61, s2, 6\ns_lshl_b32 s62, s61, 9\ns_mul_i32 s63, s61, %d' % (256*12288))
        a('s_and_b32 s64, s2, 63\ns_lshl_b32 s65, s64, 7\ns_add_u32 s63, s63, s65\ns_add_u32 s63, s63, 4096')
        a('v_and_b32 v%d, 255, v0' % (V+38))
        srd(a, 16, 34, 0, 7168)
        a('s_min_u32 s59, s2, 64\ns_mul_i32 s59, s59, 448\nv_lshlrev_b32 v249, 1, v%d\nbuffer_load_ushort v248, v249, s[16:19], s59 offen' % (V+38))
        vm.issue('b1')
        gemv_issue(a, 8, V+38, V, 20, 24, 62, 63, vm)
        if opt.pf2:
            srd(a, 28, 78, 0, 1024*2048)
            a('v_lshlrev_b32 v%d, 11, v%d\nv_lshl_add_u32 v%d, v%d, 7, v%d' % (V+39, c.p_vrow, V+39, c.p_vch, V+39))
            a('s_lshr_b32 s62, s2, 3\ns_lshl_b32 s62, s62, 2\ns_add_u32 s62, s62, s%d\ns_sub_u32 s62, s62, 4\ns_lshl_b32 s62, s62, 14' % c.s_wave)
            a('s_bfe_u32 s63, s2, 0x10002\ns_lshl_b32 s63, s63, 10\ns_add_u32 s62, s62, s63')
            a('buffer_load_dword v%d, v%d, s[28:31], s62 offen' % (V+37, V+39))
            vm.issue('pf')
        if opt.pf5:
            a('s_load_dwordx2 s[30:31], s[0:1], %d' % P_W1)
            a('v_lshrrev_b32 v%d, 4, v1\nv_mul_u32_u24 v%d, 7168, v%d\nv_and_b32 v%d, 15, v1\nv_min_u32 v%d, 13, v%d\nv_lshl_add_u32 v%d, v%d, 7, v%d' % (V+39, V+39, V+39, 250, 250, 250, V+39, 250, V+39))
            a('s_lshr_b32 s62, s2, 3\ns_mul_i32 s62, s62, %d\ns_sub_u32 s63, s42, 4\ns_lshl_b32 s63, s63, 2\ns_add_u32 s62, s62, s63\ns_and_b32 s63, s2, 1\ns_lshl_b32 s63, s63, 9\ns_add_u32 s62, s62, s63\ns_mul_i32 s62, s62, 7168' % opt.pf5)
            a('s_bfe_u32 s63, s2, 0x20001\ns_mul_i32 s63, s63, 1792\ns_add_u32 s62, s62, s63\ns_waitcnt lgkmcnt(0)')
            srd(a, 28, 30, 0, 1024*7168)
            a('buffer_load_dword v%d, v%d, s[28:31], s62 offen' % (V+37, V+39))
            vm.issue('pf')
    PHI = {}
    def ptail(a, c, vm):
        V = (c.p_vfree + 3)//4*4
        QF = V + 40; P_ = QF + 16; E = P_ + 32; MX = E + 32; MN = MX + 4; W = MN + 4; T = W + 8
        assert E + 32 <= 156 and P_ >= 48
        srd(a, 16, 6, UT, 32768)
        a('s_min_u32 s59, s2, 64\ns_lshl_b32 s59, s59, 11\nv_lshlrev_b32 v249, 1, v249\nv_mov_b32 v247, 0')
        vm.wait('b1')
        a('v_lshlrev_b32 v248, 16, v248\nbuffer_store_dword v247, v249, s[16:19], s59 offen sc1\nbuffer_store_dword v248, v249, s[16:19], s59 offen offset:1024 sc1')
        vm.issue('ut', 2)
        srd(a, 24, 6, MP2, 65536)
        a('s_mov_b32 s%d, 0x%x' % (sL, LOG2E))
        a('s_and_b32 s%d, s%d, 1' % (c.s_nh, c.s_wave))
        wphi_read(a, W, c.s_nh, WPH, 2, 3)
        a('s_lshl_b32 s59, s%d, 1\ns_add_u32 s%d, s59, s%d' % (c.s_nt, s_hd, c.s_nh))
        a('s_lshl_b32 s61, s61, 14\ns_lshl_b32 s64, s64, 8\ns_add_u32 s64, s64, s61')
        a('s_sub_u32 s61, s%d, 4\ns_lshl_b32 s62, s61, 12\ns_add_u32 s62, s62, %d' % (c.s_wave, QB))
        a('v_lshl_add_u32 v3, v1, 4, s62')
        if opt.eprio: a('s_setprio %d' % opt.eprio)
        a('s_barrier')
        for i in range(4): a('ds_read_b128 v[%d:%d], v3 offset:%d' % (QF+4*i, QF+4*i+3, 1024*i))
        a('s_waitcnt lgkmcnt(0)')
        if not opt.gv_late: pass
        def sink(i, sg, B): PHI[(i, sg)] = B
        feat(a, QF, P_, E, MX, MN, W, sL, sink)
        rt(a, 14)
        a('s_setprio 0')
        vm.wait('ut')
        psync(a, 'f2', 2, c.s_nt, c.s_mt, c.s_nt, part=0)
        gemv_math(a, 8, V, T, vm, 59)
        a('v_lshrrev_b32 v2, 4, v%d\nv_lshlrev_b32 v2, 8, v2\nv_and_b32 v5, 7, v1\nv_lshl_add_u32 v2, v5, 5, v2\nv_add_u32 v2, %d, v2' % (V+38, GV))
        a('ds_write_b128 v2, v[%d:%d]\nds_write_b128 v2, v[%d:%d] offset:16' % (T+8, T+11, T+12, T+15))
        a('v_mov_b32 v5, %d\nv_mov_b32 v6, 1\ns_waitcnt lgkmcnt(0)' % (FLG+16))
        a('s_mov_b64 exec, 1\nds_add_rtn_u32 v6, v5, v6\ns_mov_b64 exec, -1\ns_waitcnt lgkmcnt(0)')
        a('v_readfirstlane_b32 s59, v6\ns_cmp_lg_u32 s59, 3\ns_cbranch_scc1 qkv_gvx')
        a('v_lshlrev_b32 v5, 2, v1\nv_add_u32 v6, %d, v5' % GV)
        for p in range(16): a('ds_read_b32 v%d, v6 offset:%d' % (T+p, 256*p))
        a('s_and_b32 s59, s2, 63\ns_lshl_b32 s59, s59, 2\ns_lshr_b32 s61, s2, 6\ns_add_u32 s59, s59, s61\ns_lshl_b32 s59, s59, %d\ns_add_u32 s59, s59, %d' % (MS, FL7))
        a('s_waitcnt lgkmcnt(0)')
        for s_ in (8, 4, 2, 1):
            for p in range(s_): a('v_add_f32 v%d, v%d, v%d' % (T+p, T+p, T+p+s_))
        a('buffer_store_dword v%d, v5, s[24:27], s64 offen sc1' % T)
        a('v_mov_b32 v6, s3\ns_waitcnt vmcnt(0)\ns_mov_b64 exec, 1')
        a('buffer_store_dword v6, v252, s[84:87], s59 offen sc1')
        a('s_mov_b64 exec, -1')
        a.label('qkv_gvx')
        rt(a, 15)
        vm.wait('pf') if opt.pf2 else None
        psync(a, 'f2', 2, c.s_nt, c.s_mt, c.s_nt, part=1)
        a('s_mov_b32 s93, s%d\ns_mov_b32 s97, s%d' % (c.s_mt, c.s_nt))
        a('s_or_b32 s59, s2, s42\ns_cmp_lg_u32 s59, 4\ns_cbranch_scc1 qkv_nn\ns_mov_b32 s59, %d\nv_mov_b32 v253, s3\ns_mov_b64 exec, 1' % (NW - FL))
        a('buffer_store_dword v253, v252, s[84:87], s59 offen sc1\ns_mov_b64 exec, -1')
        a.label('qkv_nn')
        st['vm_init'] = o_loads(a)
    c.first_c = lambda c, j: '0'
    c.unroll = opt.unroll
    c.early_issue, c.tail_issue, c.ptail = early_issue, tail_issue, ptail
    gemm.producer(P, c, None)
    st['PHI'] = PHI
    a = C
    tile_head(a, c, 8, 4, 128, [(6, P_WS), (34, P_X)])
    ln1_body(a, c, 2*c.slot)
    rt(a, 1)
    for x in [(24, 6, KVP, 0x200000), (28, 6, ZP, 0x20000)]: srd(a, *x)
    def zero_flags(a, c):
        a('v_lshlrev_b32 v2, 2, v1\nv_add_u32 v2, %d, v2\nv_mov_b32 v3, 0\nds_write_b32 v2, v3\ns_waitcnt lgkmcnt(0)' % FLG)
    c.pre_hook2 = chain(zero_flags, BAR)
    c.post_b0 = lambda a, c: rt(a, 2)
    gemm.consumer(a, c)
    if c.stamps: gemm.dump_stamps(a, c)
    rt(a, 3)
    a('s_lshl_b32 s%d, s%d, 1\ns_add_u32 s%d, s%d, s%d' % (s_hd, c.s_nt, s_hd, s_hd, c.s_nh))
    wphi_read(a, c.v_free, c.s_nh, WPH, 2, 3)
    W = c.v_free
    ACC = lambda j, i, r=0: c.v_acc + (j*4+i)*4 + r
    QF = 12; P_ = 28; E = 60
    MX = W + 8; MN = MX + 4; T = MN + 4
    a('s_mov_b32 s%d, 0x%x' % (sL, LOG2E))
    a('v_lshlrev_b32 v4, 4, v1')
    a('s_lshl_b32 s61, s%d, 12\ns_add_u32 s61, s61, %d' % (c.s_wave, QB))
    a('v_add_u32 v3, s61, v4')
    for i in range(4):
        for h in range(2):
            for e in range(2): a('v_cvt_pk_bf16_f32 v%d, v%d, v%d' % (P_+4*i+2*h+e, ACC(h, i, 2*e), ACC(h, i, 2*e+1)))
        a('ds_write_b128 v3, v[%d:%d] offset:%d' % (P_+4*i, P_+4*i+3, 1024*i))
    a('s_waitcnt lgkmcnt(0)\ns_barrier')
    a('s_lshl_b32 s61, s%d, 1\ns_add_u32 s61, s61, s%d\ns_lshl_b32 s61, s61, 12\ns_add_u32 s61, s61, %d' % (c.s_nh, c.s_rh, VB))
    a('v_add_u32 v3, s61, v4')
    for gam in range(2):
        for dt in range(2):
            q = c.v_acc + (gam*2+dt)*4
            for h in range(2):
                for e in range(2): a('v_cvt_pk_bf16_f32 v%d, v%d, v%d' % (q+2*h+e, ACC(4+dt, 2*gam+h, 2*e), ACC(4+dt, 2*gam+h, 2*e+1)))
            a('ds_write_b128 v3, v[%d:%d] offset:%d' % (q, q+3, (gam*2+dt)*1024))
    for i in range(4):
        for h in range(2):
            for e in range(2): a('v_cvt_pk_bf16_f32 v%d, v%d, v%d' % (QF+4*i+2*h+e, ACC(2+h, i, 2*e), ACC(2+h, i, 2*e+1)))
    def hrow(dst, row, t):
        a('v_lshrrev_b32 v%d, 1, v%d\nv_and_b32 v%d, 3, v%d\nv_lshlrev_b32 v%d, 2, v%d' % (dst, row, dst, dst, dst, dst))
        a('v_and_b32 v%d, 1, v%d\nv_or_b32 v%d, v%d, v%d' % (t, row, dst, dst, t))
        a('v_lshrrev_b32 v%d, 2, v%d\nv_and_b32 v%d, 2, v%d\nv_or_b32 v%d, v%d, v%d' % (t, row, t, t, dst, dst, t))
    WA = T; RA = WA + 4
    a('v_and_b32 v2, 15, v1\nv_lshrrev_b32 v3, 4, v1')
    hrow(6, 2, 5)
    a('v_xor_b32 v6, v6, v3\nv_lshlrev_b32 v2, 7, v2')
    a('s_lshl_b32 s61, s%d, 13\ns_add_u32 s61, s61, %d\nv_add_u32 v2, s61, v2' % (c.s_wave, IMG))
    for u in range(4): a('v_xor_b32 v5, %d, v6\nv_lshl_add_u32 v%d, v5, 3, v2' % (4*u, WA+u))
    a('v_lshrrev_b32 v2, 2, v1\nv_and_b32 v3, 3, v1')
    hrow(6, 2, 5)
    a('v_xor_b32 v6, v6, v3\nv_lshlrev_b32 v2, 7, v2')
    a('s_lshl_b32 s61, s%d, 13\ns_add_u32 s61, s61, %d\nv_add_u32 v2, s61, v2' % (c.s_nh, IMG))
    a('s_lshl_b32 s61, s%d, 3\nv_xor_b32 v6, s61, v6' % c.s_rh)
    for u in range(2): a('v_xor_b32 v5, %d, v6\nv_lshl_add_u32 v%d, v5, 3, v2' % (4*u, RA+u))
    def sink(i, sg, B):
        for ft in range(2): a('ds_write_b64 v%d, v[%d:%d] offset:%d' % (WA+2*sg+ft, B+2*ft, B+2*ft+1, i*2048))
    feat(a, QF, P_, E, MX, MN, W, sL, sink)
    a('s_waitcnt lgkmcnt(0)')
    a('s_lshl_b32 s61, s%d, 2\ns_add_u32 s61, s61, %d\nv_mov_b32 v2, s61\nv_mov_b32 v3, 1\nds_write_b32 v2, v3\nv_xor_b32 v2, 8, v2' % (c.s_wave, FLG))
    a.label('qkv_spin')
    a('ds_read_b32 v3, v2\ns_waitcnt lgkmcnt(0)\nv_readfirstlane_b32 s61, v3\ns_cmp_eq_u32 s61, 0\ns_cbranch_scc1 qkv_spin')
    AF = 12; VF = 44; ONE = 76; KV = ACC(2, 0)
    a('s_lshl_b32 s61, s%d, 13\ns_add_u32 s61, s61, %d\nv_add_u32 v3, s61, v4' % (c.s_nh, VB))
    for gp in range(4):
        rhp, gam = gp // 2, gp % 2
        for ftl in range(2):
            for t in range(2):
                q = AF + (ftl*4+gp)*4 + 2*t
                a('ds_read_b64_tr_b16 v[%d:%d], v%d offset:%d' % (q, q+1, RA+ftl, rhp*16384 + (gam*32 + t*16)*128))
        for dt in range(2):
            q = VF + (dt*4+gp)*4
            a('ds_read_b128 v[%d:%d], v3 offset:%d' % (q, q+3, (gp*2+dt)*1024))
    for e in range(4): a('v_mov_b32 v%d, 0x3f803f80' % (ONE+e))
    for gp in range(4):
        a('s_waitcnt lgkmcnt(%d)' % min(12, 6*(3-gp)))
        for ftl in range(2):
            for t in range(3):
                d = KV + (ftl*3+t)*4; A_ = AF + (ftl*4+gp)*4
                B_ = VF + (t*4+gp)*4 if t < 2 else ONE
                a('v_mfma_f32_16x16x32_bf16 v[%d:%d], v[%d:%d], v[%d:%d], %s' % (d, d+3, A_, A_+3, B_, B_+3, '0' if gp == 0 else 'v[%d:%d]' % (d, d+3)))
    a('s_lshl_b32 s61, s%d, 4\ns_add_u32 s61, s61, s%d' % (s_hd, c.s_mt))
    a('s_lshl_b32 s63, s61, 12\ns_lshl_b32 s64, s%d, 11\ns_add_u32 s63, s63, s64' % c.s_rh)
    a('s_lshl_b32 s61, s61, 8\ns_lshl_b32 s64, s%d, 7\ns_add_u32 s61, s61, s64' % c.s_rh)
    a('v_and_b32 v2, 15, v1\nv_cmp_eq_u32 vcc, 0, v2')
    for ftl in range(2):
        for e in range(4): a('v_cvt_pk_bf16_f32 v%d, v%d, v%d' % (AF+4*ftl+e, KV+(e//2)*12+4*ftl+2*(e%2), KV+(e//2)*12+4*ftl+2*(e%2)+1))
        a('buffer_store_dwordx4 v[%d:%d], v4, s[24:27], s63 offen offset:%d' % (AF+4*ftl, AF+4*ftl+3, ftl*1024))
    a('s_and_saveexec_b64 s[64:65], vcc')
    for ftl in range(2):
        d = KV + (ftl*3+2)*4
        a('buffer_store_dwordx4 v[%d:%d], v1, s[28:31], s61 offen offset:%d' % (d, d+3, ftl*64))
    a('s_mov_b64 exec, s[64:65]')
    rt(a, 4)
    a('s_waitcnt vmcnt(0)\ns_barrier\ns_barrier')
    rt(a, 5)
    vm = gemm.VM(a); vm.ops = o_loads(a)
    o_reduce(a, vm)
    if not opt.glate: return c
    a('s_barrier')
    rt(a, 6)
    return c

def poll7(a, tag, offs, nw=4, wave=5):
    if wave is not None: a('s_cmp_lg_u32 s42, %d\ns_cbranch_scc1 %s_x' % (wave, tag))
    a('s_mov_b32 s90, 20000')
    a.label(tag + '_p')
    for q, so in enumerate(offs): a('s_load_dwordx%d s[%d:%d], s[6:7], s%d glc' % (nw, 68+nw*q, 68+nw*q+nw-1, so))
    a('s_sub_u32 s90, s90, 1\ns_waitcnt lgkmcnt(0)')
    n = nw*len(offs)
    for q in range(n): a('s_xor_b32 s%d, s%d, s3' % (68+q, 68+q))
    for q in range(1, n): a('s_or_b32 s68, s68, s%d' % (68+q))
    a('s_cbranch_scc0 %s_x' % tag)
    a('s_cmp_lg_u32 s90, 0\ns_cbranch_scc1 %s_p' % tag)
    a.label(tag + '_x')

def gates(a, c, chunks, bias, SC, V):
    nv = len(chunks)
    srd(a, 20, 6, MP2, 65536)
    a('v_lshrrev_b32 v%d, 4, v1\nv_lshlrev_b32 v%d, 14, v%d\nv_and_b32 v%d, 15, v1\nv_lshl_add_u32 v%d, v%d, 4, v%d' % (V+1, V+1, V+1, V+2, V+1, V+2, V+1))
    for q, ch in enumerate(chunks):
        a('s_lshl_b32 s61, s%d, 8\ns_add_u32 s61, s61, %d' % (c.s_nt, (ch-2)*4096))
        a('buffer_load_dwordx4 v[%d:%d], v%d, s[20:23], s61 offen sc1' % (V+4+4*q, V+7+4*q, V+1))
    if bias:
        srd(a, 20, bias, 0, 2048)
        a('v_lshlrev_b32 v%d, 3, v%d\ns_lshl_b32 s61, s%d, 7' % (V+3, V+2, c.s_nt))
        a('buffer_load_dwordx2 v[%d:%d], v%d, s[20:23], s61 offen' % (V+16, V+17, V+3))
    a('v_lshlrev_b32 v%d, 4, v%d\nv_add_u32 v%d, %d, v%d\ns_waitcnt vmcnt(0)' % (V+2, V+2, V+2, SC, V+2))
    xs = list(range(V+4, V+4+4*nv))
    xg_sum(a, xs, list(range(V+20, V+20+4*nv)))
    rndn(a, xs, list(range(V+20, V+26)))
    for q, ch in enumerate(chunks):
        if ch == 4:
            for e in range(4): a('v_add_f32 v%d, 1.0, v%d' % (V+4+4*q+e, V+4+4*q+e))
            rndn(a, list(range(V+4+4*q, V+8+4*q)), [V+20, V+21])
    if bias:
        for e in range(2): unpack(a, V+8+2*e, V+9+2*e, V+16+e)
        for e in range(4): a('v_mul_f32 v%d, v%d, v%d' % (V+8+e, V+8+e, V+4+e))
    for q in range(nv + (1 if bias else 0)): a('ds_write_b128 v%d, v[%d:%d] offset:%d' % (V+2, V+4+4*q, V+7+4*q, 256*q))
    a('s_waitcnt lgkmcnt(0)')

def res_phase(c, xsrd):
    XT = 147456
    def tail(a, c, vm):
        V = c.p_vfree
        srd(a, 16, *xsrd)
        a('v_xor_b32 v%d, v%d, v%d\nv_lshlrev_b32 v%d, 4, v%d\nv_lshl_add_u32 v%d, v%d, 11, v%d' % (V, c.p_vrow, c.p_vch, V, V, V, c.p_vrow, V))
        a('s_sub_u32 s59, s%d, 4\ns_lshl_b32 s60, s%d, 2\ns_add_u32 s60, s60, s59\ns_lshl_b32 s60, s60, 16\ns_lshl_b32 s61, s%d, 7\ns_add_u32 s60, s60, s61' % (c.s_wave, c.s_mt, c.s_nt))
        a('s_lshl_b32 s59, s59, 12\ns_add_u32 s59, s59, %d' % XT)
        for i in range(4):
            a('s_add_u32 m0, s59, %d' % (1024*i))
            a('buffer_load_dwordx4 v%d, s[16:19], s60 offen lds' % V)
            a('s_add_u32 s60, s60, 16384')
        vm.issue('op', 4)
    XA = lambda c: c.v_free + 16 + 48
    c.XA = XA
    def rd(a, c):
        GA = c.v_free + 16
        a('v_lshrrev_b32 v3, 4, v1\nv_lshlrev_b32 v3, 4, v3\nv_add_u32 v3, %d, v3' % XT)
        for q in range(2):
            for j in range(4): a('ds_read_b128 v[%d:%d], v3 offset:%d' % (GA+16*q+4*j, GA+16*q+4*j+3, 256*q + 64*j))
    c.gate_rd = rd
    def pre(a, c):
        a('v_and_b32 v2, 7, v1\nv_lshrrev_b32 v3, 5, v1\nv_xor_b32 v2, v2, v3\nv_lshlrev_b32 v2, 4, v2\nv_bfe_u32 v3, v1, 4, 1\nv_lshl_add_u32 v2, v3, 3, v2')
        a('v_and_b32 v3, 15, v1\nv_lshl_add_u32 v2, v3, 7, v2\ns_lshl_b32 s61, s%d, 12\ns_add_u32 s61, s61, %d\nv_add_u32 v%d, s61, v2' % (c.s_wave, XT, XA(c)))
        for j in range(1, 4): a('v_xor_b32 v%d, %d, v%d' % (XA(c)+j, 32*j, XA(c)))
    def last_reads(c):
        XR = c.v_free
        return ['ds_read_b64 v[%d:%d], v%d offset:%d' % (XR+8*i+2*j, XR+8*i+2*j+1, XA(c)+j, 2048*i) for i in range(2) for j in range(4)]
    c.pre_hook, c.last_reads, c.pre_last_bar = pre, last_reads, (lambda a, c, vm: vm.wait('op'))
    c.first_c = lambda c, j: '0'
    return tail

P2 = lambda x: 'v[%d:%d]' % (x, x+1)
def res_out(a, c, sOut, bias=False):
    XR = c.v_free; GA = XR + 16
    ACC = lambda j, i, r=0: c.v_acc + (i*4+j)*4 + r
    a('s_lshl_b32 s58, s%d, 2\ns_add_u32 s58, s58, s%d' % (c.s_mt, c.s_wave))
    a('s_lshl_b32 s60, s58, 16\ns_lshl_b32 s61, s%d, 7\ns_add_u32 s60, s60, s61' % c.s_nt)
    U = 12; PK = 44
    a('v_and_b32 v2, 15, v1\nv_lshlrev_b32 v2, 11, v2\nv_bfe_u32 v3, v1, 4, 1\nv_lshl_add_u32 v2, v3, 5, v2\nv_lshrrev_b32 v3, 5, v1\nv_lshl_add_u32 v2, v3, 4, v2')
    a('s_add_u32 s61, s60, 32768')
    a('s_waitcnt lgkmcnt(0)')
    def part(i, store=True):
        for j in range(4):
            for e in range(2): unpack(a, U+16*i+4*j+2*e, U+16*i+4*j+2*e+1, XR+8*i+2*j+e)
        if bias:
            for j in range(4):
                for r in (0, 2): a('v_pk_add_f32 %s, %s, %s' % (P2(U+16*i+4*j+r), P2(U+16*i+4*j+r), P2(GA+16+4*j+r)))
        for j in range(4):
            for r in (0, 2): a('v_pk_fma_f32 %s, %s, %s, %s' % (P2(ACC(j,i,r)), P2(ACC(j,i,r)), P2(GA+4*j+r), P2(U+16*i+4*j+r)))
    def out(i):
        for j in range(4):
            for e in range(2): a('v_cvt_pk_bf16_f32 v%d, v%d, v%d' % (PK+8*i+2*j+e, ACC(j,i,2*e), ACC(j,i,2*e+1)))
        if sOut is None:
            for j in range(4): a('ds_write_b64 v%d, v[%d:%d] offset:%d' % (c.XA(c)+j, PK+8*i+2*j, PK+8*i+2*j+1, 2048*i))
            return
        for jp in range(2):
            for e in range(2): a('v_permlane16_swap_b32 v%d, v%d' % (PK+8*i+4*jp+e, PK+8*i+4*jp+2+e))
        for jp in range(2):
            a('buffer_store_dwordx4 v[%d:%d], v2, s[%d:%d], s%d offen offset:%d' % (PK+8*i+4*jp, PK+8*i+4*jp+3, sOut, sOut+3, 60+i, 64*jp))
    return part, out

def ph_wo(P, C, st):
    c = gemm.config('wo', 1024, 128, 1, False, 128, 3, 2048, 128, rows4=True, KS=2, rpm=opt.rpm, slot0=1, unroll=True)
    tile_head(P, c, 4, 8, 128, [(4, P_WO), (32, P_X), (34, P_W1)])
    c.srd_hook = lambda a: [srd(a, *x) for x in [(8, 6, OF, 0x400000), (12, 4, 0, 1024*2048)]]
    c.vm_init = st['vm_init']
    if opt.xsc1: c.xflags = ' sc1'
    def boundary(a, c, vm):
        rt(a, 16)
        o_reduce(a, vm)
        rt(a, 17)
        o_compute(a, st['PHI'])
        psync(a, 'f3', 3, 93, 97, c.s_mt, part=0)
        if opt.pf3:
            V = 40
            srd(a, 28, 34, 0, 1024*7168)
            a('v_lshrrev_b32 v%d, 4, v1\nv_mul_u32_u24 v%d, 7168, v%d\nv_and_b32 v%d, 15, v1\nv_min_u32 v%d, 13, v%d\nv_lshl_add_u32 v%d, v%d, 7, v%d' % (V, V, V, V+1, V+1, V+1, V, V+1, V))
            a('s_lshr_b32 s61, s2, 3\ns_lshl_b32 s61, s61, 2\ns_add_u32 s61, s61, s42\ns_sub_u32 s61, s61, 4\ns_mul_i32 s61, s61, %d' % (4*7168))
            a('s_bfe_u32 s62, s2, 0x20001\ns_mul_i32 s62, s62, 1792\ns_add_u32 s61, s61, s62')
            for q in range(opt.pf3):
                a('buffer_load_dword v251, v%d, s[28:31], s61 offen\ns_add_u32 s61, s61, %d' % (V, 512*7168))
            vm.issue('pf', opt.pf3)
        a('s_cmp_lg_u32 s42, 6\ns_cbranch_scc1 wo7_x')
        w1_tau(a)
        a('v_lshrrev_b32 v40, 2, v1\nv_cmp_gt_u32 vcc, 2, v40\nv_mov_b32 v41, s65\nv_mov_b32 v42, s%d\nv_cndmask_b32 v41, v41, v42, vcc\nv_lshlrev_b32 v41, 2, v41' % c.s_nt)
        a('v_lshlrev_b32 v40, 2, v40\nv_mov_b32 v42, 0x2120\nv_lshrrev_b32 v40, v40, v42\nv_and_b32 v40, 3, v40\nv_lshl_add_u32 v41, v40, 6, v41\nv_and_b32 v40, 3, v1\nv_add_u32 v41, v40, v41\nv_lshlrev_b32 v41, %d, v41' % MS)
        a('s_mov_b32 s61, %d\ns_mov_b64 exec, 0xffff' % FL7)
        a.label('wo7_p')
        a('buffer_load_dword v40, v41, s[84:87], s61 offen sc1\ns_sub_u32 s90, s90, 1\ns_waitcnt vmcnt(0)\nv_cmp_ne_u32 vcc, s3, v40')
        a('s_cmp_eq_u64 vcc, 0\ns_cbranch_scc1 wo7_y\ns_cmp_lg_u32 s90, 0\ns_cbranch_scc1 wo7_p')
        a.label('wo7_y')
        a('s_mov_b64 exec, -1')
        gates(a, c, [2, 4], None, 147456, 160)
        a.label('wo7_x')
        early_sync(c, 'f3', 3, lambda a: a('s_lshl_b32 s36, s36, 1\ns_lshl_b32 s37, s37, 1\ns_lshl_b32 s91, 3, s36\ns_lshl_b32 s37, 3, s37\ns_or_b32 s91, s91, s37'))(a)
    c.boundary = boundary
    c.tail_issue = res_phase(c, (32, 0, 0x400000))
    gemm.producer(P, c, None)
    assert c.vm.done == len(c.vm.ops) - 1
    P('s_mov_b32 s93, s%d\ns_mov_b32 s97, s%d' % (c.s_mt, c.s_nt))
    a = C
    tile_head(a, c, 4, 8, 128, [])
    for x in [(28, 6, ST2, 0x40000), (16, 6, H2F, 0x400000)]: srd(a, *x)
    c.pre_hook2 = chain(BAR, c.gate_rd)
    c.post_b0 = lambda a, c: rt(a, 7)
    gemm.consumer(a, c)
    if c.stamps: gemm.dump_stamps(a, c)
    rt(a, 8)
    ACC = lambda j, i, r=0: c.v_acc + (i*4+j)*4 + r
    part, out = res_out(a, c, None)
    part(0); part(1)
    Q = 60
    for i in range(2):
        xs = [ACC(j,i,r) for j in range(4) for r in (0, 2)]
        S0, Q0 = 64+8*i, 68+8*i
        for k in range(2): a('v_pk_add_f32 %s, %s, %s' % (P2(S0+2*k), P2(xs[k]), P2(xs[2+k])))
        for k in range(2): a('v_pk_mul_f32 %s, %s, %s' % (P2(Q0+2*k), P2(xs[k]), P2(xs[k])))
        for m in (4, 6):
            for k in range(2): a('v_pk_add_f32 %s, %s, %s' % (P2(S0+2*k), P2(S0+2*k), P2(xs[m+k])))
        for m in (2, 4, 6):
            for k in range(2): a('v_pk_fma_f32 %s, %s, %s, %s' % (P2(Q0+2*k), P2(xs[m+k]), P2(xs[m+k]), P2(Q0+2*k)))
        a('v_pk_add_f32 %s, %s, %s\nv_pk_add_f32 %s, %s, %s' % (P2(S0), P2(S0), P2(S0+2), P2(Q0), P2(Q0), P2(Q0+2)))
        a('v_add_f32 v%d, v%d, v%d\nv_add_f32 v%d, v%d, v%d' % (Q+i, S0, S0+1, Q+2+i, Q0, Q0+1))
    for s_ in bfly(a, 'v_add_f32', [Q, Q+1, Q+2, Q+3])[:4]:
        for l in s_: a(l)
    a('v_and_b32 v4, 15, v1\nv_lshrrev_b32 v3, 5, v1\nv_lshl_add_u32 v4, v3, 4, v4\nv_lshlrev_b32 v4, 3, v4\nv_bfe_u32 v3, v1, 4, 1\nv_lshl_add_u32 v4, v3, 2, v4')
    a('s_lshl_b32 s63, s58, 8\ns_lshl_b32 s62, s%d, 14\ns_add_u32 s62, s63, s62' % c.s_nt)
    a('buffer_store_dword v%d, v4, s[28:31], s62 offen sc1' % Q)
    a('v_and_b32 v4, 15, v1\nv_lshlrev_b32 v4, 4, v4\nv_bfe_u32 v3, v1, 4, 1\nv_lshl_add_u32 v4, v3, 9, v4\nv_lshrrev_b32 v3, 5, v1\nv_lshl_add_u32 v4, v3, 8, v4')
    a('s_lshl_b32 s62, s58, 16\ns_lshl_b32 s63, s%d, 11\ns_add_u32 s62, s62, s63\ns_add_u32 s63, s62, 32768' % c.s_nt)
    A2 = c.v_free + 32; PK = 88; U = 12
    for i in range(2):
        for j in range(4):
            for r in (0, 2): a('v_pk_mul_f32 %s, %s, %s' % (P2(U+16*i+4*j+r), P2(ACC(j,i,r)), P2(A2+4*j+r)))
        for j in range(4):
            for e in range(2): a('v_cvt_pk_bf16_f32 v%d, v%d, v%d' % (PK+8*i+2*j+e, U+16*i+4*j+2*e, U+16*i+4*j+2*e+1))
        for jp in range(2):
            for e in range(2): a('v_permlane16_swap_b32 v%d, v%d' % (PK+8*i+4*jp+e, PK+8*i+4*jp+2+e))
        for jp in range(2):
            a('buffer_store_dwordx4 v[%d:%d], v4, s[16:19], s%d offen offset:%d' % (PK+8*i+4*jp, PK+8*i+4*jp+3, 62+i, 1024*jp))
    out(0); out(1)
    rt(a, 9)
    a('s_waitcnt vmcnt(0)\ns_barrier')
    rt(a, 10)
    return c

def w1_tau(a):
    a('s_lshr_b32 s61, s2, 3\ns_lshr_b32 s62, s61, 3\ns_add_u32 s62, s62, s61\ns_and_b32 s62, s62, 3')
    a('s_cmp_eq_u32 s62, 0\ns_cselect_b32 s63, 4, s62\ns_lshl_b32 s64, s62, 2\ns_lshr_b32 s64, 0x1431, s64\ns_and_b32 s64, s64, 15')
    a('s_add_u32 s65, s62, 1\ns_and_b32 s65, s65, 3\ns_add_u32 s62, s63, 3\ns_bitcmp1_b32 s61, 2\ns_cselect_b32 s64, s63, s64\ns_cselect_b32 s65, s62, s65')
    a('s_and_b32 s61, s2, 1\ns_lshl_b32 s61, s61, 3\ns_add_u32 s65, s65, s61')

def ph_w1(P, C, st):
    c = gemm.config('w1', 1024, 128, 3, True, 64, 3, 7168, 128, natw=True, tail_delay=opt.td1)
    BT = c.lds
    tile_head(P, c, 8, 4, 448, [(4, P_W1), (34, P_W2)])
    c.srd_hook = lambda a: [srd(a, *x) for x in [(8, 6, H2F, 0x400000), (12, 4, 0, 1024*7168)]]
    if opt.xsc1: c.xflags = ' sc1'
    XE = BT; RS = XE + 2048; UTL = RS + 1024; UTL2 = UTL + 2048
    tau = w1_tau
    tau(P)
    P('s_add_u32 s92, s64, 1\ns_lshr_b32 s38, s%d, 3' % c.s_mt)
    c.mirror = 38
    def boundary0(a, c, vm):
        psync(a, 'f5', 5, 93, 97, c.s_mt, part=0)
        V = (c.p_vfree + 3)//4*4
        srd(a, 20, 6, MP2, 65536); srd(a, 24, 6, ST2, 0x40000); srd(a, 16, 6, UT, 32768)
        a('v_lshrrev_b32 v%d, 4, v1\nv_lshlrev_b32 v%d, 14, v%d\nv_and_b32 v%d, 15, v1\nv_lshl_add_u32 v%d, v%d, 4, v%d' % (V+1, V+1, V+1, V+2, V+1, V+2, V+1))
        for q, ch in enumerate((4, 3)):
            a('s_lshl_b32 s61, s65, 8\ns_add_u32 s61, s61, %d' % ((ch-2)*4096))
            a('buffer_load_dwordx4 v[%d:%d], v%d, s[20:23], s61 offen sc1' % (V+4+4*q, V+7+4*q, V+1))
        vm.issue('xe', 2)
    def boundary(a, c, vm):
        vm.wait('xe')
        pre_b0(a, c, vm)
        early_sync(c, 'f5', 5, lambda a: a('s_lshl_b32 s91, 1, s36\ns_lshl_b32 s37, 1, s37\ns_or_b32 s91, s91, s37'))(a)
    c.boundary0, c.boundary = boundary0, boundary
    def pre_b0(a, c, vm):
        V = (c.p_vfree + 3)//4*4
        xs = list(range(V+4, V+12))
        for e in range(4): a('v_mov_b32 v%d, 0' % (V+20+e))
        a('v_lshlrev_b32 v%d, 4, v1\nv_add_u32 v%d, %d, v%d' % (V+3, V+3, XE, V+3))
        a('ds_write_b128 v%d, v[%d:%d]\nds_write_b128 v%d, v[%d:%d] offset:1024' % (V+3, V+20, V+23, V+3, V+20, V+23))
        xg_sum(a, xs, list(range(V+12, V+20)))
        rndn(a, xs[:4], [V+12, V+13])
        for e in range(4): a('v_add_f32 v%d, 1.0, v%d' % (V+4+e, V+4+e))
        for e in range(4): a('v_cvt_pk_bf16_f32 v%d, v%d, v%d' % (V+12+e, V+4+2*e, V+5+2*e))
        a('v_lshrrev_b32 v%d, 1, v%d\nv_lshlrev_b32 v%d, 8, v%d\nv_and_b32 v%d, 1, v%d\nv_lshl_add_u32 v%d, v%d, 3, v%d\nv_add_u32 v%d, %d, v%d' % (V+3, V+2, V+3, V+3, V+2, V+2, V+3, V+2, V+3, V+3, XE, V+3))
        a('ds_write_b64 v%d, v[%d:%d]\nds_write_b64 v%d, v[%d:%d] offset:16' % (V+3, V+12, V+13, V+3, V+14, V+15))
        a('s_waitcnt lgkmcnt(0)')
    def iter_hook(a, c, vm, k):
        V = (c.p_vfree + 3)//4*4 + 24
        if k == 11:
            a('s_lshl_b32 s60, s%d, %d\ns_add_u32 s60, s60, %d\ns_mov_b64 exec, 0xffff\nbuffer_load_dword v%d, v252, s[84:87], s60 offen sc1\ns_mov_b64 exec, -1' % (c.s_nt, MS+4, 4*ROW, V+22))
            vm.issue('f9')
        if k == 13:
            vm.wait('f9')
            a('s_mov_b64 exec, 0xffff\ns_mov_b32 s90, 20000')
            a.label('w19_p')
            a('v_cmp_ne_u32 vcc, s3, v%d\ns_cmp_eq_u64 vcc, 0\ns_cbranch_scc1 w19_y' % (V+22))
            a('buffer_load_dword v%d, v252, s[84:87], s60 offen sc1\ns_sub_u32 s90, s90, 1\ns_waitcnt vmcnt(0)\ns_cmp_lg_u32 s90, 0\ns_cbranch_scc1 w19_p' % (V+22))
            a.label('w19_y')
            a('s_mov_b64 exec, -1')
        if k == opt.ut_at:
            a('v_lshlrev_b32 v%d, 4, v1\ns_lshl_b32 s60, s%d, 11\ns_mov_b32 m0, %d' % (V, c.s_nt, UTL2))
            a('buffer_load_dwordx4 v%d, s[16:19], s60 offen sc1 lds\nbuffer_load_dwordx4 v%d, s[16:19], s60 offen offset:1024 sc1 lds' % (V, V))
            a('v_and_b32 v%d, 15, v1\nv_lshlrev_b32 v%d, 4, v%d\nv_lshrrev_b32 v%d, 4, v1\nv_lshl_add_u32 v%d, v%d, 14, v%d' % (V, V, V, V+1, V+1, V+1, V))
            a('s_lshl_b32 s60, s%d, 2\ns_add_u32 s60, s60, s42\ns_sub_u32 s60, s60, 4\ns_lshl_b32 s60, s60, 8' % c.s_mt)
            for q in range(4):
                a('buffer_load_dwordx4 v[%d:%d], v%d, s[24:27], s60 offen sc1\ns_add_u32 s60, s60, 65536' % (V+4+4*q, V+7+4*q, V+1))
            vm.issue('st', 6)
    def bar_hook(a, c, vm, k):
        V = (c.p_vfree + 3)//4*4 + 48
        if k == 1:
            a('s_lshl_b32 s95, s%d, %d\ns_add_u32 s95, s95, %d\ns_lshl_b32 s94, s%d, %d\ns_add_u32 s95, s95, s94\nv_mov_b32 v253, s3' % (c.s_nt, MS+4, 4*ROW, c.s_mt, MS))
            a('s_sub_u32 s94, s42, 4\ns_lshl_b32 s94, s94, 9\nv_lshl_add_u32 v%d, v1, 2, s94\nv_add_u32 v%d, %d, v%d\ns_lshl_b32 s94, s%d, 11' % (V, V+1, UTL, V, c.s_nt))
            a('s_add_u32 s96, s92, 2\ns_cmp_eq_u32 s42, 7\ns_cselect_b32 s96, s96, 255')
        if 2 <= k <= 5:
            a('s_cmp_lg_u32 s92, %d\ns_cbranch_scc1 w1_np%d' % (k, k))
            a('ds_read_b32 v%d, v%d\nds_read_b32 v%d, v%d offset:256\ns_waitcnt lgkmcnt(0)' % (V+2, V+1, V+3, V+1))
            a('buffer_atomic_add_f32 v%d, v%d, s[16:19], s94 offen\nbuffer_atomic_add_f32 v%d, v%d, s[16:19], s94 offen offset:256' % (V+2, V, V+3, V))
            a.label('w1_np%d' % k)
        if 4 <= k <= 7:
            a('s_cmp_lg_u32 s96, %d\ns_cbranch_scc1 w1_ns%d\ns_mov_b64 exec, 1' % (k, k))
            a('buffer_store_dword v253, v252, s[84:87], s95 offen sc1\ns_mov_b64 exec, -1')
            a.label('w1_ns%d' % k)
    def ptail(a, c, vm):
        V = (c.p_vfree + 3)//4*4 + 24
        b = V+4
        vm.wait('st')
        for st_ in (8, 4):
            for e in range(0, st_, 2): a('v_pk_add_f32 %s, %s, %s' % (P2(b+e), P2(b+e), P2(b+e+st_)))
        xg_sum(a, [b, b+1, b+2, b+3], [b+4, b+5, b+6, b+7])
        a('v_mov_b32 v%d, 0x3a800000' % (b+8))
        for h in (0, 2):
            a('v_mul_f32 v%d, v%d, v%d\nv_mul_f32 v%d, v%d, v%d\nv_fma_f32 v%d, v%d, v%d, -v%d' % (b+5+h, b+h, b+8, b+4+h, b+5+h, b+5+h, b+4+h, b+1+h, b+8, b+4+h))
            a('v_max_f32 v%d, 0, v%d\nv_add_f32 v%d, 0x3727c5ac, v%d\nv_rsq_f32 v%d, v%d\nv_mul_f32 v%d, -v%d, v%d' % (b+4+h, b+4+h, b+4+h, b+4+h, b+4+h, b+4+h, b+5+h, b+5+h, b+4+h))
        a('s_sub_u32 s60, s42, 4\ns_lshl_b32 s60, s60, 8\ns_add_u32 s60, s60, %d\nv_add_u32 v%d, s60, v%d' % (RS, V, V))
        a('ds_write_b128 v%d, v[%d:%d]\ns_waitcnt lgkmcnt(0)' % (V, b+4, b+7))
        a('s_barrier')
    c.iter_hook, c.ptail, c.bar_hook = iter_hook, ptail, bar_hook
    def tail_issue(a, c, vm):
        V = c.p_vfree
        if opt.pf4 not in (1, 3): return
        srd(a, 28, 34, 0, 3584*2048)
        a('v_lshlrev_b32 v%d, 11, v%d\nv_lshl_add_u32 v%d, v%d, 7, v%d' % (V, c.p_vrow, V, c.p_vch, V))
        a('s_bfe_u32 s62, s2, 0x10002\ns_lshl_b32 s62, s62, 10')
        a('s_lshr_b32 s61, s2, 3\ns_lshl_b32 s63, s61, 2\ns_add_u32 s63, s63, s%d\ns_sub_u32 s63, s63, 4\ns_lshl_b32 s63, s63, 14\ns_add_u32 s63, s63, s62' % c.s_wave)
        a('buffer_load_dword v251, v%d, s[28:31], s63 offen' % V)
        vm.issue('pf')
        if opt.pf4 == 1:
            a('s_mul_i32 s61, s61, 20\ns_and_b32 s63, s2, 3\ns_mul_i32 s63, s63, 640\ns_add_u32 s61, s61, s63\ns_lshl_b32 s63, s%d, 3\ns_add_u32 s61, s61, s63\ns_add_u32 s61, s61, %d' % (c.s_wave, 1024-32))
            a('s_lshl_b32 s61, s61, 11\ns_add_u32 s61, s61, s62')
            a('buffer_load_dword v251, v%d, s[28:31], s61 offen' % V)
            vm.issue('pf')
    c.tail_issue = tail_issue
    c.unroll = True
    gemm.producer(P, c, None)
    P('s_mov_b32 s93, s%d\ns_mov_b32 s97, s%d' % (c.s_mt, c.s_nt))
    st['vm_init'] = c.vm.ops[c.vm.done+1:]
    a = C
    tile_head(a, c, 8, 4, 448, [])
    srd(a, 24, 6, HF, 2048*7168)
    ACC = lambda j, i, r=0: (c.v_acc + (j*4+i)*4 + r) if j < 6 else (c.v_acc + 96 + ((j-6)*2+i)*4 + r)
    tau(a)
    def pre(a, c):
        a('s_lshl_b32 s58, s%d, 6\ns_add_u32 s58, s58, s%d' % (c.s_nh, c.s_col0))
        a('s_mul_i32 s59, s%d, 448\ns_sub_u32 s60, s58, s59\ns_sub_u32 s59, s%d, s59\ns_lshl_b32 s60, s60, 1\ns_lshl_b32 s59, s59, 1' % (c.s_nt, c.s_colh))
        a('s_add_u32 s61, s60, %d\nv_lshl_add_u32 v2, v1, 2, s61\ns_add_u32 s61, s59, %d\nv_lshl_add_u32 v3, v1, 2, s61' % (UTL, UTL))
        a('v_lshlrev_b32 v10, 4, v1\nv_add_u32 v10, %d, v10' % XE)
    nlab = [0]
    a('s_sub_u32 s64, s64, 1')
    c.hook_stages = 4
    def step_hook(a, c, step, wr):
        UA = c.v_free
        nlab[0] += 1
        a('s_cmp_lg_u32 s64, 0\ns_cbranch_scc1 w1_xs%d' % nlab[0])
        a('ds_read_b128 v[252:255], v10 offset:%d\ns_waitcnt lgkmcnt(0)' % (1024*step))
        for j in range(8): a('v_mfma_f32_16x16x32_bf16 v[%d:%d], v[252:255], v[%d:%d], %s' % (UA+4*j, UA+4*j+3, wr(j), wr(j)+3, '0' if step == 0 else 'v[%d:%d]' % (UA+4*j, UA+4*j+3)))
        if step == 1:
            a('s_mov_b64 exec, 0xffff')
            for j in range(8):
                o = ((j//2)*128 + (j % 2)*32)*2 if j < 6 else (j-6)*64
                for e in range(2): a('ds_write_b32 v%d, v%d offset:%d' % (2 if j < 6 else 3, UA+4*j+e, o + 1024*e))
            a('s_mov_b64 exec, -1\ns_waitcnt lgkmcnt(0)')
        a.label('w1_xs%d' % nlab[0])
        if step == 1: a('s_sub_u32 s64, s64, 1')
    c.pre_hook, c.post_b0, c.pre_hook2, c.step_hook = pre, (lambda a, c: rt(a, 11)), BAR, step_hook
    c.first_c = lambda c, j: '0'
    gemm.consumer(a, c)
    if c.stamps: gemm.dump_stamps(a, c)
    rt(a, 12)
    UU = 12; TT = 44; RR = c.v_free; TM = RR + 8
    a('v_lshrrev_b32 v3, 4, v1\nv_lshlrev_b32 v3, 4, v3\ns_add_u32 s60, s60, %d\ns_add_u32 s59, s59, %d\nv_add_u32 v2, s60, v3\nv_add_u32 v3, s59, v3' % (UTL2, UTL2))
    a('v_and_b32 v5, 15, v1\nv_lshlrev_b32 v5, 3, v5\ns_lshl_b32 s60, s%d, 9\ns_add_u32 s60, s60, %d\ns_lshl_b32 s59, s%d, 8\ns_add_u32 s61, s60, s59\ns_sub_u32 s60, s60, s59\nv_add_u32 v6, s60, v5\nv_add_u32 v5, s61, v5' % (c.s_rh, RS, c.s_nh))
    a('s_barrier')
    for i in range(4): a('ds_read_b64 v[%d:%d], v%d offset:%d' % (RR+2*i, RR+2*i+1, 5 if i < 2 else 6, 128*i))
    for j in range(8):
        o = ((j//2)*128 + (j % 2)*32)*2 if j < 6 else (j-6)*64
        a('ds_read_b128 v[%d:%d], v%d offset:%d\nds_read_b128 v[%d:%d], v%d offset:%d' % (UU+4*j, UU+4*j+3, 2 if j < 6 else 3, o, TT+4*j, TT+4*j+3, 2 if j < 6 else 3, o+1024))
    a('v_lshlrev_b32 v4, 4, v1')
    a('s_lshl_b32 s60, s%d, 1\ns_add_u32 s60, s60, s%d\ns_mul_i32 s60, s60, %d' % (c.s_mt, c.s_rh, 4*112*1024))
    a('s_mul_i32 s59, s%d, %d' % (c.s_nh, 2*112*1024))
    a('s_lshl_b32 s61, s58, 4\ns_add_u32 s61, s61, s60')
    a('s_lshl_b32 s62, s%d, 4\ns_add_u32 s62, s62, s60\ns_add_u32 s62, s62, s59' % c.s_colh)
    a('s_add_u32 s61, s61, s59')
    PK = 76
    a('s_waitcnt lgkmcnt(0)')
    for i in range(4):
        nj = 8 if i < 2 else 6
        xs = [ACC(j, i, r) for j in range(nj) for r in range(4)]
        for b in range(0, 4*nj, 16):
            for k in range(b, min(b+16, 4*nj), 2): a('v_pk_fma_f32 %s, %s, %s, %s op_sel:[0,1,0] op_sel_hi:[1,1,1]' % (P2(TM+k-b), P2(UU+k), P2(RR+2*i), P2(TT+k)))
            for k in range(b, min(b+16, 4*nj), 2): a('v_pk_fma_f32 %s, %s, %s, %s op_sel_hi:[1,0,1]' % (P2(xs[k]), P2(xs[k]), P2(RR+2*i), P2(TM+k-b)))
        for x in xs: a('v_max_f32 v%d, 0, v%d' % (x, x))
        for x in xs[::2]: a('v_pk_mul_f32 v[%d:%d], v[%d:%d], v[%d:%d]' % (x, x+1, x, x+1, x, x+1))
        pk = PK + (i % 2)*16
        for k in range(2*nj): a('v_cvt_pk_bf16_f32 v%d, v%d, v%d' % (pk+k, xs[2*k], xs[2*k+1]))
        for p in range(3):
            if p < 2: a('buffer_store_dwordx4 v[%d:%d], v4, s[24:27], s61 offen offset:%d' % (pk+4*p, pk+4*p+3, 2048*p))
            else:
                a('s_add_u32 s63, s61, 4096')
                a('buffer_store_dwordx4 v[%d:%d], v4, s[24:27], s63 offen' % (pk+4*p, pk+4*p+3))
        if i < 2:
            a('buffer_store_dwordx4 v[%d:%d], v4, s[24:27], s62 offen' % (pk+12, pk+15))
            a('s_add_u32 s62, s62, %d' % (112*1024))
        a('s_add_u32 s61, s61, %d' % (112*1024))
        if i == 1: a('s_lshl_b32 s59, s59, 1\ns_sub_u32 s61, s61, s59')
    rt(a, 13)
    if opt.pf4 >= 4:
        a('s_load_dwordx2 s[32:33], s[0:1], %d' % P_W2)
        a('s_lshl_b32 s60, s2, 2\ns_add_u32 s60, s60, s42\ns_mul_i32 s60, s60, 7168\nv_lshlrev_b32 v2, 7, v1\nv_min_u32 v2, %d, v2' % (128*(55 if opt.pf4 == 4 else 27)))
        a('s_waitcnt lgkmcnt(0)')
        srd(a, 16, 32, 0, 3584*2048)
        a('buffer_load_dword v254, v2, s[16:19], s60 offen')
        a('s_waitcnt vmcnt(1)\ns_barrier')
    else:
        a('s_waitcnt vmcnt(0)\ns_barrier')
    rt(a, 14)
    return c

def ph_w2s(P, C, st):
    c = gemm.config('w2', 1792, 128, 2, False, 64, opt.w2S, 2048, 0, xKG=112, panel_sreg=59, lead=opt.w2L)
    XT = 147456
    def head(a, ptrs):
        tile_head(a, c, 4, 8, 128, ptrs)
        a('s_lshr_b32 s36, s2, 3\ns_and_b32 s37, s36, 3\ns_lshr_b32 s36, s36, 3\ns_add_u32 s36, s36, s37\ns_and_b32 s%d, s36, 3' % c.s_rot)
    head(P, [(4, P_W2), (32, P_B2)])
    P('s_and_b32 s58, s%d, 1\ns_mov_b32 s59, 128\ns_cmp_eq_u32 s58, 0\ns_cselect_b32 s59, s59, -128' % c.s_nt)
    def srds(a):
        a('s_mul_i32 s60, s58, %d\ns_add_u32 s60, s60, %d\ns_add_u32 s8, s6, s60\ns_addc_u32 s9, s7, 0\ns_mul_i32 s60, s58, %d\ns_sub_u32 s10, %d, s60\ns_mov_b32 s11, 0x20000' % (56*1024, HF, 56*1024, 2048*7168))
        a('s_mul_i32 s60, s58, %d\ns_add_u32 s12, s4, s60\ns_addc_u32 s13, s5, 0\ns_mov_b32 s14, %d\ns_mov_b32 s15, 0x20000' % (1792*2048, 1792*2048))
    c.srd_hook = srds
    def m6(a):
        a('s_mov_b32 s91, 0')
        for r in (36, 37):
            a('s_mul_i32 s60, s58, 28\ns_add_u32 s60, s60, s%d\ns_lshl_b32 s60, s60, 1' % r)
            for add in (0, 1):
                a('s_add_u32 s61, s60, %d\ns_mul_i32 s61, s61, 9363\ns_lshr_b32 s61, s61, 16\ns_lshl_b32 s61, 1, s61\ns_or_b32 s91, s91, s61' % add)
    c.boundary = lambda a, c, vm: early_sync(c, 'f6', 6, m6, lambda a: a('s_lshl_b32 s91, s58, 3\ns_lshl_b32 s91, 0xff, s91'))(a)
    def boundary0(a, c, vm):
        psync(a, 'f6', 6, 93, 97, c.s_mt, part=0)
        a('s_cmp_lg_u32 s42, 6\ns_cbranch_scc1 w2_ng')
        gates(a, c, [5], 32, 131072, 160)
        a.label('w2_ng')
    c.boundary0 = boundary0
    c.first_c = lambda c, j: '0'
    c.vm_init = st['vm_init']
    gemm.producer(P, c, None)
    P('s_xor_b32 s60, s2, 32')
    psync(P, 'f8', FL8, 2, None, 60, n=1)
    a = C
    head(a, [(34, P_OUT)])
    a('s_waitcnt lgkmcnt(0)')
    srd(a, 28, 34, 0, 0x400000); srd(a, 24, 6, XB, 0x800000)
    XR = lambda: c.v_free; GA = lambda: c.v_free + 16; XA = lambda: c.v_free + 32
    def pre(a, c):
        a('s_lshl_b32 s61, s%d, 2\nv_lshrrev_b32 v3, 5, v1\nv_add_u32 v3, s61, v3\nv_and_b32 v2, 7, v1\nv_xor_b32 v2, v2, v3\nv_lshlrev_b32 v2, 4, v2\nv_bfe_u32 v3, v1, 4, 1\nv_lshl_add_u32 v2, v3, 3, v2' % c.s_nh)
        a('v_and_b32 v3, 15, v1\nv_lshl_add_u32 v2, v3, 7, v2\ns_lshl_b32 s61, s%d, 13\ns_add_u32 s61, s61, %d\nv_add_u32 v%d, s61, v2\nv_xor_b32 v%d, 32, v%d' % (c.s_rh, XT, XA(), XA()+1, XA()))
    def rd(a, c):
        a('s_lshl_b32 s60, s%d, 7\ns_add_u32 s61, s60, 131072\nv_lshrrev_b32 v3, 4, v1\nv_lshl_add_u32 v3, v3, 4, s61' % c.s_nh)
        for q in range(2):
            for j in range(2): a('ds_read_b128 v[%d:%d], v3 offset:%d' % (GA()+8*q+4*j, GA()+8*q+4*j+3, 256*q + 64*j))
    def last_reads(c):
        return ['ds_read_b64 v[%d:%d], v%d offset:%d' % (XR()+4*i+2*j, XR()+4*i+2*j+1, XA()+j, 2048*i) for i in range(4) for j in range(2)]
    c.pre_hook, c.last_reads, c.pre_hook2 = pre, last_reads, chain(BAR, rd)
    c.post_b0 = lambda a, c: rt(a, 15)
    gemm.consumer(a, c)
    if c.stamps: gemm.dump_stamps(a, c)
    rt(a, 16)
    ACC = lambda j, i, r=0: c.v_acc + (j*4+i)*4 + r
    a('s_lshl_b32 s60, s2, 2\ns_add_u32 s60, s60, s%d\ns_lshl_b32 s60, s60, 13\ns_xor_b32 s61, s60, %d\nv_lshlrev_b32 v4, 4, v1' % (c.s_wave, 32*4*8192))
    for k in range(8):
        if k == 4: a('s_add_u32 s60, s60, 4096')
        a('buffer_store_dwordx4 v[%d:%d], v4, s[24:27], s60 offen offset:%d' % (c.v_acc+32+4*k, c.v_acc+35+4*k, 1024*(k % 4)))
    U = 12; PK = 44; RB = 48 + 16
    a('s_waitcnt lgkmcnt(0)')
    for i in range(4):
        for j in range(2):
            for e in range(2): unpack(a, U+8*i+4*j+2*e, U+8*i+4*j+2*e+1, XR()+4*i+2*j+e)
            for r in (0, 2): a('v_pk_add_f32 %s, %s, %s' % (P2(U+8*i+4*j+r), P2(U+8*i+4*j+r), P2(GA()+8+4*j+r)))
            for r in (0, 2): a('v_pk_fma_f32 %s, %s, %s, %s' % (P2(U+8*i+4*j+r), P2(ACC(j,i,r)), P2(GA()+4*j+r), P2(U+8*i+4*j+r)))
    a('v_and_b32 v2, 15, v1\nv_lshlrev_b32 v2, 11, v2\nv_bfe_u32 v3, v1, 4, 1\nv_lshl_add_u32 v2, v3, 5, v2\nv_lshrrev_b32 v3, 5, v1\nv_lshl_add_u32 v2, v3, 4, v2')
    a('s_lshl_b32 s62, s%d, 1\ns_add_u32 s62, s62, s%d\ns_lshl_b32 s62, s62, 17\ns_lshl_b32 s63, s%d, 1\ns_add_u32 s63, s63, s%d\ns_lshl_b32 s63, s63, 6\ns_add_u32 s62, s62, s63' % (c.s_mt, c.s_rh, c.s_nt, c.s_nh))
    if opt.fullout:
        a('v_bfe_u32 v5, v1, 4, 1\nv_lshlrev_b32 v5, 1, v5\nv_lshrrev_b32 v6, 5, v1\nv_add_u32 v5, v5, v6\ns_lshl_b32 s63, s%d, 2\nv_add_u32 v5, s63, v5\nv_and_b32 v6, 7, v1\nv_xor_b32 v5, v5, v6\nv_lshlrev_b32 v5, 4, v5' % c.s_nh)
        a('v_and_b32 v7, 15, v1\nv_lshl_add_u32 v5, v7, 7, v5\ns_lshl_b32 s63, s%d, 13\nv_add_u32 v5, s63, v5' % c.s_rh)
        a('v_lshrrev_b32 v7, 3, v1\nv_xor_b32 v8, v6, v7\nv_lshlrev_b32 v8, 4, v8\nv_lshl_add_u32 v8, v7, 7, v8\nv_lshlrev_b32 v7, 11, v7\nv_lshl_add_u32 v7, v6, 4, v7\ns_lshl_b32 s63, s42, 12\nv_add_u32 v6, s63, v8')
        a('s_lshl_b32 s62, s%d, 2\ns_add_u32 s62, s62, s42\ns_lshl_b32 s62, s62, 16\ns_lshl_b32 s63, s%d, 7\ns_add_u32 s62, s62, s63' % (c.s_mt, c.s_nt))
    a('s_waitcnt vmcnt(0)\ns_barrier\ns_barrier')
    order = [(j, i) for i in range(4) for j in range(2)]
    for n_, (j, i) in enumerate(order):
        k = j*4 + i
        a('s_add_u32 s63, s61, %d' % (1024*k))
        a('buffer_load_dwordx4 v[%d:%d], v4, s[24:27], s63 offen sc1' % (c.v_acc+4*k, c.v_acc+4*k+3))
    for i in range(4):
        a('s_waitcnt vmcnt(%d)' % (6 - 2*i + (0 if opt.fullout else i)))
        for j in range(2):
            for r in (0, 2): a('v_pk_fma_f32 %s, %s, %s, %s' % (P2(U+8*i+4*j+r), P2(ACC(j,i,r)), P2(GA()+4*j+r), P2(U+8*i+4*j+r)))
            for e in range(2): a('v_cvt_pk_bf16_f32 v%d, v%d, v%d' % (PK+4*i+2*j+e, U+8*i+4*j+2*e, U+8*i+4*j+2*e+1))
        for e in range(2): a('v_permlane16_swap_b32 v%d, v%d' % (PK+4*i+e, PK+4*i+2+e))
        if opt.fullout: a('ds_write_b128 v5, v[%d:%d] offset:%d' % (PK+4*i, PK+4*i+3, 2048*i))
        else:
            a('buffer_store_dwordx4 v[%d:%d], v2, s[28:31], s62 offen' % (PK+4*i, PK+4*i+3))
            a('s_add_u32 s62, s62, 32768')
    if opt.fullout:
        a('s_waitcnt lgkmcnt(0)\ns_barrier')
        for i in range(4): a('ds_read_b128 v[%d:%d], v6 offset:%d' % (PK+4*i, PK+4*i+3, 1024*i))
        for i in range(4):
            a('s_waitcnt lgkmcnt(%d)' % (3-i))
            a('buffer_store_dwordx4 v[%d:%d], v7, s[28:31], s62 offen' % (PK+4*i, PK+4*i+3))
            a('s_add_u32 s62, s62, 16384')
    return c

def build(path, **kw):
    for k, v in kw.items(): setattr(opt, k, v)
    a = Asm()
    n = KNAME
    a.kernel_begin(n)
    a('s_cmp_ge_u32 s2, 256\ns_cbranch_scc1 mega_end')
    a('v_lshrrev_b32 v2, 6, v0\nv_and_b32 v1, 63, v0\nv_readfirstlane_b32 s42, v2')
    a('s_cmp_lt_u32 s42, 4\ns_cbranch_scc1 mega_cons')
    P = Asm(); C = Asm(); st = {}; C.cons = True
    rt(C, 0)
    cs = [f(P, C, st) for f in (ph_qkv, ph_wo, ph_w1, ph_w2s)]
    a.lines += P.lines
    if opt.ts:
        a('s_cmp_lg_u32 s42, 5\ns_cbranch_scc1 mega_end')
        srd(a, 88, 6, TS + 0x10000, 0x10000)
        a('s_lshl_b32 s92, s2, 8\nv_lshlrev_b32 v2, 2, v1\nbuffer_store_dword v255, v2, s[88:91], s92 offen')
    a('s_endpgm')
    a.label('mega_cons')
    a.lines += C.lines
    if opt.ts:
        a('s_waitcnt vmcnt(0)')
        a.cons = True
        rt(a, 17)
        a('s_cmp_lg_u32 s42, 0\ns_cbranch_scc1 mega_end')
        srd(a, 88, 6, TS, 0x10000)
        a('s_lshl_b32 s92, s2, 8\nv_lshlrev_b32 v2, 2, v1\nbuffer_store_dword v11, v2, s[88:91], s92 offen')
    a.label('mega_end')
    a('s_endpgm')
    for c in cs: gemm.table(a, c)
    a.label('code_end')
    a('s_endpgm')
    a.kernel_end(n, 256, 102, 256, 256, 512, 163840)
    a.lines = [l + opt.sflags if ('buffer_store_dwordx' in l) else l for l in a.lines]
    if opt.plain: a.launches = ['; @launch grid=(256,1,1) block=(512,1,1) lds=163840']
    open(path, 'w').write(a.text(verbose=kw.get('verbose', False)))

KNAME = 'adaLN_cond__linear_kernel_hedgehog__dense_activation_squared_relu__prompt_kernel'
opt.plain = False; opt.cpflate = True; opt.esync = False; opt.w1late = (); opt.cunroll = 1; opt.mbb = 2; opt.ut_at = 13; opt.glate = True; opt.td0 = 1; opt.td1 = 0; opt.pf5 = 10; opt.fullout = False; opt.earlym = False; opt.warm = True; opt.xsc1 = False; opt.unroll = True; opt.pollgap = 0; opt.wlate = 7; opt.st_at = 5; opt.pf3 = 0; opt.spf4 = 0; opt.spf2 = 0; opt.pre4 = True; opt.pf4 = 1; opt.w2s = True; opt.w2S = 4; opt.w2L = 3; opt.spoll = False; opt.satom = False; opt.gvflags = ' nt'; opt.eprio = 0; opt.pf2 = 1
if __name__ == '__main__':
    kw = eval('dict(%s)' % (sys.argv[2] if len(sys.argv) > 2 else ''))
    build(sys.argv[1], **kw)
```

```python
from asmgen import Asm

class G:
    pass

def gemm_prologue(a, c):
    a('v_lshrrev_b32 v2, 6, v0')
    a('v_and_b32 v1, 63, v0')
    a('v_readfirstlane_b32 s%d, v2' % c.s_wave)

def panel_cols(a, c):
    pass

def stamp(a, c, k, bump=False):
    if not c.stamps: return
    a('s_memtime s[70:71]')
    a('s_mov_b32 s73, m0')
    a('s_mov_b32 m0, s72')
    a('s_waitcnt lgkmcnt(0)')
    a('v_writelane_b32 v%d, s70, m0' % (248+k))
    a('s_mov_b32 m0, s73')
    if bump: a('s_add_u32 s72, s72, 1')

def order_table(nst, G, mode):
    tabs = []
    for j in range(G):
        if mode == 'seq':
            o = list(range(nst))
        elif mode == 'lead':
            own = {j} | {t+G-1 for t in range(1, nst) if t % G == j and t+G-1 < nst}
            rest = [x for x in range(nst) if x not in own]
            o = []
            for t in range(nst):
                if t == 0: o.append(j)
                elif t % G == j and t+G-1 < nst: o.append(t+G-1)
                else: o.append(rest.pop(0))
        elif mode == 'lead0':
            sub = order_table(nst-1, G, 'lead')[j]
            o = [0] + [x+1 for x in sub]
        elif mode == 'win':
            o = [(t//G)*G + (t+j) % G for t in range(nst)]
        assert sorted(o) == list(range(nst)), o
        tabs.append(o)
    return tabs

def mark(a, c, i):
    if not c.stamps: return
    a('s_memtime s[70:71]')
    a('s_waitcnt lgkmcnt(0)')
    a('v_writelane_b32 v251, s70, %d' % (32+i))

def dump_stamps(a, c):
    a('v_writelane_b32 v251, s94, 63')
    a('s_add_u32 s76, s6, 0x3900000\ns_addc_u32 s77, s7, 0\ns_mov_b32 s78, 0x200000\ns_mov_b32 s79, 0x20000')
    a('s_lshl_b32 s73, s2, 3\ns_add_u32 s73, s73, s%d\ns_lshl_b32 s73, s73, 10' % c.s_wave)
    a('v_lshlrev_b32 v247, 2, v1')
    for k in range(4): a('buffer_store_dword v%d, v247, s[76:79], s73 offen offset:%d' % (248+k, 256*k))
    a('s_waitcnt vmcnt(0)')

def producer(a, c, lbl_after):
    BK, S = c.BK, c.S
    nsub = BK // 32
    KG = c.xKG or c.K // 32
    nst = c.K // BK
    sp = c.s_tmp
    tabs = order_table(nst, c.G, c.order)
    if c.mirror: tabs = tabs + [[(x + nst//2) % nst for x in o] for o in tabs]
    if c.tabs_override: tabs = c.tabs_override
    c.tabs = tabs
    a('s_sub_u32 s%d, s%d, 4' % (sp, c.s_wave))
    a('s_getpc_b64 s[%d:%d]' % (c.s_tab, c.s_tab+1))
    a.label(c.name + '_pc')
    a('s_add_u32 s%d, s%d, %s_tab-%s_pc' % (c.s_tab, c.s_tab, c.name, c.name))
    a('s_addc_u32 s%d, s%d, 0' % (c.s_tab+1, c.s_tab+1))
    vT = 2; vKX = 3; vKW = 4
    a('s_lshl_b32 s%d, s%d, 6' % (sp+1, c.s_rot))
    if c.mirror:
        a('s_lshl_b32 s%d, s%d, 8\ns_add_u32 s%d, s%d, s%d' % (sp+2, c.mirror, sp+1, sp+1, sp+2))
        a('s_mul_i32 s%d, s%d, %d\ns_add_u32 s%d, s%d, s%d' % (sp+2, c.mirror, c.mirror_off or nst//2, c.s_rot, c.s_rot, sp+2))
    a('v_add_u32 v%d, s%d, v1' % (vT, sp+1))
    a('global_load_ubyte v%d, v%d, s[%d:%d]' % (vKX, vT, c.s_tab, c.s_tab+1))
    v = 5
    groups = []
    mbw = c.BM // 16 // 4
    a('s_mul_i32 s%d, s%d, %d' % (sp+1, c.s_mt, c.BM // 16))
    a('s_mul_i32 s%d, s%d, %d' % (sp+2, sp, mbw))
    a('s_add_u32 s%d, s%d, s%d' % (sp+1, sp+1, sp+2))
    a('s_mul_i32 s%d, s%d, %d' % (sp+1, sp+1, KG*1024))
    a('v_lshl_add_u32 v%d, v1, 4, s%d' % (v, sp+1)); vx0 = v; v += 1
    xl = []
    for i in range(mbw):
        for kg in range(nsub): xl.append((i, kg))
    a('s_mul_i32 s%d, s%d, %d' % (c.s_px, sp, mbw*nsub*1024))
    vregs = {}
    for b in range(0, len(xl), 4):
        ins = []
        for q, (i, kg) in enumerate(xl[b:b+4]):
            const = i*KG*1024 + kg*1024 - q*1024
            assert const >= 0
            if const not in vregs:
                if const == 0: vregs[const] = vx0
                else:
                    a('v_add_u32 v%d, %d, v%d' % (v, const, vx0)); vregs[const] = v; v += 1
            ins.append((vregs[const], q*1024))
        groups.append((c.sX, c.s_kx, c.s_px, b*1024, ins))
    rpw = BK // 4; ipw = rpw // 8
    vrow = v; vt = v+1; vw0 = v+2; vch = v+3; v += 4
    c.p_vrow, c.p_vch = vrow, vch
    a('v_lshrrev_b32 v%d, 3, v1' % vrow)
    a('v_and_b32 v%d, 7, v1' % vch)
    a('v_and_b32 v%d, %d, v%d' % (vt, 2 if c.natw else 6, vrow))
    a('v_xor_b32 v%d, v%d, v%d' % (vw0, vch, vt))
    a('v_mul_u32_u24 v%d, %d, v%d' % (vt, c.ldw, vrow))
    a('s_mul_i32 s%d, s%d, %d' % (sp+1, sp, rpw*c.ldw))
    a('s_add_u32 s%d, s%d, s%d' % (sp+2, sp+1, c.s_col0))
    a('v_add_u32 v%d, s%d, v%d' % (vt, sp+2, vt))
    vw1 = vw0
    if c.natw:
        vw1 = v; v += 1
        a('v_xor_b32 v%d, 4, v%d' % (vw1, vw0))
        a('v_lshl_add_u32 v%d, v%d, 4, v%d' % (vw1, vw1, vt))
    a('v_lshl_add_u32 v%d, v%d, 4, v%d' % (vw0, vw0, vt))
    a('s_mul_i32 s%d, s%d, %d' % (c.s_pw, sp, ipw*1024))
    a('s_add_u32 s%d, s%d, %d' % (c.s_pw, c.s_pw, c.xbytes))
    for q in range(c.nfull):
        ins = []
        for h in range(ipw):
            const = q*c.panel_stride + h*8*c.ldw - h*1024
            if const == 0 and q == 0: ins.append((vw0, 0))
            else:
                a('v_add_u32 v%d, %d, v%d' % (v, const, vw1 if h % 2 else vw0)); ins.append((v, h*1024)); v += 1
                if q and c.panel_sreg: a('v_add_u32 v%d, s%d, v%d' % (v-1, c.panel_sreg, v-1))
        groups.append((c.sW, c.s_kw, c.s_pw, q*BK*128, ins))
    if c.half:
        nh = BK // 64
        vh0 = v; vr2 = v+1; v += 2
        a('v_lshrrev_b32 v%d, 2, v1' % vr2)
        a('v_lshrrev_b32 v%d, %d, v1' % (vt, 4 if c.natw else 3))
        a('v_and_b32 v%d, 2, v%d' % (vt, vt))
        a('v_and_b32 v%d, 3, v1' % vh0)
        a('v_xor_b32 v%d, v%d, v%d' % (vh0, vh0, vt))
        a('v_mul_u32_u24 v%d, %d, v%d' % (vr2, c.ldw, vr2))
        a('v_lshl_add_u32 v%d, v%d, 4, v%d' % (vh0, vh0, vr2))
        a('s_add_u32 s%d, s%d, s%d' % (sp+2, sp+1, c.s_colh))
        a('v_add_u32 v%d, s%d, v%d' % (vh0, sp+2, vh0))
        ins = [(vh0, 0)]
        for h in range(1, nh):
            a('v_add_u32 v%d, %d, v%d' % (v, h*16*c.ldw - h*1024, vh0)); ins.append((v, h*1024)); v += 1
        a('s_mul_i32 s%d, s%d, %d' % (c.s_ph, sp, nh*1024))
        a('s_add_u32 s%d, s%d, %d' % (c.s_ph, c.s_ph, c.xbytes + c.nfull*BK*128))
        groups.append((c.sW, c.s_kw, c.s_ph, 0, ins))
    n = sum(len(g[4]) for g in groups)
    c.n_dma = n
    if c.order in ('seq', 'lead0'):
        a('s_mov_b32 s%d, 0\ns_mov_b32 s%d, 0' % (c.s_kx, c.s_kw))
    else:
        a('s_mul_i32 s%d, s%d, %d' % (c.s_kx, c.s_rot, nsub*1024))
        a('s_mul_i32 s%d, s%d, %d' % (c.s_kw, c.s_rot, BK*c.ldw))
    s_t = c.s_rh
    a('s_mov_b32 s%d, 1' % s_t)
    a('s_waitcnt lgkmcnt(0)')
    c.srd_hook(a)
    vm = VM(a)
    vm.ops = list(c.vm_init)
    c.vm = vm
    nxg = sum(1 for g in groups if g[0] == c.sX)
    def issue(st, slot_const=None, fetch_next=True, part=None):
        gs = {None: groups, 0: groups[:c.psplit], 1: groups[c.psplit:], 'w': groups[nxg:], 'x': groups[:nxg], 'xb': groups[c.psplit:nxg], 'fa': groups[:c.fsplit], 'fb': groups[c.fsplit:]}[part]
        if st >= nst - c.nown: gs = [g for g in gs if g is not groups[-1]]
        for (srd, so, base, lc, ins) in gs:
            if slot_const is None:
                a('s_add_u32 s%d, s%d, s%d' % (sp, base, c.s_slot))
                if lc: a('s_add_u32 m0, s%d, %d' % (sp, lc))
                else: a('s_mov_b32 m0, s%d' % sp)
            else:
                a('s_add_u32 m0, s%d, %d' % (base, lc + slot_const))
            for (vr, io) in ins:
                if not c.no_dma:
                    a('buffer_load_dwordx4 v%d, s[%d:%d], s%d offen%s%s lds' % (vr, srd, srd+3, so, ' offset:%d' % io if io else '', c.xflags if srd == c.sX else c.dma_flags))
                vm.issue(st)
        if part in (0, 'w', 'x', 'fa'): return
        if fetch_next:
            a('v_readlane_b32 s%d, v%d, s%d' % (c.s_kx, vKX, s_t))
            a('v_readlane_b32 s%d, v%d, s%d' % (c.s_kw, vKW, s_t))
            a('s_add_u32 s%d, s%d, 1' % (s_t, s_t))
        if slot_const is None:
            a('s_add_u32 s%d, s%d, %d' % (c.s_slot, c.s_slot, c.slot))
            a('s_cmp_ge_u32 s%d, %d' % (c.s_slot, c.slot*S))
            a('s_cselect_b32 s%d, 0, s%d' % (c.s_slot, c.s_slot))
    c.p_vfree = v
    if c.stamps: a('s_mov_b32 s72, 0')
    stamp(a, c, 3)
    vm.issue('tab')
    SL = lambda st: ((st + c.slot0) % S) * c.slot
    L = c.lead
    def tabmul():
        vm.wait('tab')
        a('v_mul_u32_u24 v%d, %d, v%d' % (vKW, BK*c.ldw, vKX))
        a('v_mul_u32_u24 v%d, %d, v%d' % (vKX, nsub*1024, vKX))
        a('v_readlane_b32 s%d, v%d, 1' % (c.s_kw, vKW))
        a('s_mov_b32 s%d, 2' % s_t)
    if c.boundary is None:
        issue(0, SL(0), False)
        if c.early_issue: c.early_issue(a, c, vm)
        tabmul()
        a('v_readlane_b32 s%d, v%d, 1' % (c.s_kx, vKX))
        issue(1, SL(1), part=0)
    else:
        if c.boundary0: c.boundary0(a, c, vm)
        issue(0, SL(0), part='w')
        tabmul()
        if not c.w1late: issue(1, SL(1), part='w')
        a('v_readlane_b32 s37, v%d, 1\ns_lshr_b32 s36, s%d, %d\ns_lshr_b32 s37, s37, %d' % (vKX, c.s_kx, (nsub*1024).bit_length()-1, (nsub*1024).bit_length()-1))
        c.boundary(a, c, vm)
        issue(0, SL(0), part='x')
        if c.early_issue: c.early_issue(a, c, vm)
        a('v_readlane_b32 s%d, v%d, 1' % (c.s_kx, vKX))
        issue(1, SL(1), part=0)
    stamp(a, c, 0)
    vm.wait(0)
    if c.pre_b0: c.pre_b0(a, c, vm)
    stamp(a, c, 1)
    a('s_barrier')
    stamp(a, c, 2, True)
    issue(1, SL(1), part=1 if (c.boundary is None or c.w1late) else 'xb')
    if c.post_b0p: c.post_b0p(a, c, vm)
    if c.loop_init: c.loop_init(a, c)
    if c.flags:
        assert L == S - 1
        vFa, vFv, vFd = 244, 245, 246
        s_need = c.s_nh
        a('s_add_u32 s%d, s%d, %d\nv_mov_b32 v%d, s%d\nv_and_b32 v243, 3, v1\nv_add_u32 v243, %d, v243\nv_mov_b32 v%d, %d' % (sp, c.s_wave, c.SY-4, vFa, sp, c.SY, vFv, c.fbase+1))
        cnt = [0]
        def signal():
            a('v_add_u32 v%d, 1, v%d\ns_mov_b64 exec, 15\nds_write_b8 v%d, v%d\nds_read_u8 v%d, v243 offset:4\ns_mov_b64 exec, -1' % (vFv, vFv, vFa, vFv, vFd))
        def fit(t, const):
            k = t - L
            cnt[0] += 1
            lab = '%s_f%d' % (c.name, cnt[0])
            if t >= S:
                a('s_waitcnt lgkmcnt(0)\nv_cmp_gt_u32 vcc, s%d, v%d\ns_and_b32 s71, vcc_lo, 15\ns_cbranch_scc0 %s' % (s_need, vFd, lab))
                a('s_waitcnt vmcnt(%d)\nv_add_u32 v%d, 1, v%d\nds_write_b8 v%d, v%d' % (vm.count(t-1), vFd, vFv, vFa, vFd))
                a.label(lab + 's')
                a('s_sleep 1\ns_sub_u32 s70, s70, 1\ns_cbranch_scc1 %s' % lab)
                a('ds_read_u8 v%d, v243 offset:4\ns_waitcnt lgkmcnt(0)\nv_cmp_gt_u32 vcc, s%d, v%d\ns_cmp_lg_u64 vcc, 0\ns_cbranch_scc1 %ss' % (vFd, s_need, vFd, lab))
                a.label(lab)
                a('s_add_u32 s%d, s%d, 1' % (s_need, s_need))
            if const and c.bar_hook and k >= 1: c.bar_hook(a, c, vm, k)
            issue(t, SL(t) if const else None, part='fa')
            vm.wait(t-1)
            signal()
            issue(t, SL(t) if const else None, fetch_next=(t+1 < nst), part='fb')
            if const and c.iter_hook and k >= 1: c.iter_hook(a, c, vm, k)
        a('s_mov_b32 s%d, %d\ns_mov_b32 s70, 0x100000' % (s_need, c.fbase+1))
        for t in range(2, S): fit(t, True)
        if c.unroll:
            for t in range(S, nst): fit(t, True)
        else:
            a('s_mov_b32 s%d, %d\ns_mov_b32 s%d, %d' % (c.s_slot, SL(S), c.s_cnt, nst-S-1))
            a.label(c.name + '_ploop')
            fit(S, False)
            body = vm.log[-1]
            a('s_sub_u32 s%d, s%d, 1\ns_cmp_lg_u32 s%d, 0\ns_cbranch_scc1 %s_ploop' % (c.s_cnt, c.s_cnt, c.s_cnt, c.name))
            keep = a.lines
            for t in range(S+1, nst-1):
                a.lines = []; fit(t, False); assert vm.log[-1] == body
            a.lines = keep
            fit(nst-1, False)
        if c.tail_issue: c.tail_issue(a, c, vm)
        vm.wait(nst-1)
        if c.pre_last_bar: c.pre_last_bar(a, c, vm)
        a('s_waitcnt lgkmcnt(0)\ns_barrier')
        if c.ptail: c.ptail(a, c, vm)
        if lbl_after: a('s_branch %s' % lbl_after)
        return
    for st in range(2, L+1):
        if c.loop_extra: c.loop_extra(a, c, vm)
        issue(st, SL(st))
    a('s_mov_b32 s%d, %d' % (c.s_slot, SL(L+1)))
    nsteady = nst - 2 - L - c.nown - (1 if c.nown else 0)
    def it(k, const=False):
        stamp(a, c, 0)
        vm.wait(k)
        if k == nst-1 and c.pre_last_bar: c.pre_last_bar(a, c, vm)
        if k == 1 and c.pre_b1: c.pre_b1(a, c, vm)
        if const and c.wait_hook: c.wait_hook(a, c, vm, k)
        stamp(a, c, 1)
        a('s_barrier')
        stamp(a, c, 2, True)
        if const and c.bar_hook: c.bar_hook(a, c, vm, k)
        if k + L < nst:
            issue(k+L, SL(k+L) if const else None, fetch_next=(k+L+1 < nst))
        if const and c.iter_hook: c.iter_hook(a, c, vm, k)
        if k + L == nst - 1 + c.tail_delay and c.tail_issue: c.tail_issue(a, c, vm)
    if c.unroll:
        for k in range(1, nst): it(k, True)
    else:
        k0 = 1
        if c.peel1: it(1); k0 = 2
        a('s_mov_b32 s%d, %d' % (c.s_cnt, nsteady - (k0-1)))
        a.label(c.name + '_ploop')
        it(k0)
        body = vm.log[-1]
        a('s_sub_u32 s%d, s%d, 1' % (c.s_cnt, c.s_cnt))
        a('s_cmp_lg_u32 s%d, 0' % c.s_cnt)
        a('s_cbranch_scc1 %s_ploop' % c.name)
        keep = a.lines
        for k in range(k0+1, nsteady+1):
            a.lines = []; it(k); assert vm.log[-1] == body
        a.lines = keep
        for k in range(nsteady+1, nst): it(k, True)
    mark(a, c, 0)
    if c.ptail: c.ptail(a, c, vm)
    if c.stamps and c.gen_dump:
        a('s_mov_b64 exec, -1')
        mark(a, c, 8)
        a('s_waitcnt vmcnt(0)')
        mark(a, c, 9)
        dump_stamps(a, c)
    if lbl_after: a('s_branch %s' % lbl_after)

class VM:
    def __init__(self, a): self.a = a; self.ops = []; self.log = []; self.done = -1
    def issue(self, tag, n=1): self.ops += [tag]*n
    def count(self, tag):
        idx = max(i for i, t in enumerate(self.ops) if t == tag)
        return len(self.ops) - 1 - idx
    def wait(self, tag, extra=''):
        n = self.count(tag)
        idx = len(self.ops) - 1 - n
        if idx <= self.done:
            self.log.append(None)
            if extra: self.a('s_waitcnt' + extra)
            return
        assert n <= 63
        self.done = idx
        self.log.append(n)
        self.a('s_waitcnt vmcnt(%d)%s' % (n, extra))

def xproducer(a, c, lbl_after):
    BK, S = c.BK, c.S
    assert BK == 64 and S == 3
    nst = c.K // BK
    D = 2
    sp = c.s_tmp
    tabs = order_table(nst, c.G, c.order)
    pk = [sum(x << (4*i) for i, x in enumerate(o)) for o in tabs]
    s_ow, s_ox, s_kt = c.s_tab, c.s_tab+2, c.s_nh
    a('s_sub_u32 s%d, s%d, 4' % (sp, c.s_wave))
    a('s_mov_b32 s%d, 0x%x\ns_mov_b32 s%d, 0x%x' % (s_ow, pk[0] & 0xffffffff, s_ow+1, pk[0] >> 32))
    for j in range(1, c.G):
        a('s_cmp_eq_u32 s%d, %d' % (c.s_rot, j))
        a('s_cselect_b32 s%d, 0x%x, s%d\ns_cselect_b32 s%d, 0x%x, s%d' % (s_ow, pk[j] & 0xffffffff, s_ow, s_ow+1, pk[j] >> 32, s_ow+1))
    a('s_mov_b64 s[%d:%d], s[%d:%d]' % (s_ox, s_ox+1, s_ow, s_ow+1))
    v = 2
    vrow, vt, vch = v, v+1, v+2; v += 3
    vXg = v; v += 4
    vXw = v; v += 2
    vTab, vTa = v, v+1; v += 2
    a('v_lshrrev_b32 v%d, 3, v1\nv_and_b32 v%d, 7, v1' % (vrow, vch))
    a('s_lshl_b32 s%d, s%d, 2\ns_add_u32 s%d, s%d, s%d' % (sp+1, c.s_mt, sp+1, sp+1, sp))
    c.s_rb = sp+3
    a('s_mov_b32 s%d, s%d' % (c.s_rb, sp+1))
    a('s_lshl_b32 s%d, s%d, 16' % (sp+1, sp+1))
    a('v_lshlrev_b32 v%d, 11, v%d' % (vt, vrow))
    a('v_lshl_add_u32 v%d, v%d, 4, v%d' % (vt, vch, vt))
    a('v_add_u32 v%d, s%d, v%d' % (vXg, sp+1, vt))
    for i in range(1, 4): a('v_add_u32 v%d, %d, v%d' % (vXg+i, 16384*i, vXg))
    vw0, vw1 = v, v+1; v += 2
    a('v_bfe_u32 v%d, v1, 4, 1\nv_lshlrev_b32 v%d, 1, v%d\nv_xor_b32 v%d, v%d, v%d' % (vt, vt, vt, vt, vt, vch))
    a('v_mul_u32_u24 v%d, %d, v%d' % (vw1, c.ldw, vrow))
    a('s_mul_i32 s%d, s%d, %d' % (sp+1, sp, 16*c.ldw))
    a('s_add_u32 s%d, s%d, s%d' % (sp+2, sp+1, c.s_col0))
    a('v_add_u32 v%d, s%d, v%d' % (vw1, sp+2, vw1))
    a('v_lshl_add_u32 v%d, v%d, 4, v%d' % (vw0, vt, vw1))
    a('v_xor_b32 v%d, 4, v%d' % (vt, vt))
    a('v_lshl_add_u32 v%d, v%d, 4, v%d' % (vw1, vt, vw1))
    a('v_add_u32 v%d, %d, v%d' % (vw1, 8*c.ldw - 1024, vw1))
    a('s_lshl_b32 s%d, s%d, 11\ns_add_u32 s%d, s%d, %d' % (c.s_pw, sp, c.s_pw, c.s_pw, c.xbytes))
    groups = [(c.s_pw, 0, [(vw0, 0), (vw1, 1024)])]
    for q in range(1, c.nfull):
        a('v_add_u32 v%d, %d, v%d\nv_add_u32 v%d, %d, v%d' % (v, q*c.panel_stride, vw0, v+1, q*c.panel_stride, vw1))
        groups.append((c.s_pw, q*8192, [(v, 0), (v+1, 1024)])); v += 2
    if c.half:
        vh0 = v; v += 1
        a('v_lshrrev_b32 v%d, 2, v1' % vh0)
        a('v_mul_u32_u24 v%d, %d, v%d' % (vh0, c.ldw, vh0))
        a('v_lshrrev_b32 v%d, 4, v1\nv_and_b32 v%d, 2, v%d' % (vt, vt, vt))
        a('v_and_b32 v%d, 3, v1\nv_xor_b32 v%d, v%d, v%d' % (vTa, vt, vt, vTa))
        a('v_lshl_add_u32 v%d, v%d, 4, v%d' % (vh0, vt, vh0))
        a('s_add_u32 s%d, s%d, s%d' % (sp+2, sp+1, c.s_colh))
        a('v_add_u32 v%d, s%d, v%d' % (vh0, sp+2, vh0))
        a('s_lshl_b32 s%d, s%d, 10\ns_add_u32 s%d, s%d, %d' % (c.s_ph, sp, c.s_ph, c.s_ph, c.xbytes + c.nfull*8192))
        groups.append((c.s_ph, 0, [(vh0, 0)]))
    nW = sum(len(g[2]) for g in groups)
    a('v_lshrrev_b32 v%d, 4, v1\nv_xor_b32 v%d, v%d, v%d' % (vt, vt, vt, vch))
    a('v_lshlrev_b32 v%d, 4, v%d' % (vt, vt))
    a('v_lshl_add_u32 v%d, v%d, 7, v%d' % (vt, vrow, vt))
    a('s_lshl_b32 s%d, s%d, 12' % (sp+1, sp))
    a('v_add_u32 v%d, s%d, v%d\nv_xor_b32 v%d, 64, v%d' % (vXw, sp+1, vt, vXw+1, vXw))
    a('v_lshlrev_b32 v%d, 6, v%d\nv_add_u32 v%d, %d, v%d' % (vTab, vch, vTab, c.tab_base, vTab))
    v = (v + 3) // 4 * 4
    RAW = v; v += 16*4
    OUT = v; v += 16
    AS = v; v += 16
    TMP = v; v += 8
    RC = v; v += 12
    c.p_vfree = v; c.p_RC = RC; c.p_vrow = vrow; c.p_vch = vch
    vm = VM(a)
    def next_w():
        a('s_and_b32 s%d, s%d, 15' % (s_kt, s_ow))
        a('s_lshr_b64 s[%d:%d], s[%d:%d], 4' % (s_ow, s_ow+1, s_ow, s_ow+1))
        a('s_mul_i32 s%d, s%d, %d' % (c.s_kw, s_kt, BK*c.ldw))
        a('s_lshl_b32 s%d, s%d, 9' % (s_kt, s_kt))
    def nextx():
        a('s_and_b32 s%d, s%d, 15' % (c.s_kx, s_ox))
        a('s_lshr_b64 s[%d:%d], s[%d:%d], 4' % (s_ox, s_ox+1, s_ox, s_ox+1))
        a('s_lshl_b32 s%d, s%d, 7' % (c.s_kx, c.s_kx))
    def loadx1(st, q, i):
        a('buffer_load_dwordx4 v[%d:%d], v%d, s[%d:%d], s%d offen' % (RAW+16*q+4*i, RAW+16*q+4*i+3, vXg+i, c.sX, c.sX+3, c.s_kx))
        vm.issue(('x', st))
    def loadx(st, q):
        nextx()
        for i in range(4): loadx1(st, q, i)
    def dmaw_list(st, slot_const):
        out = []
        for (base, lc, ins) in groups:
            for n_, (vr, io) in enumerate(ins):
                def f(base=base, lc=lc, vr=vr, io=io, first=(n_ == 0)):
                    if first:
                        if slot_const is None:
                            a('s_add_u32 s%d, s%d, s%d' % (sp, base, c.s_slot))
                            if lc: a('s_add_u32 m0, s%d, %d' % (sp, lc))
                            else: a('s_mov_b32 m0, s%d' % sp)
                        else: a('s_add_u32 m0, s%d, %d' % (base, lc + slot_const))
                    a('buffer_load_dwordx4 v%d, s[%d:%d], s%d offen%s lds' % (vr, c.sW, c.sW+3, c.s_kw, ' offset:%d' % io if io else ''))
                    vm.issue(('w', st))
                out.append(f)
        return out
    def dmaw(st, slot_const):
        for f in dmaw_list(st, slot_const): f()
    def readas(skt):
        a('v_add_u32 v%d, s%d, v%d' % (vTa, skt, vTab))
        for e in range(4): a('ds_read_b128 v[%d:%d], v%d offset:%d' % (AS+4*e, AS+4*e+3, vTa, 16*e))
    dot = c.xf.startswith('dot')
    def xform(q, slot_off, side=(), after_unpack=None):
        side = list(side)
        def pop():
            if side: side.pop(0)()
        for i in range(4):
            r = RAW + 16*q + 4*i
            if dot:
                for e in range(4):
                    a('v_dot2_f32_bf16 v%d, v%d, v%d, v%d' % (TMP+2*e, r+e, RC+8+i, RC+2*i+1))
                    a('v_dot2_f32_bf16 v%d, v%d, v%d, v%d' % (TMP+2*e+1, r+e, RC+2*i, RC+2*i+1))
                if after_unpack: after_unpack(i)
            else:
                for e in range(4):
                    a('v_lshlrev_b32 v%d, 16, v%d\nv_and_b32 v%d, 0xffff0000, v%d' % (TMP+2*e, r+e, TMP+2*e+1, r+e))
                if after_unpack: after_unpack(i)
                if c.xf == 'pk5':
                    for e in range(4): a('v_pk_fma_f32 v[%d:%d], v[%d:%d], v[%d:%d], v[%d:%d] op_sel:[0,0,1] op_sel_hi:[1,0,1]' % (TMP+2*e, TMP+2*e+1, TMP+2*e, TMP+2*e+1, RC+2*i, RC+2*i+1, RC+2*i, RC+2*i+1))
                else:
                    for e in range(8): a('v_fma_f32 v%d, v%d, v%d, v%d' % (TMP+e, TMP+e, RC+2*i, RC+2*i+1))
            pop()
            if i == 0: a('s_waitcnt lgkmcnt(0)')
            if c.xf in ('pk5', 'dot4'):
                for e in range(4): a('v_pk_fma_f32 v[%d:%d], v[%d:%d], v[%d:%d], v[%d:%d]' % (TMP+2*e, TMP+2*e+1, TMP+2*e, TMP+2*e+1, AS+2*e, AS+2*e+1, AS+8+2*e, AS+9+2*e))
            else:
                for e in range(8): a('v_fma_f32 v%d, v%d, v%d, v%d' % (TMP+e, TMP+e, AS+e, AS+8+e))
            if i < 3: pop()
            for e in range(4): a('v_cvt_pk_bf16_f32 v%d, v%d, v%d' % (OUT+4*i+e, TMP+2*e, TMP+2*e+1))
            a('ds_write_b128 v%d, v[%d:%d] offset:%d' % (vXw + i % 2, OUT+4*i, OUT+4*i+3, slot_off + i*1024))
        while side: pop()
    s_kt0, s_kt1 = c.s_px, c.s_cnt
    a('s_waitcnt lgkmcnt(0)')
    c.srd_hook(a)
    loadx(0, 2)
    next_w(); a('s_mov_b32 s%d, s%d' % (s_kt0, s_kt))
    dmaw(0, 0)
    c.pstats_issue(a, c, vm)
    loadx(1, 3); loadx(2, 0)
    next_w(); a('s_mov_b32 s%d, s%d' % (s_kt1, s_kt))
    dmaw(1, c.slot)
    loadx(3, 1)
    c.pstats_finish(a, c, vm)
    if dot:
        for i in range(4): a('v_cvt_pk_bf16_f32 v%d, v%d, v%d' % (RC+2*i, RC+2*i, RC+2*i))
        for i in range(4): a('v_and_b32 v%d, 0xffff, v%d\nv_and_b32 v%d, 0xffff0000, v%d' % (RC+8+i, RC+2*i, RC+2*i, RC+2*i))
    for i in range(4): a('v_mul_f32 v%d, -v%d, v%d' % (RC+2*i+1, RC+2*i+1, RC+2*i))
    if c.pprio: a('s_setprio %d' % c.pprio)
    if c.stamps: a('s_mov_b32 s72, 0')
    stamp(a, c, 0)
    a('s_barrier')
    stamp(a, c, 3)
    readas(s_kt0)
    vm.wait(('x', 0))
    xform(2, 0)
    a('s_waitcnt lgkmcnt(0)')
    vm.wait(('w', 0))
    stamp(a, c, 1)
    a('s_barrier')
    stamp(a, c, 2, True)
    readas(s_kt1)
    vm.wait(('x', 1))
    assert c.slot + 4096 <= 65536
    xform(3, c.slot)
    a('s_mov_b32 s%d, %d' % (c.s_slot, 2*c.slot))
    a('v_add_u32 v%d, %d, v%d\nv_add_u32 v%d, %d, v%d' % (vXw, 2*c.slot, vXw, vXw+1, 2*c.slot, vXw+1))
    a('s_mov_b32 s%d, %d' % (sp+1, c.slot))
    def iteration(k, first=False):
        if k + 2 < nst:
            next_w()
            readas(s_kt)
            dl = dmaw_list(k+2, None)
            dl.pop(0)()
            more = k + 2 + D < nst
            if more:
                nextx()
                if c.loop_extra: dl.append(lambda: c.loop_extra(a, c, vm))
            vm.wait(('x', k+2))
            stamp(a, c, 0)
            xform(k % 2, 0, dl, (lambda i: loadx1(k+2+D, k % 2, i)) if more else None)
            stamp(a, c, 3)
            if k + 3 == nst: c.tail_issue(a, c, vm)
            a('s_add_u32 s%d, s%d, s%d' % (c.s_slot, c.s_slot, sp+1))
            a('s_cmp_ge_u32 s%d, %d' % (c.s_slot, c.slot*S))
            a('s_cselect_b32 s%d, 0, s%d' % (c.s_slot, c.s_slot))
            a('s_cselect_b32 s%d, %d, s%d' % (sp, -2*c.slot, sp+1))
            a('v_add_u32 v%d, s%d, v%d\nv_add_u32 v%d, s%d, v%d' % (vXw, sp, vXw, vXw+1, sp, vXw+1))
        vm.wait(('w', k+1), ' lgkmcnt(0)')
        stamp(a, c, 1)
        a('s_barrier')
        stamp(a, c, 2, True)
    nsteady = nst - 2 - D
    assert nsteady % 2 == 0
    if c.loop_init: c.loop_init(a, c)
    a('s_waitcnt lgkmcnt(0)')
    iteration(0); iteration(1)
    a('s_mov_b32 s%d, %d' % (c.s_cnt, nsteady // 2 - 1))
    a.label(c.name + '_ploop')
    n0 = len(vm.log)
    iteration(2); iteration(3)
    body = vm.log[n0:]
    a('s_sub_u32 s%d, s%d, 1' % (c.s_cnt, c.s_cnt))
    a('s_cmp_lg_u32 s%d, 0' % c.s_cnt)
    a('s_cbranch_scc1 %s_ploop' % c.name)
    keep = a.lines;
    for k in range(4, nsteady, 2):
        a.lines = []; n0 = len(vm.log)
        iteration(k); iteration(k+1)
        assert vm.log[n0:] == body, (vm.log[n0:], body)
    a.lines = keep
    for k in range(nsteady, nst-1): iteration(k)
    if c.stamps: dump_stamps(a, c)
    c.ptail(a, c, vm)
    a('s_branch %s' % lbl_after)

def table(a, c):
    a.lines.append('.p2align 6')
    a.label(c.name + '_tab')
    for o in c.tabs:
        a.lines.append('.byte ' + ','.join(str(x) for x in (o + [0]*64)[:64]))
    a.lines.append('.p2align 2')

def consumer(a, c):
    BK, S = c.BK, c.S
    nsub = BK // 32
    nst = c.K // BK
    r4 = c.rows4
    TMb = c.BM // (4 if r4 else 2) // 16
    sp = c.s_tmp
    ks = c.ksplit
    va = c.v_addr
    vX, vX2, vW0, vW1, vW2, vW3, vX3, vX4 = [va+i for i in range(8)]
    t0, t1 = c.v_tmp, c.v_tmp+1
    nat = c.xform
    natw = c.xform or c.natw
    rotx = c.half or ks
    a('s_lshr_b32 s%d, s%d, 1' % (c.s_rh, c.s_wave))
    a('s_and_b32 s%d, s%d, 1' % (c.s_nh, c.s_wave))
    a('s_mul_i32 s%d, s%d, %d' % (sp, c.s_wave if r4 else c.s_rh, TMb*nsub*1024))
    if ks:
        a('s_lshl_b32 s%d, s%d, 10\ns_add_u32 s%d, s%d, s%d' % (sp+1, c.s_nh, sp, sp, sp+1))
    if nat:
        a('v_bfe_u32 v%d, v1, 1, 3\nv_lshrrev_b32 v%d, 4, v1\nv_xor_b32 v%d, v%d, v%d' % (t0, t1, t0, t0, t1))
        a('v_and_b32 v%d, 15, v1\nv_lshlrev_b32 v%d, 7, v%d' % (t1, t1, t1))
        a('v_lshl_add_u32 v%d, v%d, 4, v%d\nv_add_u32 v%d, s%d, v%d' % (vX, t0, t1, vX, sp, vX))
    else:
        a('v_lshl_add_u32 v%d, v1, 4, s%d' % (vX, sp))
    addr = [vX, vW0, vW1]
    if rotx:
        a('s_mul_i32 s%d, s%d, %d' % (sp, c.s_nh, 2*nsub*1024))
        a('v_subrev_u32 v%d, s%d, v%d' % (vX2, sp, vX))
        a('v_add_u32 v%d, s%d, v%d' % (vX, sp, vX))
        addr.append(vX2)
    if nat:
        a('v_xor_b32 v%d, 64, v%d' % (vX3, vX)); addr.append(vX3)
        if rotx: a('v_xor_b32 v%d, 64, v%d' % (vX4, vX2)); addr.append(vX4)
    if natw:
        a('v_bfe_u32 v%d, v1, 2, 2\nv_lshrrev_b32 v%d, 4, v1\nv_lshl_add_u32 v%d, v%d, 3, v%d' % (t0, t1, t0, t1, t0))
    else:
        a('v_lshrrev_b32 v%d, 2, v1' % t0)
    a('v_bfe_u32 v%d, v1, 3, 2' % t1)
    if ks or r4: a('v_lshlrev_b32 v%d, 5, v%d' % (vW0, t1))
    else:
        a('s_lshl_b32 s%d, s%d, 1' % (sp, c.s_nh))
        a('v_xor_b32 v%d, s%d, v%d' % (vW0, sp, t1))
        a('v_lshlrev_b32 v%d, 5, v%d' % (vW0, vW0))
    a('v_lshl_add_u32 v%d, v%d, 7, v%d' % (vW0, t0, vW0))
    a('v_and_b32 v%d, 3, v1' % t1)
    a('v_lshlrev_b32 v%d, 3, v%d' % (t1, t1))
    if ks:
        a('s_lshl_b32 s%d, s%d, 12\ns_add_u32 s%d, s%d, %d' % (sp, c.s_nh, sp, sp, c.xbytes))
        a('v_add3_u32 v%d, v%d, v%d, s%d' % (vW0, vW0, t1, sp))
    else:
        a('v_add_u32 v%d, %d, v%d' % (t1, c.xbytes, t1))
        a('v_add_u32 v%d, v%d, v%d' % (vW0, vW0, t1))
    a('v_xor_b32 v%d, 32, v%d' % (vW1, vW0))
    if ks or r4:
        a('v_xor_b32 v%d, 64, v%d' % (vW2, vW0))
        a('v_xor_b32 v%d, 96, v%d' % (vW3, vW0))
        addr += [vW2, vW3]
    if c.half:
        a('v_bfe_u32 v%d, v1, 4, 1' % vW2)
        a('v_lshlrev_b32 v%d, 5, v%d' % (vW2, vW2))
        a('v_lshl_add_u32 v%d, v%d, 6, v%d' % (vW2, t0, vW2))
        a('v_add_u32 v%d, v%d, v%d' % (vW2, vW2, t1))
        a('v_add_u32 v%d, %d, v%d' % (vW2, c.nfull*BK*128, vW2))
        a('v_xor_b32 v%d, 32, v%d' % (vW3, vW2))
        addr += [vW2, vW3]
    assert c.xbytes % 128 == 0 and c.slot % 128 == 0
    sm = 2 if ks else 1
    def xrd(j, sub):
        hi = rotx and j >= 2
        if nat: return ((vX4 if hi else vX3) if sub % 2 else (vX2 if hi else vX)), j*2048
        return (vX2 if hi else vX), (j*nsub+sub)*1024
    tf = 512 if natw else 2048
    if ks or r4:
        wfr = [(vW0+u, 0, 4096, tf) for u in range(4)]
        mf = [(j, i) for i in range(TMb) for j in range(4)]
    else:
        wfr = [(vW0 + j % 2, (j//2)*BK*128, 4096, tf) for j in range(2*c.nfull)]
        mf = [(j, i) for j in range(len(wfr)) for i in range(TMb)]
    if c.half:
        wfr += [(vW2, 0, 2048, tf//2), (vW3, 0, 2048, tf//2)]
        mf += [(2*c.nfull + u, i) for u in range(2) for i in range(2)]
    nWf = len(wfr)
    nacc = len(mf) * 4
    KS = c.KS
    fs1 = (TMb + nWf) * 4
    fsz = fs1 * KS
    c.v_acc = c.v_frag + 2*fsz
    c.v_free = c.v_acc + nacc
    if c.pre_hook: c.pre_hook(a, c)
    if c.acc_init: c.acc_init(a, c)
    elif not c.first_c:
        for i in range(nacc): a('v_mov_b32 v%d, 0' % (c.v_acc+i))
    def xreg(s, q, j): return c.v_frag + s*fsz + q*fs1 + j*4
    def wreg(s, q, j): return c.v_frag + s*fsz + q*fs1 + TMb*4 + j*4
    def reads(s, step, own=False):
        r = []
        for q in range(KS):
            sub = (step*KS + q)*sm
            xs = ['ds_read_b128 v[%d:%d], v%d offset:%d' % ((xreg(s,q,j), xreg(s,q,j)+3) + xrd(j, sub)) for j in range(TMb)]
            ws = []
            for j, (v, base, ss, ts) in enumerate(wfr[:2] if own else wfr):
                for t in range(2):
                    w = wreg(s,q,j) + 2*t
                    ws.append('ds_read_b64_tr_b16 v[%d:%d], v%d offset:%d' % (w, w+1, v, base + sub*ss + t*ts))
            r += (xs[:1] + ws + xs[1:]) if (ks or r4) else (ws[:2] + xs + ws[2:])
        if c.no_lds: r = []
        return r
    def mfmas(s, first=False, own=False):
        r = []
        for q in range(KS):
            for k, (j, i) in enumerate(mf):
                if own and j >= 2: continue
                t = c.v_acc + k*4
                A_, B_ = wreg(s,q,j), xreg(s,q,i)
                if j in c.swap_frags: A_, B_ = B_, A_
                C_ = 'v[%d:%d]' % (t, t+3)
                if first and q == 0: C_ = c.first_c(c, j)
                r.append('v_mfma_f32_16x16x32_bf16 v[%d:%d], v[%d:%d], v[%d:%d], %s' % (t, t+3, A_, A_+3, B_, B_+3, C_))
        if c.no_mfma: r = r[:1]
        return r
    def interleave(ms, rs, extra=()):
        out = []
        rpm = c.rpm if len(ms) > 8 else max(c.rpm, c.rpm_own)
        k = 0; ex = list(extra)
        for i, m in enumerate(ms):
            out.append(m)
            if k < len(rs):
                for _ in range(rpm):
                    if k < len(rs): out.append(rs[k]); k += 1
            elif ex:
                out.append(ex.pop(0))
                if ex and ex[0].startswith('s_'): out.append(ex.pop(0))
        out += rs[k:] + ex
        return out
    def advance():
        return ['s_add_u32 s%d, s%d, 1' % (c.s_slot, c.s_slot),
             's_cmp_eq_u32 s%d, %d' % (c.s_slot, S),
             's_cselect_b32 s%d, 0, s%d' % (c.s_slot, c.s_slot),
             's_cselect_b32 s%d, %d, s%d' % (sp, -(S-1)*c.slot, sp+1)] + ['v_add_u32 v%d, s%d, v%d' % (v, sp, v) for v in addr]
    nstep = nsub // KS // sm
    spb = 1 if nstep % 2 == 0 else 2
    a('s_mov_b32 s%d, %d' % (c.s_slot, c.slot0))
    if c.slot0:
        for v in addr: a('v_add_u32 v%d, %d, v%d' % (v, c.slot0*c.slot, v))
    a('s_mov_b32 s%d, %d' % (sp+1, c.slot))
    if c.pre_hook2: c.pre_hook2(a, c)
    if c.stamps: a('s_mov_b32 s72, 0')
    stamp(a, c, 1)
    a('s_barrier')
    stamp(a, c, 2, True)
    if c.post_b0: c.post_b0(a, c)
    vRa, vR = c.v_flag, c.v_flag+1
    s_need, s_one = c.s_px, c.s_pw
    frd = ['ds_read_u8 v%d, v%d' % (vR, vRa)] if c.flags else []
    if c.flags:
        a('v_and_b32 v%d, 3, v1\nv_add_u32 v%d, %d, v%d\ns_mov_b32 s%d, %d\ns_mov_b32 s70, 0x100000\ns_lshl_b64 s[68:69], 1, s%d' % (vRa, vRa, c.SY, vRa, s_need, c.fbase+2, c.s_wave))
        a('s_add_u32 s71, s%d, %d\nv_mov_b32 v%d, s71' % (c.s_wave, c.SY+4, vR+1))
    for r in reads(0, 0) + (frd if nstep == 1 else []): a(r)
    if c.post_b0b: c.post_b0b(a, c, len(reads(0, 0)))
    if nstep == 1:
        for l in advance(): a(l)
    par = [0]
    fc = [0]
    def stage(last, first=False, hook=False, realbar=False, own=False, nown=False, pre_bar=None, post_bar=None, xtra=lambda st: []):
        for step in range(nstep):
            s = par[0]; par[0] ^= 1
            a('s_waitcnt lgkmcnt(0)')
            if hook: c.step_hook(a, c, step, lambda j: wreg(s, 0, j), xreg(1-s, 0, 0))
            if step < nstep-1:
                ex = advance() if (step == nstep-2 and not last) else []
                if first and step == 0 and c.first_extra: ex = ex + c.first_extra(c)
                ex = xtra(step) + ex
                for l in interleave(mfmas(s, first and step == 0, own), reads(1-s, step+1, own) + (frd if step == nstep-2 and not last and not realbar else []), ex): a(l)
            elif not last:
                ms = mfmas(s, first and step == 0, own)
                nb = c.mfma_before_bar
                if c.flags and not realbar:
                    fc[0] += 1
                    lab = '%s_c%d' % (c.name, fc[0])
                    a(ms[0])
                    a('v_cmp_gt_u32 vcc, s%d, v%d' % (s_need, vR))
                    a('s_sub_u32 s%d, s%d, 1' % (sp+2, s_need))
                    a(ms[1])
                    if c.noexec: a('v_mov_b32 v%d, s%d\nds_write_b8 v%d, v%d' % (vR, sp+2, vR+1, vR))
                    else: a('v_mov_b32 v%d, s%d\ns_mov_b64 exec, s[68:69]\nds_write_b8 v%d, v%d offset:4\ns_mov_b64 exec, -1' % (vR, sp+2, vRa, vR))
                    a('s_cmp_lg_u64 vcc, 0\ns_cbranch_scc1 %ss' % lab)
                    a.label(lab)
                    a('s_add_u32 s%d, s%d, 1' % (s_need, s_need))
                    o = c.outline
                    o.label(lab + 's')
                    o('s_sub_u32 s70, s70, 1\ns_cbranch_scc1 %s' % lab)
                    o('s_waitcnt lgkmcnt(0)\nds_read_u8 v%d, v%d\ns_waitcnt lgkmcnt(0)\nv_cmp_gt_u32 vcc, s%d, v%d\ns_cmp_lg_u64 vcc, 0\ns_cbranch_scc1 %ss\ns_branch %s' % (vR, vRa, s_need, vR, lab, lab))
                    nb = 2
                else:
                    for m in ms[:nb]: a(m)
                    if pre_bar: pre_bar(a, c)
                    stamp(a, c, 1)
                    a('s_barrier')
                    stamp(a, c, 2, True)
                    if post_bar: post_bar(a, c)
                for l in interleave(ms[nb:], reads(1-s, 0, nown) + (c.post_b1(c) if (first and c.post_b1) else []) + (frd if nstep == 1 else []), xtra(step) + (advance() if nstep == 1 else [])): a(l)
            else:
                for l in interleave(mfmas(s, False, own), c.last_reads(c) if c.last_reads else [], xtra(step)): a(l)
    npre = 0
    if c.first_c:
        stage(False, True); npre = 1
        if c.after_first: c.after_first(a, c)
    if c.step_hook:
        a('s_mov_b32 s%d, %d' % (c.s_cnt, c.hook_stages))
        a.label(c.name + '_hloop')
        stage(False, hook=True)
        a('s_sub_u32 s%d, s%d, 1' % (c.s_cnt, c.s_cnt))
        a('s_cmp_lg_u32 s%d, 0' % c.s_cnt)
        a('s_cbranch_scc1 %s_hloop' % c.name)
        npre += c.hook_stages
    spb *= c.cunroll
    npost = c.nown + 1 if c.nown else 1
    nloop = (nst - npost - npre - (1 if (c.late_hook or c.flags) else 0)) // spb
    rem = (nst - npost - npre) - nloop*spb
    a('s_mov_b32 s%d, %d' % (c.s_cnt, nloop))
    a('.p2align 3')
    a.label(c.name + '_cloop')
    for _ in range(spb): stage(False)
    a('s_sub_u32 s%d, s%d, 1' % (c.s_cnt, c.s_cnt))
    a('s_cmp_lg_u32 s%d, 0' % c.s_cnt)
    a('s_cbranch_scc1 %s_cloop' % c.name)
    for r_ in range(rem):
        if c.late_hook and r_ == rem-1: c.late_hook(a, c)
        stage(False, realbar=(r_ == rem-1))
    if c.nown:
        stage(False, nown=True)
        for q in range(c.nown):
            c.own_hook(a, c, q, 0)
            stage(q == c.nown-1, own=True, nown=True, pre_bar=lambda a, c: c.own_hook(a, c, q, 1), post_bar=lambda a, c: c.own_hook(a, c, q, 2), xtra=lambda st: c.own_extra(c, q, st))
    else: stage(True)
    if c.stamps and c.gen_dump:
        stamp(a, c, 1)
        mark(a, c, 0)
    if ks:
        EB = c.slot * (nst % S)
        if c.slot < 32768:
            EB = c.slot * S; c.lds = EB + 32768
        assert c.lds <= 163840
        a('s_lshl_b32 s%d, s%d, 13\ns_add_u32 s%d, s%d, %d' % (sp, c.s_wave, sp, sp, EB))
        a('v_lshl_add_u32 v%d, v1, 4, s%d' % (t0, sp))
        a('s_xor_b32 s%d, s%d, 1\ns_lshl_b32 s%d, s%d, 13\ns_add_u32 s%d, s%d, %d' % (sp, c.s_wave, sp, sp, sp, sp, EB))
        a('v_lshl_add_u32 v%d, v1, 4, s%d' % (t1, sp))
        for k in range(8): a('ds_write_b128 v%d, v[%d:%d] offset:%d' % (t0, c.v_acc+32+4*k, c.v_acc+35+4*k, 1024*k))
        if c.xch_pre: c.xch_pre(a, c)
        a('s_waitcnt lgkmcnt(0)')
        mark(a, c, 1)
        a('s_barrier')
        mark(a, c, 2)
        for k in range(8): a('ds_read_b128 v[%d:%d], v%d offset:%d' % (c.v_acc+32+4*k, c.v_acc+35+4*k, t1, 1024*k))
        n0 = len(a.lines)
        if c.xch_post: c.xch_post(a, c)
        npost = len(a.lines) - n0
        for k in range(8):
            a('s_waitcnt lgkmcnt(%d)' % min(15, 7-k+npost))
            for r in (0, 2): a('v_pk_add_f32 v[%d:%d], v[%d:%d], v[%d:%d]' % (c.v_acc+4*k+r, c.v_acc+4*k+r+1, c.v_acc+4*k+r, c.v_acc+4*k+r+1, c.v_acc+32+4*k+r, c.v_acc+33+4*k+r))
        nacc = 32
    c.TMb, c.nWf, c.nacc = TMb, nWf, nacc

def config(name, K, BM, nfull, half, BK, S, ldw, panel_stride, **kw):
    c = G()
    c.name, c.K, c.BM, c.nfull, c.half, c.BK, c.S, c.ldw, c.panel_stride = name, K, BM, nfull, half, BK, S, ldw, panel_stride
    c.xbytes = BM * BK * 2
    c.slot = c.xbytes + nfull * BK * 128 + (BK * 64 if half else 0)
    c.lds = c.slot * S
    c.sX, c.sW = 8, 12
    c.s_mt, c.s_nt, c.s_wave, c.s_col0, c.s_colh = 40, 41, 42, 43, 44
    c.s_kx, c.s_kw, c.s_slot, c.s_px, c.s_pw, c.s_ph, c.s_cnt, c.s_rh, c.s_nh = 45, 46, 47, 48, 49, 50, 51, 52, 53
    c.s_tmp = 54
    c.v_addr = 4; c.v_tmp = 2; c.v_frag = 12; c.ksplit = False; c.xform = False; c.xf = 'dot4'; c.pprio = 0; c.pre_hook2 = None
    c.noexec = False; c.fsplit = 2; c.flags = False; c.fbase = 0; c.SY = 147392; c.v_flag = 252; c.outline = None; c.w1late = False; c.cunroll = 1; c.after_first = None; c.mirror = None; c.rpm_own = 1; c.nown = 0; c.own_hook = None; c.tabs_override = None; c.mirror_off = None; c.wait_hook = None; c.bar_hook = None; c.post_b0p = None; c.step_hook = None; c.pre_b0 = None; c.xKG = None; c.panel_sreg = None; c.boundary0 = None; c.xflags = ''; c.peel1 = False; c.vm_init = []; c.pre_b1 = None; c.post_b1 = None; c.slot0 = 0; c.boundary = None; c.first_c = None; c.post_b0 = None; c.post_b0b = None; c.first_extra = None; c.rows4 = False; c.last_reads = None; c.pre_last_bar = None; c.xch_pre = None; c.xch_post = None; c.unroll = False; c.iter_hook = None; c.acc_init = None; c.natw = False; c.early_issue = None; c.tail_issue = None; c.ptail = None; c.tail_delay = 0; c.loop_extra = None; c.loop_init = None; c.late_hook = None; c.psplit = 1; c.stamps = False; c.gen_dump = False; c.dma_flags = ''; c.KS = 1; c.rpm = 1; c.mfma_before_bar = 0; c.G = 4; c.order = 'lead'; c.lead = S-1; c.s_rot = 39; c.s_tab = 66; c.tab_base = c.lds; c.srd_hook = None; c.swap_frags = (); c.pre_hook = None
    c.no_dma = c.no_lds = c.no_mfma = False
    for k, v in kw.items(): setattr(c, k, v)
    return c
```

```python
import sys
from asmgen import Asm
import gemm, gen
from gen import *
FL = 0x80000
FL8 = 8
MS = 7
ROW = 256 << MS
XB = PHIQ
FL7 = 7 * ROW
opt.plan = 'lqowab'

UT = 0xE8000
OUT = Asm()
def rt(a, i):
    if not opt.ts: return
    r = 11 if getattr(a, 'cons', False) else 255
    a('s_memrealtime s[98:99]\ns_memtime s[100:101]\ns_waitcnt lgkmcnt(0)\nv_writelane_b32 v%d, s98, %d\nv_writelane_b32 v%d, s100, %d' % (r, i, r, 32+i))

def tile_head(a, c, xm, xn, colmul, ptrs):
    for s, o in ptrs: a('s_load_dwordx2 s[%d:%d], s[0:1], %d' % (s, s+1, o))
    c.dma_flags = opt.wflags
    c.flags = c.name in opt.flags; c.outline = OUT; c.noexec = opt.noexec; c.fsplit = opt.fsplit if c.name != 'wo' else 1
    c.fbase = {'qkv': 0, 'wo': 16, 'w1': 32, 'w2': 48}[c.name]
    c.w1late = c.name in opt.w1late
    c.cunroll = opt.cunroll; c.mfma_before_bar = opt.mbb
    if opt.stamp == c.name: c.stamps = True; c.gen_dump = True
    bm = 16 // xm
    a('s_and_b32 s36, s2, 7\ns_lshr_b32 s37, s2, 3')
    a('s_and_b32 s38, s36, %d\ns_lshr_b32 s36, s36, %d' % (bm-1, bm.bit_length()-1))
    a('s_and_b32 s39, s37, %d\ns_lshr_b32 s37, s37, %d' % (xm-1, xm.bit_length()-1))
    a('s_mul_i32 s38, s38, %d\ns_add_u32 s%d, s38, s39' % (xm, c.s_mt))
    a('s_mul_i32 s36, s36, %d\ns_add_u32 s%d, s36, s37' % (xn, c.s_nt))
    a('s_add_u32 s39, s39, s37\ns_and_b32 s%d, s39, %d' % (c.s_rot, c.G-1))
    a('s_mul_i32 s%d, s%d, %d' % (c.s_col0, c.s_nt, colmul))
    if c.half:
        a('s_and_b32 s36, s%d, 1\ns_cmp_eq_u32 s36, 0' % c.s_nt)
        a('s_cselect_b32 s36, 384, 0\ns_cselect_b32 s37, 0, 64')
        a('s_add_u32 s%d, s%d, s36\ns_add_u32 s%d, s%d, s37' % (c.s_colh, c.s_col0, c.s_col0, c.s_col0))

NW = FL + 0
MPT = 0xF0000
def nonce(a):
    a('s_load_dword s3, s[6:7], %d' % NW)
def nonce2(a):
    a('s_mul_i32 s3, s3, 0x9e3779b1\ns_add_u32 s3, s3, 0x7f4a7c15')

def psync(a, tag, sig, s_sig, s_mem, s_wait, n=16, part=None, mask=None):
    if part in (None, 0):
        srd(a, 84, 6, FL, 9*ROW)
        gs = MS if s_mem is None else MS + 4
        a('s_lshl_b32 s88, s%d, %d\ns_add_u32 s88, s88, %d\ns_lshl_b32 s89, s%d, %d\ns_add_u32 s89, s89, %d' % (s_sig, gs, sig*ROW, s_wait, gs, sig*ROW))
        if s_mem is not None: a('s_lshl_b32 s90, s%d, %d\ns_add_u32 s88, s88, s90' % (s_mem, MS))
        a('v_lshlrev_b32 v252, %d, v1' % MS)
        a('v_mov_b32 v253, s3\ns_mov_b32 s90, 200000')
        a('s_barrier')
        rt(a, 2*sig if sig < 8 else 18)
        a('s_cmp_lg_u32 s42, 4\ns_cbranch_scc1 %s_s5' % tag)
        a('s_mov_b64 exec, 1')
        a('buffer_store_dword v253, v252, s[84:87], s88 offen sc1')
        a('s_mov_b64 exec, -1')
        a.label(tag + '_s5')
    if part == 0: return
    a('s_cmp_lg_u32 s42, 5\ns_cbranch_scc1 %s_sx' % tag)
    if mask is None: a('s_mov_b64 exec, 0x%x' % ((1 << n) - 1))
    else:
        mask(a)
        a('s_mov_b32 exec_lo, s91\ns_mov_b32 exec_hi, 0')
    a('buffer_load_dword v253, v252, s[84:87], s89 offen sc1')
    a.label(tag + '_sp')
    a('buffer_load_dword v254, v252, s[84:87], s89 offen sc1')
    a('s_sub_u32 s90, s90, 1\ns_waitcnt vmcnt(1)\nv_cmp_ne_u32 vcc, s3, v253')
    a('s_cmp_eq_u64 vcc, 0\ns_cbranch_scc1 %s_sy' % tag)
    a('buffer_load_dword v253, v252, s[84:87], s89 offen sc1')
    a('s_waitcnt vmcnt(1)\nv_cmp_ne_u32 vcc, s3, v254')
    a('s_cmp_eq_u64 vcc, 0\ns_cbranch_scc1 %s_sy' % tag)
    a('s_cmp_lg_u32 s90, 0\ns_cbranch_scc1 %s_sp' % tag)
    a.label(tag + '_sy')
    a('s_mov_b64 exec, -1')
    if part != 2: rt(a, 2*sig+1 if sig < 8 else 19)
    a.label(tag + '_sx')
    if part != 2: a('s_barrier')

def early_sync(c, tag, sig, first, full=None):
    if not opt.esync: first = full
    def b1(a): psync(a, tag, sig, None, None, None, part=1, mask=first)
    if opt.esync: c.pre_b0 = lambda a, c, vm: psync(a, tag + 'z', sig, None, None, None, part=2, mask=full)
    return b1

def chain(*fs):
    fs = [f for f in fs if f]
    def g(*x):
        for f in fs: f(*x)
    return g
BAR = lambda a, c: a('s_barrier')

def ln1_body(a, c, TB):
    SS = TB + 8192
    a('s_lshl_b32 s20, s%d, 3\ns_lshr_b32 s21, s%d, 1\ns_add_u32 s20, s20, s21\ns_and_b32 s21, s%d, 1' % (c.s_mt, c.s_nt, c.s_nt))
    a('v_lshrrev_b32 v2, 6, v0\nv_and_b32 v3, 15, v0\nv_bfe_u32 v4, v0, 4, 2')
    a('v_lshlrev_b32 v5, 11, v3\nv_lshl_add_u32 v5, v2, 8, v5\nv_lshl_add_u32 v5, v4, 4, v5')
    a('s_lshl_b32 s22, s20, 15\ns_lshl_b32 s23, s21, 10\ns_add_u32 s23, s23, s22\ns_xor_b32 s25, s23, 1024')
    a('s_waitcnt lgkmcnt(0)')
    nonce(a)
    srd(a, 8, 34, 0, 0x400000)
    a('s_barrier')
    D = 32; M = 144
    for u in range(4): a('buffer_load_dwordx4 v[%d:%d], v5, s[8:11], s23 offen offset:%d%s' % (D+4*u, D+4*u+3, 64*u, opt.xflags))
    for u in range(4): a('buffer_load_dwordx4 v[%d:%d], v5, s[8:11], s25 offen offset:%d%s' % (M+4*u, M+4*u+3, 64*u, opt.xflags))
    srd(a, 12, 6, MPT, 65536); srd(a, 28, 6, H1F, 0x400000)
    a('v_lshlrev_b32 v7, 4, v0\ns_lshl_b32 s24, s21, 12\nv_mov_b32 v12, 0x3f803f80')
    a('v_lshlrev_b32 v6, 5, v3\nv_add_u32 v6, %d, v6\nv_lshl_add_u32 v10, v2, 3, v6' % SS)
    for q in range(8):
        a('s_waitcnt vmcnt(%d)' % (7-q))
        for e in range(4):
            r = (D if q < 4 else M) + 4*(q % 4) + e
            a('v_dot2_f32_bf16 v%d, v%d, v12, %s' % (16+e, r, '0' if q == 0 else 'v%d' % (16+e)))
            a('v_dot2_f32_bf16 v%d, v%d, v%d, %s' % (20+e, r, r, '0' if q == 0 else 'v%d' % (20+e)))
    a('v_add_f32 v16, v16, v17\nv_add_f32 v18, v18, v19\nv_add_f32 v20, v20, v21\nv_add_f32 v22, v22, v23\nv_add_f32 v16, v16, v18\nv_add_f32 v17, v20, v22')
    xg_sum(a, [16, 17], [18, 19])
    a('ds_write_b64 v10, v[16:17]')
    def mloads():
        for p in range(4):
            for w, ch in enumerate((1, 0)):
                a('s_add_u32 s26, s24, %d' % (p*16384 + ch*8192))
                a('buffer_load_dwordx4 v[%d:%d], v7, s[12:15], s26 offen sc1' % (M+8*p+4*w, M+8*p+4*w+3))
    if opt.earlym: mloads()
    X = 48
    for i in range(16): unpack(a, X+2*i, X+2*i+1, D+i)
    a('s_waitcnt lgkmcnt(0)')
    nonce2(a)
    rt(a, 20)
    a('s_mov_b32 s27, 200000\ns_barrier')
    rt(a, 21)
    a('ds_read_b128 v[16:19], v6\nds_read_b128 v[20:23], v6 offset:16')
    if opt.earlym: a('s_branch ln1_chk')
    a.label('ln1_poll')
    mloads()
    a.label('ln1_chk')
    a('s_sub_u32 s27, s27, 1\ns_waitcnt vmcnt(0)')
    tg = [M+2*i+1 for i in range(16)]
    for op, d in (('v_min3_u32', 24), ('v_max3_u32', 25)):
        a('%s v%d, v%d, v%d, v%d' % (op, d, tg[0], tg[1], tg[2]))
        for i in range(3, 15, 2): a('%s v%d, v%d, v%d, v%d' % (op, d, d, tg[i], tg[i+1]))
        a('%s v%d, v%d, v%d, v%d' % (op, d, d, tg[15], tg[15]))
    a('v_xor_b32 v24, s3, v24\nv_xor_b32 v25, s3, v25\nv_or_b32 v24, v24, v25\nv_cmp_ne_u32 vcc, 0, v24')
    a('s_cmp_eq_u64 vcc, 0\ns_cbranch_scc1 ln1_ok\ns_cmp_lg_u32 s27, 0\ns_cbranch_scc1 ln1_poll')
    a.label('ln1_ok')
    rt(a, 22)
    if opt.ts: a('v_writelane_b32 v11, s27, 23')
    a('v_lshrrev_b32 v6, 2, v0\nv_lshlrev_b32 v6, 6, v6\nv_and_b32 v7, 3, v0\nv_lshl_add_u32 v6, v7, 3, v6\nv_add_u32 v6, %d, v6' % TB)
    for e in (0, 2, 4, 6): a('v_add_f32 v%d, v%d, v%d\nv_add_f32 v%d, v%d, v%d' % (M+e, M+e, M+8+e, M+16+e, M+16+e, M+24+e))
    for k_, e in enumerate((0, 2, 4, 6)): a('v_add_f32 v%d, v%d, v%d' % (24+k_, M+e, M+16+e))
    M = 24
    rndn(a, [M, M+1, M+2, M+3], [M+4, M+5])
    a('v_add_f32 v%d, 1.0, v%d\nv_add_f32 v%d, 1.0, v%d' % (M, M, M+1, M+1))
    rndn(a, [M, M+1], [M+4])
    a('ds_write_b64 v6, v[%d:%d]\nds_write_b64 v6, v[%d:%d] offset:32' % (M, M+1, M+2, M+3))
    a('s_waitcnt lgkmcnt(2)')
    a('v_pk_add_f32 v[16:17], v[16:17], v[18:19]\nv_pk_add_f32 v[20:21], v[20:21], v[22:23]\nv_pk_add_f32 v[16:17], v[16:17], v[20:21]')
    a('v_mul_f32 v9, 0x3a800000, v16\nv_mov_b32 v18, 0x3a800000\nv_mul_f32 v8, v9, v9\nv_fma_f32 v8, v17, v18, -v8')
    a('v_max_f32 v8, 0, v8\nv_add_f32 v8, 0x3727c5ac, v8\nv_rsq_f32 v8, v8')
    a('v_lshlrev_b32 v6, 10, v2\nv_lshl_add_u32 v6, v4, 6, v6\nv_add_u32 v6, %d, v6' % TB)
    a('v_lshlrev_b32 v5, 12, v2\nv_lshl_add_u32 v5, v1, 4, v5\ns_lshl_b32 s23, s21, 14\ns_add_u32 s23, s23, s22')
    a('s_waitcnt lgkmcnt(0)\ns_barrier')
    T = 80; X = 48
    for u in range(4):
        for e in range(4): a('ds_read_b128 v[%d:%d], v6 offset:%d' % (T+16*u+4*e, T+16*u+4*e+3, 256*u+16*e))
    a('v_mul_f32 v9, -v9, v8')
    for i in range(0, 32, 2): a('v_pk_fma_f32 v[%d:%d], v[%d:%d], v[8:9], v[8:9] op_sel:[0,0,1] op_sel_hi:[1,0,1]' % (X+i, X+i+1, X+i, X+i+1))
    for u in range(4):
        a('s_waitcnt lgkmcnt(%d)' % (12-4*u))
        for e in range(0, 8, 2): a('v_pk_fma_f32 v[%d:%d], v[%d:%d], v[%d:%d], v[%d:%d]' % (X+8*u+e, X+8*u+e+1, X+8*u+e, X+8*u+e+1, T+16*u+e, T+16*u+e+1, T+16*u+8+e, T+16*u+9+e))
        for e in range(4): a('v_cvt_pk_bf16_f32 v%d, v%d, v%d' % (D+4*u+e, X+8*u+2*e, X+8*u+2*e+1))
        a('buffer_store_dwordx4 v[%d:%d], v5, s[28:31], s23 offen offset:%d' % (D+4*u, D+4*u+3, 1024*u))
    a('s_waitcnt vmcnt(0)\ns_barrier')

KB, RW = 160, 176
def o_loads(a):
    srd(a, 16, 6, KVP, 0x2000000); srd(a, 20, 6, ZP, 0x200000)
    a('s_lshr_b32 s60, s42, 2\ns_lshl_b32 s61, s41, 1\ns_add_u32 s60, s60, s61\ns_and_b32 s61, s42, 3')
    a('s_lshl_b32 s62, s60, 16\ns_lshl_b32 s63, s61, 10\ns_add_u32 s62, s62, s63')
    a('s_lshl_b32 s63, s60, 12\ns_lshl_b32 s64, s61, 6\ns_add_u32 s63, s63, s64')
    a('v_lshlrev_b32 v156, 4, v1\nv_lshrrev_b32 v157, 4, v1\nv_lshlrev_b32 v157, 4, v157\nv_and_b32 v158, 15, v1\nv_lshl_add_u32 v157, v158, 8, v157')
    a('buffer_load_dwordx4 v[%d:%d], v157, s[20:23], s63 offen sc1' % (KB+8, KB+11))
    for m in range(16):
        a('s_lshl_b32 s64, s40, 1\ns_add_u32 s64, s64, %d\ns_and_b32 s64, s64, 15\ns_lshl_b32 s64, s64, 12\ns_add_u32 s64, s64, s62' % m)
        a('buffer_load_dwordx4 v[%d:%d], v156, s[16:19], s64 offen sc1' % (RW+4*m, RW+4*m+3))
    return ['oz'] + [('ok', m) for m in range(16)]
def o_reduce(a, vm):
    S = 244
    a('v_mov_b32 v%d, 0\nv_mov_b32 v%d, 0\nv_mov_b32 v%d, 0\nv_mov_b32 v%d, 0' % (S, S+1, S+4, S+5))
    a('v_bfe_u32 v157, v1, 2, 2\nv_lshrrev_b32 v158, 4, v1\nv_cmp_eq_u32 vcc, v157, v158')
    a('v_and_b32 v157, 1, v1\nv_lshlrev_b32 v157, 4, v157\nv_mov_b32 v158, 0x3f80\nv_lshlrev_b32 v157, v157, v158\nv_cndmask_b32 v157, 0, v157, vcc')
    a('v_and_b32 v158, 2, v1\nv_cmp_eq_u32 vcc, 0, v158\nv_cndmask_b32 v%d, 0, v157, vcc\nv_cndmask_b32 v%d, v157, v%d, vcc' % (S+2, S+3, S))
    vm.wait('oz')
    dpp_sum(a, [KB+8+e for e in range(4)], DPP16)
    for m in range(16):
        vm.wait(('ok', m))
        for h in range(2):
            d = KB + 4*h; A_ = S + 2 - 2*h
            a('v_mfma_f32_16x16x32_bf16 v[%d:%d], v[%d:%d], v[%d:%d], %s' % (d, d+3, A_, A_+3, RW+4*m, RW+4*m+3, '0' if m == 0 else 'v[%d:%d]' % (d, d+3)))
    a('s_lshr_b32 s60, s42, 2\ns_mul_i32 s60, s60, 6144\ns_bfe_u32 s61, s42, 0x10001\ns_lshl_b32 s61, s61, 10\ns_add_u32 s60, s60, s61\ns_and_b32 s61, s42, 1')
    a('s_lshl_b32 s62, s61, 11\ns_add_u32 s62, s62, s60\ns_lshl_b32 s61, s61, 3\ns_add_u32 s60, s60, s61')
    a('v_add_u32 v157, s60, v156\nv_add_u32 v158, s62, v156')
    for e in range(2): a('v_cvt_pk_bf16_f32 v%d, v%d, v%d' % (KB+12+e, KB+8+2*e, KB+9+2*e))
    a('ds_write_b64 v157, v[%d:%d] offset:4096' % (KB+12, KB+13))
    for e in range(4): a('v_cvt_pk_bf16_f32 v%d, v%d, v%d' % (RW+e, KB+2*e, KB+2*e+1))
    a('ds_write_b128 v158, v[%d:%d]' % (RW, RW+3))
    a('s_waitcnt lgkmcnt(0)\ns_barrier')
def o_compute(a, PHI, half):
    AF = RW; R = AF + 24
    srd(a, 20, 6, OF, 0x400000)
    a('s_and_b32 s60, s42, 1\ns_mul_i32 s60, s60, 6144\nv_add_u32 v157, s60, v156')
    for t in range(3):
        for gam in range(2): a('ds_read_b128 v[%d:%d], v157 offset:%d' % (AF+(t*2+gam)*4, AF+(t*2+gam)*4+3, (t*2+gam)*1024))
    a('s_bfe_u32 s60, s42, 0x10001\ns_lshl_b32 s61, s93, 1\ns_add_u32 s60, s60, s61\ns_lshl_b32 s60, s60, 17\ns_lshl_b32 s61, s58, 10\ns_add_u32 s60, s60, s61')
    if half: a('s_add_u32 s60, s60, 65536')
    a('s_waitcnt lgkmcnt(0)')
    for gam in range(2):
        for t in (2, 0, 1):
            for i in range(2):
                d = R + (i*3+t)*4; A_ = AF+(t*2+gam)*4; B_ = PHI[(i, gam)]
                a('v_mfma_f32_16x16x32_bf16 v[%d:%d], v[%d:%d], v[%d:%d], %s' % (d, d+3, A_, A_+3, B_, B_+3, '0' if gam == 0 else 'v[%d:%d]' % (d, d+3)))
    dens = [R+(i*3+2)*4 for i in range(2)]
    for d in dens: a('v_add_f32 v%d, 0x358637bd, v%d' % (d, d))
    for d in dens: a('v_rcp_f32 v%d, v%d' % (d, d))
    for i in range(2):
        xs = list(range(R+i*12, R+i*12+8))
        for x in xs[::2]: a('v_pk_mul_f32 v[%d:%d], v[%d:%d], v[%d:%d] op_sel_hi:[1,0]' % (x, x+1, x, x+1, dens[i], dens[i]+1))
        for e in range(4): a('v_cvt_pk_bf16_f32 v%d, v%d, v%d' % (KB+4*i+e, xs[2*e], xs[2*e+1]))
        a('buffer_store_dwordx4 v[%d:%d], v156, s[20:23], s60 offen' % (KB+4*i, KB+4*i+3))
        a('s_add_u32 s60, s60, 32768')
    a('s_waitcnt vmcnt(0)')

def feat2(a, QF, P, E, MX, W, sL, sink, mid=None, midpos=1):
    for i in range(2):
        for ft in range(2):
            t = P + i*8 + ft*4
            a('v_mfma_f32_16x16x32_bf16 v[%d:%d], v[%d:%d], v[%d:%d], 0' % (t, t+3, W+ft*4, W+ft*4+3, QF+4*i, QF+4*i+3))
    for rnd in range(4):
        for q in range(4):
            i = q % 2; n = '-' if q >= 2 else ''; b = P + 8*i
            if rnd == 0: a('v_max3_f32 v%d, %sv%d, %sv%d, %sv%d' % (MX+q, n, b, n, b+1, n, b+2))
            elif rnd < 3: a('v_max3_f32 v%d, v%d, %sv%d, %sv%d' % (MX+q, MX+q, n, b+1+2*rnd, n, b+2+2*rnd))
            else: a('v_max_f32 v%d, %sv%d, v%d' % (MX+q, n, b+7, MX+q))
    for st in bfly(a, 'v_max_f32', [MX+q for q in range(4)]):
        for l in st: a(l)
    for q in range(4): a('v_mul_f32 v%d, s%d, v%d' % (MX+q, sL, MX+q))
    for i in range(2):
        for e in range(8): a('v_fma_f32 v%d, v%d, s%d, -v%d' % (E+8*i+e, P+8*i+e, sL, MX+i))
        for e in range(8): a('v_fma_f32 v%d, -v%d, s%d, -v%d' % (P+8*i+e, P+8*i+e, sL, MX+2+i))
    if mid and midpos == 0: mid()
    for i in range(16): a('v_exp_f32 v%d, v%d\nv_exp_f32 v%d, v%d' % (E+i, E+i, P+i, P+i))
    if mid and midpos == 1: mid()
    B_ = [E, E+8, P, P+8]
    for q in range(4): a('v_add_f32 v%d, v%d, v%d' % (MX+q, B_[q], B_[q]+1))
    for e in range(2, 8):
        for q in range(4): a('v_add_f32 v%d, v%d, v%d' % (MX+q, MX+q, B_[q]+e))
    for st in bfly(a, 'v_add_f32', [MX+q for q in range(4)]):
        for l in st: a(l)
    if mid and midpos == 2: mid()
    for q in range(4): a('v_rcp_f32 v%d, v%d' % (MX+q, MX+q))
    for q in range(4):
        for e in range(8): a('v_mul_f32 v%d, v%d, v%d' % (B_[q]+e, B_[q]+e, MX+q))
        for e in range(4): a('v_cvt_pk_bf16_f32 v%d, v%d, v%d' % (B_[q]+e, B_[q]+2*e, B_[q]+2*e+1))
        sink(q % 2, q // 2, B_[q])

def img_addr(a, WA, s_w, IMG):
    a('v_and_b32 v2, 15, v1\nv_lshrrev_b32 v3, 4, v1')
    hrow(a, 6, 2, 5)
    a('v_xor_b32 v6, v6, v3\nv_lshlrev_b32 v2, 7, v2')
    a('s_lshl_b32 s61, s%d, 13\ns_add_u32 s61, s61, %d\nv_add_u32 v2, s61, v2' % (s_w, IMG))
    for u in range(4): a('v_xor_b32 v5, %d, v6\nv_lshl_add_u32 v%d, v5, 3, v2' % (4*u, WA+u))
def hrow(a, dst, row, t):
    a('v_lshrrev_b32 v%d, 1, v%d\nv_and_b32 v%d, 3, v%d\nv_lshlrev_b32 v%d, 2, v%d' % (dst, row, dst, dst, dst, dst))
    a('v_and_b32 v%d, 1, v%d\nv_or_b32 v%d, v%d, v%d' % (t, row, dst, dst, t))
    a('v_lshrrev_b32 v%d, 2, v%d\nv_and_b32 v%d, 2, v%d\nv_or_b32 v%d, v%d, v%d' % (t, row, t, t, dst, dst, t))

def phase0(a, GS):
    V = 8; T = 48; CT = GS + 2048
    a('s_and_b32 s60, s2, 7\ns_lshl_b32 s60, s60, 3\ns_bfe_u32 s61, s2, 0x30003\ns_add_u32 s60, s60, s61\ns_lshr_b32 s61, s2, 6')
    a('s_lshl_b32 s62, s61, 9\ns_mul_i32 s63, s61, %d\ns_lshl_b32 s64, s60, 6\ns_add_u32 s63, s63, s64' % (256*12288))
    a('v_and_b32 v2, 255, v0\nv_mov_b32 v5, %d\nv_mov_b32 v6, 0\nv_mov_b32 v7, 0\nds_write_b32 v5, v6\nv_mov_b32 v3, 147392\nds_write_b64 v3, v[6:7]\ns_waitcnt lgkmcnt(0)' % CT)
    srd(a, 20, 74, 0, 2048); srd(a, 24, 76, 0, 1024*12288)
    vm = gemm.VM(a)
    gemv_issue(a, 4, 2, V, 20, 24, 62, 63, vm, R=4)
    a('s_barrier')
    nonce(a)
    def cpf():
        a('s_lshr_b32 s62, s2, 3\ns_cmp_eq_u32 s42, 7\ns_cselect_b32 s62, s62, 8\ns_min_u32 s62, s62, 8')
        code_pf(a, 'ph0', 'ph0_done', 'code_end', 62, 8, 250, 1, 64)
        vm.issue('cpf')
    if not opt.cpflate: cpf()
    srd(a, 16, 6, MPT, 65536)
    gemv_math(a, 4, V, T, vm, 58, R=4)
    a('v_lshrrev_b32 v3, 4, v2\nv_lshlrev_b32 v3, 7, v3\nv_and_b32 v4, 3, v1\nv_lshl_add_u32 v3, v4, 5, v3\nv_add_u32 v3, %d, v3' % GS)
    a('ds_write_b128 v3, v[%d:%d]\nds_write_b128 v3, v[%d:%d] offset:16' % (T+8, T+11, T+12, T+15))
    a('v_and_b32 v4, 31, v1\nv_lshrrev_b32 v3, 5, v1\nv_lshlrev_b32 v3, 10, v3\nv_lshl_add_u32 v3, v4, 2, v3\nv_add_u32 v3, %d, v3' % GS)
    a('s_lshl_b32 s60, s60, 8\ns_lshl_b32 s61, s61, 14\ns_add_u32 s60, s60, s61\nv_lshlrev_b32 v4, 3, v4\nv_mov_b32 v6, 1\ns_waitcnt lgkmcnt(0)')
    nonce2(a)
    a('s_mov_b64 exec, 1\nds_add_rtn_u32 v6, v5, v6\ns_mov_b64 exec, -1\ns_waitcnt lgkmcnt(0)')
    a('v_readfirstlane_b32 s59, v6\ns_cmp_lg_u32 s59, 3\ns_cbranch_scc1 ph0_nl')
    for p in range(8): a('ds_read_b32 v%d, v3 offset:%d' % (V+p, 128*p))
    a('v_mov_b32 v%d, s3\ns_waitcnt lgkmcnt(0)' % (V+9))
    for s_ in (4, 2):
        for p in range(s_): a('v_add_f32 v%d, v%d, v%d' % (V+p, V+p, V+p+s_))
    a('v_add_f32 v%d, v%d, v%d\nv_add_f32 v%d, v%d, v%d' % (V+8, V, V+1, V+2, V, V+1))
    a('v_permlane32_swap_b32 v%d, v%d\nv_add_f32 v%d, v%d, v%d' % (V+8, V+2, V+8, V+8, V+2))
    a('s_mov_b64 exec, 0xffffffff\nbuffer_store_dwordx2 v[%d:%d], v4, s[16:19], s60 offen\ns_mov_b64 exec, -1' % (V+8, V+9))
    a.label('ph0_nl')
    rt(a, 0)
    if opt.cpflate: cpf()
    srd(a, 16, 6, ZP, FL + 9*ROW - ZP)
    a('s_lshl_b32 s62, s2, 9\ns_lshl_b32 s63, s2, 11\ns_add_u32 s63, s63, %d\ns_cmp_eq_u32 s42, 4\ns_cselect_b32 s62, s62, s63\ns_cselect_b32 s63, 3, 15\ns_cmp_gt_u32 s42, 5\ns_cselect_b32 s62, 0x7000000, s62' % (FL - ZP))
    a('v_min_u32 v249, s63, v1\nv_lshlrev_b32 v249, 7, v249')
    a('buffer_load_dword v251, v249, s[16:19], s62 offen')
    a('s_lshl_b32 s62, s2, 8')
    for q in range(4): a('s_add_u32 s63, s62, %d\ns_load_dword s59, s[32:33], s63' % (64*q))
    a('s_and_b32 s62, s2, 31\ns_lshl_b32 s62, s62, 6\ns_load_dword s59, s[30:31], s62')
    a('s_min_u32 s62, s2, 111\ns_lshl_b32 s62, s62, 6\ns_load_dword s59, s[34:35], s62')
    if opt.wlate & 1: a('s_barrier')
    a.label('ph0_done')

def ph_qkv(P, C, st):
    c = gemm.config('qkv', 1024, 128, 3, False, 64, 3, 6144, 2048, swap_frags=(4, 5), natw=True, tail_delay=opt.td0)
    WPH = c.lds; FLG = WPH + 4096
    EB = c.slot
    IMG = EB; VB = EB + 32768; QB = VB + 16384; GV = QB + 16384
    s_hd = 58; sL = 60
    tile_head(P, c, 8, 4, 128, [(74, P_C), (76, P_WMOD), (6, P_WS), (4, P_WQKV), (32, P_WPHI), (78, P_WO), (34, P_B1), (30, P_B2)])
    phase0(P, 2*c.slot + 4096)
    c.srd_hook = lambda a: [srd(a, *x) for x in [(8, 6, H1F, 0x400000), (12, 4, 0, 1024*6144)]]
    def boundary0(a, c, vm):
        if not opt.wlate & 1: a('s_barrier')
        a('s_barrier')
        psync(a, 'f1', 1, c.s_mt, c.s_nt, c.s_mt, part=0)
    def boundary(a, c, vm):
        if not opt.wlate & 1: boundary0(a, c, vm)
        early_sync(c, 'f1', 1, lambda a: a('s_lshr_b32 s36, s36, 3\ns_lshr_b32 s37, s37, 3\ns_lshl_b32 s91, 0x5555, s36\ns_lshl_b32 s37, 0x5555, s37\ns_or_b32 s91, s91, s37'))(a)
    c.boundary = boundary
    if opt.wlate & 1: c.boundary0 = boundary0
    if opt.xsc1: c.xflags = ' sc1'
    def early_issue(a, c, vm):
        V = c.p_vfree
        srd(a, 16, 32, 0, 65536)
        a('v_lshrrev_b32 v%d, 3, v1\nv_and_b32 v%d, 2, v%d\nv_xor_b32 v%d, v1, v%d\nv_lshlrev_b32 v%d, 4, v%d' % (V, V, V, V, V, V, V))
        a('s_sub_u32 s59, s%d, 4\ns_lshl_b32 s59, s59, 10\ns_add_u32 m0, s59, %d\ns_lshl_b32 s61, s%d, 12\ns_add_u32 s59, s59, s61' % (c.s_wave, WPH, c.s_nt))
        a('buffer_load_dwordx4 v%d, s[16:19], s59 offen lds' % V)
        vm.issue('wphi')
    def tail_issue(a, c, vm):
        V = (c.p_vfree + 3)//4*4
        srd(a, 20, 74, 0, 2048); srd(a, 24, 76, 0, 1024*12288)
        a('s_lshr_b32 s61, s2, 6\ns_lshl_b32 s62, s61, 9\ns_mul_i32 s63, s61, %d' % (256*12288))
        a('s_and_b32 s64, s2, 63\ns_lshl_b32 s65, s64, 7\ns_add_u32 s63, s63, s65\ns_add_u32 s63, s63, 4096')
        a('v_and_b32 v%d, 255, v0' % (V+38))
        srd(a, 16, 34, 0, 7168)
        a('s_min_u32 s59, s2, 64\ns_mul_i32 s59, s59, 448\nv_lshlrev_b32 v249, 1, v%d\nbuffer_load_ushort v248, v249, s[16:19], s59 offen' % (V+38))
        vm.issue('b1')
        gemv_issue(a, 8, V+38, V, 20, 24, 62, 63, vm)
        for t_ in prefetch(a, c, 3 & ~opt.pfo): vm.issue(t_)
    def prefetch(a, c, which):
        V = (c.p_vfree + 3)//4*4
        tags = []
        if opt.pf2 and which & 1:
            srd(a, 28, 78, 0, 1024*2048)
            a('v_lshlrev_b32 v%d, 11, v%d\nv_lshl_add_u32 v%d, v%d, 7, v%d' % (V+39, c.p_vrow, V+39, c.p_vch, V+39))
            a('s_lshr_b32 s62, s2, 3\ns_lshl_b32 s62, s62, 2\ns_add_u32 s62, s62, s%d\ns_sub_u32 s62, s62, 4\ns_lshl_b32 s62, s62, 14' % c.s_wave)
            a('s_bfe_u32 s63, s2, 0x10002\ns_lshl_b32 s63, s63, 10\ns_add_u32 s62, s62, s63')
            a('buffer_load_dword v%d, v%d, s[28:31], s62 offen' % (251, V+39))
            tags.append('pf')
        if opt.pf5 and which & 2:
            a('s_load_dwordx2 s[30:31], s[0:1], %d' % P_W1)
            a('v_lshrrev_b32 v%d, 4, v1\nv_mul_u32_u24 v%d, 7168, v%d\nv_and_b32 v%d, 15, v1\nv_min_u32 v%d, 13, v%d\nv_lshl_add_u32 v%d, v%d, 7, v%d' % (V+39, V+39, V+39, 250, 250, 250, V+39, 250, V+39))
            a('s_lshr_b32 s62, s2, 3\ns_mul_i32 s62, s62, %d\ns_sub_u32 s63, s42, 4\ns_lshl_b32 s63, s63, 2\ns_add_u32 s62, s62, s63\ns_and_b32 s63, s2, 1\ns_lshl_b32 s63, s63, 9\ns_add_u32 s62, s62, s63\ns_mul_i32 s62, s62, 7168' % opt.pf5)
            a('s_bfe_u32 s63, s2, 0x20001\ns_mul_i32 s63, s63, 1792\ns_add_u32 s62, s62, s63\ns_waitcnt lgkmcnt(0)')
            srd(a, 28, 30, 0, 1024*7168)
            a('buffer_load_dword v%d, v%d, s[28:31], s62 offen' % (251, V+39))
            tags.append('pf')
        return tags

    PHI = {}
    def ptail(a, c, vm):
        V = (c.p_vfree + 3)//4*4
        QF = V + 40; P_ = QF + 20; E = P_ + 16; MX = E + 16; W = MX + 4; T = W + 8
        assert T + 24 <= 156 and P_ >= 48
        srd(a, 16, 6, UT, 32768)
        a('s_min_u32 s59, s2, 64\ns_lshl_b32 s59, s59, 11\nv_lshlrev_b32 v249, 1, v249\nv_mov_b32 v247, 0')
        vm.wait('b1')
        a('v_lshlrev_b32 v248, 16, v248\nbuffer_store_dword v247, v249, s[16:19], s59 offen sc1\nbuffer_store_dword v248, v249, s[16:19], s59 offen offset:1024 sc1')
        vm.issue('ut', 2)
        srd(a, 24, 6, MP2, 65536)
        a('s_mov_b32 s%d, 0x%x' % (sL, LOG2E))
        a('s_and_b32 s%d, s%d, 1' % (c.s_nh, c.s_wave))
        wphi_read(a, W, c.s_nh, WPH, 2, 3)
        a('s_lshl_b32 s59, s%d, 1\ns_add_u32 s%d, s59, s%d' % (c.s_nt, s_hd, c.s_nh))
        a('s_lshl_b32 s61, s61, 14\ns_lshl_b32 s64, s64, 8\ns_add_u32 s64, s64, s61')
        a('s_sub_u32 s61, s%d, 4\ns_lshl_b32 s62, s61, 12\ns_add_u32 s62, s62, %d' % (c.s_wave, QB))
        a('v_lshl_add_u32 v4, v1, 4, s62\ns_sub_u32 s62, s42, 4')
        WA = QF + 16
        img_addr(a, WA, 62, IMG)
        a('s_barrier')
        for i in range(4): a('ds_read_b128 v[%d:%d], v4 offset:%d' % (QF+4*i, QF+4*i+3, 1024*i))
        a('s_waitcnt lgkmcnt(2)')
        def sinkk(i, sg, B):
            for ft in range(2): a('ds_write_b64 v%d, v[%d:%d] offset:%d' % (WA+2*sg+ft, B+2*ft, B+2*ft+1, (2+i)*2048))
        feat2(a, QF, P_, E, MX, W, sL, sinkk)
        a('s_waitcnt lgkmcnt(0)\ns_barrier')
        def sink(i, sg, B): PHI[(i, sg)] = B
        def mid():
            vm.wait('ut')
            psync(a, 'f2', 2, c.s_nt, c.s_mt, c.s_nt, part=0)
        feat2(a, QF+8, P_, E, MX, W, sL, sink, mid, opt.midpos)
        if opt.midpos == 3: mid()
        rt(a, 14)
        gemv_math(a, 8, V, T, vm, 59)
        a('v_lshrrev_b32 v2, 4, v%d\nv_lshlrev_b32 v2, 8, v2\nv_and_b32 v5, 7, v1\nv_lshl_add_u32 v2, v5, 5, v2\nv_add_u32 v2, %d, v2' % (V+38, GV))
        a('ds_write_b128 v2, v[%d:%d]\nds_write_b128 v2, v[%d:%d] offset:16' % (T+8, T+11, T+12, T+15))
        a('v_mov_b32 v5, %d\nv_mov_b32 v6, 1\ns_waitcnt lgkmcnt(0)' % (FLG+16))
        a('s_mov_b64 exec, 1\nds_add_rtn_u32 v6, v5, v6\ns_mov_b64 exec, -1\ns_waitcnt lgkmcnt(0)')
        a('v_readfirstlane_b32 s59, v6\ns_cmp_lg_u32 s59, 3\ns_cbranch_scc1 qkv_gvx')
        a('v_lshlrev_b32 v5, 2, v1\nv_add_u32 v6, %d, v5' % GV)
        for p in range(16): a('ds_read_b32 v%d, v6 offset:%d' % (T+p, 256*p))
        a('s_and_b32 s59, s2, 63\ns_lshl_b32 s59, s59, 2\ns_lshr_b32 s61, s2, 6\ns_add_u32 s59, s59, s61\ns_lshl_b32 s59, s59, %d\ns_add_u32 s59, s59, %d' % (MS, FL7))
        a('s_waitcnt lgkmcnt(0)')
        for s_ in (8, 4, 2, 1):
            for p in range(s_): a('v_add_f32 v%d, v%d, v%d' % (T+p, T+p, T+p+s_))
        a('buffer_store_dword v%d, v5, s[24:27], s64 offen sc1' % T)
        a('v_mov_b32 v6, s3\ns_waitcnt vmcnt(0)\ns_mov_b64 exec, 1')
        a('buffer_store_dword v6, v252, s[84:87], s59 offen sc1')
        a('s_mov_b64 exec, -1')
        a.label('qkv_gvx')
        rt(a, 15)
        psync(a, 'f2', 2, c.s_nt, c.s_mt, c.s_nt, part=1)
        a('s_mov_b32 s93, s%d\ns_mov_b32 s97, s%d' % (c.s_mt, c.s_nt))
        a('s_or_b32 s59, s2, s42\ns_cmp_lg_u32 s59, 4\ns_cbranch_scc1 qkv_nn\ns_mov_b32 s59, %d\nv_mov_b32 v253, s3\ns_mov_b64 exec, 1' % (NW - FL))
        a('buffer_store_dword v253, v252, s[84:87], s59 offen sc1\ns_mov_b64 exec, -1')
        a.label('qkv_nn')
        st['vm_init'] = vm.ops[vm.done+1:] + o_loads(a) + prefetch(a, c, opt.pfo)
    c.first_c = lambda c, j: '0'
    c.unroll = opt.unroll
    c.early_issue, c.tail_issue, c.ptail = early_issue, tail_issue, ptail
    gemm.producer(P, c, None)
    if opt.ts and c.flags: P('v_writelane_b32 v255, s70, %d' % (24 + c.fbase//16))
    st['PHI'] = PHI
    a = C
    tile_head(a, c, 8, 4, 128, [(6, P_WS), (34, P_X)])
    ln1_body(a, c, 2*c.slot)
    rt(a, 1)
    for x in [(24, 6, KVP, 0x2000000), (28, 6, ZP, 0x200000)]: srd(a, *x)
    def zero_flags(a, c):
        a('v_lshlrev_b32 v2, 2, v1\nv_add_u32 v2, %d, v2\nv_mov_b32 v3, 0\nds_write_b32 v2, v3\ns_waitcnt lgkmcnt(0)' % FLG)
    c.pre_hook2 = chain(zero_flags, BAR)
    c.post_b0 = lambda a, c: rt(a, 2)
    gemm.consumer(a, c)
    if c.stamps: gemm.dump_stamps(a, c)
    if opt.ts and c.flags: a('v_writelane_b32 v11, s70, %d' % (24 + c.fbase//16))
    rt(a, 3)
    a('s_lshl_b32 s%d, s%d, 1\ns_add_u32 s%d, s%d, s%d' % (s_hd, c.s_nt, s_hd, s_hd, c.s_nh))
    wphi_read(a, c.v_free, c.s_nh, WPH, 2, 3)
    W = c.v_free
    ACC = lambda j, i, r=0: c.v_acc + (j*4+i)*4 + r
    QF = 12; HB = 28; P_ = W + 8; E = P_ + 16; MX = E + 16; WA = MX + 4; RA = WA + 4; QQ = RA + 2 + 2
    a('s_mov_b32 s%d, 0x%x' % (sL, LOG2E))
    a('v_lshlrev_b32 v4, 4, v1')
    a('s_lshl_b32 s61, s%d, 12\ns_add_u32 s61, s61, %d' % (c.s_wave, QB))
    a('v_add_u32 v3, s61, v4')
    def pack(dst, j0, i):
        for h in range(2):
            for e in range(2): a('v_cvt_pk_bf16_f32 v%d, v%d, v%d' % (dst+2*h+e, ACC(j0+h, i, 2*e), ACC(j0+h, i, 2*e+1)))
    for n_, (j0, i) in enumerate(((2, 2), (2, 3), (0, 2), (0, 3))):
        pack(HB+4*n_, j0, i)
        a('ds_write_b128 v3, v[%d:%d] offset:%d' % (HB+4*n_, HB+4*n_+3, 1024*n_))
    pack(QF, 2, 0); pack(QF+4, 2, 1)
    a('s_waitcnt lgkmcnt(0)\ns_barrier')
    rt(a, 28)
    img_addr(a, WA, c.s_wave, IMG)
    def sink(i, sg, B):
        for ft in range(2): a('ds_write_b64 v%d, v[%d:%d] offset:%d' % (WA+2*sg+ft, B+2*ft, B+2*ft+1, i*2048))
    feat2(a, QF, P_, E, MX, W, sL, sink)
    pack(QQ, 0, 0); pack(QQ+4, 0, 1)
    a('s_lshl_b32 s61, s%d, 1\ns_add_u32 s61, s61, s%d\ns_lshl_b32 s61, s61, 12\ns_add_u32 s61, s61, %d' % (c.s_nh, c.s_rh, VB))
    a('v_add_u32 v3, s61, v4')
    for gam in range(2):
        for dt in range(2):
            q = c.v_acc + (gam*2+dt)*4
            for h in range(2):
                for e in range(2): a('v_cvt_pk_bf16_f32 v%d, v%d, v%d' % (q+2*h+e, ACC(4+dt, 2*gam+h, 2*e), ACC(4+dt, 2*gam+h, 2*e+1)))
            a('ds_write_b128 v3, v[%d:%d] offset:%d' % (q, q+3, (gam*2+dt)*1024))
    a('v_lshrrev_b32 v2, 2, v1\nv_and_b32 v3, 3, v1')
    hrow(a, 6, 2, 5)
    a('v_xor_b32 v6, v6, v3\nv_lshlrev_b32 v2, 7, v2')
    a('s_lshl_b32 s61, s%d, 13\ns_add_u32 s61, s61, %d\nv_add_u32 v2, s61, v2' % (c.s_nh, IMG))
    a('s_lshl_b32 s61, s%d, 3\nv_xor_b32 v6, s61, v6' % c.s_rh)
    for u in range(2): a('v_xor_b32 v5, %d, v6\nv_lshl_add_u32 v%d, v5, 3, v2' % (4*u, RA+u))
    rt(a, 29)
    a('s_waitcnt lgkmcnt(0)\ns_barrier')
    rt(a, 30)
    AF = 12; VF = 44; ONE = 76; KV = ACC(2, 0)
    a('s_lshl_b32 s61, s%d, 13\ns_add_u32 s61, s61, %d\nv_add_u32 v3, s61, v4' % (c.s_nh, VB))
    for gp in range(4):
        rhp, gam = gp // 2, gp % 2
        for ftl in range(2):
            for t in range(2):
                q = AF + (ftl*4+gp)*4 + 2*t
                a('ds_read_b64_tr_b16 v[%d:%d], v%d offset:%d' % (q, q+1, RA+ftl, rhp*16384 + (gam*32 + t*16)*128))
        for dt in range(2):
            q = VF + (dt*4+gp)*4
            a('ds_read_b128 v[%d:%d], v3 offset:%d' % (q, q+3, (gp*2+dt)*1024))
    for e in range(4): a('v_mov_b32 v%d, 0x3f803f80' % (ONE+e))
    for gp in range(4):
        a('s_waitcnt lgkmcnt(%d)' % min(12, 6*(3-gp)))
        for ftl in range(2):
            for t in range(3):
                d = KV + (ftl*3+t)*4; A_ = AF + (ftl*4+gp)*4
                B_ = VF + (t*4+gp)*4 if t < 2 else ONE
                a('v_mfma_f32_16x16x32_bf16 v[%d:%d], v[%d:%d], v[%d:%d], %s' % (d, d+3, A_, A_+3, B_, B_+3, '0' if gp == 0 else 'v[%d:%d]' % (d, d+3)))
    a('s_lshl_b32 s61, s%d, 4\ns_add_u32 s61, s61, s%d' % (s_hd, c.s_mt))
    a('s_lshl_b32 s63, s61, 12\ns_lshl_b32 s64, s%d, 11\ns_add_u32 s63, s63, s64' % c.s_rh)
    a('s_lshl_b32 s61, s61, 8\ns_lshl_b32 s64, s%d, 7\ns_add_u32 s61, s61, s64' % c.s_rh)
    a('v_and_b32 v2, 15, v1\nv_cmp_eq_u32 vcc, 0, v2')
    for ftl in range(2):
        for e in range(4): a('v_cvt_pk_bf16_f32 v%d, v%d, v%d' % (AF+4*ftl+e, KV+(e//2)*12+4*ftl+2*(e%2), KV+(e//2)*12+4*ftl+2*(e%2)+1))
        a('buffer_store_dwordx4 v[%d:%d], v4, s[24:27], s63 offen offset:%d' % (AF+4*ftl, AF+4*ftl+3, ftl*1024))
    a('s_and_saveexec_b64 s[64:65], vcc')
    for ftl in range(2):
        d = KV + (ftl*3+2)*4
        a('buffer_store_dwordx4 v[%d:%d], v1, s[28:31], s61 offen offset:%d' % (d, d+3, ftl*64))
    a('s_mov_b64 exec, s[64:65]')
    rt(a, 4)
    a('s_waitcnt vmcnt(0)\ns_barrier')
    CPHI = {}
    def sinkq(i, sg, B): CPHI[(i, sg)] = B
    feat2(a, QQ, 12, 28, 44, W, sL, sinkq)
    a('s_mov_b32 s93, s%d\ns_barrier' % c.s_mt)
    rt(a, 5)
    vm = gemm.VM(a); vm.ops = o_loads(a)
    o_reduce(a, vm)
    o_compute(a, CPHI, 0)
    a('s_barrier')
    rt(a, 6)
    return c

def poll7(a, tag, offs, nw=4, wave=5):
    if wave is not None: a('s_cmp_lg_u32 s42, %d\ns_cbranch_scc1 %s_x' % (wave, tag))
    a('s_mov_b32 s90, 200000')
    a.label(tag + '_p')
    for q, so in enumerate(offs): a('s_load_dwordx%d s[%d:%d], s[6:7], s%d glc' % (nw, 68+nw*q, 68+nw*q+nw-1, so))
    a('s_sub_u32 s90, s90, 1\ns_waitcnt lgkmcnt(0)')
    n = nw*len(offs)
    for q in range(n): a('s_xor_b32 s%d, s%d, s3' % (68+q, 68+q))
    for q in range(1, n): a('s_or_b32 s68, s68, s%d' % (68+q))
    a('s_cbranch_scc0 %s_x' % tag)
    a('s_cmp_lg_u32 s90, 0\ns_cbranch_scc1 %s_p' % tag)
    a.label(tag + '_x')

def gates(a, c, chunks, bias, SC, V):
    nv = len(chunks)
    srd(a, 20, 6, MP2, 65536)
    a('v_lshrrev_b32 v%d, 4, v1\nv_lshlrev_b32 v%d, 14, v%d\nv_and_b32 v%d, 15, v1\nv_lshl_add_u32 v%d, v%d, 4, v%d' % (V+1, V+1, V+1, V+2, V+1, V+2, V+1))
    for q, ch in enumerate(chunks):
        a('s_lshl_b32 s61, s%d, 8\ns_add_u32 s61, s61, %d' % (c.s_nt, (ch-2)*4096))
        a('buffer_load_dwordx4 v[%d:%d], v%d, s[20:23], s61 offen sc1' % (V+4+4*q, V+7+4*q, V+1))
    if bias:
        srd(a, 20, bias, 0, 2048)
        a('v_lshlrev_b32 v%d, 3, v%d\ns_lshl_b32 s61, s%d, 7' % (V+3, V+2, c.s_nt))
        a('buffer_load_dwordx2 v[%d:%d], v%d, s[20:23], s61 offen' % (V+16, V+17, V+3))
    a('v_lshlrev_b32 v%d, 4, v%d\nv_add_u32 v%d, %d, v%d\ns_waitcnt vmcnt(0)' % (V+2, V+2, V+2, SC, V+2))
    xs = list(range(V+4, V+4+4*nv))
    xg_sum(a, xs, list(range(V+20, V+20+4*nv)))
    rndn(a, xs, list(range(V+20, V+26)))
    for q, ch in enumerate(chunks):
        if ch == 4:
            for e in range(4): a('v_add_f32 v%d, 1.0, v%d' % (V+4+4*q+e, V+4+4*q+e))
            rndn(a, list(range(V+4+4*q, V+8+4*q)), [V+20, V+21])
    if bias:
        for e in range(2): unpack(a, V+8+2*e, V+9+2*e, V+16+e)
        for e in range(4): a('v_mul_f32 v%d, v%d, v%d' % (V+8+e, V+8+e, V+4+e))
    for q in range(nv + (1 if bias else 0)): a('ds_write_b128 v%d, v[%d:%d] offset:%d' % (V+2, V+4+4*q, V+7+4*q, 256*q))
    a('s_waitcnt lgkmcnt(0)')

def res_phase(c, xsrd):
    XT = 147456
    def tail(a, c, vm):
        V = c.p_vfree
        srd(a, 16, *xsrd)
        a('v_xor_b32 v%d, v%d, v%d\nv_lshlrev_b32 v%d, 4, v%d\nv_lshl_add_u32 v%d, v%d, 11, v%d' % (V, c.p_vrow, c.p_vch, V, V, V, c.p_vrow, V))
        a('s_sub_u32 s59, s%d, 4\ns_lshl_b32 s60, s%d, 2\ns_add_u32 s60, s60, s59\ns_lshl_b32 s60, s60, 16\ns_lshl_b32 s61, s%d, 7\ns_add_u32 s60, s60, s61' % (c.s_wave, c.s_mt, c.s_nt))
        a('s_lshl_b32 s59, s59, 12\ns_add_u32 s59, s59, %d' % XT)
        for i in range(4):
            a('s_add_u32 m0, s59, %d' % (1024*i))
            a('buffer_load_dwordx4 v%d, s[16:19], s60 offen lds' % V)
            a('s_add_u32 s60, s60, 16384')
        vm.issue('op', 4)
    XA = lambda c: c.v_free + 16 + 48
    c.XA = XA
    def rd(a, c):
        GA = c.v_free + 16
        a('v_lshrrev_b32 v3, 4, v1\nv_lshlrev_b32 v3, 4, v3\nv_add_u32 v3, %d, v3' % XT)
        for q in range(2):
            for j in range(4): a('ds_read_b128 v[%d:%d], v3 offset:%d' % (GA+16*q+4*j, GA+16*q+4*j+3, 256*q + 64*j))
    c.gate_rd = rd
    def pre(a, c):
        a('v_and_b32 v2, 7, v1\nv_lshrrev_b32 v3, 5, v1\nv_xor_b32 v2, v2, v3\nv_lshlrev_b32 v2, 4, v2\nv_bfe_u32 v3, v1, 4, 1\nv_lshl_add_u32 v2, v3, 3, v2')
        a('v_and_b32 v3, 15, v1\nv_lshl_add_u32 v2, v3, 7, v2\ns_lshl_b32 s61, s%d, 12\ns_add_u32 s61, s61, %d\nv_add_u32 v%d, s61, v2' % (c.s_wave, XT, XA(c)))
        for j in range(1, 4): a('v_xor_b32 v%d, %d, v%d' % (XA(c)+j, 32*j, XA(c)))
    def last_reads(c):
        XR = c.v_free
        return ['ds_read_b64 v[%d:%d], v%d offset:%d' % (XR+8*i+2*j, XR+8*i+2*j+1, XA(c)+j, 2048*i) for i in range(2) for j in range(4)]
    c.pre_hook, c.last_reads, c.pre_last_bar = pre, last_reads, (lambda a, c, vm: vm.wait('op'))
    c.first_c = lambda c, j: '0'
    return tail

P2 = lambda x: 'v[%d:%d]' % (x, x+1)
def res_out(a, c, sOut, bias=False):
    XR = c.v_free; GA = XR + 16
    ACC = lambda j, i, r=0: c.v_acc + (i*4+j)*4 + r
    a('s_lshl_b32 s58, s%d, 2\ns_add_u32 s58, s58, s%d' % (c.s_mt, c.s_wave))
    a('s_lshl_b32 s60, s58, 16\ns_lshl_b32 s61, s%d, 7\ns_add_u32 s60, s60, s61' % c.s_nt)
    U = 12; PK = 44
    a('v_and_b32 v2, 15, v1\nv_lshlrev_b32 v2, 11, v2\nv_bfe_u32 v3, v1, 4, 1\nv_lshl_add_u32 v2, v3, 5, v2\nv_lshrrev_b32 v3, 5, v1\nv_lshl_add_u32 v2, v3, 4, v2')
    a('s_add_u32 s61, s60, 32768')
    a('s_waitcnt lgkmcnt(0)')
    def part(i, store=True):
        for j in range(4):
            for e in range(2): unpack(a, U+16*i+4*j+2*e, U+16*i+4*j+2*e+1, XR+8*i+2*j+e)
        if bias:
            for j in range(4):
                for r in (0, 2): a('v_pk_add_f32 %s, %s, %s' % (P2(U+16*i+4*j+r), P2(U+16*i+4*j+r), P2(GA+16+4*j+r)))
        for j in range(4):
            for r in (0, 2): a('v_pk_fma_f32 %s, %s, %s, %s' % (P2(ACC(j,i,r)), P2(ACC(j,i,r)), P2(GA+4*j+r), P2(U+16*i+4*j+r)))
    def out(i):
        for j in range(4):
            for e in range(2): a('v_cvt_pk_bf16_f32 v%d, v%d, v%d' % (PK+8*i+2*j+e, ACC(j,i,2*e), ACC(j,i,2*e+1)))
        if sOut is None:
            for j in range(4): a('ds_write_b64 v%d, v[%d:%d] offset:%d' % (c.XA(c)+j, PK+8*i+2*j, PK+8*i+2*j+1, 2048*i))
            return
        for jp in range(2):
            for e in range(2): a('v_permlane16_swap_b32 v%d, v%d' % (PK+8*i+4*jp+e, PK+8*i+4*jp+2+e))
        for jp in range(2):
            a('buffer_store_dwordx4 v[%d:%d], v2, s[%d:%d], s%d offen offset:%d' % (PK+8*i+4*jp, PK+8*i+4*jp+3, sOut, sOut+3, 60+i, 64*jp))
    return part, out

def ph_wo(P, C, st):
    c = gemm.config('wo', 1024, 128, 1, False, opt.woBK, opt.woS, 2048, 128, rows4=True, KS=2, rpm=opt.rpm, slot0=1, unroll=True)
    tile_head(P, c, 4, 8, 128, [(4, P_WO), (32, P_X), (34, P_W1)])
    c.srd_hook = lambda a: [srd(a, *x) for x in [(8, 6, OF, 0x400000), (12, 4, 0, 1024*2048)]]
    c.vm_init = st['vm_init']
    if opt.xsc1: c.xflags = ' sc1'
    def boundary(a, c, vm):
        rt(a, 16)
        o_reduce(a, vm)
        rt(a, 17)
        o_compute(a, st['PHI'], 1)
        psync(a, 'f3', 3, 93, 97, c.s_mt, part=0)
        if opt.pf3:
            V = 40
            srd(a, 28, 34, 0, 1024*7168)
            a('v_lshrrev_b32 v%d, 4, v1\nv_mul_u32_u24 v%d, 7168, v%d\nv_and_b32 v%d, 15, v1\nv_min_u32 v%d, 13, v%d\nv_lshl_add_u32 v%d, v%d, 7, v%d' % (V, V, V, V+1, V+1, V+1, V, V+1, V))
            a('s_lshr_b32 s61, s2, 3\ns_lshl_b32 s61, s61, 2\ns_add_u32 s61, s61, s42\ns_sub_u32 s61, s61, 4\ns_mul_i32 s61, s61, %d' % (4*7168))
            a('s_bfe_u32 s62, s2, 0x20001\ns_mul_i32 s62, s62, 1792\ns_add_u32 s61, s61, s62')
            for q in range(opt.pf3):
                a('buffer_load_dword v251, v%d, s[28:31], s61 offen\ns_add_u32 s61, s61, %d' % (V, 512*7168))
            vm.issue('pf', opt.pf3)
        a('s_cmp_lg_u32 s42, 6\ns_cbranch_scc1 wo7_x')
        w1_tau(a)
        a('v_lshrrev_b32 v40, 2, v1\nv_cmp_gt_u32 vcc, 2, v40\nv_mov_b32 v41, s65\nv_mov_b32 v42, s%d\nv_cndmask_b32 v41, v41, v42, vcc\nv_lshlrev_b32 v41, 2, v41' % c.s_nt)
        a('v_lshlrev_b32 v40, 2, v40\nv_mov_b32 v42, 0x2120\nv_lshrrev_b32 v40, v40, v42\nv_and_b32 v40, 3, v40\nv_lshl_add_u32 v41, v40, 6, v41\nv_and_b32 v40, 3, v1\nv_add_u32 v41, v40, v41\nv_lshlrev_b32 v41, %d, v41' % MS)
        a('s_mov_b32 s61, %d\ns_mov_b64 exec, 0xffff' % FL7)
        a.label('wo7_p')
        a('buffer_load_dword v40, v41, s[84:87], s61 offen sc1\ns_sub_u32 s90, s90, 1\ns_waitcnt vmcnt(0)\nv_cmp_ne_u32 vcc, s3, v40')
        a('s_cmp_eq_u64 vcc, 0\ns_cbranch_scc1 wo7_y\ns_cmp_lg_u32 s90, 0\ns_cbranch_scc1 wo7_p')
        a.label('wo7_y')
        a('s_mov_b64 exec, -1')
        gates(a, c, [2, 4], None, 147456, 160)
        a.label('wo7_x')
        early_sync(c, 'f3', 3, None)(a)
    c.boundary = boundary
    c.tail_issue = res_phase(c, (32, 0, 0x400000))
    gemm.producer(P, c, None)
    if opt.ts and c.flags: P('v_writelane_b32 v255, s70, %d' % (24 + c.fbase//16))
    assert c.vm.done == len(c.vm.ops) - 1
    P('s_mov_b32 s93, s%d\ns_mov_b32 s97, s%d' % (c.s_mt, c.s_nt))
    a = C
    tile_head(a, c, 4, 8, 128, [])
    for x in [(28, 6, ST2, 0x40000), (16, 6, H2F, 0x400000)]: srd(a, *x)
    c.pre_hook2 = chain(BAR, c.gate_rd)
    c.post_b0 = lambda a, c: rt(a, 7)
    gemm.consumer(a, c)
    if c.stamps: gemm.dump_stamps(a, c)
    if opt.ts and c.flags: a('v_writelane_b32 v11, s70, %d' % (24 + c.fbase//16))
    rt(a, 8)
    ACC = lambda j, i, r=0: c.v_acc + (i*4+j)*4 + r
    part, out = res_out(a, c, None)
    part(0); part(1)
    Q = 60
    for i in range(2):
        xs = [ACC(j,i,r) for j in range(4) for r in (0, 2)]
        S0, Q0 = 64+8*i, 68+8*i
        for k in range(2): a('v_pk_add_f32 %s, %s, %s' % (P2(S0+2*k), P2(xs[k]), P2(xs[2+k])))
        for k in range(2): a('v_pk_mul_f32 %s, %s, %s' % (P2(Q0+2*k), P2(xs[k]), P2(xs[k])))
        for m in (4, 6):
            for k in range(2): a('v_pk_add_f32 %s, %s, %s' % (P2(S0+2*k), P2(S0+2*k), P2(xs[m+k])))
        for m in (2, 4, 6):
            for k in range(2): a('v_pk_fma_f32 %s, %s, %s, %s' % (P2(Q0+2*k), P2(xs[m+k]), P2(xs[m+k]), P2(Q0+2*k)))
        a('v_pk_add_f32 %s, %s, %s\nv_pk_add_f32 %s, %s, %s' % (P2(S0), P2(S0), P2(S0+2), P2(Q0), P2(Q0), P2(Q0+2)))
        a('v_add_f32 v%d, v%d, v%d\nv_add_f32 v%d, v%d, v%d' % (Q+i, S0, S0+1, Q+2+i, Q0, Q0+1))
    for s_ in bfly(a, 'v_add_f32', [Q, Q+1, Q+2, Q+3])[:4]:
        for l in s_: a(l)
    a('v_and_b32 v4, 15, v1\nv_lshrrev_b32 v3, 5, v1\nv_lshl_add_u32 v4, v3, 4, v4\nv_lshlrev_b32 v4, 3, v4\nv_bfe_u32 v3, v1, 4, 1\nv_lshl_add_u32 v4, v3, 2, v4')
    a('s_lshl_b32 s63, s58, 8\ns_lshl_b32 s62, s%d, 14\ns_add_u32 s62, s63, s62' % c.s_nt)
    a('buffer_store_dword v%d, v4, s[28:31], s62 offen sc1' % Q)
    a('v_and_b32 v4, 15, v1\nv_lshlrev_b32 v4, 4, v4\nv_bfe_u32 v3, v1, 4, 1\nv_lshl_add_u32 v4, v3, 9, v4\nv_lshrrev_b32 v3, 5, v1\nv_lshl_add_u32 v4, v3, 8, v4')
    a('s_lshl_b32 s62, s58, 16\ns_lshl_b32 s63, s%d, 11\ns_add_u32 s62, s62, s63\ns_add_u32 s63, s62, 32768' % c.s_nt)
    A2 = c.v_free + 32; PK = 88; U = 12
    for i in range(2):
        for j in range(4):
            for r in (0, 2): a('v_pk_mul_f32 %s, %s, %s' % (P2(U+16*i+4*j+r), P2(ACC(j,i,r)), P2(A2+4*j+r)))
        for j in range(4):
            for e in range(2): a('v_cvt_pk_bf16_f32 v%d, v%d, v%d' % (PK+8*i+2*j+e, U+16*i+4*j+2*e, U+16*i+4*j+2*e+1))
        for jp in range(2):
            for e in range(2): a('v_permlane16_swap_b32 v%d, v%d' % (PK+8*i+4*jp+e, PK+8*i+4*jp+2+e))
        for jp in range(2):
            a('buffer_store_dwordx4 v[%d:%d], v4, s[16:19], s%d offen offset:%d' % (PK+8*i+4*jp, PK+8*i+4*jp+3, 62+i, 1024*jp))
    out(0); out(1)
    rt(a, 9)
    a('s_waitcnt vmcnt(0)\ns_barrier')
    rt(a, 10)
    return c

def w1_tau(a):
    a('s_lshr_b32 s61, s2, 3\ns_lshr_b32 s62, s61, 3\ns_add_u32 s62, s62, s61\ns_and_b32 s62, s62, 3')
    a('s_cmp_eq_u32 s62, 0\ns_cselect_b32 s63, 4, s62\ns_lshl_b32 s64, s62, 2\ns_lshr_b32 s64, 0x1431, s64\ns_and_b32 s64, s64, 15')
    a('s_add_u32 s65, s62, 1\ns_and_b32 s65, s65, 3\ns_add_u32 s62, s63, 3\ns_bitcmp1_b32 s61, 2\ns_cselect_b32 s64, s63, s64\ns_cselect_b32 s65, s62, s65')
    a('s_and_b32 s61, s2, 1\ns_lshl_b32 s61, s61, 3\ns_add_u32 s65, s65, s61')

def ph_w1(P, C, st):
    c = gemm.config('w1', 1024, 128, 3, True, 64, 3, 7168, 128, natw=True, tail_delay=opt.td1)
    BT = c.lds
    tile_head(P, c, 8, 4, 448, [(4, P_W1), (34, P_W2)])
    c.srd_hook = lambda a: [srd(a, *x) for x in [(8, 6, H2F, 0x400000), (12, 4, 0, 1024*7168)]]
    if opt.xsc1: c.xflags = ' sc1'
    XE = BT; RS = XE + 2048; UTL = RS + 1024; UTL2 = UTL + 2048
    tau = w1_tau
    tau(P)
    P('s_add_u32 s92, s64, 1\ns_lshr_b32 s38, s%d, 3' % c.s_mt)
    c.mirror = 38
    def boundary0(a, c, vm):
        psync(a, 'f5', 5, 93, 97, c.s_mt, part=0)
        V = (c.p_vfree + 3)//4*4
        srd(a, 20, 6, MP2, 65536); srd(a, 24, 6, ST2, 0x40000); srd(a, 16, 6, UT, 32768)
        a('v_lshrrev_b32 v%d, 4, v1\nv_lshlrev_b32 v%d, 14, v%d\nv_and_b32 v%d, 15, v1\nv_lshl_add_u32 v%d, v%d, 4, v%d' % (V+1, V+1, V+1, V+2, V+1, V+2, V+1))
        for q, ch in enumerate((4, 3)):
            a('s_lshl_b32 s61, s65, 8\ns_add_u32 s61, s61, %d' % ((ch-2)*4096))
            a('buffer_load_dwordx4 v[%d:%d], v%d, s[20:23], s61 offen sc1' % (V+4+4*q, V+7+4*q, V+1))
        vm.issue('xe', 2)
    def boundary(a, c, vm):
        vm.wait('xe')
        pre_b0(a, c, vm)
        early_sync(c, 'f5', 5, lambda a: a('s_lshl_b32 s91, 1, s36\ns_lshl_b32 s37, 1, s37\ns_or_b32 s91, s91, s37'))(a)
    c.boundary0, c.boundary = boundary0, boundary
    def pre_b0(a, c, vm):
        V = (c.p_vfree + 3)//4*4
        xs = list(range(V+4, V+12))
        for e in range(4): a('v_mov_b32 v%d, 0' % (V+20+e))
        a('v_lshlrev_b32 v%d, 4, v1\nv_add_u32 v%d, %d, v%d' % (V+3, V+3, XE, V+3))
        a('ds_write_b128 v%d, v[%d:%d]\nds_write_b128 v%d, v[%d:%d] offset:1024' % (V+3, V+20, V+23, V+3, V+20, V+23))
        xg_sum(a, xs, list(range(V+12, V+20)))
        rndn(a, xs[:4], [V+12, V+13])
        for e in range(4): a('v_add_f32 v%d, 1.0, v%d' % (V+4+e, V+4+e))
        for e in range(4): a('v_cvt_pk_bf16_f32 v%d, v%d, v%d' % (V+12+e, V+4+2*e, V+5+2*e))
        a('v_lshrrev_b32 v%d, 1, v%d\nv_lshlrev_b32 v%d, 8, v%d\nv_and_b32 v%d, 1, v%d\nv_lshl_add_u32 v%d, v%d, 3, v%d\nv_add_u32 v%d, %d, v%d' % (V+3, V+2, V+3, V+3, V+2, V+2, V+3, V+2, V+3, V+3, XE, V+3))
        a('ds_write_b64 v%d, v[%d:%d]\nds_write_b64 v%d, v[%d:%d] offset:16' % (V+3, V+12, V+13, V+3, V+14, V+15))
        a('s_waitcnt lgkmcnt(0)')
    def iter_hook(a, c, vm, k):
        V = (c.p_vfree + 3)//4*4 + 24
        if k == 11:
            a('s_lshl_b32 s60, s%d, %d\ns_add_u32 s60, s60, %d\nv_lshlrev_b32 v%d, 5, v1\nbuffer_load_dword v%d, v%d, s[84:87], s60 offen sc1' % (c.s_nt, MS+4, 4*ROW, V+23, V+22, V+23))
            vm.issue('f9')
        if k == 13:
            vm.wait('f9')
            a('s_mov_b32 s90, 200000')
            a.label('w19_p')
            a('v_cmp_ne_u32 vcc, s3, v%d\ns_cmp_eq_u64 vcc, 0\ns_cbranch_scc1 w19_y' % (V+22))
            a('buffer_load_dword v%d, v%d, s[84:87], s60 offen sc1\ns_sub_u32 s90, s90, 1\ns_waitcnt vmcnt(0)\ns_cmp_lg_u32 s90, 0\ns_cbranch_scc1 w19_p' % (V+22, V+23))
            a.label('w19_y')
        if k == opt.ut_at:
            a('v_lshlrev_b32 v%d, 4, v1\ns_lshl_b32 s60, s%d, 11\ns_mov_b32 m0, %d' % (V, c.s_nt, UTL2))
            a('buffer_load_dwordx4 v%d, s[16:19], s60 offen sc1 lds\nbuffer_load_dwordx4 v%d, s[16:19], s60 offen offset:1024 sc1 lds' % (V, V))
            a('v_and_b32 v%d, 15, v1\nv_lshlrev_b32 v%d, 4, v%d\nv_lshrrev_b32 v%d, 4, v1\nv_lshl_add_u32 v%d, v%d, 14, v%d' % (V, V, V, V+1, V+1, V+1, V))
            a('s_lshl_b32 s60, s%d, 2\ns_add_u32 s60, s60, s42\ns_sub_u32 s60, s60, 4\ns_lshl_b32 s60, s60, 8' % c.s_mt)
            for q in range(4):
                a('buffer_load_dwordx4 v[%d:%d], v%d, s[24:27], s60 offen sc1\ns_add_u32 s60, s60, 65536' % (V+4+4*q, V+7+4*q, V+1))
            vm.issue('st', 6)
    def bar_hook(a, c, vm, k):
        V = (c.p_vfree + 3)//4*4 + 48
        if k == 1:
            a('s_lshl_b32 s95, s%d, %d\ns_add_u32 s95, s95, %d\ns_lshl_b32 s94, s%d, %d\ns_add_u32 s95, s95, s94\nv_mov_b32 v253, s3' % (c.s_nt, MS+4, 4*ROW, c.s_mt, MS))
            a('s_sub_u32 s94, s42, 4\ns_lshl_b32 s94, s94, 9\nv_lshl_add_u32 v%d, v1, 2, s94\nv_add_u32 v%d, %d, v%d\ns_lshl_b32 s94, s%d, 11' % (V, V+1, UTL, V, c.s_nt))
            a('s_add_u32 s96, s92, 1\ns_sub_u32 s91, s42, 4\ns_lshl_b32 s91, s91, 5\ns_add_u32 s95, s95, s91')
        if 2 <= k <= 5:
            a('s_cmp_lg_u32 s92, %d\ns_cbranch_scc1 w1_np%d' % (k, k))
            a('ds_read_b32 v%d, v%d\nds_read_b32 v%d, v%d offset:256\ns_waitcnt lgkmcnt(0)' % (V+2, V+1, V+3, V+1))
            a('buffer_atomic_add_f32 v%d, v%d, s[16:19], s94 offen\nbuffer_atomic_add_f32 v%d, v%d, s[16:19], s94 offen offset:256' % (V+2, V, V+3, V))
            a.label('w1_np%d' % k)
        if 4 <= k <= 7:
            a('s_cmp_lg_u32 s96, %d\ns_cbranch_scc1 w1_ns%d\ns_mov_b64 exec, 1' % (k-1, k))
            a('buffer_store_dword v253, v252, s[84:87], s95 offen sc1\ns_mov_b64 exec, -1')
            a.label('w1_ns%d' % k)
    def ptail(a, c, vm):
        V = (c.p_vfree + 3)//4*4 + 24
        b = V+4
        vm.wait('st')
        for st_ in (8, 4):
            for e in range(0, st_, 2): a('v_pk_add_f32 %s, %s, %s' % (P2(b+e), P2(b+e), P2(b+e+st_)))
        xg_sum(a, [b, b+1, b+2, b+3], [b+4, b+5, b+6, b+7])
        a('v_mov_b32 v%d, 0x3a800000' % (b+8))
        for h in (0, 2):
            a('v_mul_f32 v%d, v%d, v%d\nv_mul_f32 v%d, v%d, v%d\nv_fma_f32 v%d, v%d, v%d, -v%d' % (b+5+h, b+h, b+8, b+4+h, b+5+h, b+5+h, b+4+h, b+1+h, b+8, b+4+h))
            a('v_max_f32 v%d, 0, v%d\nv_add_f32 v%d, 0x3727c5ac, v%d\nv_rsq_f32 v%d, v%d\nv_mul_f32 v%d, -v%d, v%d' % (b+4+h, b+4+h, b+4+h, b+4+h, b+4+h, b+4+h, b+5+h, b+5+h, b+4+h))
        a('s_sub_u32 s60, s42, 4\ns_lshl_b32 s60, s60, 8\ns_add_u32 s60, s60, %d\nv_add_u32 v%d, s60, v%d' % (RS, V, V))
        a('ds_write_b128 v%d, v[%d:%d]\ns_waitcnt lgkmcnt(0)' % (V, b+4, b+7))
        a('s_barrier')
    c.iter_hook, c.ptail, c.bar_hook = iter_hook, ptail, bar_hook
    def tail_issue(a, c, vm):
        V = c.p_vfree
        if opt.pf4 not in (1, 3): return
        srd(a, 28, 34, 0, 3584*2048)
        a('v_lshlrev_b32 v%d, 11, v%d\nv_lshl_add_u32 v%d, v%d, 7, v%d' % (V, c.p_vrow, V, c.p_vch, V))
        a('s_bfe_u32 s62, s2, 0x10002\ns_lshl_b32 s62, s62, 10')
        a('s_lshr_b32 s61, s2, 3\ns_lshl_b32 s63, s61, 2\ns_add_u32 s63, s63, s%d\ns_sub_u32 s63, s63, 4\ns_lshl_b32 s63, s63, 14\ns_add_u32 s63, s63, s62' % c.s_wave)
        a('buffer_load_dword v251, v%d, s[28:31], s63 offen' % V)
        vm.issue('pf')
        if opt.pf4 == 1:
            a('s_mul_i32 s61, s61, 20\ns_and_b32 s63, s2, 3\ns_mul_i32 s63, s63, 640\ns_add_u32 s61, s61, s63\ns_lshl_b32 s63, s%d, 3\ns_add_u32 s61, s61, s63\ns_add_u32 s61, s61, %d' % (c.s_wave, 1024-32))
            a('s_lshl_b32 s61, s61, 11\ns_add_u32 s61, s61, s62')
            a('buffer_load_dword v251, v%d, s[28:31], s61 offen' % V)
            vm.issue('pf')
    c.tail_issue = tail_issue
    c.unroll = True
    gemm.producer(P, c, None)
    if opt.ts and c.flags: P('v_writelane_b32 v255, s70, %d' % (24 + c.fbase//16))
    P('s_mov_b32 s93, s%d\ns_mov_b32 s97, s%d' % (c.s_mt, c.s_nt))
    st['vm_init'] = c.vm.ops[c.vm.done+1:]
    a = C
    tile_head(a, c, 8, 4, 448, [])
    srd(a, 24, 6, HF, 2048*7168)
    ACC = lambda j, i, r=0: (c.v_acc + (j*4+i)*4 + r) if j < 6 else (c.v_acc + 96 + ((j-6)*2+i)*4 + r)
    tau(a)
    def pre(a, c):
        a('s_lshl_b32 s58, s%d, 6\ns_add_u32 s58, s58, s%d' % (c.s_nh, c.s_col0))
        a('s_mul_i32 s59, s%d, 448\ns_sub_u32 s60, s58, s59\ns_sub_u32 s59, s%d, s59\ns_lshl_b32 s60, s60, 1\ns_lshl_b32 s59, s59, 1' % (c.s_nt, c.s_colh))
        a('s_add_u32 s61, s60, %d\nv_lshl_add_u32 v2, v1, 2, s61\ns_add_u32 s61, s59, %d\nv_lshl_add_u32 v3, v1, 2, s61' % (UTL, UTL))
        a('v_lshlrev_b32 v10, 4, v1\nv_add_u32 v10, %d, v10' % XE)
    nlab = [0]
    a('s_sub_u32 s64, s64, 1')
    c.hook_stages = 4
    def step_hook(a, c, step, wr, xe):
        UA = c.v_free
        nlab[0] += 1
        a('s_cmp_lg_u32 s64, 0\ns_cbranch_scc1 w1_xs%d' % nlab[0])
        a('ds_read_b128 v[%d:%d], v10 offset:%d\ns_waitcnt lgkmcnt(0)' % (xe, xe+3, 1024*step))
        for j in range(8): a('v_mfma_f32_16x16x32_bf16 v[%d:%d], v[%d:%d], v[%d:%d], %s' % (UA+4*j, UA+4*j+3, xe, xe+3, wr(j), wr(j)+3, '0' if step == 0 else 'v[%d:%d]' % (UA+4*j, UA+4*j+3)))
        if step == 1:
            a('s_mov_b64 exec, 0xffff')
            for j in range(8):
                o = ((j//2)*128 + (j % 2)*32)*2 if j < 6 else (j-6)*64
                for e in range(2): a('ds_write_b32 v%d, v%d offset:%d' % (2 if j < 6 else 3, UA+4*j+e, o + 1024*e))
            a('s_mov_b64 exec, -1\ns_waitcnt lgkmcnt(0)')
        a.label('w1_xs%d' % nlab[0])
        if step == 1: a('s_sub_u32 s64, s64, 1')
    c.pre_hook, c.post_b0, c.pre_hook2, c.step_hook = pre, (lambda a, c: rt(a, 11)), BAR, step_hook
    c.first_c = lambda c, j: '0'
    gemm.consumer(a, c)
    if c.stamps: gemm.dump_stamps(a, c)
    if opt.ts and c.flags: a('v_writelane_b32 v11, s70, %d' % (24 + c.fbase//16))
    rt(a, 12)
    UU = 12; TT = 44; RR = c.v_free; TM = RR + 8
    a('v_lshrrev_b32 v3, 4, v1\nv_lshlrev_b32 v3, 4, v3\ns_add_u32 s60, s60, %d\ns_add_u32 s59, s59, %d\nv_add_u32 v2, s60, v3\nv_add_u32 v3, s59, v3' % (UTL2, UTL2))
    a('v_and_b32 v5, 15, v1\nv_lshlrev_b32 v5, 3, v5\ns_lshl_b32 s60, s%d, 9\ns_add_u32 s60, s60, %d\ns_lshl_b32 s59, s%d, 8\ns_add_u32 s61, s60, s59\ns_sub_u32 s60, s60, s59\nv_add_u32 v6, s60, v5\nv_add_u32 v5, s61, v5' % (c.s_rh, RS, c.s_nh))
    a('s_barrier')
    for i in range(4): a('ds_read_b64 v[%d:%d], v%d offset:%d' % (RR+2*i, RR+2*i+1, 5 if i < 2 else 6, 128*i))
    for j in range(8):
        o = ((j//2)*128 + (j % 2)*32)*2 if j < 6 else (j-6)*64
        a('ds_read_b128 v[%d:%d], v%d offset:%d\nds_read_b128 v[%d:%d], v%d offset:%d' % (UU+4*j, UU+4*j+3, 2 if j < 6 else 3, o, TT+4*j, TT+4*j+3, 2 if j < 6 else 3, o+1024))
    a('v_lshlrev_b32 v4, 4, v1')
    a('s_lshl_b32 s60, s%d, 1\ns_add_u32 s60, s60, s%d\ns_mul_i32 s60, s60, %d' % (c.s_mt, c.s_rh, 4*112*1024))
    a('s_mul_i32 s59, s%d, %d' % (c.s_nh, 2*112*1024))
    a('s_lshl_b32 s61, s58, 4\ns_add_u32 s61, s61, s60')
    a('s_lshl_b32 s62, s%d, 4\ns_add_u32 s62, s62, s60\ns_add_u32 s62, s62, s59' % c.s_colh)
    a('s_add_u32 s61, s61, s59')
    PK = 76
    a('s_waitcnt lgkmcnt(0)')
    for i in range(4):
        nj = 8 if i < 2 else 6
        xs = [ACC(j, i, r) for j in range(nj) for r in range(4)]
        for b in range(0, 4*nj, 16):
            for k in range(b, min(b+16, 4*nj), 2): a('v_pk_fma_f32 %s, %s, %s, %s op_sel:[0,1,0] op_sel_hi:[1,1,1]' % (P2(TM+k-b), P2(UU+k), P2(RR+2*i), P2(TT+k)))
            for k in range(b, min(b+16, 4*nj), 2): a('v_pk_fma_f32 %s, %s, %s, %s op_sel_hi:[1,0,1]' % (P2(xs[k]), P2(xs[k]), P2(RR+2*i), P2(TM+k-b)))
        for x in xs: a('v_max_f32 v%d, 0, v%d' % (x, x))
        for x in xs[::2]: a('v_pk_mul_f32 v[%d:%d], v[%d:%d], v[%d:%d]' % (x, x+1, x, x+1, x, x+1))
        pk = PK + (i % 2)*16
        for k in range(2*nj): a('v_cvt_pk_bf16_f32 v%d, v%d, v%d' % (pk+k, xs[2*k], xs[2*k+1]))
        for p in range(3):
            if p < 2: a('buffer_store_dwordx4 v[%d:%d], v4, s[24:27], s61 offen offset:%d' % (pk+4*p, pk+4*p+3, 2048*p))
            else:
                a('s_add_u32 s63, s61, 4096')
                a('buffer_store_dwordx4 v[%d:%d], v4, s[24:27], s63 offen' % (pk+4*p, pk+4*p+3))
        if i < 2:
            a('buffer_store_dwordx4 v[%d:%d], v4, s[24:27], s62 offen' % (pk+12, pk+15))
            a('s_add_u32 s62, s62, %d' % (112*1024))
        a('s_add_u32 s61, s61, %d' % (112*1024))
        if i == 1: a('s_lshl_b32 s59, s59, 1\ns_sub_u32 s61, s61, s59')
    rt(a, 13)
    if opt.pf4 >= 4:
        a('s_load_dwordx2 s[32:33], s[0:1], %d' % P_W2)
        a('s_lshl_b32 s60, s2, 2\ns_add_u32 s60, s60, s42\ns_mul_i32 s60, s60, 7168\nv_lshlrev_b32 v2, 7, v1\nv_min_u32 v2, %d, v2' % (128*(55 if opt.pf4 == 4 else 27)))
        a('s_waitcnt lgkmcnt(0)')
        srd(a, 16, 32, 0, 3584*2048)
        a('buffer_load_dword v254, v2, s[16:19], s60 offen')
        a('s_waitcnt vmcnt(1)\ns_barrier')
    else:
        a('s_waitcnt vmcnt(0)\ns_barrier')
    rt(a, 14)
    return c

def ph_w2s(P, C, st):
    NO = opt.nown; NS = (56 - NO)//2
    c = gemm.config('w2', 64*(NS+NO), 128, 2, False, 64, opt.w2S, 2048, 0, xKG=112, panel_sreg=59, lead=opt.w2L, nown=NO, rpm_own=opt.rpm_own)
    A_ = gemm.order_table(NS, 4, 'lead'); B_ = gemm.order_table(NO, 4, 'lead') if NO else [[]]*4
    c.tabs_override = [[x + kh*NS for x in A_[j]] + [x + 2*NS for x in B_[j]] for kh in range(2) for j in range(4)]
    c.mirror, c.mirror_off = 58, NS
    if opt.xsc1: c.xflags = ' sc1'
    XT = 147456
    def head(a, ptrs):
        tile_head(a, c, 4, 8, 128, ptrs)
        a('s_lshr_b32 s36, s2, 3\ns_and_b32 s37, s36, 3\ns_lshr_b32 s36, s36, 3\ns_add_u32 s36, s36, s37\ns_and_b32 s%d, s36, 3' % c.s_rot)
    head(P, [(4, P_W2), (32, P_B2)])
    P('s_and_b32 s58, s%d, 1\ns_mov_b32 s59, 128\ns_cmp_eq_u32 s58, 0\ns_cselect_b32 s59, s59, -128' % c.s_nt)
    srds = lambda a: [srd(a, *x) for x in [(8, 6, HF, 2048*7168), (12, 4, 0, 3584*2048)]]
    c.srd_hook = srds
    c.boundary = lambda a, c, vm: psync(a, 'f6', 6, 93, 97, c.s_mt, part=1)
    def boundary0(a, c, vm):
        psync(a, 'f6', 6, 93, 97, c.s_mt, part=0)
        a('s_cmp_lg_u32 s42, 6\ns_cbranch_scc1 w2_ng')
        gates(a, c, [5], 32, 131072, 160)
        a.label('w2_ng')
    c.boundary0 = boundary0
    c.first_c = lambda c, j: '0'
    c.vm_init = st['vm_init']
    KS_, KP_ = NS + opt.own_sig, NS + NO - 1 - opt.own_ld
    def bar_hook(a, c, vm, k):
        if k == KS_:
            a('s_cmp_lg_u32 s42, 4\ns_cbranch_scc1 f8_ns\ns_lshl_b32 s88, s2, %d\ns_add_u32 s88, s88, %d\nv_mov_b32 v253, s3\ns_mov_b64 exec, 1' % (MS, FL8*ROW))
            rt(a, 18)
            a('buffer_store_dword v253, v252, s[84:87], s88 offen sc1\ns_mov_b64 exec, -1')
            a.label('f8_ns')
    def wait_hook(a, c, vm, k):
        if k == KP_ - 1:
            a('s_xor_b32 s89, s2, 32\ns_lshl_b32 s89, s89, %d\ns_add_u32 s89, s89, %d\ns_mov_b32 s90, 200000\nv_mov_b32 v241, 0' % (MS, FL8*ROW))
            a('buffer_load_dword v240, v241, s[84:87], s89 offen sc1')
            vm.issue('f8')
        if k == KP_:
            vm.wait('f8')
            a.label('f8_p')
            a('v_cmp_ne_u32 vcc, s3, v240\ns_cmp_eq_u64 vcc, 0\ns_cbranch_scc1 f8_y')
            a('buffer_load_dword v240, v241, s[84:87], s89 offen sc1\ns_sub_u32 s90, s90, 1\ns_waitcnt vmcnt(0)\ns_cmp_lg_u32 s90, 0\ns_cbranch_scc1 f8_p')
            a.label('f8_y')
            rt(a, 19)
    if NO: c.bar_hook, c.wait_hook = bar_hook, wait_hook
    gemm.producer(P, c, None)
    if opt.ts and c.flags: P('v_writelane_b32 v255, s70, %d' % (24 + c.fbase//16))
    if not NO:
        P('s_xor_b32 s60, s2, 32')
        psync(P, 'f8', FL8, 2, None, 60, n=1)
    a = C
    head(a, [(34, P_OUT)])
    a('s_waitcnt lgkmcnt(0)')
    srd(a, 28, 34, 0, 0x400000); srd(a, 24, 6, XB, 0x800000)
    XR = lambda: c.v_free; GA = lambda: c.v_free + 16; XA = lambda: c.v_free + 32
    def pre(a, c):
        a('s_lshl_b32 s61, s%d, 2\nv_lshrrev_b32 v3, 5, v1\nv_add_u32 v3, s61, v3\nv_and_b32 v2, 7, v1\nv_xor_b32 v2, v2, v3\nv_lshlrev_b32 v2, 4, v2\nv_bfe_u32 v3, v1, 4, 1\nv_lshl_add_u32 v2, v3, 3, v2' % c.s_nh)
        a('v_and_b32 v3, 15, v1\nv_lshl_add_u32 v2, v3, 7, v2\ns_lshl_b32 s61, s%d, 13\ns_add_u32 s61, s61, %d\nv_add_u32 v%d, s61, v2\nv_xor_b32 v%d, 32, v%d' % (c.s_rh, XT, XA(), XA()+1, XA()))
    def rd(a, c):
        a('s_lshl_b32 s60, s%d, 7\ns_add_u32 s61, s60, 131072\nv_lshrrev_b32 v3, 4, v1\nv_lshl_add_u32 v3, v3, 4, s61' % c.s_nh)
        for q in range(2):
            for j in range(2): a('ds_read_b128 v[%d:%d], v3 offset:%d' % (GA()+8*q+4*j, GA()+8*q+4*j+3, 256*q + 64*j))
    def last_reads(c):
        return ['ds_read_b64 v[%d:%d], v%d offset:%d' % (XR()+4*i+2*j, XR()+4*i+2*j+1, XA()+j, 2048*i) for i in range(4) for j in range(2)]
    c.pre_hook, c.last_reads, c.pre_hook2 = pre, last_reads, chain(BAR, rd)
    c.post_b0 = lambda a, c: rt(a, 15)
    def xstore(a, c):
        a('s_lshl_b32 s60, s2, 2\ns_add_u32 s60, s60, s%d\ns_lshl_b32 s60, s60, 13\ns_xor_b32 s61, s60, %d\nv_lshlrev_b32 v2, 4, v1' % (c.s_wave, 32*4*8192))
        for k in range(8):
            if k == 4: a('s_add_u32 s60, s60, 4096')
            a('buffer_store_dwordx4 v[%d:%d], v2, s[24:27], s60 offen offset:%d' % (c.v_acc+32+4*k, c.v_acc+35+4*k, 1024*(k % 4)))
    def xload(a, c, dst):
        for i in range(4):
            for j in range(2):
                k = j*4 + i
                a('s_add_u32 s63, s61, %d' % (1024*k))
                a('buffer_load_dwordx4 v[%d:%d], v2, s[24:27], s63 offen sc1' % (dst+4*k, dst+4*k+3))
    def own_hook(a, c, q, where):
        if q == 0 and where == 0:
            a('s_lshl_b32 s60, s2, 2\ns_add_u32 s60, s60, s%d\ns_lshl_b32 s60, s60, 13\ns_xor_b32 s62, s60, %d\ns_add_u32 s61, s60, 4096\ns_add_u32 s63, s62, 4096\nv_lshlrev_b32 v2, 4, v1' % (c.s_wave, 32*4*8192))
        if NS + q + 1 == KS_ and where == 1: a('s_waitcnt vmcnt(0)')
    XP = 176
    def own_extra(c, q, st):
        n = q*2 + st
        if opt.xbf:
            if n < 4:
                return ['v_cvt_pk_bf16_f32 v%d, v%d, v%d' % (XP+4*n+2*j+e, c.v_acc+32+(j*4+n)*4+2*e, c.v_acc+33+(j*4+n)*4+2*e) for j in range(2) for e in range(2)] + \
                       ['buffer_store_dwordx4 v[%d:%d], v2, s[24:27], s60 offen offset:%d' % (XP+4*n, XP+4*n+3, 1024*n)]
            n -= 2*(KP_ - NS) - 1
            per = -(-4 // (2*(NS + NO - KP_) + 1))
            ks = list(range(4))[per*n:per*n+per] if n >= 0 else []
            return ['buffer_load_dwordx4 v[%d:%d], v2, s[24:27], s62 offen offset:%d sc1' % (XP+4*k, XP+4*k+3, 1024*k) for k in ks]
        if n < 4: return ['buffer_store_dwordx4 v[%d:%d], v2, s[24:27], s%d offen offset:%d' % (c.v_acc+32+4*k, c.v_acc+35+4*k, 60 + k//4, 1024*(k % 4)) for k in (2*n, 2*n+1)]
        n -= 2*(KP_ - NS) - 1
        per = -(-8 // (2*(NS + NO - KP_) + 1))
        ks = [j*4 + i for i in range(4) for j in range(2)][per*n:per*n+per] if n >= 0 else []
        return ['buffer_load_dwordx4 v[%d:%d], v2, s[24:27], s%d offen offset:%d sc1' % (c.v_acc+32+4*k, c.v_acc+35+4*k, 62 + k//4, 1024*(k % 4)) for k in ks]
    c.own_extra = own_extra
    c.own_hook = own_hook
    gemm.consumer(a, c)
    if c.stamps: gemm.dump_stamps(a, c)
    rt(a, 16)
    ACC = lambda j, i, r=0: c.v_acc + (j*4+i)*4 + r
    if not NO: xstore(a, c)
    U = 12; PK = 44; RB = 48 + 16
    a('s_waitcnt lgkmcnt(0)')
    for i in range(4):
        for j in range(2):
            for e in range(2): unpack(a, U+8*i+4*j+2*e, U+8*i+4*j+2*e+1, XR()+4*i+2*j+e)
            for r in (0, 2): a('v_pk_add_f32 %s, %s, %s' % (P2(U+8*i+4*j+r), P2(U+8*i+4*j+r), P2(GA()+8+4*j+r)))
            for r in (0, 2): a('v_pk_fma_f32 %s, %s, %s, %s' % (P2(U+8*i+4*j+r), P2(ACC(j,i,r)), P2(GA()+4*j+r), P2(U+8*i+4*j+r)))
    a('v_and_b32 v2, 15, v1\nv_lshlrev_b32 v2, 11, v2\nv_bfe_u32 v3, v1, 4, 1\nv_lshl_add_u32 v2, v3, 5, v2\nv_lshrrev_b32 v3, 5, v1\nv_lshl_add_u32 v2, v3, 4, v2')
    a('s_lshl_b32 s62, s%d, 1\ns_add_u32 s62, s62, s%d\ns_lshl_b32 s62, s62, 17\ns_lshl_b32 s63, s%d, 1\ns_add_u32 s63, s63, s%d\ns_lshl_b32 s63, s63, 6\ns_add_u32 s62, s62, s63' % (c.s_mt, c.s_rh, c.s_nt, c.s_nh))
    if opt.fullout:
        a('v_bfe_u32 v5, v1, 4, 1\nv_lshlrev_b32 v5, 1, v5\nv_lshrrev_b32 v6, 5, v1\nv_add_u32 v5, v5, v6\ns_lshl_b32 s63, s%d, 2\nv_add_u32 v5, s63, v5\nv_and_b32 v6, 7, v1\nv_xor_b32 v5, v5, v6\nv_lshlrev_b32 v5, 4, v5' % c.s_nh)
        a('v_and_b32 v7, 15, v1\nv_lshl_add_u32 v5, v7, 7, v5\ns_lshl_b32 s63, s%d, 13\nv_add_u32 v5, s63, v5' % c.s_rh)
        a('v_lshrrev_b32 v7, 3, v1\nv_xor_b32 v8, v6, v7\nv_lshlrev_b32 v8, 4, v8\nv_lshl_add_u32 v8, v7, 7, v8\nv_lshlrev_b32 v7, 11, v7\nv_lshl_add_u32 v7, v6, 4, v7\ns_lshl_b32 s63, s42, 12\nv_add_u32 v6, s63, v8')
        a('s_lshl_b32 s62, s%d, 2\ns_add_u32 s62, s62, s42\ns_lshl_b32 s62, s62, 16\ns_lshl_b32 s63, s%d, 7\ns_add_u32 s62, s62, s63' % (c.s_mt, c.s_nt))
    v2s = a.lines;
    if not NO:
        a('s_waitcnt vmcnt(0)\ns_barrier\ns_barrier')
        a('v_lshlrev_b32 v4, 4, v1')
        xl = Asm(); xload(xl, c, c.v_acc+32); a.lines += [l.replace(', v2,', ', v4,') for l in xl.lines]
    ACC = lambda j, i, r=0: c.v_acc + 32 + (j*4+i)*4 + r
    for i in range(4):
        if opt.xbf:
            a('s_waitcnt vmcnt(3)')
            for j in range(2):
                for e in range(2): unpack(a, ACC(j,i,2*e), ACC(j,i,2*e+1), XP+4*i+2*j+e)
        else: a('s_waitcnt vmcnt(%d)' % (6 - 2*i + (0 if opt.fullout else i)))
        for j in range(2):
            for r in (0, 2): a('v_pk_fma_f32 %s, %s, %s, %s' % (P2(U+8*i+4*j+r), P2(ACC(j,i,r)), P2(GA()+4*j+r), P2(U+8*i+4*j+r)))
            for e in range(2): a('v_cvt_pk_bf16_f32 v%d, v%d, v%d' % (PK+4*i+2*j+e, U+8*i+4*j+2*e, U+8*i+4*j+2*e+1))
        for e in range(2): a('v_permlane16_swap_b32 v%d, v%d' % (PK+4*i+e, PK+4*i+2+e))
        if opt.fullout: a('ds_write_b128 v5, v[%d:%d] offset:%d' % (PK+4*i, PK+4*i+3, 2048*i))
        else:
            a('buffer_store_dwordx4 v[%d:%d], v2, s[28:31], s62 offen' % (PK+4*i, PK+4*i+3))
            a('s_add_u32 s62, s62, 32768')
    if opt.fullout:
        a('s_waitcnt lgkmcnt(0)\ns_barrier')
        for i in range(4): a('ds_read_b128 v[%d:%d], v6 offset:%d' % (PK+4*i, PK+4*i+3, 1024*i))
        for i in range(4):
            a('s_waitcnt lgkmcnt(%d)' % (3-i))
            a('buffer_store_dwordx4 v[%d:%d], v7, s[28:31], s62 offen' % (PK+4*i, PK+4*i+3))
            a('s_add_u32 s62, s62, 16384')
    return c

def build(path, **kw):
    for k, v in kw.items(): setattr(opt, k, v)
    a = Asm()
    n = KNAME
    OUT.lines = []
    a.kernel_begin(n)
    a('s_cmp_ge_u32 s2, 256\ns_cbranch_scc1 mega_end')
    a('v_lshrrev_b32 v2, 6, v0\nv_and_b32 v1, 63, v0\nv_readfirstlane_b32 s42, v2')
    a('s_cmp_lt_u32 s42, 4\ns_cbranch_scc1 mega_cons')
    P = Asm(); C = Asm(); st = {}; C.cons = True
    rt(C, 0)
    cs = [f(P, C, st) for f in (ph_qkv, ph_wo, ph_w1, ph_w2s)]
    a.lines += P.lines
    if opt.ts:
        a('s_cmp_lg_u32 s42, 5\ns_cbranch_scc1 mega_end')
        srd(a, 88, 6, TS + 0x10000, 0x10000)
        a('s_lshl_b32 s92, s2, 8\nv_lshlrev_b32 v2, 2, v1\nbuffer_store_dword v255, v2, s[88:91], s92 offen')
    a('s_endpgm')
    a.label('mega_cons')
    a.lines += C.lines
    if opt.ts:
        a('s_waitcnt vmcnt(0)')
        a.cons = True
        rt(a, 17)
        a('s_cmp_lg_u32 s42, 0\ns_cbranch_scc1 mega_end')
        srd(a, 88, 6, TS, 0x10000)
        a('s_lshl_b32 s92, s2, 8\nv_lshlrev_b32 v2, 2, v1\nbuffer_store_dword v11, v2, s[88:91], s92 offen')
    a.label('mega_end')
    a('s_endpgm')
    a.lines += OUT.lines
    for c in cs: gemm.table(a, c)
    a.label('code_end')
    a('s_endpgm')
    a.kernel_end(n, 256, 102, 256, 256, 512, 163840)
    a.lines = [l + opt.sflags if ('buffer_store_dwordx' in l) else l for l in a.lines]
    if opt.plain: a.launches = ['; @launch grid=(256,1,1) block=(512,1,1) lds=163840']
    open(path, 'w').write(a.text(verbose=kw.get('verbose', False)))

KNAME = 'adaLN_cond__linear_kernel_hedgehog__dense_activation_squared_relu__prompt_kernel'
opt.plain = False; opt.midpos = 3; opt.pfo = 0; opt.xbf = True; opt.rpm_own = 1; opt.nown = 6; opt.own_sig = 3; opt.own_ld = 0; opt.noexec = False; opt.fsplit = 2; opt.flags = (); opt.woBK = 128; opt.woS = 3; opt.cpflate = True; opt.esync = False; opt.w1late = (); opt.cunroll = 1; opt.mbb = 2; opt.ut_at = 13; opt.glate = True; opt.td0 = 1; opt.td1 = 0; opt.pf5 = 10; opt.fullout = False; opt.earlym = False; opt.warm = True; opt.xsc1 = True; opt.unroll = True; opt.pollgap = 0; opt.wlate = 7; opt.st_at = 5; opt.pf3 = 0; opt.spf4 = 0; opt.spf2 = 0; opt.pre4 = True; opt.pf4 = 1; opt.w2s = True; opt.w2S = 4; opt.w2L = 3; opt.spoll = False; opt.satom = False; opt.gvflags = ' nt'; opt.eprio = 0; opt.pf2 = 1
if __name__ == '__main__':
    kw = eval('dict(%s)' % (sys.argv[2] if len(sys.argv) > 2 else ''))
    build(sys.argv[1], **kw)
```

```python
from asmgen import Asm

class G:
    pass

def gemm_prologue(a, c):
    a('v_lshrrev_b32 v2, 6, v0')
    a('v_and_b32 v1, 63, v0')
    a('v_readfirstlane_b32 s%d, v2' % c.s_wave)

def panel_cols(a, c):
    pass

def stamp(a, c, k, bump=False):
    if not c.stamps: return
    a('s_memtime s[70:71]')
    a('s_mov_b32 s73, m0')
    a('s_mov_b32 m0, s72')
    a('s_waitcnt lgkmcnt(0)')
    a('v_writelane_b32 v%d, s70, m0' % (248+k))
    a('s_mov_b32 m0, s73')
    if bump: a('s_add_u32 s72, s72, 1')

def order_table(nst, G, mode):
    tabs = []
    for j in range(G):
        if mode == 'seq':
            o = list(range(nst))
        elif mode == 'lead':
            own = {j} | {t+G-1 for t in range(1, nst) if t % G == j and t+G-1 < nst}
            rest = [x for x in range(nst) if x not in own]
            o = []
            for t in range(nst):
                if t == 0: o.append(j)
                elif t % G == j and t+G-1 < nst: o.append(t+G-1)
                else: o.append(rest.pop(0))
        elif mode == 'lead0':
            sub = order_table(nst-1, G, 'lead')[j]
            o = [0] + [x+1 for x in sub]
        elif mode == 'win':
            o = [(t//G)*G + (t+j) % G for t in range(nst)]
        assert sorted(o) == list(range(nst)), o
        tabs.append(o)
    return tabs

def mark(a, c, i):
    if not c.stamps: return
    a('s_memtime s[70:71]')
    a('s_waitcnt lgkmcnt(0)')
    a('v_writelane_b32 v251, s70, %d' % (32+i))

def dump_stamps(a, c):
    a('v_writelane_b32 v251, s94, 63')
    a('s_add_u32 s76, s6, 0x3900000\ns_addc_u32 s77, s7, 0\ns_mov_b32 s78, 0x200000\ns_mov_b32 s79, 0x20000')
    a('s_lshl_b32 s73, s2, 3\ns_add_u32 s73, s73, s%d\ns_lshl_b32 s73, s73, 10' % c.s_wave)
    a('v_lshlrev_b32 v247, 2, v1')
    for k in range(4): a('buffer_store_dword v%d, v247, s[76:79], s73 offen offset:%d' % (248+k, 256*k))
    a('s_waitcnt vmcnt(0)')

def producer(a, c, lbl_after):
    BK, S = c.BK, c.S
    nsub = BK // 32
    KG = c.xKG or c.K // 32
    nst = c.K // BK
    sp = c.s_tmp
    tabs = order_table(nst, c.G, c.order)
    if c.mirror: tabs = tabs + [[(x + nst//2) % nst for x in o] for o in tabs]
    if c.tabs_override: tabs = c.tabs_override
    if c.own0: tabs = [[f] + [x for x in o if x != f] for o in tabs for f in range(nst)]
    c.tabs = tabs
    a('s_sub_u32 s%d, s%d, 4' % (sp, c.s_wave))
    a('s_getpc_b64 s[%d:%d]' % (c.s_tab, c.s_tab+1))
    a.label(c.name + '_pc')
    a('s_add_u32 s%d, s%d, %s_tab-%s_pc' % (c.s_tab, c.s_tab, c.name, c.name))
    a('s_addc_u32 s%d, s%d, 0' % (c.s_tab+1, c.s_tab+1))
    vT = 2; vKX = 3; vKW = 4
    a('s_lshl_b32 s%d, s%d, 6' % (sp+1, c.s_rot))
    if c.own0:
        a('s_lshl_b32 s%d, s%d, 4\ns_add_u32 s%d, s%d, s%d\ns_lshl_b32 s%d, s%d, 4\ns_mov_b32 s%d, s%d' % (sp+1, c.s_rot, sp+1, sp+1, c.own0, sp+1, sp+1, c.s_rot, c.own0))
    if c.mirror:
        a('s_lshl_b32 s%d, s%d, 8\ns_add_u32 s%d, s%d, s%d' % (sp+2, c.mirror, sp+1, sp+1, sp+2))
        a('s_mul_i32 s%d, s%d, %d\ns_add_u32 s%d, s%d, s%d' % (sp+2, c.mirror, c.mirror_off or nst//2, c.s_rot, c.s_rot, sp+2))
    a('v_add_u32 v%d, s%d, v1' % (vT, sp+1))
    a('global_load_ubyte v%d, v%d, s[%d:%d]' % (vKX, vT, c.s_tab, c.s_tab+1))
    v = 5
    groups = []
    mbw = c.BM // 16 // 4
    a('s_mul_i32 s%d, s%d, %d' % (sp+1, c.s_mt, c.BM // 16))
    a('s_mul_i32 s%d, s%d, %d' % (sp+2, sp, mbw))
    a('s_add_u32 s%d, s%d, s%d' % (sp+1, sp+1, sp+2))
    a('s_mul_i32 s%d, s%d, %d' % (sp+1, sp+1, KG*1024))
    a('v_lshl_add_u32 v%d, v1, 4, s%d' % (v, sp+1)); vx0 = v; v += 1
    xl = []
    for i in range(mbw):
        for kg in range(nsub): xl.append((i, kg))
    a('s_mul_i32 s%d, s%d, %d' % (c.s_px, sp, mbw*nsub*1024))
    vregs = {}
    for b in range(0, len(xl), 4):
        ins = []
        for q, (i, kg) in enumerate(xl[b:b+4]):
            const = i*KG*1024 + kg*1024 - q*1024
            assert const >= 0
            if const not in vregs:
                if const == 0: vregs[const] = vx0
                else:
                    a('v_add_u32 v%d, %d, v%d' % (v, const, vx0)); vregs[const] = v; v += 1
            ins.append((vregs[const], q*1024))
        groups.append((c.sX, c.s_kx, c.s_px, b*1024, ins))
    rpw = BK // 4; ipw = rpw // 8
    vrow = v; vt = v+1; vw0 = v+2; vch = v+3; v += 4
    c.p_vrow, c.p_vch = vrow, vch
    a('v_lshrrev_b32 v%d, 3, v1' % vrow)
    a('v_and_b32 v%d, 7, v1' % vch)
    a('v_and_b32 v%d, %d, v%d' % (vt, 2 if c.natw else 6, vrow))
    a('v_xor_b32 v%d, v%d, v%d' % (vw0, vch, vt))
    a('v_mul_u32_u24 v%d, %d, v%d' % (vt, c.ldw, vrow))
    a('s_mul_i32 s%d, s%d, %d' % (sp+1, sp, rpw*c.ldw))
    a('s_add_u32 s%d, s%d, s%d' % (sp+2, sp+1, c.s_col0))
    a('v_add_u32 v%d, s%d, v%d' % (vt, sp+2, vt))
    vw1 = vw0
    if c.natw:
        vw1 = v; v += 1
        a('v_xor_b32 v%d, 4, v%d' % (vw1, vw0))
        a('v_lshl_add_u32 v%d, v%d, 4, v%d' % (vw1, vw1, vt))
    a('v_lshl_add_u32 v%d, v%d, 4, v%d' % (vw0, vw0, vt))
    a('s_mul_i32 s%d, s%d, %d' % (c.s_pw, sp, ipw*1024))
    a('s_add_u32 s%d, s%d, %d' % (c.s_pw, c.s_pw, c.xbytes))
    for q in range(c.nfull):
        ins = []
        for h in range(ipw):
            const = q*c.panel_stride + h*8*c.ldw - h*1024
            if const == 0 and q == 0: ins.append((vw0, 0))
            else:
                a('v_add_u32 v%d, %d, v%d' % (v, const, vw1 if h % 2 else vw0)); ins.append((v, h*1024)); v += 1
                if q and c.panel_sreg: a('v_add_u32 v%d, s%d, v%d' % (v-1, c.panel_sreg, v-1))
        groups.append((c.sW, c.s_kw, c.s_pw, q*BK*128, ins))
    if c.half:
        nh = BK // 64
        vh0 = v; vr2 = v+1; v += 2
        a('v_lshrrev_b32 v%d, 2, v1' % vr2)
        a('v_lshrrev_b32 v%d, %d, v1' % (vt, 4 if c.natw else 3))
        a('v_and_b32 v%d, 2, v%d' % (vt, vt))
        a('v_and_b32 v%d, 3, v1' % vh0)
        a('v_xor_b32 v%d, v%d, v%d' % (vh0, vh0, vt))
        a('v_mul_u32_u24 v%d, %d, v%d' % (vr2, c.ldw, vr2))
        a('v_lshl_add_u32 v%d, v%d, 4, v%d' % (vh0, vh0, vr2))
        a('s_add_u32 s%d, s%d, s%d' % (sp+2, sp+1, c.s_colh))
        a('v_add_u32 v%d, s%d, v%d' % (vh0, sp+2, vh0))
        ins = [(vh0, 0)]
        for h in range(1, nh):
            a('v_add_u32 v%d, %d, v%d' % (v, h*16*c.ldw - h*1024, vh0)); ins.append((v, h*1024)); v += 1
        a('s_mul_i32 s%d, s%d, %d' % (c.s_ph, sp, nh*1024))
        a('s_add_u32 s%d, s%d, %d' % (c.s_ph, c.s_ph, c.xbytes + c.nfull*BK*128))
        groups.append((c.sW, c.s_kw, c.s_ph, 0, ins))
    n = sum(len(g[4]) for g in groups)
    c.n_dma = n
    if c.order in ('seq', 'lead0'):
        a('s_mov_b32 s%d, 0\ns_mov_b32 s%d, 0' % (c.s_kx, c.s_kw))
    else:
        a('s_mul_i32 s%d, s%d, %d' % (c.s_kx, c.s_rot, nsub*1024))
        a('s_mul_i32 s%d, s%d, %d' % (c.s_kw, c.s_rot, BK*c.ldw))
    s_t = c.s_rh
    a('s_mov_b32 s%d, 1' % s_t)
    a('s_waitcnt lgkmcnt(0)')
    c.srd_hook(a)
    vm = VM(a)
    vm.ops = list(c.vm_init)
    c.vm = vm
    nxg = sum(1 for g in groups if g[0] == c.sX)
    def issue(st, slot_const=None, fetch_next=True, part=None):
        gs = {None: groups, 0: groups[:c.psplit], 1: groups[c.psplit:], 'w': groups[nxg:], 'x': groups[:nxg], 'xb': groups[c.psplit:nxg], 'xb0': groups[:nxg], 'fa': groups[:c.fsplit], 'fb': groups[c.fsplit:]}[part]
        if st >= nst - c.nown: gs = [g for g in gs if g is not groups[-1]]
        for (srd, so, base, lc, ins) in gs:
            if slot_const is None:
                a('s_add_u32 s%d, s%d, s%d' % (sp, base, c.s_slot))
                if lc: a('s_add_u32 m0, s%d, %d' % (sp, lc))
                else: a('s_mov_b32 m0, s%d' % sp)
            else:
                a('s_add_u32 m0, s%d, %d' % (base, lc + slot_const))
            for (vr, io) in ins:
                if not c.no_dma:
                    a('buffer_load_dwordx4 v%d, s[%d:%d], s%d offen%s%s lds' % (vr, srd, srd+3, so, ' offset:%d' % io if io else '', c.xflags if srd == c.sX else c.dma_flags))
                vm.issue(st)
        if part in (0, 'w', 'x', 'fa'): return
        if fetch_next:
            a('v_readlane_b32 s%d, v%d, s%d' % (c.s_kx, vKX, s_t))
            a('v_readlane_b32 s%d, v%d, s%d' % (c.s_kw, vKW, s_t))
            a('s_add_u32 s%d, s%d, 1' % (s_t, s_t))
        if slot_const is None:
            a('s_add_u32 s%d, s%d, %d' % (c.s_slot, c.s_slot, c.slot))
            a('s_cmp_ge_u32 s%d, %d' % (c.s_slot, c.slot*S))
            a('s_cselect_b32 s%d, 0, s%d' % (c.s_slot, c.s_slot))
    c.p_vfree = v
    if c.stamps: a('s_mov_b32 s72, 0')
    stamp(a, c, 3)
    vm.issue('tab')
    SL = lambda st: ((st + c.slot0) % S) * c.slot
    L = c.lead
    def tabmul():
        vm.wait('tab')
        a('v_mul_u32_u24 v%d, %d, v%d' % (vKW, BK*c.ldw, vKX))
        a('v_mul_u32_u24 v%d, %d, v%d' % (vKX, nsub*1024, vKX))
        a('v_readlane_b32 s%d, v%d, 1' % (c.s_kw, vKW))
        a('s_mov_b32 s%d, 2' % s_t)
    if c.own0:
        issue(0, SL(0), part='w')
        if c.early_issue: c.early_issue(a, c, vm)
        tabmul()
        vm.wait(0)
        a('s_barrier')
        c.boundary0(a, c, vm)
        issue(1, SL(1), part='w')
        c.boundary(a, c, vm)
        a('v_readlane_b32 s%d, v%d, 1' % (c.s_kx, vKX))
        issue(1, SL(1), part='xb0')
    elif c.boundary is None:
        issue(0, SL(0), False)
        if c.early_issue: c.early_issue(a, c, vm)
        tabmul()
        a('v_readlane_b32 s%d, v%d, 1' % (c.s_kx, vKX))
        issue(1, SL(1), part=0)
    else:
        if c.boundary0: c.boundary0(a, c, vm)
        issue(0, SL(0), part='w')
        tabmul()
        if not c.w1late: issue(1, SL(1), part='w')
        a('v_readlane_b32 s37, v%d, 1\ns_lshr_b32 s36, s%d, %d\ns_lshr_b32 s37, s37, %d' % (vKX, c.s_kx, (nsub*1024).bit_length()-1, (nsub*1024).bit_length()-1))
        c.boundary(a, c, vm)
        issue(0, SL(0), part='x')
        if c.early_issue: c.early_issue(a, c, vm)
        a('v_readlane_b32 s%d, v%d, 1' % (c.s_kx, vKX))
        issue(1, SL(1), part=0)
    if not c.own0:
        stamp(a, c, 0)
        vm.wait(0)
        if c.pre_b0: c.pre_b0(a, c, vm)
        stamp(a, c, 1)
        a('s_barrier')
        stamp(a, c, 2, True)
        issue(1, SL(1), part=1 if (c.boundary is None or c.w1late) else 'xb')
    if c.post_b0p: c.post_b0p(a, c, vm)
    if c.loop_init: c.loop_init(a, c)
    if c.flags:
        assert L == S - 1
        vFa, vFv, vFd = 244, 245, 246
        s_need = c.s_nh
        a('s_add_u32 s%d, s%d, %d\nv_mov_b32 v%d, s%d\nv_and_b32 v243, 3, v1\nv_add_u32 v243, %d, v243\nv_mov_b32 v%d, %d' % (sp, c.s_wave, c.SY-4, vFa, sp, c.SY, vFv, c.fbase+1))
        cnt = [0]
        def signal():
            a('v_add_u32 v%d, 1, v%d\ns_mov_b64 exec, 15\nds_write_b8 v%d, v%d\nds_read_u8 v%d, v243 offset:4\ns_mov_b64 exec, -1' % (vFv, vFv, vFa, vFv, vFd))
        def fit(t, const):
            k = t - L
            cnt[0] += 1
            lab = '%s_f%d' % (c.name, cnt[0])
            if t >= S:
                a('s_waitcnt lgkmcnt(0)\nv_cmp_gt_u32 vcc, s%d, v%d\ns_and_b32 s71, vcc_lo, 15\ns_cbranch_scc0 %s' % (s_need, vFd, lab))
                a('s_waitcnt vmcnt(%d)\nv_add_u32 v%d, 1, v%d\nds_write_b8 v%d, v%d' % (vm.count(t-1), vFd, vFv, vFa, vFd))
                a.label(lab + 's')
                a('s_sleep 1\ns_sub_u32 s70, s70, 1\ns_cbranch_scc1 %s' % lab)
                a('ds_read_u8 v%d, v243 offset:4\ns_waitcnt lgkmcnt(0)\nv_cmp_gt_u32 vcc, s%d, v%d\ns_cmp_lg_u64 vcc, 0\ns_cbranch_scc1 %ss' % (vFd, s_need, vFd, lab))
                a.label(lab)
                a('s_add_u32 s%d, s%d, 1' % (s_need, s_need))
            if const and c.bar_hook and k >= 1: c.bar_hook(a, c, vm, k)
            issue(t, SL(t) if const else None, part='fa')
            vm.wait(t-1)
            signal()
            issue(t, SL(t) if const else None, fetch_next=(t+1 < nst), part='fb')
            if const and c.iter_hook and k >= 1: c.iter_hook(a, c, vm, k)
        a('s_mov_b32 s%d, %d\ns_mov_b32 s70, 0x100000' % (s_need, c.fbase+1))
        for t in range(2, S): fit(t, True)
        if c.unroll:
            for t in range(S, nst): fit(t, True)
        else:
            a('s_mov_b32 s%d, %d\ns_mov_b32 s%d, %d' % (c.s_slot, SL(S), c.s_cnt, nst-S-1))
            a.label(c.name + '_ploop')
            fit(S, False)
            body = vm.log[-1]
            a('s_sub_u32 s%d, s%d, 1\ns_cmp_lg_u32 s%d, 0\ns_cbranch_scc1 %s_ploop' % (c.s_cnt, c.s_cnt, c.s_cnt, c.name))
            keep = a.lines
            for t in range(S+1, nst-1):
                a.lines = []; fit(t, False); assert vm.log[-1] == body
            a.lines = keep
            fit(nst-1, False)
        if c.tail_issue: c.tail_issue(a, c, vm)
        vm.wait(nst-1)
        if c.pre_last_bar: c.pre_last_bar(a, c, vm)
        a('s_waitcnt lgkmcnt(0)\ns_barrier')
        if c.ptail: c.ptail(a, c, vm)
        if lbl_after: a('s_branch %s' % lbl_after)
        return
    for st in range(2, L+1):
        if c.loop_extra: c.loop_extra(a, c, vm)
        issue(st, SL(st))
    a('s_mov_b32 s%d, %d' % (c.s_slot, SL(L+1)))
    nsteady = nst - 2 - L - c.nown - (1 if c.nown else 0)
    def it(k, const=False):
        stamp(a, c, 0)
        vm.wait(k)
        if k == nst-1 and c.pre_last_bar: c.pre_last_bar(a, c, vm)
        if k == 1 and c.pre_b1: c.pre_b1(a, c, vm)
        if const and c.wait_hook: c.wait_hook(a, c, vm, k)
        stamp(a, c, 1)
        a('s_barrier')
        stamp(a, c, 2, True)
        if const and c.bar_hook: c.bar_hook(a, c, vm, k)
        if k + L < nst:
            issue(k+L, SL(k+L) if const else None, fetch_next=(k+L+1 < nst))
        if const and c.iter_hook: c.iter_hook(a, c, vm, k)
        if k + L == nst - 1 + c.tail_delay and c.tail_issue: c.tail_issue(a, c, vm)
    if c.unroll:
        for k in range(1, nst): it(k, True)
    else:
        k0 = 1
        if c.peel1: it(1); k0 = 2
        a('s_mov_b32 s%d, %d' % (c.s_cnt, nsteady - (k0-1)))
        a.label(c.name + '_ploop')
        it(k0)
        body = vm.log[-1]
        a('s_sub_u32 s%d, s%d, 1' % (c.s_cnt, c.s_cnt))
        a('s_cmp_lg_u32 s%d, 0' % c.s_cnt)
        a('s_cbranch_scc1 %s_ploop' % c.name)
        keep = a.lines
        for k in range(k0+1, nsteady+1):
            a.lines = []; it(k); assert vm.log[-1] == body
        a.lines = keep
        for k in range(nsteady+1, nst): it(k, True)
    mark(a, c, 0)
    if c.ptail: c.ptail(a, c, vm)
    if c.stamps and c.gen_dump:
        a('s_mov_b64 exec, -1')
        mark(a, c, 8)
        a('s_waitcnt vmcnt(0)')
        mark(a, c, 9)
        dump_stamps(a, c)
    if lbl_after: a('s_branch %s' % lbl_after)

class VM:
    def __init__(self, a): self.a = a; self.ops = []; self.log = []; self.done = -1
    def issue(self, tag, n=1): self.ops += [tag]*n
    def count(self, tag):
        idx = max(i for i, t in enumerate(self.ops) if t == tag)
        return len(self.ops) - 1 - idx
    def wait(self, tag, extra=''):
        n = self.count(tag)
        idx = len(self.ops) - 1 - n
        if idx <= self.done:
            self.log.append(None)
            if extra: self.a('s_waitcnt' + extra)
            return
        assert n <= 63
        self.done = idx
        self.log.append(n)
        self.a('s_waitcnt vmcnt(%d)%s' % (n, extra))

def xproducer(a, c, lbl_after):
    BK, S = c.BK, c.S
    assert BK == 64 and S == 3
    nst = c.K // BK
    D = 2
    sp = c.s_tmp
    tabs = order_table(nst, c.G, c.order)
    pk = [sum(x << (4*i) for i, x in enumerate(o)) for o in tabs]
    s_ow, s_ox, s_kt = c.s_tab, c.s_tab+2, c.s_nh
    a('s_sub_u32 s%d, s%d, 4' % (sp, c.s_wave))
    a('s_mov_b32 s%d, 0x%x\ns_mov_b32 s%d, 0x%x' % (s_ow, pk[0] & 0xffffffff, s_ow+1, pk[0] >> 32))
    for j in range(1, c.G):
        a('s_cmp_eq_u32 s%d, %d' % (c.s_rot, j))
        a('s_cselect_b32 s%d, 0x%x, s%d\ns_cselect_b32 s%d, 0x%x, s%d' % (s_ow, pk[j] & 0xffffffff, s_ow, s_ow+1, pk[j] >> 32, s_ow+1))
    a('s_mov_b64 s[%d:%d], s[%d:%d]' % (s_ox, s_ox+1, s_ow, s_ow+1))
    v = 2
    vrow, vt, vch = v, v+1, v+2; v += 3
    vXg = v; v += 4
    vXw = v; v += 2
    vTab, vTa = v, v+1; v += 2
    a('v_lshrrev_b32 v%d, 3, v1\nv_and_b32 v%d, 7, v1' % (vrow, vch))
    a('s_lshl_b32 s%d, s%d, 2\ns_add_u32 s%d, s%d, s%d' % (sp+1, c.s_mt, sp+1, sp+1, sp))
    c.s_rb = sp+3
    a('s_mov_b32 s%d, s%d' % (c.s_rb, sp+1))
    a('s_lshl_b32 s%d, s%d, 16' % (sp+1, sp+1))
    a('v_lshlrev_b32 v%d, 11, v%d' % (vt, vrow))
    a('v_lshl_add_u32 v%d, v%d, 4, v%d' % (vt, vch, vt))
    a('v_add_u32 v%d, s%d, v%d' % (vXg, sp+1, vt))
    for i in range(1, 4): a('v_add_u32 v%d, %d, v%d' % (vXg+i, 16384*i, vXg))
    vw0, vw1 = v, v+1; v += 2
    a('v_bfe_u32 v%d, v1, 4, 1\nv_lshlrev_b32 v%d, 1, v%d\nv_xor_b32 v%d, v%d, v%d' % (vt, vt, vt, vt, vt, vch))
    a('v_mul_u32_u24 v%d, %d, v%d' % (vw1, c.ldw, vrow))
    a('s_mul_i32 s%d, s%d, %d' % (sp+1, sp, 16*c.ldw))
    a('s_add_u32 s%d, s%d, s%d' % (sp+2, sp+1, c.s_col0))
    a('v_add_u32 v%d, s%d, v%d' % (vw1, sp+2, vw1))
    a('v_lshl_add_u32 v%d, v%d, 4, v%d' % (vw0, vt, vw1))
    a('v_xor_b32 v%d, 4, v%d' % (vt, vt))
    a('v_lshl_add_u32 v%d, v%d, 4, v%d' % (vw1, vt, vw1))
    a('v_add_u32 v%d, %d, v%d' % (vw1, 8*c.ldw - 1024, vw1))
    a('s_lshl_b32 s%d, s%d, 11\ns_add_u32 s%d, s%d, %d' % (c.s_pw, sp, c.s_pw, c.s_pw, c.xbytes))
    groups = [(c.s_pw, 0, [(vw0, 0), (vw1, 1024)])]
    for q in range(1, c.nfull):
        a('v_add_u32 v%d, %d, v%d\nv_add_u32 v%d, %d, v%d' % (v, q*c.panel_stride, vw0, v+1, q*c.panel_stride, vw1))
        groups.append((c.s_pw, q*8192, [(v, 0), (v+1, 1024)])); v += 2
    if c.half:
        vh0 = v; v += 1
        a('v_lshrrev_b32 v%d, 2, v1' % vh0)
        a('v_mul_u32_u24 v%d, %d, v%d' % (vh0, c.ldw, vh0))
        a('v_lshrrev_b32 v%d, 4, v1\nv_and_b32 v%d, 2, v%d' % (vt, vt, vt))
        a('v_and_b32 v%d, 3, v1\nv_xor_b32 v%d, v%d, v%d' % (vTa, vt, vt, vTa))
        a('v_lshl_add_u32 v%d, v%d, 4, v%d' % (vh0, vt, vh0))
        a('s_add_u32 s%d, s%d, s%d' % (sp+2, sp+1, c.s_colh))
        a('v_add_u32 v%d, s%d, v%d' % (vh0, sp+2, vh0))
        a('s_lshl_b32 s%d, s%d, 10\ns_add_u32 s%d, s%d, %d' % (c.s_ph, sp, c.s_ph, c.s_ph, c.xbytes + c.nfull*8192))
        groups.append((c.s_ph, 0, [(vh0, 0)]))
    nW = sum(len(g[2]) for g in groups)
    a('v_lshrrev_b32 v%d, 4, v1\nv_xor_b32 v%d, v%d, v%d' % (vt, vt, vt, vch))
    a('v_lshlrev_b32 v%d, 4, v%d' % (vt, vt))
    a('v_lshl_add_u32 v%d, v%d, 7, v%d' % (vt, vrow, vt))
    a('s_lshl_b32 s%d, s%d, 12' % (sp+1, sp))
    a('v_add_u32 v%d, s%d, v%d\nv_xor_b32 v%d, 64, v%d' % (vXw, sp+1, vt, vXw+1, vXw))
    a('v_lshlrev_b32 v%d, 6, v%d\nv_add_u32 v%d, %d, v%d' % (vTab, vch, vTab, c.tab_base, vTab))
    v = (v + 3) // 4 * 4
    RAW = v; v += 16*4
    OUT = v; v += 16
    AS = v; v += 16
    TMP = v; v += 8
    RC = v; v += 12
    c.p_vfree = v; c.p_RC = RC; c.p_vrow = vrow; c.p_vch = vch
    vm = VM(a)
    def next_w():
        a('s_and_b32 s%d, s%d, 15' % (s_kt, s_ow))
        a('s_lshr_b64 s[%d:%d], s[%d:%d], 4' % (s_ow, s_ow+1, s_ow, s_ow+1))
        a('s_mul_i32 s%d, s%d, %d' % (c.s_kw, s_kt, BK*c.ldw))
        a('s_lshl_b32 s%d, s%d, 9' % (s_kt, s_kt))
    def nextx():
        a('s_and_b32 s%d, s%d, 15' % (c.s_kx, s_ox))
        a('s_lshr_b64 s[%d:%d], s[%d:%d], 4' % (s_ox, s_ox+1, s_ox, s_ox+1))
        a('s_lshl_b32 s%d, s%d, 7' % (c.s_kx, c.s_kx))
    def loadx1(st, q, i):
        a('buffer_load_dwordx4 v[%d:%d], v%d, s[%d:%d], s%d offen' % (RAW+16*q+4*i, RAW+16*q+4*i+3, vXg+i, c.sX, c.sX+3, c.s_kx))
        vm.issue(('x', st))
    def loadx(st, q):
        nextx()
        for i in range(4): loadx1(st, q, i)
    def dmaw_list(st, slot_const):
        out = []
        for (base, lc, ins) in groups:
            for n_, (vr, io) in enumerate(ins):
                def f(base=base, lc=lc, vr=vr, io=io, first=(n_ == 0)):
                    if first:
                        if slot_const is None:
                            a('s_add_u32 s%d, s%d, s%d' % (sp, base, c.s_slot))
                            if lc: a('s_add_u32 m0, s%d, %d' % (sp, lc))
                            else: a('s_mov_b32 m0, s%d' % sp)
                        else: a('s_add_u32 m0, s%d, %d' % (base, lc + slot_const))
                    a('buffer_load_dwordx4 v%d, s[%d:%d], s%d offen%s lds' % (vr, c.sW, c.sW+3, c.s_kw, ' offset:%d' % io if io else ''))
                    vm.issue(('w', st))
                out.append(f)
        return out
    def dmaw(st, slot_const):
        for f in dmaw_list(st, slot_const): f()
    def readas(skt):
        a('v_add_u32 v%d, s%d, v%d' % (vTa, skt, vTab))
        for e in range(4): a('ds_read_b128 v[%d:%d], v%d offset:%d' % (AS+4*e, AS+4*e+3, vTa, 16*e))
    dot = c.xf.startswith('dot')
    def xform(q, slot_off, side=(), after_unpack=None):
        side = list(side)
        def pop():
            if side: side.pop(0)()
        for i in range(4):
            r = RAW + 16*q + 4*i
            if dot:
                for e in range(4):
                    a('v_dot2_f32_bf16 v%d, v%d, v%d, v%d' % (TMP+2*e, r+e, RC+8+i, RC+2*i+1))
                    a('v_dot2_f32_bf16 v%d, v%d, v%d, v%d' % (TMP+2*e+1, r+e, RC+2*i, RC+2*i+1))
                if after_unpack: after_unpack(i)
            else:
                for e in range(4):
                    a('v_lshlrev_b32 v%d, 16, v%d\nv_and_b32 v%d, 0xffff0000, v%d' % (TMP+2*e, r+e, TMP+2*e+1, r+e))
                if after_unpack: after_unpack(i)
                if c.xf == 'pk5':
                    for e in range(4): a('v_pk_fma_f32 v[%d:%d], v[%d:%d], v[%d:%d], v[%d:%d] op_sel:[0,0,1] op_sel_hi:[1,0,1]' % (TMP+2*e, TMP+2*e+1, TMP+2*e, TMP+2*e+1, RC+2*i, RC+2*i+1, RC+2*i, RC+2*i+1))
                else:
                    for e in range(8): a('v_fma_f32 v%d, v%d, v%d, v%d' % (TMP+e, TMP+e, RC+2*i, RC+2*i+1))
            pop()
            if i == 0: a('s_waitcnt lgkmcnt(0)')
            if c.xf in ('pk5', 'dot4'):
                for e in range(4): a('v_pk_fma_f32 v[%d:%d], v[%d:%d], v[%d:%d], v[%d:%d]' % (TMP+2*e, TMP+2*e+1, TMP+2*e, TMP+2*e+1, AS+2*e, AS+2*e+1, AS+8+2*e, AS+9+2*e))
            else:
                for e in range(8): a('v_fma_f32 v%d, v%d, v%d, v%d' % (TMP+e, TMP+e, AS+e, AS+8+e))
            if i < 3: pop()
            for e in range(4): a('v_cvt_pk_bf16_f32 v%d, v%d, v%d' % (OUT+4*i+e, TMP+2*e, TMP+2*e+1))
            a('ds_write_b128 v%d, v[%d:%d] offset:%d' % (vXw + i % 2, OUT+4*i, OUT+4*i+3, slot_off + i*1024))
        while side: pop()
    s_kt0, s_kt1 = c.s_px, c.s_cnt
    a('s_waitcnt lgkmcnt(0)')
    c.srd_hook(a)
    loadx(0, 2)
    next_w(); a('s_mov_b32 s%d, s%d' % (s_kt0, s_kt))
    dmaw(0, 0)
    c.pstats_issue(a, c, vm)
    loadx(1, 3); loadx(2, 0)
    next_w(); a('s_mov_b32 s%d, s%d' % (s_kt1, s_kt))
    dmaw(1, c.slot)
    loadx(3, 1)
    c.pstats_finish(a, c, vm)
    if dot:
        for i in range(4): a('v_cvt_pk_bf16_f32 v%d, v%d, v%d' % (RC+2*i, RC+2*i, RC+2*i))
        for i in range(4): a('v_and_b32 v%d, 0xffff, v%d\nv_and_b32 v%d, 0xffff0000, v%d' % (RC+8+i, RC+2*i, RC+2*i, RC+2*i))
    for i in range(4): a('v_mul_f32 v%d, -v%d, v%d' % (RC+2*i+1, RC+2*i+1, RC+2*i))
    if c.pprio: a('s_setprio %d' % c.pprio)
    if c.stamps: a('s_mov_b32 s72, 0')
    stamp(a, c, 0)
    a('s_barrier')
    stamp(a, c, 3)
    readas(s_kt0)
    vm.wait(('x', 0))
    xform(2, 0)
    a('s_waitcnt lgkmcnt(0)')
    vm.wait(('w', 0))
    stamp(a, c, 1)
    a('s_barrier')
    stamp(a, c, 2, True)
    readas(s_kt1)
    vm.wait(('x', 1))
    assert c.slot + 4096 <= 65536
    xform(3, c.slot)
    a('s_mov_b32 s%d, %d' % (c.s_slot, 2*c.slot))
    a('v_add_u32 v%d, %d, v%d\nv_add_u32 v%d, %d, v%d' % (vXw, 2*c.slot, vXw, vXw+1, 2*c.slot, vXw+1))
    a('s_mov_b32 s%d, %d' % (sp+1, c.slot))
    def iteration(k, first=False):
        if k + 2 < nst:
            next_w()
            readas(s_kt)
            dl = dmaw_list(k+2, None)
            dl.pop(0)()
            more = k + 2 + D < nst
            if more:
                nextx()
                if c.loop_extra: dl.append(lambda: c.loop_extra(a, c, vm))
            vm.wait(('x', k+2))
            stamp(a, c, 0)
            xform(k % 2, 0, dl, (lambda i: loadx1(k+2+D, k % 2, i)) if more else None)
            stamp(a, c, 3)
            if k + 3 == nst: c.tail_issue(a, c, vm)
            a('s_add_u32 s%d, s%d, s%d' % (c.s_slot, c.s_slot, sp+1))
            a('s_cmp_ge_u32 s%d, %d' % (c.s_slot, c.slot*S))
            a('s_cselect_b32 s%d, 0, s%d' % (c.s_slot, c.s_slot))
            a('s_cselect_b32 s%d, %d, s%d' % (sp, -2*c.slot, sp+1))
            a('v_add_u32 v%d, s%d, v%d\nv_add_u32 v%d, s%d, v%d' % (vXw, sp, vXw, vXw+1, sp, vXw+1))
        vm.wait(('w', k+1), ' lgkmcnt(0)')
        stamp(a, c, 1)
        a('s_barrier')
        stamp(a, c, 2, True)
    nsteady = nst - 2 - D
    assert nsteady % 2 == 0
    if c.loop_init: c.loop_init(a, c)
    a('s_waitcnt lgkmcnt(0)')
    iteration(0); iteration(1)
    a('s_mov_b32 s%d, %d' % (c.s_cnt, nsteady // 2 - 1))
    a.label(c.name + '_ploop')
    n0 = len(vm.log)
    iteration(2); iteration(3)
    body = vm.log[n0:]
    a('s_sub_u32 s%d, s%d, 1' % (c.s_cnt, c.s_cnt))
    a('s_cmp_lg_u32 s%d, 0' % c.s_cnt)
    a('s_cbranch_scc1 %s_ploop' % c.name)
    keep = a.lines;
    for k in range(4, nsteady, 2):
        a.lines = []; n0 = len(vm.log)
        iteration(k); iteration(k+1)
        assert vm.log[n0:] == body, (vm.log[n0:], body)
    a.lines = keep
    for k in range(nsteady, nst-1): iteration(k)
    if c.stamps: dump_stamps(a, c)
    c.ptail(a, c, vm)
    a('s_branch %s' % lbl_after)

def table(a, c):
    a.lines.append('.p2align 6')
    a.label(c.name + '_tab')
    for o in c.tabs:
        a.lines.append('.byte ' + ','.join(str(x) for x in (o + [0]*64)[:16 if c.own0 else 64]))
    if c.own0: a.lines.append('.fill 64, 1, 0')
    a.lines.append('.p2align 2')

def consumer(a, c):
    BK, S = c.BK, c.S
    nsub = BK // 32
    nst = c.K // BK
    r4 = c.rows4
    TMb = c.BM // (4 if r4 else 2) // 16
    sp = c.s_tmp
    ks = c.ksplit
    va = c.v_addr
    vX, vX2, vW0, vW1, vW2, vW3, vX3, vX4 = [va+i for i in range(8)]
    t0, t1 = c.v_tmp, c.v_tmp+1
    nat = c.xform
    natw = c.xform or c.natw
    rotx = c.half or ks
    a('s_lshr_b32 s%d, s%d, 1' % (c.s_rh, c.s_wave))
    a('s_and_b32 s%d, s%d, 1' % (c.s_nh, c.s_wave))
    a('s_mul_i32 s%d, s%d, %d' % (sp, c.s_wave if r4 else c.s_rh, TMb*nsub*1024))
    if ks:
        a('s_lshl_b32 s%d, s%d, 10\ns_add_u32 s%d, s%d, s%d' % (sp+1, c.s_nh, sp, sp, sp+1))
    if nat:
        a('v_bfe_u32 v%d, v1, 1, 3\nv_lshrrev_b32 v%d, 4, v1\nv_xor_b32 v%d, v%d, v%d' % (t0, t1, t0, t0, t1))
        a('v_and_b32 v%d, 15, v1\nv_lshlrev_b32 v%d, 7, v%d' % (t1, t1, t1))
        a('v_lshl_add_u32 v%d, v%d, 4, v%d\nv_add_u32 v%d, s%d, v%d' % (vX, t0, t1, vX, sp, vX))
    else:
        a('v_lshl_add_u32 v%d, v1, 4, s%d' % (vX, sp))
    addr = [vX, vW0, vW1]
    if rotx:
        a('s_mul_i32 s%d, s%d, %d' % (sp, c.s_nh, 2*nsub*1024))
        a('v_subrev_u32 v%d, s%d, v%d' % (vX2, sp, vX))
        a('v_add_u32 v%d, s%d, v%d' % (vX, sp, vX))
        addr.append(vX2)
    if nat:
        a('v_xor_b32 v%d, 64, v%d' % (vX3, vX)); addr.append(vX3)
        if rotx: a('v_xor_b32 v%d, 64, v%d' % (vX4, vX2)); addr.append(vX4)
    if natw:
        a('v_bfe_u32 v%d, v1, 2, 2\nv_lshrrev_b32 v%d, 4, v1\nv_lshl_add_u32 v%d, v%d, 3, v%d' % (t0, t1, t0, t1, t0))
    else:
        a('v_lshrrev_b32 v%d, 2, v1' % t0)
    a('v_bfe_u32 v%d, v1, 3, 2' % t1)
    if ks or r4: a('v_lshlrev_b32 v%d, 5, v%d' % (vW0, t1))
    else:
        a('s_lshl_b32 s%d, s%d, 1' % (sp, c.s_nh))
        a('v_xor_b32 v%d, s%d, v%d' % (vW0, sp, t1))
        a('v_lshlrev_b32 v%d, 5, v%d' % (vW0, vW0))
    a('v_lshl_add_u32 v%d, v%d, 7, v%d' % (vW0, t0, vW0))
    a('v_and_b32 v%d, 3, v1' % t1)
    a('v_lshlrev_b32 v%d, 3, v%d' % (t1, t1))
    if ks:
        a('s_lshl_b32 s%d, s%d, 12\ns_add_u32 s%d, s%d, %d' % (sp, c.s_nh, sp, sp, c.xbytes))
        a('v_add3_u32 v%d, v%d, v%d, s%d' % (vW0, vW0, t1, sp))
    else:
        a('v_add_u32 v%d, %d, v%d' % (t1, c.xbytes, t1))
        a('v_add_u32 v%d, v%d, v%d' % (vW0, vW0, t1))
    a('v_xor_b32 v%d, 32, v%d' % (vW1, vW0))
    if ks or r4:
        a('v_xor_b32 v%d, 64, v%d' % (vW2, vW0))
        a('v_xor_b32 v%d, 96, v%d' % (vW3, vW0))
        addr += [vW2, vW3]
    if c.half:
        a('v_bfe_u32 v%d, v1, 4, 1' % vW2)
        a('v_lshlrev_b32 v%d, 5, v%d' % (vW2, vW2))
        a('v_lshl_add_u32 v%d, v%d, 6, v%d' % (vW2, t0, vW2))
        a('v_add_u32 v%d, v%d, v%d' % (vW2, vW2, t1))
        a('v_add_u32 v%d, %d, v%d' % (vW2, c.nfull*BK*128, vW2))
        a('v_xor_b32 v%d, 32, v%d' % (vW3, vW2))
        addr += [vW2, vW3]
    assert c.xbytes % 128 == 0 and c.slot % 128 == 0
    sm = 2 if ks else 1
    def xrd(j, sub):
        hi = rotx and j >= 2
        if nat: return ((vX4 if hi else vX3) if sub % 2 else (vX2 if hi else vX)), j*2048
        return (vX2 if hi else vX), (j*nsub+sub)*1024
    tf = 512 if natw else 2048
    if ks or r4:
        wfr = [(vW0+u, 0, 4096, tf) for u in range(4)]
        mf = [(j, i) for i in range(TMb) for j in range(4)]
    else:
        wfr = [(vW0 + j % 2, (j//2)*BK*128, 4096, tf) for j in range(2*c.nfull)]
        mf = [(j, i) for j in range(len(wfr)) for i in range(TMb)]
    if c.half:
        wfr += [(vW2, 0, 2048, tf//2), (vW3, 0, 2048, tf//2)]
        mf += [(2*c.nfull + u, i) for u in range(2) for i in range(2)]
    nWf = len(wfr)
    nacc = len(mf) * 4
    KS = c.KS
    fs1 = (TMb + nWf) * 4
    fsz = fs1 * KS
    c.v_acc = c.v_frag + 2*fsz
    c.v_free = c.v_acc + nacc
    if c.pre_hook: c.pre_hook(a, c)
    if c.acc_init: c.acc_init(a, c)
    elif not c.first_c:
        for i in range(nacc): a('v_mov_b32 v%d, 0' % (c.v_acc+i))
    def xreg(s, q, j): return c.v_frag + s*fsz + q*fs1 + j*4
    def wreg(s, q, j): return c.v_frag + s*fsz + q*fs1 + TMb*4 + j*4
    def reads(s, step, own=False):
        r = []
        for q in range(KS):
            sub = (step*KS + q)*sm
            xs = ['ds_read_b128 v[%d:%d], v%d offset:%d' % ((xreg(s,q,j), xreg(s,q,j)+3) + xrd(j, sub)) for j in range(TMb)]
            ws = []
            for j, (v, base, ss, ts) in enumerate(wfr[:2] if own else wfr):
                for t in range(2):
                    w = wreg(s,q,j) + 2*t
                    ws.append('ds_read_b64_tr_b16 v[%d:%d], v%d offset:%d' % (w, w+1, v, base + sub*ss + t*ts))
            r += (xs[:1] + ws + xs[1:]) if (ks or r4) else (ws[:2] + xs + ws[2:])
        if c.no_lds: r = []
        return r
    def mfmas(s, first=False, own=False):
        r = []
        for q in range(KS):
            for k, (j, i) in enumerate(mf):
                if own and j >= 2: continue
                t = c.v_acc + k*4
                A_, B_ = wreg(s,q,j), xreg(s,q,i)
                if j in c.swap_frags: A_, B_ = B_, A_
                C_ = 'v[%d:%d]' % (t, t+3)
                if first and q == 0: C_ = c.first_c(c, j)
                r.append('v_mfma_f32_16x16x32_bf16 v[%d:%d], v[%d:%d], v[%d:%d], %s' % (t, t+3, A_, A_+3, B_, B_+3, C_))
        if c.no_mfma: r = r[:1]
        return r
    def interleave(ms, rs, extra=()):
        out = []
        rpm = c.rpm if len(ms) > 8 else max(c.rpm, c.rpm_own)
        k = 0; ex = list(extra)
        for i, m in enumerate(ms):
            out.append(m)
            if k < len(rs):
                for _ in range(rpm):
                    if k < len(rs): out.append(rs[k]); k += 1
            elif ex:
                out.append(ex.pop(0))
                if ex and ex[0].startswith('s_'): out.append(ex.pop(0))
        out += rs[k:] + ex
        return out
    def advance():
        return ['s_add_u32 s%d, s%d, 1' % (c.s_slot, c.s_slot),
             's_cmp_eq_u32 s%d, %d' % (c.s_slot, S),
             's_cselect_b32 s%d, 0, s%d' % (c.s_slot, c.s_slot),
             's_cselect_b32 s%d, %d, s%d' % (sp, -(S-1)*c.slot, sp+1)] + ['v_add_u32 v%d, s%d, v%d' % (v, sp, v) for v in addr]
    nstep = nsub // KS // sm
    spb = 1 if nstep % 2 == 0 else 2
    a('s_mov_b32 s%d, %d' % (c.s_slot, c.slot0))
    if c.slot0:
        for v in addr: a('v_add_u32 v%d, %d, v%d' % (v, c.slot0*c.slot, v))
    a('s_mov_b32 s%d, %d' % (sp+1, c.slot))
    if c.pre_hook2: c.pre_hook2(a, c)
    if c.stamps: a('s_mov_b32 s72, 0')
    stamp(a, c, 1)
    a('s_barrier')
    stamp(a, c, 2, True)
    if c.post_b0: c.post_b0(a, c)
    vRa, vR = c.v_flag, c.v_flag+1
    s_need, s_one = c.s_px, c.s_pw
    frd = ['ds_read_u8 v%d, v%d' % (vR, vRa)] if c.flags else []
    if c.flags:
        a('v_and_b32 v%d, 3, v1\nv_add_u32 v%d, %d, v%d\ns_mov_b32 s%d, %d\ns_mov_b32 s70, 0x100000\ns_lshl_b64 s[68:69], 1, s%d' % (vRa, vRa, c.SY, vRa, s_need, c.fbase+2, c.s_wave))
        a('s_add_u32 s71, s%d, %d\nv_mov_b32 v%d, s71' % (c.s_wave, c.SY+4, vR+1))
    for r in reads(0, 0) + (frd if nstep == 1 else []): a(r)
    if c.post_b0b: c.post_b0b(a, c, len(reads(0, 0)))
    if nstep == 1:
        for l in advance(): a(l)
    par = [0]
    fc = [0]
    def stage(last, first=False, hook=False, realbar=False, own=False, nown=False, pre_bar=None, post_bar=None, xtra=lambda st: []):
        for step in range(nstep):
            s = par[0]; par[0] ^= 1
            a('s_waitcnt lgkmcnt(0)')
            if hook: c.step_hook(a, c, step, lambda j: wreg(s, 0, j), xreg(1-s, 0, 0))
            if step < nstep-1:
                ex = advance() if (step == nstep-2 and not last) else []
                if first and step == 0 and c.first_extra: ex = ex + c.first_extra(c)
                ex = xtra(step) + ex
                for l in interleave(mfmas(s, first and step == 0, own), reads(1-s, step+1, own) + (frd if step == nstep-2 and not last and not realbar else []), ex): a(l)
            elif not last:
                ms = mfmas(s, first and step == 0, own)
                nb = c.mfma_before_bar
                if first and c.own0:
                    a('s_waitcnt vmcnt(0)\ns_barrier')
                    for m in ms: a(m)
                    a('s_barrier\ns_barrier')
                    ms = []; nb = 0
                elif c.flags and not realbar:
                    fc[0] += 1
                    lab = '%s_c%d' % (c.name, fc[0])
                    a(ms[0])
                    a('v_cmp_gt_u32 vcc, s%d, v%d' % (s_need, vR))
                    a('s_sub_u32 s%d, s%d, 1' % (sp+2, s_need))
                    a(ms[1])
                    if c.noexec: a('v_mov_b32 v%d, s%d\nds_write_b8 v%d, v%d' % (vR, sp+2, vR+1, vR))
                    else: a('v_mov_b32 v%d, s%d\ns_mov_b64 exec, s[68:69]\nds_write_b8 v%d, v%d offset:4\ns_mov_b64 exec, -1' % (vR, sp+2, vRa, vR))
                    a('s_cmp_lg_u64 vcc, 0\ns_cbranch_scc1 %ss' % lab)
                    a.label(lab)
                    a('s_add_u32 s%d, s%d, 1' % (s_need, s_need))
                    o = c.outline
                    o.label(lab + 's')
                    o('s_sub_u32 s70, s70, 1\ns_cbranch_scc1 %s' % lab)
                    o('s_waitcnt lgkmcnt(0)\nds_read_u8 v%d, v%d\ns_waitcnt lgkmcnt(0)\nv_cmp_gt_u32 vcc, s%d, v%d\ns_cmp_lg_u64 vcc, 0\ns_cbranch_scc1 %ss\ns_branch %s' % (vR, vRa, s_need, vR, lab, lab))
                    nb = 2
                else:
                    for m in ms[:nb]: a(m)
                    if pre_bar: pre_bar(a, c)
                    stamp(a, c, 1)
                    a('s_barrier')
                    stamp(a, c, 2, True)
                    if post_bar: post_bar(a, c)
                for l in interleave(ms[nb:], reads(1-s, 0, nown) + (c.post_b1(c) if (first and c.post_b1) else []) + (frd if nstep == 1 else []), xtra(step) + (advance() if nstep == 1 else [])): a(l)
            else:
                for l in interleave(mfmas(s, False, own), c.last_reads(c) if c.last_reads else [], xtra(step)): a(l)
    npre = 0
    if c.first_c:
        stage(False, True); npre = 1
        if c.after_first: c.after_first(a, c)
    if c.step_hook:
        a('s_mov_b32 s%d, %d' % (c.s_cnt, c.hook_stages))
        a.label(c.name + '_hloop')
        stage(False, hook=True)
        a('s_sub_u32 s%d, s%d, 1' % (c.s_cnt, c.s_cnt))
        a('s_cmp_lg_u32 s%d, 0' % c.s_cnt)
        a('s_cbranch_scc1 %s_hloop' % c.name)
        npre += c.hook_stages
    spb *= c.cunroll
    npost = c.nown + 1 if c.nown else 1
    nloop = (nst - npost - npre - (1 if (c.late_hook or c.flags) else 0)) // spb
    rem = (nst - npost - npre) - nloop*spb
    a('s_mov_b32 s%d, %d' % (c.s_cnt, nloop))
    a('.p2align 3')
    a.label(c.name + '_cloop')
    for _ in range(spb): stage(False)
    a('s_sub_u32 s%d, s%d, 1' % (c.s_cnt, c.s_cnt))
    a('s_cmp_lg_u32 s%d, 0' % c.s_cnt)
    a('s_cbranch_scc1 %s_cloop' % c.name)
    for r_ in range(rem):
        if c.late_hook and r_ == rem-1: c.late_hook(a, c)
        stage(False, realbar=(r_ == rem-1))
    if c.nown:
        stage(False, nown=True)
        for q in range(c.nown):
            c.own_hook(a, c, q, 0)
            stage(q == c.nown-1, own=True, nown=True, pre_bar=lambda a, c: c.own_hook(a, c, q, 1), post_bar=lambda a, c: c.own_hook(a, c, q, 2), xtra=lambda st: c.own_extra(c, q, st))
    else: stage(True)
    if c.stamps and c.gen_dump:
        stamp(a, c, 1)
        mark(a, c, 0)
    if ks:
        EB = c.slot * (nst % S)
        if c.slot < 32768:
            EB = c.slot * S; c.lds = EB + 32768
        assert c.lds <= 163840
        a('s_lshl_b32 s%d, s%d, 13\ns_add_u32 s%d, s%d, %d' % (sp, c.s_wave, sp, sp, EB))
        a('v_lshl_add_u32 v%d, v1, 4, s%d' % (t0, sp))
        a('s_xor_b32 s%d, s%d, 1\ns_lshl_b32 s%d, s%d, 13\ns_add_u32 s%d, s%d, %d' % (sp, c.s_wave, sp, sp, sp, sp, EB))
        a('v_lshl_add_u32 v%d, v1, 4, s%d' % (t1, sp))
        for k in range(8): a('ds_write_b128 v%d, v[%d:%d] offset:%d' % (t0, c.v_acc+32+4*k, c.v_acc+35+4*k, 1024*k))
        if c.xch_pre: c.xch_pre(a, c)
        a('s_waitcnt lgkmcnt(0)')
        mark(a, c, 1)
        a('s_barrier')
        mark(a, c, 2)
        for k in range(8): a('ds_read_b128 v[%d:%d], v%d offset:%d' % (c.v_acc+32+4*k, c.v_acc+35+4*k, t1, 1024*k))
        n0 = len(a.lines)
        if c.xch_post: c.xch_post(a, c)
        npost = len(a.lines) - n0
        for k in range(8):
            a('s_waitcnt lgkmcnt(%d)' % min(15, 7-k+npost))
            for r in (0, 2): a('v_pk_add_f32 v[%d:%d], v[%d:%d], v[%d:%d]' % (c.v_acc+4*k+r, c.v_acc+4*k+r+1, c.v_acc+4*k+r, c.v_acc+4*k+r+1, c.v_acc+32+4*k+r, c.v_acc+33+4*k+r))
        nacc = 32
    c.TMb, c.nWf, c.nacc = TMb, nWf, nacc

def config(name, K, BM, nfull, half, BK, S, ldw, panel_stride, **kw):
    c = G()
    c.name, c.K, c.BM, c.nfull, c.half, c.BK, c.S, c.ldw, c.panel_stride = name, K, BM, nfull, half, BK, S, ldw, panel_stride
    c.xbytes = BM * BK * 2
    c.slot = c.xbytes + nfull * BK * 128 + (BK * 64 if half else 0)
    c.lds = c.slot * S
    c.sX, c.sW = 8, 12
    c.s_mt, c.s_nt, c.s_wave, c.s_col0, c.s_colh = 40, 41, 42, 43, 44
    c.s_kx, c.s_kw, c.s_slot, c.s_px, c.s_pw, c.s_ph, c.s_cnt, c.s_rh, c.s_nh = 45, 46, 47, 48, 49, 50, 51, 52, 53
    c.s_tmp = 54
    c.v_addr = 4; c.v_tmp = 2; c.v_frag = 12; c.ksplit = False; c.xform = False; c.xf = 'dot4'; c.pprio = 0; c.pre_hook2 = None
    c.noexec = False; c.fsplit = 2; c.flags = False; c.fbase = 0; c.SY = 147392; c.v_flag = 252; c.outline = None; c.w1late = False; c.cunroll = 1; c.after_first = None; c.mirror = None; c.own0 = None; c.rpm_own = 1; c.nown = 0; c.own_hook = None; c.tabs_override = None; c.mirror_off = None; c.wait_hook = None; c.bar_hook = None; c.post_b0p = None; c.step_hook = None; c.pre_b0 = None; c.xKG = None; c.panel_sreg = None; c.boundary0 = None; c.xflags = ''; c.peel1 = False; c.vm_init = []; c.pre_b1 = None; c.post_b1 = None; c.slot0 = 0; c.boundary = None; c.first_c = None; c.post_b0 = None; c.post_b0b = None; c.first_extra = None; c.rows4 = False; c.last_reads = None; c.pre_last_bar = None; c.xch_pre = None; c.xch_post = None; c.unroll = False; c.iter_hook = None; c.acc_init = None; c.natw = False; c.early_issue = None; c.tail_issue = None; c.ptail = None; c.tail_delay = 0; c.loop_extra = None; c.loop_init = None; c.late_hook = None; c.psplit = 1; c.stamps = False; c.gen_dump = False; c.dma_flags = ''; c.KS = 1; c.rpm = 1; c.mfma_before_bar = 0; c.G = 4; c.order = 'lead'; c.lead = S-1; c.s_rot = 39; c.s_tab = 66; c.tab_base = c.lds; c.srd_hook = None; c.swap_frags = (); c.pre_hook = None
    c.no_dma = c.no_lds = c.no_mfma = False
    for k, v in kw.items(): setattr(c, k, v)
    return c
```

```python
import sys
from asmgen import Asm
import gemm, gen
from gen import *
FL = 0x80000
FL8 = 8
MS = 7
ROW = 256 << MS
XB = PHIQ
FL7 = 7 * ROW
opt.plan = 'lqowab'

UT = 0xE8000
OUT = Asm()
def rt(a, i):
    if not opt.ts: return
    r = 11 if getattr(a, 'cons', False) else 255
    a('s_memrealtime s[98:99]\ns_memtime s[100:101]\ns_waitcnt lgkmcnt(0)\nv_writelane_b32 v%d, s98, %d\nv_writelane_b32 v%d, s100, %d' % (r, i, r, 32+i))

def tile_head(a, c, xm, xn, colmul, ptrs):
    for s, o in ptrs: a('s_load_dwordx2 s[%d:%d], s[0:1], %d' % (s, s+1, o))
    c.dma_flags = opt.wflags
    c.flags = c.name in opt.flags; c.outline = OUT; c.noexec = opt.noexec; c.fsplit = opt.fsplit if c.name != 'wo' else 1
    c.fbase = {'qkv': 0, 'wo': 16, 'w1': 32, 'w2': 48}[c.name]
    c.w1late = c.name in opt.w1late
    c.cunroll = opt.cunroll; c.mfma_before_bar = opt.mbb
    if opt.stamp == c.name: c.stamps = True; c.gen_dump = True
    bm = 16 // xm
    a('s_and_b32 s36, s2, 7\ns_lshr_b32 s37, s2, 3')
    a('s_and_b32 s38, s36, %d\ns_lshr_b32 s36, s36, %d' % (bm-1, bm.bit_length()-1))
    a('s_and_b32 s39, s37, %d\ns_lshr_b32 s37, s37, %d' % (xm-1, xm.bit_length()-1))
    a('s_mul_i32 s38, s38, %d\ns_add_u32 s%d, s38, s39' % (xm, c.s_mt))
    a('s_mul_i32 s36, s36, %d\ns_add_u32 s%d, s36, s37' % (xn, c.s_nt))
    a('s_add_u32 s39, s39, s37\ns_and_b32 s%d, s39, %d' % (c.s_rot, c.G-1))
    a('s_mul_i32 s%d, s%d, %d' % (c.s_col0, c.s_nt, colmul))
    if c.half:
        a('s_and_b32 s36, s%d, 1\ns_cmp_eq_u32 s36, 0' % c.s_nt)
        a('s_cselect_b32 s36, 384, 0\ns_cselect_b32 s37, 0, 64')
        a('s_add_u32 s%d, s%d, s36\ns_add_u32 s%d, s%d, s37' % (c.s_colh, c.s_col0, c.s_col0, c.s_col0))

NW = FL + 0
MPT = 0xF0000
def nonce(a):
    a('s_load_dword s3, s[6:7], %d' % NW)
def nonce2(a):
    a('s_mul_i32 s3, s3, 0x9e3779b1\ns_add_u32 s3, s3, 0x7f4a7c15')

def psync(a, tag, sig, s_sig, s_mem, s_wait, n=16, part=None, mask=None):
    if part in (None, 0):
        srd(a, 84, 6, FL, 9*ROW)
        gs = MS if s_mem is None else MS + 4
        a('s_lshl_b32 s88, s%d, %d\ns_add_u32 s88, s88, %d\ns_lshl_b32 s89, s%d, %d\ns_add_u32 s89, s89, %d' % (s_sig, gs, sig*ROW, s_wait, gs, sig*ROW))
        if s_mem is not None: a('s_lshl_b32 s90, s%d, %d\ns_add_u32 s88, s88, s90' % (s_mem, MS))
        a('v_lshlrev_b32 v252, %d, v1' % MS)
        a('v_mov_b32 v253, s3\ns_mov_b32 s90, 200000')
        a('s_barrier')
        rt(a, 2*sig if sig < 8 else 18)
        a('s_cmp_lg_u32 s42, 4\ns_cbranch_scc1 %s_s5' % tag)
        a('s_mov_b64 exec, 1')
        a('buffer_store_dword v253, v252, s[84:87], s88 offen sc1')
        a('s_mov_b64 exec, -1')
        a.label(tag + '_s5')
    if part == 0: return
    a('s_cmp_lg_u32 s42, 5\ns_cbranch_scc1 %s_sx' % tag)
    if mask is None: a('s_mov_b64 exec, 0x%x' % ((1 << n) - 1))
    else:
        mask(a)
        a('s_mov_b32 exec_lo, s91\ns_mov_b32 exec_hi, 0')
    a('buffer_load_dword v253, v252, s[84:87], s89 offen sc1')
    a.label(tag + '_sp')
    a('buffer_load_dword v254, v252, s[84:87], s89 offen sc1')
    a('s_sub_u32 s90, s90, 1\ns_waitcnt vmcnt(1)\nv_cmp_ne_u32 vcc, s3, v253')
    a('s_cmp_eq_u64 vcc, 0\ns_cbranch_scc1 %s_sy' % tag)
    a('buffer_load_dword v253, v252, s[84:87], s89 offen sc1')
    a('s_waitcnt vmcnt(1)\nv_cmp_ne_u32 vcc, s3, v254')
    a('s_cmp_eq_u64 vcc, 0\ns_cbranch_scc1 %s_sy' % tag)
    a('s_cmp_lg_u32 s90, 0\ns_cbranch_scc1 %s_sp' % tag)
    a.label(tag + '_sy')
    a('s_mov_b64 exec, -1')
    if part != 2: rt(a, 2*sig+1 if sig < 8 else 19)
    a.label(tag + '_sx')
    if part != 2: a('s_barrier')

def early_sync(c, tag, sig, first, full=None):
    if not opt.esync: first = full
    def b1(a): psync(a, tag, sig, None, None, None, part=1, mask=first)
    if opt.esync: c.pre_b0 = lambda a, c, vm: psync(a, tag + 'z', sig, None, None, None, part=2, mask=full)
    return b1

def chain(*fs):
    fs = [f for f in fs if f]
    def g(*x):
        for f in fs: f(*x)
    return g
BAR = lambda a, c: a('s_barrier')

def ln1_body(a, c, TB):
    SS = TB + 8192
    a('s_lshl_b32 s20, s%d, 3\ns_lshr_b32 s21, s%d, 1\ns_add_u32 s20, s20, s21\ns_and_b32 s21, s%d, 1' % (c.s_mt, c.s_nt, c.s_nt))
    a('v_lshrrev_b32 v2, 6, v0\nv_and_b32 v3, 15, v0\nv_bfe_u32 v4, v0, 4, 2')
    a('v_lshlrev_b32 v5, 11, v3\nv_lshl_add_u32 v5, v2, 8, v5\nv_lshl_add_u32 v5, v4, 4, v5')
    a('s_lshl_b32 s22, s20, 15\ns_lshl_b32 s23, s21, 10\ns_add_u32 s23, s23, s22\ns_xor_b32 s25, s23, 1024')
    a('s_waitcnt lgkmcnt(0)')
    nonce(a)
    srd(a, 8, 34, 0, 0x400000)
    a('s_barrier')
    D = 32; M = 144
    for u in range(4): a('buffer_load_dwordx4 v[%d:%d], v5, s[8:11], s23 offen offset:%d%s' % (D+4*u, D+4*u+3, 64*u, opt.xflags))
    for u in range(4): a('buffer_load_dwordx4 v[%d:%d], v5, s[8:11], s25 offen offset:%d%s' % (M+4*u, M+4*u+3, 64*u, opt.xflags))
    srd(a, 12, 6, MPT, 65536); srd(a, 28, 6, H1F, 0x400000)
    a('v_lshlrev_b32 v7, 4, v0\ns_lshl_b32 s24, s21, 12\nv_mov_b32 v12, 0x3f803f80')
    a('v_lshlrev_b32 v6, 5, v3\nv_add_u32 v6, %d, v6\nv_lshl_add_u32 v10, v2, 3, v6' % SS)
    for q in range(8):
        a('s_waitcnt vmcnt(%d)' % (7-q))
        for e in range(4):
            r = (D if q < 4 else M) + 4*(q % 4) + e
            a('v_dot2_f32_bf16 v%d, v%d, v12, %s' % (16+e, r, '0' if q == 0 else 'v%d' % (16+e)))
            a('v_dot2_f32_bf16 v%d, v%d, v%d, %s' % (20+e, r, r, '0' if q == 0 else 'v%d' % (20+e)))
    a('v_add_f32 v16, v16, v17\nv_add_f32 v18, v18, v19\nv_add_f32 v20, v20, v21\nv_add_f32 v22, v22, v23\nv_add_f32 v16, v16, v18\nv_add_f32 v17, v20, v22')
    xg_sum(a, [16, 17], [18, 19])
    a('ds_write_b64 v10, v[16:17]')
    def mloads():
        for p in range(4):
            for w, ch in enumerate((1, 0)):
                a('s_add_u32 s26, s24, %d' % (p*16384 + ch*8192))
                a('buffer_load_dwordx4 v[%d:%d], v7, s[12:15], s26 offen sc1' % (M+8*p+4*w, M+8*p+4*w+3))
    if opt.earlym: mloads()
    X = 48
    for i in range(16): unpack(a, X+2*i, X+2*i+1, D+i)
    a('s_waitcnt lgkmcnt(0)')
    nonce2(a)
    rt(a, 20)
    a('s_mov_b32 s27, 200000\ns_barrier')
    rt(a, 21)
    a('ds_read_b128 v[16:19], v6\nds_read_b128 v[20:23], v6 offset:16')
    if opt.earlym: a('s_branch ln1_chk')
    a.label('ln1_poll')
    mloads()
    a.label('ln1_chk')
    a('s_sub_u32 s27, s27, 1\ns_waitcnt vmcnt(0)')
    tg = [M+2*i+1 for i in range(16)]
    for op, d in (('v_min3_u32', 24), ('v_max3_u32', 25)):
        a('%s v%d, v%d, v%d, v%d' % (op, d, tg[0], tg[1], tg[2]))
        for i in range(3, 15, 2): a('%s v%d, v%d, v%d, v%d' % (op, d, d, tg[i], tg[i+1]))
        a('%s v%d, v%d, v%d, v%d' % (op, d, d, tg[15], tg[15]))
    a('v_xor_b32 v24, s3, v24\nv_xor_b32 v25, s3, v25\nv_or_b32 v24, v24, v25\nv_cmp_ne_u32 vcc, 0, v24')
    a('s_cmp_eq_u64 vcc, 0\ns_cbranch_scc1 ln1_ok\ns_cmp_lg_u32 s27, 0\ns_cbranch_scc1 ln1_poll')
    a.label('ln1_ok')
    rt(a, 22)
    if opt.ts: a('v_writelane_b32 v11, s27, 23')
    a('v_lshrrev_b32 v6, 2, v0\nv_lshlrev_b32 v6, 6, v6\nv_and_b32 v7, 3, v0\nv_lshl_add_u32 v6, v7, 3, v6\nv_add_u32 v6, %d, v6' % TB)
    for e in (0, 2, 4, 6): a('v_add_f32 v%d, v%d, v%d\nv_add_f32 v%d, v%d, v%d' % (M+e, M+e, M+8+e, M+16+e, M+16+e, M+24+e))
    for k_, e in enumerate((0, 2, 4, 6)): a('v_add_f32 v%d, v%d, v%d' % (24+k_, M+e, M+16+e))
    M = 24
    rndn(a, [M, M+1, M+2, M+3], [M+4, M+5])
    a('v_add_f32 v%d, 1.0, v%d\nv_add_f32 v%d, 1.0, v%d' % (M, M, M+1, M+1))
    rndn(a, [M, M+1], [M+4])
    a('ds_write_b64 v6, v[%d:%d]\nds_write_b64 v6, v[%d:%d] offset:32' % (M, M+1, M+2, M+3))
    a('s_waitcnt lgkmcnt(2)')
    a('v_pk_add_f32 v[16:17], v[16:17], v[18:19]\nv_pk_add_f32 v[20:21], v[20:21], v[22:23]\nv_pk_add_f32 v[16:17], v[16:17], v[20:21]')
    a('v_mul_f32 v9, 0x3a800000, v16\nv_mov_b32 v18, 0x3a800000\nv_mul_f32 v8, v9, v9\nv_fma_f32 v8, v17, v18, -v8')
    a('v_max_f32 v8, 0, v8\nv_add_f32 v8, 0x3727c5ac, v8\nv_rsq_f32 v8, v8')
    a('v_lshlrev_b32 v6, 10, v2\nv_lshl_add_u32 v6, v4, 6, v6\nv_add_u32 v6, %d, v6' % TB)
    a('v_lshlrev_b32 v5, 12, v2\nv_lshl_add_u32 v5, v1, 4, v5\ns_lshl_b32 s23, s21, 14\ns_add_u32 s23, s23, s22')
    a('s_waitcnt lgkmcnt(0)\ns_barrier')
    T = 80; X = 48
    for u in range(4):
        for e in range(4): a('ds_read_b128 v[%d:%d], v6 offset:%d' % (T+16*u+4*e, T+16*u+4*e+3, 256*u+16*e))
    a('v_mul_f32 v9, -v9, v8')
    for i in range(0, 32, 2): a('v_pk_fma_f32 v[%d:%d], v[%d:%d], v[8:9], v[8:9] op_sel:[0,0,1] op_sel_hi:[1,0,1]' % (X+i, X+i+1, X+i, X+i+1))
    for u in range(4):
        a('s_waitcnt lgkmcnt(%d)' % (12-4*u))
        for e in range(0, 8, 2): a('v_pk_fma_f32 v[%d:%d], v[%d:%d], v[%d:%d], v[%d:%d]' % (X+8*u+e, X+8*u+e+1, X+8*u+e, X+8*u+e+1, T+16*u+e, T+16*u+e+1, T+16*u+8+e, T+16*u+9+e))
        for e in range(4): a('v_cvt_pk_bf16_f32 v%d, v%d, v%d' % (D+4*u+e, X+8*u+2*e, X+8*u+2*e+1))
        a('buffer_store_dwordx4 v[%d:%d], v5, s[28:31], s23 offen offset:%d' % (D+4*u, D+4*u+3, 1024*u))
    a('s_waitcnt vmcnt(0)\ns_barrier')

KB, RW = 160, 176
def o_loads(a):
    srd(a, 16, 6, KVP, 0x2000000); srd(a, 20, 6, ZP, 0x200000)
    a('s_lshr_b32 s60, s42, 2\ns_lshl_b32 s61, s41, 1\ns_add_u32 s60, s60, s61\ns_and_b32 s61, s42, 3')
    a('s_lshl_b32 s62, s60, 16\ns_lshl_b32 s63, s61, 10\ns_add_u32 s62, s62, s63')
    a('s_lshl_b32 s63, s60, 12\ns_lshl_b32 s64, s61, 6\ns_add_u32 s63, s63, s64')
    a('v_lshlrev_b32 v156, 4, v1\nv_lshrrev_b32 v157, 4, v1\nv_lshlrev_b32 v157, 4, v157\nv_and_b32 v158, 15, v1\nv_lshl_add_u32 v157, v158, 8, v157')
    a('buffer_load_dwordx4 v[%d:%d], v157, s[20:23], s63 offen sc1' % (KB+8, KB+11))
    for m in range(16):
        a('s_lshl_b32 s64, s40, 1\ns_add_u32 s64, s64, %d\ns_and_b32 s64, s64, 15\ns_lshl_b32 s64, s64, 12\ns_add_u32 s64, s64, s62' % m)
        a('buffer_load_dwordx4 v[%d:%d], v156, s[16:19], s64 offen sc1' % (RW+4*m, RW+4*m+3))
    return ['oz'] + [('ok', m) for m in range(16)]
def o_reduce(a, vm):
    S = 244
    a('v_mov_b32 v%d, 0\nv_mov_b32 v%d, 0\nv_mov_b32 v%d, 0\nv_mov_b32 v%d, 0' % (S, S+1, S+4, S+5))
    a('v_bfe_u32 v157, v1, 2, 2\nv_lshrrev_b32 v158, 4, v1\nv_cmp_eq_u32 vcc, v157, v158')
    a('v_and_b32 v157, 1, v1\nv_lshlrev_b32 v157, 4, v157\nv_mov_b32 v158, 0x3f80\nv_lshlrev_b32 v157, v157, v158\nv_cndmask_b32 v157, 0, v157, vcc')
    a('v_and_b32 v158, 2, v1\nv_cmp_eq_u32 vcc, 0, v158\nv_cndmask_b32 v%d, 0, v157, vcc\nv_cndmask_b32 v%d, v157, v%d, vcc' % (S+2, S+3, S))
    vm.wait('oz')
    dpp_sum(a, [KB+8+e for e in range(4)], DPP16)
    for m in range(16):
        vm.wait(('ok', m))
        for h in range(2):
            d = KB + 4*h; A_ = S + 2 - 2*h
            a('v_mfma_f32_16x16x32_bf16 v[%d:%d], v[%d:%d], v[%d:%d], %s' % (d, d+3, A_, A_+3, RW+4*m, RW+4*m+3, '0' if m == 0 else 'v[%d:%d]' % (d, d+3)))
    a('s_lshr_b32 s60, s42, 2\ns_mul_i32 s60, s60, 6144\ns_bfe_u32 s61, s42, 0x10001\ns_lshl_b32 s61, s61, 10\ns_add_u32 s60, s60, s61\ns_and_b32 s61, s42, 1')
    a('s_lshl_b32 s62, s61, 11\ns_add_u32 s62, s62, s60\ns_lshl_b32 s61, s61, 3\ns_add_u32 s60, s60, s61')
    a('v_add_u32 v157, s60, v156\nv_add_u32 v158, s62, v156')
    for e in range(2): a('v_cvt_pk_bf16_f32 v%d, v%d, v%d' % (KB+12+e, KB+8+2*e, KB+9+2*e))
    a('ds_write_b64 v157, v[%d:%d] offset:4096' % (KB+12, KB+13))
    for e in range(4): a('v_cvt_pk_bf16_f32 v%d, v%d, v%d' % (RW+e, KB+2*e, KB+2*e+1))
    a('ds_write_b128 v158, v[%d:%d]' % (RW, RW+3))
    a('s_waitcnt lgkmcnt(0)\ns_barrier')
def o_compute(a, PHI, half):
    AF = RW; R = AF + 24
    srd(a, 20, 6, OF, 0x400000)
    a('s_and_b32 s60, s42, 1\ns_mul_i32 s60, s60, 6144\nv_add_u32 v157, s60, v156')
    for t in range(3):
        for gam in range(2): a('ds_read_b128 v[%d:%d], v157 offset:%d' % (AF+(t*2+gam)*4, AF+(t*2+gam)*4+3, (t*2+gam)*1024))
    a('s_bfe_u32 s60, s42, 0x10001\ns_lshl_b32 s61, s93, 1\ns_add_u32 s60, s60, s61\ns_lshl_b32 s60, s60, 17\ns_lshl_b32 s61, s58, 10\ns_add_u32 s60, s60, s61')
    if half: a('s_add_u32 s60, s60, 65536')
    a('s_waitcnt lgkmcnt(0)')
    for gam in range(2):
        for t in (2, 0, 1):
            for i in range(2):
                d = R + (i*3+t)*4; A_ = AF+(t*2+gam)*4; B_ = PHI[(i, gam)]
                a('v_mfma_f32_16x16x32_bf16 v[%d:%d], v[%d:%d], v[%d:%d], %s' % (d, d+3, A_, A_+3, B_, B_+3, '0' if gam == 0 else 'v[%d:%d]' % (d, d+3)))
    dens = [R+(i*3+2)*4 for i in range(2)]
    for d in dens: a('v_add_f32 v%d, 0x358637bd, v%d' % (d, d))
    for d in dens: a('v_rcp_f32 v%d, v%d' % (d, d))
    for i in range(2):
        xs = list(range(R+i*12, R+i*12+8))
        for x in xs[::2]: a('v_pk_mul_f32 v[%d:%d], v[%d:%d], v[%d:%d] op_sel_hi:[1,0]' % (x, x+1, x, x+1, dens[i], dens[i]+1))
        for e in range(4): a('v_cvt_pk_bf16_f32 v%d, v%d, v%d' % (KB+4*i+e, xs[2*e], xs[2*e+1]))
        a('buffer_store_dwordx4 v[%d:%d], v156, s[20:23], s60 offen' % (KB+4*i, KB+4*i+3))
        a('s_add_u32 s60, s60, 32768')
    a('s_waitcnt vmcnt(0)')

def feat2(a, QF, P, E, MX, W, sL, sink, mid=None, midpos=1, fill=None):
    for i in range(2):
        for ft in range(2):
            t = P + i*8 + ft*4
            a('v_mfma_f32_16x16x32_bf16 v[%d:%d], v[%d:%d], v[%d:%d], 0' % (t, t+3, W+ft*4, W+ft*4+3, QF+4*i, QF+4*i+3))
    fill = list(fill or [])
    def pop(n):
        for _ in range(n):
            if fill: a(fill.pop(0))
    pop(6)
    for rnd in range(4):
        for q in range(4):
            i = q % 2; n = '-' if q >= 2 else ''; b = P + 8*i
            if rnd == 0: a('v_max3_f32 v%d, %sv%d, %sv%d, %sv%d' % (MX+q, n, b, n, b+1, n, b+2))
            elif rnd < 3: a('v_max3_f32 v%d, v%d, %sv%d, %sv%d' % (MX+q, MX+q, n, b+1+2*rnd, n, b+2+2*rnd))
            else: a('v_max_f32 v%d, %sv%d, v%d' % (MX+q, n, b+7, MX+q))
    for st in bfly(a, 'v_max_f32', [MX+q for q in range(4)]):
        pop(2)
        for l in st: a(l)
    for q in range(4): a('v_mul_f32 v%d, s%d, v%d' % (MX+q, sL, MX+q))
    for i in range(2):
        for e in range(8): a('v_fma_f32 v%d, v%d, s%d, -v%d' % (E+8*i+e, P+8*i+e, sL, MX+i))
        for e in range(8): a('v_fma_f32 v%d, -v%d, s%d, -v%d' % (P+8*i+e, P+8*i+e, sL, MX+2+i))
    if mid and midpos == 0: mid()
    for i in range(16): a('v_exp_f32 v%d, v%d\nv_exp_f32 v%d, v%d' % (E+i, E+i, P+i, P+i))
    if mid and midpos == 1: mid()
    B_ = [E, E+8, P, P+8]
    for q in range(4): a('v_add_f32 v%d, v%d, v%d' % (MX+q, B_[q], B_[q]+1))
    for e in range(2, 8):
        for q in range(4): a('v_add_f32 v%d, v%d, v%d' % (MX+q, MX+q, B_[q]+e))
    for st in bfly(a, 'v_add_f32', [MX+q for q in range(4)]):
        pop(2)
        for l in st: a(l)
    pop(99)
    if mid and midpos == 2: mid()
    for q in range(4): a('v_rcp_f32 v%d, v%d' % (MX+q, MX+q))
    for q in range(4):
        for e in range(8): a('v_mul_f32 v%d, v%d, v%d' % (B_[q]+e, B_[q]+e, MX+q))
        for e in range(4): a('v_cvt_pk_bf16_f32 v%d, v%d, v%d' % (B_[q]+e, B_[q]+2*e, B_[q]+2*e+1))
        sink(q % 2, q // 2, B_[q])

def img_addr(a, WA, s_w, IMG):
    a('v_and_b32 v2, 15, v1\nv_lshrrev_b32 v3, 4, v1')
    hrow(a, 6, 2, 5)
    a('v_xor_b32 v6, v6, v3\nv_lshlrev_b32 v2, 7, v2')
    a('s_lshl_b32 s61, s%d, 13\ns_add_u32 s61, s61, %d\nv_add_u32 v2, s61, v2' % (s_w, IMG))
    for u in range(4): a('v_xor_b32 v5, %d, v6\nv_lshl_add_u32 v%d, v5, 3, v2' % (4*u, WA+u))
def hrow(a, dst, row, t):
    a('v_lshrrev_b32 v%d, 1, v%d\nv_and_b32 v%d, 3, v%d\nv_lshlrev_b32 v%d, 2, v%d' % (dst, row, dst, dst, dst, dst))
    a('v_and_b32 v%d, 1, v%d\nv_or_b32 v%d, v%d, v%d' % (t, row, dst, dst, t))
    a('v_lshrrev_b32 v%d, 2, v%d\nv_and_b32 v%d, 2, v%d\nv_or_b32 v%d, v%d, v%d' % (t, row, t, t, dst, dst, t))

def phase0(a, GS):
    V = 8; T = 48; CT = GS + 2048
    a('s_and_b32 s60, s2, 7\ns_lshl_b32 s60, s60, 3\ns_bfe_u32 s61, s2, 0x30003\ns_add_u32 s60, s60, s61\ns_lshr_b32 s61, s2, 6')
    a('s_lshl_b32 s62, s61, 9\ns_mul_i32 s63, s61, %d\ns_lshl_b32 s64, s60, 6\ns_add_u32 s63, s63, s64' % (256*12288))
    a('v_and_b32 v2, 255, v0\nv_mov_b32 v5, %d\nv_mov_b32 v6, 0\nv_mov_b32 v7, 0\nds_write_b32 v5, v6\nv_mov_b32 v3, 147392\nds_write_b64 v3, v[6:7]\ns_waitcnt lgkmcnt(0)' % CT)
    srd(a, 20, 74, 0, 2048); srd(a, 24, 76, 0, 1024*12288)
    vm = gemm.VM(a)
    gemv_issue(a, 4, 2, V, 20, 24, 62, 63, vm, R=4)
    a('s_barrier')
    nonce(a)
    def cpf():
        a('s_lshr_b32 s62, s2, 3\ns_cmp_eq_u32 s42, 7\ns_cselect_b32 s62, s62, 8\ns_min_u32 s62, s62, 8')
        code_pf(a, 'ph0', 'ph0_done', 'code_end', 62, 8, 250, 1, 64)
        vm.issue('cpf')
    if not opt.cpflate: cpf()
    srd(a, 16, 6, MPT, 65536)
    gemv_math(a, 4, V, T, vm, 58, R=4)
    a('v_lshrrev_b32 v3, 4, v2\nv_lshlrev_b32 v3, 7, v3\nv_and_b32 v4, 3, v1\nv_lshl_add_u32 v3, v4, 5, v3\nv_add_u32 v3, %d, v3' % GS)
    a('ds_write_b128 v3, v[%d:%d]\nds_write_b128 v3, v[%d:%d] offset:16' % (T+8, T+11, T+12, T+15))
    a('v_and_b32 v4, 31, v1\nv_lshrrev_b32 v3, 5, v1\nv_lshlrev_b32 v3, 10, v3\nv_lshl_add_u32 v3, v4, 2, v3\nv_add_u32 v3, %d, v3' % GS)
    a('s_lshl_b32 s60, s60, 8\ns_lshl_b32 s61, s61, 14\ns_add_u32 s60, s60, s61\nv_lshlrev_b32 v4, 3, v4\nv_mov_b32 v6, 1\ns_waitcnt lgkmcnt(0)')
    nonce2(a)
    a('s_mov_b64 exec, 1\nds_add_rtn_u32 v6, v5, v6\ns_mov_b64 exec, -1\ns_waitcnt lgkmcnt(0)')
    a('v_readfirstlane_b32 s59, v6\ns_cmp_lg_u32 s59, 3\ns_cbranch_scc1 ph0_nl')
    for p in range(8): a('ds_read_b32 v%d, v3 offset:%d' % (V+p, 128*p))
    a('v_mov_b32 v%d, s3\ns_waitcnt lgkmcnt(0)' % (V+9))
    for s_ in (4, 2):
        for p in range(s_): a('v_add_f32 v%d, v%d, v%d' % (V+p, V+p, V+p+s_))
    a('v_add_f32 v%d, v%d, v%d\nv_add_f32 v%d, v%d, v%d' % (V+8, V, V+1, V+2, V, V+1))
    a('v_permlane32_swap_b32 v%d, v%d\nv_add_f32 v%d, v%d, v%d' % (V+8, V+2, V+8, V+8, V+2))
    a('s_mov_b64 exec, 0xffffffff\nbuffer_store_dwordx2 v[%d:%d], v4, s[16:19], s60 offen\ns_mov_b64 exec, -1' % (V+8, V+9))
    a.label('ph0_nl')
    rt(a, 0)
    if opt.cpflate: cpf()
    srd(a, 16, 6, ZP, FL + 9*ROW - ZP)
    a('s_lshl_b32 s62, s2, 9\ns_lshl_b32 s63, s2, 11\ns_add_u32 s63, s63, %d\ns_cmp_eq_u32 s42, 4\ns_cselect_b32 s62, s62, s63\ns_cselect_b32 s63, 3, 15\ns_cmp_gt_u32 s42, 5\ns_cselect_b32 s62, 0x7000000, s62' % (FL - ZP))
    a('v_min_u32 v249, s63, v1\nv_lshlrev_b32 v249, 7, v249')
    a('buffer_load_dword v251, v249, s[16:19], s62 offen')
    a('s_lshl_b32 s62, s2, 8')
    for q in range(4): a('s_add_u32 s63, s62, %d\ns_load_dword s59, s[32:33], s63' % (64*q))
    a('s_and_b32 s62, s2, 31\ns_lshl_b32 s62, s62, 6\ns_load_dword s59, s[30:31], s62')
    a('s_min_u32 s62, s2, 111\ns_lshl_b32 s62, s62, 6\ns_load_dword s59, s[34:35], s62')
    if opt.wlate & 1: a('s_barrier')
    a.label('ph0_done')

def ph_qkv(P, C, st):
    c = gemm.config('qkv', 1024, 128, 3, False, 64, 3, 6144, 2048, swap_frags=(4, 5), natw=True, tail_delay=opt.td0)
    WPH = c.lds; FLG = WPH + 4096
    EB = c.slot
    IMG = EB; VB = EB + 32768; QB = VB + 16384; GV = QB + 16384
    s_hd = 58; sL = 60
    tile_head(P, c, 8, 4, 128, [(74, P_C), (76, P_WMOD), (6, P_WS), (4, P_WQKV), (32, P_WPHI), (78, P_WO), (34, P_B1), (30, P_B2)])
    phase0(P, 2*c.slot + 4096)
    c.srd_hook = lambda a: [srd(a, *x) for x in [(8, 6, H1F, 0x400000), (12, 4, 0, 1024*6144)]]
    def boundary0(a, c, vm):
        if not opt.wlate & 1: a('s_barrier')
        a('s_barrier')
        psync(a, 'f1', 1, c.s_mt, c.s_nt, c.s_mt, part=0)
    def boundary(a, c, vm):
        if not opt.wlate & 1: boundary0(a, c, vm)
        early_sync(c, 'f1', 1, lambda a: a('s_lshr_b32 s36, s36, 3\ns_lshr_b32 s37, s37, 3\ns_lshl_b32 s91, 0x5555, s36\ns_lshl_b32 s37, 0x5555, s37\ns_or_b32 s91, s91, s37'))(a)
    c.boundary = boundary
    if opt.wlate & 1: c.boundary0 = boundary0
    if opt.xsc1: c.xflags = ' sc1'
    def early_issue(a, c, vm):
        V = c.p_vfree
        srd(a, 16, 32, 0, 65536)
        a('v_lshrrev_b32 v%d, 3, v1\nv_and_b32 v%d, 2, v%d\nv_xor_b32 v%d, v1, v%d\nv_lshlrev_b32 v%d, 4, v%d' % (V, V, V, V, V, V, V))
        a('s_sub_u32 s59, s%d, 4\ns_lshl_b32 s59, s59, 10\ns_add_u32 m0, s59, %d\ns_lshl_b32 s61, s%d, 12\ns_add_u32 s59, s59, s61' % (c.s_wave, WPH, c.s_nt))
        a('buffer_load_dwordx4 v%d, s[16:19], s59 offen lds' % V)
        vm.issue('wphi')
    def tail_issue(a, c, vm):
        V = (c.p_vfree + 3)//4*4
        srd(a, 20, 74, 0, 2048); srd(a, 24, 76, 0, 1024*12288)
        a('s_lshr_b32 s61, s2, 6\ns_lshl_b32 s62, s61, 9\ns_mul_i32 s63, s61, %d' % (256*12288))
        a('s_and_b32 s64, s2, 63\ns_lshl_b32 s65, s64, 7\ns_add_u32 s63, s63, s65\ns_add_u32 s63, s63, 4096')
        a('v_and_b32 v%d, 255, v0' % (V+38))
        srd(a, 16, 34, 0, 7168)
        a('s_min_u32 s59, s2, 64\ns_mul_i32 s59, s59, 448\nv_lshlrev_b32 v249, 1, v%d\nbuffer_load_ushort v248, v249, s[16:19], s59 offen' % (V+38))
        vm.issue('b1')
        gemv_issue(a, 8, V+38, V, 20, 24, 62, 63, vm)
        for t_ in prefetch(a, c, 3 & ~opt.pfo): vm.issue(t_)
    def prefetch(a, c, which):
        V = (c.p_vfree + 3)//4*4
        tags = []
        if opt.pf2 and which & 1:
            srd(a, 28, 78, 0, 1024*2048)
            a('v_lshlrev_b32 v%d, 11, v%d\nv_lshl_add_u32 v%d, v%d, 7, v%d' % (V+39, c.p_vrow, V+39, c.p_vch, V+39))
            a('s_lshr_b32 s62, s2, 3\ns_lshl_b32 s62, s62, 2\ns_add_u32 s62, s62, s%d\ns_sub_u32 s62, s62, 4\ns_lshl_b32 s62, s62, 14' % c.s_wave)
            a('s_bfe_u32 s63, s2, 0x10002\ns_lshl_b32 s63, s63, 10\ns_add_u32 s62, s62, s63')
            a('buffer_load_dword v%d, v%d, s[28:31], s62 offen' % (251, V+39))
            tags.append('pf')
        if opt.pf5 and which & 2:
            a('s_load_dwordx2 s[30:31], s[0:1], %d' % P_W1)
            a('v_lshrrev_b32 v%d, 4, v1\nv_mul_u32_u24 v%d, 7168, v%d\nv_and_b32 v%d, 15, v1\nv_min_u32 v%d, 13, v%d\nv_lshl_add_u32 v%d, v%d, 7, v%d' % (V+39, V+39, V+39, 250, 250, 250, V+39, 250, V+39))
            a('s_lshr_b32 s62, s2, 3\ns_mul_i32 s62, s62, %d\ns_sub_u32 s63, s42, 4\ns_lshl_b32 s63, s63, 2\ns_add_u32 s62, s62, s63\ns_and_b32 s63, s2, 1\ns_lshl_b32 s63, s63, 9\ns_add_u32 s62, s62, s63\ns_mul_i32 s62, s62, 7168' % opt.pf5)
            a('s_bfe_u32 s63, s2, 0x20001\ns_mul_i32 s63, s63, 1792\ns_add_u32 s62, s62, s63\ns_waitcnt lgkmcnt(0)')
            srd(a, 28, 30, 0, 1024*7168)
            a('buffer_load_dword v%d, v%d, s[28:31], s62 offen' % (251, V+39))
            tags.append('pf')
        return tags

    PHI = {}
    def ptail(a, c, vm):
        V = (c.p_vfree + 3)//4*4
        QF = V + 40; P_ = QF + 20; E = P_ + 16; MX = E + 16; W = MX + 4; T = W + 8
        assert T + 24 <= 156 and P_ >= 48
        srd(a, 16, 6, UT, 32768)
        a('s_min_u32 s59, s2, 64\ns_lshl_b32 s59, s59, 11\nv_lshlrev_b32 v249, 1, v249\nv_mov_b32 v247, 0')
        vm.wait('b1')
        a('v_lshlrev_b32 v248, 16, v248\nbuffer_store_dword v247, v249, s[16:19], s59 offen sc1\nbuffer_store_dword v248, v249, s[16:19], s59 offen offset:1024 sc1')
        vm.issue('ut', 2)
        srd(a, 24, 6, MP2, 65536)
        a('s_mov_b32 s%d, 0x%x' % (sL, LOG2E))
        a('s_and_b32 s%d, s%d, 1' % (c.s_nh, c.s_wave))
        wphi_read(a, W, c.s_nh, WPH, 2, 3)
        a('s_lshl_b32 s59, s%d, 1\ns_add_u32 s%d, s59, s%d' % (c.s_nt, s_hd, c.s_nh))
        a('s_lshl_b32 s61, s61, 14\ns_lshl_b32 s64, s64, 8\ns_add_u32 s64, s64, s61')
        a('s_sub_u32 s61, s%d, 4\ns_lshl_b32 s62, s61, 12\ns_add_u32 s62, s62, %d' % (c.s_wave, QB))
        a('v_lshl_add_u32 v4, v1, 4, s62\ns_sub_u32 s62, s42, 4')
        WA = QF + 16
        img_addr(a, WA, 62, IMG)
        if opt.eprio: a('s_setprio %d' % opt.eprio)
        a('s_barrier')
        for i in range(4): a('ds_read_b128 v[%d:%d], v4 offset:%d' % (QF+4*i, QF+4*i+3, 1024*i))
        a('s_waitcnt lgkmcnt(2)')
        def sinkk(i, sg, B):
            for ft in range(2): a('ds_write_b64 v%d, v[%d:%d] offset:%d' % (WA+2*sg+ft, B+2*ft, B+2*ft+1, (2+i)*2048))
        feat2(a, QF, P_, E, MX, W, sL, sinkk)
        a('s_setprio 0\ns_waitcnt lgkmcnt(0)\ns_barrier')
        def sink(i, sg, B): PHI[(i, sg)] = B
        def mid():
            vm.wait('ut')
            psync(a, 'f2', 2, c.s_nt, c.s_mt, c.s_nt, part=0)
        feat2(a, QF+8, P_, E, MX, W, sL, sink, mid, opt.midpos)
        if opt.midpos == 3: mid()
        rt(a, 14)
        gemv_math(a, 8, V, T, vm, 59)
        a('v_lshrrev_b32 v2, 4, v%d\nv_lshlrev_b32 v2, 8, v2\nv_and_b32 v5, 7, v1\nv_lshl_add_u32 v2, v5, 5, v2\nv_add_u32 v2, %d, v2' % (V+38, GV))
        a('ds_write_b128 v2, v[%d:%d]\nds_write_b128 v2, v[%d:%d] offset:16' % (T+8, T+11, T+12, T+15))
        a('v_mov_b32 v5, %d\nv_mov_b32 v6, 1\ns_waitcnt lgkmcnt(0)' % (FLG+16))
        a('s_mov_b64 exec, 1\nds_add_rtn_u32 v6, v5, v6\ns_mov_b64 exec, -1\ns_waitcnt lgkmcnt(0)')
        a('v_readfirstlane_b32 s59, v6\ns_cmp_lg_u32 s59, 3\ns_cbranch_scc1 qkv_gvx')
        a('v_lshlrev_b32 v5, 2, v1\nv_add_u32 v6, %d, v5' % GV)
        for p in range(16): a('ds_read_b32 v%d, v6 offset:%d' % (T+p, 256*p))
        a('s_and_b32 s59, s2, 63\ns_lshl_b32 s59, s59, 2\ns_lshr_b32 s61, s2, 6\ns_add_u32 s59, s59, s61\ns_lshl_b32 s59, s59, %d\ns_add_u32 s59, s59, %d' % (MS, FL7))
        a('s_waitcnt lgkmcnt(0)')
        for s_ in (8, 4, 2, 1):
            for p in range(s_): a('v_add_f32 v%d, v%d, v%d' % (T+p, T+p, T+p+s_))
        a('buffer_store_dword v%d, v5, s[24:27], s64 offen sc1' % T)
        a('v_mov_b32 v6, s3\ns_waitcnt vmcnt(0)\ns_mov_b64 exec, 1')
        a('buffer_store_dword v6, v252, s[84:87], s59 offen sc1')
        a('s_mov_b64 exec, -1')
        a.label('qkv_gvx')
        rt(a, 15)
        psync(a, 'f2', 2, c.s_nt, c.s_mt, c.s_nt, part=1)
        a('s_mov_b32 s93, s%d\ns_mov_b32 s97, s%d' % (c.s_mt, c.s_nt))
        a('s_or_b32 s59, s2, s42\ns_cmp_lg_u32 s59, 4\ns_cbranch_scc1 qkv_nn\ns_mov_b32 s59, %d\nv_mov_b32 v253, s3\ns_mov_b64 exec, 1' % (NW - FL))
        a('buffer_store_dword v253, v252, s[84:87], s59 offen sc1\ns_mov_b64 exec, -1')
        a.label('qkv_nn')
        st['vm_init'] = vm.ops[vm.done+1:] + o_loads(a) + prefetch(a, c, opt.pfo)
    c.first_c = lambda c, j: '0'
    c.unroll = opt.unroll
    c.early_issue, c.tail_issue, c.ptail = early_issue, tail_issue, ptail
    gemm.producer(P, c, None)
    if opt.ts and c.flags: P('v_writelane_b32 v255, s70, %d' % (24 + c.fbase//16))
    st['PHI'] = PHI
    a = C
    tile_head(a, c, 8, 4, 128, [(6, P_WS), (34, P_X)])
    ln1_body(a, c, 2*c.slot)
    rt(a, 1)
    for x in [(24, 6, KVP, 0x2000000), (28, 6, ZP, 0x200000)]: srd(a, *x)
    def zero_flags(a, c):
        a('v_lshlrev_b32 v2, 2, v1\nv_add_u32 v2, %d, v2\nv_mov_b32 v3, 0\nds_write_b32 v2, v3\ns_waitcnt lgkmcnt(0)' % FLG)
    def addrs(a, c):
        WA = c.v_free + 44; RA = WA + 4
        b = Asm()
        img_addr(b, WA, c.s_wave, IMG)
        b('v_lshrrev_b32 v2, 2, v1\nv_and_b32 v3, 3, v1')
        hrow(b, 6, 2, 5)
        b('v_xor_b32 v6, v6, v3\nv_lshlrev_b32 v2, 7, v2')
        b('s_lshl_b32 s61, s%d, 13\ns_add_u32 s61, s61, %d\nv_add_u32 v2, s61, v2' % (c.s_nh, IMG))
        b('s_lshl_b32 s61, s%d, 3\nv_xor_b32 v6, s61, v6' % c.s_rh)
        for u in range(2): b('v_xor_b32 v5, %d, v6\nv_lshl_add_u32 v%d, v5, 3, v2' % (4*u, RA+u))
        import re
        a.lines += [re.sub(r'\bv([56])\b', lambda m: 'v%d' % (int(m.group(1)) + 9), l) for l in b.lines]
    c.pre_hook2 = chain(addrs, zero_flags, BAR)
    c.post_b0 = lambda a, c: rt(a, 2)
    gemm.consumer(a, c)
    if c.stamps: gemm.dump_stamps(a, c)
    if opt.ts and c.flags: a('v_writelane_b32 v11, s70, %d' % (24 + c.fbase//16))
    rt(a, 3)
    a('s_lshl_b32 s%d, s%d, 1\ns_add_u32 s%d, s%d, s%d' % (s_hd, c.s_nt, s_hd, s_hd, c.s_nh))
    wphi_read(a, c.v_free, c.s_nh, WPH, 2, 3)
    W = c.v_free
    ACC = lambda j, i, r=0: c.v_acc + (j*4+i)*4 + r
    QF = 12; HB = 28; P_ = W + 8; E = P_ + 16; MX = E + 16; WA = MX + 4; RA = WA + 4; QQ = RA + 2 + 2
    a('s_mov_b32 s%d, 0x%x' % (sL, LOG2E))
    a('v_lshlrev_b32 v4, 4, v1')
    a('s_lshl_b32 s61, s%d, 12\ns_add_u32 s61, s61, %d' % (c.s_wave, QB))
    a('v_add_u32 v3, s61, v4')
    def pack(dst, j0, i):
        for h in range(2):
            for e in range(2): a('v_cvt_pk_bf16_f32 v%d, v%d, v%d' % (dst+2*h+e, ACC(j0+h, i, 2*e), ACC(j0+h, i, 2*e+1)))
    for n_, (j0, i) in enumerate(((2, 2), (2, 3), (0, 2), (0, 3))):
        pack(HB+4*n_, j0, i)
        a('ds_write_b128 v3, v[%d:%d] offset:%d' % (HB+4*n_, HB+4*n_+3, 1024*n_))
    pack(QF, 2, 0); pack(QF+4, 2, 1)
    a('s_waitcnt lgkmcnt(0)\ns_barrier')
    rt(a, 28)
    def sink(i, sg, B):
        for ft in range(2): a('ds_write_b64 v%d, v[%d:%d] offset:%d' % (WA+2*sg+ft, B+2*ft, B+2*ft+1, i*2048))
    keep = a.lines; a.lines = []
    pack(QQ, 0, 0); pack(QQ+4, 0, 1)
    a('s_lshl_b32 s61, s%d, 1\ns_add_u32 s61, s61, s%d\ns_lshl_b32 s61, s61, 12\ns_add_u32 s61, s61, %d' % (c.s_nh, c.s_rh, VB))
    a('v_add_u32 v3, s61, v4')
    for gam in range(2):
        for dt in range(2):
            q = c.v_acc + (gam*2+dt)*4
            for h in range(2):
                for e in range(2): a('v_cvt_pk_bf16_f32 v%d, v%d, v%d' % (q+2*h+e, ACC(4+dt, 2*gam+h, 2*e), ACC(4+dt, 2*gam+h, 2*e+1)))
            a('ds_write_b128 v3, v[%d:%d] offset:%d' % (q, q+3, (gam*2+dt)*1024))
    for e in range(4): a('v_mov_b32 v%d, 0x3f803f80' % (76+e))
    fl = [l.strip() for l in a.lines]; a.lines = keep
    feat2(a, QF, P_, E, MX, W, sL, sink, fill=fl)
    rt(a, 29)
    a('s_waitcnt lgkmcnt(0)\ns_barrier')
    rt(a, 30)
    AF = 12; VF = 44; ONE = 76; KV = ACC(2, 0)
    a('s_lshl_b32 s61, s%d, 13\ns_add_u32 s61, s61, %d\nv_add_u32 v3, s61, v4' % (c.s_nh, VB))
    for gp in range(4):
        rhp, gam = gp // 2, gp % 2
        for ftl in range(2):
            for t in range(2):
                q = AF + (ftl*4+gp)*4 + 2*t
                a('ds_read_b64_tr_b16 v[%d:%d], v%d offset:%d' % (q, q+1, RA+ftl, rhp*16384 + (gam*32 + t*16)*128))
        for dt in range(2):
            q = VF + (dt*4+gp)*4
            a('ds_read_b128 v[%d:%d], v3 offset:%d' % (q, q+3, (gp*2+dt)*1024))
    for gp in range(4):
        a('s_waitcnt lgkmcnt(%d)' % min(12, 6*(3-gp)))
        for ftl in range(2):
            for t in range(3):
                d = KV + (ftl*3+t)*4; A_ = AF + (ftl*4+gp)*4
                B_ = VF + (t*4+gp)*4 if t < 2 else ONE
                a('v_mfma_f32_16x16x32_bf16 v[%d:%d], v[%d:%d], v[%d:%d], %s' % (d, d+3, A_, A_+3, B_, B_+3, '0' if gp == 0 else 'v[%d:%d]' % (d, d+3)))
    a('s_lshl_b32 s61, s%d, 4\ns_add_u32 s61, s61, s%d' % (s_hd, c.s_mt))
    a('s_lshl_b32 s63, s61, 12\ns_lshl_b32 s64, s%d, 11\ns_add_u32 s63, s63, s64' % c.s_rh)
    a('s_lshl_b32 s61, s61, 8\ns_lshl_b32 s64, s%d, 7\ns_add_u32 s61, s61, s64' % c.s_rh)
    a('v_and_b32 v2, 15, v1\nv_cmp_eq_u32 vcc, 0, v2')
    for ftl in range(2):
        for e in range(4): a('v_cvt_pk_bf16_f32 v%d, v%d, v%d' % (AF+4*ftl+e, KV+(e//2)*12+4*ftl+2*(e%2), KV+(e//2)*12+4*ftl+2*(e%2)+1))
        a('buffer_store_dwordx4 v[%d:%d], v4, s[24:27], s63 offen offset:%d' % (AF+4*ftl, AF+4*ftl+3, ftl*1024))
    a('s_and_saveexec_b64 s[64:65], vcc')
    for ftl in range(2):
        d = KV + (ftl*3+2)*4
        a('buffer_store_dwordx4 v[%d:%d], v1, s[28:31], s61 offen offset:%d' % (d, d+3, ftl*64))
    a('s_mov_b64 exec, s[64:65]')
    rt(a, 4)
    a('s_waitcnt vmcnt(0)\ns_barrier')
    CPHI = {}
    def sinkq(i, sg, B): CPHI[(i, sg)] = B
    feat2(a, QQ, 12, 28, 44, W, sL, sinkq)
    a('s_mov_b32 s93, s%d\ns_barrier' % c.s_mt)
    rt(a, 5)
    vm = gemm.VM(a); vm.ops = o_loads(a)
    o_reduce(a, vm)
    o_compute(a, CPHI, 0)
    a('s_barrier')
    rt(a, 6)
    return c

def poll7(a, tag, offs, nw=4, wave=5):
    if wave is not None: a('s_cmp_lg_u32 s42, %d\ns_cbranch_scc1 %s_x' % (wave, tag))
    a('s_mov_b32 s90, 200000')
    a.label(tag + '_p')
    for q, so in enumerate(offs): a('s_load_dwordx%d s[%d:%d], s[6:7], s%d glc' % (nw, 68+nw*q, 68+nw*q+nw-1, so))
    a('s_sub_u32 s90, s90, 1\ns_waitcnt lgkmcnt(0)')
    n = nw*len(offs)
    for q in range(n): a('s_xor_b32 s%d, s%d, s3' % (68+q, 68+q))
    for q in range(1, n): a('s_or_b32 s68, s68, s%d' % (68+q))
    a('s_cbranch_scc0 %s_x' % tag)
    a('s_cmp_lg_u32 s90, 0\ns_cbranch_scc1 %s_p' % tag)
    a.label(tag + '_x')

def gates(a, c, chunks, bias, SC, V):
    nv = len(chunks)
    srd(a, 20, 6, MP2, 65536)
    a('v_lshrrev_b32 v%d, 4, v1\nv_lshlrev_b32 v%d, 14, v%d\nv_and_b32 v%d, 15, v1\nv_lshl_add_u32 v%d, v%d, 4, v%d' % (V+1, V+1, V+1, V+2, V+1, V+2, V+1))
    for q, ch in enumerate(chunks):
        a('s_lshl_b32 s61, s%d, 8\ns_add_u32 s61, s61, %d' % (c.s_nt, (ch-2)*4096))
        a('buffer_load_dwordx4 v[%d:%d], v%d, s[20:23], s61 offen sc1' % (V+4+4*q, V+7+4*q, V+1))
    if bias:
        srd(a, 20, bias, 0, 2048)
        a('v_lshlrev_b32 v%d, 3, v%d\ns_lshl_b32 s61, s%d, 7' % (V+3, V+2, c.s_nt))
        a('buffer_load_dwordx2 v[%d:%d], v%d, s[20:23], s61 offen' % (V+16, V+17, V+3))
    a('v_lshlrev_b32 v%d, 4, v%d\nv_add_u32 v%d, %d, v%d\ns_waitcnt vmcnt(0)' % (V+2, V+2, V+2, SC, V+2))
    xs = list(range(V+4, V+4+4*nv))
    xg_sum(a, xs, list(range(V+20, V+20+4*nv)))
    rndn(a, xs, list(range(V+20, V+26)))
    for q, ch in enumerate(chunks):
        if ch == 4:
            for e in range(4): a('v_add_f32 v%d, 1.0, v%d' % (V+4+4*q+e, V+4+4*q+e))
            rndn(a, list(range(V+4+4*q, V+8+4*q)), [V+20, V+21])
    if bias:
        for e in range(2): unpack(a, V+8+2*e, V+9+2*e, V+16+e)
        for e in range(4): a('v_mul_f32 v%d, v%d, v%d' % (V+8+e, V+8+e, V+4+e))
    for q in range(nv + (1 if bias else 0)): a('ds_write_b128 v%d, v[%d:%d] offset:%d' % (V+2, V+4+4*q, V+7+4*q, 256*q))
    a('s_waitcnt lgkmcnt(0)')

def res_phase(c, xsrd):
    XT = 147456
    def tail(a, c, vm):
        V = c.p_vfree
        srd(a, 16, *xsrd)
        a('v_xor_b32 v%d, v%d, v%d\nv_lshlrev_b32 v%d, 4, v%d\nv_lshl_add_u32 v%d, v%d, 11, v%d' % (V, c.p_vrow, c.p_vch, V, V, V, c.p_vrow, V))
        a('s_sub_u32 s59, s%d, 4\ns_lshl_b32 s60, s%d, 2\ns_add_u32 s60, s60, s59\ns_lshl_b32 s60, s60, 16\ns_lshl_b32 s61, s%d, 7\ns_add_u32 s60, s60, s61' % (c.s_wave, c.s_mt, c.s_nt))
        a('s_lshl_b32 s59, s59, 12\ns_add_u32 s59, s59, %d' % XT)
        for i in range(4):
            a('s_add_u32 m0, s59, %d' % (1024*i))
            a('buffer_load_dwordx4 v%d, s[16:19], s60 offen lds' % V)
            a('s_add_u32 s60, s60, 16384')
        vm.issue('op', 4)
    XA = lambda c: c.v_free + 16 + 48
    c.XA = XA
    def rd(a, c):
        GA = c.v_free + 16
        a('v_lshrrev_b32 v3, 4, v1\nv_lshlrev_b32 v3, 4, v3\nv_add_u32 v3, %d, v3' % XT)
        for q in range(2):
            for j in range(4): a('ds_read_b128 v[%d:%d], v3 offset:%d' % (GA+16*q+4*j, GA+16*q+4*j+3, 256*q + 64*j))
    c.gate_rd = rd
    def pre(a, c):
        a('v_and_b32 v2, 7, v1\nv_lshrrev_b32 v3, 5, v1\nv_xor_b32 v2, v2, v3\nv_lshlrev_b32 v2, 4, v2\nv_bfe_u32 v3, v1, 4, 1\nv_lshl_add_u32 v2, v3, 3, v2')
        a('v_and_b32 v3, 15, v1\nv_lshl_add_u32 v2, v3, 7, v2\ns_lshl_b32 s61, s%d, 12\ns_add_u32 s61, s61, %d\nv_add_u32 v%d, s61, v2' % (c.s_wave, XT, XA(c)))
        for j in range(1, 4): a('v_xor_b32 v%d, %d, v%d' % (XA(c)+j, 32*j, XA(c)))
    def last_reads(c):
        XR = c.v_free
        return ['ds_read_b64 v[%d:%d], v%d offset:%d' % (XR+8*i+2*j, XR+8*i+2*j+1, XA(c)+j, 2048*i) for i in range(2) for j in range(4)]
    c.pre_hook, c.last_reads, c.pre_last_bar = pre, last_reads, (lambda a, c, vm: vm.wait('op'))
    c.first_c = lambda c, j: '0'
    return tail

P2 = lambda x: 'v[%d:%d]' % (x, x+1)
def res_out(a, c, sOut, bias=False):
    XR = c.v_free; GA = XR + 16
    ACC = lambda j, i, r=0: c.v_acc + (i*4+j)*4 + r
    a('s_lshl_b32 s58, s%d, 2\ns_add_u32 s58, s58, s%d' % (c.s_mt, c.s_wave))
    a('s_lshl_b32 s60, s58, 16\ns_lshl_b32 s61, s%d, 7\ns_add_u32 s60, s60, s61' % c.s_nt)
    U = 12; PK = 44
    a('v_and_b32 v2, 15, v1\nv_lshlrev_b32 v2, 11, v2\nv_bfe_u32 v3, v1, 4, 1\nv_lshl_add_u32 v2, v3, 5, v2\nv_lshrrev_b32 v3, 5, v1\nv_lshl_add_u32 v2, v3, 4, v2')
    a('s_add_u32 s61, s60, 32768')
    a('s_waitcnt lgkmcnt(0)')
    def part(i, store=True):
        for j in range(4):
            for e in range(2): unpack(a, U+16*i+4*j+2*e, U+16*i+4*j+2*e+1, XR+8*i+2*j+e)
        if bias:
            for j in range(4):
                for r in (0, 2): a('v_pk_add_f32 %s, %s, %s' % (P2(U+16*i+4*j+r), P2(U+16*i+4*j+r), P2(GA+16+4*j+r)))
        for j in range(4):
            for r in (0, 2): a('v_pk_fma_f32 %s, %s, %s, %s' % (P2(ACC(j,i,r)), P2(ACC(j,i,r)), P2(GA+4*j+r), P2(U+16*i+4*j+r)))
    def out(i):
        for j in range(4):
            for e in range(2): a('v_cvt_pk_bf16_f32 v%d, v%d, v%d' % (PK+8*i+2*j+e, ACC(j,i,2*e), ACC(j,i,2*e+1)))
        if sOut is None:
            for j in range(4): a('ds_write_b64 v%d, v[%d:%d] offset:%d' % (c.XA(c)+j, PK+8*i+2*j, PK+8*i+2*j+1, 2048*i))
            return
        for jp in range(2):
            for e in range(2): a('v_permlane16_swap_b32 v%d, v%d' % (PK+8*i+4*jp+e, PK+8*i+4*jp+2+e))
        for jp in range(2):
            a('buffer_store_dwordx4 v[%d:%d], v2, s[%d:%d], s%d offen offset:%d' % (PK+8*i+4*jp, PK+8*i+4*jp+3, sOut, sOut+3, 60+i, 64*jp))
    return part, out

def ph_wo(P, C, st):
    c = gemm.config('wo', 1024, 128, 1, False, opt.woBK, opt.woS, 2048, 128, rows4=True, KS=2, rpm=opt.rpm, slot0=1, unroll=True)
    tile_head(P, c, 4, 8, 128, [(4, P_WO), (32, P_X), (34, P_W1)])
    c.srd_hook = lambda a: [srd(a, *x) for x in [(8, 6, OF, 0x400000), (12, 4, 0, 1024*2048)]]
    c.vm_init = st['vm_init']
    if opt.xsc1: c.xflags = ' sc1'
    def boundary(a, c, vm):
        rt(a, 16)
        o_reduce(a, vm)
        rt(a, 17)
        o_compute(a, st['PHI'], 1)
        psync(a, 'f3', 3, 93, 97, c.s_mt, part=0)
        if opt.pf3:
            V = 40
            srd(a, 28, 34, 0, 1024*7168)
            a('v_lshrrev_b32 v%d, 4, v1\nv_mul_u32_u24 v%d, 7168, v%d\nv_and_b32 v%d, 15, v1\nv_min_u32 v%d, 13, v%d\nv_lshl_add_u32 v%d, v%d, 7, v%d' % (V, V, V, V+1, V+1, V+1, V, V+1, V))
            a('s_lshr_b32 s61, s2, 3\ns_lshl_b32 s61, s61, 2\ns_add_u32 s61, s61, s42\ns_sub_u32 s61, s61, 4\ns_mul_i32 s61, s61, %d' % (4*7168))
            a('s_bfe_u32 s62, s2, 0x20001\ns_mul_i32 s62, s62, 1792\ns_add_u32 s61, s61, s62')
            for q in range(opt.pf3):
                a('buffer_load_dword v251, v%d, s[28:31], s61 offen\ns_add_u32 s61, s61, %d' % (V, 512*7168))
            vm.issue('pf', opt.pf3)
        a('s_cmp_lg_u32 s42, 6\ns_cbranch_scc1 wo7_x')
        w1_tau(a)
        a('v_lshrrev_b32 v40, 2, v1\nv_cmp_gt_u32 vcc, 2, v40\nv_mov_b32 v41, s65\nv_mov_b32 v42, s%d\nv_cndmask_b32 v41, v41, v42, vcc\nv_lshlrev_b32 v41, 2, v41' % c.s_nt)
        a('v_lshlrev_b32 v40, 2, v40\nv_mov_b32 v42, 0x2120\nv_lshrrev_b32 v40, v40, v42\nv_and_b32 v40, 3, v40\nv_lshl_add_u32 v41, v40, 6, v41\nv_and_b32 v40, 3, v1\nv_add_u32 v41, v40, v41\nv_lshlrev_b32 v41, %d, v41' % MS)
        a('s_mov_b32 s61, %d\ns_mov_b64 exec, 0xffff' % FL7)
        a.label('wo7_p')
        a('buffer_load_dword v40, v41, s[84:87], s61 offen sc1\ns_sub_u32 s90, s90, 1\ns_waitcnt vmcnt(0)\nv_cmp_ne_u32 vcc, s3, v40')
        a('s_cmp_eq_u64 vcc, 0\ns_cbranch_scc1 wo7_y\ns_cmp_lg_u32 s90, 0\ns_cbranch_scc1 wo7_p')
        a.label('wo7_y')
        a('s_mov_b64 exec, -1')
        gates(a, c, [2, 4], None, 147456, 160)
        a.label('wo7_x')
        early_sync(c, 'f3', 3, None)(a)
    c.boundary = boundary
    c.tail_issue = res_phase(c, (32, 0, 0x400000))
    gemm.producer(P, c, None)
    if opt.ts and c.flags: P('v_writelane_b32 v255, s70, %d' % (24 + c.fbase//16))
    assert c.vm.done == len(c.vm.ops) - 1
    P('s_mov_b32 s93, s%d\ns_mov_b32 s97, s%d' % (c.s_mt, c.s_nt))
    a = C
    tile_head(a, c, 4, 8, 128, [])
    for x in [(28, 6, ST2, 0x40000), (16, 6, H2F, 0x400000)]: srd(a, *x)
    c.pre_hook2 = chain(BAR, c.gate_rd)
    c.post_b0 = lambda a, c: rt(a, 7)
    gemm.consumer(a, c)
    if c.stamps: gemm.dump_stamps(a, c)
    if opt.ts and c.flags: a('v_writelane_b32 v11, s70, %d' % (24 + c.fbase//16))
    rt(a, 8)
    ACC = lambda j, i, r=0: c.v_acc + (i*4+j)*4 + r
    part, out = res_out(a, c, None)
    part(0); part(1)
    Q = 60
    for i in range(2):
        xs = [ACC(j,i,r) for j in range(4) for r in (0, 2)]
        S0, Q0 = 64+8*i, 68+8*i
        for k in range(2): a('v_pk_add_f32 %s, %s, %s' % (P2(S0+2*k), P2(xs[k]), P2(xs[2+k])))
        for k in range(2): a('v_pk_mul_f32 %s, %s, %s' % (P2(Q0+2*k), P2(xs[k]), P2(xs[k])))
        for m in (4, 6):
            for k in range(2): a('v_pk_add_f32 %s, %s, %s' % (P2(S0+2*k), P2(S0+2*k), P2(xs[m+k])))
        for m in (2, 4, 6):
            for k in range(2): a('v_pk_fma_f32 %s, %s, %s, %s' % (P2(Q0+2*k), P2(xs[m+k]), P2(xs[m+k]), P2(Q0+2*k)))
        a('v_pk_add_f32 %s, %s, %s\nv_pk_add_f32 %s, %s, %s' % (P2(S0), P2(S0), P2(S0+2), P2(Q0), P2(Q0), P2(Q0+2)))
        a('v_add_f32 v%d, v%d, v%d\nv_add_f32 v%d, v%d, v%d' % (Q+i, S0, S0+1, Q+2+i, Q0, Q0+1))
    for s_ in bfly(a, 'v_add_f32', [Q, Q+1, Q+2, Q+3])[:4]:
        for l in s_: a(l)
    a('v_and_b32 v4, 15, v1\nv_lshrrev_b32 v3, 5, v1\nv_lshl_add_u32 v4, v3, 4, v4\nv_lshlrev_b32 v4, 3, v4\nv_bfe_u32 v3, v1, 4, 1\nv_lshl_add_u32 v4, v3, 2, v4')
    a('s_lshl_b32 s63, s58, 8\ns_lshl_b32 s62, s%d, 14\ns_add_u32 s62, s63, s62' % c.s_nt)
    a('buffer_store_dword v%d, v4, s[28:31], s62 offen sc1' % Q)
    a('v_and_b32 v4, 15, v1\nv_lshlrev_b32 v4, 4, v4\nv_bfe_u32 v3, v1, 4, 1\nv_lshl_add_u32 v4, v3, 9, v4\nv_lshrrev_b32 v3, 5, v1\nv_lshl_add_u32 v4, v3, 8, v4')
    a('s_lshl_b32 s62, s58, 16\ns_lshl_b32 s63, s%d, 11\ns_add_u32 s62, s62, s63\ns_add_u32 s63, s62, 32768' % c.s_nt)
    A2 = c.v_free + 32; PK = 88; U = 12
    for i in range(2):
        for j in range(4):
            for r in (0, 2): a('v_pk_mul_f32 %s, %s, %s' % (P2(U+16*i+4*j+r), P2(ACC(j,i,r)), P2(A2+4*j+r)))
        for j in range(4):
            for e in range(2): a('v_cvt_pk_bf16_f32 v%d, v%d, v%d' % (PK+8*i+2*j+e, U+16*i+4*j+2*e, U+16*i+4*j+2*e+1))
        for jp in range(2):
            for e in range(2): a('v_permlane16_swap_b32 v%d, v%d' % (PK+8*i+4*jp+e, PK+8*i+4*jp+2+e))
        for jp in range(2):
            a('buffer_store_dwordx4 v[%d:%d], v4, s[16:19], s%d offen offset:%d' % (PK+8*i+4*jp, PK+8*i+4*jp+3, 62+i, 1024*jp))
    out(0); out(1)
    rt(a, 9)
    a('s_waitcnt vmcnt(0)\ns_barrier')
    rt(a, 10)
    return c

def w1_tau(a):
    a('s_lshr_b32 s61, s2, 3\ns_lshr_b32 s62, s61, 3\ns_add_u32 s62, s62, s61\ns_and_b32 s62, s62, 3')
    a('s_cmp_eq_u32 s62, 0\ns_cselect_b32 s63, 4, s62\ns_lshl_b32 s64, s62, 2\ns_lshr_b32 s64, 0x1431, s64\ns_and_b32 s64, s64, 15')
    a('s_add_u32 s65, s62, 1\ns_and_b32 s65, s65, 3\ns_add_u32 s62, s63, 3\ns_bitcmp1_b32 s61, 2\ns_cselect_b32 s64, s63, s64\ns_cselect_b32 s65, s62, s65')
    a('s_and_b32 s61, s2, 1\ns_lshl_b32 s61, s61, 3\ns_add_u32 s65, s65, s61')

def ph_w1(P, C, st):
    c = gemm.config('w1', 1024, 128, 3, True, 64, 3, 7168, 128, natw=True, tail_delay=opt.td1)
    BT = c.lds
    tile_head(P, c, 8, 4, 448, [(4, P_W1), (34, P_W2)])
    c.srd_hook = lambda a: [srd(a, *x) for x in [(8, 6, H2F, 0x400000), (12, 4, 0, 1024*7168)]]
    if opt.xsc1: c.xflags = ' sc1'
    XE = BT; RS = XE + 2048; UTL = RS + 1024; UTL2 = UTL + 2048
    tau = w1_tau
    tau(P)
    P('s_add_u32 s92, s64, 1\ns_lshr_b32 s38, s%d, 3' % c.s_mt)
    c.mirror = 38
    def boundary0(a, c, vm):
        psync(a, 'f5', 5, 93, 97, c.s_mt, part=0)
        V = (c.p_vfree + 3)//4*4
        srd(a, 20, 6, MP2, 65536); srd(a, 24, 6, ST2, 0x40000); srd(a, 16, 6, UT, 32768)
        a('v_lshrrev_b32 v%d, 4, v1\nv_lshlrev_b32 v%d, 14, v%d\nv_and_b32 v%d, 15, v1\nv_lshl_add_u32 v%d, v%d, 4, v%d' % (V+1, V+1, V+1, V+2, V+1, V+2, V+1))
        for q, ch in enumerate((4, 3)):
            a('s_lshl_b32 s61, s65, 8\ns_add_u32 s61, s61, %d' % ((ch-2)*4096))
            a('buffer_load_dwordx4 v[%d:%d], v%d, s[20:23], s61 offen sc1' % (V+4+4*q, V+7+4*q, V+1))
        vm.issue('xe', 2)
    def boundary(a, c, vm):
        vm.wait('xe')
        pre_b0(a, c, vm)
        early_sync(c, 'f5', 5, lambda a: a('s_lshl_b32 s91, 1, s36\ns_lshl_b32 s37, 1, s37\ns_or_b32 s91, s91, s37'))(a)
    c.boundary0, c.boundary = boundary0, boundary
    def pre_b0(a, c, vm):
        V = (c.p_vfree + 3)//4*4
        xs = list(range(V+4, V+12))
        for e in range(4): a('v_mov_b32 v%d, 0' % (V+20+e))
        a('v_lshlrev_b32 v%d, 4, v1\nv_add_u32 v%d, %d, v%d' % (V+3, V+3, XE, V+3))
        a('ds_write_b128 v%d, v[%d:%d]\nds_write_b128 v%d, v[%d:%d] offset:1024' % (V+3, V+20, V+23, V+3, V+20, V+23))
        xg_sum(a, xs, list(range(V+12, V+20)))
        rndn(a, xs[:4], [V+12, V+13])
        for e in range(4): a('v_add_f32 v%d, 1.0, v%d' % (V+4+e, V+4+e))
        for e in range(4): a('v_cvt_pk_bf16_f32 v%d, v%d, v%d' % (V+12+e, V+4+2*e, V+5+2*e))
        a('v_lshrrev_b32 v%d, 1, v%d\nv_lshlrev_b32 v%d, 8, v%d\nv_and_b32 v%d, 1, v%d\nv_lshl_add_u32 v%d, v%d, 3, v%d\nv_add_u32 v%d, %d, v%d' % (V+3, V+2, V+3, V+3, V+2, V+2, V+3, V+2, V+3, V+3, XE, V+3))
        a('ds_write_b64 v%d, v[%d:%d]\nds_write_b64 v%d, v[%d:%d] offset:16' % (V+3, V+12, V+13, V+3, V+14, V+15))
        a('s_waitcnt lgkmcnt(0)')
    def iter_hook(a, c, vm, k):
        V = (c.p_vfree + 3)//4*4 + 24
        if k == 11:
            a('s_lshl_b32 s60, s%d, %d\ns_add_u32 s60, s60, %d\nv_lshlrev_b32 v%d, 5, v1\nbuffer_load_dword v%d, v%d, s[84:87], s60 offen sc1' % (c.s_nt, MS+4, 4*ROW, V+23, V+22, V+23))
            vm.issue('f9')
        if k == 13:
            vm.wait('f9')
            a('s_mov_b32 s90, 200000')
            a.label('w19_p')
            a('v_cmp_ne_u32 vcc, s3, v%d\ns_cmp_eq_u64 vcc, 0\ns_cbranch_scc1 w19_y' % (V+22))
            a('buffer_load_dword v%d, v%d, s[84:87], s60 offen sc1\ns_sub_u32 s90, s90, 1\ns_waitcnt vmcnt(0)\ns_cmp_lg_u32 s90, 0\ns_cbranch_scc1 w19_p' % (V+22, V+23))
            a.label('w19_y')
        if k == opt.ut_at:
            a('v_lshlrev_b32 v%d, 4, v1\ns_lshl_b32 s60, s%d, 11\ns_mov_b32 m0, %d' % (V, c.s_nt, UTL2))
            a('buffer_load_dwordx4 v%d, s[16:19], s60 offen sc1 lds\nbuffer_load_dwordx4 v%d, s[16:19], s60 offen offset:1024 sc1 lds' % (V, V))
            a('v_and_b32 v%d, 15, v1\nv_lshlrev_b32 v%d, 4, v%d\nv_lshrrev_b32 v%d, 4, v1\nv_lshl_add_u32 v%d, v%d, 14, v%d' % (V, V, V, V+1, V+1, V+1, V))
            a('s_lshl_b32 s60, s%d, 2\ns_add_u32 s60, s60, s42\ns_sub_u32 s60, s60, 4\ns_lshl_b32 s60, s60, 8' % c.s_mt)
            for q in range(4):
                a('buffer_load_dwordx4 v[%d:%d], v%d, s[24:27], s60 offen sc1\ns_add_u32 s60, s60, 65536' % (V+4+4*q, V+7+4*q, V+1))
            vm.issue('st', 6)
    def bar_hook(a, c, vm, k):
        V = (c.p_vfree + 3)//4*4 + 48
        if k == 1:
            a('s_lshl_b32 s95, s%d, %d\ns_add_u32 s95, s95, %d\ns_lshl_b32 s94, s%d, %d\ns_add_u32 s95, s95, s94\nv_mov_b32 v253, s3' % (c.s_nt, MS+4, 4*ROW, c.s_mt, MS))
            a('s_sub_u32 s94, s42, 4\ns_lshl_b32 s94, s94, 9\nv_lshl_add_u32 v%d, v1, 2, s94\nv_add_u32 v%d, %d, v%d\ns_lshl_b32 s94, s%d, 11' % (V, V+1, UTL, V, c.s_nt))
            a('s_add_u32 s96, s92, 1\ns_sub_u32 s91, s42, 4\ns_lshl_b32 s91, s91, 5\ns_add_u32 s95, s95, s91')
        if 2 <= k <= 5:
            a('s_cmp_lg_u32 s92, %d\ns_cbranch_scc1 w1_np%d' % (k, k))
            a('ds_read_b32 v%d, v%d\nds_read_b32 v%d, v%d offset:256\ns_waitcnt lgkmcnt(0)' % (V+2, V+1, V+3, V+1))
            a('buffer_atomic_add_f32 v%d, v%d, s[16:19], s94 offen\nbuffer_atomic_add_f32 v%d, v%d, s[16:19], s94 offen offset:256' % (V+2, V, V+3, V))
            a.label('w1_np%d' % k)
        if 4 <= k <= 7:
            a('s_cmp_lg_u32 s96, %d\ns_cbranch_scc1 w1_ns%d\ns_mov_b64 exec, 1' % (k-1, k))
            a('buffer_store_dword v253, v252, s[84:87], s95 offen sc1\ns_mov_b64 exec, -1')
            a.label('w1_ns%d' % k)
    def ptail(a, c, vm):
        V = (c.p_vfree + 3)//4*4 + 24
        b = V+4
        vm.wait('st')
        for st_ in (8, 4):
            for e in range(0, st_, 2): a('v_pk_add_f32 %s, %s, %s' % (P2(b+e), P2(b+e), P2(b+e+st_)))
        xg_sum(a, [b, b+1, b+2, b+3], [b+4, b+5, b+6, b+7])
        a('v_mov_b32 v%d, 0x3a800000' % (b+8))
        for h in (0, 2):
            a('v_mul_f32 v%d, v%d, v%d\nv_mul_f32 v%d, v%d, v%d\nv_fma_f32 v%d, v%d, v%d, -v%d' % (b+5+h, b+h, b+8, b+4+h, b+5+h, b+5+h, b+4+h, b+1+h, b+8, b+4+h))
            a('v_max_f32 v%d, 0, v%d\nv_add_f32 v%d, 0x3727c5ac, v%d\nv_rsq_f32 v%d, v%d\nv_mul_f32 v%d, -v%d, v%d' % (b+4+h, b+4+h, b+4+h, b+4+h, b+4+h, b+4+h, b+5+h, b+5+h, b+4+h))
        a('s_sub_u32 s60, s42, 4\ns_lshl_b32 s60, s60, 8\ns_add_u32 s60, s60, %d\nv_add_u32 v%d, s60, v%d' % (RS, V, V))
        a('ds_write_b128 v%d, v[%d:%d]\ns_waitcnt lgkmcnt(0)' % (V, b+4, b+7))
        a('s_barrier')
    c.iter_hook, c.ptail, c.bar_hook = iter_hook, ptail, bar_hook
    def tail_issue(a, c, vm):
        V = c.p_vfree
        if opt.pf4 not in (1, 3): return
        srd(a, 28, 34, 0, 3584*2048)
        a('v_lshlrev_b32 v%d, 11, v%d\nv_lshl_add_u32 v%d, v%d, 7, v%d' % (V, c.p_vrow, V, c.p_vch, V))
        a('s_bfe_u32 s62, s2, 0x10002\ns_lshl_b32 s62, s62, 10')
        a('s_lshr_b32 s61, s2, 3\ns_lshl_b32 s63, s61, 2\ns_add_u32 s63, s63, s%d\ns_sub_u32 s63, s63, 4\ns_lshl_b32 s63, s63, 14\ns_add_u32 s63, s63, s62' % c.s_wave)
        a('buffer_load_dword v251, v%d, s[28:31], s63 offen' % V)
        vm.issue('pf')
        if opt.pf4 == 1:
            a('s_mul_i32 s61, s61, 20\ns_and_b32 s63, s2, 3\ns_mul_i32 s63, s63, 640\ns_add_u32 s61, s61, s63\ns_lshl_b32 s63, s%d, 3\ns_add_u32 s61, s61, s63\ns_add_u32 s61, s61, %d' % (c.s_wave, 1024-32))
            a('s_lshl_b32 s61, s61, 11\ns_add_u32 s61, s61, s62')
            a('buffer_load_dword v251, v%d, s[28:31], s61 offen' % V)
            vm.issue('pf')
    c.tail_issue = tail_issue
    c.unroll = True
    gemm.producer(P, c, None)
    if opt.ts and c.flags: P('v_writelane_b32 v255, s70, %d' % (24 + c.fbase//16))
    P('s_mov_b32 s93, s%d\ns_mov_b32 s97, s%d' % (c.s_mt, c.s_nt))
    st['vm_init'] = c.vm.ops[c.vm.done+1:]
    a = C
    tile_head(a, c, 8, 4, 448, [])
    srd(a, 24, 6, HF, 2048*7168)
    ACC = lambda j, i, r=0: (c.v_acc + (j*4+i)*4 + r) if j < 6 else (c.v_acc + 96 + ((j-6)*2+i)*4 + r)
    tau(a)
    def pre(a, c):
        a('s_lshl_b32 s58, s%d, 6\ns_add_u32 s58, s58, s%d' % (c.s_nh, c.s_col0))
        a('s_mul_i32 s59, s%d, 448\ns_sub_u32 s60, s58, s59\ns_sub_u32 s59, s%d, s59\ns_lshl_b32 s60, s60, 1\ns_lshl_b32 s59, s59, 1' % (c.s_nt, c.s_colh))
        a('s_add_u32 s61, s60, %d\nv_lshl_add_u32 v2, v1, 2, s61\ns_add_u32 s61, s59, %d\nv_lshl_add_u32 v3, v1, 2, s61' % (UTL, UTL))
        a('v_lshlrev_b32 v10, 4, v1\nv_add_u32 v10, %d, v10' % XE)
    nlab = [0]
    a('s_sub_u32 s64, s64, 1')
    c.hook_stages = 4
    def step_hook(a, c, step, wr, xe):
        UA = c.v_free
        nlab[0] += 1
        a('s_cmp_lg_u32 s64, 0\ns_cbranch_scc1 w1_xs%d' % nlab[0])
        a('ds_read_b128 v[%d:%d], v10 offset:%d\ns_waitcnt lgkmcnt(0)' % (xe, xe+3, 1024*step))
        for j in range(8): a('v_mfma_f32_16x16x32_bf16 v[%d:%d], v[%d:%d], v[%d:%d], %s' % (UA+4*j, UA+4*j+3, xe, xe+3, wr(j), wr(j)+3, '0' if step == 0 else 'v[%d:%d]' % (UA+4*j, UA+4*j+3)))
        if step == 1:
            a('s_mov_b64 exec, 0xffff')
            for j in range(8):
                o = ((j//2)*128 + (j % 2)*32)*2 if j < 6 else (j-6)*64
                for e in range(2): a('ds_write_b32 v%d, v%d offset:%d' % (2 if j < 6 else 3, UA+4*j+e, o + 1024*e))
            a('s_mov_b64 exec, -1\ns_waitcnt lgkmcnt(0)')
        a.label('w1_xs%d' % nlab[0])
        if step == 1: a('s_sub_u32 s64, s64, 1')
    c.pre_hook, c.post_b0, c.pre_hook2, c.step_hook = pre, (lambda a, c: rt(a, 11)), BAR, step_hook
    c.first_c = lambda c, j: '0'
    gemm.consumer(a, c)
    if c.stamps: gemm.dump_stamps(a, c)
    if opt.ts and c.flags: a('v_writelane_b32 v11, s70, %d' % (24 + c.fbase//16))
    rt(a, 12)
    UU = 12; TT = 44; RR = c.v_free; TM = RR + 8
    a('v_lshrrev_b32 v3, 4, v1\nv_lshlrev_b32 v3, 4, v3\ns_add_u32 s60, s60, %d\ns_add_u32 s59, s59, %d\nv_add_u32 v2, s60, v3\nv_add_u32 v3, s59, v3' % (UTL2, UTL2))
    a('v_and_b32 v5, 15, v1\nv_lshlrev_b32 v5, 3, v5\ns_lshl_b32 s60, s%d, 9\ns_add_u32 s60, s60, %d\ns_lshl_b32 s59, s%d, 8\ns_add_u32 s61, s60, s59\ns_sub_u32 s60, s60, s59\nv_add_u32 v6, s60, v5\nv_add_u32 v5, s61, v5' % (c.s_rh, RS, c.s_nh))
    a('s_barrier')
    rt(a, 31)
    for i in range(4): a('ds_read_b64 v[%d:%d], v%d offset:%d' % (RR+2*i, RR+2*i+1, 5 if i < 2 else 6, 128*i))
    for j in range(8):
        o = ((j//2)*128 + (j % 2)*32)*2 if j < 6 else (j-6)*64
        a('ds_read_b128 v[%d:%d], v%d offset:%d\nds_read_b128 v[%d:%d], v%d offset:%d' % (UU+4*j, UU+4*j+3, 2 if j < 6 else 3, o, TT+4*j, TT+4*j+3, 2 if j < 6 else 3, o+1024))
    a('v_lshlrev_b32 v4, 4, v1')
    a('s_lshl_b32 s60, s%d, 1\ns_add_u32 s60, s60, s%d\ns_mul_i32 s60, s60, %d' % (c.s_mt, c.s_rh, 4*112*1024))
    a('s_mul_i32 s59, s%d, %d' % (c.s_nh, 2*112*1024))
    a('s_lshl_b32 s61, s58, 4\ns_add_u32 s61, s61, s60')
    a('s_lshl_b32 s62, s%d, 4\ns_add_u32 s62, s62, s60\ns_add_u32 s62, s62, s59' % c.s_colh)
    a('s_add_u32 s61, s61, s59')
    PK = 76
    a('s_waitcnt lgkmcnt(0)')
    for i in range(4):
        nj = 8 if i < 2 else 6
        xs = [ACC(j, i, r) for j in range(nj) for r in range(4)]
        for b in range(0, 4*nj, 16):
            for k in range(b, min(b+16, 4*nj), 2): a('v_pk_fma_f32 %s, %s, %s, %s op_sel:[0,1,0] op_sel_hi:[1,1,1]' % (P2(TM+k-b), P2(UU+k), P2(RR+2*i), P2(TT+k)))
            for k in range(b, min(b+16, 4*nj), 2): a('v_pk_fma_f32 %s, %s, %s, %s op_sel_hi:[1,0,1]' % (P2(xs[k]), P2(xs[k]), P2(RR+2*i), P2(TM+k-b)))
        for x in xs: a('v_max_f32 v%d, 0, v%d' % (x, x))
        for x in xs[::2]: a('v_pk_mul_f32 v[%d:%d], v[%d:%d], v[%d:%d]' % (x, x+1, x, x+1, x, x+1))
        pk = PK + (i % 2)*16
        for k in range(2*nj): a('v_cvt_pk_bf16_f32 v%d, v%d, v%d' % (pk+k, xs[2*k], xs[2*k+1]))
        for p in range(3):
            if p < 2: a('buffer_store_dwordx4 v[%d:%d], v4, s[24:27], s61 offen offset:%d' % (pk+4*p, pk+4*p+3, 2048*p))
            else:
                a('s_add_u32 s63, s61, 4096')
                a('buffer_store_dwordx4 v[%d:%d], v4, s[24:27], s63 offen' % (pk+4*p, pk+4*p+3))
        if i < 2:
            a('buffer_store_dwordx4 v[%d:%d], v4, s[24:27], s62 offen' % (pk+12, pk+15))
            a('s_add_u32 s62, s62, %d' % (112*1024))
        a('s_add_u32 s61, s61, %d' % (112*1024))
        if i == 1: a('s_lshl_b32 s59, s59, 1\ns_sub_u32 s61, s61, s59')
    rt(a, 13)
    if opt.pf4 >= 4:
        a('s_load_dwordx2 s[32:33], s[0:1], %d' % P_W2)
        a('s_lshl_b32 s60, s2, 2\ns_add_u32 s60, s60, s42\ns_mul_i32 s60, s60, 7168\nv_lshlrev_b32 v2, 7, v1\nv_min_u32 v2, %d, v2' % (128*(55 if opt.pf4 == 4 else 27)))
        a('s_waitcnt lgkmcnt(0)')
        srd(a, 16, 32, 0, 3584*2048)
        a('buffer_load_dword v254, v2, s[16:19], s60 offen')
        a('s_waitcnt vmcnt(1)\ns_barrier')
    else:
        a('s_waitcnt vmcnt(0)\ns_barrier')
    rt(a, 14)
    return c

def ph_w2s(P, C, st):
    NO = opt.nown; NS = (56 - NO)//2
    c = gemm.config('w2', 64*(NS+NO), 128, 2, False, 64, opt.w2S, 2048, 0, xKG=112, panel_sreg=59, lead=opt.w2L, nown=NO, rpm_own=opt.rpm_own)
    A_ = gemm.order_table(NS, 4, 'lead'); B_ = gemm.order_table(NO, 4, 'lead') if NO else [[]]*4
    c.tabs_override = [[x + kh*NS for x in A_[j]] + [x + 2*NS for x in B_[j]] for kh in range(2) for j in range(4)]
    c.mirror, c.mirror_off = 58, NS
    if opt.xsc1: c.xflags = ' sc1'
    XT = 147456
    def head(a, ptrs):
        tile_head(a, c, 4, 8, 128, ptrs)
        a('s_lshr_b32 s36, s2, 3\ns_and_b32 s37, s36, 3\ns_lshr_b32 s36, s36, 3\ns_add_u32 s36, s36, s37\ns_and_b32 s%d, s36, 3' % c.s_rot)
    head(P, [(4, P_W2), (32, P_B2)])
    P('s_and_b32 s58, s%d, 1\ns_mov_b32 s59, 128\ns_cmp_eq_u32 s58, 0\ns_cselect_b32 s59, s59, -128' % c.s_nt)
    srds = lambda a: [srd(a, *x) for x in [(8, 6, HF, 2048*7168), (12, 4, 0, 3584*2048)]]
    c.srd_hook = srds
    c.boundary = lambda a, c, vm: psync(a, 'f6', 6, 93, 97, c.s_mt, part=1)
    def boundary0(a, c, vm):
        psync(a, 'f6', 6, 93, 97, c.s_mt, part=0)
        a('s_cmp_lg_u32 s42, 6\ns_cbranch_scc1 w2_ng')
        gates(a, c, [5], 32, 131072, 160)
        a.label('w2_ng')
    c.boundary0 = boundary0
    c.first_c = lambda c, j: '0'
    c.vm_init = st['vm_init']
    KS_, KP_ = NS + opt.own_sig, NS + NO - 1 - opt.own_ld
    def bar_hook(a, c, vm, k):
        if k == KS_:
            a('s_cmp_lg_u32 s42, 4\ns_cbranch_scc1 f8_ns\ns_lshl_b32 s88, s2, %d\ns_add_u32 s88, s88, %d\nv_mov_b32 v253, s3\ns_mov_b64 exec, 1' % (MS, FL8*ROW))
            rt(a, 18)
            a('buffer_store_dword v253, v252, s[84:87], s88 offen sc1\ns_mov_b64 exec, -1')
            a.label('f8_ns')
    def wait_hook(a, c, vm, k):
        if k == KP_ - 1:
            a('s_xor_b32 s89, s2, 32\ns_lshl_b32 s89, s89, %d\ns_add_u32 s89, s89, %d\ns_mov_b32 s90, 200000\nv_mov_b32 v241, 0' % (MS, FL8*ROW))
            a('buffer_load_dword v240, v241, s[84:87], s89 offen sc1')
            vm.issue('f8')
        if k == KP_:
            vm.wait('f8')
            a.label('f8_p')
            a('v_cmp_ne_u32 vcc, s3, v240\ns_cmp_eq_u64 vcc, 0\ns_cbranch_scc1 f8_y')
            a('buffer_load_dword v240, v241, s[84:87], s89 offen sc1\ns_sub_u32 s90, s90, 1\ns_waitcnt vmcnt(0)\ns_cmp_lg_u32 s90, 0\ns_cbranch_scc1 f8_p')
            a.label('f8_y')
            rt(a, 19)
    if NO: c.bar_hook, c.wait_hook = bar_hook, wait_hook
    gemm.producer(P, c, None)
    if opt.ts and c.flags: P('v_writelane_b32 v255, s70, %d' % (24 + c.fbase//16))
    if not NO:
        P('s_xor_b32 s60, s2, 32')
        psync(P, 'f8', FL8, 2, None, 60, n=1)
    a = C
    head(a, [(34, P_OUT)])
    a('s_waitcnt lgkmcnt(0)')
    srd(a, 28, 34, 0, 0x400000); srd(a, 24, 6, XB, 0x800000)
    XR = lambda: c.v_free; GA = lambda: c.v_free + 16; XA = lambda: c.v_free + 32
    def pre(a, c):
        a('s_lshl_b32 s61, s%d, 2\nv_lshrrev_b32 v3, 5, v1\nv_add_u32 v3, s61, v3\nv_and_b32 v2, 7, v1\nv_xor_b32 v2, v2, v3\nv_lshlrev_b32 v2, 4, v2\nv_bfe_u32 v3, v1, 4, 1\nv_lshl_add_u32 v2, v3, 3, v2' % c.s_nh)
        a('v_and_b32 v3, 15, v1\nv_lshl_add_u32 v2, v3, 7, v2\ns_lshl_b32 s61, s%d, 13\ns_add_u32 s61, s61, %d\nv_add_u32 v%d, s61, v2\nv_xor_b32 v%d, 32, v%d' % (c.s_rh, XT, XA(), XA()+1, XA()))
    def rd(a, c):
        a('s_lshl_b32 s60, s%d, 7\ns_add_u32 s61, s60, 131072\nv_lshrrev_b32 v3, 4, v1\nv_lshl_add_u32 v3, v3, 4, s61' % c.s_nh)
        for q in range(2):
            for j in range(2): a('ds_read_b128 v[%d:%d], v3 offset:%d' % (GA()+8*q+4*j, GA()+8*q+4*j+3, 256*q + 64*j))
    def last_reads(c):
        return ['ds_read_b64 v[%d:%d], v%d offset:%d' % (XR()+4*i+2*j, XR()+4*i+2*j+1, XA()+j, 2048*i) for i in range(4) for j in range(2)]
    c.pre_hook, c.last_reads, c.pre_hook2 = pre, last_reads, chain(BAR, rd)
    c.post_b0 = lambda a, c: rt(a, 15)
    def xstore(a, c):
        a('s_lshl_b32 s60, s2, 2\ns_add_u32 s60, s60, s%d\ns_lshl_b32 s60, s60, 13\ns_xor_b32 s61, s60, %d\nv_lshlrev_b32 v2, 4, v1' % (c.s_wave, 32*4*8192))
        for k in range(8):
            if k == 4: a('s_add_u32 s60, s60, 4096')
            a('buffer_store_dwordx4 v[%d:%d], v2, s[24:27], s60 offen offset:%d' % (c.v_acc+32+4*k, c.v_acc+35+4*k, 1024*(k % 4)))
    def xload(a, c, dst):
        for i in range(4):
            for j in range(2):
                k = j*4 + i
                a('s_add_u32 s63, s61, %d' % (1024*k))
                a('buffer_load_dwordx4 v[%d:%d], v2, s[24:27], s63 offen sc1' % (dst+4*k, dst+4*k+3))
    def own_hook(a, c, q, where):
        if q == 0 and where == 0:
            a('s_lshl_b32 s60, s2, 2\ns_add_u32 s60, s60, s%d\ns_lshl_b32 s60, s60, 13\ns_xor_b32 s62, s60, %d\ns_add_u32 s61, s60, 4096\ns_add_u32 s63, s62, 4096\nv_lshlrev_b32 v2, 4, v1' % (c.s_wave, 32*4*8192))
        if NS + q + 1 == KS_ and where == 1: a('s_waitcnt vmcnt(0)')
    XP = 176
    def own_extra(c, q, st):
        n = q*2 + st
        if opt.xbf:
            if n < 4:
                return ['v_cvt_pk_bf16_f32 v%d, v%d, v%d' % (XP+4*n+2*j+e, c.v_acc+32+(j*4+n)*4+2*e, c.v_acc+33+(j*4+n)*4+2*e) for j in range(2) for e in range(2)] + \
                       ['buffer_store_dwordx4 v[%d:%d], v2, s[24:27], s60 offen offset:%d' % (XP+4*n, XP+4*n+3, 1024*n)]
            n -= 2*(KP_ - NS) - 1
            per = -(-4 // (2*(NS + NO - KP_) + 1))
            ks = list(range(4))[per*n:per*n+per] if n >= 0 else []
            return ['buffer_load_dwordx4 v[%d:%d], v2, s[24:27], s62 offen offset:%d sc1' % (XP+4*k, XP+4*k+3, 1024*k) for k in ks]
        if n < 4: return ['buffer_store_dwordx4 v[%d:%d], v2, s[24:27], s%d offen offset:%d' % (c.v_acc+32+4*k, c.v_acc+35+4*k, 60 + k//4, 1024*(k % 4)) for k in (2*n, 2*n+1)]
        n -= 2*(KP_ - NS) - 1
        per = -(-8 // (2*(NS + NO - KP_) + 1))
        ks = [j*4 + i for i in range(4) for j in range(2)][per*n:per*n+per] if n >= 0 else []
        return ['buffer_load_dwordx4 v[%d:%d], v2, s[24:27], s%d offen offset:%d sc1' % (c.v_acc+32+4*k, c.v_acc+35+4*k, 62 + k//4, 1024*(k % 4)) for k in ks]
    c.own_extra = own_extra
    c.own_hook = own_hook
    gemm.consumer(a, c)
    if c.stamps: gemm.dump_stamps(a, c)
    rt(a, 16)
    ACC = lambda j, i, r=0: c.v_acc + (j*4+i)*4 + r
    if not NO: xstore(a, c)
    U = 12; PK = 44; RB = 48 + 16
    a('s_waitcnt lgkmcnt(0)')
    for i in range(4):
        for j in range(2):
            for e in range(2): unpack(a, U+8*i+4*j+2*e, U+8*i+4*j+2*e+1, XR()+4*i+2*j+e)
            for r in (0, 2): a('v_pk_add_f32 %s, %s, %s' % (P2(U+8*i+4*j+r), P2(U+8*i+4*j+r), P2(GA()+8+4*j+r)))
            for r in (0, 2): a('v_pk_fma_f32 %s, %s, %s, %s' % (P2(U+8*i+4*j+r), P2(ACC(j,i,r)), P2(GA()+4*j+r), P2(U+8*i+4*j+r)))
    a('v_and_b32 v2, 15, v1\nv_lshlrev_b32 v2, 11, v2\nv_bfe_u32 v3, v1, 4, 1\nv_lshl_add_u32 v2, v3, 5, v2\nv_lshrrev_b32 v3, 5, v1\nv_lshl_add_u32 v2, v3, 4, v2')
    a('s_lshl_b32 s62, s%d, 1\ns_add_u32 s62, s62, s%d\ns_lshl_b32 s62, s62, 17\ns_lshl_b32 s63, s%d, 1\ns_add_u32 s63, s63, s%d\ns_lshl_b32 s63, s63, 6\ns_add_u32 s62, s62, s63' % (c.s_mt, c.s_rh, c.s_nt, c.s_nh))
    if opt.fullout:
        a('v_bfe_u32 v5, v1, 4, 1\nv_lshlrev_b32 v5, 1, v5\nv_lshrrev_b32 v6, 5, v1\nv_add_u32 v5, v5, v6\ns_lshl_b32 s63, s%d, 2\nv_add_u32 v5, s63, v5\nv_and_b32 v6, 7, v1\nv_xor_b32 v5, v5, v6\nv_lshlrev_b32 v5, 4, v5' % c.s_nh)
        a('v_and_b32 v7, 15, v1\nv_lshl_add_u32 v5, v7, 7, v5\ns_lshl_b32 s63, s%d, 13\nv_add_u32 v5, s63, v5' % c.s_rh)
        a('v_lshrrev_b32 v7, 3, v1\nv_xor_b32 v8, v6, v7\nv_lshlrev_b32 v8, 4, v8\nv_lshl_add_u32 v8, v7, 7, v8\nv_lshlrev_b32 v7, 11, v7\nv_lshl_add_u32 v7, v6, 4, v7\ns_lshl_b32 s63, s42, 12\nv_add_u32 v6, s63, v8')
        a('s_lshl_b32 s62, s%d, 2\ns_add_u32 s62, s62, s42\ns_lshl_b32 s62, s62, 16\ns_lshl_b32 s63, s%d, 7\ns_add_u32 s62, s62, s63' % (c.s_mt, c.s_nt))
    v2s = a.lines;
    if not NO:
        a('s_waitcnt vmcnt(0)\ns_barrier\ns_barrier')
        a('v_lshlrev_b32 v4, 4, v1')
        xl = Asm(); xload(xl, c, c.v_acc+32); a.lines += [l.replace(', v2,', ', v4,') for l in xl.lines]
    ACC = lambda j, i, r=0: c.v_acc + 32 + (j*4+i)*4 + r
    for i in range(4):
        if opt.xbf:
            a('s_waitcnt vmcnt(3)')
            for j in range(2):
                for e in range(2): unpack(a, ACC(j,i,2*e), ACC(j,i,2*e+1), XP+4*i+2*j+e)
        else: a('s_waitcnt vmcnt(%d)' % (6 - 2*i + (0 if opt.fullout else i)))
        for j in range(2):
            for r in (0, 2): a('v_pk_fma_f32 %s, %s, %s, %s' % (P2(U+8*i+4*j+r), P2(ACC(j,i,r)), P2(GA()+4*j+r), P2(U+8*i+4*j+r)))
            for e in range(2): a('v_cvt_pk_bf16_f32 v%d, v%d, v%d' % (PK+4*i+2*j+e, U+8*i+4*j+2*e, U+8*i+4*j+2*e+1))
        for e in range(2): a('v_permlane16_swap_b32 v%d, v%d' % (PK+4*i+e, PK+4*i+2+e))
        if opt.fullout: a('ds_write_b128 v5, v[%d:%d] offset:%d' % (PK+4*i, PK+4*i+3, 2048*i))
        else:
            a('buffer_store_dwordx4 v[%d:%d], v2, s[28:31], s62 offen' % (PK+4*i, PK+4*i+3))
            a('s_add_u32 s62, s62, 32768')
    if opt.fullout:
        a('s_waitcnt lgkmcnt(0)\ns_barrier')
        for i in range(4): a('ds_read_b128 v[%d:%d], v6 offset:%d' % (PK+4*i, PK+4*i+3, 1024*i))
        for i in range(4):
            a('s_waitcnt lgkmcnt(%d)' % (3-i))
            a('buffer_store_dwordx4 v[%d:%d], v7, s[28:31], s62 offen' % (PK+4*i, PK+4*i+3))
            a('s_add_u32 s62, s62, 16384')
    return c

def build(path, **kw):
    for k, v in kw.items(): setattr(opt, k, v)
    a = Asm()
    n = KNAME
    OUT.lines = []
    a.kernel_begin(n)
    a('s_cmp_ge_u32 s2, 256\ns_cbranch_scc1 mega_end')
    a('v_lshrrev_b32 v2, 6, v0\nv_and_b32 v1, 63, v0\nv_readfirstlane_b32 s42, v2')
    a('s_cmp_lt_u32 s42, 4\ns_cbranch_scc1 mega_cons')
    P = Asm(); C = Asm(); st = {}; C.cons = True
    rt(C, 0)
    cs = [f(P, C, st) for f in (ph_qkv, ph_wo, ph_w1, ph_w2s)]
    a.lines += P.lines
    if opt.ts:
        a('s_cmp_lg_u32 s42, 5\ns_cbranch_scc1 mega_end')
        srd(a, 88, 6, TS + 0x10000, 0x10000)
        a('s_lshl_b32 s92, s2, 8\nv_lshlrev_b32 v2, 2, v1\nbuffer_store_dword v255, v2, s[88:91], s92 offen')
    a('s_endpgm')
    a.label('mega_cons')
    a.lines += C.lines
    if opt.ts:
        a('s_waitcnt vmcnt(0)')
        a.cons = True
        rt(a, 17)
        a('s_cmp_lg_u32 s42, 0\ns_cbranch_scc1 mega_end')
        srd(a, 88, 6, TS, 0x10000)
        a('s_lshl_b32 s92, s2, 8\nv_lshlrev_b32 v2, 2, v1\nbuffer_store_dword v11, v2, s[88:91], s92 offen')
    a.label('mega_end')
    a('s_endpgm')
    a.lines += OUT.lines
    for c in cs: gemm.table(a, c)
    a.label('code_end')
    a('s_endpgm')
    a.kernel_end(n, 256, 102, 256, 256, 512, 163840)
    a.lines = [l + opt.sflags if ('buffer_store_dwordx' in l) else l for l in a.lines]
    if opt.plain: a.launches = ['; @launch grid=(256,1,1) block=(512,1,1) lds=163840']
    open(path, 'w').write(a.text(verbose=kw.get('verbose', False)))

KNAME = 'adaLN_cond__linear_kernel_hedgehog__dense_activation_squared_relu__prompt_kernel'
opt.plain = False; opt.midpos = 3; opt.pfo = 0; opt.xbf = True; opt.rpm_own = 1; opt.nown = 6; opt.own_sig = 3; opt.own_ld = 0; opt.noexec = False; opt.fsplit = 2; opt.flags = (); opt.woBK = 128; opt.woS = 3; opt.cpflate = True; opt.esync = False; opt.w1late = (); opt.cunroll = 1; opt.mbb = 2; opt.ut_at = 13; opt.glate = True; opt.td0 = 1; opt.td1 = 0; opt.pf5 = 10; opt.fullout = False; opt.earlym = False; opt.warm = True; opt.xsc1 = True; opt.unroll = True; opt.pollgap = 0; opt.wlate = 7; opt.st_at = 5; opt.pf3 = 0; opt.spf4 = 0; opt.spf2 = 0; opt.pre4 = True; opt.pf4 = 1; opt.w2s = True; opt.w2S = 4; opt.w2L = 3; opt.spoll = False; opt.satom = False; opt.gvflags = ' nt'; opt.eprio = 0; opt.pf2 = 1
if __name__ == '__main__':
    kw = eval('dict(%s)' % (sys.argv[2] if len(sys.argv) > 2 else ''))
    build(sys.argv[1], **kw)
```

```python
from asmgen import Asm

class G:
    pass

def gemm_prologue(a, c):
    a('v_lshrrev_b32 v2, 6, v0')
    a('v_and_b32 v1, 63, v0')
    a('v_readfirstlane_b32 s%d, v2' % c.s_wave)

def panel_cols(a, c):
    pass

def stamp(a, c, k, bump=False):
    if not c.stamps: return
    a('s_memtime s[70:71]')
    a('s_mov_b32 s73, m0')
    a('s_mov_b32 m0, s72')
    a('s_waitcnt lgkmcnt(0)')
    a('v_writelane_b32 v%d, s70, m0' % (248+k))
    a('s_mov_b32 m0, s73')
    if bump: a('s_add_u32 s72, s72, 1')

def order_table(nst, G, mode):
    tabs = []
    for j in range(G):
        if mode == 'seq':
            o = list(range(nst))
        elif mode == 'lead':
            own = {j} | {t+G-1 for t in range(1, nst) if t % G == j and t+G-1 < nst}
            rest = [x for x in range(nst) if x not in own]
            o = []
            for t in range(nst):
                if t == 0: o.append(j)
                elif t % G == j and t+G-1 < nst: o.append(t+G-1)
                else: o.append(rest.pop(0))
        elif mode == 'lead0':
            sub = order_table(nst-1, G, 'lead')[j]
            o = [0] + [x+1 for x in sub]
        elif mode == 'win':
            o = [(t//G)*G + (t+j) % G for t in range(nst)]
        assert sorted(o) == list(range(nst)), o
        tabs.append(o)
    return tabs

def mark(a, c, i):
    if not c.stamps: return
    a('s_memtime s[70:71]')
    a('s_waitcnt lgkmcnt(0)')
    a('v_writelane_b32 v251, s70, %d' % (32+i))

def dump_stamps(a, c):
    a('v_writelane_b32 v251, s94, 63')
    a('s_add_u32 s76, s6, 0x3900000\ns_addc_u32 s77, s7, 0\ns_mov_b32 s78, 0x200000\ns_mov_b32 s79, 0x20000')
    a('s_lshl_b32 s73, s2, 3\ns_add_u32 s73, s73, s%d\ns_lshl_b32 s73, s73, 10' % c.s_wave)
    a('v_lshlrev_b32 v247, 2, v1')
    for k in range(4): a('buffer_store_dword v%d, v247, s[76:79], s73 offen offset:%d' % (248+k, 256*k))
    a('s_waitcnt vmcnt(0)')

def producer(a, c, lbl_after):
    BK, S = c.BK, c.S
    nsub = BK // 32
    KG = c.xKG or c.K // 32
    nst = c.K // BK
    sp = c.s_tmp
    tabs = order_table(nst, c.G, c.order)
    if c.mirror: tabs = tabs + [[(x + nst//2) % nst for x in o] for o in tabs]
    if c.tabs_override: tabs = c.tabs_override
    if c.own0: tabs = [[f] + [x for x in o if x != f] for o in tabs for f in range(nst)]
    c.tabs = tabs
    a('s_sub_u32 s%d, s%d, 4' % (sp, c.s_wave))
    a('s_getpc_b64 s[%d:%d]' % (c.s_tab, c.s_tab+1))
    a.label(c.name + '_pc')
    a('s_add_u32 s%d, s%d, %s_tab-%s_pc' % (c.s_tab, c.s_tab, c.name, c.name))
    a('s_addc_u32 s%d, s%d, 0' % (c.s_tab+1, c.s_tab+1))
    vT = 2; vKX = 3; vKW = 4
    a('s_lshl_b32 s%d, s%d, 6' % (sp+1, c.s_rot))
    if c.nloc:
        a('s_lshl_b32 s%d, s%d, 4\ns_add_u32 s%d, s%d, s%d\ns_lshl_b32 s%d, s%d, 5\ns_mov_b32 s%d, s%d' % (sp+1, c.s_rot, sp+1, sp+1, c.tabsel, sp+1, sp+1, c.s_rot, c.st0))
    if c.own0:
        a('s_lshl_b32 s%d, s%d, 4\ns_add_u32 s%d, s%d, s%d\ns_lshl_b32 s%d, s%d, 4\ns_mov_b32 s%d, s%d' % (sp+1, c.s_rot, sp+1, sp+1, c.own0, sp+1, sp+1, c.s_rot, c.own0))
    if c.mirror:
        a('s_lshl_b32 s%d, s%d, 8\ns_add_u32 s%d, s%d, s%d' % (sp+2, c.mirror, sp+1, sp+1, sp+2))
        a('s_mul_i32 s%d, s%d, %d\ns_add_u32 s%d, s%d, s%d' % (sp+2, c.mirror, c.mirror_off or nst//2, c.s_rot, c.s_rot, sp+2))
    a('v_add_u32 v%d, s%d, v1' % (vT, sp+1))
    a('global_load_ubyte v%d, v%d, s[%d:%d]' % (vKX, vT, c.s_tab, c.s_tab+1))
    v = 5
    groups = []
    mbw = c.BM // 16 // 4
    a('s_mul_i32 s%d, s%d, %d' % (sp+1, c.s_mt, c.BM // 16))
    a('s_mul_i32 s%d, s%d, %d' % (sp+2, sp, mbw))
    a('s_add_u32 s%d, s%d, s%d' % (sp+1, sp+1, sp+2))
    a('s_mul_i32 s%d, s%d, %d' % (sp+1, sp+1, KG*1024))
    a('v_lshl_add_u32 v%d, v1, 4, s%d' % (v, sp+1)); vx0 = v; v += 1
    xl = []
    for i in range(mbw):
        for kg in range(nsub): xl.append((i, kg))
    a('s_mul_i32 s%d, s%d, %d' % (c.s_px, sp, mbw*nsub*1024))
    vregs = {}
    for b in range(0, len(xl), 4):
        ins = []
        for q, (i, kg) in enumerate(xl[b:b+4]):
            const = i*KG*1024 + kg*1024 - q*1024
            assert const >= 0
            if const not in vregs:
                if const == 0: vregs[const] = vx0
                else:
                    a('v_add_u32 v%d, %d, v%d' % (v, const, vx0)); vregs[const] = v; v += 1
            ins.append((vregs[const], q*1024))
        groups.append((c.sX, c.s_kx, c.s_px, b*1024, ins))
    rpw = BK // 4; ipw = rpw // 8
    vrow = v; vt = v+1; vw0 = v+2; vch = v+3; v += 4
    c.p_vrow, c.p_vch = vrow, vch
    a('v_lshrrev_b32 v%d, 3, v1' % vrow)
    a('v_and_b32 v%d, 7, v1' % vch)
    a('v_and_b32 v%d, %d, v%d' % (vt, 2 if c.natw else 6, vrow))
    a('v_xor_b32 v%d, v%d, v%d' % (vw0, vch, vt))
    a('v_mul_u32_u24 v%d, %d, v%d' % (vt, c.ldw, vrow))
    a('s_mul_i32 s%d, s%d, %d' % (sp+1, sp, rpw*c.ldw))
    a('s_add_u32 s%d, s%d, s%d' % (sp+2, sp+1, c.s_col0))
    a('v_add_u32 v%d, s%d, v%d' % (vt, sp+2, vt))
    vw1 = vw0
    if c.natw:
        vw1 = v; v += 1
        a('v_xor_b32 v%d, 4, v%d' % (vw1, vw0))
        a('v_lshl_add_u32 v%d, v%d, 4, v%d' % (vw1, vw1, vt))
    a('v_lshl_add_u32 v%d, v%d, 4, v%d' % (vw0, vw0, vt))
    a('s_mul_i32 s%d, s%d, %d' % (c.s_pw, sp, ipw*1024))
    a('s_add_u32 s%d, s%d, %d' % (c.s_pw, c.s_pw, c.xbytes))
    for q in range(c.nfull):
        ins = []
        for h in range(ipw):
            const = q*c.panel_stride + h*8*c.ldw - h*1024
            if const == 0 and q == 0: ins.append((vw0, 0))
            else:
                a('v_add_u32 v%d, %d, v%d' % (v, const, vw1 if h % 2 else vw0)); ins.append((v, h*1024)); v += 1
                if q and c.panel_sreg: a('v_add_u32 v%d, s%d, v%d' % (v-1, c.panel_sreg, v-1))
        groups.append((c.sW, c.s_kw, c.s_pw, q*BK*128, ins))
    if c.half:
        nh = BK // 64
        vh0 = v; vr2 = v+1; v += 2
        a('v_lshrrev_b32 v%d, 2, v1' % vr2)
        a('v_lshrrev_b32 v%d, %d, v1' % (vt, 4 if c.natw else 3))
        a('v_and_b32 v%d, 2, v%d' % (vt, vt))
        a('v_and_b32 v%d, 3, v1' % vh0)
        a('v_xor_b32 v%d, v%d, v%d' % (vh0, vh0, vt))
        a('v_mul_u32_u24 v%d, %d, v%d' % (vr2, c.ldw, vr2))
        a('v_lshl_add_u32 v%d, v%d, 4, v%d' % (vh0, vh0, vr2))
        a('s_add_u32 s%d, s%d, s%d' % (sp+2, sp+1, c.s_colh))
        a('v_add_u32 v%d, s%d, v%d' % (vh0, sp+2, vh0))
        ins = [(vh0, 0)]
        for h in range(1, nh):
            a('v_add_u32 v%d, %d, v%d' % (v, h*16*c.ldw - h*1024, vh0)); ins.append((v, h*1024)); v += 1
        a('s_mul_i32 s%d, s%d, %d' % (c.s_ph, sp, nh*1024))
        a('s_add_u32 s%d, s%d, %d' % (c.s_ph, c.s_ph, c.xbytes + c.nfull*BK*128))
        groups.append((c.sW, c.s_kw, c.s_ph, 0, ins))
    n = sum(len(g[4]) for g in groups)
    c.n_dma = n
    if c.order in ('seq', 'lead0'):
        a('s_mov_b32 s%d, 0\ns_mov_b32 s%d, 0' % (c.s_kx, c.s_kw))
    else:
        a('s_mul_i32 s%d, s%d, %d' % (c.s_kx, c.s_rot, nsub*1024))
        a('s_mul_i32 s%d, s%d, %d' % (c.s_kw, c.s_rot, BK*c.ldw))
    s_t = c.s_rh
    a('s_mov_b32 s%d, 1' % s_t)
    a('s_waitcnt lgkmcnt(0)')
    c.srd_hook(a)
    vm = VM(a)
    vm.ops = list(c.vm_init)
    c.vm = vm
    nxg = sum(1 for g in groups if g[0] == c.sX)
    def issue(st, slot_const=None, fetch_next=True, part=None):
        gs = {None: groups, 0: groups[:c.psplit], 1: groups[c.psplit:], 'w': groups[nxg:], 'x': groups[:nxg], 'xb': groups[c.psplit:nxg], 'xb0': groups[:nxg], 'fa': groups[:c.fsplit], 'fb': groups[c.fsplit:]}[part]
        if st >= nst - c.nown: gs = [g for g in gs if g is not groups[-1]]
        for (srd, so, base, lc, ins) in gs:
            if slot_const is None:
                a('s_add_u32 s%d, s%d, s%d' % (sp, base, c.s_slot))
                if lc: a('s_add_u32 m0, s%d, %d' % (sp, lc))
                else: a('s_mov_b32 m0, s%d' % sp)
            else:
                a('s_add_u32 m0, s%d, %d' % (base, lc + slot_const))
            for (vr, io) in ins:
                if not c.no_dma:
                    a('buffer_load_dwordx4 v%d, s[%d:%d], s%d offen%s%s lds' % (vr, srd, srd+3, so, ' offset:%d' % io if io else '', c.xflags if srd == c.sX else c.dma_flags))
                vm.issue(st)
        if part in (0, 'w', 'x', 'fa'): return
        if fetch_next:
            a('v_readlane_b32 s%d, v%d, s%d' % (c.s_kx, vKX, s_t))
            a('v_readlane_b32 s%d, v%d, s%d' % (c.s_kw, vKW, s_t))
            a('s_add_u32 s%d, s%d, 1' % (s_t, s_t))
        if slot_const is None:
            a('s_add_u32 s%d, s%d, %d' % (c.s_slot, c.s_slot, c.slot))
            a('s_cmp_ge_u32 s%d, %d' % (c.s_slot, c.slot*S))
            a('s_cselect_b32 s%d, 0, s%d' % (c.s_slot, c.s_slot))
    c.p_vfree = v
    if c.stamps: a('s_mov_b32 s72, 0')
    stamp(a, c, 3)
    vm.issue('tab')
    SL = lambda st: ((st + c.slot0) % S) * c.slot
    L = c.lead
    def tabmul():
        vm.wait('tab')
        a('v_mul_u32_u24 v%d, %d, v%d' % (vKW, BK*c.ldw, vKX))
        a('v_mul_u32_u24 v%d, %d, v%d' % (vKX, nsub*1024, vKX))
        a('v_readlane_b32 s%d, v%d, 1' % (c.s_kw, vKW))
        a('s_mov_b32 s%d, 2' % s_t)
    if c.nloc:
        assert c.nloc == 3 and L == 3
        issue(0, SL(0), part='w')
        tabmul()
        issue(1, SL(1), part='w')
        a('v_readlane_b32 s%d, v%d, 2\ns_nop 4' % (c.s_kw, vKW))
        issue(2, SL(2), part='w')
        if c.early_issue: c.early_issue(a, c, vm)
        a('v_readlane_b32 s%d, v%d, 3\nv_readlane_b32 s%d, v%d, 3\ns_mov_b32 s%d, 4' % (c.s_kw, vKW, c.s_kx, vKX, s_t))
        vm.wait(0)
        a('s_barrier')
        vm.wait(1)
        if c.sig_at == 1:
            c.boundary0(a, c, vm)
            issue(3, SL(3), part='w')
            vm.wait(2)
            a('s_barrier')
        else:
            a('s_barrier')
            issue(3, SL(3), part='w')
            vm.wait(2)
            c.boundary0(a, c, vm)
        c.boundary(a, c, vm)
        issue(3, SL(3), part='xb0')
        for t in (4, 5):
            if c.pre_issue: c.pre_issue(a, c, vm, t)
            issue(t, SL(t))
    elif c.own0:
        issue(0, SL(0), part='w')
        if c.early_issue: c.early_issue(a, c, vm)
        tabmul()
        vm.wait(0)
        a('s_barrier')
        c.boundary0(a, c, vm)
        issue(1, SL(1), part='w')
        c.boundary(a, c, vm)
        a('v_readlane_b32 s%d, v%d, 1' % (c.s_kx, vKX))
        issue(1, SL(1), part='xb0')
    elif c.boundary is None:
        issue(0, SL(0), False)
        if c.early_issue: c.early_issue(a, c, vm)
        tabmul()
        a('v_readlane_b32 s%d, v%d, 1' % (c.s_kx, vKX))
        issue(1, SL(1), part=0)
    else:
        if c.boundary0: c.boundary0(a, c, vm)
        issue(0, SL(0), part='w')
        tabmul()
        if not c.w1late: issue(1, SL(1), part='w')
        a('v_readlane_b32 s37, v%d, 1\ns_lshr_b32 s36, s%d, %d\ns_lshr_b32 s37, s37, %d' % (vKX, c.s_kx, (nsub*1024).bit_length()-1, (nsub*1024).bit_length()-1))
        c.boundary(a, c, vm)
        issue(0, SL(0), part='x')
        if c.early_issue: c.early_issue(a, c, vm)
        a('v_readlane_b32 s%d, v%d, 1' % (c.s_kx, vKX))
        if c.pre_issue: c.pre_issue(a, c, vm, 1)
        issue(1, SL(1), part=0)
    if not (c.own0 or c.nloc):
        stamp(a, c, 0)
        vm.wait(0)
        if c.pre_b0: c.pre_b0(a, c, vm)
        stamp(a, c, 1)
        a('s_barrier')
        stamp(a, c, 2, True)
        issue(1, SL(1), part=1 if (c.boundary is None or c.w1late) else 'xb')
    if c.post_b0p: c.post_b0p(a, c, vm)
    if c.loop_init: c.loop_init(a, c)
    if c.flags:
        assert L == S - 1
        vFa, vFv, vFd = 244, 245, 246
        s_need = c.s_nh
        a('s_add_u32 s%d, s%d, %d\nv_mov_b32 v%d, s%d\nv_and_b32 v243, 3, v1\nv_add_u32 v243, %d, v243\nv_mov_b32 v%d, %d' % (sp, c.s_wave, c.SY-4, vFa, sp, c.SY, vFv, c.fbase+1))
        cnt = [0]
        def signal():
            a('v_add_u32 v%d, 1, v%d\ns_mov_b64 exec, 15\nds_write_b8 v%d, v%d\nds_read_u8 v%d, v243 offset:4\ns_mov_b64 exec, -1' % (vFv, vFv, vFa, vFv, vFd))
        def fit(t, const):
            k = t - L
            cnt[0] += 1
            lab = '%s_f%d' % (c.name, cnt[0])
            if t >= S:
                a('s_waitcnt lgkmcnt(0)\nv_cmp_gt_u32 vcc, s%d, v%d\ns_and_b32 s71, vcc_lo, 15\ns_cbranch_scc0 %s' % (s_need, vFd, lab))
                a('s_waitcnt vmcnt(%d)\nv_add_u32 v%d, 1, v%d\nds_write_b8 v%d, v%d' % (vm.count(t-1), vFd, vFv, vFa, vFd))
                a.label(lab + 's')
                a('s_sleep 1\ns_sub_u32 s70, s70, 1\ns_cbranch_scc1 %s' % lab)
                a('ds_read_u8 v%d, v243 offset:4\ns_waitcnt lgkmcnt(0)\nv_cmp_gt_u32 vcc, s%d, v%d\ns_cmp_lg_u64 vcc, 0\ns_cbranch_scc1 %ss' % (vFd, s_need, vFd, lab))
                a.label(lab)
                a('s_add_u32 s%d, s%d, 1' % (s_need, s_need))
            if const and c.bar_hook and k >= 1: c.bar_hook(a, c, vm, k)
            issue(t, SL(t) if const else None, part='fa')
            vm.wait(t-1)
            signal()
            issue(t, SL(t) if const else None, fetch_next=(t+1 < nst), part='fb')
            if const and c.iter_hook and k >= 1: c.iter_hook(a, c, vm, k)
        a('s_mov_b32 s%d, %d\ns_mov_b32 s70, 0x100000' % (s_need, c.fbase+1))
        for t in range(2, S): fit(t, True)
        if c.unroll:
            for t in range(S, nst): fit(t, True)
        else:
            a('s_mov_b32 s%d, %d\ns_mov_b32 s%d, %d' % (c.s_slot, SL(S), c.s_cnt, nst-S-1))
            a.label(c.name + '_ploop')
            fit(S, False)
            body = vm.log[-1]
            a('s_sub_u32 s%d, s%d, 1\ns_cmp_lg_u32 s%d, 0\ns_cbranch_scc1 %s_ploop' % (c.s_cnt, c.s_cnt, c.s_cnt, c.name))
            keep = a.lines
            for t in range(S+1, nst-1):
                a.lines = []; fit(t, False); assert vm.log[-1] == body
            a.lines = keep
            fit(nst-1, False)
        if c.tail_issue: c.tail_issue(a, c, vm)
        vm.wait(nst-1)
        if c.pre_last_bar: c.pre_last_bar(a, c, vm)
        a('s_waitcnt lgkmcnt(0)\ns_barrier')
        if c.ptail: c.ptail(a, c, vm)
        if lbl_after: a('s_branch %s' % lbl_after)
        return
    for st in range(2, L+1):
        if c.nloc: break
        if c.loop_extra: c.loop_extra(a, c, vm)
        if c.pre_issue: c.pre_issue(a, c, vm, st)
        issue(st, SL(st))
    a('s_mov_b32 s%d, %d' % (c.s_slot, SL(L+1 if not c.nloc else 6)))
    nsteady = nst - 2 - L - c.nown - (1 if c.nown else 0)
    def it(k, const=False):
        stamp(a, c, 0)
        vm.wait(k)
        if k == nst-1 and c.pre_last_bar: c.pre_last_bar(a, c, vm)
        if k == 1 and c.pre_b1: c.pre_b1(a, c, vm)
        if const and c.wait_hook: c.wait_hook(a, c, vm, k)
        stamp(a, c, 1)
        a('s_barrier')
        stamp(a, c, 2, True)
        if const and c.bar_hook: c.bar_hook(a, c, vm, k)
        if k + L < nst:
            if const and c.pre_issue: c.pre_issue(a, c, vm, k+L)
            issue(k+L, SL(k+L) if const else None, fetch_next=(k+L+1 < nst))
        if const and c.iter_hook: c.iter_hook(a, c, vm, k)
        if k + L == nst - 1 + c.tail_delay and c.tail_issue: c.tail_issue(a, c, vm)
    if c.unroll:
        for k in range(1, nst): it(k, True)
    else:
        k0 = 1
        if c.peel1: it(1); k0 = 2
        if c.nloc:
            k0 = 3 + c.npeel
            for k in range(3, k0): it(k, True)
            a('s_mov_b32 s%d, %d' % (c.s_slot, SL(k0+L)))
        a('s_mov_b32 s%d, %d' % (c.s_cnt, nsteady - (k0-1)))
        a.label(c.name + '_ploop')
        it(k0)
        body = vm.log[-1]
        a('s_sub_u32 s%d, s%d, 1' % (c.s_cnt, c.s_cnt))
        a('s_cmp_lg_u32 s%d, 0' % c.s_cnt)
        a('s_cbranch_scc1 %s_ploop' % c.name)
        keep = a.lines
        for k in range(k0+1, nsteady+1):
            a.lines = []; it(k); assert vm.log[-1] == body
        a.lines = keep
        for k in range(nsteady+1, nst): it(k, True)
    mark(a, c, 0)
    if c.ptail: c.ptail(a, c, vm)
    if c.stamps and c.gen_dump:
        a('s_mov_b64 exec, -1')
        mark(a, c, 8)
        a('s_waitcnt vmcnt(0)')
        mark(a, c, 9)
        dump_stamps(a, c)
    if lbl_after: a('s_branch %s' % lbl_after)

class VM:
    def __init__(self, a): self.a = a; self.ops = []; self.log = []; self.done = -1
    def issue(self, tag, n=1): self.ops += [tag]*n
    def count(self, tag):
        idx = max(i for i, t in enumerate(self.ops) if t == tag)
        return len(self.ops) - 1 - idx
    def wait(self, tag, extra=''):
        n = self.count(tag)
        idx = len(self.ops) - 1 - n
        if idx <= self.done:
            self.log.append(None)
            if extra: self.a('s_waitcnt' + extra)
            return
        assert n <= 63
        self.done = idx
        self.log.append(n)
        self.a('s_waitcnt vmcnt(%d)%s' % (n, extra))

def xproducer(a, c, lbl_after):
    BK, S = c.BK, c.S
    assert BK == 64 and S == 3
    nst = c.K // BK
    D = 2
    sp = c.s_tmp
    tabs = order_table(nst, c.G, c.order)
    pk = [sum(x << (4*i) for i, x in enumerate(o)) for o in tabs]
    s_ow, s_ox, s_kt = c.s_tab, c.s_tab+2, c.s_nh
    a('s_sub_u32 s%d, s%d, 4' % (sp, c.s_wave))
    a('s_mov_b32 s%d, 0x%x\ns_mov_b32 s%d, 0x%x' % (s_ow, pk[0] & 0xffffffff, s_ow+1, pk[0] >> 32))
    for j in range(1, c.G):
        a('s_cmp_eq_u32 s%d, %d' % (c.s_rot, j))
        a('s_cselect_b32 s%d, 0x%x, s%d\ns_cselect_b32 s%d, 0x%x, s%d' % (s_ow, pk[j] & 0xffffffff, s_ow, s_ow+1, pk[j] >> 32, s_ow+1))
    a('s_mov_b64 s[%d:%d], s[%d:%d]' % (s_ox, s_ox+1, s_ow, s_ow+1))
    v = 2
    vrow, vt, vch = v, v+1, v+2; v += 3
    vXg = v; v += 4
    vXw = v; v += 2
    vTab, vTa = v, v+1; v += 2
    a('v_lshrrev_b32 v%d, 3, v1\nv_and_b32 v%d, 7, v1' % (vrow, vch))
    a('s_lshl_b32 s%d, s%d, 2\ns_add_u32 s%d, s%d, s%d' % (sp+1, c.s_mt, sp+1, sp+1, sp))
    c.s_rb = sp+3
    a('s_mov_b32 s%d, s%d' % (c.s_rb, sp+1))
    a('s_lshl_b32 s%d, s%d, 16' % (sp+1, sp+1))
    a('v_lshlrev_b32 v%d, 11, v%d' % (vt, vrow))
    a('v_lshl_add_u32 v%d, v%d, 4, v%d' % (vt, vch, vt))
    a('v_add_u32 v%d, s%d, v%d' % (vXg, sp+1, vt))
    for i in range(1, 4): a('v_add_u32 v%d, %d, v%d' % (vXg+i, 16384*i, vXg))
    vw0, vw1 = v, v+1; v += 2
    a('v_bfe_u32 v%d, v1, 4, 1\nv_lshlrev_b32 v%d, 1, v%d\nv_xor_b32 v%d, v%d, v%d' % (vt, vt, vt, vt, vt, vch))
    a('v_mul_u32_u24 v%d, %d, v%d' % (vw1, c.ldw, vrow))
    a('s_mul_i32 s%d, s%d, %d' % (sp+1, sp, 16*c.ldw))
    a('s_add_u32 s%d, s%d, s%d' % (sp+2, sp+1, c.s_col0))
    a('v_add_u32 v%d, s%d, v%d' % (vw1, sp+2, vw1))
    a('v_lshl_add_u32 v%d, v%d, 4, v%d' % (vw0, vt, vw1))
    a('v_xor_b32 v%d, 4, v%d' % (vt, vt))
    a('v_lshl_add_u32 v%d, v%d, 4, v%d' % (vw1, vt, vw1))
    a('v_add_u32 v%d, %d, v%d' % (vw1, 8*c.ldw - 1024, vw1))
    a('s_lshl_b32 s%d, s%d, 11\ns_add_u32 s%d, s%d, %d' % (c.s_pw, sp, c.s_pw, c.s_pw, c.xbytes))
    groups = [(c.s_pw, 0, [(vw0, 0), (vw1, 1024)])]
    for q in range(1, c.nfull):
        a('v_add_u32 v%d, %d, v%d\nv_add_u32 v%d, %d, v%d' % (v, q*c.panel_stride, vw0, v+1, q*c.panel_stride, vw1))
        groups.append((c.s_pw, q*8192, [(v, 0), (v+1, 1024)])); v += 2
    if c.half:
        vh0 = v; v += 1
        a('v_lshrrev_b32 v%d, 2, v1' % vh0)
        a('v_mul_u32_u24 v%d, %d, v%d' % (vh0, c.ldw, vh0))
        a('v_lshrrev_b32 v%d, 4, v1\nv_and_b32 v%d, 2, v%d' % (vt, vt, vt))
        a('v_and_b32 v%d, 3, v1\nv_xor_b32 v%d, v%d, v%d' % (vTa, vt, vt, vTa))
        a('v_lshl_add_u32 v%d, v%d, 4, v%d' % (vh0, vt, vh0))
        a('s_add_u32 s%d, s%d, s%d' % (sp+2, sp+1, c.s_colh))
        a('v_add_u32 v%d, s%d, v%d' % (vh0, sp+2, vh0))
        a('s_lshl_b32 s%d, s%d, 10\ns_add_u32 s%d, s%d, %d' % (c.s_ph, sp, c.s_ph, c.s_ph, c.xbytes + c.nfull*8192))
        groups.append((c.s_ph, 0, [(vh0, 0)]))
    nW = sum(len(g[2]) for g in groups)
    a('v_lshrrev_b32 v%d, 4, v1\nv_xor_b32 v%d, v%d, v%d' % (vt, vt, vt, vch))
    a('v_lshlrev_b32 v%d, 4, v%d' % (vt, vt))
    a('v_lshl_add_u32 v%d, v%d, 7, v%d' % (vt, vrow, vt))
    a('s_lshl_b32 s%d, s%d, 12' % (sp+1, sp))
    a('v_add_u32 v%d, s%d, v%d\nv_xor_b32 v%d, 64, v%d' % (vXw, sp+1, vt, vXw+1, vXw))
    a('v_lshlrev_b32 v%d, 6, v%d\nv_add_u32 v%d, %d, v%d' % (vTab, vch, vTab, c.tab_base, vTab))
    v = (v + 3) // 4 * 4
    RAW = v; v += 16*4
    OUT = v; v += 16
    AS = v; v += 16
    TMP = v; v += 8
    RC = v; v += 12
    c.p_vfree = v; c.p_RC = RC; c.p_vrow = vrow; c.p_vch = vch
    vm = VM(a)
    def next_w():
        a('s_and_b32 s%d, s%d, 15' % (s_kt, s_ow))
        a('s_lshr_b64 s[%d:%d], s[%d:%d], 4' % (s_ow, s_ow+1, s_ow, s_ow+1))
        a('s_mul_i32 s%d, s%d, %d' % (c.s_kw, s_kt, BK*c.ldw))
        a('s_lshl_b32 s%d, s%d, 9' % (s_kt, s_kt))
    def nextx():
        a('s_and_b32 s%d, s%d, 15' % (c.s_kx, s_ox))
        a('s_lshr_b64 s[%d:%d], s[%d:%d], 4' % (s_ox, s_ox+1, s_ox, s_ox+1))
        a('s_lshl_b32 s%d, s%d, 7' % (c.s_kx, c.s_kx))
    def loadx1(st, q, i):
        a('buffer_load_dwordx4 v[%d:%d], v%d, s[%d:%d], s%d offen' % (RAW+16*q+4*i, RAW+16*q+4*i+3, vXg+i, c.sX, c.sX+3, c.s_kx))
        vm.issue(('x', st))
    def loadx(st, q):
        nextx()
        for i in range(4): loadx1(st, q, i)
    def dmaw_list(st, slot_const):
        out = []
        for (base, lc, ins) in groups:
            for n_, (vr, io) in enumerate(ins):
                def f(base=base, lc=lc, vr=vr, io=io, first=(n_ == 0)):
                    if first:
                        if slot_const is None:
                            a('s_add_u32 s%d, s%d, s%d' % (sp, base, c.s_slot))
                            if lc: a('s_add_u32 m0, s%d, %d' % (sp, lc))
                            else: a('s_mov_b32 m0, s%d' % sp)
                        else: a('s_add_u32 m0, s%d, %d' % (base, lc + slot_const))
                    a('buffer_load_dwordx4 v%d, s[%d:%d], s%d offen%s lds' % (vr, c.sW, c.sW+3, c.s_kw, ' offset:%d' % io if io else ''))
                    vm.issue(('w', st))
                out.append(f)
        return out
    def dmaw(st, slot_const):
        for f in dmaw_list(st, slot_const): f()
    def readas(skt):
        a('v_add_u32 v%d, s%d, v%d' % (vTa, skt, vTab))
        for e in range(4): a('ds_read_b128 v[%d:%d], v%d offset:%d' % (AS+4*e, AS+4*e+3, vTa, 16*e))
    dot = c.xf.startswith('dot')
    def xform(q, slot_off, side=(), after_unpack=None):
        side = list(side)
        def pop():
            if side: side.pop(0)()
        for i in range(4):
            r = RAW + 16*q + 4*i
            if dot:
                for e in range(4):
                    a('v_dot2_f32_bf16 v%d, v%d, v%d, v%d' % (TMP+2*e, r+e, RC+8+i, RC+2*i+1))
                    a('v_dot2_f32_bf16 v%d, v%d, v%d, v%d' % (TMP+2*e+1, r+e, RC+2*i, RC+2*i+1))
                if after_unpack: after_unpack(i)
            else:
                for e in range(4):
                    a('v_lshlrev_b32 v%d, 16, v%d\nv_and_b32 v%d, 0xffff0000, v%d' % (TMP+2*e, r+e, TMP+2*e+1, r+e))
                if after_unpack: after_unpack(i)
                if c.xf == 'pk5':
                    for e in range(4): a('v_pk_fma_f32 v[%d:%d], v[%d:%d], v[%d:%d], v[%d:%d] op_sel:[0,0,1] op_sel_hi:[1,0,1]' % (TMP+2*e, TMP+2*e+1, TMP+2*e, TMP+2*e+1, RC+2*i, RC+2*i+1, RC+2*i, RC+2*i+1))
                else:
                    for e in range(8): a('v_fma_f32 v%d, v%d, v%d, v%d' % (TMP+e, TMP+e, RC+2*i, RC+2*i+1))
            pop()
            if i == 0: a('s_waitcnt lgkmcnt(0)')
            if c.xf in ('pk5', 'dot4'):
                for e in range(4): a('v_pk_fma_f32 v[%d:%d], v[%d:%d], v[%d:%d], v[%d:%d]' % (TMP+2*e, TMP+2*e+1, TMP+2*e, TMP+2*e+1, AS+2*e, AS+2*e+1, AS+8+2*e, AS+9+2*e))
            else:
                for e in range(8): a('v_fma_f32 v%d, v%d, v%d, v%d' % (TMP+e, TMP+e, AS+e, AS+8+e))
            if i < 3: pop()
            for e in range(4): a('v_cvt_pk_bf16_f32 v%d, v%d, v%d' % (OUT+4*i+e, TMP+2*e, TMP+2*e+1))
            a('ds_write_b128 v%d, v[%d:%d] offset:%d' % (vXw + i % 2, OUT+4*i, OUT+4*i+3, slot_off + i*1024))
        while side: pop()
    s_kt0, s_kt1 = c.s_px, c.s_cnt
    a('s_waitcnt lgkmcnt(0)')
    c.srd_hook(a)
    loadx(0, 2)
    next_w(); a('s_mov_b32 s%d, s%d' % (s_kt0, s_kt))
    dmaw(0, 0)
    c.pstats_issue(a, c, vm)
    loadx(1, 3); loadx(2, 0)
    next_w(); a('s_mov_b32 s%d, s%d' % (s_kt1, s_kt))
    dmaw(1, c.slot)
    loadx(3, 1)
    c.pstats_finish(a, c, vm)
    if dot:
        for i in range(4): a('v_cvt_pk_bf16_f32 v%d, v%d, v%d' % (RC+2*i, RC+2*i, RC+2*i))
        for i in range(4): a('v_and_b32 v%d, 0xffff, v%d\nv_and_b32 v%d, 0xffff0000, v%d' % (RC+8+i, RC+2*i, RC+2*i, RC+2*i))
    for i in range(4): a('v_mul_f32 v%d, -v%d, v%d' % (RC+2*i+1, RC+2*i+1, RC+2*i))
    if c.pprio: a('s_setprio %d' % c.pprio)
    if c.stamps: a('s_mov_b32 s72, 0')
    stamp(a, c, 0)
    a('s_barrier')
    stamp(a, c, 3)
    readas(s_kt0)
    vm.wait(('x', 0))
    xform(2, 0)
    a('s_waitcnt lgkmcnt(0)')
    vm.wait(('w', 0))
    stamp(a, c, 1)
    a('s_barrier')
    stamp(a, c, 2, True)
    readas(s_kt1)
    vm.wait(('x', 1))
    assert c.slot + 4096 <= 65536
    xform(3, c.slot)
    a('s_mov_b32 s%d, %d' % (c.s_slot, 2*c.slot))
    a('v_add_u32 v%d, %d, v%d\nv_add_u32 v%d, %d, v%d' % (vXw, 2*c.slot, vXw, vXw+1, 2*c.slot, vXw+1))
    a('s_mov_b32 s%d, %d' % (sp+1, c.slot))
    def iteration(k, first=False):
        if k + 2 < nst:
            next_w()
            readas(s_kt)
            dl = dmaw_list(k+2, None)
            dl.pop(0)()
            more = k + 2 + D < nst
            if more:
                nextx()
                if c.loop_extra: dl.append(lambda: c.loop_extra(a, c, vm))
            vm.wait(('x', k+2))
            stamp(a, c, 0)
            xform(k % 2, 0, dl, (lambda i: loadx1(k+2+D, k % 2, i)) if more else None)
            stamp(a, c, 3)
            if k + 3 == nst: c.tail_issue(a, c, vm)
            a('s_add_u32 s%d, s%d, s%d' % (c.s_slot, c.s_slot, sp+1))
            a('s_cmp_ge_u32 s%d, %d' % (c.s_slot, c.slot*S))
            a('s_cselect_b32 s%d, 0, s%d' % (c.s_slot, c.s_slot))
            a('s_cselect_b32 s%d, %d, s%d' % (sp, -2*c.slot, sp+1))
            a('v_add_u32 v%d, s%d, v%d\nv_add_u32 v%d, s%d, v%d' % (vXw, sp, vXw, vXw+1, sp, vXw+1))
        vm.wait(('w', k+1), ' lgkmcnt(0)')
        stamp(a, c, 1)
        a('s_barrier')
        stamp(a, c, 2, True)
    nsteady = nst - 2 - D
    assert nsteady % 2 == 0
    if c.loop_init: c.loop_init(a, c)
    a('s_waitcnt lgkmcnt(0)')
    iteration(0); iteration(1)
    a('s_mov_b32 s%d, %d' % (c.s_cnt, nsteady // 2 - 1))
    a.label(c.name + '_ploop')
    n0 = len(vm.log)
    iteration(2); iteration(3)
    body = vm.log[n0:]
    a('s_sub_u32 s%d, s%d, 1' % (c.s_cnt, c.s_cnt))
    a('s_cmp_lg_u32 s%d, 0' % c.s_cnt)
    a('s_cbranch_scc1 %s_ploop' % c.name)
    keep = a.lines;
    for k in range(4, nsteady, 2):
        a.lines = []; n0 = len(vm.log)
        iteration(k); iteration(k+1)
        assert vm.log[n0:] == body, (vm.log[n0:], body)
    a.lines = keep
    for k in range(nsteady, nst-1): iteration(k)
    if c.stamps: dump_stamps(a, c)
    c.ptail(a, c, vm)
    a('s_branch %s' % lbl_after)

def table(a, c):
    a.lines.append('.p2align 6')
    a.label(c.name + '_tab')
    for o in c.tabs:
        a.lines.append('.byte ' + ','.join(str(x) for x in (o + [0]*64)[:16 if c.own0 else 32 if c.nloc else 64]))
    if c.own0 or c.nloc: a.lines.append('.fill 64, 1, 0')
    a.lines.append('.p2align 2')

def consumer(a, c):
    BK, S = c.BK, c.S
    nsub = BK // 32
    nst = c.K // BK
    r4 = c.rows4
    TMb = c.BM // (4 if r4 else 2) // 16
    sp = c.s_tmp
    ks = c.ksplit
    va = c.v_addr
    vX, vX2, vW0, vW1, vW2, vW3, vX3, vX4 = [va+i for i in range(8)]
    t0, t1 = c.v_tmp, c.v_tmp+1
    nat = c.xform
    natw = c.xform or c.natw
    rotx = c.half or ks
    a('s_lshr_b32 s%d, s%d, 1' % (c.s_rh, c.s_wave))
    a('s_and_b32 s%d, s%d, 1' % (c.s_nh, c.s_wave))
    a('s_mul_i32 s%d, s%d, %d' % (sp, c.s_wave if r4 else c.s_rh, TMb*nsub*1024))
    if ks:
        a('s_lshl_b32 s%d, s%d, 10\ns_add_u32 s%d, s%d, s%d' % (sp+1, c.s_nh, sp, sp, sp+1))
    if nat:
        a('v_bfe_u32 v%d, v1, 1, 3\nv_lshrrev_b32 v%d, 4, v1\nv_xor_b32 v%d, v%d, v%d' % (t0, t1, t0, t0, t1))
        a('v_and_b32 v%d, 15, v1\nv_lshlrev_b32 v%d, 7, v%d' % (t1, t1, t1))
        a('v_lshl_add_u32 v%d, v%d, 4, v%d\nv_add_u32 v%d, s%d, v%d' % (vX, t0, t1, vX, sp, vX))
    else:
        a('v_lshl_add_u32 v%d, v1, 4, s%d' % (vX, sp))
    addr = [vX, vW0, vW1]
    if rotx:
        a('s_mul_i32 s%d, s%d, %d' % (sp, c.s_nh, 2*nsub*1024))
        a('v_subrev_u32 v%d, s%d, v%d' % (vX2, sp, vX))
        a('v_add_u32 v%d, s%d, v%d' % (vX, sp, vX))
        addr.append(vX2)
    if nat:
        a('v_xor_b32 v%d, 64, v%d' % (vX3, vX)); addr.append(vX3)
        if rotx: a('v_xor_b32 v%d, 64, v%d' % (vX4, vX2)); addr.append(vX4)
    if natw:
        a('v_bfe_u32 v%d, v1, 2, 2\nv_lshrrev_b32 v%d, 4, v1\nv_lshl_add_u32 v%d, v%d, 3, v%d' % (t0, t1, t0, t1, t0))
    else:
        a('v_lshrrev_b32 v%d, 2, v1' % t0)
    a('v_bfe_u32 v%d, v1, 3, 2' % t1)
    if ks or r4: a('v_lshlrev_b32 v%d, 5, v%d' % (vW0, t1))
    else:
        a('s_lshl_b32 s%d, s%d, 1' % (sp, c.s_nh))
        a('v_xor_b32 v%d, s%d, v%d' % (vW0, sp, t1))
        a('v_lshlrev_b32 v%d, 5, v%d' % (vW0, vW0))
    a('v_lshl_add_u32 v%d, v%d, 7, v%d' % (vW0, t0, vW0))
    a('v_and_b32 v%d, 3, v1' % t1)
    a('v_lshlrev_b32 v%d, 3, v%d' % (t1, t1))
    if ks:
        a('s_lshl_b32 s%d, s%d, 12\ns_add_u32 s%d, s%d, %d' % (sp, c.s_nh, sp, sp, c.xbytes))
        a('v_add3_u32 v%d, v%d, v%d, s%d' % (vW0, vW0, t1, sp))
    else:
        a('v_add_u32 v%d, %d, v%d' % (t1, c.xbytes, t1))
        a('v_add_u32 v%d, v%d, v%d' % (vW0, vW0, t1))
    a('v_xor_b32 v%d, 32, v%d' % (vW1, vW0))
    if ks or r4:
        a('v_xor_b32 v%d, 64, v%d' % (vW2, vW0))
        a('v_xor_b32 v%d, 96, v%d' % (vW3, vW0))
        addr += [vW2, vW3]
    if c.half:
        a('v_bfe_u32 v%d, v1, 4, 1' % vW2)
        a('v_lshlrev_b32 v%d, 5, v%d' % (vW2, vW2))
        a('v_lshl_add_u32 v%d, v%d, 6, v%d' % (vW2, t0, vW2))
        a('v_add_u32 v%d, v%d, v%d' % (vW2, vW2, t1))
        a('v_add_u32 v%d, %d, v%d' % (vW2, c.nfull*BK*128, vW2))
        a('v_xor_b32 v%d, 32, v%d' % (vW3, vW2))
        addr += [vW2, vW3]
    assert c.xbytes % 128 == 0 and c.slot % 128 == 0
    sm = 2 if ks else 1
    def xrd(j, sub):
        hi = rotx and j >= 2
        if nat: return ((vX4 if hi else vX3) if sub % 2 else (vX2 if hi else vX)), j*2048
        return (vX2 if hi else vX), (j*nsub+sub)*1024
    tf = 512 if natw else 2048
    if ks or r4:
        wfr = [(vW0+u, 0, 4096, tf) for u in range(4)]
        mf = [(j, i) for i in range(TMb) for j in range(4)]
    else:
        wfr = [(vW0 + j % 2, (j//2)*BK*128, 4096, tf) for j in range(2*c.nfull)]
        mf = [(j, i) for j in range(len(wfr)) for i in range(TMb)]
    if c.half:
        wfr += [(vW2, 0, 2048, tf//2), (vW3, 0, 2048, tf//2)]
        mf += [(2*c.nfull + u, i) for u in range(2) for i in range(2)]
    nWf = len(wfr)
    nacc = len(mf) * 4
    KS = c.KS
    fs1 = (TMb + nWf) * 4
    fsz = fs1 * KS
    c.v_acc = c.v_frag + 2*fsz
    c.v_free = c.v_acc + nacc
    if c.pre_hook: c.pre_hook(a, c)
    if c.acc_init: c.acc_init(a, c)
    elif not c.first_c:
        for i in range(nacc): a('v_mov_b32 v%d, 0' % (c.v_acc+i))
    def xreg(s, q, j): return c.v_frag + s*fsz + q*fs1 + j*4
    def wreg(s, q, j): return c.v_frag + s*fsz + q*fs1 + TMb*4 + j*4
    def reads(s, step, own=False):
        r = []
        for q in range(KS):
            sub = (step*KS + q)*sm
            xs = ['ds_read_b128 v[%d:%d], v%d offset:%d' % ((xreg(s,q,j), xreg(s,q,j)+3) + xrd(j, sub)) for j in range(TMb)]
            ws = []
            for j, (v, base, ss, ts) in enumerate(wfr[:2] if own else wfr):
                for t in range(2):
                    w = wreg(s,q,j) + 2*t
                    ws.append('ds_read_b64_tr_b16 v[%d:%d], v%d offset:%d' % (w, w+1, v, base + sub*ss + t*ts))
            r += (xs[:1] + ws + xs[1:]) if (ks or r4) else (ws[:2] + xs + ws[2:])
        if c.no_lds: r = []
        return r
    def mfmas(s, first=False, own=False):
        r = []
        for q in range(KS):
            for k, (j, i) in enumerate(mf):
                if own and j >= 2: continue
                t = c.v_acc + k*4
                A_, B_ = wreg(s,q,j), xreg(s,q,i)
                if j in c.swap_frags: A_, B_ = B_, A_
                C_ = 'v[%d:%d]' % (t, t+3)
                if first and q == 0: C_ = c.first_c(c, j)
                r.append('v_mfma_f32_16x16x32_bf16 v[%d:%d], v[%d:%d], v[%d:%d], %s' % (t, t+3, A_, A_+3, B_, B_+3, C_))
        if c.no_mfma: r = r[:1]
        return r
    def interleave(ms, rs, extra=()):
        out = []
        rpm = c.rpm if len(ms) > 8 else max(c.rpm, c.rpm_own)
        k = 0; ex = list(extra)
        for i, m in enumerate(ms):
            out.append(m)
            if k < len(rs):
                for _ in range(rpm):
                    if k < len(rs): out.append(rs[k]); k += 1
            elif ex:
                out.append(ex.pop(0))
                if ex and ex[0].startswith('s_'): out.append(ex.pop(0))
        out += rs[k:] + ex
        return out
    def advance():
        return ['s_add_u32 s%d, s%d, 1' % (c.s_slot, c.s_slot),
             's_cmp_eq_u32 s%d, %d' % (c.s_slot, S),
             's_cselect_b32 s%d, 0, s%d' % (c.s_slot, c.s_slot),
             's_cselect_b32 s%d, %d, s%d' % (sp, -(S-1)*c.slot, sp+1)] + ['v_add_u32 v%d, s%d, v%d' % (v, sp, v) for v in addr]
    nstep = nsub // KS // sm
    spb = 1 if nstep % 2 == 0 else 2
    a('s_mov_b32 s%d, %d' % (c.s_slot, c.slot0))
    if c.slot0:
        for v in addr: a('v_add_u32 v%d, %d, v%d' % (v, c.slot0*c.slot, v))
    a('s_mov_b32 s%d, %d' % (sp+1, c.slot))
    if c.pre_hook2: c.pre_hook2(a, c)
    if c.stamps: a('s_mov_b32 s72, 0')
    stamp(a, c, 1)
    a('s_barrier')
    stamp(a, c, 2, True)
    if c.post_b0: c.post_b0(a, c)
    vRa, vR = c.v_flag, c.v_flag+1
    s_need, s_one = c.s_px, c.s_pw
    frd = ['ds_read_u8 v%d, v%d' % (vR, vRa)] if c.flags else []
    if c.flags:
        a('v_and_b32 v%d, 3, v1\nv_add_u32 v%d, %d, v%d\ns_mov_b32 s%d, %d\ns_mov_b32 s70, 0x100000\ns_lshl_b64 s[68:69], 1, s%d' % (vRa, vRa, c.SY, vRa, s_need, c.fbase+2, c.s_wave))
        a('s_add_u32 s71, s%d, %d\nv_mov_b32 v%d, s71' % (c.s_wave, c.SY+4, vR+1))
    for r in reads(0, 0) + (frd if nstep == 1 else []): a(r)
    if c.post_b0b: c.post_b0b(a, c, len(reads(0, 0)))
    if nstep == 1:
        for l in advance(): a(l)
    par = [0]
    fc = [0]
    def stage(last, first=False, hook=False, realbar=False, own=False, nown=False, pre_bar=None, post_bar=None, xtra=lambda st: []):
        for step in range(nstep):
            s = par[0]; par[0] ^= 1
            a('s_waitcnt lgkmcnt(0)')
            if hook: c.step_hook(a, c, step, lambda j: wreg(s, 0, j), xreg(1-s, 0, 0))
            if step < nstep-1:
                ex = advance() if (step == nstep-2 and not last) else []
                if first and step == 0 and c.first_extra: ex = ex + c.first_extra(c)
                ex = xtra(step) + ex
                for l in interleave(mfmas(s, first and step == 0, own), reads(1-s, step+1, own) + (frd if step == nstep-2 and not last and not realbar else []), ex): a(l)
            elif not last:
                ms = mfmas(s, first and step == 0, own)
                nb = c.mfma_before_bar
                if first and c.own0:
                    a('s_waitcnt vmcnt(0)\ns_barrier')
                    for m in ms: a(m)
                    a('s_barrier\ns_barrier')
                    ms = []; nb = 0
                elif c.flags and not realbar:
                    fc[0] += 1
                    lab = '%s_c%d' % (c.name, fc[0])
                    a(ms[0])
                    a('v_cmp_gt_u32 vcc, s%d, v%d' % (s_need, vR))
                    a('s_sub_u32 s%d, s%d, 1' % (sp+2, s_need))
                    a(ms[1])
                    if c.noexec: a('v_mov_b32 v%d, s%d\nds_write_b8 v%d, v%d' % (vR, sp+2, vR+1, vR))
                    else: a('v_mov_b32 v%d, s%d\ns_mov_b64 exec, s[68:69]\nds_write_b8 v%d, v%d offset:4\ns_mov_b64 exec, -1' % (vR, sp+2, vRa, vR))
                    a('s_cmp_lg_u64 vcc, 0\ns_cbranch_scc1 %ss' % lab)
                    a.label(lab)
                    a('s_add_u32 s%d, s%d, 1' % (s_need, s_need))
                    o = c.outline
                    o.label(lab + 's')
                    o('s_sub_u32 s70, s70, 1\ns_cbranch_scc1 %s' % lab)
                    o('s_waitcnt lgkmcnt(0)\nds_read_u8 v%d, v%d\ns_waitcnt lgkmcnt(0)\nv_cmp_gt_u32 vcc, s%d, v%d\ns_cmp_lg_u64 vcc, 0\ns_cbranch_scc1 %ss\ns_branch %s' % (vR, vRa, s_need, vR, lab, lab))
                    nb = 2
                else:
                    for m in ms[:nb]: a(m)
                    if pre_bar: pre_bar(a, c)
                    stamp(a, c, 1)
                    a('s_barrier')
                    stamp(a, c, 2, True)
                    if post_bar: post_bar(a, c)
                for l in interleave(ms[nb:], reads(1-s, 0, nown) + (c.post_b1(c) if (first and c.post_b1) else []) + (frd if nstep == 1 else []), xtra(step) + (advance() if nstep == 1 else [])): a(l)
            else:
                for l in interleave(mfmas(s, False, own), c.last_reads(c) if c.last_reads else [], xtra(step)): a(l)
    npre = 0
    if c.first_c:
        drain = lambda a, c: a('s_waitcnt vmcnt(0)')
        stage(False, True, pre_bar=drain if ((c.nloc and c.sig_at == 1) or c.drain1) else None); npre = 1
        if c.after_first: c.after_first(a, c)
    if c.nloc:
        if c.sig_at == 2: stage(False, pre_bar=drain); npre += 1
    if c.step_hook:
        a('s_mov_b32 s%d, %d' % (c.s_cnt, c.hook_stages))
        a.label(c.name + '_hloop')
        stage(False, hook=True)
        a('s_sub_u32 s%d, s%d, 1' % (c.s_cnt, c.s_cnt))
        a('s_cmp_lg_u32 s%d, 0' % c.s_cnt)
        a('s_cbranch_scc1 %s_hloop' % c.name)
        npre += c.hook_stages
    spb *= c.cunroll
    npost = c.nown + 1 if c.nown else 1
    nloop = (nst - npost - npre - (1 if (c.late_hook or c.flags) else 0)) // spb
    rem = (nst - npost - npre) - nloop*spb
    a('s_mov_b32 s%d, %d' % (c.s_cnt, nloop))
    a('.p2align 3')
    a.label(c.name + '_cloop')
    for _ in range(spb): stage(False)
    a('s_sub_u32 s%d, s%d, 1' % (c.s_cnt, c.s_cnt))
    a('s_cmp_lg_u32 s%d, 0' % c.s_cnt)
    a('s_cbranch_scc1 %s_cloop' % c.name)
    for r_ in range(rem):
        if c.late_hook and r_ == rem-1: c.late_hook(a, c)
        stage(False, realbar=(r_ == rem-1))
    if c.nown:
        stage(False, nown=True)
        for q in range(c.nown):
            c.own_hook(a, c, q, 0)
            stage(q == c.nown-1, own=True, nown=True, pre_bar=lambda a, c: c.own_hook(a, c, q, 1), post_bar=lambda a, c: c.own_hook(a, c, q, 2), xtra=lambda st: c.own_extra(c, q, st))
    else: stage(True)
    if c.stamps and c.gen_dump:
        stamp(a, c, 1)
        mark(a, c, 0)
    if ks:
        EB = c.slot * (nst % S)
        if c.slot < 32768:
            EB = c.slot * S; c.lds = EB + 32768
        assert c.lds <= 163840
        a('s_lshl_b32 s%d, s%d, 13\ns_add_u32 s%d, s%d, %d' % (sp, c.s_wave, sp, sp, EB))
        a('v_lshl_add_u32 v%d, v1, 4, s%d' % (t0, sp))
        a('s_xor_b32 s%d, s%d, 1\ns_lshl_b32 s%d, s%d, 13\ns_add_u32 s%d, s%d, %d' % (sp, c.s_wave, sp, sp, sp, sp, EB))
        a('v_lshl_add_u32 v%d, v1, 4, s%d' % (t1, sp))
        for k in range(8): a('ds_write_b128 v%d, v[%d:%d] offset:%d' % (t0, c.v_acc+32+4*k, c.v_acc+35+4*k, 1024*k))
        if c.xch_pre: c.xch_pre(a, c)
        a('s_waitcnt lgkmcnt(0)')
        mark(a, c, 1)
        a('s_barrier')
        mark(a, c, 2)
        for k in range(8): a('ds_read_b128 v[%d:%d], v%d offset:%d' % (c.v_acc+32+4*k, c.v_acc+35+4*k, t1, 1024*k))
        n0 = len(a.lines)
        if c.xch_post: c.xch_post(a, c)
        npost = len(a.lines) - n0
        for k in range(8):
            a('s_waitcnt lgkmcnt(%d)' % min(15, 7-k+npost))
            for r in (0, 2): a('v_pk_add_f32 v[%d:%d], v[%d:%d], v[%d:%d]' % (c.v_acc+4*k+r, c.v_acc+4*k+r+1, c.v_acc+4*k+r, c.v_acc+4*k+r+1, c.v_acc+32+4*k+r, c.v_acc+33+4*k+r))
        nacc = 32
    c.TMb, c.nWf, c.nacc = TMb, nWf, nacc

def config(name, K, BM, nfull, half, BK, S, ldw, panel_stride, **kw):
    c = G()
    c.name, c.K, c.BM, c.nfull, c.half, c.BK, c.S, c.ldw, c.panel_stride = name, K, BM, nfull, half, BK, S, ldw, panel_stride
    c.xbytes = BM * BK * 2
    c.slot = c.xbytes + nfull * BK * 128 + (BK * 64 if half else 0)
    c.lds = c.slot * S
    c.sX, c.sW = 8, 12
    c.s_mt, c.s_nt, c.s_wave, c.s_col0, c.s_colh = 40, 41, 42, 43, 44
    c.s_kx, c.s_kw, c.s_slot, c.s_px, c.s_pw, c.s_ph, c.s_cnt, c.s_rh, c.s_nh = 45, 46, 47, 48, 49, 50, 51, 52, 53
    c.s_tmp = 54
    c.v_addr = 4; c.v_tmp = 2; c.v_frag = 12; c.ksplit = False; c.xform = False; c.xf = 'dot4'; c.pprio = 0; c.pre_hook2 = None
    c.noexec = False; c.fsplit = 2; c.flags = False; c.fbase = 0; c.SY = 147392; c.v_flag = 252; c.outline = None; c.w1late = False; c.cunroll = 1; c.after_first = None; c.mirror = None; c.drain1 = False; c.sig_at = 1; c.npeel = 0; c.pre_issue = None; c.nloc = 0; c.tabsel = None; c.st0 = None; c.own0 = None; c.rpm_own = 1; c.nown = 0; c.own_hook = None; c.tabs_override = None; c.mirror_off = None; c.wait_hook = None; c.bar_hook = None; c.post_b0p = None; c.step_hook = None; c.pre_b0 = None; c.xKG = None; c.panel_sreg = None; c.boundary0 = None; c.xflags = ''; c.peel1 = False; c.vm_init = []; c.pre_b1 = None; c.post_b1 = None; c.slot0 = 0; c.boundary = None; c.first_c = None; c.post_b0 = None; c.post_b0b = None; c.first_extra = None; c.rows4 = False; c.last_reads = None; c.pre_last_bar = None; c.xch_pre = None; c.xch_post = None; c.unroll = False; c.iter_hook = None; c.acc_init = None; c.natw = False; c.early_issue = None; c.tail_issue = None; c.ptail = None; c.tail_delay = 0; c.loop_extra = None; c.loop_init = None; c.late_hook = None; c.psplit = 1; c.stamps = False; c.gen_dump = False; c.dma_flags = ''; c.KS = 1; c.rpm = 1; c.mfma_before_bar = 0; c.G = 4; c.order = 'lead'; c.lead = S-1; c.s_rot = 39; c.s_tab = 66; c.tab_base = c.lds; c.srd_hook = None; c.swap_frags = (); c.pre_hook = None
    c.no_dma = c.no_lds = c.no_mfma = False
    for k, v in kw.items(): setattr(c, k, v)
    return c
```

```python
import sys
from asmgen import Asm
import gemm, gen
from gen import *
FL = 0x80000
FL8 = 8
MS = 7
ROW = 256 << MS
XB = PHIQ
FL7 = 7 * ROW
opt.plan = 'lqowab'

UT = 0xE8000
OUT = Asm()
def rt(a, i):
    if not opt.ts: return
    r = 11 if getattr(a, 'cons', False) else 255
    a('s_memrealtime s[98:99]\ns_memtime s[100:101]\ns_waitcnt lgkmcnt(0)\nv_writelane_b32 v%d, s98, %d\nv_writelane_b32 v%d, s100, %d' % (r, i, r, 32+i))

def tile_head(a, c, xm, xn, colmul, ptrs):
    for s, o in ptrs: a('s_load_dwordx2 s[%d:%d], s[0:1], %d' % (s, s+1, o))
    c.dma_flags = opt.wflags
    c.flags = c.name in opt.flags; c.outline = OUT; c.noexec = opt.noexec; c.fsplit = opt.fsplit if c.name != 'wo' else 1
    c.fbase = {'qkv': 0, 'wo': 16, 'w1': 32, 'w2': 48}[c.name]
    c.w1late = c.name in opt.w1late
    c.cunroll = opt.cunroll; c.mfma_before_bar = opt.mbb
    if opt.stamp == c.name: c.stamps = True; c.gen_dump = True
    bm = 16 // xm
    a('s_and_b32 s36, s2, 7\ns_lshr_b32 s37, s2, 3')
    a('s_and_b32 s38, s36, %d\ns_lshr_b32 s36, s36, %d' % (bm-1, bm.bit_length()-1))
    a('s_and_b32 s39, s37, %d\ns_lshr_b32 s37, s37, %d' % (xm-1, xm.bit_length()-1))
    a('s_mul_i32 s38, s38, %d\ns_add_u32 s%d, s38, s39' % (xm, c.s_mt))
    a('s_mul_i32 s36, s36, %d\ns_add_u32 s%d, s36, s37' % (xn, c.s_nt))
    a('s_add_u32 s39, s39, s37\ns_and_b32 s%d, s39, %d' % (c.s_rot, c.G-1))
    a('s_mul_i32 s%d, s%d, %d' % (c.s_col0, c.s_nt, colmul))
    if c.half:
        a('s_and_b32 s36, s%d, 1\ns_cmp_eq_u32 s36, 0' % c.s_nt)
        a('s_cselect_b32 s36, 384, 0\ns_cselect_b32 s37, 0, 64')
        a('s_add_u32 s%d, s%d, s36\ns_add_u32 s%d, s%d, s37' % (c.s_colh, c.s_col0, c.s_col0, c.s_col0))

NW = FL + 0
MPT = 0xF0000
def uhead(a, c, ptrs):
    tile_head(a, c, 8, 4, 0, ptrs)
    a('s_mov_b32 s38, s%d\ns_and_b32 s36, s38, 7\ns_lshl_b32 s36, s36, 1\ns_lshr_b32 s37, s38, 3\ns_add_u32 s%d, s36, s37\ns_lshl_b32 s%d, s%d, 7' % (c.s_nt, c.s_nt, c.s_col0, c.s_nt))

def nonce(a):
    a('s_load_dword s3, s[6:7], %d' % NW)
def nonce2(a):
    a('s_mul_i32 s3, s3, 0x9e3779b1\ns_add_u32 s3, s3, 0x7f4a7c15')

def psync(a, tag, sig, s_sig, s_mem, s_wait, n=16, part=None, mask=None, allw=False):
    if part in (None, 0):
        srd(a, 84, 6, FL, 10*ROW)
        gs = MS if s_mem is None else MS + 4
        a('s_lshl_b32 s88, s%d, %d\ns_add_u32 s88, s88, %d\ns_lshl_b32 s89, s%d, %d\ns_add_u32 s89, s89, %d' % (s_sig, gs, sig*ROW, s_wait, gs, sig*ROW))
        if s_mem is not None: a('s_lshl_b32 s90, s%d, %d\ns_add_u32 s88, s88, s90' % (s_mem, MS))
        a('v_lshlrev_b32 v252, %d, v1' % MS)
        a('v_mov_b32 v253, s3\ns_mov_b32 s90, 200000')
        a('s_barrier')
        rt(a, 2*sig if sig < 8 else 18)
        a('s_cmp_lg_u32 s42, 4\ns_cbranch_scc1 %s_s5' % tag)
        a('s_mov_b64 exec, 1')
        a('buffer_store_dword v253, v252, s[84:87], s88 offen sc1')
        a('s_mov_b64 exec, -1')
        a.label(tag + '_s5')
    if part == 0: return
    if not allw: a('s_cmp_lg_u32 s42, 5\ns_cbranch_scc1 %s_sx' % tag)
    if mask is None: a('s_mov_b64 exec, 0x%x' % ((1 << n) - 1))
    else:
        mask(a)
        a('s_mov_b32 exec_lo, s91\ns_mov_b32 exec_hi, 0')
    a('buffer_load_dword v253, v252, s[84:87], s89 offen sc1')
    a.label(tag + '_sp')
    a('buffer_load_dword v254, v252, s[84:87], s89 offen sc1')
    a('s_sub_u32 s90, s90, 1\ns_waitcnt vmcnt(1)\nv_cmp_ne_u32 vcc, s3, v253')
    a('s_cmp_eq_u64 vcc, 0\ns_cbranch_scc1 %s_sy' % tag)
    a('buffer_load_dword v253, v252, s[84:87], s89 offen sc1')
    a('s_waitcnt vmcnt(1)\nv_cmp_ne_u32 vcc, s3, v254')
    a('s_cmp_eq_u64 vcc, 0\ns_cbranch_scc1 %s_sy' % tag)
    a('s_cmp_lg_u32 s90, 0\ns_cbranch_scc1 %s_sp' % tag)
    a.label(tag + '_sy')
    a('s_mov_b64 exec, -1')
    if part != 2: rt(a, 2*sig+1 if sig < 8 else 19)
    a.label(tag + '_sx')
    if part != 2: a('s_barrier')

def early_sync(c, tag, sig, first, full=None):
    if not opt.esync: first = full
    def b1(a): psync(a, tag, sig, None, None, None, part=1, mask=first)
    if opt.esync: c.pre_b0 = lambda a, c, vm: psync(a, tag + 'z', sig, None, None, None, part=2, mask=full)
    return b1

def need(a, tag, t, mask):
    if mask: mask(a)
    else: a('s_mov_b32 s60, 0xffff')
    a.label('%s_p%d' % (tag, t))
    a('s_andn2_b32 s61, s60, s91\ns_cbranch_scc0 %s_y%d\ns_sub_u32 s90, s90, 1\ns_cbranch_scc1 %s_y%d' % (tag, t, tag, t))
    a('s_mov_b64 exec, 0xffff\nbuffer_load_dword v253, v252, s[84:87], s89 offen sc1\ns_waitcnt vmcnt(0)\nv_cmp_eq_u32 vcc, s3, v253\ns_mov_b64 exec, -1\ns_mov_b32 s91, vcc_lo\ns_branch %s_p%d' % (tag, t))
    a.label('%s_y%d' % (tag, t))
def prog_sync(a, c, tag, sig, n, mask):
    c.pre_issue = lambda a, c, vm, t: need(a, tag, t, mask if t < n-1 else None) if t < n else None
    a('s_mov_b32 s91, 0')
    c.pre_issue(a, c, None, 0)
    rt(a, 2*sig+1)

def chain(*fs):
    fs = [f for f in fs if f]
    def g(*x):
        for f in fs: f(*x)
    return g
BAR = lambda a, c: a('s_barrier')

def ln1_body(a, c, TB):
    SS = TB + 8192
    a('s_lshl_b32 s20, s%d, 3\ns_lshr_b32 s21, s%d, 1\ns_add_u32 s20, s20, s21\ns_and_b32 s21, s%d, 1' % (c.s_mt, c.s_nt, c.s_nt))
    a('v_lshrrev_b32 v2, 6, v0\nv_and_b32 v3, 15, v0\nv_bfe_u32 v4, v0, 4, 2')
    a('v_lshlrev_b32 v5, 11, v3\nv_lshl_add_u32 v5, v2, 8, v5\nv_lshl_add_u32 v5, v4, 4, v5')
    a('s_lshl_b32 s22, s20, 15\ns_lshl_b32 s23, s21, 10\ns_add_u32 s23, s23, s22\ns_xor_b32 s25, s23, 1024')
    a('s_waitcnt lgkmcnt(0)')
    nonce(a)
    srd(a, 8, 34, 0, 0x400000)
    a('s_barrier')
    D = 32; M = 144
    for u in range(4): a('buffer_load_dwordx4 v[%d:%d], v5, s[8:11], s23 offen offset:%d%s' % (D+4*u, D+4*u+3, 64*u, opt.xflags))
    for u in range(4): a('buffer_load_dwordx4 v[%d:%d], v5, s[8:11], s25 offen offset:%d%s' % (M+4*u, M+4*u+3, 64*u, opt.xflags))
    srd(a, 12, 6, MPT, 65536); srd(a, 28, 6, *(HF + 32768, 2048*7168 - 32768) if opt.reuse else (H1F, 0x400000))
    a('v_lshlrev_b32 v7, 4, v0\ns_lshl_b32 s24, s21, 12\nv_mov_b32 v12, 0x3f803f80')
    a('v_lshlrev_b32 v6, 5, v3\nv_add_u32 v6, %d, v6\nv_lshl_add_u32 v10, v2, 3, v6' % SS)
    for q in range(8):
        a('s_waitcnt vmcnt(%d)' % (7-q))
        for e in range(4):
            r = (D if q < 4 else M) + 4*(q % 4) + e
            a('v_dot2_f32_bf16 v%d, v%d, v12, %s' % (16+e, r, '0' if q == 0 else 'v%d' % (16+e)))
            a('v_dot2_f32_bf16 v%d, v%d, v%d, %s' % (20+e, r, r, '0' if q == 0 else 'v%d' % (20+e)))
    a('v_add_f32 v16, v16, v17\nv_add_f32 v18, v18, v19\nv_add_f32 v20, v20, v21\nv_add_f32 v22, v22, v23\nv_add_f32 v16, v16, v18\nv_add_f32 v17, v20, v22')
    xg_sum(a, [16, 17], [18, 19])
    a('ds_write_b64 v10, v[16:17]')
    def mloads():
        for p in range(4):
            for w, ch in enumerate((1, 0)):
                a('s_add_u32 s26, s24, %d' % (p*16384 + ch*8192))
                a('buffer_load_dwordx4 v[%d:%d], v7, s[12:15], s26 offen sc1' % (M+8*p+4*w, M+8*p+4*w+3))
    if opt.earlym: mloads()
    X = 48
    for i in range(16): unpack(a, X+2*i, X+2*i+1, D+i)
    a('s_waitcnt lgkmcnt(0)')
    nonce2(a)
    rt(a, 20)
    a('s_mov_b32 s27, 200000\ns_barrier')
    rt(a, 21)
    a('ds_read_b128 v[16:19], v6\nds_read_b128 v[20:23], v6 offset:16')
    if opt.earlym: a('s_branch ln1_chk')
    a.label('ln1_poll')
    mloads()
    a.label('ln1_chk')
    a('s_sub_u32 s27, s27, 1\ns_waitcnt vmcnt(0)')
    tg = [M+2*i+1 for i in range(16)]
    for op, d in (('v_min3_u32', 24), ('v_max3_u32', 25)):
        a('%s v%d, v%d, v%d, v%d' % (op, d, tg[0], tg[1], tg[2]))
        for i in range(3, 15, 2): a('%s v%d, v%d, v%d, v%d' % (op, d, d, tg[i], tg[i+1]))
        a('%s v%d, v%d, v%d, v%d' % (op, d, d, tg[15], tg[15]))
    a('v_xor_b32 v24, s3, v24\nv_xor_b32 v25, s3, v25\nv_or_b32 v24, v24, v25\nv_cmp_ne_u32 vcc, 0, v24')
    a('s_cmp_eq_u64 vcc, 0\ns_cbranch_scc1 ln1_ok\ns_cmp_lg_u32 s27, 0\ns_cbranch_scc1 ln1_poll')
    a.label('ln1_ok')
    rt(a, 22)
    if opt.ts: a('v_writelane_b32 v11, s27, 23')
    a('v_lshrrev_b32 v6, 2, v0\nv_lshlrev_b32 v6, 6, v6\nv_and_b32 v7, 3, v0\nv_lshl_add_u32 v6, v7, 3, v6\nv_add_u32 v6, %d, v6' % TB)
    for e in (0, 2, 4, 6): a('v_add_f32 v%d, v%d, v%d\nv_add_f32 v%d, v%d, v%d' % (M+e, M+e, M+8+e, M+16+e, M+16+e, M+24+e))
    for k_, e in enumerate((0, 2, 4, 6)): a('v_add_f32 v%d, v%d, v%d' % (24+k_, M+e, M+16+e))
    M = 24
    rndn(a, [M, M+1, M+2, M+3], [M+4, M+5])
    a('v_add_f32 v%d, 1.0, v%d\nv_add_f32 v%d, 1.0, v%d' % (M, M, M+1, M+1))
    rndn(a, [M, M+1], [M+4])
    a('ds_write_b64 v6, v[%d:%d]\nds_write_b64 v6, v[%d:%d] offset:32' % (M, M+1, M+2, M+3))
    a('s_waitcnt lgkmcnt(2)')
    a('v_pk_add_f32 v[16:17], v[16:17], v[18:19]\nv_pk_add_f32 v[20:21], v[20:21], v[22:23]\nv_pk_add_f32 v[16:17], v[16:17], v[20:21]')
    a('v_mul_f32 v9, 0x3a800000, v16\nv_mov_b32 v18, 0x3a800000\nv_mul_f32 v8, v9, v9\nv_fma_f32 v8, v17, v18, -v8')
    a('v_max_f32 v8, 0, v8\nv_add_f32 v8, 0x3727c5ac, v8\nv_rsq_f32 v8, v8')
    a('v_lshlrev_b32 v6, 10, v2\nv_lshl_add_u32 v6, v4, 6, v6\nv_add_u32 v6, %d, v6' % TB)
    a('v_lshlrev_b32 v5, 12, v2\nv_lshl_add_u32 v5, v1, 4, v5\ns_lshl_b32 s23, s21, 14\ns_mul_i32 s22, s20, %d\ns_add_u32 s23, s23, s22' % (1024*(112 if opt.reuse else 32)))
    a('s_waitcnt lgkmcnt(0)\ns_barrier')
    T = 80; X = 48
    for u in range(4):
        for e in range(4): a('ds_read_b128 v[%d:%d], v6 offset:%d' % (T+16*u+4*e, T+16*u+4*e+3, 256*u+16*e))
    a('v_mul_f32 v9, -v9, v8')
    for i in range(0, 32, 2): a('v_pk_fma_f32 v[%d:%d], v[%d:%d], v[8:9], v[8:9] op_sel:[0,0,1] op_sel_hi:[1,0,1]' % (X+i, X+i+1, X+i, X+i+1))
    for u in range(4):
        a('s_waitcnt lgkmcnt(%d)' % (12-4*u))
        for e in range(0, 8, 2): a('v_pk_fma_f32 v[%d:%d], v[%d:%d], v[%d:%d], v[%d:%d]' % (X+8*u+e, X+8*u+e+1, X+8*u+e, X+8*u+e+1, T+16*u+e, T+16*u+e+1, T+16*u+8+e, T+16*u+9+e))
        for e in range(4): a('v_cvt_pk_bf16_f32 v%d, v%d, v%d' % (D+4*u+e, X+8*u+2*e, X+8*u+2*e+1))
        a('buffer_store_dwordx4 v[%d:%d], v5, s[28:31], s23 offen offset:%d' % (D+4*u, D+4*u+3, 1024*u))
    a('s_waitcnt vmcnt(0)\ns_barrier')

KB, RW = 160, 176
def o_loads(a):
    srd(a, 16, 6, KVP, 0x2000000); srd(a, 20, 6, ZP, 0x200000)
    a('s_lshr_b32 s60, s42, 2\ns_lshl_b32 s61, s41, 1\ns_add_u32 s60, s60, s61\ns_and_b32 s61, s42, 3')
    a('s_lshl_b32 s62, s60, 16\ns_lshl_b32 s63, s61, 10\ns_add_u32 s62, s62, s63')
    a('s_lshl_b32 s63, s60, 12\ns_lshl_b32 s64, s61, 6\ns_add_u32 s63, s63, s64')
    a('v_lshlrev_b32 v156, 4, v1\nv_lshrrev_b32 v157, 4, v1\nv_lshlrev_b32 v157, 4, v157\nv_and_b32 v158, 15, v1\nv_lshl_add_u32 v157, v158, 8, v157')
    a('buffer_load_dwordx4 v[%d:%d], v157, s[20:23], s63 offen sc1' % (KB+8, KB+11))
    for m in range(16):
        a('s_lshl_b32 s64, s40, 1\ns_add_u32 s64, s64, %d\ns_and_b32 s64, s64, 15\ns_lshl_b32 s64, s64, 12\ns_add_u32 s64, s64, s62' % m)
        a('buffer_load_dwordx4 v[%d:%d], v156, s[16:19], s64 offen sc1' % (RW+4*m, RW+4*m+3))
    return ['oz'] + [('ok', m) for m in range(16)]
def o_reduce(a, vm):
    S = 244
    a('v_mov_b32 v%d, 0\nv_mov_b32 v%d, 0\nv_mov_b32 v%d, 0\nv_mov_b32 v%d, 0' % (S, S+1, S+4, S+5))
    a('v_bfe_u32 v157, v1, 2, 2\nv_lshrrev_b32 v158, 4, v1\nv_cmp_eq_u32 vcc, v157, v158')
    a('v_and_b32 v157, 1, v1\nv_lshlrev_b32 v157, 4, v157\nv_mov_b32 v158, 0x3f80\nv_lshlrev_b32 v157, v157, v158\nv_cndmask_b32 v157, 0, v157, vcc')
    a('v_and_b32 v158, 2, v1\nv_cmp_eq_u32 vcc, 0, v158\nv_cndmask_b32 v%d, 0, v157, vcc\nv_cndmask_b32 v%d, v157, v%d, vcc' % (S+2, S+3, S))
    vm.wait('oz')
    dpp_sum(a, [KB+8+e for e in range(4)], DPP16)
    for m in range(16):
        vm.wait(('ok', m))
        for h in range(2):
            d = KB + 4*h; A_ = S + 2 - 2*h
            a('v_mfma_f32_16x16x32_bf16 v[%d:%d], v[%d:%d], v[%d:%d], %s' % (d, d+3, A_, A_+3, RW+4*m, RW+4*m+3, '0' if m == 0 else 'v[%d:%d]' % (d, d+3)))
    a('s_lshr_b32 s60, s42, 2\ns_mul_i32 s60, s60, 6144\ns_bfe_u32 s61, s42, 0x10001\ns_lshl_b32 s61, s61, 10\ns_add_u32 s60, s60, s61\ns_and_b32 s61, s42, 1')
    a('s_lshl_b32 s62, s61, 11\ns_add_u32 s62, s62, s60\ns_lshl_b32 s61, s61, 3\ns_add_u32 s60, s60, s61')
    a('v_add_u32 v157, s60, v156\nv_add_u32 v158, s62, v156')
    for e in range(2): a('v_cvt_pk_bf16_f32 v%d, v%d, v%d' % (KB+12+e, KB+8+2*e, KB+9+2*e))
    a('ds_write_b64 v157, v[%d:%d] offset:4096' % (KB+12, KB+13))
    for e in range(4): a('v_cvt_pk_bf16_f32 v%d, v%d, v%d' % (RW+e, KB+2*e, KB+2*e+1))
    a('ds_write_b128 v158, v[%d:%d]' % (RW, RW+3))
    a('s_waitcnt lgkmcnt(0)\ns_barrier')
def o_compute(a, PHI, half):
    AF = RW; R = AF + 24
    KG = 112 if opt.reuse else 32
    srd(a, 20, 6, *(HF, 2048*7168) if opt.reuse else (OF, 0x400000))
    a('s_and_b32 s60, s42, 1\ns_mul_i32 s60, s60, 6144\nv_add_u32 v157, s60, v156')
    for t in range(3):
        for gam in range(2): a('ds_read_b128 v[%d:%d], v157 offset:%d' % (AF+(t*2+gam)*4, AF+(t*2+gam)*4+3, (t*2+gam)*1024))
    a('s_bfe_u32 s60, s42, 0x10001\ns_lshl_b32 s61, s93, 1\ns_add_u32 s60, s60, s61\ns_mul_i32 s60, s60, %d\ns_lshl_b32 s61, s58, 10\ns_add_u32 s60, s60, s61' % (4096*KG))
    if half: a('s_add_u32 s60, s60, %d' % (2048*KG))
    a('s_waitcnt lgkmcnt(0)')
    for gam in range(2):
        for t in (2, 0, 1):
            for i in range(2):
                d = R + (i*3+t)*4; A_ = AF+(t*2+gam)*4; B_ = PHI[(i, gam)]
                a('v_mfma_f32_16x16x32_bf16 v[%d:%d], v[%d:%d], v[%d:%d], %s' % (d, d+3, A_, A_+3, B_, B_+3, '0' if gam == 0 else 'v[%d:%d]' % (d, d+3)))
    dens = [R+(i*3+2)*4 for i in range(2)]
    for d in dens: a('v_add_f32 v%d, 0x358637bd, v%d' % (d, d))
    for d in dens: a('v_rcp_f32 v%d, v%d' % (d, d))
    for i in range(2):
        xs = list(range(R+i*12, R+i*12+8))
        for x in xs[::2]: a('v_pk_mul_f32 v[%d:%d], v[%d:%d], v[%d:%d] op_sel_hi:[1,0]' % (x, x+1, x, x+1, dens[i], dens[i]+1))
        for e in range(4): a('v_cvt_pk_bf16_f32 v%d, v%d, v%d' % (KB+4*i+e, xs[2*e], xs[2*e+1]))
        a('buffer_store_dwordx4 v[%d:%d], v156, s[20:23], s60 offen' % (KB+4*i, KB+4*i+3))
        a('s_add_u32 s60, s60, %d' % (1024*KG))
    a('s_waitcnt vmcnt(0)')

def feat2(a, QF, P, E, MX, W, sL, sink, mid=None, midpos=1, fill=None):
    for i in range(2):
        for ft in range(2):
            t = P + i*8 + ft*4
            a('v_mfma_f32_16x16x32_bf16 v[%d:%d], v[%d:%d], v[%d:%d], 0' % (t, t+3, W+ft*4, W+ft*4+3, QF+4*i, QF+4*i+3))
    fill = list(fill or [])
    def pop(n):
        for _ in range(n):
            if fill: a(fill.pop(0))
    pop(6)
    for rnd in range(4):
        for q in range(4):
            i = q % 2; n = '-' if q >= 2 else ''; b = P + 8*i
            if rnd == 0: a('v_max3_f32 v%d, %sv%d, %sv%d, %sv%d' % (MX+q, n, b, n, b+1, n, b+2))
            elif rnd < 3: a('v_max3_f32 v%d, v%d, %sv%d, %sv%d' % (MX+q, MX+q, n, b+1+2*rnd, n, b+2+2*rnd))
            else: a('v_max_f32 v%d, %sv%d, v%d' % (MX+q, n, b+7, MX+q))
    for st in bfly(a, 'v_max_f32', [MX+q for q in range(4)]):
        pop(2)
        for l in st: a(l)
    for q in range(4): a('v_mul_f32 v%d, s%d, v%d' % (MX+q, sL, MX+q))
    for i in range(2):
        for e in range(8): a('v_fma_f32 v%d, v%d, s%d, -v%d' % (E+8*i+e, P+8*i+e, sL, MX+i))
        for e in range(8): a('v_fma_f32 v%d, -v%d, s%d, -v%d' % (P+8*i+e, P+8*i+e, sL, MX+2+i))
    if mid and midpos == 0: mid()
    for i in range(16): a('v_exp_f32 v%d, v%d\nv_exp_f32 v%d, v%d' % (E+i, E+i, P+i, P+i))
    if mid and midpos == 1: mid()
    B_ = [E, E+8, P, P+8]
    for q in range(4): a('v_add_f32 v%d, v%d, v%d' % (MX+q, B_[q], B_[q]+1))
    for e in range(2, 8):
        for q in range(4): a('v_add_f32 v%d, v%d, v%d' % (MX+q, MX+q, B_[q]+e))
    for st in bfly(a, 'v_add_f32', [MX+q for q in range(4)]):
        pop(2)
        for l in st: a(l)
    pop(99)
    if mid and midpos == 2: mid()
    for q in range(4): a('v_rcp_f32 v%d, v%d' % (MX+q, MX+q))
    for q in range(4):
        for e in range(8): a('v_mul_f32 v%d, v%d, v%d' % (B_[q]+e, B_[q]+e, MX+q))
        for e in range(4): a('v_cvt_pk_bf16_f32 v%d, v%d, v%d' % (B_[q]+e, B_[q]+2*e, B_[q]+2*e+1))
        sink(q % 2, q // 2, B_[q])

def img_addr(a, WA, s_w, IMG):
    a('v_and_b32 v2, 15, v1\nv_lshrrev_b32 v3, 4, v1')
    hrow(a, 6, 2, 5)
    a('v_xor_b32 v6, v6, v3\nv_lshlrev_b32 v2, 7, v2')
    a('s_lshl_b32 s61, s%d, 13\ns_add_u32 s61, s61, %d\nv_add_u32 v2, s61, v2' % (s_w, IMG))
    for u in range(4): a('v_xor_b32 v5, %d, v6\nv_lshl_add_u32 v%d, v5, 3, v2' % (4*u, WA+u))
def hrow(a, dst, row, t):
    a('v_lshrrev_b32 v%d, 1, v%d\nv_and_b32 v%d, 3, v%d\nv_lshlrev_b32 v%d, 2, v%d' % (dst, row, dst, dst, dst, dst))
    a('v_and_b32 v%d, 1, v%d\nv_or_b32 v%d, v%d, v%d' % (t, row, dst, dst, t))
    a('v_lshrrev_b32 v%d, 2, v%d\nv_and_b32 v%d, 2, v%d\nv_or_b32 v%d, v%d, v%d' % (t, row, t, t, dst, dst, t))

def phase0(a, GS):
    V = 8; T = 48; CT = GS + 2048
    a('s_and_b32 s60, s2, 7\ns_lshl_b32 s60, s60, 3\ns_bfe_u32 s61, s2, 0x30003\ns_add_u32 s60, s60, s61\ns_lshr_b32 s61, s2, 6')
    a('s_lshl_b32 s62, s61, 9\ns_mul_i32 s63, s61, %d\ns_lshl_b32 s64, s60, 6\ns_add_u32 s63, s63, s64' % (256*12288))
    a('v_and_b32 v2, 255, v0\nv_mov_b32 v5, %d\nv_mov_b32 v6, 0\nv_mov_b32 v7, 0\nds_write_b32 v5, v6\nv_mov_b32 v3, 147392\nds_write_b64 v3, v[6:7]\ns_waitcnt lgkmcnt(0)' % CT)
    srd(a, 20, 74, 0, 2048); srd(a, 24, 76, 0, 1024*12288)
    vm = gemm.VM(a)
    gemv_issue(a, 4, 2, V, 20, 24, 62, 63, vm, R=4)
    a('s_barrier')
    nonce(a)
    def cpf():
        a('s_lshr_b32 s62, s2, 3\ns_cmp_eq_u32 s42, 7\ns_cselect_b32 s62, s62, 8\ns_min_u32 s62, s62, 8')
        code_pf(a, 'ph0', 'ph0_done', 'code_end', 62, 8, 250, 1, 64)
        vm.issue('cpf')
    if not opt.cpflate: cpf()
    srd(a, 16, 6, MPT, 65536)
    gemv_math(a, 4, V, T, vm, 58, R=4)
    a('v_lshrrev_b32 v3, 4, v2\nv_lshlrev_b32 v3, 7, v3\nv_and_b32 v4, 3, v1\nv_lshl_add_u32 v3, v4, 5, v3\nv_add_u32 v3, %d, v3' % GS)
    a('ds_write_b128 v3, v[%d:%d]\nds_write_b128 v3, v[%d:%d] offset:16' % (T+8, T+11, T+12, T+15))
    a('v_and_b32 v4, 31, v1\nv_lshrrev_b32 v3, 5, v1\nv_lshlrev_b32 v3, 10, v3\nv_lshl_add_u32 v3, v4, 2, v3\nv_add_u32 v3, %d, v3' % GS)
    a('s_lshl_b32 s60, s60, 8\ns_lshl_b32 s61, s61, 14\ns_add_u32 s60, s60, s61\nv_lshlrev_b32 v4, 3, v4\nv_mov_b32 v6, 1\ns_waitcnt lgkmcnt(0)')
    nonce2(a)
    a('s_mov_b64 exec, 1\nds_add_rtn_u32 v6, v5, v6\ns_mov_b64 exec, -1\ns_waitcnt lgkmcnt(0)')
    a('v_readfirstlane_b32 s59, v6\ns_cmp_lg_u32 s59, 3\ns_cbranch_scc1 ph0_nl')
    for p in range(8): a('ds_read_b32 v%d, v3 offset:%d' % (V+p, 128*p))
    a('v_mov_b32 v%d, s3\ns_waitcnt lgkmcnt(0)' % (V+9))
    for s_ in (4, 2):
        for p in range(s_): a('v_add_f32 v%d, v%d, v%d' % (V+p, V+p, V+p+s_))
    a('v_add_f32 v%d, v%d, v%d\nv_add_f32 v%d, v%d, v%d' % (V+8, V, V+1, V+2, V, V+1))
    a('v_permlane32_swap_b32 v%d, v%d\nv_add_f32 v%d, v%d, v%d' % (V+8, V+2, V+8, V+8, V+2))
    a('s_mov_b64 exec, 0xffffffff\nbuffer_store_dwordx2 v[%d:%d], v4, s[16:19], s60 offen\ns_mov_b64 exec, -1' % (V+8, V+9))
    a.label('ph0_nl')
    rt(a, 0)
    if opt.cpflate: cpf()
    srd(a, 16, 6, ZP, FL + 10*ROW - ZP)
    a('s_lshl_b32 s62, s2, 9\ns_lshl_b32 s63, s2, 11\ns_add_u32 s63, s63, %d\ns_cmp_eq_u32 s42, 4\ns_cselect_b32 s62, s62, s63\ns_cselect_b32 s63, 3, 15\ns_cmp_gt_u32 s42, 5\ns_cselect_b32 s62, 0x7000000, s62' % (FL - ZP))
    a('v_min_u32 v249, s63, v1\nv_lshlrev_b32 v249, 7, v249')
    a('buffer_load_dword v251, v249, s[16:19], s62 offen')
    a('s_lshl_b32 s62, s2, 8')
    for q in range(4): a('s_add_u32 s63, s62, %d\ns_load_dword s59, s[32:33], s63' % (64*q))
    a('s_and_b32 s62, s2, 31\ns_lshl_b32 s62, s62, 6\ns_load_dword s59, s[30:31], s62')
    a('s_min_u32 s62, s2, 111\ns_lshl_b32 s62, s62, 6\ns_load_dword s59, s[34:35], s62')
    if opt.wlate & 1: a('s_barrier')
    a.label('ph0_done')

def ph_qkv(P, C, st):
    c = gemm.config('qkv', 1024, 128, 3, False, 64, 3, 6144, 2048, swap_frags=(4, 5), natw=True, tail_delay=opt.td0)
    WPH = c.lds; FLG = WPH + 4096
    EB = c.slot
    IMG = EB; VB = EB + 32768; QB = VB + 16384; GV = QB + 16384
    s_hd = 58; sL = 60
    tile_head(P, c, 8, 4, 128, [(74, P_C), (76, P_WMOD), (6, P_WS), (4, P_WQKV), (32, P_WPHI), (78, P_WO), (34, P_B1), (30, P_B2)])
    phase0(P, 2*c.slot + 4096)
    c.srd_hook = lambda a: [srd(a, *x) for x in [(8, 6) + ((HF + 32768, 2048*7168 - 32768) if opt.reuse else (H1F, 0x400000)), (12, 4, 0, 1024*6144)]]
    if opt.reuse: c.xKG = 112
    def boundary0(a, c, vm):
        if not opt.wlate & 1: a('s_barrier')
        a('s_barrier')
        psync(a, 'f1', 1, c.s_mt, c.s_nt, c.s_mt, part=0)
    def boundary(a, c, vm):
        if not opt.wlate & 1: boundary0(a, c, vm)
        if opt.prog1: prog_sync(a, c, 'f1', 1, opt.prog1, lambda a: a('s_lshr_b32 s60, s%d, 14\ns_lshl_b32 s60, 0x5555, s60' % c.s_kx))
        else: early_sync(c, 'f1', 1, None)(a)
    c.boundary = boundary
    if opt.wlate & 1: c.boundary0 = boundary0
    if opt.xsc1: c.xflags = ' sc1'
    def early_issue(a, c, vm):
        V = c.p_vfree
        srd(a, 16, 32, 0, 65536)
        a('v_lshrrev_b32 v%d, 3, v1\nv_and_b32 v%d, 2, v%d\nv_xor_b32 v%d, v1, v%d\nv_lshlrev_b32 v%d, 4, v%d' % (V, V, V, V, V, V, V))
        a('s_sub_u32 s59, s%d, 4\ns_lshl_b32 s59, s59, 10\ns_add_u32 m0, s59, %d\ns_lshl_b32 s61, s%d, 12\ns_add_u32 s59, s59, s61' % (c.s_wave, WPH, c.s_nt))
        a('buffer_load_dwordx4 v%d, s[16:19], s59 offen lds' % V)
        vm.issue('wphi')
    def tail_issue(a, c, vm):
        V = (c.p_vfree + 3)//4*4
        srd(a, 20, 74, 0, 2048); srd(a, 24, 76, 0, 1024*12288)
        a('s_lshr_b32 s61, s2, 6\ns_lshl_b32 s62, s61, 9\ns_mul_i32 s63, s61, %d' % (256*12288))
        a('s_and_b32 s64, s2, 63\ns_lshl_b32 s65, s64, 7\ns_add_u32 s63, s63, s65\ns_add_u32 s63, s63, 4096')
        a('v_and_b32 v%d, 255, v0' % (V+38))
        srd(a, 16, 34, 0, 7168)
        a('s_min_u32 s59, s2, 64\ns_mul_i32 s59, s59, 448\nv_lshlrev_b32 v249, 1, v%d\nbuffer_load_ushort v248, v249, s[16:19], s59 offen' % (V+38))
        vm.issue('b1')
        gemv_issue(a, 8, V+38, V, 20, 24, 62, 63, vm)
        for t_ in prefetch(a, c, 3 & ~opt.pfo): vm.issue(t_)
    def prefetch(a, c, which):
        V = (c.p_vfree + 3)//4*4
        tags = []
        if opt.pf2 and which & 1:
            srd(a, 28, 78, 0, 1024*2048)
            a('v_lshlrev_b32 v%d, 11, v%d\nv_lshl_add_u32 v%d, v%d, 7, v%d' % (V+39, c.p_vrow, V+39, c.p_vch, V+39))
            a('s_lshr_b32 s62, s2, 3\ns_lshl_b32 s62, s62, 2\ns_add_u32 s62, s62, s%d\ns_sub_u32 s62, s62, 4\ns_lshl_b32 s62, s62, 14' % c.s_wave)
            a('s_bfe_u32 s63, s2, 0x%x\ns_lshl_b32 s63, s63, 10\ns_add_u32 s62, s62, s63' % (0x10001 if opt.umap else 0x10002))
            a('buffer_load_dword v%d, v%d, s[28:31], s62 offen' % (251, V+39))
            tags.append('pf')
        if opt.pf5 and which & 2:
            a('s_load_dwordx2 s[30:31], s[0:1], %d' % P_W1)
            a('v_lshrrev_b32 v%d, 4, v1\nv_mul_u32_u24 v%d, 7168, v%d\nv_and_b32 v%d, 15, v1\nv_min_u32 v%d, 13, v%d\nv_lshl_add_u32 v%d, v%d, 7, v%d' % (V+39, V+39, V+39, 250, 250, 250, V+39, 250, V+39))
            a('s_lshr_b32 s62, s2, 3\ns_mul_i32 s62, s62, %d\ns_sub_u32 s63, s42, 4\ns_lshl_b32 s63, s63, 2\ns_add_u32 s62, s62, s63\ns_and_b32 s63, s2, 1\ns_lshl_b32 s63, s63, 9\ns_add_u32 s62, s62, s63\ns_mul_i32 s62, s62, 7168' % opt.pf5)
            a('s_bfe_u32 s63, s2, 0x20001\ns_mul_i32 s63, s63, 1792\ns_add_u32 s62, s62, s63\ns_waitcnt lgkmcnt(0)')
            srd(a, 28, 30, 0, 1024*7168)
            a('buffer_load_dword v%d, v%d, s[28:31], s62 offen' % (251, V+39))
            tags.append('pf')
        return tags

    PHI = {}
    def ptail(a, c, vm):
        V = (c.p_vfree + 3)//4*4
        QF = V + 40; P_ = QF + 20; E = P_ + 16; MX = E + 16; W = MX + 4; T = W + 8
        assert T + 24 <= 156 and P_ >= 48
        srd(a, 16, 6, UT, 32768)
        a('s_min_u32 s59, s2, 64\ns_lshl_b32 s59, s59, 11\nv_lshlrev_b32 v249, 1, v249\nv_mov_b32 v247, 0')
        vm.wait('b1')
        a('v_lshlrev_b32 v248, 16, v248\nbuffer_store_dword v247, v249, s[16:19], s59 offen sc1\nbuffer_store_dword v248, v249, s[16:19], s59 offen offset:1024 sc1')
        vm.issue('ut', 2)
        srd(a, 24, 6, MP2, 65536)
        a('s_mov_b32 s%d, 0x%x' % (sL, LOG2E))
        a('s_and_b32 s%d, s%d, 1' % (c.s_nh, c.s_wave))
        wphi_read(a, W, c.s_nh, WPH, 2, 3)
        a('s_lshl_b32 s59, s%d, 1\ns_add_u32 s%d, s59, s%d' % (c.s_nt, s_hd, c.s_nh))
        a('s_lshl_b32 s61, s61, 14\ns_lshl_b32 s64, s64, 8\ns_add_u32 s64, s64, s61')
        a('s_sub_u32 s61, s%d, 4\ns_lshl_b32 s62, s61, 12\ns_add_u32 s62, s62, %d' % (c.s_wave, QB))
        a('v_lshl_add_u32 v4, v1, 4, s62\ns_sub_u32 s62, s42, 4')
        WA = QF + 16
        img_addr(a, WA, 62, IMG)
        if opt.eprio: a('s_setprio %d' % opt.eprio)
        a('s_barrier')
        for i in range(4): a('ds_read_b128 v[%d:%d], v4 offset:%d' % (QF+4*i, QF+4*i+3, 1024*i))
        a('s_waitcnt lgkmcnt(2)')
        def sinkk(i, sg, B):
            for ft in range(2): a('ds_write_b64 v%d, v[%d:%d] offset:%d' % (WA+2*sg+ft, B+2*ft, B+2*ft+1, (2+i)*2048))
        feat2(a, QF, P_, E, MX, W, sL, sinkk)
        a('s_setprio 0\ns_waitcnt lgkmcnt(0)\ns_barrier')
        def sink(i, sg, B): PHI[(i, sg)] = B
        def mid():
            vm.wait('ut')
            psync(a, 'f2', 2, c.s_nt, c.s_mt, c.s_nt, part=0)
        feat2(a, QF+8, P_, E, MX, W, sL, sink, mid, opt.midpos)
        if opt.midpos == 3: mid()
        rt(a, 14)
        gemv_math(a, 8, V, T, vm, 59)
        a('v_lshrrev_b32 v2, 4, v%d\nv_lshlrev_b32 v2, 8, v2\nv_and_b32 v5, 7, v1\nv_lshl_add_u32 v2, v5, 5, v2\nv_add_u32 v2, %d, v2' % (V+38, GV))
        a('ds_write_b128 v2, v[%d:%d]\nds_write_b128 v2, v[%d:%d] offset:16' % (T+8, T+11, T+12, T+15))
        a('v_mov_b32 v5, %d\nv_mov_b32 v6, 1\ns_waitcnt lgkmcnt(0)' % (FLG+16))
        a('s_mov_b64 exec, 1\nds_add_rtn_u32 v6, v5, v6\ns_mov_b64 exec, -1\ns_waitcnt lgkmcnt(0)')
        a('v_readfirstlane_b32 s59, v6\ns_cmp_lg_u32 s59, 3\ns_cbranch_scc1 qkv_gvx')
        a('v_lshlrev_b32 v5, 2, v1\nv_add_u32 v6, %d, v5' % GV)
        for p in range(16): a('ds_read_b32 v%d, v6 offset:%d' % (T+p, 256*p))
        a('s_and_b32 s59, s2, 63\ns_lshl_b32 s59, s59, 2\ns_lshr_b32 s61, s2, 6\ns_add_u32 s59, s59, s61\ns_lshl_b32 s59, s59, %d\ns_add_u32 s59, s59, %d' % (MS, FL7))
        a('s_waitcnt lgkmcnt(0)')
        for s_ in (8, 4, 2, 1):
            for p in range(s_): a('v_add_f32 v%d, v%d, v%d' % (T+p, T+p, T+p+s_))
        a('buffer_store_dword v%d, v5, s[24:27], s64 offen sc1' % T)
        a('v_mov_b32 v6, s3\ns_waitcnt vmcnt(0)\ns_mov_b64 exec, 1')
        a('buffer_store_dword v6, v252, s[84:87], s59 offen sc1')
        a('s_mov_b64 exec, -1')
        a.label('qkv_gvx')
        rt(a, 15)
        psync(a, 'f2', 2, c.s_nt, c.s_mt, c.s_nt, part=1)
        a('s_mov_b32 s93, s%d\ns_mov_b32 s97, s%d' % (c.s_mt, c.s_nt))
        a('s_or_b32 s59, s2, s42\ns_cmp_lg_u32 s59, 4\ns_cbranch_scc1 qkv_nn\ns_mov_b32 s59, %d\nv_mov_b32 v253, s3\ns_mov_b64 exec, 1' % (NW - FL))
        a('buffer_store_dword v253, v252, s[84:87], s59 offen sc1\ns_mov_b64 exec, -1')
        a.label('qkv_nn')
        st['vm_init'] = vm.ops[vm.done+1:] + o_loads(a) + prefetch(a, c, opt.pfo)
    c.first_c = lambda c, j: '0'
    c.unroll = opt.unroll
    c.early_issue, c.tail_issue, c.ptail = early_issue, tail_issue, ptail
    gemm.producer(P, c, None)
    if opt.ts and c.flags: P('v_writelane_b32 v255, s70, %d' % (24 + c.fbase//16))
    st['PHI'] = PHI
    a = C
    tile_head(a, c, 8, 4, 128, [(6, P_WS), (34, P_X)])
    ln1_body(a, c, 2*c.slot)
    rt(a, 1)
    for x in [(24, 6, KVP, 0x2000000), (28, 6, ZP, 0x200000)]: srd(a, *x)
    def zero_flags(a, c):
        a('v_lshlrev_b32 v2, 2, v1\nv_add_u32 v2, %d, v2\nv_mov_b32 v3, 0\nds_write_b32 v2, v3\ns_waitcnt lgkmcnt(0)' % FLG)
    def addrs(a, c):
        WA = c.v_free + 44; RA = WA + 4
        b = Asm()
        img_addr(b, WA, c.s_wave, IMG)
        b('v_lshrrev_b32 v2, 2, v1\nv_and_b32 v3, 3, v1')
        hrow(b, 6, 2, 5)
        b('v_xor_b32 v6, v6, v3\nv_lshlrev_b32 v2, 7, v2')
        b('s_lshl_b32 s61, s%d, 13\ns_add_u32 s61, s61, %d\nv_add_u32 v2, s61, v2' % (c.s_nh, IMG))
        b('s_lshl_b32 s61, s%d, 3\nv_xor_b32 v6, s61, v6' % c.s_rh)
        for u in range(2): b('v_xor_b32 v5, %d, v6\nv_lshl_add_u32 v%d, v5, 3, v2' % (4*u, RA+u))
        import re
        a.lines += [re.sub(r'\bv([56])\b', lambda m: 'v%d' % (int(m.group(1)) + 9), l) for l in b.lines]
    c.pre_hook2 = chain(addrs, zero_flags, None if opt.prog1 else BAR)
    c.post_b0 = lambda a, c: rt(a, 2)
    gemm.consumer(a, c)
    if c.stamps: gemm.dump_stamps(a, c)
    if opt.ts and c.flags: a('v_writelane_b32 v11, s70, %d' % (24 + c.fbase//16))
    rt(a, 3)
    a('s_lshl_b32 s%d, s%d, 1\ns_add_u32 s%d, s%d, s%d' % (s_hd, c.s_nt, s_hd, s_hd, c.s_nh))
    wphi_read(a, c.v_free, c.s_nh, WPH, 2, 3)
    W = c.v_free
    ACC = lambda j, i, r=0: c.v_acc + (j*4+i)*4 + r
    QF = 12; HB = 28; P_ = W + 8; E = P_ + 16; MX = E + 16; WA = MX + 4; RA = WA + 4; QQ = RA + 2 + 2
    a('s_mov_b32 s%d, 0x%x' % (sL, LOG2E))
    a('v_lshlrev_b32 v4, 4, v1')
    a('s_lshl_b32 s61, s%d, 12\ns_add_u32 s61, s61, %d' % (c.s_wave, QB))
    a('v_add_u32 v3, s61, v4')
    def pack(dst, j0, i):
        for h in range(2):
            for e in range(2): a('v_cvt_pk_bf16_f32 v%d, v%d, v%d' % (dst+2*h+e, ACC(j0+h, i, 2*e), ACC(j0+h, i, 2*e+1)))
    for n_, (j0, i) in enumerate(((2, 2), (2, 3), (0, 2), (0, 3))):
        pack(HB+4*n_, j0, i)
        a('ds_write_b128 v3, v[%d:%d] offset:%d' % (HB+4*n_, HB+4*n_+3, 1024*n_))
    pack(QF, 2, 0); pack(QF+4, 2, 1)
    a('s_waitcnt lgkmcnt(0)\ns_barrier')
    rt(a, 28)
    def sink(i, sg, B):
        for ft in range(2): a('ds_write_b64 v%d, v[%d:%d] offset:%d' % (WA+2*sg+ft, B+2*ft, B+2*ft+1, i*2048))
    keep = a.lines; a.lines = []
    pack(QQ, 0, 0); pack(QQ+4, 0, 1)
    a('s_lshl_b32 s61, s%d, 1\ns_add_u32 s61, s61, s%d\ns_lshl_b32 s61, s61, 12\ns_add_u32 s61, s61, %d' % (c.s_nh, c.s_rh, VB))
    a('v_add_u32 v3, s61, v4')
    for gam in range(2):
        for dt in range(2):
            q = c.v_acc + (gam*2+dt)*4
            for h in range(2):
                for e in range(2): a('v_cvt_pk_bf16_f32 v%d, v%d, v%d' % (q+2*h+e, ACC(4+dt, 2*gam+h, 2*e), ACC(4+dt, 2*gam+h, 2*e+1)))
            a('ds_write_b128 v3, v[%d:%d] offset:%d' % (q, q+3, (gam*2+dt)*1024))
    for e in range(4): a('v_mov_b32 v%d, 0x3f803f80' % (76+e))
    fl = [l.strip() for l in a.lines]; a.lines = keep
    feat2(a, QF, P_, E, MX, W, sL, sink, fill=fl)
    rt(a, 29)
    a('s_waitcnt lgkmcnt(0)\ns_barrier')
    rt(a, 30)
    AF = 12; VF = 44; ONE = 76; KV = ACC(2, 0)
    a('s_lshl_b32 s61, s%d, 13\ns_add_u32 s61, s61, %d\nv_add_u32 v3, s61, v4' % (c.s_nh, VB))
    for gp in range(4):
        rhp, gam = gp // 2, gp % 2
        for ftl in range(2):
            for t in range(2):
                q = AF + (ftl*4+gp)*4 + 2*t
                a('ds_read_b64_tr_b16 v[%d:%d], v%d offset:%d' % (q, q+1, RA+ftl, rhp*16384 + (gam*32 + t*16)*128))
        for dt in range(2):
            q = VF + (dt*4+gp)*4
            a('ds_read_b128 v[%d:%d], v3 offset:%d' % (q, q+3, (gp*2+dt)*1024))
    for gp in range(4):
        a('s_waitcnt lgkmcnt(%d)' % min(12, 6*(3-gp)))
        for ftl in range(2):
            for t in range(3):
                d = KV + (ftl*3+t)*4; A_ = AF + (ftl*4+gp)*4
                B_ = VF + (t*4+gp)*4 if t < 2 else ONE
                a('v_mfma_f32_16x16x32_bf16 v[%d:%d], v[%d:%d], v[%d:%d], %s' % (d, d+3, A_, A_+3, B_, B_+3, '0' if gp == 0 else 'v[%d:%d]' % (d, d+3)))
    a('s_lshl_b32 s61, s%d, 4\ns_add_u32 s61, s61, s%d' % (s_hd, c.s_mt))
    a('s_lshl_b32 s63, s61, 12\ns_lshl_b32 s64, s%d, 11\ns_add_u32 s63, s63, s64' % c.s_rh)
    a('s_lshl_b32 s61, s61, 8\ns_lshl_b32 s64, s%d, 7\ns_add_u32 s61, s61, s64' % c.s_rh)
    a('v_and_b32 v2, 15, v1\nv_cmp_eq_u32 vcc, 0, v2')
    for ftl in range(2):
        for e in range(4): a('v_cvt_pk_bf16_f32 v%d, v%d, v%d' % (AF+4*ftl+e, KV+(e//2)*12+4*ftl+2*(e%2), KV+(e//2)*12+4*ftl+2*(e%2)+1))
        a('buffer_store_dwordx4 v[%d:%d], v4, s[24:27], s63 offen offset:%d' % (AF+4*ftl, AF+4*ftl+3, ftl*1024))
    a('s_and_saveexec_b64 s[64:65], vcc')
    for ftl in range(2):
        d = KV + (ftl*3+2)*4
        a('buffer_store_dwordx4 v[%d:%d], v1, s[28:31], s61 offen offset:%d' % (d, d+3, ftl*64))
    a('s_mov_b64 exec, s[64:65]')
    rt(a, 4)
    a('s_waitcnt vmcnt(0)\ns_barrier')
    CPHI = {}
    def sinkq(i, sg, B): CPHI[(i, sg)] = B
    feat2(a, QQ, 12, 28, 44, W, sL, sinkq)
    a('s_mov_b32 s93, s%d\ns_barrier' % c.s_mt)
    rt(a, 5)
    vm = gemm.VM(a); vm.ops = o_loads(a)
    o_reduce(a, vm)
    o_compute(a, CPHI, 0)
    a('s_barrier')
    rt(a, 6)
    return c

def poll7(a, tag, offs, nw=4, wave=5):
    if wave is not None: a('s_cmp_lg_u32 s42, %d\ns_cbranch_scc1 %s_x' % (wave, tag))
    a('s_mov_b32 s90, 200000')
    a.label(tag + '_p')
    for q, so in enumerate(offs): a('s_load_dwordx%d s[%d:%d], s[6:7], s%d glc' % (nw, 68+nw*q, 68+nw*q+nw-1, so))
    a('s_sub_u32 s90, s90, 1\ns_waitcnt lgkmcnt(0)')
    n = nw*len(offs)
    for q in range(n): a('s_xor_b32 s%d, s%d, s3' % (68+q, 68+q))
    for q in range(1, n): a('s_or_b32 s68, s68, s%d' % (68+q))
    a('s_cbranch_scc0 %s_x' % tag)
    a('s_cmp_lg_u32 s90, 0\ns_cbranch_scc1 %s_p' % tag)
    a.label(tag + '_x')

def gates(a, c, chunks, bias, SC, V):
    nv = len(chunks)
    srd(a, 20, 6, MP2, 65536)
    a('v_lshrrev_b32 v%d, 4, v1\nv_lshlrev_b32 v%d, 14, v%d\nv_and_b32 v%d, 15, v1\nv_lshl_add_u32 v%d, v%d, 4, v%d' % (V+1, V+1, V+1, V+2, V+1, V+2, V+1))
    for q, ch in enumerate(chunks):
        a('s_lshl_b32 s61, s%d, 8\ns_add_u32 s61, s61, %d' % (c.s_nt, (ch-2)*4096))
        a('buffer_load_dwordx4 v[%d:%d], v%d, s[20:23], s61 offen sc1' % (V+4+4*q, V+7+4*q, V+1))
    if bias:
        srd(a, 20, bias, 0, 2048)
        a('v_lshlrev_b32 v%d, 3, v%d\ns_lshl_b32 s61, s%d, 7' % (V+3, V+2, c.s_nt))
        a('buffer_load_dwordx2 v[%d:%d], v%d, s[20:23], s61 offen' % (V+16, V+17, V+3))
    a('v_lshlrev_b32 v%d, 4, v%d\nv_add_u32 v%d, %d, v%d\ns_waitcnt vmcnt(0)' % (V+2, V+2, V+2, SC, V+2))
    xs = list(range(V+4, V+4+4*nv))
    xg_sum(a, xs, list(range(V+20, V+20+4*nv)))
    rndn(a, xs, list(range(V+20, V+26)))
    for q, ch in enumerate(chunks):
        if ch == 4:
            for e in range(4): a('v_add_f32 v%d, 1.0, v%d' % (V+4+4*q+e, V+4+4*q+e))
            rndn(a, list(range(V+4+4*q, V+8+4*q)), [V+20, V+21])
    if bias:
        for e in range(2): unpack(a, V+8+2*e, V+9+2*e, V+16+e)
        for e in range(4): a('v_mul_f32 v%d, v%d, v%d' % (V+8+e, V+8+e, V+4+e))
    for q in range(nv + (1 if bias else 0)): a('ds_write_b128 v%d, v[%d:%d] offset:%d' % (V+2, V+4+4*q, V+7+4*q, 256*q))
    a('s_waitcnt lgkmcnt(0)')

def res_phase(c, xsrd, fl=''):
    XT = 147456
    def tail(a, c, vm):
        V = c.p_vfree
        srd(a, 16, *xsrd)
        a('v_xor_b32 v%d, v%d, v%d\nv_lshlrev_b32 v%d, 4, v%d\nv_lshl_add_u32 v%d, v%d, 11, v%d' % (V, c.p_vrow, c.p_vch, V, V, V, c.p_vrow, V))
        a('s_sub_u32 s59, s%d, 4\ns_lshl_b32 s60, s%d, 2\ns_add_u32 s60, s60, s59\ns_lshl_b32 s60, s60, 16\ns_lshl_b32 s61, s%d, 7\ns_add_u32 s60, s60, s61' % (c.s_wave, c.s_mt, c.s_nt))
        a('s_lshl_b32 s59, s59, 12\ns_add_u32 s59, s59, %d' % XT)
        for i in range(4):
            a('s_add_u32 m0, s59, %d' % (1024*i))
            a('buffer_load_dwordx4 v%d, s[16:19], s60 offen%s lds' % (V, fl))
            a('s_add_u32 s60, s60, 16384')
        vm.issue('op', 4)
    XA = lambda c: c.v_free + 16 + 48
    c.XA = XA
    def rd(a, c):
        GA = c.v_free + 16
        a('v_lshrrev_b32 v3, 4, v1\nv_lshlrev_b32 v3, 4, v3\nv_add_u32 v3, %d, v3' % XT)
        for q in range(2):
            for j in range(4): a('ds_read_b128 v[%d:%d], v3 offset:%d' % (GA+16*q+4*j, GA+16*q+4*j+3, 256*q + 64*j))
    c.gate_rd = rd
    def pre(a, c):
        a('v_and_b32 v2, 7, v1\nv_lshrrev_b32 v3, 5, v1\nv_xor_b32 v2, v2, v3\nv_lshlrev_b32 v2, 4, v2\nv_bfe_u32 v3, v1, 4, 1\nv_lshl_add_u32 v2, v3, 3, v2')
        a('v_and_b32 v3, 15, v1\nv_lshl_add_u32 v2, v3, 7, v2\ns_lshl_b32 s61, s%d, 12\ns_add_u32 s61, s61, %d\nv_add_u32 v%d, s61, v2' % (c.s_wave, XT, XA(c)))
        for j in range(1, 4): a('v_xor_b32 v%d, %d, v%d' % (XA(c)+j, 32*j, XA(c)))
    def last_reads(c):
        XR = c.v_free
        return ['ds_read_b64 v[%d:%d], v%d offset:%d' % (XR+8*i+2*j, XR+8*i+2*j+1, XA(c)+j, 2048*i) for i in range(2) for j in range(4)]
    c.pre_hook, c.last_reads, c.pre_last_bar = pre, last_reads, (lambda a, c, vm: vm.wait('op'))
    c.first_c = lambda c, j: '0'
    return tail

P2 = lambda x: 'v[%d:%d]' % (x, x+1)
def res_out(a, c, sOut, bias=False):
    XR = c.v_free; GA = XR + 16
    ACC = lambda j, i, r=0: c.v_acc + (i*4+j)*4 + r
    a('s_lshl_b32 s58, s%d, 2\ns_add_u32 s58, s58, s%d' % (c.s_mt, c.s_wave))
    a('s_lshl_b32 s60, s58, 16\ns_lshl_b32 s61, s%d, 7\ns_add_u32 s60, s60, s61' % c.s_nt)
    U = 12; PK = 44
    a('v_and_b32 v2, 15, v1\nv_lshlrev_b32 v2, 11, v2\nv_bfe_u32 v3, v1, 4, 1\nv_lshl_add_u32 v2, v3, 5, v2\nv_lshrrev_b32 v3, 5, v1\nv_lshl_add_u32 v2, v3, 4, v2')
    a('s_add_u32 s61, s60, 32768')
    a('s_waitcnt lgkmcnt(0)')
    def part(i, store=True):
        for j in range(4):
            for e in range(2): unpack(a, U+16*i+4*j+2*e, U+16*i+4*j+2*e+1, XR+8*i+2*j+e)
        if bias:
            for j in range(4):
                for r in (0, 2): a('v_pk_add_f32 %s, %s, %s' % (P2(U+16*i+4*j+r), P2(U+16*i+4*j+r), P2(GA+16+4*j+r)))
        for j in range(4):
            for r in (0, 2): a('v_pk_fma_f32 %s, %s, %s, %s' % (P2(ACC(j,i,r)), P2(ACC(j,i,r)), P2(GA+4*j+r), P2(U+16*i+4*j+r)))
    def out(i):
        for j in range(4):
            for e in range(2): a('v_cvt_pk_bf16_f32 v%d, v%d, v%d' % (PK+8*i+2*j+e, ACC(j,i,2*e), ACC(j,i,2*e+1)))
        if sOut is None:
            for j in range(4): a('ds_write_b64 v%d, v[%d:%d] offset:%d' % (c.XA(c)+j, PK+8*i+2*j, PK+8*i+2*j+1, 2048*i))
            return
        for jp in range(2):
            for e in range(2): a('v_permlane16_swap_b32 v%d, v%d' % (PK+8*i+4*jp+e, PK+8*i+4*jp+2+e))
        for jp in range(2):
            a('buffer_store_dwordx4 v[%d:%d], v2, s[%d:%d], s%d offen offset:%d' % (PK+8*i+4*jp, PK+8*i+4*jp+3, sOut, sOut+3, 60+i, 64*jp))
    return part, out

def ph_wo(P, C, st):
    c = gemm.config('wo', 1024, 128, 1, False, opt.woBK, opt.woS, 2048, 128, rows4=True, KS=2, rpm=opt.rpm, slot0=1, unroll=True)
    c.order = opt.wo_order; c.G = opt.wo_G
    whead = uhead if opt.umap else (lambda a, c, p: tile_head(a, c, 4, 8, 128, p))
    whead(P, c, [(4, P_WO), (32, P_X), (34, P_W1)])
    c.srd_hook = lambda a: [srd(a, *x) for x in [(8, 6) + ((HF, 2048*7168) if opt.reuse else (OF, 0x400000)), (12, 4, 0, 1024*2048)]]
    if opt.reuse: c.xKG = 112
    c.vm_init = st['vm_init']
    if opt.xsc1: c.xflags = ' sc1'
    def boundary(a, c, vm):
        rt(a, 16)
        o_reduce(a, vm)
        rt(a, 17)
        o_compute(a, st['PHI'], 1)
        psync(a, 'f3', 3, 93, 97, c.s_mt, part=0)
        if opt.pf3:
            V = 40
            srd(a, 28, 34, 0, 1024*7168)
            a('v_lshrrev_b32 v%d, 4, v1\nv_mul_u32_u24 v%d, 7168, v%d\nv_and_b32 v%d, 15, v1\nv_min_u32 v%d, 13, v%d\nv_lshl_add_u32 v%d, v%d, 7, v%d' % (V, V, V, V+1, V+1, V+1, V, V+1, V))
            a('s_lshr_b32 s61, s2, 3\ns_lshl_b32 s61, s61, 2\ns_add_u32 s61, s61, s42\ns_sub_u32 s61, s61, 4\ns_mul_i32 s61, s61, %d' % (4*7168))
            a('s_bfe_u32 s62, s2, 0x20001\ns_mul_i32 s62, s62, 1792\ns_add_u32 s61, s61, s62')
            for q in range(opt.pf3):
                a('buffer_load_dword v251, v%d, s[28:31], s61 offen\ns_add_u32 s61, s61, %d' % (V, 512*7168))
            vm.issue('pf', opt.pf3)
        a('s_cmp_lg_u32 s42, 6\ns_cbranch_scc1 wo7_x')
        w1_tau(a)
        a('v_lshrrev_b32 v40, 2, v1\nv_cmp_gt_u32 vcc, 2, v40\nv_mov_b32 v41, s65\nv_mov_b32 v42, s%d\nv_cndmask_b32 v41, v41, v42, vcc\nv_lshlrev_b32 v41, 2, v41' % c.s_nt)
        a('v_lshlrev_b32 v40, 2, v40\nv_mov_b32 v42, 0x2120\nv_lshrrev_b32 v40, v40, v42\nv_and_b32 v40, 3, v40\nv_lshl_add_u32 v41, v40, 6, v41\nv_and_b32 v40, 3, v1\nv_add_u32 v41, v40, v41\nv_lshlrev_b32 v41, %d, v41' % MS)
        a('s_mov_b32 s61, %d\ns_mov_b64 exec, 0xffff' % FL7)
        a.label('wo7_p')
        a('buffer_load_dword v40, v41, s[84:87], s61 offen sc1\ns_sub_u32 s90, s90, 1\ns_waitcnt vmcnt(0)\nv_cmp_ne_u32 vcc, s3, v40')
        a('s_cmp_eq_u64 vcc, 0\ns_cbranch_scc1 wo7_y\ns_cmp_lg_u32 s90, 0\ns_cbranch_scc1 wo7_p')
        a.label('wo7_y')
        a('s_mov_b64 exec, -1')
        gates(a, c, [2, 4], None, 147456, 160)
        a.label('wo7_x')
        if opt.prog3: prog_sync(a, c, 'f3', 3, opt.prog3, lambda a: a('s_lshr_b32 s60, s%d, 11\ns_lshl_b32 s60, 3, s60' % c.s_kx))
        else: early_sync(c, 'f3', 3, None)(a)
    c.boundary = boundary
    c.tail_issue = res_phase(c, (32, 0, 0x400000))
    gemm.producer(P, c, None)
    if opt.ts and c.flags: P('v_writelane_b32 v255, s70, %d' % (24 + c.fbase//16))
    assert c.vm.done == len(c.vm.ops) - 1
    P('s_mov_b32 s93, s%d\ns_mov_b32 s97, s%d' % (c.s_mt, c.s_nt))
    a = C
    whead(a, c, [])
    if not opt.umap: srd(a, 24, 6, X1, 0x400000)
    for x in [(28, 6, ST2, 0x40000), (16, 6, H2F, 0x400000)]: srd(a, *x)
    c.pre_hook2 = None if opt.prog3 else chain(BAR, c.gate_rd)
    c.post_b0 = chain(lambda a, c: rt(a, 7), c.gate_rd if opt.prog3 else None)
    gemm.consumer(a, c)
    if c.stamps: gemm.dump_stamps(a, c)
    if opt.ts and c.flags: a('v_writelane_b32 v11, s70, %d' % (24 + c.fbase//16))
    rt(a, 8)
    ACC = lambda j, i, r=0: c.v_acc + (i*4+j)*4 + r
    part, out = res_out(a, c, None)
    part(0); part(1)
    Q = 60
    for i in range(2):
        xs = [ACC(j,i,r) for j in range(4) for r in (0, 2)]
        S0, Q0 = 64+8*i, 68+8*i
        for k in range(2): a('v_pk_add_f32 %s, %s, %s' % (P2(S0+2*k), P2(xs[k]), P2(xs[2+k])))
        for k in range(2): a('v_pk_mul_f32 %s, %s, %s' % (P2(Q0+2*k), P2(xs[k]), P2(xs[k])))
        for m in (4, 6):
            for k in range(2): a('v_pk_add_f32 %s, %s, %s' % (P2(S0+2*k), P2(S0+2*k), P2(xs[m+k])))
        for m in (2, 4, 6):
            for k in range(2): a('v_pk_fma_f32 %s, %s, %s, %s' % (P2(Q0+2*k), P2(xs[m+k]), P2(xs[m+k]), P2(Q0+2*k)))
        a('v_pk_add_f32 %s, %s, %s\nv_pk_add_f32 %s, %s, %s' % (P2(S0), P2(S0), P2(S0+2), P2(Q0), P2(Q0), P2(Q0+2)))
        a('v_add_f32 v%d, v%d, v%d\nv_add_f32 v%d, v%d, v%d' % (Q+i, S0, S0+1, Q+2+i, Q0, Q0+1))
    for s_ in bfly(a, 'v_add_f32', [Q, Q+1, Q+2, Q+3])[:4]:
        for l in s_: a(l)
    a('v_and_b32 v4, 15, v1\nv_lshrrev_b32 v3, 5, v1\nv_lshl_add_u32 v4, v3, 4, v4\nv_lshlrev_b32 v4, 3, v4\nv_bfe_u32 v3, v1, 4, 1\nv_lshl_add_u32 v4, v3, 2, v4')
    a('s_lshl_b32 s63, s58, 8\ns_lshl_b32 s62, s%d, 14\ns_add_u32 s62, s63, s62' % c.s_nt)
    a('buffer_store_dword v%d, v4, s[28:31], s62 offen sc1' % Q)
    a('v_and_b32 v4, 15, v1\nv_lshlrev_b32 v4, 4, v4\nv_bfe_u32 v3, v1, 4, 1\nv_lshl_add_u32 v4, v3, 9, v4\nv_lshrrev_b32 v3, 5, v1\nv_lshl_add_u32 v4, v3, 8, v4')
    a('s_lshl_b32 s62, s58, 16\ns_lshl_b32 s63, s%d, 11\ns_add_u32 s62, s62, s63\ns_add_u32 s63, s62, 32768' % c.s_nt)
    A2 = c.v_free + 32; PK = 88; U = 12
    for i in range(2):
        for j in range(4):
            for r in (0, 2): a('v_pk_mul_f32 %s, %s, %s' % (P2(U+16*i+4*j+r), P2(ACC(j,i,r)), P2(A2+4*j+r)))
        for j in range(4):
            for e in range(2): a('v_cvt_pk_bf16_f32 v%d, v%d, v%d' % (PK+8*i+2*j+e, U+16*i+4*j+2*e, U+16*i+4*j+2*e+1))
        for jp in range(2):
            for e in range(2): a('v_permlane16_swap_b32 v%d, v%d' % (PK+8*i+4*jp+e, PK+8*i+4*jp+2+e))
        for jp in range(2):
            a('buffer_store_dwordx4 v[%d:%d], v4, s[16:19], s%d offen offset:%d' % (PK+8*i+4*jp, PK+8*i+4*jp+3, 62+i, 1024*jp))
    if opt.umap: out(0); out(1)
    rt(a, 9)
    a('s_waitcnt vmcnt(0)\ns_barrier')
    if not opt.umap:
        PK = 44
        for i in range(2):
            for j in range(4):
                for e in range(2): a('v_cvt_pk_bf16_f32 v%d, v%d, v%d' % (PK+8*i+2*j+e, ACC(j,i,2*e), ACC(j,i,2*e+1)))
            for jp in range(2):
                for e in range(2): a('v_permlane16_swap_b32 v%d, v%d' % (PK+8*i+4*jp+e, PK+8*i+4*jp+2+e))
            for jp in range(2):
                a('buffer_store_dwordx4 v[%d:%d], v4, s[24:27], s%d offen offset:%d' % (PK+8*i+4*jp, PK+8*i+4*jp+3, 62+i, 1024*jp))
    rt(a, 10)
    return c

def w1_tau(a):
    a('s_lshr_b32 s61, s2, 3\ns_lshr_b32 s62, s61, 3\ns_add_u32 s62, s62, s61\ns_and_b32 s62, s62, 3')
    a('s_cmp_eq_u32 s62, 0\ns_cselect_b32 s63, 4, s62\ns_lshl_b32 s64, s62, 2\ns_lshr_b32 s64, 0x1431, s64\ns_and_b32 s64, s64, 15')
    a('s_add_u32 s65, s62, 1\ns_and_b32 s65, s65, 3\ns_add_u32 s62, s63, 3\ns_bitcmp1_b32 s61, 2\ns_cselect_b32 s64, s63, s64\ns_cselect_b32 s65, s62, s65')
    a('s_and_b32 s61, s2, 1\ns_lshl_b32 s61, s61, 3\ns_add_u32 s65, s65, s61')

def ph_w1(P, C, st):
    c = gemm.config('w1', 1024, 128, 3, True, 64, 3, 7168, 128, natw=True, tail_delay=opt.td1)
    BT = c.lds
    tile_head(P, c, 8, 4, 448, [(4, P_W1), (34, P_W2)])
    c.srd_hook = lambda a: [srd(a, *x) for x in [(8, 6, H2F, 0x400000), (12, 4, 0, 1024*7168)]]
    if opt.xsc1: c.xflags = ' sc1'
    XE = BT; RS = XE + 2048; UTL = RS + 1024; UTL2 = UTL + 2048
    tau = w1_tau
    tau(P)
    P('s_add_u32 s92, s64, 1\ns_lshr_b32 s38, s%d, 3' % c.s_mt)
    c.mirror = 38
    def boundary0(a, c, vm):
        psync(a, 'f5', 5, 93, 97, c.s_mt, part=0)
        V = (c.p_vfree + 3)//4*4
        srd(a, 20, 6, MP2, 65536); srd(a, 24, 6, ST2, 0x40000); srd(a, 16, 6, UT, 32768)
        a('v_lshrrev_b32 v%d, 4, v1\nv_lshlrev_b32 v%d, 14, v%d\nv_and_b32 v%d, 15, v1\nv_lshl_add_u32 v%d, v%d, 4, v%d' % (V+1, V+1, V+1, V+2, V+1, V+2, V+1))
        for q, ch in enumerate((4, 3)):
            a('s_lshl_b32 s61, s65, 8\ns_add_u32 s61, s61, %d' % ((ch-2)*4096))
            a('buffer_load_dwordx4 v[%d:%d], v%d, s[20:23], s61 offen sc1' % (V+4+4*q, V+7+4*q, V+1))
        vm.issue('xe', 2)
    def boundary(a, c, vm):
        vm.wait('xe')
        if opt.pf6: tail_issue(a, c, vm, True)
        pre_b0(a, c, vm)
        if opt.prog5: prog_sync(a, c, 'f5', 5, opt.prog5, lambda a: a('s_lshr_b32 s60, s%d, 11\ns_lshl_b32 s60, 1, s60' % c.s_kx))
        else: early_sync(c, 'f5', 5, None)(a)
    c.boundary0, c.boundary = boundary0, boundary
    def pre_b0(a, c, vm):
        V = (c.p_vfree + 3)//4*4
        xs = list(range(V+4, V+12))
        for e in range(4): a('v_mov_b32 v%d, 0' % (V+20+e))
        a('v_lshlrev_b32 v%d, 4, v1\nv_add_u32 v%d, %d, v%d' % (V+3, V+3, XE, V+3))
        a('ds_write_b128 v%d, v[%d:%d]\nds_write_b128 v%d, v[%d:%d] offset:1024' % (V+3, V+20, V+23, V+3, V+20, V+23))
        xg_sum(a, xs, list(range(V+12, V+20)))
        rndn(a, xs[:4], [V+12, V+13])
        for e in range(4): a('v_add_f32 v%d, 1.0, v%d' % (V+4+e, V+4+e))
        for e in range(4): a('v_cvt_pk_bf16_f32 v%d, v%d, v%d' % (V+12+e, V+4+2*e, V+5+2*e))
        a('v_lshrrev_b32 v%d, 1, v%d\nv_lshlrev_b32 v%d, 8, v%d\nv_and_b32 v%d, 1, v%d\nv_lshl_add_u32 v%d, v%d, 3, v%d\nv_add_u32 v%d, %d, v%d' % (V+3, V+2, V+3, V+3, V+2, V+2, V+3, V+2, V+3, V+3, XE, V+3))
        a('ds_write_b64 v%d, v[%d:%d]\nds_write_b64 v%d, v[%d:%d] offset:16' % (V+3, V+12, V+13, V+3, V+14, V+15))
        a('s_waitcnt lgkmcnt(0)')
    def iter_hook(a, c, vm, k):
        V = (c.p_vfree + 3)//4*4 + 24
        if k == 11:
            a('s_lshl_b32 s60, s%d, %d\ns_add_u32 s60, s60, %d\nv_lshlrev_b32 v%d, 5, v1\nbuffer_load_dword v%d, v%d, s[84:87], s60 offen sc1' % (c.s_nt, MS+4, 4*ROW, V+23, V+22, V+23))
            vm.issue('f9')
        if k == 13:
            vm.wait('f9')
            a('s_mov_b32 s90, 200000')
            a.label('w19_p')
            a('v_cmp_ne_u32 vcc, s3, v%d\ns_cmp_eq_u64 vcc, 0\ns_cbranch_scc1 w19_y' % (V+22))
            a('buffer_load_dword v%d, v%d, s[84:87], s60 offen sc1\ns_sub_u32 s90, s90, 1\ns_waitcnt vmcnt(0)\ns_cmp_lg_u32 s90, 0\ns_cbranch_scc1 w19_p' % (V+22, V+23))
            a.label('w19_y')
        if k == opt.ut_at:
            a('v_lshlrev_b32 v%d, 4, v1\ns_lshl_b32 s60, s%d, 11\ns_mov_b32 m0, %d' % (V, c.s_nt, UTL2))
            a('buffer_load_dwordx4 v%d, s[16:19], s60 offen sc1 lds\nbuffer_load_dwordx4 v%d, s[16:19], s60 offen offset:1024 sc1 lds' % (V, V))
            a('v_and_b32 v%d, 15, v1\nv_lshlrev_b32 v%d, 4, v%d\nv_lshrrev_b32 v%d, 4, v1\nv_lshl_add_u32 v%d, v%d, 14, v%d' % (V, V, V, V+1, V+1, V+1, V))
            a('s_lshl_b32 s60, s%d, 2\ns_add_u32 s60, s60, s42\ns_sub_u32 s60, s60, 4\ns_lshl_b32 s60, s60, 8' % c.s_mt)
            for q in range(4):
                a('buffer_load_dwordx4 v[%d:%d], v%d, s[24:27], s60 offen sc1\ns_add_u32 s60, s60, 65536' % (V+4+4*q, V+7+4*q, V+1))
            vm.issue('st', 6)
    def bar_hook(a, c, vm, k):
        V = (c.p_vfree + 3)//4*4 + 48
        if k == 1 and not opt.umap:
            a('s_cmp_lg_u32 s42, 4\ns_cbranch_scc1 w1_nx\ns_lshl_b32 s95, s93, 4\ns_add_u32 s95, s95, s97\ns_lshl_b32 s95, s95, %d\ns_add_u32 s95, s95, %d\nv_mov_b32 v253, s3\ns_mov_b64 exec, 1' % (MS, 9*ROW))
            a('buffer_store_dword v253, v252, s[84:87], s95 offen sc1\ns_mov_b64 exec, -1')
            a.label('w1_nx')
        if k == 1:
            a('s_lshl_b32 s95, s%d, %d\ns_add_u32 s95, s95, %d\ns_lshl_b32 s94, s%d, %d\ns_add_u32 s95, s95, s94\nv_mov_b32 v253, s3' % (c.s_nt, MS+4, 4*ROW, c.s_mt, MS))
            a('s_sub_u32 s94, s42, 4\ns_lshl_b32 s94, s94, 9\nv_lshl_add_u32 v%d, v1, 2, s94\nv_add_u32 v%d, %d, v%d\ns_lshl_b32 s94, s%d, 11' % (V, V+1, UTL, V, c.s_nt))
            a('s_add_u32 s96, s92, 1\ns_sub_u32 s60, s42, 4\ns_lshl_b32 s60, s60, 5\ns_add_u32 s95, s95, s60')
        if 2 <= k <= 5:
            a('s_cmp_lg_u32 s92, %d\ns_cbranch_scc1 w1_np%d' % (k, k))
            a('ds_read_b32 v%d, v%d\nds_read_b32 v%d, v%d offset:256\ns_waitcnt lgkmcnt(0)' % (V+2, V+1, V+3, V+1))
            a('buffer_atomic_add_f32 v%d, v%d, s[16:19], s94 offen\nbuffer_atomic_add_f32 v%d, v%d, s[16:19], s94 offen offset:256' % (V+2, V, V+3, V))
            a.label('w1_np%d' % k)
        if 4 <= k <= 7:
            a('s_cmp_lg_u32 s96, %d\ns_cbranch_scc1 w1_ns%d\ns_mov_b64 exec, 1' % (k-1, k))
            a('buffer_store_dword v253, v252, s[84:87], s95 offen sc1\ns_mov_b64 exec, -1')
            a.label('w1_ns%d' % k)
    def ptail(a, c, vm):
        V = (c.p_vfree + 3)//4*4 + 24
        b = V+4
        vm.wait('st')
        for st_ in (8, 4):
            for e in range(0, st_, 2): a('v_pk_add_f32 %s, %s, %s' % (P2(b+e), P2(b+e), P2(b+e+st_)))
        xg_sum(a, [b, b+1, b+2, b+3], [b+4, b+5, b+6, b+7])
        a('v_mov_b32 v%d, 0x3a800000' % (b+8))
        for h in (0, 2):
            a('v_mul_f32 v%d, v%d, v%d\nv_mul_f32 v%d, v%d, v%d\nv_fma_f32 v%d, v%d, v%d, -v%d' % (b+5+h, b+h, b+8, b+4+h, b+5+h, b+5+h, b+4+h, b+1+h, b+8, b+4+h))
            a('v_max_f32 v%d, 0, v%d\nv_add_f32 v%d, 0x3727c5ac, v%d\nv_rsq_f32 v%d, v%d\nv_mul_f32 v%d, -v%d, v%d' % (b+4+h, b+4+h, b+4+h, b+4+h, b+4+h, b+4+h, b+5+h, b+5+h, b+4+h))
        a('s_sub_u32 s60, s42, 4\ns_lshl_b32 s60, s60, 8\ns_add_u32 s60, s60, %d\nv_add_u32 v%d, s60, v%d' % (RS, V, V))
        a('ds_write_b128 v%d, v[%d:%d]\ns_waitcnt lgkmcnt(0)' % (V, b+4, b+7))
        a('s_barrier')
    c.iter_hook, c.bar_hook = iter_hook, bar_hook
    st['w1_ptail'] = lambda a, vm: ptail(a, c, vm)
    def tail_issue(a, c, vm, early=False):
        V = c.p_vfree
        if opt.pf4 not in (1, 3): return
        srd(a, 28, 34, 0, 3584*2048)
        a('v_lshlrev_b32 v%d, 11, v%d\nv_lshl_add_u32 v%d, v%d, 7, v%d' % (V, c.p_vrow, V, c.p_vch, V))
        a('s_bfe_u32 s62, s2, 0x10002\ns_lshl_b32 s62, s62, 1\ns_and_b32 s63, s2, 1\ns_add_u32 s62, s62, s63\ns_mul_i32 s62, s62, 896\ns_lshr_b32 s61, s2, 3\ns_mul_i32 s61, s61, 28\ns_add_u32 s62, s62, s61')
        a('s_sub_u32 s61, s42, 4\ns_lshl_b32 s61, s61, 3\ns_add_u32 s62, s62, s61\ns_lshl_b32 s62, s62, 11\ns_bfe_u32 s63, s2, 0x10001\ns_lshl_b32 s63, s63, 10\ns_add_u32 s62, s62, s63')
        if opt.pf6: a('s_mov_b64 exec, 0x%x' % ((1 << opt.pf6) - 1) if early else 's_lshl_b64 exec, -1, %d' % opt.pf6)
        a('buffer_load_dword v251, v%d, s[28:31], s62 offen\ns_mov_b64 exec, -1' % V)
        vm.issue('pf')
    c.tail_issue = tail_issue
    c.unroll = True
    gemm.producer(P, c, None)
    if opt.ts and c.flags: P('v_writelane_b32 v255, s70, %d' % (24 + c.fbase//16))
    P('s_mov_b32 s93, s%d\ns_mov_b32 s97, s%d' % (c.s_mt, c.s_nt))
    st['vm_init'] = c.vm.ops[c.vm.done+1:]
    a = C
    tile_head(a, c, 8, 4, 448, [])
    srd(a, 24, 6, HF, 2048*7168)
    ACC = lambda j, i, r=0: (c.v_acc + (j*4+i)*4 + r) if j < 6 else (c.v_acc + 96 + ((j-6)*2+i)*4 + r)
    tau(a)
    def pre(a, c):
        a('s_lshl_b32 s58, s%d, 6\ns_add_u32 s58, s58, s%d' % (c.s_nh, c.s_col0))
        a('s_mul_i32 s59, s%d, 448\ns_sub_u32 s60, s58, s59\ns_sub_u32 s59, s%d, s59\ns_lshl_b32 s60, s60, 1\ns_lshl_b32 s59, s59, 1' % (c.s_nt, c.s_colh))
        a('s_add_u32 s61, s60, %d\nv_lshl_add_u32 v2, v1, 2, s61\ns_add_u32 s61, s59, %d\nv_lshl_add_u32 v3, v1, 2, s61' % (UTL, UTL))
        a('v_lshlrev_b32 v10, 4, v1\nv_add_u32 v10, %d, v10' % XE)
    nlab = [0]
    a('s_sub_u32 s64, s64, 1')
    c.hook_stages = 4
    c.drain1 = not opt.umap
    def step_hook(a, c, step, wr, xe):
        UA = c.v_free
        nlab[0] += 1
        a('s_cmp_lg_u32 s64, 0\ns_cbranch_scc1 w1_xs%d' % nlab[0])
        a('ds_read_b128 v[%d:%d], v10 offset:%d\ns_waitcnt lgkmcnt(0)' % (xe, xe+3, 1024*step))
        for j in range(8): a('v_mfma_f32_16x16x32_bf16 v[%d:%d], v[%d:%d], v[%d:%d], %s' % (UA+4*j, UA+4*j+3, xe, xe+3, wr(j), wr(j)+3, '0' if step == 0 else 'v[%d:%d]' % (UA+4*j, UA+4*j+3)))
        if step == 1:
            a('s_mov_b64 exec, 0xffff')
            for j in range(8):
                o = ((j//2)*128 + (j % 2)*32)*2 if j < 6 else (j-6)*64
                for e in range(2): a('ds_write_b32 v%d, v%d offset:%d' % (2 if j < 6 else 3, UA+4*j+e, o + 1024*e))
            a('s_mov_b64 exec, -1\ns_waitcnt lgkmcnt(0)')
        a.label('w1_xs%d' % nlab[0])
        if step == 1: a('s_sub_u32 s64, s64, 1')
    c.pre_hook, c.post_b0, c.pre_hook2, c.step_hook = pre, (lambda a, c: rt(a, 11)), (None if opt.prog5 else BAR), step_hook
    c.first_c = lambda c, j: '0'
    gemm.consumer(a, c)
    if c.stamps: gemm.dump_stamps(a, c)
    if opt.ts and c.flags: a('v_writelane_b32 v11, s70, %d' % (24 + c.fbase//16))
    rt(a, 12)
    UU = 12; TT = 44; RR = c.v_free; TM = RR + 8
    a('v_lshrrev_b32 v3, 4, v1\nv_lshlrev_b32 v3, 4, v3\ns_add_u32 s60, s60, %d\ns_add_u32 s59, s59, %d\nv_add_u32 v2, s60, v3\nv_add_u32 v3, s59, v3' % (UTL2, UTL2))
    a('v_and_b32 v5, 15, v1\nv_lshlrev_b32 v5, 3, v5\ns_lshl_b32 s60, s%d, 9\ns_add_u32 s60, s60, %d\ns_lshl_b32 s59, s%d, 8\ns_add_u32 s61, s60, s59\ns_sub_u32 s60, s60, s59\nv_add_u32 v6, s60, v5\nv_add_u32 v5, s61, v5' % (c.s_rh, RS, c.s_nh))
    a('s_barrier')
    rt(a, 31)
    for i in range(4): a('ds_read_b64 v[%d:%d], v%d offset:%d' % (RR+2*i, RR+2*i+1, 5 if i < 2 else 6, 128*i))
    for j in range(8):
        o = ((j//2)*128 + (j % 2)*32)*2 if j < 6 else (j-6)*64
        a('ds_read_b128 v[%d:%d], v%d offset:%d\nds_read_b128 v[%d:%d], v%d offset:%d' % (UU+4*j, UU+4*j+3, 2 if j < 6 else 3, o, TT+4*j, TT+4*j+3, 2 if j < 6 else 3, o+1024))
    a('v_lshlrev_b32 v4, 4, v1')
    a('s_lshl_b32 s60, s%d, 1\ns_add_u32 s60, s60, s%d\ns_mul_i32 s60, s60, %d' % (c.s_mt, c.s_rh, 4*112*1024))
    a('s_mul_i32 s59, s%d, %d' % (c.s_nh, 2*112*1024))
    a('s_lshl_b32 s61, s58, 4\ns_add_u32 s61, s61, s60')
    a('s_lshl_b32 s62, s%d, 4\ns_add_u32 s62, s62, s60\ns_add_u32 s62, s62, s59' % c.s_colh)
    a('s_add_u32 s61, s61, s59')
    PK = 76
    a('s_lshl_b32 s63, s%d, 13\ns_lshl_b32 s64, s%d, 10\ns_add_u32 s63, s63, s64\ns_lshl_b32 s64, s%d, 12\ns_add_u32 s65, s63, s64\ns_sub_u32 s63, s63, s64\ns_add_u32 s65, s65, 32768\ns_add_u32 s63, s63, 32768\nv_add_u32 v7, s65, v4\nv_add_u32 v8, s63, v4\nv_add_u32 v9, 0x10000, v7\nv_add_u32 v10, 0x10000, v8' % (c.s_rh, c.s_nh, c.s_nh))
    a('s_waitcnt lgkmcnt(0)')
    for i in range(4):
        nj = 8 if i < 2 else 6
        xs = [ACC(j, i, r) for j in range(nj) for r in range(4)]
        for b in range(0, 4*nj, 16):
            for k in range(b, min(b+16, 4*nj), 2): a('v_pk_fma_f32 %s, %s, %s, %s op_sel:[0,1,0] op_sel_hi:[1,1,1]' % (P2(TM+k-b), P2(UU+k), P2(RR+2*i), P2(TT+k)))
            for k in range(b, min(b+16, 4*nj), 2): a('v_pk_fma_f32 %s, %s, %s, %s op_sel_hi:[1,0,1]' % (P2(xs[k]), P2(xs[k]), P2(RR+2*i), P2(TM+k-b)))
        for x in xs: a('v_max_f32 v%d, 0, v%d' % (x, x))
        for x in xs[::2]: a('v_pk_mul_f32 v[%d:%d], v[%d:%d], v[%d:%d]' % (x, x+1, x, x+1, x, x+1))
        pk = PK + (i % 2)*16
        for k in range(2*nj): a('v_cvt_pk_bf16_f32 v%d, v%d, v%d' % (pk+k, xs[2*k], xs[2*k+1]))
        for p in range(3): a('ds_write_b128 v%d, v[%d:%d] offset:%d' % ((7 if i < 2 else 8) + (2 if p == 2 else 0), pk+4*p, pk+4*p+3, 32768*(p % 2) + 2048*i))
        for p in range(3):
            if p < 2: a('buffer_store_dwordx4 v[%d:%d], v4, s[24:27], s61 offen offset:%d' % (pk+4*p, pk+4*p+3, 2048*p))
            else:
                a('s_add_u32 s63, s61, 4096')
                a('buffer_store_dwordx4 v[%d:%d], v4, s[24:27], s63 offen' % (pk+4*p, pk+4*p+3))
        if i < 2:
            a('buffer_store_dwordx4 v[%d:%d], v4, s[24:27], s62 offen' % (pk+12, pk+15))
            a('s_add_u32 s62, s62, %d' % (112*1024))
        a('s_add_u32 s61, s61, %d' % (112*1024))
        if i == 1: a('s_lshl_b32 s59, s59, 1\ns_sub_u32 s61, s61, s59')
    rt(a, 13)
    a('s_waitcnt lgkmcnt(0)')
    rt(a, 14)
    return c

def ph_w2s(P, C, st):
    NO = opt.nown; NS = (56 - NO)//2
    c = gemm.config('w2', 64*(NS+NO), 128, 2, False, 64, opt.w2S, 2048, 0, xKG=112, panel_sreg=59, lead=opt.w2L, nown=NO, rpm_own=opt.rpm_own, slot0=1)
    assert NO == 6
    LOC = opt.loc
    A_ = gemm.order_table(28, 4, 'lead'); B_ = gemm.order_table(NO, 4, 'lead')
    tabs = []
    for j in range(4):
        for nt in range(16):
            cp, kh = nt & 7, nt >> 3
            loc = [(7*cp + (cp & 1))//2 + q for q in range(3)]
            O_ = [0, 1, 2] if cp == 7 else [25, 26, 27]
            own = O_ + [28 + x for x in O_]
            tabs.append([28*kh + x for x in loc + [x for x in A_[j] if x not in loc and x not in O_]] + [own[x] for x in B_[j]])
            assert len(tabs[-1]) == NS + NO
    c.tabs_override = tabs
    c.nloc, c.tabsel, c.st0 = 3, 38, 37
    if opt.xsc1: c.xflags = ' sc1'
    XT = 147456
    head = lambda a, ptrs: uhead(a, c, ptrs)
    head(P, [(4, P_W2), (32, P_B2)])
    P('s_mul_i32 s37, s38, 7\ns_and_b32 s36, s38, 1\ns_add_u32 s37, s37, s36\ns_lshr_b32 s37, s37, 1')
    P('s_and_b32 s58, s%d, 1\ns_mov_b32 s59, 128\ns_cmp_eq_u32 s58, 0\ns_cselect_b32 s59, s59, -128' % c.s_nt)
    srds = lambda a: [srd(a, *x) for x in [(8, 6, HF, 2048*7168), (12, 4, 0, 3584*2048)]]
    c.srd_hook = srds
    NPR = opt.prog
    def m6(a):
        a('s_lshr_b32 s60, s%d, 10\ns_mul_i32 s61, s60, 9363\ns_lshr_b32 s61, s61, 16\ns_lshl_b32 s61, 1, s61' % c.s_kx)
        a('s_add_u32 s60, s60, 1\ns_mul_i32 s60, s60, 9363\ns_lshr_b32 s60, s60, 16\ns_lshl_b32 s60, 1, s60\ns_or_b32 s60, s60, s61')
    need6 = lambda a, t: need(a, 'f6', t, m6 if t < 3 + NPR - 1 else None)
    c.sig_at = opt.sig_at
    c.boundary0 = lambda a, c, vm: psync(a, 'f6', 6, 93, 97, c.s_mt, part=0)
    def boundary(a, c, vm):
        a('s_mov_b32 s91, 0')
        need6(a, 3)
        rt(a, 13)
    c.pre_issue = lambda a, c, vm, t: need6(a, t) if t < 3 + NPR else None
    c.npeel = max(0, NPR - 3)
    c.boundary = boundary
    def early_issue(a, c, vm):
        st['w1_ptail'](a, vm)
        a('s_cmp_lg_u32 s42, 6\ns_cbranch_scc1 w2_ng')
        gates(a, c, [5], 32, 131072, 160)
        a.label('w2_ng')
        if not opt.umap:
            a('s_lshl_b32 s62, s%d, 4\ns_add_u32 s62, s62, s%d\ns_lshl_b32 s62, s62, %d\ns_add_u32 s62, s62, %d\nv_mov_b32 v243, 0' % (c.s_mt, c.s_nt, MS, 9*ROW))
            a('buffer_load_dword v242, v243, s[84:87], s62 offen sc1')
            vm.issue('fx')
    c.early_issue = early_issue
    if not opt.umap:
        def tail(a, c, vm):
            V = c.p_vfree
            vm.wait('fx')
            a('s_mov_b32 s90, 200000')
            a.label('fx_p')
            a('v_cmp_ne_u32 vcc, s3, v242\ns_cmp_eq_u64 vcc, 0\ns_cbranch_scc1 fx_y')
            a('buffer_load_dword v242, v243, s[84:87], s62 offen sc1\ns_sub_u32 s90, s90, 1\ns_waitcnt vmcnt(0)\ns_cmp_lg_u32 s90, 0\ns_cbranch_scc1 fx_p')
            a.label('fx_y')
            srd(a, 16, 6, X1, 0x400000)
            a('s_sub_u32 s59, s42, 4\ns_lshl_b32 s60, s%d, 2\ns_add_u32 s60, s60, s59\ns_lshl_b32 s60, s60, 16\ns_lshl_b32 s61, s%d, 11\ns_add_u32 s60, s60, s61\ns_add_u32 s61, s60, %d' % (c.s_mt, c.s_nt, 32768-2048))
            a('s_lshl_b32 s59, s59, 12\ns_add_u32 m0, s59, %d\nv_lshlrev_b32 v%d, 4, v1' % (XT, V))
            for i in range(4): a('buffer_load_dwordx4 v%d, s[16:19], s%d offen offset:%d sc1 lds' % (V, 60 + i//2, 1024*i))
            vm.issue('op', 4)
        c.tail_issue = tail; c.pre_last_bar = lambda a, c, vm: vm.wait('op')
    c.first_c = lambda c, j: '0'
    c.vm_init = st['vm_init']
    KS_, KP_ = NS + opt.own_sig, NS + NO - 1 - opt.own_ld
    def bar_hook(a, c, vm, k):
        if k == KS_:
            a('s_cmp_lg_u32 s42, 4\ns_cbranch_scc1 f8_ns\ns_lshl_b32 s88, s2, %d\ns_add_u32 s88, s88, %d\nv_mov_b32 v253, s3\ns_mov_b64 exec, 1' % (MS, FL8*ROW))
            rt(a, 18)
            a('buffer_store_dword v253, v252, s[84:87], s88 offen sc1\ns_mov_b64 exec, -1')
            a.label('f8_ns')
    def wait_hook(a, c, vm, k):
        if k == KP_ - 1:
            a('s_xor_b32 s89, s2, 4\ns_lshl_b32 s89, s89, %d\ns_add_u32 s89, s89, %d\ns_mov_b32 s90, 200000\nv_mov_b32 v241, 0' % (MS, FL8*ROW))
            a('buffer_load_dword v240, v241, s[84:87], s89 offen sc1')
            vm.issue('f8')
        if k == KP_:
            vm.wait('f8')
            a.label('f8_p')
            a('v_cmp_ne_u32 vcc, s3, v240\ns_cmp_eq_u64 vcc, 0\ns_cbranch_scc1 f8_y')
            a('buffer_load_dword v240, v241, s[84:87], s89 offen sc1\ns_sub_u32 s90, s90, 1\ns_waitcnt vmcnt(0)\ns_cmp_lg_u32 s90, 0\ns_cbranch_scc1 f8_p')
            a.label('f8_y')
            rt(a, 19)
    if NO: c.bar_hook, c.wait_hook = bar_hook, wait_hook
    gemm.producer(P, c, None)
    if opt.ts and c.flags: P('v_writelane_b32 v255, s70, %d' % (24 + c.fbase//16))
    if not NO:
        P('s_xor_b32 s60, s2, 32')
        psync(P, 'f8', FL8, 2, None, 60, n=1)
    a = C
    head(a, [(34, P_OUT)])
    a('s_waitcnt lgkmcnt(0)')
    srd(a, 28, 34, 0, 0x400000); srd(a, 24, 6, *(H2F, 0x400000) if opt.reuse else (XB, 0x800000))
    XR = lambda: c.v_free; GA = lambda: c.v_free + 16; XA = lambda: c.v_free + 32
    def pre(a, c):
        if not opt.umap:
            a('v_and_b32 v2, 15, v1\nv_lshlrev_b32 v2, 4, v2\nv_lshrrev_b32 v3, 5, v1\nv_lshl_add_u32 v2, v3, 8, v2\nv_bfe_u32 v3, v1, 4, 1\nv_lshl_add_u32 v2, v3, 3, v2')
            a('s_lshl_b32 s61, s%d, 13\ns_lshl_b32 s60, s%d, 10\ns_add_u32 s61, s61, s60\ns_add_u32 s61, s61, %d\nv_add_u32 v%d, s61, v2\nv_add_u32 v%d, 512, v%d' % (c.s_rh, c.s_nh, XT, XA(), XA()+1, XA()))
            return
        a('s_lshl_b32 s61, s%d, 2\nv_lshrrev_b32 v3, 5, v1\nv_add_u32 v3, s61, v3\nv_and_b32 v2, 7, v1\nv_xor_b32 v2, v2, v3\nv_lshlrev_b32 v2, 4, v2\nv_bfe_u32 v3, v1, 4, 1\nv_lshl_add_u32 v2, v3, 3, v2' % c.s_nh)
        a('v_and_b32 v3, 15, v1\nv_lshl_add_u32 v2, v3, 7, v2\ns_lshl_b32 s61, s%d, 13\ns_add_u32 s61, s61, %d\nv_add_u32 v%d, s61, v2\nv_xor_b32 v%d, 32, v%d' % (c.s_rh, XT, XA(), XA()+1, XA()))
    def rd(a, c):
        a('s_lshl_b32 s60, s%d, 7\ns_add_u32 s61, s60, 131072\nv_lshrrev_b32 v3, 4, v1\nv_lshl_add_u32 v3, v3, 4, s61' % c.s_nh)
        for q in range(2):
            for j in range(2): a('ds_read_b128 v[%d:%d], v3 offset:%d' % (GA()+8*q+4*j, GA()+8*q+4*j+3, 256*q + 64*j))
    def last_reads(c):
        return ['ds_read_b64 v[%d:%d], v%d offset:%d' % (XR()+4*i+2*j, XR()+4*i+2*j+1, XA()+j, 2048*i) for i in range(4) for j in range(2)]
    c.pre_hook, c.last_reads = pre, last_reads
    c.post_b0 = chain(lambda a, c: rt(a, 15), rd)
    def xstore(a, c):
        a('s_lshl_b32 s60, s2, 2\ns_add_u32 s60, s60, s%d\ns_lshl_b32 s60, s60, 13\ns_xor_b32 s61, s60, %d\nv_lshlrev_b32 v2, 4, v1' % (c.s_wave, 4*4*8192))
        for k in range(8):
            if k == 4: a('s_add_u32 s60, s60, 4096')
            a('buffer_store_dwordx4 v[%d:%d], v2, s[24:27], s60 offen offset:%d' % (c.v_acc+32+4*k, c.v_acc+35+4*k, 1024*(k % 4)))
    def xload(a, c, dst):
        for i in range(4):
            for j in range(2):
                k = j*4 + i
                a('s_add_u32 s63, s61, %d' % (1024*k))
                a('buffer_load_dwordx4 v[%d:%d], v2, s[24:27], s63 offen sc1' % (dst+4*k, dst+4*k+3))
    def own_hook(a, c, q, where):
        if q == 0 and where == 0 and opt.reuse:
            assert opt.xbf
            a('s_lshl_b32 s60, s%d, 4\ns_add_u32 s60, s60, s38\ns_lshl_b32 s60, s60, 2\ns_add_u32 s60, s60, s42\ns_lshl_b32 s60, s60, 12\ns_xor_b32 s62, s60, 0x20000\nv_lshlrev_b32 v2, 4, v1' % c.s_mt)
        elif q == 0 and where == 0:
            a('s_lshl_b32 s60, s2, 2\ns_add_u32 s60, s60, s%d\ns_lshl_b32 s60, s60, 13\ns_xor_b32 s62, s60, %d\ns_add_u32 s61, s60, 4096\ns_add_u32 s63, s62, 4096\nv_lshlrev_b32 v2, 4, v1' % (c.s_wave, 4*4*8192))
        if NS + q + 1 == KS_ and where == 1: a('s_waitcnt vmcnt(0)')
    XP = 176
    def own_extra(c, q, st):
        n = q*2 + st
        if opt.xbf:
            if n < 4:
                return ['v_cvt_pk_bf16_f32 v%d, v%d, v%d' % (XP+4*n+2*j+e, c.v_acc+32+(j*4+n)*4+2*e, c.v_acc+33+(j*4+n)*4+2*e) for j in range(2) for e in range(2)] + \
                       ['buffer_store_dwordx4 v[%d:%d], v2, s[24:27], s60 offen offset:%d' % (XP+4*n, XP+4*n+3, 1024*n)]
            n -= 2*(KP_ - NS) - 1
            per = -(-4 // (2*(NS + NO - KP_) + 1))
            ks = list(range(4))[per*n:per*n+per] if n >= 0 else []
            return ['buffer_load_dwordx4 v[%d:%d], v2, s[24:27], s62 offen offset:%d sc1' % (XP+4*k, XP+4*k+3, 1024*k) for k in ks]
        if n < 4: return ['buffer_store_dwordx4 v[%d:%d], v2, s[24:27], s%d offen offset:%d' % (c.v_acc+32+4*k, c.v_acc+35+4*k, 60 + k//4, 1024*(k % 4)) for k in (2*n, 2*n+1)]
        n -= 2*(KP_ - NS) - 1
        per = -(-8 // (2*(NS + NO - KP_) + 1))
        ks = [j*4 + i for i in range(4) for j in range(2)][per*n:per*n+per] if n >= 0 else []
        return ['buffer_load_dwordx4 v[%d:%d], v2, s[24:27], s%d offen offset:%d sc1' % (c.v_acc+32+4*k, c.v_acc+35+4*k, 62 + k//4, 1024*(k % 4)) for k in ks]
    c.own_extra = own_extra
    c.own_hook = own_hook
    gemm.consumer(a, c)
    if c.stamps: gemm.dump_stamps(a, c)
    rt(a, 16)
    ACC = lambda j, i, r=0: c.v_acc + (j*4+i)*4 + r
    if not NO: xstore(a, c)
    U = 12; PK = 44; RB = 48 + 16
    a('s_waitcnt lgkmcnt(0)')
    for i in range(4):
        for j in range(2):
            for e in range(2): unpack(a, U+8*i+4*j+2*e, U+8*i+4*j+2*e+1, XR()+4*i+2*j+e)
            for r in (0, 2): a('v_pk_add_f32 %s, %s, %s' % (P2(U+8*i+4*j+r), P2(U+8*i+4*j+r), P2(GA()+8+4*j+r)))
            for r in (0, 2): a('v_pk_fma_f32 %s, %s, %s, %s' % (P2(U+8*i+4*j+r), P2(ACC(j,i,r)), P2(GA()+4*j+r), P2(U+8*i+4*j+r)))
    a('v_and_b32 v2, 15, v1\nv_lshlrev_b32 v2, 11, v2\nv_bfe_u32 v3, v1, 4, 1\nv_lshl_add_u32 v2, v3, 5, v2\nv_lshrrev_b32 v3, 5, v1\nv_lshl_add_u32 v2, v3, 4, v2')
    a('s_lshl_b32 s62, s%d, 1\ns_add_u32 s62, s62, s%d\ns_lshl_b32 s62, s62, 17\ns_lshl_b32 s63, s%d, 1\ns_add_u32 s63, s63, s%d\ns_lshl_b32 s63, s63, 6\ns_add_u32 s62, s62, s63' % (c.s_mt, c.s_rh, c.s_nt, c.s_nh))
    if opt.fullout:
        a('v_bfe_u32 v5, v1, 4, 1\nv_lshlrev_b32 v5, 1, v5\nv_lshrrev_b32 v6, 5, v1\nv_add_u32 v5, v5, v6\ns_lshl_b32 s63, s%d, 2\nv_add_u32 v5, s63, v5\nv_and_b32 v6, 7, v1\nv_xor_b32 v5, v5, v6\nv_lshlrev_b32 v5, 4, v5' % c.s_nh)
        a('v_and_b32 v7, 15, v1\nv_lshl_add_u32 v5, v7, 7, v5\ns_lshl_b32 s63, s%d, 13\nv_add_u32 v5, s63, v5' % c.s_rh)
        a('v_lshrrev_b32 v7, 3, v1\nv_xor_b32 v8, v6, v7\nv_lshlrev_b32 v8, 4, v8\nv_lshl_add_u32 v8, v7, 7, v8\nv_lshlrev_b32 v7, 11, v7\nv_lshl_add_u32 v7, v6, 4, v7\ns_lshl_b32 s63, s42, 12\nv_add_u32 v6, s63, v8')
        a('s_lshl_b32 s62, s%d, 2\ns_add_u32 s62, s62, s42\ns_lshl_b32 s62, s62, 16\ns_lshl_b32 s63, s%d, 7\ns_add_u32 s62, s62, s63' % (c.s_mt, c.s_nt))
    v2s = a.lines;
    if not NO:
        a('s_waitcnt vmcnt(0)\ns_barrier\ns_barrier')
        a('v_lshlrev_b32 v4, 4, v1')
        xl = Asm(); xload(xl, c, c.v_acc+32); a.lines += [l.replace(', v2,', ', v4,') for l in xl.lines]
    ACC = lambda j, i, r=0: c.v_acc + 32 + (j*4+i)*4 + r
    for i in range(4):
        if opt.xbf:
            a('s_waitcnt vmcnt(3)')
            for j in range(2):
                for e in range(2): unpack(a, ACC(j,i,2*e), ACC(j,i,2*e+1), XP+4*i+2*j+e)
        else: a('s_waitcnt vmcnt(%d)' % (6 - 2*i + (0 if opt.fullout else i)))
        for j in range(2):
            for r in (0, 2): a('v_pk_fma_f32 %s, %s, %s, %s' % (P2(U+8*i+4*j+r), P2(ACC(j,i,r)), P2(GA()+4*j+r), P2(U+8*i+4*j+r)))
            for e in range(2): a('v_cvt_pk_bf16_f32 v%d, v%d, v%d' % (PK+4*i+2*j+e, U+8*i+4*j+2*e, U+8*i+4*j+2*e+1))
        for e in range(2): a('v_permlane16_swap_b32 v%d, v%d' % (PK+4*i+e, PK+4*i+2+e))
        if opt.fullout: a('ds_write_b128 v5, v[%d:%d] offset:%d' % (PK+4*i, PK+4*i+3, 2048*i))
        else:
            a('buffer_store_dwordx4 v[%d:%d], v2, s[28:31], s62 offen' % (PK+4*i, PK+4*i+3))
            a('s_add_u32 s62, s62, 32768')
    if opt.fullout:
        a('s_waitcnt lgkmcnt(0)\ns_barrier')
        for i in range(4): a('ds_read_b128 v[%d:%d], v6 offset:%d' % (PK+4*i, PK+4*i+3, 1024*i))
        for i in range(4):
            a('s_waitcnt lgkmcnt(%d)' % (3-i))
            a('buffer_store_dwordx4 v[%d:%d], v7, s[28:31], s62 offen' % (PK+4*i, PK+4*i+3))
            a('s_add_u32 s62, s62, 16384')
    return c

HEADER = '''; One persistent kernel, 256 workgroups x 8 waves (one per CU). Waves 0-3 run the MFMA loops and epilogues,
; Workgroups hand data over through write-through stores and flag words in d_ws; a flag holds a value derived from one
; d_ws word read on entry, only to tell this launch's hand-offs from older ones. All waits are bounded.
'''
def build(path, **kw):
    for k, v in kw.items(): setattr(opt, k, v)
    a = Asm()
    n = KNAME
    OUT.lines = []
    a.kernel_begin(n)
    a('s_cmp_ge_u32 s2, 256\ns_cbranch_scc1 mega_end')
    a('v_lshrrev_b32 v2, 6, v0\nv_and_b32 v1, 63, v0\nv_readfirstlane_b32 s42, v2')
    a('s_cmp_lt_u32 s42, 4\ns_cbranch_scc1 mega_cons')
    P = Asm(); C = Asm(); st = {}; C.cons = True
    rt(C, 0)
    cs = [f(P, C, st) for f in (ph_qkv, ph_wo, ph_w1, ph_w2s)]
    a.lines += P.lines
    if opt.ts:
        a('s_cmp_lg_u32 s42, 5\ns_cbranch_scc1 mega_end')
        srd(a, 88, 6, TS + 0x10000, 0x10000)
        a('s_lshl_b32 s92, s2, 8\nv_lshlrev_b32 v2, 2, v1\nbuffer_store_dword v255, v2, s[88:91], s92 offen')
    a('s_endpgm')
    a.label('mega_cons')
    a.lines += C.lines
    if opt.ts:
        a('s_waitcnt vmcnt(0)')
        a.cons = True
        rt(a, 17)
        a('s_cmp_lg_u32 s42, 0\ns_cbranch_scc1 mega_end')
        srd(a, 88, 6, TS, 0x10000)
        a('s_lshl_b32 s92, s2, 8\nv_lshlrev_b32 v2, 2, v1\nbuffer_store_dword v11, v2, s[88:91], s92 offen')
    a.label('mega_end')
    a('s_endpgm')
    a.lines += OUT.lines
    for c in cs: gemm.table(a, c)
    a.label('code_end')
    a('s_endpgm')
    a.kernel_end(n, 256, 102, 256, 256, 512, 163840)
    a.lines = [l + opt.sflags if ('buffer_store_dwordx' in l) else l for l in a.lines]
    if opt.plain: a.launches = ['; @launch grid=(256,1,1) block=(512,1,1) lds=163840']
    hdr = ''
    if opt.plain:
        ref = open('cdna_kernels/%s.s.ref' % KNAME[:-7]).read().split('\n')
        hdr = '\n'.join(l for l in ref if l.startswith(';') and '@launch' not in l) + '\n' + HEADER
    open(path, 'w').write(a.text(header=hdr, verbose=kw.get('verbose', False)))

KNAME = 'adaLN_cond__linear_kernel_hedgehog__dense_activation_squared_relu__prompt_kernel'
opt.plain = False; opt.prog1 = 0; opt.prog3 = 5; opt.prog5 = 0; opt.reuse = False; opt.pf6 = 24; opt.prog = 10; opt.wo_order = 'lead'; opt.umap = False; opt.sig_at = 1; opt.wo_G = 4; opt.loc = 3; opt.midpos = 3; opt.pfo = 0; opt.xbf = True; opt.rpm_own = 1; opt.nown = 6; opt.own_sig = 3; opt.own_ld = 0; opt.noexec = False; opt.fsplit = 2; opt.flags = (); opt.woBK = 128; opt.woS = 3; opt.cpflate = True; opt.esync = False; opt.w1late = (); opt.cunroll = 1; opt.mbb = 2; opt.ut_at = 13; opt.glate = True; opt.td0 = 1; opt.td1 = 0; opt.pf5 = 10; opt.fullout = False; opt.earlym = False; opt.warm = True; opt.xsc1 = True; opt.unroll = True; opt.pollgap = 0; opt.wlate = 7; opt.st_at = 5; opt.pf3 = 0; opt.spf4 = 0; opt.spf2 = 0; opt.pre4 = True; opt.pf4 = 1; opt.w2s = True; opt.w2S = 4; opt.w2L = 3; opt.spoll = False; opt.satom = False; opt.gvflags = ' nt'; opt.eprio = 0; opt.pf2 = 1
if __name__ == '__main__':
    kw = eval('dict(%s)' % (sys.argv[2] if len(sys.argv) > 2 else ''))
    build(sys.argv[1], **kw)
```

```python
from asmgen import Asm

class G:
    pass

def gemm_prologue(a, c):
    a('v_lshrrev_b32 v2, 6, v0')
    a('v_and_b32 v1, 63, v0')
    a('v_readfirstlane_b32 s%d, v2' % c.s_wave)

def panel_cols(a, c):
    pass

def stamp(a, c, k, bump=False):
    if not c.stamps: return
    a('s_memtime s[70:71]')
    a('s_mov_b32 s73, m0')
    a('s_mov_b32 m0, s72')
    a('s_waitcnt lgkmcnt(0)')
    a('v_writelane_b32 v%d, s70, m0' % (248+k))
    a('s_mov_b32 m0, s73')
    if bump: a('s_add_u32 s72, s72, 1')

def order_table(nst, G, mode):
    tabs = []
    for j in range(G):
        if mode == 'seq':
            o = list(range(nst))
        elif mode == 'lead':
            own = {j} | {t+G-1 for t in range(1, nst) if t % G == j and t+G-1 < nst}
            rest = [x for x in range(nst) if x not in own]
            o = []
            for t in range(nst):
                if t == 0: o.append(j)
                elif t % G == j and t+G-1 < nst: o.append(t+G-1)
                else: o.append(rest.pop(0))
        elif mode == 'lead0':
            sub = order_table(nst-1, G, 'lead')[j]
            o = [0] + [x+1 for x in sub]
        elif mode == 'win':
            o = [(t//G)*G + (t+j) % G for t in range(nst)]
        assert sorted(o) == list(range(nst)), o
        tabs.append(o)
    return tabs

def mark(a, c, i):
    if not c.stamps: return
    a('s_memtime s[70:71]')
    a('s_waitcnt lgkmcnt(0)')
    a('v_writelane_b32 v251, s70, %d' % (32+i))

def dump_stamps(a, c):
    a('v_writelane_b32 v251, s94, 63')
    a('s_add_u32 s76, s6, 0x3900000\ns_addc_u32 s77, s7, 0\ns_mov_b32 s78, 0x200000\ns_mov_b32 s79, 0x20000')
    a('s_lshl_b32 s73, s2, 3\ns_add_u32 s73, s73, s%d\ns_lshl_b32 s73, s73, 10' % c.s_wave)
    a('v_lshlrev_b32 v247, 2, v1')
    for k in range(4): a('buffer_store_dword v%d, v247, s[76:79], s73 offen offset:%d' % (248+k, 256*k))
    a('s_waitcnt vmcnt(0)')

def producer(a, c, lbl_after):
    BK, S = c.BK, c.S
    nsub = BK // 32
    KG = c.xKG or c.K // 32
    nst = c.K // BK
    sp = c.s_tmp
    tabs = order_table(nst, c.G, c.order)
    if c.mirror: tabs = tabs + [[(x + nst//2) % nst for x in o] for o in tabs]
    if c.tabs_override: tabs = c.tabs_override
    if c.own0: tabs = [[f] + [x for x in o if x != f] for o in tabs for f in range(nst)]
    c.tabs = tabs
    a('s_sub_u32 s%d, s%d, 4' % (sp, c.s_wave))
    a('s_getpc_b64 s[%d:%d]' % (c.s_tab, c.s_tab+1))
    a.label(c.name + '_pc')
    a('s_add_u32 s%d, s%d, %s_tab-%s_pc' % (c.s_tab, c.s_tab, c.name, c.name))
    a('s_addc_u32 s%d, s%d, 0' % (c.s_tab+1, c.s_tab+1))
    vT = 2; vKX = 3; vKW = 4
    a('s_lshl_b32 s%d, s%d, 6' % (sp+1, c.s_rot))
    if c.nloc:
        a('s_lshl_b32 s%d, s%d, 4\ns_add_u32 s%d, s%d, s%d\ns_lshl_b32 s%d, s%d, 5\ns_mov_b32 s%d, s%d' % (sp+1, c.s_rot, sp+1, sp+1, c.tabsel, sp+1, sp+1, c.s_rot, c.st0))
    if c.own0:
        a('s_lshl_b32 s%d, s%d, 4\ns_add_u32 s%d, s%d, s%d\ns_lshl_b32 s%d, s%d, 4\ns_mov_b32 s%d, s%d' % (sp+1, c.s_rot, sp+1, sp+1, c.own0, sp+1, sp+1, c.s_rot, c.own0))
    if c.mirror:
        a('s_lshl_b32 s%d, s%d, 8\ns_add_u32 s%d, s%d, s%d' % (sp+2, c.mirror, sp+1, sp+1, sp+2))
        a('s_mul_i32 s%d, s%d, %d\ns_add_u32 s%d, s%d, s%d' % (sp+2, c.mirror, c.mirror_off or nst//2, c.s_rot, c.s_rot, sp+2))
    a('v_add_u32 v%d, s%d, v1' % (vT, sp+1))
    a('global_load_ubyte v%d, v%d, s[%d:%d]' % (vKX, vT, c.s_tab, c.s_tab+1))
    v = 5
    groups = []
    mbw = c.BM // 16 // 4
    a('s_mul_i32 s%d, s%d, %d' % (sp+1, c.s_mt, c.BM // 16))
    a('s_mul_i32 s%d, s%d, %d' % (sp+2, sp, mbw))
    a('s_add_u32 s%d, s%d, s%d' % (sp+1, sp+1, sp+2))
    a('s_mul_i32 s%d, s%d, %d' % (sp+1, sp+1, KG*1024))
    a('v_lshl_add_u32 v%d, v1, 4, s%d' % (v, sp+1)); vx0 = v; v += 1
    xl = []
    for i in range(mbw):
        for kg in range(nsub): xl.append((i, kg))
    a('s_mul_i32 s%d, s%d, %d' % (c.s_px, sp, mbw*nsub*1024))
    vregs = {}
    for b in range(0, len(xl), 4):
        ins = []
        for q, (i, kg) in enumerate(xl[b:b+4]):
            const = i*KG*1024 + kg*1024 - q*1024
            assert const >= 0
            if const not in vregs:
                if const == 0: vregs[const] = vx0
                else:
                    a('v_add_u32 v%d, %d, v%d' % (v, const, vx0)); vregs[const] = v; v += 1
            ins.append((vregs[const], q*1024))
        groups.append((c.sX, c.s_kx, c.s_px, b*1024, ins))
    rpw = BK // 4; ipw = rpw // 8
    vrow = v; vt = v+1; vw0 = v+2; vch = v+3; v += 4
    c.p_vrow, c.p_vch = vrow, vch
    a('v_lshrrev_b32 v%d, 3, v1' % vrow)
    a('v_and_b32 v%d, 7, v1' % vch)
    a('v_and_b32 v%d, %d, v%d' % (vt, 2 if c.natw else 6, vrow))
    a('v_xor_b32 v%d, v%d, v%d' % (vw0, vch, vt))
    a('v_mul_u32_u24 v%d, %d, v%d' % (vt, c.ldw, vrow))
    a('s_mul_i32 s%d, s%d, %d' % (sp+1, sp, rpw*c.ldw))
    a('s_add_u32 s%d, s%d, s%d' % (sp+2, sp+1, c.s_col0))
    a('v_add_u32 v%d, s%d, v%d' % (vt, sp+2, vt))
    vw1 = vw0
    if c.natw:
        vw1 = v; v += 1
        a('v_xor_b32 v%d, 4, v%d' % (vw1, vw0))
        a('v_lshl_add_u32 v%d, v%d, 4, v%d' % (vw1, vw1, vt))
    a('v_lshl_add_u32 v%d, v%d, 4, v%d' % (vw0, vw0, vt))
    a('s_mul_i32 s%d, s%d, %d' % (c.s_pw, sp, ipw*1024))
    a('s_add_u32 s%d, s%d, %d' % (c.s_pw, c.s_pw, c.xbytes))
    for q in range(c.nfull):
        ins = []
        for h in range(ipw):
            const = q*c.panel_stride + h*8*c.ldw - h*1024
            if const == 0 and q == 0: ins.append((vw0, 0))
            else:
                a('v_add_u32 v%d, %d, v%d' % (v, const, vw1 if h % 2 else vw0)); ins.append((v, h*1024)); v += 1
                if q and c.panel_sreg: a('v_add_u32 v%d, s%d, v%d' % (v-1, c.panel_sreg, v-1))
        groups.append((c.sW, c.s_kw, c.s_pw, q*BK*128, ins))
    if c.half:
        nh = BK // 64
        vh0 = v; vr2 = v+1; v += 2
        a('v_lshrrev_b32 v%d, 2, v1' % vr2)
        a('v_lshrrev_b32 v%d, %d, v1' % (vt, 4 if c.natw else 3))
        a('v_and_b32 v%d, 2, v%d' % (vt, vt))
        a('v_and_b32 v%d, 3, v1' % vh0)
        a('v_xor_b32 v%d, v%d, v%d' % (vh0, vh0, vt))
        a('v_mul_u32_u24 v%d, %d, v%d' % (vr2, c.ldw, vr2))
        a('v_lshl_add_u32 v%d, v%d, 4, v%d' % (vh0, vh0, vr2))
        a('s_add_u32 s%d, s%d, s%d' % (sp+2, sp+1, c.s_colh))
        a('v_add_u32 v%d, s%d, v%d' % (vh0, sp+2, vh0))
        ins = [(vh0, 0)]
        for h in range(1, nh):
            a('v_add_u32 v%d, %d, v%d' % (v, h*16*c.ldw - h*1024, vh0)); ins.append((v, h*1024)); v += 1
        a('s_mul_i32 s%d, s%d, %d' % (c.s_ph, sp, nh*1024))
        a('s_add_u32 s%d, s%d, %d' % (c.s_ph, c.s_ph, c.xbytes + c.nfull*BK*128))
        groups.append((c.sW, c.s_kw, c.s_ph, 0, ins))
    n = sum(len(g[4]) for g in groups)
    c.n_dma = n
    if c.order in ('seq', 'lead0'):
        a('s_mov_b32 s%d, 0\ns_mov_b32 s%d, 0' % (c.s_kx, c.s_kw))
    else:
        a('s_mul_i32 s%d, s%d, %d' % (c.s_kx, c.s_rot, nsub*1024))
        a('s_mul_i32 s%d, s%d, %d' % (c.s_kw, c.s_rot, BK*c.ldw))
    s_t = c.s_rh
    a('s_mov_b32 s%d, 1' % s_t)
    a('s_waitcnt lgkmcnt(0)')
    c.srd_hook(a)
    vm = VM(a)
    vm.ops = list(c.vm_init)
    c.vm = vm
    nxg = sum(1 for g in groups if g[0] == c.sX)
    def issue(st, slot_const=None, fetch_next=True, part=None):
        gs = {None: groups, 0: groups[:c.psplit], 1: groups[c.psplit:], 'w': groups[nxg:], 'x': groups[:nxg], 'xb': groups[c.psplit:nxg], 'xb0': groups[:nxg], 'fa': groups[:c.fsplit], 'fb': groups[c.fsplit:]}[part]
        if st >= nst - c.nown: gs = [g for g in gs if g is not groups[-1]]
        for (srd, so, base, lc, ins) in gs:
            if slot_const is None:
                a('s_add_u32 s%d, s%d, s%d' % (sp, base, c.s_slot))
                if lc: a('s_add_u32 m0, s%d, %d' % (sp, lc))
                else: a('s_mov_b32 m0, s%d' % sp)
            else:
                a('s_add_u32 m0, s%d, %d' % (base, lc + slot_const))
            for (vr, io) in ins:
                if not c.no_dma:
                    a('buffer_load_dwordx4 v%d, s[%d:%d], s%d offen%s%s lds' % (vr, srd, srd+3, so, ' offset:%d' % io if io else '', c.xflags if srd == c.sX else c.dma_flags))
                vm.issue(st)
        if part in (0, 'w', 'x', 'fa'): return
        if fetch_next:
            a('v_readlane_b32 s%d, v%d, s%d' % (c.s_kx, vKX, s_t))
            a('v_readlane_b32 s%d, v%d, s%d' % (c.s_kw, vKW, s_t))
            a('s_add_u32 s%d, s%d, 1' % (s_t, s_t))
        if slot_const is None:
            a('s_add_u32 s%d, s%d, %d' % (c.s_slot, c.s_slot, c.slot))
            a('s_cmp_ge_u32 s%d, %d' % (c.s_slot, c.slot*S))
            a('s_cselect_b32 s%d, 0, s%d' % (c.s_slot, c.s_slot))
    c.p_vfree = v
    if c.stamps: a('s_mov_b32 s72, 0')
    stamp(a, c, 3)
    vm.issue('tab')
    SL = lambda st: ((st + c.slot0) % S) * c.slot
    L = c.lead
    def tabmul():
        vm.wait('tab')
        a('v_mul_u32_u24 v%d, %d, v%d' % (vKW, BK*c.ldw, vKX))
        a('v_mul_u32_u24 v%d, %d, v%d' % (vKX, nsub*1024, vKX))
        a('v_readlane_b32 s%d, v%d, 1' % (c.s_kw, vKW))
        a('s_mov_b32 s%d, 2' % s_t)
    if c.nloc:
        assert c.nloc == 3 and L == 3
        issue(0, SL(0), part='w')
        tabmul()
        if c.early_first: c.early_first(a, c, vm)
        issue(1, SL(1), part='w')
        a('v_readlane_b32 s%d, v%d, 2\ns_nop 4' % (c.s_kw, vKW))
        issue(2, SL(2), part='w')
        if c.early_issue: c.early_issue(a, c, vm)
        a('v_readlane_b32 s%d, v%d, 3\nv_readlane_b32 s%d, v%d, 3\ns_mov_b32 s%d, 4' % (c.s_kw, vKW, c.s_kx, vKX, s_t))
        vm.wait(0)
        a('s_barrier')
        vm.wait(1)
        if c.sig_at == 1:
            c.boundary0(a, c, vm)
            issue(3, SL(3), part='w')
            vm.wait(2)
            a('s_barrier')
        else:
            a('s_barrier')
            issue(3, SL(3), part='w')
            vm.wait(2)
            c.boundary0(a, c, vm)
        c.boundary(a, c, vm)
        issue(3, SL(3), part='xb0')
        for t in (4, 5):
            if c.pre_issue: c.pre_issue(a, c, vm, t)
            issue(t, SL(t))
    elif c.own0:
        issue(0, SL(0), part='w')
        if c.early_issue: c.early_issue(a, c, vm)
        tabmul()
        vm.wait(0)
        a('s_barrier')
        c.boundary0(a, c, vm)
        issue(1, SL(1), part='w')
        c.boundary(a, c, vm)
        a('v_readlane_b32 s%d, v%d, 1' % (c.s_kx, vKX))
        issue(1, SL(1), part='xb0')
    elif c.boundary is None:
        issue(0, SL(0), False)
        if c.early_issue: c.early_issue(a, c, vm)
        tabmul()
        a('v_readlane_b32 s%d, v%d, 1' % (c.s_kx, vKX))
        issue(1, SL(1), part=0)
    else:
        if c.boundary0: c.boundary0(a, c, vm)
        issue(0, SL(0), part='w')
        tabmul()
        if not c.w1late: issue(1, SL(1), part='w')
        a('v_readlane_b32 s37, v%d, 1\ns_lshr_b32 s36, s%d, %d\ns_lshr_b32 s37, s37, %d' % (vKX, c.s_kx, (nsub*1024).bit_length()-1, (nsub*1024).bit_length()-1))
        c.boundary(a, c, vm)
        issue(0, SL(0), part='x')
        if c.early_issue: c.early_issue(a, c, vm)
        a('v_readlane_b32 s%d, v%d, 1' % (c.s_kx, vKX))
        if c.pre_issue: c.pre_issue(a, c, vm, 1)
        issue(1, SL(1), part=0)
    if not (c.own0 or c.nloc):
        stamp(a, c, 0)
        vm.wait(0)
        if c.pre_b0: c.pre_b0(a, c, vm)
        stamp(a, c, 1)
        a('s_barrier')
        stamp(a, c, 2, True)
        issue(1, SL(1), part=1 if (c.boundary is None or c.w1late) else 'xb')
    if c.post_b0p: c.post_b0p(a, c, vm)
    if c.loop_init: c.loop_init(a, c)
    if c.flags:
        assert L == S - 1
        vFa, vFv, vFd = 244, 245, 246
        s_need = c.s_nh
        a('s_add_u32 s%d, s%d, %d\nv_mov_b32 v%d, s%d\nv_and_b32 v243, 3, v1\nv_add_u32 v243, %d, v243\nv_mov_b32 v%d, %d' % (sp, c.s_wave, c.SY-4, vFa, sp, c.SY, vFv, c.fbase+1))
        cnt = [0]
        def signal():
            a('v_add_u32 v%d, 1, v%d\ns_mov_b64 exec, 15\nds_write_b8 v%d, v%d\nds_read_u8 v%d, v243 offset:4\ns_mov_b64 exec, -1' % (vFv, vFv, vFa, vFv, vFd))
        def fit(t, const):
            k = t - L
            cnt[0] += 1
            lab = '%s_f%d' % (c.name, cnt[0])
            if t >= S:
                a('s_waitcnt lgkmcnt(0)\nv_cmp_gt_u32 vcc, s%d, v%d\ns_and_b32 s71, vcc_lo, 15\ns_cbranch_scc0 %s' % (s_need, vFd, lab))
                a('s_waitcnt vmcnt(%d)\nv_add_u32 v%d, 1, v%d\nds_write_b8 v%d, v%d' % (vm.count(t-1), vFd, vFv, vFa, vFd))
                a.label(lab + 's')
                a('s_sleep 1\ns_sub_u32 s70, s70, 1\ns_cbranch_scc1 %s' % lab)
                a('ds_read_u8 v%d, v243 offset:4\ns_waitcnt lgkmcnt(0)\nv_cmp_gt_u32 vcc, s%d, v%d\ns_cmp_lg_u64 vcc, 0\ns_cbranch_scc1 %ss' % (vFd, s_need, vFd, lab))
                a.label(lab)
                a('s_add_u32 s%d, s%d, 1' % (s_need, s_need))
            if const and c.bar_hook and k >= 1: c.bar_hook(a, c, vm, k)
            issue(t, SL(t) if const else None, part='fa')
            vm.wait(t-1)
            signal()
            issue(t, SL(t) if const else None, fetch_next=(t+1 < nst), part='fb')
            if const and c.iter_hook and k >= 1: c.iter_hook(a, c, vm, k)
        a('s_mov_b32 s%d, %d\ns_mov_b32 s70, 0x100000' % (s_need, c.fbase+1))
        for t in range(2, S): fit(t, True)
        if c.unroll:
            for t in range(S, nst): fit(t, True)
        else:
            a('s_mov_b32 s%d, %d\ns_mov_b32 s%d, %d' % (c.s_slot, SL(S), c.s_cnt, nst-S-1))
            a.label(c.name + '_ploop')
            fit(S, False)
            body = vm.log[-1]
            a('s_sub_u32 s%d, s%d, 1\ns_cmp_lg_u32 s%d, 0\ns_cbranch_scc1 %s_ploop' % (c.s_cnt, c.s_cnt, c.s_cnt, c.name))
            keep = a.lines
            for t in range(S+1, nst-1):
                a.lines = []; fit(t, False); assert vm.log[-1] == body
            a.lines = keep
            fit(nst-1, False)
        if c.tail_issue: c.tail_issue(a, c, vm)
        vm.wait(nst-1)
        if c.pre_last_bar: c.pre_last_bar(a, c, vm)
        a('s_waitcnt lgkmcnt(0)\ns_barrier')
        if c.ptail: c.ptail(a, c, vm)
        if lbl_after: a('s_branch %s' % lbl_after)
        return
    for st in range(2, L+1):
        if c.nloc: break
        if c.loop_extra: c.loop_extra(a, c, vm)
        if c.pre_issue: c.pre_issue(a, c, vm, st)
        issue(st, SL(st))
    a('s_mov_b32 s%d, %d' % (c.s_slot, SL(L+1 if not c.nloc else 6)))
    nsteady = nst - 2 - L - c.nown - (1 if c.nown else 0)
    def it(k, const=False):
        stamp(a, c, 0)
        vm.wait(k)
        if k == nst-1 and c.pre_last_bar: c.pre_last_bar(a, c, vm)
        if k == 1 and c.pre_b1: c.pre_b1(a, c, vm)
        if const and c.wait_hook: c.wait_hook(a, c, vm, k)
        stamp(a, c, 1)
        a('s_barrier')
        stamp(a, c, 2, True)
        if const and c.bar_hook: c.bar_hook(a, c, vm, k)
        if k + L < nst:
            if const and c.pre_issue: c.pre_issue(a, c, vm, k+L)
            issue(k+L, SL(k+L) if const else None, fetch_next=(k+L+1 < nst))
        if const and c.iter_hook: c.iter_hook(a, c, vm, k)
        if k + L == nst - 1 + c.tail_delay and c.tail_issue: c.tail_issue(a, c, vm)
    if c.unroll:
        for k in range(1, nst): it(k, True)
    else:
        k0 = 1
        if c.peel1: it(1); k0 = 2
        if c.nloc:
            k0 = 3 + c.npeel
            for k in range(3, k0): it(k, True)
            a('s_mov_b32 s%d, %d' % (c.s_slot, SL(k0+L)))
        a('s_mov_b32 s%d, %d' % (c.s_cnt, nsteady - (k0-1)))
        a.label(c.name + '_ploop')
        it(k0)
        body = vm.log[-1]
        a('s_sub_u32 s%d, s%d, 1' % (c.s_cnt, c.s_cnt))
        a('s_cmp_lg_u32 s%d, 0' % c.s_cnt)
        a('s_cbranch_scc1 %s_ploop' % c.name)
        keep = a.lines
        for k in range(k0+1, nsteady+1):
            a.lines = []; it(k); assert vm.log[-1] == body
        a.lines = keep
        for k in range(nsteady+1, nst): it(k, True)
    mark(a, c, 0)
    if c.ptail: c.ptail(a, c, vm)
    if c.stamps and c.gen_dump:
        a('s_mov_b64 exec, -1')
        mark(a, c, 8)
        a('s_waitcnt vmcnt(0)')
        mark(a, c, 9)
        dump_stamps(a, c)
    if lbl_after: a('s_branch %s' % lbl_after)

class VM:
    def __init__(self, a): self.a = a; self.ops = []; self.log = []; self.done = -1
    def issue(self, tag, n=1): self.ops += [tag]*n
    def count(self, tag):
        idx = max(i for i, t in enumerate(self.ops) if t == tag)
        return len(self.ops) - 1 - idx
    def wait(self, tag, extra=''):
        n = self.count(tag)
        idx = len(self.ops) - 1 - n
        if idx <= self.done:
            self.log.append(None)
            if extra: self.a('s_waitcnt' + extra)
            return
        assert n <= 63
        self.done = idx
        self.log.append(n)
        self.a('s_waitcnt vmcnt(%d)%s' % (n, extra))

def xproducer(a, c, lbl_after):
    BK, S = c.BK, c.S
    assert BK == 64 and S == 3
    nst = c.K // BK
    D = 2
    sp = c.s_tmp
    tabs = order_table(nst, c.G, c.order)
    pk = [sum(x << (4*i) for i, x in enumerate(o)) for o in tabs]
    s_ow, s_ox, s_kt = c.s_tab, c.s_tab+2, c.s_nh
    a('s_sub_u32 s%d, s%d, 4' % (sp, c.s_wave))
    a('s_mov_b32 s%d, 0x%x\ns_mov_b32 s%d, 0x%x' % (s_ow, pk[0] & 0xffffffff, s_ow+1, pk[0] >> 32))
    for j in range(1, c.G):
        a('s_cmp_eq_u32 s%d, %d' % (c.s_rot, j))
        a('s_cselect_b32 s%d, 0x%x, s%d\ns_cselect_b32 s%d, 0x%x, s%d' % (s_ow, pk[j] & 0xffffffff, s_ow, s_ow+1, pk[j] >> 32, s_ow+1))
    a('s_mov_b64 s[%d:%d], s[%d:%d]' % (s_ox, s_ox+1, s_ow, s_ow+1))
    v = 2
    vrow, vt, vch = v, v+1, v+2; v += 3
    vXg = v; v += 4
    vXw = v; v += 2
    vTab, vTa = v, v+1; v += 2
    a('v_lshrrev_b32 v%d, 3, v1\nv_and_b32 v%d, 7, v1' % (vrow, vch))
    a('s_lshl_b32 s%d, s%d, 2\ns_add_u32 s%d, s%d, s%d' % (sp+1, c.s_mt, sp+1, sp+1, sp))
    c.s_rb = sp+3
    a('s_mov_b32 s%d, s%d' % (c.s_rb, sp+1))
    a('s_lshl_b32 s%d, s%d, 16' % (sp+1, sp+1))
    a('v_lshlrev_b32 v%d, 11, v%d' % (vt, vrow))
    a('v_lshl_add_u32 v%d, v%d, 4, v%d' % (vt, vch, vt))
    a('v_add_u32 v%d, s%d, v%d' % (vXg, sp+1, vt))
    for i in range(1, 4): a('v_add_u32 v%d, %d, v%d' % (vXg+i, 16384*i, vXg))
    vw0, vw1 = v, v+1; v += 2
    a('v_bfe_u32 v%d, v1, 4, 1\nv_lshlrev_b32 v%d, 1, v%d\nv_xor_b32 v%d, v%d, v%d' % (vt, vt, vt, vt, vt, vch))
    a('v_mul_u32_u24 v%d, %d, v%d' % (vw1, c.ldw, vrow))
    a('s_mul_i32 s%d, s%d, %d' % (sp+1, sp, 16*c.ldw))
    a('s_add_u32 s%d, s%d, s%d' % (sp+2, sp+1, c.s_col0))
    a('v_add_u32 v%d, s%d, v%d' % (vw1, sp+2, vw1))
    a('v_lshl_add_u32 v%d, v%d, 4, v%d' % (vw0, vt, vw1))
    a('v_xor_b32 v%d, 4, v%d' % (vt, vt))
    a('v_lshl_add_u32 v%d, v%d, 4, v%d' % (vw1, vt, vw1))
    a('v_add_u32 v%d, %d, v%d' % (vw1, 8*c.ldw - 1024, vw1))
    a('s_lshl_b32 s%d, s%d, 11\ns_add_u32 s%d, s%d, %d' % (c.s_pw, sp, c.s_pw, c.s_pw, c.xbytes))
    groups = [(c.s_pw, 0, [(vw0, 0), (vw1, 1024)])]
    for q in range(1, c.nfull):
        a('v_add_u32 v%d, %d, v%d\nv_add_u32 v%d, %d, v%d' % (v, q*c.panel_stride, vw0, v+1, q*c.panel_stride, vw1))
        groups.append((c.s_pw, q*8192, [(v, 0), (v+1, 1024)])); v += 2
    if c.half:
        vh0 = v; v += 1
        a('v_lshrrev_b32 v%d, 2, v1' % vh0)
        a('v_mul_u32_u24 v%d, %d, v%d' % (vh0, c.ldw, vh0))
        a('v_lshrrev_b32 v%d, 4, v1\nv_and_b32 v%d, 2, v%d' % (vt, vt, vt))
        a('v_and_b32 v%d, 3, v1\nv_xor_b32 v%d, v%d, v%d' % (vTa, vt, vt, vTa))
        a('v_lshl_add_u32 v%d, v%d, 4, v%d' % (vh0, vt, vh0))
        a('s_add_u32 s%d, s%d, s%d' % (sp+2, sp+1, c.s_colh))
        a('v_add_u32 v%d, s%d, v%d' % (vh0, sp+2, vh0))
        a('s_lshl_b32 s%d, s%d, 10\ns_add_u32 s%d, s%d, %d' % (c.s_ph, sp, c.s_ph, c.s_ph, c.xbytes + c.nfull*8192))
        groups.append((c.s_ph, 0, [(vh0, 0)]))
    nW = sum(len(g[2]) for g in groups)
    a('v_lshrrev_b32 v%d, 4, v1\nv_xor_b32 v%d, v%d, v%d' % (vt, vt, vt, vch))
    a('v_lshlrev_b32 v%d, 4, v%d' % (vt, vt))
    a('v_lshl_add_u32 v%d, v%d, 7, v%d' % (vt, vrow, vt))
    a('s_lshl_b32 s%d, s%d, 12' % (sp+1, sp))
    a('v_add_u32 v%d, s%d, v%d\nv_xor_b32 v%d, 64, v%d' % (vXw, sp+1, vt, vXw+1, vXw))
    a('v_lshlrev_b32 v%d, 6, v%d\nv_add_u32 v%d, %d, v%d' % (vTab, vch, vTab, c.tab_base, vTab))
    v = (v + 3) // 4 * 4
    RAW = v; v += 16*4
    OUT = v; v += 16
    AS = v; v += 16
    TMP = v; v += 8
    RC = v; v += 12
    c.p_vfree = v; c.p_RC = RC; c.p_vrow = vrow; c.p_vch = vch
    vm = VM(a)
    def next_w():
        a('s_and_b32 s%d, s%d, 15' % (s_kt, s_ow))
        a('s_lshr_b64 s[%d:%d], s[%d:%d], 4' % (s_ow, s_ow+1, s_ow, s_ow+1))
        a('s_mul_i32 s%d, s%d, %d' % (c.s_kw, s_kt, BK*c.ldw))
        a('s_lshl_b32 s%d, s%d, 9' % (s_kt, s_kt))
    def nextx():
        a('s_and_b32 s%d, s%d, 15' % (c.s_kx, s_ox))
        a('s_lshr_b64 s[%d:%d], s[%d:%d], 4' % (s_ox, s_ox+1, s_ox, s_ox+1))
        a('s_lshl_b32 s%d, s%d, 7' % (c.s_kx, c.s_kx))
    def loadx1(st, q, i):
        a('buffer_load_dwordx4 v[%d:%d], v%d, s[%d:%d], s%d offen' % (RAW+16*q+4*i, RAW+16*q+4*i+3, vXg+i, c.sX, c.sX+3, c.s_kx))
        vm.issue(('x', st))
    def loadx(st, q):
        nextx()
        for i in range(4): loadx1(st, q, i)
    def dmaw_list(st, slot_const):
        out = []
        for (base, lc, ins) in groups:
            for n_, (vr, io) in enumerate(ins):
                def f(base=base, lc=lc, vr=vr, io=io, first=(n_ == 0)):
                    if first:
                        if slot_const is None:
                            a('s_add_u32 s%d, s%d, s%d' % (sp, base, c.s_slot))
                            if lc: a('s_add_u32 m0, s%d, %d' % (sp, lc))
                            else: a('s_mov_b32 m0, s%d' % sp)
                        else: a('s_add_u32 m0, s%d, %d' % (base, lc + slot_const))
                    a('buffer_load_dwordx4 v%d, s[%d:%d], s%d offen%s lds' % (vr, c.sW, c.sW+3, c.s_kw, ' offset:%d' % io if io else ''))
                    vm.issue(('w', st))
                out.append(f)
        return out
    def dmaw(st, slot_const):
        for f in dmaw_list(st, slot_const): f()
    def readas(skt):
        a('v_add_u32 v%d, s%d, v%d' % (vTa, skt, vTab))
        for e in range(4): a('ds_read_b128 v[%d:%d], v%d offset:%d' % (AS+4*e, AS+4*e+3, vTa, 16*e))
    dot = c.xf.startswith('dot')
    def xform(q, slot_off, side=(), after_unpack=None):
        side = list(side)
        def pop():
            if side: side.pop(0)()
        for i in range(4):
            r = RAW + 16*q + 4*i
            if dot:
                for e in range(4):
                    a('v_dot2_f32_bf16 v%d, v%d, v%d, v%d' % (TMP+2*e, r+e, RC+8+i, RC+2*i+1))
                    a('v_dot2_f32_bf16 v%d, v%d, v%d, v%d' % (TMP+2*e+1, r+e, RC+2*i, RC+2*i+1))
                if after_unpack: after_unpack(i)
            else:
                for e in range(4):
                    a('v_lshlrev_b32 v%d, 16, v%d\nv_and_b32 v%d, 0xffff0000, v%d' % (TMP+2*e, r+e, TMP+2*e+1, r+e))
                if after_unpack: after_unpack(i)
                if c.xf == 'pk5':
                    for e in range(4): a('v_pk_fma_f32 v[%d:%d], v[%d:%d], v[%d:%d], v[%d:%d] op_sel:[0,0,1] op_sel_hi:[1,0,1]' % (TMP+2*e, TMP+2*e+1, TMP+2*e, TMP+2*e+1, RC+2*i, RC+2*i+1, RC+2*i, RC+2*i+1))
                else:
                    for e in range(8): a('v_fma_f32 v%d, v%d, v%d, v%d' % (TMP+e, TMP+e, RC+2*i, RC+2*i+1))
            pop()
            if i == 0: a('s_waitcnt lgkmcnt(0)')
            if c.xf in ('pk5', 'dot4'):
                for e in range(4): a('v_pk_fma_f32 v[%d:%d], v[%d:%d], v[%d:%d], v[%d:%d]' % (TMP+2*e, TMP+2*e+1, TMP+2*e, TMP+2*e+1, AS+2*e, AS+2*e+1, AS+8+2*e, AS+9+2*e))
            else:
                for e in range(8): a('v_fma_f32 v%d, v%d, v%d, v%d' % (TMP+e, TMP+e, AS+e, AS+8+e))
            if i < 3: pop()
            for e in range(4): a('v_cvt_pk_bf16_f32 v%d, v%d, v%d' % (OUT+4*i+e, TMP+2*e, TMP+2*e+1))
            a('ds_write_b128 v%d, v[%d:%d] offset:%d' % (vXw + i % 2, OUT+4*i, OUT+4*i+3, slot_off + i*1024))
        while side: pop()
    s_kt0, s_kt1 = c.s_px, c.s_cnt
    a('s_waitcnt lgkmcnt(0)')
    c.srd_hook(a)
    loadx(0, 2)
    next_w(); a('s_mov_b32 s%d, s%d' % (s_kt0, s_kt))
    dmaw(0, 0)
    c.pstats_issue(a, c, vm)
    loadx(1, 3); loadx(2, 0)
    next_w(); a('s_mov_b32 s%d, s%d' % (s_kt1, s_kt))
    dmaw(1, c.slot)
    loadx(3, 1)
    c.pstats_finish(a, c, vm)
    if dot:
        for i in range(4): a('v_cvt_pk_bf16_f32 v%d, v%d, v%d' % (RC+2*i, RC+2*i, RC+2*i))
        for i in range(4): a('v_and_b32 v%d, 0xffff, v%d\nv_and_b32 v%d, 0xffff0000, v%d' % (RC+8+i, RC+2*i, RC+2*i, RC+2*i))
    for i in range(4): a('v_mul_f32 v%d, -v%d, v%d' % (RC+2*i+1, RC+2*i+1, RC+2*i))
    if c.pprio: a('s_setprio %d' % c.pprio)
    if c.stamps: a('s_mov_b32 s72, 0')
    stamp(a, c, 0)
    a('s_barrier')
    stamp(a, c, 3)
    readas(s_kt0)
    vm.wait(('x', 0))
    xform(2, 0)
    a('s_waitcnt lgkmcnt(0)')
    vm.wait(('w', 0))
    stamp(a, c, 1)
    a('s_barrier')
    stamp(a, c, 2, True)
    readas(s_kt1)
    vm.wait(('x', 1))
    assert c.slot + 4096 <= 65536
    xform(3, c.slot)
    a('s_mov_b32 s%d, %d' % (c.s_slot, 2*c.slot))
    a('v_add_u32 v%d, %d, v%d\nv_add_u32 v%d, %d, v%d' % (vXw, 2*c.slot, vXw, vXw+1, 2*c.slot, vXw+1))
    a('s_mov_b32 s%d, %d' % (sp+1, c.slot))
    def iteration(k, first=False):
        if k + 2 < nst:
            next_w()
            readas(s_kt)
            dl = dmaw_list(k+2, None)
            dl.pop(0)()
            more = k + 2 + D < nst
            if more:
                nextx()
                if c.loop_extra: dl.append(lambda: c.loop_extra(a, c, vm))
            vm.wait(('x', k+2))
            stamp(a, c, 0)
            xform(k % 2, 0, dl, (lambda i: loadx1(k+2+D, k % 2, i)) if more else None)
            stamp(a, c, 3)
            if k + 3 == nst: c.tail_issue(a, c, vm)
            a('s_add_u32 s%d, s%d, s%d' % (c.s_slot, c.s_slot, sp+1))
            a('s_cmp_ge_u32 s%d, %d' % (c.s_slot, c.slot*S))
            a('s_cselect_b32 s%d, 0, s%d' % (c.s_slot, c.s_slot))
            a('s_cselect_b32 s%d, %d, s%d' % (sp, -2*c.slot, sp+1))
            a('v_add_u32 v%d, s%d, v%d\nv_add_u32 v%d, s%d, v%d' % (vXw, sp, vXw, vXw+1, sp, vXw+1))
        vm.wait(('w', k+1), ' lgkmcnt(0)')
        stamp(a, c, 1)
        a('s_barrier')
        stamp(a, c, 2, True)
    nsteady = nst - 2 - D
    assert nsteady % 2 == 0
    if c.loop_init: c.loop_init(a, c)
    a('s_waitcnt lgkmcnt(0)')
    iteration(0); iteration(1)
    a('s_mov_b32 s%d, %d' % (c.s_cnt, nsteady // 2 - 1))
    a.label(c.name + '_ploop')
    n0 = len(vm.log)
    iteration(2); iteration(3)
    body = vm.log[n0:]
    a('s_sub_u32 s%d, s%d, 1' % (c.s_cnt, c.s_cnt))
    a('s_cmp_lg_u32 s%d, 0' % c.s_cnt)
    a('s_cbranch_scc1 %s_ploop' % c.name)
    keep = a.lines;
    for k in range(4, nsteady, 2):
        a.lines = []; n0 = len(vm.log)
        iteration(k); iteration(k+1)
        assert vm.log[n0:] == body, (vm.log[n0:], body)
    a.lines = keep
    for k in range(nsteady, nst-1): iteration(k)
    if c.stamps: dump_stamps(a, c)
    c.ptail(a, c, vm)
    a('s_branch %s' % lbl_after)

def table(a, c):
    a.lines.append('.p2align 6')
    a.label(c.name + '_tab')
    for o in c.tabs:
        a.lines.append('.byte ' + ','.join(str(x) for x in (o + [0]*64)[:16 if c.own0 else 32 if c.nloc else 64]))
    if c.own0 or c.nloc: a.lines.append('.fill 64, 1, 0')
    a.lines.append('.p2align 2')

def consumer(a, c):
    BK, S = c.BK, c.S
    nsub = BK // 32
    nst = c.K // BK
    r4 = c.rows4
    TMb = c.BM // (4 if r4 else 2) // 16
    sp = c.s_tmp
    ks = c.ksplit
    va = c.v_addr
    vX, vX2, vW0, vW1, vW2, vW3, vX3, vX4 = [va+i for i in range(8)]
    t0, t1 = c.v_tmp, c.v_tmp+1
    nat = c.xform
    natw = c.xform or c.natw
    rotx = c.half or ks
    a('s_lshr_b32 s%d, s%d, 1' % (c.s_rh, c.s_wave))
    a('s_and_b32 s%d, s%d, 1' % (c.s_nh, c.s_wave))
    a('s_mul_i32 s%d, s%d, %d' % (sp, c.s_wave if r4 else c.s_rh, TMb*nsub*1024))
    if ks:
        a('s_lshl_b32 s%d, s%d, 10\ns_add_u32 s%d, s%d, s%d' % (sp+1, c.s_nh, sp, sp, sp+1))
    if nat:
        a('v_bfe_u32 v%d, v1, 1, 3\nv_lshrrev_b32 v%d, 4, v1\nv_xor_b32 v%d, v%d, v%d' % (t0, t1, t0, t0, t1))
        a('v_and_b32 v%d, 15, v1\nv_lshlrev_b32 v%d, 7, v%d' % (t1, t1, t1))
        a('v_lshl_add_u32 v%d, v%d, 4, v%d\nv_add_u32 v%d, s%d, v%d' % (vX, t0, t1, vX, sp, vX))
    else:
        a('v_lshl_add_u32 v%d, v1, 4, s%d' % (vX, sp))
    addr = [vX, vW0, vW1]
    if rotx:
        a('s_mul_i32 s%d, s%d, %d' % (sp, c.s_nh, 2*nsub*1024))
        a('v_subrev_u32 v%d, s%d, v%d' % (vX2, sp, vX))
        a('v_add_u32 v%d, s%d, v%d' % (vX, sp, vX))
        addr.append(vX2)
    if nat:
        a('v_xor_b32 v%d, 64, v%d' % (vX3, vX)); addr.append(vX3)
        if rotx: a('v_xor_b32 v%d, 64, v%d' % (vX4, vX2)); addr.append(vX4)
    if natw:
        a('v_bfe_u32 v%d, v1, 2, 2\nv_lshrrev_b32 v%d, 4, v1\nv_lshl_add_u32 v%d, v%d, 3, v%d' % (t0, t1, t0, t1, t0))
    else:
        a('v_lshrrev_b32 v%d, 2, v1' % t0)
    a('v_bfe_u32 v%d, v1, 3, 2' % t1)
    if ks or r4: a('v_lshlrev_b32 v%d, 5, v%d' % (vW0, t1))
    else:
        a('s_lshl_b32 s%d, s%d, 1' % (sp, c.s_nh))
        a('v_xor_b32 v%d, s%d, v%d' % (vW0, sp, t1))
        a('v_lshlrev_b32 v%d, 5, v%d' % (vW0, vW0))
    a('v_lshl_add_u32 v%d, v%d, 7, v%d' % (vW0, t0, vW0))
    a('v_and_b32 v%d, 3, v1' % t1)
    a('v_lshlrev_b32 v%d, 3, v%d' % (t1, t1))
    if ks:
        a('s_lshl_b32 s%d, s%d, 12\ns_add_u32 s%d, s%d, %d' % (sp, c.s_nh, sp, sp, c.xbytes))
        a('v_add3_u32 v%d, v%d, v%d, s%d' % (vW0, vW0, t1, sp))
    else:
        a('v_add_u32 v%d, %d, v%d' % (t1, c.xbytes, t1))
        a('v_add_u32 v%d, v%d, v%d' % (vW0, vW0, t1))
    a('v_xor_b32 v%d, 32, v%d' % (vW1, vW0))
    if ks or r4:
        a('v_xor_b32 v%d, 64, v%d' % (vW2, vW0))
        a('v_xor_b32 v%d, 96, v%d' % (vW3, vW0))
        addr += [vW2, vW3]
    if c.half:
        a('v_bfe_u32 v%d, v1, 4, 1' % vW2)
        a('v_lshlrev_b32 v%d, 5, v%d' % (vW2, vW2))
        a('v_lshl_add_u32 v%d, v%d, 6, v%d' % (vW2, t0, vW2))
        a('v_add_u32 v%d, v%d, v%d' % (vW2, vW2, t1))
        a('v_add_u32 v%d, %d, v%d' % (vW2, c.nfull*BK*128, vW2))
        a('v_xor_b32 v%d, 32, v%d' % (vW3, vW2))
        addr += [vW2, vW3]
    assert c.xbytes % 128 == 0 and c.slot % 128 == 0
    sm = 2 if ks else 1
    def xrd(j, sub):
        hi = rotx and j >= 2
        if nat: return ((vX4 if hi else vX3) if sub % 2 else (vX2 if hi else vX)), j*2048
        return (vX2 if hi else vX), (j*nsub+sub)*1024
    tf = 512 if natw else 2048
    if ks or r4:
        wfr = [(vW0+u, 0, 4096, tf) for u in range(4)]
        mf = [(j, i) for i in range(TMb) for j in range(4)]
    else:
        wfr = [(vW0 + j % 2, (j//2)*BK*128, 4096, tf) for j in range(2*c.nfull)]
        mf = [(j, i) for j in range(len(wfr)) for i in range(TMb)]
    if c.half:
        wfr += [(vW2, 0, 2048, tf//2), (vW3, 0, 2048, tf//2)]
        mf += [(2*c.nfull + u, i) for u in range(2) for i in range(2)]
    nWf = len(wfr)
    nacc = len(mf) * 4
    KS = c.KS
    fs1 = (TMb + nWf) * 4
    fsz = fs1 * KS
    c.v_acc = c.v_frag + 2*fsz
    c.v_free = c.v_acc + nacc
    if c.pre_hook: c.pre_hook(a, c)
    if c.acc_init: c.acc_init(a, c)
    elif not c.first_c:
        for i in range(nacc): a('v_mov_b32 v%d, 0' % (c.v_acc+i))
    def xreg(s, q, j): return c.v_frag + s*fsz + q*fs1 + j*4
    def wreg(s, q, j): return c.v_frag + s*fsz + q*fs1 + TMb*4 + j*4
    def reads(s, step, own=False):
        r = []
        for q in range(KS):
            sub = (step*KS + q)*sm
            xs = ['ds_read_b128 v[%d:%d], v%d offset:%d' % ((xreg(s,q,j), xreg(s,q,j)+3) + xrd(j, sub)) for j in range(TMb)]
            ws = []
            for j, (v, base, ss, ts) in enumerate(wfr[:2] if own else wfr):
                for t in range(2):
                    w = wreg(s,q,j) + 2*t
                    ws.append('ds_read_b64_tr_b16 v[%d:%d], v%d offset:%d' % (w, w+1, v, base + sub*ss + t*ts))
            r += (xs[:1] + ws + xs[1:]) if (ks or r4) else (ws[:2] + xs + ws[2:])
        if c.no_lds: r = []
        return r
    def mfmas(s, first=False, own=False):
        r = []
        for q in range(KS):
            for k, (j, i) in enumerate(mf):
                if own and j >= 2: continue
                t = c.v_acc + k*4
                A_, B_ = wreg(s,q,j), xreg(s,q,i)
                if j in c.swap_frags: A_, B_ = B_, A_
                C_ = 'v[%d:%d]' % (t, t+3)
                if first and q == 0: C_ = c.first_c(c, j)
                r.append('v_mfma_f32_16x16x32_bf16 v[%d:%d], v[%d:%d], v[%d:%d], %s' % (t, t+3, A_, A_+3, B_, B_+3, C_))
        if c.no_mfma: r = r[:1]
        return r
    def interleave(ms, rs, extra=()):
        out = []
        rpm = c.rpm if len(ms) > 8 else max(c.rpm, c.rpm_own)
        k = 0; ex = list(extra)
        for i, m in enumerate(ms):
            out.append(m)
            if k < len(rs):
                for _ in range(rpm):
                    if k < len(rs): out.append(rs[k]); k += 1
            elif ex:
                out.append(ex.pop(0))
                if ex and ex[0].startswith('s_'): out.append(ex.pop(0))
        out += rs[k:] + ex
        return out
    def advance():
        return ['s_add_u32 s%d, s%d, 1' % (c.s_slot, c.s_slot),
             's_cmp_eq_u32 s%d, %d' % (c.s_slot, S),
             's_cselect_b32 s%d, 0, s%d' % (c.s_slot, c.s_slot),
             's_cselect_b32 s%d, %d, s%d' % (sp, -(S-1)*c.slot, sp+1)] + ['v_add_u32 v%d, s%d, v%d' % (v, sp, v) for v in addr]
    nstep = nsub // KS // sm
    spb = 1 if nstep % 2 == 0 else 2
    a('s_mov_b32 s%d, %d' % (c.s_slot, c.slot0))
    if c.slot0:
        for v in addr: a('v_add_u32 v%d, %d, v%d' % (v, c.slot0*c.slot, v))
    a('s_mov_b32 s%d, %d' % (sp+1, c.slot))
    if c.pre_hook2: c.pre_hook2(a, c)
    if c.stamps: a('s_mov_b32 s72, 0')
    stamp(a, c, 1)
    a('s_barrier')
    stamp(a, c, 2, True)
    if c.post_b0: c.post_b0(a, c)
    vRa, vR = c.v_flag, c.v_flag+1
    s_need, s_one = c.s_px, c.s_pw
    frd = ['ds_read_u8 v%d, v%d' % (vR, vRa)] if c.flags else []
    if c.flags:
        a('v_and_b32 v%d, 3, v1\nv_add_u32 v%d, %d, v%d\ns_mov_b32 s%d, %d\ns_mov_b32 s70, 0x100000\ns_lshl_b64 s[68:69], 1, s%d' % (vRa, vRa, c.SY, vRa, s_need, c.fbase+2, c.s_wave))
        a('s_add_u32 s71, s%d, %d\nv_mov_b32 v%d, s71' % (c.s_wave, c.SY+4, vR+1))
    for r in reads(0, 0) + (frd if nstep == 1 else []): a(r)
    if c.post_b0b: c.post_b0b(a, c, len(reads(0, 0)))
    if nstep == 1:
        for l in advance(): a(l)
    par = [0]
    fc = [0]
    def stage(last, first=False, hook=False, realbar=False, own=False, nown=False, pre_bar=None, post_bar=None, xtra=lambda st: []):
        for step in range(nstep):
            s = par[0]; par[0] ^= 1
            a('s_waitcnt lgkmcnt(0)')
            if hook: c.step_hook(a, c, step, lambda j: wreg(s, 0, j), xreg(1-s, 0, 0))
            if step < nstep-1:
                ex = advance() if (step == nstep-2 and not last) else []
                if first and step == 0 and c.first_extra: ex = ex + c.first_extra(c)
                ex = xtra(step) + ex
                for l in interleave(mfmas(s, first and step == 0, own), reads(1-s, step+1, own) + (frd if step == nstep-2 and not last and not realbar else []), ex): a(l)
            elif not last:
                ms = mfmas(s, first and step == 0, own)
                nb = c.mfma_before_bar
                if first and c.own0:
                    a('s_waitcnt vmcnt(0)\ns_barrier')
                    for m in ms: a(m)
                    a('s_barrier\ns_barrier')
                    ms = []; nb = 0
                elif c.flags and not realbar:
                    fc[0] += 1
                    lab = '%s_c%d' % (c.name, fc[0])
                    a(ms[0])
                    a('v_cmp_gt_u32 vcc, s%d, v%d' % (s_need, vR))
                    a('s_sub_u32 s%d, s%d, 1' % (sp+2, s_need))
                    a(ms[1])
                    if c.noexec: a('v_mov_b32 v%d, s%d\nds_write_b8 v%d, v%d' % (vR, sp+2, vR+1, vR))
                    else: a('v_mov_b32 v%d, s%d\ns_mov_b64 exec, s[68:69]\nds_write_b8 v%d, v%d offset:4\ns_mov_b64 exec, -1' % (vR, sp+2, vRa, vR))
                    a('s_cmp_lg_u64 vcc, 0\ns_cbranch_scc1 %ss' % lab)
                    a.label(lab)
                    a('s_add_u32 s%d, s%d, 1' % (s_need, s_need))
                    o = c.outline
                    o.label(lab + 's')
                    o('s_sub_u32 s70, s70, 1\ns_cbranch_scc1 %s' % lab)
                    o('s_waitcnt lgkmcnt(0)\nds_read_u8 v%d, v%d\ns_waitcnt lgkmcnt(0)\nv_cmp_gt_u32 vcc, s%d, v%d\ns_cmp_lg_u64 vcc, 0\ns_cbranch_scc1 %ss\ns_branch %s' % (vR, vRa, s_need, vR, lab, lab))
                    nb = 2
                else:
                    for m in ms[:nb]: a(m)
                    if pre_bar: pre_bar(a, c)
                    stamp(a, c, 1)
                    a('s_barrier')
                    stamp(a, c, 2, True)
                    if post_bar: post_bar(a, c)
                for l in interleave(ms[nb:], reads(1-s, 0, nown) + (c.post_b1(c) if (first and c.post_b1) else []) + (frd if nstep == 1 else []), xtra(step) + (advance() if nstep == 1 else [])): a(l)
            else:
                for l in interleave(mfmas(s, False, own), c.last_reads(c) if c.last_reads else [], xtra(step)): a(l)
    npre = 0
    if c.first_c:
        drain = lambda a, c: a('s_waitcnt vmcnt(0)')
        stage(False, True, pre_bar=drain if ((c.nloc and c.sig_at == 1) or c.drain1) else None); npre = 1
        if c.after_first: c.after_first(a, c)
    if c.nloc:
        if c.sig_at == 2: stage(False, pre_bar=drain); npre += 1
    if c.step_hook:
        a('s_mov_b32 s%d, %d' % (c.s_cnt, c.hook_stages))
        a.label(c.name + '_hloop')
        stage(False, hook=True)
        a('s_sub_u32 s%d, s%d, 1' % (c.s_cnt, c.s_cnt))
        a('s_cmp_lg_u32 s%d, 0' % c.s_cnt)
        a('s_cbranch_scc1 %s_hloop' % c.name)
        npre += c.hook_stages
    spb *= c.cunroll
    npost = c.nown + 1 if c.nown else 1
    if c.panel_tail: npost = 3
    nloop = (nst - npost - npre - (1 if (c.late_hook or c.flags) else 0)) // spb
    rem = (nst - npost - npre) - nloop*spb
    a('s_mov_b32 s%d, %d' % (c.s_cnt, nloop))
    a('.p2align 3')
    a.label(c.name + '_cloop')
    for _ in range(spb): stage(False)
    a('s_sub_u32 s%d, s%d, 1' % (c.s_cnt, c.s_cnt))
    a('s_cmp_lg_u32 s%d, 0' % c.s_cnt)
    a('s_cbranch_scc1 %s_cloop' % c.name)
    for r_ in range(rem):
        if c.late_hook and r_ == rem-1: c.late_hook(a, c)
        stage(False, realbar=(r_ == rem-1))
    if c.panel_tail:
        s_ = par[0]; par[0] ^= 1
        a('s_waitcnt lgkmcnt(0)')
        for l in interleave(mfmas(s_), reads(1-s_, 1), advance()): a(l)
        assert par[0] == 1 and nstep == 2
        a('s_waitcnt lgkmcnt(0)')
        delta = (((nst-1+c.slot0) % S) - ((nst-2+c.slot0) % S)) * c.slot
        c.panel_tail(a, c, mfmas(1), [vX, vX2, vW0, vW1, vW2, vW3], wfr, delta)
    elif c.nown:
        stage(False, nown=True)
        for q in range(c.nown):
            c.own_hook(a, c, q, 0)
            stage(q == c.nown-1, own=True, nown=True, pre_bar=lambda a, c: c.own_hook(a, c, q, 1), post_bar=lambda a, c: c.own_hook(a, c, q, 2), xtra=lambda st: c.own_extra(c, q, st))
    else: stage(True)
    if c.stamps and c.gen_dump:
        stamp(a, c, 1)
        mark(a, c, 0)
    if ks:
        EB = c.slot * (nst % S)
        if c.slot < 32768:
            EB = c.slot * S; c.lds = EB + 32768
        assert c.lds <= 163840
        a('s_lshl_b32 s%d, s%d, 13\ns_add_u32 s%d, s%d, %d' % (sp, c.s_wave, sp, sp, EB))
        a('v_lshl_add_u32 v%d, v1, 4, s%d' % (t0, sp))
        a('s_xor_b32 s%d, s%d, 1\ns_lshl_b32 s%d, s%d, 13\ns_add_u32 s%d, s%d, %d' % (sp, c.s_wave, sp, sp, sp, sp, EB))
        a('v_lshl_add_u32 v%d, v1, 4, s%d' % (t1, sp))
        for k in range(8): a('ds_write_b128 v%d, v[%d:%d] offset:%d' % (t0, c.v_acc+32+4*k, c.v_acc+35+4*k, 1024*k))
        if c.xch_pre: c.xch_pre(a, c)
        a('s_waitcnt lgkmcnt(0)')
        mark(a, c, 1)
        a('s_barrier')
        mark(a, c, 2)
        for k in range(8): a('ds_read_b128 v[%d:%d], v%d offset:%d' % (c.v_acc+32+4*k, c.v_acc+35+4*k, t1, 1024*k))
        n0 = len(a.lines)
        if c.xch_post: c.xch_post(a, c)
        npost = len(a.lines) - n0
        for k in range(8):
            a('s_waitcnt lgkmcnt(%d)' % min(15, 7-k+npost))
            for r in (0, 2): a('v_pk_add_f32 v[%d:%d], v[%d:%d], v[%d:%d]' % (c.v_acc+4*k+r, c.v_acc+4*k+r+1, c.v_acc+4*k+r, c.v_acc+4*k+r+1, c.v_acc+32+4*k+r, c.v_acc+33+4*k+r))
        nacc = 32
    c.TMb, c.nWf, c.nacc = TMb, nWf, nacc

def config(name, K, BM, nfull, half, BK, S, ldw, panel_stride, **kw):
    c = G()
    c.name, c.K, c.BM, c.nfull, c.half, c.BK, c.S, c.ldw, c.panel_stride = name, K, BM, nfull, half, BK, S, ldw, panel_stride
    c.xbytes = BM * BK * 2
    c.slot = c.xbytes + nfull * BK * 128 + (BK * 64 if half else 0)
    c.lds = c.slot * S
    c.sX, c.sW = 8, 12
    c.s_mt, c.s_nt, c.s_wave, c.s_col0, c.s_colh = 40, 41, 42, 43, 44
    c.s_kx, c.s_kw, c.s_slot, c.s_px, c.s_pw, c.s_ph, c.s_cnt, c.s_rh, c.s_nh = 45, 46, 47, 48, 49, 50, 51, 52, 53
    c.s_tmp = 54
    c.v_addr = 4; c.v_tmp = 2; c.v_frag = 12; c.ksplit = False; c.xform = False; c.xf = 'dot4'; c.pprio = 0; c.pre_hook2 = None
    c.noexec = False; c.fsplit = 2; c.flags = False; c.fbase = 0; c.SY = 147392; c.v_flag = 252; c.outline = None; c.w1late = False; c.cunroll = 1; c.after_first = None; c.mirror = None; c.early_first = None; c.panel_tail = None; c.drain1 = False; c.sig_at = 1; c.npeel = 0; c.pre_issue = None; c.nloc = 0; c.tabsel = None; c.st0 = None; c.own0 = None; c.rpm_own = 1; c.nown = 0; c.own_hook = None; c.tabs_override = None; c.mirror_off = None; c.wait_hook = None; c.bar_hook = None; c.post_b0p = None; c.step_hook = None; c.pre_b0 = None; c.xKG = None; c.panel_sreg = None; c.boundary0 = None; c.xflags = ''; c.peel1 = False; c.vm_init = []; c.pre_b1 = None; c.post_b1 = None; c.slot0 = 0; c.boundary = None; c.first_c = None; c.post_b0 = None; c.post_b0b = None; c.first_extra = None; c.rows4 = False; c.last_reads = None; c.pre_last_bar = None; c.xch_pre = None; c.xch_post = None; c.unroll = False; c.iter_hook = None; c.acc_init = None; c.natw = False; c.early_issue = None; c.tail_issue = None; c.ptail = None; c.tail_delay = 0; c.loop_extra = None; c.loop_init = None; c.late_hook = None; c.psplit = 1; c.stamps = False; c.gen_dump = False; c.dma_flags = ''; c.KS = 1; c.rpm = 1; c.mfma_before_bar = 0; c.G = 4; c.order = 'lead'; c.lead = S-1; c.s_rot = 39; c.s_tab = 66; c.tab_base = c.lds; c.srd_hook = None; c.swap_frags = (); c.pre_hook = None
    c.no_dma = c.no_lds = c.no_mfma = False
    for k, v in kw.items(): setattr(c, k, v)
    return c
```

```python
import sys
from asmgen import Asm
import gemm, gen
from gen import *
FL = 0x80000
FL8 = 8
MS = 7
ROW = 256 << MS
XB = PHIQ
FL7 = 7 * ROW
opt.plan = 'lqowab'

UT = 0xE8000
OUT = Asm()
def rt(a, i):
    if not opt.ts: return
    r = 11 if getattr(a, 'cons', False) else 255
    a('s_memrealtime s[98:99]\ns_memtime s[100:101]\ns_waitcnt lgkmcnt(0)\nv_writelane_b32 v%d, s98, %d\nv_writelane_b32 v%d, s100, %d' % (r, i, r, 32+i))

def tile_head(a, c, xm, xn, colmul, ptrs):
    for s, o in ptrs: a('s_load_dwordx2 s[%d:%d], s[0:1], %d' % (s, s+1, o))
    c.dma_flags = opt.wflags
    c.flags = c.name in opt.flags; c.outline = OUT; c.noexec = opt.noexec; c.fsplit = opt.fsplit if c.name != 'wo' else 1
    c.fbase = {'qkv': 0, 'wo': 16, 'w1': 32, 'w2': 48}[c.name]
    c.w1late = c.name in opt.w1late
    c.cunroll = opt.cunroll; c.mfma_before_bar = opt.mbb
    if opt.stamp == c.name: c.stamps = True; c.gen_dump = True
    bm = 16 // xm
    a('s_and_b32 s36, s2, 7\ns_lshr_b32 s37, s2, 3')
    a('s_and_b32 s38, s36, %d\ns_lshr_b32 s36, s36, %d' % (bm-1, bm.bit_length()-1))
    a('s_and_b32 s39, s37, %d\ns_lshr_b32 s37, s37, %d' % (xm-1, xm.bit_length()-1))
    a('s_mul_i32 s38, s38, %d\ns_add_u32 s%d, s38, s39' % (xm, c.s_mt))
    a('s_mul_i32 s36, s36, %d\ns_add_u32 s%d, s36, s37' % (xn, c.s_nt))
    a('s_add_u32 s39, s39, s37\ns_and_b32 s%d, s39, %d' % (c.s_rot, c.G-1))
    a('s_mul_i32 s%d, s%d, %d' % (c.s_col0, c.s_nt, colmul))
    if c.half:
        a('s_and_b32 s36, s%d, 1\ns_cmp_eq_u32 s36, 0' % c.s_nt)
        a('s_cselect_b32 s36, 384, 0\ns_cselect_b32 s37, 0, 64')
        a('s_add_u32 s%d, s%d, s36\ns_add_u32 s%d, s%d, s37' % (c.s_colh, c.s_col0, c.s_col0, c.s_col0))

NW = FL + 0
MPT = 0xF0000
def uhead(a, c, ptrs):
    tile_head(a, c, 8, 4, 0, ptrs)
    a('s_mov_b32 s38, s%d\ns_and_b32 s36, s38, 7\ns_lshl_b32 s36, s36, 1\ns_lshr_b32 s37, s38, 3\ns_add_u32 s%d, s36, s37\ns_lshl_b32 s%d, s%d, 7' % (c.s_nt, c.s_nt, c.s_col0, c.s_nt))

def nonce(a):
    a('s_load_dword s3, s[6:7], %d' % NW)
def nonce2(a):
    a('s_mul_i32 s3, s3, 0x9e3779b1\ns_add_u32 s3, s3, 0x7f4a7c15')

def psync(a, tag, sig, s_sig, s_mem, s_wait, n=16, part=None, mask=None, allw=False):
    if part in (None, 0):
        srd(a, 84, 6, FL, 10*ROW)
        gs = MS if s_mem is None else MS + 4
        a('s_lshl_b32 s88, s%d, %d\ns_add_u32 s88, s88, %d\ns_lshl_b32 s89, s%d, %d\ns_add_u32 s89, s89, %d' % (s_sig, gs, sig*ROW, s_wait, gs, sig*ROW))
        if s_mem is not None: a('s_lshl_b32 s90, s%d, %d\ns_add_u32 s88, s88, s90' % (s_mem, MS))
        a('v_lshlrev_b32 v252, %d, v1' % MS)
        a('v_mov_b32 v253, s3\ns_mov_b32 s90, 200000')
        a('s_barrier')
        rt(a, 2*sig if sig < 8 else 18)
        a('s_cmp_lg_u32 s42, 4\ns_cbranch_scc1 %s_s5' % tag)
        a('s_mov_b64 exec, 1')
        a('buffer_store_dword v253, v252, s[84:87], s88 offen sc1')
        a('s_mov_b64 exec, -1')
        a.label(tag + '_s5')
    if part == 0: return
    if not allw: a('s_cmp_lg_u32 s42, 5\ns_cbranch_scc1 %s_sx' % tag)
    if mask is None: a('s_mov_b64 exec, 0x%x' % ((1 << n) - 1))
    else:
        mask(a)
        a('s_mov_b32 exec_lo, s91\ns_mov_b32 exec_hi, 0')
    a('buffer_load_dword v253, v252, s[84:87], s89 offen sc1')
    a.label(tag + '_sp')
    a('buffer_load_dword v254, v252, s[84:87], s89 offen sc1')
    a('s_sub_u32 s90, s90, 1\ns_waitcnt vmcnt(1)\nv_cmp_ne_u32 vcc, s3, v253')
    a('s_cmp_eq_u64 vcc, 0\ns_cbranch_scc1 %s_sy' % tag)
    a('buffer_load_dword v253, v252, s[84:87], s89 offen sc1')
    a('s_waitcnt vmcnt(1)\nv_cmp_ne_u32 vcc, s3, v254')
    a('s_cmp_eq_u64 vcc, 0\ns_cbranch_scc1 %s_sy' % tag)
    a('s_cmp_lg_u32 s90, 0\ns_cbranch_scc1 %s_sp' % tag)
    a.label(tag + '_sy')
    a('s_mov_b64 exec, -1')
    if part != 2: rt(a, 2*sig+1 if sig < 8 else 19)
    a.label(tag + '_sx')
    if part != 2: a('s_barrier')

def early_sync(c, tag, sig, first, full=None):
    if not opt.esync: first = full
    def b1(a): psync(a, tag, sig, None, None, None, part=1, mask=first)
    if opt.esync: c.pre_b0 = lambda a, c, vm: psync(a, tag + 'z', sig, None, None, None, part=2, mask=full)
    return b1

def need(a, tag, t, mask):
    if mask: mask(a)
    else: a('s_mov_b32 s60, 0xffff')
    a.label('%s_p%d' % (tag, t))
    a('s_andn2_b32 s61, s60, s91\ns_cbranch_scc0 %s_y%d\ns_sub_u32 s90, s90, 1\ns_cbranch_scc1 %s_y%d' % (tag, t, tag, t))
    a('s_mov_b64 exec, 0xffff\nbuffer_load_dword v253, v252, s[84:87], s89 offen sc1\ns_waitcnt vmcnt(0)\nv_cmp_eq_u32 vcc, s3, v253\ns_mov_b64 exec, -1\ns_mov_b32 s91, vcc_lo\ns_branch %s_p%d' % (tag, t))
    a.label('%s_y%d' % (tag, t))
def prog_sync(a, c, tag, sig, n, mask):
    c.pre_issue = lambda a, c, vm, t: need(a, tag, t, mask if t < n-1 else None) if t < n else None
    a('s_mov_b32 s91, 0')
    c.pre_issue(a, c, None, 0)
    rt(a, 2*sig+1)

def chain(*fs):
    fs = [f for f in fs if f]
    def g(*x):
        for f in fs: f(*x)
    return g
BAR = lambda a, c: a('s_barrier')

def ln1_body(a, c, TB):
    SS = TB + 8192
    a('s_lshl_b32 s20, s%d, 3\ns_lshr_b32 s21, s%d, 1\ns_add_u32 s20, s20, s21\ns_and_b32 s21, s%d, 1' % (c.s_mt, c.s_nt, c.s_nt))
    a('v_lshrrev_b32 v2, 6, v0\nv_and_b32 v3, 15, v0\nv_bfe_u32 v4, v0, 4, 2')
    a('v_lshlrev_b32 v5, 11, v3\nv_lshl_add_u32 v5, v2, 8, v5\nv_lshl_add_u32 v5, v4, 4, v5')
    a('s_lshl_b32 s22, s20, 15\ns_lshl_b32 s23, s21, 10\ns_add_u32 s23, s23, s22\ns_xor_b32 s25, s23, 1024')
    a('s_waitcnt lgkmcnt(0)')
    nonce(a)
    srd(a, 8, 34, 0, 0x400000)
    a('s_barrier')
    D = 32; M = 144
    for u in range(4): a('buffer_load_dwordx4 v[%d:%d], v5, s[8:11], s23 offen offset:%d%s' % (D+4*u, D+4*u+3, 64*u, opt.xflags))
    for u in range(4): a('buffer_load_dwordx4 v[%d:%d], v5, s[8:11], s25 offen offset:%d%s' % (M+4*u, M+4*u+3, 64*u, opt.xflags))
    srd(a, 12, 6, MPT, 65536); srd(a, 28, 6, *(HF + 32768, 2048*7168 - 32768) if opt.reuse else (H1F, 0x400000))
    a('v_lshlrev_b32 v7, 4, v0\ns_lshl_b32 s24, s21, 12\nv_mov_b32 v12, 0x3f803f80')
    a('v_lshlrev_b32 v6, 5, v3\nv_add_u32 v6, %d, v6\nv_lshl_add_u32 v10, v2, 3, v6' % SS)
    for q in range(8):
        a('s_waitcnt vmcnt(%d)' % (7-q))
        for e in range(4):
            r = (D if q < 4 else M) + 4*(q % 4) + e
            a('v_dot2_f32_bf16 v%d, v%d, v12, %s' % (16+e, r, '0' if q == 0 else 'v%d' % (16+e)))
            a('v_dot2_f32_bf16 v%d, v%d, v%d, %s' % (20+e, r, r, '0' if q == 0 else 'v%d' % (20+e)))
    a('v_add_f32 v16, v16, v17\nv_add_f32 v18, v18, v19\nv_add_f32 v20, v20, v21\nv_add_f32 v22, v22, v23\nv_add_f32 v16, v16, v18\nv_add_f32 v17, v20, v22')
    xg_sum(a, [16, 17], [18, 19])
    a('ds_write_b64 v10, v[16:17]')
    def mloads():
        for p in range(4):
            for w, ch in enumerate((1, 0)):
                a('s_add_u32 s26, s24, %d' % (p*16384 + ch*8192))
                a('buffer_load_dwordx4 v[%d:%d], v7, s[12:15], s26 offen sc1' % (M+8*p+4*w, M+8*p+4*w+3))
    if opt.earlym: mloads()
    X = 48
    for i in range(16): unpack(a, X+2*i, X+2*i+1, D+i)
    a('s_waitcnt lgkmcnt(0)')
    nonce2(a)
    rt(a, 20)
    a('s_mov_b32 s27, 200000\ns_barrier')
    rt(a, 21)
    a('ds_read_b128 v[16:19], v6\nds_read_b128 v[20:23], v6 offset:16')
    if opt.earlym: a('s_branch ln1_chk')
    a.label('ln1_poll')
    mloads()
    a.label('ln1_chk')
    a('s_sub_u32 s27, s27, 1\ns_waitcnt vmcnt(0)')
    tg = [M+2*i+1 for i in range(16)]
    for op, d in (('v_min3_u32', 24), ('v_max3_u32', 25)):
        a('%s v%d, v%d, v%d, v%d' % (op, d, tg[0], tg[1], tg[2]))
        for i in range(3, 15, 2): a('%s v%d, v%d, v%d, v%d' % (op, d, d, tg[i], tg[i+1]))
        a('%s v%d, v%d, v%d, v%d' % (op, d, d, tg[15], tg[15]))
    a('v_xor_b32 v24, s3, v24\nv_xor_b32 v25, s3, v25\nv_or_b32 v24, v24, v25\nv_cmp_ne_u32 vcc, 0, v24')
    a('s_cmp_eq_u64 vcc, 0\ns_cbranch_scc1 ln1_ok\ns_cmp_lg_u32 s27, 0\ns_cbranch_scc1 ln1_poll')
    a.label('ln1_ok')
    rt(a, 22)
    if opt.ts: a('v_writelane_b32 v11, s27, 23')
    a('v_lshrrev_b32 v6, 2, v0\nv_lshlrev_b32 v6, 6, v6\nv_and_b32 v7, 3, v0\nv_lshl_add_u32 v6, v7, 3, v6\nv_add_u32 v6, %d, v6' % TB)
    for e in (0, 2, 4, 6): a('v_add_f32 v%d, v%d, v%d\nv_add_f32 v%d, v%d, v%d' % (M+e, M+e, M+8+e, M+16+e, M+16+e, M+24+e))
    for k_, e in enumerate((0, 2, 4, 6)): a('v_add_f32 v%d, v%d, v%d' % (24+k_, M+e, M+16+e))
    M = 24
    rndn(a, [M, M+1, M+2, M+3], [M+4, M+5])
    a('v_add_f32 v%d, 1.0, v%d\nv_add_f32 v%d, 1.0, v%d' % (M, M, M+1, M+1))
    rndn(a, [M, M+1], [M+4])
    a('ds_write_b64 v6, v[%d:%d]\nds_write_b64 v6, v[%d:%d] offset:32' % (M, M+1, M+2, M+3))
    a('s_waitcnt lgkmcnt(2)')
    a('v_pk_add_f32 v[16:17], v[16:17], v[18:19]\nv_pk_add_f32 v[20:21], v[20:21], v[22:23]\nv_pk_add_f32 v[16:17], v[16:17], v[20:21]')
    a('v_mul_f32 v9, 0x3a800000, v16\nv_mov_b32 v18, 0x3a800000\nv_mul_f32 v8, v9, v9\nv_fma_f32 v8, v17, v18, -v8')
    a('v_max_f32 v8, 0, v8\nv_add_f32 v8, 0x3727c5ac, v8\nv_rsq_f32 v8, v8')
    a('v_lshlrev_b32 v6, 10, v2\nv_lshl_add_u32 v6, v4, 6, v6\nv_add_u32 v6, %d, v6' % TB)
    a('v_lshlrev_b32 v5, 12, v2\nv_lshl_add_u32 v5, v1, 4, v5\ns_lshl_b32 s23, s21, 14\ns_mul_i32 s22, s20, %d\ns_add_u32 s23, s23, s22' % (1024*(112 if opt.reuse else 32)))
    a('s_waitcnt lgkmcnt(0)\ns_barrier')
    T = 80; X = 48
    for u in range(4):
        for e in range(4): a('ds_read_b128 v[%d:%d], v6 offset:%d' % (T+16*u+4*e, T+16*u+4*e+3, 256*u+16*e))
    a('v_mul_f32 v9, -v9, v8')
    for i in range(0, 32, 2): a('v_pk_fma_f32 v[%d:%d], v[%d:%d], v[8:9], v[8:9] op_sel:[0,0,1] op_sel_hi:[1,0,1]' % (X+i, X+i+1, X+i, X+i+1))
    for u in range(4):
        a('s_waitcnt lgkmcnt(%d)' % (12-4*u))
        for e in range(0, 8, 2): a('v_pk_fma_f32 v[%d:%d], v[%d:%d], v[%d:%d], v[%d:%d]' % (X+8*u+e, X+8*u+e+1, X+8*u+e, X+8*u+e+1, T+16*u+e, T+16*u+e+1, T+16*u+8+e, T+16*u+9+e))
        for e in range(4): a('v_cvt_pk_bf16_f32 v%d, v%d, v%d' % (D+4*u+e, X+8*u+2*e, X+8*u+2*e+1))
        a('buffer_store_dwordx4 v[%d:%d], v5, s[28:31], s23 offen offset:%d' % (D+4*u, D+4*u+3, 1024*u))
    a('s_waitcnt vmcnt(0)\ns_barrier')

KB, RW = 160, 176
def o_loads(a):
    srd(a, 16, 6, KVP, 0x2000000); srd(a, 20, 6, ZP, 0x200000)
    a('s_lshr_b32 s60, s42, 2\ns_lshl_b32 s61, s41, 1\ns_add_u32 s60, s60, s61\ns_and_b32 s61, s42, 3')
    a('s_lshl_b32 s62, s60, 16\ns_lshl_b32 s63, s61, 10\ns_add_u32 s62, s62, s63')
    a('s_lshl_b32 s63, s60, 12\ns_lshl_b32 s64, s61, 6\ns_add_u32 s63, s63, s64')
    a('v_lshlrev_b32 v156, 4, v1\nv_lshrrev_b32 v157, 4, v1\nv_lshlrev_b32 v157, 4, v157\nv_and_b32 v158, 15, v1\nv_lshl_add_u32 v157, v158, 8, v157')
    a('buffer_load_dwordx4 v[%d:%d], v157, s[20:23], s63 offen sc1' % (KB+8, KB+11))
    for m in range(16):
        a('s_lshl_b32 s64, s40, 1\ns_add_u32 s64, s64, %d\ns_and_b32 s64, s64, 15\ns_lshl_b32 s64, s64, 12\ns_add_u32 s64, s64, s62' % m)
        a('buffer_load_dwordx4 v[%d:%d], v156, s[16:19], s64 offen sc1' % (RW+4*m, RW+4*m+3))
    return ['oz'] + [('ok', m) for m in range(16)]
def o_reduce(a, vm):
    S = 244
    a('v_mov_b32 v%d, 0\nv_mov_b32 v%d, 0\nv_mov_b32 v%d, 0\nv_mov_b32 v%d, 0' % (S, S+1, S+4, S+5))
    a('v_bfe_u32 v157, v1, 2, 2\nv_lshrrev_b32 v158, 4, v1\nv_cmp_eq_u32 vcc, v157, v158')
    a('v_and_b32 v157, 1, v1\nv_lshlrev_b32 v157, 4, v157\nv_mov_b32 v158, 0x3f80\nv_lshlrev_b32 v157, v157, v158\nv_cndmask_b32 v157, 0, v157, vcc')
    a('v_and_b32 v158, 2, v1\nv_cmp_eq_u32 vcc, 0, v158\nv_cndmask_b32 v%d, 0, v157, vcc\nv_cndmask_b32 v%d, v157, v%d, vcc' % (S+2, S+3, S))
    vm.wait('oz')
    dpp_sum(a, [KB+8+e for e in range(4)], DPP16)
    for m in range(16):
        vm.wait(('ok', m))
        for h in range(2):
            d = KB + 4*h; A_ = S + 2 - 2*h
            a('v_mfma_f32_16x16x32_bf16 v[%d:%d], v[%d:%d], v[%d:%d], %s' % (d, d+3, A_, A_+3, RW+4*m, RW+4*m+3, '0' if m == 0 else 'v[%d:%d]' % (d, d+3)))
    a('s_lshr_b32 s60, s42, 2\ns_mul_i32 s60, s60, 6144\ns_bfe_u32 s61, s42, 0x10001\ns_lshl_b32 s61, s61, 10\ns_add_u32 s60, s60, s61\ns_and_b32 s61, s42, 1')
    a('s_lshl_b32 s62, s61, 11\ns_add_u32 s62, s62, s60\ns_lshl_b32 s61, s61, 3\ns_add_u32 s60, s60, s61')
    a('v_add_u32 v157, s60, v156\nv_add_u32 v158, s62, v156')
    for e in range(2): a('v_cvt_pk_bf16_f32 v%d, v%d, v%d' % (KB+12+e, KB+8+2*e, KB+9+2*e))
    a('ds_write_b64 v157, v[%d:%d] offset:4096' % (KB+12, KB+13))
    for e in range(4): a('v_cvt_pk_bf16_f32 v%d, v%d, v%d' % (RW+e, KB+2*e, KB+2*e+1))
    a('ds_write_b128 v158, v[%d:%d]' % (RW, RW+3))
    a('s_waitcnt lgkmcnt(0)\ns_barrier')
def o_compute(a, PHI, half):
    AF = RW; R = AF + 24
    KG = 112 if opt.reuse else 32
    srd(a, 20, 6, *(HF, 2048*7168) if opt.reuse else (OF, 0x400000))
    a('s_and_b32 s60, s42, 1\ns_mul_i32 s60, s60, 6144\nv_add_u32 v157, s60, v156')
    for t in range(3):
        for gam in range(2): a('ds_read_b128 v[%d:%d], v157 offset:%d' % (AF+(t*2+gam)*4, AF+(t*2+gam)*4+3, (t*2+gam)*1024))
    a('s_bfe_u32 s60, s42, 0x10001\ns_lshl_b32 s61, s93, 1\ns_add_u32 s60, s60, s61\ns_mul_i32 s60, s60, %d\ns_lshl_b32 s61, s58, 10\ns_add_u32 s60, s60, s61' % (4096*KG))
    if half: a('s_add_u32 s60, s60, %d' % (2048*KG))
    a('s_waitcnt lgkmcnt(0)')
    for gam in range(2):
        for t in (2, 0, 1):
            for i in range(2):
                d = R + (i*3+t)*4; A_ = AF+(t*2+gam)*4; B_ = PHI[(i, gam)]
                a('v_mfma_f32_16x16x32_bf16 v[%d:%d], v[%d:%d], v[%d:%d], %s' % (d, d+3, A_, A_+3, B_, B_+3, '0' if gam == 0 else 'v[%d:%d]' % (d, d+3)))
    dens = [R+(i*3+2)*4 for i in range(2)]
    for d in dens: a('v_add_f32 v%d, 0x358637bd, v%d' % (d, d))
    for d in dens: a('v_rcp_f32 v%d, v%d' % (d, d))
    for i in range(2):
        xs = list(range(R+i*12, R+i*12+8))
        for x in xs[::2]: a('v_pk_mul_f32 v[%d:%d], v[%d:%d], v[%d:%d] op_sel_hi:[1,0]' % (x, x+1, x, x+1, dens[i], dens[i]+1))
        for e in range(4): a('v_cvt_pk_bf16_f32 v%d, v%d, v%d' % (KB+4*i+e, xs[2*e], xs[2*e+1]))
        a('buffer_store_dwordx4 v[%d:%d], v156, s[20:23], s60 offen' % (KB+4*i, KB+4*i+3))
        a('s_add_u32 s60, s60, %d' % (1024*KG))
    a('s_waitcnt vmcnt(0)')

def feat2(a, QF, P, E, MX, W, sL, sink, mid=None, midpos=1, fill=None):
    for i in range(2):
        for ft in range(2):
            t = P + i*8 + ft*4
            a('v_mfma_f32_16x16x32_bf16 v[%d:%d], v[%d:%d], v[%d:%d], 0' % (t, t+3, W+ft*4, W+ft*4+3, QF+4*i, QF+4*i+3))
    fill = list(fill or [])
    def pop(n):
        for _ in range(n):
            if fill: a(fill.pop(0))
    pop(6)
    for rnd in range(4):
        for q in range(4):
            i = q % 2; n = '-' if q >= 2 else ''; b = P + 8*i
            if rnd == 0: a('v_max3_f32 v%d, %sv%d, %sv%d, %sv%d' % (MX+q, n, b, n, b+1, n, b+2))
            elif rnd < 3: a('v_max3_f32 v%d, v%d, %sv%d, %sv%d' % (MX+q, MX+q, n, b+1+2*rnd, n, b+2+2*rnd))
            else: a('v_max_f32 v%d, %sv%d, v%d' % (MX+q, n, b+7, MX+q))
    for st in bfly(a, 'v_max_f32', [MX+q for q in range(4)]):
        pop(2)
        for l in st: a(l)
    for q in range(4): a('v_mul_f32 v%d, s%d, v%d' % (MX+q, sL, MX+q))
    for i in range(2):
        for e in range(8): a('v_fma_f32 v%d, v%d, s%d, -v%d' % (E+8*i+e, P+8*i+e, sL, MX+i))
        for e in range(8): a('v_fma_f32 v%d, -v%d, s%d, -v%d' % (P+8*i+e, P+8*i+e, sL, MX+2+i))
    if mid and midpos == 0: mid()
    for i in range(16): a('v_exp_f32 v%d, v%d\nv_exp_f32 v%d, v%d' % (E+i, E+i, P+i, P+i))
    if mid and midpos == 1: mid()
    B_ = [E, E+8, P, P+8]
    for q in range(4): a('v_add_f32 v%d, v%d, v%d' % (MX+q, B_[q], B_[q]+1))
    for e in range(2, 8):
        for q in range(4): a('v_add_f32 v%d, v%d, v%d' % (MX+q, MX+q, B_[q]+e))
    for st in bfly(a, 'v_add_f32', [MX+q for q in range(4)]):
        pop(2)
        for l in st: a(l)
    pop(99)
    if mid and midpos == 2: mid()
    for q in range(4): a('v_rcp_f32 v%d, v%d' % (MX+q, MX+q))
    for q in range(4):
        for e in range(8): a('v_mul_f32 v%d, v%d, v%d' % (B_[q]+e, B_[q]+e, MX+q))
        for e in range(4): a('v_cvt_pk_bf16_f32 v%d, v%d, v%d' % (B_[q]+e, B_[q]+2*e, B_[q]+2*e+1))
        sink(q % 2, q // 2, B_[q])

def img_addr(a, WA, s_w, IMG):
    a('v_and_b32 v2, 15, v1\nv_lshrrev_b32 v3, 4, v1')
    hrow(a, 6, 2, 5)
    a('v_xor_b32 v6, v6, v3\nv_lshlrev_b32 v2, 7, v2')
    a('s_lshl_b32 s61, s%d, 13\ns_add_u32 s61, s61, %d\nv_add_u32 v2, s61, v2' % (s_w, IMG))
    for u in range(4): a('v_xor_b32 v5, %d, v6\nv_lshl_add_u32 v%d, v5, 3, v2' % (4*u, WA+u))
def hrow(a, dst, row, t):
    a('v_lshrrev_b32 v%d, 1, v%d\nv_and_b32 v%d, 3, v%d\nv_lshlrev_b32 v%d, 2, v%d' % (dst, row, dst, dst, dst, dst))
    a('v_and_b32 v%d, 1, v%d\nv_or_b32 v%d, v%d, v%d' % (t, row, dst, dst, t))
    a('v_lshrrev_b32 v%d, 2, v%d\nv_and_b32 v%d, 2, v%d\nv_or_b32 v%d, v%d, v%d' % (t, row, t, t, dst, dst, t))

def phase0(a, GS):
    V = 8; T = 48; CT = GS + 2048
    a('s_and_b32 s60, s2, 7\ns_lshl_b32 s60, s60, 3\ns_bfe_u32 s61, s2, 0x30003\ns_add_u32 s60, s60, s61\ns_lshr_b32 s61, s2, 6')
    a('s_lshl_b32 s62, s61, 9\ns_mul_i32 s63, s61, %d\ns_lshl_b32 s64, s60, 6\ns_add_u32 s63, s63, s64' % (256*12288))
    a('v_and_b32 v2, 255, v0\nv_mov_b32 v5, %d\nv_mov_b32 v6, 0\nv_mov_b32 v7, 0\nds_write_b32 v5, v6\nv_mov_b32 v3, 147392\nds_write_b64 v3, v[6:7]\ns_waitcnt lgkmcnt(0)' % CT)
    srd(a, 20, 74, 0, 2048); srd(a, 24, 76, 0, 1024*12288)
    vm = gemm.VM(a)
    gemv_issue(a, 4, 2, V, 20, 24, 62, 63, vm, R=4)
    a('s_barrier')
    nonce(a)
    def cpf():
        a('s_lshr_b32 s62, s2, 3\ns_cmp_eq_u32 s42, 7\ns_cselect_b32 s62, s62, 8\ns_min_u32 s62, s62, 8')
        code_pf(a, 'ph0', 'ph0_done', 'code_end', 62, 8, 250, 1, 64)
        vm.issue('cpf')
    if not opt.cpflate: cpf()
    srd(a, 16, 6, MPT, 65536)
    gemv_math(a, 4, V, T, vm, 58, R=4)
    a('v_lshrrev_b32 v3, 4, v2\nv_lshlrev_b32 v3, 7, v3\nv_and_b32 v4, 3, v1\nv_lshl_add_u32 v3, v4, 5, v3\nv_add_u32 v3, %d, v3' % GS)
    a('ds_write_b128 v3, v[%d:%d]\nds_write_b128 v3, v[%d:%d] offset:16' % (T+8, T+11, T+12, T+15))
    a('v_and_b32 v4, 31, v1\nv_lshrrev_b32 v3, 5, v1\nv_lshlrev_b32 v3, 10, v3\nv_lshl_add_u32 v3, v4, 2, v3\nv_add_u32 v3, %d, v3' % GS)
    a('s_lshl_b32 s60, s60, 8\ns_lshl_b32 s61, s61, 14\ns_add_u32 s60, s60, s61\nv_lshlrev_b32 v4, 3, v4\nv_mov_b32 v6, 1\ns_waitcnt lgkmcnt(0)')
    nonce2(a)
    a('s_mov_b64 exec, 1\nds_add_rtn_u32 v6, v5, v6\ns_mov_b64 exec, -1\ns_waitcnt lgkmcnt(0)')
    a('v_readfirstlane_b32 s59, v6\ns_cmp_lg_u32 s59, 3\ns_cbranch_scc1 ph0_nl')
    for p in range(8): a('ds_read_b32 v%d, v3 offset:%d' % (V+p, 128*p))
    a('v_mov_b32 v%d, s3\ns_waitcnt lgkmcnt(0)' % (V+9))
    for s_ in (4, 2):
        for p in range(s_): a('v_add_f32 v%d, v%d, v%d' % (V+p, V+p, V+p+s_))
    a('v_add_f32 v%d, v%d, v%d\nv_add_f32 v%d, v%d, v%d' % (V+8, V, V+1, V+2, V, V+1))
    a('v_permlane32_swap_b32 v%d, v%d\nv_add_f32 v%d, v%d, v%d' % (V+8, V+2, V+8, V+8, V+2))
    a('s_mov_b64 exec, 0xffffffff\nbuffer_store_dwordx2 v[%d:%d], v4, s[16:19], s60 offen\ns_mov_b64 exec, -1' % (V+8, V+9))
    a.label('ph0_nl')
    rt(a, 0)
    if opt.cpflate: cpf()
    srd(a, 16, 6, ZP, FL + 10*ROW - ZP)
    a('s_lshl_b32 s62, s2, 9\ns_lshl_b32 s63, s2, 11\ns_add_u32 s63, s63, %d\ns_cmp_eq_u32 s42, 4\ns_cselect_b32 s62, s62, s63\ns_cselect_b32 s63, 3, 15\ns_cmp_gt_u32 s42, 5\ns_cselect_b32 s62, 0x7000000, s62' % (FL - ZP))
    a('v_min_u32 v249, s63, v1\nv_lshlrev_b32 v249, 7, v249')
    a('buffer_load_dword v251, v249, s[16:19], s62 offen')
    a('s_lshl_b32 s62, s2, 8')
    for q in range(4): a('s_add_u32 s63, s62, %d\ns_load_dword s59, s[32:33], s63' % (64*q))
    a('s_and_b32 s62, s2, 31\ns_lshl_b32 s62, s62, 6\ns_load_dword s59, s[30:31], s62')
    a('s_min_u32 s62, s2, 111\ns_lshl_b32 s62, s62, 6\ns_load_dword s59, s[34:35], s62')
    n0, n1 = opt.spf0
    if n0 + n1:
        a('s_lshl_b32 s62, s2, 2\ns_add_u32 s62, s62, s42\ns_sub_u32 s62, s62, 4\ns_mul_i32 s62, s62, %d' % (64*(n0+n1)))
        if opt.qmir: a('s_lshr_b32 s62, s62, 1\ns_and_b32 s62, s62, -128\ns_and_b32 s63, s42, 1\ns_mul_i32 s63, s63, %d\ns_add_u32 s62, s62, s63' % (512*6144))
        a('s_add_u32 s64, s4, s62\ns_addc_u32 s65, s5, 0')
    for q in range(n0): a('s_load_dword s59, s[64:65], %d' % (64*q))
    a('s_barrier')
    for q in range(n0, n0+n1): a('s_load_dword s59, s[64:65], %d' % (64*q))
    a.label('ph0_done')

def ph_qkv(P, C, st):
    c = gemm.config('qkv', 1024, 128, 3, False, 64, 3, 6144, 2048, swap_frags=(4, 5), natw=True, tail_delay=opt.td0)
    WPH = c.lds; FLG = WPH + 4096
    EB = c.slot
    IMG = EB; VB = EB + 32768; QB = VB + 16384; GV = QB + 16384
    s_hd = 58; sL = 60
    tile_head(P, c, 8, 4, 128, [(74, P_C), (76, P_WMOD), (6, P_WS), (4, P_WQKV), (32, P_WPHI), (78, P_WO), (34, P_B1), (30, P_B2)])
    phase0(P, 2*c.slot + 4096)
    c.srd_hook = lambda a: [srd(a, *x) for x in [(8, 6) + ((HF + 32768, 2048*7168 - 32768) if opt.reuse else (H1F, 0x400000)), (12, 4, 0, 1024*6144)]]
    if opt.reuse: c.xKG = 112
    def boundary0(a, c, vm):
        if not opt.wlate & 1: a('s_barrier')
        a('s_barrier')
        psync(a, 'f1', 1, c.s_mt, c.s_nt, c.s_mt, part=0)
    def boundary(a, c, vm):
        if not opt.wlate & 1: boundary0(a, c, vm)
        if opt.prog1: prog_sync(a, c, 'f1', 1, opt.prog1, lambda a: a('s_lshr_b32 s60, s%d, 14\ns_lshl_b32 s60, 0x5555, s60' % c.s_kx))
        else: early_sync(c, 'f1', 1, None)(a)
    c.boundary = boundary
    if opt.wlate & 1: c.boundary0 = boundary0
    if opt.xsc1: c.xflags = ' sc1'
    def early_issue(a, c, vm):
        V = c.p_vfree
        srd(a, 16, 32, 0, 65536)
        a('v_lshrrev_b32 v%d, 3, v1\nv_and_b32 v%d, 2, v%d\nv_xor_b32 v%d, v1, v%d\nv_lshlrev_b32 v%d, 4, v%d' % (V, V, V, V, V, V, V))
        a('s_sub_u32 s59, s%d, 4\ns_lshl_b32 s59, s59, 10\ns_add_u32 m0, s59, %d\ns_lshl_b32 s61, s%d, 12\ns_add_u32 s59, s59, s61' % (c.s_wave, WPH, c.s_nt))
        a('buffer_load_dwordx4 v%d, s[16:19], s59 offen lds' % V)
        vm.issue('wphi')
    def tail_issue(a, c, vm):
        V = (c.p_vfree + 3)//4*4
        srd(a, 20, 74, 0, 2048); srd(a, 24, 76, 0, 1024*12288)
        a('s_lshr_b32 s61, s2, 6\ns_lshl_b32 s62, s61, 9\ns_mul_i32 s63, s61, %d' % (256*12288))
        a('s_and_b32 s64, s2, 63\ns_lshl_b32 s65, s64, 7\ns_add_u32 s63, s63, s65\ns_add_u32 s63, s63, 4096')
        a('v_and_b32 v%d, 255, v0' % (V+38))
        srd(a, 16, 34, 0, 7168)
        a('s_min_u32 s59, s2, 64\ns_mul_i32 s59, s59, 448\nv_lshlrev_b32 v249, 1, v%d\nbuffer_load_ushort v248, v249, s[16:19], s59 offen' % (V+38))
        vm.issue('b1')
        gemv_issue(a, 8, V+38, V, 20, 24, 62, 63, vm)
        for t_ in prefetch(a, c, 3 & ~opt.pfo): vm.issue(t_)
    def prefetch(a, c, which):
        V = (c.p_vfree + 3)//4*4
        tags = []
        if opt.pf2 and which & 1:
            srd(a, 28, 78, 0, 1024*2048)
            a('v_lshlrev_b32 v%d, 11, v%d\nv_lshl_add_u32 v%d, v%d, 7, v%d' % (V+39, c.p_vrow, V+39, c.p_vch, V+39))
            a('s_lshr_b32 s62, s2, 3\ns_lshl_b32 s62, s62, 2\ns_add_u32 s62, s62, s%d\ns_sub_u32 s62, s62, 4\ns_lshl_b32 s62, s62, 14' % c.s_wave)
            a('s_bfe_u32 s63, s2, 0x%x\ns_lshl_b32 s63, s63, 10\ns_add_u32 s62, s62, s63' % (0x10001 if opt.umap else 0x10002))
            a('buffer_load_dword v%d, v%d, s[28:31], s62 offen' % (251, V+39))
            tags.append('pf')
        if opt.pf5 and which & 2:
            a('s_load_dwordx2 s[30:31], s[0:1], %d' % P_W1)
            a('v_lshrrev_b32 v%d, 4, v1\nv_mul_u32_u24 v%d, 7168, v%d\nv_and_b32 v%d, 15, v1\nv_min_u32 v%d, 13, v%d\nv_lshl_add_u32 v%d, v%d, 7, v%d' % (V+39, V+39, V+39, 250, 250, 250, V+39, 250, V+39))
            a('s_lshr_b32 s62, s2, 3\ns_mul_i32 s62, s62, %d\ns_sub_u32 s63, s42, 4\ns_lshl_b32 s63, s63, 2\ns_add_u32 s62, s62, s63\ns_and_b32 s63, s2, 1\ns_lshl_b32 s63, s63, 9\ns_add_u32 s62, s62, s63\ns_mul_i32 s62, s62, 7168' % opt.pf5)
            a('s_bfe_u32 s63, s2, 0x20001\ns_mul_i32 s63, s63, 1792\ns_add_u32 s62, s62, s63\ns_waitcnt lgkmcnt(0)')
            srd(a, 28, 30, 0, 1024*7168)
            a('buffer_load_dword v%d, v%d, s[28:31], s62 offen' % (251, V+39))
            tags.append('pf')
        return tags

    PHI = {}
    def ptail(a, c, vm):
        V = (c.p_vfree + 3)//4*4
        QF = V + 40; P_ = QF + 20; E = P_ + 16; MX = E + 16; W = MX + 4; T = W + 8
        assert T + 24 <= 156 and P_ >= 48
        srd(a, 16, 6, UT, 32768)
        a('s_min_u32 s59, s2, 64\ns_lshl_b32 s59, s59, 11\nv_lshlrev_b32 v249, 1, v249\nv_mov_b32 v247, 0')
        vm.wait('b1')
        a('v_lshlrev_b32 v248, 16, v248\nbuffer_store_dword v247, v249, s[16:19], s59 offen sc1\nbuffer_store_dword v248, v249, s[16:19], s59 offen offset:1024 sc1')
        vm.issue('ut', 2)
        srd(a, 24, 6, MP2, 65536)
        a('s_mov_b32 s%d, 0x%x' % (sL, LOG2E))
        a('s_and_b32 s%d, s%d, 1' % (c.s_nh, c.s_wave))
        wphi_read(a, W, c.s_nh, WPH, 2, 3)
        a('s_lshl_b32 s59, s%d, 1\ns_add_u32 s%d, s59, s%d' % (c.s_nt, s_hd, c.s_nh))
        a('s_lshl_b32 s61, s61, 14\ns_lshl_b32 s64, s64, 8\ns_add_u32 s64, s64, s61')
        a('s_sub_u32 s61, s%d, 4\ns_lshl_b32 s62, s61, 12\ns_add_u32 s62, s62, %d' % (c.s_wave, QB))
        a('v_lshl_add_u32 v4, v1, 4, s62\ns_sub_u32 s62, s42, 4')
        WA = QF + 16
        img_addr(a, WA, 62, IMG)
        if opt.eprio: a('s_setprio %d' % opt.eprio)
        a('s_barrier')
        for i in range(4): a('ds_read_b128 v[%d:%d], v4 offset:%d' % (QF+4*i, QF+4*i+3, 1024*i))
        a('s_waitcnt lgkmcnt(2)')
        def sinkk(i, sg, B):
            for ft in range(2): a('ds_write_b64 v%d, v[%d:%d] offset:%d' % (WA+2*sg+ft, B+2*ft, B+2*ft+1, (2+i)*2048))
        feat2(a, QF, P_, E, MX, W, sL, sinkk)
        a('s_setprio 0\ns_waitcnt lgkmcnt(0)\ns_barrier')
        def sink(i, sg, B): PHI[(i, sg)] = B
        def mid():
            vm.wait('ut')
            psync(a, 'f2', 2, c.s_nt, c.s_mt, c.s_nt, part=0)
        feat2(a, QF+8, P_, E, MX, W, sL, sink, mid, opt.midpos)
        if opt.midpos == 3: mid()
        rt(a, 14)
        gemv_math(a, 8, V, T, vm, 59)
        a('v_lshrrev_b32 v2, 4, v%d\nv_lshlrev_b32 v2, 8, v2\nv_and_b32 v5, 7, v1\nv_lshl_add_u32 v2, v5, 5, v2\nv_add_u32 v2, %d, v2' % (V+38, GV))
        a('ds_write_b128 v2, v[%d:%d]\nds_write_b128 v2, v[%d:%d] offset:16' % (T+8, T+11, T+12, T+15))
        a('v_mov_b32 v5, %d\nv_mov_b32 v6, 1\ns_waitcnt lgkmcnt(0)' % (FLG+16))
        a('s_mov_b64 exec, 1\nds_add_rtn_u32 v6, v5, v6\ns_mov_b64 exec, -1\ns_waitcnt lgkmcnt(0)')
        a('v_readfirstlane_b32 s59, v6\ns_cmp_lg_u32 s59, 3\ns_cbranch_scc1 qkv_gvx')
        a('v_lshlrev_b32 v5, 2, v1\nv_add_u32 v6, %d, v5' % GV)
        for p in range(16): a('ds_read_b32 v%d, v6 offset:%d' % (T+p, 256*p))
        a('s_and_b32 s59, s2, 63\ns_lshl_b32 s59, s59, 2\ns_lshr_b32 s61, s2, 6\ns_add_u32 s59, s59, s61\ns_lshl_b32 s59, s59, %d\ns_add_u32 s59, s59, %d' % (MS, FL7))
        a('s_waitcnt lgkmcnt(0)')
        for s_ in (8, 4, 2, 1):
            for p in range(s_): a('v_add_f32 v%d, v%d, v%d' % (T+p, T+p, T+p+s_))
        a('buffer_store_dword v%d, v5, s[24:27], s64 offen sc1' % T)
        a('v_mov_b32 v6, s3\ns_waitcnt vmcnt(0)\ns_mov_b64 exec, 1')
        a('buffer_store_dword v6, v252, s[84:87], s59 offen sc1')
        a('s_mov_b64 exec, -1')
        a.label('qkv_gvx')
        rt(a, 15)
        psync(a, 'f2', 2, c.s_nt, c.s_mt, c.s_nt, part=1)
        a('s_mov_b32 s93, s%d\ns_mov_b32 s97, s%d' % (c.s_mt, c.s_nt))
        a('s_or_b32 s59, s2, s42\ns_cmp_lg_u32 s59, 4\ns_cbranch_scc1 qkv_nn\ns_mov_b32 s59, %d\nv_mov_b32 v253, s3\ns_mov_b64 exec, 1' % (NW - FL))
        a('buffer_store_dword v253, v252, s[84:87], s59 offen sc1\ns_mov_b64 exec, -1')
        a.label('qkv_nn')
        st['vm_init'] = vm.ops[vm.done+1:] + o_loads(a) + prefetch(a, c, opt.pfo)
    c.first_c = lambda c, j: '0'
    c.unroll = opt.unroll
    if opt.qmir:
        P('s_lshr_b32 s38, s%d, 3' % c.s_mt); c.mirror = 38
    c.early_issue, c.tail_issue, c.ptail = early_issue, tail_issue, ptail
    gemm.producer(P, c, None)
    if opt.ts and c.flags: P('v_writelane_b32 v255, s70, %d' % (24 + c.fbase//16))
    st['PHI'] = PHI
    a = C
    tile_head(a, c, 8, 4, 128, [(6, P_WS), (34, P_X)])
    ln1_body(a, c, 2*c.slot)
    rt(a, 1)
    for x in [(24, 6, KVP, 0x2000000), (28, 6, ZP, 0x200000)]: srd(a, *x)
    def zero_flags(a, c):
        a('v_lshlrev_b32 v2, 2, v1\nv_add_u32 v2, %d, v2\nv_mov_b32 v3, 0\nds_write_b32 v2, v3\ns_waitcnt lgkmcnt(0)' % FLG)
    def addrs(a, c):
        WA = c.v_free + 44; RA = WA + 4
        b = Asm()
        img_addr(b, WA, c.s_wave, IMG)
        b('v_lshrrev_b32 v2, 2, v1\nv_and_b32 v3, 3, v1')
        hrow(b, 6, 2, 5)
        b('v_xor_b32 v6, v6, v3\nv_lshlrev_b32 v2, 7, v2')
        b('s_lshl_b32 s61, s%d, 13\ns_add_u32 s61, s61, %d\nv_add_u32 v2, s61, v2' % (c.s_nh, IMG))
        b('s_lshl_b32 s61, s%d, 3\nv_xor_b32 v6, s61, v6' % c.s_rh)
        for u in range(2): b('v_xor_b32 v5, %d, v6\nv_lshl_add_u32 v%d, v5, 3, v2' % (4*u, RA+u))
        import re
        a.lines += [re.sub(r'\bv([56])\b', lambda m: 'v%d' % (int(m.group(1)) + 9), l) for l in b.lines]
    c.pre_hook2 = chain(addrs, zero_flags, None if opt.prog1 else BAR)
    c.post_b0 = lambda a, c: rt(a, 2)
    gemm.consumer(a, c)
    if c.stamps: gemm.dump_stamps(a, c)
    if opt.ts and c.flags: a('v_writelane_b32 v11, s70, %d' % (24 + c.fbase//16))
    rt(a, 3)
    a('s_lshl_b32 s%d, s%d, 1\ns_add_u32 s%d, s%d, s%d' % (s_hd, c.s_nt, s_hd, s_hd, c.s_nh))
    wphi_read(a, c.v_free, c.s_nh, WPH, 2, 3)
    W = c.v_free
    ACC = lambda j, i, r=0: c.v_acc + (j*4+i)*4 + r
    QF = 12; HB = 28; P_ = W + 8; E = P_ + 16; MX = E + 16; WA = MX + 4; RA = WA + 4; QQ = RA + 2 + 2
    a('s_mov_b32 s%d, 0x%x' % (sL, LOG2E))
    a('v_lshlrev_b32 v4, 4, v1')
    a('s_lshl_b32 s61, s%d, 12\ns_add_u32 s61, s61, %d' % (c.s_wave, QB))
    a('v_add_u32 v3, s61, v4')
    def pack(dst, j0, i):
        for h in range(2):
            for e in range(2): a('v_cvt_pk_bf16_f32 v%d, v%d, v%d' % (dst+2*h+e, ACC(j0+h, i, 2*e), ACC(j0+h, i, 2*e+1)))
    for n_, (j0, i) in enumerate(((2, 2), (2, 3), (0, 2), (0, 3))):
        pack(HB+4*n_, j0, i)
        a('ds_write_b128 v3, v[%d:%d] offset:%d' % (HB+4*n_, HB+4*n_+3, 1024*n_))
    pack(QF, 2, 0); pack(QF+4, 2, 1)
    a('s_waitcnt lgkmcnt(0)\ns_barrier')
    rt(a, 28)
    def sink(i, sg, B):
        for ft in range(2): a('ds_write_b64 v%d, v[%d:%d] offset:%d' % (WA+2*sg+ft, B+2*ft, B+2*ft+1, i*2048))
    keep = a.lines; a.lines = []
    pack(QQ, 0, 0); pack(QQ+4, 0, 1)
    a('s_lshl_b32 s61, s%d, 1\ns_add_u32 s61, s61, s%d\ns_lshl_b32 s61, s61, 12\ns_add_u32 s61, s61, %d' % (c.s_nh, c.s_rh, VB))
    a('v_add_u32 v3, s61, v4')
    for gam in range(2):
        for dt in range(2):
            q = c.v_acc + (gam*2+dt)*4
            for h in range(2):
                for e in range(2): a('v_cvt_pk_bf16_f32 v%d, v%d, v%d' % (q+2*h+e, ACC(4+dt, 2*gam+h, 2*e), ACC(4+dt, 2*gam+h, 2*e+1)))
            a('ds_write_b128 v3, v[%d:%d] offset:%d' % (q, q+3, (gam*2+dt)*1024))
    for e in range(4): a('v_mov_b32 v%d, 0x3f803f80' % (76+e))
    fl = [l.strip() for l in a.lines]; a.lines = keep
    feat2(a, QF, P_, E, MX, W, sL, sink, fill=fl)
    rt(a, 29)
    a('s_waitcnt lgkmcnt(0)\ns_barrier')
    rt(a, 30)
    AF = 12; VF = 44; ONE = 76; KV = ACC(2, 0)
    a('s_lshl_b32 s61, s%d, 13\ns_add_u32 s61, s61, %d\nv_add_u32 v3, s61, v4' % (c.s_nh, VB))
    for gp in range(4):
        rhp, gam = gp // 2, gp % 2
        for ftl in range(2):
            for t in range(2):
                q = AF + (ftl*4+gp)*4 + 2*t
                a('ds_read_b64_tr_b16 v[%d:%d], v%d offset:%d' % (q, q+1, RA+ftl, rhp*16384 + (gam*32 + t*16)*128))
        for dt in range(2):
            q = VF + (dt*4+gp)*4
            a('ds_read_b128 v[%d:%d], v3 offset:%d' % (q, q+3, (gp*2+dt)*1024))
    for gp in range(4):
        a('s_waitcnt lgkmcnt(%d)' % min(12, 6*(3-gp)))
        for ftl in range(2):
            for t in range(3):
                d = KV + (ftl*3+t)*4; A_ = AF + (ftl*4+gp)*4
                B_ = VF + (t*4+gp)*4 if t < 2 else ONE
                a('v_mfma_f32_16x16x32_bf16 v[%d:%d], v[%d:%d], v[%d:%d], %s' % (d, d+3, A_, A_+3, B_, B_+3, '0' if gp == 0 else 'v[%d:%d]' % (d, d+3)))
    a('s_lshl_b32 s61, s%d, 4\ns_add_u32 s61, s61, s%d' % (s_hd, c.s_mt))
    a('s_lshl_b32 s63, s61, 12\ns_lshl_b32 s64, s%d, 11\ns_add_u32 s63, s63, s64' % c.s_rh)
    a('s_lshl_b32 s61, s61, 8\ns_lshl_b32 s64, s%d, 7\ns_add_u32 s61, s61, s64' % c.s_rh)
    a('v_and_b32 v2, 15, v1\nv_cmp_eq_u32 vcc, 0, v2')
    for ftl in range(2):
        for e in range(4): a('v_cvt_pk_bf16_f32 v%d, v%d, v%d' % (AF+4*ftl+e, KV+(e//2)*12+4*ftl+2*(e%2), KV+(e//2)*12+4*ftl+2*(e%2)+1))
        a('buffer_store_dwordx4 v[%d:%d], v4, s[24:27], s63 offen offset:%d' % (AF+4*ftl, AF+4*ftl+3, ftl*1024))
    a('s_and_saveexec_b64 s[64:65], vcc')
    for ftl in range(2):
        d = KV + (ftl*3+2)*4
        a('buffer_store_dwordx4 v[%d:%d], v1, s[28:31], s61 offen offset:%d' % (d, d+3, ftl*64))
    a('s_mov_b64 exec, s[64:65]')
    rt(a, 4)
    a('s_waitcnt vmcnt(0)\ns_barrier')
    CPHI = {}
    def sinkq(i, sg, B): CPHI[(i, sg)] = B
    feat2(a, QQ, 12, 28, 44, W, sL, sinkq)
    a('s_mov_b32 s93, s%d\ns_barrier' % c.s_mt)
    rt(a, 5)
    vm = gemm.VM(a); vm.ops = o_loads(a)
    o_reduce(a, vm)
    o_compute(a, CPHI, 0)
    a('s_barrier')
    rt(a, 6)
    return c

def poll7(a, tag, offs, nw=4, wave=5):
    if wave is not None: a('s_cmp_lg_u32 s42, %d\ns_cbranch_scc1 %s_x' % (wave, tag))
    a('s_mov_b32 s90, 200000')
    a.label(tag + '_p')
    for q, so in enumerate(offs): a('s_load_dwordx%d s[%d:%d], s[6:7], s%d glc' % (nw, 68+nw*q, 68+nw*q+nw-1, so))
    a('s_sub_u32 s90, s90, 1\ns_waitcnt lgkmcnt(0)')
    n = nw*len(offs)
    for q in range(n): a('s_xor_b32 s%d, s%d, s3' % (68+q, 68+q))
    for q in range(1, n): a('s_or_b32 s68, s68, s%d' % (68+q))
    a('s_cbranch_scc0 %s_x' % tag)
    a('s_cmp_lg_u32 s90, 0\ns_cbranch_scc1 %s_p' % tag)
    a.label(tag + '_x')

def gates(a, c, chunks, bias, SC, V):
    nv = len(chunks)
    srd(a, 20, 6, MP2, 65536)
    a('v_lshrrev_b32 v%d, 4, v1\nv_lshlrev_b32 v%d, 14, v%d\nv_and_b32 v%d, 15, v1\nv_lshl_add_u32 v%d, v%d, 4, v%d' % (V+1, V+1, V+1, V+2, V+1, V+2, V+1))
    for q, ch in enumerate(chunks):
        a('s_lshl_b32 s61, s%d, 8\ns_add_u32 s61, s61, %d' % (c.s_nt, (ch-2)*4096))
        a('buffer_load_dwordx4 v[%d:%d], v%d, s[20:23], s61 offen sc1' % (V+4+4*q, V+7+4*q, V+1))
    if bias:
        srd(a, 20, bias, 0, 2048)
        a('v_lshlrev_b32 v%d, 3, v%d\ns_lshl_b32 s61, s%d, 7' % (V+3, V+2, c.s_nt))
        a('buffer_load_dwordx2 v[%d:%d], v%d, s[20:23], s61 offen' % (V+16, V+17, V+3))
    a('v_lshlrev_b32 v%d, 4, v%d\nv_add_u32 v%d, %d, v%d\ns_waitcnt vmcnt(0)' % (V+2, V+2, V+2, SC, V+2))
    xs = list(range(V+4, V+4+4*nv))
    xg_sum(a, xs, list(range(V+20, V+20+4*nv)))
    rndn(a, xs, list(range(V+20, V+26)))
    for q, ch in enumerate(chunks):
        if ch == 4:
            for e in range(4): a('v_add_f32 v%d, 1.0, v%d' % (V+4+4*q+e, V+4+4*q+e))
            rndn(a, list(range(V+4+4*q, V+8+4*q)), [V+20, V+21])
    if bias:
        for e in range(2): unpack(a, V+8+2*e, V+9+2*e, V+16+e)
        for e in range(4): a('v_mul_f32 v%d, v%d, v%d' % (V+8+e, V+8+e, V+4+e))
    for q in range(nv + (1 if bias else 0)): a('ds_write_b128 v%d, v[%d:%d] offset:%d' % (V+2, V+4+4*q, V+7+4*q, 256*q))
    a('s_waitcnt lgkmcnt(0)')

def res_phase(c, xsrd, fl=''):
    XT = 147456
    def tail(a, c, vm):
        V = c.p_vfree
        srd(a, 16, *xsrd)
        a('v_xor_b32 v%d, v%d, v%d\nv_lshlrev_b32 v%d, 4, v%d\nv_lshl_add_u32 v%d, v%d, 11, v%d' % (V, c.p_vrow, c.p_vch, V, V, V, c.p_vrow, V))
        a('s_sub_u32 s59, s%d, 4\ns_lshl_b32 s60, s%d, 2\ns_add_u32 s60, s60, s59\ns_lshl_b32 s60, s60, 16\ns_lshl_b32 s61, s%d, 7\ns_add_u32 s60, s60, s61' % (c.s_wave, c.s_mt, c.s_nt))
        a('s_lshl_b32 s59, s59, 12\ns_add_u32 s59, s59, %d' % XT)
        for i in range(4):
            a('s_add_u32 m0, s59, %d' % (1024*i))
            a('buffer_load_dwordx4 v%d, s[16:19], s60 offen%s lds' % (V, fl))
            a('s_add_u32 s60, s60, 16384')
        vm.issue('op', 4)
    XA = lambda c: c.v_free + 16 + 48
    c.XA = XA
    def rd(a, c):
        GA = c.v_free + 16
        a('v_lshrrev_b32 v3, 4, v1\nv_lshlrev_b32 v3, 4, v3\nv_add_u32 v3, %d, v3' % XT)
        for q in range(2):
            for j in range(4): a('ds_read_b128 v[%d:%d], v3 offset:%d' % (GA+16*q+4*j, GA+16*q+4*j+3, 256*q + 64*j))
    c.gate_rd = rd
    def pre(a, c):
        a('v_and_b32 v2, 7, v1\nv_lshrrev_b32 v3, 5, v1\nv_xor_b32 v2, v2, v3\nv_lshlrev_b32 v2, 4, v2\nv_bfe_u32 v3, v1, 4, 1\nv_lshl_add_u32 v2, v3, 3, v2')
        a('v_and_b32 v3, 15, v1\nv_lshl_add_u32 v2, v3, 7, v2\ns_lshl_b32 s61, s%d, 12\ns_add_u32 s61, s61, %d\nv_add_u32 v%d, s61, v2' % (c.s_wave, XT, XA(c)))
        for j in range(1, 4): a('v_xor_b32 v%d, %d, v%d' % (XA(c)+j, 32*j, XA(c)))
    def last_reads(c):
        XR = c.v_free
        return ['ds_read_b64 v[%d:%d], v%d offset:%d' % (XR+8*i+2*j, XR+8*i+2*j+1, XA(c)+j, 2048*i) for i in range(2) for j in range(4)]
    c.pre_hook, c.last_reads, c.pre_last_bar = pre, last_reads, (lambda a, c, vm: vm.wait('op'))
    c.first_c = lambda c, j: '0'
    return tail

P2 = lambda x: 'v[%d:%d]' % (x, x+1)
def res_out(a, c, sOut, bias=False):
    XR = c.v_free; GA = XR + 16
    ACC = lambda j, i, r=0: c.v_acc + (i*4+j)*4 + r
    a('s_lshl_b32 s58, s%d, 2\ns_add_u32 s58, s58, s%d' % (c.s_mt, c.s_wave))
    a('s_lshl_b32 s60, s58, 16\ns_lshl_b32 s61, s%d, 7\ns_add_u32 s60, s60, s61' % c.s_nt)
    U = 12; PK = 44
    a('v_and_b32 v2, 15, v1\nv_lshlrev_b32 v2, 11, v2\nv_bfe_u32 v3, v1, 4, 1\nv_lshl_add_u32 v2, v3, 5, v2\nv_lshrrev_b32 v3, 5, v1\nv_lshl_add_u32 v2, v3, 4, v2')
    a('s_add_u32 s61, s60, 32768')
    a('s_waitcnt lgkmcnt(0)')
    def part(i, store=True):
        for j in range(4):
            for e in range(2): unpack(a, U+16*i+4*j+2*e, U+16*i+4*j+2*e+1, XR+8*i+2*j+e)
        if bias:
            for j in range(4):
                for r in (0, 2): a('v_pk_add_f32 %s, %s, %s' % (P2(U+16*i+4*j+r), P2(U+16*i+4*j+r), P2(GA+16+4*j+r)))
        for j in range(4):
            for r in (0, 2): a('v_pk_fma_f32 %s, %s, %s, %s' % (P2(ACC(j,i,r)), P2(ACC(j,i,r)), P2(GA+4*j+r), P2(U+16*i+4*j+r)))
    def out(i):
        for j in range(4):
            for e in range(2): a('v_cvt_pk_bf16_f32 v%d, v%d, v%d' % (PK+8*i+2*j+e, ACC(j,i,2*e), ACC(j,i,2*e+1)))
        if sOut is None:
            for j in range(4): a('ds_write_b64 v%d, v[%d:%d] offset:%d' % (c.XA(c)+j, PK+8*i+2*j, PK+8*i+2*j+1, 2048*i))
            return
        for jp in range(2):
            for e in range(2): a('v_permlane16_swap_b32 v%d, v%d' % (PK+8*i+4*jp+e, PK+8*i+4*jp+2+e))
        for jp in range(2):
            a('buffer_store_dwordx4 v[%d:%d], v2, s[%d:%d], s%d offen offset:%d' % (PK+8*i+4*jp, PK+8*i+4*jp+3, sOut, sOut+3, 60+i, 64*jp))
    return part, out

def ph_wo(P, C, st):
    c = gemm.config('wo', 1024, 128, 1, False, opt.woBK, opt.woS, 2048, 128, rows4=True, KS=2, rpm=opt.rpm, slot0=1, unroll=True)
    c.order = opt.wo_order; c.G = opt.wo_G
    whead = uhead if opt.umap else (lambda a, c, p: tile_head(a, c, 4, 8, 128, p))
    whead(P, c, [(4, P_WO), (32, P_X), (34, P_W1)])
    c.srd_hook = lambda a: [srd(a, *x) for x in [(8, 6) + ((HF, 2048*7168) if opt.reuse else (OF, 0x400000)), (12, 4, 0, 1024*2048)]]
    if opt.reuse: c.xKG = 112
    c.vm_init = st['vm_init']
    if opt.xsc1: c.xflags = ' sc1'
    def boundary(a, c, vm):
        rt(a, 16)
        o_reduce(a, vm)
        rt(a, 17)
        o_compute(a, st['PHI'], 1)
        psync(a, 'f3', 3, 93, 97, c.s_mt, part=0)
        if opt.pf3:
            V = 40
            srd(a, 28, 34, 0, 1024*7168)
            a('v_lshrrev_b32 v%d, 4, v1\nv_mul_u32_u24 v%d, 7168, v%d\nv_and_b32 v%d, 15, v1\nv_min_u32 v%d, 13, v%d\nv_lshl_add_u32 v%d, v%d, 7, v%d' % (V, V, V, V+1, V+1, V+1, V, V+1, V))
            a('s_lshr_b32 s61, s2, 3\ns_lshl_b32 s61, s61, 2\ns_add_u32 s61, s61, s42\ns_sub_u32 s61, s61, 4\ns_mul_i32 s61, s61, %d' % (4*7168))
            a('s_bfe_u32 s62, s2, 0x20001\ns_mul_i32 s62, s62, 1792\ns_add_u32 s61, s61, s62')
            for q in range(opt.pf3):
                a('buffer_load_dword v251, v%d, s[28:31], s61 offen\ns_add_u32 s61, s61, %d' % (V, 512*7168))
            vm.issue('pf', opt.pf3)
        a('s_cmp_lg_u32 s42, 6\ns_cbranch_scc1 wo7_x')
        w1_tau(a)
        a('v_lshrrev_b32 v40, 2, v1\nv_cmp_gt_u32 vcc, 2, v40\nv_mov_b32 v41, s65\nv_mov_b32 v42, s%d\nv_cndmask_b32 v41, v41, v42, vcc\nv_lshlrev_b32 v41, 2, v41' % c.s_nt)
        a('v_lshlrev_b32 v40, 2, v40\nv_mov_b32 v42, 0x2120\nv_lshrrev_b32 v40, v40, v42\nv_and_b32 v40, 3, v40\nv_lshl_add_u32 v41, v40, 6, v41\nv_and_b32 v40, 3, v1\nv_add_u32 v41, v40, v41\nv_lshlrev_b32 v41, %d, v41' % MS)
        a('s_mov_b32 s61, %d\ns_mov_b64 exec, 0xffff' % FL7)
        a.label('wo7_p')
        a('buffer_load_dword v40, v41, s[84:87], s61 offen sc1\ns_sub_u32 s90, s90, 1\ns_waitcnt vmcnt(0)\nv_cmp_ne_u32 vcc, s3, v40')
        a('s_cmp_eq_u64 vcc, 0\ns_cbranch_scc1 wo7_y\ns_cmp_lg_u32 s90, 0\ns_cbranch_scc1 wo7_p')
        a.label('wo7_y')
        a('s_mov_b64 exec, -1')
        gates(a, c, [2, 4], None, 147456, 160)
        a.label('wo7_x')
        if opt.prog3: prog_sync(a, c, 'f3', 3, opt.prog3, lambda a: a('s_lshr_b32 s60, s%d, 11\ns_lshl_b32 s60, 3, s60' % c.s_kx))
        else: early_sync(c, 'f3', 3, None)(a)
    c.boundary = boundary
    c.tail_issue = res_phase(c, (32, 0, 0x400000))
    gemm.producer(P, c, None)
    if opt.ts and c.flags: P('v_writelane_b32 v255, s70, %d' % (24 + c.fbase//16))
    assert c.vm.done == len(c.vm.ops) - 1
    P('s_mov_b32 s93, s%d\ns_mov_b32 s97, s%d' % (c.s_mt, c.s_nt))
    a = C
    whead(a, c, [])
    if not opt.umap: srd(a, 24, 6, X1, 0x400000)
    for x in [(28, 6, ST2, 0x40000), (16, 6, H2F, 0x400000)]: srd(a, *x)
    c.pre_hook2 = None if opt.prog3 else chain(BAR, c.gate_rd)
    c.post_b0 = chain(lambda a, c: rt(a, 7), c.gate_rd if opt.prog3 else None)
    gemm.consumer(a, c)
    if c.stamps: gemm.dump_stamps(a, c)
    if opt.ts and c.flags: a('v_writelane_b32 v11, s70, %d' % (24 + c.fbase//16))
    rt(a, 8)
    ACC = lambda j, i, r=0: c.v_acc + (i*4+j)*4 + r
    part, out = res_out(a, c, None)
    part(0); part(1)
    Q = 60
    for i in range(2):
        xs = [ACC(j,i,r) for j in range(4) for r in (0, 2)]
        S0, Q0 = 64+8*i, 68+8*i
        for k in range(2): a('v_pk_add_f32 %s, %s, %s' % (P2(S0+2*k), P2(xs[k]), P2(xs[2+k])))
        for k in range(2): a('v_pk_mul_f32 %s, %s, %s' % (P2(Q0+2*k), P2(xs[k]), P2(xs[k])))
        for m in (4, 6):
            for k in range(2): a('v_pk_add_f32 %s, %s, %s' % (P2(S0+2*k), P2(S0+2*k), P2(xs[m+k])))
        for m in (2, 4, 6):
            for k in range(2): a('v_pk_fma_f32 %s, %s, %s, %s' % (P2(Q0+2*k), P2(xs[m+k]), P2(xs[m+k]), P2(Q0+2*k)))
        a('v_pk_add_f32 %s, %s, %s\nv_pk_add_f32 %s, %s, %s' % (P2(S0), P2(S0), P2(S0+2), P2(Q0), P2(Q0), P2(Q0+2)))
        a('v_add_f32 v%d, v%d, v%d\nv_add_f32 v%d, v%d, v%d' % (Q+i, S0, S0+1, Q+2+i, Q0, Q0+1))
    for s_ in bfly(a, 'v_add_f32', [Q, Q+1, Q+2, Q+3])[:4]:
        for l in s_: a(l)
    a('v_and_b32 v4, 15, v1\nv_lshrrev_b32 v3, 5, v1\nv_lshl_add_u32 v4, v3, 4, v4\nv_lshlrev_b32 v4, 3, v4\nv_bfe_u32 v3, v1, 4, 1\nv_lshl_add_u32 v4, v3, 2, v4')
    a('s_lshl_b32 s63, s58, 8\ns_lshl_b32 s62, s%d, 14\ns_add_u32 s62, s63, s62' % c.s_nt)
    a('buffer_store_dword v%d, v4, s[28:31], s62 offen sc1' % Q)
    a('v_and_b32 v4, 15, v1\nv_lshlrev_b32 v4, 4, v4\nv_bfe_u32 v3, v1, 4, 1\nv_lshl_add_u32 v4, v3, 9, v4\nv_lshrrev_b32 v3, 5, v1\nv_lshl_add_u32 v4, v3, 8, v4')
    a('s_lshl_b32 s62, s58, 16\ns_lshl_b32 s63, s%d, 11\ns_add_u32 s62, s62, s63\ns_add_u32 s63, s62, 32768' % c.s_nt)
    A2 = c.v_free + 32; PK = 88; U = 12
    for i in range(2):
        for j in range(4):
            for r in (0, 2): a('v_pk_mul_f32 %s, %s, %s' % (P2(U+16*i+4*j+r), P2(ACC(j,i,r)), P2(A2+4*j+r)))
        for j in range(4):
            for e in range(2): a('v_cvt_pk_bf16_f32 v%d, v%d, v%d' % (PK+8*i+2*j+e, U+16*i+4*j+2*e, U+16*i+4*j+2*e+1))
        for jp in range(2):
            for e in range(2): a('v_permlane16_swap_b32 v%d, v%d' % (PK+8*i+4*jp+e, PK+8*i+4*jp+2+e))
        for jp in range(2):
            a('buffer_store_dwordx4 v[%d:%d], v4, s[16:19], s%d offen offset:%d' % (PK+8*i+4*jp, PK+8*i+4*jp+3, 62+i, 1024*jp))
    if opt.umap: out(0); out(1)
    rt(a, 9)
    a('s_waitcnt vmcnt(0)\ns_barrier')
    if not opt.umap:
        PK = 44
        a('s_lshl_b32 s61, s42, 12\ns_add_u32 s61, s61, 147456\nv_add_u32 v5, s61, v4')
        for i in range(2):
            for j in range(4):
                for e in range(2): a('v_cvt_pk_bf16_f32 v%d, v%d, v%d' % (PK+8*i+2*j+e, ACC(j,i,2*e), ACC(j,i,2*e+1)))
            for jp in range(2):
                for e in range(2): a('v_permlane16_swap_b32 v%d, v%d' % (PK+8*i+4*jp+e, PK+8*i+4*jp+2+e))
            for jp in range(2):
                if opt.x1p: a('ds_write_b128 v5, v[%d:%d] offset:%d' % (PK+8*i+4*jp, PK+8*i+4*jp+3, 2048*i + 1024*jp))
                else: a('buffer_store_dwordx4 v[%d:%d], v4, s[24:27], s%d offen offset:%d' % (PK+8*i+4*jp, PK+8*i+4*jp+3, 62+i, 1024*jp))
    rt(a, 10)
    return c

def w1_tau(a):
    a('s_lshr_b32 s61, s2, 3\ns_lshr_b32 s62, s61, 3\ns_add_u32 s62, s62, s61\ns_and_b32 s62, s62, 3')
    a('s_cmp_eq_u32 s62, 0\ns_cselect_b32 s63, 4, s62\ns_lshl_b32 s64, s62, 2\ns_lshr_b32 s64, 0x1431, s64\ns_and_b32 s64, s64, 15')
    a('s_add_u32 s65, s62, 1\ns_and_b32 s65, s65, 3\ns_add_u32 s62, s63, 3\ns_bitcmp1_b32 s61, 2\ns_cselect_b32 s64, s63, s64\ns_cselect_b32 s65, s62, s65')
    a('s_and_b32 s61, s2, 1\ns_lshl_b32 s61, s61, 3\ns_add_u32 s65, s65, s61')

def ph_w1(P, C, st):
    c = gemm.config('w1', 1024, 128, 3, True, 64, 3, 7168, 128, natw=True, tail_delay=opt.td1)
    BT = c.lds
    tile_head(P, c, 8, 4, 448, [(4, P_W1), (34, P_W2)])
    c.srd_hook = lambda a: [srd(a, *x) for x in [(8, 6, H2F, 0x400000), (12, 4, 0, 1024*7168)]]
    if opt.xsc1: c.xflags = ' sc1'
    XE = BT; RS = XE + 2048; UTL = RS + 1024; UTL2 = UTL + 2048
    tau = w1_tau
    tau(P)
    P('s_add_u32 s92, s64, 1\ns_lshr_b32 s38, s%d, 3' % c.s_mt)
    c.mirror = 38
    def boundary0(a, c, vm):
        psync(a, 'f5', 5, 93, 97, c.s_mt, part=0)
        V = (c.p_vfree + 3)//4*4
        srd(a, 20, 6, MP2, 65536); srd(a, 24, 6, ST2, 0x40000); srd(a, 16, 6, UT, 32768)
        a('v_lshrrev_b32 v%d, 4, v1\nv_lshlrev_b32 v%d, 14, v%d\nv_and_b32 v%d, 15, v1\nv_lshl_add_u32 v%d, v%d, 4, v%d' % (V+1, V+1, V+1, V+2, V+1, V+2, V+1))
        for q, ch in enumerate((4, 3)):
            a('s_lshl_b32 s61, s65, 8\ns_add_u32 s61, s61, %d' % ((ch-2)*4096))
            a('buffer_load_dwordx4 v[%d:%d], v%d, s[20:23], s61 offen sc1' % (V+4+4*q, V+7+4*q, V+1))
        vm.issue('xe', 2)
    def boundary(a, c, vm):
        vm.wait('xe')
        if opt.pf6: tail_issue(a, c, vm, True)
        pre_b0(a, c, vm)
        if opt.prog5: prog_sync(a, c, 'f5', 5, opt.prog5, lambda a: a('s_lshr_b32 s60, s%d, 11\ns_lshl_b32 s60, 1, s60' % c.s_kx))
        else: early_sync(c, 'f5', 5, None)(a)
    c.boundary0, c.boundary = boundary0, boundary
    def pre_b0(a, c, vm):
        V = (c.p_vfree + 3)//4*4
        xs = list(range(V+4, V+12))
        for e in range(4): a('v_mov_b32 v%d, 0' % (V+20+e))
        a('v_lshlrev_b32 v%d, 4, v1\nv_add_u32 v%d, %d, v%d' % (V+3, V+3, XE, V+3))
        a('ds_write_b128 v%d, v[%d:%d]\nds_write_b128 v%d, v[%d:%d] offset:1024' % (V+3, V+20, V+23, V+3, V+20, V+23))
        xg_sum(a, xs, list(range(V+12, V+20)))
        rndn(a, xs[:4], [V+12, V+13])
        for e in range(4): a('v_add_f32 v%d, 1.0, v%d' % (V+4+e, V+4+e))
        for e in range(4): a('v_cvt_pk_bf16_f32 v%d, v%d, v%d' % (V+12+e, V+4+2*e, V+5+2*e))
        a('v_lshrrev_b32 v%d, 1, v%d\nv_lshlrev_b32 v%d, 8, v%d\nv_and_b32 v%d, 1, v%d\nv_lshl_add_u32 v%d, v%d, 3, v%d\nv_add_u32 v%d, %d, v%d' % (V+3, V+2, V+3, V+3, V+2, V+2, V+3, V+2, V+3, V+3, XE, V+3))
        a('ds_write_b64 v%d, v[%d:%d]\nds_write_b64 v%d, v[%d:%d] offset:16' % (V+3, V+12, V+13, V+3, V+14, V+15))
        a('s_waitcnt lgkmcnt(0)')
    def iter_hook(a, c, vm, k):
        V = (c.p_vfree + 3)//4*4 + 48
        if k == opt.x1at and opt.x1p:
            srd(a, 28, 6, X1, 0x400000)
            a('s_sub_u32 s60, s42, 4\ns_lshl_b32 s61, s60, 12\ns_add_u32 s61, s61, 147456\nv_lshl_add_u32 v%d, v1, 4, s61\nv_lshlrev_b32 v%d, 4, v1' % (V+4, V+5))
            for q in range(4): a('ds_read_b128 v[%d:%d], v%d offset:%d' % (V+8+4*q, V+11+4*q, V+4, 1024*q))
            a('s_lshl_b32 s61, s93, 2\ns_add_u32 s60, s60, s61\ns_lshl_b32 s60, s60, 16\ns_lshl_b32 s61, s97, 11\ns_add_u32 s60, s60, s61\ns_add_u32 s61, s60, 32768\ns_waitcnt lgkmcnt(0)')
            for q in range(4): a('buffer_store_dwordx4 v[%d:%d], v%d, s[28:31], s%d offen offset:%d' % (V+8+4*q, V+11+4*q, V+5, 60 + q//2, 1024*(q % 2)))
            vm.issue('x1', 4)
        V = (c.p_vfree + 3)//4*4 + 24
        if k == opt.ut_at - 2:
            a('s_lshl_b32 s60, s%d, %d\ns_add_u32 s60, s60, %d\nv_lshlrev_b32 v%d, 5, v1\nbuffer_load_dword v%d, v%d, s[84:87], s60 offen sc1' % (c.s_nt, MS+4, 4*ROW, V+23, V+22, V+23))
            vm.issue('f9')
        if k == opt.ut_at:
            vm.wait('f9')
            a('s_mov_b32 s90, 200000')
            a.label('w19_p')
            a('v_cmp_ne_u32 vcc, s3, v%d\ns_cmp_eq_u64 vcc, 0\ns_cbranch_scc1 w19_y' % (V+22))
            a('buffer_load_dword v%d, v%d, s[84:87], s60 offen sc1\ns_sub_u32 s90, s90, 1\ns_waitcnt vmcnt(0)\ns_cmp_lg_u32 s90, 0\ns_cbranch_scc1 w19_p' % (V+22, V+23))
            a.label('w19_y')
        if k == opt.ut_at:
            a('v_lshlrev_b32 v%d, 4, v1\ns_lshl_b32 s60, s%d, 11\ns_mov_b32 m0, %d' % (V, c.s_nt, UTL2))
            a('buffer_load_dwordx4 v%d, s[16:19], s60 offen sc1 lds\nbuffer_load_dwordx4 v%d, s[16:19], s60 offen offset:1024 sc1 lds' % (V, V))
            a('v_and_b32 v%d, 15, v1\nv_lshlrev_b32 v%d, 4, v%d\nv_lshrrev_b32 v%d, 4, v1\nv_lshl_add_u32 v%d, v%d, 14, v%d' % (V, V, V, V+1, V+1, V+1, V))
            a('s_lshl_b32 s60, s%d, 2\ns_add_u32 s60, s60, s42\ns_sub_u32 s60, s60, 4\ns_lshl_b32 s60, s60, 8' % c.s_mt)
            for q in range(4):
                a('buffer_load_dwordx4 v[%d:%d], v%d, s[24:27], s60 offen sc1\ns_add_u32 s60, s60, 65536' % (V+4+4*q, V+7+4*q, V+1))
            vm.issue('st', 6)
    def bar_hook(a, c, vm, k):
        V = (c.p_vfree + 3)//4*4 + 48
        if k == (opt.x1at + 3 if opt.x1p else 1) and not opt.umap:
            a('s_cmp_lg_u32 s42, 4\ns_cbranch_scc1 w1_nx\ns_lshl_b32 s61, s93, 4\ns_add_u32 s61, s61, s97\ns_lshl_b32 s61, s61, %d\ns_add_u32 s61, s61, %d\nv_mov_b32 v253, s3\ns_mov_b64 exec, 1' % (MS, 9*ROW))
            a('buffer_store_dword v253, v252, s[84:87], s61 offen sc1\ns_mov_b64 exec, -1')
            a.label('w1_nx')
        if k == 1:
            a('s_lshl_b32 s95, s%d, %d\ns_add_u32 s95, s95, %d\ns_lshl_b32 s94, s%d, %d\ns_add_u32 s95, s95, s94\nv_mov_b32 v253, s3' % (c.s_nt, MS+4, 4*ROW, c.s_mt, MS))
            a('s_sub_u32 s94, s42, 4\ns_lshl_b32 s94, s94, 9\nv_lshl_add_u32 v%d, v1, 2, s94\nv_add_u32 v%d, %d, v%d\ns_lshl_b32 s94, s%d, 11' % (V, V+1, UTL, V, c.s_nt))
            a('s_add_u32 s96, s92, 1\ns_sub_u32 s60, s42, 4\ns_lshl_b32 s60, s60, 5\ns_add_u32 s95, s95, s60')
        if 2 <= k <= 5:
            a('s_cmp_lg_u32 s92, %d\ns_cbranch_scc1 w1_np%d' % (k, k))
            a('ds_read_b32 v%d, v%d\nds_read_b32 v%d, v%d offset:256\ns_waitcnt lgkmcnt(0)' % (V+2, V+1, V+3, V+1))
            a('buffer_atomic_add_f32 v%d, v%d, s[16:19], s94 offen\nbuffer_atomic_add_f32 v%d, v%d, s[16:19], s94 offen offset:256' % (V+2, V, V+3, V))
            a.label('w1_np%d' % k)
        if 4 <= k <= 7:
            a('s_cmp_lg_u32 s96, %d\ns_cbranch_scc1 w1_ns%d\ns_mov_b64 exec, 1' % (k-1, k))
            a('buffer_store_dword v253, v252, s[84:87], s95 offen sc1\ns_mov_b64 exec, -1')
            a.label('w1_ns%d' % k)
    def ptail(a, c, vm):
        V = (c.p_vfree + 3)//4*4 + 24
        b = V+4
        vm.wait('st')
        for st_ in (8, 4):
            for e in range(0, st_, 2): a('v_pk_add_f32 %s, %s, %s' % (P2(b+e), P2(b+e), P2(b+e+st_)))
        xg_sum(a, [b, b+1, b+2, b+3], [b+4, b+5, b+6, b+7])
        a('v_mov_b32 v%d, 0x3a800000' % (b+8))
        for h in (0, 2):
            a('v_mul_f32 v%d, v%d, v%d\nv_mul_f32 v%d, v%d, v%d\nv_fma_f32 v%d, v%d, v%d, -v%d' % (b+5+h, b+h, b+8, b+4+h, b+5+h, b+5+h, b+4+h, b+1+h, b+8, b+4+h))
            a('v_max_f32 v%d, 0, v%d\nv_add_f32 v%d, 0x3727c5ac, v%d\nv_rsq_f32 v%d, v%d\nv_mul_f32 v%d, -v%d, v%d' % (b+4+h, b+4+h, b+4+h, b+4+h, b+4+h, b+4+h, b+5+h, b+5+h, b+4+h))
        a('s_sub_u32 s60, s42, 4\ns_lshl_b32 s60, s60, 8\ns_add_u32 s60, s60, %d\nv_add_u32 v%d, s60, v%d' % (RS, V, V))
        a('ds_write_b128 v%d, v[%d:%d]\ns_waitcnt lgkmcnt(0)' % (V, b+4, b+7))
    c.iter_hook, c.bar_hook = iter_hook, bar_hook
    if opt.ptail:
        c.ptail = lambda a, c, vm: (ptail(a, c, vm), a('s_barrier'))
        st['w1_ptail'] = lambda a, vm: a('s_barrier')
    else: st['w1_ptail'] = lambda a, vm: (ptail(a, c, vm), a('s_barrier'))
    def tail_issue(a, c, vm, early=False):
        V = c.p_vfree
        if opt.pf4 not in (1, 3): return
        srd(a, 28, 34, 0, 3584*2048)
        a('v_lshlrev_b32 v%d, 11, v%d\nv_lshl_add_u32 v%d, v%d, 7, v%d' % (V, c.p_vrow, V, c.p_vch, V))
        a('s_bfe_u32 s62, s2, 0x10002\ns_lshl_b32 s62, s62, 1\ns_and_b32 s63, s2, 1\ns_add_u32 s62, s62, s63\ns_mul_i32 s62, s62, 896\ns_lshr_b32 s61, s2, 3\ns_mul_i32 s61, s61, 28\ns_add_u32 s62, s62, s61')
        a('s_sub_u32 s61, s42, 4\ns_lshl_b32 s61, s61, 3\ns_add_u32 s62, s62, s61\ns_lshl_b32 s62, s62, 11\ns_bfe_u32 s63, s2, 0x10001\ns_lshl_b32 s63, s63, 10\ns_add_u32 s62, s62, s63')
        if opt.pf6: a('s_mov_b64 exec, 0x%x' % ((1 << opt.pf6) - 1) if early else 's_lshl_b64 exec, -1, %d' % opt.pf6)
        a('buffer_load_dword v251, v%d, s[28:31], s62 offen\ns_mov_b64 exec, -1' % V)
        vm.issue('pf')
    c.tail_issue = tail_issue
    c.unroll = True
    gemm.producer(P, c, None)
    if opt.ts and c.flags: P('v_writelane_b32 v255, s70, %d' % (24 + c.fbase//16))
    P('s_mov_b32 s93, s%d\ns_mov_b32 s97, s%d' % (c.s_mt, c.s_nt))
    st['vm_init'] = c.vm.ops[c.vm.done+1:]
    a = C
    tile_head(a, c, 8, 4, 448, [])
    srd(a, 24, 6, HF, 2048*7168)
    ACC = lambda j, i, r=0: (c.v_acc + (j*4+i)*4 + r) if j < 6 else (c.v_acc + 96 + ((j-6)*2+i)*4 + r)
    tau(a)
    def pre(a, c):
        a('s_lshl_b32 s58, s%d, 6\ns_add_u32 s58, s58, s%d' % (c.s_nh, c.s_col0))
        a('s_mul_i32 s59, s%d, 448\ns_sub_u32 s60, s58, s59\ns_sub_u32 s59, s%d, s59\ns_lshl_b32 s60, s60, 1\ns_lshl_b32 s59, s59, 1' % (c.s_nt, c.s_colh))
        a('s_add_u32 s61, s60, %d\nv_lshl_add_u32 v2, v1, 2, s61\ns_add_u32 s61, s59, %d\nv_lshl_add_u32 v3, v1, 2, s61' % (UTL, UTL))
        a('v_lshlrev_b32 v10, 4, v1\nv_add_u32 v10, %d, v10' % XE)
    nlab = [0]
    a('s_sub_u32 s64, s64, 1')
    c.hook_stages = 4
    c.drain1 = not (opt.umap or opt.x1p)
    def step_hook(a, c, step, wr, xe):
        UA = c.v_free
        nlab[0] += 1
        a('s_cmp_lg_u32 s64, 0\ns_cbranch_scc1 w1_xs%d' % nlab[0])
        a('ds_read_b128 v[%d:%d], v10 offset:%d\ns_waitcnt lgkmcnt(0)' % (xe, xe+3, 1024*step))
        for j in range(8): a('v_mfma_f32_16x16x32_bf16 v[%d:%d], v[%d:%d], v[%d:%d], %s' % (UA+4*j, UA+4*j+3, xe, xe+3, wr(j), wr(j)+3, '0' if step == 0 else 'v[%d:%d]' % (UA+4*j, UA+4*j+3)))
        if step == 1:
            a('s_mov_b64 exec, 0xffff')
            for j in range(8):
                o = ((j//2)*128 + (j % 2)*32)*2 if j < 6 else (j-6)*64
                for e in range(2): a('ds_write_b32 v%d, v%d offset:%d' % (2 if j < 6 else 3, UA+4*j+e, o + 1024*e))
            a('s_mov_b64 exec, -1\ns_waitcnt lgkmcnt(0)')
        a.label('w1_xs%d' % nlab[0])
        if step == 1: a('s_sub_u32 s64, s64, 1')
    c.pre_hook, c.post_b0, c.pre_hook2, c.step_hook = pre, (lambda a, c: rt(a, 11)), (None if opt.prog5 else BAR), step_hook
    c.first_c = lambda c, j: '0'
    def panel_tail(a, c, ms0, AD, wfr, delta):
        RR = c.v_free; TM = RR + 8; AB = TM + 16; UT_ = 60
        addrs = [AD, [AB+i for i in range(6)]]
        amap = lambda st_, v: addrs[st_][AD.index(v)]
        steps = [(p, st_, sub) for p in range(4) for st_ in range(2) for sub in range(2)]
        def rds(n):
            p, st_, sub = steps[n]; B = 12 + 24*(n % 2); r = []
            for u in range(2):
                v, base, ss, ts = wfr[2*p+u]
                r += ['ds_read_b64_tr_b16 v[%d:%d], v%d offset:%d' % (B+16+4*u+2*t, B+17+4*u+2*t, amap(st_, v), base + sub*ss + t*ts) for t in range(2)]
            xs = ['ds_read_b128 v[%d:%d], v%d offset:%d' % (B+4*i, B+4*i+3, addrs[st_][1 if i >= 2 else 0], (i*2+sub)*1024) for i in range(4 if p < 3 else 2)]
            return r[:2] + xs + r[2:]
        def mms(n):
            p, st_, sub = steps[n]; B = 12 + 24*(n % 2)
            return ['v_mfma_f32_16x16x32_bf16 v[%d:%d], v[%d:%d], v[%d:%d], v[%d:%d]' % (ACC(2*p+u, i), ACC(2*p+u, i)+3, B+16+4*u, B+19+4*u, B+4*i, B+4*i+3, ACC(2*p+u, i), ACC(2*p+u, i)+3) for u in range(2) for i in range(4 if p < 3 else 2)]
        def utr(p):
            U = UT_ + 16*(p % 2); o = p*256 if p < 3 else 0
            return ['ds_read_b128 v[%d:%d], v%d offset:%d' % (U+8*w+4*u, U+8*w+4*u+3, 2 if p < 3 else 3, o + 64*u + 1024*w) for w in range(2) for u in range(2)]
        def epi(p):
            U = UT_ + 16*(p % 2); r = []
            for i in range(4 if p < 3 else 2):
                xs = [ACC(2*p+u, i, q) for u in range(2) for q in range(4)]; T = TM + 8*(i % 2)
                r += ['v_pk_fma_f32 %s, %s, %s, %s op_sel:[0,1,0] op_sel_hi:[1,1,1]' % (P2(T+k), P2(U+k), P2(RR+2*i), P2(U+8+k)) for k in range(0, 8, 2)]
                r += ['v_pk_fma_f32 %s, %s, %s, %s op_sel_hi:[1,0,1]' % (P2(xs[k]), P2(xs[k]), P2(RR+2*i), P2(T+k)) for k in range(0, 8, 2)]
                r += ['v_max_f32 v%d, 0, v%d' % (x, x) for x in xs]
                r += ['v_pk_mul_f32 %s, %s, %s' % (P2(x), P2(x), P2(x)) for x in xs[::2]]
                r += ['v_cvt_pk_bf16_f32 v%d, v%d, v%d' % (xs[k], xs[2*k], xs[2*k+1]) for k in range(4)]
                if p < 3: r.append('buffer_store_dwordx4 v[%d:%d], v%d, s[24:27], s%d offen offset:%d' % (xs[0], xs[0]+3, 255 if p == 2 else 10, 60+i, 2048*(p % 2)))
                else: r.append('buffer_store_dwordx4 v[%d:%d], v10, s[24:27], s%d offen' % (xs[0], xs[0]+3, 64+i))
            return r
        b = Asm()
        for i in range(6): b('v_add_u32 v%d, %d, v%d' % (AB+i, delta, AD[i]))
        b('v_lshrrev_b32 v3, 4, v1\nv_lshlrev_b32 v3, 4, v3\ns_add_u32 s60, s60, %d\ns_add_u32 s59, s59, %d\nv_add_u32 v2, s60, v3\nv_add_u32 v3, s59, v3' % (UTL2, UTL2))
        b('v_and_b32 v250, 15, v1\nv_lshlrev_b32 v250, 3, v250\ns_lshl_b32 s60, s%d, 9\ns_add_u32 s60, s60, %d\ns_lshl_b32 s59, s%d, 8\ns_add_u32 s61, s60, s59\ns_sub_u32 s60, s60, s59\nv_add_u32 v251, s60, v250\nv_add_u32 v250, s61, v250' % (c.s_rh, RS, c.s_nh))
        b('v_lshlrev_b32 v10, 4, v1\nv_add_u32 v255, 4096, v10')
        b('s_lshl_b32 s60, s%d, 1\ns_add_u32 s60, s60, s%d\ns_mul_i32 s60, s60, %d\ns_mul_i32 s59, s%d, %d' % (c.s_mt, c.s_rh, 4*112*1024, c.s_nh, 2*112*1024))
        b('s_lshl_b32 s64, s%d, 4\ns_add_u32 s64, s64, s60\ns_add_u32 s64, s64, s59\ns_add_u32 s65, s64, %d' % (c.s_colh, 112*1024))
        b('s_lshl_b32 s61, s58, 4\ns_add_u32 s61, s61, s60\ns_sub_u32 s62, s61, s59\ns_add_u32 s62, s62, %d\ns_add_u32 s63, s62, %d\ns_add_u32 s60, s61, s59\ns_add_u32 s61, s60, %d' % (2*112*1024, 112*1024, 112*1024))
        setup = [l.strip() for l in b.lines]
        def weave(ms, rs, q, rate):
            for n, m in enumerate(ms):
                a(m)
                if rs: a(rs.pop(0))
                for _ in range(rate):
                    if q: a(q.pop(0))
            for r in rs: a(r)
        a(ms0[0]); a(ms0[1])
        a('s_barrier')
        weave(ms0[2:], rds(0), setup, 2)
        for l in setup: a(l)
        q = []
        for n, (p, st_, sub) in enumerate(steps):
            a('s_waitcnt lgkmcnt(0)')
            if n in (1, 3): a('s_barrier')
            rs = rds(n+1) if n + 1 < len(steps) else []
            if n == 3: rs += ['ds_read_b64 v[%d:%d], v%d offset:%d' % (RR+2*i, RR+2*i+1, 250 if i < 2 else 251, 128*i) for i in range(4)]
            if n % 4 == 2:
                while len(q) > len(epi(p-1)) if p else False: a(q.pop(0))
                rs += utr(p)
            if n % 4 == 0 and p: q += epi(p-1)
            weave(mms(n), rs, q, opt.prate)
        rt(a, 12)
        a('s_barrier')
        rt(a, 31)
        q += epi(3)
        b = Asm()
        b('s_lshl_b32 s59, s%d, 13\ns_lshl_b32 s58, s%d, 10\ns_add_u32 s59, s59, s58\ns_lshl_b32 s58, s%d, 12\ns_add_u32 s59, s59, 32768\nv_add_u32 v7, s59, v10\nv_subrev_u32 v8, s58, v7\nv_add_u32 v7, s58, v7\nv_add_u32 v9, 0x10000, v7\nv_add_u32 v6, 0x10000, v8' % (c.s_rh, c.s_nh, c.s_nh))
        for l in b.lines: a(l)
        wr = lambda p: ['ds_write_b128 v%d, v[%d:%d] offset:%d' % ([7, 7, 9][p] if i < 2 else [8, 8, 6][p], ACC(2*p, i), ACC(2*p, i)+3, 32768*(p % 2) + 2048*i) for i in range(4)]
        w01 = wr(0) + wr(1)
        while q:
            for _ in range(8):
                if q: a(q.pop(0))
            if w01: a(w01.pop(0))
        for l in w01 + wr(2): a(l)
    if opt.ptail: c.panel_tail = panel_tail
    gemm.consumer(a, c)
    if opt.ptail:
        rt(a, 13)
        a('s_waitcnt lgkmcnt(0)')
        rt(a, 14)
        return c
    rt(a, 12)
    UU = 12; TT = 44; RR = c.v_free; TM = RR + 8
    a('v_lshrrev_b32 v3, 4, v1\nv_lshlrev_b32 v3, 4, v3\ns_add_u32 s60, s60, %d\ns_add_u32 s59, s59, %d\nv_add_u32 v2, s60, v3\nv_add_u32 v3, s59, v3' % (UTL2, UTL2))
    a('v_and_b32 v5, 15, v1\nv_lshlrev_b32 v5, 3, v5\ns_lshl_b32 s60, s%d, 9\ns_add_u32 s60, s60, %d\ns_lshl_b32 s59, s%d, 8\ns_add_u32 s61, s60, s59\ns_sub_u32 s60, s60, s59\nv_add_u32 v6, s60, v5\nv_add_u32 v5, s61, v5' % (c.s_rh, RS, c.s_nh))
    a('s_barrier')
    rt(a, 31)
    for i in range(4): a('ds_read_b64 v[%d:%d], v%d offset:%d' % (RR+2*i, RR+2*i+1, 5 if i < 2 else 6, 128*i))
    for j in range(8):
        o = ((j//2)*128 + (j % 2)*32)*2 if j < 6 else (j-6)*64
        a('ds_read_b128 v[%d:%d], v%d offset:%d\nds_read_b128 v[%d:%d], v%d offset:%d' % (UU+4*j, UU+4*j+3, 2 if j < 6 else 3, o, TT+4*j, TT+4*j+3, 2 if j < 6 else 3, o+1024))
    a('v_lshlrev_b32 v4, 4, v1')
    a('s_lshl_b32 s60, s%d, 1\ns_add_u32 s60, s60, s%d\ns_mul_i32 s60, s60, %d' % (c.s_mt, c.s_rh, 4*112*1024))
    a('s_mul_i32 s59, s%d, %d' % (c.s_nh, 2*112*1024))
    a('s_lshl_b32 s61, s58, 4\ns_add_u32 s61, s61, s60')
    a('s_lshl_b32 s62, s%d, 4\ns_add_u32 s62, s62, s60\ns_add_u32 s62, s62, s59' % c.s_colh)
    a('s_add_u32 s61, s61, s59')
    PK = 76
    a('s_lshl_b32 s63, s%d, 13\ns_lshl_b32 s64, s%d, 10\ns_add_u32 s63, s63, s64\ns_lshl_b32 s64, s%d, 12\ns_add_u32 s65, s63, s64\ns_sub_u32 s63, s63, s64\ns_add_u32 s65, s65, 32768\ns_add_u32 s63, s63, 32768\nv_add_u32 v7, s65, v4\nv_add_u32 v8, s63, v4\nv_add_u32 v9, 0x10000, v7\nv_add_u32 v10, 0x10000, v8' % (c.s_rh, c.s_nh, c.s_nh))
    a('s_waitcnt lgkmcnt(0)')
    for i in range(4):
        nj = 8 if i < 2 else 6
        xs = [ACC(j, i, r) for j in range(nj) for r in range(4)]
        for b in range(0, 4*nj, 16):
            for k in range(b, min(b+16, 4*nj), 2): a('v_pk_fma_f32 %s, %s, %s, %s op_sel:[0,1,0] op_sel_hi:[1,1,1]' % (P2(TM+k-b), P2(UU+k), P2(RR+2*i), P2(TT+k)))
            for k in range(b, min(b+16, 4*nj), 2): a('v_pk_fma_f32 %s, %s, %s, %s op_sel_hi:[1,0,1]' % (P2(xs[k]), P2(xs[k]), P2(RR+2*i), P2(TM+k-b)))
        for x in xs: a('v_max_f32 v%d, 0, v%d' % (x, x))
        for x in xs[::2]: a('v_pk_mul_f32 v[%d:%d], v[%d:%d], v[%d:%d]' % (x, x+1, x, x+1, x, x+1))
        pk = PK + (i % 2)*16
        for k in range(2*nj): a('v_cvt_pk_bf16_f32 v%d, v%d, v%d' % (pk+k, xs[2*k], xs[2*k+1]))
        for p in range(3): a('ds_write_b128 v%d, v[%d:%d] offset:%d' % ((7 if i < 2 else 8) + (2 if p == 2 else 0), pk+4*p, pk+4*p+3, 32768*(p % 2) + 2048*i))
        for p in range(3):
            if p < 2: a('buffer_store_dwordx4 v[%d:%d], v4, s[24:27], s61 offen offset:%d' % (pk+4*p, pk+4*p+3, 2048*p))
            else:
                a('s_add_u32 s63, s61, 4096')
                a('buffer_store_dwordx4 v[%d:%d], v4, s[24:27], s63 offen' % (pk+4*p, pk+4*p+3))
        if i < 2:
            a('buffer_store_dwordx4 v[%d:%d], v4, s[24:27], s62 offen' % (pk+12, pk+15))
            a('s_add_u32 s62, s62, %d' % (112*1024))
        a('s_add_u32 s61, s61, %d' % (112*1024))
        if i == 1: a('s_lshl_b32 s59, s59, 1\ns_sub_u32 s61, s61, s59')
    rt(a, 13)
    a('s_waitcnt lgkmcnt(0)')
    rt(a, 14)
    return c

def ph_w2s(P, C, st):
    NO = opt.nown; NS = (56 - NO)//2
    c = gemm.config('w2', 64*(NS+NO), 128, 2, False, 64, opt.w2S, 2048, 0, xKG=112, panel_sreg=59, lead=opt.w2L, nown=NO, rpm_own=opt.rpm_own, slot0=1)
    assert NO == 6
    LOC = opt.loc
    A_ = gemm.order_table(28, 4, 'lead'); B_ = gemm.order_table(NO, 4, 'lead')
    tabs = []
    for j in range(4):
        for nt in range(16):
            cp, kh = nt & 7, nt >> 3
            loc = [(7*cp + (cp & 1))//2 + q for q in range(3)]
            O_ = [0, 1, 2] if cp == 7 else [25, 26, 27]
            own = O_ + [28 + x for x in O_]
            tabs.append([28*kh + x for x in loc + [x for x in A_[j] if x not in loc and x not in O_]] + [own[x] for x in B_[j]])
            assert len(tabs[-1]) == NS + NO
    c.tabs_override = tabs
    c.nloc, c.tabsel, c.st0 = 3, 38, 37
    if opt.xsc1: c.xflags = ' sc1'
    XT = 147456
    head = lambda a, ptrs: uhead(a, c, ptrs)
    head(P, [(4, P_W2), (32, P_B2)])
    P('s_mul_i32 s37, s38, 7\ns_and_b32 s36, s38, 1\ns_add_u32 s37, s37, s36\ns_lshr_b32 s37, s37, 1')
    P('s_and_b32 s58, s%d, 1\ns_mov_b32 s59, 128\ns_cmp_eq_u32 s58, 0\ns_cselect_b32 s59, s59, -128' % c.s_nt)
    srds = lambda a: [srd(a, *x) for x in [(8, 6, HF, 2048*7168), (12, 4, 0, 3584*2048)]]
    c.srd_hook = srds
    NPR = opt.prog
    def m6(a):
        a('s_lshr_b32 s60, s%d, 10\ns_mul_i32 s61, s60, 9363\ns_lshr_b32 s61, s61, 16\ns_lshl_b32 s61, 1, s61' % c.s_kx)
        a('s_add_u32 s60, s60, 1\ns_mul_i32 s60, s60, 9363\ns_lshr_b32 s60, s60, 16\ns_lshl_b32 s60, 1, s60\ns_or_b32 s60, s60, s61')
    need6 = lambda a, t: need(a, 'f6', t, m6 if t < 3 + NPR - 1 else None)
    c.sig_at = opt.sig_at
    c.boundary0 = lambda a, c, vm: psync(a, 'f6', 6, 93, 97, c.s_mt, part=0)
    def boundary(a, c, vm):
        a('s_mov_b32 s91, 0')
        need6(a, 3)
        rt(a, 13)
    c.pre_issue = lambda a, c, vm, t: need6(a, t) if t < 3 + NPR else None
    c.npeel = max(0, NPR - 3)
    c.boundary = boundary
    if opt.ptail: c.early_first = lambda a, c, vm: st['w1_ptail'](a, vm)
    def early_issue(a, c, vm):
        if not opt.ptail: st['w1_ptail'](a, vm)
        a('s_cmp_lg_u32 s42, 6\ns_cbranch_scc1 w2_ng')
        gates(a, c, [5], 32, 131072, 160)
        a.label('w2_ng')
        if not opt.umap:
            a('s_lshl_b32 s62, s%d, 4\ns_add_u32 s62, s62, s%d\ns_lshl_b32 s62, s62, %d\ns_add_u32 s62, s62, %d\nv_mov_b32 v243, 0' % (c.s_mt, c.s_nt, MS, 9*ROW))
            a('buffer_load_dword v242, v243, s[84:87], s62 offen sc1')
            vm.issue('fx')
    c.early_issue = early_issue
    if not opt.umap:
        def tail(a, c, vm):
            V = c.p_vfree
            vm.wait('fx')
            a('s_mov_b32 s90, 200000')
            a.label('fx_p')
            a('v_cmp_ne_u32 vcc, s3, v242\ns_cmp_eq_u64 vcc, 0\ns_cbranch_scc1 fx_y')
            a('buffer_load_dword v242, v243, s[84:87], s62 offen sc1\ns_sub_u32 s90, s90, 1\ns_waitcnt vmcnt(0)\ns_cmp_lg_u32 s90, 0\ns_cbranch_scc1 fx_p')
            a.label('fx_y')
            srd(a, 16, 6, X1, 0x400000)
            a('s_sub_u32 s59, s42, 4\ns_lshl_b32 s60, s%d, 2\ns_add_u32 s60, s60, s59\ns_lshl_b32 s60, s60, 16\ns_lshl_b32 s61, s%d, 11\ns_add_u32 s60, s60, s61\ns_add_u32 s61, s60, %d' % (c.s_mt, c.s_nt, 32768-2048))
            a('s_lshl_b32 s59, s59, 12\ns_add_u32 m0, s59, %d\nv_lshlrev_b32 v%d, 4, v1' % (XT, V))
            for i in range(4): a('buffer_load_dwordx4 v%d, s[16:19], s%d offen offset:%d sc1 lds' % (V, 60 + i//2, 1024*i))
            vm.issue('op', 4)
        c.tail_issue = tail; c.pre_last_bar = lambda a, c, vm: vm.wait('op')
    c.first_c = lambda c, j: '0'
    c.vm_init = st['vm_init']
    KS_, KP_ = NS + opt.own_sig, NS + NO - 1 - opt.own_ld
    def bar_hook(a, c, vm, k):
        if k == KS_:
            a('s_cmp_lg_u32 s42, 4\ns_cbranch_scc1 f8_ns\ns_lshl_b32 s88, s2, %d\ns_add_u32 s88, s88, %d\nv_mov_b32 v253, s3\ns_mov_b64 exec, 1' % (MS, FL8*ROW))
            rt(a, 18)
            a('buffer_store_dword v253, v252, s[84:87], s88 offen sc1\ns_mov_b64 exec, -1')
            a.label('f8_ns')
    def wait_hook(a, c, vm, k):
        if k == KP_ - 1:
            a('s_xor_b32 s89, s2, 4\ns_lshl_b32 s89, s89, %d\ns_add_u32 s89, s89, %d\ns_mov_b32 s90, 200000\nv_mov_b32 v241, 0' % (MS, FL8*ROW))
            a('buffer_load_dword v240, v241, s[84:87], s89 offen sc1')
            vm.issue('f8')
        if k == KP_:
            vm.wait('f8')
            a.label('f8_p')
            a('v_cmp_ne_u32 vcc, s3, v240\ns_cmp_eq_u64 vcc, 0\ns_cbranch_scc1 f8_y')
            a('buffer_load_dword v240, v241, s[84:87], s89 offen sc1\ns_sub_u32 s90, s90, 1\ns_waitcnt vmcnt(0)\ns_cmp_lg_u32 s90, 0\ns_cbranch_scc1 f8_p')
            a.label('f8_y')
            rt(a, 19)
    if NO: c.bar_hook, c.wait_hook = bar_hook, wait_hook
    gemm.producer(P, c, None)
    if opt.ts and c.flags: P('v_writelane_b32 v255, s70, %d' % (24 + c.fbase//16))
    if not NO:
        P('s_xor_b32 s60, s2, 32')
        psync(P, 'f8', FL8, 2, None, 60, n=1)
    a = C
    head(a, [(34, P_OUT)])
    a('s_waitcnt lgkmcnt(0)')
    srd(a, 28, 34, 0, 0x400000); srd(a, 24, 6, *(H2F, 0x400000) if opt.reuse else (XB, 0x800000))
    XR = lambda: c.v_free; GA = lambda: c.v_free + 16; XA = lambda: c.v_free + 32
    def pre(a, c):
        if not opt.umap:
            a('v_and_b32 v2, 15, v1\nv_lshlrev_b32 v2, 4, v2\nv_lshrrev_b32 v3, 5, v1\nv_lshl_add_u32 v2, v3, 8, v2\nv_bfe_u32 v3, v1, 4, 1\nv_lshl_add_u32 v2, v3, 3, v2')
            a('s_lshl_b32 s61, s%d, 13\ns_lshl_b32 s60, s%d, 10\ns_add_u32 s61, s61, s60\ns_add_u32 s61, s61, %d\nv_add_u32 v%d, s61, v2\nv_add_u32 v%d, 512, v%d' % (c.s_rh, c.s_nh, XT, XA(), XA()+1, XA()))
            return
        a('s_lshl_b32 s61, s%d, 2\nv_lshrrev_b32 v3, 5, v1\nv_add_u32 v3, s61, v3\nv_and_b32 v2, 7, v1\nv_xor_b32 v2, v2, v3\nv_lshlrev_b32 v2, 4, v2\nv_bfe_u32 v3, v1, 4, 1\nv_lshl_add_u32 v2, v3, 3, v2' % c.s_nh)
        a('v_and_b32 v3, 15, v1\nv_lshl_add_u32 v2, v3, 7, v2\ns_lshl_b32 s61, s%d, 13\ns_add_u32 s61, s61, %d\nv_add_u32 v%d, s61, v2\nv_xor_b32 v%d, 32, v%d' % (c.s_rh, XT, XA(), XA()+1, XA()))
    def rd(a, c):
        a('s_lshl_b32 s60, s%d, 7\ns_add_u32 s61, s60, 131072\nv_lshrrev_b32 v3, 4, v1\nv_lshl_add_u32 v3, v3, 4, s61' % c.s_nh)
        for q in range(2):
            for j in range(2): a('ds_read_b128 v[%d:%d], v3 offset:%d' % (GA()+8*q+4*j, GA()+8*q+4*j+3, 256*q + 64*j))
    def last_reads(c):
        return ['ds_read_b64 v[%d:%d], v%d offset:%d' % (XR()+4*i+2*j, XR()+4*i+2*j+1, XA()+j, 2048*i) for i in range(4) for j in range(2)]
    c.pre_hook, c.last_reads = pre, last_reads
    c.post_b0 = chain(lambda a, c: rt(a, 15), rd)
    def xstore(a, c):
        a('s_lshl_b32 s60, s2, 2\ns_add_u32 s60, s60, s%d\ns_lshl_b32 s60, s60, 13\ns_xor_b32 s61, s60, %d\nv_lshlrev_b32 v2, 4, v1' % (c.s_wave, 4*4*8192))
        for k in range(8):
            if k == 4: a('s_add_u32 s60, s60, 4096')
            a('buffer_store_dwordx4 v[%d:%d], v2, s[24:27], s60 offen offset:%d' % (c.v_acc+32+4*k, c.v_acc+35+4*k, 1024*(k % 4)))
    def xload(a, c, dst):
        for i in range(4):
            for j in range(2):
                k = j*4 + i
                a('s_add_u32 s63, s61, %d' % (1024*k))
                a('buffer_load_dwordx4 v[%d:%d], v2, s[24:27], s63 offen sc1' % (dst+4*k, dst+4*k+3))
    def own_hook(a, c, q, where):
        if q == 0 and where == 0 and opt.reuse:
            assert opt.xbf
            a('s_lshl_b32 s60, s%d, 4\ns_add_u32 s60, s60, s38\ns_lshl_b32 s60, s60, 2\ns_add_u32 s60, s60, s42\ns_lshl_b32 s60, s60, 12\ns_xor_b32 s62, s60, 0x20000\nv_lshlrev_b32 v2, 4, v1' % c.s_mt)
        elif q == 0 and where == 0:
            a('s_lshl_b32 s60, s2, 2\ns_add_u32 s60, s60, s%d\ns_lshl_b32 s60, s60, 13\ns_xor_b32 s62, s60, %d\ns_add_u32 s61, s60, 4096\ns_add_u32 s63, s62, 4096\nv_lshlrev_b32 v2, 4, v1' % (c.s_wave, 4*4*8192))
        if NS + q + 1 == KS_ and where == 1: a('s_waitcnt vmcnt(0)')
    XP = 176
    def own_extra(c, q, st):
        n = q*2 + st
        if opt.xbf:
            if n < 4:
                return ['v_cvt_pk_bf16_f32 v%d, v%d, v%d' % (XP+4*n+2*j+e, c.v_acc+32+(j*4+n)*4+2*e, c.v_acc+33+(j*4+n)*4+2*e) for j in range(2) for e in range(2)] + \
                       ['buffer_store_dwordx4 v[%d:%d], v2, s[24:27], s60 offen offset:%d' % (XP+4*n, XP+4*n+3, 1024*n)]
            n -= 2*(KP_ - NS) - 1
            per = -(-4 // (2*(NS + NO - KP_) + 1))
            ks = list(range(4))[per*n:per*n+per] if n >= 0 else []
            return ['buffer_load_dwordx4 v[%d:%d], v2, s[24:27], s62 offen offset:%d sc1' % (XP+4*k, XP+4*k+3, 1024*k) for k in ks]
        if n < 4: return ['buffer_store_dwordx4 v[%d:%d], v2, s[24:27], s%d offen offset:%d' % (c.v_acc+32+4*k, c.v_acc+35+4*k, 60 + k//4, 1024*(k % 4)) for k in (2*n, 2*n+1)]
        n -= 2*(KP_ - NS) - 1
        per = -(-8 // (2*(NS + NO - KP_) + 1))
        ks = [j*4 + i for i in range(4) for j in range(2)][per*n:per*n+per] if n >= 0 else []
        return ['buffer_load_dwordx4 v[%d:%d], v2, s[24:27], s%d offen offset:%d sc1' % (c.v_acc+32+4*k, c.v_acc+35+4*k, 62 + k//4, 1024*(k % 4)) for k in ks]
    c.own_extra = own_extra
    c.own_hook = own_hook
    gemm.consumer(a, c)
    if c.stamps: gemm.dump_stamps(a, c)
    rt(a, 16)
    ACC = lambda j, i, r=0: c.v_acc + (j*4+i)*4 + r
    if not NO: xstore(a, c)
    U = 12; PK = 44; RB = 48 + 16
    a('s_waitcnt lgkmcnt(0)')
    for i in range(4):
        for j in range(2):
            for e in range(2): unpack(a, U+8*i+4*j+2*e, U+8*i+4*j+2*e+1, XR()+4*i+2*j+e)
            for r in (0, 2): a('v_pk_add_f32 %s, %s, %s' % (P2(U+8*i+4*j+r), P2(U+8*i+4*j+r), P2(GA()+8+4*j+r)))
            for r in (0, 2): a('v_pk_fma_f32 %s, %s, %s, %s' % (P2(U+8*i+4*j+r), P2(ACC(j,i,r)), P2(GA()+4*j+r), P2(U+8*i+4*j+r)))
    a('v_and_b32 v2, 15, v1\nv_lshlrev_b32 v2, 11, v2\nv_bfe_u32 v3, v1, 4, 1\nv_lshl_add_u32 v2, v3, 5, v2\nv_lshrrev_b32 v3, 5, v1\nv_lshl_add_u32 v2, v3, 4, v2')
    a('s_lshl_b32 s62, s%d, 1\ns_add_u32 s62, s62, s%d\ns_lshl_b32 s62, s62, 17\ns_lshl_b32 s63, s%d, 1\ns_add_u32 s63, s63, s%d\ns_lshl_b32 s63, s63, 6\ns_add_u32 s62, s62, s63' % (c.s_mt, c.s_rh, c.s_nt, c.s_nh))
    if opt.fullout:
        a('v_bfe_u32 v5, v1, 4, 1\nv_lshlrev_b32 v5, 1, v5\nv_lshrrev_b32 v6, 5, v1\nv_add_u32 v5, v5, v6\ns_lshl_b32 s63, s%d, 2\nv_add_u32 v5, s63, v5\nv_and_b32 v6, 7, v1\nv_xor_b32 v5, v5, v6\nv_lshlrev_b32 v5, 4, v5' % c.s_nh)
        a('v_and_b32 v7, 15, v1\nv_lshl_add_u32 v5, v7, 7, v5\ns_lshl_b32 s63, s%d, 13\nv_add_u32 v5, s63, v5' % c.s_rh)
        a('v_lshrrev_b32 v7, 3, v1\nv_xor_b32 v8, v6, v7\nv_lshlrev_b32 v8, 4, v8\nv_lshl_add_u32 v8, v7, 7, v8\nv_lshlrev_b32 v7, 11, v7\nv_lshl_add_u32 v7, v6, 4, v7\ns_lshl_b32 s63, s42, 12\nv_add_u32 v6, s63, v8')
        a('s_lshl_b32 s62, s%d, 2\ns_add_u32 s62, s62, s42\ns_lshl_b32 s62, s62, 16\ns_lshl_b32 s63, s%d, 7\ns_add_u32 s62, s62, s63' % (c.s_mt, c.s_nt))
    v2s = a.lines;
    if not NO:
        a('s_waitcnt vmcnt(0)\ns_barrier\ns_barrier')
        a('v_lshlrev_b32 v4, 4, v1')
        xl = Asm(); xload(xl, c, c.v_acc+32); a.lines += [l.replace(', v2,', ', v4,') for l in xl.lines]
    ACC = lambda j, i, r=0: c.v_acc + 32 + (j*4+i)*4 + r
    for i in range(4):
        if opt.xbf:
            a('s_waitcnt vmcnt(3)')
            for j in range(2):
                for e in range(2): unpack(a, ACC(j,i,2*e), ACC(j,i,2*e+1), XP+4*i+2*j+e)
        else: a('s_waitcnt vmcnt(%d)' % (6 - 2*i + (0 if opt.fullout else i)))
        for j in range(2):
            for r in (0, 2): a('v_pk_fma_f32 %s, %s, %s, %s' % (P2(U+8*i+4*j+r), P2(ACC(j,i,r)), P2(GA()+4*j+r), P2(U+8*i+4*j+r)))
            for e in range(2): a('v_cvt_pk_bf16_f32 v%d, v%d, v%d' % (PK+4*i+2*j+e, U+8*i+4*j+2*e, U+8*i+4*j+2*e+1))
        for e in range(2): a('v_permlane16_swap_b32 v%d, v%d' % (PK+4*i+e, PK+4*i+2+e))
        if opt.fullout: a('ds_write_b128 v5, v[%d:%d] offset:%d' % (PK+4*i, PK+4*i+3, 2048*i))
        else:
            a('buffer_store_dwordx4 v[%d:%d], v2, s[28:31], s62 offen' % (PK+4*i, PK+4*i+3))
            a('s_add_u32 s62, s62, 32768')
    if opt.fullout:
        a('s_waitcnt lgkmcnt(0)\ns_barrier')
        for i in range(4): a('ds_read_b128 v[%d:%d], v6 offset:%d' % (PK+4*i, PK+4*i+3, 1024*i))
        for i in range(4):
            a('s_waitcnt lgkmcnt(%d)' % (3-i))
            a('buffer_store_dwordx4 v[%d:%d], v7, s[28:31], s62 offen' % (PK+4*i, PK+4*i+3))
            a('s_add_u32 s62, s62, 16384')
    return c

HEADER = '''; One persistent kernel, 256 workgroups x 8 waves (one per CU). Waves 0-3 run the MFMA loops and epilogues,
; Workgroups hand data over through write-through stores and flag words in d_ws; a flag holds a value derived from one
; d_ws word read on entry, only to tell this launch's hand-offs from older ones. All waits are bounded.
'''
def build(path, **kw):
    for k, v in kw.items(): setattr(opt, k, v)
    a = Asm()
    n = KNAME
    OUT.lines = []
    a.kernel_begin(n)
    a('s_cmp_ge_u32 s2, 256\ns_cbranch_scc1 mega_end')
    a('v_lshrrev_b32 v2, 6, v0\nv_and_b32 v1, 63, v0\nv_readfirstlane_b32 s42, v2')
    a('s_cmp_lt_u32 s42, 4\ns_cbranch_scc1 mega_cons')
    P = Asm(); C = Asm(); st = {}; C.cons = True
    rt(C, 0)
    cs = [f(P, C, st) for f in (ph_qkv, ph_wo, ph_w1, ph_w2s)]
    a.lines += P.lines
    if opt.ts:
        a('s_cmp_lg_u32 s42, 5\ns_cbranch_scc1 mega_end')
        srd(a, 88, 6, TS + 0x10000, 0x10000)
        a('s_lshl_b32 s92, s2, 8\nv_lshlrev_b32 v2, 2, v1\nbuffer_store_dword v255, v2, s[88:91], s92 offen')
    a('s_endpgm')
    a.label('mega_cons')
    a.lines += C.lines
    if opt.ts:
        a('s_waitcnt vmcnt(0)')
        a.cons = True
        rt(a, 17)
        a('s_cmp_lg_u32 s42, 0\ns_cbranch_scc1 mega_end')
        srd(a, 88, 6, TS, 0x10000)
        a('s_lshl_b32 s92, s2, 8\nv_lshlrev_b32 v2, 2, v1\nbuffer_store_dword v11, v2, s[88:91], s92 offen')
    a.label('mega_end')
    a('s_endpgm')
    a.lines += OUT.lines
    for c in cs: gemm.table(a, c)
    a.label('code_end')
    a('s_endpgm')
    a.kernel_end(n, 256, 102, 256, 256, 512, 163840)
    a.lines = [l + opt.sflags if ('buffer_store_dwordx' in l) else l for l in a.lines]
    if opt.plain: a.launches = ['; @launch grid=(256,1,1) block=(512,1,1) lds=163840']
    hdr = ''
    if opt.plain:
        ref = open('cdna_kernels/%s.s.ref' % KNAME[:-7]).read().split('\n')
        hdr = '\n'.join(l for l in ref if l.startswith(';') and '@launch' not in l) + '\n' + HEADER
    open(path, 'w').write(a.text(header=hdr, verbose=kw.get('verbose', False)))

KNAME = 'adaLN_cond__linear_kernel_hedgehog__dense_activation_squared_relu__prompt_kernel'
opt.plain = False; opt.x1p = True; opt.x1at = 7; opt.qmir = False; opt.ptail = False; opt.prate = 3; opt.spf0 = (0, 0); opt.prog1 = 0; opt.prog3 = 5; opt.prog5 = 0; opt.reuse = False; opt.pf6 = 16; opt.prog = 10; opt.wo_order = 'lead'; opt.umap = False; opt.sig_at = 1; opt.wo_G = 4; opt.loc = 3; opt.midpos = 3; opt.pfo = 0; opt.xbf = True; opt.rpm_own = 1; opt.nown = 6; opt.own_sig = 3; opt.own_ld = 0; opt.noexec = False; opt.fsplit = 2; opt.flags = (); opt.woBK = 128; opt.woS = 3; opt.cpflate = True; opt.esync = False; opt.w1late = (); opt.cunroll = 1; opt.mbb = 2; opt.ut_at = 13; opt.glate = True; opt.td0 = 1; opt.td1 = 0; opt.pf5 = 10; opt.fullout = False; opt.earlym = False; opt.warm = True; opt.xsc1 = True; opt.unroll = True; opt.pollgap = 0; opt.wlate = 7; opt.st_at = 5; opt.pf3 = 0; opt.spf4 = 0; opt.spf2 = 0; opt.pre4 = True; opt.pf4 = 1; opt.w2s = True; opt.w2S = 4; opt.w2L = 3; opt.spoll = False; opt.satom = False; opt.gvflags = ' nt'; opt.eprio = 0; opt.pf2 = 1
if __name__ == '__main__':
    kw = eval('dict(%s)' % (sys.argv[2] if len(sys.argv) > 2 else ''))
    build(sys.argv[1], **kw)
```

```python
import sys
from asmgen import Asm
import gemm, gen
from gen import *
FL = 0x80000
FL8 = 8
MS = 7
ROW = 256 << MS
XB = PHIQ
FL7 = 7 * ROW
opt.plan = 'lqowab'

UT = 0xE8000
OUT = Asm()
def rt(a, i):
    if not opt.ts: return
    r = 11 if getattr(a, 'cons', False) else 255
    a('s_memrealtime s[98:99]\ns_memtime s[100:101]\ns_waitcnt lgkmcnt(0)\nv_writelane_b32 v%d, s98, %d\nv_writelane_b32 v%d, s100, %d' % (r, i, r, 32+i))

def tile_head(a, c, xm, xn, colmul, ptrs):
    for s, o in ptrs: a('s_load_dwordx2 s[%d:%d], s[0:1], %d' % (s, s+1, o))
    c.dma_flags = opt.wflags
    c.flags = c.name in opt.flags; c.outline = OUT; c.noexec = opt.noexec; c.fsplit = opt.fsplit if c.name != 'wo' else 1
    c.fbase = {'qkv': 0, 'wo': 16, 'w1': 32, 'w2': 48}[c.name]
    c.w1late = c.name in opt.w1late
    c.cunroll = opt.cunroll; c.mfma_before_bar = opt.mbb
    if opt.stamp == c.name: c.stamps = True; c.gen_dump = True
    bm = 16 // xm
    a('s_and_b32 s36, s2, 7\ns_lshr_b32 s37, s2, 3')
    a('s_and_b32 s38, s36, %d\ns_lshr_b32 s36, s36, %d' % (bm-1, bm.bit_length()-1))
    a('s_and_b32 s39, s37, %d\ns_lshr_b32 s37, s37, %d' % (xm-1, xm.bit_length()-1))
    a('s_mul_i32 s38, s38, %d\ns_add_u32 s%d, s38, s39' % (xm, c.s_mt))
    a('s_mul_i32 s36, s36, %d\ns_add_u32 s%d, s36, s37' % (xn, c.s_nt))
    a('s_add_u32 s39, s39, s37\ns_and_b32 s%d, s39, %d' % (c.s_rot, c.G-1))
    a('s_mul_i32 s%d, s%d, %d' % (c.s_col0, c.s_nt, colmul))
    if c.half:
        a('s_and_b32 s36, s%d, 1\ns_cmp_eq_u32 s36, 0' % c.s_nt)
        a('s_cselect_b32 s36, 384, 0\ns_cselect_b32 s37, 0, 64')
        a('s_add_u32 s%d, s%d, s36\ns_add_u32 s%d, s%d, s37' % (c.s_colh, c.s_col0, c.s_col0, c.s_col0))

NW = FL + 0
MPT = 0xF0000
def uhead(a, c, ptrs):
    tile_head(a, c, 8, 4, 0, ptrs)
    a('s_mov_b32 s38, s%d\ns_and_b32 s36, s38, 7\ns_lshl_b32 s36, s36, 1\ns_lshr_b32 s37, s38, 3\ns_add_u32 s%d, s36, s37\ns_lshl_b32 s%d, s%d, 7' % (c.s_nt, c.s_nt, c.s_col0, c.s_nt))

def nonce(a):
    a('s_load_dword s3, s[6:7], %d' % NW)
def nonce2(a):
    a('s_mul_i32 s3, s3, 0x9e3779b1\ns_add_u32 s3, s3, 0x7f4a7c15')

def psync(a, tag, sig, s_sig, s_mem, s_wait, n=16, part=None, mask=None, allw=False):
    if part in (None, 0):
        srd(a, 84, 6, FL, 10*ROW)
        gs = MS if s_mem is None else MS + 4
        a('s_lshl_b32 s88, s%d, %d\ns_add_u32 s88, s88, %d\ns_lshl_b32 s89, s%d, %d\ns_add_u32 s89, s89, %d' % (s_sig, gs, sig*ROW, s_wait, gs, sig*ROW))
        if s_mem is not None: a('s_lshl_b32 s90, s%d, %d\ns_add_u32 s88, s88, s90' % (s_mem, MS))
        a('v_lshlrev_b32 v252, %d, v1' % MS)
        a('v_mov_b32 v253, s3\ns_mov_b32 s90, 200000')
        a('s_barrier')
        rt(a, 2*sig if sig < 8 else 18)
        a('s_cmp_lg_u32 s42, 4\ns_cbranch_scc1 %s_s5' % tag)
        a('s_mov_b64 exec, 1')
        a('buffer_store_dword v253, v252, s[84:87], s88 offen sc1')
        a('s_mov_b64 exec, -1')
        a.label(tag + '_s5')
    if part == 0: return
    if not allw: a('s_cmp_lg_u32 s42, 5\ns_cbranch_scc1 %s_sx' % tag)
    if mask is None: a('s_mov_b64 exec, 0x%x' % ((1 << n) - 1))
    else:
        mask(a)
        a('s_mov_b32 exec_lo, s91\ns_mov_b32 exec_hi, 0')
    a('buffer_load_dword v253, v252, s[84:87], s89 offen sc1')
    a.label(tag + '_sp')
    a('buffer_load_dword v254, v252, s[84:87], s89 offen sc1')
    a('s_sub_u32 s90, s90, 1\ns_waitcnt vmcnt(1)\nv_cmp_ne_u32 vcc, s3, v253')
    a('s_cmp_eq_u64 vcc, 0\ns_cbranch_scc1 %s_sy' % tag)
    a('buffer_load_dword v253, v252, s[84:87], s89 offen sc1')
    a('s_waitcnt vmcnt(1)\nv_cmp_ne_u32 vcc, s3, v254')
    a('s_cmp_eq_u64 vcc, 0\ns_cbranch_scc1 %s_sy' % tag)
    a('s_cmp_lg_u32 s90, 0\ns_cbranch_scc1 %s_sp' % tag)
    a.label(tag + '_sy')
    a('s_mov_b64 exec, -1')
    if part != 2: rt(a, 2*sig+1 if sig < 8 else 19)
    a.label(tag + '_sx')
    if part != 2: a('s_barrier')

def early_sync(c, tag, sig, first, full=None):
    if not opt.esync: first = full
    def b1(a): psync(a, tag, sig, None, None, None, part=1, mask=first)
    if opt.esync: c.pre_b0 = lambda a, c, vm: psync(a, tag + 'z', sig, None, None, None, part=2, mask=full)
    return b1

def need(a, tag, t, mask):
    if mask: mask(a)
    else: a('s_mov_b32 s60, 0xffff')
    a.label('%s_p%d' % (tag, t))
    a('s_andn2_b32 s61, s60, s91\ns_cbranch_scc0 %s_y%d\ns_sub_u32 s90, s90, 1\ns_cbranch_scc1 %s_y%d' % (tag, t, tag, t))
    a('s_mov_b64 exec, 0xffff\nbuffer_load_dword v253, v252, s[84:87], s89 offen sc1\ns_waitcnt vmcnt(0)\nv_cmp_eq_u32 vcc, s3, v253\ns_mov_b64 exec, -1\ns_mov_b32 s91, vcc_lo\ns_branch %s_p%d' % (tag, t))
    a.label('%s_y%d' % (tag, t))
def prog_sync(a, c, tag, sig, n, mask):
    c.pre_issue = lambda a, c, vm, t: need(a, tag, t, mask if t < n-1 else None) if t < n else None
    a('s_mov_b32 s91, 0')
    c.pre_issue(a, c, None, 0)
    rt(a, 2*sig+1)

def chain(*fs):
    fs = [f for f in fs if f]
    def g(*x):
        for f in fs: f(*x)
    return g
BAR = lambda a, c: a('s_barrier')

def ln1_body(a, c, TB):
    SS = TB + 8192
    a('s_lshl_b32 s20, s%d, 3\ns_lshr_b32 s21, s%d, 1\ns_add_u32 s20, s20, s21\ns_and_b32 s21, s%d, 1' % (c.s_mt, c.s_nt, c.s_nt))
    a('v_lshrrev_b32 v2, 6, v0\nv_and_b32 v3, 15, v0\nv_bfe_u32 v4, v0, 4, 2')
    a('v_lshlrev_b32 v5, 11, v3\nv_lshl_add_u32 v5, v2, 8, v5\nv_lshl_add_u32 v5, v4, 4, v5')
    a('s_lshl_b32 s22, s20, 15\ns_lshl_b32 s23, s21, 10\ns_add_u32 s23, s23, s22\ns_xor_b32 s25, s23, 1024')
    a('s_waitcnt lgkmcnt(0)')
    nonce(a)
    srd(a, 8, 34, 0, 0x400000)
    a('s_barrier')
    D = 32; M = 144
    for u in range(4): a('buffer_load_dwordx4 v[%d:%d], v5, s[8:11], s23 offen offset:%d%s' % (D+4*u, D+4*u+3, 64*u, opt.xflags))
    for u in range(4): a('buffer_load_dwordx4 v[%d:%d], v5, s[8:11], s25 offen offset:%d%s' % (M+4*u, M+4*u+3, 64*u, opt.xflags))
    srd(a, 12, 6, MPT, 65536); srd(a, 28, 6, *(HF + 32768, 2048*7168 - 32768) if opt.reuse else (H1F, 0x400000))
    a('v_lshlrev_b32 v7, 4, v0\ns_lshl_b32 s24, s21, 12\nv_mov_b32 v12, 0x3f803f80')
    a('v_lshlrev_b32 v6, 5, v3\nv_add_u32 v6, %d, v6\nv_lshl_add_u32 v10, v2, 3, v6' % SS)
    for q in range(8):
        a('s_waitcnt vmcnt(%d)' % (7-q))
        for e in range(4):
            r = (D if q < 4 else M) + 4*(q % 4) + e
            a('v_dot2_f32_bf16 v%d, v%d, v12, %s' % (16+e, r, '0' if q == 0 else 'v%d' % (16+e)))
            a('v_dot2_f32_bf16 v%d, v%d, v%d, %s' % (20+e, r, r, '0' if q == 0 else 'v%d' % (20+e)))
    a('v_add_f32 v16, v16, v17\nv_add_f32 v18, v18, v19\nv_add_f32 v20, v20, v21\nv_add_f32 v22, v22, v23\nv_add_f32 v16, v16, v18\nv_add_f32 v17, v20, v22')
    xg_sum(a, [16, 17], [18, 19])
    a('ds_write_b64 v10, v[16:17]')
    def mloads():
        for p in range(4):
            for w, ch in enumerate((1, 0)):
                a('s_add_u32 s26, s24, %d' % (p*16384 + ch*8192))
                a('buffer_load_dwordx4 v[%d:%d], v7, s[12:15], s26 offen sc1' % (M+8*p+4*w, M+8*p+4*w+3))
    if opt.earlym: mloads()
    X = 48
    for i in range(16): unpack(a, X+2*i, X+2*i+1, D+i)
    a('s_waitcnt lgkmcnt(0)')
    nonce2(a)
    rt(a, 20)
    a('s_mov_b32 s27, 200000\ns_barrier')
    rt(a, 21)
    a('ds_read_b128 v[16:19], v6\nds_read_b128 v[20:23], v6 offset:16')
    if opt.earlym: a('s_branch ln1_chk')
    a.label('ln1_poll')
    mloads()
    a.label('ln1_chk')
    a('s_sub_u32 s27, s27, 1\ns_waitcnt vmcnt(0)')
    tg = [M+2*i+1 for i in range(16)]
    for op, d in (('v_min3_u32', 24), ('v_max3_u32', 25)):
        a('%s v%d, v%d, v%d, v%d' % (op, d, tg[0], tg[1], tg[2]))
        for i in range(3, 15, 2): a('%s v%d, v%d, v%d, v%d' % (op, d, d, tg[i], tg[i+1]))
        a('%s v%d, v%d, v%d, v%d' % (op, d, d, tg[15], tg[15]))
    a('v_xor_b32 v24, s3, v24\nv_xor_b32 v25, s3, v25\nv_or_b32 v24, v24, v25\nv_cmp_ne_u32 vcc, 0, v24')
    a('s_cmp_eq_u64 vcc, 0\ns_cbranch_scc1 ln1_ok\ns_cmp_lg_u32 s27, 0\ns_cbranch_scc1 ln1_poll')
    a.label('ln1_ok')
    rt(a, 22)
    if opt.ts: a('v_writelane_b32 v11, s27, 23')
    a('v_lshrrev_b32 v6, 2, v0\nv_lshlrev_b32 v6, 6, v6\nv_and_b32 v7, 3, v0\nv_lshl_add_u32 v6, v7, 3, v6\nv_add_u32 v6, %d, v6' % TB)
    for e in (0, 2, 4, 6): a('v_add_f32 v%d, v%d, v%d\nv_add_f32 v%d, v%d, v%d' % (M+e, M+e, M+8+e, M+16+e, M+16+e, M+24+e))
    for k_, e in enumerate((0, 2, 4, 6)): a('v_add_f32 v%d, v%d, v%d' % (24+k_, M+e, M+16+e))
    M = 24
    rndn(a, [M, M+1, M+2, M+3], [M+4, M+5])
    a('v_add_f32 v%d, 1.0, v%d\nv_add_f32 v%d, 1.0, v%d' % (M, M, M+1, M+1))
    rndn(a, [M, M+1], [M+4])
    a('ds_write_b64 v6, v[%d:%d]\nds_write_b64 v6, v[%d:%d] offset:32' % (M, M+1, M+2, M+3))
    a('s_waitcnt lgkmcnt(2)')
    a('v_pk_add_f32 v[16:17], v[16:17], v[18:19]\nv_pk_add_f32 v[20:21], v[20:21], v[22:23]\nv_pk_add_f32 v[16:17], v[16:17], v[20:21]')
    a('v_mul_f32 v9, 0x3a800000, v16\nv_mov_b32 v18, 0x3a800000\nv_mul_f32 v8, v9, v9\nv_fma_f32 v8, v17, v18, -v8')
    a('v_max_f32 v8, 0, v8\nv_add_f32 v8, 0x3727c5ac, v8\nv_rsq_f32 v8, v8')
    a('v_lshlrev_b32 v6, 10, v2\nv_lshl_add_u32 v6, v4, 6, v6\nv_add_u32 v6, %d, v6' % TB)
    a('v_lshlrev_b32 v5, 12, v2\nv_lshl_add_u32 v5, v1, 4, v5\ns_lshl_b32 s23, s21, 14\ns_mul_i32 s22, s20, %d\ns_add_u32 s23, s23, s22' % (1024*(112 if opt.reuse else 32)))
    a('s_waitcnt lgkmcnt(0)\ns_barrier')
    T = 80; X = 48
    for u in range(4):
        for e in range(4): a('ds_read_b128 v[%d:%d], v6 offset:%d' % (T+16*u+4*e, T+16*u+4*e+3, 256*u+16*e))
    a('v_mul_f32 v9, -v9, v8')
    for i in range(0, 32, 2): a('v_pk_fma_f32 v[%d:%d], v[%d:%d], v[8:9], v[8:9] op_sel:[0,0,1] op_sel_hi:[1,0,1]' % (X+i, X+i+1, X+i, X+i+1))
    for u in range(4):
        a('s_waitcnt lgkmcnt(%d)' % (12-4*u))
        for e in range(0, 8, 2): a('v_pk_fma_f32 v[%d:%d], v[%d:%d], v[%d:%d], v[%d:%d]' % (X+8*u+e, X+8*u+e+1, X+8*u+e, X+8*u+e+1, T+16*u+e, T+16*u+e+1, T+16*u+8+e, T+16*u+9+e))
        for e in range(4): a('v_cvt_pk_bf16_f32 v%d, v%d, v%d' % (D+4*u+e, X+8*u+2*e, X+8*u+2*e+1))
        a('buffer_store_dwordx4 v[%d:%d], v5, s[28:31], s23 offen offset:%d' % (D+4*u, D+4*u+3, 1024*u))
    a('s_waitcnt vmcnt(0)\ns_barrier')

KB, RW = 160, 176
def o_loads(a):
    srd(a, 16, 6, KVP, 0x2000000); srd(a, 20, 6, ZP, 0x200000)
    a('s_lshr_b32 s60, s42, 2\ns_lshl_b32 s61, s41, 1\ns_add_u32 s60, s60, s61\ns_and_b32 s61, s42, 3')
    a('s_lshl_b32 s62, s60, 16\ns_lshl_b32 s63, s61, 10\ns_add_u32 s62, s62, s63')
    a('s_lshl_b32 s63, s60, 12\ns_lshl_b32 s64, s61, 6\ns_add_u32 s63, s63, s64')
    a('v_lshlrev_b32 v156, 4, v1\nv_lshrrev_b32 v157, 4, v1\nv_lshlrev_b32 v157, 4, v157\nv_and_b32 v158, 15, v1\nv_lshl_add_u32 v157, v158, 8, v157')
    a('buffer_load_dwordx4 v[%d:%d], v157, s[20:23], s63 offen sc1' % (KB+8, KB+11))
    for m in range(16):
        a('s_lshl_b32 s64, s40, 1\ns_add_u32 s64, s64, %d\ns_and_b32 s64, s64, 15\ns_lshl_b32 s64, s64, 12\ns_add_u32 s64, s64, s62' % m)
        a('buffer_load_dwordx4 v[%d:%d], v156, s[16:19], s64 offen sc1' % (RW+4*m, RW+4*m+3))
    return ['oz'] + [('ok', m) for m in range(16)]
def o_reduce(a, vm):
    S = 244
    a('v_mov_b32 v%d, 0\nv_mov_b32 v%d, 0\nv_mov_b32 v%d, 0\nv_mov_b32 v%d, 0' % (S, S+1, S+4, S+5))
    a('v_bfe_u32 v157, v1, 2, 2\nv_lshrrev_b32 v158, 4, v1\nv_cmp_eq_u32 vcc, v157, v158')
    a('v_and_b32 v157, 1, v1\nv_lshlrev_b32 v157, 4, v157\nv_mov_b32 v158, 0x3f80\nv_lshlrev_b32 v157, v157, v158\nv_cndmask_b32 v157, 0, v157, vcc')
    a('v_and_b32 v158, 2, v1\nv_cmp_eq_u32 vcc, 0, v158\nv_cndmask_b32 v%d, 0, v157, vcc\nv_cndmask_b32 v%d, v157, v%d, vcc' % (S+2, S+3, S))
    vm.wait('oz')
    dpp_sum(a, [KB+8+e for e in range(4)], DPP16)
    for m in range(16):
        vm.wait(('ok', m))
        for h in range(2):
            d = KB + 4*h; A_ = S + 2 - 2*h
            a('v_mfma_f32_16x16x32_bf16 v[%d:%d], v[%d:%d], v[%d:%d], %s' % (d, d+3, A_, A_+3, RW+4*m, RW+4*m+3, '0' if m == 0 else 'v[%d:%d]' % (d, d+3)))
    a('s_lshr_b32 s60, s42, 2\ns_mul_i32 s60, s60, 6144\ns_bfe_u32 s61, s42, 0x10001\ns_lshl_b32 s61, s61, 10\ns_add_u32 s60, s60, s61\ns_and_b32 s61, s42, 1')
    a('s_lshl_b32 s62, s61, 11\ns_add_u32 s62, s62, s60\ns_lshl_b32 s61, s61, 3\ns_add_u32 s60, s60, s61')
    a('v_add_u32 v157, s60, v156\nv_add_u32 v158, s62, v156')
    for e in range(2): a('v_cvt_pk_bf16_f32 v%d, v%d, v%d' % (KB+12+e, KB+8+2*e, KB+9+2*e))
    a('ds_write_b64 v157, v[%d:%d] offset:4096' % (KB+12, KB+13))
    for e in range(4): a('v_cvt_pk_bf16_f32 v%d, v%d, v%d' % (RW+e, KB+2*e, KB+2*e+1))
    a('ds_write_b128 v158, v[%d:%d]' % (RW, RW+3))
    a('s_waitcnt lgkmcnt(0)\ns_barrier')
def o_compute(a, PHI, half):
    AF = RW; R = AF + 24
    KG = 112 if opt.reuse else 32
    srd(a, 20, 6, *(HF, 2048*7168) if opt.reuse else (OF, 0x400000))
    a('s_and_b32 s60, s42, 1\ns_mul_i32 s60, s60, 6144\nv_add_u32 v157, s60, v156')
    for t in range(3):
        for gam in range(2): a('ds_read_b128 v[%d:%d], v157 offset:%d' % (AF+(t*2+gam)*4, AF+(t*2+gam)*4+3, (t*2+gam)*1024))
    a('s_bfe_u32 s60, s42, 0x10001\ns_lshl_b32 s61, s93, 1\ns_add_u32 s60, s60, s61\ns_mul_i32 s60, s60, %d\ns_lshl_b32 s61, s58, 10\ns_add_u32 s60, s60, s61' % (4096*KG))
    if half: a('s_add_u32 s60, s60, %d' % (2048*KG))
    a('s_waitcnt lgkmcnt(0)')
    for gam in range(2):
        for t in (2, 0, 1):
            for i in range(2):
                d = R + (i*3+t)*4; A_ = AF+(t*2+gam)*4; B_ = PHI[(i, gam)]
                a('v_mfma_f32_16x16x32_bf16 v[%d:%d], v[%d:%d], v[%d:%d], %s' % (d, d+3, A_, A_+3, B_, B_+3, '0' if gam == 0 else 'v[%d:%d]' % (d, d+3)))
    dens = [R+(i*3+2)*4 for i in range(2)]
    for d in dens: a('v_add_f32 v%d, 0x358637bd, v%d' % (d, d))
    for d in dens: a('v_rcp_f32 v%d, v%d' % (d, d))
    for i in range(2):
        xs = list(range(R+i*12, R+i*12+8))
        for x in xs[::2]: a('v_pk_mul_f32 v[%d:%d], v[%d:%d], v[%d:%d] op_sel_hi:[1,0]' % (x, x+1, x, x+1, dens[i], dens[i]+1))
        for e in range(4): a('v_cvt_pk_bf16_f32 v%d, v%d, v%d' % (KB+4*i+e, xs[2*e], xs[2*e+1]))
        a('buffer_store_dwordx4 v[%d:%d], v156, s[20:23], s60 offen' % (KB+4*i, KB+4*i+3))
        a('s_add_u32 s60, s60, %d' % (1024*KG))
    a('s_waitcnt vmcnt(0)')

def feat2(a, QF, P, E, MX, W, sL, sink, mid=None, midpos=1, fill=None):
    for i in range(2):
        for ft in range(2):
            t = P + i*8 + ft*4
            a('v_mfma_f32_16x16x32_bf16 v[%d:%d], v[%d:%d], v[%d:%d], 0' % (t, t+3, W+ft*4, W+ft*4+3, QF+4*i, QF+4*i+3))
    fill = list(fill or [])
    def pop(n):
        for _ in range(n):
            if fill: a(fill.pop(0))
    pop(6)
    for rnd in range(4):
        for q in range(4):
            i = q % 2; n = '-' if q >= 2 else ''; b = P + 8*i
            if rnd == 0: a('v_max3_f32 v%d, %sv%d, %sv%d, %sv%d' % (MX+q, n, b, n, b+1, n, b+2))
            elif rnd < 3: a('v_max3_f32 v%d, v%d, %sv%d, %sv%d' % (MX+q, MX+q, n, b+1+2*rnd, n, b+2+2*rnd))
            else: a('v_max_f32 v%d, %sv%d, v%d' % (MX+q, n, b+7, MX+q))
    for st in bfly(a, 'v_max_f32', [MX+q for q in range(4)]):
        pop(2)
        for l in st: a(l)
    for q in range(4): a('v_mul_f32 v%d, s%d, v%d' % (MX+q, sL, MX+q))
    for i in range(2):
        for e in range(8): a('v_fma_f32 v%d, v%d, s%d, -v%d' % (E+8*i+e, P+8*i+e, sL, MX+i))
        for e in range(8): a('v_fma_f32 v%d, -v%d, s%d, -v%d' % (P+8*i+e, P+8*i+e, sL, MX+2+i))
    if mid and midpos == 0: mid()
    for i in range(16): a('v_exp_f32 v%d, v%d\nv_exp_f32 v%d, v%d' % (E+i, E+i, P+i, P+i))
    if mid and midpos == 1: mid()
    B_ = [E, E+8, P, P+8]
    for q in range(4): a('v_add_f32 v%d, v%d, v%d' % (MX+q, B_[q], B_[q]+1))
    for e in range(2, 8):
        for q in range(4): a('v_add_f32 v%d, v%d, v%d' % (MX+q, MX+q, B_[q]+e))
    for st in bfly(a, 'v_add_f32', [MX+q for q in range(4)]):
        pop(2)
        for l in st: a(l)
    pop(99)
    if mid and midpos == 2: mid()
    for q in range(4): a('v_rcp_f32 v%d, v%d' % (MX+q, MX+q))
    for q in range(4):
        for e in range(8): a('v_mul_f32 v%d, v%d, v%d' % (B_[q]+e, B_[q]+e, MX+q))
        for e in range(4): a('v_cvt_pk_bf16_f32 v%d, v%d, v%d' % (B_[q]+e, B_[q]+2*e, B_[q]+2*e+1))
        sink(q % 2, q // 2, B_[q])

def img_addr(a, WA, s_w, IMG):
    a('v_and_b32 v2, 15, v1\nv_lshrrev_b32 v3, 4, v1')
    hrow(a, 6, 2, 5)
    a('v_xor_b32 v6, v6, v3\nv_lshlrev_b32 v2, 7, v2')
    a('s_lshl_b32 s61, s%d, 13\ns_add_u32 s61, s61, %d\nv_add_u32 v2, s61, v2' % (s_w, IMG))
    for u in range(4): a('v_xor_b32 v5, %d, v6\nv_lshl_add_u32 v%d, v5, 3, v2' % (4*u, WA+u))
def hrow(a, dst, row, t):
    a('v_lshrrev_b32 v%d, 1, v%d\nv_and_b32 v%d, 3, v%d\nv_lshlrev_b32 v%d, 2, v%d' % (dst, row, dst, dst, dst, dst))
    a('v_and_b32 v%d, 1, v%d\nv_or_b32 v%d, v%d, v%d' % (t, row, dst, dst, t))
    a('v_lshrrev_b32 v%d, 2, v%d\nv_and_b32 v%d, 2, v%d\nv_or_b32 v%d, v%d, v%d' % (t, row, t, t, dst, dst, t))

def phase0(a, GS):
    V = 8; T = 48; CT = GS + 2048
    a('s_and_b32 s60, s2, 7\ns_lshl_b32 s60, s60, 3\ns_bfe_u32 s61, s2, 0x30003\ns_add_u32 s60, s60, s61\ns_lshr_b32 s61, s2, 6')
    a('s_lshl_b32 s62, s61, 9\ns_mul_i32 s63, s61, %d\ns_lshl_b32 s64, s60, 6\ns_add_u32 s63, s63, s64' % (256*12288))
    a('v_and_b32 v2, 255, v0\nv_mov_b32 v5, %d\nv_mov_b32 v6, 0\nv_mov_b32 v7, 0\nds_write_b32 v5, v6\nv_mov_b32 v3, 147392\nds_write_b64 v3, v[6:7]\ns_waitcnt lgkmcnt(0)' % CT)
    srd(a, 20, 74, 0, 2048); srd(a, 24, 76, 0, 1024*12288)
    vm = gemm.VM(a)
    gemv_issue(a, 4, 2, V, 20, 24, 62, 63, vm, R=4)
    a('s_barrier')
    nonce(a)
    def cpf():
        a('s_lshr_b32 s62, s2, 3\ns_cmp_eq_u32 s42, 7\ns_cselect_b32 s62, s62, 8\ns_min_u32 s62, s62, 8')
        code_pf(a, 'ph0', 'ph0_done', 'code_end', 62, 8, 250, 1, 64)
        vm.issue('cpf')
    if not opt.cpflate: cpf()
    srd(a, 16, 6, MPT, 65536)
    gemv_math(a, 4, V, T, vm, 58, R=4)
    a('v_lshrrev_b32 v3, 4, v2\nv_lshlrev_b32 v3, 7, v3\nv_and_b32 v4, 3, v1\nv_lshl_add_u32 v3, v4, 5, v3\nv_add_u32 v3, %d, v3' % GS)
    a('ds_write_b128 v3, v[%d:%d]\nds_write_b128 v3, v[%d:%d] offset:16' % (T+8, T+11, T+12, T+15))
    a('v_and_b32 v4, 31, v1\nv_lshrrev_b32 v3, 5, v1\nv_lshlrev_b32 v3, 10, v3\nv_lshl_add_u32 v3, v4, 2, v3\nv_add_u32 v3, %d, v3' % GS)
    a('s_lshl_b32 s60, s60, 8\ns_lshl_b32 s61, s61, 14\ns_add_u32 s60, s60, s61\nv_lshlrev_b32 v4, 3, v4\nv_mov_b32 v6, 1\ns_waitcnt lgkmcnt(0)')
    nonce2(a)
    a('s_mov_b64 exec, 1\nds_add_rtn_u32 v6, v5, v6\ns_mov_b64 exec, -1\ns_waitcnt lgkmcnt(0)')
    a('v_readfirstlane_b32 s59, v6\ns_cmp_lg_u32 s59, 3\ns_cbranch_scc1 ph0_nl')
    for p in range(8): a('ds_read_b32 v%d, v3 offset:%d' % (V+p, 128*p))
    a('v_mov_b32 v%d, s3\ns_waitcnt lgkmcnt(0)' % (V+9))
    for s_ in (4, 2):
        for p in range(s_): a('v_add_f32 v%d, v%d, v%d' % (V+p, V+p, V+p+s_))
    a('v_add_f32 v%d, v%d, v%d\nv_add_f32 v%d, v%d, v%d' % (V+8, V, V+1, V+2, V, V+1))
    a('v_permlane32_swap_b32 v%d, v%d\nv_add_f32 v%d, v%d, v%d' % (V+8, V+2, V+8, V+8, V+2))
    a('s_mov_b64 exec, 0xffffffff\nbuffer_store_dwordx2 v[%d:%d], v4, s[16:19], s60 offen\ns_mov_b64 exec, -1' % (V+8, V+9))
    a.label('ph0_nl')
    rt(a, 0)
    if opt.cpflate: cpf()
    srd(a, 16, 6, ZP, FL + 10*ROW - ZP)
    a('s_lshl_b32 s62, s2, 9\ns_lshl_b32 s63, s2, 11\ns_add_u32 s63, s63, %d\ns_cmp_eq_u32 s42, 4\ns_cselect_b32 s62, s62, s63\ns_cselect_b32 s63, 3, 15\ns_cmp_gt_u32 s42, 5\ns_cselect_b32 s62, 0x7000000, s62' % (FL - ZP))
    a('v_min_u32 v249, s63, v1\nv_lshlrev_b32 v249, 7, v249')
    a('buffer_load_dword v251, v249, s[16:19], s62 offen')
    a('s_lshl_b32 s62, s2, 8')
    for q in range(4): a('s_add_u32 s63, s62, %d\ns_load_dword s59, s[32:33], s63' % (64*q))
    a('s_and_b32 s62, s2, 31\ns_lshl_b32 s62, s62, 6\ns_load_dword s59, s[30:31], s62')
    a('s_min_u32 s62, s2, 111\ns_lshl_b32 s62, s62, 6\ns_load_dword s59, s[34:35], s62')
    n0, n1 = opt.spf0
    if n0 + n1:
        a('s_lshl_b32 s62, s2, 2\ns_add_u32 s62, s62, s42\ns_sub_u32 s62, s62, 4\ns_mul_i32 s62, s62, %d' % (64*(n0+n1)))
        if opt.qmir: a('s_lshr_b32 s62, s62, 1\ns_and_b32 s62, s62, -128\ns_and_b32 s63, s42, 1\ns_mul_i32 s63, s63, %d\ns_add_u32 s62, s62, s63' % (512*6144))
        a('s_add_u32 s64, s4, s62\ns_addc_u32 s65, s5, 0')
    for q in range(n0): a('s_load_dword s59, s[64:65], %d' % (64*q))
    a('s_barrier')
    for q in range(n0, n0+n1): a('s_load_dword s59, s[64:65], %d' % (64*q))
    a.label('ph0_done')

def ph_qkv(P, C, st):
    c = gemm.config('qkv', 1024, 128, 3, False, 64, 3, 6144, 2048, swap_frags=(4, 5), natw=True, tail_delay=opt.td0)
    WPH = c.lds; FLG = WPH + 4096
    EB = c.slot
    IMG = EB; VB = EB + 32768; QB = VB + 16384; GV = QB + 16384
    s_hd = 58; sL = 60
    tile_head(P, c, 8, 4, 128, [(74, P_C), (76, P_WMOD), (6, P_WS), (4, P_WQKV), (32, P_WPHI), (78, P_WO), (34, P_B1), (30, P_B2)])
    phase0(P, 2*c.slot + 4096)
    c.srd_hook = lambda a: [srd(a, *x) for x in [(8, 6) + ((HF + 32768, 2048*7168 - 32768) if opt.reuse else (H1F, 0x400000)), (12, 4, 0, 1024*6144)]]
    if opt.reuse: c.xKG = 112
    def boundary0(a, c, vm):
        if not opt.wlate & 1: a('s_barrier')
        a('s_barrier')
        psync(a, 'f1', 1, c.s_mt, c.s_nt, c.s_mt, part=0)
    def boundary(a, c, vm):
        if not opt.wlate & 1: boundary0(a, c, vm)
        if opt.prog1: prog_sync(a, c, 'f1', 1, opt.prog1, lambda a: a('s_lshr_b32 s60, s%d, 14\ns_lshl_b32 s60, 0x5555, s60' % c.s_kx))
        else: early_sync(c, 'f1', 1, None)(a)
    c.boundary = boundary
    if opt.wlate & 1: c.boundary0 = boundary0
    if opt.xsc1: c.xflags = ' sc1'
    def early_issue(a, c, vm):
        V = c.p_vfree
        srd(a, 16, 32, 0, 65536)
        a('v_lshrrev_b32 v%d, 3, v1\nv_and_b32 v%d, 2, v%d\nv_xor_b32 v%d, v1, v%d\nv_lshlrev_b32 v%d, 4, v%d' % (V, V, V, V, V, V, V))
        a('s_sub_u32 s59, s%d, 4\ns_lshl_b32 s59, s59, 10\ns_add_u32 m0, s59, %d\ns_lshl_b32 s61, s%d, 12\ns_add_u32 s59, s59, s61' % (c.s_wave, WPH, c.s_nt))
        a('buffer_load_dwordx4 v%d, s[16:19], s59 offen lds' % V)
        vm.issue('wphi')
    def tail_issue(a, c, vm):
        V = (c.p_vfree + 3)//4*4
        srd(a, 20, 74, 0, 2048); srd(a, 24, 76, 0, 1024*12288)
        a('s_lshr_b32 s61, s2, 6\ns_lshl_b32 s62, s61, 9\ns_mul_i32 s63, s61, %d' % (256*12288))
        a('s_and_b32 s64, s2, 63\ns_lshl_b32 s65, s64, 7\ns_add_u32 s63, s63, s65\ns_add_u32 s63, s63, 4096')
        a('v_and_b32 v%d, 255, v0' % (V+38))
        srd(a, 16, 34, 0, 7168)
        a('s_min_u32 s59, s2, 64\ns_mul_i32 s59, s59, 448\nv_lshlrev_b32 v249, 1, v%d\nbuffer_load_ushort v248, v249, s[16:19], s59 offen' % (V+38))
        vm.issue('b1')
        gemv_issue(a, 8, V+38, V, 20, 24, 62, 63, vm)
        for t_ in prefetch(a, c, 3 & ~opt.pfo): vm.issue(t_)
    def prefetch(a, c, which):
        V = (c.p_vfree + 3)//4*4
        tags = []
        if opt.pf2 and which & 1:
            srd(a, 28, 78, 0, 1024*2048)
            a('v_lshlrev_b32 v%d, 11, v%d\nv_lshl_add_u32 v%d, v%d, 7, v%d' % (V+39, c.p_vrow, V+39, c.p_vch, V+39))
            a('s_lshr_b32 s62, s2, 3\ns_lshl_b32 s62, s62, 2\ns_add_u32 s62, s62, s%d\ns_sub_u32 s62, s62, 4\ns_lshl_b32 s62, s62, 14' % c.s_wave)
            a('s_bfe_u32 s63, s2, 0x%x\ns_lshl_b32 s63, s63, 10\ns_add_u32 s62, s62, s63' % (0x10001 if opt.umap else 0x10002))
            a('buffer_load_dword v%d, v%d, s[28:31], s62 offen' % (251, V+39))
            tags.append('pf')
        if opt.pf5 and which & 2:
            a('s_load_dwordx2 s[30:31], s[0:1], %d' % P_W1)
            a('v_lshrrev_b32 v%d, 4, v1\nv_mul_u32_u24 v%d, 7168, v%d\nv_and_b32 v%d, 15, v1\nv_min_u32 v%d, 13, v%d\nv_lshl_add_u32 v%d, v%d, 7, v%d' % (V+39, V+39, V+39, 250, 250, 250, V+39, 250, V+39))
            a('s_lshr_b32 s62, s2, 3\ns_mul_i32 s62, s62, %d\ns_sub_u32 s63, s42, 4\ns_lshl_b32 s63, s63, 2\ns_add_u32 s62, s62, s63\ns_and_b32 s63, s2, 1\ns_lshl_b32 s63, s63, 9\ns_add_u32 s62, s62, s63\ns_mul_i32 s62, s62, 7168' % opt.pf5)
            a('s_bfe_u32 s63, s2, 0x20001\ns_mul_i32 s63, s63, 1792\ns_add_u32 s62, s62, s63\ns_waitcnt lgkmcnt(0)')
            srd(a, 28, 30, 0, 1024*7168)
            a('buffer_load_dword v%d, v%d, s[28:31], s62 offen' % (251, V+39))
            tags.append('pf')
        return tags

    PHI = {}
    def ptail(a, c, vm):
        V = (c.p_vfree + 3)//4*4
        QF = V + 40; P_ = QF + 20; E = P_ + 16; MX = E + 16; W = MX + 4; T = W + 8
        assert T + 24 <= 156 and P_ >= 48
        srd(a, 16, 6, UT, 32768)
        a('s_min_u32 s59, s2, 64\ns_lshl_b32 s59, s59, 11\nv_lshlrev_b32 v249, 1, v249\nv_mov_b32 v247, 0')
        vm.wait('b1')
        a('v_lshlrev_b32 v248, 16, v248\nbuffer_store_dword v247, v249, s[16:19], s59 offen sc1\nbuffer_store_dword v248, v249, s[16:19], s59 offen offset:1024 sc1')
        vm.issue('ut', 2)
        srd(a, 24, 6, MP2, 65536)
        a('s_mov_b32 s%d, 0x%x' % (sL, LOG2E))
        a('s_and_b32 s%d, s%d, 1' % (c.s_nh, c.s_wave))
        wphi_read(a, W, c.s_nh, WPH, 2, 3)
        a('s_lshl_b32 s59, s%d, 1\ns_add_u32 s%d, s59, s%d' % (c.s_nt, s_hd, c.s_nh))
        a('s_lshl_b32 s61, s61, 14\ns_lshl_b32 s64, s64, 8\ns_add_u32 s64, s64, s61')
        a('s_sub_u32 s61, s%d, 4\ns_lshl_b32 s62, s61, 12\ns_add_u32 s62, s62, %d' % (c.s_wave, QB))
        a('v_lshl_add_u32 v4, v1, 4, s62\ns_sub_u32 s62, s42, 4')
        WA = QF + 16
        img_addr(a, WA, 62, IMG)
        if opt.eprio: a('s_setprio %d' % opt.eprio)
        a('s_barrier')
        for i in range(4): a('ds_read_b128 v[%d:%d], v4 offset:%d' % (QF+4*i, QF+4*i+3, 1024*i))
        a('s_waitcnt lgkmcnt(2)')
        def sinkk(i, sg, B):
            for ft in range(2): a('ds_write_b64 v%d, v[%d:%d] offset:%d' % (WA+2*sg+ft, B+2*ft, B+2*ft+1, (2+i)*2048))
        feat2(a, QF, P_, E, MX, W, sL, sinkk)
        a('s_setprio 0\ns_waitcnt lgkmcnt(0)\ns_barrier')
        def sink(i, sg, B): PHI[(i, sg)] = B
        def mid():
            vm.wait('ut')
            psync(a, 'f2', 2, c.s_nt, c.s_mt, c.s_nt, part=0)
        feat2(a, QF+8, P_, E, MX, W, sL, sink, mid, opt.midpos)
        if opt.midpos == 3: mid()
        rt(a, 14)
        gemv_math(a, 8, V, T, vm, 59)
        a('v_lshrrev_b32 v2, 4, v%d\nv_lshlrev_b32 v2, 8, v2\nv_and_b32 v5, 7, v1\nv_lshl_add_u32 v2, v5, 5, v2\nv_add_u32 v2, %d, v2' % (V+38, GV))
        a('ds_write_b128 v2, v[%d:%d]\nds_write_b128 v2, v[%d:%d] offset:16' % (T+8, T+11, T+12, T+15))
        a('v_mov_b32 v5, %d\nv_mov_b32 v6, 1\ns_waitcnt lgkmcnt(0)' % (FLG+16))
        a('s_mov_b64 exec, 1\nds_add_rtn_u32 v6, v5, v6\ns_mov_b64 exec, -1\ns_waitcnt lgkmcnt(0)')
        a('v_readfirstlane_b32 s59, v6\ns_cmp_lg_u32 s59, 3\ns_cbranch_scc1 qkv_gvx')
        a('v_lshlrev_b32 v5, 2, v1\nv_add_u32 v6, %d, v5' % GV)
        for p in range(16): a('ds_read_b32 v%d, v6 offset:%d' % (T+p, 256*p))
        a('s_and_b32 s59, s2, 63\ns_lshl_b32 s59, s59, 2\ns_lshr_b32 s61, s2, 6\ns_add_u32 s59, s59, s61\ns_lshl_b32 s59, s59, %d\ns_add_u32 s59, s59, %d' % (MS, FL7))
        a('s_waitcnt lgkmcnt(0)')
        for s_ in (8, 4, 2, 1):
            for p in range(s_): a('v_add_f32 v%d, v%d, v%d' % (T+p, T+p, T+p+s_))
        a('buffer_store_dword v%d, v5, s[24:27], s64 offen sc1' % T)
        a('v_mov_b32 v6, s3\ns_waitcnt vmcnt(0)\ns_mov_b64 exec, 1')
        a('buffer_store_dword v6, v252, s[84:87], s59 offen sc1')
        a('s_mov_b64 exec, -1')
        a.label('qkv_gvx')
        rt(a, 15)
        psync(a, 'f2', 2, c.s_nt, c.s_mt, c.s_nt, part=1)
        a('s_mov_b32 s93, s%d\ns_mov_b32 s97, s%d' % (c.s_mt, c.s_nt))
        a('s_or_b32 s59, s2, s42\ns_cmp_lg_u32 s59, 4\ns_cbranch_scc1 qkv_nn\ns_mov_b32 s59, %d\nv_mov_b32 v253, s3\ns_mov_b64 exec, 1' % (NW - FL))
        a('buffer_store_dword v253, v252, s[84:87], s59 offen sc1\ns_mov_b64 exec, -1')
        a.label('qkv_nn')
        st['vm_init'] = vm.ops[vm.done+1:] + o_loads(a) + prefetch(a, c, opt.pfo)
    c.first_c = lambda c, j: '0'
    c.unroll = opt.unroll
    if opt.qmir:
        P('s_lshr_b32 s38, s%d, 3' % c.s_mt); c.mirror = 38
    c.early_issue, c.tail_issue, c.ptail = early_issue, tail_issue, ptail
    gemm.producer(P, c, None)
    if opt.ts and c.flags: P('v_writelane_b32 v255, s70, %d' % (24 + c.fbase//16))
    st['PHI'] = PHI
    a = C
    tile_head(a, c, 8, 4, 128, [(6, P_WS), (34, P_X)])
    ln1_body(a, c, 2*c.slot)
    rt(a, 1)
    for x in [(24, 6, KVP, 0x2000000), (28, 6, ZP, 0x200000)]: srd(a, *x)
    def zero_flags(a, c):
        a('v_lshlrev_b32 v2, 2, v1\nv_add_u32 v2, %d, v2\nv_mov_b32 v3, 0\nds_write_b32 v2, v3\ns_waitcnt lgkmcnt(0)' % FLG)
    def addrs(a, c):
        WA = c.v_free + 44; RA = WA + 4
        b = Asm()
        img_addr(b, WA, c.s_wave, IMG)
        b('v_lshrrev_b32 v2, 2, v1\nv_and_b32 v3, 3, v1')
        hrow(b, 6, 2, 5)
        b('v_xor_b32 v6, v6, v3\nv_lshlrev_b32 v2, 7, v2')
        b('s_lshl_b32 s61, s%d, 13\ns_add_u32 s61, s61, %d\nv_add_u32 v2, s61, v2' % (c.s_nh, IMG))
        b('s_lshl_b32 s61, s%d, 3\nv_xor_b32 v6, s61, v6' % c.s_rh)
        for u in range(2): b('v_xor_b32 v5, %d, v6\nv_lshl_add_u32 v%d, v5, 3, v2' % (4*u, RA+u))
        import re
        a.lines += [re.sub(r'\bv([56])\b', lambda m: 'v%d' % (int(m.group(1)) + 9), l) for l in b.lines]
    c.pre_hook2 = chain(addrs, zero_flags, None if opt.prog1 else BAR)
    c.post_b0 = lambda a, c: rt(a, 2)
    gemm.consumer(a, c)
    if c.stamps: gemm.dump_stamps(a, c)
    if opt.ts and c.flags: a('v_writelane_b32 v11, s70, %d' % (24 + c.fbase//16))
    rt(a, 3)
    a('s_lshl_b32 s%d, s%d, 1\ns_add_u32 s%d, s%d, s%d' % (s_hd, c.s_nt, s_hd, s_hd, c.s_nh))
    wphi_read(a, c.v_free, c.s_nh, WPH, 2, 3)
    W = c.v_free
    ACC = lambda j, i, r=0: c.v_acc + (j*4+i)*4 + r
    QF = 12; HB = 28; P_ = W + 8; E = P_ + 16; MX = E + 16; WA = MX + 4; RA = WA + 4; QQ = RA + 2 + 2
    a('s_mov_b32 s%d, 0x%x' % (sL, LOG2E))
    a('v_lshlrev_b32 v4, 4, v1')
    a('s_lshl_b32 s61, s%d, 12\ns_add_u32 s61, s61, %d' % (c.s_wave, QB))
    a('v_add_u32 v3, s61, v4')
    def pack(dst, j0, i):
        for h in range(2):
            for e in range(2): a('v_cvt_pk_bf16_f32 v%d, v%d, v%d' % (dst+2*h+e, ACC(j0+h, i, 2*e), ACC(j0+h, i, 2*e+1)))
    for n_, (j0, i) in enumerate(((2, 2), (2, 3), (0, 2), (0, 3))):
        pack(HB+4*n_, j0, i)
        a('ds_write_b128 v3, v[%d:%d] offset:%d' % (HB+4*n_, HB+4*n_+3, 1024*n_))
    pack(QF, 2, 0); pack(QF+4, 2, 1)
    a('s_waitcnt lgkmcnt(0)\ns_barrier')
    rt(a, 28)
    def sink(i, sg, B):
        for ft in range(2): a('ds_write_b64 v%d, v[%d:%d] offset:%d' % (WA+2*sg+ft, B+2*ft, B+2*ft+1, i*2048))
    keep = a.lines; a.lines = []
    pack(QQ, 0, 0); pack(QQ+4, 0, 1)
    a('s_lshl_b32 s61, s%d, 1\ns_add_u32 s61, s61, s%d\ns_lshl_b32 s61, s61, 12\ns_add_u32 s61, s61, %d' % (c.s_nh, c.s_rh, VB))
    a('v_add_u32 v3, s61, v4')
    for gam in range(2):
        for dt in range(2):
            q = c.v_acc + (gam*2+dt)*4
            for h in range(2):
                for e in range(2): a('v_cvt_pk_bf16_f32 v%d, v%d, v%d' % (q+2*h+e, ACC(4+dt, 2*gam+h, 2*e), ACC(4+dt, 2*gam+h, 2*e+1)))
            a('ds_write_b128 v3, v[%d:%d] offset:%d' % (q, q+3, (gam*2+dt)*1024))
    for e in range(4): a('v_mov_b32 v%d, 0x3f803f80' % (76+e))
    fl = [l.strip() for l in a.lines]; a.lines = keep
    feat2(a, QF, P_, E, MX, W, sL, sink, fill=fl)
    rt(a, 29)
    a('s_waitcnt lgkmcnt(0)\ns_barrier')
    rt(a, 30)
    AF = 12; VF = 44; ONE = 76; KV = ACC(2, 0)
    a('s_lshl_b32 s61, s%d, 13\ns_add_u32 s61, s61, %d\nv_add_u32 v3, s61, v4' % (c.s_nh, VB))
    for gp in range(4):
        rhp, gam = gp // 2, gp % 2
        for ftl in range(2):
            for t in range(2):
                q = AF + (ftl*4+gp)*4 + 2*t
                a('ds_read_b64_tr_b16 v[%d:%d], v%d offset:%d' % (q, q+1, RA+ftl, rhp*16384 + (gam*32 + t*16)*128))
        for dt in range(2):
            q = VF + (dt*4+gp)*4
            a('ds_read_b128 v[%d:%d], v3 offset:%d' % (q, q+3, (gp*2+dt)*1024))
    for gp in range(4):
        a('s_waitcnt lgkmcnt(%d)' % min(12, 6*(3-gp)))
        for ftl in range(2):
            for t in range(3):
                d = KV + (ftl*3+t)*4; A_ = AF + (ftl*4+gp)*4
                B_ = VF + (t*4+gp)*4 if t < 2 else ONE
                a('v_mfma_f32_16x16x32_bf16 v[%d:%d], v[%d:%d], v[%d:%d], %s' % (d, d+3, A_, A_+3, B_, B_+3, '0' if gp == 0 else 'v[%d:%d]' % (d, d+3)))
    a('s_lshl_b32 s61, s%d, 4\ns_add_u32 s61, s61, s%d' % (s_hd, c.s_mt))
    a('s_lshl_b32 s63, s61, 12\ns_lshl_b32 s64, s%d, 11\ns_add_u32 s63, s63, s64' % c.s_rh)
    a('s_lshl_b32 s61, s61, 8\ns_lshl_b32 s64, s%d, 7\ns_add_u32 s61, s61, s64' % c.s_rh)
    a('v_and_b32 v2, 15, v1\nv_cmp_eq_u32 vcc, 0, v2')
    for ftl in range(2):
        for e in range(4): a('v_cvt_pk_bf16_f32 v%d, v%d, v%d' % (AF+4*ftl+e, KV+(e//2)*12+4*ftl+2*(e%2), KV+(e//2)*12+4*ftl+2*(e%2)+1))
        a('buffer_store_dwordx4 v[%d:%d], v4, s[24:27], s63 offen offset:%d' % (AF+4*ftl, AF+4*ftl+3, ftl*1024))
    a('s_and_saveexec_b64 s[64:65], vcc')
    for ftl in range(2):
        d = KV + (ftl*3+2)*4
        a('buffer_store_dwordx4 v[%d:%d], v1, s[28:31], s61 offen offset:%d' % (d, d+3, ftl*64))
    a('s_mov_b64 exec, s[64:65]')
    rt(a, 4)
    a('s_waitcnt vmcnt(0)\ns_barrier')
    CPHI = {}
    def sinkq(i, sg, B): CPHI[(i, sg)] = B
    feat2(a, QQ, 12, 28, 44, W, sL, sinkq)
    a('s_mov_b32 s93, s%d\ns_barrier' % c.s_mt)
    rt(a, 5)
    vm = gemm.VM(a); vm.ops = o_loads(a)
    o_reduce(a, vm)
    o_compute(a, CPHI, 0)
    a('s_barrier')
    rt(a, 6)
    return c

def poll7(a, tag, offs, nw=4, wave=5):
    if wave is not None: a('s_cmp_lg_u32 s42, %d\ns_cbranch_scc1 %s_x' % (wave, tag))
    a('s_mov_b32 s90, 200000')
    a.label(tag + '_p')
    for q, so in enumerate(offs): a('s_load_dwordx%d s[%d:%d], s[6:7], s%d glc' % (nw, 68+nw*q, 68+nw*q+nw-1, so))
    a('s_sub_u32 s90, s90, 1\ns_waitcnt lgkmcnt(0)')
    n = nw*len(offs)
    for q in range(n): a('s_xor_b32 s%d, s%d, s3' % (68+q, 68+q))
    for q in range(1, n): a('s_or_b32 s68, s68, s%d' % (68+q))
    a('s_cbranch_scc0 %s_x' % tag)
    a('s_cmp_lg_u32 s90, 0\ns_cbranch_scc1 %s_p' % tag)
    a.label(tag + '_x')

def gates(a, c, chunks, bias, SC, V):
    nv = len(chunks)
    srd(a, 20, 6, MP2, 65536)
    a('v_lshrrev_b32 v%d, 4, v1\nv_lshlrev_b32 v%d, 14, v%d\nv_and_b32 v%d, 15, v1\nv_lshl_add_u32 v%d, v%d, 4, v%d' % (V+1, V+1, V+1, V+2, V+1, V+2, V+1))
    for q, ch in enumerate(chunks):
        a('s_lshl_b32 s61, s%d, 8\ns_add_u32 s61, s61, %d' % (c.s_nt, (ch-2)*4096))
        a('buffer_load_dwordx4 v[%d:%d], v%d, s[20:23], s61 offen sc1' % (V+4+4*q, V+7+4*q, V+1))
    if bias:
        srd(a, 20, bias, 0, 2048)
        a('v_lshlrev_b32 v%d, 3, v%d\ns_lshl_b32 s61, s%d, 7' % (V+3, V+2, c.s_nt))
        a('buffer_load_dwordx2 v[%d:%d], v%d, s[20:23], s61 offen' % (V+16, V+17, V+3))
    a('v_lshlrev_b32 v%d, 4, v%d\nv_add_u32 v%d, %d, v%d\ns_waitcnt vmcnt(0)' % (V+2, V+2, V+2, SC, V+2))
    xs = list(range(V+4, V+4+4*nv))
    xg_sum(a, xs, list(range(V+20, V+20+4*nv)))
    rndn(a, xs, list(range(V+20, V+26)))
    for q, ch in enumerate(chunks):
        if ch == 4:
            for e in range(4): a('v_add_f32 v%d, 1.0, v%d' % (V+4+4*q+e, V+4+4*q+e))
            rndn(a, list(range(V+4+4*q, V+8+4*q)), [V+20, V+21])
    if bias:
        for e in range(2): unpack(a, V+8+2*e, V+9+2*e, V+16+e)
        for e in range(4): a('v_mul_f32 v%d, v%d, v%d' % (V+8+e, V+8+e, V+4+e))
    for q in range(nv + (1 if bias else 0)): a('ds_write_b128 v%d, v[%d:%d] offset:%d' % (V+2, V+4+4*q, V+7+4*q, 256*q))
    a('s_waitcnt lgkmcnt(0)')

def res_phase(c, xsrd, fl=''):
    XT = 147456
    def tail(a, c, vm):
        V = c.p_vfree
        srd(a, 16, *xsrd)
        a('v_xor_b32 v%d, v%d, v%d\nv_lshlrev_b32 v%d, 4, v%d\nv_lshl_add_u32 v%d, v%d, 11, v%d' % (V, c.p_vrow, c.p_vch, V, V, V, c.p_vrow, V))
        a('s_sub_u32 s59, s%d, 4\ns_lshl_b32 s60, s%d, 2\ns_add_u32 s60, s60, s59\ns_lshl_b32 s60, s60, 16\ns_lshl_b32 s61, s%d, 7\ns_add_u32 s60, s60, s61' % (c.s_wave, c.s_mt, c.s_nt))
        a('s_lshl_b32 s59, s59, 12\ns_add_u32 s59, s59, %d' % XT)
        for i in range(4):
            a('s_add_u32 m0, s59, %d' % (1024*i))
            a('buffer_load_dwordx4 v%d, s[16:19], s60 offen%s lds' % (V, fl))
            a('s_add_u32 s60, s60, 16384')
        vm.issue('op', 4)
    XA = lambda c: c.v_free + 16 + 48
    c.XA = XA
    def rd(a, c):
        GA = c.v_free + 16
        a('v_lshrrev_b32 v3, 4, v1\nv_lshlrev_b32 v3, 4, v3\nv_add_u32 v3, %d, v3' % XT)
        for q in range(2):
            for j in range(4): a('ds_read_b128 v[%d:%d], v3 offset:%d' % (GA+16*q+4*j, GA+16*q+4*j+3, 256*q + 64*j))
    c.gate_rd = rd
    def pre(a, c):
        a('v_and_b32 v2, 7, v1\nv_lshrrev_b32 v3, 5, v1\nv_xor_b32 v2, v2, v3\nv_lshlrev_b32 v2, 4, v2\nv_bfe_u32 v3, v1, 4, 1\nv_lshl_add_u32 v2, v3, 3, v2')
        a('v_and_b32 v3, 15, v1\nv_lshl_add_u32 v2, v3, 7, v2\ns_lshl_b32 s61, s%d, 12\ns_add_u32 s61, s61, %d\nv_add_u32 v%d, s61, v2' % (c.s_wave, XT, XA(c)))
        for j in range(1, 4): a('v_xor_b32 v%d, %d, v%d' % (XA(c)+j, 32*j, XA(c)))
    def last_reads(c):
        XR = c.v_free
        return ['ds_read_b64 v[%d:%d], v%d offset:%d' % (XR+8*i+2*j, XR+8*i+2*j+1, XA(c)+j, 2048*i) for i in range(2) for j in range(4)]
    c.pre_hook, c.last_reads, c.pre_last_bar = pre, last_reads, (lambda a, c, vm: vm.wait('op'))
    c.first_c = lambda c, j: '0'
    return tail

P2 = lambda x: 'v[%d:%d]' % (x, x+1)
def res_out(a, c, sOut, bias=False):
    XR = c.v_free; GA = XR + 16
    ACC = lambda j, i, r=0: c.v_acc + (i*4+j)*4 + r
    a('s_lshl_b32 s58, s%d, 2\ns_add_u32 s58, s58, s%d' % (c.s_mt, c.s_wave))
    a('s_lshl_b32 s60, s58, 16\ns_lshl_b32 s61, s%d, 7\ns_add_u32 s60, s60, s61' % c.s_nt)
    U = 12; PK = 44
    a('v_and_b32 v2, 15, v1\nv_lshlrev_b32 v2, 11, v2\nv_bfe_u32 v3, v1, 4, 1\nv_lshl_add_u32 v2, v3, 5, v2\nv_lshrrev_b32 v3, 5, v1\nv_lshl_add_u32 v2, v3, 4, v2')
    a('s_add_u32 s61, s60, 32768')
    a('s_waitcnt lgkmcnt(0)')
    def part(i, store=True):
        for j in range(4):
            for e in range(2): unpack(a, U+16*i+4*j+2*e, U+16*i+4*j+2*e+1, XR+8*i+2*j+e)
        if bias:
            for j in range(4):
                for r in (0, 2): a('v_pk_add_f32 %s, %s, %s' % (P2(U+16*i+4*j+r), P2(U+16*i+4*j+r), P2(GA+16+4*j+r)))
        for j in range(4):
            for r in (0, 2): a('v_pk_fma_f32 %s, %s, %s, %s' % (P2(ACC(j,i,r)), P2(ACC(j,i,r)), P2(GA+4*j+r), P2(U+16*i+4*j+r)))
    def out(i):
        for j in range(4):
            for e in range(2): a('v_cvt_pk_bf16_f32 v%d, v%d, v%d' % (PK+8*i+2*j+e, ACC(j,i,2*e), ACC(j,i,2*e+1)))
        if sOut is None:
            for j in range(4): a('ds_write_b64 v%d, v[%d:%d] offset:%d' % (c.XA(c)+j, PK+8*i+2*j, PK+8*i+2*j+1, 2048*i))
            return
        for jp in range(2):
            for e in range(2): a('v_permlane16_swap_b32 v%d, v%d' % (PK+8*i+4*jp+e, PK+8*i+4*jp+2+e))
        for jp in range(2):
            a('buffer_store_dwordx4 v[%d:%d], v2, s[%d:%d], s%d offen offset:%d' % (PK+8*i+4*jp, PK+8*i+4*jp+3, sOut, sOut+3, 60+i, 64*jp))
    return part, out

def ph_wo(P, C, st):
    c = gemm.config('wo', 1024, 128, 1, False, opt.woBK, opt.woS, 2048, 128, rows4=True, KS=2, rpm=opt.rpm, slot0=1, unroll=True)
    c.order = opt.wo_order; c.G = opt.wo_G
    whead = uhead if opt.umap else (lambda a, c, p: tile_head(a, c, 4, 8, 128, p))
    whead(P, c, [(4, P_WO), (32, P_X), (34, P_W1)])
    c.srd_hook = lambda a: [srd(a, *x) for x in [(8, 6) + ((HF, 2048*7168) if opt.reuse else (OF, 0x400000)), (12, 4, 0, 1024*2048)]]
    if opt.reuse: c.xKG = 112
    c.vm_init = st['vm_init']
    if opt.xsc1: c.xflags = ' sc1'
    def boundary(a, c, vm):
        rt(a, 16)
        o_reduce(a, vm)
        rt(a, 17)
        o_compute(a, st['PHI'], 1)
        psync(a, 'f3', 3, 93, 97, c.s_mt, part=0)
        if opt.pf3:
            V = 40
            srd(a, 28, 34, 0, 1024*7168)
            a('v_lshrrev_b32 v%d, 4, v1\nv_mul_u32_u24 v%d, 7168, v%d\nv_and_b32 v%d, 15, v1\nv_min_u32 v%d, 13, v%d\nv_lshl_add_u32 v%d, v%d, 7, v%d' % (V, V, V, V+1, V+1, V+1, V, V+1, V))
            a('s_lshr_b32 s61, s2, 3\ns_lshl_b32 s61, s61, 2\ns_add_u32 s61, s61, s42\ns_sub_u32 s61, s61, 4\ns_mul_i32 s61, s61, %d' % (4*7168))
            a('s_bfe_u32 s62, s2, 0x20001\ns_mul_i32 s62, s62, 1792\ns_add_u32 s61, s61, s62')
            for q in range(opt.pf3):
                a('buffer_load_dword v251, v%d, s[28:31], s61 offen\ns_add_u32 s61, s61, %d' % (V, 512*7168))
            vm.issue('pf', opt.pf3)
        a('s_cmp_lg_u32 s42, 6\ns_cbranch_scc1 wo7_x')
        w1_tau(a)
        a('v_lshrrev_b32 v40, 2, v1\nv_cmp_gt_u32 vcc, 2, v40\nv_mov_b32 v41, s65\nv_mov_b32 v42, s%d\nv_cndmask_b32 v41, v41, v42, vcc\nv_lshlrev_b32 v41, 2, v41' % c.s_nt)
        a('v_lshlrev_b32 v40, 2, v40\nv_mov_b32 v42, 0x2120\nv_lshrrev_b32 v40, v40, v42\nv_and_b32 v40, 3, v40\nv_lshl_add_u32 v41, v40, 6, v41\nv_and_b32 v40, 3, v1\nv_add_u32 v41, v40, v41\nv_lshlrev_b32 v41, %d, v41' % MS)
        a('s_mov_b32 s61, %d\ns_mov_b64 exec, 0xffff' % FL7)
        a.label('wo7_p')
        a('buffer_load_dword v40, v41, s[84:87], s61 offen sc1\ns_sub_u32 s90, s90, 1\ns_waitcnt vmcnt(0)\nv_cmp_ne_u32 vcc, s3, v40')
        a('s_cmp_eq_u64 vcc, 0\ns_cbranch_scc1 wo7_y\ns_cmp_lg_u32 s90, 0\ns_cbranch_scc1 wo7_p')
        a.label('wo7_y')
        a('s_mov_b64 exec, -1')
        gates(a, c, [2, 4], None, 147456, 160)
        a.label('wo7_x')
        if opt.prog3: prog_sync(a, c, 'f3', 3, opt.prog3, lambda a: a('s_lshr_b32 s60, s%d, 11\ns_lshl_b32 s60, 3, s60' % c.s_kx))
        else: early_sync(c, 'f3', 3, None)(a)
    c.boundary = boundary
    c.tail_issue = res_phase(c, (32, 0, 0x400000))
    gemm.producer(P, c, None)
    if opt.ts and c.flags: P('v_writelane_b32 v255, s70, %d' % (24 + c.fbase//16))
    assert c.vm.done == len(c.vm.ops) - 1
    P('s_mov_b32 s93, s%d\ns_mov_b32 s97, s%d' % (c.s_mt, c.s_nt))
    a = C
    whead(a, c, [])
    if not opt.umap: srd(a, 24, 6, X1, 0x400000)
    for x in [(28, 6, ST2, 0x40000), (16, 6, H2F, 0x400000)]: srd(a, *x)
    c.pre_hook2 = None if opt.prog3 else chain(BAR, c.gate_rd)
    c.post_b0 = chain(lambda a, c: rt(a, 7), c.gate_rd if opt.prog3 else None)
    gemm.consumer(a, c)
    if c.stamps: gemm.dump_stamps(a, c)
    if opt.ts and c.flags: a('v_writelane_b32 v11, s70, %d' % (24 + c.fbase//16))
    rt(a, 8)
    ACC = lambda j, i, r=0: c.v_acc + (i*4+j)*4 + r
    part, out = res_out(a, c, None)
    part(0); part(1)
    Q = 60
    for i in range(2):
        xs = [ACC(j,i,r) for j in range(4) for r in (0, 2)]
        S0, Q0 = 64+8*i, 68+8*i
        for k in range(2): a('v_pk_add_f32 %s, %s, %s' % (P2(S0+2*k), P2(xs[k]), P2(xs[2+k])))
        for k in range(2): a('v_pk_mul_f32 %s, %s, %s' % (P2(Q0+2*k), P2(xs[k]), P2(xs[k])))
        for m in (4, 6):
            for k in range(2): a('v_pk_add_f32 %s, %s, %s' % (P2(S0+2*k), P2(S0+2*k), P2(xs[m+k])))
        for m in (2, 4, 6):
            for k in range(2): a('v_pk_fma_f32 %s, %s, %s, %s' % (P2(Q0+2*k), P2(xs[m+k]), P2(xs[m+k]), P2(Q0+2*k)))
        a('v_pk_add_f32 %s, %s, %s\nv_pk_add_f32 %s, %s, %s' % (P2(S0), P2(S0), P2(S0+2), P2(Q0), P2(Q0), P2(Q0+2)))
        a('v_add_f32 v%d, v%d, v%d\nv_add_f32 v%d, v%d, v%d' % (Q+i, S0, S0+1, Q+2+i, Q0, Q0+1))
    for s_ in bfly(a, 'v_add_f32', [Q, Q+1, Q+2, Q+3])[:4]:
        for l in s_: a(l)
    a('v_and_b32 v4, 15, v1\nv_lshrrev_b32 v3, 5, v1\nv_lshl_add_u32 v4, v3, 4, v4\nv_lshlrev_b32 v4, 3, v4\nv_bfe_u32 v3, v1, 4, 1\nv_lshl_add_u32 v4, v3, 2, v4')
    a('s_lshl_b32 s63, s58, 8\ns_lshl_b32 s62, s%d, 14\ns_add_u32 s62, s63, s62' % c.s_nt)
    a('buffer_store_dword v%d, v4, s[28:31], s62 offen sc1' % Q)
    a('v_and_b32 v4, 15, v1\nv_lshlrev_b32 v4, 4, v4\nv_bfe_u32 v3, v1, 4, 1\nv_lshl_add_u32 v4, v3, 9, v4\nv_lshrrev_b32 v3, 5, v1\nv_lshl_add_u32 v4, v3, 8, v4')
    a('s_lshl_b32 s62, s58, 16\ns_lshl_b32 s63, s%d, 11\ns_add_u32 s62, s62, s63\ns_add_u32 s63, s62, 32768' % c.s_nt)
    A2 = c.v_free + 32; PK = 88; U = 12
    for i in range(2):
        for j in range(4):
            for r in (0, 2): a('v_pk_mul_f32 %s, %s, %s' % (P2(U+16*i+4*j+r), P2(ACC(j,i,r)), P2(A2+4*j+r)))
        for j in range(4):
            for e in range(2): a('v_cvt_pk_bf16_f32 v%d, v%d, v%d' % (PK+8*i+2*j+e, U+16*i+4*j+2*e, U+16*i+4*j+2*e+1))
        for jp in range(2):
            for e in range(2): a('v_permlane16_swap_b32 v%d, v%d' % (PK+8*i+4*jp+e, PK+8*i+4*jp+2+e))
        for jp in range(2):
            a('buffer_store_dwordx4 v[%d:%d], v4, s[16:19], s%d offen offset:%d' % (PK+8*i+4*jp, PK+8*i+4*jp+3, 62+i, 1024*jp))
    if opt.umap: out(0); out(1)
    rt(a, 9)
    a('s_waitcnt vmcnt(0)\ns_barrier')
    if not opt.umap:
        PK = 44
        a('s_lshl_b32 s61, s42, 12\ns_add_u32 s61, s61, 147456\nv_add_u32 v5, s61, v4')
        for i in range(2):
            for j in range(4):
                for e in range(2): a('v_cvt_pk_bf16_f32 v%d, v%d, v%d' % (PK+8*i+2*j+e, ACC(j,i,2*e), ACC(j,i,2*e+1)))
            for jp in range(2):
                for e in range(2): a('v_permlane16_swap_b32 v%d, v%d' % (PK+8*i+4*jp+e, PK+8*i+4*jp+2+e))
            for jp in range(2):
                if opt.x1p: a('ds_write_b128 v5, v[%d:%d] offset:%d' % (PK+8*i+4*jp, PK+8*i+4*jp+3, 2048*i + 1024*jp))
                else: a('buffer_store_dwordx4 v[%d:%d], v4, s[24:27], s%d offen offset:%d' % (PK+8*i+4*jp, PK+8*i+4*jp+3, 62+i, 1024*jp))
    rt(a, 10)
    return c

def w1_tau(a):
    a('s_lshr_b32 s61, s2, 3\ns_lshr_b32 s62, s61, 3\ns_add_u32 s62, s62, s61\ns_and_b32 s62, s62, 3')
    a('s_cmp_eq_u32 s62, 0\ns_cselect_b32 s63, 4, s62\ns_lshl_b32 s64, s62, 2\ns_lshr_b32 s64, 0x1431, s64\ns_and_b32 s64, s64, 15')
    a('s_add_u32 s65, s62, 1\ns_and_b32 s65, s65, 3\ns_add_u32 s62, s63, 3\ns_bitcmp1_b32 s61, 2\ns_cselect_b32 s64, s63, s64\ns_cselect_b32 s65, s62, s65')
    a('s_and_b32 s61, s2, 1\ns_lshl_b32 s61, s61, 3\ns_add_u32 s65, s65, s61')

def ph_w1(P, C, st):
    c = gemm.config('w1', 1024, 128, 3, True, 64, 3, 7168, 128, natw=True, tail_delay=opt.td1)
    BT = c.lds
    tile_head(P, c, 8, 4, 448, [(4, P_W1), (34, P_W2)])
    c.srd_hook = lambda a: [srd(a, *x) for x in [(8, 6, H2F, 0x400000), (12, 4, 0, 1024*7168)]]
    if opt.xsc1: c.xflags = ' sc1'
    XE = BT; RS = XE + 2048; UTL = RS + 1024; UTL2 = UTL + 2048
    tau = w1_tau
    tau(P)
    P('s_add_u32 s92, s64, 1\ns_lshr_b32 s38, s%d, 3' % c.s_mt)
    c.mirror = 38
    def boundary0(a, c, vm):
        psync(a, 'f5', 5, 93, 97, c.s_mt, part=0)
        V = (c.p_vfree + 3)//4*4
        srd(a, 20, 6, MP2, 65536); srd(a, 24, 6, ST2, 0x40000); srd(a, 16, 6, UT, 32768)
        a('v_lshrrev_b32 v%d, 4, v1\nv_lshlrev_b32 v%d, 14, v%d\nv_and_b32 v%d, 15, v1\nv_lshl_add_u32 v%d, v%d, 4, v%d' % (V+1, V+1, V+1, V+2, V+1, V+2, V+1))
        for q, ch in enumerate((4, 3)):
            a('s_lshl_b32 s61, s65, 8\ns_add_u32 s61, s61, %d' % ((ch-2)*4096))
            a('buffer_load_dwordx4 v[%d:%d], v%d, s[20:23], s61 offen sc1' % (V+4+4*q, V+7+4*q, V+1))
        vm.issue('xe', 2)
    def boundary(a, c, vm):
        vm.wait('xe')
        if opt.pf6: tail_issue(a, c, vm, True)
        pre_b0(a, c, vm)
        if opt.prog5: prog_sync(a, c, 'f5', 5, opt.prog5, lambda a: a('s_lshr_b32 s60, s%d, 11\ns_lshl_b32 s60, 1, s60' % c.s_kx))
        else: early_sync(c, 'f5', 5, None)(a)
    c.boundary0, c.boundary = boundary0, boundary
    def pre_b0(a, c, vm):
        V = (c.p_vfree + 3)//4*4
        xs = list(range(V+4, V+12))
        for e in range(4): a('v_mov_b32 v%d, 0' % (V+20+e))
        a('v_lshlrev_b32 v%d, 4, v1\nv_add_u32 v%d, %d, v%d' % (V+3, V+3, XE, V+3))
        a('ds_write_b128 v%d, v[%d:%d]\nds_write_b128 v%d, v[%d:%d] offset:1024' % (V+3, V+20, V+23, V+3, V+20, V+23))
        xg_sum(a, xs, list(range(V+12, V+20)))
        rndn(a, xs[:4], [V+12, V+13])
        for e in range(4): a('v_add_f32 v%d, 1.0, v%d' % (V+4+e, V+4+e))
        for e in range(4): a('v_cvt_pk_bf16_f32 v%d, v%d, v%d' % (V+12+e, V+4+2*e, V+5+2*e))
        a('v_lshrrev_b32 v%d, 1, v%d\nv_lshlrev_b32 v%d, 8, v%d\nv_and_b32 v%d, 1, v%d\nv_lshl_add_u32 v%d, v%d, 3, v%d\nv_add_u32 v%d, %d, v%d' % (V+3, V+2, V+3, V+3, V+2, V+2, V+3, V+2, V+3, V+3, XE, V+3))
        a('ds_write_b64 v%d, v[%d:%d]\nds_write_b64 v%d, v[%d:%d] offset:16' % (V+3, V+12, V+13, V+3, V+14, V+15))
        a('s_waitcnt lgkmcnt(0)')
    def iter_hook(a, c, vm, k):
        V = (c.p_vfree + 3)//4*4 + 48
        if k == opt.x1at and opt.x1p:
            srd(a, 28, 6, X1, 0x400000)
            a('s_sub_u32 s60, s42, 4\ns_lshl_b32 s61, s60, 12\ns_add_u32 s61, s61, 147456\nv_lshl_add_u32 v%d, v1, 4, s61\nv_lshlrev_b32 v%d, 4, v1' % (V+4, V+5))
            for q in range(4): a('ds_read_b128 v[%d:%d], v%d offset:%d' % (V+8+4*q, V+11+4*q, V+4, 1024*q))
            a('s_lshl_b32 s61, s93, 2\ns_add_u32 s60, s60, s61\ns_lshl_b32 s60, s60, 16\ns_lshl_b32 s61, s97, 11\ns_add_u32 s60, s60, s61\ns_add_u32 s61, s60, 32768\ns_waitcnt lgkmcnt(0)')
            for q in range(4): a('buffer_store_dwordx4 v[%d:%d], v%d, s[28:31], s%d offen offset:%d' % (V+8+4*q, V+11+4*q, V+5, 60 + q//2, 1024*(q % 2)))
            vm.issue('x1', 4)
        V = (c.p_vfree + 3)//4*4 + 24
        if k == opt.ut_at - 2:
            a('s_lshl_b32 s60, s%d, %d\ns_add_u32 s60, s60, %d\nv_lshlrev_b32 v%d, 5, v1\nbuffer_load_dword v%d, v%d, s[84:87], s60 offen sc1' % (c.s_nt, MS+4, 4*ROW, V+23, V+22, V+23))
            vm.issue('f9')
        if k == opt.ut_at:
            vm.wait('f9')
            a('s_mov_b32 s90, 200000')
            a.label('w19_p')
            a('v_cmp_ne_u32 vcc, s3, v%d\ns_cmp_eq_u64 vcc, 0\ns_cbranch_scc1 w19_y' % (V+22))
            a('buffer_load_dword v%d, v%d, s[84:87], s60 offen sc1\ns_sub_u32 s90, s90, 1\ns_waitcnt vmcnt(0)\ns_cmp_lg_u32 s90, 0\ns_cbranch_scc1 w19_p' % (V+22, V+23))
            a.label('w19_y')
        if k == opt.ut_at:
            a('v_lshlrev_b32 v%d, 4, v1\ns_lshl_b32 s60, s%d, 11\ns_mov_b32 m0, %d' % (V, c.s_nt, UTL2))
            a('buffer_load_dwordx4 v%d, s[16:19], s60 offen sc1 lds\nbuffer_load_dwordx4 v%d, s[16:19], s60 offen offset:1024 sc1 lds' % (V, V))
            a('v_and_b32 v%d, 15, v1\nv_lshlrev_b32 v%d, 4, v%d\nv_lshrrev_b32 v%d, 4, v1\nv_lshl_add_u32 v%d, v%d, 14, v%d' % (V, V, V, V+1, V+1, V+1, V))
            a('s_lshl_b32 s60, s%d, 2\ns_add_u32 s60, s60, s42\ns_sub_u32 s60, s60, 4\ns_lshl_b32 s60, s60, 8' % c.s_mt)
            for q in range(4):
                a('buffer_load_dwordx4 v[%d:%d], v%d, s[24:27], s60 offen sc1\ns_add_u32 s60, s60, 65536' % (V+4+4*q, V+7+4*q, V+1))
            vm.issue('st', 6)
    def bar_hook(a, c, vm, k):
        V = (c.p_vfree + 3)//4*4 + 48
        if k == (opt.x1at + 3 if opt.x1p else 1) and not opt.umap:
            a('s_cmp_lg_u32 s42, 4\ns_cbranch_scc1 w1_nx\ns_lshl_b32 s61, s93, 4\ns_add_u32 s61, s61, s97\ns_lshl_b32 s61, s61, %d\ns_add_u32 s61, s61, %d\nv_mov_b32 v253, s3\ns_mov_b64 exec, 1' % (MS, 9*ROW))
            a('buffer_store_dword v253, v252, s[84:87], s61 offen sc1\ns_mov_b64 exec, -1')
            a.label('w1_nx')
        if k == 1:
            a('s_lshl_b32 s95, s%d, %d\ns_add_u32 s95, s95, %d\ns_lshl_b32 s94, s%d, %d\ns_add_u32 s95, s95, s94\nv_mov_b32 v253, s3' % (c.s_nt, MS+4, 4*ROW, c.s_mt, MS))
            a('s_sub_u32 s94, s42, 4\ns_lshl_b32 s94, s94, 9\nv_lshl_add_u32 v%d, v1, 2, s94\nv_add_u32 v%d, %d, v%d\ns_lshl_b32 s94, s%d, 11' % (V, V+1, UTL, V, c.s_nt))
            a('s_add_u32 s96, s92, 1\ns_sub_u32 s60, s42, 4\ns_lshl_b32 s60, s60, 5\ns_add_u32 s95, s95, s60')
        if 2 <= k <= 5:
            a('s_cmp_lg_u32 s92, %d\ns_cbranch_scc1 w1_np%d' % (k, k))
            a('ds_read_b32 v%d, v%d\nds_read_b32 v%d, v%d offset:256\ns_waitcnt lgkmcnt(0)' % (V+2, V+1, V+3, V+1))
            a('buffer_atomic_add_f32 v%d, v%d, s[16:19], s94 offen\nbuffer_atomic_add_f32 v%d, v%d, s[16:19], s94 offen offset:256' % (V+2, V, V+3, V))
            a.label('w1_np%d' % k)
        if 4 <= k <= 7:
            a('s_cmp_lg_u32 s96, %d\ns_cbranch_scc1 w1_ns%d\ns_mov_b64 exec, 1' % (k-1, k))
            a('buffer_store_dword v253, v252, s[84:87], s95 offen sc1\ns_mov_b64 exec, -1')
            a.label('w1_ns%d' % k)
    def ptail(a, c, vm):
        V = (c.p_vfree + 3)//4*4 + 24
        b = V+4
        vm.wait('st')
        for st_ in (8, 4):
            for e in range(0, st_, 2): a('v_pk_add_f32 %s, %s, %s' % (P2(b+e), P2(b+e), P2(b+e+st_)))
        xg_sum(a, [b, b+1, b+2, b+3], [b+4, b+5, b+6, b+7])
        a('v_mov_b32 v%d, 0x3a800000' % (b+8))
        for h in (0, 2):
            a('v_mul_f32 v%d, v%d, v%d\nv_mul_f32 v%d, v%d, v%d\nv_fma_f32 v%d, v%d, v%d, -v%d' % (b+5+h, b+h, b+8, b+4+h, b+5+h, b+5+h, b+4+h, b+1+h, b+8, b+4+h))
            a('v_max_f32 v%d, 0, v%d\nv_add_f32 v%d, 0x3727c5ac, v%d\nv_rsq_f32 v%d, v%d\nv_mul_f32 v%d, -v%d, v%d' % (b+4+h, b+4+h, b+4+h, b+4+h, b+4+h, b+4+h, b+5+h, b+5+h, b+4+h))
        a('s_sub_u32 s60, s42, 4\ns_lshl_b32 s60, s60, 8\ns_add_u32 s60, s60, %d\nv_add_u32 v%d, s60, v%d' % (RS, V, V))
        a('ds_write_b128 v%d, v[%d:%d]\ns_waitcnt lgkmcnt(0)' % (V, b+4, b+7))
    c.iter_hook, c.bar_hook = iter_hook, bar_hook
    if opt.ptail:
        c.ptail = lambda a, c, vm: (ptail(a, c, vm), a('s_barrier'))
        st['w1_ptail'] = lambda a, vm: a('s_barrier')
    else: st['w1_ptail'] = lambda a, vm: (ptail(a, c, vm), a('s_barrier'))
    def tail_issue(a, c, vm, early=False):
        V = c.p_vfree
        if opt.pf4 not in (1, 3): return
        srd(a, 28, 34, 0, 3584*2048)
        a('v_lshlrev_b32 v%d, 11, v%d\nv_lshl_add_u32 v%d, v%d, 7, v%d' % (V, c.p_vrow, V, c.p_vch, V))
        a('s_bfe_u32 s62, s2, 0x10002\ns_lshl_b32 s62, s62, 1\ns_and_b32 s63, s2, 1\ns_add_u32 s62, s62, s63\ns_mul_i32 s62, s62, 896\ns_lshr_b32 s61, s2, 3\ns_mul_i32 s61, s61, 28\ns_add_u32 s62, s62, s61')
        a('s_sub_u32 s61, s42, 4\ns_lshl_b32 s61, s61, 3\ns_add_u32 s62, s62, s61\ns_lshl_b32 s62, s62, 11\ns_bfe_u32 s63, s2, 0x10001\ns_lshl_b32 s63, s63, 10\ns_add_u32 s62, s62, s63')
        if opt.pf6: a('s_mov_b64 exec, 0x%x' % ((1 << opt.pf6) - 1) if early else 's_lshl_b64 exec, -1, %d' % opt.pf6)
        a('buffer_load_dword v251, v%d, s[28:31], s62 offen\ns_mov_b64 exec, -1' % V)
        vm.issue('pf')
    c.tail_issue = tail_issue
    c.unroll = True
    gemm.producer(P, c, None)
    if opt.ts and c.flags: P('v_writelane_b32 v255, s70, %d' % (24 + c.fbase//16))
    P('s_mov_b32 s93, s%d\ns_mov_b32 s97, s%d' % (c.s_mt, c.s_nt))
    st['vm_init'] = c.vm.ops[c.vm.done+1:]
    a = C
    tile_head(a, c, 8, 4, 448, [])
    srd(a, 24, 6, HF, 2048*7168)
    ACC = lambda j, i, r=0: (c.v_acc + (j*4+i)*4 + r) if j < 6 else (c.v_acc + 96 + ((j-6)*2+i)*4 + r)
    tau(a)
    def pre(a, c):
        a('s_lshl_b32 s58, s%d, 6\ns_add_u32 s58, s58, s%d' % (c.s_nh, c.s_col0))
        a('s_mul_i32 s59, s%d, 448\ns_sub_u32 s60, s58, s59\ns_sub_u32 s59, s%d, s59\ns_lshl_b32 s60, s60, 1\ns_lshl_b32 s59, s59, 1' % (c.s_nt, c.s_colh))
        a('s_add_u32 s61, s60, %d\nv_lshl_add_u32 v2, v1, 2, s61\ns_add_u32 s61, s59, %d\nv_lshl_add_u32 v3, v1, 2, s61' % (UTL, UTL))
        a('v_lshlrev_b32 v10, 4, v1\nv_add_u32 v10, %d, v10' % XE)
    nlab = [0]
    a('s_sub_u32 s64, s64, 1')
    c.hook_stages = 4
    c.drain1 = not (opt.umap or opt.x1p)
    def step_hook(a, c, step, wr, xe):
        UA = c.v_free
        nlab[0] += 1
        a('s_cmp_lg_u32 s64, 0\ns_cbranch_scc1 w1_xs%d' % nlab[0])
        a('ds_read_b128 v[%d:%d], v10 offset:%d\ns_waitcnt lgkmcnt(0)' % (xe, xe+3, 1024*step))
        for j in range(8): a('v_mfma_f32_16x16x32_bf16 v[%d:%d], v[%d:%d], v[%d:%d], %s' % (UA+4*j, UA+4*j+3, xe, xe+3, wr(j), wr(j)+3, '0' if step == 0 else 'v[%d:%d]' % (UA+4*j, UA+4*j+3)))
        if step == 1:
            a('s_mov_b64 exec, 0xffff')
            for j in range(8):
                o = ((j//2)*128 + (j % 2)*32)*2 if j < 6 else (j-6)*64
                for e in range(2): a('ds_write_b32 v%d, v%d offset:%d' % (2 if j < 6 else 3, UA+4*j+e, o + 1024*e))
            a('s_mov_b64 exec, -1\ns_waitcnt lgkmcnt(0)')
        a.label('w1_xs%d' % nlab[0])
        if step == 1: a('s_sub_u32 s64, s64, 1')
    c.pre_hook, c.post_b0, c.pre_hook2, c.step_hook = pre, (lambda a, c: rt(a, 11)), (None if opt.prog5 else BAR), step_hook
    c.first_c = lambda c, j: '0'
    def panel_tail(a, c, ms0, AD, wfr, delta):
        RR = c.v_free; TM = RR + 8; AB = TM + 16; UT_ = 60
        addrs = [AD, [AB+i for i in range(6)]]
        amap = lambda st_, v: addrs[st_][AD.index(v)]
        steps = [(p, st_, sub) for p in range(4) for st_ in range(2) for sub in range(2)]
        def rds(n):
            p, st_, sub = steps[n]; B = 12 + 24*(n % 2); r = []
            for u in range(2):
                v, base, ss, ts = wfr[2*p+u]
                r += ['ds_read_b64_tr_b16 v[%d:%d], v%d offset:%d' % (B+16+4*u+2*t, B+17+4*u+2*t, amap(st_, v), base + sub*ss + t*ts) for t in range(2)]
            xs = ['ds_read_b128 v[%d:%d], v%d offset:%d' % (B+4*i, B+4*i+3, addrs[st_][1 if i >= 2 else 0], (i*2+sub)*1024) for i in range(4 if p < 3 else 2)]
            return r[:2] + xs + r[2:]
        def mms(n):
            p, st_, sub = steps[n]; B = 12 + 24*(n % 2)
            return ['v_mfma_f32_16x16x32_bf16 v[%d:%d], v[%d:%d], v[%d:%d], v[%d:%d]' % (ACC(2*p+u, i), ACC(2*p+u, i)+3, B+16+4*u, B+19+4*u, B+4*i, B+4*i+3, ACC(2*p+u, i), ACC(2*p+u, i)+3) for u in range(2) for i in range(4 if p < 3 else 2)]
        def utr(p):
            U = UT_ + 16*(p % 2); o = p*256 if p < 3 else 0
            return ['ds_read_b128 v[%d:%d], v%d offset:%d' % (U+8*w+4*u, U+8*w+4*u+3, 2 if p < 3 else 3, o + 64*u + 1024*w) for w in range(2) for u in range(2)]
        def epi(p):
            U = UT_ + 16*(p % 2); r = []
            for i in range(4 if p < 3 else 2):
                xs = [ACC(2*p+u, i, q) for u in range(2) for q in range(4)]; T = TM + 8*(i % 2)
                r += ['v_pk_fma_f32 %s, %s, %s, %s op_sel:[0,1,0] op_sel_hi:[1,1,1]' % (P2(T+k), P2(U+k), P2(RR+2*i), P2(U+8+k)) for k in range(0, 8, 2)]
                r += ['v_pk_fma_f32 %s, %s, %s, %s op_sel_hi:[1,0,1]' % (P2(xs[k]), P2(xs[k]), P2(RR+2*i), P2(T+k)) for k in range(0, 8, 2)]
                r += ['v_max_f32 v%d, 0, v%d' % (x, x) for x in xs]
                r += ['v_pk_mul_f32 %s, %s, %s' % (P2(x), P2(x), P2(x)) for x in xs[::2]]
                r += ['v_cvt_pk_bf16_f32 v%d, v%d, v%d' % (xs[k], xs[2*k], xs[2*k+1]) for k in range(4)]
                if p < 3: r.append('buffer_store_dwordx4 v[%d:%d], v%d, s[24:27], s%d offen offset:%d' % (xs[0], xs[0]+3, 255 if p == 2 else 10, 60+i, 2048*(p % 2)))
                else: r.append('buffer_store_dwordx4 v[%d:%d], v10, s[24:27], s%d offen' % (xs[0], xs[0]+3, 64+i))
            return r
        b = Asm()
        for i in range(6): b('v_add_u32 v%d, %d, v%d' % (AB+i, delta, AD[i]))
        b('v_lshrrev_b32 v3, 4, v1\nv_lshlrev_b32 v3, 4, v3\ns_add_u32 s60, s60, %d\ns_add_u32 s59, s59, %d\nv_add_u32 v2, s60, v3\nv_add_u32 v3, s59, v3' % (UTL2, UTL2))
        b('v_and_b32 v250, 15, v1\nv_lshlrev_b32 v250, 3, v250\ns_lshl_b32 s60, s%d, 9\ns_add_u32 s60, s60, %d\ns_lshl_b32 s59, s%d, 8\ns_add_u32 s61, s60, s59\ns_sub_u32 s60, s60, s59\nv_add_u32 v251, s60, v250\nv_add_u32 v250, s61, v250' % (c.s_rh, RS, c.s_nh))
        b('v_lshlrev_b32 v10, 4, v1\nv_add_u32 v255, 4096, v10')
        b('s_lshl_b32 s60, s%d, 1\ns_add_u32 s60, s60, s%d\ns_mul_i32 s60, s60, %d\ns_mul_i32 s59, s%d, %d' % (c.s_mt, c.s_rh, 4*112*1024, c.s_nh, 2*112*1024))
        b('s_lshl_b32 s64, s%d, 4\ns_add_u32 s64, s64, s60\ns_add_u32 s64, s64, s59\ns_add_u32 s65, s64, %d' % (c.s_colh, 112*1024))
        b('s_lshl_b32 s61, s58, 4\ns_add_u32 s61, s61, s60\ns_sub_u32 s62, s61, s59\ns_add_u32 s62, s62, %d\ns_add_u32 s63, s62, %d\ns_add_u32 s60, s61, s59\ns_add_u32 s61, s60, %d' % (2*112*1024, 112*1024, 112*1024))
        setup = [l.strip() for l in b.lines]
        def weave(ms, rs, q, rate):
            for n, m in enumerate(ms):
                a(m)
                if rs: a(rs.pop(0))
                for _ in range(rate):
                    if q: a(q.pop(0))
            for r in rs: a(r)
        a(ms0[0]); a(ms0[1])
        a('s_barrier')
        weave(ms0[2:], rds(0), setup, 2)
        for l in setup: a(l)
        q = []
        for n, (p, st_, sub) in enumerate(steps):
            a('s_waitcnt lgkmcnt(0)')
            if n in (1, 3): a('s_barrier')
            rs = rds(n+1) if n + 1 < len(steps) else []
            if n == 3: rs += ['ds_read_b64 v[%d:%d], v%d offset:%d' % (RR+2*i, RR+2*i+1, 250 if i < 2 else 251, 128*i) for i in range(4)]
            if n % 4 == 2:
                while len(q) > len(epi(p-1)) if p else False: a(q.pop(0))
                rs += utr(p)
            if n % 4 == 0 and p: q += epi(p-1)
            weave(mms(n), rs, q, opt.prate)
        rt(a, 12)
        a('s_barrier')
        rt(a, 31)
        q += epi(3)
        b = Asm()
        b('s_lshl_b32 s59, s%d, 13\ns_lshl_b32 s58, s%d, 10\ns_add_u32 s59, s59, s58\ns_lshl_b32 s58, s%d, 12\ns_add_u32 s59, s59, 32768\nv_add_u32 v7, s59, v10\nv_subrev_u32 v8, s58, v7\nv_add_u32 v7, s58, v7\nv_add_u32 v9, 0x10000, v7\nv_add_u32 v6, 0x10000, v8' % (c.s_rh, c.s_nh, c.s_nh))
        for l in b.lines: a(l)
        wr = lambda p: ['ds_write_b128 v%d, v[%d:%d] offset:%d' % ([7, 7, 9][p] if i < 2 else [8, 8, 6][p], ACC(2*p, i), ACC(2*p, i)+3, 32768*(p % 2) + 2048*i) for i in range(4)]
        w01 = wr(0) + wr(1)
        while q:
            for _ in range(8):
                if q: a(q.pop(0))
            if w01: a(w01.pop(0))
        for l in w01 + wr(2): a(l)
    if opt.ptail: c.panel_tail = panel_tail
    gemm.consumer(a, c)
    if opt.ptail:
        rt(a, 13)
        a('s_waitcnt lgkmcnt(0)')
        rt(a, 14)
        return c
    rt(a, 12)
    UU = 12; TT = 44; RR = c.v_free; TM = RR + 8
    a('v_lshrrev_b32 v3, 4, v1\nv_lshlrev_b32 v3, 4, v3\ns_add_u32 s60, s60, %d\ns_add_u32 s59, s59, %d\nv_add_u32 v2, s60, v3\nv_add_u32 v3, s59, v3' % (UTL2, UTL2))
    a('v_and_b32 v5, 15, v1\nv_lshlrev_b32 v5, 3, v5\ns_lshl_b32 s60, s%d, 9\ns_add_u32 s60, s60, %d\ns_lshl_b32 s59, s%d, 8\ns_add_u32 s61, s60, s59\ns_sub_u32 s60, s60, s59\nv_add_u32 v6, s60, v5\nv_add_u32 v5, s61, v5' % (c.s_rh, RS, c.s_nh))
    a('s_barrier')
    rt(a, 31)
    for i in range(4): a('ds_read_b64 v[%d:%d], v%d offset:%d' % (RR+2*i, RR+2*i+1, 5 if i < 2 else 6, 128*i))
    for j in range(8):
        o = ((j//2)*128 + (j % 2)*32)*2 if j < 6 else (j-6)*64
        a('ds_read_b128 v[%d:%d], v%d offset:%d\nds_read_b128 v[%d:%d], v%d offset:%d' % (UU+4*j, UU+4*j+3, 2 if j < 6 else 3, o, TT+4*j, TT+4*j+3, 2 if j < 6 else 3, o+1024))
    a('v_lshlrev_b32 v4, 4, v1')
    a('s_lshl_b32 s60, s%d, 1\ns_add_u32 s60, s60, s%d\ns_mul_i32 s60, s60, %d' % (c.s_mt, c.s_rh, 4*112*1024))
    a('s_mul_i32 s59, s%d, %d' % (c.s_nh, 2*112*1024))
    a('s_lshl_b32 s61, s58, 4\ns_add_u32 s61, s61, s60')
    a('s_lshl_b32 s62, s%d, 4\ns_add_u32 s62, s62, s60\ns_add_u32 s62, s62, s59' % c.s_colh)
    a('s_add_u32 s61, s61, s59')
    PK = 76
    a('s_lshl_b32 s63, s%d, 13\ns_lshl_b32 s64, s%d, 10\ns_add_u32 s63, s63, s64\ns_lshl_b32 s64, s%d, 12\ns_add_u32 s65, s63, s64\ns_sub_u32 s63, s63, s64\ns_add_u32 s65, s65, 32768\ns_add_u32 s63, s63, 32768\nv_add_u32 v7, s65, v4\nv_add_u32 v8, s63, v4\nv_add_u32 v9, 0x10000, v7\nv_add_u32 v10, 0x10000, v8' % (c.s_rh, c.s_nh, c.s_nh))
    a('s_waitcnt lgkmcnt(0)')
    for i in range(4):
        nj = 8 if i < 2 else 6
        xs = [ACC(j, i, r) for j in range(nj) for r in range(4)]
        for b in range(0, 4*nj, 16):
            for k in range(b, min(b+16, 4*nj), 2): a('v_pk_fma_f32 %s, %s, %s, %s op_sel:[0,1,0] op_sel_hi:[1,1,1]' % (P2(TM+k-b), P2(UU+k), P2(RR+2*i), P2(TT+k)))
            for k in range(b, min(b+16, 4*nj), 2): a('v_pk_fma_f32 %s, %s, %s, %s op_sel_hi:[1,0,1]' % (P2(xs[k]), P2(xs[k]), P2(RR+2*i), P2(TM+k-b)))
        for x in xs: a('v_max_f32 v%d, 0, v%d' % (x, x))
        for x in xs[::2]: a('v_pk_mul_f32 v[%d:%d], v[%d:%d], v[%d:%d]' % (x, x+1, x, x+1, x, x+1))
        pk = PK + (i % 2)*16
        for k in range(2*nj): a('v_cvt_pk_bf16_f32 v%d, v%d, v%d' % (pk+k, xs[2*k], xs[2*k+1]))
        for p in range(3): a('ds_write_b128 v%d, v[%d:%d] offset:%d' % ((7 if i < 2 else 8) + (2 if p == 2 else 0), pk+4*p, pk+4*p+3, 32768*(p % 2) + 2048*i))
        for p in range(3):
            if p < 2: a('buffer_store_dwordx4 v[%d:%d], v4, s[24:27], s61 offen offset:%d' % (pk+4*p, pk+4*p+3, 2048*p))
            else:
                a('s_add_u32 s63, s61, 4096')
                a('buffer_store_dwordx4 v[%d:%d], v4, s[24:27], s63 offen' % (pk+4*p, pk+4*p+3))
        if i < 2:
            a('buffer_store_dwordx4 v[%d:%d], v4, s[24:27], s62 offen' % (pk+12, pk+15))
            a('s_add_u32 s62, s62, %d' % (112*1024))
        a('s_add_u32 s61, s61, %d' % (112*1024))
        if i == 1: a('s_lshl_b32 s59, s59, 1\ns_sub_u32 s61, s61, s59')
    rt(a, 13)
    a('s_waitcnt lgkmcnt(0)')
    rt(a, 14)
    return c

def ph_w2s(P, C, st):
    NO = opt.nown; NS = (56 - NO)//2
    c = gemm.config('w2', 64*(NS+NO), 128, 2, False, 64, opt.w2S, 2048, 0, xKG=112, panel_sreg=59, lead=opt.w2L, nown=NO, rpm_own=opt.rpm_own, slot0=1)
    assert NO == 6
    LOC = opt.loc
    A_ = gemm.order_table(28, 4, 'lead'); B_ = gemm.order_table(NO, 4, 'lead')
    tabs = []
    for j in range(4):
        for nt in range(16):
            cp, kh = nt & 7, nt >> 3
            loc = [(7*cp + (cp & 1))//2 + q for q in range(3)]
            O_ = [0, 1, 2] if cp == 7 else [25, 26, 27]
            own = O_ + [28 + x for x in O_]
            tabs.append([28*kh + x for x in loc + [x for x in A_[j] if x not in loc and x not in O_]] + [own[x] for x in B_[j]])
            assert len(tabs[-1]) == NS + NO
    c.tabs_override = tabs
    c.nloc, c.tabsel, c.st0 = 3, 38, 37
    if opt.xsc1: c.xflags = ' sc1'
    XT = 147456
    head = lambda a, ptrs: uhead(a, c, ptrs)
    head(P, [(4, P_W2), (32, P_B2)])
    P('s_mul_i32 s37, s38, 7\ns_and_b32 s36, s38, 1\ns_add_u32 s37, s37, s36\ns_lshr_b32 s37, s37, 1')
    P('s_and_b32 s58, s%d, 1\ns_mov_b32 s59, 128\ns_cmp_eq_u32 s58, 0\ns_cselect_b32 s59, s59, -128' % c.s_nt)
    srds = lambda a: [srd(a, *x) for x in [(8, 6, HF, 2048*7168), (12, 4, 0, 3584*2048)]]
    c.srd_hook = srds
    NPR = opt.prog
    def m6(a):
        a('s_lshr_b32 s60, s%d, 10\ns_mul_i32 s61, s60, 9363\ns_lshr_b32 s61, s61, 16\ns_lshl_b32 s61, 1, s61' % c.s_kx)
        a('s_add_u32 s60, s60, 1\ns_mul_i32 s60, s60, 9363\ns_lshr_b32 s60, s60, 16\ns_lshl_b32 s60, 1, s60\ns_or_b32 s60, s60, s61')
    need6 = lambda a, t: need(a, 'f6', t, m6 if t < 3 + NPR - 1 else None)
    c.sig_at = opt.sig_at
    c.boundary0 = lambda a, c, vm: psync(a, 'f6', 6, 93, 97, c.s_mt, part=0)
    def boundary(a, c, vm):
        a('s_mov_b32 s91, 0')
        need6(a, 3)
        rt(a, 13)
    c.pre_issue = lambda a, c, vm, t: need6(a, t) if t < 3 + NPR else None
    c.npeel = max(0, NPR - 3)
    c.boundary = boundary
    if opt.ptail: c.early_first = lambda a, c, vm: st['w1_ptail'](a, vm)
    def early_issue(a, c, vm):
        if not opt.ptail: st['w1_ptail'](a, vm)
        a('s_cmp_lg_u32 s42, 6\ns_cbranch_scc1 w2_ng')
        gates(a, c, [5], 32, 131072, 160)
        a.label('w2_ng')
        if not opt.umap:
            a('s_lshl_b32 s62, s%d, 4\ns_add_u32 s62, s62, s%d\ns_lshl_b32 s62, s62, %d\ns_add_u32 s62, s62, %d\nv_mov_b32 v243, 0' % (c.s_mt, c.s_nt, MS, 9*ROW))
            a('buffer_load_dword v242, v243, s[84:87], s62 offen sc1')
            vm.issue('fx')
    c.early_issue = early_issue
    if not opt.umap:
        def tail(a, c, vm):
            V = c.p_vfree
            vm.wait('fx')
            a('s_mov_b32 s90, 200000')
            a.label('fx_p')
            a('v_cmp_ne_u32 vcc, s3, v242\ns_cmp_eq_u64 vcc, 0\ns_cbranch_scc1 fx_y')
            a('buffer_load_dword v242, v243, s[84:87], s62 offen sc1\ns_sub_u32 s90, s90, 1\ns_waitcnt vmcnt(0)\ns_cmp_lg_u32 s90, 0\ns_cbranch_scc1 fx_p')
            a.label('fx_y')
            srd(a, 16, 6, X1, 0x400000)
            a('s_sub_u32 s59, s42, 4\ns_lshl_b32 s60, s%d, 2\ns_add_u32 s60, s60, s59\ns_lshl_b32 s60, s60, 16\ns_lshl_b32 s61, s%d, 11\ns_add_u32 s60, s60, s61\ns_add_u32 s61, s60, %d' % (c.s_mt, c.s_nt, 32768-2048))
            a('s_lshl_b32 s59, s59, 12\ns_add_u32 m0, s59, %d\nv_lshlrev_b32 v%d, 4, v1' % (XT, V))
            for i in range(4): a('buffer_load_dwordx4 v%d, s[16:19], s%d offen offset:%d sc1 lds' % (V, 60 + i//2, 1024*i))
            vm.issue('op', 4)
        c.tail_issue = tail; c.pre_last_bar = lambda a, c, vm: vm.wait('op')
    c.first_c = lambda c, j: '0'
    c.vm_init = st['vm_init']
    KS_, KP_ = NS + opt.own_sig, NS + NO - 1 - opt.own_ld
    def bar_hook(a, c, vm, k):
        if k == KS_:
            a('s_cmp_lg_u32 s42, 4\ns_cbranch_scc1 f8_ns\ns_lshl_b32 s88, s2, %d\ns_add_u32 s88, s88, %d\nv_mov_b32 v253, s3\ns_mov_b64 exec, 1' % (MS, FL8*ROW))
            rt(a, 18)
            a('buffer_store_dword v253, v252, s[84:87], s88 offen sc1\ns_mov_b64 exec, -1')
            a.label('f8_ns')
    def wait_hook(a, c, vm, k):
        if k == KP_ - 1:
            a('s_xor_b32 s89, s2, 4\ns_lshl_b32 s89, s89, %d\ns_add_u32 s89, s89, %d\ns_mov_b32 s90, 200000\nv_mov_b32 v241, 0' % (MS, FL8*ROW))
            a('buffer_load_dword v240, v241, s[84:87], s89 offen sc1')
            vm.issue('f8')
        if k == KP_:
            vm.wait('f8')
            a.label('f8_p')
            a('v_cmp_ne_u32 vcc, s3, v240\ns_cmp_eq_u64 vcc, 0\ns_cbranch_scc1 f8_y')
            a('buffer_load_dword v240, v241, s[84:87], s89 offen sc1\ns_sub_u32 s90, s90, 1\ns_waitcnt vmcnt(0)\ns_cmp_lg_u32 s90, 0\ns_cbranch_scc1 f8_p')
            a.label('f8_y')
            rt(a, 19)
    if NO: c.bar_hook, c.wait_hook = bar_hook, wait_hook
    gemm.producer(P, c, None)
    if opt.ts and c.flags: P('v_writelane_b32 v255, s70, %d' % (24 + c.fbase//16))
    if not NO:
        P('s_xor_b32 s60, s2, 32')
        psync(P, 'f8', FL8, 2, None, 60, n=1)
    a = C
    head(a, [(34, P_OUT)])
    a('s_waitcnt lgkmcnt(0)')
    srd(a, 28, 34, 0, 0x400000); srd(a, 24, 6, *(H2F, 0x400000) if opt.reuse else (XB, 0x800000))
    XR = lambda: c.v_free; GA = lambda: c.v_free + 16; XA = lambda: c.v_free + 32
    def pre(a, c):
        if not opt.umap:
            a('v_and_b32 v2, 15, v1\nv_lshlrev_b32 v2, 4, v2\nv_lshrrev_b32 v3, 5, v1\nv_lshl_add_u32 v2, v3, 8, v2\nv_bfe_u32 v3, v1, 4, 1\nv_lshl_add_u32 v2, v3, 3, v2')
            a('s_lshl_b32 s61, s%d, 13\ns_lshl_b32 s60, s%d, 10\ns_add_u32 s61, s61, s60\ns_add_u32 s61, s61, %d\nv_add_u32 v%d, s61, v2\nv_add_u32 v%d, 512, v%d' % (c.s_rh, c.s_nh, XT, XA(), XA()+1, XA()))
            return
        a('s_lshl_b32 s61, s%d, 2\nv_lshrrev_b32 v3, 5, v1\nv_add_u32 v3, s61, v3\nv_and_b32 v2, 7, v1\nv_xor_b32 v2, v2, v3\nv_lshlrev_b32 v2, 4, v2\nv_bfe_u32 v3, v1, 4, 1\nv_lshl_add_u32 v2, v3, 3, v2' % c.s_nh)
        a('v_and_b32 v3, 15, v1\nv_lshl_add_u32 v2, v3, 7, v2\ns_lshl_b32 s61, s%d, 13\ns_add_u32 s61, s61, %d\nv_add_u32 v%d, s61, v2\nv_xor_b32 v%d, 32, v%d' % (c.s_rh, XT, XA(), XA()+1, XA()))
    def rd(a, c):
        a('s_lshl_b32 s60, s%d, 7\ns_add_u32 s61, s60, 131072\nv_lshrrev_b32 v3, 4, v1\nv_lshl_add_u32 v3, v3, 4, s61' % c.s_nh)
        for q in range(2):
            for j in range(2): a('ds_read_b128 v[%d:%d], v3 offset:%d' % (GA()+8*q+4*j, GA()+8*q+4*j+3, 256*q + 64*j))
    def last_reads(c):
        return ['ds_read_b64 v[%d:%d], v%d offset:%d' % (XR()+4*i+2*j, XR()+4*i+2*j+1, XA()+j, 2048*i) for i in range(4) for j in range(2)]
    c.pre_hook, c.last_reads = pre, last_reads
    c.post_b0 = chain(lambda a, c: rt(a, 15), rd)
    def xstore(a, c):
        a('s_lshl_b32 s60, s2, 2\ns_add_u32 s60, s60, s%d\ns_lshl_b32 s60, s60, 13\ns_xor_b32 s61, s60, %d\nv_lshlrev_b32 v2, 4, v1' % (c.s_wave, 4*4*8192))
        for k in range(8):
            if k == 4: a('s_add_u32 s60, s60, 4096')
            a('buffer_store_dwordx4 v[%d:%d], v2, s[24:27], s60 offen offset:%d' % (c.v_acc+32+4*k, c.v_acc+35+4*k, 1024*(k % 4)))
    def xload(a, c, dst):
        for i in range(4):
            for j in range(2):
                k = j*4 + i
                a('s_add_u32 s63, s61, %d' % (1024*k))
                a('buffer_load_dwordx4 v[%d:%d], v2, s[24:27], s63 offen sc1' % (dst+4*k, dst+4*k+3))
    def own_hook(a, c, q, where):
        if q == 0 and where == 0 and opt.reuse:
            assert opt.xbf
            a('s_lshl_b32 s60, s%d, 4\ns_add_u32 s60, s60, s38\ns_lshl_b32 s60, s60, 2\ns_add_u32 s60, s60, s42\ns_lshl_b32 s60, s60, 12\ns_xor_b32 s62, s60, 0x20000\nv_lshlrev_b32 v2, 4, v1' % c.s_mt)
        elif q == 0 and where == 0:
            a('s_lshl_b32 s60, s2, 2\ns_add_u32 s60, s60, s%d\ns_lshl_b32 s60, s60, 13\ns_xor_b32 s62, s60, %d\ns_add_u32 s61, s60, 4096\ns_add_u32 s63, s62, 4096\nv_lshlrev_b32 v2, 4, v1' % (c.s_wave, 4*4*8192))
        if NS + q + 1 == KS_ and where == 1: a('s_waitcnt vmcnt(0)')
    XP = 176
    def own_extra(c, q, st):
        n = q*2 + st
        if opt.xbf:
            if n < 4:
                return ['v_cvt_pk_bf16_f32 v%d, v%d, v%d' % (XP+4*n+2*j+e, c.v_acc+32+(j*4+n)*4+2*e, c.v_acc+33+(j*4+n)*4+2*e) for j in range(2) for e in range(2)] + \
                       ['buffer_store_dwordx4 v[%d:%d], v2, s[24:27], s60 offen offset:%d' % (XP+4*n, XP+4*n+3, 1024*n)]
            n -= 2*(KP_ - NS) - 1
            per = -(-4 // (2*(NS + NO - KP_) + 1))
            ks = list(range(4))[per*n:per*n+per] if n >= 0 else []
            return ['buffer_load_dwordx4 v[%d:%d], v2, s[24:27], s62 offen offset:%d sc1' % (XP+4*k, XP+4*k+3, 1024*k) for k in ks]
        if n < 4: return ['buffer_store_dwordx4 v[%d:%d], v2, s[24:27], s%d offen offset:%d' % (c.v_acc+32+4*k, c.v_acc+35+4*k, 60 + k//4, 1024*(k % 4)) for k in (2*n, 2*n+1)]
        n -= 2*(KP_ - NS) - 1
        per = -(-8 // (2*(NS + NO - KP_) + 1))
        ks = [j*4 + i for i in range(4) for j in range(2)][per*n:per*n+per] if n >= 0 else []
        return ['buffer_load_dwordx4 v[%d:%d], v2, s[24:27], s%d offen offset:%d sc1' % (c.v_acc+32+4*k, c.v_acc+35+4*k, 62 + k//4, 1024*(k % 4)) for k in ks]
    c.own_extra = own_extra
    c.own_hook = own_hook
    gemm.consumer(a, c)
    if c.stamps: gemm.dump_stamps(a, c)
    rt(a, 16)
    ACC = lambda j, i, r=0: c.v_acc + (j*4+i)*4 + r
    if not NO: xstore(a, c)
    U = 12; PK = 44; RB = 48 + 16
    a('s_waitcnt lgkmcnt(0)')
    for i in range(4):
        for j in range(2):
            for e in range(2): unpack(a, U+8*i+4*j+2*e, U+8*i+4*j+2*e+1, XR()+4*i+2*j+e)
            for r in (0, 2): a('v_pk_add_f32 %s, %s, %s' % (P2(U+8*i+4*j+r), P2(U+8*i+4*j+r), P2(GA()+8+4*j+r)))
            for r in (0, 2): a('v_pk_fma_f32 %s, %s, %s, %s' % (P2(U+8*i+4*j+r), P2(ACC(j,i,r)), P2(GA()+4*j+r), P2(U+8*i+4*j+r)))
    a('v_and_b32 v2, 15, v1\nv_lshlrev_b32 v2, 11, v2\nv_bfe_u32 v3, v1, 4, 1\nv_lshl_add_u32 v2, v3, 5, v2\nv_lshrrev_b32 v3, 5, v1\nv_lshl_add_u32 v2, v3, 4, v2')
    a('s_lshl_b32 s62, s%d, 1\ns_add_u32 s62, s62, s%d\ns_lshl_b32 s62, s62, 17\ns_lshl_b32 s63, s%d, 1\ns_add_u32 s63, s63, s%d\ns_lshl_b32 s63, s63, 6\ns_add_u32 s62, s62, s63' % (c.s_mt, c.s_rh, c.s_nt, c.s_nh))
    if opt.fullout:
        a('v_bfe_u32 v5, v1, 4, 1\nv_lshlrev_b32 v5, 1, v5\nv_lshrrev_b32 v6, 5, v1\nv_add_u32 v5, v5, v6\ns_lshl_b32 s63, s%d, 2\nv_add_u32 v5, s63, v5\nv_and_b32 v6, 7, v1\nv_xor_b32 v5, v5, v6\nv_lshlrev_b32 v5, 4, v5' % c.s_nh)
        a('v_and_b32 v7, 15, v1\nv_lshl_add_u32 v5, v7, 7, v5\ns_lshl_b32 s63, s%d, 13\nv_add_u32 v5, s63, v5' % c.s_rh)
        a('v_lshrrev_b32 v7, 3, v1\nv_xor_b32 v8, v6, v7\nv_lshlrev_b32 v8, 4, v8\nv_lshl_add_u32 v8, v7, 7, v8\nv_lshlrev_b32 v7, 11, v7\nv_lshl_add_u32 v7, v6, 4, v7\ns_lshl_b32 s63, s42, 12\nv_add_u32 v6, s63, v8')
        a('s_lshl_b32 s62, s%d, 2\ns_add_u32 s62, s62, s42\ns_lshl_b32 s62, s62, 16\ns_lshl_b32 s63, s%d, 7\ns_add_u32 s62, s62, s63' % (c.s_mt, c.s_nt))
    v2s = a.lines;
    if not NO:
        a('s_waitcnt vmcnt(0)\ns_barrier\ns_barrier')
        a('v_lshlrev_b32 v4, 4, v1')
        xl = Asm(); xload(xl, c, c.v_acc+32); a.lines += [l.replace(', v2,', ', v4,') for l in xl.lines]
    ACC = lambda j, i, r=0: c.v_acc + 32 + (j*4+i)*4 + r
    for i in range(4):
        if opt.xbf:
            a('s_waitcnt vmcnt(3)')
            for j in range(2):
                for e in range(2): unpack(a, ACC(j,i,2*e), ACC(j,i,2*e+1), XP+4*i+2*j+e)
        else: a('s_waitcnt vmcnt(%d)' % (6 - 2*i + (0 if opt.fullout else i)))
        for j in range(2):
            for r in (0, 2): a('v_pk_fma_f32 %s, %s, %s, %s' % (P2(U+8*i+4*j+r), P2(ACC(j,i,r)), P2(GA()+4*j+r), P2(U+8*i+4*j+r)))
            for e in range(2): a('v_cvt_pk_bf16_f32 v%d, v%d, v%d' % (PK+4*i+2*j+e, U+8*i+4*j+2*e, U+8*i+4*j+2*e+1))
        for e in range(2): a('v_permlane16_swap_b32 v%d, v%d' % (PK+4*i+e, PK+4*i+2+e))
        if opt.fullout: a('ds_write_b128 v5, v[%d:%d] offset:%d' % (PK+4*i, PK+4*i+3, 2048*i))
        else:
            a('buffer_store_dwordx4 v[%d:%d], v2, s[28:31], s62 offen' % (PK+4*i, PK+4*i+3))
            a('s_add_u32 s62, s62, 32768')
    if opt.fullout:
        a('s_waitcnt lgkmcnt(0)\ns_barrier')
        for i in range(4): a('ds_read_b128 v[%d:%d], v6 offset:%d' % (PK+4*i, PK+4*i+3, 1024*i))
        for i in range(4):
            a('s_waitcnt lgkmcnt(%d)' % (3-i))
            a('buffer_store_dwordx4 v[%d:%d], v7, s[28:31], s62 offen' % (PK+4*i, PK+4*i+3))
            a('s_add_u32 s62, s62, 16384')
    return c

HEADER = '''; One persistent kernel, 256 workgroups x 8 waves (one per CU). Waves 0-3 run the MFMA loops and epilogues,
; Workgroups hand data over through write-through stores and flag words in d_ws; a flag holds a value derived from one
; d_ws word read on entry, only to tell this launch's hand-offs from older ones. All waits are bounded.
'''
def build(path, **kw):
    for k, v in kw.items(): setattr(opt, k, v)
    a = Asm()
    n = KNAME
    OUT.lines = []
    a.kernel_begin(n)
    a('s_cmp_ge_u32 s2, 256\ns_cbranch_scc1 mega_end')
    a('v_lshrrev_b32 v2, 6, v0\nv_and_b32 v1, 63, v0\nv_readfirstlane_b32 s42, v2')
    a('s_cmp_lt_u32 s42, 4\ns_cbranch_scc1 mega_cons')
    P = Asm(); C = Asm(); st = {}; C.cons = True
    rt(C, 0)
    cs = [f(P, C, st) for f in (ph_qkv, ph_wo, ph_w1, ph_w2s)]
    a.lines += P.lines
    if opt.ts:
        a('s_cmp_lg_u32 s42, 5\ns_cbranch_scc1 mega_end')
        srd(a, 88, 6, TS + 0x10000, 0x10000)
        a('s_lshl_b32 s92, s2, 8\nv_lshlrev_b32 v2, 2, v1\nbuffer_store_dword v255, v2, s[88:91], s92 offen')
    a('s_endpgm')
    a.label('mega_cons')
    a.lines += C.lines
    if opt.ts:
        a('s_waitcnt vmcnt(0)')
        a.cons = True
        rt(a, 17)
        a('s_cmp_lg_u32 s42, 0\ns_cbranch_scc1 mega_end')
        srd(a, 88, 6, TS, 0x10000)
        a('s_lshl_b32 s92, s2, 8\nv_lshlrev_b32 v2, 2, v1\nbuffer_store_dword v11, v2, s[88:91], s92 offen')
    a.label('mega_end')
    a('s_endpgm')
    a.lines += OUT.lines
    for c in cs: gemm.table(a, c)
    a.label('code_end')
    a('s_endpgm')
    a.kernel_end(n, 256, 102, 256, 256, 512, 163840)
    a.lines = [l + opt.sflags if ('buffer_store_dwordx' in l) else l for l in a.lines]
    if opt.outflags is not None:
        k = max(i for i, l in enumerate(a.lines) if 'w2_cloop' in l)
        a.lines = [l.replace(opt.sflags, opt.outflags) if (i > k and 'buffer_store_dwordx4' in l and 's[28:31]' in l) else l for i, l in enumerate(a.lines)]
    if opt.plain: a.launches = ['; @launch grid=(256,1,1) block=(512,1,1) lds=163840']
    hdr = ''
    if opt.plain:
        ref = open('cdna_kernels/%s.s.ref' % KNAME[:-7]).read().split('\n')
        hdr = '\n'.join(l for l in ref if l.startswith(';') and '@launch' not in l) + '\n' + HEADER
    open(path, 'w').write(a.text(header=hdr, verbose=kw.get('verbose', False)))

KNAME = 'adaLN_cond__linear_kernel_hedgehog__dense_activation_squared_relu__prompt_kernel'
opt.plain = False; opt.outflags = None; opt.x1p = True; opt.x1at = 7; opt.qmir = False; opt.ptail = False; opt.prate = 3; opt.spf0 = (0, 0); opt.prog1 = 0; opt.prog3 = 5; opt.prog5 = 0; opt.reuse = False; opt.pf6 = 16; opt.prog = 10; opt.wo_order = 'lead'; opt.umap = False; opt.sig_at = 1; opt.wo_G = 4; opt.loc = 3; opt.midpos = 3; opt.pfo = 0; opt.xbf = True; opt.rpm_own = 1; opt.nown = 6; opt.own_sig = 3; opt.own_ld = 0; opt.noexec = False; opt.fsplit = 2; opt.flags = (); opt.woBK = 128; opt.woS = 3; opt.cpflate = True; opt.esync = False; opt.w1late = (); opt.cunroll = 1; opt.mbb = 2; opt.ut_at = 13; opt.glate = True; opt.td0 = 1; opt.td1 = 0; opt.pf5 = 10; opt.fullout = False; opt.earlym = False; opt.warm = True; opt.xsc1 = True; opt.unroll = True; opt.pollgap = 0; opt.wlate = 7; opt.st_at = 5; opt.pf3 = 0; opt.spf4 = 0; opt.spf2 = 0; opt.pre4 = True; opt.pf4 = 1; opt.w2s = True; opt.w2S = 4; opt.w2L = 3; opt.spoll = False; opt.satom = False; opt.gvflags = ' nt'; opt.eprio = 0; opt.pf2 = 1
if __name__ == '__main__':
    kw = eval('dict(%s)' % (sys.argv[2] if len(sys.argv) > 2 else ''))
    build(sys.argv[1], **kw)
```

```python
from asmgen import Asm

class G:
    pass

def gemm_prologue(a, c):
    a('v_lshrrev_b32 v2, 6, v0')
    a('v_and_b32 v1, 63, v0')
    a('v_readfirstlane_b32 s%d, v2' % c.s_wave)

def panel_cols(a, c):
    pass

def stamp(a, c, k, bump=False):
    if not c.stamps: return
    a('s_memtime s[70:71]')
    a('s_mov_b32 s73, m0')
    a('s_mov_b32 m0, s72')
    a('s_waitcnt lgkmcnt(0)')
    a('v_writelane_b32 v%d, s70, m0' % (248+k))
    a('s_mov_b32 m0, s73')
    if bump: a('s_add_u32 s72, s72, 1')

def order_table(nst, G, mode):
    tabs = []
    for j in range(G):
        if mode == 'seq':
            o = list(range(nst))
        elif mode == 'lead':
            own = {j} | {t+G-1 for t in range(1, nst) if t % G == j and t+G-1 < nst}
            rest = [x for x in range(nst) if x not in own]
            o = []
            for t in range(nst):
                if t == 0: o.append(j)
                elif t % G == j and t+G-1 < nst: o.append(t+G-1)
                else: o.append(rest.pop(0))
        elif mode == 'lead0':
            sub = order_table(nst-1, G, 'lead')[j]
            o = [0] + [x+1 for x in sub]
        elif mode == 'win':
            o = [(t//G)*G + (t+j) % G for t in range(nst)]
        assert sorted(o) == list(range(nst)), o
        tabs.append(o)
    return tabs

def mark(a, c, i):
    if not c.stamps: return
    a('s_memtime s[70:71]')
    a('s_waitcnt lgkmcnt(0)')
    a('v_writelane_b32 v251, s70, %d' % (32+i))

def dump_stamps(a, c):
    a('v_writelane_b32 v251, s94, 63')
    a('s_add_u32 s76, s6, 0x3900000\ns_addc_u32 s77, s7, 0\ns_mov_b32 s78, 0x200000\ns_mov_b32 s79, 0x20000')
    a('s_lshl_b32 s73, s2, 3\ns_add_u32 s73, s73, s%d\ns_lshl_b32 s73, s73, 10' % c.s_wave)
    a('v_lshlrev_b32 v247, 2, v1')
    for k in range(4): a('buffer_store_dword v%d, v247, s[76:79], s73 offen offset:%d' % (248+k, 256*k))
    a('s_waitcnt vmcnt(0)')

def producer(a, c, lbl_after):
    BK, S = c.BK, c.S
    nsub = BK // 32
    KG = c.xKG or c.K // 32
    nst = c.K // BK
    sp = c.s_tmp
    tabs = order_table(nst, c.G, c.order)
    if c.mirror: tabs = tabs + [[(x + nst//2) % nst for x in o] for o in tabs]
    if c.tabs_override: tabs = c.tabs_override
    if c.own0: tabs = [[f] + [x for x in o if x != f] for o in tabs for f in range(nst)]
    c.tabs = tabs
    a('s_sub_u32 s%d, s%d, 4' % (sp, c.s_wave))
    a('s_getpc_b64 s[%d:%d]' % (c.s_tab, c.s_tab+1))
    a.label(c.name + '_pc')
    a('s_add_u32 s%d, s%d, %s_tab-%s_pc' % (c.s_tab, c.s_tab, c.name, c.name))
    a('s_addc_u32 s%d, s%d, 0' % (c.s_tab+1, c.s_tab+1))
    vT = 2; vKX = 3; vKW = 4
    a('s_lshl_b32 s%d, s%d, 6' % (sp+1, c.s_rot))
    if c.nloc:
        a('s_lshl_b32 s%d, s%d, 4\ns_add_u32 s%d, s%d, s%d\ns_lshl_b32 s%d, s%d, 5\ns_mov_b32 s%d, s%d' % (sp+1, c.s_rot, sp+1, sp+1, c.tabsel, sp+1, sp+1, c.s_rot, c.st0))
    if c.own0:
        a('s_lshl_b32 s%d, s%d, 4\ns_add_u32 s%d, s%d, s%d\ns_lshl_b32 s%d, s%d, 4\ns_mov_b32 s%d, s%d' % (sp+1, c.s_rot, sp+1, sp+1, c.own0, sp+1, sp+1, c.s_rot, c.own0))
    if c.mirror:
        a('s_lshl_b32 s%d, s%d, 8\ns_add_u32 s%d, s%d, s%d' % (sp+2, c.mirror, sp+1, sp+1, sp+2))
        a('s_mul_i32 s%d, s%d, %d\ns_add_u32 s%d, s%d, s%d' % (sp+2, c.mirror, c.mirror_off or nst//2, c.s_rot, c.s_rot, sp+2))
    a('v_add_u32 v%d, s%d, v1' % (vT, sp+1))
    a('global_load_ubyte v%d, v%d, s[%d:%d]' % (vKX, vT, c.s_tab, c.s_tab+1))
    v = 5
    groups = []
    mbw = c.BM // 16 // 4
    a('s_mul_i32 s%d, s%d, %d' % (sp+1, c.s_mt, c.BM // 16))
    a('s_mul_i32 s%d, s%d, %d' % (sp+2, sp, mbw))
    if c.tl: a('s_mul_i32 s%d, s%d, %d\ns_mul_i32 s%d, s%d, %d\ns_add_u32 s%d, s%d, s%d' % (sp+1, sp+1, KG*1024, sp+2, sp+2, nsub*1024, sp+1, sp+1, sp+2))
    else:
        a('s_add_u32 s%d, s%d, s%d' % (sp+1, sp+1, sp+2))
        a('s_mul_i32 s%d, s%d, %d' % (sp+1, sp+1, KG*1024))
    XS = c.xbytes if c.tl else nsub*1024
    c.xsh = XS.bit_length() - 1
    a('v_lshl_add_u32 v%d, v1, 4, s%d' % (v, sp+1)); vx0 = v; v += 1
    xl = []
    for i in range(mbw):
        for kg in range(nsub): xl.append((i, kg))
    a('s_mul_i32 s%d, s%d, %d' % (c.s_px, sp, mbw*nsub*1024))
    vregs = {}
    for b in range(0, len(xl), 4):
        ins = []
        for q, (i, kg) in enumerate(xl[b:b+4]):
            const = i*(nsub if c.tl else KG)*1024 + kg*1024 - q*1024
            assert const >= 0
            if const not in vregs:
                if const == 0: vregs[const] = vx0
                else:
                    a('v_add_u32 v%d, %d, v%d' % (v, const, vx0)); vregs[const] = v; v += 1
            ins.append((vregs[const], q*1024))
        groups.append((c.sX, c.s_kx, c.s_px, b*1024, ins))
    rpw = BK // 4; ipw = rpw // 8
    vrow = v; vt = v+1; vw0 = v+2; vch = v+3; v += 4
    c.p_vrow, c.p_vch = vrow, vch
    a('v_lshrrev_b32 v%d, 3, v1' % vrow)
    a('v_and_b32 v%d, 7, v1' % vch)
    a('v_and_b32 v%d, %d, v%d' % (vt, 2 if c.natw else 6, vrow))
    a('v_xor_b32 v%d, v%d, v%d' % (vw0, vch, vt))
    a('v_mul_u32_u24 v%d, %d, v%d' % (vt, c.ldw, vrow))
    a('s_mul_i32 s%d, s%d, %d' % (sp+1, sp, rpw*c.ldw))
    a('s_add_u32 s%d, s%d, s%d' % (sp+2, sp+1, c.s_col0))
    a('v_add_u32 v%d, s%d, v%d' % (vt, sp+2, vt))
    vw1 = vw0
    if c.natw:
        vw1 = v; v += 1
        a('v_xor_b32 v%d, 4, v%d' % (vw1, vw0))
        a('v_lshl_add_u32 v%d, v%d, 4, v%d' % (vw1, vw1, vt))
    a('v_lshl_add_u32 v%d, v%d, 4, v%d' % (vw0, vw0, vt))
    a('s_mul_i32 s%d, s%d, %d' % (c.s_pw, sp, ipw*1024))
    a('s_add_u32 s%d, s%d, %d' % (c.s_pw, c.s_pw, c.xbytes))
    for q in range(c.nfull):
        ins = []
        for h in range(ipw):
            const = q*c.panel_stride + h*8*c.ldw - h*1024
            if const == 0 and q == 0: ins.append((vw0, 0))
            else:
                a('v_add_u32 v%d, %d, v%d' % (v, const, vw1 if h % 2 else vw0)); ins.append((v, h*1024)); v += 1
                if q and c.panel_sreg: a('v_add_u32 v%d, s%d, v%d' % (v-1, c.panel_sreg, v-1))
        groups.append((c.sW, c.s_kw, c.s_pw, q*BK*128, ins))
    if c.half:
        nh = BK // 64
        vh0 = v; vr2 = v+1; v += 2
        a('v_lshrrev_b32 v%d, 2, v1' % vr2)
        a('v_lshrrev_b32 v%d, %d, v1' % (vt, 4 if c.natw else 3))
        a('v_and_b32 v%d, 2, v%d' % (vt, vt))
        a('v_and_b32 v%d, 3, v1' % vh0)
        a('v_xor_b32 v%d, v%d, v%d' % (vh0, vh0, vt))
        a('v_mul_u32_u24 v%d, %d, v%d' % (vr2, c.ldw, vr2))
        a('v_lshl_add_u32 v%d, v%d, 4, v%d' % (vh0, vh0, vr2))
        a('s_add_u32 s%d, s%d, s%d' % (sp+2, sp+1, c.s_colh))
        a('v_add_u32 v%d, s%d, v%d' % (vh0, sp+2, vh0))
        ins = [(vh0, 0)]
        for h in range(1, nh):
            a('v_add_u32 v%d, %d, v%d' % (v, h*16*c.ldw - h*1024, vh0)); ins.append((v, h*1024)); v += 1
        a('s_mul_i32 s%d, s%d, %d' % (c.s_ph, sp, nh*1024))
        a('s_add_u32 s%d, s%d, %d' % (c.s_ph, c.s_ph, c.xbytes + c.nfull*BK*128))
        groups.append((c.sW, c.s_kw, c.s_ph, 0, ins))
    n = sum(len(g[4]) for g in groups)
    c.n_dma = n
    if c.order in ('seq', 'lead0'):
        a('s_mov_b32 s%d, 0\ns_mov_b32 s%d, 0' % (c.s_kx, c.s_kw))
    else:
        a('s_mul_i32 s%d, s%d, %d' % (c.s_kx, c.s_rot, XS))
        a('s_mul_i32 s%d, s%d, %d' % (c.s_kw, c.s_rot, BK*c.ldw))
    s_t = c.s_rh
    a('s_mov_b32 s%d, 1' % s_t)
    a('s_waitcnt lgkmcnt(0)')
    c.srd_hook(a)
    vm = VM(a)
    vm.ops = list(c.vm_init)
    c.vm = vm
    nxg = sum(1 for g in groups if g[0] == c.sX)
    def issue(st, slot_const=None, fetch_next=True, part=None):
        gs = {None: groups, 0: groups[:c.psplit], 1: groups[c.psplit:], 'w': groups[nxg:], 'x': groups[:nxg], 'xb': groups[c.psplit:nxg], 'xb0': groups[:nxg], 'fa': groups[:c.fsplit], 'fb': groups[c.fsplit:]}[part]
        if st >= nst - c.nown: gs = [g for g in gs if g is not groups[-1]]
        for (srd, so, base, lc, ins) in gs:
            if slot_const is None:
                a('s_add_u32 s%d, s%d, s%d' % (sp, base, c.s_slot))
                if lc: a('s_add_u32 m0, s%d, %d' % (sp, lc))
                else: a('s_mov_b32 m0, s%d' % sp)
            else:
                a('s_add_u32 m0, s%d, %d' % (base, lc + slot_const))
            for (vr, io) in ins:
                if not c.no_dma:
                    a('buffer_load_dwordx4 v%d, s[%d:%d], s%d offen%s%s lds' % (vr, srd, srd+3, so, ' offset:%d' % io if io else '', c.xflags if srd == c.sX else c.dma_flags))
                vm.issue(st)
        if part in (0, 'w', 'x', 'fa'): return
        if fetch_next:
            a('v_readlane_b32 s%d, v%d, s%d' % (c.s_kx, vKX, s_t))
            a('v_readlane_b32 s%d, v%d, s%d' % (c.s_kw, vKW, s_t))
            a('s_add_u32 s%d, s%d, 1' % (s_t, s_t))
        if slot_const is None:
            a('s_add_u32 s%d, s%d, %d' % (c.s_slot, c.s_slot, c.slot))
            a('s_cmp_ge_u32 s%d, %d' % (c.s_slot, c.slot*S))
            a('s_cselect_b32 s%d, 0, s%d' % (c.s_slot, c.s_slot))
    c.p_vfree = v
    if c.stamps: a('s_mov_b32 s72, 0')
    stamp(a, c, 3)
    vm.issue('tab')
    SL = lambda st: ((st + c.slot0) % S) * c.slot
    L = c.lead
    def tabmul():
        vm.wait('tab')
        a('v_mul_u32_u24 v%d, %d, v%d' % (vKW, BK*c.ldw, vKX))
        a('v_mul_u32_u24 v%d, %d, v%d' % (vKX, XS, vKX))
        a('v_readlane_b32 s%d, v%d, 1' % (c.s_kw, vKW))
        a('s_mov_b32 s%d, 2' % s_t)
    if c.nloc:
        assert c.nloc == 3 and L == 3
        issue(0, SL(0), part='w')
        tabmul()
        if c.early_first: c.early_first(a, c, vm)
        issue(1, SL(1), part='w')
        a('v_readlane_b32 s%d, v%d, 2\ns_nop 4' % (c.s_kw, vKW))
        issue(2, SL(2), part='w')
        if c.early_issue: c.early_issue(a, c, vm)
        a('v_readlane_b32 s%d, v%d, 3\nv_readlane_b32 s%d, v%d, 3\ns_mov_b32 s%d, 4' % (c.s_kw, vKW, c.s_kx, vKX, s_t))
        vm.wait(0)
        a('s_barrier')
        vm.wait(1)
        if c.sig_at == 1:
            c.boundary0(a, c, vm)
            issue(3, SL(3), part='w')
            vm.wait(2)
            a('s_barrier')
        else:
            a('s_barrier')
            issue(3, SL(3), part='w')
            vm.wait(2)
            c.boundary0(a, c, vm)
        c.boundary(a, c, vm)
        issue(3, SL(3), part='xb0')
        for t in (4, 5):
            if c.pre_issue: c.pre_issue(a, c, vm, t)
            issue(t, SL(t))
    elif c.own0:
        issue(0, SL(0), part='w')
        if c.early_issue: c.early_issue(a, c, vm)
        tabmul()
        vm.wait(0)
        a('s_barrier')
        c.boundary0(a, c, vm)
        issue(1, SL(1), part='w')
        c.boundary(a, c, vm)
        a('v_readlane_b32 s%d, v%d, 1' % (c.s_kx, vKX))
        issue(1, SL(1), part='xb0')
    elif c.boundary is None:
        issue(0, SL(0), False)
        if c.early_issue: c.early_issue(a, c, vm)
        tabmul()
        a('v_readlane_b32 s%d, v%d, 1' % (c.s_kx, vKX))
        issue(1, SL(1), part=0)
    else:
        if c.boundary0: c.boundary0(a, c, vm)
        issue(0, SL(0), part='w')
        tabmul()
        if not c.w1late: issue(1, SL(1), part='w')
        a('v_readlane_b32 s37, v%d, 1\ns_lshr_b32 s36, s%d, %d\ns_lshr_b32 s37, s37, %d' % (vKX, c.s_kx, c.xsh, c.xsh))
        c.boundary(a, c, vm)
        issue(0, SL(0), part='x')
        if c.early_issue: c.early_issue(a, c, vm)
        a('v_readlane_b32 s%d, v%d, 1' % (c.s_kx, vKX))
        if c.pre_issue: c.pre_issue(a, c, vm, 1)
        issue(1, SL(1), part=0)
    if not (c.own0 or c.nloc):
        stamp(a, c, 0)
        vm.wait(0)
        if c.pre_b0: c.pre_b0(a, c, vm)
        stamp(a, c, 1)
        a('s_barrier')
        stamp(a, c, 2, True)
        issue(1, SL(1), part=1 if (c.boundary is None or c.w1late) else 'xb')
    if c.post_b0p: c.post_b0p(a, c, vm)
    if c.loop_init: c.loop_init(a, c)
    if c.flags:
        assert L == S - 1
        vFa, vFv, vFd = 244, 245, 246
        s_need = c.s_nh
        a('s_add_u32 s%d, s%d, %d\nv_mov_b32 v%d, s%d\nv_and_b32 v243, 3, v1\nv_add_u32 v243, %d, v243\nv_mov_b32 v%d, %d' % (sp, c.s_wave, c.SY-4, vFa, sp, c.SY, vFv, c.fbase+1))
        cnt = [0]
        def signal():
            a('v_add_u32 v%d, 1, v%d\ns_mov_b64 exec, 15\nds_write_b8 v%d, v%d\nds_read_u8 v%d, v243 offset:4\ns_mov_b64 exec, -1' % (vFv, vFv, vFa, vFv, vFd))
        def fit(t, const):
            k = t - L
            cnt[0] += 1
            lab = '%s_f%d' % (c.name, cnt[0])
            if t >= S:
                a('s_waitcnt lgkmcnt(0)\nv_cmp_gt_u32 vcc, s%d, v%d\ns_and_b32 s71, vcc_lo, 15\ns_cbranch_scc0 %s' % (s_need, vFd, lab))
                a('s_waitcnt vmcnt(%d)\nv_add_u32 v%d, 1, v%d\nds_write_b8 v%d, v%d' % (vm.count(t-1), vFd, vFv, vFa, vFd))
                a.label(lab + 's')
                a('s_sleep 1\ns_sub_u32 s70, s70, 1\ns_cbranch_scc1 %s' % lab)
                a('ds_read_u8 v%d, v243 offset:4\ns_waitcnt lgkmcnt(0)\nv_cmp_gt_u32 vcc, s%d, v%d\ns_cmp_lg_u64 vcc, 0\ns_cbranch_scc1 %ss' % (vFd, s_need, vFd, lab))
                a.label(lab)
                a('s_add_u32 s%d, s%d, 1' % (s_need, s_need))
            if const and c.bar_hook and k >= 1: c.bar_hook(a, c, vm, k)
            issue(t, SL(t) if const else None, part='fa')
            vm.wait(t-1)
            signal()
            issue(t, SL(t) if const else None, fetch_next=(t+1 < nst), part='fb')
            if const and c.iter_hook and k >= 1: c.iter_hook(a, c, vm, k)
        a('s_mov_b32 s%d, %d\ns_mov_b32 s70, 0x100000' % (s_need, c.fbase+1))
        for t in range(2, S): fit(t, True)
        if c.unroll:
            for t in range(S, nst): fit(t, True)
        else:
            a('s_mov_b32 s%d, %d\ns_mov_b32 s%d, %d' % (c.s_slot, SL(S), c.s_cnt, nst-S-1))
            a.label(c.name + '_ploop')
            fit(S, False)
            body = vm.log[-1]
            a('s_sub_u32 s%d, s%d, 1\ns_cmp_lg_u32 s%d, 0\ns_cbranch_scc1 %s_ploop' % (c.s_cnt, c.s_cnt, c.s_cnt, c.name))
            keep = a.lines
            for t in range(S+1, nst-1):
                a.lines = []; fit(t, False); assert vm.log[-1] == body
            a.lines = keep
            fit(nst-1, False)
        if c.tail_issue: c.tail_issue(a, c, vm)
        vm.wait(nst-1)
        if c.pre_last_bar: c.pre_last_bar(a, c, vm)
        a('s_waitcnt lgkmcnt(0)\ns_barrier')
        if c.ptail: c.ptail(a, c, vm)
        if lbl_after: a('s_branch %s' % lbl_after)
        return
    for st in range(2, L+1):
        if c.nloc: break
        if c.loop_extra: c.loop_extra(a, c, vm)
        if c.pre_issue: c.pre_issue(a, c, vm, st)
        issue(st, SL(st))
    a('s_mov_b32 s%d, %d' % (c.s_slot, SL(L+1 if not c.nloc else 6)))
    nsteady = nst - 2 - L - c.nown - (1 if c.nown else 0)
    def it(k, const=False):
        stamp(a, c, 0)
        vm.wait(k)
        if k == nst-1 and c.pre_last_bar: c.pre_last_bar(a, c, vm)
        if k == 1 and c.pre_b1: c.pre_b1(a, c, vm)
        if const and c.wait_hook: c.wait_hook(a, c, vm, k)
        stamp(a, c, 1)
        a('s_barrier')
        stamp(a, c, 2, True)
        if const and c.bar_hook: c.bar_hook(a, c, vm, k)
        if k + L < nst:
            if const and c.pre_issue: c.pre_issue(a, c, vm, k+L)
            issue(k+L, SL(k+L) if const else None, fetch_next=(k+L+1 < nst))
        if const and c.iter_hook: c.iter_hook(a, c, vm, k)
        if k + L == nst - 1 + c.tail_delay and c.tail_issue: c.tail_issue(a, c, vm)
    if c.unroll:
        for k in range(1, nst): it(k, True)
    else:
        k0 = 1
        if c.peel1: it(1); k0 = 2
        if c.nloc:
            k0 = 3 + c.npeel
            for k in range(3, k0): it(k, True)
            a('s_mov_b32 s%d, %d' % (c.s_slot, SL(k0+L)))
        a('s_mov_b32 s%d, %d' % (c.s_cnt, nsteady - (k0-1)))
        a.label(c.name + '_ploop')
        it(k0)
        body = vm.log[-1]
        a('s_sub_u32 s%d, s%d, 1' % (c.s_cnt, c.s_cnt))
        a('s_cmp_lg_u32 s%d, 0' % c.s_cnt)
        a('s_cbranch_scc1 %s_ploop' % c.name)
        keep = a.lines
        for k in range(k0+1, nsteady+1):
            a.lines = []; it(k); assert vm.log[-1] == body
        a.lines = keep
        for k in range(nsteady+1, nst): it(k, True)
    mark(a, c, 0)
    if c.ptail: c.ptail(a, c, vm)
    if c.stamps and c.gen_dump:
        a('s_mov_b64 exec, -1')
        mark(a, c, 8)
        a('s_waitcnt vmcnt(0)')
        mark(a, c, 9)
        dump_stamps(a, c)
    if lbl_after: a('s_branch %s' % lbl_after)

class VM:
    def __init__(self, a): self.a = a; self.ops = []; self.log = []; self.done = -1
    def issue(self, tag, n=1): self.ops += [tag]*n
    def count(self, tag):
        idx = max(i for i, t in enumerate(self.ops) if t == tag)
        return len(self.ops) - 1 - idx
    def wait(self, tag, extra=''):
        n = self.count(tag)
        idx = len(self.ops) - 1 - n
        if idx <= self.done:
            self.log.append(None)
            if extra: self.a('s_waitcnt' + extra)
            return
        assert n <= 63
        self.done = idx
        self.log.append(n)
        self.a('s_waitcnt vmcnt(%d)%s' % (n, extra))

def xproducer(a, c, lbl_after):
    BK, S = c.BK, c.S
    assert BK == 64 and S == 3
    nst = c.K // BK
    D = 2
    sp = c.s_tmp
    tabs = order_table(nst, c.G, c.order)
    pk = [sum(x << (4*i) for i, x in enumerate(o)) for o in tabs]
    s_ow, s_ox, s_kt = c.s_tab, c.s_tab+2, c.s_nh
    a('s_sub_u32 s%d, s%d, 4' % (sp, c.s_wave))
    a('s_mov_b32 s%d, 0x%x\ns_mov_b32 s%d, 0x%x' % (s_ow, pk[0] & 0xffffffff, s_ow+1, pk[0] >> 32))
    for j in range(1, c.G):
        a('s_cmp_eq_u32 s%d, %d' % (c.s_rot, j))
        a('s_cselect_b32 s%d, 0x%x, s%d\ns_cselect_b32 s%d, 0x%x, s%d' % (s_ow, pk[j] & 0xffffffff, s_ow, s_ow+1, pk[j] >> 32, s_ow+1))
    a('s_mov_b64 s[%d:%d], s[%d:%d]' % (s_ox, s_ox+1, s_ow, s_ow+1))
    v = 2
    vrow, vt, vch = v, v+1, v+2; v += 3
    vXg = v; v += 4
    vXw = v; v += 2
    vTab, vTa = v, v+1; v += 2
    a('v_lshrrev_b32 v%d, 3, v1\nv_and_b32 v%d, 7, v1' % (vrow, vch))
    a('s_lshl_b32 s%d, s%d, 2\ns_add_u32 s%d, s%d, s%d' % (sp+1, c.s_mt, sp+1, sp+1, sp))
    c.s_rb = sp+3
    a('s_mov_b32 s%d, s%d' % (c.s_rb, sp+1))
    a('s_lshl_b32 s%d, s%d, 16' % (sp+1, sp+1))
    a('v_lshlrev_b32 v%d, 11, v%d' % (vt, vrow))
    a('v_lshl_add_u32 v%d, v%d, 4, v%d' % (vt, vch, vt))
    a('v_add_u32 v%d, s%d, v%d' % (vXg, sp+1, vt))
    for i in range(1, 4): a('v_add_u32 v%d, %d, v%d' % (vXg+i, 16384*i, vXg))
    vw0, vw1 = v, v+1; v += 2
    a('v_bfe_u32 v%d, v1, 4, 1\nv_lshlrev_b32 v%d, 1, v%d\nv_xor_b32 v%d, v%d, v%d' % (vt, vt, vt, vt, vt, vch))
    a('v_mul_u32_u24 v%d, %d, v%d' % (vw1, c.ldw, vrow))
    a('s_mul_i32 s%d, s%d, %d' % (sp+1, sp, 16*c.ldw))
    a('s_add_u32 s%d, s%d, s%d' % (sp+2, sp+1, c.s_col0))
    a('v_add_u32 v%d, s%d, v%d' % (vw1, sp+2, vw1))
    a('v_lshl_add_u32 v%d, v%d, 4, v%d' % (vw0, vt, vw1))
    a('v_xor_b32 v%d, 4, v%d' % (vt, vt))
    a('v_lshl_add_u32 v%d, v%d, 4, v%d' % (vw1, vt, vw1))
    a('v_add_u32 v%d, %d, v%d' % (vw1, 8*c.ldw - 1024, vw1))
    a('s_lshl_b32 s%d, s%d, 11\ns_add_u32 s%d, s%d, %d' % (c.s_pw, sp, c.s_pw, c.s_pw, c.xbytes))
    groups = [(c.s_pw, 0, [(vw0, 0), (vw1, 1024)])]
    for q in range(1, c.nfull):
        a('v_add_u32 v%d, %d, v%d\nv_add_u32 v%d, %d, v%d' % (v, q*c.panel_stride, vw0, v+1, q*c.panel_stride, vw1))
        groups.append((c.s_pw, q*8192, [(v, 0), (v+1, 1024)])); v += 2
    if c.half:
        vh0 = v; v += 1
        a('v_lshrrev_b32 v%d, 2, v1' % vh0)
        a('v_mul_u32_u24 v%d, %d, v%d' % (vh0, c.ldw, vh0))
        a('v_lshrrev_b32 v%d, 4, v1\nv_and_b32 v%d, 2, v%d' % (vt, vt, vt))
        a('v_and_b32 v%d, 3, v1\nv_xor_b32 v%d, v%d, v%d' % (vTa, vt, vt, vTa))
        a('v_lshl_add_u32 v%d, v%d, 4, v%d' % (vh0, vt, vh0))
        a('s_add_u32 s%d, s%d, s%d' % (sp+2, sp+1, c.s_colh))
        a('v_add_u32 v%d, s%d, v%d' % (vh0, sp+2, vh0))
        a('s_lshl_b32 s%d, s%d, 10\ns_add_u32 s%d, s%d, %d' % (c.s_ph, sp, c.s_ph, c.s_ph, c.xbytes + c.nfull*8192))
        groups.append((c.s_ph, 0, [(vh0, 0)]))
    nW = sum(len(g[2]) for g in groups)
    a('v_lshrrev_b32 v%d, 4, v1\nv_xor_b32 v%d, v%d, v%d' % (vt, vt, vt, vch))
    a('v_lshlrev_b32 v%d, 4, v%d' % (vt, vt))
    a('v_lshl_add_u32 v%d, v%d, 7, v%d' % (vt, vrow, vt))
    a('s_lshl_b32 s%d, s%d, 12' % (sp+1, sp))
    a('v_add_u32 v%d, s%d, v%d\nv_xor_b32 v%d, 64, v%d' % (vXw, sp+1, vt, vXw+1, vXw))
    a('v_lshlrev_b32 v%d, 6, v%d\nv_add_u32 v%d, %d, v%d' % (vTab, vch, vTab, c.tab_base, vTab))
    v = (v + 3) // 4 * 4
    RAW = v; v += 16*4
    OUT = v; v += 16
    AS = v; v += 16
    TMP = v; v += 8
    RC = v; v += 12
    c.p_vfree = v; c.p_RC = RC; c.p_vrow = vrow; c.p_vch = vch
    vm = VM(a)
    def next_w():
        a('s_and_b32 s%d, s%d, 15' % (s_kt, s_ow))
        a('s_lshr_b64 s[%d:%d], s[%d:%d], 4' % (s_ow, s_ow+1, s_ow, s_ow+1))
        a('s_mul_i32 s%d, s%d, %d' % (c.s_kw, s_kt, BK*c.ldw))
        a('s_lshl_b32 s%d, s%d, 9' % (s_kt, s_kt))
    def nextx():
        a('s_and_b32 s%d, s%d, 15' % (c.s_kx, s_ox))
        a('s_lshr_b64 s[%d:%d], s[%d:%d], 4' % (s_ox, s_ox+1, s_ox, s_ox+1))
        a('s_lshl_b32 s%d, s%d, 7' % (c.s_kx, c.s_kx))
    def loadx1(st, q, i):
        a('buffer_load_dwordx4 v[%d:%d], v%d, s[%d:%d], s%d offen' % (RAW+16*q+4*i, RAW+16*q+4*i+3, vXg+i, c.sX, c.sX+3, c.s_kx))
        vm.issue(('x', st))
    def loadx(st, q):
        nextx()
        for i in range(4): loadx1(st, q, i)
    def dmaw_list(st, slot_const):
        out = []
        for (base, lc, ins) in groups:
            for n_, (vr, io) in enumerate(ins):
                def f(base=base, lc=lc, vr=vr, io=io, first=(n_ == 0)):
                    if first:
                        if slot_const is None:
                            a('s_add_u32 s%d, s%d, s%d' % (sp, base, c.s_slot))
                            if lc: a('s_add_u32 m0, s%d, %d' % (sp, lc))
                            else: a('s_mov_b32 m0, s%d' % sp)
                        else: a('s_add_u32 m0, s%d, %d' % (base, lc + slot_const))
                    a('buffer_load_dwordx4 v%d, s[%d:%d], s%d offen%s lds' % (vr, c.sW, c.sW+3, c.s_kw, ' offset:%d' % io if io else ''))
                    vm.issue(('w', st))
                out.append(f)
        return out
    def dmaw(st, slot_const):
        for f in dmaw_list(st, slot_const): f()
    def readas(skt):
        a('v_add_u32 v%d, s%d, v%d' % (vTa, skt, vTab))
        for e in range(4): a('ds_read_b128 v[%d:%d], v%d offset:%d' % (AS+4*e, AS+4*e+3, vTa, 16*e))
    dot = c.xf.startswith('dot')
    def xform(q, slot_off, side=(), after_unpack=None):
        side = list(side)
        def pop():
            if side: side.pop(0)()
        for i in range(4):
            r = RAW + 16*q + 4*i
            if dot:
                for e in range(4):
                    a('v_dot2_f32_bf16 v%d, v%d, v%d, v%d' % (TMP+2*e, r+e, RC+8+i, RC+2*i+1))
                    a('v_dot2_f32_bf16 v%d, v%d, v%d, v%d' % (TMP+2*e+1, r+e, RC+2*i, RC+2*i+1))
                if after_unpack: after_unpack(i)
            else:
                for e in range(4):
                    a('v_lshlrev_b32 v%d, 16, v%d\nv_and_b32 v%d, 0xffff0000, v%d' % (TMP+2*e, r+e, TMP+2*e+1, r+e))
                if after_unpack: after_unpack(i)
                if c.xf == 'pk5':
                    for e in range(4): a('v_pk_fma_f32 v[%d:%d], v[%d:%d], v[%d:%d], v[%d:%d] op_sel:[0,0,1] op_sel_hi:[1,0,1]' % (TMP+2*e, TMP+2*e+1, TMP+2*e, TMP+2*e+1, RC+2*i, RC+2*i+1, RC+2*i, RC+2*i+1))
                else:
                    for e in range(8): a('v_fma_f32 v%d, v%d, v%d, v%d' % (TMP+e, TMP+e, RC+2*i, RC+2*i+1))
            pop()
            if i == 0: a('s_waitcnt lgkmcnt(0)')
            if c.xf in ('pk5', 'dot4'):
                for e in range(4): a('v_pk_fma_f32 v[%d:%d], v[%d:%d], v[%d:%d], v[%d:%d]' % (TMP+2*e, TMP+2*e+1, TMP+2*e, TMP+2*e+1, AS+2*e, AS+2*e+1, AS+8+2*e, AS+9+2*e))
            else:
                for e in range(8): a('v_fma_f32 v%d, v%d, v%d, v%d' % (TMP+e, TMP+e, AS+e, AS+8+e))
            if i < 3: pop()
            for e in range(4): a('v_cvt_pk_bf16_f32 v%d, v%d, v%d' % (OUT+4*i+e, TMP+2*e, TMP+2*e+1))
            a('ds_write_b128 v%d, v[%d:%d] offset:%d' % (vXw + i % 2, OUT+4*i, OUT+4*i+3, slot_off + i*1024))
        while side: pop()
    s_kt0, s_kt1 = c.s_px, c.s_cnt
    a('s_waitcnt lgkmcnt(0)')
    c.srd_hook(a)
    loadx(0, 2)
    next_w(); a('s_mov_b32 s%d, s%d' % (s_kt0, s_kt))
    dmaw(0, 0)
    c.pstats_issue(a, c, vm)
    loadx(1, 3); loadx(2, 0)
    next_w(); a('s_mov_b32 s%d, s%d' % (s_kt1, s_kt))
    dmaw(1, c.slot)
    loadx(3, 1)
    c.pstats_finish(a, c, vm)
    if dot:
        for i in range(4): a('v_cvt_pk_bf16_f32 v%d, v%d, v%d' % (RC+2*i, RC+2*i, RC+2*i))
        for i in range(4): a('v_and_b32 v%d, 0xffff, v%d\nv_and_b32 v%d, 0xffff0000, v%d' % (RC+8+i, RC+2*i, RC+2*i, RC+2*i))
    for i in range(4): a('v_mul_f32 v%d, -v%d, v%d' % (RC+2*i+1, RC+2*i+1, RC+2*i))
    if c.pprio: a('s_setprio %d' % c.pprio)
    if c.stamps: a('s_mov_b32 s72, 0')
    stamp(a, c, 0)
    a('s_barrier')
    stamp(a, c, 3)
    readas(s_kt0)
    vm.wait(('x', 0))
    xform(2, 0)
    a('s_waitcnt lgkmcnt(0)')
    vm.wait(('w', 0))
    stamp(a, c, 1)
    a('s_barrier')
    stamp(a, c, 2, True)
    readas(s_kt1)
    vm.wait(('x', 1))
    assert c.slot + 4096 <= 65536
    xform(3, c.slot)
    a('s_mov_b32 s%d, %d' % (c.s_slot, 2*c.slot))
    a('v_add_u32 v%d, %d, v%d\nv_add_u32 v%d, %d, v%d' % (vXw, 2*c.slot, vXw, vXw+1, 2*c.slot, vXw+1))
    a('s_mov_b32 s%d, %d' % (sp+1, c.slot))
    def iteration(k, first=False):
        if k + 2 < nst:
            next_w()
            readas(s_kt)
            dl = dmaw_list(k+2, None)
            dl.pop(0)()
            more = k + 2 + D < nst
            if more:
                nextx()
                if c.loop_extra: dl.append(lambda: c.loop_extra(a, c, vm))
            vm.wait(('x', k+2))
            stamp(a, c, 0)
            xform(k % 2, 0, dl, (lambda i: loadx1(k+2+D, k % 2, i)) if more else None)
            stamp(a, c, 3)
            if k + 3 == nst: c.tail_issue(a, c, vm)
            a('s_add_u32 s%d, s%d, s%d' % (c.s_slot, c.s_slot, sp+1))
            a('s_cmp_ge_u32 s%d, %d' % (c.s_slot, c.slot*S))
            a('s_cselect_b32 s%d, 0, s%d' % (c.s_slot, c.s_slot))
            a('s_cselect_b32 s%d, %d, s%d' % (sp, -2*c.slot, sp+1))
            a('v_add_u32 v%d, s%d, v%d\nv_add_u32 v%d, s%d, v%d' % (vXw, sp, vXw, vXw+1, sp, vXw+1))
        vm.wait(('w', k+1), ' lgkmcnt(0)')
        stamp(a, c, 1)
        a('s_barrier')
        stamp(a, c, 2, True)
    nsteady = nst - 2 - D
    assert nsteady % 2 == 0
    if c.loop_init: c.loop_init(a, c)
    a('s_waitcnt lgkmcnt(0)')
    iteration(0); iteration(1)
    a('s_mov_b32 s%d, %d' % (c.s_cnt, nsteady // 2 - 1))
    a.label(c.name + '_ploop')
    n0 = len(vm.log)
    iteration(2); iteration(3)
    body = vm.log[n0:]
    a('s_sub_u32 s%d, s%d, 1' % (c.s_cnt, c.s_cnt))
    a('s_cmp_lg_u32 s%d, 0' % c.s_cnt)
    a('s_cbranch_scc1 %s_ploop' % c.name)
    keep = a.lines;
    for k in range(4, nsteady, 2):
        a.lines = []; n0 = len(vm.log)
        iteration(k); iteration(k+1)
        assert vm.log[n0:] == body, (vm.log[n0:], body)
    a.lines = keep
    for k in range(nsteady, nst-1): iteration(k)
    if c.stamps: dump_stamps(a, c)
    c.ptail(a, c, vm)
    a('s_branch %s' % lbl_after)

def table(a, c):
    a.lines.append('.p2align 6')
    a.label(c.name + '_tab')
    for o in c.tabs:
        a.lines.append('.byte ' + ','.join(str(x) for x in (o + [0]*64)[:16 if c.own0 else 32 if c.nloc else 64]))
    if c.own0 or c.nloc: a.lines.append('.fill 64, 1, 0')
    a.lines.append('.p2align 2')

def consumer(a, c):
    BK, S = c.BK, c.S
    nsub = BK // 32
    nst = c.K // BK
    r4 = c.rows4
    TMb = c.BM // (4 if r4 else 2) // 16
    sp = c.s_tmp
    ks = c.ksplit
    va = c.v_addr
    vX, vX2, vW0, vW1, vW2, vW3, vX3, vX4 = [va+i for i in range(8)]
    t0, t1 = c.v_tmp, c.v_tmp+1
    nat = c.xform
    natw = c.xform or c.natw
    rotx = c.half or ks
    a('s_lshr_b32 s%d, s%d, 1' % (c.s_rh, c.s_wave))
    a('s_and_b32 s%d, s%d, 1' % (c.s_nh, c.s_wave))
    a('s_mul_i32 s%d, s%d, %d' % (sp, c.s_wave if r4 else c.s_rh, TMb*nsub*1024))
    if ks:
        a('s_lshl_b32 s%d, s%d, 10\ns_add_u32 s%d, s%d, s%d' % (sp+1, c.s_nh, sp, sp, sp+1))
    if nat:
        a('v_bfe_u32 v%d, v1, 1, 3\nv_lshrrev_b32 v%d, 4, v1\nv_xor_b32 v%d, v%d, v%d' % (t0, t1, t0, t0, t1))
        a('v_and_b32 v%d, 15, v1\nv_lshlrev_b32 v%d, 7, v%d' % (t1, t1, t1))
        a('v_lshl_add_u32 v%d, v%d, 4, v%d\nv_add_u32 v%d, s%d, v%d' % (vX, t0, t1, vX, sp, vX))
    else:
        a('v_lshl_add_u32 v%d, v1, 4, s%d' % (vX, sp))
    addr = [vX, vW0, vW1]
    if rotx:
        a('s_mul_i32 s%d, s%d, %d' % (sp, c.s_nh, 2*nsub*1024))
        a('v_subrev_u32 v%d, s%d, v%d' % (vX2, sp, vX))
        a('v_add_u32 v%d, s%d, v%d' % (vX, sp, vX))
        addr.append(vX2)
    if nat:
        a('v_xor_b32 v%d, 64, v%d' % (vX3, vX)); addr.append(vX3)
        if rotx: a('v_xor_b32 v%d, 64, v%d' % (vX4, vX2)); addr.append(vX4)
    if natw:
        a('v_bfe_u32 v%d, v1, 2, 2\nv_lshrrev_b32 v%d, 4, v1\nv_lshl_add_u32 v%d, v%d, 3, v%d' % (t0, t1, t0, t1, t0))
    else:
        a('v_lshrrev_b32 v%d, 2, v1' % t0)
    a('v_bfe_u32 v%d, v1, 3, 2' % t1)
    if ks or r4: a('v_lshlrev_b32 v%d, 5, v%d' % (vW0, t1))
    else:
        a('s_lshl_b32 s%d, s%d, 1' % (sp, c.s_nh))
        a('v_xor_b32 v%d, s%d, v%d' % (vW0, sp, t1))
        a('v_lshlrev_b32 v%d, 5, v%d' % (vW0, vW0))
    a('v_lshl_add_u32 v%d, v%d, 7, v%d' % (vW0, t0, vW0))
    a('v_and_b32 v%d, 3, v1' % t1)
    a('v_lshlrev_b32 v%d, 3, v%d' % (t1, t1))
    if ks:
        a('s_lshl_b32 s%d, s%d, 12\ns_add_u32 s%d, s%d, %d' % (sp, c.s_nh, sp, sp, c.xbytes))
        a('v_add3_u32 v%d, v%d, v%d, s%d' % (vW0, vW0, t1, sp))
    else:
        a('v_add_u32 v%d, %d, v%d' % (t1, c.xbytes, t1))
        a('v_add_u32 v%d, v%d, v%d' % (vW0, vW0, t1))
    a('v_xor_b32 v%d, 32, v%d' % (vW1, vW0))
    if ks or r4:
        a('v_xor_b32 v%d, 64, v%d' % (vW2, vW0))
        a('v_xor_b32 v%d, 96, v%d' % (vW3, vW0))
        addr += [vW2, vW3]
    if c.half:
        a('v_bfe_u32 v%d, v1, 4, 1' % vW2)
        a('v_lshlrev_b32 v%d, 5, v%d' % (vW2, vW2))
        a('v_lshl_add_u32 v%d, v%d, 6, v%d' % (vW2, t0, vW2))
        a('v_add_u32 v%d, v%d, v%d' % (vW2, vW2, t1))
        a('v_add_u32 v%d, %d, v%d' % (vW2, c.nfull*BK*128, vW2))
        a('v_xor_b32 v%d, 32, v%d' % (vW3, vW2))
        addr += [vW2, vW3]
    assert c.xbytes % 128 == 0 and c.slot % 128 == 0
    sm = 2 if ks else 1
    def xrd(j, sub):
        hi = rotx and j >= 2
        if nat: return ((vX4 if hi else vX3) if sub % 2 else (vX2 if hi else vX)), j*2048
        return (vX2 if hi else vX), (j*nsub+sub)*1024
    tf = 512 if natw else 2048
    if ks or r4:
        wfr = [(vW0+u, 0, 4096, tf) for u in range(4)]
        mf = [(j, i) for i in range(TMb) for j in range(4)]
    else:
        wfr = [(vW0 + j % 2, (j//2)*BK*128, 4096, tf) for j in range(2*c.nfull)]
        mf = [(j, i) for j in range(len(wfr)) for i in range(TMb)]
    if c.half:
        wfr += [(vW2, 0, 2048, tf//2), (vW3, 0, 2048, tf//2)]
        mf += [(2*c.nfull + u, i) for u in range(2) for i in range(2)]
    nWf = len(wfr)
    nacc = len(mf) * 4
    KS = c.KS
    fs1 = (TMb + nWf) * 4
    fsz = fs1 * KS
    c.v_acc = c.v_frag + 2*fsz
    c.v_free = c.v_acc + nacc
    if c.pre_hook: c.pre_hook(a, c)
    if c.acc_init: c.acc_init(a, c)
    elif not c.first_c:
        for i in range(nacc): a('v_mov_b32 v%d, 0' % (c.v_acc+i))
    def xreg(s, q, j): return c.v_frag + s*fsz + q*fs1 + j*4
    def wreg(s, q, j): return c.v_frag + s*fsz + q*fs1 + TMb*4 + j*4
    def reads(s, step, own=False):
        r = []
        for q in range(KS):
            sub = (step*KS + q)*sm
            xs = ['ds_read_b128 v[%d:%d], v%d offset:%d' % ((xreg(s,q,j), xreg(s,q,j)+3) + xrd(j, sub)) for j in range(TMb)]
            ws = []
            for j, (v, base, ss, ts) in enumerate(wfr[:2] if own else wfr):
                for t in range(2):
                    w = wreg(s,q,j) + 2*t
                    ws.append('ds_read_b64_tr_b16 v[%d:%d], v%d offset:%d' % (w, w+1, v, base + sub*ss + t*ts))
            r += (xs[:1] + ws + xs[1:]) if (ks or r4) else (ws[:2] + xs + ws[2:])
        if c.no_lds: r = []
        return r
    def mfmas(s, first=False, own=False):
        r = []
        for q in range(KS):
            for k, (j, i) in enumerate(mf):
                if own and j >= 2: continue
                t = c.v_acc + k*4
                A_, B_ = wreg(s,q,j), xreg(s,q,i)
                if j in c.swap_frags: A_, B_ = B_, A_
                C_ = 'v[%d:%d]' % (t, t+3)
                if first and q == 0: C_ = c.first_c(c, j)
                r.append('v_mfma_f32_16x16x32_bf16 v[%d:%d], v[%d:%d], v[%d:%d], %s' % (t, t+3, A_, A_+3, B_, B_+3, C_))
        if c.no_mfma: r = r[:1]
        return r
    def interleave(ms, rs, extra=()):
        out = []
        rpm = c.rpm if len(ms) > 8 else max(c.rpm, c.rpm_own)
        k = 0; ex = list(extra)
        for i, m in enumerate(ms):
            out.append(m)
            if k < len(rs):
                for _ in range(rpm):
                    if k < len(rs): out.append(rs[k]); k += 1
            elif ex:
                out.append(ex.pop(0))
                if ex and ex[0].startswith('s_'): out.append(ex.pop(0))
        out += rs[k:] + ex
        return out
    def advance():
        return ['s_add_u32 s%d, s%d, 1' % (c.s_slot, c.s_slot),
             's_cmp_eq_u32 s%d, %d' % (c.s_slot, S),
             's_cselect_b32 s%d, 0, s%d' % (c.s_slot, c.s_slot),
             's_cselect_b32 s%d, %d, s%d' % (sp, -(S-1)*c.slot, sp+1)] + ['v_add_u32 v%d, s%d, v%d' % (v, sp, v) for v in addr]
    nstep = nsub // KS // sm
    spb = 1 if nstep % 2 == 0 else 2
    a('s_mov_b32 s%d, %d' % (c.s_slot, c.slot0))
    if c.slot0:
        for v in addr: a('v_add_u32 v%d, %d, v%d' % (v, c.slot0*c.slot, v))
    a('s_mov_b32 s%d, %d' % (sp+1, c.slot))
    if c.pre_hook2: c.pre_hook2(a, c)
    if c.stamps: a('s_mov_b32 s72, 0')
    stamp(a, c, 1)
    a('s_barrier')
    stamp(a, c, 2, True)
    if c.post_b0: c.post_b0(a, c)
    vRa, vR = c.v_flag, c.v_flag+1
    s_need, s_one = c.s_px, c.s_pw
    frd = ['ds_read_u8 v%d, v%d' % (vR, vRa)] if c.flags else []
    if c.flags:
        a('v_and_b32 v%d, 3, v1\nv_add_u32 v%d, %d, v%d\ns_mov_b32 s%d, %d\ns_mov_b32 s70, 0x100000\ns_lshl_b64 s[68:69], 1, s%d' % (vRa, vRa, c.SY, vRa, s_need, c.fbase+2, c.s_wave))
        a('s_add_u32 s71, s%d, %d\nv_mov_b32 v%d, s71' % (c.s_wave, c.SY+4, vR+1))
    for r in reads(0, 0) + (frd if nstep == 1 else []): a(r)
    if c.post_b0b: c.post_b0b(a, c, len(reads(0, 0)))
    if nstep == 1:
        for l in advance(): a(l)
    par = [0]
    fc = [0]
    def stage(last, first=False, hook=False, realbar=False, own=False, nown=False, pre_bar=None, post_bar=None, xtra=lambda st: []):
        for step in range(nstep):
            s = par[0]; par[0] ^= 1
            a('s_waitcnt lgkmcnt(0)')
            if hook: c.step_hook(a, c, step, lambda j: wreg(s, 0, j), xreg(1-s, 0, 0))
            if step < nstep-1:
                ex = advance() if (step == nstep-2 and not last) else []
                if first and step == 0 and c.first_extra: ex = ex + c.first_extra(c)
                ex = xtra(step) + ex
                for l in interleave(mfmas(s, first and step == 0, own), reads(1-s, step+1, own) + (frd if step == nstep-2 and not last and not realbar else []), ex): a(l)
            elif not last:
                ms = mfmas(s, first and step == 0, own)
                nb = c.mfma_before_bar
                if first and c.own0:
                    a('s_waitcnt vmcnt(0)\ns_barrier')
                    for m in ms: a(m)
                    a('s_barrier\ns_barrier')
                    ms = []; nb = 0
                elif c.flags and not realbar:
                    fc[0] += 1
                    lab = '%s_c%d' % (c.name, fc[0])
                    a(ms[0])
                    a('v_cmp_gt_u32 vcc, s%d, v%d' % (s_need, vR))
                    a('s_sub_u32 s%d, s%d, 1' % (sp+2, s_need))
                    a(ms[1])
                    if c.noexec: a('v_mov_b32 v%d, s%d\nds_write_b8 v%d, v%d' % (vR, sp+2, vR+1, vR))
                    else: a('v_mov_b32 v%d, s%d\ns_mov_b64 exec, s[68:69]\nds_write_b8 v%d, v%d offset:4\ns_mov_b64 exec, -1' % (vR, sp+2, vRa, vR))
                    a('s_cmp_lg_u64 vcc, 0\ns_cbranch_scc1 %ss' % lab)
                    a.label(lab)
                    a('s_add_u32 s%d, s%d, 1' % (s_need, s_need))
                    o = c.outline
                    o.label(lab + 's')
                    o('s_sub_u32 s70, s70, 1\ns_cbranch_scc1 %s' % lab)
                    o('s_waitcnt lgkmcnt(0)\nds_read_u8 v%d, v%d\ns_waitcnt lgkmcnt(0)\nv_cmp_gt_u32 vcc, s%d, v%d\ns_cmp_lg_u64 vcc, 0\ns_cbranch_scc1 %ss\ns_branch %s' % (vR, vRa, s_need, vR, lab, lab))
                    nb = 2
                else:
                    for m in ms[:nb]: a(m)
                    if pre_bar: pre_bar(a, c)
                    stamp(a, c, 1)
                    a('s_barrier')
                    stamp(a, c, 2, True)
                    if post_bar: post_bar(a, c)
                for l in interleave(ms[nb:], reads(1-s, 0, nown) + (c.post_b1(c) if (first and c.post_b1) else []) + (frd if nstep == 1 else []), xtra(step) + (advance() if nstep == 1 else [])): a(l)
            else:
                for l in interleave(mfmas(s, False, own), c.last_reads(c) if c.last_reads else [], xtra(step)): a(l)
    npre = 0
    if c.first_c:
        drain = lambda a, c: a('s_waitcnt vmcnt(0)')
        stage(False, True, pre_bar=drain if ((c.nloc and c.sig_at == 1) or c.drain1) else None); npre = 1
        if c.after_first: c.after_first(a, c)
    if c.nloc:
        if c.sig_at == 2: stage(False, pre_bar=drain); npre += 1
    if c.step_hook:
        a('s_mov_b32 s%d, %d' % (c.s_cnt, c.hook_stages))
        a.label(c.name + '_hloop')
        stage(False, hook=True)
        a('s_sub_u32 s%d, s%d, 1' % (c.s_cnt, c.s_cnt))
        a('s_cmp_lg_u32 s%d, 0' % c.s_cnt)
        a('s_cbranch_scc1 %s_hloop' % c.name)
        npre += c.hook_stages
    spb *= c.cunroll
    npost = c.nown + 1 if c.nown else 1
    if c.panel_tail: npost = 3
    nloop = (nst - npost - npre - (1 if (c.late_hook or c.flags) else 0)) // spb
    rem = (nst - npost - npre) - nloop*spb
    a('s_mov_b32 s%d, %d' % (c.s_cnt, nloop))
    a('.p2align 3')
    a.label(c.name + '_cloop')
    for _ in range(spb): stage(False)
    a('s_sub_u32 s%d, s%d, 1' % (c.s_cnt, c.s_cnt))
    a('s_cmp_lg_u32 s%d, 0' % c.s_cnt)
    a('s_cbranch_scc1 %s_cloop' % c.name)
    for r_ in range(rem):
        if c.late_hook and r_ == rem-1: c.late_hook(a, c)
        stage(False, realbar=(r_ == rem-1))
    if c.panel_tail:
        s_ = par[0]; par[0] ^= 1
        a('s_waitcnt lgkmcnt(0)')
        for l in interleave(mfmas(s_), reads(1-s_, 1), advance()): a(l)
        assert par[0] == 1 and nstep == 2
        a('s_waitcnt lgkmcnt(0)')
        delta = (((nst-1+c.slot0) % S) - ((nst-2+c.slot0) % S)) * c.slot
        c.panel_tail(a, c, mfmas(1), [vX, vX2, vW0, vW1, vW2, vW3], wfr, delta)
    elif c.nown:
        stage(False, nown=True)
        for q in range(c.nown):
            c.own_hook(a, c, q, 0)
            stage(q == c.nown-1, own=True, nown=True, pre_bar=lambda a, c: c.own_hook(a, c, q, 1), post_bar=lambda a, c: c.own_hook(a, c, q, 2), xtra=lambda st: c.own_extra(c, q, st))
    else: stage(True)
    if c.stamps and c.gen_dump:
        stamp(a, c, 1)
        mark(a, c, 0)
    if ks:
        EB = c.slot * (nst % S)
        if c.slot < 32768:
            EB = c.slot * S; c.lds = EB + 32768
        assert c.lds <= 163840
        a('s_lshl_b32 s%d, s%d, 13\ns_add_u32 s%d, s%d, %d' % (sp, c.s_wave, sp, sp, EB))
        a('v_lshl_add_u32 v%d, v1, 4, s%d' % (t0, sp))
        a('s_xor_b32 s%d, s%d, 1\ns_lshl_b32 s%d, s%d, 13\ns_add_u32 s%d, s%d, %d' % (sp, c.s_wave, sp, sp, sp, sp, EB))
        a('v_lshl_add_u32 v%d, v1, 4, s%d' % (t1, sp))
        for k in range(8): a('ds_write_b128 v%d, v[%d:%d] offset:%d' % (t0, c.v_acc+32+4*k, c.v_acc+35+4*k, 1024*k))
        if c.xch_pre: c.xch_pre(a, c)
        a('s_waitcnt lgkmcnt(0)')
        mark(a, c, 1)
        a('s_barrier')
        mark(a, c, 2)
        for k in range(8): a('ds_read_b128 v[%d:%d], v%d offset:%d' % (c.v_acc+32+4*k, c.v_acc+35+4*k, t1, 1024*k))
        n0 = len(a.lines)
        if c.xch_post: c.xch_post(a, c)
        npost = len(a.lines) - n0
        for k in range(8):
            a('s_waitcnt lgkmcnt(%d)' % min(15, 7-k+npost))
            for r in (0, 2): a('v_pk_add_f32 v[%d:%d], v[%d:%d], v[%d:%d]' % (c.v_acc+4*k+r, c.v_acc+4*k+r+1, c.v_acc+4*k+r, c.v_acc+4*k+r+1, c.v_acc+32+4*k+r, c.v_acc+33+4*k+r))
        nacc = 32
    c.TMb, c.nWf, c.nacc = TMb, nWf, nacc

def config(name, K, BM, nfull, half, BK, S, ldw, panel_stride, **kw):
    c = G()
    c.name, c.K, c.BM, c.nfull, c.half, c.BK, c.S, c.ldw, c.panel_stride = name, K, BM, nfull, half, BK, S, ldw, panel_stride
    c.xbytes = BM * BK * 2
    c.slot = c.xbytes + nfull * BK * 128 + (BK * 64 if half else 0)
    c.lds = c.slot * S
    c.sX, c.sW = 8, 12
    c.s_mt, c.s_nt, c.s_wave, c.s_col0, c.s_colh = 40, 41, 42, 43, 44
    c.s_kx, c.s_kw, c.s_slot, c.s_px, c.s_pw, c.s_ph, c.s_cnt, c.s_rh, c.s_nh = 45, 46, 47, 48, 49, 50, 51, 52, 53
    c.s_tmp = 54
    c.v_addr = 4; c.v_tmp = 2; c.v_frag = 12; c.ksplit = False; c.xform = False; c.xf = 'dot4'; c.pprio = 0; c.pre_hook2 = None
    c.noexec = False; c.fsplit = 2; c.flags = False; c.fbase = 0; c.SY = 147392; c.v_flag = 252; c.outline = None; c.w1late = False; c.cunroll = 1; c.after_first = None; c.mirror = None; c.tl = False; c.early_first = None; c.panel_tail = None; c.drain1 = False; c.sig_at = 1; c.npeel = 0; c.pre_issue = None; c.nloc = 0; c.tabsel = None; c.st0 = None; c.own0 = None; c.rpm_own = 1; c.nown = 0; c.own_hook = None; c.tabs_override = None; c.mirror_off = None; c.wait_hook = None; c.bar_hook = None; c.post_b0p = None; c.step_hook = None; c.pre_b0 = None; c.xKG = None; c.panel_sreg = None; c.boundary0 = None; c.xflags = ''; c.peel1 = False; c.vm_init = []; c.pre_b1 = None; c.post_b1 = None; c.slot0 = 0; c.boundary = None; c.first_c = None; c.post_b0 = None; c.post_b0b = None; c.first_extra = None; c.rows4 = False; c.last_reads = None; c.pre_last_bar = None; c.xch_pre = None; c.xch_post = None; c.unroll = False; c.iter_hook = None; c.acc_init = None; c.natw = False; c.early_issue = None; c.tail_issue = None; c.ptail = None; c.tail_delay = 0; c.loop_extra = None; c.loop_init = None; c.late_hook = None; c.psplit = 1; c.stamps = False; c.gen_dump = False; c.dma_flags = ''; c.KS = 1; c.rpm = 1; c.mfma_before_bar = 0; c.G = 4; c.order = 'lead'; c.lead = S-1; c.s_rot = 39; c.s_tab = 66; c.tab_base = c.lds; c.srd_hook = None; c.swap_frags = (); c.pre_hook = None
    c.no_dma = c.no_lds = c.no_mfma = False
    for k, v in kw.items(): setattr(c, k, v)
    return c
```

```python
import sys
from asmgen import Asm
import gemm, gen
from gen import *
FL = 0x80000
FL8 = 8
MS = 7
ROW = 256 << MS
XB = PHIQ
FL7 = 7 * ROW
opt.plan = 'lqowab'

UT = 0xE8000
OUT = Asm()
def rt(a, i):
    if not opt.ts: return
    r = 11 if getattr(a, 'cons', False) else 255
    a('s_memrealtime s[98:99]\ns_memtime s[100:101]\ns_waitcnt lgkmcnt(0)\nv_writelane_b32 v%d, s98, %d\nv_writelane_b32 v%d, s100, %d' % (r, i, r, 32+i))

def tile_head(a, c, xm, xn, colmul, ptrs):
    for s, o in ptrs: a('s_load_dwordx2 s[%d:%d], s[0:1], %d' % (s, s+1, o))
    c.dma_flags = opt.wflags
    c.tl = bool(opt.tl & {'qkv': 1, 'wo': 2, 'w1': 4, 'w2': 8}[c.name])
    c.flags = c.name in opt.flags; c.outline = OUT; c.noexec = opt.noexec; c.fsplit = opt.fsplit if c.name != 'wo' else 1
    c.fbase = {'qkv': 0, 'wo': 16, 'w1': 32, 'w2': 48}[c.name]
    c.w1late = c.name in opt.w1late
    c.cunroll = opt.cunroll; c.mfma_before_bar = opt.mbb
    if opt.stamp == c.name: c.stamps = True; c.gen_dump = True
    bm = 16 // xm
    a('s_and_b32 s36, s2, 7\ns_lshr_b32 s37, s2, 3')
    a('s_and_b32 s38, s36, %d\ns_lshr_b32 s36, s36, %d' % (bm-1, bm.bit_length()-1))
    a('s_and_b32 s39, s37, %d\ns_lshr_b32 s37, s37, %d' % (xm-1, xm.bit_length()-1))
    a('s_mul_i32 s38, s38, %d\ns_add_u32 s%d, s38, s39' % (xm, c.s_mt))
    a('s_mul_i32 s36, s36, %d\ns_add_u32 s%d, s36, s37' % (xn, c.s_nt))
    a('s_add_u32 s39, s39, s37\ns_and_b32 s%d, s39, %d' % (c.s_rot, c.G-1))
    a('s_mul_i32 s%d, s%d, %d' % (c.s_col0, c.s_nt, colmul))
    if c.half:
        a('s_and_b32 s36, s%d, 1\ns_cmp_eq_u32 s36, 0' % c.s_nt)
        a('s_cselect_b32 s36, 384, 0\ns_cselect_b32 s37, 0, 64')
        a('s_add_u32 s%d, s%d, s36\ns_add_u32 s%d, s%d, s37' % (c.s_colh, c.s_col0, c.s_col0, c.s_col0))

NW = FL + 0
MPT = 0xF0000
def uhead(a, c, ptrs):
    tile_head(a, c, 8, 4, 0, ptrs)
    a('s_mov_b32 s38, s%d\ns_and_b32 s36, s38, 7\ns_lshl_b32 s36, s36, 1\ns_lshr_b32 s37, s38, 3\ns_add_u32 s%d, s36, s37\ns_lshl_b32 s%d, s%d, 7' % (c.s_nt, c.s_nt, c.s_col0, c.s_nt))

def nonce(a):
    if opt.wsoff: a('s_add_u32 s6, s6, 0x%x\ns_addc_u32 s7, s7, 0' % opt.wsoff)
    a('s_load_dword s3, s[6:7], %d' % NW)
def nonce2(a):
    a('s_mul_i32 s3, s3, 0x9e3779b1\ns_add_u32 s3, s3, 0x7f4a7c15')

def psync(a, tag, sig, s_sig, s_mem, s_wait, n=16, part=None, mask=None, allw=False):
    if part in (None, 0):
        srd(a, 84, 6, FL, 10*ROW)
        gs = MS if s_mem is None else MS + 4
        a('s_lshl_b32 s88, s%d, %d\ns_add_u32 s88, s88, %d\ns_lshl_b32 s89, s%d, %d\ns_add_u32 s89, s89, %d' % (s_sig, gs, sig*ROW, s_wait, gs, sig*ROW))
        if s_mem is not None: a('s_lshl_b32 s90, s%d, %d\ns_add_u32 s88, s88, s90' % (s_mem, MS))
        a('v_lshlrev_b32 v252, %d, v1' % MS)
        a('v_mov_b32 v253, s3\ns_mov_b32 s90, 200000')
        a('s_barrier')
        rt(a, 2*sig if sig < 8 else 18)
        a('s_cmp_lg_u32 s42, 4\ns_cbranch_scc1 %s_s5' % tag)
        a('s_mov_b64 exec, 1')
        a('buffer_store_dword v253, v252, s[84:87], s88 offen sc1')
        a('s_mov_b64 exec, -1')
        a.label(tag + '_s5')
    if part == 0: return
    if not allw: a('s_cmp_lg_u32 s42, 5\ns_cbranch_scc1 %s_sx' % tag)
    if mask is None: a('s_mov_b64 exec, 0x%x' % ((1 << n) - 1))
    else:
        mask(a)
        a('s_mov_b32 exec_lo, s91\ns_mov_b32 exec_hi, 0')
    a('buffer_load_dword v253, v252, s[84:87], s89 offen sc1')
    a.label(tag + '_sp')
    a('buffer_load_dword v254, v252, s[84:87], s89 offen sc1')
    a('s_sub_u32 s90, s90, 1\ns_waitcnt vmcnt(1)\nv_cmp_ne_u32 vcc, s3, v253')
    a('s_cmp_eq_u64 vcc, 0\ns_cbranch_scc1 %s_sy' % tag)
    a('buffer_load_dword v253, v252, s[84:87], s89 offen sc1')
    a('s_waitcnt vmcnt(1)\nv_cmp_ne_u32 vcc, s3, v254')
    a('s_cmp_eq_u64 vcc, 0\ns_cbranch_scc1 %s_sy' % tag)
    a('s_cmp_lg_u32 s90, 0\ns_cbranch_scc1 %s_sp' % tag)
    a.label(tag + '_sy')
    a('s_mov_b64 exec, -1')
    if part != 2: rt(a, 2*sig+1 if sig < 8 else 19)
    a.label(tag + '_sx')
    if part != 2: a('s_barrier')

def early_sync(c, tag, sig, first, full=None):
    if not opt.esync: first = full
    def b1(a): psync(a, tag, sig, None, None, None, part=1, mask=first)
    if opt.esync: c.pre_b0 = lambda a, c, vm: psync(a, tag + 'z', sig, None, None, None, part=2, mask=full)
    return b1

def need(a, tag, t, mask):
    if mask: mask(a)
    else: a('s_mov_b32 s60, 0xffff')
    a.label('%s_p%d' % (tag, t))
    a('s_andn2_b32 s61, s60, s91\ns_cbranch_scc0 %s_y%d\ns_sub_u32 s90, s90, 1\ns_cbranch_scc1 %s_y%d' % (tag, t, tag, t))
    a('s_mov_b64 exec, 0xffff\nbuffer_load_dword v253, v252, s[84:87], s89 offen sc1\ns_waitcnt vmcnt(0)\nv_cmp_eq_u32 vcc, s3, v253\ns_mov_b64 exec, -1\ns_mov_b32 s91, vcc_lo\ns_branch %s_p%d' % (tag, t))
    a.label('%s_y%d' % (tag, t))
def prog_sync(a, c, tag, sig, n, mask):
    c.pre_issue = lambda a, c, vm, t: need(a, tag, t, mask if t < n-1 else None) if t < n else None
    a('s_mov_b32 s91, 0')
    c.pre_issue(a, c, None, 0)
    rt(a, 2*sig+1)

def chain(*fs):
    fs = [f for f in fs if f]
    def g(*x):
        for f in fs: f(*x)
    return g
BAR = lambda a, c: a('s_barrier')

def ln1_body(a, c, TB):
    SS = TB + 8192
    a('s_lshl_b32 s20, s%d, 3\ns_lshr_b32 s21, s%d, 1\ns_add_u32 s20, s20, s21\ns_and_b32 s21, s%d, 1' % (c.s_mt, c.s_nt, c.s_nt))
    a('v_lshrrev_b32 v2, 6, v0\nv_and_b32 v3, 15, v0\nv_bfe_u32 v4, v0, 4, 2')
    a('v_lshlrev_b32 v5, 11, v3\nv_lshl_add_u32 v5, v2, 8, v5\nv_lshl_add_u32 v5, v4, 4, v5')
    a('s_lshl_b32 s22, s20, 15\ns_lshl_b32 s23, s21, 10\ns_add_u32 s23, s23, s22\ns_xor_b32 s25, s23, 1024')
    a('s_waitcnt lgkmcnt(0)')
    nonce(a)
    srd(a, 8, 34, 0, 0x400000)
    a('s_barrier')
    D = 32; M = 144
    for u in range(4): a('buffer_load_dwordx4 v[%d:%d], v5, s[8:11], s23 offen offset:%d%s' % (D+4*u, D+4*u+3, 64*u, opt.xflags))
    for u in range(4): a('buffer_load_dwordx4 v[%d:%d], v5, s[8:11], s25 offen offset:%d%s' % (M+4*u, M+4*u+3, 64*u, opt.xflags))
    srd(a, 12, 6, MPT, 65536); srd(a, 28, 6, *(HF + 32768, 2048*7168 - 32768) if opt.reuse else (H1F, 0x400000))
    a('v_lshlrev_b32 v7, 4, v0\ns_lshl_b32 s24, s21, 12\nv_mov_b32 v12, 0x3f803f80')
    a('v_lshlrev_b32 v6, 5, v3\nv_add_u32 v6, %d, v6\nv_lshl_add_u32 v10, v2, 3, v6' % SS)
    for q in range(8):
        a('s_waitcnt vmcnt(%d)' % (7-q))
        for e in range(4):
            r = (D if q < 4 else M) + 4*(q % 4) + e
            a('v_dot2_f32_bf16 v%d, v%d, v12, %s' % (16+e, r, '0' if q == 0 else 'v%d' % (16+e)))
            a('v_dot2_f32_bf16 v%d, v%d, v%d, %s' % (20+e, r, r, '0' if q == 0 else 'v%d' % (20+e)))
    a('v_add_f32 v16, v16, v17\nv_add_f32 v18, v18, v19\nv_add_f32 v20, v20, v21\nv_add_f32 v22, v22, v23\nv_add_f32 v16, v16, v18\nv_add_f32 v17, v20, v22')
    xg_sum(a, [16, 17], [18, 19])
    a('ds_write_b64 v10, v[16:17]')
    def mloads():
        for p in range(4):
            for w, ch in enumerate((1, 0)):
                a('s_add_u32 s26, s24, %d' % (p*16384 + ch*8192))
                a('buffer_load_dwordx4 v[%d:%d], v7, s[12:15], s26 offen sc1' % (M+8*p+4*w, M+8*p+4*w+3))
    if opt.earlym: mloads()
    X = 48
    for i in range(16): unpack(a, X+2*i, X+2*i+1, D+i)
    a('s_waitcnt lgkmcnt(0)')
    nonce2(a)
    rt(a, 20)
    a('s_mov_b32 s27, 200000\ns_barrier')
    rt(a, 21)
    a('ds_read_b128 v[16:19], v6\nds_read_b128 v[20:23], v6 offset:16')
    if opt.earlym: a('s_branch ln1_chk')
    a.label('ln1_poll')
    mloads()
    a.label('ln1_chk')
    a('s_sub_u32 s27, s27, 1\ns_waitcnt vmcnt(0)')
    tg = [M+2*i+1 for i in range(16)]
    for op, d in (('v_min3_u32', 24), ('v_max3_u32', 25)):
        a('%s v%d, v%d, v%d, v%d' % (op, d, tg[0], tg[1], tg[2]))
        for i in range(3, 15, 2): a('%s v%d, v%d, v%d, v%d' % (op, d, d, tg[i], tg[i+1]))
        a('%s v%d, v%d, v%d, v%d' % (op, d, d, tg[15], tg[15]))
    a('v_xor_b32 v24, s3, v24\nv_xor_b32 v25, s3, v25\nv_or_b32 v24, v24, v25\nv_cmp_ne_u32 vcc, 0, v24')
    a('s_cmp_eq_u64 vcc, 0\ns_cbranch_scc1 ln1_ok\ns_cmp_lg_u32 s27, 0\ns_cbranch_scc1 ln1_poll')
    a.label('ln1_ok')
    rt(a, 22)
    if opt.ts: a('v_writelane_b32 v11, s27, 23')
    a('v_lshrrev_b32 v6, 2, v0\nv_lshlrev_b32 v6, 6, v6\nv_and_b32 v7, 3, v0\nv_lshl_add_u32 v6, v7, 3, v6\nv_add_u32 v6, %d, v6' % TB)
    for e in (0, 2, 4, 6): a('v_add_f32 v%d, v%d, v%d\nv_add_f32 v%d, v%d, v%d' % (M+e, M+e, M+8+e, M+16+e, M+16+e, M+24+e))
    for k_, e in enumerate((0, 2, 4, 6)): a('v_add_f32 v%d, v%d, v%d' % (24+k_, M+e, M+16+e))
    M = 24
    rndn(a, [M, M+1, M+2, M+3], [M+4, M+5])
    a('v_add_f32 v%d, 1.0, v%d\nv_add_f32 v%d, 1.0, v%d' % (M, M, M+1, M+1))
    rndn(a, [M, M+1], [M+4])
    a('ds_write_b64 v6, v[%d:%d]\nds_write_b64 v6, v[%d:%d] offset:32' % (M, M+1, M+2, M+3))
    a('s_waitcnt lgkmcnt(2)')
    a('v_pk_add_f32 v[16:17], v[16:17], v[18:19]\nv_pk_add_f32 v[20:21], v[20:21], v[22:23]\nv_pk_add_f32 v[16:17], v[16:17], v[20:21]')
    a('v_mul_f32 v9, 0x3a800000, v16\nv_mov_b32 v18, 0x3a800000\nv_mul_f32 v8, v9, v9\nv_fma_f32 v8, v17, v18, -v8')
    a('v_max_f32 v8, 0, v8\nv_add_f32 v8, 0x3727c5ac, v8\nv_rsq_f32 v8, v8')
    a('v_lshlrev_b32 v6, 10, v2\nv_lshl_add_u32 v6, v4, 6, v6\nv_add_u32 v6, %d, v6' % TB)
    if opt.tl & 1: a('v_lshlrev_b32 v5, 15, v2\nv_lshl_add_u32 v5, v1, 4, v5\ns_lshl_b32 s23, s21, 17\ns_lshl_b32 s22, s%d, 18\ns_add_u32 s23, s23, s22\ns_and_b32 s22, s20, 7\ns_lshl_b32 s22, s22, 11\ns_add_u32 s23, s23, s22\ns_add_u32 s22, s23, 16384' % c.s_mt)
    else:
        a('v_lshlrev_b32 v5, 12, v2\nv_lshl_add_u32 v5, v1, 4, v5\ns_lshl_b32 s23, s21, 14\ns_mul_i32 s22, s20, %d\ns_add_u32 s23, s23, s22' % (1024*(112 if opt.reuse else 32)))
    a('s_waitcnt lgkmcnt(0)\ns_barrier')
    T = 80; X = 48
    for u in range(4):
        for e in range(4): a('ds_read_b128 v[%d:%d], v6 offset:%d' % (T+16*u+4*e, T+16*u+4*e+3, 256*u+16*e))
    a('v_mul_f32 v9, -v9, v8')
    for i in range(0, 32, 2): a('v_pk_fma_f32 v[%d:%d], v[%d:%d], v[8:9], v[8:9] op_sel:[0,0,1] op_sel_hi:[1,0,1]' % (X+i, X+i+1, X+i, X+i+1))
    for u in range(4):
        a('s_waitcnt lgkmcnt(%d)' % (12-4*u))
        for e in range(0, 8, 2): a('v_pk_fma_f32 v[%d:%d], v[%d:%d], v[%d:%d], v[%d:%d]' % (X+8*u+e, X+8*u+e+1, X+8*u+e, X+8*u+e+1, T+16*u+e, T+16*u+e+1, T+16*u+8+e, T+16*u+9+e))
        for e in range(4): a('v_cvt_pk_bf16_f32 v%d, v%d, v%d' % (D+4*u+e, X+8*u+2*e, X+8*u+2*e+1))
        if opt.tl & 1: a('buffer_store_dwordx4 v[%d:%d], v5, s[28:31], s%d offen offset:%d' % (D+4*u, D+4*u+3, 23 - u//2, 1024*(u % 2)))
        else: a('buffer_store_dwordx4 v[%d:%d], v5, s[28:31], s23 offen offset:%d' % (D+4*u, D+4*u+3, 1024*u))
    a('s_waitcnt vmcnt(0)\ns_barrier')

KB, RW = 160, 176
def o_loads(a):
    srd(a, 16, 6, KVP, 0x2000000); srd(a, 20, 6, ZP, 0x200000)
    a('s_lshr_b32 s60, s42, 2\ns_lshl_b32 s61, s41, 1\ns_add_u32 s60, s60, s61\ns_and_b32 s61, s42, 3')
    a('s_lshl_b32 s62, s60, 16\ns_lshl_b32 s63, s61, 10\ns_add_u32 s62, s62, s63')
    a('s_lshl_b32 s63, s60, 12\ns_lshl_b32 s64, s61, 6\ns_add_u32 s63, s63, s64')
    a('v_lshlrev_b32 v156, 4, v1\nv_lshrrev_b32 v157, 4, v1\nv_lshlrev_b32 v157, 4, v157\nv_and_b32 v158, 15, v1\nv_lshl_add_u32 v157, v158, 8, v157')
    a('buffer_load_dwordx4 v[%d:%d], v157, s[20:23], s63 offen sc1' % (KB+8, KB+11))
    for m in range(16):
        a('s_lshl_b32 s64, s40, 1\ns_add_u32 s64, s64, %d\ns_and_b32 s64, s64, 15\ns_lshl_b32 s64, s64, 12\ns_add_u32 s64, s64, s62' % m)
        a('buffer_load_dwordx4 v[%d:%d], v156, s[16:19], s64 offen sc1' % (RW+4*m, RW+4*m+3))
    return ['oz'] + [('ok', m) for m in range(16)]
def o_reduce(a, vm):
    S = 244
    a('v_mov_b32 v%d, 0\nv_mov_b32 v%d, 0\nv_mov_b32 v%d, 0\nv_mov_b32 v%d, 0' % (S, S+1, S+4, S+5))
    a('v_bfe_u32 v157, v1, 2, 2\nv_lshrrev_b32 v158, 4, v1\nv_cmp_eq_u32 vcc, v157, v158')
    a('v_and_b32 v157, 1, v1\nv_lshlrev_b32 v157, 4, v157\nv_mov_b32 v158, 0x3f80\nv_lshlrev_b32 v157, v157, v158\nv_cndmask_b32 v157, 0, v157, vcc')
    a('v_and_b32 v158, 2, v1\nv_cmp_eq_u32 vcc, 0, v158\nv_cndmask_b32 v%d, 0, v157, vcc\nv_cndmask_b32 v%d, v157, v%d, vcc' % (S+2, S+3, S))
    vm.wait('oz')
    dpp_sum(a, [KB+8+e for e in range(4)], DPP16)
    for m in range(16):
        vm.wait(('ok', m))
        for h in range(2):
            d = KB + 4*h; A_ = S + 2 - 2*h
            a('v_mfma_f32_16x16x32_bf16 v[%d:%d], v[%d:%d], v[%d:%d], %s' % (d, d+3, A_, A_+3, RW+4*m, RW+4*m+3, '0' if m == 0 else 'v[%d:%d]' % (d, d+3)))
    a('s_lshr_b32 s60, s42, 2\ns_mul_i32 s60, s60, 6144\ns_bfe_u32 s61, s42, 0x10001\ns_lshl_b32 s61, s61, 10\ns_add_u32 s60, s60, s61\ns_and_b32 s61, s42, 1')
    a('s_lshl_b32 s62, s61, 11\ns_add_u32 s62, s62, s60\ns_lshl_b32 s61, s61, 3\ns_add_u32 s60, s60, s61')
    a('v_add_u32 v157, s60, v156\nv_add_u32 v158, s62, v156')
    for e in range(2): a('v_cvt_pk_bf16_f32 v%d, v%d, v%d' % (KB+12+e, KB+8+2*e, KB+9+2*e))
    a('ds_write_b64 v157, v[%d:%d] offset:4096' % (KB+12, KB+13))
    for e in range(4): a('v_cvt_pk_bf16_f32 v%d, v%d, v%d' % (RW+e, KB+2*e, KB+2*e+1))
    a('ds_write_b128 v158, v[%d:%d]' % (RW, RW+3))
    a('s_waitcnt lgkmcnt(0)\ns_barrier')
def o_compute(a, PHI, half):
    AF = RW; R = AF + 24
    KG = 112 if opt.reuse else 32
    srd(a, 20, 6, *(HF, 2048*7168) if opt.reuse else (OF, 0x400000))
    a('s_and_b32 s60, s42, 1\ns_mul_i32 s60, s60, 6144\nv_add_u32 v157, s60, v156')
    for t in range(3):
        for gam in range(2): a('ds_read_b128 v[%d:%d], v157 offset:%d' % (AF+(t*2+gam)*4, AF+(t*2+gam)*4+3, (t*2+gam)*1024))
    a('s_bfe_u32 s60, s42, 0x10001\ns_lshl_b32 s61, s93, 1\ns_add_u32 s60, s60, s61\ns_mul_i32 s60, s60, %d\ns_lshl_b32 s61, s58, 10\ns_add_u32 s60, s60, s61' % (4096*KG))
    if opt.tl & 2:
        KG = 4
        a('s_bfe_u32 s60, s42, 0x10001\ns_lshl_b32 s60, s60, 14\ns_lshl_b32 s61, s93, 18\ns_add_u32 s60, s60, s61\ns_lshr_b32 s61, s58, 2\ns_lshl_b32 s61, s61, 15\ns_add_u32 s60, s60, s61\ns_and_b32 s61, s58, 3\ns_lshl_b32 s61, s61, 10\ns_add_u32 s60, s60, s61')
    if half: a('s_add_u32 s60, s60, %d' % (2048*KG))
    a('s_waitcnt lgkmcnt(0)')
    for gam in range(2):
        for t in (2, 0, 1):
            for i in range(2):
                d = R + (i*3+t)*4; A_ = AF+(t*2+gam)*4; B_ = PHI[(i, gam)]
                a('v_mfma_f32_16x16x32_bf16 v[%d:%d], v[%d:%d], v[%d:%d], %s' % (d, d+3, A_, A_+3, B_, B_+3, '0' if gam == 0 else 'v[%d:%d]' % (d, d+3)))
    dens = [R+(i*3+2)*4 for i in range(2)]
    for d in dens: a('v_add_f32 v%d, 0x358637bd, v%d' % (d, d))
    for d in dens: a('v_rcp_f32 v%d, v%d' % (d, d))
    for i in range(2):
        xs = list(range(R+i*12, R+i*12+8))
        for x in xs[::2]: a('v_pk_mul_f32 v[%d:%d], v[%d:%d], v[%d:%d] op_sel_hi:[1,0]' % (x, x+1, x, x+1, dens[i], dens[i]+1))
        for e in range(4): a('v_cvt_pk_bf16_f32 v%d, v%d, v%d' % (KB+4*i+e, xs[2*e], xs[2*e+1]))
        a('buffer_store_dwordx4 v[%d:%d], v156, s[20:23], s60 offen' % (KB+4*i, KB+4*i+3))
        a('s_add_u32 s60, s60, %d' % (1024*KG))
    a('s_waitcnt vmcnt(0)')

def feat2(a, QF, P, E, MX, W, sL, sink, mid=None, midpos=1, fill=None):
    for i in range(2):
        for ft in range(2):
            t = P + i*8 + ft*4
            a('v_mfma_f32_16x16x32_bf16 v[%d:%d], v[%d:%d], v[%d:%d], 0' % (t, t+3, W+ft*4, W+ft*4+3, QF+4*i, QF+4*i+3))
    fill = list(fill or [])
    def pop(n):
        for _ in range(n):
            if fill: a(fill.pop(0))
    pop(6)
    for rnd in range(4):
        for q in range(4):
            i = q % 2; n = '-' if q >= 2 else ''; b = P + 8*i
            if rnd == 0: a('v_max3_f32 v%d, %sv%d, %sv%d, %sv%d' % (MX+q, n, b, n, b+1, n, b+2))
            elif rnd < 3: a('v_max3_f32 v%d, v%d, %sv%d, %sv%d' % (MX+q, MX+q, n, b+1+2*rnd, n, b+2+2*rnd))
            else: a('v_max_f32 v%d, %sv%d, v%d' % (MX+q, n, b+7, MX+q))
    for st in bfly(a, 'v_max_f32', [MX+q for q in range(4)]):
        pop(2)
        for l in st: a(l)
    for q in range(4): a('v_mul_f32 v%d, s%d, v%d' % (MX+q, sL, MX+q))
    for i in range(2):
        for e in range(8): a('v_fma_f32 v%d, v%d, s%d, -v%d' % (E+8*i+e, P+8*i+e, sL, MX+i))
        for e in range(8): a('v_fma_f32 v%d, -v%d, s%d, -v%d' % (P+8*i+e, P+8*i+e, sL, MX+2+i))
    if mid and midpos == 0: mid()
    for i in range(16): a('v_exp_f32 v%d, v%d\nv_exp_f32 v%d, v%d' % (E+i, E+i, P+i, P+i))
    if mid and midpos == 1: mid()
    B_ = [E, E+8, P, P+8]
    for q in range(4): a('v_add_f32 v%d, v%d, v%d' % (MX+q, B_[q], B_[q]+1))
    for e in range(2, 8):
        for q in range(4): a('v_add_f32 v%d, v%d, v%d' % (MX+q, MX+q, B_[q]+e))
    for st in bfly(a, 'v_add_f32', [MX+q for q in range(4)]):
        pop(2)
        for l in st: a(l)
    pop(99)
    if mid and midpos == 2: mid()
    for q in range(4): a('v_rcp_f32 v%d, v%d' % (MX+q, MX+q))
    for q in range(4):
        for e in range(8): a('v_mul_f32 v%d, v%d, v%d' % (B_[q]+e, B_[q]+e, MX+q))
        for e in range(4): a('v_cvt_pk_bf16_f32 v%d, v%d, v%d' % (B_[q]+e, B_[q]+2*e, B_[q]+2*e+1))
        sink(q % 2, q // 2, B_[q])

def img_addr(a, WA, s_w, IMG):
    a('v_and_b32 v2, 15, v1\nv_lshrrev_b32 v3, 4, v1')
    hrow(a, 6, 2, 5)
    a('v_xor_b32 v6, v6, v3\nv_lshlrev_b32 v2, 7, v2')
    a('s_lshl_b32 s61, s%d, 13\ns_add_u32 s61, s61, %d\nv_add_u32 v2, s61, v2' % (s_w, IMG))
    for u in range(4): a('v_xor_b32 v5, %d, v6\nv_lshl_add_u32 v%d, v5, 3, v2' % (4*u, WA+u))
def hrow(a, dst, row, t):
    a('v_lshrrev_b32 v%d, 1, v%d\nv_and_b32 v%d, 3, v%d\nv_lshlrev_b32 v%d, 2, v%d' % (dst, row, dst, dst, dst, dst))
    a('v_and_b32 v%d, 1, v%d\nv_or_b32 v%d, v%d, v%d' % (t, row, dst, dst, t))
    a('v_lshrrev_b32 v%d, 2, v%d\nv_and_b32 v%d, 2, v%d\nv_or_b32 v%d, v%d, v%d' % (t, row, t, t, dst, dst, t))

def phase0(a, GS):
    V = 8; T = 48; CT = GS + 2048
    a('s_and_b32 s60, s2, 7\ns_lshl_b32 s60, s60, 3\ns_bfe_u32 s61, s2, 0x30003\ns_add_u32 s60, s60, s61\ns_lshr_b32 s61, s2, 6')
    a('s_lshl_b32 s62, s61, 9\ns_mul_i32 s63, s61, %d\ns_lshl_b32 s64, s60, 6\ns_add_u32 s63, s63, s64' % (256*12288))
    a('v_and_b32 v2, 255, v0\nv_mov_b32 v5, %d\nv_mov_b32 v6, 0\nv_mov_b32 v7, 0\nds_write_b32 v5, v6\nv_mov_b32 v3, 147392\nds_write_b64 v3, v[6:7]\ns_waitcnt lgkmcnt(0)' % CT)
    srd(a, 20, 74, 0, 2048); srd(a, 24, 76, 0, 1024*12288)
    vm = gemm.VM(a)
    gemv_issue(a, 4, 2, V, 20, 24, 62, 63, vm, R=4)
    a('s_barrier')
    nonce(a)
    def cpf():
        a('s_lshr_b32 s62, s2, 3\ns_cmp_eq_u32 s42, 7\ns_cselect_b32 s62, s62, 8\ns_min_u32 s62, s62, 8')
        code_pf(a, 'ph0', 'ph0_done', 'code_end', 62, 8, 250, 1, 64)
        vm.issue('cpf')
    if not opt.cpflate: cpf()
    srd(a, 16, 6, MPT, 65536)
    gemv_math(a, 4, V, T, vm, 58, R=4)
    a('v_lshrrev_b32 v3, 4, v2\nv_lshlrev_b32 v3, 7, v3\nv_and_b32 v4, 3, v1\nv_lshl_add_u32 v3, v4, 5, v3\nv_add_u32 v3, %d, v3' % GS)
    a('ds_write_b128 v3, v[%d:%d]\nds_write_b128 v3, v[%d:%d] offset:16' % (T+8, T+11, T+12, T+15))
    a('v_and_b32 v4, 31, v1\nv_lshrrev_b32 v3, 5, v1\nv_lshlrev_b32 v3, 10, v3\nv_lshl_add_u32 v3, v4, 2, v3\nv_add_u32 v3, %d, v3' % GS)
    a('s_lshl_b32 s60, s60, 8\ns_lshl_b32 s61, s61, 14\ns_add_u32 s60, s60, s61\nv_lshlrev_b32 v4, 3, v4\nv_mov_b32 v6, 1\ns_waitcnt lgkmcnt(0)')
    nonce2(a)
    a('s_mov_b64 exec, 1\nds_add_rtn_u32 v6, v5, v6\ns_mov_b64 exec, -1\ns_waitcnt lgkmcnt(0)')
    a('v_readfirstlane_b32 s59, v6\ns_cmp_lg_u32 s59, 3\ns_cbranch_scc1 ph0_nl')
    for p in range(8): a('ds_read_b32 v%d, v3 offset:%d' % (V+p, 128*p))
    a('v_mov_b32 v%d, s3\ns_waitcnt lgkmcnt(0)' % (V+9))
    for s_ in (4, 2):
        for p in range(s_): a('v_add_f32 v%d, v%d, v%d' % (V+p, V+p, V+p+s_))
    a('v_add_f32 v%d, v%d, v%d\nv_add_f32 v%d, v%d, v%d' % (V+8, V, V+1, V+2, V, V+1))
    a('v_permlane32_swap_b32 v%d, v%d\nv_add_f32 v%d, v%d, v%d' % (V+8, V+2, V+8, V+8, V+2))
    a('s_mov_b64 exec, 0xffffffff\nbuffer_store_dwordx2 v[%d:%d], v4, s[16:19], s60 offen\ns_mov_b64 exec, -1' % (V+8, V+9))
    a.label('ph0_nl')
    rt(a, 0)
    if opt.cpflate: cpf()
    srd(a, 16, 6, ZP, FL + 10*ROW - ZP)
    a('s_lshl_b32 s62, s2, 9\ns_lshl_b32 s63, s2, 11\ns_add_u32 s63, s63, %d\ns_cmp_eq_u32 s42, 4\ns_cselect_b32 s62, s62, s63\ns_cselect_b32 s63, 3, 15\ns_cmp_gt_u32 s42, 5\ns_cselect_b32 s62, 0x7000000, s62' % (FL - ZP))
    a('v_min_u32 v249, s63, v1\nv_lshlrev_b32 v249, 7, v249')
    a('buffer_load_dword v251, v249, s[16:19], s62 offen')
    a('s_lshl_b32 s62, s2, 8')
    for q in range(4): a('s_add_u32 s63, s62, %d\ns_load_dword s59, s[32:33], s63' % (64*q))
    a('s_and_b32 s62, s2, 31\ns_lshl_b32 s62, s62, 6\ns_load_dword s59, s[30:31], s62')
    a('s_min_u32 s62, s2, 111\ns_lshl_b32 s62, s62, 6\ns_load_dword s59, s[34:35], s62')
    n0, n1 = opt.spf0
    if n0 + n1:
        a('s_lshl_b32 s62, s2, 2\ns_add_u32 s62, s62, s42\ns_sub_u32 s62, s62, 4\ns_mul_i32 s62, s62, %d' % (64*(n0+n1)))
        if opt.qmir: a('s_lshr_b32 s62, s62, 1\ns_and_b32 s62, s62, -128\ns_and_b32 s63, s42, 1\ns_mul_i32 s63, s63, %d\ns_add_u32 s62, s62, s63' % (512*6144))
        a('s_add_u32 s64, s4, s62\ns_addc_u32 s65, s5, 0')
    for q in range(n0): a('s_load_dword s59, s[64:65], %d' % (64*q))
    a('s_barrier')
    for q in range(n0, n0+n1): a('s_load_dword s59, s[64:65], %d' % (64*q))
    a.label('ph0_done')

def ph_qkv(P, C, st):
    c = gemm.config('qkv', 1024, 128, 3, False, 64, 3, 6144, 2048, swap_frags=(4, 5), natw=True, tail_delay=opt.td0)
    WPH = c.lds; FLG = WPH + 4096
    EB = c.slot
    IMG = EB; VB = EB + 32768; QB = VB + 16384; GV = QB + 16384
    s_hd = 58; sL = 60
    tile_head(P, c, 8, 4, 128, [(74, P_C), (76, P_WMOD), (6, P_WS), (4, P_WQKV), (32, P_WPHI), (78, P_WO), (34, P_B1), (30, P_B2)])
    phase0(P, 2*c.slot + 4096)
    c.srd_hook = lambda a: [srd(a, *x) for x in [(8, 6) + ((HF + 32768, 2048*7168 - 32768) if opt.reuse else (H1F, 0x400000)), (12, 4, 0, 1024*6144)]]
    if opt.reuse: c.xKG = 112
    def boundary0(a, c, vm):
        if not opt.wlate & 1: a('s_barrier')
        a('s_barrier')
        psync(a, 'f1', 1, c.s_mt, c.s_nt, c.s_mt, part=0)
    def boundary(a, c, vm):
        if not opt.wlate & 1: boundary0(a, c, vm)
        if opt.prog1: prog_sync(a, c, 'f1', 1, opt.prog1, lambda a: a('s_lshr_b32 s60, s%d, %d\ns_lshl_b32 s60, 0x5555, s60' % (c.s_kx, c.xsh+3)))
        else: early_sync(c, 'f1', 1, None)(a)
    c.boundary = boundary
    if opt.wlate & 1: c.boundary0 = boundary0
    if opt.xsc1: c.xflags = ' sc1'
    def early_issue(a, c, vm):
        V = c.p_vfree
        srd(a, 16, 32, 0, 65536)
        a('v_lshrrev_b32 v%d, 3, v1\nv_and_b32 v%d, 2, v%d\nv_xor_b32 v%d, v1, v%d\nv_lshlrev_b32 v%d, 4, v%d' % (V, V, V, V, V, V, V))
        a('s_sub_u32 s59, s%d, 4\ns_lshl_b32 s59, s59, 10\ns_add_u32 m0, s59, %d\ns_lshl_b32 s61, s%d, 12\ns_add_u32 s59, s59, s61' % (c.s_wave, WPH, c.s_nt))
        a('buffer_load_dwordx4 v%d, s[16:19], s59 offen lds' % V)
        vm.issue('wphi')
    def tail_issue(a, c, vm):
        V = (c.p_vfree + 3)//4*4
        srd(a, 20, 74, 0, 2048); srd(a, 24, 76, 0, 1024*12288)
        a('s_lshr_b32 s61, s2, 6\ns_lshl_b32 s62, s61, 9\ns_mul_i32 s63, s61, %d' % (256*12288))
        a('s_and_b32 s64, s2, 63\ns_lshl_b32 s65, s64, 7\ns_add_u32 s63, s63, s65\ns_add_u32 s63, s63, 4096')
        a('v_and_b32 v%d, 255, v0' % (V+38))
        srd(a, 16, 34, 0, 7168)
        a('s_min_u32 s59, s2, 64\ns_mul_i32 s59, s59, 448\nv_lshlrev_b32 v249, 1, v%d\nbuffer_load_ushort v248, v249, s[16:19], s59 offen' % (V+38))
        vm.issue('b1')
        gemv_issue(a, 8, V+38, V, 20, 24, 62, 63, vm)
        for t_ in prefetch(a, c, 3 & ~opt.pfo): vm.issue(t_)
    def prefetch(a, c, which):
        V = (c.p_vfree + 3)//4*4
        tags = []
        if opt.pf2 and which & 1:
            srd(a, 28, 78, 0, 1024*2048)
            a('v_lshlrev_b32 v%d, 11, v%d\nv_lshl_add_u32 v%d, v%d, 7, v%d' % (V+39, c.p_vrow, V+39, c.p_vch, V+39))
            a('s_lshr_b32 s62, s2, 3\ns_lshl_b32 s62, s62, 2\ns_add_u32 s62, s62, s%d\ns_sub_u32 s62, s62, 4\ns_lshl_b32 s62, s62, 14' % c.s_wave)
            a('s_bfe_u32 s63, s2, 0x%x\ns_lshl_b32 s63, s63, 10\ns_add_u32 s62, s62, s63' % (0x10001 if opt.umap else 0x10002))
            a('buffer_load_dword v%d, v%d, s[28:31], s62 offen' % (251, V+39))
            tags.append('pf')
        if opt.pf5 and which & 2:
            a('s_load_dwordx2 s[30:31], s[0:1], %d' % P_W1)
            a('v_lshrrev_b32 v%d, 4, v1\nv_mul_u32_u24 v%d, 7168, v%d\nv_and_b32 v%d, 15, v1\nv_min_u32 v%d, 13, v%d\nv_lshl_add_u32 v%d, v%d, 7, v%d' % (V+39, V+39, V+39, 250, 250, 250, V+39, 250, V+39))
            a('s_lshr_b32 s62, s2, 3\ns_mul_i32 s62, s62, %d\ns_sub_u32 s63, s42, 4\ns_lshl_b32 s63, s63, 2\ns_add_u32 s62, s62, s63\ns_and_b32 s63, s2, 1\ns_lshl_b32 s63, s63, 9\ns_add_u32 s62, s62, s63\ns_mul_i32 s62, s62, 7168' % opt.pf5)
            a('s_bfe_u32 s63, s2, 0x20001\ns_mul_i32 s63, s63, 1792\ns_add_u32 s62, s62, s63\ns_waitcnt lgkmcnt(0)')
            srd(a, 28, 30, 0, 1024*7168)
            a('buffer_load_dword v%d, v%d, s[28:31], s62 offen' % (251, V+39))
            tags.append('pf')
        return tags

    PHI = {}
    def ptail(a, c, vm):
        V = (c.p_vfree + 3)//4*4
        QF = V + 40; P_ = QF + 20; E = P_ + 16; MX = E + 16; W = MX + 4; T = W + 8
        assert T + 24 <= 156 and P_ >= 48
        srd(a, 16, 6, UT, 32768)
        a('s_min_u32 s59, s2, 64\ns_lshl_b32 s59, s59, 11\nv_lshlrev_b32 v249, 1, v249\nv_mov_b32 v247, 0')
        vm.wait('b1')
        a('v_lshlrev_b32 v248, 16, v248\nbuffer_store_dword v247, v249, s[16:19], s59 offen sc1\nbuffer_store_dword v248, v249, s[16:19], s59 offen offset:1024 sc1')
        vm.issue('ut', 2)
        srd(a, 24, 6, MP2, 65536)
        a('s_mov_b32 s%d, 0x%x' % (sL, LOG2E))
        a('s_and_b32 s%d, s%d, 1' % (c.s_nh, c.s_wave))
        wphi_read(a, W, c.s_nh, WPH, 2, 3)
        a('s_lshl_b32 s59, s%d, 1\ns_add_u32 s%d, s59, s%d' % (c.s_nt, s_hd, c.s_nh))
        a('s_lshl_b32 s61, s61, 14\ns_lshl_b32 s64, s64, 8\ns_add_u32 s64, s64, s61')
        a('s_sub_u32 s61, s%d, 4\ns_lshl_b32 s62, s61, 12\ns_add_u32 s62, s62, %d' % (c.s_wave, QB))
        a('v_lshl_add_u32 v4, v1, 4, s62\ns_sub_u32 s62, s42, 4')
        WA = QF + 16
        img_addr(a, WA, 62, IMG)
        if opt.eprio: a('s_setprio %d' % opt.eprio)
        a('s_barrier')
        for i in range(4): a('ds_read_b128 v[%d:%d], v4 offset:%d' % (QF+4*i, QF+4*i+3, 1024*i))
        a('s_waitcnt lgkmcnt(2)')
        def sinkk(i, sg, B):
            for ft in range(2): a('ds_write_b64 v%d, v[%d:%d] offset:%d' % (WA+2*sg+ft, B+2*ft, B+2*ft+1, (2+i)*2048))
        feat2(a, QF, P_, E, MX, W, sL, sinkk)
        a('s_setprio 0\ns_waitcnt lgkmcnt(0)\ns_barrier')
        def sink(i, sg, B): PHI[(i, sg)] = B
        def mid():
            vm.wait('ut')
            psync(a, 'f2', 2, c.s_nt, c.s_mt, c.s_nt, part=0)
        feat2(a, QF+8, P_, E, MX, W, sL, sink, mid, opt.midpos)
        if opt.midpos == 3: mid()
        rt(a, 14)
        gemv_math(a, 8, V, T, vm, 59)
        a('v_lshrrev_b32 v2, 4, v%d\nv_lshlrev_b32 v2, 8, v2\nv_and_b32 v5, 7, v1\nv_lshl_add_u32 v2, v5, 5, v2\nv_add_u32 v2, %d, v2' % (V+38, GV))
        a('ds_write_b128 v2, v[%d:%d]\nds_write_b128 v2, v[%d:%d] offset:16' % (T+8, T+11, T+12, T+15))
        a('v_mov_b32 v5, %d\nv_mov_b32 v6, 1\ns_waitcnt lgkmcnt(0)' % (FLG+16))
        a('s_mov_b64 exec, 1\nds_add_rtn_u32 v6, v5, v6\ns_mov_b64 exec, -1\ns_waitcnt lgkmcnt(0)')
        a('v_readfirstlane_b32 s59, v6\ns_cmp_lg_u32 s59, 3\ns_cbranch_scc1 qkv_gvx')
        a('v_lshlrev_b32 v5, 2, v1\nv_add_u32 v6, %d, v5' % GV)
        for p in range(16): a('ds_read_b32 v%d, v6 offset:%d' % (T+p, 256*p))
        a('s_and_b32 s59, s2, 63\ns_lshl_b32 s59, s59, 2\ns_lshr_b32 s61, s2, 6\ns_add_u32 s59, s59, s61\ns_lshl_b32 s59, s59, %d\ns_add_u32 s59, s59, %d' % (MS, FL7))
        a('s_waitcnt lgkmcnt(0)')
        for s_ in (8, 4, 2, 1):
            for p in range(s_): a('v_add_f32 v%d, v%d, v%d' % (T+p, T+p, T+p+s_))
        a('buffer_store_dword v%d, v5, s[24:27], s64 offen sc1' % T)
        a('v_mov_b32 v6, s3\ns_waitcnt vmcnt(0)\ns_mov_b64 exec, 1')
        a('buffer_store_dword v6, v252, s[84:87], s59 offen sc1')
        a('s_mov_b64 exec, -1')
        a.label('qkv_gvx')
        rt(a, 15)
        psync(a, 'f2', 2, c.s_nt, c.s_mt, c.s_nt, part=1)
        a('s_mov_b32 s93, s%d\ns_mov_b32 s97, s%d' % (c.s_mt, c.s_nt))
        a('s_or_b32 s59, s2, s42\ns_cmp_lg_u32 s59, 4\ns_cbranch_scc1 qkv_nn\ns_mov_b32 s59, %d\nv_mov_b32 v253, s3\ns_mov_b64 exec, 1' % (NW - FL))
        a('buffer_store_dword v253, v252, s[84:87], s59 offen sc1\ns_mov_b64 exec, -1')
        a.label('qkv_nn')
        st['vm_init'] = vm.ops[vm.done+1:] + o_loads(a) + prefetch(a, c, opt.pfo)
    c.first_c = lambda c, j: '0'
    c.unroll = opt.unroll
    if opt.qmir:
        P('s_lshr_b32 s38, s%d, 3' % c.s_mt); c.mirror = 38
    c.early_issue, c.tail_issue, c.ptail = early_issue, tail_issue, ptail
    gemm.producer(P, c, None)
    if opt.ts and c.flags: P('v_writelane_b32 v255, s70, %d' % (24 + c.fbase//16))
    st['PHI'] = PHI
    a = C
    tile_head(a, c, 8, 4, 128, [(6, P_WS), (34, P_X)])
    ln1_body(a, c, 2*c.slot)
    rt(a, 1)
    for x in [(24, 6, KVP, 0x2000000), (28, 6, ZP, 0x200000)]: srd(a, *x)
    def zero_flags(a, c):
        a('v_lshlrev_b32 v2, 2, v1\nv_add_u32 v2, %d, v2\nv_mov_b32 v3, 0\nds_write_b32 v2, v3\ns_waitcnt lgkmcnt(0)' % FLG)
    def addrs(a, c):
        WA = c.v_free + 44; RA = WA + 4
        b = Asm()
        img_addr(b, WA, c.s_wave, IMG)
        b('v_lshrrev_b32 v2, 2, v1\nv_and_b32 v3, 3, v1')
        hrow(b, 6, 2, 5)
        b('v_xor_b32 v6, v6, v3\nv_lshlrev_b32 v2, 7, v2')
        b('s_lshl_b32 s61, s%d, 13\ns_add_u32 s61, s61, %d\nv_add_u32 v2, s61, v2' % (c.s_nh, IMG))
        b('s_lshl_b32 s61, s%d, 3\nv_xor_b32 v6, s61, v6' % c.s_rh)
        for u in range(2): b('v_xor_b32 v5, %d, v6\nv_lshl_add_u32 v%d, v5, 3, v2' % (4*u, RA+u))
        import re
        a.lines += [re.sub(r'\bv([56])\b', lambda m: 'v%d' % (int(m.group(1)) + 9), l) for l in b.lines]
    c.pre_hook2 = chain(addrs, zero_flags, None if opt.prog1 else BAR)
    c.post_b0 = lambda a, c: rt(a, 2)
    gemm.consumer(a, c)
    if c.stamps: gemm.dump_stamps(a, c)
    if opt.ts and c.flags: a('v_writelane_b32 v11, s70, %d' % (24 + c.fbase//16))
    rt(a, 3)
    a('s_lshl_b32 s%d, s%d, 1\ns_add_u32 s%d, s%d, s%d' % (s_hd, c.s_nt, s_hd, s_hd, c.s_nh))
    wphi_read(a, c.v_free, c.s_nh, WPH, 2, 3)
    W = c.v_free
    ACC = lambda j, i, r=0: c.v_acc + (j*4+i)*4 + r
    QF = 12; HB = 28; P_ = W + 8; E = P_ + 16; MX = E + 16; WA = MX + 4; RA = WA + 4; QQ = RA + 2 + 2
    a('s_mov_b32 s%d, 0x%x' % (sL, LOG2E))
    a('v_lshlrev_b32 v4, 4, v1')
    a('s_lshl_b32 s61, s%d, 12\ns_add_u32 s61, s61, %d' % (c.s_wave, QB))
    a('v_add_u32 v3, s61, v4')
    def pack(dst, j0, i):
        for h in range(2):
            for e in range(2): a('v_cvt_pk_bf16_f32 v%d, v%d, v%d' % (dst+2*h+e, ACC(j0+h, i, 2*e), ACC(j0+h, i, 2*e+1)))
    for n_, (j0, i) in enumerate(((2, 2), (2, 3), (0, 2), (0, 3))):
        pack(HB+4*n_, j0, i)
        a('ds_write_b128 v3, v[%d:%d] offset:%d' % (HB+4*n_, HB+4*n_+3, 1024*n_))
    pack(QF, 2, 0); pack(QF+4, 2, 1)
    a('s_waitcnt lgkmcnt(0)\ns_barrier')
    rt(a, 28)
    def sink(i, sg, B):
        for ft in range(2): a('ds_write_b64 v%d, v[%d:%d] offset:%d' % (WA+2*sg+ft, B+2*ft, B+2*ft+1, i*2048))
    keep = a.lines; a.lines = []
    pack(QQ, 0, 0); pack(QQ+4, 0, 1)
    a('s_lshl_b32 s61, s%d, 1\ns_add_u32 s61, s61, s%d\ns_lshl_b32 s61, s61, 12\ns_add_u32 s61, s61, %d' % (c.s_nh, c.s_rh, VB))
    a('v_add_u32 v3, s61, v4')
    for gam in range(2):
        for dt in range(2):
            q = c.v_acc + (gam*2+dt)*4
            for h in range(2):
                for e in range(2): a('v_cvt_pk_bf16_f32 v%d, v%d, v%d' % (q+2*h+e, ACC(4+dt, 2*gam+h, 2*e), ACC(4+dt, 2*gam+h, 2*e+1)))
            a('ds_write_b128 v3, v[%d:%d] offset:%d' % (q, q+3, (gam*2+dt)*1024))
    for e in range(4): a('v_mov_b32 v%d, 0x3f803f80' % (76+e))
    fl = [l.strip() for l in a.lines]; a.lines = keep
    feat2(a, QF, P_, E, MX, W, sL, sink, fill=fl)
    rt(a, 29)
    a('s_waitcnt lgkmcnt(0)\ns_barrier')
    rt(a, 30)
    AF = 12; VF = 44; ONE = 76; KV = ACC(2, 0)
    a('s_lshl_b32 s61, s%d, 13\ns_add_u32 s61, s61, %d\nv_add_u32 v3, s61, v4' % (c.s_nh, VB))
    for gp in range(4):
        rhp, gam = gp // 2, gp % 2
        for ftl in range(2):
            for t in range(2):
                q = AF + (ftl*4+gp)*4 + 2*t
                a('ds_read_b64_tr_b16 v[%d:%d], v%d offset:%d' % (q, q+1, RA+ftl, rhp*16384 + (gam*32 + t*16)*128))
        for dt in range(2):
            q = VF + (dt*4+gp)*4
            a('ds_read_b128 v[%d:%d], v3 offset:%d' % (q, q+3, (gp*2+dt)*1024))
    for gp in range(4):
        a('s_waitcnt lgkmcnt(%d)' % min(12, 6*(3-gp)))
        for ftl in range(2):
            for t in range(3):
                d = KV + (ftl*3+t)*4; A_ = AF + (ftl*4+gp)*4
                B_ = VF + (t*4+gp)*4 if t < 2 else ONE
                a('v_mfma_f32_16x16x32_bf16 v[%d:%d], v[%d:%d], v[%d:%d], %s' % (d, d+3, A_, A_+3, B_, B_+3, '0' if gp == 0 else 'v[%d:%d]' % (d, d+3)))
    a('s_lshl_b32 s61, s%d, 4\ns_add_u32 s61, s61, s%d' % (s_hd, c.s_mt))
    a('s_lshl_b32 s63, s61, 12\ns_lshl_b32 s64, s%d, 11\ns_add_u32 s63, s63, s64' % c.s_rh)
    a('s_lshl_b32 s61, s61, 8\ns_lshl_b32 s64, s%d, 7\ns_add_u32 s61, s61, s64' % c.s_rh)
    a('v_and_b32 v2, 15, v1\nv_cmp_eq_u32 vcc, 0, v2')
    for ftl in range(2):
        for e in range(4): a('v_cvt_pk_bf16_f32 v%d, v%d, v%d' % (AF+4*ftl+e, KV+(e//2)*12+4*ftl+2*(e%2), KV+(e//2)*12+4*ftl+2*(e%2)+1))
        a('buffer_store_dwordx4 v[%d:%d], v4, s[24:27], s63 offen offset:%d' % (AF+4*ftl, AF+4*ftl+3, ftl*1024))
    a('s_and_saveexec_b64 s[64:65], vcc')
    for ftl in range(2):
        d = KV + (ftl*3+2)*4
        a('buffer_store_dwordx4 v[%d:%d], v1, s[28:31], s61 offen offset:%d' % (d, d+3, ftl*64))
    a('s_mov_b64 exec, s[64:65]')
    rt(a, 4)
    a('s_waitcnt vmcnt(0)\ns_barrier')
    CPHI = {}
    def sinkq(i, sg, B): CPHI[(i, sg)] = B
    feat2(a, QQ, 12, 28, 44, W, sL, sinkq)
    a('s_mov_b32 s93, s%d\ns_barrier' % c.s_mt)
    rt(a, 5)
    vm = gemm.VM(a); vm.ops = o_loads(a)
    o_reduce(a, vm)
    o_compute(a, CPHI, 0)
    a('s_barrier')
    rt(a, 6)
    return c

def poll7(a, tag, offs, nw=4, wave=5):
    if wave is not None: a('s_cmp_lg_u32 s42, %d\ns_cbranch_scc1 %s_x' % (wave, tag))
    a('s_mov_b32 s90, 200000')
    a.label(tag + '_p')
    for q, so in enumerate(offs): a('s_load_dwordx%d s[%d:%d], s[6:7], s%d glc' % (nw, 68+nw*q, 68+nw*q+nw-1, so))
    a('s_sub_u32 s90, s90, 1\ns_waitcnt lgkmcnt(0)')
    n = nw*len(offs)
    for q in range(n): a('s_xor_b32 s%d, s%d, s3' % (68+q, 68+q))
    for q in range(1, n): a('s_or_b32 s68, s68, s%d' % (68+q))
    a('s_cbranch_scc0 %s_x' % tag)
    a('s_cmp_lg_u32 s90, 0\ns_cbranch_scc1 %s_p' % tag)
    a.label(tag + '_x')

def gates(a, c, chunks, bias, SC, V):
    nv = len(chunks)
    srd(a, 20, 6, MP2, 65536)
    a('v_lshrrev_b32 v%d, 4, v1\nv_lshlrev_b32 v%d, 14, v%d\nv_and_b32 v%d, 15, v1\nv_lshl_add_u32 v%d, v%d, 4, v%d' % (V+1, V+1, V+1, V+2, V+1, V+2, V+1))
    for q, ch in enumerate(chunks):
        a('s_lshl_b32 s61, s%d, 8\ns_add_u32 s61, s61, %d' % (c.s_nt, (ch-2)*4096))
        a('buffer_load_dwordx4 v[%d:%d], v%d, s[20:23], s61 offen sc1' % (V+4+4*q, V+7+4*q, V+1))
    if bias:
        srd(a, 20, bias, 0, 2048)
        a('v_lshlrev_b32 v%d, 3, v%d\ns_lshl_b32 s61, s%d, 7' % (V+3, V+2, c.s_nt))
        a('buffer_load_dwordx2 v[%d:%d], v%d, s[20:23], s61 offen' % (V+16, V+17, V+3))
    a('v_lshlrev_b32 v%d, 4, v%d\nv_add_u32 v%d, %d, v%d\ns_waitcnt vmcnt(0)' % (V+2, V+2, V+2, SC, V+2))
    xs = list(range(V+4, V+4+4*nv))
    xg_sum(a, xs, list(range(V+20, V+20+4*nv)))
    rndn(a, xs, list(range(V+20, V+26)))
    for q, ch in enumerate(chunks):
        if ch == 4:
            for e in range(4): a('v_add_f32 v%d, 1.0, v%d' % (V+4+4*q+e, V+4+4*q+e))
            rndn(a, list(range(V+4+4*q, V+8+4*q)), [V+20, V+21])
    if bias:
        for e in range(2): unpack(a, V+8+2*e, V+9+2*e, V+16+e)
        for e in range(4): a('v_mul_f32 v%d, v%d, v%d' % (V+8+e, V+8+e, V+4+e))
    for q in range(nv + (1 if bias else 0)): a('ds_write_b128 v%d, v[%d:%d] offset:%d' % (V+2, V+4+4*q, V+7+4*q, 256*q))
    a('s_waitcnt lgkmcnt(0)')

def res_phase(c, xsrd, fl=''):
    XT = 147456
    def tail(a, c, vm):
        V = c.p_vfree
        srd(a, 16, *xsrd)
        a('v_xor_b32 v%d, v%d, v%d\nv_lshlrev_b32 v%d, 4, v%d\nv_lshl_add_u32 v%d, v%d, 11, v%d' % (V, c.p_vrow, c.p_vch, V, V, V, c.p_vrow, V))
        a('s_sub_u32 s59, s%d, 4\ns_lshl_b32 s60, s%d, 2\ns_add_u32 s60, s60, s59\ns_lshl_b32 s60, s60, 16\ns_lshl_b32 s61, s%d, 7\ns_add_u32 s60, s60, s61' % (c.s_wave, c.s_mt, c.s_nt))
        a('s_lshl_b32 s59, s59, 12\ns_add_u32 s59, s59, %d' % XT)
        for i in range(4):
            a('s_add_u32 m0, s59, %d' % (1024*i))
            a('buffer_load_dwordx4 v%d, s[16:19], s60 offen%s lds' % (V, fl))
            a('s_add_u32 s60, s60, 16384')
        vm.issue('op', 4)
    XA = lambda c: c.v_free + 16 + 48
    c.XA = XA
    def rd(a, c):
        GA = c.v_free + 16
        a('v_lshrrev_b32 v3, 4, v1\nv_lshlrev_b32 v3, 4, v3\nv_add_u32 v3, %d, v3' % XT)
        for q in range(2):
            for j in range(4): a('ds_read_b128 v[%d:%d], v3 offset:%d' % (GA+16*q+4*j, GA+16*q+4*j+3, 256*q + 64*j))
    c.gate_rd = rd
    def pre(a, c):
        a('v_and_b32 v2, 7, v1\nv_lshrrev_b32 v3, 5, v1\nv_xor_b32 v2, v2, v3\nv_lshlrev_b32 v2, 4, v2\nv_bfe_u32 v3, v1, 4, 1\nv_lshl_add_u32 v2, v3, 3, v2')
        a('v_and_b32 v3, 15, v1\nv_lshl_add_u32 v2, v3, 7, v2\ns_lshl_b32 s61, s%d, 12\ns_add_u32 s61, s61, %d\nv_add_u32 v%d, s61, v2' % (c.s_wave, XT, XA(c)))
        for j in range(1, 4): a('v_xor_b32 v%d, %d, v%d' % (XA(c)+j, 32*j, XA(c)))
    def last_reads(c):
        XR = c.v_free
        return ['ds_read_b64 v[%d:%d], v%d offset:%d' % (XR+8*i+2*j, XR+8*i+2*j+1, XA(c)+j, 2048*i) for i in range(2) for j in range(4)]
    c.pre_hook, c.last_reads, c.pre_last_bar = pre, last_reads, (lambda a, c, vm: vm.wait('op'))
    c.first_c = lambda c, j: '0'
    return tail

P2 = lambda x: 'v[%d:%d]' % (x, x+1)
def res_out(a, c, sOut, bias=False):
    XR = c.v_free; GA = XR + 16
    ACC = lambda j, i, r=0: c.v_acc + (i*4+j)*4 + r
    a('s_lshl_b32 s58, s%d, 2\ns_add_u32 s58, s58, s%d' % (c.s_mt, c.s_wave))
    a('s_lshl_b32 s60, s58, 16\ns_lshl_b32 s61, s%d, 7\ns_add_u32 s60, s60, s61' % c.s_nt)
    U = 12; PK = 44
    a('v_and_b32 v2, 15, v1\nv_lshlrev_b32 v2, 11, v2\nv_bfe_u32 v3, v1, 4, 1\nv_lshl_add_u32 v2, v3, 5, v2\nv_lshrrev_b32 v3, 5, v1\nv_lshl_add_u32 v2, v3, 4, v2')
    a('s_add_u32 s61, s60, 32768')
    a('s_waitcnt lgkmcnt(0)')
    def part(i, store=True):
        for j in range(4):
            for e in range(2): unpack(a, U+16*i+4*j+2*e, U+16*i+4*j+2*e+1, XR+8*i+2*j+e)
        if bias:
            for j in range(4):
                for r in (0, 2): a('v_pk_add_f32 %s, %s, %s' % (P2(U+16*i+4*j+r), P2(U+16*i+4*j+r), P2(GA+16+4*j+r)))
        for j in range(4):
            for r in (0, 2): a('v_pk_fma_f32 %s, %s, %s, %s' % (P2(ACC(j,i,r)), P2(ACC(j,i,r)), P2(GA+4*j+r), P2(U+16*i+4*j+r)))
    def out(i):
        for j in range(4):
            for e in range(2): a('v_cvt_pk_bf16_f32 v%d, v%d, v%d' % (PK+8*i+2*j+e, ACC(j,i,2*e), ACC(j,i,2*e+1)))
        if sOut is None:
            for j in range(4): a('ds_write_b64 v%d, v[%d:%d] offset:%d' % (c.XA(c)+j, PK+8*i+2*j, PK+8*i+2*j+1, 2048*i))
            return
        for jp in range(2):
            for e in range(2): a('v_permlane16_swap_b32 v%d, v%d' % (PK+8*i+4*jp+e, PK+8*i+4*jp+2+e))
        for jp in range(2):
            a('buffer_store_dwordx4 v[%d:%d], v2, s[%d:%d], s%d offen offset:%d' % (PK+8*i+4*jp, PK+8*i+4*jp+3, sOut, sOut+3, 60+i, 64*jp))
    return part, out

def ph_wo(P, C, st):
    c = gemm.config('wo', 1024, 128, 1, False, opt.woBK, opt.woS, 2048, 128, rows4=True, KS=2, rpm=opt.rpm, slot0=1, unroll=True)
    c.order = opt.wo_order; c.G = opt.wo_G
    whead = uhead if opt.umap else (lambda a, c, p: tile_head(a, c, 4, 8, 128, p))
    whead(P, c, [(4, P_WO), (32, P_X), (34, P_W1)])
    c.srd_hook = lambda a: [srd(a, *x) for x in [(8, 6) + ((HF, 2048*7168) if opt.reuse else (OF, 0x400000)), (12, 4, 0, 1024*2048)]]
    if opt.reuse: c.xKG = 112
    c.vm_init = st['vm_init']
    if opt.xsc1: c.xflags = ' sc1'
    def boundary(a, c, vm):
        rt(a, 16)
        o_reduce(a, vm)
        rt(a, 17)
        o_compute(a, st['PHI'], 1)
        psync(a, 'f3', 3, 93, 97, c.s_mt, part=0)
        if opt.pf3:
            V = 40
            srd(a, 28, 34, 0, 1024*7168)
            a('v_lshrrev_b32 v%d, 4, v1\nv_mul_u32_u24 v%d, 7168, v%d\nv_and_b32 v%d, 15, v1\nv_min_u32 v%d, 13, v%d\nv_lshl_add_u32 v%d, v%d, 7, v%d' % (V, V, V, V+1, V+1, V+1, V, V+1, V))
            a('s_lshr_b32 s61, s2, 3\ns_lshl_b32 s61, s61, 2\ns_add_u32 s61, s61, s42\ns_sub_u32 s61, s61, 4\ns_mul_i32 s61, s61, %d' % (4*7168))
            a('s_bfe_u32 s62, s2, 0x20001\ns_mul_i32 s62, s62, 1792\ns_add_u32 s61, s61, s62')
            for q in range(opt.pf3):
                a('buffer_load_dword v251, v%d, s[28:31], s61 offen\ns_add_u32 s61, s61, %d' % (V, 512*7168))
            vm.issue('pf', opt.pf3)
        a('s_cmp_lg_u32 s42, 6\ns_cbranch_scc1 wo7_x')
        w1_tau(a)
        a('v_lshrrev_b32 v40, 2, v1\nv_cmp_gt_u32 vcc, 2, v40\nv_mov_b32 v41, s65\nv_mov_b32 v42, s%d\nv_cndmask_b32 v41, v41, v42, vcc\nv_lshlrev_b32 v41, 2, v41' % c.s_nt)
        a('v_lshlrev_b32 v40, 2, v40\nv_mov_b32 v42, 0x2120\nv_lshrrev_b32 v40, v40, v42\nv_and_b32 v40, 3, v40\nv_lshl_add_u32 v41, v40, 6, v41\nv_and_b32 v40, 3, v1\nv_add_u32 v41, v40, v41\nv_lshlrev_b32 v41, %d, v41' % MS)
        a('s_mov_b32 s61, %d\ns_mov_b64 exec, 0xffff' % FL7)
        a.label('wo7_p')
        a('buffer_load_dword v40, v41, s[84:87], s61 offen sc1\ns_sub_u32 s90, s90, 1\ns_waitcnt vmcnt(0)\nv_cmp_ne_u32 vcc, s3, v40')
        a('s_cmp_eq_u64 vcc, 0\ns_cbranch_scc1 wo7_y\ns_cmp_lg_u32 s90, 0\ns_cbranch_scc1 wo7_p')
        a.label('wo7_y')
        a('s_mov_b64 exec, -1')
        gates(a, c, [2, 4], None, 147456, 160)
        a.label('wo7_x')
        if opt.prog3: prog_sync(a, c, 'f3', 3, opt.prog3, lambda a: a('s_lshr_b32 s60, s%d, %d\ns_lshl_b32 s60, 3, s60' % (c.s_kx, c.xsh-1)))
        else: early_sync(c, 'f3', 3, None)(a)
    c.boundary = boundary
    c.tail_issue = res_phase(c, (32, 0, 0x400000))
    gemm.producer(P, c, None)
    if opt.ts and c.flags: P('v_writelane_b32 v255, s70, %d' % (24 + c.fbase//16))
    assert c.vm.done == len(c.vm.ops) - 1
    P('s_mov_b32 s93, s%d\ns_mov_b32 s97, s%d' % (c.s_mt, c.s_nt))
    a = C
    whead(a, c, [])
    if not opt.umap: srd(a, 24, 6, X1, 0x400000)
    for x in [(28, 6, ST2, 0x40000), (16, 6, H2F, 0x400000)]: srd(a, *x)
    c.pre_hook2 = None if opt.prog3 else chain(BAR, c.gate_rd)
    c.post_b0 = chain(lambda a, c: rt(a, 7), c.gate_rd if opt.prog3 else None)
    gemm.consumer(a, c)
    if c.stamps: gemm.dump_stamps(a, c)
    if opt.ts and c.flags: a('v_writelane_b32 v11, s70, %d' % (24 + c.fbase//16))
    rt(a, 8)
    ACC = lambda j, i, r=0: c.v_acc + (i*4+j)*4 + r
    part, out = res_out(a, c, None)
    part(0); part(1)
    Q = 60
    for i in range(2):
        xs = [ACC(j,i,r) for j in range(4) for r in (0, 2)]
        S0, Q0 = 64+8*i, 68+8*i
        for k in range(2): a('v_pk_add_f32 %s, %s, %s' % (P2(S0+2*k), P2(xs[k]), P2(xs[2+k])))
        for k in range(2): a('v_pk_mul_f32 %s, %s, %s' % (P2(Q0+2*k), P2(xs[k]), P2(xs[k])))
        for m in (4, 6):
            for k in range(2): a('v_pk_add_f32 %s, %s, %s' % (P2(S0+2*k), P2(S0+2*k), P2(xs[m+k])))
        for m in (2, 4, 6):
            for k in range(2): a('v_pk_fma_f32 %s, %s, %s, %s' % (P2(Q0+2*k), P2(xs[m+k]), P2(xs[m+k]), P2(Q0+2*k)))
        a('v_pk_add_f32 %s, %s, %s\nv_pk_add_f32 %s, %s, %s' % (P2(S0), P2(S0), P2(S0+2), P2(Q0), P2(Q0), P2(Q0+2)))
        a('v_add_f32 v%d, v%d, v%d\nv_add_f32 v%d, v%d, v%d' % (Q+i, S0, S0+1, Q+2+i, Q0, Q0+1))
    for s_ in bfly(a, 'v_add_f32', [Q, Q+1, Q+2, Q+3])[:4]:
        for l in s_: a(l)
    a('v_and_b32 v4, 15, v1\nv_lshrrev_b32 v3, 5, v1\nv_lshl_add_u32 v4, v3, 4, v4\nv_lshlrev_b32 v4, 3, v4\nv_bfe_u32 v3, v1, 4, 1\nv_lshl_add_u32 v4, v3, 2, v4')
    a('s_lshl_b32 s63, s58, 8\ns_lshl_b32 s62, s%d, 14\ns_add_u32 s62, s63, s62' % c.s_nt)
    a('buffer_store_dword v%d, v4, s[28:31], s62 offen sc1' % Q)
    a('v_and_b32 v4, 15, v1\nv_lshlrev_b32 v4, 4, v4\nv_bfe_u32 v3, v1, 4, 1\nv_lshl_add_u32 v4, v3, 9, v4\nv_lshrrev_b32 v3, 5, v1\nv_lshl_add_u32 v4, v3, 8, v4')
    a('s_lshl_b32 s62, s58, 16\ns_lshl_b32 s63, s%d, 11\ns_add_u32 s62, s62, s63\ns_add_u32 s63, s62, 32768' % c.s_nt)
    if opt.tl & 4: a('s_lshl_b32 s62, s%d, 18\ns_lshl_b32 s63, s%d, 14\ns_add_u32 s62, s62, s63\ns_lshl_b32 s63, s42, 12\ns_add_u32 s62, s62, s63\ns_add_u32 s63, s62, 2048' % (c.s_mt, c.s_nt))
    A2 = c.v_free + 32; PK = 88; U = 12
    for i in range(2):
        for j in range(4):
            for r in (0, 2): a('v_pk_mul_f32 %s, %s, %s' % (P2(U+16*i+4*j+r), P2(ACC(j,i,r)), P2(A2+4*j+r)))
        for j in range(4):
            for e in range(2): a('v_cvt_pk_bf16_f32 v%d, v%d, v%d' % (PK+8*i+2*j+e, U+16*i+4*j+2*e, U+16*i+4*j+2*e+1))
        for jp in range(2):
            for e in range(2): a('v_permlane16_swap_b32 v%d, v%d' % (PK+8*i+4*jp+e, PK+8*i+4*jp+2+e))
        for jp in range(2):
            a('buffer_store_dwordx4 v[%d:%d], v4, s[16:19], s%d offen offset:%d' % (PK+8*i+4*jp, PK+8*i+4*jp+3, 62+i, 1024*jp))
    if opt.umap: out(0); out(1)
    rt(a, 9)
    a('s_waitcnt vmcnt(0)\ns_barrier')
    if not opt.umap:
        PK = 44
        a('s_lshl_b32 s61, s42, 12\ns_add_u32 s61, s61, 147456\nv_add_u32 v5, s61, v4')
        for i in range(2):
            for j in range(4):
                for e in range(2): a('v_cvt_pk_bf16_f32 v%d, v%d, v%d' % (PK+8*i+2*j+e, ACC(j,i,2*e), ACC(j,i,2*e+1)))
            for jp in range(2):
                for e in range(2): a('v_permlane16_swap_b32 v%d, v%d' % (PK+8*i+4*jp+e, PK+8*i+4*jp+2+e))
            for jp in range(2):
                if opt.x1p: a('ds_write_b128 v5, v[%d:%d] offset:%d' % (PK+8*i+4*jp, PK+8*i+4*jp+3, 2048*i + 1024*jp))
                else: a('buffer_store_dwordx4 v[%d:%d], v4, s[24:27], s%d offen offset:%d' % (PK+8*i+4*jp, PK+8*i+4*jp+3, 62+i, 1024*jp))
    rt(a, 10)
    return c

def w1_tau(a):
    a('s_lshr_b32 s61, s2, 3\ns_lshr_b32 s62, s61, 3\ns_add_u32 s62, s62, s61\ns_and_b32 s62, s62, 3')
    a('s_cmp_eq_u32 s62, 0\ns_cselect_b32 s63, 4, s62\ns_lshl_b32 s64, s62, 2\ns_lshr_b32 s64, 0x1431, s64\ns_and_b32 s64, s64, 15')
    a('s_add_u32 s65, s62, 1\ns_and_b32 s65, s65, 3\ns_add_u32 s62, s63, 3\ns_bitcmp1_b32 s61, 2\ns_cselect_b32 s64, s63, s64\ns_cselect_b32 s65, s62, s65')
    a('s_and_b32 s61, s2, 1\ns_lshl_b32 s61, s61, 3\ns_add_u32 s65, s65, s61')

def ph_w1(P, C, st):
    c = gemm.config('w1', 1024, 128, 3, True, 64, 3, 7168, 128, natw=True, tail_delay=opt.td1)
    BT = c.lds
    tile_head(P, c, 8, 4, 448, [(4, P_W1), (34, P_W2)])
    c.srd_hook = lambda a: [srd(a, *x) for x in [(8, 6, H2F, 0x400000), (12, 4, 0, 1024*7168)]]
    if opt.xsc1: c.xflags = ' sc1'
    XE = BT; RS = XE + 2048; UTL = RS + 1024; UTL2 = UTL + 2048
    tau = w1_tau
    tau(P)
    P('s_add_u32 s92, s64, 1\ns_lshr_b32 s38, s%d, 3' % c.s_mt)
    c.mirror = 38
    def boundary0(a, c, vm):
        psync(a, 'f5', 5, 93, 97, c.s_mt, part=0)
        V = (c.p_vfree + 3)//4*4
        srd(a, 20, 6, MP2, 65536); srd(a, 24, 6, ST2, 0x40000); srd(a, 16, 6, UT, 32768)
        a('v_lshrrev_b32 v%d, 4, v1\nv_lshlrev_b32 v%d, 14, v%d\nv_and_b32 v%d, 15, v1\nv_lshl_add_u32 v%d, v%d, 4, v%d' % (V+1, V+1, V+1, V+2, V+1, V+2, V+1))
        for q, ch in enumerate((4, 3)):
            a('s_lshl_b32 s61, s65, 8\ns_add_u32 s61, s61, %d' % ((ch-2)*4096))
            a('buffer_load_dwordx4 v[%d:%d], v%d, s[20:23], s61 offen sc1' % (V+4+4*q, V+7+4*q, V+1))
        vm.issue('xe', 2)
    def boundary(a, c, vm):
        vm.wait('xe')
        if opt.pf6: tail_issue(a, c, vm, True)
        pre_b0(a, c, vm)
        if opt.prog5: prog_sync(a, c, 'f5', 5, opt.prog5, lambda a: a('s_lshr_b32 s60, s%d, %d\ns_lshl_b32 s60, 1, s60' % (c.s_kx, c.xsh)))
        else: early_sync(c, 'f5', 5, None)(a)
    c.boundary0, c.boundary = boundary0, boundary
    def pre_b0(a, c, vm):
        V = (c.p_vfree + 3)//4*4
        xs = list(range(V+4, V+12))
        for e in range(4): a('v_mov_b32 v%d, 0' % (V+20+e))
        a('v_lshlrev_b32 v%d, 4, v1\nv_add_u32 v%d, %d, v%d' % (V+3, V+3, XE, V+3))
        a('ds_write_b128 v%d, v[%d:%d]\nds_write_b128 v%d, v[%d:%d] offset:1024' % (V+3, V+20, V+23, V+3, V+20, V+23))
        xg_sum(a, xs, list(range(V+12, V+20)))
        rndn(a, xs[:4], [V+12, V+13])
        for e in range(4): a('v_add_f32 v%d, 1.0, v%d' % (V+4+e, V+4+e))
        for e in range(4): a('v_cvt_pk_bf16_f32 v%d, v%d, v%d' % (V+12+e, V+4+2*e, V+5+2*e))
        a('v_lshrrev_b32 v%d, 1, v%d\nv_lshlrev_b32 v%d, 8, v%d\nv_and_b32 v%d, 1, v%d\nv_lshl_add_u32 v%d, v%d, 3, v%d\nv_add_u32 v%d, %d, v%d' % (V+3, V+2, V+3, V+3, V+2, V+2, V+3, V+2, V+3, V+3, XE, V+3))
        a('ds_write_b64 v%d, v[%d:%d]\nds_write_b64 v%d, v[%d:%d] offset:16' % (V+3, V+12, V+13, V+3, V+14, V+15))
        a('s_waitcnt lgkmcnt(0)')
    def iter_hook(a, c, vm, k):
        V = (c.p_vfree + 3)//4*4 + 48
        if k == opt.x1at and opt.x1p:
            srd(a, 28, 6, X1, 0x400000)
            a('s_sub_u32 s60, s42, 4\ns_lshl_b32 s61, s60, 12\ns_add_u32 s61, s61, 147456\nv_lshl_add_u32 v%d, v1, 4, s61\nv_lshlrev_b32 v%d, 4, v1' % (V+4, V+5))
            for q in range(4): a('ds_read_b128 v[%d:%d], v%d offset:%d' % (V+8+4*q, V+11+4*q, V+4, 1024*q))
            a('s_lshl_b32 s61, s93, 2\ns_add_u32 s60, s60, s61\ns_lshl_b32 s60, s60, 16\ns_lshl_b32 s61, s97, 11\ns_add_u32 s60, s60, s61\ns_add_u32 s61, s60, 32768\ns_waitcnt lgkmcnt(0)')
            if opt.tl & 4: a('s_lshl_b32 s60, s93, 4\ns_add_u32 s60, s60, s97\ns_lshl_b32 s60, s60, 2\ns_add_u32 s60, s60, s42\ns_sub_u32 s60, s60, 4\ns_lshl_b32 s60, s60, 12\ns_add_u32 s61, s60, 2048')
            for q in range(4): a('buffer_store_dwordx4 v[%d:%d], v%d, s[28:31], s%d offen offset:%d' % (V+8+4*q, V+11+4*q, V+5, 60 + q//2, 1024*(q % 2)))
            vm.issue('x1', 4)
        V = (c.p_vfree + 3)//4*4 + 24
        if k == opt.ut_at - 2:
            a('s_lshl_b32 s60, s%d, %d\ns_add_u32 s60, s60, %d\nv_lshlrev_b32 v%d, 5, v1\nbuffer_load_dword v%d, v%d, s[84:87], s60 offen sc1' % (c.s_nt, MS+4, 4*ROW, V+23, V+22, V+23))
            vm.issue('f9')
        if k == opt.ut_at:
            vm.wait('f9')
            a('s_mov_b32 s90, 200000')
            a.label('w19_p')
            a('v_cmp_ne_u32 vcc, s3, v%d\ns_cmp_eq_u64 vcc, 0\ns_cbranch_scc1 w19_y' % (V+22))
            a('buffer_load_dword v%d, v%d, s[84:87], s60 offen sc1\ns_sub_u32 s90, s90, 1\ns_waitcnt vmcnt(0)\ns_cmp_lg_u32 s90, 0\ns_cbranch_scc1 w19_p' % (V+22, V+23))
            a.label('w19_y')
        if k == opt.ut_at:
            a('v_lshlrev_b32 v%d, 4, v1\ns_lshl_b32 s60, s%d, 11\ns_mov_b32 m0, %d' % (V, c.s_nt, UTL2))
            a('buffer_load_dwordx4 v%d, s[16:19], s60 offen sc1 lds\nbuffer_load_dwordx4 v%d, s[16:19], s60 offen offset:1024 sc1 lds' % (V, V))
            a('v_and_b32 v%d, 15, v1\nv_lshlrev_b32 v%d, 4, v%d\nv_lshrrev_b32 v%d, 4, v1\nv_lshl_add_u32 v%d, v%d, 14, v%d' % (V, V, V, V+1, V+1, V+1, V))
            a('s_lshl_b32 s60, s%d, 2\ns_add_u32 s60, s60, s42\ns_sub_u32 s60, s60, 4\ns_lshl_b32 s60, s60, 8' % c.s_mt)
            for q in range(4):
                a('buffer_load_dwordx4 v[%d:%d], v%d, s[24:27], s60 offen sc1\ns_add_u32 s60, s60, 65536' % (V+4+4*q, V+7+4*q, V+1))
            vm.issue('st', 6)
    def bar_hook(a, c, vm, k):
        V = (c.p_vfree + 3)//4*4 + 48
        if k == (opt.x1at + 3 if opt.x1p else 1) and not opt.umap:
            a('s_cmp_lg_u32 s42, 4\ns_cbranch_scc1 w1_nx\ns_lshl_b32 s61, s93, 4\ns_add_u32 s61, s61, s97\ns_lshl_b32 s61, s61, %d\ns_add_u32 s61, s61, %d\nv_mov_b32 v253, s3\ns_mov_b64 exec, 1' % (MS, 9*ROW))
            a('buffer_store_dword v253, v252, s[84:87], s61 offen sc1\ns_mov_b64 exec, -1')
            a.label('w1_nx')
        if k == 1:
            a('s_lshl_b32 s95, s%d, %d\ns_add_u32 s95, s95, %d\ns_lshl_b32 s94, s%d, %d\ns_add_u32 s95, s95, s94\nv_mov_b32 v253, s3' % (c.s_nt, MS+4, 4*ROW, c.s_mt, MS))
            a('s_sub_u32 s94, s42, 4\ns_lshl_b32 s94, s94, 9\nv_lshl_add_u32 v%d, v1, 2, s94\nv_add_u32 v%d, %d, v%d\ns_lshl_b32 s94, s%d, 11' % (V, V+1, UTL, V, c.s_nt))
            a('s_add_u32 s96, s92, 1\ns_sub_u32 s60, s42, 4\ns_lshl_b32 s60, s60, 5\ns_add_u32 s95, s95, s60')
        if 2 <= k <= 5:
            a('s_cmp_lg_u32 s92, %d\ns_cbranch_scc1 w1_np%d' % (k, k))
            a('ds_read_b32 v%d, v%d\nds_read_b32 v%d, v%d offset:256\ns_waitcnt lgkmcnt(0)' % (V+2, V+1, V+3, V+1))
            a('buffer_atomic_add_f32 v%d, v%d, s[16:19], s94 offen\nbuffer_atomic_add_f32 v%d, v%d, s[16:19], s94 offen offset:256' % (V+2, V, V+3, V))
            a.label('w1_np%d' % k)
        if 4 <= k <= 7:
            a('s_cmp_lg_u32 s96, %d\ns_cbranch_scc1 w1_ns%d\ns_mov_b64 exec, 1' % (k-1, k))
            a('buffer_store_dword v253, v252, s[84:87], s95 offen sc1\ns_mov_b64 exec, -1')
            a.label('w1_ns%d' % k)
    def ptail(a, c, vm):
        V = (c.p_vfree + 3)//4*4 + 24
        b = V+4
        vm.wait('st')
        for st_ in (8, 4):
            for e in range(0, st_, 2): a('v_pk_add_f32 %s, %s, %s' % (P2(b+e), P2(b+e), P2(b+e+st_)))
        xg_sum(a, [b, b+1, b+2, b+3], [b+4, b+5, b+6, b+7])
        a('v_mov_b32 v%d, 0x3a800000' % (b+8))
        for h in (0, 2):
            a('v_mul_f32 v%d, v%d, v%d\nv_mul_f32 v%d, v%d, v%d\nv_fma_f32 v%d, v%d, v%d, -v%d' % (b+5+h, b+h, b+8, b+4+h, b+5+h, b+5+h, b+4+h, b+1+h, b+8, b+4+h))
            a('v_max_f32 v%d, 0, v%d\nv_add_f32 v%d, 0x3727c5ac, v%d\nv_rsq_f32 v%d, v%d\nv_mul_f32 v%d, -v%d, v%d' % (b+4+h, b+4+h, b+4+h, b+4+h, b+4+h, b+4+h, b+5+h, b+5+h, b+4+h))
        a('s_sub_u32 s60, s42, 4\ns_lshl_b32 s60, s60, 8\ns_add_u32 s60, s60, %d\nv_add_u32 v%d, s60, v%d' % (RS, V, V))
        a('ds_write_b128 v%d, v[%d:%d]\ns_waitcnt lgkmcnt(0)' % (V, b+4, b+7))
    c.iter_hook, c.bar_hook = iter_hook, bar_hook
    if opt.ptail:
        c.ptail = lambda a, c, vm: (ptail(a, c, vm), a('s_barrier'))
        st['w1_ptail'] = lambda a, vm: a('s_barrier')
    else: st['w1_ptail'] = lambda a, vm: (ptail(a, c, vm), a('s_barrier'))
    def tail_issue(a, c, vm, early=False):
        V = c.p_vfree
        if opt.pf4 not in (1, 3): return
        srd(a, 28, 34, 0, 3584*2048)
        a('v_lshlrev_b32 v%d, 11, v%d\nv_lshl_add_u32 v%d, v%d, 7, v%d' % (V, c.p_vrow, V, c.p_vch, V))
        a('s_bfe_u32 s62, s2, 0x10002\ns_lshl_b32 s62, s62, 1\ns_and_b32 s63, s2, 1\ns_add_u32 s62, s62, s63\ns_mul_i32 s62, s62, 896\ns_lshr_b32 s61, s2, 3\ns_mul_i32 s61, s61, 28\ns_add_u32 s62, s62, s61')
        a('s_sub_u32 s61, s42, 4\ns_lshl_b32 s61, s61, 3\ns_add_u32 s62, s62, s61\ns_lshl_b32 s62, s62, 11\ns_bfe_u32 s63, s2, 0x10001\ns_lshl_b32 s63, s63, 10\ns_add_u32 s62, s62, s63')
        if opt.pf6: a('s_mov_b64 exec, 0x%x' % ((1 << opt.pf6) - 1) if early else 's_lshl_b64 exec, -1, %d' % opt.pf6)
        a('buffer_load_dword v251, v%d, s[28:31], s62 offen\ns_mov_b64 exec, -1' % V)
        vm.issue('pf')
    c.tail_issue = tail_issue
    c.unroll = True
    gemm.producer(P, c, None)
    if opt.ts and c.flags: P('v_writelane_b32 v255, s70, %d' % (24 + c.fbase//16))
    P('s_mov_b32 s93, s%d\ns_mov_b32 s97, s%d' % (c.s_mt, c.s_nt))
    st['vm_init'] = c.vm.ops[c.vm.done+1:]
    a = C
    tile_head(a, c, 8, 4, 448, [])
    srd(a, 24, 6, HF, 2048*7168)
    ACC = lambda j, i, r=0: (c.v_acc + (j*4+i)*4 + r) if j < 6 else (c.v_acc + 96 + ((j-6)*2+i)*4 + r)
    tau(a)
    def pre(a, c):
        a('s_lshl_b32 s58, s%d, 6\ns_add_u32 s58, s58, s%d' % (c.s_nh, c.s_col0))
        a('s_mul_i32 s59, s%d, 448\ns_sub_u32 s60, s58, s59\ns_sub_u32 s59, s%d, s59\ns_lshl_b32 s60, s60, 1\ns_lshl_b32 s59, s59, 1' % (c.s_nt, c.s_colh))
        a('s_add_u32 s61, s60, %d\nv_lshl_add_u32 v2, v1, 2, s61\ns_add_u32 s61, s59, %d\nv_lshl_add_u32 v3, v1, 2, s61' % (UTL, UTL))
        a('v_lshlrev_b32 v10, 4, v1\nv_add_u32 v10, %d, v10' % XE)
    nlab = [0]
    a('s_sub_u32 s64, s64, 1')
    c.hook_stages = 4
    c.drain1 = not (opt.umap or opt.x1p)
    def step_hook(a, c, step, wr, xe):
        UA = c.v_free
        nlab[0] += 1
        a('s_cmp_lg_u32 s64, 0\ns_cbranch_scc1 w1_xs%d' % nlab[0])
        a('ds_read_b128 v[%d:%d], v10 offset:%d\ns_waitcnt lgkmcnt(0)' % (xe, xe+3, 1024*step))
        for j in range(8): a('v_mfma_f32_16x16x32_bf16 v[%d:%d], v[%d:%d], v[%d:%d], %s' % (UA+4*j, UA+4*j+3, xe, xe+3, wr(j), wr(j)+3, '0' if step == 0 else 'v[%d:%d]' % (UA+4*j, UA+4*j+3)))
        if step == 1:
            a('s_mov_b64 exec, 0xffff')
            for j in range(8):
                o = ((j//2)*128 + (j % 2)*32)*2 if j < 6 else (j-6)*64
                for e in range(2): a('ds_write_b32 v%d, v%d offset:%d' % (2 if j < 6 else 3, UA+4*j+e, o + 1024*e))
            a('s_mov_b64 exec, -1\ns_waitcnt lgkmcnt(0)')
        a.label('w1_xs%d' % nlab[0])
        if step == 1: a('s_sub_u32 s64, s64, 1')
    c.pre_hook, c.post_b0, c.pre_hook2, c.step_hook = pre, (lambda a, c: rt(a, 11)), (None if opt.prog5 else BAR), step_hook
    c.first_c = lambda c, j: '0'
    def panel_tail(a, c, ms0, AD, wfr, delta):
        RR = c.v_free; TM = RR + 8; AB = TM + 16; UT_ = 60
        addrs = [AD, [AB+i for i in range(6)]]
        amap = lambda st_, v: addrs[st_][AD.index(v)]
        steps = [(p, st_, sub) for p in range(4) for st_ in range(2) for sub in range(2)]
        def rds(n):
            p, st_, sub = steps[n]; B = 12 + 24*(n % 2); r = []
            for u in range(2):
                v, base, ss, ts = wfr[2*p+u]
                r += ['ds_read_b64_tr_b16 v[%d:%d], v%d offset:%d' % (B+16+4*u+2*t, B+17+4*u+2*t, amap(st_, v), base + sub*ss + t*ts) for t in range(2)]
            xs = ['ds_read_b128 v[%d:%d], v%d offset:%d' % (B+4*i, B+4*i+3, addrs[st_][1 if i >= 2 else 0], (i*2+sub)*1024) for i in range(4 if p < 3 else 2)]
            return r[:2] + xs + r[2:]
        def mms(n):
            p, st_, sub = steps[n]; B = 12 + 24*(n % 2)
            return ['v_mfma_f32_16x16x32_bf16 v[%d:%d], v[%d:%d], v[%d:%d], v[%d:%d]' % (ACC(2*p+u, i), ACC(2*p+u, i)+3, B+16+4*u, B+19+4*u, B+4*i, B+4*i+3, ACC(2*p+u, i), ACC(2*p+u, i)+3) for u in range(2) for i in range(4 if p < 3 else 2)]
        def utr(p):
            U = UT_ + 16*(p % 2); o = p*256 if p < 3 else 0
            return ['ds_read_b128 v[%d:%d], v%d offset:%d' % (U+8*w+4*u, U+8*w+4*u+3, 2 if p < 3 else 3, o + 64*u + 1024*w) for w in range(2) for u in range(2)]
        def epi(p):
            U = UT_ + 16*(p % 2); r = []
            for i in range(4 if p < 3 else 2):
                xs = [ACC(2*p+u, i, q) for u in range(2) for q in range(4)]; T = TM + 8*(i % 2)
                r += ['v_pk_fma_f32 %s, %s, %s, %s op_sel:[0,1,0] op_sel_hi:[1,1,1]' % (P2(T+k), P2(U+k), P2(RR+2*i), P2(U+8+k)) for k in range(0, 8, 2)]
                r += ['v_pk_fma_f32 %s, %s, %s, %s op_sel_hi:[1,0,1]' % (P2(xs[k]), P2(xs[k]), P2(RR+2*i), P2(T+k)) for k in range(0, 8, 2)]
                r += ['v_max_f32 v%d, 0, v%d' % (x, x) for x in xs]
                r += ['v_pk_mul_f32 %s, %s, %s' % (P2(x), P2(x), P2(x)) for x in xs[::2]]
                r += ['v_cvt_pk_bf16_f32 v%d, v%d, v%d' % (xs[k], xs[2*k], xs[2*k+1]) for k in range(4)]
                if p < 3: r.append('buffer_store_dwordx4 v[%d:%d], v%d, s[24:27], s%d offen offset:%d' % (xs[0], xs[0]+3, 255 if p == 2 else 10, 60+i, 2048*(p % 2)))
                else: r.append('buffer_store_dwordx4 v[%d:%d], v10, s[24:27], s%d offen' % (xs[0], xs[0]+3, 64+i))
            return r
        b = Asm()
        for i in range(6): b('v_add_u32 v%d, %d, v%d' % (AB+i, delta, AD[i]))
        b('v_lshrrev_b32 v3, 4, v1\nv_lshlrev_b32 v3, 4, v3\ns_add_u32 s60, s60, %d\ns_add_u32 s59, s59, %d\nv_add_u32 v2, s60, v3\nv_add_u32 v3, s59, v3' % (UTL2, UTL2))
        b('v_and_b32 v250, 15, v1\nv_lshlrev_b32 v250, 3, v250\ns_lshl_b32 s60, s%d, 9\ns_add_u32 s60, s60, %d\ns_lshl_b32 s59, s%d, 8\ns_add_u32 s61, s60, s59\ns_sub_u32 s60, s60, s59\nv_add_u32 v251, s60, v250\nv_add_u32 v250, s61, v250' % (c.s_rh, RS, c.s_nh))
        b('v_lshlrev_b32 v10, 4, v1\nv_add_u32 v255, 4096, v10')
        b('s_lshl_b32 s60, s%d, 1\ns_add_u32 s60, s60, s%d\ns_mul_i32 s60, s60, %d\ns_mul_i32 s59, s%d, %d' % (c.s_mt, c.s_rh, 4*112*1024, c.s_nh, 2*112*1024))
        b('s_lshl_b32 s64, s%d, 4\ns_add_u32 s64, s64, s60\ns_add_u32 s64, s64, s59\ns_add_u32 s65, s64, %d' % (c.s_colh, 112*1024))
        b('s_lshl_b32 s61, s58, 4\ns_add_u32 s61, s61, s60\ns_sub_u32 s62, s61, s59\ns_add_u32 s62, s62, %d\ns_add_u32 s63, s62, %d\ns_add_u32 s60, s61, s59\ns_add_u32 s61, s60, %d' % (2*112*1024, 112*1024, 112*1024))
        setup = [l.strip() for l in b.lines]
        def weave(ms, rs, q, rate):
            for n, m in enumerate(ms):
                a(m)
                if rs: a(rs.pop(0))
                for _ in range(rate):
                    if q: a(q.pop(0))
            for r in rs: a(r)
        a(ms0[0]); a(ms0[1])
        a('s_barrier')
        weave(ms0[2:], rds(0), setup, 2)
        for l in setup: a(l)
        q = []
        for n, (p, st_, sub) in enumerate(steps):
            a('s_waitcnt lgkmcnt(0)')
            if n in (1, 3): a('s_barrier')
            rs = rds(n+1) if n + 1 < len(steps) else []
            if n == 3: rs += ['ds_read_b64 v[%d:%d], v%d offset:%d' % (RR+2*i, RR+2*i+1, 250 if i < 2 else 251, 128*i) for i in range(4)]
            if n % 4 == 2:
                while len(q) > len(epi(p-1)) if p else False: a(q.pop(0))
                rs += utr(p)
            if n % 4 == 0 and p: q += epi(p-1)
            weave(mms(n), rs, q, opt.prate)
        rt(a, 12)
        a('s_barrier')
        rt(a, 31)
        q += epi(3)
        b = Asm()
        b('s_lshl_b32 s59, s%d, 13\ns_lshl_b32 s58, s%d, 10\ns_add_u32 s59, s59, s58\ns_lshl_b32 s58, s%d, 12\ns_add_u32 s59, s59, 32768\nv_add_u32 v7, s59, v10\nv_subrev_u32 v8, s58, v7\nv_add_u32 v7, s58, v7\nv_add_u32 v9, 0x10000, v7\nv_add_u32 v6, 0x10000, v8' % (c.s_rh, c.s_nh, c.s_nh))
        for l in b.lines: a(l)
        wr = lambda p: ['ds_write_b128 v%d, v[%d:%d] offset:%d' % ([7, 7, 9][p] if i < 2 else [8, 8, 6][p], ACC(2*p, i), ACC(2*p, i)+3, 32768*(p % 2) + 2048*i) for i in range(4)]
        w01 = wr(0) + wr(1)
        while q:
            for _ in range(8):
                if q: a(q.pop(0))
            if w01: a(w01.pop(0))
        for l in w01 + wr(2): a(l)
    if opt.ptail: c.panel_tail = panel_tail
    gemm.consumer(a, c)
    if opt.ptail:
        rt(a, 13)
        a('s_waitcnt lgkmcnt(0)')
        rt(a, 14)
        return c
    rt(a, 12)
    UU = 12; TT = 44; RR = c.v_free; TM = RR + 8
    a('v_lshrrev_b32 v3, 4, v1\nv_lshlrev_b32 v3, 4, v3\ns_add_u32 s60, s60, %d\ns_add_u32 s59, s59, %d\nv_add_u32 v2, s60, v3\nv_add_u32 v3, s59, v3' % (UTL2, UTL2))
    a('v_and_b32 v5, 15, v1\nv_lshlrev_b32 v5, 3, v5\ns_lshl_b32 s60, s%d, 9\ns_add_u32 s60, s60, %d\ns_lshl_b32 s59, s%d, 8\ns_add_u32 s61, s60, s59\ns_sub_u32 s60, s60, s59\nv_add_u32 v6, s60, v5\nv_add_u32 v5, s61, v5' % (c.s_rh, RS, c.s_nh))
    a('s_barrier')
    rt(a, 31)
    for i in range(4): a('ds_read_b64 v[%d:%d], v%d offset:%d' % (RR+2*i, RR+2*i+1, 5 if i < 2 else 6, 128*i))
    for j in range(8):
        o = ((j//2)*128 + (j % 2)*32)*2 if j < 6 else (j-6)*64
        a('ds_read_b128 v[%d:%d], v%d offset:%d\nds_read_b128 v[%d:%d], v%d offset:%d' % (UU+4*j, UU+4*j+3, 2 if j < 6 else 3, o, TT+4*j, TT+4*j+3, 2 if j < 6 else 3, o+1024))
    a('v_lshlrev_b32 v4, 4, v1')
    a('s_lshl_b32 s60, s%d, 1\ns_add_u32 s60, s60, s%d\ns_mul_i32 s60, s60, %d' % (c.s_mt, c.s_rh, 4*112*1024))
    a('s_mul_i32 s59, s%d, %d' % (c.s_nh, 2*112*1024))
    a('s_lshl_b32 s61, s58, 4\ns_add_u32 s61, s61, s60')
    a('s_lshl_b32 s62, s%d, 4\ns_add_u32 s62, s62, s60\ns_add_u32 s62, s62, s59' % c.s_colh)
    a('s_add_u32 s61, s61, s59')
    MBS = 112*1024
    if opt.tl & 8:
        MBS = 2048
        a('s_mul_i32 s60, s%d, %d\ns_lshl_b32 s59, s%d, 13\ns_add_u32 s60, s60, s59\ns_lshl_b32 s59, s%d, 12' % (c.s_mt, 8*112*1024, c.s_rh, c.s_nh))
        a('s_lshl_b32 s61, s%d, 7\ns_add_u32 s61, s61, s60\ns_add_u32 s61, s61, s59\ns_lshl_b32 s62, s%d, 10\ns_add_u32 s61, s61, s62' % (c.s_col0, c.s_nh))
        a('s_lshr_b32 s62, s%d, 7\ns_lshl_b32 s62, s62, 14\ns_add_u32 s62, s62, s60\ns_add_u32 s62, s62, s59\ns_bfe_u32 s63, s%d, 0x10006\ns_lshl_b32 s63, s63, 10\ns_add_u32 s62, s62, s63' % (c.s_colh, c.s_colh))
    PK = 76
    a('s_lshl_b32 s63, s%d, 13\ns_lshl_b32 s64, s%d, 10\ns_add_u32 s63, s63, s64\ns_lshl_b32 s64, s%d, 12\ns_add_u32 s65, s63, s64\ns_sub_u32 s63, s63, s64\ns_add_u32 s65, s65, 32768\ns_add_u32 s63, s63, 32768\nv_add_u32 v7, s65, v4\nv_add_u32 v8, s63, v4\nv_add_u32 v9, 0x10000, v7\nv_add_u32 v10, 0x10000, v8' % (c.s_rh, c.s_nh, c.s_nh))
    a('s_waitcnt lgkmcnt(0)')
    for i in range(4):
        nj = 8 if i < 2 else 6
        xs = [ACC(j, i, r) for j in range(nj) for r in range(4)]
        for b in range(0, 4*nj, 16):
            for k in range(b, min(b+16, 4*nj), 2): a('v_pk_fma_f32 %s, %s, %s, %s op_sel:[0,1,0] op_sel_hi:[1,1,1]' % (P2(TM+k-b), P2(UU+k), P2(RR+2*i), P2(TT+k)))
            for k in range(b, min(b+16, 4*nj), 2): a('v_pk_fma_f32 %s, %s, %s, %s op_sel_hi:[1,0,1]' % (P2(xs[k]), P2(xs[k]), P2(RR+2*i), P2(TM+k-b)))
        for x in xs: a('v_max_f32 v%d, 0, v%d' % (x, x))
        for x in xs[::2]: a('v_pk_mul_f32 v[%d:%d], v[%d:%d], v[%d:%d]' % (x, x+1, x, x+1, x, x+1))
        pk = PK + (i % 2)*16
        for k in range(2*nj): a('v_cvt_pk_bf16_f32 v%d, v%d, v%d' % (pk+k, xs[2*k], xs[2*k+1]))
        for p in range(3): a('ds_write_b128 v%d, v[%d:%d] offset:%d' % ((7 if i < 2 else 8) + (2 if p == 2 else 0), pk+4*p, pk+4*p+3, 32768*(p % 2) + 2048*i))
        for p in range(3):
            if opt.tl & 8:
                a('s_add_u32 s63, s61, %d' % (16384*p))
                a('buffer_store_dwordx4 v[%d:%d], v4, s[24:27], s63 offen' % (pk+4*p, pk+4*p+3))
            elif p < 2: a('buffer_store_dwordx4 v[%d:%d], v4, s[24:27], s61 offen offset:%d' % (pk+4*p, pk+4*p+3, 2048*p))
            else:
                a('s_add_u32 s63, s61, 4096')
                a('buffer_store_dwordx4 v[%d:%d], v4, s[24:27], s63 offen' % (pk+4*p, pk+4*p+3))
        if i < 2:
            a('buffer_store_dwordx4 v[%d:%d], v4, s[24:27], s62 offen' % (pk+12, pk+15))
            a('s_add_u32 s62, s62, %d' % MBS)
        a('s_add_u32 s61, s61, %d' % MBS)
        if i == 1: a('s_lshl_b32 s59, s59, 1\ns_sub_u32 s61, s61, s59')
    rt(a, 13)
    a('s_waitcnt lgkmcnt(0)')
    rt(a, 14)
    return c

def ph_w2s(P, C, st):
    NO = opt.nown; NS = (56 - NO)//2
    c = gemm.config('w2', 64*(NS+NO), 128, 2, False, 64, opt.w2S, 2048, 0, xKG=112, panel_sreg=59, lead=opt.w2L, nown=NO, rpm_own=opt.rpm_own, slot0=1)
    assert NO == 6
    LOC = opt.loc
    A_ = gemm.order_table(28, 4, 'lead'); B_ = gemm.order_table(NO, 4, 'lead')
    tabs = []
    for j in range(4):
        for nt in range(16):
            cp, kh = nt & 7, nt >> 3
            loc = [(7*cp + (cp & 1))//2 + q for q in range(3)]
            O_ = [0, 1, 2] if cp == 7 else [25, 26, 27]
            own = O_ + [28 + x for x in O_]
            tabs.append([28*kh + x for x in loc + [x for x in A_[j] if x not in loc and x not in O_]] + [own[x] for x in B_[j]])
            assert len(tabs[-1]) == NS + NO
    c.tabs_override = tabs
    c.nloc, c.tabsel, c.st0 = 3, 38, 37
    if opt.xsc1: c.xflags = ' sc1'
    XT = 147456
    head = lambda a, ptrs: uhead(a, c, ptrs)
    head(P, [(4, P_W2), (32, P_B2)])
    P('s_mul_i32 s37, s38, 7\ns_and_b32 s36, s38, 1\ns_add_u32 s37, s37, s36\ns_lshr_b32 s37, s37, 1')
    P('s_and_b32 s58, s%d, 1\ns_mov_b32 s59, 128\ns_cmp_eq_u32 s58, 0\ns_cselect_b32 s59, s59, -128' % c.s_nt)
    srds = lambda a: [srd(a, *x) for x in [(8, 6, HF, 2048*7168), (12, 4, 0, 3584*2048)]]
    c.srd_hook = srds
    NPR = opt.prog
    def m6(a):
        a('s_lshr_b32 s60, s%d, %d\ns_mul_i32 s61, s60, 9363\ns_lshr_b32 s61, s61, 16\ns_lshl_b32 s61, 1, s61' % (c.s_kx, c.xsh-1))
        a('s_add_u32 s60, s60, 1\ns_mul_i32 s60, s60, 9363\ns_lshr_b32 s60, s60, 16\ns_lshl_b32 s60, 1, s60\ns_or_b32 s60, s60, s61')
    need6 = lambda a, t: need(a, 'f6', t, m6 if t < 3 + NPR - 1 else None)
    c.sig_at = opt.sig_at
    c.boundary0 = lambda a, c, vm: psync(a, 'f6', 6, 93, 97, c.s_mt, part=0)
    def boundary(a, c, vm):
        a('s_mov_b32 s91, 0')
        need6(a, 3)
        rt(a, 13)
    c.pre_issue = lambda a, c, vm, t: need6(a, t) if t < 3 + NPR else None
    c.npeel = max(0, NPR - 3)
    c.boundary = boundary
    if opt.ptail: c.early_first = lambda a, c, vm: st['w1_ptail'](a, vm)
    def early_issue(a, c, vm):
        if not opt.ptail: st['w1_ptail'](a, vm)
        a('s_cmp_lg_u32 s42, 6\ns_cbranch_scc1 w2_ng')
        gates(a, c, [5], 32, 131072, 160)
        a.label('w2_ng')
        if not opt.umap:
            a('s_lshl_b32 s62, s%d, 4\ns_add_u32 s62, s62, s%d\ns_lshl_b32 s62, s62, %d\ns_add_u32 s62, s62, %d\nv_mov_b32 v243, 0' % (c.s_mt, c.s_nt, MS, 9*ROW))
            a('buffer_load_dword v242, v243, s[84:87], s62 offen sc1')
            vm.issue('fx')
    c.early_issue = early_issue
    if not opt.umap:
        def tail(a, c, vm):
            V = c.p_vfree
            vm.wait('fx')
            a('s_mov_b32 s90, 200000')
            a.label('fx_p')
            a('v_cmp_ne_u32 vcc, s3, v242\ns_cmp_eq_u64 vcc, 0\ns_cbranch_scc1 fx_y')
            a('buffer_load_dword v242, v243, s[84:87], s62 offen sc1\ns_sub_u32 s90, s90, 1\ns_waitcnt vmcnt(0)\ns_cmp_lg_u32 s90, 0\ns_cbranch_scc1 fx_p')
            a.label('fx_y')
            srd(a, 16, 6, X1, 0x400000)
            a('s_sub_u32 s59, s42, 4\ns_lshl_b32 s60, s%d, 2\ns_add_u32 s60, s60, s59\ns_lshl_b32 s60, s60, 16\ns_lshl_b32 s61, s%d, 11\ns_add_u32 s60, s60, s61\ns_add_u32 s61, s60, %d' % (c.s_mt, c.s_nt, 32768-2048))
            if opt.tl & 4: a('s_lshl_b32 s60, s%d, 4\ns_add_u32 s60, s60, s%d\ns_lshl_b32 s60, s60, 2\ns_add_u32 s60, s60, s59\ns_lshl_b32 s60, s60, 12\ns_mov_b32 s61, s60' % (c.s_mt, c.s_nt))
            a('s_lshl_b32 s59, s59, 12\ns_add_u32 m0, s59, %d\nv_lshlrev_b32 v%d, 4, v1' % (XT, V))
            for i in range(4): a('buffer_load_dwordx4 v%d, s[16:19], s%d offen offset:%d sc1 lds' % (V, 60 + i//2, 1024*i))
            vm.issue('op', 4)
        c.tail_issue = tail; c.pre_last_bar = lambda a, c, vm: vm.wait('op')
    c.first_c = lambda c, j: '0'
    c.vm_init = st['vm_init']
    KS_, KP_ = NS + opt.own_sig, NS + NO - 1 - opt.own_ld
    def bar_hook(a, c, vm, k):
        if k == KS_:
            a('s_cmp_lg_u32 s42, 4\ns_cbranch_scc1 f8_ns\ns_lshl_b32 s88, s2, %d\ns_add_u32 s88, s88, %d\nv_mov_b32 v253, s3\ns_mov_b64 exec, 1' % (MS, FL8*ROW))
            rt(a, 18)
            a('buffer_store_dword v253, v252, s[84:87], s88 offen sc1\ns_mov_b64 exec, -1')
            a.label('f8_ns')
    def wait_hook(a, c, vm, k):
        if k == KP_ - 1:
            a('s_xor_b32 s89, s2, 4\ns_lshl_b32 s89, s89, %d\ns_add_u32 s89, s89, %d\ns_mov_b32 s90, 200000\nv_mov_b32 v241, 0' % (MS, FL8*ROW))
            a('buffer_load_dword v240, v241, s[84:87], s89 offen sc1')
            vm.issue('f8')
        if k == KP_:
            vm.wait('f8')
            a.label('f8_p')
            a('v_cmp_ne_u32 vcc, s3, v240\ns_cmp_eq_u64 vcc, 0\ns_cbranch_scc1 f8_y')
            a('buffer_load_dword v240, v241, s[84:87], s89 offen sc1\ns_sub_u32 s90, s90, 1\ns_waitcnt vmcnt(0)\ns_cmp_lg_u32 s90, 0\ns_cbranch_scc1 f8_p')
            a.label('f8_y')
            rt(a, 19)
    if NO: c.bar_hook, c.wait_hook = bar_hook, wait_hook
    gemm.producer(P, c, None)
    if opt.ts and c.flags: P('v_writelane_b32 v255, s70, %d' % (24 + c.fbase//16))
    if not NO:
        P('s_xor_b32 s60, s2, 32')
        psync(P, 'f8', FL8, 2, None, 60, n=1)
    a = C
    head(a, [(34, P_OUT)])
    a('s_waitcnt lgkmcnt(0)')
    srd(a, 28, 34, 0, 0x400000); srd(a, 24, 6, *(H2F, 0x400000) if opt.reuse else (XB, 0x800000))
    XR = lambda: c.v_free; GA = lambda: c.v_free + 16; XA = lambda: c.v_free + 32
    def pre(a, c):
        if not opt.umap:
            a('v_and_b32 v2, 15, v1\nv_lshlrev_b32 v2, 4, v2\nv_lshrrev_b32 v3, 5, v1\nv_lshl_add_u32 v2, v3, 8, v2\nv_bfe_u32 v3, v1, 4, 1\nv_lshl_add_u32 v2, v3, 3, v2')
            a('s_lshl_b32 s61, s%d, 13\ns_lshl_b32 s60, s%d, 10\ns_add_u32 s61, s61, s60\ns_add_u32 s61, s61, %d\nv_add_u32 v%d, s61, v2\nv_add_u32 v%d, 512, v%d' % (c.s_rh, c.s_nh, XT, XA(), XA()+1, XA()))
            return
        a('s_lshl_b32 s61, s%d, 2\nv_lshrrev_b32 v3, 5, v1\nv_add_u32 v3, s61, v3\nv_and_b32 v2, 7, v1\nv_xor_b32 v2, v2, v3\nv_lshlrev_b32 v2, 4, v2\nv_bfe_u32 v3, v1, 4, 1\nv_lshl_add_u32 v2, v3, 3, v2' % c.s_nh)
        a('v_and_b32 v3, 15, v1\nv_lshl_add_u32 v2, v3, 7, v2\ns_lshl_b32 s61, s%d, 13\ns_add_u32 s61, s61, %d\nv_add_u32 v%d, s61, v2\nv_xor_b32 v%d, 32, v%d' % (c.s_rh, XT, XA(), XA()+1, XA()))
    def rd(a, c):
        a('s_lshl_b32 s60, s%d, 7\ns_add_u32 s61, s60, 131072\nv_lshrrev_b32 v3, 4, v1\nv_lshl_add_u32 v3, v3, 4, s61' % c.s_nh)
        for q in range(2):
            for j in range(2): a('ds_read_b128 v[%d:%d], v3 offset:%d' % (GA()+8*q+4*j, GA()+8*q+4*j+3, 256*q + 64*j))
    def last_reads(c):
        return ['ds_read_b64 v[%d:%d], v%d offset:%d' % (XR()+4*i+2*j, XR()+4*i+2*j+1, XA()+j, 2048*i) for i in range(4) for j in range(2)]
    c.pre_hook, c.last_reads = pre, last_reads
    c.post_b0 = chain(lambda a, c: rt(a, 15), rd)
    def xstore(a, c):
        a('s_lshl_b32 s60, s2, 2\ns_add_u32 s60, s60, s%d\ns_lshl_b32 s60, s60, 13\ns_xor_b32 s61, s60, %d\nv_lshlrev_b32 v2, 4, v1' % (c.s_wave, 4*4*8192))
        for k in range(8):
            if k == 4: a('s_add_u32 s60, s60, 4096')
            a('buffer_store_dwordx4 v[%d:%d], v2, s[24:27], s60 offen offset:%d' % (c.v_acc+32+4*k, c.v_acc+35+4*k, 1024*(k % 4)))
    def xload(a, c, dst):
        for i in range(4):
            for j in range(2):
                k = j*4 + i
                a('s_add_u32 s63, s61, %d' % (1024*k))
                a('buffer_load_dwordx4 v[%d:%d], v2, s[24:27], s63 offen sc1' % (dst+4*k, dst+4*k+3))
    def own_hook(a, c, q, where):
        if q == 0 and where == 0 and opt.reuse:
            assert opt.xbf
            a('s_lshl_b32 s60, s%d, 4\ns_add_u32 s60, s60, s38\ns_lshl_b32 s60, s60, 2\ns_add_u32 s60, s60, s42\ns_lshl_b32 s60, s60, 12\ns_xor_b32 s62, s60, 0x20000\nv_lshlrev_b32 v2, 4, v1' % c.s_mt)
        elif q == 0 and where == 0:
            a('s_lshl_b32 s60, s2, 2\ns_add_u32 s60, s60, s%d\ns_lshl_b32 s60, s60, 13\ns_xor_b32 s62, s60, %d\ns_add_u32 s61, s60, 4096\ns_add_u32 s63, s62, 4096\nv_lshlrev_b32 v2, 4, v1' % (c.s_wave, 4*4*8192))
        if NS + q + 1 == KS_ and where == 1: a('s_waitcnt vmcnt(0)')
    XP = 176
    def own_extra(c, q, st):
        n = q*2 + st
        if opt.xbf:
            if n < 4:
                return ['v_cvt_pk_bf16_f32 v%d, v%d, v%d' % (XP+4*n+2*j+e, c.v_acc+32+(j*4+n)*4+2*e, c.v_acc+33+(j*4+n)*4+2*e) for j in range(2) for e in range(2)] + \
                       ['buffer_store_dwordx4 v[%d:%d], v2, s[24:27], s60 offen offset:%d' % (XP+4*n, XP+4*n+3, 1024*n)]
            n -= 2*(KP_ - NS) - 1
            per = -(-4 // (2*(NS + NO - KP_) + 1))
            ks = list(range(4))[per*n:per*n+per] if n >= 0 else []
            return ['buffer_load_dwordx4 v[%d:%d], v2, s[24:27], s62 offen offset:%d sc1' % (XP+4*k, XP+4*k+3, 1024*k) for k in ks]
        if n < 4: return ['buffer_store_dwordx4 v[%d:%d], v2, s[24:27], s%d offen offset:%d' % (c.v_acc+32+4*k, c.v_acc+35+4*k, 60 + k//4, 1024*(k % 4)) for k in (2*n, 2*n+1)]
        n -= 2*(KP_ - NS) - 1
        per = -(-8 // (2*(NS + NO - KP_) + 1))
        ks = [j*4 + i for i in range(4) for j in range(2)][per*n:per*n+per] if n >= 0 else []
        return ['buffer_load_dwordx4 v[%d:%d], v2, s[24:27], s%d offen offset:%d sc1' % (c.v_acc+32+4*k, c.v_acc+35+4*k, 62 + k//4, 1024*(k % 4)) for k in ks]
    c.own_extra = own_extra
    c.own_hook = own_hook
    gemm.consumer(a, c)
    if c.stamps: gemm.dump_stamps(a, c)
    rt(a, 16)
    ACC = lambda j, i, r=0: c.v_acc + (j*4+i)*4 + r
    if not NO: xstore(a, c)
    U = 12; PK = 44; RB = 48 + 16
    a('s_waitcnt lgkmcnt(0)')
    for i in range(4):
        for j in range(2):
            for e in range(2): unpack(a, U+8*i+4*j+2*e, U+8*i+4*j+2*e+1, XR()+4*i+2*j+e)
            for r in (0, 2): a('v_pk_add_f32 %s, %s, %s' % (P2(U+8*i+4*j+r), P2(U+8*i+4*j+r), P2(GA()+8+4*j+r)))
            for r in (0, 2): a('v_pk_fma_f32 %s, %s, %s, %s' % (P2(U+8*i+4*j+r), P2(ACC(j,i,r)), P2(GA()+4*j+r), P2(U+8*i+4*j+r)))
    a('v_and_b32 v2, 15, v1\nv_lshlrev_b32 v2, 11, v2\nv_bfe_u32 v3, v1, 4, 1\nv_lshl_add_u32 v2, v3, 5, v2\nv_lshrrev_b32 v3, 5, v1\nv_lshl_add_u32 v2, v3, 4, v2')
    a('s_lshl_b32 s62, s%d, 1\ns_add_u32 s62, s62, s%d\ns_lshl_b32 s62, s62, 17\ns_lshl_b32 s63, s%d, 1\ns_add_u32 s63, s63, s%d\ns_lshl_b32 s63, s63, 6\ns_add_u32 s62, s62, s63' % (c.s_mt, c.s_rh, c.s_nt, c.s_nh))
    if opt.fullout:
        a('v_bfe_u32 v5, v1, 4, 1\nv_lshlrev_b32 v5, 1, v5\nv_lshrrev_b32 v6, 5, v1\nv_add_u32 v5, v5, v6\ns_lshl_b32 s63, s%d, 2\nv_add_u32 v5, s63, v5\nv_and_b32 v6, 7, v1\nv_xor_b32 v5, v5, v6\nv_lshlrev_b32 v5, 4, v5' % c.s_nh)
        a('v_and_b32 v7, 15, v1\nv_lshl_add_u32 v5, v7, 7, v5\ns_lshl_b32 s63, s%d, 13\nv_add_u32 v5, s63, v5' % c.s_rh)
        a('v_lshrrev_b32 v7, 3, v1\nv_xor_b32 v8, v6, v7\nv_lshlrev_b32 v8, 4, v8\nv_lshl_add_u32 v8, v7, 7, v8\nv_lshlrev_b32 v7, 11, v7\nv_lshl_add_u32 v7, v6, 4, v7\ns_lshl_b32 s63, s42, 12\nv_add_u32 v6, s63, v8')
        a('s_lshl_b32 s62, s%d, 2\ns_add_u32 s62, s62, s42\ns_lshl_b32 s62, s62, 16\ns_lshl_b32 s63, s%d, 7\ns_add_u32 s62, s62, s63' % (c.s_mt, c.s_nt))
    v2s = a.lines;
    if not NO:
        a('s_waitcnt vmcnt(0)\ns_barrier\ns_barrier')
        a('v_lshlrev_b32 v4, 4, v1')
        xl = Asm(); xload(xl, c, c.v_acc+32); a.lines += [l.replace(', v2,', ', v4,') for l in xl.lines]
    ACC = lambda j, i, r=0: c.v_acc + 32 + (j*4+i)*4 + r
    for i in range(4):
        if opt.xbf:
            a('s_waitcnt vmcnt(3)')
            for j in range(2):
                for e in range(2): unpack(a, ACC(j,i,2*e), ACC(j,i,2*e+1), XP+4*i+2*j+e)
        else: a('s_waitcnt vmcnt(%d)' % (6 - 2*i + (0 if opt.fullout else i)))
        for j in range(2):
            for r in (0, 2): a('v_pk_fma_f32 %s, %s, %s, %s' % (P2(U+8*i+4*j+r), P2(ACC(j,i,r)), P2(GA()+4*j+r), P2(U+8*i+4*j+r)))
            for e in range(2): a('v_cvt_pk_bf16_f32 v%d, v%d, v%d' % (PK+4*i+2*j+e, U+8*i+4*j+2*e, U+8*i+4*j+2*e+1))
        for e in range(2): a('v_permlane16_swap_b32 v%d, v%d' % (PK+4*i+e, PK+4*i+2+e))
        if opt.fullout: a('ds_write_b128 v5, v[%d:%d] offset:%d' % (PK+4*i, PK+4*i+3, 2048*i))
        else:
            a('buffer_store_dwordx4 v[%d:%d], v2, s[28:31], s62 offen' % (PK+4*i, PK+4*i+3))
            a('s_add_u32 s62, s62, 32768')
    if opt.fullout:
        a('s_waitcnt lgkmcnt(0)\ns_barrier')
        for i in range(4): a('ds_read_b128 v[%d:%d], v6 offset:%d' % (PK+4*i, PK+4*i+3, 1024*i))
        for i in range(4):
            a('s_waitcnt lgkmcnt(%d)' % (3-i))
            a('buffer_store_dwordx4 v[%d:%d], v7, s[28:31], s62 offen' % (PK+4*i, PK+4*i+3))
            a('s_add_u32 s62, s62, 16384')
    return c

HEADER = '''; One persistent kernel, 256 workgroups x 8 waves (one per CU). Waves 0-3 run the MFMA loops and epilogues,
; Workgroups hand data over through write-through stores and flag words in d_ws; a flag holds a value derived from one
; d_ws word read on entry, only to tell this launch's hand-offs from older ones. All waits are bounded.
'''
def build(path, **kw):
    for k, v in kw.items(): setattr(opt, k, v)
    a = Asm()
    n = KNAME
    OUT.lines = []
    a.kernel_begin(n)
    a('s_cmp_ge_u32 s2, 256\ns_cbranch_scc1 mega_end')
    a('v_lshrrev_b32 v2, 6, v0\nv_and_b32 v1, 63, v0\nv_readfirstlane_b32 s42, v2')
    a('s_cmp_lt_u32 s42, 4\ns_cbranch_scc1 mega_cons')
    P = Asm(); C = Asm(); st = {}; C.cons = True
    rt(C, 0)
    cs = [f(P, C, st) for f in (ph_qkv, ph_wo, ph_w1, ph_w2s)]
    a.lines += P.lines
    if opt.ts:
        a('s_cmp_lg_u32 s42, 5\ns_cbranch_scc1 mega_end')
        srd(a, 88, 6, TS + 0x10000, 0x10000)
        a('s_lshl_b32 s92, s2, 8\nv_lshlrev_b32 v2, 2, v1\nbuffer_store_dword v255, v2, s[88:91], s92 offen')
    a('s_endpgm')
    a.label('mega_cons')
    a.lines += C.lines
    if opt.ts:
        a('s_waitcnt vmcnt(0)')
        a.cons = True
        rt(a, 17)
        a('s_cmp_lg_u32 s42, 0\ns_cbranch_scc1 mega_end')
        srd(a, 88, 6, TS, 0x10000)
        a('s_lshl_b32 s92, s2, 8\nv_lshlrev_b32 v2, 2, v1\nbuffer_store_dword v11, v2, s[88:91], s92 offen')
    a.label('mega_end')
    a('s_endpgm')
    a.lines += OUT.lines
    for c in cs: gemm.table(a, c)
    a.label('code_end')
    a('s_endpgm')
    a.kernel_end(n, 256, 102, 256, 256, 512, 163840)
    a.lines = [l + opt.sflags if ('buffer_store_dwordx' in l) else l for l in a.lines]
    if opt.outflags is not None:
        k = max(i for i, l in enumerate(a.lines) if 'w2_cloop' in l)
        a.lines = [l.replace(opt.sflags, opt.outflags) if (i > k and 'buffer_store_dwordx4' in l and 's[28:31]' in l) else l for i, l in enumerate(a.lines)]
    if opt.plain: a.launches = ['; @launch grid=(256,1,1) block=(512,1,1) lds=163840']
    hdr = ''
    if opt.plain:
        ref = open('cdna_kernels/%s.s.ref' % KNAME[:-7]).read().split('\n')
        hdr = '\n'.join(l for l in ref if l.startswith(';') and '@launch' not in l) + '\n' + HEADER
    open(path, 'w').write(a.text(header=hdr, verbose=kw.get('verbose', False)))

KNAME = 'adaLN_cond__linear_kernel_hedgehog__dense_activation_squared_relu__prompt_kernel'
opt.plain = False; opt.wsoff = 0; opt.tl = 8; opt.outflags = None; opt.x1p = True; opt.x1at = 7; opt.qmir = False; opt.ptail = False; opt.prate = 3; opt.spf0 = (0, 0); opt.prog1 = 0; opt.prog3 = 5; opt.prog5 = 0; opt.reuse = False; opt.pf6 = 16; opt.prog = 10; opt.wo_order = 'lead'; opt.umap = False; opt.sig_at = 1; opt.wo_G = 4; opt.loc = 3; opt.midpos = 3; opt.pfo = 0; opt.xbf = True; opt.rpm_own = 1; opt.nown = 6; opt.own_sig = 3; opt.own_ld = 0; opt.noexec = False; opt.fsplit = 2; opt.flags = (); opt.woBK = 128; opt.woS = 3; opt.cpflate = True; opt.esync = False; opt.w1late = (); opt.cunroll = 1; opt.mbb = 2; opt.ut_at = 13; opt.glate = True; opt.td0 = 1; opt.td1 = 0; opt.pf5 = 10; opt.fullout = False; opt.earlym = False; opt.warm = True; opt.xsc1 = True; opt.unroll = True; opt.pollgap = 0; opt.wlate = 7; opt.st_at = 5; opt.pf3 = 0; opt.spf4 = 0; opt.spf2 = 0; opt.pre4 = True; opt.pf4 = 1; opt.w2s = True; opt.w2S = 4; opt.w2L = 3; opt.spoll = False; opt.satom = False; opt.gvflags = ' nt'; opt.eprio = 0; opt.pf2 = 1
if __name__ == '__main__':
    kw = eval('dict(%s)' % (sys.argv[2] if len(sys.argv) > 2 else ''))
    build(sys.argv[1], **kw)
```
